```python
import torch

def _softmax(x, axis=-1):
    return torch.softmax(x, dim=axis)
def _gelu(x):
    return torch.nn.functional.gelu(x, approximate="tanh")
def _silu(x):
    return torch.nn.functional.silu(x)
def _sigmoid(x):
    return torch.sigmoid(x)
def _layernorm(x, axis=-1, eps=1e-5):
    m = x.mean(dim=axis, keepdim=True)
    v = x.var(dim=axis, keepdim=True, unbiased=False)
    return (x - m) / torch.sqrt(v + eps)
def _scatter_add(tgt, idx, src, axis=0):
    return tgt.clone().index_add_(axis, idx, src)
def _segment_sum(src, seg, n):
    out = torch.zeros((n,) + src.shape[1:], dtype=src.dtype)
    return out.index_add_(0, seg, src)
def _pad(x, pw):
    flat = tuple(v for pair in reversed(pw) for v in pair)
    return torch.nn.functional.pad(x, flat)

kernel_name = 'concat_heads__mha_block_cached__mha_block_cached__near_ridge'

def setup_inputs():

    _w = (lambda a: (lambda t: t.to(torch.bfloat16) if t.is_floating_point() else t)(torch.as_tensor(a)))
    def _A_setup():
        B, Sq, D = 8, 256, 448
        H, Sk, Dh = 16, 1024, 256
        return {
            "x": _w((lambda *s: torch.randn(*s, dtype=torch.bfloat16) * 0.8)(B, Sq, D)),
            "k_cache": _w((lambda *s: torch.randn(*s, dtype=torch.bfloat16) * 0.8)(B, H, Sk, Dh)),
            "v_cache": _w((lambda *s: torch.randn(*s, dtype=torch.bfloat16) * 0.05)(B, H, Sk, Dh)),
            "wq": _w((lambda *s: torch.randn(*s, dtype=torch.bfloat16) * 0.8)(D, H * Dh) * (D ** -0.5)),
            "wo": _w((lambda *s: torch.randn(*s, dtype=torch.bfloat16) * 0.05)(H * Dh, D) * ((H * Dh) ** -0.5)),
        }
    _A_in = _A_setup()

    def _B_setup():
        B, Sq, D = 8, 256, 448
        H, Sk, Dh = 16, 1024, 256
        return {
            "x": _w((lambda *s: torch.randn(*s, dtype=torch.bfloat16) * 0.8)(B, Sq, D)),
            "k_cache": _w((lambda *s: torch.randn(*s, dtype=torch.bfloat16) * 0.8)(B, H, Sk, Dh)),
            "v_cache": _w((lambda *s: torch.randn(*s, dtype=torch.bfloat16) * 0.05)(B, H, Sk, Dh)),
            "wq": _w((lambda *s: torch.randn(*s, dtype=torch.bfloat16) * 0.8)(D, H * Dh) * (D ** -0.5)),
            "wo": _w((lambda *s: torch.randn(*s, dtype=torch.bfloat16) * 0.05)(H * Dh, D) * ((H * Dh) ** -0.5)),
        }
    _B_in = _B_setup()

    return {
        "A_x": _A_in["x"],
        "A_k_cache": _A_in["k_cache"],
        "A_v_cache": _A_in["v_cache"],
        "A_wq": _A_in["wq"],
        "A_wo": _A_in["wo"],
        "B_x": _B_in["x"],
        "B_k_cache": _B_in["k_cache"],
        "B_v_cache": _B_in["v_cache"],
        "B_wq": _B_in["wq"],
        "B_wo": _B_in["wo"],
    }

def reference(A_x, A_k_cache, A_v_cache, A_wq, A_wo, B_x, B_k_cache, B_v_cache, B_wq, B_wo):
    def _A_ref(x, k_cache, v_cache, wq, wo):
        B, Sq, D = x.shape
        H, Dh = 16, 256
        q = (lambda x, *d: x.permute(*d))((x @ wq).reshape(B, Sq, H, Dh), 0, 2, 1, 3)
        scores = torch.einsum("bhqd,bhkd->bhqk", q, k_cache) * (Dh ** -0.5)
        p = _softmax(scores, axis=-1)
        o = torch.einsum("bhqk,bhkd->bhqd", p, v_cache)
        return (lambda x, *d: x.permute(*d))(o, 0, 2, 1, 3).reshape(B, Sq, H * Dh) @ wo

    def _B_ref(x, k_cache, v_cache, wq, wo):
        B, Sq, D = x.shape
        H, Dh = 16, 256
        q = (lambda x, *d: x.permute(*d))((x @ wq).reshape(B, Sq, H, Dh), 0, 2, 1, 3)
        scores = torch.einsum("bhqd,bhkd->bhqk", q, k_cache) * (Dh ** -0.5)
        p = _softmax(scores, axis=-1)
        o = torch.einsum("bhqk,bhkd->bhqd", p, v_cache)
        return (lambda x, *d: x.permute(*d))(o, 0, 2, 1, 3).reshape(B, Sq, H * Dh) @ wo

    a = _A_ref(A_x, A_k_cache, A_v_cache, A_wq, A_wo)
    b = _B_ref(B_x, B_k_cache, B_v_cache, B_wq, B_wo)
    return torch.concatenate([a, b], axis=-1)
```

```python
import re

def R(f, b, n=1):
    return [f"{f}{i}" for i in range(b, b + n)]

def rng(f, b, n):
    return f"{f}{b}" if n == 1 else f"{f}[{b}:{b+n-1}]"

class I:
    __slots__ = ("text", "kind", "rd", "wr", "meta")
    def __init__(self, text, kind, rd=(), wr=(), **meta):
        self.text = text; self.kind = kind; self.rd = list(rd); self.wr = list(wr); self.meta = meta
    def __repr__(self): return self.text

def mfma(df, d, af, a, bf, b, cf=None, c=None):
    ct = "0" if c is None else rng(cf, c, 4)
    rd = R(af, a, 4) + R(bf, b, 4) + ([] if c is None else R(cf, c, 4))
    return I(f"v_mfma_f32_16x16x32_bf16 {rng(df,d,4)}, {rng(af,a,4)}, {rng(bf,b,4)}, {ct}", "mfma",
             rd, R(df, d, 4), d=(df, d), c=(cf, c) if c is not None else None, ab=R(af, a, 4) + R(bf, b, 4))

def valu(text, rd=(), wr=()): return I(text, "valu", rd, wr)
def trans(text, rd=(), wr=()): return I(text, "trans", rd, wr)
def salu(text, rd=(), wr=()): return I(text, "salu", rd, wr)
def wait_lgkm(n): return I(f"s_waitcnt lgkmcnt({n})", "wait", lgkm=n)
def wait_vm(n):
    assert 0 <= n <= 63, n
    return I(f"s_waitcnt vmcnt({n})", "wait", vm=n)
def barrier(): return I("s_barrier", "barrier")
def nop(n=0): return I(f"s_nop {n}", "nop", n=n)
def label(name): return I(f"{name}:", "label")
def raw(text, kind="salu", rd=(), wr=(), **m): return I(text, kind, rd, wr, **m)

def ds_read128(f, d, addr, off):
    assert 0 <= off < 65536, off
    return I(f"ds_read_b128 {rng(f,d,4)}, v{addr} offset:{off}", "ds", [f"v{addr}"], R(f, d, 4))
def ds_read_tr(f, d, addr, off):
    assert 0 <= off < 65536, off
    return I(f"ds_read_b64_tr_b16 {rng(f,d,2)}, v{addr} offset:{off}", "ds", [f"v{addr}"], R(f, d, 2))
def dma(voff, srd, soff, off, flags=""):
    assert 0 <= off < 4096
    so = soff if isinstance(soff, str) else str(soff)
    o = f" offset:{off}" if off else ""
    fl = f" {flags}" if flags else ""
    return I(f"buffer_load_dwordx4 v{voff}, s[{srd}:{srd+3}], {so} offen{o}{fl} lds", "dma",
             [f"v{voff}", "m0"] + R("s", srd, 4) + ([so] if so.startswith("s") else []))
def bload(d, n, voff, srd, soff, off, flags=""):
    assert 0 <= off < 4096
    so = soff if isinstance(soff, str) else str(soff)
    o = f" offset:{off}" if off else ""
    fl = f" {flags}" if flags else ""
    nm = {1: "dword", 2: "dwordx2", 4: "dwordx4"}[n]
    return I(f"buffer_load_{nm} {rng('v',d,n)}, v{voff}, s[{srd}:{srd+3}], {so} offen{o}{fl}", "vld",
             [f"v{voff}"] + R("s", srd, 4) + ([so] if so.startswith("s") else []), R("v", d, n))
def bstore(d, n, voff, srd, soff, off, flags=""):
    assert 0 <= off < 4096
    so = soff if isinstance(soff, str) else str(soff)
    o = f" offset:{off}" if off else ""
    fl = f" {flags}" if flags else ""
    nm = {1: "dword", 2: "dwordx2", 4: "dwordx4"}[n]
    return I(f"buffer_store_{nm} {rng('v',d,n)}, v{voff}, s[{srd}:{srd+3}], {so} offen{o}{fl}", "vst",
             [f"v{voff}"] + R("v", d, n) + R("s", srd, 4) + ([so] if so.startswith("s") else []), data=R("v", d, n))

class Gaps:
    def __init__(self, mf):
        self.m = list(mf)
        self.n = len(self.m)
        self.pre = [[] for _ in range(self.n)]
        self.mem = [None] * self.n
        self.vec = [[] for _ in range(self.n)]
        self.post = [[] for _ in range(self.n)]
    def cost(self, k):
        pre = len(self.pre[k]); mem = self.mem[k]; vec = self.vec[k]
        v = sum(2 if x.kind == "trans" else 1 for x in vec) + len(self.post[k])
        if mem is not None:
            v += 1 if mem.kind == "ds" else 2
        return max(pre - 1, 0) + v
    def free_vec(self, k): return 2 - self.cost(k)
    def put_pre(self, k, ins): self.pre[k].append(ins)
    def put_mem(self, k, ins):
        assert self.mem[k] is None, f"gap {k} already has mem {self.mem[k]}"
        self.mem[k] = ins
    def find_mem_gap(self, lo, hi, need=1):
        for k in range(lo, hi + 1):
            if self.mem[k] is None and self.free_vec(k) >= need and not self.vec[k]:
                return k
        return None
    def place_vec(self, ins, lo, hi):
        need = 2 if ins.kind == "trans" else 1
        for k in range(lo, hi):
            if self.free_vec(k) >= need:
                if need == 2 and self.mem[k] is not None: continue
                self.vec[k].append(ins); return k
        return None
    def emit(self, lo=0, hi=None):
        out = []
        for k in range(lo, self.n if hi is None else hi):
            out.append(self.m[k])
            out += self.pre[k]
            if self.mem[k] is not None: out.append(self.mem[k])
            out += self.vec[k]
            out += self.post[k]
        return out

class HazardError(Exception): pass

def check(stream, name="", init_lgkm=(), init_vm=(), verbose=False):
    lg = list(init_lgkm)
    vm = list(init_vm)
    last_mfma_w = {}
    last_valu_w = {}
    last_trans_w = {}
    last_mfma_c = {}
    last_store_data = {}
    last_salu_m0 = -10
    last_valu_sgpr = {}
    slot = 0
    errs = []
    def err(i, msg): errs.append(f"[{name}] slot {slot}: {msg} :: {i.text}")
    for i in stream:
        k = i.kind
        if k == "label": continue
        pend_l = {r for op in lg for r in op}; pend_v = {r for op in vm for r in op}
        touched = set(i.rd) | set(i.wr)
        if k != "wait":
            bad = touched & pend_l
            if bad: err(i, f"touches pending LDS dest {sorted(bad)}")
            bad = touched & pend_v
            if bad: err(i, f"touches pending VMEM dest {sorted(bad)}")
        if k == "wait":
            if "lgkm" in i.meta:
                n = i.meta["lgkm"]
                while len(lg) > n: lg.pop(0)
            if "vm" in i.meta:
                n = i.meta["vm"]
                while len(vm) > n: vm.pop(0)
        if k == "mfma":
            c = i.meta["c"]; d = i.meta["d"]
            for r in i.meta["ab"]:
                if r in last_mfma_w and slot - last_mfma_w[r][0] - 1 < 8: err(i, f"MFMA D->SrcA/B {r} dist {slot-last_mfma_w[r][0]-1}<8")
                if r in last_valu_w and slot - last_valu_w[r] - 1 < 2: err(i, f"VALU->MFMA A/B {r} dist<2")
            if c is not None:
                for r in R(c[0], c[1], 4):
                    if r in last_valu_w and slot - last_valu_w[r] - 1 < 2: err(i, f"VALU->MFMA C {r} dist<2")
                    if r in last_mfma_w and last_mfma_w[r][1] != c and slot - last_mfma_w[r][0] - 1 < 6:
                        err(i, f"MFMA D->SrcC partial overlap {r}")
            for r in i.wr:
                if r in last_valu_w and slot - last_valu_w[r] - 1 < 2 and False: pass
        elif k in ("valu", "trans", "ds", "vld", "vst", "dma"):
            for r in (set(i.rd) | set(i.wr)):
                if r in last_mfma_w and slot - last_mfma_w[r][0] - 1 < 8:
                    err(i, f"MFMA D->{k} access {r} dist {slot-last_mfma_w[r][0]-1}<8")
            if k in ("valu", "trans"):
                for r in i.wr:
                    if r in last_mfma_c and slot - last_mfma_c[r] - 1 < 3: err(i, f"MFMA SrcC WAR {r} dist<3")
                    if r in last_store_data and slot - last_store_data[r] - 1 < 2: err(i, f"store data WAR {r} dist<2")
                if k == "valu" or k == "trans":
                    for r in i.rd:
                        if r in last_trans_w and slot - last_trans_w[r] - 1 < 1 and k == "valu": err(i, f"trans->valu {r} dist<1")
                if "permlane" in i.text or "dpp" in i.text or "row_" in i.text:
                    for r in i.rd:
                        if r in last_valu_w and slot - last_valu_w[r] - 1 < 2: err(i, f"VALU->permlane/dpp {r} dist<2")
                if "readfirstlane" in i.text or "readlane" in i.text:
                    for r in i.rd:
                        if r in last_valu_w and slot - last_valu_w[r] - 1 < 1: err(i, f"VALU->readlane {r} dist<1")
                for r in i.rd:
                    if (r.startswith("s") or r == "vcc") and r in last_valu_sgpr and slot - last_valu_sgpr[r] - 1 < 2:
                        err(i, f"VALU sgpr write->VALU read {r} dist<2")
            if k in ("vld", "vst", "dma"):
                for r in i.rd:
                    if r in last_valu_sgpr and slot - last_valu_sgpr[r] - 1 < 5: err(i, f"VALU sgpr->VMEM {r} dist<5")
            if k == "dma" and slot - last_salu_m0 - 1 < 1: err(i, "M0 write -> LDS DMA dist<1")
        if k == "mfma":
            for r in i.wr: last_mfma_w[r] = (slot, i.meta["d"]); last_valu_w.pop(r, None)
            if i.meta["c"] is not None:
                for r in R(i.meta["c"][0], i.meta["c"][1], 4): last_mfma_c[r] = slot
        elif k in ("valu", "trans"):
            for r in i.wr:
                if r.startswith("s") or r == "vcc": last_valu_sgpr[r] = slot
                else:
                    last_valu_w[r] = slot; last_mfma_w.pop(r, None)
                    if k == "trans": last_trans_w[r] = slot
                    else: last_trans_w.pop(r, None)
        elif k == "ds":
            lg.append(list(i.wr))
            if len(lg) > 15: err(i, "more than 15 LDS ops outstanding")
            for r in i.wr: last_mfma_w.pop(r, None); last_valu_w.pop(r, None)
        elif k == "vld":
            vm.append(list(i.wr))
            for r in i.wr: last_mfma_w.pop(r, None); last_valu_w.pop(r, None)
        elif k in ("dma", "vst"):
            vm.append([])
            if k == "vst" and len(i.meta["data"]) >= 3:
                for r in i.meta["data"]: last_store_data[r] = slot
        elif k == "salu":
            if "m0" in i.wr: last_salu_m0 = slot
        if len(vm) > 63: err(i, "more than 63 VMEM ops outstanding")
        slot += (i.meta["n"] + 1) if k == "nop" else 1
    if errs:
        raise HazardError("\n".join(errs[:40]) + f"\n({len(errs)} errors)")
    return lg, vm

def text(stream):
    return "\n".join((i.text if i.kind == "label" else "  " + i.text) for i in stream)
```

```python
import math, struct, sys
from core import *

NAME = "concat_heads__mha_block_cached__mha_block_cached__near_ridge"
def f32bits(x): return struct.unpack("<I", struct.pack("<f", x))[0]
CSC = math.log2(math.e) / 16.0

S_X, S_WQ, S_K, S_V, S_WO, S_WS, S_OUT = 4, 8, 12, 16, 20, 24, 28
S_W, S_W1K = 32, 33
S_QB = ["0", "s34", "s35", "s62"]
S_C = 63
S_KOFF, S_VOFF = 64, 65
S_LOOP = 66
S_T0, S_T1, S_T2, S_T3 = 67, 68, 69, 70
S_G, S_H, S_B, S_BR = 71, 72, 73, 74
S_WOFF = 76
S_PART = 77
S_STAMP = 80
V_LANE = 0
V_KA = [4, 5]
V_VA = [6, 7, 8, 9]
V_DK, V_DV = 10, 11
V_L = 12
V_MC = 16
V_SP = 20
V_POOL = 32
V_S = 64
V_P = 96
V_Q = 128
V_XA = 20; V_DW = 21; V_WA = [[22, 23], [24, 25], [26, 27]]
V_CT = 28
L_K = 0; L_V = 65536; L_X = 131072
def kslot(t): return L_K + 16384 * (t % 4)
def vslot(t): return L_V + 16384 * (t % 4)
LDS_BYTES = 163840

class Opt:
    kv_flags = "nt"
    w_flags = ""
    x_flags = ""
    wo_flags = ""
    st_flags = ""
    stamps = False
OPT = Opt()

def wait_tag(*tags): return I("s_waitcnt vmcnt(?)", "wait", vmtags=list(tags))
def tag(ins, t):
    ins.meta["tag"] = t; return ins
def resolve_vm(stream, queue):
    q = list(queue)
    for ins in stream:
        if ins.kind in ("dma", "vld", "vst"):
            q.append(ins.meta.get("tag", "?"))
        elif ins.kind == "wait":
            if "vmtags" in ins.meta:
                idx = [n for n, t in enumerate(q) if t in ins.meta["vmtags"]]
                n = len(q) - 1 - max(idx) if idx else len(q)
                n = min(n, 63)
                ins.text = f"s_waitcnt vmcnt({n})"; ins.meta["vm"] = n
            if "vm" in ins.meta:
                n = ins.meta["vm"]
                if len(q) > n: q = q[len(q) - n:] if n else []
    return q

_stamp_n = [0]
def stamp(name):
    if not OPT.stamps: return []
    n = _stamp_n[0]; _stamp_n[0] += 1
    STAMPS.append(name)
    return [raw(f"s_memtime s[{S_STAMP+2*n}:{S_STAMP+2*n+1}]", "salu")]
STAMPS = []

def m0_set(base): return salu(f"s_add_u32 m0, s{S_W1K}, {base}", [f"s{S_W1K}"], ["m0"])

def dma_tile(kind, slot_base, soff, tg):
    voff, srd, fl = {"K": (V_DK, S_K, OPT.kv_flags), "V": (V_DV, S_V, OPT.kv_flags), "W": (V_DW, S_WQ, OPT.w_flags)}[kind]
    return [(m0_set(slot_base + dc * 3968), tag(dma(voff, srd, soff, dc * 128, fl), tg)) for dc in range(4)]

def setup():
    o = []; a = o.append
    a(salu("s_cmp_ge_u32 s2, 256")); a(raw("s_cbranch_scc1 L_end", "branch"))
    o += stamp("start")
    a(salu("s_load_dwordx16 s[36:51], s[0:1], 0")); a(salu("s_load_dwordx8 s[52:59], s[0:1], 64"))
    a(salu("s_load_dwordx2 s[60:61], s[0:1], 96"))
    a(valu("v_lshrrev_b32 v1, 6, v0", ["v0"], ["v1"]))
    a(valu(f"v_and_b32 v{V_LANE}, 63, v0", ["v0"], ["v0"]))
    a(valu(f"v_readfirstlane_b32 s{S_W}, v1", ["v1"], [f"s{S_W}"]))
    a(salu(f"s_and_b32 s{S_T0}, s2, 7")); a(salu(f"s_lshr_b32 s{S_T1}, s2, 3"))
    a(salu(f"s_and_b32 s{S_H}, s{S_T1}, 15")); a(salu(f"s_lshr_b32 s{S_T1}, s{S_T1}, 4"))
    a(salu(f"s_lshl_b32 s{S_G}, s{S_T0}, 1")); a(salu(f"s_add_u32 s{S_G}, s{S_G}, s{S_T1}"))
    a(salu(f"s_lshr_b32 s{S_BR}, s{S_G}, 3")); a(salu(f"s_and_b32 s{S_B}, s{S_G}, 7"))
    a(salu(f"s_lshl_b32 s{S_W1K}, s{S_W}, 10"))
    a(salu("s_mov_b32 s34, 14336")); a(salu("s_mov_b32 s35, 28672")); a(salu("s_mov_b32 s62, 43008"))
    a(salu(f"s_mov_b32 s{S_C}, 0x{f32bits(CSC):08x}"))
    L = f"v{V_LANE}"
    def vv(t, rd, wr): a(valu(t, rd, wr))
    vv(f"v_and_b32 v1, 15, {L}", [L], ["v1"]); vv(f"v_lshrrev_b32 v2, 4, {L}", [L], ["v2"])
    vv("v_lshrrev_b32 v3, 1, v1", ["v1"], ["v3"])
    for sp in range(2):
        r = V_KA[sp]
        vv(f"v_add_u32 v{r}, {4*sp}, v2", ["v2"], [f"v{r}"])
        vv(f"v_xor_b32 v{r}, v{r}, v3", [f"v{r}", "v3"], [f"v{r}"])
        vv(f"v_lshlrev_b32 v{r}, 4, v{r}", [f"v{r}"], [f"v{r}"])
        vv(f"v_lshl_add_u32 v{r}, v1, 7, v{r}", ["v1", f"v{r}"], [f"v{r}"])
    vv(f"v_lshl_add_u32 v{V_XA}, s{S_W}, 6, v1", ["v1", f"s{S_W}"], [f"v{V_XA}"])
    vv(f"v_mul_u32_u24 v{V_XA}, 896, v{V_XA}", [f"v{V_XA}"], [f"v{V_XA}"])
    vv(f"v_lshl_add_u32 v{V_XA}, v2, 4, v{V_XA}", ["v2", f"v{V_XA}"], [f"v{V_XA}"])
    vv(f"v_bfe_u32 v28, {L}, 2, 2", [L], ["v28"]); vv(f"v_and_b32 v29, 3, {L}", [L], ["v29"])
    vv("v_lshl_add_u32 v30, v2, 2, v28", ["v2", "v28"], ["v30"])
    vv("v_bfe_u32 v31, v30, 1, 2", ["v30"], ["v31"])
    for p in range(4):
        r = V_VA[p]
        vv(f"v_xor_b32 v{r}, {p}, v31", ["v31"], [f"v{r}"])
        vv(f"v_lshlrev_b32 v{r}, 5, v{r}", [f"v{r}"], [f"v{r}"])
        vv(f"v_lshl_add_u32 v{r}, v30, 7, v{r}", ["v30", f"v{r}"], [f"v{r}"])
        vv(f"v_lshl_add_u32 v{r}, v29, 3, v{r}", ["v29", f"v{r}"], [f"v{r}"])
        vv(f"v_add_u32 v{r}, {L_V}, v{r}", [f"v{r}"], [f"v{r}"])
    vv("v_lshl_add_u32 v30, v2, 3, v28", ["v2", "v28"], ["v30"])
    vv("v_lshrrev_b32 v31, 1, v28", ["v28"], ["v31"])
    for sp in range(2):
        r = V_WA[0][sp]
        vv(f"v_xor_b32 v{r}, {sp}, v31", ["v31"], [f"v{r}"])
        vv(f"v_lshl_add_u32 v{r}, v{r}, 2, v29", [f"v{r}", "v29"], [f"v{r}"])
        vv(f"v_lshlrev_b32 v{r}, 4, v{r}", [f"v{r}"], [f"v{r}"])
        vv(f"v_lshl_add_u32 v{r}, v30, 7, v{r}", ["v30", f"v{r}"], [f"v{r}"])
        for win in (1, 2):
            vv(f"v_add_u32 v{V_WA[win][sp]}, {65536*win}, v{r}", [f"v{r}"], [f"v{V_WA[win][sp]}"])
    vv(f"v_lshrrev_b32 v1, 3, {L}", [L], ["v1"]); vv(f"v_and_b32 v2, 7, {L}", [L], ["v2"])
    vv(f"v_lshl_add_u32 v3, s{S_W}, 3, v1", ["v1", f"s{S_W}"], ["v3"])
    vv("v_bfe_u32 v28, v3, 1, 3", ["v3"], ["v28"]); vv("v_xor_b32 v28, v28, v2", ["v28", "v2"], ["v28"])
    vv("v_lshlrev_b32 v28, 4, v28", ["v28"], ["v28"]); vv(f"v_lshl_add_u32 v{V_DK}, v3, 9, v28", ["v3", "v28"], [f"v{V_DK}"])
    vv("v_bfe_u32 v28, v3, 1, 2", ["v3"], ["v28"]); vv("v_lshlrev_b32 v28, 1, v28", ["v28"], ["v28"])
    vv("v_xor_b32 v28, v28, v2", ["v28", "v2"], ["v28"]); vv("v_lshlrev_b32 v28, 4, v28", ["v28"], ["v28"])
    vv(f"v_lshl_add_u32 v{V_DV}, v3, 9, v28", ["v3", "v28"], [f"v{V_DV}"])
    vv("v_bfe_u32 v28, v3, 1, 1", ["v3"], ["v28"]); vv("v_lshlrev_b32 v28, 2, v28", ["v28"], ["v28"])
    vv("v_xor_b32 v28, v28, v2", ["v28", "v2"], ["v28"]); vv("v_lshlrev_b32 v28, 4, v28", ["v28"], ["v28"])
    vv(f"v_lshl_add_u32 v{V_DW}, v3, 13, v28", ["v3", "v28"], [f"v{V_DW}"])
    a(raw("s_waitcnt lgkmcnt(0)", "wait", lgkm=0))
    a(salu(f"s_cmp_eq_u32 s{S_BR}, 0"))
    for i in range(10): a(salu(f"s_cselect_b32 s{36+i}, s{36+i}, s{46+i}"))
    def srd(base, lo, hi, offs, size):
        if offs is None:
            a(salu(f"s_mov_b32 s{base}, s{lo}")); a(salu(f"s_mov_b32 s{base+1}, s{hi}"))
        else:
            a(salu(f"s_add_u32 s{base}, s{lo}, {offs}")); a(salu(f"s_addc_u32 s{base+1}, s{hi}, 0"))
        a(salu(f"s_mov_b32 s{base+2}, {size}")); a(salu(f"s_mov_b32 s{base+3}, 0x20000"))
    a(salu(f"s_mul_i32 s{S_T0}, s{S_B}, 229376")); srd(S_X, 36, 37, f"s{S_T0}", 229376)
    a(salu(f"s_lshl_b32 s{S_T0}, s{S_H}, 9")); srd(S_WQ, 42, 43, f"s{S_T0}", 0)
    a(salu(f"s_sub_u32 s{S_WQ+2}, {448*8192}, s{S_T0}"))
    a(salu(f"s_lshl_b32 s{S_T0}, s{S_B}, 4")); a(salu(f"s_add_u32 s{S_T0}, s{S_T0}, s{S_H}"))
    a(salu(f"s_lshl_b32 s{S_T0}, s{S_T0}, 19"))
    srd(S_K, 38, 39, f"s{S_T0}", 524288); srd(S_V, 40, 41, f"s{S_T0}", 524288)
    a(salu(f"s_mul_i32 s{S_T0}, s{S_H}, 229376")); srd(S_WO, 44, 45, f"s{S_T0}", 229376)
    srd(S_WS, 60, 61, None, 16 * 7 * 16 * 16 * 2048)
    srd(S_OUT, 56, 57, None, 8 * 256 * 896 * 2)
    return o

def add_lgkm_waits(g, cons, carried):
    seq = [(-1, regs) for regs in carried]
    for k in range(g.n):
        if g.mem[k] is not None and g.mem[k].kind == "ds": seq.append((k, g.mem[k].wr))
    lead = None
    for k, regs in cons:
        late = [n for n, (gap, w) in enumerate(seq) if gap == k - 1 and gap >= 0 and set(w) & set(regs)]
        assert not late, f"DS for MFMA {k} issued in gap {k-1}"
        idx = [n for n, (gap, w) in enumerate(seq) if gap < max(k - 1, 0) and set(w) & set(regs)]
        if not idx: continue
        last = max(idx)
        after = sum(1 for n, (gap, w) in enumerate(seq) if n > last and gap < max(k - 1, 0))
        assert after <= 15, (k, after)
        if k == 0: lead = wait_lgkm(after)
        else: g.pre[k - 1].insert(0, wait_lgkm(after))
    out = len(carried)
    if lead is not None: out = min(out, lead.meta["lgkm"])
    for k in range(g.n):
        for x in g.pre[k]:
            if "lgkm" in x.meta: out = min(out, x.meta["lgkm"])
        if g.mem[k] is not None and g.mem[k].kind == "ds":
            if out >= 14:
                assert len(g.pre[k]) == 0, k
                g.pre[k].append(wait_lgkm(8)); out = 8
            out += 1
    return lead

def place_vmem(g, gap, scalars, d, hi=None):
    k = max(gap, len(scalars))
    hi = g.n if hi is None else hi
    while True:
        assert k < hi, f"no gap for {d.text}"
        if g.mem[k] is None and not g.vec[k] and len(g.pre[k]) <= 1 and all(not g.pre[k - 1 - n] and not (g.mem[k - 1 - n] is not None and g.mem[k - 1 - n].kind == 'dma') for n in range(len(scalars))): break
        k += 1
    for n, sc in enumerate(scalars): g.put_pre(k - len(scalars) + n, sc)
    g.put_mem(k, d)
    return k

def put_scalar(g, gap, *ins):
    k = gap
    while g.pre[k]: k += 1
    g.pre[k] = list(ins)
    return k

def place_chain(g, ops, lo, hi):
    left = []
    for ins in ops:
        k = g.place_vec(ins, lo, hi) if (not left and lo < hi) else None
        if k is None: left.append(ins)
        else: lo = k + 1 if ins.kind == "trans" else k
    return lo, left

class Op:
    def __init__(self, ins, rel, dl, preds=()):
        self.ins = ins; self.rel = rel; self.dl = dl; self.preds = list(preds); self.gap = None

def list_schedule(g, ops, lo=0, hi=None):
    hi = g.n if hi is None else hi
    todo = list(ops)
    for k in range(lo, hi):
        while True:
            free = g.free_vec(k)
            if free <= 0: break
            ready = [x for x in todo if x.rel <= k and all(p.gap is not None and p.gap + d <= k for p, d in x.preds)]
            tr = [x for x in ready if x.ins.kind == "trans"]
            pl = [x for x in ready if x.ins.kind != "trans"]
            pick = None
            can_tr = free == 2 and g.mem[k] is None and not g.vec[k]
            if can_tr and tr: pick = min(tr, key=lambda x: x.dl)
            if pl:
                best = min(pl, key=lambda x: x.dl)
                if pick is None or (best.dl + 6 < pick.dl): pick = best
            if pick is None: break
            g.vec[k].append(pick.ins); pick.gap = k; todo.remove(pick)
    late = [x for x in ops if x.gap is not None and x.gap > x.dl]
    assert not late, [(x.ins.text, x.gap, x.dl) for x in late]
    return todo

def sm_ops(tile, kb, qb, rel, dl):
    i = sm_group(tile, kb, qb)
    f = [Op(i[0], rel, dl - 6), Op(i[1], rel, dl - 6), Op(i[4], rel, dl - 5), Op(i[5], rel, dl - 5)]
    x = [Op(i[2], rel, dl - 4, [(f[0], 1)]), Op(i[3], rel, dl - 4, [(f[1], 1)]), Op(i[6], rel, dl - 3, [(f[2], 1)]), Op(i[7], rel, dl - 3, [(f[3], 1)])]
    ad = [Op(i[8], rel, dl, [(x[0], 1)]), Op(i[9], rel, dl, [(x[1], 1)]), Op(i[11], rel, dl, [(x[2], 1)]), Op(i[12], rel, dl, [(x[3], 1)])]
    cv = [Op(i[10], rel, dl, [(x[0], 1), (x[1], 1)]), Op(i[13], rel, dl, [(x[2], 1), (x[3], 1)])]
    return f + x + ad + cv

def exposed(ops):
    o = []
    for n, ins in enumerate(ops):
        o.append(ins)
        if ins.kind == "trans" and n + 1 < len(ops) and ops[n + 1].kind != "trans": o.append(nop(0))
    return o

def conv_ops(acc, d, t):
    return [valu(f"v_accvgpr_read_b32 v{d}, a{acc}", [f"a{acc}"], [f"v{d}"]),
            valu(f"v_accvgpr_read_b32 v{t}, a{acc+1}", [f"a{acc+1}"], [f"v{t}"]),
            valu(f"v_accvgpr_read_b32 v{d+1}, a{acc+2}", [f"a{acc+2}"], [f"v{d+1}"]),
            valu(f"v_accvgpr_read_b32 v{t+1}, a{acc+3}", [f"a{acc+3}"], [f"v{t+1}"]),
            valu(f"v_cvt_pk_bf16_f32 v{d}, v{d}, v{t}", [f"v{d}", f"v{t}"], [f"v{d}"]),
            valu(f"v_cvt_pk_bf16_f32 v{d+1}, v{d+1}, v{t+1}", [f"v{d+1}", f"v{t+1}"], [f"v{d+1}"])]

def xlane_reduce(regs, op, tmp):
    o = []
    for swap in ("v_permlane32_swap_b32", "v_permlane16_swap_b32"):
        for n, r in enumerate(regs): o.append(valu(f"v_mov_b32 v{tmp+n}, v{r}", [f"v{r}"], [f"v{tmp+n}"]))
        o.append(nop(1))
        for n, r in enumerate(regs):
            o.append(valu(f"{swap} v{r}, v{tmp+n}", [f"v{r}", f"v{tmp+n}"], [f"v{r}", f"v{tmp+n}"]))
        o.append(nop(1))
        for n, r in enumerate(regs):
            o.append(valu(f"{op} v{r}, v{r}, v{tmp+n}", [f"v{r}", f"v{tmp+n}"], [f"v{r}"]))
    return o

WPAIR = [(L_X, L_X + 16384), (vslot(1), kslot(3)), (vslot(2), vslot(3))]
def wslot(tile): return WPAIR[(tile // 2) % 3][tile % 2]
XBUF = [128, 160, 192, 224, 128, V_S, V_P]
def xfrag(qb, cs): return XBUF[cs // 2] + ((cs % 2) * 4 + qb) * 4
def x_loads(j):
    return [tag(bload(xfrag(qb, cs), 4, V_XA, S_X, S_QB[qb], cs * 64, OPT.x_flags), f"x{j}") for cs in (2 * j, 2 * j + 1) for qb in range(4)]
def w_read(dbp, cs, jj):
    s, e = dbp >> 1, dbp & 1
    base = wslot(cs); win = base // 65536
    off = base - win * 65536 + (s >> 1) * 4096 + jj * 512 + e * 8
    return ds_read_tr("v", V_POOL + 4 * ((2 * dbp + (cs & 1)) % 8) + 2 * jj, V_WA[win][s & 1], off)

def phase1():
    o = []; a = o.append
    def tile_now(kind, slot, so, tg):
        a(salu(f"s_mov_b32 s{S_WOFF}, {so}"))
        for m0, d in dma_tile(kind, slot, f"s{S_WOFF}", tg): a(m0); a(nop(0)); a(d)
    for j in range(3):
        o += x_loads(j)
        for t in (2 * j, 2 * j + 1): tile_now("W", wslot(t), t * 262144, f"W{j}")
    tile_now("K", kslot(0), 0, "K0"); tile_now("K", kslot(1), 16384, "K1"); tile_now("V", vslot(0), 0, "V0")
    a(wait_tag("W0", "x0")); a(barrier())
    o += stamp("p1_first_data")
    carried = []
    for dbp in range(3):
        for cs in (0, 1):
            for jj in range(2):
                r = w_read(dbp, cs, jj); a(r); carried.append(r.wr)
    for j in range(7):
        ms = []
        for dbp in range(16):
            for qb in range(4):
                for e2 in range(2):
                    acc = (dbp * 4 + qb) * 4
                    first = (j == 0 and e2 == 0)
                    ms.append(mfma("a", acc, "v", V_POOL + 4 * ((2 * dbp + e2) % 8), "v", xfrag(qb, 2 * j + e2),
                                   None if first else "a", None if first else acc))
        g = Gaps(ms)
        for dbp in range(3, 16):
            for n, (cs, jj) in enumerate([(2*j, 0), (2*j, 1), (2*j+1, 0), (2*j+1, 1)]):
                g.put_mem(8 * dbp - 24 + 2 * n, w_read(dbp, cs, jj))
        nxt = []
        if j < 6:
            for dbp in range(3):
                for n, (cs, jj) in enumerate([(2*j+2, 0), (2*j+2, 1), (2*j+3, 0), (2*j+3, 1)]):
                    r = w_read(dbp, cs, jj); g.put_mem(104 + 8 * dbp + 2 * n, r); nxt.append(r.wr)
        cons = [(8 * dbp, R("v", V_POOL + 4 * ((2 * dbp) % 8), 8)) for dbp in range(16)]
        lead = add_lgkm_waits(g, cons, carried)
        tags = [f"W{j+1}", f"x{j+1}"] if j < 6 else ["K0"]
        k = 100
        while g.pre[k]: k -= 1
        g.pre[k] = [wait_tag(*tags), barrier()]
        kb = k
        gp = 1
        if j == 0:
            g.put_pre(0, salu(f"s_mov_b32 s{S_T0}, {2*16384}"))
            for m0, d in dma_tile("K", kslot(2), f"s{S_T0}", "K2"): gp = place_vmem(g, gp + 2, [m0], d, kb) + 1
        for jx in {0: [3], 1: [4, 5], 2: [6]}.get(j, []):
            for ld in x_loads(jx): gp = place_vmem(g, gp, [], ld, kb) + 1
        post = []
        if 1 <= j <= 4: post = [("W", wslot(t), t * 262144, f"W{j+2}") for t in (2 * j + 4, 2 * j + 5)]
        elif j == 5: post = [("V", vslot(1), 16384, "V1"), ("K", kslot(3), 3 * 16384, "K3")]
        elif j == 6: post = [("V", vslot(2), 2 * 16384, "V2")]
        gp = kb + 2
        for n, (kind, slot, so, tg) in enumerate(post):
            sreg = S_WOFF if n == 0 else S_T0
            for m, (m0, d) in enumerate(dma_tile(kind, slot, f"s{sreg}", tg)):
                sc = [salu(f"s_mov_b32 s{sreg}, {so}", [], [f"s{sreg}"]), m0] if m == 0 else [m0]
                gp = place_vmem(g, gp + len(sc) - 1, sc, d) + 1
        left = []
        if j == 6:
            for dbp in range(16):
                for qb in range(4):
                    ops = conv_ops((dbp * 4 + qb) * 4, V_Q + (qb * 8 + (dbp >> 1)) * 4 + 2 * (dbp & 1), V_CT + 2 * (qb & 1))
                    if left: left += ops
                    else:
                        _, l2 = place_chain(g, ops, 8 * dbp + 2 * qb + 1 + 5, 128); left += l2
        if lead is not None: a(lead)
        o += g.emit()
        carried = nxt
        if left: a(nop(7)); o += left
    o += stamp("p1_end")
    return o

def k_read(t, kb, s):
    return ds_read128("v", V_POOL + 4 * s, V_KA[s & 1], (kslot(t) - L_K) + (s >> 1) * 4096 + kb * 2048)
def v_read(t, db, jj):
    return ds_read_tr("v", V_POOL + 4 * (db % 8) + 2 * jj, V_VA[db & 3], (vslot(t) - L_V) + (db >> 2) * 4096 + jj * 2048)
def Sreg(kb, qb): return V_S + (kb * 4 + qb) * 4
def Preg(buf, qb): return V_P + buf * 16 + qb * 4
def qk_mfmas():
    ms = []
    for i in range(64):
        kb, sp, qb, e = i >> 5, (i >> 3) & 3, (i >> 1) & 3, i & 1
        s = 2 * sp + e; d = Sreg(kb, qb)
        ms.append(mfma("v", d, "v", V_POOL + 4 * s, "v", V_Q + (qb * 8 + s) * 4, None if s == 0 else "v", None if s == 0 else d))
    return ms
def pv_mfmas(t, first):
    ms = []
    for i in range(64):
        db, qb = i >> 2, i & 3
        acc = (db * 4 + qb) * 4
        ms.append(mfma("a", acc, "v", V_POOL + 4 * (db % 8), "v", Preg(t & 1, qb), None if first else "a", None if first else acc))
    return ms
def sm_group(tile, kb, qb):
    s = Sreg(kb, qb); p = Preg(tile & 1, qb) + 2 * kb; mc = V_MC + qb; l = V_L + qb
    f = lambda r: valu(f"v_fma_f32 v{s+r}, v{s+r}, s{S_C}, v{mc}", [f"v{s+r}", f"v{mc}", f"s{S_C}"], [f"v{s+r}"])
    x = lambda r: trans(f"v_exp_f32 v{s+r}, v{s+r}", [f"v{s+r}"], [f"v{s+r}"])
    ad = lambda r: valu(f"v_add_f32 v{l}, v{l}, v{s+r}", [f"v{l}", f"v{s+r}"], [f"v{l}"])
    cv = lambda r: valu(f"v_cvt_pk_bf16_f32 v{p+r//2}, v{s+r}, v{s+r+1}", [f"v{s+r}", f"v{s+r+1}"], [f"v{p+r//2}"])
    return [f(0), f(1), x(0), x(1), f(2), f(3), x(2), x(3), ad(0), ad(1), cv(0), ad(2), ad(3), cv(2)]

def pre_iter():
    o = []; a = o.append
    carried = []
    for s in range(8):
        r = k_read(0, 0, s); a(r); carried.append(r.wr)
    g = Gaps(qk_mfmas())
    for s in range(8): g.put_mem(8 * (s >> 1) + 10 + 4 * (s & 1), k_read(0, 1, s))
    cons = [(8 * p, R("v", V_POOL + 8 * (p % 4), 8)) for p in range(8)]
    a(add_lgkm_waits(g, cons, carried)); o += g.emit()
    a(wait_tag("K1", "V0")); a(barrier())
    a(salu(f"s_mov_b32 s{S_KOFF}, {4*16384}"))
    for m0, d in dma_tile("K", kslot(4), f"s{S_KOFF}", "K4"): a(m0); a(nop(0)); a(d)
    a(salu(f"s_mov_b32 s{S_KOFF}, {5*16384}")); a(salu(f"s_mov_b32 s{S_VOFF}, {3*16384}"))
    carried = []
    for s in range(8):
        r = k_read(1, 0, s); a(r); carried.append(r.wr)
    for qb in range(4):
        m = V_MC + qb; s0 = Sreg(0, qb); s1 = Sreg(1, qb)
        a(valu(f"v_max3_f32 v{m}, v{s0}, v{s0+1}, v{s0+2}", R("v", s0, 3), [f"v{m}"]))
        a(valu(f"v_max3_f32 v{m}, v{m}, v{s0+3}, v{s1}", [f"v{m}", f"v{s0+3}", f"v{s1}"], [f"v{m}"]))
        a(valu(f"v_max3_f32 v{m}, v{m}, v{s1+1}, v{s1+2}", [f"v{m}", f"v{s1+1}", f"v{s1+2}"], [f"v{m}"]))
        a(valu(f"v_max_f32 v{m}, v{m}, v{s1+3}", [f"v{m}", f"v{s1+3}"], [f"v{m}"]))
    o += xlane_reduce([V_MC + q for q in range(4)], "v_max_f32", V_SP)
    for qb in range(4):
        m = V_MC + qb
        a(valu(f"v_mul_f32 v{m}, s{S_C}, v{m}", [f"v{m}", f"s{S_C}"], [f"v{m}"]))
        a(valu(f"v_sub_f32 v{m}, 0, v{m}", [f"v{m}"], [f"v{m}"]))
        a(valu(f"v_mov_b32 v{V_L+qb}, 0", [], [f"v{V_L+qb}"]))
    for kb, qb in [(0, 0), (0, 1), (0, 2), (0, 3), (1, 0), (1, 1)]: o += exposed(sm_group(0, kb, qb))
    o += stamp("pre_iter_end")
    return o, carried

def attn_iter(t, carried, vmw, prev, cur, first=False, adv=True, loopctl=False, extra=None):
    g = Gaps(qk_mfmas() + pv_mfmas(t, first))
    for s in range(8): g.put_mem(8 * (s >> 1) + 10 + 4 * (s & 1), k_read(t + 1, 1, s))
    for db in range(16):
        for jj in range(2): g.put_mem(44 + 4 * db + 2 * jj, v_read(t, db, jj))
    nxt = []
    if t + 2 <= 31:
        for s, gap in zip(range(8), [108, 110, 112, 114, 116, 120, 124, 127]):
            r = k_read(t + 2, 0, s); g.put_mem(gap, r); nxt.append(r.wr)
    else:
        for db in range(5):
            for jj in range(2):
                r = v_read(t + 1, db, jj); g.put_mem(108 + 4 * db + 2 * jj, r); nxt.append(r.wr)
    cons = [(8 * p, R("v", V_POOL + 8 * (p % 4), 8)) for p in range(8)]
    cons += [(64 + 4 * db, R("v", V_POOL + 4 * (db % 8), 4)) for db in range(16)]
    lead = add_lgkm_waits(g, cons, carried)
    kb = 98
    while g.pre[kb]: kb -= 1
    g.pre[kb] = [vmw, barrier()]
    placed = [place_vmem(g, gap, [m0], d, kb) for gap, (m0, d) in zip([5, 21, 37, 53, 69, 85], prev)]
    for gap, (m0, d) in zip([101, 117], cur): place_vmem(g, gap, [m0], d)
    if adv:
        for reg, srd, at in ((S_VOFF, S_V, placed[1] + 1), (S_KOFF, S_K, placed[5] + 1)):
            k = put_scalar(g, at, salu(f"s_add_u32 s{reg}, s{reg}, 16384", [f"s{reg}"], [f"s{reg}"]))
            k = put_scalar(g, k + 1, salu(f"s_cmp_lt_u32 s{reg}, 524288", [f"s{reg}"], ["scc"]),
                           salu(f"s_cselect_b32 s{srd+2}, 524288, 0", ["scc"], [f"s{srd+2}"]))
            assert k < 100
    if loopctl:
        k = put_scalar(g, 119, salu(f"s_sub_u32 s{S_LOOP}, s{S_LOOP}, 1", [f"s{S_LOOP}"], [f"s{S_LOOP}"]))
        k = put_scalar(g, k + 1, salu(f"s_cmp_lg_u32 s{S_LOOP}, 0", [f"s{S_LOOP}"], ["scc"]))
        assert k <= 127
        for kk in range(k + 1, 128):
            assert all(x.kind == "wait" for x in g.pre[kk]), "SCC clobbered before the loop branch"
    if extra: extra(g, kb)
    ops = []
    for qb in (2, 3): ops += sm_ops(t, 1, qb, 0, 31 + 2 * qb)
    for qb in range(4): ops += sm_ops(t + 1, 0, qb, 25 + 2 * qb + 6, 100 + 6 * qb)
    for qb in (0, 1): ops += sm_ops(t + 1, 1, qb, 57 + 2 * qb + 6, 124 + 3 * qb)
    left = list_schedule(g, ops)
    assert not left, f"softmax groups do not fit: {len(left)} left"
    return [lead] + g.emit(), nxt

def last_iter(carried):
    o = []; a = o.append
    for qb in (2, 3): o += exposed(sm_group(31, 1, qb))
    o += xlane_reduce([V_L + q for q in range(4)], "v_add_f32", V_SP)
    for qb in range(4): a(trans(f"v_rcp_f32 v{V_L+qb}, v{V_L+qb}", [f"v{V_L+qb}"], [f"v{V_L+qb}"]))
    a(nop(0))
    g = Gaps(pv_mfmas(31, False))
    for db in range(5, 8):
        for jj in range(2): g.put_mem(4 * (db - 5) + 2 * jj, v_read(31, db, jj))
    for db in range(8, 16):
        for jj in range(2): g.put_mem(12 + 4 * (db - 8) + 2 * jj, v_read(31, db, jj))
    cons = [(4 * db, R("v", V_POOL + 4 * (db % 8), 4)) for db in range(16)]
    lead = add_lgkm_waits(g, cons, carried)
    gp = put_wo(g, 2, 2, step=0)
    put_wo(g, 3, gp, step=0)
    left = []
    for db in range(16):
        for qb in range(4):
            ops = conv_ops((db * 4 + qb) * 4, V_Q + (qb * 8 + (db >> 1)) * 4 + 2 * (db & 1), V_SP + 8 + 2 * (qb & 1))
            if left: left += ops
            else:
                _, l2 = place_chain(g, ops, 4 * db + qb + 5, 64); left += l2
    a(lead); o += g.emit()
    a(nop(7)); o += left
    return o

WOBUF = [L_X, L_K, L_K + 32768, L_V, L_V + 32768, L_X, L_K]
V_DWO = 3; V_STO = V_DV
V_FR3 = 32; V_ACC3 = V_P; V_STG = 16
def wo_dma(j):
    out = []
    for i in range(8):
        sreg = S_T0 + (i & 1)
        out.append(([salu(f"s_mov_b32 s{sreg}, {j*128 + i*32*896}", [], [f"s{sreg}"]),
                     salu(f"s_add_u32 m0, s{S_W1K}, {WOBUF[j] + i*4096}", [f"s{S_W1K}"], ["m0"])],
                    tag(dma(V_DWO, S_WO, f"s{sreg}", 0, OPT.wo_flags), f"wo{j}")))
    return out
def wo_setup():
    o = []; a = o.append
    L = f"v{V_LANE}"
    a(valu(f"v_lshrrev_b32 v1, 3, {L}", [L], ["v1"])); a(valu(f"v_and_b32 v2, 7, {L}", [L], ["v2"]))
    a(valu(f"v_lshl_add_u32 v3, s{S_W}, 3, v1", ["v1", f"s{S_W}"], ["v3"]))
    a(valu("v_bfe_u32 v1, v1, 1, 2", ["v1"], ["v1"])); a(valu("v_lshlrev_b32 v1, 1, v1", ["v1"], ["v1"]))
    a(valu("v_xor_b32 v1, v1, v2", ["v1", "v2"], ["v1"])); a(valu("v_lshlrev_b32 v1, 4, v1", ["v1"], ["v1"]))
    a(valu("v_mul_u32_u24 v3, 896, v3", ["v3"], ["v3"]))
    a(valu(f"v_add_u32 v{V_DWO}, v3, v1", ["v3", "v1"], [f"v{V_DWO}"]))
    return o
def put_wo(g, j, start, hi=None, step=3):
    gp = start
    for sc, d in wo_dma(j): gp = place_vmem(g, gp, sc, d, hi) + step
    return gp
def wo_read(nb, s, jj):
    return ds_read_tr("v", V_FR3 + 4 * (8 * (nb & 1) + s) + 2 * jj, V_VA[nb], s * 4096 + jj * 2048)
def va_shift(delta):
    t = (lambda r: f"v_add_u32 v{r}, {delta}, v{r}") if delta >= 0 else (lambda r: f"v_subrev_u32 v{r}, {-delta}, v{r}")
    return [valu(t(r), [f"v{r}"], [f"v{r}"]) for r in V_VA]

def part_ops(nb, qb):
    acc = V_ACC3 + 4 * ((nb * 4 + qb) % 8)
    st = V_STG + 4 * qb + 2 * (nb & 1)
    li = V_L + qb
    ops = [valu(f"v_mul_f32 v{acc+r}, v{acc+r}, v{li}", [f"v{acc+r}", f"v{li}"], [f"v{acc+r}"]) for r in range(4)]
    ops += [valu(f"v_cvt_pk_bf16_f32 v{st}, v{acc}, v{acc+1}", [f"v{acc}", f"v{acc+1}"], [f"v{st}"]),
            valu(f"v_cvt_pk_bf16_f32 v{st+1}, v{acc+2}, v{acc+3}", [f"v{acc+2}", f"v{acc+3}"], [f"v{st+1}"])]
    return ops

def phase3():
    o = []; a = o.append
    o += stamp("p3_start")
    a(salu(f"s_mul_i32 s{S_PART}, s{S_G}, {7*16*16*2048}"))
    a(salu(f"s_lshl_b32 s{S_T2}, s{S_W}, 17")); a(salu(f"s_add_u32 s{S_PART}, s{S_PART}, s{S_T2}"))
    a(salu(f"s_lshl_b32 s{S_T2}, s{S_H}, 11")); a(salu(f"s_add_u32 s{S_PART}, s{S_PART}, s{S_T2}"))
    a(valu(f"v_lshlrev_b32 v{V_STO}, 4, v{V_LANE}", [f"v{V_LANE}"], [f"v{V_STO}"]))
    o += va_shift(WOBUF[0] - L_V)
    a(wait_tag("wo0")); a(barrier())
    carried = []
    for s in range(8):
        for jj in range(2):
            r = wo_read(0, s, jj); a(r); carried.append(r.wr)
            if len(carried) == 14: a(wait_lgkm(6)); carried = carried[-6:]
    for sc, d in wo_dma(4): o += sc + [nop(0), d]
    for j in range(7):
        ms = []
        for nb in range(4):
            for qb in range(4):
                acc = V_ACC3 + 4 * ((nb * 4 + qb) % 8)
                for s in range(8):
                    ms.append(mfma("v", acc, "v", V_FR3 + 4 * (8 * (nb & 1) + s), "v", V_Q + (qb * 8 + s) * 4,
                                   None if s == 0 else "v", None if s == 0 else acc))
        g = Gaps(ms)
        nxt = []
        for nb in range(3):
            for s in range(8):
                for jj in range(2): g.put_mem(32 * nb + 4 * s + 2 * jj, wo_read(nb + 1, s, jj))
        if j < 6:
            for s in range(8):
                for jj in range(2):
                    r = wo_read(0, s, jj); g.put_mem(96 + 4 * s + 2 * jj, r); nxt.append(r.wr)
        cons = [(32 * nb + s, R("v", V_FR3 + 4 * (8 * (nb & 1) + s), 4)) for nb in range(4) for s in (0, 2, 4, 6)]
        cons = [(k, R("v", V_FR3 + 4 * (8 * ((k >> 5) & 1) + (k & 7)), 8)) for k, _ in cons]
        lead = add_lgkm_waits(g, cons, carried)
        if j < 6:
            k = 93
            while g.pre[k]: k -= 1
            g.pre[k] = [wait_tag(f"wo{j+1}"), barrier()]
            sh = va_shift(WOBUF[j + 1] - WOBUF[j])
            assert g.place_vec(sh[0], 91, 96) is not None
            assert g.place_vec(sh[1], 40, 96) is not None
            assert g.place_vec(sh[2], 66, 96) is not None
            assert g.place_vec(sh[3], 97, 128) is not None
        if j in (2, 3): put_wo(g, j + 3, 3, step=6)
        tail = []
        for nb in range(4):
            for qb in range(4):
                lo, left = place_chain(g, part_ops(nb, qb), 32 * nb + 8 * qb + 7 + 8, 128)
                st = None
                if nb & 1:
                    so = j * 16 * 16 * 2048 + qb * 16 * 2048 + (nb >> 1) * 1024
                    sreg = S_T2 + (qb & 1)
                    st = (salu(f"s_add_u32 s{sreg}, s{S_PART}, {so}", [f"s{S_PART}"], [f"s{sreg}"]),
                          tag(bstore(V_STG + 4 * qb, 4, V_STO, S_WS, f"s{sreg}", 0, OPT.st_flags), f"st{j}"))
                if left or tail:
                    tail += left
                    if st: tail += [st[0], nop(1), st[1]]
                elif st:
                    k = lo + 2
                    while k < 128 and (g.mem[k] is not None or g.vec[k] or g.pre[k - 1] or len(g.pre[k]) > 1): k += 1
                    if k >= 128: tail += [st[0], nop(1), st[1]]
                    else: g.put_pre(k - 1, st[0]); g.put_mem(k, st[1])
        if lead is not None: a(lead)
        o += g.emit()
        if tail: a(nop(7)); o += exposed(tail)
        carried = nxt
    o += stamp("p3_end")
    return o

def dump_regs(base, n, agpr=False):
    o = [wait_vm(0), raw("s_waitcnt lgkmcnt(0)", "wait", lgkm=0), nop(7), nop(7),
         salu(f"s_lshl_b32 s{S_T0}, s2, 2"), salu(f"s_add_u32 s{S_T0}, s{S_T0}, s{S_W}"),
         salu(f"s_mul_i32 s{S_T0}, s{S_T0}, {n*256}"), valu(f"v_lshlrev_b32 v1, 2, v{V_LANE}", [f"v{V_LANE}"], ["v1"])]
    for r in range(n):
        if agpr:
            o.append(valu(f"v_accvgpr_read_b32 v2, a{base+r}", [f"a{base+r}"], ["v2"])); o.append(bstore(2, 1, 1, S_WS, f"s{S_T0}", 0))
        else:
            o.append(bstore(base + r, 1, 1, S_WS, f"s{S_T0}", 0))
        o.append(salu(f"s_add_u32 s{S_T0}, s{S_T0}, 256"))
        if r % 32 == 31 or agpr: o.append(wait_vm(0))
    return o

def stamp_out():
    if not OPT.stamps: return []
    n = len(STAMPS)
    o = [raw("s_waitcnt lgkmcnt(0)", "wait", lgkm=0), salu(f"s_cmp_lg_u32 s{S_W}, 0"), raw("s_cbranch_scc1 L_nostamp", "branch")]
    o.append(salu(f"s_mul_i32 s{S_T0}, s2, 64")); o.append(salu(f"s_add_u32 s{S_T0}, s{S_T0}, {16*7*16*16*2048}"))
    o.append(salu(f"s_mov_b32 s{S_WS+2}, {16*7*16*16*2048 + 256*64}"))
    o.append(valu("v_mov_b32 v1, 0", [], ["v1"]))
    for k in range(n):
        o.append(valu(f"v_mov_b32 v2, s{S_STAMP+2*k}", [], ["v2"]))
        o.append(bstore(2, 1, 1, S_WS, f"s{S_T0}", 4 * k)); o.append(wait_vm(0))
    o.append(label("L_nostamp"))
    return o

def finish(): return [wait_vm(0), label("L_end"), raw("s_endpgm", "branch")]

def build(debug=None):
    _stamp_n[0] = 0; STAMPS.clear()
    pre = setup() + phase1()
    if debug == "q":
        resolve_vm(pre, []); check(pre, "pre")
        return pre + dump_regs(V_Q, 128) + finish()
    p, carried = pre_iter(); pre += p
    def batch(t):
        return dma_tile("V", vslot(t + 3), f"s{S_VOFF}", f"V{t+3}") + dma_tile("K", kslot(t + 5), f"s{S_KOFF}", f"K{t+5}")
    pre += wo_setup()
    s0, carried = attn_iter(0, carried, wait_tag("V1", "K2"), [], batch(0)[:2], first=True, adv=False,
                            extra=lambda g, kb: put_wo(g, 0, 3, kb, step=8))
    pre += s0
    pre.append(salu(f"s_mov_b32 s{S_LOOP}, 7"))
    pre += stamp("loop_start")
    loop = [label("L_attn")]
    for u in range(4):
        t = 1 + u
        s, carried = attn_iter(t, carried, wait_vm(12), batch(t - 1)[2:], batch(t)[:2], loopctl=(u == 3))
        loop += s
    loop.append(raw("s_cbranch_scc1 L_attn", "branch"))
    post = stamp("loop_end")
    s, carried = attn_iter(29, carried, wait_tag("V30", "K32"), batch(28)[2:4], [], adv=False)
    post += s
    def ex30(g, kb):
        put_wo(g, 1, 3, kb, step=8)
    s, carried = attn_iter(30, carried, wait_tag("V31"), [], [], adv=False, extra=ex30)
    post += s
    post += last_iter(carried)
    post += stamp("attn_end")
    if debug == "o":
        tailq = dump_regs(V_Q, 128)
    elif debug == "l":
        tailq = dump_regs(V_L, 4)
    else:
        tailq = phase3()
    post += tailq
    q = resolve_vm(pre, [])
    qexit = ["V30"] * 4 + ["K32"] * 4 + ["V31"] * 2
    resolve_vm(post, qexit)
    check(pre + loop[1:] + loop[1:], "pre+loop")
    check(loop[1:] + post, "loop+post", init_lgkm=[x.wr for x in pre if x.kind == "ds"][-8:], init_vm=[[]] * 10)
    return pre + loop + post + stamp_out() + finish()

def reduce_kernel():
    o = []; a = o.append
    a(salu("s_cmp_ge_u32 s2, 256")); a(raw("s_cbranch_scc1 R_end", "branch"))
    a(salu("s_load_dwordx2 s[4:5], s[0:1], 80")); a(salu("s_load_dwordx2 s[6:7], s[0:1], 96"))
    a(valu("v_lshrrev_b32 v1, 6, v0", ["v0"], ["v1"])); a(valu("v_and_b32 v0, 63, v0", ["v0"], ["v0"]))
    a(valu("v_readfirstlane_b32 s32, v1", ["v1"], ["s32"]))
    a(salu("s_lshr_b32 s33, s2, 4")); a(salu("s_and_b32 s34, s2, 15"))
    a(salu("s_lshr_b32 s35, s33, 3")); a(salu("s_and_b32 s36, s33, 7"))
    a(salu("s_lshr_b32 s37, s32, 1")); a(salu("s_and_b32 s38, s32, 1"))
    a(valu("v_lshrrev_b32 v2, 5, v0", ["v0"], ["v2"])); a(valu("v_lshlrev_b32 v2, 11, v2", ["v2"], ["v2"]))
    a(valu("v_and_b32 v3, 31, v0", ["v0"], ["v3"])); a(valu("v_lshl_add_u32 v2, v3, 4, v2", ["v3", "v2"], ["v2"]))
    a(salu("s_lshl_b32 s39, s37, 10")); a(salu("s_lshl_b32 s40, s38, 9")); a(salu("s_add_u32 s39, s39, s40"))
    a(valu("v_add_u32 v2, s39, v2", ["v2"], ["v2"]))
    a(valu("v_and_b32 v8, 15, v0", ["v0"], ["v8"])); a(valu("v_lshrrev_b32 v9, 4, v0", ["v0"], ["v9"]))
    a(valu("v_lshrrev_b32 v10, 3, v8", ["v8"], ["v10"])); a(valu("v_and_b32 v11, 1, v9", ["v9"], ["v11"]))
    a(valu("v_and_b32 v12, 1, v8", ["v8"], ["v12"])); a(valu("v_lshlrev_b32 v12, 4, v12", ["v12"], ["v12"]))
    a(valu("v_mov_b32 v13, 0x3f80", [], ["v13"])); a(valu("v_lshlrev_b32 v13, v12, v13", ["v12", "v13"], ["v13"]))
    a(valu("v_cmp_eq_u32 vcc, v10, v11", ["v10", "v11"], ["vcc"])); a(nop(1))
    a(valu("v_cndmask_b32 v13, 0, v13, vcc", ["v13", "vcc"], ["v13"]))
    a(valu("v_bfe_u32 v14, v8, 1, 2", ["v8"], ["v14"]))
    for r in range(4):
        a(valu(f"v_cmp_eq_u32 vcc, {r}, v14", ["v14"], ["vcc"])); a(nop(1))
        a(valu(f"v_cndmask_b32 v{4+r}, 0, v13, vcc", ["v13", "vcc"], [f"v{4+r}"]))
    a(salu("s_lshl_b32 s41, s36, 8")); a(salu("s_lshl_b32 s42, s34, 4")); a(salu("s_add_u32 s41, s41, s42"))
    a(valu("v_add_u32 v3, s41, v8", ["v8"], ["v3"])); a(valu("v_mul_u32_u24 v3, 896, v3", ["v3"], ["v3"]))
    a(salu("s_mul_i32 s42, s35, 448")); a(salu("s_lshl_b32 s43, s37, 5")); a(salu("s_add_u32 s42, s42, s43"))
    a(salu("s_lshl_b32 s43, s38, 3")); a(salu("s_add_u32 s42, s42, s43"))
    a(valu("v_add_u32 v3, s42, v3", ["v3"], ["v3"]))
    a(valu("v_lshl_add_u32 v3, v11, 4, v3", ["v11", "v3"], ["v3"]))
    a(valu("v_lshrrev_b32 v10, 1, v9", ["v9"], ["v10"])); a(valu("v_lshl_add_u32 v3, v10, 2, v3", ["v10", "v3"], ["v3"]))
    a(valu("v_lshlrev_b32 v3, 1, v3", ["v3"], ["v3"]))
    a(raw("s_waitcnt lgkmcnt(0)", "wait", lgkm=0))
    for base, lo, size in ((8, 6, 16 * 7 * 16 * 16 * 2048), (12, 4, 8 * 256 * 896 * 2)):
        a(salu(f"s_mov_b32 s{base}, s{lo}")); a(salu(f"s_mov_b32 s{base+1}, s{lo+1}"))
        a(salu(f"s_mov_b32 s{base+2}, {size}")); a(salu(f"s_mov_b32 s{base+3}, 0x20000"))
    a(salu(f"s_mul_i32 s44, s33, {7*16*32768}")); a(salu("s_lshl_b32 s45, s34, 15")); a(salu("s_add_u32 s44, s44, s45"))
    for j in range(7):
        for i in range(8):
            a(salu(f"s_add_u32 s46, s44, {j*16*32768 + i*4096}"))
            a(tag(bload(16 + (j * 8 + i) * 4, 4, 2, 8, "s46", 0), f"p{j}"))
    for j in range(7):
        a(wait_tag(f"p{j}"))
        d = 240 + 4 * (j & 1)
        for i in range(8):
            a(mfma("v", d, "v", 4, "v", 16 + (j * 8 + i) * 4, None if i == 0 else "v", None if i == 0 else d))
        a(nop(7))
        a(valu(f"v_cvt_pk_bf16_f32 v{d}, v{d}, v{d+1}", [f"v{d}", f"v{d+1}"], [f"v{d}"]))
        a(valu(f"v_cvt_pk_bf16_f32 v{d+1}, v{d+2}, v{d+3}", [f"v{d+2}", f"v{d+3}"], [f"v{d+1}"]))
        a(tag(bstore(d, 2, 3, 12, "0", j * 128), "o"))
    resolve_vm(o, []); check(o, "reduce")
    o += [wait_vm(0), label("R_end"), raw("s_endpgm", "branch")]
    return o

KD = """.section .rodata,"a"
.p2align 6
.amdhsa_kernel {name}
  .amdhsa_next_free_vgpr {vgpr}
  .amdhsa_next_free_sgpr 102
  .amdhsa_accum_offset 256
  .amdhsa_group_segment_fixed_size 0
  .amdhsa_kernarg_size 104
  .amdhsa_user_sgpr_count 2
  .amdhsa_user_sgpr_kernarg_segment_ptr 1
  .amdhsa_system_sgpr_workgroup_id_x 1
.end_amdhsa_kernel
"""
def header_comments():
    ref = open("cdna_kernels/" + NAME + ".s.ref").read().splitlines()
    out = []
    for l in ref:
        if l.startswith("; Override launch") or not l.startswith(";"): break
        out.append(l)
    return out

def assemble_file(debug=None):
    main = build(debug)
    red = reduce_kernel()
    k1 = NAME + "_kernel"; k2 = "reduce_heads_kernel"
    L = header_comments()
    L.append(f"; @launch kernel={k1} grid=(256,1,1) block=(256,1,1) lds={LDS_BYTES}")
    if debug is None: L.append(f"; @launch kernel={k2} grid=(256,1,1) block=(256,1,1) lds=0")
    L.append('.amdgcn_target "amdgcn-amd-amdhsa--gfx950"')
    L.append(".text")
    for nm, body in ((k1, main), (k2, red)):
        L += [f".globl {nm}", ".p2align 8", f".type {nm},@function", f"{nm}:", text(body)]
    L.append(KD.format(name=k1, vgpr=512)); L.append(KD.format(name=k2, vgpr=256))
    return "\n".join(L) + "\n"

if __name__ == "__main__":
    dbg = sys.argv[2] if len(sys.argv) > 2 and sys.argv[2] != "none" else None
    for kv in sys.argv[3:]:
        k, v = kv.split("=")
        setattr(OPT, k, {"True": True, "False": False}.get(v, v))
    open(sys.argv[1], "w").write(assemble_file(dbg))
    print("stamps:", STAMPS)
```

```python
import math, struct, sys
from core import *

NAME = "concat_heads__mha_block_cached__mha_block_cached__near_ridge"
def f32bits(x): return struct.unpack("<I", struct.pack("<f", x))[0]
CSC = math.log2(math.e) / 16.0

S_X, S_WQ, S_K, S_V, S_WO, S_WS, S_OUT = 4, 8, 12, 16, 20, 24, 28
S_W, S_W1K = 32, 33
S_QB = ["0", "s34", "s35", "s62"]
S_C = 63
S_KOFF, S_VOFF = 64, 65
S_LOOP = 66
S_T0, S_T1, S_T2, S_T3 = 67, 68, 69, 70
S_G, S_H, S_B, S_BR = 71, 72, 73, 74
S_WOFF = 76
S_PART = 77
S_WCUR, S_WSTEP, S_XSTEP = 78, 79, 75
S_STAMP = 80
V_LANE = 0
V_KA = [4, 5]
V_VA = [6, 7, 8, 9]
V_DK, V_DV = 10, 11
V_L = 12
V_MC = 16
V_SP = 20
V_POOL = 32
V_S = 64
V_P = 96
V_Q = 128
V_XA = 20; V_DW = 21; V_WA = [[22, 23], [24, 25], [26, 27]]
V_CT = 28
L_K = 0; L_V = 65536; L_X = 131072
def kslot(t): return L_K + 16384 * (t % 4)
def vslot(t): return L_V + 16384 * (t % 4)
LDS_BYTES = 163840

class Opt:
    kv_flags = "nt"
    w_flags = ""
    x_flags = ""
    wo_flags = ""
    st_flags = ""
    stamps = False
    x_rd_gap0 = 65
    x_rd_gap = 33
    p1_steps = False
    p1_drop = ''
    rev = True
    init_w = 2
    early_step = 2
    x_gap = 60
    p1_nowait = False
    p1_noread = False
    wring = 3
    kvpf = 'early'
    coopx = False
    init_more = 0
OPT = Opt()

def wait_tag(*tags): return I("s_waitcnt vmcnt(?)", "wait", vmtags=list(tags))
def tag(ins, t):
    ins.meta["tag"] = t; return ins
def resolve_vm(stream, queue):
    q = list(queue)
    for ins in stream:
        if ins.kind in ("dma", "vld", "vst"):
            q.append(ins.meta.get("tag", "?"))
        elif ins.kind == "wait":
            if "vmtags" in ins.meta:
                idx = [n for n, t in enumerate(q) if t in ins.meta["vmtags"]]
                n = len(q) - 1 - max(idx) if idx else len(q)
                n = min(n, 63)
                ins.text = f"s_waitcnt vmcnt({n})"; ins.meta["vm"] = n
            if "vm" in ins.meta:
                n = ins.meta["vm"]
                if len(q) > n: q = q[len(q) - n:] if n else []
    return q

_stamp_n = [0]
def stamp(name):
    if not OPT.stamps: return []
    n = _stamp_n[0]; _stamp_n[0] += 1
    STAMPS.append(name)
    op = "s_memrealtime" if name.startswith("rt") else "s_memtime"
    return [raw(f"{op} s[{S_STAMP+2*n}:{S_STAMP+2*n+1}]", "salu")]
STAMPS = []

def m0_set(base): return salu(f"s_add_u32 m0, s{S_W1K}, {base}", [f"s{S_W1K}"], ["m0"])

def dma_tile(kind, slot_base, soff, tg):
    voff, srd, fl = {"K": (V_DK, S_K, OPT.kv_flags), "V": (V_DV, S_V, OPT.kv_flags), "W": (V_DW, S_WQ, OPT.w_flags)}[kind]
    return [(m0_set(slot_base + dc * 3968), tag(dma(voff, srd, soff, dc * 128, fl), tg)) for dc in range(4)]

def setup():
    o = []; a = o.append
    a(salu("s_cmp_ge_u32 s2, 256")); a(raw("s_cbranch_scc1 L_end", "branch"))
    o += stamp("rt_start") + stamp("start")
    a(salu("s_load_dwordx16 s[36:51], s[0:1], 0")); a(salu("s_load_dwordx8 s[52:59], s[0:1], 64"))
    a(salu("s_load_dwordx2 s[60:61], s[0:1], 96"))
    a(valu("v_lshrrev_b32 v1, 6, v0", ["v0"], ["v1"]))
    a(valu(f"v_and_b32 v{V_LANE}, 63, v0", ["v0"], ["v0"]))
    a(valu(f"v_readfirstlane_b32 s{S_W}, v1", ["v1"], [f"s{S_W}"]))
    a(salu(f"s_and_b32 s{S_T0}, s2, 7")); a(salu(f"s_lshr_b32 s{S_T1}, s2, 3"))
    a(salu(f"s_and_b32 s{S_H}, s{S_T1}, 15")); a(salu(f"s_lshr_b32 s{S_T1}, s{S_T1}, 4"))
    a(salu(f"s_lshl_b32 s{S_G}, s{S_T0}, 1")); a(salu(f"s_add_u32 s{S_G}, s{S_G}, s{S_T1}"))
    a(salu(f"s_lshr_b32 s{S_BR}, s{S_G}, 3")); a(salu(f"s_and_b32 s{S_B}, s{S_G}, 7"))
    a(salu(f"s_lshl_b32 s{S_W1K}, s{S_W}, 10"))
    a(salu(f"s_mov_b32 s{S_C}, 0x{f32bits(CSC):08x}"))
    L = f"v{V_LANE}"
    def vv(t, rd, wr): a(valu(t, rd, wr))
    vv(f"v_and_b32 v1, 15, {L}", [L], ["v1"]); vv(f"v_lshrrev_b32 v2, 4, {L}", [L], ["v2"])
    vv("v_lshrrev_b32 v3, 1, v1", ["v1"], ["v3"])
    for sp in range(2):
        r = V_KA[sp]
        vv(f"v_add_u32 v{r}, {4*sp}, v2", ["v2"], [f"v{r}"])
        vv(f"v_xor_b32 v{r}, v{r}, v3", [f"v{r}", "v3"], [f"v{r}"])
        vv(f"v_lshlrev_b32 v{r}, 4, v{r}", [f"v{r}"], [f"v{r}"])
        vv(f"v_lshl_add_u32 v{r}, v1, 7, v{r}", ["v1", f"v{r}"], [f"v{r}"])
    vv(f"v_bfe_u32 v28, {L}, 2, 2", [L], ["v28"]); vv(f"v_and_b32 v29, 3, {L}", [L], ["v29"])
    vv("v_lshl_add_u32 v30, v2, 2, v28", ["v2", "v28"], ["v30"])
    vv("v_bfe_u32 v31, v30, 1, 2", ["v30"], ["v31"])
    for p in range(4):
        r = V_VA[p]
        vv(f"v_xor_b32 v{r}, {p}, v31", ["v31"], [f"v{r}"])
        vv(f"v_lshlrev_b32 v{r}, 5, v{r}", [f"v{r}"], [f"v{r}"])
        vv(f"v_lshl_add_u32 v{r}, v30, 7, v{r}", ["v30", f"v{r}"], [f"v{r}"])
        vv(f"v_lshl_add_u32 v{r}, v29, 3, v{r}", ["v29", f"v{r}"], [f"v{r}"])
        vv(f"v_add_u32 v{r}, {L_V}, v{r}", [f"v{r}"], [f"v{r}"])
    vv("v_lshl_add_u32 v30, v2, 3, v28", ["v2", "v28"], ["v30"])
    vv("v_lshrrev_b32 v31, 1, v28", ["v28"], ["v31"])
    for sp in range(2):
        r = V_WA[0][sp]
        vv(f"v_xor_b32 v{r}, {sp}, v31", ["v31"], [f"v{r}"])
        vv(f"v_lshl_add_u32 v{r}, v{r}, 2, v29", [f"v{r}", "v29"], [f"v{r}"])
        vv(f"v_lshlrev_b32 v{r}, 4, v{r}", [f"v{r}"], [f"v{r}"])
        vv(f"v_lshl_add_u32 v{r}, v30, 7, v{r}", ["v30", f"v{r}"], [f"v{r}"])
        for win in (1, 2):
            vv(f"v_add_u32 v{V_WA[win][sp]}, {65536*win}, v{r}", [f"v{r}"], [f"v{V_WA[win][sp]}"])
    vv(f"v_lshrrev_b32 v1, 3, {L}", [L], ["v1"]); vv(f"v_and_b32 v2, 7, {L}", [L], ["v2"])
    vv(f"v_lshl_add_u32 v3, s{S_W}, 3, v1", ["v1", f"s{S_W}"], ["v3"])
    vv("v_bfe_u32 v28, v3, 1, 3", ["v3"], ["v28"]); vv("v_xor_b32 v28, v28, v2", ["v28", "v2"], ["v28"])
    vv("v_lshlrev_b32 v28, 4, v28", ["v28"], ["v28"]); vv(f"v_lshl_add_u32 v{V_DK}, v3, 9, v28", ["v3", "v28"], [f"v{V_DK}"])
    vv("v_bfe_u32 v28, v3, 1, 2", ["v3"], ["v28"]); vv("v_lshlrev_b32 v28, 1, v28", ["v28"], ["v28"])
    vv("v_xor_b32 v28, v28, v2", ["v28", "v2"], ["v28"]); vv("v_lshlrev_b32 v28, 4, v28", ["v28"], ["v28"])
    vv(f"v_lshl_add_u32 v{V_DV}, v3, 9, v28", ["v3", "v28"], [f"v{V_DV}"])
    vv("v_bfe_u32 v28, v3, 1, 1", ["v3"], ["v28"]); vv("v_lshlrev_b32 v28, 2, v28", ["v28"], ["v28"])
    vv("v_xor_b32 v28, v28, v2", ["v28", "v2"], ["v28"]); vv("v_lshlrev_b32 v28, 4, v28", ["v28"], ["v28"])
    vv(f"v_lshl_add_u32 v{V_DW}, v3, 13, v28", ["v3", "v28"], [f"v{V_DW}"])
    a(raw("s_waitcnt lgkmcnt(0)", "wait", lgkm=0))
    a(salu(f"s_cmp_eq_u32 s{S_BR}, 0"))
    for i in range(10): a(salu(f"s_cselect_b32 s{36+i}, s{36+i}, s{46+i}"))
    def srd(base, lo, hi, offs, size):
        if offs is None:
            a(salu(f"s_mov_b32 s{base}, s{lo}")); a(salu(f"s_mov_b32 s{base+1}, s{hi}"))
        else:
            a(salu(f"s_add_u32 s{base}, s{lo}, {offs}")); a(salu(f"s_addc_u32 s{base+1}, s{hi}, 0"))
        a(salu(f"s_mov_b32 s{base+2}, {size}")); a(salu(f"s_mov_b32 s{base+3}, 0x20000"))
    a(salu(f"s_mul_i32 s{S_T0}, s{S_B}, 229376")); srd(S_X, 36, 37, f"s{S_T0}", 229376)
    a(salu(f"s_lshl_b32 s{S_T0}, s{S_H}, 9")); srd(S_WQ, 42, 43, f"s{S_T0}", 0)
    a(salu(f"s_sub_u32 s{S_WQ+2}, {448*8192}, s{S_T0}"))
    a(salu(f"s_lshl_b32 s{S_T0}, s{S_B}, 4")); a(salu(f"s_add_u32 s{S_T0}, s{S_T0}, s{S_H}"))
    a(salu(f"s_lshl_b32 s{S_T0}, s{S_T0}, 19"))
    srd(S_K, 38, 39, f"s{S_T0}", 524288); srd(S_V, 40, 41, f"s{S_T0}", 524288)
    a(salu(f"s_mul_i32 s{S_T0}, s{S_H}, 229376")); srd(S_WO, 44, 45, f"s{S_T0}", 229376)
    srd(S_WS, 60, 61, None, 16 * 7 * 16 * 16 * 2048)
    srd(S_OUT, 56, 57, None, 8 * 256 * 896 * 2)
    return o

def add_lgkm_waits(g, cons, carried):
    seq = [(-1, regs) for regs in carried]
    for k in range(g.n):
        if g.mem[k] is not None and g.mem[k].kind == "ds": seq.append((k, g.mem[k].wr))
    lead = None
    for k, regs in cons:
        late = [n for n, (gap, w) in enumerate(seq) if gap == k - 1 and gap >= 0 and set(w) & set(regs)]
        assert not late, f"DS for MFMA {k} issued in gap {k-1}"
        idx = [n for n, (gap, w) in enumerate(seq) if gap < max(k - 1, 0) and set(w) & set(regs)]
        if not idx: continue
        last = max(idx)
        after = sum(1 for n, (gap, w) in enumerate(seq) if n > last and gap < max(k - 1, 0))
        assert after <= 15, (k, after)
        if k == 0: lead = wait_lgkm(after)
        else: g.pre[k - 1].insert(0, wait_lgkm(after))
    out = len(carried)
    if lead is not None: out = min(out, lead.meta["lgkm"])
    for k in range(g.n):
        for x in g.pre[k]:
            if "lgkm" in x.meta: out = min(out, x.meta["lgkm"])
        if g.mem[k] is not None and g.mem[k].kind == "ds":
            if out >= 14:
                assert len(g.pre[k]) == 0, k
                g.pre[k].append(wait_lgkm(8)); out = 8
            out += 1
    return lead

def place_vmem(g, gap, scalars, d, hi=None, stack=False):
    k = max(gap, 1 if stack else len(scalars))
    hi = g.n if hi is None else hi
    isdma = lambda x: x is not None and x.kind == "dma"
    while True:
        assert k < hi, f"no gap for {d.text}"
        if g.mem[k] is None and not g.vec[k] and len(g.pre[k]) <= 1:
            if stack:
                if not isdma(g.mem[k - 1]) and len(g.pre[k - 1]) + len(scalars) <= 3 and not any(x.kind == "barrier" for x in g.pre[k - 1]): break
            elif all(not g.pre[k - 1 - n] and not isdma(g.mem[k - 1 - n]) for n in range(len(scalars))): break
        k += 1
    if stack:
        for sc in scalars: g.put_pre(k - 1, sc)
    else:
        for n, sc in enumerate(scalars): g.put_pre(k - len(scalars) + n, sc)
    g.put_mem(k, d)
    return k

def put_scalar(g, gap, *ins):
    k = gap
    while g.pre[k]: k += 1
    g.pre[k] = list(ins)
    return k

def place_chain(g, ops, lo, hi):
    left = []
    for ins in ops:
        k = g.place_vec(ins, lo, hi) if (not left and lo < hi) else None
        if k is None: left.append(ins)
        else: lo = k + 1 if ins.kind == "trans" else k
    return lo, left

class Op:
    def __init__(self, ins, rel, dl, preds=()):
        self.ins = ins; self.rel = rel; self.dl = dl; self.preds = list(preds); self.gap = None

def list_schedule(g, ops, lo=0, hi=None):
    hi = g.n if hi is None else hi
    todo = list(ops)
    for k in range(lo, hi):
        while True:
            free = g.free_vec(k)
            if free <= 0: break
            ready = [x for x in todo if x.rel <= k and all(p.gap is not None and p.gap + d <= k for p, d in x.preds)]
            tr = [x for x in ready if x.ins.kind == "trans"]
            pl = [x for x in ready if x.ins.kind != "trans"]
            pick = None
            can_tr = free == 2 and g.mem[k] is None and not g.vec[k]
            if can_tr and tr: pick = min(tr, key=lambda x: x.dl)
            if pl:
                best = min(pl, key=lambda x: x.dl)
                if pick is None or (best.dl + 6 < pick.dl): pick = best
            if pick is None: break
            g.vec[k].append(pick.ins); pick.gap = k; todo.remove(pick)
    late = [x for x in ops if x.gap is not None and x.gap > x.dl]
    assert not late, [(x.ins.text, x.gap, x.dl) for x in late]
    return todo

def sm_ops(tile, kb, qb, rel, dl):
    i = sm_group(tile, kb, qb)
    f = [Op(i[0], rel, dl - 6), Op(i[1], rel, dl - 6), Op(i[4], rel, dl - 5), Op(i[5], rel, dl - 5)]
    x = [Op(i[2], rel, dl - 4, [(f[0], 1)]), Op(i[3], rel, dl - 4, [(f[1], 1)]), Op(i[6], rel, dl - 3, [(f[2], 1)]), Op(i[7], rel, dl - 3, [(f[3], 1)])]
    ad = [Op(i[8], rel, dl, [(x[0], 1)]), Op(i[9], rel, dl, [(x[1], 1)]), Op(i[11], rel, dl, [(x[2], 1)]), Op(i[12], rel, dl, [(x[3], 1)])]
    cv = [Op(i[10], rel, dl, [(x[0], 1), (x[1], 1)]), Op(i[13], rel, dl, [(x[2], 1), (x[3], 1)])]
    return f + x + ad + cv

def exposed(ops):
    o = []
    for n, ins in enumerate(ops):
        o.append(ins)
        if ins.kind == "trans" and n + 1 < len(ops) and ops[n + 1].kind != "trans": o.append(nop(0))
    return o

def conv_ops(acc, d, t):
    return [valu(f"v_accvgpr_read_b32 v{d}, a{acc}", [f"a{acc}"], [f"v{d}"]),
            valu(f"v_accvgpr_read_b32 v{t}, a{acc+1}", [f"a{acc+1}"], [f"v{t}"]),
            valu(f"v_accvgpr_read_b32 v{d+1}, a{acc+2}", [f"a{acc+2}"], [f"v{d+1}"]),
            valu(f"v_accvgpr_read_b32 v{t+1}, a{acc+3}", [f"a{acc+3}"], [f"v{t+1}"]),
            valu(f"v_cvt_pk_bf16_f32 v{d}, v{d}, v{t}", [f"v{d}", f"v{t}"], [f"v{d}"]),
            valu(f"v_cvt_pk_bf16_f32 v{d+1}, v{d+1}, v{t+1}", [f"v{d+1}", f"v{t+1}"], [f"v{d+1}"])]

def xlane_reduce(regs, op, tmp):
    o = []
    for swap in ("v_permlane32_swap_b32", "v_permlane16_swap_b32"):
        for n, r in enumerate(regs): o.append(valu(f"v_mov_b32 v{tmp+n}, v{r}", [f"v{r}"], [f"v{tmp+n}"]))
        o.append(nop(1))
        for n, r in enumerate(regs):
            o.append(valu(f"{swap} v{r}, v{tmp+n}", [f"v{r}", f"v{tmp+n}"], [f"v{r}", f"v{tmp+n}"]))
        o.append(nop(1))
        for n, r in enumerate(regs):
            o.append(valu(f"{op} v{r}, v{r}, v{tmp+n}", [f"v{r}", f"v{tmp+n}"], [f"v{r}"]))
    return o

def wpairs(): return [(L_X, L_X + 16384), (vslot(1), kslot(3)), (vslot(2), vslot(3))]
def wslot(tile):
    p = wpairs(); return p[(tile // 2) % len(p)][tile % 2]
XBUF = [V_S, V_P]
def xfrag(qb, cs): return XBUF[(cs // 2) & 1] + ((cs % 2) * 4 + qb) * 4
V_XD = [128, 129]
V_XR = [130, 131]
S_XB = 34
S_XCUR = 35
def x_setup():
    o = []; a = o.append
    L = f"v{V_LANE}"
    a(salu(f"s_and_b32 s{S_T1}, s{S_W}, 1")); a(salu(f"s_lshl_b32 s{S_T1}, s{S_T1}, 13"))
    a(salu(f"s_cmp_lt_u32 s{S_W}, 2")); a(salu(f"s_cselect_b32 s{S_XB}, 2, 4")); a(salu(f"s_lshl_b32 s{S_XB}, s{S_XB}, 14"))
    a(salu(f"s_add_u32 s{S_XB}, s{S_XB}, s{S_T1}"))
    assert kslot(2) == 2 << 14 and vslot(0) == 4 << 14
    a(valu(f"v_lshrrev_b32 v1, 3, {L}", [L], ["v1"])); a(valu(f"v_and_b32 v2, 7, {L}", [L], ["v2"]))
    a(valu(f"v_lshl_add_u32 v3, s{S_W}, 6, v1", ["v1", f"s{S_W}"], ["v3"]))
    a(valu("v_mul_u32_u24 v3, 896, v3", ["v3"], ["v3"]))
    a(valu("v_lshrrev_b32 v1, 1, v1", ["v1"], ["v1"]))
    for par in range(2):
        r = V_XD[par]
        a(valu(f"v_or_b32 v{r}, {4*par}, v1", ["v1"], [f"v{r}"]))
        a(valu(f"v_xor_b32 v{r}, v{r}, v2", [f"v{r}", "v2"], [f"v{r}"]))
        a(valu(f"v_lshl_add_u32 v{r}, v{r}, 4, v3", [f"v{r}", "v3"], [f"v{r}"]))
        a(valu(f"v_add_u32 v{V_XR[par]}, s{S_XB}, v{V_KA[par]}", [f"v{V_KA[par]}"], [f"v{V_XR[par]}"]))
    return o
def x_items(j):
    out = []
    for i in range(8):
        sreg = S_T2 + (i & 1)
        sc = []
        if i == 0 and j > 0: sc.append(salu(f"s_add_u32 s{S_XCUR}, s{S_XCUR}, s{S_XSTEP}", [f"s{S_XCUR}"], [f"s{S_XCUR}"]))
        sc.append(salu(f"s_add_u32 s{sreg}, s{S_XCUR}, {i*7168}", [f"s{S_XCUR}"], [f"s{sreg}"]))
        sc.append(salu(f"s_add_u32 m0, s{S_XB}, {i*1024}", [f"s{S_XB}"], ["m0"]))
        out.append((sc, tag(dma(V_XD[i & 1], S_X, f"s{sreg}", 0, OPT.x_flags), f"x{j}")))
    return out
def x_read(qb, cs): return ds_read128("v", xfrag(qb, cs), V_XR[cs & 1], qb * 2048)
def w_read(dbp, cs, jj):
    s, e = dbp >> 1, dbp & 1
    base = wslot(cs); win = base // 65536
    off = base - win * 65536 + (s >> 1) * 4096 + jj * 512 + e * 8
    return ds_read_tr("v", V_POOL + 4 * ((2 * dbp + (cs & 1)) % 8) + 2 * jj, V_WA[win][s & 1], off)

V_PF = 28
def coop_setup():
    o = []; a = o.append
    a(salu(f"s_mul_i32 s{S_T1}, s{S_H}, {112*128}"))
    a(salu(f"s_lshl_b32 s{S_T2}, s{S_W}, 12")); a(salu(f"s_add_u32 s{S_T1}, s{S_T1}, s{S_T2}"))
    a(valu(f"v_and_b32 v{V_PF}, 31, v{V_LANE}", [f"v{V_LANE}"], [f"v{V_PF}"]))
    a(valu(f"v_lshlrev_b32 v{V_PF}, 7, v{V_PF}", [f"v{V_PF}"], [f"v{V_PF}"]))
    a(valu(f"v_add_u32 v{V_PF}, s{S_T1}, v{V_PF}", [f"v{V_PF}"], [f"v{V_PF}"]))
    return o
def coop_x():
    return [tag(bload(V_PF + 1, 1, V_PF, S_X, "0", 0), "pf")]

def phase1():
    o = []; a = o.append
    NP = 3
    a(salu(f"s_lshr_b32 s{S_T1}, s2, 7")); a(salu(f"s_and_b32 s{S_T1}, s{S_T1}, {1 if OPT.rev else 0}"))
    a(salu(f"s_cmp_eq_u32 s{S_T1}, 0"))
    a(salu(f"s_cselect_b32 s{S_WCUR}, 0, {6*524288}")); a(salu(f"s_cselect_b32 s{S_T2}, 1, -1"))
    a(salu(f"s_cselect_b32 s{S_XCUR}, 0, 768"))
    a(salu(f"s_mul_i32 s{S_WSTEP}, s{S_T2}, 524288")); a(salu(f"s_mul_i32 s{S_XSTEP}, s{S_T2}, 128"))
    o += x_setup()
    if OPT.coopx: o += coop_setup() + coop_x()
    def w_items(j):
        out = []
        for par in range(2):
            sreg = S_WCUR if par == 0 else S_WOFF
            for m, (m0, d) in enumerate(dma_tile("W", wslot(2 * j + par), f"s{sreg}", f"W{j}")):
                sc = [m0]
                if m == 0 and par == 0 and j > 0: sc = [salu(f"s_add_u32 s{S_WCUR}, s{S_WCUR}, s{S_WSTEP}", [f"s{S_WCUR}"], [f"s{S_WCUR}"]), m0]
                if m == 0 and par == 1: sc = [salu(f"s_add_u32 s{S_WOFF}, s{S_WCUR}, 262144", [f"s{S_WCUR}"], [f"s{S_WOFF}"]), m0]
                out.append((sc, d))
        return out
    def kv_items(kind, t):
        out = []
        for m, (m0, d) in enumerate(dma_tile(kind, kslot(t) if kind == "K" else vslot(t), f"s{S_T0}", f"{kind}{t}")):
            out.append(([salu(f"s_mov_b32 s{S_T0}, {t*16384}", [], [f"s{S_T0}"]), m0] if m == 0 else [m0], d))
        return out
    def now(items):
        for sc, d in items:
            o.extend(sc); a(nop(0)); a(d)
    w0 = w_items(0)
    for sc, d in w0[4:]: d.meta["tag"] = "W0b"
    now(x_items(0)); now(w0[:4]); now(w0[4:])
    a(wait_tag("x0"))
    xr = [x_read(qb, cs) for cs in (0, 1) for qb in range(4)]
    o += xr
    a(wait_tag("W0")); a(barrier())
    o += stamp("p1_first_data")
    def quad0(n): return V_POOL + 4 * (n % 8)
    def w_read0(n, jj):
        dbp, cs = n % 16, n // 16
        r = w_read(dbp, cs, jj)
        return ds_read_tr("v", quad0(n) + 2 * jj, int(r.rd[0][1:]), int(r.text.split("offset:")[1]))
    carried = [x.wr for x in xr]
    for n in range(3):
        for jj in range(2):
            r = w_read0(n, jj); a(r); carried.append(r.wr)
    early = {j: [] for j in range(7)}; after = {j: [] for j in range(7)}
    early[0] += w_items(1); early[1] += w_items(2)
    for j in range(NP, 7): after[j - NP + 1] += w_items(j)
    K = lambda t: kv_items("K", t)
    V = lambda t: kv_items("V", t)
    kv = {"early": {1: K(0), 2: K(1)}, "mid": {2: K(0), 3: K(1)}, "late": {3: K(0), 4: K(1)}}[OPT.kvpf]
    for j, l in kv.items(): early[j] += l
    after[5] += V(0)
    early[6] += K(2) + V(1) + K(3)
    after[6] += V(2)
    for j in range(7):
        ms = []
        if j == 0:
            for n in range(32):
                for qb in range(4):
                    acc = ((n % 16) * 4 + qb) * 4
                    first = n < 16
                    ms.append(mfma("a", acc, "v", quad0(n), "v", xfrag(qb, n // 16), None if first else "a", None if first else acc))
        else:
            for dbp in range(16):
                for qb in range(4):
                    for e2 in range(2):
                        acc = (dbp * 4 + qb) * 4
                        ms.append(mfma("a", acc, "v", V_POOL + 4 * ((2 * dbp + e2) % 8), "v", xfrag(qb, 2 * j + e2), "a", acc))
        g = Gaps(ms)
        if j == 0:
            for n in range(3, 32):
                for jj in range(2): g.put_mem(4 * n - 12 + 2 * jj, w_read0(n, jj))
        else:
            for dbp in range(3, 16):
                for n, (cs, jj) in enumerate([(2*j, 0), (2*j, 1), (2*j+1, 0), (2*j+1, 1)]):
                    g.put_mem(8 * dbp - 24 + 2 * n, w_read(dbp, cs, jj))
        nxt = []
        if j < 6:
            for dbp in range(3):
                for n, (cs, jj) in enumerate([(2*j+2, 0), (2*j+2, 1), (2*j+3, 0), (2*j+3, 1)]):
                    r = w_read(dbp, cs, jj); g.put_mem(104 + (1 if j == 0 else 0) + 8 * dbp + 2 * n, r); nxt.append(r.wr)
        XG = OPT.x_rd_gap if j > 0 else OPT.x_rd_gap0
        xreads = []
        if j < 6:
            for n, (cs, qb) in enumerate([(cs, qb) for cs in (2*j+2, 2*j+3) for qb in range(4)]):
                r = x_read(qb, cs); g.put_mem(XG + 2 * n, r); xreads.append(r)
        if j == 0:
            cons = [(4 * n, R("v", quad0(n), 4) + (R("v", V_S, 32) if n == 0 else [])) for n in range(32)]
        else:
            cons = [(8 * dbp, R("v", V_POOL + 4 * ((2 * dbp) % 8), 8)) for dbp in range(16)]
        if j < 6: cons.append((XG + 24, [w for r in xreads for w in r.wr]))
        cons.sort()
        lead = add_lgkm_waits(g, cons, carried)
        if j < 6:
            k = XG - 2
            while g.pre[k]: k -= 1
            g.pre[k] = [wait_tag(f"x{j+1}")]
        tags = [f"W{j+1}"] if j < 6 else ["K0"]
        k = 100
        while g.pre[k]: k -= 1
        g.pre[k] = [wait_tag(*tags), barrier()] if not OPT.p1_nowait else [barrier()]
        kb = k
        gp = 1
        if j == 0:
            for sc, d in x_items(1): gp = place_vmem(g, gp, sc, d, XG - 3, stack=True) + 2
            k = 48
            while g.pre[k]: k -= 1
            g.pre[k] = [wait_tag("W0b"), barrier()]
            assert k < 52
        for sc, d in early[j]: gp = place_vmem(g, gp + len(sc) - 1, sc, d, kb) + (OPT.early_step if j != 6 else 7)
        if j < 5:
            gx = max(XG + 25, gp)
            for sc, d in x_items(j + 2): gx = place_vmem(g, gx, sc, d, stack=True) + 2
            gpa = max(kb + 2, gx)
        else: gpa = kb + 2
        for sc, d in after[j]: gpa = place_vmem(g, gpa, sc, d, stack=True) + 1
        left = []
        if j == 6:
            for dbp in range(16):
                for qb in range(4):
                    ops = conv_ops((dbp * 4 + qb) * 4, V_Q + (qb * 8 + (dbp >> 1)) * 4 + 2 * (dbp & 1), V_CT + 2 * (qb & 1))
                    if left: left += ops
                    else:
                        _, l2 = place_chain(g, ops, 8 * dbp + 2 * qb + 1 + 5, 128); left += l2
        if lead is not None: a(lead)
        em = g.emit()
        if OPT.p1_drop:
            def keep(x):
                if x.kind in ("dma", "vld"):
                    t = x.meta.get("tag", "")
                    for c in OPT.p1_drop:
                        if t.startswith(c): return False
                return True
            em = [x for x in em if keep(x)]
        if OPT.p1_noread: em = [x for x in em if x.kind != "ds" and not (x.kind == "wait" and "lgkm" in x.meta)]
        o += em
        carried = nxt
        if OPT.p1_steps: o += stamp(f"step{j}")
        if left: a(nop(7)); o += left
    if not OPT.p1_steps: o += stamp("p1_end")
    return o

def k_read(t, kb, s):
    return ds_read128("v", V_POOL + 4 * s, V_KA[s & 1], (kslot(t) - L_K) + (s >> 1) * 4096 + kb * 2048)
def v_read(t, db, jj):
    return ds_read_tr("v", V_POOL + 4 * (db % 8) + 2 * jj, V_VA[db & 3], (vslot(t) - L_V) + (db >> 2) * 4096 + jj * 2048)
def Sreg(kb, qb): return V_S + (kb * 4 + qb) * 4
def Preg(buf, qb): return V_P + buf * 16 + qb * 4
def qk_mfmas():
    ms = []
    for i in range(64):
        kb, sp, qb, e = i >> 5, (i >> 3) & 3, (i >> 1) & 3, i & 1
        s = 2 * sp + e; d = Sreg(kb, qb)
        ms.append(mfma("v", d, "v", V_POOL + 4 * s, "v", V_Q + (qb * 8 + s) * 4, None if s == 0 else "v", None if s == 0 else d))
    return ms
def pv_mfmas(t, first):
    ms = []
    for i in range(64):
        db, qb = i >> 2, i & 3
        acc = (db * 4 + qb) * 4
        ms.append(mfma("a", acc, "v", V_POOL + 4 * (db % 8), "v", Preg(t & 1, qb), None if first else "a", None if first else acc))
    return ms
def sm_group(tile, kb, qb):
    s = Sreg(kb, qb); p = Preg(tile & 1, qb) + 2 * kb; mc = V_MC + qb; l = V_L + qb
    f = lambda r: valu(f"v_fma_f32 v{s+r}, v{s+r}, s{S_C}, v{mc}", [f"v{s+r}", f"v{mc}", f"s{S_C}"], [f"v{s+r}"])
    x = lambda r: trans(f"v_exp_f32 v{s+r}, v{s+r}", [f"v{s+r}"], [f"v{s+r}"])
    ad = lambda r: valu(f"v_add_f32 v{l}, v{l}, v{s+r}", [f"v{l}", f"v{s+r}"], [f"v{l}"])
    cv = lambda r: valu(f"v_cvt_pk_bf16_f32 v{p+r//2}, v{s+r}, v{s+r+1}", [f"v{s+r}", f"v{s+r+1}"], [f"v{p+r//2}"])
    return [f(0), f(1), x(0), x(1), f(2), f(3), x(2), x(3), ad(0), ad(1), cv(0), ad(2), ad(3), cv(2)]

def pre_iter():
    o = []; a = o.append
    carried = []
    for s in range(8):
        r = k_read(0, 0, s); a(r); carried.append(r.wr)
    g = Gaps(qk_mfmas())
    for s in range(8): g.put_mem(8 * (s >> 1) + 10 + 4 * (s & 1), k_read(0, 1, s))
    cons = [(8 * p, R("v", V_POOL + 8 * (p % 4), 8)) for p in range(8)]
    a(add_lgkm_waits(g, cons, carried)); o += g.emit()
    a(wait_tag("K1", "V0")); a(barrier())
    a(salu(f"s_mov_b32 s{S_KOFF}, {4*16384}"))
    for m0, d in dma_tile("K", kslot(4), f"s{S_KOFF}", "K4"): a(m0); a(nop(0)); a(d)
    a(salu(f"s_mov_b32 s{S_KOFF}, {5*16384}")); a(salu(f"s_mov_b32 s{S_VOFF}, {3*16384}"))
    carried = []
    for s in range(8):
        r = k_read(1, 0, s); a(r); carried.append(r.wr)
    for qb in range(4):
        m = V_MC + qb; s0 = Sreg(0, qb); s1 = Sreg(1, qb)
        a(valu(f"v_max3_f32 v{m}, v{s0}, v{s0+1}, v{s0+2}", R("v", s0, 3), [f"v{m}"]))
        a(valu(f"v_max3_f32 v{m}, v{m}, v{s0+3}, v{s1}", [f"v{m}", f"v{s0+3}", f"v{s1}"], [f"v{m}"]))
        a(valu(f"v_max3_f32 v{m}, v{m}, v{s1+1}, v{s1+2}", [f"v{m}", f"v{s1+1}", f"v{s1+2}"], [f"v{m}"]))
        a(valu(f"v_max_f32 v{m}, v{m}, v{s1+3}", [f"v{m}", f"v{s1+3}"], [f"v{m}"]))
    o += xlane_reduce([V_MC + q for q in range(4)], "v_max_f32", V_SP)
    for qb in range(4):
        m = V_MC + qb
        a(valu(f"v_mul_f32 v{m}, s{S_C}, v{m}", [f"v{m}", f"s{S_C}"], [f"v{m}"]))
        a(valu(f"v_sub_f32 v{m}, 0, v{m}", [f"v{m}"], [f"v{m}"]))
        a(valu(f"v_mov_b32 v{V_L+qb}, 0", [], [f"v{V_L+qb}"]))
    for kb, qb in [(0, 0), (0, 1), (0, 2), (0, 3), (1, 0), (1, 1)]: o += exposed(sm_group(0, kb, qb))
    o += stamp("pre_iter_end")
    return o, carried

def attn_iter(t, carried, vmw, prev, cur, first=False, adv=True, loopctl=False, extra=None):
    g = Gaps(qk_mfmas() + pv_mfmas(t, first))
    for s in range(8): g.put_mem(8 * (s >> 1) + 10 + 4 * (s & 1), k_read(t + 1, 1, s))
    for db in range(16):
        for jj in range(2): g.put_mem(44 + 4 * db + 2 * jj, v_read(t, db, jj))
    nxt = []
    if t + 2 <= 31:
        for s, gap in zip(range(8), [108, 110, 112, 114, 116, 120, 124, 127]):
            r = k_read(t + 2, 0, s); g.put_mem(gap, r); nxt.append(r.wr)
    else:
        for db in range(5):
            for jj in range(2):
                r = v_read(t + 1, db, jj); g.put_mem(108 + 4 * db + 2 * jj, r); nxt.append(r.wr)
    cons = [(8 * p, R("v", V_POOL + 8 * (p % 4), 8)) for p in range(8)]
    cons += [(64 + 4 * db, R("v", V_POOL + 4 * (db % 8), 4)) for db in range(16)]
    lead = add_lgkm_waits(g, cons, carried)
    kb = 98
    while g.pre[kb]: kb -= 1
    g.pre[kb] = [vmw, barrier()]
    placed = [place_vmem(g, gap, [m0], d, kb) for gap, (m0, d) in zip([5, 21, 37, 53, 69, 85], prev)]
    for gap, (m0, d) in zip([101, 117], cur): place_vmem(g, gap, [m0], d)
    if adv:
        for reg, srd, at in ((S_VOFF, S_V, placed[1] + 1), (S_KOFF, S_K, placed[5] + 1)):
            k = put_scalar(g, at, salu(f"s_add_u32 s{reg}, s{reg}, 16384", [f"s{reg}"], [f"s{reg}"]))
            k = put_scalar(g, k + 1, salu(f"s_cmp_lt_u32 s{reg}, 524288", [f"s{reg}"], ["scc"]),
                           salu(f"s_cselect_b32 s{srd+2}, 524288, 0", ["scc"], [f"s{srd+2}"]))
            assert k < 100
    if loopctl:
        k = put_scalar(g, 119, salu(f"s_sub_u32 s{S_LOOP}, s{S_LOOP}, 1", [f"s{S_LOOP}"], [f"s{S_LOOP}"]))
        k = put_scalar(g, k + 1, salu(f"s_cmp_lg_u32 s{S_LOOP}, 0", [f"s{S_LOOP}"], ["scc"]))
        assert k <= 127
        for kk in range(k + 1, 128):
            assert all(x.kind == "wait" for x in g.pre[kk]), "SCC clobbered before the loop branch"
    if extra: extra(g, kb)
    ops = []
    for qb in (2, 3): ops += sm_ops(t, 1, qb, 0, 31 + 2 * qb)
    for qb in range(4): ops += sm_ops(t + 1, 0, qb, 25 + 2 * qb + 6, 100 + 6 * qb)
    for qb in (0, 1): ops += sm_ops(t + 1, 1, qb, 57 + 2 * qb + 6, 124 + 3 * qb)
    left = list_schedule(g, ops)
    assert not left, f"softmax groups do not fit: {len(left)} left"
    return [lead] + g.emit(), nxt

def last_iter(carried):
    o = []; a = o.append
    for qb in (2, 3): o += exposed(sm_group(31, 1, qb))
    o += xlane_reduce([V_L + q for q in range(4)], "v_add_f32", V_SP)
    for qb in range(4): a(trans(f"v_rcp_f32 v{V_L+qb}, v{V_L+qb}", [f"v{V_L+qb}"], [f"v{V_L+qb}"]))
    a(nop(0))
    g = Gaps(pv_mfmas(31, False))
    for db in range(5, 8):
        for jj in range(2): g.put_mem(4 * (db - 5) + 2 * jj, v_read(31, db, jj))
    for db in range(8, 16):
        for jj in range(2): g.put_mem(12 + 4 * (db - 8) + 2 * jj, v_read(31, db, jj))
    cons = [(4 * db, R("v", V_POOL + 4 * (db % 8), 4)) for db in range(16)]
    lead = add_lgkm_waits(g, cons, carried)
    gp = put_wo(g, 2, 2, step=0)
    put_wo(g, 3, gp, step=0)
    left = []
    for db in range(16):
        for qb in range(4):
            ops = conv_ops((db * 4 + qb) * 4, V_Q + (qb * 8 + (db >> 1)) * 4 + 2 * (db & 1), V_SP + 8 + 2 * (qb & 1))
            if left: left += ops
            else:
                _, l2 = place_chain(g, ops, 4 * db + qb + 5, 64); left += l2
    a(lead); o += g.emit()
    a(nop(7)); o += left
    return o

WOBUF = [L_X, L_K, L_K + 32768, L_V, L_V + 32768, L_X, L_K]
V_DWO = 3; V_STO = V_DV
V_FR3 = 32; V_ACC3 = V_P; V_STG = 16
def wo_dma(j):
    out = []
    for i in range(8):
        sreg = S_T0 + (i & 1)
        out.append(([salu(f"s_mov_b32 s{sreg}, {j*128 + i*32*896}", [], [f"s{sreg}"]),
                     salu(f"s_add_u32 m0, s{S_W1K}, {WOBUF[j] + i*4096}", [f"s{S_W1K}"], ["m0"])],
                    tag(dma(V_DWO, S_WO, f"s{sreg}", 0, OPT.wo_flags), f"wo{j}")))
    return out
def wo_setup():
    o = []; a = o.append
    L = f"v{V_LANE}"
    a(valu(f"v_lshrrev_b32 v1, 3, {L}", [L], ["v1"])); a(valu(f"v_and_b32 v2, 7, {L}", [L], ["v2"]))
    a(valu(f"v_lshl_add_u32 v3, s{S_W}, 3, v1", ["v1", f"s{S_W}"], ["v3"]))
    a(valu("v_bfe_u32 v1, v1, 1, 2", ["v1"], ["v1"])); a(valu("v_lshlrev_b32 v1, 1, v1", ["v1"], ["v1"]))
    a(valu("v_xor_b32 v1, v1, v2", ["v1", "v2"], ["v1"])); a(valu("v_lshlrev_b32 v1, 4, v1", ["v1"], ["v1"]))
    a(valu("v_mul_u32_u24 v3, 896, v3", ["v3"], ["v3"]))
    a(valu(f"v_add_u32 v{V_DWO}, v3, v1", ["v3", "v1"], [f"v{V_DWO}"]))
    return o
def put_wo(g, j, start, hi=None, step=3):
    gp = start
    for sc, d in wo_dma(j): gp = place_vmem(g, gp, sc, d, hi) + step
    return gp
def wo_read(nb, s, jj):
    return ds_read_tr("v", V_FR3 + 4 * (8 * (nb & 1) + s) + 2 * jj, V_VA[nb], s * 4096 + jj * 2048)
def va_shift(delta):
    t = (lambda r: f"v_add_u32 v{r}, {delta}, v{r}") if delta >= 0 else (lambda r: f"v_subrev_u32 v{r}, {-delta}, v{r}")
    return [valu(t(r), [f"v{r}"], [f"v{r}"]) for r in V_VA]

def part_ops(nb, qb):
    acc = V_ACC3 + 4 * ((nb * 4 + qb) % 8)
    st = V_STG + 4 * qb + 2 * (nb & 1)
    li = V_L + qb
    ops = [valu(f"v_mul_f32 v{acc+r}, v{acc+r}, v{li}", [f"v{acc+r}", f"v{li}"], [f"v{acc+r}"]) for r in range(4)]
    ops += [valu(f"v_cvt_pk_bf16_f32 v{st}, v{acc}, v{acc+1}", [f"v{acc}", f"v{acc+1}"], [f"v{st}"]),
            valu(f"v_cvt_pk_bf16_f32 v{st+1}, v{acc+2}, v{acc+3}", [f"v{acc+2}", f"v{acc+3}"], [f"v{st+1}"])]
    return ops

def phase3():
    o = []; a = o.append
    o += stamp("p3_start")
    a(salu(f"s_mul_i32 s{S_PART}, s{S_G}, {7*16*16*2048}"))
    a(salu(f"s_lshl_b32 s{S_T2}, s{S_W}, 17")); a(salu(f"s_add_u32 s{S_PART}, s{S_PART}, s{S_T2}"))
    a(salu(f"s_lshl_b32 s{S_T2}, s{S_H}, 11")); a(salu(f"s_add_u32 s{S_PART}, s{S_PART}, s{S_T2}"))
    a(valu(f"v_lshlrev_b32 v{V_STO}, 4, v{V_LANE}", [f"v{V_LANE}"], [f"v{V_STO}"]))
    o += va_shift(WOBUF[0] - L_V)
    a(wait_tag("wo0")); a(barrier())
    carried = []
    for s in range(8):
        for jj in range(2):
            r = wo_read(0, s, jj); a(r); carried.append(r.wr)
            if len(carried) == 14: a(wait_lgkm(6)); carried = carried[-6:]
    for sc, d in wo_dma(4): o += sc + [nop(0), d]
    for j in range(7):
        ms = []
        for nb in range(4):
            for qb in range(4):
                acc = V_ACC3 + 4 * ((nb * 4 + qb) % 8)
                for s in range(8):
                    ms.append(mfma("v", acc, "v", V_FR3 + 4 * (8 * (nb & 1) + s), "v", V_Q + (qb * 8 + s) * 4,
                                   None if s == 0 else "v", None if s == 0 else acc))
        g = Gaps(ms)
        nxt = []
        for nb in range(3):
            for s in range(8):
                for jj in range(2): g.put_mem(32 * nb + 4 * s + 2 * jj, wo_read(nb + 1, s, jj))
        if j < 6:
            for s in range(8):
                for jj in range(2):
                    r = wo_read(0, s, jj); g.put_mem(96 + 4 * s + 2 * jj, r); nxt.append(r.wr)
        cons = [(32 * nb + s, R("v", V_FR3 + 4 * (8 * (nb & 1) + s), 4)) for nb in range(4) for s in (0, 2, 4, 6)]
        cons = [(k, R("v", V_FR3 + 4 * (8 * ((k >> 5) & 1) + (k & 7)), 8)) for k, _ in cons]
        lead = add_lgkm_waits(g, cons, carried)
        if j < 6:
            k = 93
            while g.pre[k]: k -= 1
            g.pre[k] = [wait_tag(f"wo{j+1}"), barrier()]
            sh = va_shift(WOBUF[j + 1] - WOBUF[j])
            assert g.place_vec(sh[0], 91, 96) is not None
            assert g.place_vec(sh[1], 40, 96) is not None
            assert g.place_vec(sh[2], 66, 96) is not None
            assert g.place_vec(sh[3], 97, 128) is not None
        if j in (2, 3): put_wo(g, j + 3, 3, step=6)
        tail = []
        for nb in range(4):
            for qb in range(4):
                lo, left = place_chain(g, part_ops(nb, qb), 32 * nb + 8 * qb + 7 + 8, 128)
                st = None
                if nb & 1:
                    so = j * 16 * 16 * 2048 + qb * 16 * 2048 + (nb >> 1) * 1024
                    sreg = S_T2 + (qb & 1)
                    st = (salu(f"s_add_u32 s{sreg}, s{S_PART}, {so}", [f"s{S_PART}"], [f"s{sreg}"]),
                          tag(bstore(V_STG + 4 * qb, 4, V_STO, S_WS, f"s{sreg}", 0, OPT.st_flags), f"st{j}"))
                if left or tail:
                    tail += left
                    if st: tail += [st[0], nop(1), st[1]]
                elif st:
                    k = lo + 2
                    while k < 128 and (g.mem[k] is not None or g.vec[k] or g.pre[k - 1] or len(g.pre[k]) > 1): k += 1
                    if k >= 128: tail += [st[0], nop(1), st[1]]
                    else: g.put_pre(k - 1, st[0]); g.put_mem(k, st[1])
        if lead is not None: a(lead)
        o += g.emit()
        if tail: a(nop(7)); o += exposed(tail)
        carried = nxt
    o += stamp("p3_end") + [wait_vm(0)] * (1 if OPT.stamps else 0) + stamp("rt_end")
    return o

def dump_regs(base, n, agpr=False):
    o = [wait_vm(0), raw("s_waitcnt lgkmcnt(0)", "wait", lgkm=0), nop(7), nop(7),
         salu(f"s_lshl_b32 s{S_T0}, s2, 2"), salu(f"s_add_u32 s{S_T0}, s{S_T0}, s{S_W}"),
         salu(f"s_mul_i32 s{S_T0}, s{S_T0}, {n*256}"), valu(f"v_lshlrev_b32 v1, 2, v{V_LANE}", [f"v{V_LANE}"], ["v1"])]
    for r in range(n):
        if agpr:
            o.append(valu(f"v_accvgpr_read_b32 v2, a{base+r}", [f"a{base+r}"], ["v2"])); o.append(bstore(2, 1, 1, S_WS, f"s{S_T0}", 0))
        else:
            o.append(bstore(base + r, 1, 1, S_WS, f"s{S_T0}", 0))
        o.append(salu(f"s_add_u32 s{S_T0}, s{S_T0}, 256"))
        if r % 32 == 31 or agpr: o.append(wait_vm(0))
    return o

def stamp_out():
    if not OPT.stamps: return []
    n = len(STAMPS)
    o = [raw("s_waitcnt lgkmcnt(0)", "wait", lgkm=0), salu(f"s_cmp_lg_u32 s{S_W}, 0"), raw("s_cbranch_scc1 L_nostamp", "branch")]
    o.append(salu(f"s_mul_i32 s{S_T0}, s2, 64")); o.append(salu(f"s_add_u32 s{S_T0}, s{S_T0}, {16*7*16*16*2048}"))
    o.append(salu(f"s_mov_b32 s{S_WS+2}, {16*7*16*16*2048 + 256*64}"))
    o.append(valu("v_mov_b32 v1, 0", [], ["v1"]))
    for k in range(n):
        o.append(valu(f"v_mov_b32 v2, s{S_STAMP+2*k}", [], ["v2"]))
        o.append(bstore(2, 1, 1, S_WS, f"s{S_T0}", 4 * k)); o.append(wait_vm(0))
    o.append(label("L_nostamp"))
    return o

def finish(): return [wait_vm(0), label("L_end"), raw("s_endpgm", "branch")]

def build(debug=None):
    _stamp_n[0] = 0; STAMPS.clear()
    pre = setup() + phase1()
    if debug == "p1":
        pre += stamp("rt_end")
        resolve_vm(pre, [])
        return pre + stamp_out() + finish()
    if debug == "q":
        resolve_vm(pre, []); check(pre, "pre")
        return pre + dump_regs(V_Q, 128) + finish()
    p, carried = pre_iter(); pre += p
    def batch(t):
        return dma_tile("V", vslot(t + 3), f"s{S_VOFF}", f"V{t+3}") + dma_tile("K", kslot(t + 5), f"s{S_KOFF}", f"K{t+5}")
    pre += wo_setup()
    s0, carried = attn_iter(0, carried, wait_tag("V1", "K2"), [], batch(0)[:2], first=True, adv=False,
                            extra=lambda g, kb: put_wo(g, 0, 3, kb, step=8))
    pre += s0
    pre.append(salu(f"s_mov_b32 s{S_LOOP}, 7"))
    pre += stamp("loop_start")
    loop = [label("L_attn")]
    for u in range(4):
        t = 1 + u
        s, carried = attn_iter(t, carried, wait_vm(12), batch(t - 1)[2:], batch(t)[:2], loopctl=(u == 3))
        loop += s
    loop.append(raw("s_cbranch_scc1 L_attn", "branch"))
    post = stamp("loop_end")
    s, carried = attn_iter(29, carried, wait_tag("V30", "K32"), batch(28)[2:4], [], adv=False)
    post += s
    def ex30(g, kb):
        put_wo(g, 1, 3, kb, step=8)
    s, carried = attn_iter(30, carried, wait_tag("V31"), [], [], adv=False, extra=ex30)
    post += s
    post += last_iter(carried)
    post += stamp("attn_end")
    if debug == "o":
        tailq = dump_regs(V_Q, 128)
    elif debug == "l":
        tailq = dump_regs(V_L, 4)
    else:
        tailq = phase3()
    post += tailq
    q = resolve_vm(pre, [])
    qexit = ["V30"] * 4 + ["K32"] * 4 + ["V31"] * 2
    resolve_vm(post, qexit)
    if not (OPT.p1_nowait or OPT.p1_noread or OPT.p1_drop): check(pre + loop[1:] + loop[1:], "pre+loop")
    check(loop[1:] + post, "loop+post", init_lgkm=[x.wr for x in pre if x.kind == "ds"][-8:], init_vm=[[]] * 10)
    return pre + loop + post + stamp_out() + finish()

def reduce_kernel():
    o = []; a = o.append
    a(salu("s_cmp_ge_u32 s2, 256")); a(raw("s_cbranch_scc1 R_end", "branch"))
    a(salu("s_load_dwordx2 s[4:5], s[0:1], 80")); a(salu("s_load_dwordx2 s[6:7], s[0:1], 96"))
    a(valu("v_lshrrev_b32 v1, 6, v0", ["v0"], ["v1"])); a(valu("v_and_b32 v0, 63, v0", ["v0"], ["v0"]))
    a(valu("v_readfirstlane_b32 s32, v1", ["v1"], ["s32"]))
    a(salu("s_lshr_b32 s33, s2, 4")); a(salu("s_and_b32 s34, s2, 15"))
    a(salu("s_lshr_b32 s35, s33, 3")); a(salu("s_and_b32 s36, s33, 7"))
    a(salu("s_lshr_b32 s37, s32, 1")); a(salu("s_and_b32 s38, s32, 1"))
    a(valu("v_lshrrev_b32 v2, 5, v0", ["v0"], ["v2"])); a(valu("v_lshlrev_b32 v2, 11, v2", ["v2"], ["v2"]))
    a(valu("v_and_b32 v3, 31, v0", ["v0"], ["v3"])); a(valu("v_lshl_add_u32 v2, v3, 4, v2", ["v3", "v2"], ["v2"]))
    a(salu("s_lshl_b32 s39, s37, 10")); a(salu("s_lshl_b32 s40, s38, 9")); a(salu("s_add_u32 s39, s39, s40"))
    a(valu("v_add_u32 v2, s39, v2", ["v2"], ["v2"]))
    a(valu("v_and_b32 v8, 15, v0", ["v0"], ["v8"])); a(valu("v_lshrrev_b32 v9, 4, v0", ["v0"], ["v9"]))
    a(valu("v_lshrrev_b32 v10, 3, v8", ["v8"], ["v10"])); a(valu("v_and_b32 v11, 1, v9", ["v9"], ["v11"]))
    a(valu("v_and_b32 v12, 1, v8", ["v8"], ["v12"])); a(valu("v_lshlrev_b32 v12, 4, v12", ["v12"], ["v12"]))
    a(valu("v_mov_b32 v13, 0x3f80", [], ["v13"])); a(valu("v_lshlrev_b32 v13, v12, v13", ["v12", "v13"], ["v13"]))
    a(valu("v_cmp_eq_u32 vcc, v10, v11", ["v10", "v11"], ["vcc"])); a(nop(1))
    a(valu("v_cndmask_b32 v13, 0, v13, vcc", ["v13", "vcc"], ["v13"]))
    a(valu("v_bfe_u32 v14, v8, 1, 2", ["v8"], ["v14"]))
    for r in range(4):
        a(valu(f"v_cmp_eq_u32 vcc, {r}, v14", ["v14"], ["vcc"])); a(nop(1))
        a(valu(f"v_cndmask_b32 v{4+r}, 0, v13, vcc", ["v13", "vcc"], [f"v{4+r}"]))
    a(salu("s_lshl_b32 s41, s36, 8")); a(salu("s_lshl_b32 s42, s34, 4")); a(salu("s_add_u32 s41, s41, s42"))
    a(valu("v_add_u32 v3, s41, v8", ["v8"], ["v3"])); a(valu("v_mul_u32_u24 v3, 896, v3", ["v3"], ["v3"]))
    a(salu("s_mul_i32 s42, s35, 448")); a(salu("s_lshl_b32 s43, s37, 5")); a(salu("s_add_u32 s42, s42, s43"))
    a(salu("s_lshl_b32 s43, s38, 3")); a(salu("s_add_u32 s42, s42, s43"))
    a(valu("v_add_u32 v3, s42, v3", ["v3"], ["v3"]))
    a(valu("v_lshl_add_u32 v3, v11, 4, v3", ["v11", "v3"], ["v3"]))
    a(valu("v_lshrrev_b32 v10, 1, v9", ["v9"], ["v10"])); a(valu("v_lshl_add_u32 v3, v10, 2, v3", ["v10", "v3"], ["v3"]))
    a(valu("v_lshlrev_b32 v3, 1, v3", ["v3"], ["v3"]))
    a(raw("s_waitcnt lgkmcnt(0)", "wait", lgkm=0))
    for base, lo, size in ((8, 6, 16 * 7 * 16 * 16 * 2048), (12, 4, 8 * 256 * 896 * 2)):
        a(salu(f"s_mov_b32 s{base}, s{lo}")); a(salu(f"s_mov_b32 s{base+1}, s{lo+1}"))
        a(salu(f"s_mov_b32 s{base+2}, {size}")); a(salu(f"s_mov_b32 s{base+3}, 0x20000"))
    a(salu(f"s_mul_i32 s44, s33, {7*16*32768}")); a(salu("s_lshl_b32 s45, s34, 15")); a(salu("s_add_u32 s44, s44, s45"))
    for j in range(7):
        for i in range(8):
            a(salu(f"s_add_u32 s46, s44, {j*16*32768 + i*4096}"))
            a(tag(bload(16 + (j * 8 + i) * 4, 4, 2, 8, "s46", 0), f"p{j}"))
    for j in range(7):
        a(wait_tag(f"p{j}"))
        d = 240 + 4 * (j & 1)
        for i in range(8):
            a(mfma("v", d, "v", 4, "v", 16 + (j * 8 + i) * 4, None if i == 0 else "v", None if i == 0 else d))
        a(nop(7))
        a(valu(f"v_cvt_pk_bf16_f32 v{d}, v{d}, v{d+1}", [f"v{d}", f"v{d+1}"], [f"v{d}"]))
        a(valu(f"v_cvt_pk_bf16_f32 v{d+1}, v{d+2}, v{d+3}", [f"v{d+2}", f"v{d+3}"], [f"v{d+1}"]))
        a(tag(bstore(d, 2, 3, 12, "0", j * 128), "o"))
    resolve_vm(o, []); check(o, "reduce")
    o += [wait_vm(0), label("R_end"), raw("s_endpgm", "branch")]
    return o

KD = """.section .rodata,"a"
.p2align 6
.amdhsa_kernel {name}
  .amdhsa_next_free_vgpr {vgpr}
  .amdhsa_next_free_sgpr 102
  .amdhsa_accum_offset 256
  .amdhsa_group_segment_fixed_size 0
  .amdhsa_kernarg_size 104
  .amdhsa_user_sgpr_count 2
  .amdhsa_user_sgpr_kernarg_segment_ptr 1
  .amdhsa_system_sgpr_workgroup_id_x 1
.end_amdhsa_kernel
"""
def header_comments():
    ref = open("cdna_kernels/" + NAME + ".s.ref").read().splitlines()
    out = []
    for l in ref:
        if l.startswith("; Override launch") or not l.startswith(";"): break
        out.append(l)
    return out

def assemble_file(debug=None):
    main = build(debug)
    red = reduce_kernel()
    k1 = NAME + "_kernel"; k2 = "reduce_heads_kernel"
    L = header_comments()
    L.append(f"; @launch kernel={k1} grid=(256,1,1) block=(256,1,1) lds={LDS_BYTES}")
    if debug is None: L.append(f"; @launch kernel={k2} grid=(256,1,1) block=(256,1,1) lds=0")
    L.append('.amdgcn_target "amdgcn-amd-amdhsa--gfx950"')
    L.append(".text")
    for nm, body in ((k1, main), (k2, red)):
        L += [f".globl {nm}", ".p2align 8", f".type {nm},@function", f"{nm}:", text(body)]
    L.append(KD.format(name=k1, vgpr=512)); L.append(KD.format(name=k2, vgpr=256))
    return "\n".join(L) + "\n"

if __name__ == "__main__":
    dbg = sys.argv[2] if len(sys.argv) > 2 and sys.argv[2] != "none" else None
    for kv in sys.argv[3:]:
        k, v = kv.split("=")
        setattr(OPT, k, {"True": True, "False": False}.get(v, int(v) if v.isdigit() else v))
    open(sys.argv[1], "w").write(assemble_file(dbg))
    print("stamps:", STAMPS)
```

```python
import math, struct, sys
from core import *

NAME = "concat_heads__mha_block_cached__mha_block_cached__near_ridge"
def f32bits(x): return struct.unpack("<I", struct.pack("<f", x))[0]
CSC = math.log2(math.e) / 16.0

S_X, S_WQ, S_K, S_V, S_WO, S_WS, S_OUT = 4, 8, 12, 16, 20, 24, 28
S_W, S_W1K = 32, 33
S_QB = ["0", "s34", "s35", "s62"]
S_C = 63
S_KOFF, S_VOFF = 64, 65
S_LOOP = 66
S_T0, S_T1, S_T2, S_T3 = 67, 68, 69, 70
S_G, S_H, S_B, S_BR = 71, 72, 73, 74
S_WOFF = 76
S_PART = 77
S_WCUR, S_WSTEP, S_XSTEP = 78, 79, 75
S_STAMP = 80
V_LANE = 0
V_KA = [4, 5]
V_VA = [6, 7, 8, 9]
V_DK, V_DV = 10, 11
V_L = 12
V_MC = 16
V_SP = 20
V_POOL = 32
V_S = 64
V_P = 96
V_Q = 128
V_XA = 20; V_DW = 21; V_WA = [[22, 23], [24, 25], [26, 27]]
V_CT = 28
L_K = 0; L_V = 65536; L_X = 131072
def kslot(t): return L_K + 16384 * (t % 4)
def vslot(t): return L_V + 16384 * (t % 4)
LDS_BYTES = 163840

class Opt:
    kv_flags = "nt"
    w_flags = ""
    x_flags = ""
    wo_flags = ""
    st_flags = ""
    stamps = False
    stamp_dbg = -1
    x_rd_gap0 = 65
    x_rd_gap = 33
    p1_steps = False
    p1_drop = ''
    rev = True
    init_w = 2
    early_step = 2
    x_gap = 60
    p1_nowait = False
    p1_noread = False
    wring = 3
    kvpf = 'early'
    coopx = False
    init_more = 0
OPT = Opt()

def wait_tag(*tags): return I("s_waitcnt vmcnt(?)", "wait", vmtags=list(tags))
def tag(ins, t):
    ins.meta["tag"] = t; return ins
def resolve_vm(stream, queue):
    q = list(queue)
    for ins in stream:
        if ins.kind in ("dma", "vld", "vst"):
            q.append(ins.meta.get("tag", "?"))
        elif ins.kind == "wait":
            if "vmtags" in ins.meta:
                idx = [n for n, t in enumerate(q) if t in ins.meta["vmtags"]]
                n = len(q) - 1 - max(idx) if idx else len(q)
                n = min(n, 63)
                ins.text = f"s_waitcnt vmcnt({n})"; ins.meta["vm"] = n
            if "vm" in ins.meta:
                n = ins.meta["vm"]
                if len(q) > n: q = q[len(q) - n:] if n else []
    return q

_stamp_n = [0]
def stamp(name):
    if not OPT.stamps: return []
    n = _stamp_n[0]; _stamp_n[0] += 1
    STAMPS.append(name)
    op = "s_memrealtime" if name.startswith("rt") else "s_memtime"
    return [raw(f"{op} s[{S_STAMP+2*n}:{S_STAMP+2*n+1}]", "salu")]
STAMPS = []

def m0_set(base): return salu(f"s_add_u32 m0, s{S_W1K}, {base}", [f"s{S_W1K}"], ["m0"])

def dma_tile(kind, slot_base, soff, tg):
    voff, srd, fl = {"K": (V_DK, S_K, OPT.kv_flags), "V": (V_DV, S_V, OPT.kv_flags), "W": (V_DW, S_WQ, OPT.w_flags)}[kind]
    return [(m0_set(slot_base + dc * 3968), tag(dma(voff, srd, soff, dc * 128, fl), tg)) for dc in range(4)]

def setup():
    o = []; a = o.append
    a(salu("s_cmp_ge_u32 s2, 256")); a(raw("s_cbranch_scc1 L_end", "branch"))
    o += stamp("rt_start") + stamp("start")
    a(salu("s_load_dwordx16 s[36:51], s[0:1], 0")); a(salu("s_load_dwordx8 s[52:59], s[0:1], 64"))
    a(salu("s_load_dwordx2 s[60:61], s[0:1], 96"))
    a(valu("v_lshrrev_b32 v1, 6, v0", ["v0"], ["v1"]))
    a(valu(f"v_and_b32 v{V_LANE}, 63, v0", ["v0"], ["v0"]))
    a(valu(f"v_readfirstlane_b32 s{S_W}, v1", ["v1"], [f"s{S_W}"]))
    a(salu(f"s_and_b32 s{S_T0}, s2, 7")); a(salu(f"s_lshr_b32 s{S_T1}, s2, 3"))
    a(salu(f"s_and_b32 s{S_H}, s{S_T1}, 15")); a(salu(f"s_lshr_b32 s{S_T1}, s{S_T1}, 4"))
    a(salu(f"s_lshl_b32 s{S_G}, s{S_T0}, 1")); a(salu(f"s_add_u32 s{S_G}, s{S_G}, s{S_T1}"))
    a(salu(f"s_lshr_b32 s{S_BR}, s{S_G}, 3")); a(salu(f"s_and_b32 s{S_B}, s{S_G}, 7"))
    a(salu(f"s_lshl_b32 s{S_W1K}, s{S_W}, 10"))
    a(salu(f"s_mov_b32 s{S_C}, 0x{f32bits(CSC):08x}"))
    L = f"v{V_LANE}"
    def vv(t, rd, wr): a(valu(t, rd, wr))
    vv(f"v_and_b32 v1, 15, {L}", [L], ["v1"]); vv(f"v_lshrrev_b32 v2, 4, {L}", [L], ["v2"])
    vv("v_lshrrev_b32 v3, 1, v1", ["v1"], ["v3"])
    for sp in range(2):
        r = V_KA[sp]
        vv(f"v_add_u32 v{r}, {4*sp}, v2", ["v2"], [f"v{r}"])
        vv(f"v_xor_b32 v{r}, v{r}, v3", [f"v{r}", "v3"], [f"v{r}"])
        vv(f"v_lshlrev_b32 v{r}, 4, v{r}", [f"v{r}"], [f"v{r}"])
        vv(f"v_lshl_add_u32 v{r}, v1, 7, v{r}", ["v1", f"v{r}"], [f"v{r}"])
    vv(f"v_bfe_u32 v28, {L}, 2, 2", [L], ["v28"]); vv(f"v_and_b32 v29, 3, {L}", [L], ["v29"])
    vv("v_lshl_add_u32 v30, v2, 2, v28", ["v2", "v28"], ["v30"])
    vv("v_bfe_u32 v31, v30, 1, 2", ["v30"], ["v31"])
    for p in range(4):
        r = V_VA[p]
        vv(f"v_xor_b32 v{r}, {p}, v31", ["v31"], [f"v{r}"])
        vv(f"v_lshlrev_b32 v{r}, 5, v{r}", [f"v{r}"], [f"v{r}"])
        vv(f"v_lshl_add_u32 v{r}, v30, 7, v{r}", ["v30", f"v{r}"], [f"v{r}"])
        vv(f"v_lshl_add_u32 v{r}, v29, 3, v{r}", ["v29", f"v{r}"], [f"v{r}"])
        vv(f"v_add_u32 v{r}, {L_V}, v{r}", [f"v{r}"], [f"v{r}"])
    vv("v_lshl_add_u32 v30, v2, 3, v28", ["v2", "v28"], ["v30"])
    vv("v_lshrrev_b32 v31, 1, v28", ["v28"], ["v31"])
    for sp in range(2):
        r = V_WA[0][sp]
        vv(f"v_xor_b32 v{r}, {sp}, v31", ["v31"], [f"v{r}"])
        vv(f"v_lshl_add_u32 v{r}, v{r}, 2, v29", [f"v{r}", "v29"], [f"v{r}"])
        vv(f"v_lshlrev_b32 v{r}, 4, v{r}", [f"v{r}"], [f"v{r}"])
        vv(f"v_lshl_add_u32 v{r}, v30, 7, v{r}", ["v30", f"v{r}"], [f"v{r}"])
        for win in (1, 2):
            vv(f"v_add_u32 v{V_WA[win][sp]}, {65536*win}, v{r}", [f"v{r}"], [f"v{V_WA[win][sp]}"])
    vv(f"v_lshrrev_b32 v1, 3, {L}", [L], ["v1"]); vv(f"v_and_b32 v2, 7, {L}", [L], ["v2"])
    vv(f"v_lshl_add_u32 v3, s{S_W}, 3, v1", ["v1", f"s{S_W}"], ["v3"])
    vv("v_bfe_u32 v28, v3, 1, 3", ["v3"], ["v28"]); vv("v_xor_b32 v28, v28, v2", ["v28", "v2"], ["v28"])
    vv("v_lshlrev_b32 v28, 4, v28", ["v28"], ["v28"]); vv(f"v_lshl_add_u32 v{V_DK}, v3, 9, v28", ["v3", "v28"], [f"v{V_DK}"])
    vv("v_bfe_u32 v28, v3, 1, 2", ["v3"], ["v28"]); vv("v_lshlrev_b32 v28, 1, v28", ["v28"], ["v28"])
    vv("v_xor_b32 v28, v28, v2", ["v28", "v2"], ["v28"]); vv("v_lshlrev_b32 v28, 4, v28", ["v28"], ["v28"])
    vv(f"v_lshl_add_u32 v{V_DV}, v3, 9, v28", ["v3", "v28"], [f"v{V_DV}"])
    vv("v_bfe_u32 v28, v3, 1, 1", ["v3"], ["v28"]); vv("v_lshlrev_b32 v28, 2, v28", ["v28"], ["v28"])
    vv("v_xor_b32 v28, v28, v2", ["v28", "v2"], ["v28"]); vv("v_lshlrev_b32 v28, 4, v28", ["v28"], ["v28"])
    vv(f"v_lshl_add_u32 v{V_DW}, v3, 13, v28", ["v3", "v28"], [f"v{V_DW}"])
    a(raw("s_waitcnt lgkmcnt(0)", "wait", lgkm=0))
    a(salu(f"s_cmp_eq_u32 s{S_BR}, 0"))
    for i in range(10): a(salu(f"s_cselect_b32 s{36+i}, s{36+i}, s{46+i}"))
    def srd(base, lo, hi, offs, size):
        if offs is None:
            a(salu(f"s_mov_b32 s{base}, s{lo}")); a(salu(f"s_mov_b32 s{base+1}, s{hi}"))
        else:
            a(salu(f"s_add_u32 s{base}, s{lo}, {offs}")); a(salu(f"s_addc_u32 s{base+1}, s{hi}, 0"))
        a(salu(f"s_mov_b32 s{base+2}, {size}")); a(salu(f"s_mov_b32 s{base+3}, 0x20000"))
    a(salu(f"s_mul_i32 s{S_T0}, s{S_B}, 229376")); srd(S_X, 36, 37, f"s{S_T0}", 229376)
    a(salu(f"s_lshl_b32 s{S_T0}, s{S_H}, 9")); srd(S_WQ, 42, 43, f"s{S_T0}", 0)
    a(salu(f"s_sub_u32 s{S_WQ+2}, {448*8192}, s{S_T0}"))
    a(salu(f"s_lshl_b32 s{S_T0}, s{S_B}, 4")); a(salu(f"s_add_u32 s{S_T0}, s{S_T0}, s{S_H}"))
    a(salu(f"s_lshl_b32 s{S_T0}, s{S_T0}, 19"))
    srd(S_K, 38, 39, f"s{S_T0}", 524288); srd(S_V, 40, 41, f"s{S_T0}", 524288)
    a(salu(f"s_mul_i32 s{S_T0}, s{S_H}, 229376")); srd(S_WO, 44, 45, f"s{S_T0}", 229376)
    srd(S_WS, 60, 61, None, 16 * 7 * 16 * 16 * 2048)
    srd(S_OUT, 56, 57, None, 8 * 256 * 896 * 2)
    return o

def add_lgkm_waits(g, cons, carried):
    seq = [(-1, regs) for regs in carried]
    for k in range(g.n):
        if g.mem[k] is not None and g.mem[k].kind == "ds": seq.append((k, g.mem[k].wr))
    lead = None
    for k, regs in cons:
        late = [n for n, (gap, w) in enumerate(seq) if gap == k - 1 and gap >= 0 and set(w) & set(regs)]
        assert not late, f"DS for MFMA {k} issued in gap {k-1}"
        idx = [n for n, (gap, w) in enumerate(seq) if gap < max(k - 1, 0) and set(w) & set(regs)]
        if not idx: continue
        last = max(idx)
        after = sum(1 for n, (gap, w) in enumerate(seq) if n > last and gap < max(k - 1, 0))
        assert after <= 15, (k, after)
        if k == 0: lead = wait_lgkm(after)
        else: g.pre[k - 1].insert(0, wait_lgkm(after))
    out = len(carried)
    if lead is not None: out = min(out, lead.meta["lgkm"])
    for k in range(g.n):
        for x in g.pre[k]:
            if "lgkm" in x.meta: out = min(out, x.meta["lgkm"])
        if g.mem[k] is not None and g.mem[k].kind == "ds":
            if out >= 14:
                assert len(g.pre[k]) == 0, k
                g.pre[k].append(wait_lgkm(8)); out = 8
            out += 1
    return lead

def place_vmem(g, gap, scalars, d, hi=None, stack=False):
    k = max(gap, 1 if stack else len(scalars))
    hi = g.n if hi is None else hi
    isdma = lambda x: x is not None and x.kind == "dma"
    while True:
        assert k < hi, f"no gap for {d.text}"
        if g.mem[k] is None and not g.vec[k] and len(g.pre[k]) <= 1:
            if stack:
                if not isdma(g.mem[k - 1]) and len(g.pre[k - 1]) + len(scalars) <= 3 and not any(x.kind == "barrier" for x in g.pre[k - 1]): break
            elif all(not g.pre[k - 1 - n] and not isdma(g.mem[k - 1 - n]) for n in range(len(scalars))): break
        k += 1
    if stack:
        for sc in scalars: g.put_pre(k - 1, sc)
    else:
        for n, sc in enumerate(scalars): g.put_pre(k - len(scalars) + n, sc)
    g.put_mem(k, d)
    return k

def put_scalar(g, gap, *ins):
    k = gap
    while g.pre[k]: k += 1
    g.pre[k] = list(ins)
    return k

def place_chain(g, ops, lo, hi):
    left = []
    for ins in ops:
        k = g.place_vec(ins, lo, hi) if (not left and lo < hi) else None
        if k is None: left.append(ins)
        else: lo = k + 1 if ins.kind == "trans" else k
    return lo, left

class Op:
    def __init__(self, ins, rel, dl, preds=()):
        self.ins = ins; self.rel = rel; self.dl = dl; self.preds = list(preds); self.gap = None

def list_schedule(g, ops, lo=0, hi=None):
    hi = g.n if hi is None else hi
    todo = list(ops)
    for k in range(lo, hi):
        while True:
            free = g.free_vec(k)
            if free <= 0: break
            ready = [x for x in todo if x.rel <= k and all(p.gap is not None and p.gap + d <= k for p, d in x.preds)]
            tr = [x for x in ready if x.ins.kind == "trans"]
            pl = [x for x in ready if x.ins.kind != "trans"]
            pick = None
            can_tr = free == 2 and g.mem[k] is None and not g.vec[k]
            if can_tr and tr: pick = min(tr, key=lambda x: x.dl)
            if pl:
                best = min(pl, key=lambda x: x.dl)
                if pick is None or (best.dl + 6 < pick.dl): pick = best
            if pick is None: break
            g.vec[k].append(pick.ins); pick.gap = k; todo.remove(pick)
    late = [x for x in ops if x.gap is not None and x.gap > x.dl]
    assert not late, [(x.ins.text, x.gap, x.dl) for x in late]
    return todo

def sm_ops(tile, kb, qb, rel, dl):
    i = sm_group(tile, kb, qb)
    f = [Op(i[0], rel, dl - 6), Op(i[1], rel, dl - 6), Op(i[4], rel, dl - 5), Op(i[5], rel, dl - 5)]
    x = [Op(i[2], rel, dl - 4, [(f[0], 1)]), Op(i[3], rel, dl - 4, [(f[1], 1)]), Op(i[6], rel, dl - 3, [(f[2], 1)]), Op(i[7], rel, dl - 3, [(f[3], 1)])]
    ad = [Op(i[8], rel, dl, [(x[0], 1)]), Op(i[9], rel, dl, [(x[1], 1)]), Op(i[11], rel, dl, [(x[2], 1)]), Op(i[12], rel, dl, [(x[3], 1)])]
    cv = [Op(i[10], rel, dl, [(x[0], 1), (x[1], 1)]), Op(i[13], rel, dl, [(x[2], 1), (x[3], 1)])]
    return f + x + ad + cv

def exposed(ops):
    o = []
    for n, ins in enumerate(ops):
        o.append(ins)
        if ins.kind == "trans" and n + 1 < len(ops) and ops[n + 1].kind != "trans": o.append(nop(0))
    return o

def conv_ops(acc, d, t):
    return [valu(f"v_accvgpr_read_b32 v{d}, a{acc}", [f"a{acc}"], [f"v{d}"]),
            valu(f"v_accvgpr_read_b32 v{t}, a{acc+1}", [f"a{acc+1}"], [f"v{t}"]),
            valu(f"v_accvgpr_read_b32 v{d+1}, a{acc+2}", [f"a{acc+2}"], [f"v{d+1}"]),
            valu(f"v_accvgpr_read_b32 v{t+1}, a{acc+3}", [f"a{acc+3}"], [f"v{t+1}"]),
            valu(f"v_cvt_pk_bf16_f32 v{d}, v{d}, v{t}", [f"v{d}", f"v{t}"], [f"v{d}"]),
            valu(f"v_cvt_pk_bf16_f32 v{d+1}, v{d+1}, v{t+1}", [f"v{d+1}", f"v{t+1}"], [f"v{d+1}"])]

def xlane_reduce(regs, op, tmp):
    o = []
    for swap in ("v_permlane32_swap_b32", "v_permlane16_swap_b32"):
        for n, r in enumerate(regs): o.append(valu(f"v_mov_b32 v{tmp+n}, v{r}", [f"v{r}"], [f"v{tmp+n}"]))
        o.append(nop(1))
        for n, r in enumerate(regs):
            o.append(valu(f"{swap} v{r}, v{tmp+n}", [f"v{r}", f"v{tmp+n}"], [f"v{r}", f"v{tmp+n}"]))
        o.append(nop(1))
        for n, r in enumerate(regs):
            o.append(valu(f"{op} v{r}, v{r}, v{tmp+n}", [f"v{r}", f"v{tmp+n}"], [f"v{r}"]))
    return o

def wpairs(): return [(L_X, L_X + 16384), (vslot(1), kslot(3)), (vslot(2), vslot(3))]
def wslot(tile):
    p = wpairs(); return p[(tile // 2) % len(p)][tile % 2]
XBUF = [V_S, V_P]
def xfrag(qb, cs): return XBUF[(cs // 2) & 1] + ((cs % 2) * 4 + qb) * 4
V_XD = [128, 129]
V_XR = [130, 131]
S_XB = 34
S_XCUR = 35
def x_setup():
    o = []; a = o.append
    L = f"v{V_LANE}"
    a(salu(f"s_and_b32 s{S_T1}, s{S_W}, 1")); a(salu(f"s_lshl_b32 s{S_T1}, s{S_T1}, 13"))
    a(salu(f"s_cmp_lt_u32 s{S_W}, 2")); a(salu(f"s_cselect_b32 s{S_XB}, 2, 4")); a(salu(f"s_lshl_b32 s{S_XB}, s{S_XB}, 14"))
    a(salu(f"s_add_u32 s{S_XB}, s{S_XB}, s{S_T1}"))
    assert kslot(2) == 2 << 14 and vslot(0) == 4 << 14
    a(valu(f"v_lshrrev_b32 v1, 3, {L}", [L], ["v1"])); a(valu(f"v_and_b32 v2, 7, {L}", [L], ["v2"]))
    a(valu(f"v_lshl_add_u32 v3, s{S_W}, 6, v1", ["v1", f"s{S_W}"], ["v3"]))
    a(valu("v_mul_u32_u24 v3, 896, v3", ["v3"], ["v3"]))
    a(valu("v_lshrrev_b32 v1, 1, v1", ["v1"], ["v1"]))
    for par in range(2):
        r = V_XD[par]
        a(valu(f"v_or_b32 v{r}, {4*par}, v1", ["v1"], [f"v{r}"]))
        a(valu(f"v_xor_b32 v{r}, v{r}, v2", [f"v{r}", "v2"], [f"v{r}"]))
        a(valu(f"v_lshl_add_u32 v{r}, v{r}, 4, v3", [f"v{r}", "v3"], [f"v{r}"]))
        a(valu(f"v_add_u32 v{V_XR[par]}, s{S_XB}, v{V_KA[par]}", [f"v{V_KA[par]}"], [f"v{V_XR[par]}"]))
    return o
def x_items(j):
    out = []
    for i in range(8):
        sreg = S_T2 + (i & 1)
        sc = []
        if i == 0 and j > 0: sc.append(salu(f"s_add_u32 s{S_XCUR}, s{S_XCUR}, s{S_XSTEP}", [f"s{S_XCUR}"], [f"s{S_XCUR}"]))
        sc.append(salu(f"s_add_u32 s{sreg}, s{S_XCUR}, {i*7168}", [f"s{S_XCUR}"], [f"s{sreg}"]))
        sc.append(salu(f"s_add_u32 m0, s{S_XB}, {i*1024}", [f"s{S_XB}"], ["m0"]))
        out.append((sc, tag(dma(V_XD[i & 1], S_X, f"s{sreg}", 0, OPT.x_flags), f"x{j}")))
    return out
def x_read(qb, cs): return ds_read128("v", xfrag(qb, cs), V_XR[cs & 1], qb * 2048)
def w_read(dbp, cs, jj):
    s, e = dbp >> 1, dbp & 1
    base = wslot(cs); win = base // 65536
    off = base - win * 65536 + (s >> 1) * 4096 + jj * 512 + e * 8
    return ds_read_tr("v", V_POOL + 4 * ((2 * dbp + (cs & 1)) % 8) + 2 * jj, V_WA[win][s & 1], off)

V_PF = 28
def coop_setup():
    o = []; a = o.append
    a(salu(f"s_mul_i32 s{S_T1}, s{S_H}, {112*128}"))
    a(salu(f"s_lshl_b32 s{S_T2}, s{S_W}, 12")); a(salu(f"s_add_u32 s{S_T1}, s{S_T1}, s{S_T2}"))
    a(valu(f"v_and_b32 v{V_PF}, 31, v{V_LANE}", [f"v{V_LANE}"], [f"v{V_PF}"]))
    a(valu(f"v_lshlrev_b32 v{V_PF}, 7, v{V_PF}", [f"v{V_PF}"], [f"v{V_PF}"]))
    a(valu(f"v_add_u32 v{V_PF}, s{S_T1}, v{V_PF}", [f"v{V_PF}"], [f"v{V_PF}"]))
    return o
def coop_x():
    return [tag(bload(V_PF + 1, 1, V_PF, S_X, "0", 0), "pf")]

def phase1():
    o = []; a = o.append
    NP = 3
    a(salu(f"s_lshr_b32 s{S_T1}, s2, 7")); a(salu(f"s_and_b32 s{S_T1}, s{S_T1}, {1 if OPT.rev else 0}"))
    a(salu(f"s_cmp_eq_u32 s{S_T1}, 0"))
    a(salu(f"s_cselect_b32 s{S_WCUR}, 0, {6*524288}")); a(salu(f"s_cselect_b32 s{S_T2}, 1, -1"))
    a(salu(f"s_cselect_b32 s{S_XCUR}, 0, 768"))
    a(salu(f"s_mul_i32 s{S_WSTEP}, s{S_T2}, 524288")); a(salu(f"s_mul_i32 s{S_XSTEP}, s{S_T2}, 128"))
    o += x_setup()
    if OPT.coopx: o += coop_setup() + coop_x()
    def w_items(j):
        out = []
        for par in range(2):
            sreg = S_WCUR if par == 0 else S_WOFF
            for m, (m0, d) in enumerate(dma_tile("W", wslot(2 * j + par), f"s{sreg}", f"W{j}")):
                sc = [m0]
                if m == 0 and par == 0 and j > 0: sc = [salu(f"s_add_u32 s{S_WCUR}, s{S_WCUR}, s{S_WSTEP}", [f"s{S_WCUR}"], [f"s{S_WCUR}"]), m0]
                if m == 0 and par == 1: sc = [salu(f"s_add_u32 s{S_WOFF}, s{S_WCUR}, 262144", [f"s{S_WCUR}"], [f"s{S_WOFF}"]), m0]
                out.append((sc, d))
        return out
    def kv_items(kind, t):
        out = []
        for m, (m0, d) in enumerate(dma_tile(kind, kslot(t) if kind == "K" else vslot(t), f"s{S_T0}", f"{kind}{t}")):
            out.append(([salu(f"s_mov_b32 s{S_T0}, {t*16384}", [], [f"s{S_T0}"]), m0] if m == 0 else [m0], d))
        return out
    def now(items):
        for sc, d in items:
            o.extend(sc); a(nop(0)); a(d)
    w0 = w_items(0)
    for sc, d in w0[4:]: d.meta["tag"] = "W0b"
    now(x_items(0)); now(w0[:4]); now(w0[4:])
    a(wait_tag("x0"))
    xr = [x_read(qb, cs) for cs in (0, 1) for qb in range(4)]
    o += xr
    a(wait_tag("W0")); a(barrier())
    o += stamp("p1_first_data")
    def quad0(n): return V_POOL + 4 * (n % 8)
    def w_read0(n, jj):
        dbp, cs = n % 16, n // 16
        r = w_read(dbp, cs, jj)
        return ds_read_tr("v", quad0(n) + 2 * jj, int(r.rd[0][1:]), int(r.text.split("offset:")[1]))
    carried = [x.wr for x in xr]
    for n in range(3):
        for jj in range(2):
            r = w_read0(n, jj); a(r); carried.append(r.wr)
    early = {j: [] for j in range(7)}; after = {j: [] for j in range(7)}
    early[0] += w_items(1); early[1] += w_items(2)
    for j in range(NP, 7): after[j - NP + 1] += w_items(j)
    K = lambda t: kv_items("K", t)
    V = lambda t: kv_items("V", t)
    kv = {"early": {1: K(0), 2: K(1)}, "mid": {2: K(0), 3: K(1)}, "late": {3: K(0), 4: K(1)}}[OPT.kvpf]
    for j, l in kv.items(): early[j] += l
    after[5] += V(0)
    early[6] += K(2) + V(1) + K(3)
    after[6] += V(2)
    for j in range(7):
        ms = []
        if j == 0:
            for n in range(32):
                for qb in range(4):
                    acc = ((n % 16) * 4 + qb) * 4
                    first = n < 16
                    ms.append(mfma("a", acc, "v", quad0(n), "v", xfrag(qb, n // 16), None if first else "a", None if first else acc))
        else:
            for dbp in range(16):
                for qb in range(4):
                    for e2 in range(2):
                        acc = (dbp * 4 + qb) * 4
                        ms.append(mfma("a", acc, "v", V_POOL + 4 * ((2 * dbp + e2) % 8), "v", xfrag(qb, 2 * j + e2), "a", acc))
        g = Gaps(ms)
        if j == 0:
            for n in range(3, 32):
                for jj in range(2): g.put_mem(4 * n - 12 + 2 * jj, w_read0(n, jj))
        else:
            for dbp in range(3, 16):
                for n, (cs, jj) in enumerate([(2*j, 0), (2*j, 1), (2*j+1, 0), (2*j+1, 1)]):
                    g.put_mem(8 * dbp - 24 + 2 * n, w_read(dbp, cs, jj))
        nxt = []
        if j < 6:
            for dbp in range(3):
                for n, (cs, jj) in enumerate([(2*j+2, 0), (2*j+2, 1), (2*j+3, 0), (2*j+3, 1)]):
                    r = w_read(dbp, cs, jj); g.put_mem(104 + (1 if j == 0 else 0) + 8 * dbp + 2 * n, r); nxt.append(r.wr)
        XG = OPT.x_rd_gap if j > 0 else OPT.x_rd_gap0
        xreads = []
        if j < 6:
            for n, (cs, qb) in enumerate([(cs, qb) for cs in (2*j+2, 2*j+3) for qb in range(4)]):
                r = x_read(qb, cs); g.put_mem(XG + 2 * n, r); xreads.append(r)
        if j == 0:
            cons = [(4 * n, R("v", quad0(n), 4) + (R("v", V_S, 32) if n == 0 else [])) for n in range(32)]
        else:
            cons = [(8 * dbp, R("v", V_POOL + 4 * ((2 * dbp) % 8), 8)) for dbp in range(16)]
        if j < 6: cons.append((XG + 24, [w for r in xreads for w in r.wr]))
        cons.sort()
        lead = add_lgkm_waits(g, cons, carried)
        if j < 6:
            k = XG - 2
            while g.pre[k]: k -= 1
            g.pre[k] = [wait_tag(f"x{j+1}")]
        tags = [f"W{j+1}"] if j < 6 else ["K0"]
        k = 100
        while g.pre[k]: k -= 1
        g.pre[k] = [wait_tag(*tags), barrier()] if not OPT.p1_nowait else [barrier()]
        kb = k
        gp = 1
        if j == 0:
            for sc, d in x_items(1): gp = place_vmem(g, gp, sc, d, XG - 3, stack=True) + 2
            k = 48
            while g.pre[k]: k -= 1
            g.pre[k] = [wait_tag("W0b"), barrier()]
            assert k < 52
        for sc, d in early[j]: gp = place_vmem(g, gp + len(sc) - 1, sc, d, kb) + (OPT.early_step if j != 6 else 7)
        if j < 5:
            gx = max(XG + 25, gp)
            for sc, d in x_items(j + 2): gx = place_vmem(g, gx, sc, d, stack=True) + 2
            gpa = max(kb + 2, gx)
        else: gpa = kb + 2
        for sc, d in after[j]: gpa = place_vmem(g, gpa, sc, d, stack=True) + 1
        left = []
        if j == 6:
            for dbp in range(16):
                for qb in range(4):
                    ops = conv_ops((dbp * 4 + qb) * 4, V_Q + (qb * 8 + (dbp >> 1)) * 4 + 2 * (dbp & 1), V_CT + 2 * (qb & 1))
                    if left: left += ops
                    else:
                        _, l2 = place_chain(g, ops, 8 * dbp + 2 * qb + 1 + 5, 128); left += l2
        if lead is not None: a(lead)
        em = g.emit()
        if OPT.p1_drop:
            def keep(x):
                if x.kind in ("dma", "vld"):
                    t = x.meta.get("tag", "")
                    for c in OPT.p1_drop:
                        if t.startswith(c): return False
                return True
            em = [x for x in em if keep(x)]
        if OPT.p1_noread: em = [x for x in em if x.kind != "ds" and not (x.kind == "wait" and "lgkm" in x.meta)]
        o += em
        carried = nxt
        if OPT.p1_steps: o += stamp(f"step{j}")
        if left: a(nop(7)); o += left
    if not OPT.p1_steps: o += stamp("p1_end")
    return o

def k_read(t, kb, s):
    return ds_read128("v", V_POOL + 4 * s, V_KA[s & 1], (kslot(t) - L_K) + (s >> 1) * 4096 + kb * 2048)
def v_read(t, db, jj):
    return ds_read_tr("v", V_POOL + 4 * (db % 8) + 2 * jj, V_VA[db & 3], (vslot(t) - L_V) + (db >> 2) * 4096 + jj * 2048)
def Sreg(kb, qb): return V_S + (kb * 4 + qb) * 4
def Preg(buf, qb): return V_P + buf * 16 + qb * 4
def qk_mfmas():
    ms = []
    for i in range(64):
        kb, sp, qb, e = i >> 5, (i >> 3) & 3, (i >> 1) & 3, i & 1
        s = 2 * sp + e; d = Sreg(kb, qb)
        ms.append(mfma("v", d, "v", V_POOL + 4 * s, "v", V_Q + (qb * 8 + s) * 4, None if s == 0 else "v", None if s == 0 else d))
    return ms
def pv_mfmas(t, first):
    ms = []
    for i in range(64):
        db, qb = i >> 2, i & 3
        acc = (db * 4 + qb) * 4
        ms.append(mfma("a", acc, "v", V_POOL + 4 * (db % 8), "v", Preg(t & 1, qb), None if first else "a", None if first else acc))
    return ms
def sm_group(tile, kb, qb):
    s = Sreg(kb, qb); p = Preg(tile & 1, qb) + 2 * kb; mc = V_MC + qb; l = V_L + qb
    f = lambda r: valu(f"v_fma_f32 v{s+r}, v{s+r}, s{S_C}, v{mc}", [f"v{s+r}", f"v{mc}", f"s{S_C}"], [f"v{s+r}"])
    x = lambda r: trans(f"v_exp_f32 v{s+r}, v{s+r}", [f"v{s+r}"], [f"v{s+r}"])
    ad = lambda r: valu(f"v_add_f32 v{l}, v{l}, v{s+r}", [f"v{l}", f"v{s+r}"], [f"v{l}"])
    cv = lambda r: valu(f"v_cvt_pk_bf16_f32 v{p+r//2}, v{s+r}, v{s+r+1}", [f"v{s+r}", f"v{s+r+1}"], [f"v{p+r//2}"])
    return [f(0), f(1), x(0), x(1), f(2), f(3), x(2), x(3), ad(0), ad(1), cv(0), ad(2), ad(3), cv(2)]

def pre_iter():
    o = []; a = o.append
    carried = []
    for s in range(8):
        r = k_read(0, 0, s); a(r); carried.append(r.wr)
    g = Gaps(qk_mfmas())
    for s in range(8): g.put_mem(8 * (s >> 1) + 10 + 4 * (s & 1), k_read(0, 1, s))
    cons = [(8 * p, R("v", V_POOL + 8 * (p % 4), 8)) for p in range(8)]
    a(add_lgkm_waits(g, cons, carried)); o += g.emit()
    a(wait_tag("K1", "V0")); a(barrier())
    a(salu(f"s_mov_b32 s{S_KOFF}, {4*16384}"))
    for m0, d in dma_tile("K", kslot(4), f"s{S_KOFF}", "K4"): a(m0); a(nop(0)); a(d)
    a(salu(f"s_mov_b32 s{S_KOFF}, {5*16384}")); a(salu(f"s_mov_b32 s{S_VOFF}, {3*16384}"))
    carried = []
    for s in range(8):
        r = k_read(1, 0, s); a(r); carried.append(r.wr)
    for qb in range(4):
        m = V_MC + qb; s0 = Sreg(0, qb); s1 = Sreg(1, qb)
        a(valu(f"v_max3_f32 v{m}, v{s0}, v{s0+1}, v{s0+2}", R("v", s0, 3), [f"v{m}"]))
        a(valu(f"v_max3_f32 v{m}, v{m}, v{s0+3}, v{s1}", [f"v{m}", f"v{s0+3}", f"v{s1}"], [f"v{m}"]))
        a(valu(f"v_max3_f32 v{m}, v{m}, v{s1+1}, v{s1+2}", [f"v{m}", f"v{s1+1}", f"v{s1+2}"], [f"v{m}"]))
        a(valu(f"v_max_f32 v{m}, v{m}, v{s1+3}", [f"v{m}", f"v{s1+3}"], [f"v{m}"]))
    o += xlane_reduce([V_MC + q for q in range(4)], "v_max_f32", V_SP)
    for qb in range(4):
        m = V_MC + qb
        a(valu(f"v_mul_f32 v{m}, s{S_C}, v{m}", [f"v{m}", f"s{S_C}"], [f"v{m}"]))
        a(valu(f"v_sub_f32 v{m}, 0, v{m}", [f"v{m}"], [f"v{m}"]))
        a(valu(f"v_mov_b32 v{V_L+qb}, 0", [], [f"v{V_L+qb}"]))
    for kb, qb in [(0, 0), (0, 1), (0, 2), (0, 3), (1, 0), (1, 1)]: o += exposed(sm_group(0, kb, qb))
    o += stamp("pre_iter_end")
    return o, carried

def attn_iter(t, carried, vmw, prev, cur, first=False, adv=True, loopctl=False, extra=None):
    g = Gaps(qk_mfmas() + pv_mfmas(t, first))
    for s in range(8): g.put_mem(8 * (s >> 1) + 10 + 4 * (s & 1), k_read(t + 1, 1, s))
    for db in range(16):
        for jj in range(2): g.put_mem(44 + 4 * db + 2 * jj, v_read(t, db, jj))
    nxt = []
    if t + 2 <= 31:
        for s, gap in zip(range(8), [108, 110, 112, 114, 116, 120, 124, 127]):
            r = k_read(t + 2, 0, s); g.put_mem(gap, r); nxt.append(r.wr)
    else:
        for db in range(5):
            for jj in range(2):
                r = v_read(t + 1, db, jj); g.put_mem(108 + 4 * db + 2 * jj, r); nxt.append(r.wr)
    cons = [(8 * p, R("v", V_POOL + 8 * (p % 4), 8)) for p in range(8)]
    cons += [(64 + 4 * db, R("v", V_POOL + 4 * (db % 8), 4)) for db in range(16)]
    lead = add_lgkm_waits(g, cons, carried)
    kb = 98
    while g.pre[kb]: kb -= 1
    g.pre[kb] = [vmw, barrier()]
    placed = [place_vmem(g, gap, [m0], d, kb) for gap, (m0, d) in zip([5, 21, 37, 53, 69, 85], prev)]
    for gap, (m0, d) in zip([101, 117], cur): place_vmem(g, gap, [m0], d)
    if adv:
        for reg, srd, at in ((S_VOFF, S_V, placed[1] + 1), (S_KOFF, S_K, placed[5] + 1)):
            k = put_scalar(g, at, salu(f"s_add_u32 s{reg}, s{reg}, 16384", [f"s{reg}"], [f"s{reg}"]))
            k = put_scalar(g, k + 1, salu(f"s_cmp_lt_u32 s{reg}, 524288", [f"s{reg}"], ["scc"]),
                           salu(f"s_cselect_b32 s{srd+2}, 524288, 0", ["scc"], [f"s{srd+2}"]))
            assert k < 100
    if loopctl:
        k = put_scalar(g, 119, salu(f"s_sub_u32 s{S_LOOP}, s{S_LOOP}, 1", [f"s{S_LOOP}"], [f"s{S_LOOP}"]))
        k = put_scalar(g, k + 1, salu(f"s_cmp_lg_u32 s{S_LOOP}, 0", [f"s{S_LOOP}"], ["scc"]))
        assert k <= 127
        for kk in range(k + 1, 128):
            assert all(x.kind == "wait" for x in g.pre[kk]), "SCC clobbered before the loop branch"
    if extra: extra(g, kb)
    ops = []
    for qb in (2, 3): ops += sm_ops(t, 1, qb, 0, 31 + 2 * qb)
    for qb in range(4): ops += sm_ops(t + 1, 0, qb, 25 + 2 * qb + 6, 100 + 6 * qb)
    for qb in (0, 1): ops += sm_ops(t + 1, 1, qb, 57 + 2 * qb + 6, 124 + 3 * qb)
    left = list_schedule(g, ops)
    assert not left, f"softmax groups do not fit: {len(left)} left"
    return [lead] + g.emit(), nxt

def last_iter(carried):
    o = []; a = o.append
    for qb in (2, 3): o += exposed(sm_group(31, 1, qb))
    o += xlane_reduce([V_L + q for q in range(4)], "v_add_f32", V_SP)
    for qb in range(4): a(trans(f"v_rcp_f32 v{V_L+qb}, v{V_L+qb}", [f"v{V_L+qb}"], [f"v{V_L+qb}"]))
    a(nop(0))
    g = Gaps(pv_mfmas(31, False))
    for db in range(5, 8):
        for jj in range(2): g.put_mem(4 * (db - 5) + 2 * jj, v_read(31, db, jj))
    for db in range(8, 16):
        for jj in range(2): g.put_mem(12 + 4 * (db - 8) + 2 * jj, v_read(31, db, jj))
    cons = [(4 * db, R("v", V_POOL + 4 * (db % 8), 4)) for db in range(16)]
    lead = add_lgkm_waits(g, cons, carried)
    gp = put_wo(g, 2, 2, step=0)
    put_wo(g, 3, gp, step=0)
    left = []
    for db in range(16):
        for qb in range(4):
            ops = conv_ops((db * 4 + qb) * 4, V_Q + (qb * 8 + (db >> 1)) * 4 + 2 * (db & 1), V_SP + 8 + 2 * (qb & 1))
            if left: left += ops
            else:
                _, l2 = place_chain(g, ops, 4 * db + qb + 5, 64); left += l2
    a(lead); o += g.emit()
    a(nop(7)); o += left
    return o

WOBUF = [L_X, L_K, L_K + 32768, L_V, L_V + 32768, L_X, L_K]
V_DWO = 3; V_STO = V_DV
V_FR3 = 32; V_ACC3 = V_P; V_STG = 16
def wo_dma(j):
    out = []
    for i in range(8):
        sreg = S_T0 + (i & 1)
        out.append(([salu(f"s_mov_b32 s{sreg}, {j*128 + i*32*896}", [], [f"s{sreg}"]),
                     salu(f"s_add_u32 m0, s{S_W1K}, {WOBUF[j] + i*4096}", [f"s{S_W1K}"], ["m0"])],
                    tag(dma(V_DWO, S_WO, f"s{sreg}", 0, OPT.wo_flags), f"wo{j}")))
    return out
def wo_setup():
    o = []; a = o.append
    L = f"v{V_LANE}"
    a(valu(f"v_lshrrev_b32 v1, 3, {L}", [L], ["v1"])); a(valu(f"v_and_b32 v2, 7, {L}", [L], ["v2"]))
    a(valu(f"v_lshl_add_u32 v3, s{S_W}, 3, v1", ["v1", f"s{S_W}"], ["v3"]))
    a(valu("v_bfe_u32 v1, v1, 1, 2", ["v1"], ["v1"])); a(valu("v_lshlrev_b32 v1, 1, v1", ["v1"], ["v1"]))
    a(valu("v_xor_b32 v1, v1, v2", ["v1", "v2"], ["v1"])); a(valu("v_lshlrev_b32 v1, 4, v1", ["v1"], ["v1"]))
    a(valu("v_mul_u32_u24 v3, 896, v3", ["v3"], ["v3"]))
    a(valu(f"v_add_u32 v{V_DWO}, v3, v1", ["v3", "v1"], [f"v{V_DWO}"]))
    return o
def put_wo(g, j, start, hi=None, step=3):
    gp = start
    for sc, d in wo_dma(j): gp = place_vmem(g, gp, sc, d, hi) + step
    return gp
def wo_read(nb, s, jj):
    return ds_read_tr("v", V_FR3 + 4 * (8 * (nb & 1) + s) + 2 * jj, V_VA[nb], s * 4096 + jj * 2048)
def va_shift(delta):
    t = (lambda r: f"v_add_u32 v{r}, {delta}, v{r}") if delta >= 0 else (lambda r: f"v_subrev_u32 v{r}, {-delta}, v{r}")
    return [valu(t(r), [f"v{r}"], [f"v{r}"]) for r in V_VA]

def part_ops(nb, qb):
    acc = V_ACC3 + 4 * ((nb * 4 + qb) % 8)
    st = V_STG + 4 * qb + 2 * (nb & 1)
    li = V_L + qb
    ops = [valu(f"v_mul_f32 v{acc+r}, v{acc+r}, v{li}", [f"v{acc+r}", f"v{li}"], [f"v{acc+r}"]) for r in range(4)]
    ops += [valu(f"v_cvt_pk_bf16_f32 v{st}, v{acc}, v{acc+1}", [f"v{acc}", f"v{acc+1}"], [f"v{st}"]),
            valu(f"v_cvt_pk_bf16_f32 v{st+1}, v{acc+2}, v{acc+3}", [f"v{acc+2}", f"v{acc+3}"], [f"v{st+1}"])]
    return ops

def phase3():
    o = []; a = o.append
    o += stamp("p3_start")
    a(salu(f"s_mul_i32 s{S_PART}, s{S_G}, {7*16*16*2048}"))
    a(salu(f"s_lshl_b32 s{S_T2}, s{S_W}, 17")); a(salu(f"s_add_u32 s{S_PART}, s{S_PART}, s{S_T2}"))
    a(salu(f"s_lshl_b32 s{S_T2}, s{S_H}, 11")); a(salu(f"s_add_u32 s{S_PART}, s{S_PART}, s{S_T2}"))
    a(valu(f"v_lshlrev_b32 v{V_STO}, 4, v{V_LANE}", [f"v{V_LANE}"], [f"v{V_STO}"]))
    o += va_shift(WOBUF[0] - L_V)
    a(wait_tag("wo0")); a(barrier())
    carried = []
    for s in range(8):
        for jj in range(2):
            r = wo_read(0, s, jj); a(r); carried.append(r.wr)
            if len(carried) == 14: a(wait_lgkm(6)); carried = carried[-6:]
    for sc, d in wo_dma(4): o += sc + [nop(0), d]
    for j in range(7):
        ms = []
        for nb in range(4):
            for qb in range(4):
                acc = V_ACC3 + 4 * ((nb * 4 + qb) % 8)
                for s in range(8):
                    ms.append(mfma("v", acc, "v", V_FR3 + 4 * (8 * (nb & 1) + s), "v", V_Q + (qb * 8 + s) * 4,
                                   None if s == 0 else "v", None if s == 0 else acc))
        g = Gaps(ms)
        nxt = []
        for nb in range(3):
            for s in range(8):
                for jj in range(2): g.put_mem(32 * nb + 4 * s + 2 * jj, wo_read(nb + 1, s, jj))
        if j < 6:
            for s in range(8):
                for jj in range(2):
                    r = wo_read(0, s, jj); g.put_mem(96 + 4 * s + 2 * jj, r); nxt.append(r.wr)
        cons = [(32 * nb + s, R("v", V_FR3 + 4 * (8 * (nb & 1) + s), 4)) for nb in range(4) for s in (0, 2, 4, 6)]
        cons = [(k, R("v", V_FR3 + 4 * (8 * ((k >> 5) & 1) + (k & 7)), 8)) for k, _ in cons]
        lead = add_lgkm_waits(g, cons, carried)
        if j < 6:
            k = 93
            while g.pre[k]: k -= 1
            g.pre[k] = [wait_tag(f"wo{j+1}"), barrier()]
            sh = va_shift(WOBUF[j + 1] - WOBUF[j])
            assert g.place_vec(sh[0], 91, 96) is not None
            assert g.place_vec(sh[1], 40, 96) is not None
            assert g.place_vec(sh[2], 66, 96) is not None
            assert g.place_vec(sh[3], 97, 128) is not None
        if j in (2, 3): put_wo(g, j + 3, 3, step=6)
        tail = []
        for nb in range(4):
            for qb in range(4):
                lo, left = place_chain(g, part_ops(nb, qb), 32 * nb + 8 * qb + 7 + 8, 128)
                st = None
                if nb & 1:
                    so = j * 16 * 16 * 2048 + qb * 16 * 2048 + (nb >> 1) * 1024
                    sreg = S_T2 + (qb & 1)
                    st = (salu(f"s_add_u32 s{sreg}, s{S_PART}, {so}", [f"s{S_PART}"], [f"s{sreg}"]),
                          tag(bstore(V_STG + 4 * qb, 4, V_STO, S_WS, f"s{sreg}", 0, OPT.st_flags), f"st{j}"))
                if left or tail:
                    tail += left
                    if st: tail += [st[0], nop(1), st[1]]
                elif st:
                    k = lo + 2
                    while k < 128 and (g.mem[k] is not None or g.vec[k] or g.pre[k - 1] or len(g.pre[k]) > 1): k += 1
                    if k >= 128: tail += [st[0], nop(1), st[1]]
                    else: g.put_pre(k - 1, st[0]); g.put_mem(k, st[1])
        if lead is not None: a(lead)
        o += g.emit()
        if tail: a(nop(7)); o += exposed(tail)
        carried = nxt
    o += stamp("p3_end") + [wait_vm(0)] * (1 if OPT.stamps else 0) + stamp("rt_end")
    return o

def dump_regs(base, n, agpr=False):
    o = [wait_vm(0), raw("s_waitcnt lgkmcnt(0)", "wait", lgkm=0), nop(7), nop(7),
         salu(f"s_lshl_b32 s{S_T0}, s2, 2"), salu(f"s_add_u32 s{S_T0}, s{S_T0}, s{S_W}"),
         salu(f"s_mul_i32 s{S_T0}, s{S_T0}, {n*256}"), valu(f"v_lshlrev_b32 v1, 2, v{V_LANE}", [f"v{V_LANE}"], ["v1"])]
    for r in range(n):
        if agpr:
            o.append(valu(f"v_accvgpr_read_b32 v2, a{base+r}", [f"a{base+r}"], ["v2"])); o.append(bstore(2, 1, 1, S_WS, f"s{S_T0}", 0))
        else:
            o.append(bstore(base + r, 1, 1, S_WS, f"s{S_T0}", 0))
        o.append(salu(f"s_add_u32 s{S_T0}, s{S_T0}, 256"))
        if r % 32 == 31 or agpr: o.append(wait_vm(0))
    return o

def stamp_out():
    if not OPT.stamps: return []
    n = len(STAMPS)
    o = [raw("s_waitcnt lgkmcnt(0)", "wait", lgkm=0), salu(f"s_cmp_lg_u32 s{S_W}, 0"), raw("s_cbranch_scc1 L_nostamp", "branch")]
    if OPT.stamp_dbg >= 0:
        o += [salu(f"s_cmp_lg_u32 s2, {OPT.stamp_dbg}"), raw("s_cbranch_scc1 L_nostamp", "branch")]
        o += [salu("s_load_dwordx2 s[36:37], s[0:1], 88"), raw("s_waitcnt lgkmcnt(0)", "wait", lgkm=0)]
        o += [salu(f"s_mov_b32 s{S_WS}, s36"), salu(f"s_mov_b32 s{S_WS+1}, s37"), salu(f"s_mov_b32 s{S_WS+2}, 256"), salu(f"s_mov_b32 s{S_T0}, 0")]
    else:
        o.append(salu(f"s_mul_i32 s{S_T0}, s2, 64")); o.append(salu(f"s_add_u32 s{S_T0}, s{S_T0}, {16*7*16*16*2048}"))
        o.append(salu(f"s_mov_b32 s{S_WS+2}, {16*7*16*16*2048 + 256*64}"))
    o.append(valu("v_mov_b32 v1, 0", [], ["v1"]))
    for k in range(n):
        if OPT.stamp_dbg >= 0:
            ref = 0 if STAMPS[k].startswith("rt") else 1
            o.append(salu(f"s_sub_u32 s{S_T1}, s{S_STAMP+2*k}, s{S_STAMP+2*ref}"))
            o.append(valu(f"v_mov_b32 v2, s{S_T1}", [], ["v2"]))
        else:
            o.append(valu(f"v_mov_b32 v2, s{S_STAMP+2*k}", [], ["v2"]))
        o.append(bstore(2, 1, 1, S_WS, f"s{S_T0}", 4 * k)); o.append(wait_vm(0))
    o.append(label("L_nostamp"))
    return o

def finish(): return [wait_vm(0), label("L_end"), raw("s_endpgm", "branch")]

def build(debug=None):
    _stamp_n[0] = 0; STAMPS.clear()
    pre = setup() + phase1()
    if debug == "p1":
        pre += stamp("rt_end")
        resolve_vm(pre, [])
        return pre + stamp_out() + finish()
    if debug == "q":
        resolve_vm(pre, []); check(pre, "pre")
        return pre + dump_regs(V_Q, 128) + finish()
    p, carried = pre_iter(); pre += p
    def batch(t):
        return dma_tile("V", vslot(t + 3), f"s{S_VOFF}", f"V{t+3}") + dma_tile("K", kslot(t + 5), f"s{S_KOFF}", f"K{t+5}")
    pre += wo_setup()
    s0, carried = attn_iter(0, carried, wait_tag("V1", "K2"), [], batch(0)[:2], first=True, adv=False,
                            extra=lambda g, kb: put_wo(g, 0, 3, kb, step=8))
    pre += s0
    pre.append(salu(f"s_mov_b32 s{S_LOOP}, 7"))
    pre += stamp("loop_start")
    loop = [label("L_attn")]
    for u in range(4):
        t = 1 + u
        s, carried = attn_iter(t, carried, wait_vm(12), batch(t - 1)[2:], batch(t)[:2], loopctl=(u == 3))
        loop += s
    loop.append(raw("s_cbranch_scc1 L_attn", "branch"))
    post = stamp("loop_end")
    s, carried = attn_iter(29, carried, wait_tag("V30", "K32"), batch(28)[2:4], [], adv=False)
    post += s
    def ex30(g, kb):
        put_wo(g, 1, 3, kb, step=8)
    s, carried = attn_iter(30, carried, wait_tag("V31"), [], [], adv=False, extra=ex30)
    post += s
    post += last_iter(carried)
    post += stamp("attn_end")
    if debug == "o":
        tailq = dump_regs(V_Q, 128)
    elif debug == "l":
        tailq = dump_regs(V_L, 4)
    else:
        tailq = phase3()
    post += tailq
    q = resolve_vm(pre, [])
    qexit = ["V30"] * 4 + ["K32"] * 4 + ["V31"] * 2
    resolve_vm(post, qexit)
    if not (OPT.p1_nowait or OPT.p1_noread or OPT.p1_drop): check(pre + loop[1:] + loop[1:], "pre+loop")
    check(loop[1:] + post, "loop+post", init_lgkm=[x.wr for x in pre if x.kind == "ds"][-8:], init_vm=[[]] * 10)
    return pre + loop + post + stamp_out() + finish()

def reduce_kernel():
    o = []; a = o.append
    a(salu("s_cmp_ge_u32 s2, 256")); a(raw("s_cbranch_scc1 R_end", "branch"))
    a(salu("s_load_dwordx2 s[4:5], s[0:1], 80")); a(salu("s_load_dwordx2 s[6:7], s[0:1], 96"))
    a(valu("v_lshrrev_b32 v1, 6, v0", ["v0"], ["v1"])); a(valu("v_and_b32 v0, 63, v0", ["v0"], ["v0"]))
    a(valu("v_readfirstlane_b32 s32, v1", ["v1"], ["s32"]))
    a(salu("s_lshr_b32 s33, s2, 4")); a(salu("s_and_b32 s34, s2, 15"))
    a(salu("s_lshr_b32 s35, s33, 3")); a(salu("s_and_b32 s36, s33, 7"))
    a(salu("s_lshr_b32 s37, s32, 1")); a(salu("s_and_b32 s38, s32, 1"))
    a(valu("v_lshrrev_b32 v2, 5, v0", ["v0"], ["v2"])); a(valu("v_lshlrev_b32 v2, 11, v2", ["v2"], ["v2"]))
    a(valu("v_and_b32 v3, 31, v0", ["v0"], ["v3"])); a(valu("v_lshl_add_u32 v2, v3, 4, v2", ["v3", "v2"], ["v2"]))
    a(salu("s_lshl_b32 s39, s37, 10")); a(salu("s_lshl_b32 s40, s38, 9")); a(salu("s_add_u32 s39, s39, s40"))
    a(valu("v_add_u32 v2, s39, v2", ["v2"], ["v2"]))
    a(valu("v_and_b32 v8, 15, v0", ["v0"], ["v8"])); a(valu("v_lshrrev_b32 v9, 4, v0", ["v0"], ["v9"]))
    a(valu("v_lshrrev_b32 v10, 3, v8", ["v8"], ["v10"])); a(valu("v_and_b32 v11, 1, v9", ["v9"], ["v11"]))
    a(valu("v_and_b32 v12, 1, v8", ["v8"], ["v12"])); a(valu("v_lshlrev_b32 v12, 4, v12", ["v12"], ["v12"]))
    a(valu("v_mov_b32 v13, 0x3f80", [], ["v13"])); a(valu("v_lshlrev_b32 v13, v12, v13", ["v12", "v13"], ["v13"]))
    a(valu("v_cmp_eq_u32 vcc, v10, v11", ["v10", "v11"], ["vcc"])); a(nop(1))
    a(valu("v_cndmask_b32 v13, 0, v13, vcc", ["v13", "vcc"], ["v13"]))
    a(valu("v_bfe_u32 v14, v8, 1, 2", ["v8"], ["v14"]))
    for r in range(4):
        a(valu(f"v_cmp_eq_u32 vcc, {r}, v14", ["v14"], ["vcc"])); a(nop(1))
        a(valu(f"v_cndmask_b32 v{4+r}, 0, v13, vcc", ["v13", "vcc"], [f"v{4+r}"]))
    a(salu("s_lshl_b32 s41, s36, 8")); a(salu("s_lshl_b32 s42, s34, 4")); a(salu("s_add_u32 s41, s41, s42"))
    a(valu("v_add_u32 v3, s41, v8", ["v8"], ["v3"])); a(valu("v_mul_u32_u24 v3, 896, v3", ["v3"], ["v3"]))
    a(salu("s_mul_i32 s42, s35, 448")); a(salu("s_lshl_b32 s43, s37, 5")); a(salu("s_add_u32 s42, s42, s43"))
    a(salu("s_lshl_b32 s43, s38, 3")); a(salu("s_add_u32 s42, s42, s43"))
    a(valu("v_add_u32 v3, s42, v3", ["v3"], ["v3"]))
    a(valu("v_lshl_add_u32 v3, v11, 4, v3", ["v11", "v3"], ["v3"]))
    a(valu("v_lshrrev_b32 v10, 1, v9", ["v9"], ["v10"])); a(valu("v_lshl_add_u32 v3, v10, 2, v3", ["v10", "v3"], ["v3"]))
    a(valu("v_lshlrev_b32 v3, 1, v3", ["v3"], ["v3"]))
    a(raw("s_waitcnt lgkmcnt(0)", "wait", lgkm=0))
    for base, lo, size in ((8, 6, 16 * 7 * 16 * 16 * 2048), (12, 4, 8 * 256 * 896 * 2)):
        a(salu(f"s_mov_b32 s{base}, s{lo}")); a(salu(f"s_mov_b32 s{base+1}, s{lo+1}"))
        a(salu(f"s_mov_b32 s{base+2}, {size}")); a(salu(f"s_mov_b32 s{base+3}, 0x20000"))
    a(salu(f"s_mul_i32 s44, s33, {7*16*32768}")); a(salu("s_lshl_b32 s45, s34, 15")); a(salu("s_add_u32 s44, s44, s45"))
    for j in range(7):
        for i in range(8):
            a(salu(f"s_add_u32 s46, s44, {j*16*32768 + i*4096}"))
            a(tag(bload(16 + (j * 8 + i) * 4, 4, 2, 8, "s46", 0), f"p{j}"))
    for j in range(7):
        a(wait_tag(f"p{j}"))
        d = 240 + 4 * (j & 1)
        for i in range(8):
            a(mfma("v", d, "v", 4, "v", 16 + (j * 8 + i) * 4, None if i == 0 else "v", None if i == 0 else d))
        a(nop(7))
        a(valu(f"v_cvt_pk_bf16_f32 v{d}, v{d}, v{d+1}", [f"v{d}", f"v{d+1}"], [f"v{d}"]))
        a(valu(f"v_cvt_pk_bf16_f32 v{d+1}, v{d+2}, v{d+3}", [f"v{d+2}", f"v{d+3}"], [f"v{d+1}"]))
        a(tag(bstore(d, 2, 3, 12, "0", j * 128), "o"))
    resolve_vm(o, []); check(o, "reduce")
    o += [wait_vm(0), label("R_end"), raw("s_endpgm", "branch")]
    return o

KD = """.section .rodata,"a"
.p2align 6
.amdhsa_kernel {name}
  .amdhsa_next_free_vgpr {vgpr}
  .amdhsa_next_free_sgpr 102
  .amdhsa_accum_offset 256
  .amdhsa_group_segment_fixed_size 0
  .amdhsa_kernarg_size 104
  .amdhsa_user_sgpr_count 2
  .amdhsa_user_sgpr_kernarg_segment_ptr 1
  .amdhsa_system_sgpr_workgroup_id_x 1
.end_amdhsa_kernel
"""
def header_comments():
    ref = open("cdna_kernels/" + NAME + ".s.ref").read().splitlines()
    out = []
    for l in ref:
        if l.startswith("; Override launch") or not l.startswith(";"): break
        out.append(l)
    return out

def assemble_file(debug=None):
    main = build(debug)
    red = reduce_kernel()
    k1 = NAME + "_kernel"; k2 = "reduce_heads_kernel"
    L = header_comments()
    L.append(f"; @launch kernel={k1} grid=(256,1,1) block=(256,1,1) lds={LDS_BYTES}")
    if debug is None: L.append(f"; @launch kernel={k2} grid=(256,1,1) block=(256,1,1) lds=0")
    L.append('.amdgcn_target "amdgcn-amd-amdhsa--gfx950"')
    L.append(".text")
    for nm, body in ((k1, main), (k2, red)):
        L += [f".globl {nm}", ".p2align 8", f".type {nm},@function", f"{nm}:", text(body)]
    L.append(KD.format(name=k1, vgpr=512)); L.append(KD.format(name=k2, vgpr=256))
    return "\n".join(L) + "\n"

if __name__ == "__main__":
    dbg = sys.argv[2] if len(sys.argv) > 2 and sys.argv[2] != "none" else None
    for kv in sys.argv[3:]:
        k, v = kv.split("=")
        setattr(OPT, k, {"True": True, "False": False}.get(v, int(v) if v.lstrip("-").isdigit() else v))
    open(sys.argv[1], "w").write(assemble_file(dbg))
    print("stamps:", STAMPS)
```

```python
import math, struct, sys
from core import *

NAME = "concat_heads__mha_block_cached__mha_block_cached__near_ridge"
def f32bits(x): return struct.unpack("<I", struct.pack("<f", x))[0]
CSC = math.log2(math.e) / 16.0

S_X, S_WQ, S_K, S_V, S_WO, S_WS, S_OUT = 4, 8, 12, 16, 20, 24, 28
S_W, S_W1K = 32, 33
S_QB = ["0", "s34", "s35", "s62"]
S_C = 63
S_KOFF, S_VOFF = 64, 65
S_LOOP = 66
S_T0, S_T1, S_T2, S_T3 = 67, 68, 69, 70
S_G, S_H, S_B, S_BR = 71, 72, 73, 74
S_WOFF = 76
S_PART = 77
S_WCUR, S_WSTEP, S_XSTEP = 78, 79, 75
S_STAMP = 80
V_LANE = 0
V_KA = [4, 5]
V_VA = [6, 7, 8, 9]
V_DK, V_DV = 10, 11
V_L = 12
V_MC = 16
V_SP = 20
V_POOL = 32
V_S = 64
V_P = 96
V_Q = 128
V_XA = 20; V_DW = 21; V_WA = [[22, 23], [24, 25], [26, 27]]
V_CT = 28
L_K = 0; L_V = 65536; L_X = 131072
def kslot(t): return L_K + 16384 * (t % 4)
def vslot(t): return L_V + 16384 * (t % 4)
LDS_BYTES = 163840

class Opt:
    kv_flags = "nt"
    w_flags = ""
    x_flags = ""
    wo_flags = ""
    st_flags = ""
    stamps = False
    stamp_fwd = -1
    stamp_dbg = -1
    x_rd_gap0 = 65
    x_rd_gap = 33
    p1_steps = False
    p1_drop = ''
    rev = True
    init_w = 2
    early_step = 2
    x_gap = 60
    p1_nowait = False
    p1_noread = False
    wring = 3
    kvpf = 'early'
    coopx = False
    init_more = 0
OPT = Opt()

def wait_tag(*tags): return I("s_waitcnt vmcnt(?)", "wait", vmtags=list(tags))
def tag(ins, t):
    ins.meta["tag"] = t; return ins
def resolve_vm(stream, queue):
    q = list(queue)
    for ins in stream:
        if ins.kind in ("dma", "vld", "vst"):
            q.append(ins.meta.get("tag", "?"))
        elif ins.kind == "wait":
            if "vmtags" in ins.meta:
                idx = [n for n, t in enumerate(q) if t in ins.meta["vmtags"]]
                n = len(q) - 1 - max(idx) if idx else len(q)
                n = min(n, 63)
                ins.text = f"s_waitcnt vmcnt({n})"; ins.meta["vm"] = n
            if "vm" in ins.meta:
                n = ins.meta["vm"]
                if len(q) > n: q = q[len(q) - n:] if n else []
    return q

_stamp_n = [0]
def stamp(name):
    if not OPT.stamps: return []
    n = _stamp_n[0]; _stamp_n[0] += 1
    STAMPS.append(name)
    op = "s_memrealtime" if name.startswith("rt") else "s_memtime"
    return [raw(f"{op} s[{S_STAMP+2*n}:{S_STAMP+2*n+1}]", "salu")]
STAMPS = []

def m0_set(base): return salu(f"s_add_u32 m0, s{S_W1K}, {base}", [f"s{S_W1K}"], ["m0"])

def dma_tile(kind, slot_base, soff, tg):
    voff, srd, fl = {"K": (V_DK, S_K, OPT.kv_flags), "V": (V_DV, S_V, OPT.kv_flags), "W": (V_DW, S_WQ, OPT.w_flags)}[kind]
    return [(m0_set(slot_base + dc * 3968), tag(dma(voff, srd, soff, dc * 128, fl), tg)) for dc in range(4)]

def setup():
    o = []; a = o.append
    a(salu("s_cmp_ge_u32 s2, 256")); a(raw("s_cbranch_scc1 L_end", "branch"))
    o += stamp("rt_start") + stamp("start")
    a(salu("s_load_dwordx16 s[36:51], s[0:1], 0")); a(salu("s_load_dwordx8 s[52:59], s[0:1], 64"))
    a(salu("s_load_dwordx2 s[60:61], s[0:1], 96"))
    a(valu("v_lshrrev_b32 v1, 6, v0", ["v0"], ["v1"]))
    a(valu(f"v_and_b32 v{V_LANE}, 63, v0", ["v0"], ["v0"]))
    a(valu(f"v_readfirstlane_b32 s{S_W}, v1", ["v1"], [f"s{S_W}"]))
    a(salu(f"s_and_b32 s{S_T0}, s2, 7")); a(salu(f"s_lshr_b32 s{S_T1}, s2, 3"))
    a(salu(f"s_and_b32 s{S_H}, s{S_T1}, 15")); a(salu(f"s_lshr_b32 s{S_T1}, s{S_T1}, 4"))
    a(salu(f"s_lshl_b32 s{S_G}, s{S_T0}, 1")); a(salu(f"s_add_u32 s{S_G}, s{S_G}, s{S_T1}"))
    a(salu(f"s_lshr_b32 s{S_BR}, s{S_G}, 3")); a(salu(f"s_and_b32 s{S_B}, s{S_G}, 7"))
    a(salu(f"s_lshl_b32 s{S_W1K}, s{S_W}, 10"))
    a(salu(f"s_mov_b32 s{S_C}, 0x{f32bits(CSC):08x}"))
    L = f"v{V_LANE}"
    def vv(t, rd, wr): a(valu(t, rd, wr))
    vv(f"v_and_b32 v1, 15, {L}", [L], ["v1"]); vv(f"v_lshrrev_b32 v2, 4, {L}", [L], ["v2"])
    vv("v_lshrrev_b32 v3, 1, v1", ["v1"], ["v3"])
    for sp in range(2):
        r = V_KA[sp]
        vv(f"v_add_u32 v{r}, {4*sp}, v2", ["v2"], [f"v{r}"])
        vv(f"v_xor_b32 v{r}, v{r}, v3", [f"v{r}", "v3"], [f"v{r}"])
        vv(f"v_lshlrev_b32 v{r}, 4, v{r}", [f"v{r}"], [f"v{r}"])
        vv(f"v_lshl_add_u32 v{r}, v1, 7, v{r}", ["v1", f"v{r}"], [f"v{r}"])
    vv(f"v_bfe_u32 v28, {L}, 2, 2", [L], ["v28"]); vv(f"v_and_b32 v29, 3, {L}", [L], ["v29"])
    vv("v_lshl_add_u32 v30, v2, 2, v28", ["v2", "v28"], ["v30"])
    vv("v_bfe_u32 v31, v30, 1, 2", ["v30"], ["v31"])
    for p in range(4):
        r = V_VA[p]
        vv(f"v_xor_b32 v{r}, {p}, v31", ["v31"], [f"v{r}"])
        vv(f"v_lshlrev_b32 v{r}, 5, v{r}", [f"v{r}"], [f"v{r}"])
        vv(f"v_lshl_add_u32 v{r}, v30, 7, v{r}", ["v30", f"v{r}"], [f"v{r}"])
        vv(f"v_lshl_add_u32 v{r}, v29, 3, v{r}", ["v29", f"v{r}"], [f"v{r}"])
        vv(f"v_add_u32 v{r}, {L_V}, v{r}", [f"v{r}"], [f"v{r}"])
    vv("v_lshl_add_u32 v30, v2, 3, v28", ["v2", "v28"], ["v30"])
    vv("v_lshrrev_b32 v31, 1, v28", ["v28"], ["v31"])
    for sp in range(2):
        r = V_WA[0][sp]
        vv(f"v_xor_b32 v{r}, {sp}, v31", ["v31"], [f"v{r}"])
        vv(f"v_lshl_add_u32 v{r}, v{r}, 2, v29", [f"v{r}", "v29"], [f"v{r}"])
        vv(f"v_lshlrev_b32 v{r}, 4, v{r}", [f"v{r}"], [f"v{r}"])
        vv(f"v_lshl_add_u32 v{r}, v30, 7, v{r}", ["v30", f"v{r}"], [f"v{r}"])
        for win in (1, 2):
            vv(f"v_add_u32 v{V_WA[win][sp]}, {65536*win}, v{r}", [f"v{r}"], [f"v{V_WA[win][sp]}"])
    vv(f"v_lshrrev_b32 v1, 3, {L}", [L], ["v1"]); vv(f"v_and_b32 v2, 7, {L}", [L], ["v2"])
    vv(f"v_lshl_add_u32 v3, s{S_W}, 3, v1", ["v1", f"s{S_W}"], ["v3"])
    vv("v_bfe_u32 v28, v3, 1, 3", ["v3"], ["v28"]); vv("v_xor_b32 v28, v28, v2", ["v28", "v2"], ["v28"])
    vv("v_lshlrev_b32 v28, 4, v28", ["v28"], ["v28"]); vv(f"v_lshl_add_u32 v{V_DK}, v3, 9, v28", ["v3", "v28"], [f"v{V_DK}"])
    vv("v_bfe_u32 v28, v3, 1, 2", ["v3"], ["v28"]); vv("v_lshlrev_b32 v28, 1, v28", ["v28"], ["v28"])
    vv("v_xor_b32 v28, v28, v2", ["v28", "v2"], ["v28"]); vv("v_lshlrev_b32 v28, 4, v28", ["v28"], ["v28"])
    vv(f"v_lshl_add_u32 v{V_DV}, v3, 9, v28", ["v3", "v28"], [f"v{V_DV}"])
    vv("v_bfe_u32 v28, v3, 1, 1", ["v3"], ["v28"]); vv("v_lshlrev_b32 v28, 2, v28", ["v28"], ["v28"])
    vv("v_xor_b32 v28, v28, v2", ["v28", "v2"], ["v28"]); vv("v_lshlrev_b32 v28, 4, v28", ["v28"], ["v28"])
    vv(f"v_lshl_add_u32 v{V_DW}, v3, 13, v28", ["v3", "v28"], [f"v{V_DW}"])
    a(raw("s_waitcnt lgkmcnt(0)", "wait", lgkm=0))
    a(salu(f"s_cmp_eq_u32 s{S_BR}, 0"))
    for i in range(10): a(salu(f"s_cselect_b32 s{36+i}, s{36+i}, s{46+i}"))
    def srd(base, lo, hi, offs, size):
        if offs is None:
            a(salu(f"s_mov_b32 s{base}, s{lo}")); a(salu(f"s_mov_b32 s{base+1}, s{hi}"))
        else:
            a(salu(f"s_add_u32 s{base}, s{lo}, {offs}")); a(salu(f"s_addc_u32 s{base+1}, s{hi}, 0"))
        a(salu(f"s_mov_b32 s{base+2}, {size}")); a(salu(f"s_mov_b32 s{base+3}, 0x20000"))
    a(salu(f"s_mul_i32 s{S_T0}, s{S_B}, 229376")); srd(S_X, 36, 37, f"s{S_T0}", 229376)
    a(salu(f"s_lshl_b32 s{S_T0}, s{S_H}, 9")); srd(S_WQ, 42, 43, f"s{S_T0}", 0)
    a(salu(f"s_sub_u32 s{S_WQ+2}, {448*8192}, s{S_T0}"))
    a(salu(f"s_lshl_b32 s{S_T0}, s{S_B}, 4")); a(salu(f"s_add_u32 s{S_T0}, s{S_T0}, s{S_H}"))
    a(salu(f"s_lshl_b32 s{S_T0}, s{S_T0}, 19"))
    srd(S_K, 38, 39, f"s{S_T0}", 524288); srd(S_V, 40, 41, f"s{S_T0}", 524288)
    a(salu(f"s_mul_i32 s{S_T0}, s{S_H}, 229376")); srd(S_WO, 44, 45, f"s{S_T0}", 229376)
    srd(S_WS, 60, 61, None, 16 * 7 * 16 * 16 * 2048)
    srd(S_OUT, 56, 57, None, 8 * 256 * 896 * 2)
    return o

def add_lgkm_waits(g, cons, carried):
    seq = [(-1, regs) for regs in carried]
    for k in range(g.n):
        if g.mem[k] is not None and g.mem[k].kind == "ds": seq.append((k, g.mem[k].wr))
    lead = None
    for k, regs in cons:
        late = [n for n, (gap, w) in enumerate(seq) if gap == k - 1 and gap >= 0 and set(w) & set(regs)]
        assert not late, f"DS for MFMA {k} issued in gap {k-1}"
        idx = [n for n, (gap, w) in enumerate(seq) if gap < max(k - 1, 0) and set(w) & set(regs)]
        if not idx: continue
        last = max(idx)
        after = sum(1 for n, (gap, w) in enumerate(seq) if n > last and gap < max(k - 1, 0))
        assert after <= 15, (k, after)
        if k == 0: lead = wait_lgkm(after)
        else: g.pre[k - 1].insert(0, wait_lgkm(after))
    out = len(carried)
    if lead is not None: out = min(out, lead.meta["lgkm"])
    for k in range(g.n):
        for x in g.pre[k]:
            if "lgkm" in x.meta: out = min(out, x.meta["lgkm"])
        if g.mem[k] is not None and g.mem[k].kind == "ds":
            if out >= 14:
                assert len(g.pre[k]) == 0, k
                g.pre[k].append(wait_lgkm(8)); out = 8
            out += 1
    return lead

def place_vmem(g, gap, scalars, d, hi=None, stack=False):
    k = max(gap, 1 if stack else len(scalars))
    hi = g.n if hi is None else hi
    isdma = lambda x: x is not None and x.kind == "dma"
    while True:
        assert k < hi, f"no gap for {d.text}"
        if g.mem[k] is None and not g.vec[k] and len(g.pre[k]) <= 1:
            if stack:
                if not isdma(g.mem[k - 1]) and len(g.pre[k - 1]) + len(scalars) <= 3 and not any(x.kind == "barrier" for x in g.pre[k - 1]): break
            elif all(not g.pre[k - 1 - n] and not isdma(g.mem[k - 1 - n]) for n in range(len(scalars))): break
        k += 1
    if stack:
        for sc in scalars: g.put_pre(k - 1, sc)
    else:
        for n, sc in enumerate(scalars): g.put_pre(k - len(scalars) + n, sc)
    g.put_mem(k, d)
    return k

def put_scalar(g, gap, *ins):
    k = gap
    while g.pre[k]: k += 1
    g.pre[k] = list(ins)
    return k

def place_chain(g, ops, lo, hi):
    left = []
    for ins in ops:
        k = g.place_vec(ins, lo, hi) if (not left and lo < hi) else None
        if k is None: left.append(ins)
        else: lo = k + 1 if ins.kind == "trans" else k
    return lo, left

class Op:
    def __init__(self, ins, rel, dl, preds=()):
        self.ins = ins; self.rel = rel; self.dl = dl; self.preds = list(preds); self.gap = None

def list_schedule(g, ops, lo=0, hi=None):
    hi = g.n if hi is None else hi
    todo = list(ops)
    for k in range(lo, hi):
        while True:
            free = g.free_vec(k)
            if free <= 0: break
            ready = [x for x in todo if x.rel <= k and all(p.gap is not None and p.gap + d <= k for p, d in x.preds)]
            tr = [x for x in ready if x.ins.kind == "trans"]
            pl = [x for x in ready if x.ins.kind != "trans"]
            pick = None
            can_tr = free == 2 and g.mem[k] is None and not g.vec[k]
            if can_tr and tr: pick = min(tr, key=lambda x: x.dl)
            if pl:
                best = min(pl, key=lambda x: x.dl)
                if pick is None or (best.dl + 6 < pick.dl): pick = best
            if pick is None: break
            g.vec[k].append(pick.ins); pick.gap = k; todo.remove(pick)
    late = [x for x in ops if x.gap is not None and x.gap > x.dl]
    assert not late, [(x.ins.text, x.gap, x.dl) for x in late]
    return todo

def sm_ops(tile, kb, qb, rel, dl):
    i = sm_group(tile, kb, qb)
    f = [Op(i[0], rel, dl - 6), Op(i[1], rel, dl - 6), Op(i[4], rel, dl - 5), Op(i[5], rel, dl - 5)]
    x = [Op(i[2], rel, dl - 4, [(f[0], 1)]), Op(i[3], rel, dl - 4, [(f[1], 1)]), Op(i[6], rel, dl - 3, [(f[2], 1)]), Op(i[7], rel, dl - 3, [(f[3], 1)])]
    ad = [Op(i[8], rel, dl, [(x[0], 1)]), Op(i[9], rel, dl, [(x[1], 1)]), Op(i[11], rel, dl, [(x[2], 1)]), Op(i[12], rel, dl, [(x[3], 1)])]
    cv = [Op(i[10], rel, dl, [(x[0], 1), (x[1], 1)]), Op(i[13], rel, dl, [(x[2], 1), (x[3], 1)])]
    return f + x + ad + cv

def exposed(ops):
    o = []
    for n, ins in enumerate(ops):
        o.append(ins)
        if ins.kind == "trans" and n + 1 < len(ops) and ops[n + 1].kind != "trans": o.append(nop(0))
    return o

def conv_ops(acc, d, t):
    return [valu(f"v_accvgpr_read_b32 v{d}, a{acc}", [f"a{acc}"], [f"v{d}"]),
            valu(f"v_accvgpr_read_b32 v{t}, a{acc+1}", [f"a{acc+1}"], [f"v{t}"]),
            valu(f"v_accvgpr_read_b32 v{d+1}, a{acc+2}", [f"a{acc+2}"], [f"v{d+1}"]),
            valu(f"v_accvgpr_read_b32 v{t+1}, a{acc+3}", [f"a{acc+3}"], [f"v{t+1}"]),
            valu(f"v_cvt_pk_bf16_f32 v{d}, v{d}, v{t}", [f"v{d}", f"v{t}"], [f"v{d}"]),
            valu(f"v_cvt_pk_bf16_f32 v{d+1}, v{d+1}, v{t+1}", [f"v{d+1}", f"v{t+1}"], [f"v{d+1}"])]

def xlane_reduce(regs, op, tmp):
    o = []
    for swap in ("v_permlane32_swap_b32", "v_permlane16_swap_b32"):
        for n, r in enumerate(regs): o.append(valu(f"v_mov_b32 v{tmp+n}, v{r}", [f"v{r}"], [f"v{tmp+n}"]))
        o.append(nop(1))
        for n, r in enumerate(regs):
            o.append(valu(f"{swap} v{r}, v{tmp+n}", [f"v{r}", f"v{tmp+n}"], [f"v{r}", f"v{tmp+n}"]))
        o.append(nop(1))
        for n, r in enumerate(regs):
            o.append(valu(f"{op} v{r}, v{r}, v{tmp+n}", [f"v{r}", f"v{tmp+n}"], [f"v{r}"]))
    return o

def wpairs(): return [(L_X, L_X + 16384), (vslot(1), kslot(3)), (vslot(2), vslot(3))]
def wslot(tile):
    p = wpairs(); return p[(tile // 2) % len(p)][tile % 2]
XBUF = [V_S, V_P]
def xfrag(qb, cs): return XBUF[(cs // 2) & 1] + ((cs % 2) * 4 + qb) * 4
V_XD = [128, 129]
V_XR = [130, 131]
S_XB = 34
S_XCUR = 35
def x_setup():
    o = []; a = o.append
    L = f"v{V_LANE}"
    a(salu(f"s_and_b32 s{S_T1}, s{S_W}, 1")); a(salu(f"s_lshl_b32 s{S_T1}, s{S_T1}, 13"))
    a(salu(f"s_cmp_lt_u32 s{S_W}, 2")); a(salu(f"s_cselect_b32 s{S_XB}, 2, 4")); a(salu(f"s_lshl_b32 s{S_XB}, s{S_XB}, 14"))
    a(salu(f"s_add_u32 s{S_XB}, s{S_XB}, s{S_T1}"))
    assert kslot(2) == 2 << 14 and vslot(0) == 4 << 14
    a(valu(f"v_lshrrev_b32 v1, 3, {L}", [L], ["v1"])); a(valu(f"v_and_b32 v2, 7, {L}", [L], ["v2"]))
    a(valu(f"v_lshl_add_u32 v3, s{S_W}, 6, v1", ["v1", f"s{S_W}"], ["v3"]))
    a(valu("v_mul_u32_u24 v3, 896, v3", ["v3"], ["v3"]))
    a(valu("v_lshrrev_b32 v1, 1, v1", ["v1"], ["v1"]))
    for par in range(2):
        r = V_XD[par]
        a(valu(f"v_or_b32 v{r}, {4*par}, v1", ["v1"], [f"v{r}"]))
        a(valu(f"v_xor_b32 v{r}, v{r}, v2", [f"v{r}", "v2"], [f"v{r}"]))
        a(valu(f"v_lshl_add_u32 v{r}, v{r}, 4, v3", [f"v{r}", "v3"], [f"v{r}"]))
        a(valu(f"v_add_u32 v{V_XR[par]}, s{S_XB}, v{V_KA[par]}", [f"v{V_KA[par]}"], [f"v{V_XR[par]}"]))
    return o
def x_items(j):
    out = []
    for i in range(8):
        sreg = S_T2 + (i & 1)
        sc = []
        if i == 0 and j > 0: sc.append(salu(f"s_add_u32 s{S_XCUR}, s{S_XCUR}, s{S_XSTEP}", [f"s{S_XCUR}"], [f"s{S_XCUR}"]))
        sc.append(salu(f"s_add_u32 s{sreg}, s{S_XCUR}, {i*7168}", [f"s{S_XCUR}"], [f"s{sreg}"]))
        sc.append(salu(f"s_add_u32 m0, s{S_XB}, {i*1024}", [f"s{S_XB}"], ["m0"]))
        out.append((sc, tag(dma(V_XD[i & 1], S_X, f"s{sreg}", 0, OPT.x_flags), f"x{j}")))
    return out
def x_read(qb, cs): return ds_read128("v", xfrag(qb, cs), V_XR[cs & 1], qb * 2048)
def w_read(dbp, cs, jj):
    s, e = dbp >> 1, dbp & 1
    base = wslot(cs); win = base // 65536
    off = base - win * 65536 + (s >> 1) * 4096 + jj * 512 + e * 8
    return ds_read_tr("v", V_POOL + 4 * ((2 * dbp + (cs & 1)) % 8) + 2 * jj, V_WA[win][s & 1], off)

V_PF = 28
def coop_setup():
    o = []; a = o.append
    a(salu(f"s_mul_i32 s{S_T1}, s{S_H}, {112*128}"))
    a(salu(f"s_lshl_b32 s{S_T2}, s{S_W}, 12")); a(salu(f"s_add_u32 s{S_T1}, s{S_T1}, s{S_T2}"))
    a(valu(f"v_and_b32 v{V_PF}, 31, v{V_LANE}", [f"v{V_LANE}"], [f"v{V_PF}"]))
    a(valu(f"v_lshlrev_b32 v{V_PF}, 7, v{V_PF}", [f"v{V_PF}"], [f"v{V_PF}"]))
    a(valu(f"v_add_u32 v{V_PF}, s{S_T1}, v{V_PF}", [f"v{V_PF}"], [f"v{V_PF}"]))
    return o
def coop_x():
    return [tag(bload(V_PF + 1, 1, V_PF, S_X, "0", 0), "pf")]

def phase1():
    o = []; a = o.append
    NP = 3
    a(salu(f"s_lshr_b32 s{S_T1}, s2, 7")); a(salu(f"s_and_b32 s{S_T1}, s{S_T1}, {1 if OPT.rev else 0}"))
    a(salu(f"s_cmp_eq_u32 s{S_T1}, 0"))
    a(salu(f"s_cselect_b32 s{S_WCUR}, 0, {6*524288}")); a(salu(f"s_cselect_b32 s{S_T2}, 1, -1"))
    a(salu(f"s_cselect_b32 s{S_XCUR}, 0, 768"))
    a(salu(f"s_mul_i32 s{S_WSTEP}, s{S_T2}, 524288")); a(salu(f"s_mul_i32 s{S_XSTEP}, s{S_T2}, 128"))
    o += x_setup()
    if OPT.coopx: o += coop_setup() + coop_x()
    def w_items(j):
        out = []
        for par in range(2):
            sreg = S_WCUR if par == 0 else S_WOFF
            for m, (m0, d) in enumerate(dma_tile("W", wslot(2 * j + par), f"s{sreg}", f"W{j}")):
                sc = [m0]
                if m == 0 and par == 0 and j > 0: sc = [salu(f"s_add_u32 s{S_WCUR}, s{S_WCUR}, s{S_WSTEP}", [f"s{S_WCUR}"], [f"s{S_WCUR}"]), m0]
                if m == 0 and par == 1: sc = [salu(f"s_add_u32 s{S_WOFF}, s{S_WCUR}, 262144", [f"s{S_WCUR}"], [f"s{S_WOFF}"]), m0]
                out.append((sc, d))
        return out
    def kv_items(kind, t):
        out = []
        for m, (m0, d) in enumerate(dma_tile(kind, kslot(t) if kind == "K" else vslot(t), f"s{S_T0}", f"{kind}{t}")):
            out.append(([salu(f"s_mov_b32 s{S_T0}, {t*16384}", [], [f"s{S_T0}"]), m0] if m == 0 else [m0], d))
        return out
    def now(items):
        for sc, d in items:
            o.extend(sc); a(nop(0)); a(d)
    w0 = w_items(0)
    for sc, d in w0[4:]: d.meta["tag"] = "W0b"
    now(x_items(0)); now(w0[:4]); now(w0[4:])
    a(wait_tag("x0"))
    xr = [x_read(qb, cs) for cs in (0, 1) for qb in range(4)]
    o += xr
    a(wait_tag("W0")); a(barrier())
    o += stamp("p1_first_data")
    def quad0(n): return V_POOL + 4 * (n % 8)
    def w_read0(n, jj):
        dbp, cs = n % 16, n // 16
        r = w_read(dbp, cs, jj)
        return ds_read_tr("v", quad0(n) + 2 * jj, int(r.rd[0][1:]), int(r.text.split("offset:")[1]))
    carried = [x.wr for x in xr]
    for n in range(3):
        for jj in range(2):
            r = w_read0(n, jj); a(r); carried.append(r.wr)
    early = {j: [] for j in range(7)}; after = {j: [] for j in range(7)}
    early[0] += w_items(1); early[1] += w_items(2)
    for j in range(NP, 7): after[j - NP + 1] += w_items(j)
    K = lambda t: kv_items("K", t)
    V = lambda t: kv_items("V", t)
    kv = {"early": {1: K(0), 2: K(1)}, "mid": {2: K(0), 3: K(1)}, "late": {3: K(0), 4: K(1)}}[OPT.kvpf]
    for j, l in kv.items(): early[j] += l
    after[5] += V(0)
    early[6] += K(2) + V(1) + K(3)
    after[6] += V(2)
    for j in range(7):
        ms = []
        if j == 0:
            for n in range(32):
                for qb in range(4):
                    acc = ((n % 16) * 4 + qb) * 4
                    first = n < 16
                    ms.append(mfma("a", acc, "v", quad0(n), "v", xfrag(qb, n // 16), None if first else "a", None if first else acc))
        else:
            for dbp in range(16):
                for qb in range(4):
                    for e2 in range(2):
                        acc = (dbp * 4 + qb) * 4
                        ms.append(mfma("a", acc, "v", V_POOL + 4 * ((2 * dbp + e2) % 8), "v", xfrag(qb, 2 * j + e2), "a", acc))
        g = Gaps(ms)
        if j == 0:
            for n in range(3, 32):
                for jj in range(2): g.put_mem(4 * n - 12 + 2 * jj, w_read0(n, jj))
        else:
            for dbp in range(3, 16):
                for n, (cs, jj) in enumerate([(2*j, 0), (2*j, 1), (2*j+1, 0), (2*j+1, 1)]):
                    g.put_mem(8 * dbp - 24 + 2 * n, w_read(dbp, cs, jj))
        nxt = []
        if j < 6:
            for dbp in range(3):
                for n, (cs, jj) in enumerate([(2*j+2, 0), (2*j+2, 1), (2*j+3, 0), (2*j+3, 1)]):
                    r = w_read(dbp, cs, jj); g.put_mem(104 + (1 if j == 0 else 0) + 8 * dbp + 2 * n, r); nxt.append(r.wr)
        XG = OPT.x_rd_gap if j > 0 else OPT.x_rd_gap0
        xreads = []
        if j < 6:
            for n, (cs, qb) in enumerate([(cs, qb) for cs in (2*j+2, 2*j+3) for qb in range(4)]):
                r = x_read(qb, cs); g.put_mem(XG + 2 * n, r); xreads.append(r)
        if j == 0:
            cons = [(4 * n, R("v", quad0(n), 4) + (R("v", V_S, 32) if n == 0 else [])) for n in range(32)]
        else:
            cons = [(8 * dbp, R("v", V_POOL + 4 * ((2 * dbp) % 8), 8)) for dbp in range(16)]
        if j < 6: cons.append((XG + 24, [w for r in xreads for w in r.wr]))
        cons.sort()
        lead = add_lgkm_waits(g, cons, carried)
        if j < 6:
            k = XG - 2
            while g.pre[k]: k -= 1
            g.pre[k] = [wait_tag(f"x{j+1}")]
        tags = [f"W{j+1}"] if j < 6 else ["K0"]
        k = 100
        while g.pre[k]: k -= 1
        g.pre[k] = [wait_tag(*tags), barrier()] if not OPT.p1_nowait else [barrier()]
        kb = k
        gp = 1
        if j == 0:
            for sc, d in x_items(1): gp = place_vmem(g, gp, sc, d, XG - 3, stack=True) + 2
            k = 48
            while g.pre[k]: k -= 1
            g.pre[k] = [wait_tag("W0b"), barrier()]
            assert k < 52
        for sc, d in early[j]: gp = place_vmem(g, gp + len(sc) - 1, sc, d, kb) + (OPT.early_step if j != 6 else 7)
        if j < 5:
            gx = max(XG + 25, gp)
            for sc, d in x_items(j + 2): gx = place_vmem(g, gx, sc, d, stack=True) + 2
            gpa = max(kb + 2, gx)
        else: gpa = kb + 2
        for sc, d in after[j]: gpa = place_vmem(g, gpa, sc, d, stack=True) + 1
        left = []
        if j == 6:
            for dbp in range(16):
                for qb in range(4):
                    ops = conv_ops((dbp * 4 + qb) * 4, V_Q + (qb * 8 + (dbp >> 1)) * 4 + 2 * (dbp & 1), V_CT + 2 * (qb & 1))
                    if left: left += ops
                    else:
                        _, l2 = place_chain(g, ops, 8 * dbp + 2 * qb + 1 + 5, 128); left += l2
        if lead is not None: a(lead)
        em = g.emit()
        if OPT.p1_drop:
            def keep(x):
                if x.kind in ("dma", "vld"):
                    t = x.meta.get("tag", "")
                    for c in OPT.p1_drop:
                        if t.startswith(c): return False
                return True
            em = [x for x in em if keep(x)]
        if OPT.p1_noread: em = [x for x in em if x.kind != "ds" and not (x.kind == "wait" and "lgkm" in x.meta)]
        o += em
        carried = nxt
        if OPT.p1_steps: o += stamp(f"step{j}")
        if left: a(nop(7)); o += left
    if not OPT.p1_steps: o += stamp("p1_end")
    return o

def k_read(t, kb, s):
    return ds_read128("v", V_POOL + 4 * s, V_KA[s & 1], (kslot(t) - L_K) + (s >> 1) * 4096 + kb * 2048)
def v_read(t, db, jj):
    return ds_read_tr("v", V_POOL + 4 * (db % 8) + 2 * jj, V_VA[db & 3], (vslot(t) - L_V) + (db >> 2) * 4096 + jj * 2048)
def Sreg(kb, qb): return V_S + (kb * 4 + qb) * 4
def Preg(buf, qb): return V_P + buf * 16 + qb * 4
def qk_mfmas():
    ms = []
    for i in range(64):
        kb, sp, qb, e = i >> 5, (i >> 3) & 3, (i >> 1) & 3, i & 1
        s = 2 * sp + e; d = Sreg(kb, qb)
        ms.append(mfma("v", d, "v", V_POOL + 4 * s, "v", V_Q + (qb * 8 + s) * 4, None if s == 0 else "v", None if s == 0 else d))
    return ms
def pv_mfmas(t, first):
    ms = []
    for i in range(64):
        db, qb = i >> 2, i & 3
        acc = (db * 4 + qb) * 4
        ms.append(mfma("a", acc, "v", V_POOL + 4 * (db % 8), "v", Preg(t & 1, qb), None if first else "a", None if first else acc))
    return ms
def sm_group(tile, kb, qb):
    s = Sreg(kb, qb); p = Preg(tile & 1, qb) + 2 * kb; mc = V_MC + qb; l = V_L + qb
    f = lambda r: valu(f"v_fma_f32 v{s+r}, v{s+r}, s{S_C}, v{mc}", [f"v{s+r}", f"v{mc}", f"s{S_C}"], [f"v{s+r}"])
    x = lambda r: trans(f"v_exp_f32 v{s+r}, v{s+r}", [f"v{s+r}"], [f"v{s+r}"])
    ad = lambda r: valu(f"v_add_f32 v{l}, v{l}, v{s+r}", [f"v{l}", f"v{s+r}"], [f"v{l}"])
    cv = lambda r: valu(f"v_cvt_pk_bf16_f32 v{p+r//2}, v{s+r}, v{s+r+1}", [f"v{s+r}", f"v{s+r+1}"], [f"v{p+r//2}"])
    return [f(0), f(1), x(0), x(1), f(2), f(3), x(2), x(3), ad(0), ad(1), cv(0), ad(2), ad(3), cv(2)]

def pre_iter():
    o = []; a = o.append
    carried = []
    for s in range(8):
        r = k_read(0, 0, s); a(r); carried.append(r.wr)
    g = Gaps(qk_mfmas())
    for s in range(8): g.put_mem(8 * (s >> 1) + 10 + 4 * (s & 1), k_read(0, 1, s))
    cons = [(8 * p, R("v", V_POOL + 8 * (p % 4), 8)) for p in range(8)]
    a(add_lgkm_waits(g, cons, carried)); o += g.emit()
    a(wait_tag("K1", "V0")); a(barrier())
    a(salu(f"s_mov_b32 s{S_KOFF}, {4*16384}"))
    for m0, d in dma_tile("K", kslot(4), f"s{S_KOFF}", "K4"): a(m0); a(nop(0)); a(d)
    a(salu(f"s_mov_b32 s{S_KOFF}, {5*16384}")); a(salu(f"s_mov_b32 s{S_VOFF}, {3*16384}"))
    carried = []
    for s in range(8):
        r = k_read(1, 0, s); a(r); carried.append(r.wr)
    for qb in range(4):
        m = V_MC + qb; s0 = Sreg(0, qb); s1 = Sreg(1, qb)
        a(valu(f"v_max3_f32 v{m}, v{s0}, v{s0+1}, v{s0+2}", R("v", s0, 3), [f"v{m}"]))
        a(valu(f"v_max3_f32 v{m}, v{m}, v{s0+3}, v{s1}", [f"v{m}", f"v{s0+3}", f"v{s1}"], [f"v{m}"]))
        a(valu(f"v_max3_f32 v{m}, v{m}, v{s1+1}, v{s1+2}", [f"v{m}", f"v{s1+1}", f"v{s1+2}"], [f"v{m}"]))
        a(valu(f"v_max_f32 v{m}, v{m}, v{s1+3}", [f"v{m}", f"v{s1+3}"], [f"v{m}"]))
    o += xlane_reduce([V_MC + q for q in range(4)], "v_max_f32", V_SP)
    for qb in range(4):
        m = V_MC + qb
        a(valu(f"v_mul_f32 v{m}, s{S_C}, v{m}", [f"v{m}", f"s{S_C}"], [f"v{m}"]))
        a(valu(f"v_sub_f32 v{m}, 0, v{m}", [f"v{m}"], [f"v{m}"]))
        a(valu(f"v_mov_b32 v{V_L+qb}, 0", [], [f"v{V_L+qb}"]))
    for kb, qb in [(0, 0), (0, 1), (0, 2), (0, 3), (1, 0), (1, 1)]: o += exposed(sm_group(0, kb, qb))
    o += stamp("pre_iter_end")
    return o, carried

def attn_iter(t, carried, vmw, prev, cur, first=False, adv=True, loopctl=False, extra=None):
    g = Gaps(qk_mfmas() + pv_mfmas(t, first))
    for s in range(8): g.put_mem(8 * (s >> 1) + 10 + 4 * (s & 1), k_read(t + 1, 1, s))
    for db in range(16):
        for jj in range(2): g.put_mem(44 + 4 * db + 2 * jj, v_read(t, db, jj))
    nxt = []
    if t + 2 <= 31:
        for s, gap in zip(range(8), [108, 110, 112, 114, 116, 120, 124, 127]):
            r = k_read(t + 2, 0, s); g.put_mem(gap, r); nxt.append(r.wr)
    else:
        for db in range(5):
            for jj in range(2):
                r = v_read(t + 1, db, jj); g.put_mem(108 + 4 * db + 2 * jj, r); nxt.append(r.wr)
    cons = [(8 * p, R("v", V_POOL + 8 * (p % 4), 8)) for p in range(8)]
    cons += [(64 + 4 * db, R("v", V_POOL + 4 * (db % 8), 4)) for db in range(16)]
    lead = add_lgkm_waits(g, cons, carried)
    kb = 98
    while g.pre[kb]: kb -= 1
    g.pre[kb] = [vmw, barrier()]
    placed = [place_vmem(g, gap, [m0], d, kb) for gap, (m0, d) in zip([5, 21, 37, 53, 69, 85], prev)]
    for gap, (m0, d) in zip([101, 117], cur): place_vmem(g, gap, [m0], d)
    if adv:
        for reg, srd, at in ((S_VOFF, S_V, placed[1] + 1), (S_KOFF, S_K, placed[5] + 1)):
            k = put_scalar(g, at, salu(f"s_add_u32 s{reg}, s{reg}, 16384", [f"s{reg}"], [f"s{reg}"]))
            k = put_scalar(g, k + 1, salu(f"s_cmp_lt_u32 s{reg}, 524288", [f"s{reg}"], ["scc"]),
                           salu(f"s_cselect_b32 s{srd+2}, 524288, 0", ["scc"], [f"s{srd+2}"]))
            assert k < 100
    if loopctl:
        k = put_scalar(g, 119, salu(f"s_sub_u32 s{S_LOOP}, s{S_LOOP}, 1", [f"s{S_LOOP}"], [f"s{S_LOOP}"]))
        k = put_scalar(g, k + 1, salu(f"s_cmp_lg_u32 s{S_LOOP}, 0", [f"s{S_LOOP}"], ["scc"]))
        assert k <= 127
        for kk in range(k + 1, 128):
            assert all(x.kind == "wait" for x in g.pre[kk]), "SCC clobbered before the loop branch"
    if extra: extra(g, kb)
    ops = []
    for qb in (2, 3): ops += sm_ops(t, 1, qb, 0, 31 + 2 * qb)
    for qb in range(4): ops += sm_ops(t + 1, 0, qb, 25 + 2 * qb + 6, 100 + 6 * qb)
    for qb in (0, 1): ops += sm_ops(t + 1, 1, qb, 57 + 2 * qb + 6, 124 + 3 * qb)
    left = list_schedule(g, ops)
    assert not left, f"softmax groups do not fit: {len(left)} left"
    return [lead] + g.emit(), nxt

def last_iter(carried):
    o = []; a = o.append
    for qb in (2, 3): o += exposed(sm_group(31, 1, qb))
    o += xlane_reduce([V_L + q for q in range(4)], "v_add_f32", V_SP)
    for qb in range(4): a(trans(f"v_rcp_f32 v{V_L+qb}, v{V_L+qb}", [f"v{V_L+qb}"], [f"v{V_L+qb}"]))
    a(nop(0))
    g = Gaps(pv_mfmas(31, False))
    for db in range(5, 8):
        for jj in range(2): g.put_mem(4 * (db - 5) + 2 * jj, v_read(31, db, jj))
    for db in range(8, 16):
        for jj in range(2): g.put_mem(12 + 4 * (db - 8) + 2 * jj, v_read(31, db, jj))
    cons = [(4 * db, R("v", V_POOL + 4 * (db % 8), 4)) for db in range(16)]
    lead = add_lgkm_waits(g, cons, carried)
    gp = put_wo(g, 2, 2, step=0)
    put_wo(g, 3, gp, step=0)
    left = []
    for db in range(16):
        for qb in range(4):
            ops = conv_ops((db * 4 + qb) * 4, V_Q + (qb * 8 + (db >> 1)) * 4 + 2 * (db & 1), V_SP + 8 + 2 * (qb & 1))
            if left: left += ops
            else:
                _, l2 = place_chain(g, ops, 4 * db + qb + 5, 64); left += l2
    a(lead); o += g.emit()
    a(nop(7)); o += left
    return o

WOBUF = [L_X, L_K, L_K + 32768, L_V, L_V + 32768, L_X, L_K]
V_DWO = 3; V_STO = V_DV
V_FR3 = 32; V_ACC3 = V_P; V_STG = 16
def wo_dma(j):
    out = []
    for i in range(8):
        sreg = S_T0 + (i & 1)
        out.append(([salu(f"s_mov_b32 s{sreg}, {j*128 + i*32*896}", [], [f"s{sreg}"]),
                     salu(f"s_add_u32 m0, s{S_W1K}, {WOBUF[j] + i*4096}", [f"s{S_W1K}"], ["m0"])],
                    tag(dma(V_DWO, S_WO, f"s{sreg}", 0, OPT.wo_flags), f"wo{j}")))
    return out
def wo_setup():
    o = []; a = o.append
    L = f"v{V_LANE}"
    a(valu(f"v_lshrrev_b32 v1, 3, {L}", [L], ["v1"])); a(valu(f"v_and_b32 v2, 7, {L}", [L], ["v2"]))
    a(valu(f"v_lshl_add_u32 v3, s{S_W}, 3, v1", ["v1", f"s{S_W}"], ["v3"]))
    a(valu("v_bfe_u32 v1, v1, 1, 2", ["v1"], ["v1"])); a(valu("v_lshlrev_b32 v1, 1, v1", ["v1"], ["v1"]))
    a(valu("v_xor_b32 v1, v1, v2", ["v1", "v2"], ["v1"])); a(valu("v_lshlrev_b32 v1, 4, v1", ["v1"], ["v1"]))
    a(valu("v_mul_u32_u24 v3, 896, v3", ["v3"], ["v3"]))
    a(valu(f"v_add_u32 v{V_DWO}, v3, v1", ["v3", "v1"], [f"v{V_DWO}"]))
    return o
def put_wo(g, j, start, hi=None, step=3):
    gp = start
    for sc, d in wo_dma(j): gp = place_vmem(g, gp, sc, d, hi) + step
    return gp
def wo_read(nb, s, jj):
    return ds_read_tr("v", V_FR3 + 4 * (8 * (nb & 1) + s) + 2 * jj, V_VA[nb], s * 4096 + jj * 2048)
def va_shift(delta):
    t = (lambda r: f"v_add_u32 v{r}, {delta}, v{r}") if delta >= 0 else (lambda r: f"v_subrev_u32 v{r}, {-delta}, v{r}")
    return [valu(t(r), [f"v{r}"], [f"v{r}"]) for r in V_VA]

def part_ops(nb, qb):
    acc = V_ACC3 + 4 * ((nb * 4 + qb) % 8)
    st = V_STG + 4 * qb + 2 * (nb & 1)
    li = V_L + qb
    ops = [valu(f"v_mul_f32 v{acc+r}, v{acc+r}, v{li}", [f"v{acc+r}", f"v{li}"], [f"v{acc+r}"]) for r in range(4)]
    ops += [valu(f"v_cvt_pk_bf16_f32 v{st}, v{acc}, v{acc+1}", [f"v{acc}", f"v{acc+1}"], [f"v{st}"]),
            valu(f"v_cvt_pk_bf16_f32 v{st+1}, v{acc+2}, v{acc+3}", [f"v{acc+2}", f"v{acc+3}"], [f"v{st+1}"])]
    return ops

def phase3():
    o = []; a = o.append
    o += stamp("p3_start")
    a(salu(f"s_mul_i32 s{S_PART}, s{S_G}, {7*16*16*2048}"))
    a(salu(f"s_lshl_b32 s{S_T2}, s{S_W}, 17")); a(salu(f"s_add_u32 s{S_PART}, s{S_PART}, s{S_T2}"))
    a(salu(f"s_lshl_b32 s{S_T2}, s{S_H}, 11")); a(salu(f"s_add_u32 s{S_PART}, s{S_PART}, s{S_T2}"))
    a(valu(f"v_lshlrev_b32 v{V_STO}, 4, v{V_LANE}", [f"v{V_LANE}"], [f"v{V_STO}"]))
    o += va_shift(WOBUF[0] - L_V)
    a(wait_tag("wo0")); a(barrier())
    carried = []
    for s in range(8):
        for jj in range(2):
            r = wo_read(0, s, jj); a(r); carried.append(r.wr)
            if len(carried) == 14: a(wait_lgkm(6)); carried = carried[-6:]
    for sc, d in wo_dma(4): o += sc + [nop(0), d]
    for j in range(7):
        ms = []
        for nb in range(4):
            for qb in range(4):
                acc = V_ACC3 + 4 * ((nb * 4 + qb) % 8)
                for s in range(8):
                    ms.append(mfma("v", acc, "v", V_FR3 + 4 * (8 * (nb & 1) + s), "v", V_Q + (qb * 8 + s) * 4,
                                   None if s == 0 else "v", None if s == 0 else acc))
        g = Gaps(ms)
        nxt = []
        for nb in range(3):
            for s in range(8):
                for jj in range(2): g.put_mem(32 * nb + 4 * s + 2 * jj, wo_read(nb + 1, s, jj))
        if j < 6:
            for s in range(8):
                for jj in range(2):
                    r = wo_read(0, s, jj); g.put_mem(96 + 4 * s + 2 * jj, r); nxt.append(r.wr)
        cons = [(32 * nb + s, R("v", V_FR3 + 4 * (8 * (nb & 1) + s), 4)) for nb in range(4) for s in (0, 2, 4, 6)]
        cons = [(k, R("v", V_FR3 + 4 * (8 * ((k >> 5) & 1) + (k & 7)), 8)) for k, _ in cons]
        lead = add_lgkm_waits(g, cons, carried)
        if j < 6:
            k = 93
            while g.pre[k]: k -= 1
            g.pre[k] = [wait_tag(f"wo{j+1}"), barrier()]
            sh = va_shift(WOBUF[j + 1] - WOBUF[j])
            assert g.place_vec(sh[0], 91, 96) is not None
            assert g.place_vec(sh[1], 40, 96) is not None
            assert g.place_vec(sh[2], 66, 96) is not None
            assert g.place_vec(sh[3], 97, 128) is not None
        if j in (2, 3): put_wo(g, j + 3, 3, step=6)
        tail = []
        for nb in range(4):
            for qb in range(4):
                lo, left = place_chain(g, part_ops(nb, qb), 32 * nb + 8 * qb + 7 + 8, 128)
                st = None
                if nb & 1:
                    so = j * 16 * 16 * 2048 + qb * 16 * 2048 + (nb >> 1) * 1024
                    sreg = S_T2 + (qb & 1)
                    st = (salu(f"s_add_u32 s{sreg}, s{S_PART}, {so}", [f"s{S_PART}"], [f"s{sreg}"]),
                          tag(bstore(V_STG + 4 * qb, 4, V_STO, S_WS, f"s{sreg}", 0, OPT.st_flags), f"st{j}"))
                if left or tail:
                    tail += left
                    if st: tail += [st[0], nop(1), st[1]]
                elif st:
                    k = lo + 2
                    while k < 128 and (g.mem[k] is not None or g.vec[k] or g.pre[k - 1] or len(g.pre[k]) > 1): k += 1
                    if k >= 128: tail += [st[0], nop(1), st[1]]
                    else: g.put_pre(k - 1, st[0]); g.put_mem(k, st[1])
        if lead is not None: a(lead)
        o += g.emit()
        if tail: a(nop(7)); o += exposed(tail)
        carried = nxt
    o += stamp("p3_end") + [wait_vm(0)] * (1 if OPT.stamps else 0) + stamp("rt_end")
    return o

def dump_regs(base, n, agpr=False):
    o = [wait_vm(0), raw("s_waitcnt lgkmcnt(0)", "wait", lgkm=0), nop(7), nop(7),
         salu(f"s_lshl_b32 s{S_T0}, s2, 2"), salu(f"s_add_u32 s{S_T0}, s{S_T0}, s{S_W}"),
         salu(f"s_mul_i32 s{S_T0}, s{S_T0}, {n*256}"), valu(f"v_lshlrev_b32 v1, 2, v{V_LANE}", [f"v{V_LANE}"], ["v1"])]
    for r in range(n):
        if agpr:
            o.append(valu(f"v_accvgpr_read_b32 v2, a{base+r}", [f"a{base+r}"], ["v2"])); o.append(bstore(2, 1, 1, S_WS, f"s{S_T0}", 0))
        else:
            o.append(bstore(base + r, 1, 1, S_WS, f"s{S_T0}", 0))
        o.append(salu(f"s_add_u32 s{S_T0}, s{S_T0}, 256"))
        if r % 32 == 31 or agpr: o.append(wait_vm(0))
    return o

def stamp_out():
    if not OPT.stamps: return []
    n = len(STAMPS)
    o = [raw("s_waitcnt lgkmcnt(0)", "wait", lgkm=0), salu(f"s_cmp_lg_u32 s{S_W}, 0"), raw("s_cbranch_scc1 L_nostamp", "branch")]
    if OPT.stamp_dbg >= 0:
        o += [salu(f"s_cmp_lg_u32 s2, {OPT.stamp_dbg}"), raw("s_cbranch_scc1 L_nostamp", "branch")]
        o += [salu("s_load_dwordx2 s[36:37], s[0:1], 88"), raw("s_waitcnt lgkmcnt(0)", "wait", lgkm=0)]
        o += [salu(f"s_mov_b32 s{S_WS}, s36"), salu(f"s_mov_b32 s{S_WS+1}, s37"), salu(f"s_mov_b32 s{S_WS+2}, 256"), salu(f"s_mov_b32 s{S_T0}, 0")]
    else:
        o.append(salu(f"s_mul_i32 s{S_T0}, s2, 64")); o.append(salu(f"s_add_u32 s{S_T0}, s{S_T0}, {16*7*16*16*2048}"))
        o.append(salu(f"s_mov_b32 s{S_WS+2}, {16*7*16*16*2048 + 256*64}"))
    o.append(valu("v_mov_b32 v1, 0", [], ["v1"]))
    for k in range(n):
        if OPT.stamp_dbg >= 0:
            ref = 0 if STAMPS[k].startswith("rt") else 1
            o.append(salu(f"s_sub_u32 s{S_T1}, s{S_STAMP+2*k}, s{S_STAMP+2*ref}"))
            o.append(valu(f"v_mov_b32 v2, s{S_T1}", [], ["v2"]))
        else:
            o.append(valu(f"v_mov_b32 v2, s{S_STAMP+2*k}", [], ["v2"]))
        o.append(bstore(2, 1, 1, S_WS, f"s{S_T0}", 4 * k)); o.append(wait_vm(0))
    o.append(label("L_nostamp"))
    return o

def finish(): return [wait_vm(0), label("L_end"), raw("s_endpgm", "branch")]

def build(debug=None):
    _stamp_n[0] = 0; STAMPS.clear()
    pre = setup() + phase1()
    if debug == "p1":
        pre += stamp("rt_end")
        resolve_vm(pre, [])
        return pre + stamp_out() + finish()
    if debug == "q":
        resolve_vm(pre, []); check(pre, "pre")
        return pre + dump_regs(V_Q, 128) + finish()
    p, carried = pre_iter(); pre += p
    def batch(t):
        return dma_tile("V", vslot(t + 3), f"s{S_VOFF}", f"V{t+3}") + dma_tile("K", kslot(t + 5), f"s{S_KOFF}", f"K{t+5}")
    pre += wo_setup()
    s0, carried = attn_iter(0, carried, wait_tag("V1", "K2"), [], batch(0)[:2], first=True, adv=False,
                            extra=lambda g, kb: put_wo(g, 0, 3, kb, step=8))
    pre += s0
    pre.append(salu(f"s_mov_b32 s{S_LOOP}, 7"))
    pre += stamp("loop_start")
    loop = [label("L_attn")]
    for u in range(4):
        t = 1 + u
        s, carried = attn_iter(t, carried, wait_vm(12), batch(t - 1)[2:], batch(t)[:2], loopctl=(u == 3))
        loop += s
    loop.append(raw("s_cbranch_scc1 L_attn", "branch"))
    post = stamp("loop_end")
    s, carried = attn_iter(29, carried, wait_tag("V30", "K32"), batch(28)[2:4], [], adv=False)
    post += s
    def ex30(g, kb):
        put_wo(g, 1, 3, kb, step=8)
    s, carried = attn_iter(30, carried, wait_tag("V31"), [], [], adv=False, extra=ex30)
    post += s
    post += last_iter(carried)
    post += stamp("attn_end")
    if debug == "o":
        tailq = dump_regs(V_Q, 128)
    elif debug == "l":
        tailq = dump_regs(V_L, 4)
    else:
        tailq = phase3()
    post += tailq
    q = resolve_vm(pre, [])
    qexit = ["V30"] * 4 + ["K32"] * 4 + ["V31"] * 2
    resolve_vm(post, qexit)
    if not (OPT.p1_nowait or OPT.p1_noread or OPT.p1_drop): check(pre + loop[1:] + loop[1:], "pre+loop")
    check(loop[1:] + post, "loop+post", init_lgkm=[x.wr for x in pre if x.kind == "ds"][-8:], init_vm=[[]] * 10)
    return pre + loop + post + stamp_out() + finish()

def reduce_kernel():
    o = []; a = o.append
    a(salu("s_cmp_ge_u32 s2, 256")); a(raw("s_cbranch_scc1 R_end", "branch"))
    a(salu("s_load_dwordx2 s[4:5], s[0:1], 80")); a(salu("s_load_dwordx2 s[6:7], s[0:1], 96"))
    a(valu("v_lshrrev_b32 v1, 6, v0", ["v0"], ["v1"])); a(valu("v_and_b32 v0, 63, v0", ["v0"], ["v0"]))
    a(valu("v_readfirstlane_b32 s32, v1", ["v1"], ["s32"]))
    a(salu("s_lshr_b32 s33, s2, 4")); a(salu("s_and_b32 s34, s2, 15"))
    a(salu("s_lshr_b32 s35, s33, 3")); a(salu("s_and_b32 s36, s33, 7"))
    a(salu("s_lshr_b32 s37, s32, 1")); a(salu("s_and_b32 s38, s32, 1"))
    a(valu("v_lshrrev_b32 v2, 5, v0", ["v0"], ["v2"])); a(valu("v_lshlrev_b32 v2, 11, v2", ["v2"], ["v2"]))
    a(valu("v_and_b32 v3, 31, v0", ["v0"], ["v3"])); a(valu("v_lshl_add_u32 v2, v3, 4, v2", ["v3", "v2"], ["v2"]))
    a(salu("s_lshl_b32 s39, s37, 10")); a(salu("s_lshl_b32 s40, s38, 9")); a(salu("s_add_u32 s39, s39, s40"))
    a(valu("v_add_u32 v2, s39, v2", ["v2"], ["v2"]))
    a(valu("v_and_b32 v8, 15, v0", ["v0"], ["v8"])); a(valu("v_lshrrev_b32 v9, 4, v0", ["v0"], ["v9"]))
    a(valu("v_lshrrev_b32 v10, 3, v8", ["v8"], ["v10"])); a(valu("v_and_b32 v11, 1, v9", ["v9"], ["v11"]))
    a(valu("v_and_b32 v12, 1, v8", ["v8"], ["v12"])); a(valu("v_lshlrev_b32 v12, 4, v12", ["v12"], ["v12"]))
    a(valu("v_mov_b32 v13, 0x3f80", [], ["v13"])); a(valu("v_lshlrev_b32 v13, v12, v13", ["v12", "v13"], ["v13"]))
    a(valu("v_cmp_eq_u32 vcc, v10, v11", ["v10", "v11"], ["vcc"])); a(nop(1))
    a(valu("v_cndmask_b32 v13, 0, v13, vcc", ["v13", "vcc"], ["v13"]))
    a(valu("v_bfe_u32 v14, v8, 1, 2", ["v8"], ["v14"]))
    for r in range(4):
        a(valu(f"v_cmp_eq_u32 vcc, {r}, v14", ["v14"], ["vcc"])); a(nop(1))
        a(valu(f"v_cndmask_b32 v{4+r}, 0, v13, vcc", ["v13", "vcc"], [f"v{4+r}"]))
    a(salu("s_lshl_b32 s41, s36, 8")); a(salu("s_lshl_b32 s42, s34, 4")); a(salu("s_add_u32 s41, s41, s42"))
    a(valu("v_add_u32 v3, s41, v8", ["v8"], ["v3"])); a(valu("v_mul_u32_u24 v3, 896, v3", ["v3"], ["v3"]))
    a(salu("s_mul_i32 s42, s35, 448")); a(salu("s_lshl_b32 s43, s37, 5")); a(salu("s_add_u32 s42, s42, s43"))
    a(salu("s_lshl_b32 s43, s38, 3")); a(salu("s_add_u32 s42, s42, s43"))
    a(valu("v_add_u32 v3, s42, v3", ["v3"], ["v3"]))
    a(valu("v_lshl_add_u32 v3, v11, 4, v3", ["v11", "v3"], ["v3"]))
    a(valu("v_lshrrev_b32 v10, 1, v9", ["v9"], ["v10"])); a(valu("v_lshl_add_u32 v3, v10, 2, v3", ["v10", "v3"], ["v3"]))
    a(valu("v_lshlrev_b32 v3, 1, v3", ["v3"], ["v3"]))
    a(raw("s_waitcnt lgkmcnt(0)", "wait", lgkm=0))
    for base, lo, size in ((8, 6, 16 * 7 * 16 * 16 * 2048), (12, 4, 8 * 256 * 896 * 2)):
        a(salu(f"s_mov_b32 s{base}, s{lo}")); a(salu(f"s_mov_b32 s{base+1}, s{lo+1}"))
        a(salu(f"s_mov_b32 s{base+2}, {size}")); a(salu(f"s_mov_b32 s{base+3}, 0x20000"))
    a(salu(f"s_mul_i32 s44, s33, {7*16*32768}")); a(salu("s_lshl_b32 s45, s34, 15")); a(salu("s_add_u32 s44, s44, s45"))
    for j in range(7):
        for i in range(8):
            a(salu(f"s_add_u32 s46, s44, {j*16*32768 + i*4096}"))
            a(tag(bload(16 + (j * 8 + i) * 4, 4, 2, 8, "s46", 0), f"p{j}"))
    for j in range(7):
        a(wait_tag(f"p{j}"))
        d = 240 + 4 * (j & 1)
        for i in range(8):
            a(mfma("v", d, "v", 4, "v", 16 + (j * 8 + i) * 4, None if i == 0 else "v", None if i == 0 else d))
        a(nop(7))
        a(valu(f"v_cvt_pk_bf16_f32 v{d}, v{d}, v{d+1}", [f"v{d}", f"v{d+1}"], [f"v{d}"]))
        a(valu(f"v_cvt_pk_bf16_f32 v{d+1}, v{d+2}, v{d+3}", [f"v{d+2}", f"v{d+3}"], [f"v{d+1}"]))
        a(tag(bstore(d, 2, 3, 12, "0", j * 128), "o"))
    resolve_vm(o, []); check(o, "reduce")
    if OPT.stamps and OPT.stamp_fwd >= 0:
        o += [wait_vm(0), salu("s_cmp_lg_u32 s2, 0"), raw("s_cbranch_scc1 R_end", "branch"),
              salu("s_load_dwordx2 s[20:21], s[0:1], 88"), raw("s_waitcnt lgkmcnt(0)", "wait", lgkm=0),
              salu("s_mov_b32 s16, s20"), salu("s_mov_b32 s17, s21"), salu("s_mov_b32 s18, 64"), salu("s_mov_b32 s19, 0x20000"),
              salu(f"s_mov_b32 s10, {16*7*16*16*2048 + 256*64}"), salu(f"s_mov_b32 s46, {16*7*16*16*2048} + 64*{OPT.stamp_fwd}"),
              valu("v_lshlrev_b32 v2, 2, v0", ["v0"], ["v2"]), bload(3, 1, 2, 8, "s46", 0), wait_vm(0), bstore(3, 1, 2, 16, "0", 0)]
    o += [wait_vm(0), label("R_end"), raw("s_endpgm", "branch")]
    return o

KD = """.section .rodata,"a"
.p2align 6
.amdhsa_kernel {name}
  .amdhsa_next_free_vgpr {vgpr}
  .amdhsa_next_free_sgpr 102
  .amdhsa_accum_offset 256
  .amdhsa_group_segment_fixed_size 0
  .amdhsa_kernarg_size 104
  .amdhsa_user_sgpr_count 2
  .amdhsa_user_sgpr_kernarg_segment_ptr 1
  .amdhsa_system_sgpr_workgroup_id_x 1
.end_amdhsa_kernel
"""
def header_comments():
    ref = open("cdna_kernels/" + NAME + ".s.ref").read().splitlines()
    out = []
    for l in ref:
        if l.startswith("; Override launch") or not l.startswith(";"): break
        out.append(l)
    return out

def assemble_file(debug=None):
    main = build(debug)
    red = reduce_kernel()
    k1 = NAME + "_kernel"; k2 = "reduce_heads_kernel"
    L = header_comments()
    L.append(f"; @launch kernel={k1} grid=(256,1,1) block=(256,1,1) lds={LDS_BYTES}")
    if debug is None: L.append(f"; @launch kernel={k2} grid=(256,1,1) block=(256,1,1) lds=0")
    L.append('.amdgcn_target "amdgcn-amd-amdhsa--gfx950"')
    L.append(".text")
    for nm, body in ((k1, main), (k2, red)):
        L += [f".globl {nm}", ".p2align 8", f".type {nm},@function", f"{nm}:", text(body)]
    L.append(KD.format(name=k1, vgpr=512)); L.append(KD.format(name=k2, vgpr=256))
    return "\n".join(L) + "\n"

if __name__ == "__main__":
    dbg = sys.argv[2] if len(sys.argv) > 2 and sys.argv[2] != "none" else None
    for kv in sys.argv[3:]:
        k, v = kv.split("=")
        setattr(OPT, k, {"True": True, "False": False}.get(v, int(v) if v.lstrip("-").isdigit() else v))
    open(sys.argv[1], "w").write(assemble_file(dbg))
    print("stamps:", STAMPS)
```

```python
import math, struct, sys
from core import *

NAME = "concat_heads__mha_block_cached__mha_block_cached__near_ridge"
def f32bits(x): return struct.unpack("<I", struct.pack("<f", x))[0]
CSC = math.log2(math.e) / 16.0

S_X, S_WQ, S_K, S_V, S_WO, S_WS, S_OUT = 4, 8, 12, 16, 20, 24, 28
S_W, S_W1K = 32, 33
S_QB = ["0", "s34", "s35", "s62"]
S_C = 63
S_KOFF, S_VOFF = 64, 65
S_LOOP = 66
S_T0, S_T1, S_T2, S_T3 = 67, 68, 69, 70
S_G, S_H, S_B, S_BR = 71, 72, 73, 74
S_WOFF = 76
S_PART = 77
S_WCUR, S_WSTEP, S_XSTEP = 78, 79, 75
S_STAMP = 80
V_LANE = 0
V_KA = [4, 5]
V_VA = [6, 7, 8, 9]
V_DK, V_DV = 10, 11
V_L = 12
V_MC = 16
V_SP = 20
V_POOL = 32
V_S = 64
V_P = 96
V_Q = 128
V_XA = 20; V_DW = 21; V_WA = [[22, 23], [24, 25], [26, 27]]
V_CT = 28
L_K = 0; L_V = 65536; L_X = 131072
def kslot(t): return L_K + 16384 * (t % 4)
def vslot(t): return L_V + 16384 * (t % 4)
LDS_BYTES = 163840

class Opt:
    kv_flags = "nt"
    w_flags = ""
    x_flags = ""
    wo_flags = ""
    st_flags = ""
    stamps = False
    stream0 = False
    loop_nods = False
    loop_nomfma = False
    loop_novalu = False
    loop_nodma = False
    loop_dma_every = 1
    bar_stamps = False
    trip_stamps = False
    dma_mode = 'spread'
    dma_gaps = ([5, 21, 37, 53, 69, 85], [101, 117])
    nv_prev = 2
    stamp_fwd = -1
    stamp_dbg = -1
    x_rd_gap0 = 65
    x_rd_gap = 33
    p1_steps = False
    p1_drop = ''
    rev = True
    init_w = 2
    early_step = 2
    x_gap = 60
    p1_nowait = False
    p1_noread = False
    wring = 3
    kvpf = 'early'
    coopx = False
    init_more = 0
OPT = Opt()

def wait_tag(*tags): return I("s_waitcnt vmcnt(?)", "wait", vmtags=list(tags))
def tag(ins, t):
    ins.meta["tag"] = t; return ins
def resolve_vm(stream, queue):
    q = list(queue)
    for ins in stream:
        if ins.kind in ("dma", "vld", "vst"):
            q.append(ins.meta.get("tag", "?"))
        elif ins.kind == "wait":
            if "vmtags" in ins.meta:
                idx = [n for n, t in enumerate(q) if t in ins.meta["vmtags"]]
                n = len(q) - 1 - max(idx) if idx else len(q)
                n = min(n, 63)
                ins.text = f"s_waitcnt vmcnt({n})"; ins.meta["vm"] = n
            if "vm" in ins.meta:
                n = ins.meta["vm"]
                if len(q) > n: q = q[len(q) - n:] if n else []
    return q

_stamp_n = [0]
def stamp(name):
    if not OPT.stamps: return []
    if OPT.bar_stamps and name not in ("rt_ls", "rt_le", "loop_start", "loop_end", "rt_end"): return []
    n = _stamp_n[0]; _stamp_n[0] += 1
    STAMPS.append(name)
    op = "s_memrealtime" if name.startswith("rt") else "s_memtime"
    return [raw(f"{op} s[{S_STAMP+2*n}:{S_STAMP+2*n+1}]", "salu")]
STAMPS = []

def m0_set(base): return salu(f"s_add_u32 m0, s{S_W1K}, {base}", [f"s{S_W1K}"], ["m0"])

def dma_tile(kind, slot_base, soff, tg):
    voff, srd, fl = {"K": (V_DK, S_K, OPT.kv_flags), "V": (V_DV, S_V, OPT.kv_flags), "W": (V_DW, S_WQ, OPT.w_flags)}[kind]
    return [(m0_set(slot_base + dc * 3968), tag(dma(voff, srd, soff, dc * 128, fl), tg)) for dc in range(4)]

def setup():
    o = []; a = o.append
    a(salu("s_cmp_ge_u32 s2, 256")); a(raw("s_cbranch_scc1 L_end", "branch"))
    o += stamp("rt_start") + stamp("start")
    a(salu("s_load_dwordx16 s[36:51], s[0:1], 0")); a(salu("s_load_dwordx8 s[52:59], s[0:1], 64"))
    a(salu("s_load_dwordx2 s[60:61], s[0:1], 96"))
    a(valu("v_lshrrev_b32 v1, 6, v0", ["v0"], ["v1"]))
    a(valu(f"v_and_b32 v{V_LANE}, 63, v0", ["v0"], ["v0"]))
    a(valu(f"v_readfirstlane_b32 s{S_W}, v1", ["v1"], [f"s{S_W}"]))
    a(salu(f"s_and_b32 s{S_T0}, s2, 7")); a(salu(f"s_lshr_b32 s{S_T1}, s2, 3"))
    a(salu(f"s_and_b32 s{S_H}, s{S_T1}, 15")); a(salu(f"s_lshr_b32 s{S_T1}, s{S_T1}, 4"))
    a(salu(f"s_lshl_b32 s{S_G}, s{S_T0}, 1")); a(salu(f"s_add_u32 s{S_G}, s{S_G}, s{S_T1}"))
    a(salu(f"s_lshr_b32 s{S_BR}, s{S_G}, 3")); a(salu(f"s_and_b32 s{S_B}, s{S_G}, 7"))
    a(salu(f"s_lshl_b32 s{S_W1K}, s{S_W}, 10"))
    a(salu(f"s_mov_b32 s{S_C}, 0x{f32bits(CSC):08x}"))
    L = f"v{V_LANE}"
    def vv(t, rd, wr): a(valu(t, rd, wr))
    vv(f"v_and_b32 v1, 15, {L}", [L], ["v1"]); vv(f"v_lshrrev_b32 v2, 4, {L}", [L], ["v2"])
    vv("v_lshrrev_b32 v3, 1, v1", ["v1"], ["v3"])
    for sp in range(2):
        r = V_KA[sp]
        vv(f"v_add_u32 v{r}, {4*sp}, v2", ["v2"], [f"v{r}"])
        vv(f"v_xor_b32 v{r}, v{r}, v3", [f"v{r}", "v3"], [f"v{r}"])
        vv(f"v_lshlrev_b32 v{r}, 4, v{r}", [f"v{r}"], [f"v{r}"])
        vv(f"v_lshl_add_u32 v{r}, v1, 7, v{r}", ["v1", f"v{r}"], [f"v{r}"])
    vv(f"v_bfe_u32 v28, {L}, 2, 2", [L], ["v28"]); vv(f"v_and_b32 v29, 3, {L}", [L], ["v29"])
    vv("v_lshl_add_u32 v30, v2, 2, v28", ["v2", "v28"], ["v30"])
    vv("v_bfe_u32 v31, v30, 1, 2", ["v30"], ["v31"])
    for p in range(4):
        r = V_VA[p]
        vv(f"v_xor_b32 v{r}, {p}, v31", ["v31"], [f"v{r}"])
        vv(f"v_lshlrev_b32 v{r}, 5, v{r}", [f"v{r}"], [f"v{r}"])
        vv(f"v_lshl_add_u32 v{r}, v30, 7, v{r}", ["v30", f"v{r}"], [f"v{r}"])
        vv(f"v_lshl_add_u32 v{r}, v29, 3, v{r}", ["v29", f"v{r}"], [f"v{r}"])
        vv(f"v_add_u32 v{r}, {L_V}, v{r}", [f"v{r}"], [f"v{r}"])
    vv("v_lshl_add_u32 v30, v2, 3, v28", ["v2", "v28"], ["v30"])
    vv("v_lshrrev_b32 v31, 1, v28", ["v28"], ["v31"])
    for sp in range(2):
        r = V_WA[0][sp]
        vv(f"v_xor_b32 v{r}, {sp}, v31", ["v31"], [f"v{r}"])
        vv(f"v_lshl_add_u32 v{r}, v{r}, 2, v29", [f"v{r}", "v29"], [f"v{r}"])
        vv(f"v_lshlrev_b32 v{r}, 4, v{r}", [f"v{r}"], [f"v{r}"])
        vv(f"v_lshl_add_u32 v{r}, v30, 7, v{r}", ["v30", f"v{r}"], [f"v{r}"])
        for win in (1, 2):
            vv(f"v_add_u32 v{V_WA[win][sp]}, {65536*win}, v{r}", [f"v{r}"], [f"v{V_WA[win][sp]}"])
    vv(f"v_lshrrev_b32 v1, 3, {L}", [L], ["v1"]); vv(f"v_and_b32 v2, 7, {L}", [L], ["v2"])
    vv(f"v_lshl_add_u32 v3, s{S_W}, 3, v1", ["v1", f"s{S_W}"], ["v3"])
    vv("v_bfe_u32 v28, v3, 1, 3", ["v3"], ["v28"]); vv("v_xor_b32 v28, v28, v2", ["v28", "v2"], ["v28"])
    vv("v_lshlrev_b32 v28, 4, v28", ["v28"], ["v28"]); vv(f"v_lshl_add_u32 v{V_DK}, v3, 9, v28", ["v3", "v28"], [f"v{V_DK}"])
    vv("v_bfe_u32 v28, v3, 1, 2", ["v3"], ["v28"]); vv("v_lshlrev_b32 v28, 1, v28", ["v28"], ["v28"])
    vv("v_xor_b32 v28, v28, v2", ["v28", "v2"], ["v28"]); vv("v_lshlrev_b32 v28, 4, v28", ["v28"], ["v28"])
    vv(f"v_lshl_add_u32 v{V_DV}, v3, 9, v28", ["v3", "v28"], [f"v{V_DV}"])
    vv("v_bfe_u32 v28, v3, 1, 1", ["v3"], ["v28"]); vv("v_lshlrev_b32 v28, 2, v28", ["v28"], ["v28"])
    vv("v_xor_b32 v28, v28, v2", ["v28", "v2"], ["v28"]); vv("v_lshlrev_b32 v28, 4, v28", ["v28"], ["v28"])
    vv(f"v_lshl_add_u32 v{V_DW}, v3, 13, v28", ["v3", "v28"], [f"v{V_DW}"])
    a(raw("s_waitcnt lgkmcnt(0)", "wait", lgkm=0))
    a(salu(f"s_cmp_eq_u32 s{S_BR}, 0"))
    for i in range(10): a(salu(f"s_cselect_b32 s{36+i}, s{36+i}, s{46+i}"))
    def srd(base, lo, hi, offs, size):
        if offs is None:
            a(salu(f"s_mov_b32 s{base}, s{lo}")); a(salu(f"s_mov_b32 s{base+1}, s{hi}"))
        else:
            a(salu(f"s_add_u32 s{base}, s{lo}, {offs}")); a(salu(f"s_addc_u32 s{base+1}, s{hi}, 0"))
        a(salu(f"s_mov_b32 s{base+2}, {size}")); a(salu(f"s_mov_b32 s{base+3}, 0x20000"))
    a(salu(f"s_mul_i32 s{S_T0}, s{S_B}, 229376")); srd(S_X, 36, 37, f"s{S_T0}", 229376)
    a(salu(f"s_lshl_b32 s{S_T0}, s{S_H}, 9")); srd(S_WQ, 42, 43, f"s{S_T0}", 0)
    a(salu(f"s_sub_u32 s{S_WQ+2}, {448*8192}, s{S_T0}"))
    a(salu(f"s_lshl_b32 s{S_T0}, s{S_B}, 4")); a(salu(f"s_add_u32 s{S_T0}, s{S_T0}, s{S_H}"))
    a(salu(f"s_lshl_b32 s{S_T0}, s{S_T0}, 19"))
    srd(S_K, 38, 39, f"s{S_T0}", 524288); srd(S_V, 40, 41, f"s{S_T0}", 524288)
    a(salu(f"s_mul_i32 s{S_T0}, s{S_H}, 229376")); srd(S_WO, 44, 45, f"s{S_T0}", 229376)
    srd(S_WS, 60, 61, None, 16 * 7 * 16 * 16 * 2048)
    srd(S_OUT, 56, 57, None, 8 * 256 * 896 * 2)
    return o

def add_lgkm_waits(g, cons, carried):
    seq = [(-1, regs) for regs in carried]
    for k in range(g.n):
        if g.mem[k] is not None and g.mem[k].kind == "ds": seq.append((k, g.mem[k].wr))
    lead = None
    for k, regs in cons:
        late = [n for n, (gap, w) in enumerate(seq) if gap == k - 1 and gap >= 0 and set(w) & set(regs)]
        assert not late, f"DS for MFMA {k} issued in gap {k-1}"
        idx = [n for n, (gap, w) in enumerate(seq) if gap < max(k - 1, 0) and set(w) & set(regs)]
        if not idx: continue
        last = max(idx)
        after = sum(1 for n, (gap, w) in enumerate(seq) if n > last and gap < max(k - 1, 0))
        assert after <= 15, (k, after)
        if k == 0: lead = wait_lgkm(after)
        else: g.pre[k - 1].insert(0, wait_lgkm(after))
    out = len(carried)
    if lead is not None: out = min(out, lead.meta["lgkm"])
    for k in range(g.n):
        for x in g.pre[k]:
            if "lgkm" in x.meta: out = min(out, x.meta["lgkm"])
        if g.mem[k] is not None and g.mem[k].kind == "ds":
            if out >= 14:
                assert len(g.pre[k]) == 0, k
                g.pre[k].append(wait_lgkm(8)); out = 8
            out += 1
    return lead

def place_vmem(g, gap, scalars, d, hi=None, stack=False):
    k = max(gap, 1 if stack else len(scalars))
    hi = g.n if hi is None else hi
    isdma = lambda x: x is not None and x.kind == "dma"
    while True:
        assert k < hi, f"no gap for {d.text}"
        if g.mem[k] is None and not g.vec[k] and len(g.pre[k]) <= 1:
            if stack:
                if not isdma(g.mem[k - 1]) and len(g.pre[k - 1]) + len(scalars) <= 3 and not any(x.kind == "barrier" for x in g.pre[k - 1]): break
            elif all(not g.pre[k - 1 - n] and not isdma(g.mem[k - 1 - n]) for n in range(len(scalars))): break
        k += 1
    if stack:
        for sc in scalars: g.put_pre(k - 1, sc)
    else:
        for n, sc in enumerate(scalars): g.put_pre(k - len(scalars) + n, sc)
    g.put_mem(k, d)
    return k

def put_scalar(g, gap, *ins):
    k = gap
    while g.pre[k]: k += 1
    g.pre[k] = list(ins)
    return k

def place_chain(g, ops, lo, hi):
    left = []
    for ins in ops:
        k = g.place_vec(ins, lo, hi) if (not left and lo < hi) else None
        if k is None: left.append(ins)
        else: lo = k + 1 if ins.kind == "trans" else k
    return lo, left

class Op:
    def __init__(self, ins, rel, dl, preds=()):
        self.ins = ins; self.rel = rel; self.dl = dl; self.preds = list(preds); self.gap = None

def list_schedule(g, ops, lo=0, hi=None):
    hi = g.n if hi is None else hi
    todo = list(ops)
    for k in range(lo, hi):
        while True:
            free = g.free_vec(k)
            if free <= 0: break
            ready = [x for x in todo if x.rel <= k and all(p.gap is not None and p.gap + d <= k for p, d in x.preds)]
            tr = [x for x in ready if x.ins.kind == "trans"]
            pl = [x for x in ready if x.ins.kind != "trans"]
            pick = None
            can_tr = free == 2 and g.mem[k] is None and not g.vec[k]
            if can_tr and tr: pick = min(tr, key=lambda x: x.dl)
            if pl:
                best = min(pl, key=lambda x: x.dl)
                if pick is None or (best.dl + 6 < pick.dl): pick = best
            if pick is None: break
            g.vec[k].append(pick.ins); pick.gap = k; todo.remove(pick)
    late = [x for x in ops if x.gap is not None and x.gap > x.dl]
    assert not late, [(x.ins.text, x.gap, x.dl) for x in late]
    return todo

def sm_ops(tile, kb, qb, rel, dl):
    i = sm_group(tile, kb, qb)
    f = [Op(i[0], rel, dl - 6), Op(i[1], rel, dl - 6), Op(i[4], rel, dl - 5), Op(i[5], rel, dl - 5)]
    x = [Op(i[2], rel, dl - 4, [(f[0], 1)]), Op(i[3], rel, dl - 4, [(f[1], 1)]), Op(i[6], rel, dl - 3, [(f[2], 1)]), Op(i[7], rel, dl - 3, [(f[3], 1)])]
    ad = [Op(i[8], rel, dl, [(x[0], 1)]), Op(i[9], rel, dl, [(x[1], 1)]), Op(i[11], rel, dl, [(x[2], 1)]), Op(i[12], rel, dl, [(x[3], 1)])]
    cv = [Op(i[10], rel, dl, [(x[0], 1), (x[1], 1)]), Op(i[13], rel, dl, [(x[2], 1), (x[3], 1)])]
    return f + x + ad + cv

def exposed(ops):
    o = []
    for n, ins in enumerate(ops):
        o.append(ins)
        if ins.kind == "trans" and n + 1 < len(ops) and ops[n + 1].kind != "trans": o.append(nop(0))
    return o

def conv_ops(acc, d, t):
    return [valu(f"v_accvgpr_read_b32 v{d}, a{acc}", [f"a{acc}"], [f"v{d}"]),
            valu(f"v_accvgpr_read_b32 v{t}, a{acc+1}", [f"a{acc+1}"], [f"v{t}"]),
            valu(f"v_accvgpr_read_b32 v{d+1}, a{acc+2}", [f"a{acc+2}"], [f"v{d+1}"]),
            valu(f"v_accvgpr_read_b32 v{t+1}, a{acc+3}", [f"a{acc+3}"], [f"v{t+1}"]),
            valu(f"v_cvt_pk_bf16_f32 v{d}, v{d}, v{t}", [f"v{d}", f"v{t}"], [f"v{d}"]),
            valu(f"v_cvt_pk_bf16_f32 v{d+1}, v{d+1}, v{t+1}", [f"v{d+1}", f"v{t+1}"], [f"v{d+1}"])]

def xlane_reduce(regs, op, tmp):
    o = []
    for swap in ("v_permlane32_swap_b32", "v_permlane16_swap_b32"):
        for n, r in enumerate(regs): o.append(valu(f"v_mov_b32 v{tmp+n}, v{r}", [f"v{r}"], [f"v{tmp+n}"]))
        o.append(nop(1))
        for n, r in enumerate(regs):
            o.append(valu(f"{swap} v{r}, v{tmp+n}", [f"v{r}", f"v{tmp+n}"], [f"v{r}", f"v{tmp+n}"]))
        o.append(nop(1))
        for n, r in enumerate(regs):
            o.append(valu(f"{op} v{r}, v{r}, v{tmp+n}", [f"v{r}", f"v{tmp+n}"], [f"v{r}"]))
    return o

def wpairs(): return [(L_X, L_X + 16384), (vslot(1), kslot(3)), (vslot(2), vslot(3))]
def wslot(tile):
    p = wpairs(); return p[(tile // 2) % len(p)][tile % 2]
XBUF = [V_S, V_P]
def xfrag(qb, cs): return XBUF[(cs // 2) & 1] + ((cs % 2) * 4 + qb) * 4
V_XD = [128, 129]
V_XR = [130, 131]
S_XB = 34
S_XCUR = 35
def x_setup():
    o = []; a = o.append
    L = f"v{V_LANE}"
    a(salu(f"s_and_b32 s{S_T1}, s{S_W}, 1")); a(salu(f"s_lshl_b32 s{S_T1}, s{S_T1}, 13"))
    a(salu(f"s_cmp_lt_u32 s{S_W}, 2")); a(salu(f"s_cselect_b32 s{S_XB}, 2, 4")); a(salu(f"s_lshl_b32 s{S_XB}, s{S_XB}, 14"))
    a(salu(f"s_add_u32 s{S_XB}, s{S_XB}, s{S_T1}"))
    assert kslot(2) == 2 << 14 and vslot(0) == 4 << 14
    a(valu(f"v_lshrrev_b32 v1, 3, {L}", [L], ["v1"])); a(valu(f"v_and_b32 v2, 7, {L}", [L], ["v2"]))
    a(valu(f"v_lshl_add_u32 v3, s{S_W}, 6, v1", ["v1", f"s{S_W}"], ["v3"]))
    a(valu("v_mul_u32_u24 v3, 896, v3", ["v3"], ["v3"]))
    a(valu("v_lshrrev_b32 v1, 1, v1", ["v1"], ["v1"]))
    for par in range(2):
        r = V_XD[par]
        a(valu(f"v_or_b32 v{r}, {4*par}, v1", ["v1"], [f"v{r}"]))
        a(valu(f"v_xor_b32 v{r}, v{r}, v2", [f"v{r}", "v2"], [f"v{r}"]))
        a(valu(f"v_lshl_add_u32 v{r}, v{r}, 4, v3", [f"v{r}", "v3"], [f"v{r}"]))
        a(valu(f"v_add_u32 v{V_XR[par]}, s{S_XB}, v{V_KA[par]}", [f"v{V_KA[par]}"], [f"v{V_XR[par]}"]))
    return o
def x_items(j):
    out = []
    for i in range(8):
        sreg = S_T2 + (i & 1)
        sc = []
        if i == 0 and j > 0: sc.append(salu(f"s_add_u32 s{S_XCUR}, s{S_XCUR}, s{S_XSTEP}", [f"s{S_XCUR}"], [f"s{S_XCUR}"]))
        sc.append(salu(f"s_add_u32 s{sreg}, s{S_XCUR}, {i*7168}", [f"s{S_XCUR}"], [f"s{sreg}"]))
        sc.append(salu(f"s_add_u32 m0, s{S_XB}, {i*1024}", [f"s{S_XB}"], ["m0"]))
        out.append((sc, tag(dma(V_XD[i & 1], S_X, f"s{sreg}", 0, OPT.x_flags), f"x{j}")))
    return out
def x_read(qb, cs): return ds_read128("v", xfrag(qb, cs), V_XR[cs & 1], qb * 2048)
def w_read(dbp, cs, jj):
    s, e = dbp >> 1, dbp & 1
    base = wslot(cs); win = base // 65536
    off = base - win * 65536 + (s >> 1) * 4096 + jj * 512 + e * 8
    return ds_read_tr("v", V_POOL + 4 * ((2 * dbp + (cs & 1)) % 8) + 2 * jj, V_WA[win][s & 1], off)

V_PF = 28
def coop_setup():
    o = []; a = o.append
    a(salu(f"s_mul_i32 s{S_T1}, s{S_H}, {112*128}"))
    a(salu(f"s_lshl_b32 s{S_T2}, s{S_W}, 12")); a(salu(f"s_add_u32 s{S_T1}, s{S_T1}, s{S_T2}"))
    a(valu(f"v_and_b32 v{V_PF}, 31, v{V_LANE}", [f"v{V_LANE}"], [f"v{V_PF}"]))
    a(valu(f"v_lshlrev_b32 v{V_PF}, 7, v{V_PF}", [f"v{V_PF}"], [f"v{V_PF}"]))
    a(valu(f"v_add_u32 v{V_PF}, s{S_T1}, v{V_PF}", [f"v{V_PF}"], [f"v{V_PF}"]))
    return o
def coop_x():
    return [tag(bload(V_PF + 1, 1, V_PF, S_X, "0", 0), "pf")]

def phase1():
    o = []; a = o.append
    NP = 3
    a(salu(f"s_lshr_b32 s{S_T1}, s2, 7")); a(salu(f"s_and_b32 s{S_T1}, s{S_T1}, {1 if OPT.rev else 0}"))
    a(salu(f"s_cmp_eq_u32 s{S_T1}, 0"))
    a(salu(f"s_cselect_b32 s{S_WCUR}, 0, {6*524288}")); a(salu(f"s_cselect_b32 s{S_T2}, 1, -1"))
    a(salu(f"s_cselect_b32 s{S_XCUR}, 0, 768"))
    a(salu(f"s_mul_i32 s{S_WSTEP}, s{S_T2}, 524288")); a(salu(f"s_mul_i32 s{S_XSTEP}, s{S_T2}, 128"))
    o += x_setup()
    if OPT.coopx: o += coop_setup() + coop_x()
    def w_items(j):
        out = []
        for par in range(2):
            sreg = S_WCUR if par == 0 else S_WOFF
            for m, (m0, d) in enumerate(dma_tile("W", wslot(2 * j + par), f"s{sreg}", f"W{j}")):
                sc = [m0]
                if m == 0 and par == 0 and j > 0: sc = [salu(f"s_add_u32 s{S_WCUR}, s{S_WCUR}, s{S_WSTEP}", [f"s{S_WCUR}"], [f"s{S_WCUR}"]), m0]
                if m == 0 and par == 1: sc = [salu(f"s_add_u32 s{S_WOFF}, s{S_WCUR}, 262144", [f"s{S_WCUR}"], [f"s{S_WOFF}"]), m0]
                out.append((sc, d))
        return out
    def kv_items(kind, t):
        out = []
        for m, (m0, d) in enumerate(dma_tile(kind, kslot(t) if kind == "K" else vslot(t), f"s{S_T0}", f"{kind}{t}")):
            out.append(([salu(f"s_mov_b32 s{S_T0}, {t*16384}", [], [f"s{S_T0}"]), m0] if m == 0 else [m0], d))
        return out
    def now(items):
        for sc, d in items:
            o.extend(sc); a(nop(0)); a(d)
    w0 = w_items(0)
    for sc, d in w0[4:]: d.meta["tag"] = "W0b"
    now(x_items(0)); now(w0[:4]); now(w0[4:])
    a(wait_tag("x0"))
    xr = [x_read(qb, cs) for cs in (0, 1) for qb in range(4)]
    o += xr
    a(wait_tag("W0")); a(barrier())
    o += stamp("p1_first_data")
    def quad0(n): return V_POOL + 4 * (n % 8)
    def w_read0(n, jj):
        dbp, cs = n % 16, n // 16
        r = w_read(dbp, cs, jj)
        return ds_read_tr("v", quad0(n) + 2 * jj, int(r.rd[0][1:]), int(r.text.split("offset:")[1]))
    carried = [x.wr for x in xr]
    for n in range(3):
        for jj in range(2):
            r = w_read0(n, jj); a(r); carried.append(r.wr)
    early = {j: [] for j in range(7)}; after = {j: [] for j in range(7)}
    early[0] += w_items(1); early[1] += w_items(2)
    for j in range(NP, 7): after[j - NP + 1] += w_items(j)
    K = lambda t: kv_items("K", t)
    V = lambda t: kv_items("V", t)
    kv = {"early": {1: K(0), 2: K(1)}, "mid": {2: K(0), 3: K(1)}, "late": {3: K(0), 4: K(1)}}[OPT.kvpf]
    for j, l in kv.items(): early[j] += l
    after[5] += V(0)
    early[6] += K(2) + V(1) + K(3)
    after[6] += V(2)
    for j in range(7):
        ms = []
        if j == 0:
            for n in range(32):
                for qb in range(4):
                    acc = ((n % 16) * 4 + qb) * 4
                    first = n < 16
                    ms.append(mfma("a", acc, "v", quad0(n), "v", xfrag(qb, n // 16), None if first else "a", None if first else acc))
        else:
            for dbp in range(16):
                for qb in range(4):
                    for e2 in range(2):
                        acc = (dbp * 4 + qb) * 4
                        ms.append(mfma("a", acc, "v", V_POOL + 4 * ((2 * dbp + e2) % 8), "v", xfrag(qb, 2 * j + e2), "a", acc))
        g = Gaps(ms)
        if j == 0:
            for n in range(3, 32):
                for jj in range(2): g.put_mem(4 * n - 12 + 2 * jj, w_read0(n, jj))
        else:
            for dbp in range(3, 16):
                for n, (cs, jj) in enumerate([(2*j, 0), (2*j, 1), (2*j+1, 0), (2*j+1, 1)]):
                    g.put_mem(8 * dbp - 24 + 2 * n, w_read(dbp, cs, jj))
        nxt = []
        if j < 6:
            for dbp in range(3):
                for n, (cs, jj) in enumerate([(2*j+2, 0), (2*j+2, 1), (2*j+3, 0), (2*j+3, 1)]):
                    r = w_read(dbp, cs, jj); g.put_mem(104 + (1 if j == 0 else 0) + 8 * dbp + 2 * n, r); nxt.append(r.wr)
        XG = OPT.x_rd_gap if j > 0 else OPT.x_rd_gap0
        xreads = []
        if j < 6:
            for n, (cs, qb) in enumerate([(cs, qb) for cs in (2*j+2, 2*j+3) for qb in range(4)]):
                r = x_read(qb, cs); g.put_mem(XG + 2 * n, r); xreads.append(r)
        if j == 0:
            cons = [(4 * n, R("v", quad0(n), 4) + (R("v", V_S, 32) if n == 0 else [])) for n in range(32)]
        else:
            cons = [(8 * dbp, R("v", V_POOL + 4 * ((2 * dbp) % 8), 8)) for dbp in range(16)]
        if j < 6: cons.append((XG + 24, [w for r in xreads for w in r.wr]))
        cons.sort()
        lead = add_lgkm_waits(g, cons, carried)
        if j < 6:
            k = XG - 2
            while g.pre[k]: k -= 1
            g.pre[k] = [wait_tag(f"x{j+1}")]
        tags = [f"W{j+1}"] if j < 6 else ["K0"]
        k = 100
        while g.pre[k]: k -= 1
        g.pre[k] = [wait_tag(*tags), barrier()] if not OPT.p1_nowait else [barrier()]
        kb = k
        gp = 1
        if j == 0:
            for sc, d in x_items(1): gp = place_vmem(g, gp, sc, d, XG - 3, stack=True) + 2
            k = 48
            while g.pre[k]: k -= 1
            g.pre[k] = [wait_tag("W0b"), barrier()]
            assert k < 52
        for sc, d in early[j]: gp = place_vmem(g, gp + len(sc) - 1, sc, d, kb) + (OPT.early_step if j != 6 else 7)
        if j < 5:
            gx = max(XG + 25, gp)
            for sc, d in x_items(j + 2): gx = place_vmem(g, gx, sc, d, stack=True) + 2
            gpa = max(kb + 2, gx)
        else: gpa = kb + 2
        for sc, d in after[j]: gpa = place_vmem(g, gpa, sc, d, stack=True) + 1
        left = []
        if j == 6:
            for dbp in range(16):
                for qb in range(4):
                    ops = conv_ops((dbp * 4 + qb) * 4, V_Q + (qb * 8 + (dbp >> 1)) * 4 + 2 * (dbp & 1), V_CT + 2 * (qb & 1))
                    if left: left += ops
                    else:
                        _, l2 = place_chain(g, ops, 8 * dbp + 2 * qb + 1 + 5, 128); left += l2
        if lead is not None: a(lead)
        em = g.emit()
        if OPT.p1_drop:
            def keep(x):
                if x.kind in ("dma", "vld"):
                    t = x.meta.get("tag", "")
                    for c in OPT.p1_drop:
                        if t.startswith(c): return False
                return True
            em = [x for x in em if keep(x)]
        if OPT.p1_noread: em = [x for x in em if x.kind != "ds" and not (x.kind == "wait" and "lgkm" in x.meta)]
        o += em
        carried = nxt
        if OPT.p1_steps: o += stamp(f"step{j}")
        if left: a(nop(7)); o += left
    if not OPT.p1_steps: o += stamp("p1_end")
    return o

def k_read(t, kb, s):
    return ds_read128("v", V_POOL + 4 * s, V_KA[s & 1], (kslot(t) - L_K) + (s >> 1) * 4096 + kb * 2048)
def v_read(t, db, jj):
    return ds_read_tr("v", V_POOL + 4 * (db % 8) + 2 * jj, V_VA[db & 3], (vslot(t) - L_V) + (db >> 2) * 4096 + jj * 2048)
def Sreg(kb, qb): return V_S + (kb * 4 + qb) * 4
def Preg(buf, qb): return V_P + buf * 16 + qb * 4
def qk_mfmas():
    ms = []
    for i in range(64):
        kb, sp, qb, e = i >> 5, (i >> 3) & 3, (i >> 1) & 3, i & 1
        s = 2 * sp + e; d = Sreg(kb, qb)
        ms.append(mfma("v", d, "v", V_POOL + 4 * s, "v", V_Q + (qb * 8 + s) * 4, None if s == 0 else "v", None if s == 0 else d))
    return ms
def pv_mfmas(t, first):
    ms = []
    for i in range(64):
        db, qb = i >> 2, i & 3
        acc = (db * 4 + qb) * 4
        ms.append(mfma("a", acc, "v", V_POOL + 4 * (db % 8), "v", Preg(t & 1, qb), None if first else "a", None if first else acc))
    return ms
def sm_group(tile, kb, qb):
    s = Sreg(kb, qb); p = Preg(tile & 1, qb) + 2 * kb; mc = V_MC + qb; l = V_L + qb
    f = lambda r: valu(f"v_fma_f32 v{s+r}, v{s+r}, s{S_C}, v{mc}", [f"v{s+r}", f"v{mc}", f"s{S_C}"], [f"v{s+r}"])
    x = lambda r: trans(f"v_exp_f32 v{s+r}, v{s+r}", [f"v{s+r}"], [f"v{s+r}"])
    ad = lambda r: valu(f"v_add_f32 v{l}, v{l}, v{s+r}", [f"v{l}", f"v{s+r}"], [f"v{l}"])
    cv = lambda r: valu(f"v_cvt_pk_bf16_f32 v{p+r//2}, v{s+r}, v{s+r+1}", [f"v{s+r}", f"v{s+r+1}"], [f"v{p+r//2}"])
    return [f(0), f(1), x(0), x(1), f(2), f(3), x(2), x(3), ad(0), ad(1), cv(0), ad(2), ad(3), cv(2)]

def pre_iter():
    o = []; a = o.append
    carried = []
    for s in range(8):
        r = k_read(0, 0, s); a(r); carried.append(r.wr)
    g = Gaps(qk_mfmas())
    for s in range(8): g.put_mem(8 * (s >> 1) + 10 + 4 * (s & 1), k_read(0, 1, s))
    cons = [(8 * p, R("v", V_POOL + 8 * (p % 4), 8)) for p in range(8)]
    a(add_lgkm_waits(g, cons, carried)); o += g.emit()
    a(wait_tag("K1", "V0")); a(barrier())
    a(salu(f"s_mov_b32 s{S_KOFF}, {4*16384}"))
    for m0, d in dma_tile("K", kslot(4), f"s{S_KOFF}", "K4"): a(m0); a(nop(0)); a(d)
    a(salu(f"s_mov_b32 s{S_KOFF}, {5*16384}")); a(salu(f"s_mov_b32 s{S_VOFF}, {3*16384}"))
    carried = []
    for s in range(8):
        r = k_read(1, 0, s); a(r); carried.append(r.wr)
    for qb in range(4):
        m = V_MC + qb; s0 = Sreg(0, qb); s1 = Sreg(1, qb)
        a(valu(f"v_max3_f32 v{m}, v{s0}, v{s0+1}, v{s0+2}", R("v", s0, 3), [f"v{m}"]))
        a(valu(f"v_max3_f32 v{m}, v{m}, v{s0+3}, v{s1}", [f"v{m}", f"v{s0+3}", f"v{s1}"], [f"v{m}"]))
        a(valu(f"v_max3_f32 v{m}, v{m}, v{s1+1}, v{s1+2}", [f"v{m}", f"v{s1+1}", f"v{s1+2}"], [f"v{m}"]))
        a(valu(f"v_max_f32 v{m}, v{m}, v{s1+3}", [f"v{m}", f"v{s1+3}"], [f"v{m}"]))
    o += xlane_reduce([V_MC + q for q in range(4)], "v_max_f32", V_SP)
    for qb in range(4):
        m = V_MC + qb
        a(valu(f"v_mul_f32 v{m}, s{S_C}, v{m}", [f"v{m}", f"s{S_C}"], [f"v{m}"]))
        a(valu(f"v_sub_f32 v{m}, 0, v{m}", [f"v{m}"], [f"v{m}"]))
        a(valu(f"v_mov_b32 v{V_L+qb}, 0", [], [f"v{V_L+qb}"]))
    for kb, qb in [(0, 0), (0, 1), (0, 2), (0, 3), (1, 0), (1, 1)]: o += exposed(sm_group(0, kb, qb))
    o += stamp("pre_iter_end")
    return o, carried

def attn_iter(t, carried, vmw, prev, cur, first=False, adv=True, loopctl=False, extra=None, loop_body=False):
    g = Gaps(qk_mfmas() + pv_mfmas(t, first))
    for s in range(8): g.put_mem(8 * (s >> 1) + 10 + 4 * (s & 1), k_read(t + 1, 1, s))
    for db in range(16):
        for jj in range(2): g.put_mem(44 + 4 * db + 2 * jj, v_read(t, db, jj))
    nxt = []
    if t + 2 <= 31:
        for s, gap in zip(range(8), [108, 110, 112, 114, 116, 120, 124, 127]):
            r = k_read(t + 2, 0, s); g.put_mem(gap, r); nxt.append(r.wr)
    else:
        for db in range(5):
            for jj in range(2):
                r = v_read(t + 1, db, jj); g.put_mem(108 + 4 * db + 2 * jj, r); nxt.append(r.wr)
    cons = [(8 * p, R("v", V_POOL + 8 * (p % 4), 8)) for p in range(8)]
    cons += [(64 + 4 * db, R("v", V_POOL + 4 * (db % 8), 4)) for db in range(16)]
    lead = add_lgkm_waits(g, cons, carried)
    kb = 98
    while g.pre[kb]: kb -= 1
    g.pre[kb] = [vmw, barrier()]
    if OPT.bar_stamps and loop_body:
        g.pre[kb] = [raw("s_memtime s[94:95]", "salu"), vmw, raw("s_memtime s[96:97]", "salu"), barrier(), raw("s_memtime s[98:99]", "salu"),
                     raw("s_waitcnt lgkmcnt(0)", "wait", lgkm=0),
                     salu("s_sub_u32 s96, s96, s94"), salu("s_add_u32 s92, s92, s96"),
                     salu("s_sub_u32 s98, s98, s94"), salu("s_add_u32 s93, s93, s98")]
    gp_prev, gp_cur = OPT.dma_gaps
    placed = [place_vmem(g, gap, [m0], d, kb) for gap, (m0, d) in zip(gp_prev, prev)]
    for gap, (m0, d) in zip(gp_cur, cur): place_vmem(g, gap, [m0], d)
    if adv:
        for reg, srd, at in ((S_VOFF, S_V, (placed[OPT.nv_prev - 1] if OPT.nv_prev else 1) + 1), (S_KOFF, S_K, placed[-1] + 1)):
            k = put_scalar(g, at, salu(f"s_add_u32 s{reg}, s{reg}, 16384", [f"s{reg}"], [f"s{reg}"]))
            k = put_scalar(g, k + 1, salu(f"s_cmp_lt_u32 s{reg}, 524288", [f"s{reg}"], ["scc"]),
                           salu(f"s_cselect_b32 s{srd+2}, 524288, 0", ["scc"], [f"s{srd+2}"]))
            assert k < 100
    if loopctl:
        k = put_scalar(g, 119, salu(f"s_sub_u32 s{S_LOOP}, s{S_LOOP}, 1", [f"s{S_LOOP}"], [f"s{S_LOOP}"]))
        k = put_scalar(g, k + 1, salu(f"s_cmp_lg_u32 s{S_LOOP}, 0", [f"s{S_LOOP}"], ["scc"]))
        assert k <= 127
        for kk in range(k + 1, 128):
            assert all(x.kind == "wait" for x in g.pre[kk]), "SCC clobbered before the loop branch"
    if extra: extra(g, kb)
    ops = []
    for qb in (2, 3): ops += sm_ops(t, 1, qb, 0, 31 + 2 * qb)
    for qb in range(4): ops += sm_ops(t + 1, 0, qb, 25 + 2 * qb + 6, 100 + 6 * qb)
    for qb in (0, 1): ops += sm_ops(t + 1, 1, qb, 57 + 2 * qb + 6, 124 + 3 * qb)
    left = list_schedule(g, ops)
    assert not left, f"softmax groups do not fit: {len(left)} left"
    return [lead] + g.emit(), nxt

def last_iter(carried):
    o = []; a = o.append
    for qb in (2, 3): o += exposed(sm_group(31, 1, qb))
    o += xlane_reduce([V_L + q for q in range(4)], "v_add_f32", V_SP)
    for qb in range(4): a(trans(f"v_rcp_f32 v{V_L+qb}, v{V_L+qb}", [f"v{V_L+qb}"], [f"v{V_L+qb}"]))
    a(nop(0))
    g = Gaps(pv_mfmas(31, False))
    for db in range(5, 8):
        for jj in range(2): g.put_mem(4 * (db - 5) + 2 * jj, v_read(31, db, jj))
    for db in range(8, 16):
        for jj in range(2): g.put_mem(12 + 4 * (db - 8) + 2 * jj, v_read(31, db, jj))
    cons = [(4 * db, R("v", V_POOL + 4 * (db % 8), 4)) for db in range(16)]
    lead = add_lgkm_waits(g, cons, carried)
    gp = put_wo(g, 2, 2, step=0)
    put_wo(g, 3, gp, step=0)
    left = []
    for db in range(16):
        for qb in range(4):
            ops = conv_ops((db * 4 + qb) * 4, V_Q + (qb * 8 + (db >> 1)) * 4 + 2 * (db & 1), V_SP + 8 + 2 * (qb & 1))
            if left: left += ops
            else:
                _, l2 = place_chain(g, ops, 4 * db + qb + 5, 64); left += l2
    a(lead); o += g.emit()
    a(nop(7)); o += left
    return o

WOBUF = [L_X, L_K, L_K + 32768, L_V, L_V + 32768, L_X, L_K]
V_DWO = 3; V_STO = V_DV
V_FR3 = 32; V_ACC3 = V_P; V_STG = 16
def wo_dma(j):
    out = []
    for i in range(8):
        sreg = S_T0 + (i & 1)
        out.append(([salu(f"s_mov_b32 s{sreg}, {j*128 + i*32*896}", [], [f"s{sreg}"]),
                     salu(f"s_add_u32 m0, s{S_W1K}, {WOBUF[j] + i*4096}", [f"s{S_W1K}"], ["m0"])],
                    tag(dma(V_DWO, S_WO, f"s{sreg}", 0, OPT.wo_flags), f"wo{j}")))
    return out
def wo_setup():
    o = []; a = o.append
    L = f"v{V_LANE}"
    a(valu(f"v_lshrrev_b32 v1, 3, {L}", [L], ["v1"])); a(valu(f"v_and_b32 v2, 7, {L}", [L], ["v2"]))
    a(valu(f"v_lshl_add_u32 v3, s{S_W}, 3, v1", ["v1", f"s{S_W}"], ["v3"]))
    a(valu("v_bfe_u32 v1, v1, 1, 2", ["v1"], ["v1"])); a(valu("v_lshlrev_b32 v1, 1, v1", ["v1"], ["v1"]))
    a(valu("v_xor_b32 v1, v1, v2", ["v1", "v2"], ["v1"])); a(valu("v_lshlrev_b32 v1, 4, v1", ["v1"], ["v1"]))
    a(valu("v_mul_u32_u24 v3, 896, v3", ["v3"], ["v3"]))
    a(valu(f"v_add_u32 v{V_DWO}, v3, v1", ["v3", "v1"], [f"v{V_DWO}"]))
    return o
def put_wo(g, j, start, hi=None, step=3):
    gp = start
    for sc, d in wo_dma(j): gp = place_vmem(g, gp, sc, d, hi) + step
    return gp
def wo_read(nb, s, jj):
    return ds_read_tr("v", V_FR3 + 4 * (8 * (nb & 1) + s) + 2 * jj, V_VA[nb], s * 4096 + jj * 2048)
def va_shift(delta):
    t = (lambda r: f"v_add_u32 v{r}, {delta}, v{r}") if delta >= 0 else (lambda r: f"v_subrev_u32 v{r}, {-delta}, v{r}")
    return [valu(t(r), [f"v{r}"], [f"v{r}"]) for r in V_VA]

def part_ops(nb, qb):
    acc = V_ACC3 + 4 * ((nb * 4 + qb) % 8)
    st = V_STG + 4 * qb + 2 * (nb & 1)
    li = V_L + qb
    ops = [valu(f"v_mul_f32 v{acc+r}, v{acc+r}, v{li}", [f"v{acc+r}", f"v{li}"], [f"v{acc+r}"]) for r in range(4)]
    ops += [valu(f"v_cvt_pk_bf16_f32 v{st}, v{acc}, v{acc+1}", [f"v{acc}", f"v{acc+1}"], [f"v{st}"]),
            valu(f"v_cvt_pk_bf16_f32 v{st+1}, v{acc+2}, v{acc+3}", [f"v{acc+2}", f"v{acc+3}"], [f"v{st+1}"])]
    return ops

def phase3():
    o = []; a = o.append
    o += stamp("p3_start")
    a(salu(f"s_mul_i32 s{S_PART}, s{S_G}, {7*16*16*2048}"))
    a(salu(f"s_lshl_b32 s{S_T2}, s{S_W}, 17")); a(salu(f"s_add_u32 s{S_PART}, s{S_PART}, s{S_T2}"))
    a(salu(f"s_lshl_b32 s{S_T2}, s{S_H}, 11")); a(salu(f"s_add_u32 s{S_PART}, s{S_PART}, s{S_T2}"))
    a(valu(f"v_lshlrev_b32 v{V_STO}, 4, v{V_LANE}", [f"v{V_LANE}"], [f"v{V_STO}"]))
    o += va_shift(WOBUF[0] - L_V)
    a(wait_tag("wo0")); a(barrier())
    carried = []
    for s in range(8):
        for jj in range(2):
            r = wo_read(0, s, jj); a(r); carried.append(r.wr)
            if len(carried) == 14: a(wait_lgkm(6)); carried = carried[-6:]
    for sc, d in wo_dma(4): o += sc + [nop(0), d]
    for j in range(7):
        ms = []
        for nb in range(4):
            for qb in range(4):
                acc = V_ACC3 + 4 * ((nb * 4 + qb) % 8)
                for s in range(8):
                    ms.append(mfma("v", acc, "v", V_FR3 + 4 * (8 * (nb & 1) + s), "v", V_Q + (qb * 8 + s) * 4,
                                   None if s == 0 else "v", None if s == 0 else acc))
        g = Gaps(ms)
        nxt = []
        for nb in range(3):
            for s in range(8):
                for jj in range(2): g.put_mem(32 * nb + 4 * s + 2 * jj, wo_read(nb + 1, s, jj))
        if j < 6:
            for s in range(8):
                for jj in range(2):
                    r = wo_read(0, s, jj); g.put_mem(96 + 4 * s + 2 * jj, r); nxt.append(r.wr)
        cons = [(32 * nb + s, R("v", V_FR3 + 4 * (8 * (nb & 1) + s), 4)) for nb in range(4) for s in (0, 2, 4, 6)]
        cons = [(k, R("v", V_FR3 + 4 * (8 * ((k >> 5) & 1) + (k & 7)), 8)) for k, _ in cons]
        lead = add_lgkm_waits(g, cons, carried)
        if j < 6:
            k = 93
            while g.pre[k]: k -= 1
            g.pre[k] = [wait_tag(f"wo{j+1}"), barrier()]
            sh = va_shift(WOBUF[j + 1] - WOBUF[j])
            assert g.place_vec(sh[0], 91, 96) is not None
            assert g.place_vec(sh[1], 40, 96) is not None
            assert g.place_vec(sh[2], 66, 96) is not None
            assert g.place_vec(sh[3], 97, 128) is not None
        if j in (2, 3): put_wo(g, j + 3, 3, step=6)
        tail = []
        for nb in range(4):
            for qb in range(4):
                lo, left = place_chain(g, part_ops(nb, qb), 32 * nb + 8 * qb + 7 + 8, 128)
                st = None
                if nb & 1:
                    so = j * 16 * 16 * 2048 + qb * 16 * 2048 + (nb >> 1) * 1024
                    sreg = S_T2 + (qb & 1)
                    st = (salu(f"s_add_u32 s{sreg}, s{S_PART}, {so}", [f"s{S_PART}"], [f"s{sreg}"]),
                          tag(bstore(V_STG + 4 * qb, 4, V_STO, S_WS, f"s{sreg}", 0, OPT.st_flags), f"st{j}"))
                if left or tail:
                    tail += left
                    if st: tail += [st[0], nop(1), st[1]]
                elif st:
                    k = lo + 2
                    while k < 128 and (g.mem[k] is not None or g.vec[k] or g.pre[k - 1] or len(g.pre[k]) > 1): k += 1
                    if k >= 128: tail += [st[0], nop(1), st[1]]
                    else: g.put_pre(k - 1, st[0]); g.put_mem(k, st[1])
        if lead is not None: a(lead)
        o += g.emit()
        if tail: a(nop(7)); o += exposed(tail)
        carried = nxt
    o += stamp("p3_end") + [wait_vm(0)] * (1 if OPT.stamps else 0) + stamp("rt_end")
    return o

def dump_regs(base, n, agpr=False):
    o = [wait_vm(0), raw("s_waitcnt lgkmcnt(0)", "wait", lgkm=0), nop(7), nop(7),
         salu(f"s_lshl_b32 s{S_T0}, s2, 2"), salu(f"s_add_u32 s{S_T0}, s{S_T0}, s{S_W}"),
         salu(f"s_mul_i32 s{S_T0}, s{S_T0}, {n*256}"), valu(f"v_lshlrev_b32 v1, 2, v{V_LANE}", [f"v{V_LANE}"], ["v1"])]
    for r in range(n):
        if agpr:
            o.append(valu(f"v_accvgpr_read_b32 v2, a{base+r}", [f"a{base+r}"], ["v2"])); o.append(bstore(2, 1, 1, S_WS, f"s{S_T0}", 0))
        else:
            o.append(bstore(base + r, 1, 1, S_WS, f"s{S_T0}", 0))
        o.append(salu(f"s_add_u32 s{S_T0}, s{S_T0}, 256"))
        if r % 32 == 31 or agpr: o.append(wait_vm(0))
    return o

def stamp_out():
    if not OPT.stamps: return []
    if OPT.bar_stamps: STAMPS.extend(["acc_vm", "acc_bar"])
    n = len(STAMPS)
    o = [raw("s_waitcnt lgkmcnt(0)", "wait", lgkm=0), salu(f"s_cmp_lg_u32 s{S_W}, 0"), raw("s_cbranch_scc1 L_nostamp", "branch")]
    if OPT.stamp_dbg >= 0:
        o += [salu(f"s_cmp_lg_u32 s2, {OPT.stamp_dbg}"), raw("s_cbranch_scc1 L_nostamp", "branch")]
        o += [salu("s_load_dwordx2 s[36:37], s[0:1], 88"), raw("s_waitcnt lgkmcnt(0)", "wait", lgkm=0)]
        o += [salu(f"s_mov_b32 s{S_WS}, s36"), salu(f"s_mov_b32 s{S_WS+1}, s37"), salu(f"s_mov_b32 s{S_WS+2}, 256"), salu(f"s_mov_b32 s{S_T0}, 0")]
    else:
        o.append(salu(f"s_mul_i32 s{S_T0}, s2, 64")); o.append(salu(f"s_add_u32 s{S_T0}, s{S_T0}, {16*7*16*16*2048}"))
        o.append(salu(f"s_mov_b32 s{S_WS+2}, {16*7*16*16*2048 + 256*64}"))
    if OPT.trip_stamps:
        o += [valu(f"v_lshlrev_b32 v2, 2, v{V_LANE}", [], ["v2"]), salu(f"s_mul_i32 s{S_T1}, s2, 64"),
              salu(f"s_add_u32 s{S_T1}, s{S_T1}, {16*7*16*16*2048 + 256*64}"), salu(f"s_mov_b32 s{S_WS+2}, {16*7*16*16*2048 + 2*256*64}"),
              valu("v_cmp_gt_u32 vcc, 16, v0", ["v0"], ["vcc"]), raw("s_and_saveexec_b64 s[36:37], vcc", "salu"),
              bstore(1, 1, 2, S_WS, f"s{S_T1}", 0), wait_vm(0), raw("s_mov_b64 exec, s[36:37]", "salu")]
    o.append(valu("v_mov_b32 v1, 0", [], ["v1"]))
    for k in range(n):
        if OPT.stamp_dbg >= 0:
            ref = 0 if STAMPS[k].startswith("rt") else 1
            o.append(salu(f"s_sub_u32 s{S_T1}, s{S_STAMP+2*k}, s{S_STAMP+2*ref}"))
            o.append(valu(f"v_mov_b32 v2, s{S_T1}", [], ["v2"]))
        elif STAMPS[k] == "acc_vm": o.append(valu("v_mov_b32 v2, s92", [], ["v2"]))
        elif STAMPS[k] == "acc_bar": o.append(valu("v_mov_b32 v2, s93", [], ["v2"]))
        else:
            o.append(valu(f"v_mov_b32 v2, s{S_STAMP+2*k}", [], ["v2"]))
        o.append(bstore(2, 1, 1, S_WS, f"s{S_T0}", 4 * k)); o.append(wait_vm(0))
    o.append(label("L_nostamp"))
    return o

def finish(): return [wait_vm(0), label("L_end"), raw("s_endpgm", "branch")]

def build(debug=None):
    _stamp_n[0] = 0; STAMPS.clear()
    pre = setup() + phase1()
    if debug == "p1":
        pre += stamp("rt_end")
        resolve_vm(pre, [])
        return pre + stamp_out() + finish()
    if debug == "q":
        resolve_vm(pre, []); check(pre, "pre")
        return pre + dump_regs(V_Q, 128) + finish()
    if OPT.dma_mode == "cluster":
        OPT.dma_gaps = ([21, 23, 25, 27], [101, 103, 105, 107]); OPT.nv_prev = 0
    elif OPT.dma_mode == "cluster2":
        OPT.dma_gaps = ([41, 43, 47, 49], [101, 103, 105, 107]); OPT.nv_prev = 0
    NCUR = len(OPT.dma_gaps[1])
    p, carried = pre_iter(); pre += p
    def batch(t):
        return dma_tile("V", vslot(t + 3), f"s{S_VOFF}", f"V{t+3}") + dma_tile("K", kslot(t + 5), f"s{S_KOFF}", f"K{t+5}")
    pre += wo_setup()
    s0, carried = attn_iter(0, carried, wait_tag("V1", "K2"), [], batch(0)[:NCUR], first=True, adv=False,
                            extra=lambda g, kb: put_wo(g, 0, 3, kb, step=8))
    pre += s0
    pre.append(salu(f"s_mov_b32 s{S_LOOP}, 7"))
    if OPT.bar_stamps: pre += [salu("s_mov_b32 s92, 0"), salu("s_mov_b32 s93, 0")]
    pre += stamp("loop_start") + (stamp("rt_ls") if OPT.bar_stamps else [])
    loop = [label("L_attn")]
    for u in range(4):
        t = 1 + u
        s, carried = attn_iter(t, carried, wait_vm(12), batch(t - 1)[NCUR:], batch(t)[:NCUR], loopctl=(u == 3), loop_body=True)
        loop += s
    if OPT.trip_stamps:
        loop += [raw("s_memtime s[98:99]", "salu"), raw("s_waitcnt lgkmcnt(0)", "wait", lgkm=0),
                 salu(f"s_mov_b32 s99, m0"), salu(f"s_mov_b32 m0, s{S_LOOP}"), nop(0), valu(f"v_writelane_b32 v1, s98, m0", ["s98"], ["v1"]),
                 salu("s_mov_b32 m0, s99"), salu(f"s_cmp_lg_u32 s{S_LOOP}, 0")]
    if OPT.loop_nodma: loop = [x for x in loop if x.kind != "dma"]
    if OPT.loop_nods: loop = [x for x in loop if x.kind != "ds" and not (x.kind == "wait" and "lgkm" in x.meta and x.meta["lgkm"] > 0)]
    if OPT.loop_nomfma: loop = [(nop(1) if x.kind == "mfma" else x) for x in loop]
    if OPT.loop_novalu: loop = [x for x in loop if x.kind not in ("valu", "trans")]
    if OPT.loop_dma_every > 1:
        cnt = [0]
        def keep(x):
            if x.kind != "dma": return True
            cnt[0] += 1
            return cnt[0] % OPT.loop_dma_every == 0
        loop = [x for x in loop if keep(x)]
    loop.append(raw("s_cbranch_scc1 L_attn", "branch"))
    post = stamp("loop_end") + (stamp("rt_le") if OPT.bar_stamps else [])
    s, carried = attn_iter(29, carried, wait_tag("V30", "K32"), batch(28)[NCUR:4], [], adv=False)
    post += s
    def ex30(g, kb):
        put_wo(g, 1, 3, kb, step=8)
    s, carried = attn_iter(30, carried, wait_tag("V31"), [], [], adv=False, extra=ex30)
    post += s
    post += last_iter(carried)
    post += stamp("attn_end")
    if debug == "o":
        tailq = dump_regs(V_Q, 128)
    elif debug == "l":
        tailq = dump_regs(V_L, 4)
    else:
        tailq = phase3()
    post += tailq
    q = resolve_vm(pre, [])
    qexit = ["V30"] * 4 + ["K32"] * 4 + ["V31"] * NCUR
    resolve_vm(post, qexit)
    if not (OPT.p1_nowait or OPT.p1_noread or OPT.p1_drop or OPT.loop_nodma or OPT.loop_dma_every > 1 or OPT.loop_nods or OPT.loop_nomfma or OPT.loop_novalu): check(pre + loop[1:] + loop[1:], "pre+loop")
    if not (OPT.loop_nodma or OPT.loop_dma_every > 1 or OPT.loop_nods or OPT.loop_nomfma or OPT.loop_novalu): check(loop[1:] + post, "loop+post", init_lgkm=[x.wr for x in pre if x.kind == "ds"][-8:], init_vm=[[]] * (8 + NCUR))
    return pre + loop + post + stamp_out() + finish()

def reduce_kernel():
    o = []; a = o.append
    a(salu("s_cmp_ge_u32 s2, 256")); a(raw("s_cbranch_scc1 R_end", "branch"))
    a(salu("s_load_dwordx2 s[4:5], s[0:1], 80")); a(salu("s_load_dwordx2 s[6:7], s[0:1], 96"))
    a(valu("v_lshrrev_b32 v1, 6, v0", ["v0"], ["v1"])); a(valu("v_and_b32 v0, 63, v0", ["v0"], ["v0"]))
    a(valu("v_readfirstlane_b32 s32, v1", ["v1"], ["s32"]))
    a(salu("s_lshr_b32 s33, s2, 4")); a(salu("s_and_b32 s34, s2, 15"))
    a(salu("s_lshr_b32 s35, s33, 3")); a(salu("s_and_b32 s36, s33, 7"))
    a(salu("s_lshr_b32 s37, s32, 1")); a(salu("s_and_b32 s38, s32, 1"))
    a(valu("v_lshrrev_b32 v2, 5, v0", ["v0"], ["v2"])); a(valu("v_lshlrev_b32 v2, 11, v2", ["v2"], ["v2"]))
    a(valu("v_and_b32 v3, 31, v0", ["v0"], ["v3"])); a(valu("v_lshl_add_u32 v2, v3, 4, v2", ["v3", "v2"], ["v2"]))
    a(salu("s_lshl_b32 s39, s37, 10")); a(salu("s_lshl_b32 s40, s38, 9")); a(salu("s_add_u32 s39, s39, s40"))
    a(valu("v_add_u32 v2, s39, v2", ["v2"], ["v2"]))
    a(valu("v_and_b32 v8, 15, v0", ["v0"], ["v8"])); a(valu("v_lshrrev_b32 v9, 4, v0", ["v0"], ["v9"]))
    a(valu("v_lshrrev_b32 v10, 3, v8", ["v8"], ["v10"])); a(valu("v_and_b32 v11, 1, v9", ["v9"], ["v11"]))
    a(valu("v_and_b32 v12, 1, v8", ["v8"], ["v12"])); a(valu("v_lshlrev_b32 v12, 4, v12", ["v12"], ["v12"]))
    a(valu("v_mov_b32 v13, 0x3f80", [], ["v13"])); a(valu("v_lshlrev_b32 v13, v12, v13", ["v12", "v13"], ["v13"]))
    a(valu("v_cmp_eq_u32 vcc, v10, v11", ["v10", "v11"], ["vcc"])); a(nop(1))
    a(valu("v_cndmask_b32 v13, 0, v13, vcc", ["v13", "vcc"], ["v13"]))
    a(valu("v_bfe_u32 v14, v8, 1, 2", ["v8"], ["v14"]))
    for r in range(4):
        a(valu(f"v_cmp_eq_u32 vcc, {r}, v14", ["v14"], ["vcc"])); a(nop(1))
        a(valu(f"v_cndmask_b32 v{4+r}, 0, v13, vcc", ["v13", "vcc"], [f"v{4+r}"]))
    a(salu("s_lshl_b32 s41, s36, 8")); a(salu("s_lshl_b32 s42, s34, 4")); a(salu("s_add_u32 s41, s41, s42"))
    a(valu("v_add_u32 v3, s41, v8", ["v8"], ["v3"])); a(valu("v_mul_u32_u24 v3, 896, v3", ["v3"], ["v3"]))
    a(salu("s_mul_i32 s42, s35, 448")); a(salu("s_lshl_b32 s43, s37, 5")); a(salu("s_add_u32 s42, s42, s43"))
    a(salu("s_lshl_b32 s43, s38, 3")); a(salu("s_add_u32 s42, s42, s43"))
    a(valu("v_add_u32 v3, s42, v3", ["v3"], ["v3"]))
    a(valu("v_lshl_add_u32 v3, v11, 4, v3", ["v11", "v3"], ["v3"]))
    a(valu("v_lshrrev_b32 v10, 1, v9", ["v9"], ["v10"])); a(valu("v_lshl_add_u32 v3, v10, 2, v3", ["v10", "v3"], ["v3"]))
    a(valu("v_lshlrev_b32 v3, 1, v3", ["v3"], ["v3"]))
    a(raw("s_waitcnt lgkmcnt(0)", "wait", lgkm=0))
    for base, lo, size in ((8, 6, 16 * 7 * 16 * 16 * 2048), (12, 4, 8 * 256 * 896 * 2)):
        a(salu(f"s_mov_b32 s{base}, s{lo}")); a(salu(f"s_mov_b32 s{base+1}, s{lo+1}"))
        a(salu(f"s_mov_b32 s{base+2}, {size}")); a(salu(f"s_mov_b32 s{base+3}, 0x20000"))
    a(salu(f"s_mul_i32 s44, s33, {7*16*32768}")); a(salu("s_lshl_b32 s45, s34, 15")); a(salu("s_add_u32 s44, s44, s45"))
    for j in range(7):
        for i in range(8):
            a(salu(f"s_add_u32 s46, s44, {j*16*32768 + i*4096}"))
            a(tag(bload(16 + (j * 8 + i) * 4, 4, 2, 8, "s46", 0), f"p{j}"))
    for j in range(7):
        a(wait_tag(f"p{j}"))
        d = 240 + 4 * (j & 1)
        for i in range(8):
            a(mfma("v", d, "v", 4, "v", 16 + (j * 8 + i) * 4, None if i == 0 else "v", None if i == 0 else d))
        a(nop(7))
        a(valu(f"v_cvt_pk_bf16_f32 v{d}, v{d}, v{d+1}", [f"v{d}", f"v{d+1}"], [f"v{d}"]))
        a(valu(f"v_cvt_pk_bf16_f32 v{d+1}, v{d+2}, v{d+3}", [f"v{d+2}", f"v{d+3}"], [f"v{d+1}"]))
        a(tag(bstore(d, 2, 3, 12, "0", j * 128), "o"))
    resolve_vm(o, []); check(o, "reduce")
    if OPT.stamps and OPT.stamp_fwd >= 0:
        o += [wait_vm(0), salu("s_cmp_lg_u32 s2, 0"), raw("s_cbranch_scc1 R_end", "branch"),
              salu("s_load_dwordx2 s[20:21], s[0:1], 88"), raw("s_waitcnt lgkmcnt(0)", "wait", lgkm=0),
              salu("s_mov_b32 s16, s20"), salu("s_mov_b32 s17, s21"), salu("s_mov_b32 s18, 64"), salu("s_mov_b32 s19, 0x20000"),
              salu(f"s_mov_b32 s10, {16*7*16*16*2048 + 256*64}"), salu(f"s_mov_b32 s46, {16*7*16*16*2048} + 64*{OPT.stamp_fwd}"),
              valu("v_lshlrev_b32 v2, 2, v0", ["v0"], ["v2"]), bload(3, 1, 2, 8, "s46", 0), wait_vm(0), bstore(3, 1, 2, 16, "0", 0)]
    o += [wait_vm(0), label("R_end"), raw("s_endpgm", "branch")]
    return o

KD = """.section .rodata,"a"
.p2align 6
.amdhsa_kernel {name}
  .amdhsa_next_free_vgpr {vgpr}
  .amdhsa_next_free_sgpr 102
  .amdhsa_accum_offset 256
  .amdhsa_group_segment_fixed_size 0
  .amdhsa_kernarg_size 104
  .amdhsa_user_sgpr_count 2
  .amdhsa_user_sgpr_kernarg_segment_ptr 1
  .amdhsa_system_sgpr_workgroup_id_x 1
.end_amdhsa_kernel
"""
def header_comments():
    ref = open("cdna_kernels/" + NAME + ".s.ref").read().splitlines()
    out = []
    for l in ref:
        if l.startswith("; Override launch") or not l.startswith(";"): break
        out.append(l)
    return out

def stream_kernel():
    t = """
  s_cmp_ge_u32 s2, 256
  s_cbranch_scc1 S_end
  s_load_dwordx2 s[4:5], s[0:1], 8
  s_load_dwordx2 s[6:7], s[0:1], 96
  s_load_dwordx2 s[8:9], s[0:1], 48
  v_lshrrev_b32 v2, 6, v0
  s_nop 0
  v_readfirstlane_b32 s24, v2
  v_and_b32 v1, 63, v0
  v_lshlrev_b32 v14, 4, v1
  s_nop 2
  s_lshl_b32 s25, s24, 12
  v_add_u32 v14, s25, v14
  s_waitcnt lgkmcnt(0)
  s_cmp_lt_u32 s2, 128
  s_cselect_b32 s36, s4, s8
  s_cselect_b32 s37, s5, s9
  s_mov_b32 s38, 0x4000000
  s_mov_b32 s39, 0x20000
  s_and_b32 s32, s2, 127
  s_lshl_b32 s32, s32, 19
  s_barrier
  s_memrealtime s[12:13]
  s_mov_b32 s20, 0
S_loop:
  s_mov_b32 m0, s25
  s_nop 0
  buffer_load_dwordx4 v14, s[36:39], s32 offen nt lds
  buffer_load_dwordx4 v14, s[36:39], s32 offen offset:1024 nt lds
  buffer_load_dwordx4 v14, s[36:39], s32 offen offset:2048 nt lds
  buffer_load_dwordx4 v14, s[36:39], s32 offen offset:3072 nt lds
  s_add_u32 s32, s32, 16384
  s_waitcnt vmcnt(8)
  s_barrier
  s_add_u32 s20, s20, 1
  s_cmp_lt_u32 s20, 32
  s_cbranch_scc1 S_loop
  s_waitcnt vmcnt(0)
  s_barrier
  s_memrealtime s[16:17]
  s_waitcnt lgkmcnt(0)
  s_sub_u32 s16, s16, s12
  s_mov_b32 s40, s6
  s_mov_b32 s41, s7
  s_mov_b32 s42, %d
  s_mov_b32 s43, 0x20000
  s_mul_i32 s33, s2, 64
  s_add_u32 s33, s33, %d
  v_mov_b32 v2, s16
  v_mov_b32 v1, 0
  buffer_store_dword v2, v1, s[40:43], s33 offen
  s_waitcnt vmcnt(0)
S_end:
  s_endpgm""" % (16*7*16*16*2048 + 256*64, 16*7*16*16*2048 + 60)
    return t

def assemble_file(debug=None):
    main = build(debug)
    red = reduce_kernel()
    k1 = NAME + "_kernel"; k2 = "reduce_heads_kernel"
    L = header_comments()
    if OPT.stream0: L.append(f"; @launch kernel=stream_test_kernel grid=(256,1,1) block=(256,1,1) lds={LDS_BYTES}")
    L.append(f"; @launch kernel={k1} grid=(256,1,1) block=(256,1,1) lds={LDS_BYTES}")
    if debug is None: L.append(f"; @launch kernel={k2} grid=(256,1,1) block=(256,1,1) lds=0")
    L.append('.amdgcn_target "amdgcn-amd-amdhsa--gfx950"')
    L.append(".text")
    for nm, body in ((k1, main), (k2, red)):
        L += [f".globl {nm}", ".p2align 8", f".type {nm},@function", f"{nm}:", text(body)]
    if OPT.stream0: L += [".globl stream_test_kernel", ".p2align 8", ".type stream_test_kernel,@function", "stream_test_kernel:", stream_kernel()]
    L.append(KD.format(name=k1, vgpr=512)); L.append(KD.format(name=k2, vgpr=256))
    if OPT.stream0: L.append(KD.format(name="stream_test_kernel", vgpr=512))
    return "\n".join(L) + "\n"

if __name__ == "__main__":
    dbg = sys.argv[2] if len(sys.argv) > 2 and sys.argv[2] != "none" else None
    for kv in sys.argv[3:]:
        k, v = kv.split("=")
        setattr(OPT, k, {"True": True, "False": False}.get(v, int(v) if v.lstrip("-").isdigit() else v))
    open(sys.argv[1], "w").write(assemble_file(dbg))
    print("stamps:", STAMPS)
```

```python
import re

def R(f, b, n=1):
    return [f"{f}{i}" for i in range(b, b + n)]

def rng(f, b, n):
    return f"{f}{b}" if n == 1 else f"{f}[{b}:{b+n-1}]"

class I:
    __slots__ = ("text", "kind", "rd", "wr", "meta")
    def __init__(self, text, kind, rd=(), wr=(), **meta):
        self.text = text; self.kind = kind; self.rd = list(rd); self.wr = list(wr); self.meta = meta
    def __repr__(self): return self.text

def mfma(df, d, af, a, bf, b, cf=None, c=None):
    ct = "0" if c is None else rng(cf, c, 4)
    rd = R(af, a, 4) + R(bf, b, 4) + ([] if c is None else R(cf, c, 4))
    return I(f"v_mfma_f32_16x16x32_bf16 {rng(df,d,4)}, {rng(af,a,4)}, {rng(bf,b,4)}, {ct}", "mfma",
             rd, R(df, d, 4), d=(df, d), c=(cf, c) if c is not None else None, ab=R(af, a, 4) + R(bf, b, 4))

def valu(text, rd=(), wr=()): return I(text, "valu", rd, wr)
def trans(text, rd=(), wr=()): return I(text, "trans", rd, wr)
def salu(text, rd=(), wr=()): return I(text, "salu", rd, wr)
def wait_lgkm(n): return I(f"s_waitcnt lgkmcnt({n})", "wait", lgkm=n)
def wait_vm(n):
    assert 0 <= n <= 63, n
    return I(f"s_waitcnt vmcnt({n})", "wait", vm=n)
def barrier(): return I("s_barrier", "barrier")
def nop(n=0): return I(f"s_nop {n}", "nop", n=n)
def label(name): return I(f"{name}:", "label")
def raw(text, kind="salu", rd=(), wr=(), **m): return I(text, kind, rd, wr, **m)

def ds_read128(f, d, addr, off):
    assert 0 <= off < 65536, off
    return I(f"ds_read_b128 {rng(f,d,4)}, v{addr} offset:{off}", "ds", [f"v{addr}"], R(f, d, 4))
def ds_read_tr(f, d, addr, off):
    assert 0 <= off < 65536, off
    return I(f"ds_read_b64_tr_b16 {rng(f,d,2)}, v{addr} offset:{off}", "ds", [f"v{addr}"], R(f, d, 2))
def dma(voff, srd, soff, off, flags=""):
    assert 0 <= off < 4096
    so = soff if isinstance(soff, str) else str(soff)
    o = f" offset:{off}" if off else ""
    fl = f" {flags}" if flags else ""
    return I(f"buffer_load_dwordx4 v{voff}, s[{srd}:{srd+3}], {so} offen{o}{fl} lds", "dma",
             [f"v{voff}", "m0"] + R("s", srd, 4) + ([so] if so.startswith("s") else []))
def bload(d, n, voff, srd, soff, off, flags=""):
    assert 0 <= off < 4096
    so = soff if isinstance(soff, str) else str(soff)
    o = f" offset:{off}" if off else ""
    fl = f" {flags}" if flags else ""
    nm = {1: "dword", 2: "dwordx2", 4: "dwordx4"}[n]
    return I(f"buffer_load_{nm} {rng('v',d,n)}, v{voff}, s[{srd}:{srd+3}], {so} offen{o}{fl}", "vld",
             [f"v{voff}"] + R("s", srd, 4) + ([so] if so.startswith("s") else []), R("v", d, n))
def bload_f(f, d, n, voff, srd, soff, off, flags=""):
    so = soff if isinstance(soff, str) else str(soff)
    o = f" offset:{off}" if off else ""
    fl = f" {flags}" if flags else ""
    nm = {1: "dword", 2: "dwordx2", 4: "dwordx4"}[n]
    return I(f"buffer_load_{nm} {rng(f,d,n)}, v{voff}, s[{srd}:{srd+3}], {so} offen{o}{fl}", "vld",
             [f"v{voff}"] + R("s", srd, 4) + ([so] if so.startswith("s") else []), R(f, d, n))
def bstore(d, n, voff, srd, soff, off, flags=""):
    assert 0 <= off < 4096
    so = soff if isinstance(soff, str) else str(soff)
    o = f" offset:{off}" if off else ""
    fl = f" {flags}" if flags else ""
    nm = {1: "dword", 2: "dwordx2", 4: "dwordx4"}[n]
    return I(f"buffer_store_{nm} {rng('v',d,n)}, v{voff}, s[{srd}:{srd+3}], {so} offen{o}{fl}", "vst",
             [f"v{voff}"] + R("v", d, n) + R("s", srd, 4) + ([so] if so.startswith("s") else []), data=R("v", d, n))

class Gaps:
    def __init__(self, mf):
        self.m = list(mf)
        self.n = len(self.m)
        self.pre = [[] for _ in range(self.n)]
        self.mem = [None] * self.n
        self.vec = [[] for _ in range(self.n)]
        self.post = [[] for _ in range(self.n)]
    def cost(self, k):
        pre = len(self.pre[k]); mem = self.mem[k]; vec = self.vec[k]
        v = sum(2 if x.kind == "trans" else 1 for x in vec) + len(self.post[k])
        if mem is not None:
            v += 1 if mem.kind == "ds" else 2
        return max(pre - 1, 0) + v
    def free_vec(self, k): return 2 - self.cost(k)
    def put_pre(self, k, ins): self.pre[k].append(ins)
    def put_mem(self, k, ins):
        assert self.mem[k] is None, f"gap {k} already has mem {self.mem[k]}"
        self.mem[k] = ins
    def find_mem_gap(self, lo, hi, need=1):
        for k in range(lo, hi + 1):
            if self.mem[k] is None and self.free_vec(k) >= need and not self.vec[k]:
                return k
        return None
    def place_vec(self, ins, lo, hi):
        need = 2 if ins.kind == "trans" else 1
        for k in range(lo, hi):
            if self.free_vec(k) >= need:
                if need == 2 and self.mem[k] is not None: continue
                self.vec[k].append(ins); return k
        return None
    def emit(self, lo=0, hi=None):
        out = []
        for k in range(lo, self.n if hi is None else hi):
            out.append(self.m[k])
            out += self.pre[k]
            if self.mem[k] is not None: out.append(self.mem[k])
            out += self.vec[k]
            out += self.post[k]
        return out

class HazardError(Exception): pass

def check(stream, name="", init_lgkm=(), init_vm=(), verbose=False):
    lg = list(init_lgkm)
    vm = list(init_vm)
    last_mfma_w = {}
    last_valu_w = {}
    last_trans_w = {}
    last_mfma_c = {}
    last_store_data = {}
    last_salu_m0 = -10
    last_valu_sgpr = {}
    slot = 0
    errs = []
    def err(i, msg): errs.append(f"[{name}] slot {slot}: {msg} :: {i.text}")
    for i in stream:
        k = i.kind
        if k == "label": continue
        pend_l = {r for op in lg for r in op}; pend_v = {r for op in vm for r in op}
        touched = set(i.rd) | set(i.wr)
        if k != "wait":
            bad = touched & pend_l
            if bad: err(i, f"touches pending LDS dest {sorted(bad)}")
            bad = touched & pend_v
            if bad and not (k == "vld" and i.meta.get("tag") in ("wt", "pf")): err(i, f"touches pending VMEM dest {sorted(bad)}")
        if k == "wait":
            if "lgkm" in i.meta:
                n = i.meta["lgkm"]
                while len(lg) > n: lg.pop(0)
            if "vm" in i.meta:
                n = i.meta["vm"]
                while len(vm) > n: vm.pop(0)
        if k == "mfma":
            c = i.meta["c"]; d = i.meta["d"]
            for r in i.meta["ab"]:
                if r in last_mfma_w and slot - last_mfma_w[r][0] - 1 < 8: err(i, f"MFMA D->SrcA/B {r} dist {slot-last_mfma_w[r][0]-1}<8")
                if r in last_valu_w and slot - last_valu_w[r] - 1 < 2: err(i, f"VALU->MFMA A/B {r} dist<2")
            if c is not None:
                for r in R(c[0], c[1], 4):
                    if r in last_valu_w and slot - last_valu_w[r] - 1 < 2: err(i, f"VALU->MFMA C {r} dist<2")
                    if r in last_mfma_w and last_mfma_w[r][1] != c and slot - last_mfma_w[r][0] - 1 < 6:
                        err(i, f"MFMA D->SrcC partial overlap {r}")
            for r in i.wr:
                if r in last_valu_w and slot - last_valu_w[r] - 1 < 2 and False: pass
        elif k in ("valu", "trans", "ds", "vld", "vst", "dma"):
            for r in (set(i.rd) | set(i.wr)):
                if r in last_mfma_w and slot - last_mfma_w[r][0] - 1 < 8:
                    err(i, f"MFMA D->{k} access {r} dist {slot-last_mfma_w[r][0]-1}<8")
            if k in ("valu", "trans"):
                for r in i.wr:
                    if r in last_mfma_c and slot - last_mfma_c[r] - 1 < 3: err(i, f"MFMA SrcC WAR {r} dist<3")
                    if r in last_store_data and slot - last_store_data[r] - 1 < 2: err(i, f"store data WAR {r} dist<2")
                if k == "valu" or k == "trans":
                    for r in i.rd:
                        if r in last_trans_w and slot - last_trans_w[r] - 1 < 1 and k == "valu": err(i, f"trans->valu {r} dist<1")
                if "permlane" in i.text or "dpp" in i.text or "row_" in i.text:
                    for r in i.rd:
                        if r in last_valu_w and slot - last_valu_w[r] - 1 < 2: err(i, f"VALU->permlane/dpp {r} dist<2")
                if "readfirstlane" in i.text or "readlane" in i.text:
                    for r in i.rd:
                        if r in last_valu_w and slot - last_valu_w[r] - 1 < 1: err(i, f"VALU->readlane {r} dist<1")
                for r in i.rd:
                    if (r.startswith("s") or r == "vcc") and r in last_valu_sgpr and slot - last_valu_sgpr[r] - 1 < 2:
                        err(i, f"VALU sgpr write->VALU read {r} dist<2")
            if k in ("vld", "vst", "dma"):
                for r in i.rd:
                    if r in last_valu_sgpr and slot - last_valu_sgpr[r] - 1 < 5: err(i, f"VALU sgpr->VMEM {r} dist<5")
            if k == "dma" and slot - last_salu_m0 - 1 < 1: err(i, "M0 write -> LDS DMA dist<1")
        if k == "mfma":
            for r in i.wr: last_mfma_w[r] = (slot, i.meta["d"]); last_valu_w.pop(r, None)
            if i.meta["c"] is not None:
                for r in R(i.meta["c"][0], i.meta["c"][1], 4): last_mfma_c[r] = slot
        elif k in ("valu", "trans"):
            for r in i.wr:
                if r.startswith("s") or r == "vcc": last_valu_sgpr[r] = slot
                else:
                    last_valu_w[r] = slot; last_mfma_w.pop(r, None)
                    if k == "trans": last_trans_w[r] = slot
                    else: last_trans_w.pop(r, None)
        elif k == "ds":
            lg.append(list(i.wr))
            if len(lg) > 15: err(i, "more than 15 LDS ops outstanding")
            for r in i.wr: last_mfma_w.pop(r, None); last_valu_w.pop(r, None)
        elif k == "vld":
            vm.append(list(i.wr))
            for r in i.wr: last_mfma_w.pop(r, None); last_valu_w.pop(r, None)
        elif k in ("dma", "vst"):
            vm.append([])
            if k == "vst" and len(i.meta["data"]) >= 3:
                for r in i.meta["data"]: last_store_data[r] = slot
        elif k == "salu":
            if "m0" in i.wr: last_salu_m0 = slot
        if len(vm) > 63: err(i, "more than 63 VMEM ops outstanding")
        slot += (i.meta["n"] + 1) if k == "nop" else 1
    if errs:
        raise HazardError("\n".join(errs[:40]) + f"\n({len(errs)} errors)")
    return lg, vm

def text(stream):
    return "\n".join((i.text if i.kind == "label" else "  " + i.text) for i in stream)
```

```python
import math, struct, sys
from core import *

NAME = "concat_heads__mha_block_cached__mha_block_cached__near_ridge"
def f32bits(x): return struct.unpack("<I", struct.pack("<f", x))[0]
CSC = math.log2(math.e) / 16.0

S_X, S_WQ, S_K, S_V, S_WO, S_WS, S_OUT = 4, 8, 12, 16, 20, 24, 28
S_W, S_W1K = 32, 33
S_QB = ["0", "s34", "s35", "s62"]
S_C = 63
S_KOFF, S_VOFF = 64, 65
S_LOOP = 66
S_T0, S_T1, S_T2, S_T3 = 67, 68, 69, 70
S_G, S_H, S_B, S_BR = 71, 72, 73, 74
S_WOFF = 76
S_PART = 77
S_WCUR, S_WSTEP, S_XSTEP = 78, 79, 75
S_FL, S_DBG = 36, 40
S_LOCM = 44
S_RBASE, S_SIG, S_POLL, S_XCC = 46, 47, 48, 49
S_RG = 56
S_SPIN = 62
S_RST, S_RLD, S_FPW, S_FPR, S_FCW, S_FCR = 60, 61, 75, 78, 79, 76
S_STAMP = 80
V_LANE = 0
V_KA = [4, 5]
V_VA = [6, 7, 8, 9]
V_DK, V_DV = 10, 11
V_L = 12
V_MC = 16
V_SP = 20
V_POOL = 32
V_S = 64
V_P = 96
V_Q = 128
V_XA = 20; V_DW = 21; V_WA = [[22, 23], [24, 25], [26, 27]]
V_CT = 28
V_ARR = 24
L_K = 0; L_V = 65536; L_X = 131072
def kslot(t): return L_K + 16384 * (t % 4)
def vslot(t): return L_V + 16384 * (t % 4)
LDS_BYTES = 163840

PART_BYTES = 16 * 7 * 16 * 16 * 2048
FLAG_BYTES = 16 * 7 * 4 * 64
STAMP_OFF = PART_BYTES + 32768
RING_OFF = PART_BYTES + (1 << 20)
RING_BYTES = 16 << 20
CONS_OFF = 16384
SPIN_MAX = 1 << 19
class Opt:
    kv_flags = "nt"
    w_flags = ""
    x_flags = ""
    wo_flags = ""
    st_flags = ""
    stamps = False
    p3_drop = ''
    wo_step = 13
    cons_chk = 22
    wo_touch = (4, 5, 6)
    red_m = 200
    cons_poll = 50
    ld_min = 16
    stamp_skip = 'p1_first_data,pre_iter_end'
    p3detail = -1
    st_lag = 21
    force_fallback = False
    red_at = 60
    sig_lag = 28
    poll_lag = 22
    chk_lag = 22
    fused = True
    stream0 = False
    loop_nods = False
    loop_nomfma = False
    loop_novalu = False
    loop_nodma = False
    loop_dma_every = 1
    bar_stamps = False
    trip_stamps = False
    dma_mode = 'spread'
    dma_gaps = ([5, 21, 37, 53, 69, 85], [101, 117])
    nv_prev = 2
    stamp_fwd = -1
    stamp_dbg = -1
    x_rd_gap0 = 65
    x_rd_gap = 33
    p1_steps = False
    p1_drop = ''
    rev = True
    init_w = 2
    early_step = 2
    x_gap = 60
    p1_nowait = False
    p1_noread = False
    wring = 3
    kvpf = 'early'
    coopx = False
    init_more = 0
OPT = Opt()

def wait_tag(*tags): return I("s_waitcnt vmcnt(?)", "wait", vmtags=list(tags))
def tag(ins, t):
    ins.meta["tag"] = t; return ins
def resolve_vm(stream, queue):
    q = list(queue)
    for ins in stream:
        if ins.kind in ("dma", "vld", "vst"):
            q.append(ins.meta.get("tag", "?"))
        elif ins.kind == "wait":
            if "vmtags" in ins.meta:
                idx = [n for n, t in enumerate(q) if t in ins.meta["vmtags"]]
                n = len(q) - 1 - max(idx) if idx else len(q)
                n = min(n, 63)
                ins.text = f"s_waitcnt vmcnt({n})"; ins.meta["vm"] = n
            if "vm" in ins.meta:
                n = ins.meta["vm"]
                if len(q) > n: q = q[len(q) - n:] if n else []
    return q

_stamp_n = [0]
def stamp(name):
    if not OPT.stamps: return []
    if OPT.stamp_skip and name in OPT.stamp_skip.split(","): return []
    if OPT.p3detail >= 0 and not name.startswith("d_") and name not in ("rt_end",): return []
    if OPT.bar_stamps and name not in ("rt_ls", "rt_le", "loop_start", "loop_end", "rt_end"): return []
    n = _stamp_n[0]; _stamp_n[0] += 1
    STAMPS.append(name)
    op = "s_memrealtime" if name.startswith("rt") else "s_memtime"
    return [raw(f"{op} s[{S_STAMP+2*n}:{S_STAMP+2*n+1}]", "salu")]
STAMPS = []

def m0_set(base): return salu(f"s_add_u32 m0, s{S_W1K}, {base}", [f"s{S_W1K}"], ["m0"])

def dma_tile(kind, slot_base, soff, tg):
    voff, srd, fl = {"K": (V_DK, S_K, OPT.kv_flags), "V": (V_DV, S_V, OPT.kv_flags), "W": (V_DW, S_WQ, OPT.w_flags)}[kind]
    return [(m0_set(slot_base + dc * 3968), tag(dma(voff, srd, soff, dc * 128, fl), tg)) for dc in range(4)]

def setup():
    o = []; a = o.append
    a(salu("s_cmp_ge_u32 s2, 256")); a(raw("s_cbranch_scc1 L_end", "branch"))
    o += stamp("rt_start") + stamp("start")
    a(salu("s_load_dwordx16 s[36:51], s[0:1], 0")); a(salu("s_load_dwordx8 s[52:59], s[0:1], 64"))
    a(salu("s_load_dwordx2 s[60:61], s[0:1], 96"))
    a(valu("v_lshrrev_b32 v1, 6, v0", ["v0"], ["v1"]))
    a(valu(f"v_and_b32 v{V_LANE}, 63, v0", ["v0"], ["v0"]))
    a(valu(f"v_readfirstlane_b32 s{S_W}, v1", ["v1"], [f"s{S_W}"]))
    a(salu(f"s_and_b32 s{S_T0}, s2, 7")); a(salu(f"s_lshr_b32 s{S_T1}, s2, 3"))
    a(salu(f"s_and_b32 s{S_H}, s{S_T1}, 15")); a(salu(f"s_lshr_b32 s{S_T1}, s{S_T1}, 4"))
    a(salu(f"s_lshl_b32 s{S_G}, s{S_T0}, 1")); a(salu(f"s_add_u32 s{S_G}, s{S_G}, s{S_T1}"))
    a(salu(f"s_lshr_b32 s{S_BR}, s{S_G}, 3")); a(salu(f"s_and_b32 s{S_B}, s{S_G}, 7"))
    a(salu(f"s_lshl_b32 s{S_W1K}, s{S_W}, 10"))
    a(salu(f"s_mov_b32 s{S_C}, 0x{f32bits(CSC):08x}"))
    L = f"v{V_LANE}"
    def vv(t, rd, wr): a(valu(t, rd, wr))
    vv(f"v_and_b32 v1, 15, {L}", [L], ["v1"]); vv(f"v_lshrrev_b32 v2, 4, {L}", [L], ["v2"])
    vv("v_lshrrev_b32 v3, 1, v1", ["v1"], ["v3"])
    for sp in range(2):
        r = V_KA[sp]
        vv(f"v_add_u32 v{r}, {4*sp}, v2", ["v2"], [f"v{r}"])
        vv(f"v_xor_b32 v{r}, v{r}, v3", [f"v{r}", "v3"], [f"v{r}"])
        vv(f"v_lshlrev_b32 v{r}, 4, v{r}", [f"v{r}"], [f"v{r}"])
        vv(f"v_lshl_add_u32 v{r}, v1, 7, v{r}", ["v1", f"v{r}"], [f"v{r}"])
    vv(f"v_bfe_u32 v28, {L}, 2, 2", [L], ["v28"]); vv(f"v_and_b32 v29, 3, {L}", [L], ["v29"])
    vv("v_lshl_add_u32 v30, v2, 2, v28", ["v2", "v28"], ["v30"])
    vv("v_bfe_u32 v31, v30, 1, 2", ["v30"], ["v31"])
    for p in range(4):
        r = V_VA[p]
        vv(f"v_xor_b32 v{r}, {p}, v31", ["v31"], [f"v{r}"])
        vv(f"v_lshlrev_b32 v{r}, 5, v{r}", [f"v{r}"], [f"v{r}"])
        vv(f"v_lshl_add_u32 v{r}, v30, 7, v{r}", ["v30", f"v{r}"], [f"v{r}"])
        vv(f"v_lshl_add_u32 v{r}, v29, 3, v{r}", ["v29", f"v{r}"], [f"v{r}"])
        vv(f"v_add_u32 v{r}, {L_V}, v{r}", [f"v{r}"], [f"v{r}"])
    vv("v_lshl_add_u32 v30, v2, 3, v28", ["v2", "v28"], ["v30"])
    vv("v_lshrrev_b32 v31, 1, v28", ["v28"], ["v31"])
    for sp in range(2):
        r = V_WA[0][sp]
        vv(f"v_xor_b32 v{r}, {sp}, v31", ["v31"], [f"v{r}"])
        vv(f"v_lshl_add_u32 v{r}, v{r}, 2, v29", [f"v{r}", "v29"], [f"v{r}"])
        vv(f"v_lshlrev_b32 v{r}, 4, v{r}", [f"v{r}"], [f"v{r}"])
        vv(f"v_lshl_add_u32 v{r}, v30, 7, v{r}", ["v30", f"v{r}"], [f"v{r}"])
        for win in (1, 2):
            vv(f"v_add_u32 v{V_WA[win][sp]}, {65536*win}, v{r}", [f"v{r}"], [f"v{V_WA[win][sp]}"])
    vv(f"v_lshrrev_b32 v1, 3, {L}", [L], ["v1"]); vv(f"v_and_b32 v2, 7, {L}", [L], ["v2"])
    vv(f"v_lshl_add_u32 v3, s{S_W}, 3, v1", ["v1", f"s{S_W}"], ["v3"])
    vv("v_bfe_u32 v28, v3, 1, 3", ["v3"], ["v28"]); vv("v_xor_b32 v28, v28, v2", ["v28", "v2"], ["v28"])
    vv("v_lshlrev_b32 v28, 4, v28", ["v28"], ["v28"]); vv(f"v_lshl_add_u32 v{V_DK}, v3, 9, v28", ["v3", "v28"], [f"v{V_DK}"])
    vv("v_bfe_u32 v28, v3, 1, 2", ["v3"], ["v28"]); vv("v_lshlrev_b32 v28, 1, v28", ["v28"], ["v28"])
    vv("v_xor_b32 v28, v28, v2", ["v28", "v2"], ["v28"]); vv("v_lshlrev_b32 v28, 4, v28", ["v28"], ["v28"])
    vv(f"v_lshl_add_u32 v{V_DV}, v3, 9, v28", ["v3", "v28"], [f"v{V_DV}"])
    vv("v_bfe_u32 v28, v3, 1, 1", ["v3"], ["v28"]); vv("v_lshlrev_b32 v28, 2, v28", ["v28"], ["v28"])
    vv("v_xor_b32 v28, v28, v2", ["v28", "v2"], ["v28"]); vv("v_lshlrev_b32 v28, 4, v28", ["v28"], ["v28"])
    vv(f"v_lshl_add_u32 v{V_DW}, v3, 13, v28", ["v3", "v28"], [f"v{V_DW}"])
    a(raw("s_waitcnt lgkmcnt(0)", "wait", lgkm=0))
    a(salu(f"s_cmp_eq_u32 s{S_BR}, 0"))
    for i in range(10): a(salu(f"s_cselect_b32 s{36+i}, s{36+i}, s{46+i}"))
    def srd(base, lo, hi, offs, size):
        if offs is None:
            a(salu(f"s_mov_b32 s{base}, s{lo}")); a(salu(f"s_mov_b32 s{base+1}, s{hi}"))
        else:
            a(salu(f"s_add_u32 s{base}, s{lo}, {offs}")); a(salu(f"s_addc_u32 s{base+1}, s{hi}, 0"))
        a(salu(f"s_mov_b32 s{base+2}, {size}")); a(salu(f"s_mov_b32 s{base+3}, 0x20000"))
    a(salu(f"s_mul_i32 s{S_T0}, s{S_B}, 229376")); srd(S_X, 36, 37, f"s{S_T0}", 229376)
    a(salu(f"s_lshl_b32 s{S_T0}, s{S_H}, 9")); srd(S_WQ, 42, 43, f"s{S_T0}", 0)
    a(salu(f"s_sub_u32 s{S_WQ+2}, {448*8192}, s{S_T0}"))
    a(salu(f"s_lshl_b32 s{S_T0}, s{S_B}, 4")); a(salu(f"s_add_u32 s{S_T0}, s{S_T0}, s{S_H}"))
    a(salu(f"s_lshl_b32 s{S_T0}, s{S_T0}, 19"))
    srd(S_K, 38, 39, f"s{S_T0}", 524288); srd(S_V, 40, 41, f"s{S_T0}", 524288)
    a(salu(f"s_mul_i32 s{S_T0}, s{S_H}, 229376")); srd(S_WO, 44, 45, f"s{S_T0}", 229376)
    srd(S_WS, 60, 61, None, 16 * 7 * 16 * 16 * 2048)
    srd(S_OUT, 56, 57, None, 8 * 256 * 896 * 2)
    if OPT.fused:
        srd(S_DBG, 58, 59, None, 256)
        a(salu(f"s_mov_b32 s{S_T0}, {PART_BYTES}")); srd(S_FL, 60, 61, f"s{S_T0}", 32768)
        a(salu(f"s_mov_b32 s{S_T0}, {RING_OFF}")); a(salu(f"s_add_u32 s54, s60, s{S_T0}")); a(salu("s_addc_u32 s55, s61, 0"))
        a(salu(f"s_mov_b32 s{S_RG}, s54")); a(salu(f"s_mov_b32 s{S_RG+1}, s55")); a(salu(f"s_mov_b32 s{S_RG+2}, {RING_BYTES}")); a(salu(f"s_mov_b32 s{S_RG+3}, 0x20000"))
        a(salu(f"s_getreg_b32 s{S_XCC}, hwreg(HW_REG_XCC_ID, 0, 3)"))
        a(salu(f"s_lshl_b32 s{S_SIG}, s{S_G}, 4")); a(salu(f"s_add_u32 s{S_SIG}, s{S_SIG}, s{S_H}"))
        a(salu(f"s_mul_i32 s{S_T0}, s{S_G}, {14*64}"))
        a(salu(f"s_lshl_b32 s{S_T1}, s{S_W}, 4")); a(salu(f"s_add_u32 s{S_T1}, s{S_T1}, s{S_H}")); a(salu(f"s_add_u32 s50, s{S_T0}, s{S_T1}"))
        a(salu(f"s_lshl_b32 s{S_T1}, s{S_H}, 2")); a(salu(f"s_add_u32 s{S_T1}, s{S_T1}, s{S_W}")); a(salu(f"s_add_u32 s51, s{S_T0}, s{S_T1}"))
        a(salu(f"s_add_u32 s51, s51, {CONS_OFF}"))
        a(valu(f"v_min_u32 v1, 13, v{V_LANE}", [f"v{V_LANE}"], ["v1"])); a(valu("v_lshlrev_b32 v1, 6, v1", ["v1"], ["v1"]))
        a(valu("v_mov_b32 v2, 0", [], ["v2"]))
        for sr in ("s50", "s51"):
            a(tag(I(f"buffer_store_byte v2, v1, s[{S_FL}:{S_FL+3}], {sr} offen", "vst", ["v1", "v2"], data=["v2"]), "reset"))
    return o

def add_lgkm_waits(g, cons, carried):
    seq = [(-1, regs) for regs in carried]
    for k in range(g.n):
        if g.mem[k] is not None and g.mem[k].kind == "ds": seq.append((k, g.mem[k].wr))
    lead = None
    for k, regs in cons:
        late = [n for n, (gap, w) in enumerate(seq) if gap == k - 1 and gap >= 0 and set(w) & set(regs)]
        assert not late, f"DS for MFMA {k} issued in gap {k-1}"
        idx = [n for n, (gap, w) in enumerate(seq) if gap < max(k - 1, 0) and set(w) & set(regs)]
        if not idx: continue
        last = max(idx)
        after = sum(1 for n, (gap, w) in enumerate(seq) if n > last and gap < max(k - 1, 0))
        assert after <= 15, (k, after)
        if k == 0: lead = wait_lgkm(after)
        else: g.pre[k - 1].insert(0, wait_lgkm(after))
    out = len(carried)
    if lead is not None: out = min(out, lead.meta["lgkm"])
    for k in range(g.n):
        for x in g.pre[k]:
            if "lgkm" in x.meta: out = min(out, x.meta["lgkm"])
        if g.mem[k] is not None and g.mem[k].kind == "ds":
            if out >= 14:
                assert len(g.pre[k]) == 0, k
                g.pre[k].append(wait_lgkm(8)); out = 8
            out += 1
    return lead

def place_vmem(g, gap, scalars, d, hi=None, stack=False):
    k = max(gap, 1 if stack else len(scalars))
    hi = g.n if hi is None else hi
    isdma = lambda x: x is not None and x.kind == "dma"
    while True:
        assert k < hi, f"no gap for {d.text}"
        if g.mem[k] is None and not g.vec[k] and len(g.pre[k]) <= 1:
            if stack:
                if not isdma(g.mem[k - 1]) and len(g.pre[k - 1]) + len(scalars) <= 3 and not any(x.kind == "barrier" for x in g.pre[k - 1]): break
            elif all(not g.pre[k - 1 - n] and not isdma(g.mem[k - 1 - n]) for n in range(len(scalars))): break
        k += 1
    if stack:
        for sc in scalars: g.put_pre(k - 1, sc)
    else:
        for n, sc in enumerate(scalars): g.put_pre(k - len(scalars) + n, sc)
    g.put_mem(k, d)
    return k

def put_scalar(g, gap, *ins):
    k = gap
    while g.pre[k]: k += 1
    g.pre[k] = list(ins)
    return k

def place_chain(g, ops, lo, hi):
    left = []
    for ins in ops:
        k = g.place_vec(ins, lo, hi) if (not left and lo < hi) else None
        if k is None: left.append(ins)
        else: lo = k + 1 if ins.kind == "trans" else k
    return lo, left

class Op:
    def __init__(self, ins, rel, dl, preds=()):
        self.ins = ins; self.rel = rel; self.dl = dl; self.preds = list(preds); self.gap = None

def list_schedule(g, ops, lo=0, hi=None):
    hi = g.n if hi is None else hi
    todo = list(ops)
    for k in range(lo, hi):
        while True:
            free = g.free_vec(k)
            if free <= 0: break
            ready = [x for x in todo if x.rel <= k and all(p.gap is not None and p.gap + d <= k for p, d in x.preds)]
            tr = [x for x in ready if x.ins.kind == "trans"]
            pl = [x for x in ready if x.ins.kind != "trans"]
            pick = None
            can_tr = free == 2 and g.mem[k] is None and not g.vec[k]
            if can_tr and tr: pick = min(tr, key=lambda x: x.dl)
            if pl:
                best = min(pl, key=lambda x: x.dl)
                if pick is None or (best.dl + 6 < pick.dl): pick = best
            if pick is None: break
            g.vec[k].append(pick.ins); pick.gap = k; todo.remove(pick)
    late = [x for x in ops if x.gap is not None and x.gap > x.dl]
    assert not late, [(x.ins.text, x.gap, x.dl) for x in late]
    return todo

def sm_ops(tile, kb, qb, rel, dl):
    i = sm_group(tile, kb, qb)
    f = [Op(i[0], rel, dl - 6), Op(i[1], rel, dl - 6), Op(i[4], rel, dl - 5), Op(i[5], rel, dl - 5)]
    x = [Op(i[2], rel, dl - 4, [(f[0], 1)]), Op(i[3], rel, dl - 4, [(f[1], 1)]), Op(i[6], rel, dl - 3, [(f[2], 1)]), Op(i[7], rel, dl - 3, [(f[3], 1)])]
    ad = [Op(i[8], rel, dl, [(x[0], 1)]), Op(i[9], rel, dl, [(x[1], 1)]), Op(i[11], rel, dl, [(x[2], 1)]), Op(i[12], rel, dl, [(x[3], 1)])]
    cv = [Op(i[10], rel, dl, [(x[0], 1), (x[1], 1)]), Op(i[13], rel, dl, [(x[2], 1), (x[3], 1)])]
    return f + x + ad + cv

def exposed(ops):
    o = []
    for n, ins in enumerate(ops):
        o.append(ins)
        if ins.kind == "trans" and n + 1 < len(ops) and ops[n + 1].kind != "trans": o.append(nop(0))
    return o

def conv_ops(acc, d, t):
    return [valu(f"v_accvgpr_read_b32 v{d}, a{acc}", [f"a{acc}"], [f"v{d}"]),
            valu(f"v_accvgpr_read_b32 v{t}, a{acc+1}", [f"a{acc+1}"], [f"v{t}"]),
            valu(f"v_accvgpr_read_b32 v{d+1}, a{acc+2}", [f"a{acc+2}"], [f"v{d+1}"]),
            valu(f"v_accvgpr_read_b32 v{t+1}, a{acc+3}", [f"a{acc+3}"], [f"v{t+1}"]),
            valu(f"v_cvt_pk_bf16_f32 v{d}, v{d}, v{t}", [f"v{d}", f"v{t}"], [f"v{d}"]),
            valu(f"v_cvt_pk_bf16_f32 v{d+1}, v{d+1}, v{t+1}", [f"v{d+1}", f"v{t+1}"], [f"v{d+1}"])]

def xlane_reduce(regs, op, tmp):
    o = []
    for swap in ("v_permlane32_swap_b32", "v_permlane16_swap_b32"):
        for n, r in enumerate(regs): o.append(valu(f"v_mov_b32 v{tmp+n}, v{r}", [f"v{r}"], [f"v{tmp+n}"]))
        o.append(nop(1))
        for n, r in enumerate(regs):
            o.append(valu(f"{swap} v{r}, v{tmp+n}", [f"v{r}", f"v{tmp+n}"], [f"v{r}", f"v{tmp+n}"]))
        o.append(nop(1))
        for n, r in enumerate(regs):
            o.append(valu(f"{op} v{r}, v{r}, v{tmp+n}", [f"v{r}", f"v{tmp+n}"], [f"v{r}"]))
    return o

def wpairs(): return [(L_X, L_X + 16384), (vslot(1), kslot(3)), (vslot(2), vslot(3))]
def wslot(tile):
    p = wpairs(); return p[(tile // 2) % len(p)][tile % 2]
XBUF = [V_S, V_P]
def xfrag(qb, cs): return XBUF[(cs // 2) & 1] + ((cs % 2) * 4 + qb) * 4
V_XD = [128, 129]
V_XR = [130, 131]
S_XB = 34
S_XCUR = 35
def x_setup():
    o = []; a = o.append
    L = f"v{V_LANE}"
    a(salu(f"s_and_b32 s{S_T1}, s{S_W}, 1")); a(salu(f"s_lshl_b32 s{S_T1}, s{S_T1}, 13"))
    a(salu(f"s_cmp_lt_u32 s{S_W}, 2")); a(salu(f"s_cselect_b32 s{S_XB}, 2, 4")); a(salu(f"s_lshl_b32 s{S_XB}, s{S_XB}, 14"))
    a(salu(f"s_add_u32 s{S_XB}, s{S_XB}, s{S_T1}"))
    assert kslot(2) == 2 << 14 and vslot(0) == 4 << 14
    a(valu(f"v_lshrrev_b32 v1, 3, {L}", [L], ["v1"])); a(valu(f"v_and_b32 v2, 7, {L}", [L], ["v2"]))
    a(valu(f"v_lshl_add_u32 v3, s{S_W}, 6, v1", ["v1", f"s{S_W}"], ["v3"]))
    a(valu("v_mul_u32_u24 v3, 896, v3", ["v3"], ["v3"]))
    a(valu("v_lshrrev_b32 v1, 1, v1", ["v1"], ["v1"]))
    for par in range(2):
        r = V_XD[par]
        a(valu(f"v_or_b32 v{r}, {4*par}, v1", ["v1"], [f"v{r}"]))
        a(valu(f"v_xor_b32 v{r}, v{r}, v2", [f"v{r}", "v2"], [f"v{r}"]))
        a(valu(f"v_lshl_add_u32 v{r}, v{r}, 4, v3", [f"v{r}", "v3"], [f"v{r}"]))
        a(valu(f"v_add_u32 v{V_XR[par]}, s{S_XB}, v{V_KA[par]}", [f"v{V_KA[par]}"], [f"v{V_XR[par]}"]))
    return o
def x_items(j):
    out = []
    for i in range(8):
        sreg = S_T2 + (i & 1)
        sc = []
        if i == 0 and j > 0: sc.append(salu(f"s_add_u32 s{S_XCUR}, s{S_XCUR}, s{S_XSTEP}", [f"s{S_XCUR}"], [f"s{S_XCUR}"]))
        sc.append(salu(f"s_add_u32 s{sreg}, s{S_XCUR}, {i*7168}", [f"s{S_XCUR}"], [f"s{sreg}"]))
        sc.append(salu(f"s_add_u32 m0, s{S_XB}, {i*1024}", [f"s{S_XB}"], ["m0"]))
        out.append((sc, tag(dma(V_XD[i & 1], S_X, f"s{sreg}", 0, OPT.x_flags), f"x{j}")))
    return out
def x_read(qb, cs): return ds_read128("v", xfrag(qb, cs), V_XR[cs & 1], qb * 2048)
def w_read(dbp, cs, jj):
    s, e = dbp >> 1, dbp & 1
    base = wslot(cs); win = base // 65536
    off = base - win * 65536 + (s >> 1) * 4096 + jj * 512 + e * 8
    return ds_read_tr("v", V_POOL + 4 * ((2 * dbp + (cs & 1)) % 8) + 2 * jj, V_WA[win][s & 1], off)

V_PF = 28
def coop_setup():
    o = []; a = o.append
    a(salu(f"s_mul_i32 s{S_T1}, s{S_H}, {112*128}"))
    a(salu(f"s_lshl_b32 s{S_T2}, s{S_W}, 12")); a(salu(f"s_add_u32 s{S_T1}, s{S_T1}, s{S_T2}"))
    a(valu(f"v_and_b32 v{V_PF}, 31, v{V_LANE}", [f"v{V_LANE}"], [f"v{V_PF}"]))
    a(valu(f"v_lshlrev_b32 v{V_PF}, 7, v{V_PF}", [f"v{V_PF}"], [f"v{V_PF}"]))
    a(valu(f"v_add_u32 v{V_PF}, s{S_T1}, v{V_PF}", [f"v{V_PF}"], [f"v{V_PF}"]))
    return o
def coop_x():
    return [tag(bload(V_PF + 1, 1, V_PF, S_X, "0", 0), "pf")]

OOL = []
def phase1():
    o = []; a = o.append
    NP = 3
    a(salu(f"s_lshr_b32 s{S_T1}, s2, 7")); a(salu(f"s_and_b32 s{S_T1}, s{S_T1}, {1 if OPT.rev else 0}"))
    a(salu(f"s_cmp_eq_u32 s{S_T1}, 0"))
    a(salu(f"s_cselect_b32 s{S_WCUR}, 0, {6*524288}")); a(salu(f"s_cselect_b32 s{S_T2}, 1, -1"))
    a(salu(f"s_cselect_b32 s{S_XCUR}, 0, 768"))
    a(salu(f"s_mul_i32 s{S_WSTEP}, s{S_T2}, 524288")); a(salu(f"s_mul_i32 s{S_XSTEP}, s{S_T2}, 128"))
    o += x_setup()
    if OPT.coopx: o += coop_setup() + coop_x()
    def w_items(j):
        out = []
        for par in range(2):
            sreg = S_WCUR if par == 0 else S_WOFF
            for m, (m0, d) in enumerate(dma_tile("W", wslot(2 * j + par), f"s{sreg}", f"W{j}")):
                sc = [m0]
                if m == 0 and par == 0 and j > 0: sc = [salu(f"s_add_u32 s{S_WCUR}, s{S_WCUR}, s{S_WSTEP}", [f"s{S_WCUR}"], [f"s{S_WCUR}"]), m0]
                if m == 0 and par == 1: sc = [salu(f"s_add_u32 s{S_WOFF}, s{S_WCUR}, 262144", [f"s{S_WCUR}"], [f"s{S_WOFF}"]), m0]
                out.append((sc, d))
        return out
    def kv_items(kind, t):
        out = []
        for m, (m0, d) in enumerate(dma_tile(kind, kslot(t) if kind == "K" else vslot(t), f"s{S_T0}", f"{kind}{t}")):
            out.append(([salu(f"s_mov_b32 s{S_T0}, {t*16384}", [], [f"s{S_T0}"]), m0] if m == 0 else [m0], d))
        return out
    def now(items):
        for sc, d in items:
            o.extend(sc); a(nop(0)); a(d)
    w0 = w_items(0)
    for sc, d in w0[4:]: d.meta["tag"] = "W0b"
    now(x_items(0)); now(w0[:4]); now(w0[4:])
    a(wait_tag("x0"))
    xr = [x_read(qb, cs) for cs in (0, 1) for qb in range(4)]
    o += xr
    a(wait_tag("W0")); a(barrier())
    if OPT.fused:
        a(salu(f"s_or_b32 s{S_T0}, s{S_XCC}, 0x80")); a(valu(f"v_mov_b32 v1, s{S_T0}", [], ["v1"])); a(valu("v_mov_b32 v2, 0", [], ["v2"]))
        a(tag(I(f"buffer_store_byte v1, v2, s[{S_DBG}:{S_DBG+3}], s{S_SIG} offen", "vst", ["v1", "v2"], data=["v1"]), "arr"))
    o += stamp("p1_first_data")
    def quad0(n): return V_POOL + 4 * (n % 8)
    def w_read0(n, jj):
        dbp, cs = n % 16, n // 16
        r = w_read(dbp, cs, jj)
        return ds_read_tr("v", quad0(n) + 2 * jj, int(r.rd[0][1:]), int(r.text.split("offset:")[1]))
    carried = [x.wr for x in xr]
    for n in range(3):
        for jj in range(2):
            r = w_read0(n, jj); a(r); carried.append(r.wr)
    early = {j: [] for j in range(7)}; after = {j: [] for j in range(7)}
    early[0] += w_items(1); early[1] += w_items(2)
    for j in range(NP, 7): after[j - NP + 1] += w_items(j)
    K = lambda t: kv_items("K", t)
    V = lambda t: kv_items("V", t)
    kv = {"early": {1: K(0), 2: K(1)}, "mid": {2: K(0), 3: K(1)}, "late": {3: K(0), 4: K(1)}}[OPT.kvpf]
    for j, l in kv.items(): early[j] += l
    after[5] += V(0)
    early[6] += K(2) + V(1) + K(3)
    after[6] += V(2)
    for j in range(7):
        ms = []
        if j == 0:
            for n in range(32):
                for qb in range(4):
                    acc = ((n % 16) * 4 + qb) * 4
                    first = n < 16
                    ms.append(mfma("a", acc, "v", quad0(n), "v", xfrag(qb, n // 16), None if first else "a", None if first else acc))
        else:
            for dbp in range(16):
                for qb in range(4):
                    for e2 in range(2):
                        acc = (dbp * 4 + qb) * 4
                        ms.append(mfma("a", acc, "v", V_POOL + 4 * ((2 * dbp + e2) % 8), "v", xfrag(qb, 2 * j + e2), "a", acc))
        g = Gaps(ms)
        if j == 0:
            for n in range(3, 32):
                for jj in range(2): g.put_mem(4 * n - 12 + 2 * jj, w_read0(n, jj))
        else:
            for dbp in range(3, 16):
                for n, (cs, jj) in enumerate([(2*j, 0), (2*j, 1), (2*j+1, 0), (2*j+1, 1)]):
                    g.put_mem(8 * dbp - 24 + 2 * n, w_read(dbp, cs, jj))
        nxt = []
        if j < 6:
            for dbp in range(3):
                for n, (cs, jj) in enumerate([(2*j+2, 0), (2*j+2, 1), (2*j+3, 0), (2*j+3, 1)]):
                    r = w_read(dbp, cs, jj); g.put_mem(104 + (1 if j == 0 else 0) + 8 * dbp + 2 * n, r); nxt.append(r.wr)
        XG = OPT.x_rd_gap if j > 0 else OPT.x_rd_gap0
        xreads = []
        if j < 6:
            for n, (cs, qb) in enumerate([(cs, qb) for cs in (2*j+2, 2*j+3) for qb in range(4)]):
                r = x_read(qb, cs); g.put_mem(XG + 2 * n, r); xreads.append(r)
        if j == 0:
            cons = [(4 * n, R("v", quad0(n), 4) + (R("v", V_S, 32) if n == 0 else [])) for n in range(32)]
        else:
            cons = [(8 * dbp, R("v", V_POOL + 4 * ((2 * dbp) % 8), 8)) for dbp in range(16)]
        if j < 6: cons.append((XG + 24, [w for r in xreads for w in r.wr]))
        cons.sort()
        lead = add_lgkm_waits(g, cons, carried)
        if j < 6:
            k = XG - 2
            while g.pre[k]: k -= 1
            g.pre[k] = [wait_tag(f"x{j+1}")]
        tags = [f"W{j+1}"] if j < 6 else ["K0"]
        k = 100
        while g.pre[k]: k -= 1
        g.pre[k] = [wait_tag(*tags), barrier()] if not OPT.p1_nowait else [barrier()]
        kb = k
        gp = 1
        if j == 0:
            for sc, d in x_items(1): gp = place_vmem(g, gp, sc, d, XG - 3, stack=True) + 2
            k = 48
            while g.pre[k]: k -= 1
            g.pre[k] = [wait_tag("W0b"), barrier()]
            assert k < 52
        for sc, d in early[j]: gp = place_vmem(g, gp + len(sc) - 1, sc, d, kb) + (OPT.early_step if j != 6 else 7)
        if j < 5:
            gx = max(XG + 25, gp)
            for sc, d in x_items(j + 2): gx = place_vmem(g, gx, sc, d, stack=True) + 2
            gpa = max(kb + 2, gx)
        else: gpa = kb + 2
        for sc, d in after[j]: gpa = place_vmem(g, gpa, sc, d, stack=True) + 1
        left = []
        if j == 6:
            for dbp in range(16):
                for qb in range(4):
                    ops = conv_ops((dbp * 4 + qb) * 4, V_Q + (qb * 8 + (dbp >> 1)) * 4 + 2 * (dbp & 1), V_CT + 2 * (qb & 1))
                    if left: left += ops
                    else:
                        _, l2 = place_chain(g, ops, 8 * dbp + 2 * qb + 1 + 5, 128); left += l2
        if lead is not None: a(lead)
        em = g.emit()
        if OPT.p1_drop:
            def keep(x):
                if x.kind in ("dma", "vld"):
                    t = x.meta.get("tag", "")
                    for c in OPT.p1_drop:
                        if t.startswith(c): return False
                return True
            em = [x for x in em if keep(x)]
        if OPT.p1_noread: em = [x for x in em if x.kind != "ds" and not (x.kind == "wait" and "lgkm" in x.meta)]
        o += em
        carried = nxt
        if OPT.p1_steps: o += stamp(f"step{j}")
        if left: a(nop(7)); o += left
    if not OPT.p1_steps: o += stamp("p1_end")
    return o

def k_read(t, kb, s):
    return ds_read128("v", V_POOL + 4 * s, V_KA[s & 1], (kslot(t) - L_K) + (s >> 1) * 4096 + kb * 2048)
def v_read(t, db, jj):
    return ds_read_tr("v", V_POOL + 4 * (db % 8) + 2 * jj, V_VA[db & 3], (vslot(t) - L_V) + (db >> 2) * 4096 + jj * 2048)
def Sreg(kb, qb): return V_S + (kb * 4 + qb) * 4
def Preg(buf, qb): return V_P + buf * 16 + qb * 4
def qk_mfmas():
    ms = []
    for i in range(64):
        kb, sp, qb, e = i >> 5, (i >> 3) & 3, (i >> 1) & 3, i & 1
        s = 2 * sp + e; d = Sreg(kb, qb)
        ms.append(mfma("v", d, "v", V_POOL + 4 * s, "v", V_Q + (qb * 8 + s) * 4, None if s == 0 else "v", None if s == 0 else d))
    return ms
def pv_mfmas(t, first):
    ms = []
    for i in range(64):
        db, qb = i >> 2, i & 3
        acc = (db * 4 + qb) * 4
        ms.append(mfma("a", acc, "v", V_POOL + 4 * (db % 8), "v", Preg(t & 1, qb), None if first else "a", None if first else acc))
    return ms
def sm_group(tile, kb, qb):
    s = Sreg(kb, qb); p = Preg(tile & 1, qb) + 2 * kb; mc = V_MC + qb; l = V_L + qb
    f = lambda r: valu(f"v_fma_f32 v{s+r}, v{s+r}, s{S_C}, v{mc}", [f"v{s+r}", f"v{mc}", f"s{S_C}"], [f"v{s+r}"])
    x = lambda r: trans(f"v_exp_f32 v{s+r}, v{s+r}", [f"v{s+r}"], [f"v{s+r}"])
    ad = lambda r: valu(f"v_add_f32 v{l}, v{l}, v{s+r}", [f"v{l}", f"v{s+r}"], [f"v{l}"])
    cv = lambda r: valu(f"v_cvt_pk_bf16_f32 v{p+r//2}, v{s+r}, v{s+r+1}", [f"v{s+r}", f"v{s+r+1}"], [f"v{p+r//2}"])
    return [f(0), f(1), x(0), x(1), f(2), f(3), x(2), x(3), ad(0), ad(1), cv(0), ad(2), ad(3), cv(2)]

def pre_iter():
    o = []; a = o.append
    carried = []
    for s in range(8):
        r = k_read(0, 0, s); a(r); carried.append(r.wr)
    g = Gaps(qk_mfmas())
    for s in range(8): g.put_mem(8 * (s >> 1) + 10 + 4 * (s & 1), k_read(0, 1, s))
    cons = [(8 * p, R("v", V_POOL + 8 * (p % 4), 8)) for p in range(8)]
    a(add_lgkm_waits(g, cons, carried)); o += g.emit()
    a(wait_tag("K1", "V0")); a(barrier())
    a(salu(f"s_mov_b32 s{S_KOFF}, {4*16384}"))
    for m0, d in dma_tile("K", kslot(4), f"s{S_KOFF}", "K4"): a(m0); a(nop(0)); a(d)
    a(salu(f"s_mov_b32 s{S_KOFF}, {5*16384}")); a(salu(f"s_mov_b32 s{S_VOFF}, {3*16384}"))
    carried = []
    for s in range(8):
        r = k_read(1, 0, s); a(r); carried.append(r.wr)
    for qb in range(4):
        m = V_MC + qb; s0 = Sreg(0, qb); s1 = Sreg(1, qb)
        a(valu(f"v_max3_f32 v{m}, v{s0}, v{s0+1}, v{s0+2}", R("v", s0, 3), [f"v{m}"]))
        a(valu(f"v_max3_f32 v{m}, v{m}, v{s0+3}, v{s1}", [f"v{m}", f"v{s0+3}", f"v{s1}"], [f"v{m}"]))
        a(valu(f"v_max3_f32 v{m}, v{m}, v{s1+1}, v{s1+2}", [f"v{m}", f"v{s1+1}", f"v{s1+2}"], [f"v{m}"]))
        a(valu(f"v_max_f32 v{m}, v{m}, v{s1+3}", [f"v{m}", f"v{s1+3}"], [f"v{m}"]))
    o += xlane_reduce([V_MC + q for q in range(4)], "v_max_f32", V_SP)
    for qb in range(4):
        m = V_MC + qb
        a(valu(f"v_mul_f32 v{m}, s{S_C}, v{m}", [f"v{m}", f"s{S_C}"], [f"v{m}"]))
        a(valu(f"v_sub_f32 v{m}, 0, v{m}", [f"v{m}"], [f"v{m}"]))
        a(valu(f"v_mov_b32 v{V_L+qb}, 0", [], [f"v{V_L+qb}"]))
    for kb, qb in [(0, 0), (0, 1), (0, 2), (0, 3), (1, 0), (1, 1)]: o += exposed(sm_group(0, kb, qb))
    o += stamp("pre_iter_end")
    return o, carried

def attn_iter(t, carried, vmw, prev, cur, first=False, adv=True, loopctl=False, extra=None, loop_body=False):
    g = Gaps(qk_mfmas() + pv_mfmas(t, first))
    for s in range(8): g.put_mem(8 * (s >> 1) + 10 + 4 * (s & 1), k_read(t + 1, 1, s))
    for db in range(16):
        for jj in range(2): g.put_mem(44 + 4 * db + 2 * jj, v_read(t, db, jj))
    nxt = []
    if t + 2 <= 31:
        for s, gap in zip(range(8), [108, 110, 112, 114, 116, 120, 124, 127]):
            r = k_read(t + 2, 0, s); g.put_mem(gap, r); nxt.append(r.wr)
    else:
        for db in range(5):
            for jj in range(2):
                r = v_read(t + 1, db, jj); g.put_mem(108 + 4 * db + 2 * jj, r); nxt.append(r.wr)
    cons = [(8 * p, R("v", V_POOL + 8 * (p % 4), 8)) for p in range(8)]
    cons += [(64 + 4 * db, R("v", V_POOL + 4 * (db % 8), 4)) for db in range(16)]
    lead = add_lgkm_waits(g, cons, carried)
    kb = 98
    while g.pre[kb]: kb -= 1
    g.pre[kb] = [vmw, barrier()]
    if OPT.bar_stamps and loop_body:
        g.pre[kb] = [raw("s_memtime s[94:95]", "salu"), vmw, raw("s_memtime s[96:97]", "salu"), barrier(), raw("s_memtime s[98:99]", "salu"),
                     raw("s_waitcnt lgkmcnt(0)", "wait", lgkm=0),
                     salu("s_sub_u32 s96, s96, s94"), salu("s_add_u32 s92, s92, s96"),
                     salu("s_sub_u32 s98, s98, s94"), salu("s_add_u32 s93, s93, s98")]
    gp_prev, gp_cur = OPT.dma_gaps
    placed = [place_vmem(g, gap, [m0], d, kb) for gap, (m0, d) in zip(gp_prev, prev)]
    for gap, (m0, d) in zip(gp_cur, cur): place_vmem(g, gap, [m0], d)
    if adv:
        for reg, srd, at in ((S_VOFF, S_V, (placed[OPT.nv_prev - 1] if OPT.nv_prev else 1) + 1), (S_KOFF, S_K, placed[-1] + 1)):
            k = put_scalar(g, at, salu(f"s_add_u32 s{reg}, s{reg}, 16384", [f"s{reg}"], [f"s{reg}"]))
            k = put_scalar(g, k + 1, salu(f"s_cmp_lt_u32 s{reg}, 524288", [f"s{reg}"], ["scc"]),
                           salu(f"s_cselect_b32 s{srd+2}, 524288, 0", ["scc"], [f"s{srd+2}"]))
            assert k < 100
    if loopctl:
        k = put_scalar(g, 119, salu(f"s_sub_u32 s{S_LOOP}, s{S_LOOP}, 1", [f"s{S_LOOP}"], [f"s{S_LOOP}"]))
        k = put_scalar(g, k + 1, salu(f"s_cmp_lg_u32 s{S_LOOP}, 0", [f"s{S_LOOP}"], ["scc"]))
        assert k <= 127
        for kk in range(k + 1, 128):
            assert all(x.kind == "wait" for x in g.pre[kk]), "SCC clobbered before the loop branch"
    if extra: extra(g, kb)
    ops = []
    for qb in (2, 3): ops += sm_ops(t, 1, qb, 0, 31 + 2 * qb)
    for qb in range(4): ops += sm_ops(t + 1, 0, qb, 25 + 2 * qb + 6, 100 + 6 * qb)
    for qb in (0, 1): ops += sm_ops(t + 1, 1, qb, 57 + 2 * qb + 6, 124 + 3 * qb)
    left = list_schedule(g, ops)
    assert not left, f"softmax groups do not fit: {len(left)} left"
    return [lead] + g.emit(), nxt

def last_iter(carried):
    o = []; a = o.append
    for qb in (2, 3): o += exposed(sm_group(31, 1, qb))
    o += xlane_reduce([V_L + q for q in range(4)], "v_add_f32", V_SP)
    for qb in range(4): a(trans(f"v_rcp_f32 v{V_L+qb}, v{V_L+qb}", [f"v{V_L+qb}"], [f"v{V_L+qb}"]))
    a(nop(0))
    g = Gaps(pv_mfmas(31, False))
    for db in range(5, 8):
        for jj in range(2): g.put_mem(4 * (db - 5) + 2 * jj, v_read(31, db, jj))
    for db in range(8, 16):
        for jj in range(2): g.put_mem(12 + 4 * (db - 8) + 2 * jj, v_read(31, db, jj))
    cons = [(4 * db, R("v", V_POOL + 4 * (db % 8), 4)) for db in range(16)]
    lead = add_lgkm_waits(g, cons, carried)
    gp = put_wo(g, 2, 2, step=0)
    put_wo(g, 3, gp, step=0)
    left = []
    for db in range(16):
        for qb in range(4):
            ops = conv_ops((db * 4 + qb) * 4, V_Q + (qb * 8 + (db >> 1)) * 4 + 2 * (db & 1), V_SP + 8 + 2 * (qb & 1))
            if left: left += ops
            else:
                _, l2 = place_chain(g, ops, 4 * db + qb + 5, 64); left += l2
    a(lead); o += g.emit()
    a(nop(7)); o += left
    return o

WOBUF = [L_X, L_K, L_K + 32768, L_V, L_V + 32768, L_X, L_K]
V_DWO = 3; V_STO = V_DV
V_FR3 = 32; V_ACC3 = V_P; V_STG = 16
def wo_dma(j):
    out = []
    for i in range(8):
        sreg = S_T0 + (i & 1)
        out.append(([salu(f"s_mov_b32 s{sreg}, {j*128 + i*32*896}", [], [f"s{sreg}"]),
                     salu(f"s_add_u32 m0, s{S_W1K}, {WOBUF[j] + i*4096}", [f"s{S_W1K}"], ["m0"])],
                    tag(dma(V_DWO, S_WO, f"s{sreg}", 0, OPT.wo_flags), f"wo{j}")))
    return out
def wo_setup():
    o = []; a = o.append
    L = f"v{V_LANE}"
    a(valu(f"v_lshrrev_b32 v1, 3, {L}", [L], ["v1"])); a(valu(f"v_and_b32 v2, 7, {L}", [L], ["v2"]))
    a(valu(f"v_lshl_add_u32 v3, s{S_W}, 3, v1", ["v1", f"s{S_W}"], ["v3"]))
    a(valu("v_bfe_u32 v1, v1, 1, 2", ["v1"], ["v1"])); a(valu("v_lshlrev_b32 v1, 1, v1", ["v1"], ["v1"]))
    a(valu("v_xor_b32 v1, v1, v2", ["v1", "v2"], ["v1"])); a(valu("v_lshlrev_b32 v1, 4, v1", ["v1"], ["v1"]))
    a(valu("v_mul_u32_u24 v3, 896, v3", ["v3"], ["v3"]))
    a(valu(f"v_add_u32 v{V_DWO}, v3, v1", ["v3", "v1"], [f"v{V_DWO}"]))
    return o
V_WOT = 2
def wo_touch_setup():
    return [valu(f"v_lshl_add_u32 v{V_WOT}, s{S_W}, 6, v{V_LANE}", [f"v{V_LANE}"], [f"v{V_WOT}"]),
            valu(f"v_mul_u32_u24 v{V_WOT}, 896, v{V_WOT}", [f"v{V_WOT}"], [f"v{V_WOT}"])]
def wo_touch(j): return tag(bload(1, 1, V_WOT, S_WO, "0", j * 128), "wt")
def put_wo(g, j, start, hi=None, step=3):
    gp = start
    for sc, d in wo_dma(j): gp = place_vmem(g, gp, sc, d, hi) + step
    return gp
def va_shift(delta):
    t = (lambda r: f"v_add_u32 v{r}, {delta}, v{r}") if delta >= 0 else (lambda r: f"v_subrev_u32 v{r}, {-delta}, v{r}")
    return [valu(t(r), [f"v{r}"], [f"v{r}"]) for r in V_VA]

def part_ops(nb, qb):
    acc = V_ACC3 + 4 * ((nb * 4 + qb) % 8)
    st = V_STG + 4 * qb + 2 * (nb & 1)
    li = V_L + qb
    ops = [valu(f"v_mul_f32 v{acc+r}, v{acc+r}, v{li}", [f"v{acc+r}", f"v{li}"], [f"v{acc+r}"]) for r in range(4)]
    ops += [valu(f"v_cvt_pk_bf16_f32 v{st}, v{acc}, v{acc+1}", [f"v{acc}", f"v{acc+1}"], [f"v{st}"]),
            valu(f"v_cvt_pk_bf16_f32 v{st+1}, v{acc+2}, v{acc+3}", [f"v{acc+2}", f"v{acc+3}"], [f"v{st+1}"])]
    return ops

A_FR3 = 0; A_SEL = 224
V_POLLA, V_POLL, V_ONE, V_ZERO, V_RLD, V_OUT = 32, 33, 34, 35, 36, 37
V_RD = 40
V_GRP = V_ARR + 3
def wo_read(nb, s_, jj):
    return ds_read_tr("a", A_FR3 + 4 * (8 * (nb & 1) + s_) + 2 * jj, V_VA[nb], s_ * 4096 + jj * 2048)

V_GA = V_ARR + 2
def grp_setup():
    return [salu(f"s_lshl_b32 s{S_T0}, s{S_G}, 4"), valu(f"v_and_b32 v{V_GA}, 3, v{V_LANE}", [f"v{V_LANE}"], [f"v{V_GA}"]),
            valu(f"v_lshlrev_b32 v{V_GA}, 2, v{V_GA}", [f"v{V_GA}"], [f"v{V_GA}"]), valu(f"v_add_u32 v{V_GA}, s{S_T0}, v{V_GA}", [f"v{V_GA}"], [f"v{V_GA}"])]
V_GA3 = 38
def grp_load(dst, tg, ga=V_GA): return tag(bload(dst, 1, ga, S_DBG, "0", 0, "sc1"), tg)
def splat(x): return x * 0x01010101
def mode_load(): return grp_load(V_ARR, "grp")
def mode_check():
    o = []; a = o.append
    a(salu(f"s_or_b32 s{S_T0}, s{S_XCC}, 0x80")); a(salu(f"s_mul_i32 s50, s{S_T0}, 0x01010101"))
    a(wait_tag("grp"))
    a(valu(f"v_and_b32 v{V_ARR}, 0x87878787, v{V_ARR}", [f"v{V_ARR}"], [f"v{V_ARR}"]))
    a(valu(f"v_cmp_eq_u32 vcc, s50, v{V_ARR}", [f"v{V_ARR}"], ["vcc"])); a(nop(0))
    a(salu("s_cmp_eq_u64 vcc, -1"))
    a(salu(f"s_cselect_b64 s[{S_LOCM}:{S_LOCM+1}], -1, 0"))
    if OPT.force_fallback: a(salu("s_cmp_eq_u32 s50, 0"))
    a(raw("s_cbranch_scc0 L_grp_far", "branch")); a(label("L_grp_ok"))
    f = [label("L_grp_far"), salu(f"s_or_b32 s{S_T0}, s{S_XCC}, 0x80"), valu(f"v_mov_b32 v{V_ARR+1}, s{S_T0}", [], []),
         valu(f"v_mov_b32 v{V_ARR+3}, 0", [], []),
         raw(f"buffer_store_byte v{V_ARR+1}, v{V_ARR+3}, s[{S_DBG}:{S_DBG+3}], s{S_SIG} offen sc1", "salu"), wait_vm(0),
         salu(f"s_mov_b32 s{S_SPIN}, {SPIN_MAX}"), label("L_grp_again"),
         salu(f"s_sub_u32 s{S_SPIN}, s{S_SPIN}, 1"), salu(f"s_cmp_eq_u32 s{S_SPIN}, 0"), raw("s_cbranch_scc1 L_grp_ok", "branch")]
    if not OPT.force_fallback:
        f += [raw(f"buffer_load_dword v{V_ARR}, v{V_GA}, s[{S_DBG}:{S_DBG+3}], 0 offen sc1", "salu"), wait_vm(0),
              valu(f"v_and_b32 v{V_ARR}, 0x87878787, v{V_ARR}", [], []), valu(f"v_cmp_eq_u32 vcc, s50, v{V_ARR}", [], []), nop(0),
              salu("s_cmp_eq_u64 vcc, -1"), salu(f"s_cselect_b64 s[{S_LOCM}:{S_LOCM+1}], -1, 0"), raw("s_cbranch_scc1 L_grp_ok", "branch")]
    f += far_read(V_ARR)
    f += [valu(f"v_and_b32 v{V_ARR+1}, 0x80808080, v{V_ARR}", [], []), valu(f"v_cmp_eq_u32 vcc, 0x80808080, v{V_ARR+1}", [], []), nop(0),
          salu("s_and_b64 s[52:53], vcc, 15"), salu("s_cmp_eq_u64 s[52:53], 15"), raw("s_cbranch_scc0 L_grp_again", "branch"),
          valu(f"v_and_b32 v{V_ARR}, 0x87878787, v{V_ARR}", [], []), valu(f"v_cmp_eq_u32 vcc, s50, v{V_ARR}", [], []), nop(0),
          salu("s_and_b64 s[52:53], vcc, 15"), salu("s_cmp_eq_u64 s[52:53], 15"),
          salu(f"s_cselect_b64 s[{S_LOCM}:{S_LOCM+1}], -1, 0")]
    if OPT.force_fallback: f.append(salu(f"s_mov_b64 s[{S_LOCM}:{S_LOCM+1}], 0"))
    f.append(raw("s_branch L_grp_ok", "branch"))
    OOL.extend(f)
    return o
def far_read(dst, ga=V_GA):
    return [valu(f"v_mov_b32 v{dst}, 0", [], []), valu(f"v_cmp_gt_u32 vcc, 4, v{V_LANE}", [], []),
            raw("s_and_saveexec_b64 s[54:55], vcc", "salu"),
            raw(f"buffer_atomic_add v{dst}, v{ga}, s[{S_DBG}:{S_DBG+3}], 0 offen sc0 sc1", "salu"), wait_vm(0),
            raw("s_mov_b64 exec, s[54:55]", "salu")]

def p3_setup():
    o = []; a = o.append
    L = f"v{V_LANE}"
    a(salu(f"s_mul_i32 s{S_PART}, s{S_G}, {7*16*16*2048}"))
    a(salu(f"s_lshl_b32 s{S_T2}, s{S_H}, 15")); a(salu(f"s_add_u32 s{S_RBASE}, s{S_PART}, s{S_T2}"))
    a(salu(f"s_lshl_b32 s{S_T2}, s{S_W}, 17")); a(salu(f"s_add_u32 s{S_PART}, s{S_PART}, s{S_T2}"))
    a(salu(f"s_lshl_b32 s{S_T2}, s{S_H}, 11")); a(salu(f"s_add_u32 s{S_PART}, s{S_PART}, s{S_T2}"))
    a(valu(f"v_lshlrev_b32 v{V_STO}, 4, {L}", [L], [f"v{V_STO}"]))
    if not OPT.fused: return o
    a(valu(f"v_mov_b32 v{V_ZERO}, 0", [], [f"v{V_ZERO}"])); a(valu(f"v_mov_b32 v{V_GA3}, v{V_GA}", [f"v{V_GA}"], [f"v{V_GA3}"]))
    a(salu(f"s_or_b32 s{S_T2}, s{S_XCC}, 0xf0")); a(valu(f"v_mov_b32 v{V_ONE}, s{S_T2}", [], [f"v{V_ONE}"]))
    a(valu(f"v_lshrrev_b32 v1, 5, {L}", [L], ["v1"])); a(valu("v_lshlrev_b32 v1, 11, v1", ["v1"], ["v1"]))
    a(valu(f"v_and_b32 v2, 31, {L}", [L], ["v2"])); a(valu(f"v_lshl_add_u32 v{V_RLD}, v2, 4, v1", ["v1", "v2"], [f"v{V_RLD}"]))
    a(salu(f"s_lshl_b32 s{S_T2}, s{S_W}, 9")); a(valu(f"v_add_u32 v{V_RLD}, s{S_T2}, v{V_RLD}", [f"v{V_RLD}"], [f"v{V_RLD}"]))
    a(valu(f"v_and_b32 v1, 15, {L}", [L], ["v1"])); a(valu(f"v_lshrrev_b32 v2, 4, {L}", [L], ["v2"]))
    a(valu("v_lshrrev_b32 v4, 3, v1", ["v1"], ["v4"])); a(valu("v_and_b32 v5, 1, v2", ["v2"], ["v5"]))
    a(valu("v_and_b32 v48, 1, v1", ["v1"], ["v48"])); a(valu("v_lshlrev_b32 v48, 4, v48", ["v48"], ["v48"]))
    a(valu("v_mov_b32 v49, 0x3f80", [], ["v49"])); a(valu("v_lshlrev_b32 v49, v48, v49", ["v48", "v49"], ["v49"]))
    a(valu("v_cmp_eq_u32 vcc, v4, v5", ["v4", "v5"], ["vcc"])); a(nop(1))
    a(valu("v_cndmask_b32 v49, 0, v49, vcc", ["v49", "vcc"], ["v49"]))
    a(valu("v_bfe_u32 v50, v1, 1, 2", ["v1"], ["v50"]))
    for r in range(4):
        a(valu(f"v_cmp_eq_u32 vcc, {r}, v50", ["v50"], ["vcc"])); a(nop(1))
        a(valu("v_cndmask_b32 v51, 0, v49, vcc", ["v49", "vcc"], ["v51"]))
        a(valu(f"v_accvgpr_write_b32 a{A_SEL+r}, v51", ["v51"], [f"a{A_SEL+r}"]))
    a(salu(f"s_lshl_b32 s{S_T2}, s{S_B}, 8")); a(salu(f"s_lshl_b32 s{S_T3}, s{S_H}, 4")); a(salu(f"s_add_u32 s{S_T2}, s{S_T2}, s{S_T3}"))
    a(valu(f"v_add_u32 v{V_OUT}, s{S_T2}, v1", ["v1"], [f"v{V_OUT}"])); a(valu(f"v_mul_u32_u24 v{V_OUT}, 896, v{V_OUT}", [f"v{V_OUT}"], [f"v{V_OUT}"]))
    a(salu(f"s_mul_i32 s{S_T2}, s{S_BR}, 448")); a(salu(f"s_lshr_b32 s{S_T3}, s{S_W}, 1")); a(salu(f"s_lshl_b32 s{S_T3}, s{S_T3}, 5"))
    a(salu(f"s_add_u32 s{S_T2}, s{S_T2}, s{S_T3}")); a(salu(f"s_and_b32 s{S_T3}, s{S_W}, 1")); a(salu(f"s_lshl_b32 s{S_T3}, s{S_T3}, 3"))
    a(salu(f"s_add_u32 s{S_T2}, s{S_T2}, s{S_T3}"))
    a(valu(f"v_add_u32 v{V_OUT}, s{S_T2}, v{V_OUT}", [f"v{V_OUT}"], [f"v{V_OUT}"]))
    a(valu(f"v_lshl_add_u32 v{V_OUT}, v5, 4, v{V_OUT}", ["v5", f"v{V_OUT}"], [f"v{V_OUT}"]))
    a(valu("v_lshrrev_b32 v4, 1, v2", ["v2"], ["v4"])); a(valu(f"v_lshl_add_u32 v{V_OUT}, v4, 2, v{V_OUT}", ["v4", f"v{V_OUT}"], [f"v{V_OUT}"]))
    a(valu(f"v_lshlrev_b32 v{V_OUT}, 1, v{V_OUT}", [f"v{V_OUT}"], [f"v{V_OUT}"]))
    return o

def handoff_far():
    o = [wait_vm(0), barrier(), raw("buffer_wbl2 sc1", "salu"), wait_vm(0), barrier(),
         raw(f"buffer_store_byte v{V_ONE}, v{V_ZERO}, s[{S_DBG}:{S_DBG+3}], s{S_SIG} offen sc1", "salu"), wait_vm(0),
         salu(f"s_mov_b32 s{S_SPIN}, {SPIN_MAX}"), label("L_far_poll"),
         salu(f"s_sub_u32 s{S_SPIN}, s{S_SPIN}, 1"), salu(f"s_cmp_eq_u32 s{S_SPIN}, 0"), raw("s_cbranch_scc1 L_far_done", "branch")]
    o += far_read(V_POLL, V_GA3)
    o += [valu(f"v_and_b32 v{V_POLL}, 0xf0f0f0f0, v{V_POLL}", [], []), valu(f"v_cmp_eq_u32 vcc, 0xf0f0f0f0, v{V_POLL}", [], []), nop(0),
          salu("s_and_b64 s[52:53], vcc, 15"), salu("s_cmp_eq_u64 s[52:53], 15"), raw("s_cbranch_scc0 L_far_poll", "branch"),
          label("L_far_done"), raw("buffer_inv sc1", "salu"), wait_vm(0)]
    return o

A_PIECE = 0; A_SEL2 = 224
def red_loads(j):
    out = []
    for i in range(8):
        sr = "s52" if i % 2 == 0 else "s53"
        out.append(([salu(f"s_add_u32 {sr}, s{S_RBASE}, {j*16*32768 + i*4096}", [f"s{S_RBASE}"], [sr])],
                    tag(bload_f("a", A_PIECE + 32 * j + 4 * i, 4, V_RLD, S_WS, sr, 0, "sc1"), f"rl{j}")))
    return out
def red_mfmas(j):
    d = V_RD + 4 * (j & 1)
    return [mfma("v", d, "a", A_SEL2, "a", A_PIECE + 32 * j + 4 * i, None if i == 0 else "v", None if i == 0 else d) for i in range(8)]
def red_out(j):
    d = V_RD + 4 * (j & 1)
    return [valu(f"v_cvt_pk_bf16_f32 v{d}, v{d}, v{d+1}", [f"v{d}", f"v{d+1}"], [f"v{d}"]),
            valu(f"v_cvt_pk_bf16_f32 v{d+1}, v{d+2}, v{d+3}", [f"v{d+2}", f"v{d+3}"], [f"v{d+1}"])], tag(bstore(d, 2, V_OUT, S_OUT, "0", j * 128), f"out{j}")

A_RING = 64; A_SEL4 = 96
V_RLD4, V_OUT4, V_FLA, V_FLAG1 = 48, 49, 50, 51
def ring_setup():
    o = []; a = o.append
    L = f"v{V_LANE}"
    a(salu(f"s_lshl_b32 s{S_T0}, s{S_G}, 20"))
    a(salu(f"s_lshl_b32 s{S_T1}, s{S_W}, 16")); a(salu(f"s_add_u32 s{S_RST}, s{S_T0}, s{S_T1}"))
    a(salu(f"s_lshl_b32 s{S_T1}, s{S_H}, 10")); a(salu(f"s_add_u32 s{S_RST}, s{S_RST}, s{S_T1}"))
    a(salu(f"s_lshl_b32 s{S_T1}, s{S_H}, 14")); a(salu(f"s_add_u32 s{S_RLD}, s{S_T0}, s{S_T1}"))
    a(salu(f"s_mul_i32 s{S_T0}, s{S_G}, {14*64}"))
    a(salu(f"s_lshl_b32 s{S_T1}, s{S_W}, 4"))
    a(salu(f"s_add_u32 s{S_FPW}, s{S_T0}, s{S_T1}")); a(salu(f"s_add_u32 s{S_FPW}, s{S_FPW}, s{S_H}"))
    a(salu(f"s_add_u32 s{S_FCR}, s{S_T0}, s{S_T1}")); a(salu(f"s_add_u32 s{S_FCR}, s{S_FCR}, {CONS_OFF}"))
    a(salu(f"s_lshr_b32 s{S_T1}, s{S_H}, 2")); a(salu(f"s_lshl_b32 s{S_T1}, s{S_T1}, 4"))
    a(salu(f"s_add_u32 s{S_FPR}, s{S_T0}, s{S_T1}"))
    a(salu(f"s_lshl_b32 s{S_T1}, s{S_H}, 2")); a(salu(f"s_add_u32 s{S_FCW}, s{S_T0}, s{S_T1}"))
    a(salu(f"s_add_u32 s{S_FCW}, s{S_FCW}, s{S_W}")); a(salu(f"s_add_u32 s{S_FCW}, s{S_FCW}, {CONS_OFF}"))
    a(valu(f"v_and_b32 v{V_FLA}, 3, {L}", [L], [f"v{V_FLA}"])); a(valu(f"v_lshlrev_b32 v{V_FLA}, 2, v{V_FLA}", [f"v{V_FLA}"], [f"v{V_FLA}"]))
    a(valu(f"v_mov_b32 v{V_FLAG1}, 1", [], [f"v{V_FLAG1}"]))
    a(valu(f"v_and_b32 v1, 15, {L}", [L], ["v1"])); a(valu(f"v_lshrrev_b32 v2, 4, {L}", [L], ["v2"]))
    a(valu(f"v_lshlrev_b32 v{V_RLD4}, 10, v2", ["v2"], [f"v{V_RLD4}"])); a(valu(f"v_lshl_add_u32 v{V_RLD4}, v1, 4, v{V_RLD4}", ["v1", f"v{V_RLD4}"], [f"v{V_RLD4}"]))
    a(salu(f"s_lshl_b32 s{S_T1}, s{S_W}, 8")); a(valu(f"v_add_u32 v{V_RLD4}, s{S_T1}, v{V_RLD4}", [f"v{V_RLD4}"], [f"v{V_RLD4}"]))
    a(valu("v_and_b32 v4, 1, v1", ["v1"], ["v4"])); a(valu("v_lshlrev_b32 v4, 4, v4", ["v4"], ["v4"]))
    a(valu("v_mov_b32 v5, 0x3f80", [], ["v5"])); a(valu("v_lshlrev_b32 v5, v4, v5", ["v4", "v5"], ["v5"]))
    a(valu("v_lshrrev_b32 v4, 1, v1", ["v1"], ["v4"]))
    for r in range(4):
        a(valu(f"v_cmp_eq_u32 vcc, {r}, v4", ["v4"], ["vcc"])); a(nop(1))
        a(valu("v_cndmask_b32 v52, 0, v5, vcc", ["v5", "vcc"], ["v52"]))
        a(valu(f"v_accvgpr_write_b32 a{A_SEL4+r}, v52", ["v52"], [f"a{A_SEL4+r}"]))
    a(salu(f"s_lshl_b32 s{S_T0}, s{S_B}, 8")); a(salu(f"s_lshl_b32 s{S_T1}, s{S_H}, 4")); a(salu(f"s_add_u32 s{S_T0}, s{S_T0}, s{S_T1}"))
    a(valu(f"v_add_u32 v{V_OUT4}, s{S_T0}, v1", ["v1"], [f"v{V_OUT4}"])); a(valu(f"v_mul_u32_u24 v{V_OUT4}, 896, v{V_OUT4}", [f"v{V_OUT4}"], [f"v{V_OUT4}"]))
    a(salu(f"s_mul_i32 s{S_T0}, s{S_BR}, 448")); a(salu(f"s_lshl_b32 s{S_T1}, s{S_W}, 2")); a(salu(f"s_add_u32 s{S_T0}, s{S_T0}, s{S_T1}"))
    a(valu(f"v_add_u32 v{V_OUT4}, s{S_T0}, v{V_OUT4}", [f"v{V_OUT4}"], [f"v{V_OUT4}"]))
    a(valu(f"v_lshl_add_u32 v{V_OUT4}, v2, 4, v{V_OUT4}", ["v2", f"v{V_OUT4}"], [f"v{V_OUT4}"]))
    a(valu(f"v_lshlrev_b32 v{V_OUT4}, 1, v{V_OUT4}", [f"v{V_OUT4}"], [f"v{V_OUT4}"]))
    a(valu("v_cmp_gt_u32 vcc, 2, v2", ["v2"], ["vcc"])); a(salu(f"s_mov_b32 s{S_T0}, 0x7ff00000")); a(valu(f"v_mov_b32 v4, s{S_T0}", [], ["v4"]))
    a(valu(f"v_cndmask_b32 v{V_OUT4}, v4, v{V_OUT4}, vcc", ["v4", f"v{V_OUT4}", "vcc"], [f"v{V_OUT4}"]))
    return o

def flag_store(base, u, tg):
    return [salu(f"s_add_u32 s55, s{base}, {u*64}", [f"s{base}"], ["s55"])], \
           tag(I(f"buffer_store_byte v{V_FLAG1}, v{V_ZERO}, s[{S_FL}:{S_FL+3}], s55 offen", "vst", [f"v{V_FLAG1}", f"v{V_ZERO}", "s55"], data=[]), tg)
def flag_poll(base, u, dst, tg):
    return [salu(f"s_add_u32 s54, s{base}, {u*64}", [f"s{base}"], ["s54"])], tag(bload(dst, 1, V_FLA, S_FL, "s54", 0, "sc1"), tg)
def flag_check(base, u, dst, tg, name):
    OOL.extend([label(f"L_{name}_spin"), salu(f"s_add_u32 s54, s{base}, {u*64}"), salu(f"s_mov_b32 s{S_SPIN}, {SPIN_MAX}"),
                label(f"L_{name}_again"),
                salu(f"s_sub_u32 s{S_SPIN}, s{S_SPIN}, 1"), salu(f"s_cmp_eq_u32 s{S_SPIN}, 0"), raw(f"s_cbranch_scc1 L_{name}_ok", "branch"),
                raw(f"buffer_load_dword v{dst}, v{V_FLA}, s[{S_FL}:{S_FL+3}], s54 offen sc1", "salu"), wait_vm(0),
                valu(f"v_cmp_ne_u32 vcc, 0x01010101, v{dst}", [], []), nop(0),
                raw(f"s_cbranch_vccnz L_{name}_again", "branch"), raw(f"s_branch L_{name}_ok", "branch")])
    dd = (lambda n: stamp("d_" + n)) if name in (f"prod{OPT.p3detail}", f"cons{OPT.p3detail}") else (lambda n: [])
    return dd(name[:4] + "A") + [wait_tag(tg)] + dd(name[:4] + "B") + [valu(f"v_cmp_ne_u32 vcc, 0x01010101, v{dst}", [f"v{dst}"], ["vcc"]), nop(0),
            raw(f"s_cbranch_vccnz L_{name}_spin", "branch"), label(f"L_{name}_ok")] + dd(name[:4] + "C")
V_PP, V_PC = 53, 54
def ring_loads(u):
    out = []
    for i in range(4):
        sr = "s52" if i % 2 == 0 else "s53"
        out.append(([salu(f"s_add_u32 {sr}, s{S_RLD}, {(u & 3)*262144 + i*4096}", [f"s{S_RLD}"], [sr])],
                    tag(bload_f("a", A_RING + 16 * (u & 1) + 4 * i, 4, V_RLD4, S_RG, sr, 0, "sc1"), f"rl{u}")))
    return out
def ring_mfmas(u):
    d = V_RD + 4 * (u & 1)
    return [mfma("v", d, "a", A_SEL4, "a", A_RING + 16 * (u & 1) + 4 * i, None if i == 0 else "v", None if i == 0 else d) for i in range(4)]
def ring_out(u):
    d = V_RD + 4 * (u & 1)
    return [valu(f"v_cvt_pk_bf16_f32 v{d}, v{d}, v{d+1}", [f"v{d}", f"v{d+1}"], [f"v{d}"]),
            valu(f"v_cvt_pk_bf16_f32 v{d+1}, v{d+2}, v{d+3}", [f"v{d+2}", f"v{d+3}"], [f"v{d+1}"])], tag(bstore(d, 2, V_OUT4, S_OUT, "0", u * 64), f"out{u}")

def p3_stream(local, carried):
    o = []; a = o.append
    ms = []; pos = {}; redpos = {}
    ins = {}
    if local:
        for u in range(14):
            m = 64 * u + OPT.red_m
            if m < 896: ins[m] = u
    for j in range(7):
        for i in range(128):
            nb, qb, s_ = i >> 5, (i >> 3) & 3, i & 7
            acc = V_ACC3 + 4 * ((nb * 4 + qb) % 8)
            pos[(j, i)] = len(ms)
            ms.append(mfma("v", acc, "a", A_FR3 + 4 * (8 * (nb & 1) + s_), "v", V_Q + (qb * 8 + s_) * 4,
                           None if s_ == 0 else "v", None if s_ == 0 else acc))
            if 128 * j + i in ins:
                u = ins[128 * j + i]; redpos[u] = len(ms); ms += ring_mfmas(u)
    g = Gaps(ms); N = g.n
    P = lambda j, i: pos[(j, i)] if j < 7 else N + (j - 7) * 128 + i
    for j in range(7):
        for nb in range(4):
            jn, nbn = (j, nb + 1) if nb < 3 else (j + 1, 0)
            if jn > 6: continue
            for s_ in range(8):
                for jj in range(2): g.put_mem(P(j, 32 * nb + 4 * s_ + 2 * jj), wo_read(nbn, s_, jj))
    cons = []
    for j in range(7):
        for nb in range(4):
            for s_ in (0, 2, 4, 6): cons.append((P(j, 32 * nb + s_), R("a", A_FR3 + 4 * (8 * (nb & 1) + s_), 8)))
    cons.sort()
    lead = add_lgkm_waits(g, cons, carried)
    for j in range(6):
        k = P(j, 93)
        while g.pre[k]: k -= 1
        g.pre[k] = [wait_tag(f"wo{j+1}"), barrier()]
        sh = va_shift(WOBUF[j + 1] - WOBUF[j])
        assert g.place_vec(sh[0], P(j, 91), P(j, 96)) is not None
        assert g.place_vec(sh[1], P(j, 40), P(j, 96)) is not None
        assert g.place_vec(sh[2], P(j, 66), P(j, 96)) is not None
        assert g.place_vec(sh[3], P(j, 97), P(j, 127)) is not None
    def seq_at(k, seq):
        while k < N and (g.mem[k] is not None or g.vec[k] or g.pre[k] or g.post[k]): k += 1
        if k >= N: return None
        g.post[k] = seq; return k
    def vmem_at(k, sc, d):
        try: return place_vmem(g, k, sc, d, N)
        except AssertionError: return None
    for j in (2, 3):
        gp = P(j, 3)
        for sc, d in wo_dma(j + 3): gp = place_vmem(g, gp, sc, d) + OPT.wo_step
    store_gap = {}; stores = {}; first_st = {}; last_st = {}
    for j in range(7):
        for nb in (1, 3):
            u = 2 * j + (nb >> 1)
            for qb in range(4):
                sreg = S_T2 + (qb & 1)
                if local:
                    st = ([salu(f"s_add_u32 s{sreg}, s{S_RST}, {(u & 3)*262144 + qb*16384}", [f"s{S_RST}"], [f"s{sreg}"])],
                          tag(bstore(V_STG + 4 * qb, 4, V_STO, S_RG, f"s{sreg}", 0), f"st{u}"))
                else:
                    so = j * 16 * 16 * 2048 + qb * 16 * 2048 + (nb >> 1) * 1024
                    st = ([salu(f"s_add_u32 s{sreg}, s{S_PART}, {so}", [f"s{S_PART}"], [f"s{sreg}"])],
                          tag(bstore(V_STG + 4 * qb, 4, V_STO, S_WS, f"s{sreg}", 0), f"st{u}"))
                stores[(j, nb, qb)] = st
                want = P(j, 32 * nb + 8 * qb + 7) + OPT.st_lag
                k = vmem_at(want, *st) if want < N else None
                store_gap[(j, nb, qb)] = k
                if k is not None:
                    first_st.setdefault(u, k); last_st[u] = k
    done = {}
    if local:
        for u in range(4, 14):
            assert u in first_st
            sc, d = flag_poll(S_FCR, u - 4, V_PC, f"pc{u}")
            kp = place_vmem(g, first_st[u] - OPT.cons_poll, sc, d, first_st[u] - 12)
            kc = seq_at(kp + OPT.cons_chk, flag_check(S_FCR, u - 4, V_PC, f"pc{u}", f"cons{u}"))
            assert kc is not None and kc < first_st[u] - 1, (u, kc, first_st[u])
        for u in range(14):
            j, nb = u >> 1, 2 * (u & 1) + 1
            full = store_gap[(j, nb, 3)] is not None
            done[u] = "sig"
            if not full: continue
            sc, d = flag_store(S_FPW, u, f"sig{u}")
            dd = (lambda n: stamp("d_" + n)) if u == OPT.p3detail else (lambda n: [])
            k = seq_at(last_st[u] + OPT.sig_lag, dd("sigA") + [wait_tag(f"st{u}")] + dd("sigB") + sc + [d])
            if k is None: continue
            done[u] = "poll"
            sc, d = flag_poll(S_FPR, u, V_PP, f"pp{u}")
            k2 = vmem_at(k + OPT.poll_lag, sc, d)
            if k2 is None: continue
            done[u] = "check"
            k3 = seq_at(k2 + OPT.chk_lag, flag_check(S_FPR, u, V_PP, f"pp{u}", f"prod{u}"))
            if k3 is None: continue
            done[u] = "loads"
            if u not in redpos: continue
            k4 = k3 + 1
            for sc, d in ring_loads(u): k4 = place_vmem(g, k4, sc, d, redpos[u] - OPT.ld_min) + 1
            g.pre[redpos[u] - 1][0:0] = dd("rlA") + [wait_tag(f"rl{u}")] + dd("rlB")
            if u <= 9:
                sc, d = flag_store(S_FCW, u, f"csig{u}")
                place_vmem(g, redpos[u] + 1, sc, d)
            cv, st = ring_out(u)
            ko = place_vmem(g, redpos[u] + 3 + 14, [], st)
            lo, left = place_chain(g, cv, redpos[u] + 3 + 8, ko - 1); assert not left
            done[u] = "all"
    tail_main = []
    for j in range(7):
        for nb in range(4):
            for qb in range(4):
                sg = store_gap[(j, nb | 1, qb)]
                start = P(j, 32 * nb + 8 * qb + 7) + 8
                if tail_main or start >= N: lo, left = N, part_ops(nb, qb)
                else: lo, left = place_chain(g, part_ops(nb, qb), start, (sg - 1) if (sg is not None) else N)
                assert not (left and sg is not None), (j, nb, qb, len(left))
                tail_main += left
                if (nb & 1) and sg is None: tail_main += stores[(j, nb, qb)][0] + [nop(1), stores[(j, nb, qb)][1]]
    if lead is not None: a(lead)
    em = g.emit()
    if "allst" in OPT.p3_drop: em = [x for x in em if x.kind != "vst"]
    if "pst" in OPT.p3_drop: em = [x for x in em if not (x.kind == "vst" and x.meta.get("tag", "").startswith("st"))]
    if "valu" in OPT.p3_drop: em = [x for x in em if x.kind != "valu"]
    if "ds" in OPT.p3_drop: em = [x for x in em if x.kind != "ds" and not (x.kind == "wait" and "lgkm" in x.meta)]
    if "nospin" in OPT.p3_drop: em = [x for x in em if not (x.kind == "branch" and "vccnz" in x.text)]
    if "novm" in OPT.p3_drop: em = [x for x in em if not (x.kind == "wait" and "vmtags" in x.meta and not x.meta["vmtags"][0].startswith("wo"))]
    if "nold" in OPT.p3_drop: em = [x for x in em if not (x.kind == "vld" and x.meta.get("tag", "").startswith("rl"))]
    if "noflag" in OPT.p3_drop: em = [x for x in em if not (x.kind in ("vld", "vst") and x.meta.get("tag", "")[:2] in ("si", "pp", "pc", "cs"))]
    if "dma" in OPT.p3_drop: em = [x for x in em if x.kind != "dma"]
    if "bar" in OPT.p3_drop: em = [x for x in em if x.kind != "barrier" and not (x.kind == "wait" and "vmtags" in x.meta)]
    o += stamp("p3_stream_start") if (local or not OPT.fused) else []
    o += em
    if local or not OPT.fused: o += stamp("p3_mfma_end")
    a(nop(7)); o += exposed(tail_main)
    if local:
        todo = [u for u in range(14) if done[u] != "all"]
        for u in todo:
            if done[u] == "sig":
                sc, d = flag_store(S_FPW, u, f"sig{u}"); o += [wait_tag(f"st{u}")] + sc + [d]
        o += stamp("x_last_signal")
        for u in todo:
            if done[u] in ("sig", "poll"):
                sc, d = flag_poll(S_FPR, u, V_PP, f"pp{u}"); o += sc + [d]
            if done[u] in ("sig", "poll", "check"): o += flag_check(S_FPR, u, V_PP, f"pp{u}", f"prod{u}")
            for sc, d in ring_loads(u): o += sc + [d]
            o.append(wait_tag(f"rl{u}"))
            o += ring_mfmas(u); a(nop(7))
            cv, st = ring_out(u); o += cv + [st]
    return o

def phase3():
    o = []; a = o.append
    a(wait_tag("wt"))
    o += p3_setup()
    if OPT.fused: o += ring_setup()
    o += va_shift(WOBUF[0] - L_V)
    if OPT.fused: o += mode_check()
    a(wait_tag("wo0")); a(barrier())
    carried = []
    for s_ in range(8):
        for jj in range(2):
            r = wo_read(0, s_, jj); a(r); carried.append(r.wr)
            if len(carried) == 14: a(wait_lgkm(6)); carried = carried[-6:]
    for sc, d in wo_dma(4): o += sc + [nop(0), d]
    if not OPT.fused:
        return o, p3_stream(False, carried) + stamp("p3_end") + ([wait_vm(0)] if OPT.stamps else []) + stamp("rt_end"), []
    o += [salu(f"s_cmp_eq_u32 s{S_LOCM}, 0"), raw("s_cbranch_scc1 L_p3_far", "branch")]
    loc = p3_stream(True, carried)
    loc += stamp("p3_end") + ([wait_vm(0)] if OPT.stamps else []) + stamp("rt_end")
    far = [label("L_p3_far")] + p3_stream(False, carried) + handoff_far()
    for j in range(7):
        for sc, d in red_loads(j): far += sc + [d]
    for j in range(7):
        far.append(wait_tag(f"rl{j}"))
        far += red_mfmas(j)
        if j > 0:
            cv, stt = red_out(j - 1); far += cv + [stt]
    far.append(nop(7))
    cv, stt = red_out(6); far += cv + [stt]
    far += [wait_vm(0), raw("s_endpgm", "branch")]
    return o, loc, far

def dump_regs(base, n, agpr=False):
    o = [wait_vm(0), raw("s_waitcnt lgkmcnt(0)", "wait", lgkm=0), nop(7), nop(7),
         salu(f"s_lshl_b32 s{S_T0}, s2, 2"), salu(f"s_add_u32 s{S_T0}, s{S_T0}, s{S_W}"),
         salu(f"s_mul_i32 s{S_T0}, s{S_T0}, {n*256}"), valu(f"v_lshlrev_b32 v1, 2, v{V_LANE}", [f"v{V_LANE}"], ["v1"])]
    for r in range(n):
        if agpr:
            o.append(valu(f"v_accvgpr_read_b32 v2, a{base+r}", [f"a{base+r}"], ["v2"])); o.append(bstore(2, 1, 1, S_WS, f"s{S_T0}", 0))
        else:
            o.append(bstore(base + r, 1, 1, S_WS, f"s{S_T0}", 0))
        o.append(salu(f"s_add_u32 s{S_T0}, s{S_T0}, 256"))
        if r % 32 == 31 or agpr: o.append(wait_vm(0))
    return o

def stamp_out():
    if not OPT.stamps: return []
    if OPT.bar_stamps: STAMPS.extend(["acc_vm", "acc_bar"])
    n = len(STAMPS)
    o = [raw("s_waitcnt lgkmcnt(0)", "wait", lgkm=0), salu(f"s_cmp_lg_u32 s{S_W}, 0"), raw("s_cbranch_scc1 L_nostamp", "branch")]
    if OPT.stamp_dbg >= 0:
        o += [salu(f"s_cmp_lg_u32 s2, {OPT.stamp_dbg}"), raw("s_cbranch_scc1 L_nostamp", "branch")]
        o += [salu("s_load_dwordx2 s[36:37], s[0:1], 88"), raw("s_waitcnt lgkmcnt(0)", "wait", lgkm=0)]
        o += [salu(f"s_mov_b32 s{S_WS}, s36"), salu(f"s_mov_b32 s{S_WS+1}, s37"), salu(f"s_mov_b32 s{S_WS+2}, 256"), salu(f"s_mov_b32 s{S_T0}, 0")]
    else:
        o.append(salu(f"s_mul_i32 s{S_T0}, s2, 64")); o.append(salu(f"s_add_u32 s{S_T0}, s{S_T0}, {STAMP_OFF}"))
        o.append(salu(f"s_mov_b32 s{S_WS+2}, {STAMP_OFF + 256*64}"))
    if OPT.trip_stamps:
        o += [valu(f"v_lshlrev_b32 v2, 2, v{V_LANE}", [], ["v2"]), salu(f"s_mul_i32 s{S_T1}, s2, 64"),
              salu(f"s_add_u32 s{S_T1}, s{S_T1}, {STAMP_OFF + 256*64}"), salu(f"s_mov_b32 s{S_WS+2}, {STAMP_OFF + 2*256*64}"),
              valu("v_cmp_gt_u32 vcc, 16, v0", ["v0"], ["vcc"]), raw("s_and_saveexec_b64 s[36:37], vcc", "salu"),
              bstore(1, 1, 2, S_WS, f"s{S_T1}", 0), wait_vm(0), raw("s_mov_b64 exec, s[36:37]", "salu")]
    o.append(valu("v_mov_b32 v1, 0", [], ["v1"]))
    for k in range(n):
        if OPT.stamp_dbg >= 0:
            ref = 0 if STAMPS[k].startswith("rt") else 1
            o.append(salu(f"s_sub_u32 s{S_T1}, s{S_STAMP+2*k}, s{S_STAMP+2*ref}"))
            o.append(valu(f"v_mov_b32 v2, s{S_T1}", [], ["v2"]))
        elif STAMPS[k] == "acc_vm": o.append(valu("v_mov_b32 v2, s92", [], ["v2"]))
        elif STAMPS[k] == "acc_bar": o.append(valu("v_mov_b32 v2, s93", [], ["v2"]))
        else:
            o.append(valu(f"v_mov_b32 v2, s{S_STAMP+2*k}", [], ["v2"]))
        o.append(bstore(2, 1, 1, S_WS, f"s{S_T0}", 4 * k)); o.append(wait_vm(0))
    o.append(label("L_nostamp"))
    return o

def finish(): return [wait_vm(0), label("L_end"), raw("s_endpgm", "branch")]

def build(debug=None):
    _stamp_n[0] = 0; STAMPS.clear(); OOL.clear()
    pre = setup() + phase1()
    if debug == "p1":
        pre += stamp("rt_end")
        resolve_vm(pre, [])
        return pre + stamp_out() + finish()
    if debug == "q":
        resolve_vm(pre, []); check(pre, "pre")
        return pre + dump_regs(V_Q, 128) + finish()
    if OPT.dma_mode == "cluster":
        OPT.dma_gaps = ([21, 23, 25, 27], [101, 103, 105, 107]); OPT.nv_prev = 0
    elif OPT.dma_mode == "cluster2":
        OPT.dma_gaps = ([41, 43, 47, 49], [101, 103, 105, 107]); OPT.nv_prev = 0
    NCUR = len(OPT.dma_gaps[1])
    p, carried = pre_iter(); pre += p
    def batch(t):
        return dma_tile("V", vslot(t + 3), f"s{S_VOFF}", f"V{t+3}") + dma_tile("K", kslot(t + 5), f"s{S_KOFF}", f"K{t+5}")
    pre += wo_setup()
    if OPT.fused: pre += grp_setup()
    def ex0(g, kb):
        put_wo(g, 0, 3, kb, step=8)
    s0, carried = attn_iter(0, carried, wait_tag("V1", "K2"), [], batch(0)[:NCUR], first=True, adv=False, extra=ex0)
    pre += s0
    pre.append(salu(f"s_mov_b32 s{S_LOOP}, 7"))
    if OPT.bar_stamps: pre += [salu("s_mov_b32 s92, 0"), salu("s_mov_b32 s93, 0")]
    pre += stamp("loop_start") + (stamp("rt_ls") if OPT.bar_stamps else [])
    loop = [label("L_attn")]
    for u in range(4):
        t = 1 + u
        s, carried = attn_iter(t, carried, wait_vm(12), batch(t - 1)[NCUR:], batch(t)[:NCUR], loopctl=(u == 3), loop_body=True)
        loop += s
    if OPT.trip_stamps:
        loop += [raw("s_memtime s[98:99]", "salu"), raw("s_waitcnt lgkmcnt(0)", "wait", lgkm=0),
                 salu(f"s_mov_b32 s99, m0"), salu(f"s_mov_b32 m0, s{S_LOOP}"), nop(0), valu(f"v_writelane_b32 v1, s98, m0", ["s98"], ["v1"]),
                 salu("s_mov_b32 m0, s99"), salu(f"s_cmp_lg_u32 s{S_LOOP}, 0")]
    if OPT.loop_nodma: loop = [x for x in loop if x.kind != "dma"]
    if OPT.loop_nods: loop = [x for x in loop if x.kind != "ds" and not (x.kind == "wait" and "lgkm" in x.meta and x.meta["lgkm"] > 0)]
    if OPT.loop_nomfma: loop = [(nop(1) if x.kind == "mfma" else x) for x in loop]
    if OPT.loop_novalu: loop = [x for x in loop if x.kind not in ("valu", "trans")]
    if OPT.loop_dma_every > 1:
        cnt = [0]
        def keep(x):
            if x.kind != "dma": return True
            cnt[0] += 1
            return cnt[0] % OPT.loop_dma_every == 0
        loop = [x for x in loop if keep(x)]
    loop.append(raw("s_cbranch_scc1 L_attn", "branch"))
    post = stamp("loop_end") + (stamp("rt_le") if OPT.bar_stamps else [])
    def ex29(g, kb):
        if OPT.fused: place_vmem(g, 40, [], mode_load(), kb)
        gp = 50
        for j in OPT.wo_touch: gp = place_vmem(g, gp, [], wo_touch(j), kb) + 12
    post += wo_touch_setup()
    s, carried = attn_iter(29, carried, wait_tag("V30", "K32"), batch(28)[NCUR:4], [], adv=False,
                           extra=ex29)
    post += s
    def ex30(g, kb):
        put_wo(g, 1, 3, kb, step=8)
    s, carried = attn_iter(30, carried, wait_tag("V31"), [], [], adv=False, extra=ex30)
    post += s
    post += last_iter(carried)
    post += stamp("attn_end")
    if debug == "o":
        tailq = dump_regs(V_Q, 128)
    elif debug == "l":
        tailq = dump_regs(V_L, 4)
    else:
        common, loc, far = phase3()
        tailq = common
    post += tailq
    q = resolve_vm(pre, [])
    qexit = ["V30"] * 4 + ["K32"] * 4 + ["V31"] * NCUR
    qb_ = resolve_vm(post, qexit)
    if debug is None:
        resolve_vm(loc, qb_); resolve_vm(far, qb_)
        if far and not OPT.p3_drop: check(loop[1:] + post + far[1:], "loop+post+far", init_lgkm=[x.wr for x in pre if x.kind == "ds"][-8:], init_vm=[[]] * (8 + NCUR))
        post = post + loc
        OOL.extend(far)
    if not (OPT.p1_nowait or OPT.p1_noread or OPT.p1_drop or OPT.loop_nodma or OPT.loop_dma_every > 1 or OPT.loop_nods or OPT.loop_nomfma or OPT.loop_novalu): check(pre + loop[1:] + loop[1:], "pre+loop")
    if not (OPT.p3_drop or OPT.loop_nodma or OPT.loop_dma_every > 1 or OPT.loop_nods or OPT.loop_nomfma or OPT.loop_novalu): check(loop[1:] + post, "loop+post", init_lgkm=[x.wr for x in pre if x.kind == "ds"][-8:], init_vm=[[]] * (8 + NCUR))
    return pre + loop + post + stamp_out() + finish() + OOL

def reduce_kernel():
    o = []; a = o.append
    a(salu("s_cmp_ge_u32 s2, 256")); a(raw("s_cbranch_scc1 R_end", "branch"))
    a(salu("s_load_dwordx2 s[4:5], s[0:1], 80")); a(salu("s_load_dwordx2 s[6:7], s[0:1], 96"))
    a(valu("v_lshrrev_b32 v1, 6, v0", ["v0"], ["v1"])); a(valu("v_and_b32 v0, 63, v0", ["v0"], ["v0"]))
    a(valu("v_readfirstlane_b32 s32, v1", ["v1"], ["s32"]))
    a(salu("s_lshr_b32 s33, s2, 4")); a(salu("s_and_b32 s34, s2, 15"))
    a(salu("s_lshr_b32 s35, s33, 3")); a(salu("s_and_b32 s36, s33, 7"))
    a(salu("s_lshr_b32 s37, s32, 1")); a(salu("s_and_b32 s38, s32, 1"))
    a(valu("v_lshrrev_b32 v2, 5, v0", ["v0"], ["v2"])); a(valu("v_lshlrev_b32 v2, 11, v2", ["v2"], ["v2"]))
    a(valu("v_and_b32 v3, 31, v0", ["v0"], ["v3"])); a(valu("v_lshl_add_u32 v2, v3, 4, v2", ["v3", "v2"], ["v2"]))
    a(salu("s_lshl_b32 s39, s37, 10")); a(salu("s_lshl_b32 s40, s38, 9")); a(salu("s_add_u32 s39, s39, s40"))
    a(valu("v_add_u32 v2, s39, v2", ["v2"], ["v2"]))
    a(valu("v_and_b32 v8, 15, v0", ["v0"], ["v8"])); a(valu("v_lshrrev_b32 v9, 4, v0", ["v0"], ["v9"]))
    a(valu("v_lshrrev_b32 v10, 3, v8", ["v8"], ["v10"])); a(valu("v_and_b32 v11, 1, v9", ["v9"], ["v11"]))
    a(valu("v_and_b32 v12, 1, v8", ["v8"], ["v12"])); a(valu("v_lshlrev_b32 v12, 4, v12", ["v12"], ["v12"]))
    a(valu("v_mov_b32 v13, 0x3f80", [], ["v13"])); a(valu("v_lshlrev_b32 v13, v12, v13", ["v12", "v13"], ["v13"]))
    a(valu("v_cmp_eq_u32 vcc, v10, v11", ["v10", "v11"], ["vcc"])); a(nop(1))
    a(valu("v_cndmask_b32 v13, 0, v13, vcc", ["v13", "vcc"], ["v13"]))
    a(valu("v_bfe_u32 v14, v8, 1, 2", ["v8"], ["v14"]))
    for r in range(4):
        a(valu(f"v_cmp_eq_u32 vcc, {r}, v14", ["v14"], ["vcc"])); a(nop(1))
        a(valu(f"v_cndmask_b32 v{4+r}, 0, v13, vcc", ["v13", "vcc"], [f"v{4+r}"]))
    a(salu("s_lshl_b32 s41, s36, 8")); a(salu("s_lshl_b32 s42, s34, 4")); a(salu("s_add_u32 s41, s41, s42"))
    a(valu("v_add_u32 v3, s41, v8", ["v8"], ["v3"])); a(valu("v_mul_u32_u24 v3, 896, v3", ["v3"], ["v3"]))
    a(salu("s_mul_i32 s42, s35, 448")); a(salu("s_lshl_b32 s43, s37, 5")); a(salu("s_add_u32 s42, s42, s43"))
    a(salu("s_lshl_b32 s43, s38, 3")); a(salu("s_add_u32 s42, s42, s43"))
    a(valu("v_add_u32 v3, s42, v3", ["v3"], ["v3"]))
    a(valu("v_lshl_add_u32 v3, v11, 4, v3", ["v11", "v3"], ["v3"]))
    a(valu("v_lshrrev_b32 v10, 1, v9", ["v9"], ["v10"])); a(valu("v_lshl_add_u32 v3, v10, 2, v3", ["v10", "v3"], ["v3"]))
    a(valu("v_lshlrev_b32 v3, 1, v3", ["v3"], ["v3"]))
    a(raw("s_waitcnt lgkmcnt(0)", "wait", lgkm=0))
    for base, lo, size in ((8, 6, 16 * 7 * 16 * 16 * 2048), (12, 4, 8 * 256 * 896 * 2)):
        a(salu(f"s_mov_b32 s{base}, s{lo}")); a(salu(f"s_mov_b32 s{base+1}, s{lo+1}"))
        a(salu(f"s_mov_b32 s{base+2}, {size}")); a(salu(f"s_mov_b32 s{base+3}, 0x20000"))
    a(salu(f"s_mul_i32 s44, s33, {7*16*32768}")); a(salu("s_lshl_b32 s45, s34, 15")); a(salu("s_add_u32 s44, s44, s45"))
    for j in range(7):
        for i in range(8):
            a(salu(f"s_add_u32 s46, s44, {j*16*32768 + i*4096}"))
            a(tag(bload(16 + (j * 8 + i) * 4, 4, 2, 8, "s46", 0), f"p{j}"))
    for j in range(7):
        a(wait_tag(f"p{j}"))
        d = 240 + 4 * (j & 1)
        for i in range(8):
            a(mfma("v", d, "v", 4, "v", 16 + (j * 8 + i) * 4, None if i == 0 else "v", None if i == 0 else d))
        a(nop(7))
        a(valu(f"v_cvt_pk_bf16_f32 v{d}, v{d}, v{d+1}", [f"v{d}", f"v{d+1}"], [f"v{d}"]))
        a(valu(f"v_cvt_pk_bf16_f32 v{d+1}, v{d+2}, v{d+3}", [f"v{d+2}", f"v{d+3}"], [f"v{d+1}"]))
        a(tag(bstore(d, 2, 3, 12, "0", j * 128), "o"))
    resolve_vm(o, []); check(o, "reduce")
    if OPT.stamps and OPT.stamp_fwd >= 0:
        o += [wait_vm(0), salu("s_cmp_lg_u32 s2, 0"), raw("s_cbranch_scc1 R_end", "branch"),
              salu("s_load_dwordx2 s[20:21], s[0:1], 88"), raw("s_waitcnt lgkmcnt(0)", "wait", lgkm=0),
              salu("s_mov_b32 s16, s20"), salu("s_mov_b32 s17, s21"), salu("s_mov_b32 s18, 64"), salu("s_mov_b32 s19, 0x20000"),
              salu(f"s_mov_b32 s10, {16*7*16*16*2048 + 256*64}"), salu(f"s_mov_b32 s46, {16*7*16*16*2048} + 64*{OPT.stamp_fwd}"),
              valu("v_lshlrev_b32 v2, 2, v0", ["v0"], ["v2"]), bload(3, 1, 2, 8, "s46", 0), wait_vm(0), bstore(3, 1, 2, 16, "0", 0)]
    o += [wait_vm(0), label("R_end"), raw("s_endpgm", "branch")]
    return o

KD = """.section .rodata,"a"
.p2align 6
.amdhsa_kernel {name}
  .amdhsa_next_free_vgpr {vgpr}
  .amdhsa_next_free_sgpr 102
  .amdhsa_accum_offset 256
  .amdhsa_group_segment_fixed_size 0
  .amdhsa_kernarg_size 104
  .amdhsa_user_sgpr_count 2
  .amdhsa_user_sgpr_kernarg_segment_ptr 1
  .amdhsa_system_sgpr_workgroup_id_x 1
.end_amdhsa_kernel
"""
def header_comments():
    ref = open("cdna_kernels/" + NAME + ".s.ref").read().splitlines()
    out = []
    for l in ref:
        if l.startswith("; Override launch") or not l.startswith(";"): break
        out.append(l)
    return out

def stream_kernel():
    t = """
  s_cmp_ge_u32 s2, 256
  s_cbranch_scc1 S_end
  s_load_dwordx2 s[4:5], s[0:1], 8
  s_load_dwordx2 s[6:7], s[0:1], 96
  s_load_dwordx2 s[8:9], s[0:1], 48
  v_lshrrev_b32 v2, 6, v0
  s_nop 0
  v_readfirstlane_b32 s24, v2
  v_and_b32 v1, 63, v0
  v_lshlrev_b32 v14, 4, v1
  s_nop 2
  s_lshl_b32 s25, s24, 12
  v_add_u32 v14, s25, v14
  s_waitcnt lgkmcnt(0)
  s_cmp_lt_u32 s2, 128
  s_cselect_b32 s36, s4, s8
  s_cselect_b32 s37, s5, s9
  s_mov_b32 s38, 0x4000000
  s_mov_b32 s39, 0x20000
  s_and_b32 s32, s2, 127
  s_lshl_b32 s32, s32, 19
  s_barrier
  s_memrealtime s[12:13]
  s_mov_b32 s20, 0
S_loop:
  s_mov_b32 m0, s25
  s_nop 0
  buffer_load_dwordx4 v14, s[36:39], s32 offen nt lds
  buffer_load_dwordx4 v14, s[36:39], s32 offen offset:1024 nt lds
  buffer_load_dwordx4 v14, s[36:39], s32 offen offset:2048 nt lds
  buffer_load_dwordx4 v14, s[36:39], s32 offen offset:3072 nt lds
  s_add_u32 s32, s32, 16384
  s_waitcnt vmcnt(8)
  s_barrier
  s_add_u32 s20, s20, 1
  s_cmp_lt_u32 s20, 32
  s_cbranch_scc1 S_loop
  s_waitcnt vmcnt(0)
  s_barrier
  s_memrealtime s[16:17]
  s_waitcnt lgkmcnt(0)
  s_sub_u32 s16, s16, s12
  s_mov_b32 s40, s6
  s_mov_b32 s41, s7
  s_mov_b32 s42, %d
  s_mov_b32 s43, 0x20000
  s_mul_i32 s33, s2, 64
  s_add_u32 s33, s33, %d
  v_mov_b32 v2, s16
  v_mov_b32 v1, 0
  buffer_store_dword v2, v1, s[40:43], s33 offen
  s_waitcnt vmcnt(0)
S_end:
  s_endpgm""" % (16*7*16*16*2048 + 256*64, 16*7*16*16*2048 + 60)
    return t

def assemble_file(debug=None):
    main = build(debug)
    red = reduce_kernel()
    k1 = NAME + "_kernel"; k2 = "reduce_heads_kernel"
    L = header_comments()
    if OPT.stream0: L.append(f"; @launch kernel=stream_test_kernel grid=(256,1,1) block=(256,1,1) lds={LDS_BYTES}")
    if OPT.fused and not OPT.stream0:
        L.append(f"; @launch grid=(256,1,1) block=(256,1,1) lds={LDS_BYTES}")
    else:
        L.append(f"; @launch kernel={k1} grid=(256,1,1) block=(256,1,1) lds={LDS_BYTES}")
        if debug is None and not OPT.fused: L.append(f"; @launch kernel={k2} grid=(256,1,1) block=(256,1,1) lds=0")
    L.append('.amdgcn_target "amdgcn-amd-amdhsa--gfx950"')
    L.append(".text")
    for nm, body in ((k1, main), (k2, red)) if not OPT.fused else ((k1, main),):
        L += [f".globl {nm}", ".p2align 8", f".type {nm},@function", f"{nm}:", text(body)]
    if OPT.stream0: L += [".globl stream_test_kernel", ".p2align 8", ".type stream_test_kernel,@function", "stream_test_kernel:", stream_kernel()]
    L.append(KD.format(name=k1, vgpr=512))
    if not OPT.fused: L.append(KD.format(name=k2, vgpr=256))
    if OPT.stream0: L.append(KD.format(name="stream_test_kernel", vgpr=512))
    return "\n".join(L) + "\n"

if __name__ == "__main__":
    dbg = sys.argv[2] if len(sys.argv) > 2 and sys.argv[2] != "none" else None
    for kv in sys.argv[3:]:
        k, v = kv.split("=")
        setattr(OPT, k, {"True": True, "False": False, "()": ()}.get(v, int(v) if v.lstrip("-").isdigit() else v))
    open(sys.argv[1], "w").write(assemble_file(dbg))
    print("stamps:", STAMPS)
```

```python
import math, struct, sys
from core import *

NAME = "concat_heads__mha_block_cached__mha_block_cached__near_ridge"
def f32bits(x): return struct.unpack("<I", struct.pack("<f", x))[0]
CSC = math.log2(math.e) / 16.0

S_X, S_WQ, S_K, S_V, S_WO, S_WS, S_OUT = 4, 8, 12, 16, 20, 24, 28
S_W, S_W1K = 32, 33
S_QB = ["0", "s34", "s35", "s62"]
S_C = 63
S_KOFF, S_VOFF = 64, 65
S_LOOP = 66
S_T0, S_T1, S_T2, S_T3 = 67, 68, 69, 70
S_G, S_H, S_B, S_BR = 71, 72, 73, 74
S_WOFF = 76
S_PART = 77
S_WCUR, S_WSTEP, S_XSTEP = 78, 79, 75
S_FL, S_DBG = 36, 40
S_LOCM = 44
S_RBASE, S_SIG, S_POLL, S_XCC = 46, 47, 48, 49
S_RG = 56
S_SPIN = 62
S_RST, S_RLD, S_FPW, S_FPR, S_FCW, S_FCR = 60, 61, 75, 78, 79, 76
S_STAMP = 80
V_LANE = 0
V_KA = [4, 5]
V_VA = [6, 7, 8, 9]
V_DK, V_DV = 10, 11
V_L = 12
V_MC = 16
V_SP = 20
V_POOL = 32
V_S = 64
V_P = 96
V_Q = 128
V_XA = 20; V_DW = 21; V_WA = [[22, 23], [24, 25], [26, 27]]
V_CT = 28
V_ARR = 24
L_K = 0; L_V = 65536; L_X = 131072
def kslot(t): return L_K + 16384 * (t % 4)
def vslot(t): return L_V + 16384 * (t % 4)
LDS_BYTES = 163840

PART_BYTES = 16 * 7 * 16 * 16 * 2048
FLAG_BYTES = 16 * 7 * 4 * 64
STAMP_OFF = PART_BYTES + 32768
RING_OFF = PART_BYTES + (1 << 20)
RING_BYTES = 32 << 20
CONS_OFF = 16384
SPIN_MAX = 1 << 19
class Opt:
    kv_flags = "nt"
    w_flags = ""
    x_flags = ""
    wo_flags = ""
    st_flags = ""
    stamps = False
    early_wb = 0
    wt_flags = ''
    prod_delay = 0
    ring = 4
    vm_space = 0
    p3_drop = ''
    wo_step = 13
    cons_chk = 22
    wo_touch = (4, 5, 6)
    red_m = 200
    cons_poll = 50
    ld_min = 16
    stamp_skip = 'p1_first_data,pre_iter_end'
    p3detail = -1
    st_lag = 21
    force_fallback = False
    red_at = 60
    sig_lag = 28
    poll_lag = 22
    chk_lag = 22
    fused = True
    stream0 = False
    loop_nods = False
    loop_nomfma = False
    loop_novalu = False
    loop_nodma = False
    loop_dma_every = 1
    bar_stamps = False
    trip_stamps = False
    dma_mode = 'spread'
    dma_gaps = ([5, 21, 37, 53, 69, 85], [101, 117])
    nv_prev = 2
    stamp_fwd = -1
    stamp_dbg = -1
    x_rd_gap0 = 65
    x_rd_gap = 33
    p1_steps = False
    p1_drop = ''
    rev = True
    init_w = 2
    early_step = 2
    x_gap = 60
    p1_nowait = False
    p1_noread = False
    wring = 3
    kvpf = 'early'
    coopx = False
    init_more = 0
OPT = Opt()

def wait_tag(*tags): return I("s_waitcnt vmcnt(?)", "wait", vmtags=list(tags))
def tag(ins, t):
    ins.meta["tag"] = t; return ins
def resolve_vm(stream, queue):
    q = list(queue)
    for ins in stream:
        if ins.kind in ("dma", "vld", "vst"):
            q.append(ins.meta.get("tag", "?"))
        elif ins.kind == "wait":
            if "vmtags" in ins.meta:
                idx = [n for n, t in enumerate(q) if t in ins.meta["vmtags"]]
                n = len(q) - 1 - max(idx) if idx else len(q)
                n = min(n, 63)
                ins.text = f"s_waitcnt vmcnt({n})"; ins.meta["vm"] = n
            if "vm" in ins.meta:
                n = ins.meta["vm"]
                if len(q) > n: q = q[len(q) - n:] if n else []
    return q

_stamp_n = [0]
def stamp(name):
    if not OPT.stamps: return []
    if OPT.stamp_skip and name in OPT.stamp_skip.split(","): return []
    if OPT.p3detail >= 0 and not name.startswith("d_") and name not in ("rt_end",): return []
    if OPT.bar_stamps and name not in ("rt_ls", "rt_le", "loop_start", "loop_end", "rt_end"): return []
    n = _stamp_n[0]; _stamp_n[0] += 1
    STAMPS.append(name)
    op = "s_memrealtime" if name.startswith("rt") else "s_memtime"
    return [raw(f"{op} s[{S_STAMP+2*n}:{S_STAMP+2*n+1}]", "salu")]
STAMPS = []

def m0_set(base): return salu(f"s_add_u32 m0, s{S_W1K}, {base}", [f"s{S_W1K}"], ["m0"])

def dma_tile(kind, slot_base, soff, tg):
    voff, srd, fl = {"K": (V_DK, S_K, OPT.kv_flags), "V": (V_DV, S_V, OPT.kv_flags), "W": (V_DW, S_WQ, OPT.w_flags)}[kind]
    return [(m0_set(slot_base + dc * 3968), tag(dma(voff, srd, soff, dc * 128, fl), tg)) for dc in range(4)]

def setup():
    o = []; a = o.append
    a(salu("s_cmp_ge_u32 s2, 256")); a(raw("s_cbranch_scc1 L_end", "branch"))
    o += stamp("rt_start") + stamp("start")
    a(salu("s_load_dwordx16 s[36:51], s[0:1], 0")); a(salu("s_load_dwordx8 s[52:59], s[0:1], 64"))
    a(salu("s_load_dwordx2 s[60:61], s[0:1], 96"))
    a(valu("v_lshrrev_b32 v1, 6, v0", ["v0"], ["v1"]))
    a(valu(f"v_and_b32 v{V_LANE}, 63, v0", ["v0"], ["v0"]))
    a(valu(f"v_readfirstlane_b32 s{S_W}, v1", ["v1"], [f"s{S_W}"]))
    a(salu(f"s_and_b32 s{S_T0}, s2, 7")); a(salu(f"s_lshr_b32 s{S_T1}, s2, 3"))
    a(salu(f"s_and_b32 s{S_H}, s{S_T1}, 15")); a(salu(f"s_lshr_b32 s{S_T1}, s{S_T1}, 4"))
    a(salu(f"s_lshl_b32 s{S_G}, s{S_T0}, 1")); a(salu(f"s_add_u32 s{S_G}, s{S_G}, s{S_T1}"))
    a(salu(f"s_lshr_b32 s{S_BR}, s{S_G}, 3")); a(salu(f"s_and_b32 s{S_B}, s{S_G}, 7"))
    a(salu(f"s_lshl_b32 s{S_W1K}, s{S_W}, 10"))
    a(salu(f"s_mov_b32 s{S_C}, 0x{f32bits(CSC):08x}"))
    L = f"v{V_LANE}"
    def vv(t, rd, wr): a(valu(t, rd, wr))
    vv(f"v_and_b32 v1, 15, {L}", [L], ["v1"]); vv(f"v_lshrrev_b32 v2, 4, {L}", [L], ["v2"])
    vv("v_lshrrev_b32 v3, 1, v1", ["v1"], ["v3"])
    for sp in range(2):
        r = V_KA[sp]
        vv(f"v_add_u32 v{r}, {4*sp}, v2", ["v2"], [f"v{r}"])
        vv(f"v_xor_b32 v{r}, v{r}, v3", [f"v{r}", "v3"], [f"v{r}"])
        vv(f"v_lshlrev_b32 v{r}, 4, v{r}", [f"v{r}"], [f"v{r}"])
        vv(f"v_lshl_add_u32 v{r}, v1, 7, v{r}", ["v1", f"v{r}"], [f"v{r}"])
    vv(f"v_bfe_u32 v28, {L}, 2, 2", [L], ["v28"]); vv(f"v_and_b32 v29, 3, {L}", [L], ["v29"])
    vv("v_lshl_add_u32 v30, v2, 2, v28", ["v2", "v28"], ["v30"])
    vv("v_bfe_u32 v31, v30, 1, 2", ["v30"], ["v31"])
    for p in range(4):
        r = V_VA[p]
        vv(f"v_xor_b32 v{r}, {p}, v31", ["v31"], [f"v{r}"])
        vv(f"v_lshlrev_b32 v{r}, 5, v{r}", [f"v{r}"], [f"v{r}"])
        vv(f"v_lshl_add_u32 v{r}, v30, 7, v{r}", ["v30", f"v{r}"], [f"v{r}"])
        vv(f"v_lshl_add_u32 v{r}, v29, 3, v{r}", ["v29", f"v{r}"], [f"v{r}"])
        vv(f"v_add_u32 v{r}, {L_V}, v{r}", [f"v{r}"], [f"v{r}"])
    vv("v_lshl_add_u32 v30, v2, 3, v28", ["v2", "v28"], ["v30"])
    vv("v_lshrrev_b32 v31, 1, v28", ["v28"], ["v31"])
    for sp in range(2):
        r = V_WA[0][sp]
        vv(f"v_xor_b32 v{r}, {sp}, v31", ["v31"], [f"v{r}"])
        vv(f"v_lshl_add_u32 v{r}, v{r}, 2, v29", [f"v{r}", "v29"], [f"v{r}"])
        vv(f"v_lshlrev_b32 v{r}, 4, v{r}", [f"v{r}"], [f"v{r}"])
        vv(f"v_lshl_add_u32 v{r}, v30, 7, v{r}", ["v30", f"v{r}"], [f"v{r}"])
        for win in (1, 2):
            vv(f"v_add_u32 v{V_WA[win][sp]}, {65536*win}, v{r}", [f"v{r}"], [f"v{V_WA[win][sp]}"])
    vv(f"v_lshrrev_b32 v1, 3, {L}", [L], ["v1"]); vv(f"v_and_b32 v2, 7, {L}", [L], ["v2"])
    vv(f"v_lshl_add_u32 v3, s{S_W}, 3, v1", ["v1", f"s{S_W}"], ["v3"])
    vv("v_bfe_u32 v28, v3, 1, 3", ["v3"], ["v28"]); vv("v_xor_b32 v28, v28, v2", ["v28", "v2"], ["v28"])
    vv("v_lshlrev_b32 v28, 4, v28", ["v28"], ["v28"]); vv(f"v_lshl_add_u32 v{V_DK}, v3, 9, v28", ["v3", "v28"], [f"v{V_DK}"])
    vv("v_bfe_u32 v28, v3, 1, 2", ["v3"], ["v28"]); vv("v_lshlrev_b32 v28, 1, v28", ["v28"], ["v28"])
    vv("v_xor_b32 v28, v28, v2", ["v28", "v2"], ["v28"]); vv("v_lshlrev_b32 v28, 4, v28", ["v28"], ["v28"])
    vv(f"v_lshl_add_u32 v{V_DV}, v3, 9, v28", ["v3", "v28"], [f"v{V_DV}"])
    vv("v_bfe_u32 v28, v3, 1, 1", ["v3"], ["v28"]); vv("v_lshlrev_b32 v28, 2, v28", ["v28"], ["v28"])
    vv("v_xor_b32 v28, v28, v2", ["v28", "v2"], ["v28"]); vv("v_lshlrev_b32 v28, 4, v28", ["v28"], ["v28"])
    vv(f"v_lshl_add_u32 v{V_DW}, v3, 13, v28", ["v3", "v28"], [f"v{V_DW}"])
    a(raw("s_waitcnt lgkmcnt(0)", "wait", lgkm=0))
    a(salu(f"s_cmp_eq_u32 s{S_BR}, 0"))
    for i in range(10): a(salu(f"s_cselect_b32 s{36+i}, s{36+i}, s{46+i}"))
    def srd(base, lo, hi, offs, size):
        if offs is None:
            a(salu(f"s_mov_b32 s{base}, s{lo}")); a(salu(f"s_mov_b32 s{base+1}, s{hi}"))
        else:
            a(salu(f"s_add_u32 s{base}, s{lo}, {offs}")); a(salu(f"s_addc_u32 s{base+1}, s{hi}, 0"))
        a(salu(f"s_mov_b32 s{base+2}, {size}")); a(salu(f"s_mov_b32 s{base+3}, 0x20000"))
    a(salu(f"s_mul_i32 s{S_T0}, s{S_B}, 229376")); srd(S_X, 36, 37, f"s{S_T0}", 229376)
    a(salu(f"s_lshl_b32 s{S_T0}, s{S_H}, 9")); srd(S_WQ, 42, 43, f"s{S_T0}", 0)
    a(salu(f"s_sub_u32 s{S_WQ+2}, {448*8192}, s{S_T0}"))
    a(salu(f"s_lshl_b32 s{S_T0}, s{S_B}, 4")); a(salu(f"s_add_u32 s{S_T0}, s{S_T0}, s{S_H}"))
    a(salu(f"s_lshl_b32 s{S_T0}, s{S_T0}, 19"))
    srd(S_K, 38, 39, f"s{S_T0}", 524288); srd(S_V, 40, 41, f"s{S_T0}", 524288)
    a(salu(f"s_mul_i32 s{S_T0}, s{S_H}, 229376")); srd(S_WO, 44, 45, f"s{S_T0}", 229376)
    srd(S_WS, 60, 61, None, 16 * 7 * 16 * 16 * 2048)
    srd(S_OUT, 56, 57, None, 8 * 256 * 896 * 2)
    if OPT.fused:
        srd(S_DBG, 58, 59, None, 256)
        a(salu(f"s_mov_b32 s{S_T0}, {PART_BYTES}")); srd(S_FL, 60, 61, f"s{S_T0}", 32768)
        a(salu(f"s_mov_b32 s{S_T0}, {RING_OFF}")); a(salu(f"s_add_u32 s54, s60, s{S_T0}")); a(salu("s_addc_u32 s55, s61, 0"))
        a(salu(f"s_mov_b32 s{S_RG}, s54")); a(salu(f"s_mov_b32 s{S_RG+1}, s55")); a(salu(f"s_mov_b32 s{S_RG+2}, {RING_BYTES}")); a(salu(f"s_mov_b32 s{S_RG+3}, 0x20000"))
        a(salu(f"s_getreg_b32 s{S_XCC}, hwreg(HW_REG_XCC_ID, 0, 3)"))
        a(salu(f"s_lshl_b32 s{S_SIG}, s{S_G}, 4")); a(salu(f"s_add_u32 s{S_SIG}, s{S_SIG}, s{S_H}"))
        a(salu(f"s_mul_i32 s{S_T0}, s{S_G}, {14*64}"))
        a(salu(f"s_lshl_b32 s{S_T1}, s{S_W}, 4")); a(salu(f"s_add_u32 s{S_T1}, s{S_T1}, s{S_H}")); a(salu(f"s_add_u32 s50, s{S_T0}, s{S_T1}"))
        a(salu(f"s_lshl_b32 s{S_T1}, s{S_H}, 2")); a(salu(f"s_add_u32 s{S_T1}, s{S_T1}, s{S_W}")); a(salu(f"s_add_u32 s51, s{S_T0}, s{S_T1}"))
        a(salu(f"s_add_u32 s51, s51, {CONS_OFF}"))
        a(valu(f"v_min_u32 v1, 13, v{V_LANE}", [f"v{V_LANE}"], ["v1"])); a(valu("v_lshlrev_b32 v1, 6, v1", ["v1"], ["v1"]))
        a(valu("v_mov_b32 v2, 0", [], ["v2"]))
        for sr in ("s50", "s51"):
            a(tag(I(f"buffer_store_byte v2, v1, s[{S_FL}:{S_FL+3}], {sr} offen", "vst", ["v1", "v2"], data=["v2"]), "reset"))
    return o

def add_lgkm_waits(g, cons, carried):
    seq = [(-1, regs) for regs in carried]
    for k in range(g.n):
        if g.mem[k] is not None and g.mem[k].kind == "ds": seq.append((k, g.mem[k].wr))
    lead = None
    for k, regs in cons:
        late = [n for n, (gap, w) in enumerate(seq) if gap == k - 1 and gap >= 0 and set(w) & set(regs)]
        assert not late, f"DS for MFMA {k} issued in gap {k-1}"
        idx = [n for n, (gap, w) in enumerate(seq) if gap < max(k - 1, 0) and set(w) & set(regs)]
        if not idx: continue
        last = max(idx)
        after = sum(1 for n, (gap, w) in enumerate(seq) if n > last and gap < max(k - 1, 0))
        assert after <= 15, (k, after)
        if k == 0: lead = wait_lgkm(after)
        else: g.pre[k - 1].insert(0, wait_lgkm(after))
    out = len(carried)
    if lead is not None: out = min(out, lead.meta["lgkm"])
    for k in range(g.n):
        for x in g.pre[k]:
            if "lgkm" in x.meta: out = min(out, x.meta["lgkm"])
        if g.mem[k] is not None and g.mem[k].kind == "ds":
            if out >= 14:
                assert len(g.pre[k]) == 0, k
                g.pre[k].append(wait_lgkm(8)); out = 8
            out += 1
    return lead

def place_vmem(g, gap, scalars, d, hi=None, stack=False, space=False):
    k = max(gap, 1 if stack else len(scalars))
    hi = g.n if hi is None else hi
    isdma = lambda x: x is not None and x.kind == "dma"
    while True:
        assert k < hi, f"no gap for {d.text}"
        near = OPT.vm_space and any(0 <= k + dd < g.n and dd != 0 and g.mem[k + dd] is not None and g.mem[k + dd].kind in ("vst", "vld", "dma")
                                    for dd in range(-OPT.vm_space, OPT.vm_space + 1))
        if g.mem[k] is None and not g.vec[k] and len(g.pre[k]) <= 1 and not (near and space):
            if stack:
                if not isdma(g.mem[k - 1]) and len(g.pre[k - 1]) + len(scalars) <= 3 and not any(x.kind == "barrier" for x in g.pre[k - 1]): break
            elif all(not g.pre[k - 1 - n] and not isdma(g.mem[k - 1 - n]) for n in range(len(scalars))): break
        k += 1
    if stack:
        for sc in scalars: g.put_pre(k - 1, sc)
    else:
        for n, sc in enumerate(scalars): g.put_pre(k - len(scalars) + n, sc)
    g.put_mem(k, d)
    return k

def put_scalar(g, gap, *ins):
    k = gap
    while g.pre[k]: k += 1
    g.pre[k] = list(ins)
    return k

def place_chain(g, ops, lo, hi):
    left = []
    for ins in ops:
        k = g.place_vec(ins, lo, hi) if (not left and lo < hi) else None
        if k is None: left.append(ins)
        else: lo = k + 1 if ins.kind == "trans" else k
    return lo, left

class Op:
    def __init__(self, ins, rel, dl, preds=()):
        self.ins = ins; self.rel = rel; self.dl = dl; self.preds = list(preds); self.gap = None

def list_schedule(g, ops, lo=0, hi=None):
    hi = g.n if hi is None else hi
    todo = list(ops)
    for k in range(lo, hi):
        while True:
            free = g.free_vec(k)
            if free <= 0: break
            ready = [x for x in todo if x.rel <= k and all(p.gap is not None and p.gap + d <= k for p, d in x.preds)]
            tr = [x for x in ready if x.ins.kind == "trans"]
            pl = [x for x in ready if x.ins.kind != "trans"]
            pick = None
            can_tr = free == 2 and g.mem[k] is None and not g.vec[k]
            if can_tr and tr: pick = min(tr, key=lambda x: x.dl)
            if pl:
                best = min(pl, key=lambda x: x.dl)
                if pick is None or (best.dl + 6 < pick.dl): pick = best
            if pick is None: break
            g.vec[k].append(pick.ins); pick.gap = k; todo.remove(pick)
    late = [x for x in ops if x.gap is not None and x.gap > x.dl]
    assert not late, [(x.ins.text, x.gap, x.dl) for x in late]
    return todo

def sm_ops(tile, kb, qb, rel, dl):
    i = sm_group(tile, kb, qb)
    f = [Op(i[0], rel, dl - 6), Op(i[1], rel, dl - 6), Op(i[4], rel, dl - 5), Op(i[5], rel, dl - 5)]
    x = [Op(i[2], rel, dl - 4, [(f[0], 1)]), Op(i[3], rel, dl - 4, [(f[1], 1)]), Op(i[6], rel, dl - 3, [(f[2], 1)]), Op(i[7], rel, dl - 3, [(f[3], 1)])]
    ad = [Op(i[8], rel, dl, [(x[0], 1)]), Op(i[9], rel, dl, [(x[1], 1)]), Op(i[11], rel, dl, [(x[2], 1)]), Op(i[12], rel, dl, [(x[3], 1)])]
    cv = [Op(i[10], rel, dl, [(x[0], 1), (x[1], 1)]), Op(i[13], rel, dl, [(x[2], 1), (x[3], 1)])]
    return f + x + ad + cv

def exposed(ops):
    o = []
    for n, ins in enumerate(ops):
        o.append(ins)
        if ins.kind == "trans" and n + 1 < len(ops) and ops[n + 1].kind != "trans": o.append(nop(0))
    return o

def conv_ops(acc, d, t):
    return [valu(f"v_accvgpr_read_b32 v{d}, a{acc}", [f"a{acc}"], [f"v{d}"]),
            valu(f"v_accvgpr_read_b32 v{t}, a{acc+1}", [f"a{acc+1}"], [f"v{t}"]),
            valu(f"v_accvgpr_read_b32 v{d+1}, a{acc+2}", [f"a{acc+2}"], [f"v{d+1}"]),
            valu(f"v_accvgpr_read_b32 v{t+1}, a{acc+3}", [f"a{acc+3}"], [f"v{t+1}"]),
            valu(f"v_cvt_pk_bf16_f32 v{d}, v{d}, v{t}", [f"v{d}", f"v{t}"], [f"v{d}"]),
            valu(f"v_cvt_pk_bf16_f32 v{d+1}, v{d+1}, v{t+1}", [f"v{d+1}", f"v{t+1}"], [f"v{d+1}"])]

def xlane_reduce(regs, op, tmp):
    o = []
    for swap in ("v_permlane32_swap_b32", "v_permlane16_swap_b32"):
        for n, r in enumerate(regs): o.append(valu(f"v_mov_b32 v{tmp+n}, v{r}", [f"v{r}"], [f"v{tmp+n}"]))
        o.append(nop(1))
        for n, r in enumerate(regs):
            o.append(valu(f"{swap} v{r}, v{tmp+n}", [f"v{r}", f"v{tmp+n}"], [f"v{r}", f"v{tmp+n}"]))
        o.append(nop(1))
        for n, r in enumerate(regs):
            o.append(valu(f"{op} v{r}, v{r}, v{tmp+n}", [f"v{r}", f"v{tmp+n}"], [f"v{r}"]))
    return o

def wpairs(): return [(L_X, L_X + 16384), (vslot(1), kslot(3)), (vslot(2), vslot(3))]
def wslot(tile):
    p = wpairs(); return p[(tile // 2) % len(p)][tile % 2]
XBUF = [V_S, V_P]
def xfrag(qb, cs): return XBUF[(cs // 2) & 1] + ((cs % 2) * 4 + qb) * 4
V_XD = [128, 129]
V_XR = [130, 131]
S_XB = 34
S_XCUR = 35
def x_setup():
    o = []; a = o.append
    L = f"v{V_LANE}"
    a(salu(f"s_and_b32 s{S_T1}, s{S_W}, 1")); a(salu(f"s_lshl_b32 s{S_T1}, s{S_T1}, 13"))
    a(salu(f"s_cmp_lt_u32 s{S_W}, 2")); a(salu(f"s_cselect_b32 s{S_XB}, 2, 4")); a(salu(f"s_lshl_b32 s{S_XB}, s{S_XB}, 14"))
    a(salu(f"s_add_u32 s{S_XB}, s{S_XB}, s{S_T1}"))
    assert kslot(2) == 2 << 14 and vslot(0) == 4 << 14
    a(valu(f"v_lshrrev_b32 v1, 3, {L}", [L], ["v1"])); a(valu(f"v_and_b32 v2, 7, {L}", [L], ["v2"]))
    a(valu(f"v_lshl_add_u32 v3, s{S_W}, 6, v1", ["v1", f"s{S_W}"], ["v3"]))
    a(valu("v_mul_u32_u24 v3, 896, v3", ["v3"], ["v3"]))
    a(valu("v_lshrrev_b32 v1, 1, v1", ["v1"], ["v1"]))
    for par in range(2):
        r = V_XD[par]
        a(valu(f"v_or_b32 v{r}, {4*par}, v1", ["v1"], [f"v{r}"]))
        a(valu(f"v_xor_b32 v{r}, v{r}, v2", [f"v{r}", "v2"], [f"v{r}"]))
        a(valu(f"v_lshl_add_u32 v{r}, v{r}, 4, v3", [f"v{r}", "v3"], [f"v{r}"]))
        a(valu(f"v_add_u32 v{V_XR[par]}, s{S_XB}, v{V_KA[par]}", [f"v{V_KA[par]}"], [f"v{V_XR[par]}"]))
    return o
def x_items(j):
    out = []
    for i in range(8):
        sreg = S_T2 + (i & 1)
        sc = []
        if i == 0 and j > 0: sc.append(salu(f"s_add_u32 s{S_XCUR}, s{S_XCUR}, s{S_XSTEP}", [f"s{S_XCUR}"], [f"s{S_XCUR}"]))
        sc.append(salu(f"s_add_u32 s{sreg}, s{S_XCUR}, {i*7168}", [f"s{S_XCUR}"], [f"s{sreg}"]))
        sc.append(salu(f"s_add_u32 m0, s{S_XB}, {i*1024}", [f"s{S_XB}"], ["m0"]))
        out.append((sc, tag(dma(V_XD[i & 1], S_X, f"s{sreg}", 0, OPT.x_flags), f"x{j}")))
    return out
def x_read(qb, cs): return ds_read128("v", xfrag(qb, cs), V_XR[cs & 1], qb * 2048)
def w_read(dbp, cs, jj):
    s, e = dbp >> 1, dbp & 1
    base = wslot(cs); win = base // 65536
    off = base - win * 65536 + (s >> 1) * 4096 + jj * 512 + e * 8
    return ds_read_tr("v", V_POOL + 4 * ((2 * dbp + (cs & 1)) % 8) + 2 * jj, V_WA[win][s & 1], off)

V_PF = 28
def coop_setup():
    o = []; a = o.append
    a(salu(f"s_mul_i32 s{S_T1}, s{S_H}, {112*128}"))
    a(salu(f"s_lshl_b32 s{S_T2}, s{S_W}, 12")); a(salu(f"s_add_u32 s{S_T1}, s{S_T1}, s{S_T2}"))
    a(valu(f"v_and_b32 v{V_PF}, 31, v{V_LANE}", [f"v{V_LANE}"], [f"v{V_PF}"]))
    a(valu(f"v_lshlrev_b32 v{V_PF}, 7, v{V_PF}", [f"v{V_PF}"], [f"v{V_PF}"]))
    a(valu(f"v_add_u32 v{V_PF}, s{S_T1}, v{V_PF}", [f"v{V_PF}"], [f"v{V_PF}"]))
    return o
def coop_x():
    return [tag(bload(V_PF + 1, 1, V_PF, S_X, "0", 0), "pf")]

OOL = []
def phase1():
    o = []; a = o.append
    NP = 3
    a(salu(f"s_lshr_b32 s{S_T1}, s2, 7")); a(salu(f"s_and_b32 s{S_T1}, s{S_T1}, {1 if OPT.rev else 0}"))
    a(salu(f"s_cmp_eq_u32 s{S_T1}, 0"))
    a(salu(f"s_cselect_b32 s{S_WCUR}, 0, {6*524288}")); a(salu(f"s_cselect_b32 s{S_T2}, 1, -1"))
    a(salu(f"s_cselect_b32 s{S_XCUR}, 0, 768"))
    a(salu(f"s_mul_i32 s{S_WSTEP}, s{S_T2}, 524288")); a(salu(f"s_mul_i32 s{S_XSTEP}, s{S_T2}, 128"))
    o += x_setup()
    if OPT.coopx: o += coop_setup() + coop_x()
    def w_items(j):
        out = []
        for par in range(2):
            sreg = S_WCUR if par == 0 else S_WOFF
            for m, (m0, d) in enumerate(dma_tile("W", wslot(2 * j + par), f"s{sreg}", f"W{j}")):
                sc = [m0]
                if m == 0 and par == 0 and j > 0: sc = [salu(f"s_add_u32 s{S_WCUR}, s{S_WCUR}, s{S_WSTEP}", [f"s{S_WCUR}"], [f"s{S_WCUR}"]), m0]
                if m == 0 and par == 1: sc = [salu(f"s_add_u32 s{S_WOFF}, s{S_WCUR}, 262144", [f"s{S_WCUR}"], [f"s{S_WOFF}"]), m0]
                out.append((sc, d))
        return out
    def kv_items(kind, t):
        out = []
        for m, (m0, d) in enumerate(dma_tile(kind, kslot(t) if kind == "K" else vslot(t), f"s{S_T0}", f"{kind}{t}")):
            out.append(([salu(f"s_mov_b32 s{S_T0}, {t*16384}", [], [f"s{S_T0}"]), m0] if m == 0 else [m0], d))
        return out
    def now(items):
        for sc, d in items:
            o.extend(sc); a(nop(0)); a(d)
    w0 = w_items(0)
    for sc, d in w0[4:]: d.meta["tag"] = "W0b"
    now(x_items(0)); now(w0[:4]); now(w0[4:])
    a(wait_tag("x0"))
    xr = [x_read(qb, cs) for cs in (0, 1) for qb in range(4)]
    o += xr
    a(wait_tag("W0")); a(barrier())
    if OPT.fused:
        a(salu(f"s_or_b32 s{S_T0}, s{S_XCC}, 0x80")); a(valu(f"v_mov_b32 v1, s{S_T0}", [], ["v1"])); a(valu("v_mov_b32 v2, 0", [], ["v2"]))
        a(tag(I(f"buffer_store_byte v1, v2, s[{S_DBG}:{S_DBG+3}], s{S_SIG} offen", "vst", ["v1", "v2"], data=["v1"]), "arr"))
    o += stamp("p1_first_data")
    def quad0(n): return V_POOL + 4 * (n % 8)
    def w_read0(n, jj):
        dbp, cs = n % 16, n // 16
        r = w_read(dbp, cs, jj)
        return ds_read_tr("v", quad0(n) + 2 * jj, int(r.rd[0][1:]), int(r.text.split("offset:")[1]))
    carried = [x.wr for x in xr]
    for n in range(3):
        for jj in range(2):
            r = w_read0(n, jj); a(r); carried.append(r.wr)
    early = {j: [] for j in range(7)}; after = {j: [] for j in range(7)}
    early[0] += w_items(1); early[1] += w_items(2)
    for j in range(NP, 7): after[j - NP + 1] += w_items(j)
    K = lambda t: kv_items("K", t)
    V = lambda t: kv_items("V", t)
    kv = {"early": {1: K(0), 2: K(1)}, "mid": {2: K(0), 3: K(1)}, "late": {3: K(0), 4: K(1)}}[OPT.kvpf]
    for j, l in kv.items(): early[j] += l
    after[5] += V(0)
    early[6] += K(2) + V(1) + K(3)
    after[6] += V(2)
    for j in range(7):
        ms = []
        if j == 0:
            for n in range(32):
                for qb in range(4):
                    acc = ((n % 16) * 4 + qb) * 4
                    first = n < 16
                    ms.append(mfma("a", acc, "v", quad0(n), "v", xfrag(qb, n // 16), None if first else "a", None if first else acc))
        else:
            for dbp in range(16):
                for qb in range(4):
                    for e2 in range(2):
                        acc = (dbp * 4 + qb) * 4
                        ms.append(mfma("a", acc, "v", V_POOL + 4 * ((2 * dbp + e2) % 8), "v", xfrag(qb, 2 * j + e2), "a", acc))
        g = Gaps(ms)
        if j == 0:
            for n in range(3, 32):
                for jj in range(2): g.put_mem(4 * n - 12 + 2 * jj, w_read0(n, jj))
        else:
            for dbp in range(3, 16):
                for n, (cs, jj) in enumerate([(2*j, 0), (2*j, 1), (2*j+1, 0), (2*j+1, 1)]):
                    g.put_mem(8 * dbp - 24 + 2 * n, w_read(dbp, cs, jj))
        nxt = []
        if j < 6:
            for dbp in range(3):
                for n, (cs, jj) in enumerate([(2*j+2, 0), (2*j+2, 1), (2*j+3, 0), (2*j+3, 1)]):
                    r = w_read(dbp, cs, jj); g.put_mem(104 + (1 if j == 0 else 0) + 8 * dbp + 2 * n, r); nxt.append(r.wr)
        XG = OPT.x_rd_gap if j > 0 else OPT.x_rd_gap0
        xreads = []
        if j < 6:
            for n, (cs, qb) in enumerate([(cs, qb) for cs in (2*j+2, 2*j+3) for qb in range(4)]):
                r = x_read(qb, cs); g.put_mem(XG + 2 * n, r); xreads.append(r)
        if j == 0:
            cons = [(4 * n, R("v", quad0(n), 4) + (R("v", V_S, 32) if n == 0 else [])) for n in range(32)]
        else:
            cons = [(8 * dbp, R("v", V_POOL + 4 * ((2 * dbp) % 8), 8)) for dbp in range(16)]
        if j < 6: cons.append((XG + 24, [w for r in xreads for w in r.wr]))
        cons.sort()
        lead = add_lgkm_waits(g, cons, carried)
        if j < 6:
            k = XG - 2
            while g.pre[k]: k -= 1
            g.pre[k] = [wait_tag(f"x{j+1}")]
        tags = [f"W{j+1}"] if j < 6 else ["K0"]
        k = 100
        while g.pre[k]: k -= 1
        g.pre[k] = [wait_tag(*tags), barrier()] if not OPT.p1_nowait else [barrier()]
        kb = k
        gp = 1
        if j == 0:
            for sc, d in x_items(1): gp = place_vmem(g, gp, sc, d, XG - 3, stack=True) + 2
            k = 48
            while g.pre[k]: k -= 1
            g.pre[k] = [wait_tag("W0b"), barrier()]
            assert k < 52
        for sc, d in early[j]: gp = place_vmem(g, gp + len(sc) - 1, sc, d, kb) + (OPT.early_step if j != 6 else 7)
        if j < 5:
            gx = max(XG + 25, gp)
            for sc, d in x_items(j + 2): gx = place_vmem(g, gx, sc, d, stack=True) + 2
            gpa = max(kb + 2, gx)
        else: gpa = kb + 2
        for sc, d in after[j]: gpa = place_vmem(g, gpa, sc, d, stack=True) + 1
        left = []
        if j == 6:
            for dbp in range(16):
                for qb in range(4):
                    ops = conv_ops((dbp * 4 + qb) * 4, V_Q + (qb * 8 + (dbp >> 1)) * 4 + 2 * (dbp & 1), V_CT + 2 * (qb & 1))
                    if left: left += ops
                    else:
                        _, l2 = place_chain(g, ops, 8 * dbp + 2 * qb + 1 + 5, 128); left += l2
        if lead is not None: a(lead)
        em = g.emit()
        if OPT.p1_drop:
            def keep(x):
                if x.kind in ("dma", "vld"):
                    t = x.meta.get("tag", "")
                    for c in OPT.p1_drop:
                        if t.startswith(c): return False
                return True
            em = [x for x in em if keep(x)]
        if OPT.p1_noread: em = [x for x in em if x.kind != "ds" and not (x.kind == "wait" and "lgkm" in x.meta)]
        o += em
        carried = nxt
        if OPT.p1_steps: o += stamp(f"step{j}")
        if left: a(nop(7)); o += left
    if not OPT.p1_steps: o += stamp("p1_end")
    return o

def k_read(t, kb, s):
    return ds_read128("v", V_POOL + 4 * s, V_KA[s & 1], (kslot(t) - L_K) + (s >> 1) * 4096 + kb * 2048)
def v_read(t, db, jj):
    return ds_read_tr("v", V_POOL + 4 * (db % 8) + 2 * jj, V_VA[db & 3], (vslot(t) - L_V) + (db >> 2) * 4096 + jj * 2048)
def Sreg(kb, qb): return V_S + (kb * 4 + qb) * 4
def Preg(buf, qb): return V_P + buf * 16 + qb * 4
def qk_mfmas():
    ms = []
    for i in range(64):
        kb, sp, qb, e = i >> 5, (i >> 3) & 3, (i >> 1) & 3, i & 1
        s = 2 * sp + e; d = Sreg(kb, qb)
        ms.append(mfma("v", d, "v", V_POOL + 4 * s, "v", V_Q + (qb * 8 + s) * 4, None if s == 0 else "v", None if s == 0 else d))
    return ms
def pv_mfmas(t, first):
    ms = []
    for i in range(64):
        db, qb = i >> 2, i & 3
        acc = (db * 4 + qb) * 4
        ms.append(mfma("a", acc, "v", V_POOL + 4 * (db % 8), "v", Preg(t & 1, qb), None if first else "a", None if first else acc))
    return ms
def sm_group(tile, kb, qb):
    s = Sreg(kb, qb); p = Preg(tile & 1, qb) + 2 * kb; mc = V_MC + qb; l = V_L + qb
    f = lambda r: valu(f"v_fma_f32 v{s+r}, v{s+r}, s{S_C}, v{mc}", [f"v{s+r}", f"v{mc}", f"s{S_C}"], [f"v{s+r}"])
    x = lambda r: trans(f"v_exp_f32 v{s+r}, v{s+r}", [f"v{s+r}"], [f"v{s+r}"])
    ad = lambda r: valu(f"v_add_f32 v{l}, v{l}, v{s+r}", [f"v{l}", f"v{s+r}"], [f"v{l}"])
    cv = lambda r: valu(f"v_cvt_pk_bf16_f32 v{p+r//2}, v{s+r}, v{s+r+1}", [f"v{s+r}", f"v{s+r+1}"], [f"v{p+r//2}"])
    return [f(0), f(1), x(0), x(1), f(2), f(3), x(2), x(3), ad(0), ad(1), cv(0), ad(2), ad(3), cv(2)]

def pre_iter():
    o = []; a = o.append
    carried = []
    for s in range(8):
        r = k_read(0, 0, s); a(r); carried.append(r.wr)
    g = Gaps(qk_mfmas())
    for s in range(8): g.put_mem(8 * (s >> 1) + 10 + 4 * (s & 1), k_read(0, 1, s))
    cons = [(8 * p, R("v", V_POOL + 8 * (p % 4), 8)) for p in range(8)]
    a(add_lgkm_waits(g, cons, carried)); o += g.emit()
    a(wait_tag("K1", "V0")); a(barrier())
    a(salu(f"s_mov_b32 s{S_KOFF}, {4*16384}"))
    for m0, d in dma_tile("K", kslot(4), f"s{S_KOFF}", "K4"): a(m0); a(nop(0)); a(d)
    a(salu(f"s_mov_b32 s{S_KOFF}, {5*16384}")); a(salu(f"s_mov_b32 s{S_VOFF}, {3*16384}"))
    carried = []
    for s in range(8):
        r = k_read(1, 0, s); a(r); carried.append(r.wr)
    for qb in range(4):
        m = V_MC + qb; s0 = Sreg(0, qb); s1 = Sreg(1, qb)
        a(valu(f"v_max3_f32 v{m}, v{s0}, v{s0+1}, v{s0+2}", R("v", s0, 3), [f"v{m}"]))
        a(valu(f"v_max3_f32 v{m}, v{m}, v{s0+3}, v{s1}", [f"v{m}", f"v{s0+3}", f"v{s1}"], [f"v{m}"]))
        a(valu(f"v_max3_f32 v{m}, v{m}, v{s1+1}, v{s1+2}", [f"v{m}", f"v{s1+1}", f"v{s1+2}"], [f"v{m}"]))
        a(valu(f"v_max_f32 v{m}, v{m}, v{s1+3}", [f"v{m}", f"v{s1+3}"], [f"v{m}"]))
    o += xlane_reduce([V_MC + q for q in range(4)], "v_max_f32", V_SP)
    for qb in range(4):
        m = V_MC + qb
        a(valu(f"v_mul_f32 v{m}, s{S_C}, v{m}", [f"v{m}", f"s{S_C}"], [f"v{m}"]))
        a(valu(f"v_sub_f32 v{m}, 0, v{m}", [f"v{m}"], [f"v{m}"]))
        a(valu(f"v_mov_b32 v{V_L+qb}, 0", [], [f"v{V_L+qb}"]))
    for kb, qb in [(0, 0), (0, 1), (0, 2), (0, 3), (1, 0), (1, 1)]: o += exposed(sm_group(0, kb, qb))
    o += stamp("pre_iter_end")
    return o, carried

def attn_iter(t, carried, vmw, prev, cur, first=False, adv=True, loopctl=False, extra=None, loop_body=False):
    g = Gaps(qk_mfmas() + pv_mfmas(t, first))
    for s in range(8): g.put_mem(8 * (s >> 1) + 10 + 4 * (s & 1), k_read(t + 1, 1, s))
    for db in range(16):
        for jj in range(2): g.put_mem(44 + 4 * db + 2 * jj, v_read(t, db, jj))
    nxt = []
    if t + 2 <= 31:
        for s, gap in zip(range(8), [108, 110, 112, 114, 116, 120, 124, 127]):
            r = k_read(t + 2, 0, s); g.put_mem(gap, r); nxt.append(r.wr)
    else:
        for db in range(5):
            for jj in range(2):
                r = v_read(t + 1, db, jj); g.put_mem(108 + 4 * db + 2 * jj, r); nxt.append(r.wr)
    cons = [(8 * p, R("v", V_POOL + 8 * (p % 4), 8)) for p in range(8)]
    cons += [(64 + 4 * db, R("v", V_POOL + 4 * (db % 8), 4)) for db in range(16)]
    lead = add_lgkm_waits(g, cons, carried)
    kb = 98
    while g.pre[kb]: kb -= 1
    g.pre[kb] = [vmw, barrier()]
    if OPT.bar_stamps and loop_body:
        g.pre[kb] = [raw("s_memtime s[94:95]", "salu"), vmw, raw("s_memtime s[96:97]", "salu"), barrier(), raw("s_memtime s[98:99]", "salu"),
                     raw("s_waitcnt lgkmcnt(0)", "wait", lgkm=0),
                     salu("s_sub_u32 s96, s96, s94"), salu("s_add_u32 s92, s92, s96"),
                     salu("s_sub_u32 s98, s98, s94"), salu("s_add_u32 s93, s93, s98")]
    gp_prev, gp_cur = OPT.dma_gaps
    placed = [place_vmem(g, gap, [m0], d, kb) for gap, (m0, d) in zip(gp_prev, prev)]
    for gap, (m0, d) in zip(gp_cur, cur): place_vmem(g, gap, [m0], d)
    if adv:
        for reg, srd, at in ((S_VOFF, S_V, (placed[OPT.nv_prev - 1] if OPT.nv_prev else 1) + 1), (S_KOFF, S_K, placed[-1] + 1)):
            k = put_scalar(g, at, salu(f"s_add_u32 s{reg}, s{reg}, 16384", [f"s{reg}"], [f"s{reg}"]))
            k = put_scalar(g, k + 1, salu(f"s_cmp_lt_u32 s{reg}, 524288", [f"s{reg}"], ["scc"]),
                           salu(f"s_cselect_b32 s{srd+2}, 524288, 0", ["scc"], [f"s{srd+2}"]))
            assert k < 100
    if loopctl:
        k = put_scalar(g, 119, salu(f"s_sub_u32 s{S_LOOP}, s{S_LOOP}, 1", [f"s{S_LOOP}"], [f"s{S_LOOP}"]))
        k = put_scalar(g, k + 1, salu(f"s_cmp_lg_u32 s{S_LOOP}, 0", [f"s{S_LOOP}"], ["scc"]))
        assert k <= 127
        for kk in range(k + 1, 128):
            assert all(x.kind == "wait" for x in g.pre[kk]), "SCC clobbered before the loop branch"
    if extra: extra(g, kb)
    ops = []
    for qb in (2, 3): ops += sm_ops(t, 1, qb, 0, 31 + 2 * qb)
    for qb in range(4): ops += sm_ops(t + 1, 0, qb, 25 + 2 * qb + 6, 100 + 6 * qb)
    for qb in (0, 1): ops += sm_ops(t + 1, 1, qb, 57 + 2 * qb + 6, 124 + 3 * qb)
    left = list_schedule(g, ops)
    assert not left, f"softmax groups do not fit: {len(left)} left"
    return [lead] + g.emit(), nxt

def last_iter(carried):
    o = []; a = o.append
    for qb in (2, 3): o += exposed(sm_group(31, 1, qb))
    o += xlane_reduce([V_L + q for q in range(4)], "v_add_f32", V_SP)
    for qb in range(4): a(trans(f"v_rcp_f32 v{V_L+qb}, v{V_L+qb}", [f"v{V_L+qb}"], [f"v{V_L+qb}"]))
    a(nop(0))
    g = Gaps(pv_mfmas(31, False))
    for db in range(5, 8):
        for jj in range(2): g.put_mem(4 * (db - 5) + 2 * jj, v_read(31, db, jj))
    for db in range(8, 16):
        for jj in range(2): g.put_mem(12 + 4 * (db - 8) + 2 * jj, v_read(31, db, jj))
    cons = [(4 * db, R("v", V_POOL + 4 * (db % 8), 4)) for db in range(16)]
    lead = add_lgkm_waits(g, cons, carried)
    gp = put_wo(g, 2, 2, step=0)
    put_wo(g, 3, gp, step=0)
    left = []
    for db in range(16):
        for qb in range(4):
            ops = conv_ops((db * 4 + qb) * 4, V_Q + (qb * 8 + (db >> 1)) * 4 + 2 * (db & 1), V_SP + 8 + 2 * (qb & 1))
            if left: left += ops
            else:
                _, l2 = place_chain(g, ops, 4 * db + qb + 5, 64); left += l2
    a(lead); o += g.emit()
    a(nop(7)); o += left
    return o

WOBUF = [L_X, L_K, L_K + 32768, L_V, L_V + 32768, L_X, L_K]
V_DWO = 3; V_STO = V_DV
V_FR3 = 32; V_ACC3 = V_P; V_STG = 16
def wo_dma(j):
    out = []
    for i in range(8):
        sreg = S_T0 + (i & 1)
        out.append(([salu(f"s_mov_b32 s{sreg}, {j*128 + i*32*896}", [], [f"s{sreg}"]),
                     salu(f"s_add_u32 m0, s{S_W1K}, {WOBUF[j] + i*4096}", [f"s{S_W1K}"], ["m0"])],
                    tag(dma(V_DWO, S_WO, f"s{sreg}", 0, OPT.wo_flags), f"wo{j}")))
    return out
def wo_setup():
    o = []; a = o.append
    L = f"v{V_LANE}"
    a(valu(f"v_lshrrev_b32 v1, 3, {L}", [L], ["v1"])); a(valu(f"v_and_b32 v2, 7, {L}", [L], ["v2"]))
    a(valu(f"v_lshl_add_u32 v3, s{S_W}, 3, v1", ["v1", f"s{S_W}"], ["v3"]))
    a(valu("v_bfe_u32 v1, v1, 1, 2", ["v1"], ["v1"])); a(valu("v_lshlrev_b32 v1, 1, v1", ["v1"], ["v1"]))
    a(valu("v_xor_b32 v1, v1, v2", ["v1", "v2"], ["v1"])); a(valu("v_lshlrev_b32 v1, 4, v1", ["v1"], ["v1"]))
    a(valu("v_mul_u32_u24 v3, 896, v3", ["v3"], ["v3"]))
    a(valu(f"v_add_u32 v{V_DWO}, v3, v1", ["v3", "v1"], [f"v{V_DWO}"]))
    return o
V_WOT = 2
def wo_touch_setup():
    return [valu(f"v_lshl_add_u32 v{V_WOT}, s{S_W}, 6, v{V_LANE}", [f"v{V_LANE}"], [f"v{V_WOT}"]),
            valu(f"v_mul_u32_u24 v{V_WOT}, 896, v{V_WOT}", [f"v{V_WOT}"], [f"v{V_WOT}"])]
def wo_touch(j): return tag(bload(1, 1, V_WOT, S_WO, "0", j * 128, OPT.wt_flags), "wt")
def put_wo(g, j, start, hi=None, step=3):
    gp = start
    for sc, d in wo_dma(j): gp = place_vmem(g, gp, sc, d, hi) + step
    return gp
def va_shift(delta):
    t = (lambda r: f"v_add_u32 v{r}, {delta}, v{r}") if delta >= 0 else (lambda r: f"v_subrev_u32 v{r}, {-delta}, v{r}")
    return [valu(t(r), [f"v{r}"], [f"v{r}"]) for r in V_VA]

def part_ops(nb, qb):
    acc = V_ACC3 + 4 * ((nb * 4 + qb) % 8)
    st = V_STG + 4 * qb + 2 * (nb & 1)
    li = V_L + qb
    ops = [valu(f"v_mul_f32 v{acc+r}, v{acc+r}, v{li}", [f"v{acc+r}", f"v{li}"], [f"v{acc+r}"]) for r in range(4)]
    ops += [valu(f"v_cvt_pk_bf16_f32 v{st}, v{acc}, v{acc+1}", [f"v{acc}", f"v{acc+1}"], [f"v{st}"]),
            valu(f"v_cvt_pk_bf16_f32 v{st+1}, v{acc+2}, v{acc+3}", [f"v{acc+2}", f"v{acc+3}"], [f"v{st+1}"])]
    return ops

A_FR3 = 0; A_SEL = 224
V_POLLA, V_POLL, V_ONE, V_ZERO, V_RLD, V_OUT = 32, 33, 34, 35, 36, 37
V_RD = 40
V_GRP = V_ARR + 3
def wo_read(nb, s_, jj):
    return ds_read_tr("a", A_FR3 + 4 * (8 * (nb & 1) + s_) + 2 * jj, V_VA[nb], s_ * 4096 + jj * 2048)

V_GA = V_ARR + 2
def grp_setup():
    return [salu(f"s_lshl_b32 s{S_T0}, s{S_G}, 4"), valu(f"v_and_b32 v{V_GA}, 3, v{V_LANE}", [f"v{V_LANE}"], [f"v{V_GA}"]),
            valu(f"v_lshlrev_b32 v{V_GA}, 2, v{V_GA}", [f"v{V_GA}"], [f"v{V_GA}"]), valu(f"v_add_u32 v{V_GA}, s{S_T0}, v{V_GA}", [f"v{V_GA}"], [f"v{V_GA}"])]
V_GA3 = 38
def grp_load(dst, tg, ga=V_GA): return tag(bload(dst, 1, ga, S_DBG, "0", 0, "sc1"), tg)
def splat(x): return x * 0x01010101
def mode_load(): return grp_load(V_ARR, "grp")
def mode_check():
    o = []; a = o.append
    a(salu(f"s_or_b32 s{S_T0}, s{S_XCC}, 0x80")); a(salu(f"s_mul_i32 s50, s{S_T0}, 0x01010101"))
    a(wait_tag("grp"))
    a(valu(f"v_and_b32 v{V_ARR}, 0x87878787, v{V_ARR}", [f"v{V_ARR}"], [f"v{V_ARR}"]))
    a(valu(f"v_cmp_eq_u32 vcc, s50, v{V_ARR}", [f"v{V_ARR}"], ["vcc"])); a(nop(0))
    a(salu("s_cmp_eq_u64 vcc, -1"))
    a(salu(f"s_cselect_b64 s[{S_LOCM}:{S_LOCM+1}], -1, 0"))
    if OPT.force_fallback: a(salu("s_cmp_eq_u32 s50, 0"))
    a(raw("s_cbranch_scc0 L_grp_far", "branch")); a(label("L_grp_ok"))
    f = [label("L_grp_far"), salu(f"s_or_b32 s{S_T0}, s{S_XCC}, 0x80"), valu(f"v_mov_b32 v{V_ARR+1}, s{S_T0}", [], []),
         valu(f"v_mov_b32 v{V_ARR+3}, 0", [], []),
         raw(f"buffer_store_byte v{V_ARR+1}, v{V_ARR+3}, s[{S_DBG}:{S_DBG+3}], s{S_SIG} offen sc1", "salu"), wait_vm(0),
         salu(f"s_mov_b32 s{S_SPIN}, {SPIN_MAX}"), label("L_grp_again"),
         salu(f"s_sub_u32 s{S_SPIN}, s{S_SPIN}, 1"), salu(f"s_cmp_eq_u32 s{S_SPIN}, 0"), raw("s_cbranch_scc1 L_grp_ok", "branch")]
    if not OPT.force_fallback:
        f += [raw(f"buffer_load_dword v{V_ARR}, v{V_GA}, s[{S_DBG}:{S_DBG+3}], 0 offen sc1", "salu"), wait_vm(0),
              valu(f"v_and_b32 v{V_ARR}, 0x87878787, v{V_ARR}", [], []), valu(f"v_cmp_eq_u32 vcc, s50, v{V_ARR}", [], []), nop(0),
              salu("s_cmp_eq_u64 vcc, -1"), salu(f"s_cselect_b64 s[{S_LOCM}:{S_LOCM+1}], -1, 0"), raw("s_cbranch_scc1 L_grp_ok", "branch")]
    f += far_read(V_ARR)
    f += [valu(f"v_and_b32 v{V_ARR+1}, 0x80808080, v{V_ARR}", [], []), valu(f"v_cmp_eq_u32 vcc, 0x80808080, v{V_ARR+1}", [], []), nop(0),
          salu("s_and_b64 s[52:53], vcc, 15"), salu("s_cmp_eq_u64 s[52:53], 15"), raw("s_cbranch_scc0 L_grp_again", "branch"),
          valu(f"v_and_b32 v{V_ARR}, 0x87878787, v{V_ARR}", [], []), valu(f"v_cmp_eq_u32 vcc, s50, v{V_ARR}", [], []), nop(0),
          salu("s_and_b64 s[52:53], vcc, 15"), salu("s_cmp_eq_u64 s[52:53], 15"),
          salu(f"s_cselect_b64 s[{S_LOCM}:{S_LOCM+1}], -1, 0")]
    if OPT.force_fallback: f.append(salu(f"s_mov_b64 s[{S_LOCM}:{S_LOCM+1}], 0"))
    f.append(raw("s_branch L_grp_ok", "branch"))
    OOL.extend(f)
    return o
def far_read(dst, ga=V_GA):
    return [valu(f"v_mov_b32 v{dst}, 0", [], []), valu(f"v_cmp_gt_u32 vcc, 4, v{V_LANE}", [], []),
            raw("s_and_saveexec_b64 s[54:55], vcc", "salu"),
            raw(f"buffer_atomic_add v{dst}, v{ga}, s[{S_DBG}:{S_DBG+3}], 0 offen sc0 sc1", "salu"), wait_vm(0),
            raw("s_mov_b64 exec, s[54:55]", "salu")]

def p3_setup():
    o = []; a = o.append
    L = f"v{V_LANE}"
    a(salu(f"s_mul_i32 s{S_PART}, s{S_G}, {7*16*16*2048}"))
    a(salu(f"s_lshl_b32 s{S_T2}, s{S_H}, 15")); a(salu(f"s_add_u32 s{S_RBASE}, s{S_PART}, s{S_T2}"))
    a(salu(f"s_lshl_b32 s{S_T2}, s{S_W}, 17")); a(salu(f"s_add_u32 s{S_PART}, s{S_PART}, s{S_T2}"))
    a(salu(f"s_lshl_b32 s{S_T2}, s{S_H}, 11")); a(salu(f"s_add_u32 s{S_PART}, s{S_PART}, s{S_T2}"))
    a(valu(f"v_lshlrev_b32 v{V_STO}, 4, {L}", [L], [f"v{V_STO}"]))
    if not OPT.fused: return o
    a(valu(f"v_mov_b32 v{V_ZERO}, 0", [], [f"v{V_ZERO}"])); a(valu(f"v_mov_b32 v{V_GA3}, v{V_GA}", [f"v{V_GA}"], [f"v{V_GA3}"]))
    a(salu(f"s_or_b32 s{S_T2}, s{S_XCC}, 0xf0")); a(valu(f"v_mov_b32 v{V_ONE}, s{S_T2}", [], [f"v{V_ONE}"]))
    a(valu(f"v_lshrrev_b32 v1, 5, {L}", [L], ["v1"])); a(valu("v_lshlrev_b32 v1, 11, v1", ["v1"], ["v1"]))
    a(valu(f"v_and_b32 v2, 31, {L}", [L], ["v2"])); a(valu(f"v_lshl_add_u32 v{V_RLD}, v2, 4, v1", ["v1", "v2"], [f"v{V_RLD}"]))
    a(salu(f"s_lshl_b32 s{S_T2}, s{S_W}, 9")); a(valu(f"v_add_u32 v{V_RLD}, s{S_T2}, v{V_RLD}", [f"v{V_RLD}"], [f"v{V_RLD}"]))
    a(valu(f"v_and_b32 v1, 15, {L}", [L], ["v1"])); a(valu(f"v_lshrrev_b32 v2, 4, {L}", [L], ["v2"]))
    a(valu("v_lshrrev_b32 v4, 3, v1", ["v1"], ["v4"])); a(valu("v_and_b32 v5, 1, v2", ["v2"], ["v5"]))
    a(valu("v_and_b32 v48, 1, v1", ["v1"], ["v48"])); a(valu("v_lshlrev_b32 v48, 4, v48", ["v48"], ["v48"]))
    a(valu("v_mov_b32 v49, 0x3f80", [], ["v49"])); a(valu("v_lshlrev_b32 v49, v48, v49", ["v48", "v49"], ["v49"]))
    a(valu("v_cmp_eq_u32 vcc, v4, v5", ["v4", "v5"], ["vcc"])); a(nop(1))
    a(valu("v_cndmask_b32 v49, 0, v49, vcc", ["v49", "vcc"], ["v49"]))
    a(valu("v_bfe_u32 v50, v1, 1, 2", ["v1"], ["v50"]))
    for r in range(4):
        a(valu(f"v_cmp_eq_u32 vcc, {r}, v50", ["v50"], ["vcc"])); a(nop(1))
        a(valu("v_cndmask_b32 v51, 0, v49, vcc", ["v49", "vcc"], ["v51"]))
        a(valu(f"v_accvgpr_write_b32 a{A_SEL+r}, v51", ["v51"], [f"a{A_SEL+r}"]))
    a(salu(f"s_lshl_b32 s{S_T2}, s{S_B}, 8")); a(salu(f"s_lshl_b32 s{S_T3}, s{S_H}, 4")); a(salu(f"s_add_u32 s{S_T2}, s{S_T2}, s{S_T3}"))
    a(valu(f"v_add_u32 v{V_OUT}, s{S_T2}, v1", ["v1"], [f"v{V_OUT}"])); a(valu(f"v_mul_u32_u24 v{V_OUT}, 896, v{V_OUT}", [f"v{V_OUT}"], [f"v{V_OUT}"]))
    a(salu(f"s_mul_i32 s{S_T2}, s{S_BR}, 448")); a(salu(f"s_lshr_b32 s{S_T3}, s{S_W}, 1")); a(salu(f"s_lshl_b32 s{S_T3}, s{S_T3}, 5"))
    a(salu(f"s_add_u32 s{S_T2}, s{S_T2}, s{S_T3}")); a(salu(f"s_and_b32 s{S_T3}, s{S_W}, 1")); a(salu(f"s_lshl_b32 s{S_T3}, s{S_T3}, 3"))
    a(salu(f"s_add_u32 s{S_T2}, s{S_T2}, s{S_T3}"))
    a(valu(f"v_add_u32 v{V_OUT}, s{S_T2}, v{V_OUT}", [f"v{V_OUT}"], [f"v{V_OUT}"]))
    a(valu(f"v_lshl_add_u32 v{V_OUT}, v5, 4, v{V_OUT}", ["v5", f"v{V_OUT}"], [f"v{V_OUT}"]))
    a(valu("v_lshrrev_b32 v4, 1, v2", ["v2"], ["v4"])); a(valu(f"v_lshl_add_u32 v{V_OUT}, v4, 2, v{V_OUT}", ["v4", f"v{V_OUT}"], [f"v{V_OUT}"]))
    a(valu(f"v_lshlrev_b32 v{V_OUT}, 1, v{V_OUT}", [f"v{V_OUT}"], [f"v{V_OUT}"]))
    return o

def handoff_far():
    o = [wait_vm(0), barrier(), raw("buffer_wbl2 sc1", "salu"), wait_vm(0), barrier(),
         raw(f"buffer_store_byte v{V_ONE}, v{V_ZERO}, s[{S_DBG}:{S_DBG+3}], s{S_SIG} offen sc1", "salu"), wait_vm(0),
         salu(f"s_mov_b32 s{S_SPIN}, {SPIN_MAX}"), label("L_far_poll"),
         salu(f"s_sub_u32 s{S_SPIN}, s{S_SPIN}, 1"), salu(f"s_cmp_eq_u32 s{S_SPIN}, 0"), raw("s_cbranch_scc1 L_far_done", "branch")]
    o += far_read(V_POLL, V_GA3)
    o += [valu(f"v_and_b32 v{V_POLL}, 0xf0f0f0f0, v{V_POLL}", [], []), valu(f"v_cmp_eq_u32 vcc, 0xf0f0f0f0, v{V_POLL}", [], []), nop(0),
          salu("s_and_b64 s[52:53], vcc, 15"), salu("s_cmp_eq_u64 s[52:53], 15"), raw("s_cbranch_scc0 L_far_poll", "branch"),
          label("L_far_done"), raw("buffer_inv sc1", "salu"), wait_vm(0)]
    return o

A_PIECE = 0; A_SEL2 = 224
def red_loads(j):
    out = []
    for i in range(8):
        sr = "s52" if i % 2 == 0 else "s53"
        out.append(([salu(f"s_add_u32 {sr}, s{S_RBASE}, {j*16*32768 + i*4096}", [f"s{S_RBASE}"], [sr])],
                    tag(bload_f("a", A_PIECE + 32 * j + 4 * i, 4, V_RLD, S_WS, sr, 0, "sc1"), f"rl{j}")))
    return out
def red_mfmas(j):
    d = V_RD + 4 * (j & 1)
    return [mfma("v", d, "a", A_SEL2, "a", A_PIECE + 32 * j + 4 * i, None if i == 0 else "v", None if i == 0 else d) for i in range(8)]
def red_out(j):
    d = V_RD + 4 * (j & 1)
    return [valu(f"v_cvt_pk_bf16_f32 v{d}, v{d}, v{d+1}", [f"v{d}", f"v{d+1}"], [f"v{d}"]),
            valu(f"v_cvt_pk_bf16_f32 v{d+1}, v{d+2}, v{d+3}", [f"v{d+2}", f"v{d+3}"], [f"v{d+1}"])], tag(bstore(d, 2, V_OUT, S_OUT, "0", j * 128), f"out{j}")

A_RING = 64; A_SEL4 = 96
V_RLD4, V_OUT4, V_FLA, V_FLAG1 = 48, 49, 50, 51
def ring_setup():
    o = []; a = o.append
    L = f"v{V_LANE}"
    a(salu(f"s_mul_i32 s{S_T0}, s{S_G}, {OPT.ring * 262144}"))
    a(salu(f"s_lshl_b32 s{S_T1}, s{S_W}, 16")); a(salu(f"s_add_u32 s{S_RST}, s{S_T0}, s{S_T1}"))
    a(salu(f"s_lshl_b32 s{S_T1}, s{S_H}, 10")); a(salu(f"s_add_u32 s{S_RST}, s{S_RST}, s{S_T1}"))
    a(salu(f"s_lshl_b32 s{S_T1}, s{S_H}, 14")); a(salu(f"s_add_u32 s{S_RLD}, s{S_T0}, s{S_T1}"))
    a(salu(f"s_mul_i32 s{S_T0}, s{S_G}, {14*64}"))
    a(salu(f"s_lshl_b32 s{S_T1}, s{S_W}, 4"))
    a(salu(f"s_add_u32 s{S_FPW}, s{S_T0}, s{S_T1}")); a(salu(f"s_add_u32 s{S_FPW}, s{S_FPW}, s{S_H}"))
    a(salu(f"s_add_u32 s{S_FCR}, s{S_T0}, s{S_T1}")); a(salu(f"s_add_u32 s{S_FCR}, s{S_FCR}, {CONS_OFF}"))
    a(salu(f"s_lshr_b32 s{S_T1}, s{S_H}, 2")); a(salu(f"s_lshl_b32 s{S_T1}, s{S_T1}, 4"))
    a(salu(f"s_add_u32 s{S_FPR}, s{S_T0}, s{S_T1}"))
    a(salu(f"s_lshl_b32 s{S_T1}, s{S_H}, 2")); a(salu(f"s_add_u32 s{S_FCW}, s{S_T0}, s{S_T1}"))
    a(salu(f"s_add_u32 s{S_FCW}, s{S_FCW}, s{S_W}")); a(salu(f"s_add_u32 s{S_FCW}, s{S_FCW}, {CONS_OFF}"))
    a(valu(f"v_and_b32 v{V_FLA}, 3, {L}", [L], [f"v{V_FLA}"])); a(valu(f"v_lshlrev_b32 v{V_FLA}, 2, v{V_FLA}", [f"v{V_FLA}"], [f"v{V_FLA}"]))
    a(valu(f"v_mov_b32 v{V_FLAG1}, 1", [], [f"v{V_FLAG1}"]))
    a(valu(f"v_and_b32 v1, 15, {L}", [L], ["v1"])); a(valu(f"v_lshrrev_b32 v2, 4, {L}", [L], ["v2"]))
    a(valu(f"v_lshlrev_b32 v{V_RLD4}, 10, v2", ["v2"], [f"v{V_RLD4}"])); a(valu(f"v_lshl_add_u32 v{V_RLD4}, v1, 4, v{V_RLD4}", ["v1", f"v{V_RLD4}"], [f"v{V_RLD4}"]))
    a(salu(f"s_lshl_b32 s{S_T1}, s{S_W}, 8")); a(valu(f"v_add_u32 v{V_RLD4}, s{S_T1}, v{V_RLD4}", [f"v{V_RLD4}"], [f"v{V_RLD4}"]))
    a(valu("v_and_b32 v4, 1, v1", ["v1"], ["v4"])); a(valu("v_lshlrev_b32 v4, 4, v4", ["v4"], ["v4"]))
    a(valu("v_mov_b32 v5, 0x3f80", [], ["v5"])); a(valu("v_lshlrev_b32 v5, v4, v5", ["v4", "v5"], ["v5"]))
    a(valu("v_lshrrev_b32 v4, 1, v1", ["v1"], ["v4"]))
    for r in range(4):
        a(valu(f"v_cmp_eq_u32 vcc, {r}, v4", ["v4"], ["vcc"])); a(nop(1))
        a(valu("v_cndmask_b32 v52, 0, v5, vcc", ["v5", "vcc"], ["v52"]))
        a(valu(f"v_accvgpr_write_b32 a{A_SEL4+r}, v52", ["v52"], [f"a{A_SEL4+r}"]))
    a(salu(f"s_lshl_b32 s{S_T0}, s{S_B}, 8")); a(salu(f"s_lshl_b32 s{S_T1}, s{S_H}, 4")); a(salu(f"s_add_u32 s{S_T0}, s{S_T0}, s{S_T1}"))
    a(valu(f"v_add_u32 v{V_OUT4}, s{S_T0}, v1", ["v1"], [f"v{V_OUT4}"])); a(valu(f"v_mul_u32_u24 v{V_OUT4}, 896, v{V_OUT4}", [f"v{V_OUT4}"], [f"v{V_OUT4}"]))
    a(salu(f"s_mul_i32 s{S_T0}, s{S_BR}, 448")); a(salu(f"s_lshl_b32 s{S_T1}, s{S_W}, 2")); a(salu(f"s_add_u32 s{S_T0}, s{S_T0}, s{S_T1}"))
    a(valu(f"v_add_u32 v{V_OUT4}, s{S_T0}, v{V_OUT4}", [f"v{V_OUT4}"], [f"v{V_OUT4}"]))
    a(valu(f"v_lshl_add_u32 v{V_OUT4}, v2, 4, v{V_OUT4}", ["v2", f"v{V_OUT4}"], [f"v{V_OUT4}"]))
    a(valu(f"v_lshlrev_b32 v{V_OUT4}, 1, v{V_OUT4}", [f"v{V_OUT4}"], [f"v{V_OUT4}"]))
    a(valu("v_cmp_gt_u32 vcc, 2, v2", ["v2"], ["vcc"])); a(salu(f"s_mov_b32 s{S_T0}, 0x7ff00000")); a(valu(f"v_mov_b32 v4, s{S_T0}", [], ["v4"]))
    a(valu(f"v_cndmask_b32 v{V_OUT4}, v4, v{V_OUT4}, vcc", ["v4", f"v{V_OUT4}", "vcc"], [f"v{V_OUT4}"]))
    return o

def flag_store(base, u, tg):
    return [salu(f"s_add_u32 s55, s{base}, {u*64}", [f"s{base}"], ["s55"])], \
           tag(I(f"buffer_store_byte v{V_FLAG1}, v{V_ZERO}, s[{S_FL}:{S_FL+3}], s55 offen", "vst", [f"v{V_FLAG1}", f"v{V_ZERO}", "s55"], data=[]), tg)
def flag_poll(base, u, dst, tg):
    return [salu(f"s_add_u32 s54, s{base}, {u*64}", [f"s{base}"], ["s54"])], tag(bload(dst, 1, V_FLA, S_FL, "s54", 0, "sc1"), tg)
def flag_check(base, u, dst, tg, name):
    OOL.extend([label(f"L_{name}_spin"), salu(f"s_add_u32 s54, s{base}, {u*64}"), salu(f"s_mov_b32 s{S_SPIN}, {SPIN_MAX}"),
                label(f"L_{name}_again"),
                salu(f"s_sub_u32 s{S_SPIN}, s{S_SPIN}, 1"), salu(f"s_cmp_eq_u32 s{S_SPIN}, 0"), raw(f"s_cbranch_scc1 L_{name}_ok", "branch"),
                raw(f"buffer_load_dword v{dst}, v{V_FLA}, s[{S_FL}:{S_FL+3}], s54 offen sc1", "salu"), wait_vm(0),
                valu(f"v_cmp_ne_u32 vcc, 0x01010101, v{dst}", [], []), nop(0),
                raw(f"s_cbranch_vccnz L_{name}_again", "branch"), raw(f"s_branch L_{name}_ok", "branch")])
    dd = (lambda n: stamp("d_" + n)) if name in (f"prod{OPT.p3detail}", f"cons{OPT.p3detail}") else (lambda n: [])
    return dd(name[:4] + "A") + [wait_tag(tg)] + dd(name[:4] + "B") + [valu(f"v_cmp_ne_u32 vcc, 0x01010101, v{dst}", [f"v{dst}"], ["vcc"]), nop(0),
            raw(f"s_cbranch_vccnz L_{name}_spin", "branch"), label(f"L_{name}_ok")] + dd(name[:4] + "C")
V_PP, V_PC = 53, 54
def ring_loads(u):
    out = []
    for i in range(4):
        sr = "s52" if i % 2 == 0 else "s53"
        out.append(([salu(f"s_add_u32 {sr}, s{S_RLD}, {(u % OPT.ring)*262144 + i*4096}", [f"s{S_RLD}"], [sr])],
                    tag(bload_f("a", A_RING + 16 * (u & 1) + 4 * i, 4, V_RLD4, S_RG, sr, 0, "sc1"), f"rl{u}")))
    return out
def ring_mfmas(u):
    d = V_RD + 4 * (u & 1)
    return [mfma("v", d, "a", A_SEL4, "a", A_RING + 16 * (u & 1) + 4 * i, None if i == 0 else "v", None if i == 0 else d) for i in range(4)]
def ring_out(u):
    d = V_RD + 4 * (u & 1)
    return [valu(f"v_cvt_pk_bf16_f32 v{d}, v{d}, v{d+1}", [f"v{d}", f"v{d+1}"], [f"v{d}"]),
            valu(f"v_cvt_pk_bf16_f32 v{d+1}, v{d+2}, v{d+3}", [f"v{d+2}", f"v{d+3}"], [f"v{d+1}"])], tag(bstore(d, 2, V_OUT4, S_OUT, "0", u * 64), f"out{u}")

def p3_stream(local, carried):
    o = []; a = o.append
    NS, D = OPT.ring, OPT.prod_delay
    Q = lambda u: 8 * u + 7
    ins = {}
    if local:
        for u in range(14):
            m = 8 * (Q(u) + 22 + D) - 1
            if m < 895: ins[m] = u
    ms = []; pos = {}; redpos = {}
    for m in range(896):
        j, i = m >> 7, m & 127
        nb, qb, s_ = i >> 5, (i >> 3) & 3, i & 7
        acc = V_ACC3 + 4 * ((nb * 4 + qb) % 8)
        pos[m] = len(ms)
        ms.append(mfma("v", acc, "a", A_FR3 + 4 * (8 * (nb & 1) + s_), "v", V_Q + (qb * 8 + s_) * 4,
                       None if s_ == 0 else "v", None if s_ == 0 else acc))
        if m in ins:
            u = ins[m]; redpos[u] = len(ms); ms += ring_mfmas(u)
    g = Gaps(ms); N = g.n
    P = lambda j, i: pos[128 * j + i]
    def G(period, off):
        m = 8 * period + off
        return pos[m] if 0 <= m < 896 else None
    for j in range(7):
        for nb in range(4):
            jn, nbn = (j, nb + 1) if nb < 3 else (j + 1, 0)
            if jn > 6: continue
            for s_ in range(8):
                for jj in range(2): g.put_mem(P(j, 32 * nb + 4 * s_ + 2 * jj), wo_read(nbn, s_, jj))
    cons = []
    for j in range(7):
        for nb in range(4):
            for s_ in (0, 2, 4, 6): cons.append((P(j, 32 * nb + s_), R("a", A_FR3 + 4 * (8 * (nb & 1) + s_), 8)))
    cons.sort()
    lead = add_lgkm_waits(g, cons, carried)
    def put_vm(k, sc, d):
        assert g.mem[k] is None and not g.post[k], (k, d.text)
        for n, x in enumerate(reversed(sc)):
            kk = k - 1 - n
            assert not (g.mem[kk] is not None and g.mem[kk].kind == "dma" and "m0" in x.wr)
            g.pre[kk].append(x)
        g.mem[k] = d
    def put_seq(k, seq):
        assert g.mem[k] is None and not g.post[k], k
        g.post[k] = seq
    for j in range(6):
        k = P(j, 91)
        g.pre[k] += [wait_tag(f"wo{j+1}"), barrier()]
        sh = va_shift(WOBUF[j + 1] - WOBUF[j])
        for n, at in ((0, 85), (1, 61), (2, 69), (3, 101)):
            kk = P(j, at); g.vec[kk].append(sh[n])
    for j in (2, 3):
        items = wo_dma(j + 3)
        for n, (sc, d) in enumerate(items):
            u0 = 2 * j + (n >> 2)
            per, off = [(Q(u0) - 4, 7), (Q(u0) - 3, 3), (Q(u0) - 3, 7), (Q(u0) - 2, 7)][n & 3]
            put_vm(G(per, off), sc, d)
    stores = {}; sgap = {}
    for u in range(14):
        j, nb = u >> 1, 2 * (u & 1) + 1
        for qb in range(4):
            sreg = S_T2 + (qb & 1)
            if local:
                st = ([salu(f"s_add_u32 s{sreg}, s{S_RST}, {(u % NS)*262144 + qb*16384}", [f"s{S_RST}"], [f"s{sreg}"])],
                      tag(bstore(V_STG + 4 * qb, 4, V_STO, S_RG, f"s{sreg}", 0), f"st{u}"))
            else:
                so = j * 16 * 16 * 2048 + qb * 16 * 2048 + (nb >> 1) * 1024
                st = ([salu(f"s_add_u32 s{sreg}, s{S_PART}, {so}", [f"s{S_PART}"], [f"s{sreg}"])],
                      tag(bstore(V_STG + 4 * qb, 4, V_STO, S_WS, f"s{sreg}", 0), f"st{u}"))
            stores[(u, qb)] = st
            k = G(Q(u) + qb, 3)
            sgap[(u, qb)] = k
            if k is not None: put_vm(k, *st)
    done = {}; out_left = []
    if local:
        for u in range(14):
            dd = (lambda n: stamp("d_" + n)) if u == OPT.p3detail else (lambda n: [])
            if u >= NS:
                kp, kc = G(Q(u) - 4, 3), G(Q(u) - 1, 3)
                put_vm(kp, *flag_poll(S_FCR, u - NS, V_PC, f"pc{u}"))
                put_seq(kc, flag_check(S_FCR, u - NS, V_PC, f"pc{u}", f"cons{u}"))
            done[u] = "sig"
            k = G(Q(u) + 7, 5)
            if k is None or sgap[(u, 3)] is None: continue
            sc, d = flag_store(S_FPW, u, f"sig{u}")
            g.pre[k - 1] += dd("sigA") + [wait_tag(f"st{u}")] + dd("sigB"); put_vm(k, sc, d)
            done[u] = "poll"
            k = G(Q(u) + 12 + D, 5)
            if k is None: continue
            put_vm(k, *flag_poll(S_FPR, u, V_PP, f"pp{u}"))
            done[u] = "check"
            k = G(Q(u) + 15 + D, 7)
            if k is None: continue
            put_seq(k, flag_check(S_FPR, u, V_PP, f"pp{u}", f"prod{u}"))
            done[u] = "loads"
            if u not in redpos: continue
            for n, (sc, d) in enumerate(ring_loads(u)): put_vm(G(Q(u) + 16 + D + n, 7), sc, d)
            g.pre[redpos[u] - 1] += dd("rlA") + [wait_tag(f"rl{u}")] + dd("rlB")
            if u <= 13 - NS: put_vm(G(Q(u) + 22 + D, 3), *flag_store(S_FCW, u, f"csig{u}"))
            done[u] = "out"
            cv, st = ring_out(u)
            if u + 1 in redpos:
                g.vec[redpos[u + 1]] += cv
                put_vm(G(Q(u) + 30 + D, 5), [], st)
                done[u] = "all"
    tail_main = []
    for p in range(112):
        j, nb, qb = p >> 4, (p >> 2) & 3, p & 3
        ops = part_ops(nb, qb)
        slots = [G(p + 2, 0), G(p + 2, 1), G(p + 2, 1), G(p + 2, 2), G(p + 2, 4), G(p + 2, 6)]
        if slots[0] is None:
            tail_main += ops
        else:
            for x, k in zip(ops, slots): g.vec[k].append(x)
        if nb & 1:
            u = 2 * j + (nb >> 1)
            if sgap[(u, qb)] is None: tail_main += stores[(u, qb)][0] + [nop(1), stores[(u, qb)][1]]
    if lead is not None: a(lead)
    em = g.emit()
    if "allst" in OPT.p3_drop: em = [x for x in em if x.kind != "vst"]
    if "pst" in OPT.p3_drop: em = [x for x in em if not (x.kind == "vst" and x.meta.get("tag", "").startswith("st"))]
    if "nospin" in OPT.p3_drop: em = [x for x in em if not (x.kind == "branch" and "vccnz" in x.text)]
    if "novm" in OPT.p3_drop: em = [x for x in em if not (x.kind == "wait" and "vmtags" in x.meta and not x.meta["vmtags"][0].startswith("wo"))]
    if "nold" in OPT.p3_drop: em = [x for x in em if not (x.kind == "vld" and x.meta.get("tag", "").startswith("rl"))]
    o += stamp("p3_stream_start") if (local or not OPT.fused) else []
    o += em
    if local or not OPT.fused: o += stamp("p3_mfma_end")
    a(nop(7)); o += exposed(tail_main)
    if local:
        todo = [u for u in range(14) if done[u] != "all"]
        for u in todo:
            if done[u] == "sig":
                sc, d = flag_store(S_FPW, u, f"sig{u}"); o += [wait_tag(f"st{u}")] + sc + [d]
        o += stamp("x_last_signal")
        if OPT.early_wb:
            o += [salu(f"s_or_b32 s{S_T0}, s{S_H}, s{S_W}"), salu(f"s_cmp_lg_u32 s{S_T0}, {0 if OPT.early_wb == 1 else 0}"),
                  raw("s_cbranch_scc1 L_no_wb", "branch"), raw("buffer_wbl2 sc1", "salu"), label("L_no_wb")]
        for u in todo:
            if done[u] != "out":
                if done[u] in ("sig", "poll"):
                    sc, d = flag_poll(S_FPR, u, V_PP, f"pp{u}"); o += sc + [d]
                if done[u] in ("sig", "poll", "check"): o += flag_check(S_FPR, u, V_PP, f"pp{u}", f"prod{u}")
                for sc, d in ring_loads(u): o += sc + [d]
                o.append(wait_tag(f"rl{u}"))
                o += ring_mfmas(u); a(nop(7))
            cv, st = ring_out(u); o += cv + [st]
    return o

def phase3():
    o = []; a = o.append
    a(wait_tag("wt"))
    o += p3_setup()
    if OPT.fused: o += ring_setup()
    o += va_shift(WOBUF[0] - L_V)
    if OPT.fused: o += mode_check()
    a(wait_tag("wo0")); a(barrier())
    carried = []
    for s_ in range(8):
        for jj in range(2):
            r = wo_read(0, s_, jj); a(r); carried.append(r.wr)
            if len(carried) == 14: a(wait_lgkm(6)); carried = carried[-6:]
    for sc, d in wo_dma(4): o += sc + [nop(0), d]
    if not OPT.fused:
        return o, p3_stream(False, carried) + stamp("p3_end") + ([wait_vm(0)] if OPT.stamps else []) + stamp("rt_end"), []
    o += [salu(f"s_cmp_eq_u32 s{S_LOCM}, 0"), raw("s_cbranch_scc1 L_p3_far", "branch")]
    loc = p3_stream(True, carried)
    loc += stamp("p3_end") + ([wait_vm(0)] if OPT.stamps else []) + stamp("rt_end")
    far = [label("L_p3_far")] + p3_stream(False, carried) + handoff_far()
    for j in range(7):
        for sc, d in red_loads(j): far += sc + [d]
    for j in range(7):
        far.append(wait_tag(f"rl{j}"))
        far += red_mfmas(j)
        if j > 0:
            cv, stt = red_out(j - 1); far += cv + [stt]
    far.append(nop(7))
    cv, stt = red_out(6); far += cv + [stt]
    far += [wait_vm(0), raw("s_endpgm", "branch")]
    return o, loc, far

def dump_regs(base, n, agpr=False):
    o = [wait_vm(0), raw("s_waitcnt lgkmcnt(0)", "wait", lgkm=0), nop(7), nop(7),
         salu(f"s_lshl_b32 s{S_T0}, s2, 2"), salu(f"s_add_u32 s{S_T0}, s{S_T0}, s{S_W}"),
         salu(f"s_mul_i32 s{S_T0}, s{S_T0}, {n*256}"), valu(f"v_lshlrev_b32 v1, 2, v{V_LANE}", [f"v{V_LANE}"], ["v1"])]
    for r in range(n):
        if agpr:
            o.append(valu(f"v_accvgpr_read_b32 v2, a{base+r}", [f"a{base+r}"], ["v2"])); o.append(bstore(2, 1, 1, S_WS, f"s{S_T0}", 0))
        else:
            o.append(bstore(base + r, 1, 1, S_WS, f"s{S_T0}", 0))
        o.append(salu(f"s_add_u32 s{S_T0}, s{S_T0}, 256"))
        if r % 32 == 31 or agpr: o.append(wait_vm(0))
    return o

def stamp_out():
    if not OPT.stamps: return []
    if OPT.bar_stamps: STAMPS.extend(["acc_vm", "acc_bar"])
    n = len(STAMPS)
    o = [raw("s_waitcnt lgkmcnt(0)", "wait", lgkm=0), salu(f"s_cmp_lg_u32 s{S_W}, 0"), raw("s_cbranch_scc1 L_nostamp", "branch")]
    if OPT.stamp_dbg >= 0:
        o += [salu(f"s_cmp_lg_u32 s2, {OPT.stamp_dbg}"), raw("s_cbranch_scc1 L_nostamp", "branch")]
        o += [salu("s_load_dwordx2 s[36:37], s[0:1], 88"), raw("s_waitcnt lgkmcnt(0)", "wait", lgkm=0)]
        o += [salu(f"s_mov_b32 s{S_WS}, s36"), salu(f"s_mov_b32 s{S_WS+1}, s37"), salu(f"s_mov_b32 s{S_WS+2}, 256"), salu(f"s_mov_b32 s{S_T0}, 0")]
    else:
        o.append(salu(f"s_mul_i32 s{S_T0}, s2, 64")); o.append(salu(f"s_add_u32 s{S_T0}, s{S_T0}, {STAMP_OFF}"))
        o.append(salu(f"s_mov_b32 s{S_WS+2}, {STAMP_OFF + 256*64}"))
    if OPT.trip_stamps:
        o += [valu(f"v_lshlrev_b32 v2, 2, v{V_LANE}", [], ["v2"]), salu(f"s_mul_i32 s{S_T1}, s2, 64"),
              salu(f"s_add_u32 s{S_T1}, s{S_T1}, {STAMP_OFF + 256*64}"), salu(f"s_mov_b32 s{S_WS+2}, {STAMP_OFF + 2*256*64}"),
              valu("v_cmp_gt_u32 vcc, 16, v0", ["v0"], ["vcc"]), raw("s_and_saveexec_b64 s[36:37], vcc", "salu"),
              bstore(1, 1, 2, S_WS, f"s{S_T1}", 0), wait_vm(0), raw("s_mov_b64 exec, s[36:37]", "salu")]
    o.append(valu("v_mov_b32 v1, 0", [], ["v1"]))
    for k in range(n):
        if OPT.stamp_dbg >= 0:
            ref = 0 if STAMPS[k].startswith("rt") else 1
            o.append(salu(f"s_sub_u32 s{S_T1}, s{S_STAMP+2*k}, s{S_STAMP+2*ref}"))
            o.append(valu(f"v_mov_b32 v2, s{S_T1}", [], ["v2"]))
        elif STAMPS[k] == "acc_vm": o.append(valu("v_mov_b32 v2, s92", [], ["v2"]))
        elif STAMPS[k] == "acc_bar": o.append(valu("v_mov_b32 v2, s93", [], ["v2"]))
        else:
            o.append(valu(f"v_mov_b32 v2, s{S_STAMP+2*k}", [], ["v2"]))
        o.append(bstore(2, 1, 1, S_WS, f"s{S_T0}", 4 * k)); o.append(wait_vm(0))
    o.append(label("L_nostamp"))
    return o

def finish(): return [wait_vm(0), label("L_end"), raw("s_endpgm", "branch")]

def build(debug=None):
    _stamp_n[0] = 0; STAMPS.clear(); OOL.clear()
    pre = setup() + phase1()
    if debug == "p1":
        pre += stamp("rt_end")
        resolve_vm(pre, [])
        return pre + stamp_out() + finish()
    if debug == "q":
        resolve_vm(pre, []); check(pre, "pre")
        return pre + dump_regs(V_Q, 128) + finish()
    if OPT.dma_mode == "cluster":
        OPT.dma_gaps = ([21, 23, 25, 27], [101, 103, 105, 107]); OPT.nv_prev = 0
    elif OPT.dma_mode == "cluster2":
        OPT.dma_gaps = ([41, 43, 47, 49], [101, 103, 105, 107]); OPT.nv_prev = 0
    NCUR = len(OPT.dma_gaps[1])
    p, carried = pre_iter(); pre += p
    def batch(t):
        return dma_tile("V", vslot(t + 3), f"s{S_VOFF}", f"V{t+3}") + dma_tile("K", kslot(t + 5), f"s{S_KOFF}", f"K{t+5}")
    pre += wo_setup()
    if OPT.fused: pre += grp_setup()
    def ex0(g, kb):
        put_wo(g, 0, 3, kb, step=8)
    s0, carried = attn_iter(0, carried, wait_tag("V1", "K2"), [], batch(0)[:NCUR], first=True, adv=False, extra=ex0)
    pre += s0
    pre.append(salu(f"s_mov_b32 s{S_LOOP}, 7"))
    if OPT.bar_stamps: pre += [salu("s_mov_b32 s92, 0"), salu("s_mov_b32 s93, 0")]
    pre += stamp("loop_start") + (stamp("rt_ls") if OPT.bar_stamps else [])
    loop = [label("L_attn")]
    for u in range(4):
        t = 1 + u
        s, carried = attn_iter(t, carried, wait_vm(12), batch(t - 1)[NCUR:], batch(t)[:NCUR], loopctl=(u == 3), loop_body=True)
        loop += s
    if OPT.trip_stamps:
        loop += [raw("s_memtime s[98:99]", "salu"), raw("s_waitcnt lgkmcnt(0)", "wait", lgkm=0),
                 salu(f"s_mov_b32 s99, m0"), salu(f"s_mov_b32 m0, s{S_LOOP}"), nop(0), valu(f"v_writelane_b32 v1, s98, m0", ["s98"], ["v1"]),
                 salu("s_mov_b32 m0, s99"), salu(f"s_cmp_lg_u32 s{S_LOOP}, 0")]
    if OPT.loop_nodma: loop = [x for x in loop if x.kind != "dma"]
    if OPT.loop_nods: loop = [x for x in loop if x.kind != "ds" and not (x.kind == "wait" and "lgkm" in x.meta and x.meta["lgkm"] > 0)]
    if OPT.loop_nomfma: loop = [(nop(1) if x.kind == "mfma" else x) for x in loop]
    if OPT.loop_novalu: loop = [x for x in loop if x.kind not in ("valu", "trans")]
    if OPT.loop_dma_every > 1:
        cnt = [0]
        def keep(x):
            if x.kind != "dma": return True
            cnt[0] += 1
            return cnt[0] % OPT.loop_dma_every == 0
        loop = [x for x in loop if keep(x)]
    loop.append(raw("s_cbranch_scc1 L_attn", "branch"))
    post = stamp("loop_end") + (stamp("rt_le") if OPT.bar_stamps else [])
    def ex29(g, kb):
        if OPT.fused: place_vmem(g, 40, [], mode_load(), kb)
        gp = 50
        for j in OPT.wo_touch: gp = place_vmem(g, gp, [], wo_touch(j), kb) + 12
    post += wo_touch_setup()
    s, carried = attn_iter(29, carried, wait_tag("V30", "K32"), batch(28)[NCUR:4], [], adv=False,
                           extra=ex29)
    post += s
    def ex30(g, kb):
        put_wo(g, 1, 3, kb, step=8)
    s, carried = attn_iter(30, carried, wait_tag("V31"), [], [], adv=False, extra=ex30)
    post += s
    post += last_iter(carried)
    post += stamp("attn_end")
    if debug == "o":
        tailq = dump_regs(V_Q, 128)
    elif debug == "l":
        tailq = dump_regs(V_L, 4)
    else:
        common, loc, far = phase3()
        tailq = common
    post += tailq
    q = resolve_vm(pre, [])
    qexit = ["V30"] * 4 + ["K32"] * 4 + ["V31"] * NCUR
    qb_ = resolve_vm(post, qexit)
    if debug is None:
        resolve_vm(loc, qb_); resolve_vm(far, qb_)
        if far and not OPT.p3_drop: check(loop[1:] + post + far[1:], "loop+post+far", init_lgkm=[x.wr for x in pre if x.kind == "ds"][-8:], init_vm=[[]] * (8 + NCUR))
        post = post + loc
        OOL.extend(far)
    if not (OPT.p1_nowait or OPT.p1_noread or OPT.p1_drop or OPT.loop_nodma or OPT.loop_dma_every > 1 or OPT.loop_nods or OPT.loop_nomfma or OPT.loop_novalu): check(pre + loop[1:] + loop[1:], "pre+loop")
    if not (OPT.p3_drop or OPT.loop_nodma or OPT.loop_dma_every > 1 or OPT.loop_nods or OPT.loop_nomfma or OPT.loop_novalu): check(loop[1:] + post, "loop+post", init_lgkm=[x.wr for x in pre if x.kind == "ds"][-8:], init_vm=[[]] * (8 + NCUR))
    return pre + loop + post + stamp_out() + finish() + OOL

def reduce_kernel():
    o = []; a = o.append
    a(salu("s_cmp_ge_u32 s2, 256")); a(raw("s_cbranch_scc1 R_end", "branch"))
    a(salu("s_load_dwordx2 s[4:5], s[0:1], 80")); a(salu("s_load_dwordx2 s[6:7], s[0:1], 96"))
    a(valu("v_lshrrev_b32 v1, 6, v0", ["v0"], ["v1"])); a(valu("v_and_b32 v0, 63, v0", ["v0"], ["v0"]))
    a(valu("v_readfirstlane_b32 s32, v1", ["v1"], ["s32"]))
    a(salu("s_lshr_b32 s33, s2, 4")); a(salu("s_and_b32 s34, s2, 15"))
    a(salu("s_lshr_b32 s35, s33, 3")); a(salu("s_and_b32 s36, s33, 7"))
    a(salu("s_lshr_b32 s37, s32, 1")); a(salu("s_and_b32 s38, s32, 1"))
    a(valu("v_lshrrev_b32 v2, 5, v0", ["v0"], ["v2"])); a(valu("v_lshlrev_b32 v2, 11, v2", ["v2"], ["v2"]))
    a(valu("v_and_b32 v3, 31, v0", ["v0"], ["v3"])); a(valu("v_lshl_add_u32 v2, v3, 4, v2", ["v3", "v2"], ["v2"]))
    a(salu("s_lshl_b32 s39, s37, 10")); a(salu("s_lshl_b32 s40, s38, 9")); a(salu("s_add_u32 s39, s39, s40"))
    a(valu("v_add_u32 v2, s39, v2", ["v2"], ["v2"]))
    a(valu("v_and_b32 v8, 15, v0", ["v0"], ["v8"])); a(valu("v_lshrrev_b32 v9, 4, v0", ["v0"], ["v9"]))
    a(valu("v_lshrrev_b32 v10, 3, v8", ["v8"], ["v10"])); a(valu("v_and_b32 v11, 1, v9", ["v9"], ["v11"]))
    a(valu("v_and_b32 v12, 1, v8", ["v8"], ["v12"])); a(valu("v_lshlrev_b32 v12, 4, v12", ["v12"], ["v12"]))
    a(valu("v_mov_b32 v13, 0x3f80", [], ["v13"])); a(valu("v_lshlrev_b32 v13, v12, v13", ["v12", "v13"], ["v13"]))
    a(valu("v_cmp_eq_u32 vcc, v10, v11", ["v10", "v11"], ["vcc"])); a(nop(1))
    a(valu("v_cndmask_b32 v13, 0, v13, vcc", ["v13", "vcc"], ["v13"]))
    a(valu("v_bfe_u32 v14, v8, 1, 2", ["v8"], ["v14"]))
    for r in range(4):
        a(valu(f"v_cmp_eq_u32 vcc, {r}, v14", ["v14"], ["vcc"])); a(nop(1))
        a(valu(f"v_cndmask_b32 v{4+r}, 0, v13, vcc", ["v13", "vcc"], [f"v{4+r}"]))
    a(salu("s_lshl_b32 s41, s36, 8")); a(salu("s_lshl_b32 s42, s34, 4")); a(salu("s_add_u32 s41, s41, s42"))
    a(valu("v_add_u32 v3, s41, v8", ["v8"], ["v3"])); a(valu("v_mul_u32_u24 v3, 896, v3", ["v3"], ["v3"]))
    a(salu("s_mul_i32 s42, s35, 448")); a(salu("s_lshl_b32 s43, s37, 5")); a(salu("s_add_u32 s42, s42, s43"))
    a(salu("s_lshl_b32 s43, s38, 3")); a(salu("s_add_u32 s42, s42, s43"))
    a(valu("v_add_u32 v3, s42, v3", ["v3"], ["v3"]))
    a(valu("v_lshl_add_u32 v3, v11, 4, v3", ["v11", "v3"], ["v3"]))
    a(valu("v_lshrrev_b32 v10, 1, v9", ["v9"], ["v10"])); a(valu("v_lshl_add_u32 v3, v10, 2, v3", ["v10", "v3"], ["v3"]))
    a(valu("v_lshlrev_b32 v3, 1, v3", ["v3"], ["v3"]))
    a(raw("s_waitcnt lgkmcnt(0)", "wait", lgkm=0))
    for base, lo, size in ((8, 6, 16 * 7 * 16 * 16 * 2048), (12, 4, 8 * 256 * 896 * 2)):
        a(salu(f"s_mov_b32 s{base}, s{lo}")); a(salu(f"s_mov_b32 s{base+1}, s{lo+1}"))
        a(salu(f"s_mov_b32 s{base+2}, {size}")); a(salu(f"s_mov_b32 s{base+3}, 0x20000"))
    a(salu(f"s_mul_i32 s44, s33, {7*16*32768}")); a(salu("s_lshl_b32 s45, s34, 15")); a(salu("s_add_u32 s44, s44, s45"))
    for j in range(7):
        for i in range(8):
            a(salu(f"s_add_u32 s46, s44, {j*16*32768 + i*4096}"))
            a(tag(bload(16 + (j * 8 + i) * 4, 4, 2, 8, "s46", 0), f"p{j}"))
    for j in range(7):
        a(wait_tag(f"p{j}"))
        d = 240 + 4 * (j & 1)
        for i in range(8):
            a(mfma("v", d, "v", 4, "v", 16 + (j * 8 + i) * 4, None if i == 0 else "v", None if i == 0 else d))
        a(nop(7))
        a(valu(f"v_cvt_pk_bf16_f32 v{d}, v{d}, v{d+1}", [f"v{d}", f"v{d+1}"], [f"v{d}"]))
        a(valu(f"v_cvt_pk_bf16_f32 v{d+1}, v{d+2}, v{d+3}", [f"v{d+2}", f"v{d+3}"], [f"v{d+1}"]))
        a(tag(bstore(d, 2, 3, 12, "0", j * 128), "o"))
    resolve_vm(o, []); check(o, "reduce")
    if OPT.stamps and OPT.stamp_fwd >= 0:
        o += [wait_vm(0), salu("s_cmp_lg_u32 s2, 0"), raw("s_cbranch_scc1 R_end", "branch"),
              salu("s_load_dwordx2 s[20:21], s[0:1], 88"), raw("s_waitcnt lgkmcnt(0)", "wait", lgkm=0),
              salu("s_mov_b32 s16, s20"), salu("s_mov_b32 s17, s21"), salu("s_mov_b32 s18, 64"), salu("s_mov_b32 s19, 0x20000"),
              salu(f"s_mov_b32 s10, {16*7*16*16*2048 + 256*64}"), salu(f"s_mov_b32 s46, {16*7*16*16*2048} + 64*{OPT.stamp_fwd}"),
              valu("v_lshlrev_b32 v2, 2, v0", ["v0"], ["v2"]), bload(3, 1, 2, 8, "s46", 0), wait_vm(0), bstore(3, 1, 2, 16, "0", 0)]
    o += [wait_vm(0), label("R_end"), raw("s_endpgm", "branch")]
    return o

KD = """.section .rodata,"a"
.p2align 6
.amdhsa_kernel {name}
  .amdhsa_next_free_vgpr {vgpr}
  .amdhsa_next_free_sgpr 102
  .amdhsa_accum_offset 256
  .amdhsa_group_segment_fixed_size 0
  .amdhsa_kernarg_size 104
  .amdhsa_user_sgpr_count 2
  .amdhsa_user_sgpr_kernarg_segment_ptr 1
  .amdhsa_system_sgpr_workgroup_id_x 1
.end_amdhsa_kernel
"""
def header_comments():
    ref = open("cdna_kernels/" + NAME + ".s.ref").read().splitlines()
    out = []
    for l in ref:
        if l.startswith("; Override launch") or not l.startswith(";"): break
        out.append(l)
    return out

def stream_kernel():
    t = """
  s_cmp_ge_u32 s2, 256
  s_cbranch_scc1 S_end
  s_load_dwordx2 s[4:5], s[0:1], 8
  s_load_dwordx2 s[6:7], s[0:1], 96
  s_load_dwordx2 s[8:9], s[0:1], 48
  v_lshrrev_b32 v2, 6, v0
  s_nop 0
  v_readfirstlane_b32 s24, v2
  v_and_b32 v1, 63, v0
  v_lshlrev_b32 v14, 4, v1
  s_nop 2
  s_lshl_b32 s25, s24, 12
  v_add_u32 v14, s25, v14
  s_waitcnt lgkmcnt(0)
  s_cmp_lt_u32 s2, 128
  s_cselect_b32 s36, s4, s8
  s_cselect_b32 s37, s5, s9
  s_mov_b32 s38, 0x4000000
  s_mov_b32 s39, 0x20000
  s_and_b32 s32, s2, 127
  s_lshl_b32 s32, s32, 19
  s_barrier
  s_memrealtime s[12:13]
  s_mov_b32 s20, 0
S_loop:
  s_mov_b32 m0, s25
  s_nop 0
  buffer_load_dwordx4 v14, s[36:39], s32 offen nt lds
  buffer_load_dwordx4 v14, s[36:39], s32 offen offset:1024 nt lds
  buffer_load_dwordx4 v14, s[36:39], s32 offen offset:2048 nt lds
  buffer_load_dwordx4 v14, s[36:39], s32 offen offset:3072 nt lds
  s_add_u32 s32, s32, 16384
  s_waitcnt vmcnt(8)
  s_barrier
  s_add_u32 s20, s20, 1
  s_cmp_lt_u32 s20, 32
  s_cbranch_scc1 S_loop
  s_waitcnt vmcnt(0)
  s_barrier
  s_memrealtime s[16:17]
  s_waitcnt lgkmcnt(0)
  s_sub_u32 s16, s16, s12
  s_mov_b32 s40, s6
  s_mov_b32 s41, s7
  s_mov_b32 s42, %d
  s_mov_b32 s43, 0x20000
  s_mul_i32 s33, s2, 64
  s_add_u32 s33, s33, %d
  v_mov_b32 v2, s16
  v_mov_b32 v1, 0
  buffer_store_dword v2, v1, s[40:43], s33 offen
  s_waitcnt vmcnt(0)
S_end:
  s_endpgm""" % (16*7*16*16*2048 + 256*64, 16*7*16*16*2048 + 60)
    return t

def assemble_file(debug=None):
    main = build(debug)
    red = reduce_kernel()
    k1 = NAME + "_kernel"; k2 = "reduce_heads_kernel"
    L = header_comments()
    if OPT.stream0: L.append(f"; @launch kernel=stream_test_kernel grid=(256,1,1) block=(256,1,1) lds={LDS_BYTES}")
    if OPT.fused and not OPT.stream0:
        L.append(f"; @launch grid=(256,1,1) block=(256,1,1) lds={LDS_BYTES}")
    else:
        L.append(f"; @launch kernel={k1} grid=(256,1,1) block=(256,1,1) lds={LDS_BYTES}")
        if debug is None and not OPT.fused: L.append(f"; @launch kernel={k2} grid=(256,1,1) block=(256,1,1) lds=0")
    L.append('.amdgcn_target "amdgcn-amd-amdhsa--gfx950"')
    L.append(".text")
    for nm, body in ((k1, main), (k2, red)) if not OPT.fused else ((k1, main),):
        L += [f".globl {nm}", ".p2align 8", f".type {nm},@function", f"{nm}:", text(body)]
    if OPT.stream0: L += [".globl stream_test_kernel", ".p2align 8", ".type stream_test_kernel,@function", "stream_test_kernel:", stream_kernel()]
    L.append(KD.format(name=k1, vgpr=512))
    if not OPT.fused: L.append(KD.format(name=k2, vgpr=256))
    if OPT.stream0: L.append(KD.format(name="stream_test_kernel", vgpr=512))
    return "\n".join(L) + "\n"

if __name__ == "__main__":
    dbg = sys.argv[2] if len(sys.argv) > 2 and sys.argv[2] != "none" else None
    for kv in sys.argv[3:]:
        k, v = kv.split("=")
        setattr(OPT, k, {"True": True, "False": False, "()": ()}.get(v, int(v) if v.lstrip("-").isdigit() else (eval(v) if v.startswith("(") else v)))
    open(sys.argv[1], "w").write(assemble_file(dbg))
    print("stamps:", STAMPS)
```

```python
import math, struct, sys
from core import *

NAME = "concat_heads__mha_block_cached__mha_block_cached__near_ridge"
def f32bits(x): return struct.unpack("<I", struct.pack("<f", x))[0]
CSC = math.log2(math.e) / 16.0

S_X, S_WQ, S_K, S_V, S_WO, S_WS, S_OUT = 4, 8, 12, 16, 20, 24, 28
S_W, S_W1K = 32, 33
S_QB = ["0", "s34", "s35", "s62"]
S_C = 63
S_KOFF, S_VOFF = 64, 65
S_LOOP = 66
S_T0, S_T1, S_T2, S_T3 = 67, 68, 69, 70
S_G, S_H, S_B, S_BR = 71, 72, 73, 74
S_WOFF = 76
S_PART = 77
S_WCUR, S_WSTEP, S_XSTEP = 78, 79, 75
S_FL, S_DBG = 36, 40
S_LOCM = 44
S_RBASE, S_SIG, S_POLL, S_XCC = 46, 47, 48, 49
S_RG = 56
S_SPIN = 62
S_PFO = 53
S_RST, S_RLD, S_FPW, S_FPR, S_FCW, S_FCR = 60, 61, 75, 78, 79, 76
S_STAMP = 80
V_LANE = 0
V_KA = [4, 5]
V_VA = [6, 7, 8, 9]
V_DK, V_DV = 10, 11
V_L = 12
V_MC = 16
V_SP = 20
V_POOL = 32
V_S = 64
V_P = 96
V_Q = 128
V_XA = 20; V_DW = 21; V_WA = [[22, 23], [24, 25], [26, 27]]
V_CT = 28
V_ARR = 24
L_K = 0; L_V = 65536; L_X = 131072
def kslot(t): return L_K + 16384 * (t % 4)
def vslot(t): return L_V + 16384 * (t % 4)
LDS_BYTES = 163840

PART_BYTES = 16 * 7 * 16 * 16 * 2048
FLAG_BYTES = 16 * 7 * 4 * 64
STAMP_OFF = PART_BYTES + 32768
RING_OFF = PART_BYTES + (1 << 20)
RING_BYTES = 32 << 20
CONS_OFF = 16384
SPIN_MAX = 1 << 19
class Opt:
    kv_flags = "nt"
    w_flags = ""
    x_flags = ""
    wo_flags = ""
    st_flags = ""
    stamps = False
    pad_iter = 0
    last_st = ''
    out_flags = ''
    coopw = False
    coopw_init = 2
    pf_flags = ''
    early_wb = 0
    wt_flags = ''
    prod_delay = 0
    ring = 4
    vm_space = 0
    p3_drop = ''
    wo_step = 13
    cons_chk = 22
    wo_touch = (4, 5, 6)
    red_m = 200
    cons_poll = 50
    ld_min = 16
    stamp_skip = 'p1_first_data,pre_iter_end'
    p3detail = -1
    st_lag = 21
    force_fallback = False
    red_at = 60
    sig_lag = 28
    poll_lag = 22
    chk_lag = 22
    fused = True
    stream0 = False
    loop_nods = False
    loop_nomfma = False
    loop_novalu = False
    loop_nodma = False
    loop_dma_every = 1
    bar_stamps = False
    trip_stamps = False
    dma_mode = 'spread'
    dma_gaps = ([5, 21, 37, 53, 69, 85], [101, 117])
    nv_prev = 2
    stamp_fwd = -1
    stamp_dbg = -1
    x_rd_gap0 = 65
    x_rd_gap = 33
    p1_steps = False
    p1_drop = ''
    rev = True
    init_w = 2
    early_step = 2
    x_gap = 60
    p1_nowait = False
    p1_noread = False
    wring = 3
    kvpf = 'early'
    coopx = False
    init_more = 0
OPT = Opt()

def wait_tag(*tags): return I("s_waitcnt vmcnt(?)", "wait", vmtags=list(tags))
def tag(ins, t):
    ins.meta["tag"] = t; return ins
def resolve_vm(stream, queue):
    q = list(queue)
    for ins in stream:
        if ins.kind in ("dma", "vld", "vst"):
            q.append(ins.meta.get("tag", "?"))
        elif ins.kind == "wait":
            if "vmtags" in ins.meta:
                idx = [n for n, t in enumerate(q) if t in ins.meta["vmtags"]]
                n = len(q) - 1 - max(idx) if idx else len(q)
                n = min(n, 63)
                ins.text = f"s_waitcnt vmcnt({n})"; ins.meta["vm"] = n
            if "vm" in ins.meta:
                n = ins.meta["vm"]
                if len(q) > n: q = q[len(q) - n:] if n else []
    return q

_stamp_n = [0]
def stamp(name):
    if not OPT.stamps: return []
    if OPT.stamp_skip and name in OPT.stamp_skip.split(","): return []
    if OPT.p3detail >= 0 and not name.startswith("d_") and name not in ("rt_end",): return []
    if OPT.bar_stamps and name not in ("rt_ls", "rt_le", "loop_start", "loop_end", "rt_end"): return []
    n = _stamp_n[0]; _stamp_n[0] += 1
    STAMPS.append(name)
    op = "s_memrealtime" if name.startswith("rt") else "s_memtime"
    return [raw(f"{op} s[{S_STAMP+2*n}:{S_STAMP+2*n+1}]", "salu")]
STAMPS = []

def m0_set(base): return salu(f"s_add_u32 m0, s{S_W1K}, {base}", [f"s{S_W1K}"], ["m0"])

def dma_tile(kind, slot_base, soff, tg):
    voff, srd, fl = {"K": (V_DK, S_K, OPT.kv_flags), "V": (V_DV, S_V, OPT.kv_flags), "W": (V_DW, S_WQ, OPT.w_flags)}[kind]
    return [(m0_set(slot_base + dc * 3968), tag(dma(voff, srd, soff, dc * 128, fl), tg)) for dc in range(4)]

def setup():
    o = []; a = o.append
    a(salu("s_cmp_ge_u32 s2, 256")); a(raw("s_cbranch_scc1 L_end", "branch"))
    o += stamp("rt_start") + stamp("start")
    a(salu("s_load_dwordx16 s[36:51], s[0:1], 0")); a(salu("s_load_dwordx8 s[52:59], s[0:1], 64"))
    a(salu("s_load_dwordx2 s[60:61], s[0:1], 96"))
    a(valu("v_lshrrev_b32 v1, 6, v0", ["v0"], ["v1"]))
    a(valu(f"v_and_b32 v{V_LANE}, 63, v0", ["v0"], ["v0"]))
    a(valu(f"v_readfirstlane_b32 s{S_W}, v1", ["v1"], [f"s{S_W}"]))
    a(salu(f"s_and_b32 s{S_T0}, s2, 7")); a(salu(f"s_lshr_b32 s{S_T1}, s2, 3"))
    a(salu(f"s_and_b32 s{S_H}, s{S_T1}, 15")); a(salu(f"s_lshr_b32 s{S_T1}, s{S_T1}, 4"))
    a(salu(f"s_lshl_b32 s{S_G}, s{S_T0}, 1")); a(salu(f"s_add_u32 s{S_G}, s{S_G}, s{S_T1}"))
    a(salu(f"s_lshr_b32 s{S_BR}, s{S_G}, 3")); a(salu(f"s_and_b32 s{S_B}, s{S_G}, 7"))
    a(salu(f"s_lshl_b32 s{S_W1K}, s{S_W}, 10"))
    a(salu(f"s_mov_b32 s{S_C}, 0x{f32bits(CSC):08x}"))
    L = f"v{V_LANE}"
    def vv(t, rd, wr): a(valu(t, rd, wr))
    vv(f"v_and_b32 v1, 15, {L}", [L], ["v1"]); vv(f"v_lshrrev_b32 v2, 4, {L}", [L], ["v2"])
    vv("v_lshrrev_b32 v3, 1, v1", ["v1"], ["v3"])
    for sp in range(2):
        r = V_KA[sp]
        vv(f"v_add_u32 v{r}, {4*sp}, v2", ["v2"], [f"v{r}"])
        vv(f"v_xor_b32 v{r}, v{r}, v3", [f"v{r}", "v3"], [f"v{r}"])
        vv(f"v_lshlrev_b32 v{r}, 4, v{r}", [f"v{r}"], [f"v{r}"])
        vv(f"v_lshl_add_u32 v{r}, v1, 7, v{r}", ["v1", f"v{r}"], [f"v{r}"])
    vv(f"v_bfe_u32 v28, {L}, 2, 2", [L], ["v28"]); vv(f"v_and_b32 v29, 3, {L}", [L], ["v29"])
    vv("v_lshl_add_u32 v30, v2, 2, v28", ["v2", "v28"], ["v30"])
    vv("v_bfe_u32 v31, v30, 1, 2", ["v30"], ["v31"])
    for p in range(4):
        r = V_VA[p]
        vv(f"v_xor_b32 v{r}, {p}, v31", ["v31"], [f"v{r}"])
        vv(f"v_lshlrev_b32 v{r}, 5, v{r}", [f"v{r}"], [f"v{r}"])
        vv(f"v_lshl_add_u32 v{r}, v30, 7, v{r}", ["v30", f"v{r}"], [f"v{r}"])
        vv(f"v_lshl_add_u32 v{r}, v29, 3, v{r}", ["v29", f"v{r}"], [f"v{r}"])
        vv(f"v_add_u32 v{r}, {L_V}, v{r}", [f"v{r}"], [f"v{r}"])
    vv("v_lshl_add_u32 v30, v2, 3, v28", ["v2", "v28"], ["v30"])
    vv("v_lshrrev_b32 v31, 1, v28", ["v28"], ["v31"])
    for sp in range(2):
        r = V_WA[0][sp]
        vv(f"v_xor_b32 v{r}, {sp}, v31", ["v31"], [f"v{r}"])
        vv(f"v_lshl_add_u32 v{r}, v{r}, 2, v29", [f"v{r}", "v29"], [f"v{r}"])
        vv(f"v_lshlrev_b32 v{r}, 4, v{r}", [f"v{r}"], [f"v{r}"])
        vv(f"v_lshl_add_u32 v{r}, v30, 7, v{r}", ["v30", f"v{r}"], [f"v{r}"])
        for win in (1, 2):
            vv(f"v_add_u32 v{V_WA[win][sp]}, {65536*win}, v{r}", [f"v{r}"], [f"v{V_WA[win][sp]}"])
    vv(f"v_lshrrev_b32 v1, 3, {L}", [L], ["v1"]); vv(f"v_and_b32 v2, 7, {L}", [L], ["v2"])
    vv(f"v_lshl_add_u32 v3, s{S_W}, 3, v1", ["v1", f"s{S_W}"], ["v3"])
    vv("v_bfe_u32 v28, v3, 1, 3", ["v3"], ["v28"]); vv("v_xor_b32 v28, v28, v2", ["v28", "v2"], ["v28"])
    vv("v_lshlrev_b32 v28, 4, v28", ["v28"], ["v28"]); vv(f"v_lshl_add_u32 v{V_DK}, v3, 9, v28", ["v3", "v28"], [f"v{V_DK}"])
    vv("v_bfe_u32 v28, v3, 1, 2", ["v3"], ["v28"]); vv("v_lshlrev_b32 v28, 1, v28", ["v28"], ["v28"])
    vv("v_xor_b32 v28, v28, v2", ["v28", "v2"], ["v28"]); vv("v_lshlrev_b32 v28, 4, v28", ["v28"], ["v28"])
    vv(f"v_lshl_add_u32 v{V_DV}, v3, 9, v28", ["v3", "v28"], [f"v{V_DV}"])
    vv("v_bfe_u32 v28, v3, 1, 1", ["v3"], ["v28"]); vv("v_lshlrev_b32 v28, 2, v28", ["v28"], ["v28"])
    vv("v_xor_b32 v28, v28, v2", ["v28", "v2"], ["v28"]); vv("v_lshlrev_b32 v28, 4, v28", ["v28"], ["v28"])
    vv(f"v_lshl_add_u32 v{V_DW}, v3, 13, v28", ["v3", "v28"], [f"v{V_DW}"])
    a(raw("s_waitcnt lgkmcnt(0)", "wait", lgkm=0))
    a(salu(f"s_cmp_eq_u32 s{S_BR}, 0"))
    for i in range(10): a(salu(f"s_cselect_b32 s{36+i}, s{36+i}, s{46+i}"))
    def srd(base, lo, hi, offs, size):
        if offs is None:
            a(salu(f"s_mov_b32 s{base}, s{lo}")); a(salu(f"s_mov_b32 s{base+1}, s{hi}"))
        else:
            a(salu(f"s_add_u32 s{base}, s{lo}, {offs}")); a(salu(f"s_addc_u32 s{base+1}, s{hi}, 0"))
        a(salu(f"s_mov_b32 s{base+2}, {size}")); a(salu(f"s_mov_b32 s{base+3}, 0x20000"))
    a(salu(f"s_mul_i32 s{S_T0}, s{S_B}, 229376")); srd(S_X, 36, 37, f"s{S_T0}", 229376)
    a(salu(f"s_lshl_b32 s{S_T0}, s{S_H}, 9")); srd(S_WQ, 42, 43, f"s{S_T0}", 0)
    a(salu(f"s_sub_u32 s{S_WQ+2}, {448*8192}, s{S_T0}"))
    a(salu(f"s_lshl_b32 s{S_T0}, s{S_B}, 4")); a(salu(f"s_add_u32 s{S_T0}, s{S_T0}, s{S_H}"))
    a(salu(f"s_lshl_b32 s{S_T0}, s{S_T0}, 19"))
    srd(S_K, 38, 39, f"s{S_T0}", 524288); srd(S_V, 40, 41, f"s{S_T0}", 524288)
    a(salu(f"s_mul_i32 s{S_T0}, s{S_H}, 229376")); srd(S_WO, 44, 45, f"s{S_T0}", 229376)
    srd(S_WS, 60, 61, None, 16 * 7 * 16 * 16 * 2048)
    srd(S_OUT, 56, 57, None, 8 * 256 * 896 * 2)
    if OPT.fused:
        srd(S_DBG, 58, 59, None, 256)
        a(salu(f"s_mov_b32 s{S_T0}, {PART_BYTES}")); srd(S_FL, 60, 61, f"s{S_T0}", 32768)
        a(salu(f"s_mov_b32 s{S_T0}, {RING_OFF}")); a(salu(f"s_add_u32 s54, s60, s{S_T0}")); a(salu("s_addc_u32 s55, s61, 0"))
        a(salu(f"s_mov_b32 s{S_RG}, s54")); a(salu(f"s_mov_b32 s{S_RG+1}, s55")); a(salu(f"s_mov_b32 s{S_RG+2}, {RING_BYTES}")); a(salu(f"s_mov_b32 s{S_RG+3}, 0x20000"))
        a(salu(f"s_getreg_b32 s{S_XCC}, hwreg(HW_REG_XCC_ID, 0, 3)"))
        a(salu(f"s_lshl_b32 s{S_SIG}, s{S_G}, 4")); a(salu(f"s_add_u32 s{S_SIG}, s{S_SIG}, s{S_H}"))
        a(salu(f"s_mul_i32 s{S_T0}, s{S_G}, {14*64}"))
        a(salu(f"s_lshl_b32 s{S_T1}, s{S_W}, 4")); a(salu(f"s_add_u32 s{S_T1}, s{S_T1}, s{S_H}")); a(salu(f"s_add_u32 s50, s{S_T0}, s{S_T1}"))
        a(salu(f"s_lshl_b32 s{S_T1}, s{S_H}, 2")); a(salu(f"s_add_u32 s{S_T1}, s{S_T1}, s{S_W}")); a(salu(f"s_add_u32 s51, s{S_T0}, s{S_T1}"))
        a(salu(f"s_add_u32 s51, s51, {CONS_OFF}"))
        a(valu(f"v_min_u32 v1, 13, v{V_LANE}", [f"v{V_LANE}"], ["v1"])); a(valu("v_lshlrev_b32 v1, 6, v1", ["v1"], ["v1"]))
        a(valu("v_mov_b32 v2, 0", [], ["v2"]))
        for sr in ("s50", "s51"):
            a(tag(I(f"buffer_store_byte v2, v1, s[{S_FL}:{S_FL+3}], {sr} offen", "vst", ["v1", "v2"], data=["v2"]), "reset"))
    return o

def add_lgkm_waits(g, cons, carried):
    seq = [(-1, regs) for regs in carried]
    for k in range(g.n):
        if g.mem[k] is not None and g.mem[k].kind == "ds": seq.append((k, g.mem[k].wr))
    lead = None
    for k, regs in cons:
        late = [n for n, (gap, w) in enumerate(seq) if gap == k - 1 and gap >= 0 and set(w) & set(regs)]
        assert not late, f"DS for MFMA {k} issued in gap {k-1}"
        idx = [n for n, (gap, w) in enumerate(seq) if gap < max(k - 1, 0) and set(w) & set(regs)]
        if not idx: continue
        last = max(idx)
        after = sum(1 for n, (gap, w) in enumerate(seq) if n > last and gap < max(k - 1, 0))
        assert after <= 15, (k, after)
        if k == 0: lead = wait_lgkm(after)
        else: g.pre[k - 1].insert(0, wait_lgkm(after))
    out = len(carried)
    if lead is not None: out = min(out, lead.meta["lgkm"])
    for k in range(g.n):
        for x in g.pre[k]:
            if "lgkm" in x.meta: out = min(out, x.meta["lgkm"])
        if g.mem[k] is not None and g.mem[k].kind == "ds":
            if out >= 14:
                assert len(g.pre[k]) == 0, k
                g.pre[k].append(wait_lgkm(8)); out = 8
            out += 1
    return lead

def place_vmem(g, gap, scalars, d, hi=None, stack=False, space=False):
    k = max(gap, 1 if stack else len(scalars))
    hi = g.n if hi is None else hi
    isdma = lambda x: x is not None and x.kind == "dma"
    while True:
        assert k < hi, f"no gap for {d.text}"
        near = OPT.vm_space and any(0 <= k + dd < g.n and dd != 0 and g.mem[k + dd] is not None and g.mem[k + dd].kind in ("vst", "vld", "dma")
                                    for dd in range(-OPT.vm_space, OPT.vm_space + 1))
        if g.mem[k] is None and not g.vec[k] and len(g.pre[k]) <= 1 and not (near and space):
            if stack:
                if not isdma(g.mem[k - 1]) and len(g.pre[k - 1]) + len(scalars) <= 3 and not any(x.kind == "barrier" for x in g.pre[k - 1]): break
            elif all(not g.pre[k - 1 - n] and not isdma(g.mem[k - 1 - n]) for n in range(len(scalars))): break
        k += 1
    if stack:
        for sc in scalars: g.put_pre(k - 1, sc)
    else:
        for n, sc in enumerate(scalars): g.put_pre(k - len(scalars) + n, sc)
    g.put_mem(k, d)
    return k

def put_scalar(g, gap, *ins):
    k = gap
    while g.pre[k]: k += 1
    g.pre[k] = list(ins)
    return k

def place_chain(g, ops, lo, hi):
    left = []
    for ins in ops:
        k = g.place_vec(ins, lo, hi) if (not left and lo < hi) else None
        if k is None: left.append(ins)
        else: lo = k + 1 if ins.kind == "trans" else k
    return lo, left

class Op:
    def __init__(self, ins, rel, dl, preds=()):
        self.ins = ins; self.rel = rel; self.dl = dl; self.preds = list(preds); self.gap = None

def list_schedule(g, ops, lo=0, hi=None):
    hi = g.n if hi is None else hi
    todo = list(ops)
    for k in range(lo, hi):
        while True:
            free = g.free_vec(k)
            if free <= 0: break
            ready = [x for x in todo if x.rel <= k and all(p.gap is not None and p.gap + d <= k for p, d in x.preds)]
            tr = [x for x in ready if x.ins.kind == "trans"]
            pl = [x for x in ready if x.ins.kind != "trans"]
            pick = None
            can_tr = free == 2 and g.mem[k] is None and not g.vec[k]
            if can_tr and tr: pick = min(tr, key=lambda x: x.dl)
            if pl:
                best = min(pl, key=lambda x: x.dl)
                if pick is None or (best.dl + 6 < pick.dl): pick = best
            if pick is None: break
            g.vec[k].append(pick.ins); pick.gap = k; todo.remove(pick)
    late = [x for x in ops if x.gap is not None and x.gap > x.dl]
    assert not late, [(x.ins.text, x.gap, x.dl) for x in late]
    return todo

def sm_ops(tile, kb, qb, rel, dl):
    i = sm_group(tile, kb, qb)
    f = [Op(i[0], rel, dl - 6), Op(i[1], rel, dl - 6), Op(i[4], rel, dl - 5), Op(i[5], rel, dl - 5)]
    x = [Op(i[2], rel, dl - 4, [(f[0], 1)]), Op(i[3], rel, dl - 4, [(f[1], 1)]), Op(i[6], rel, dl - 3, [(f[2], 1)]), Op(i[7], rel, dl - 3, [(f[3], 1)])]
    ad = [Op(i[8], rel, dl, [(x[0], 1)]), Op(i[9], rel, dl, [(x[1], 1)]), Op(i[11], rel, dl, [(x[2], 1)]), Op(i[12], rel, dl, [(x[3], 1)])]
    cv = [Op(i[10], rel, dl, [(x[0], 1), (x[1], 1)]), Op(i[13], rel, dl, [(x[2], 1), (x[3], 1)])]
    return f + x + ad + cv

def exposed(ops):
    o = []
    for n, ins in enumerate(ops):
        o.append(ins)
        if ins.kind == "trans" and n + 1 < len(ops) and ops[n + 1].kind != "trans": o.append(nop(0))
    return o

def conv_ops(acc, d, t):
    return [valu(f"v_accvgpr_read_b32 v{d}, a{acc}", [f"a{acc}"], [f"v{d}"]),
            valu(f"v_accvgpr_read_b32 v{t}, a{acc+1}", [f"a{acc+1}"], [f"v{t}"]),
            valu(f"v_accvgpr_read_b32 v{d+1}, a{acc+2}", [f"a{acc+2}"], [f"v{d+1}"]),
            valu(f"v_accvgpr_read_b32 v{t+1}, a{acc+3}", [f"a{acc+3}"], [f"v{t+1}"]),
            valu(f"v_cvt_pk_bf16_f32 v{d}, v{d}, v{t}", [f"v{d}", f"v{t}"], [f"v{d}"]),
            valu(f"v_cvt_pk_bf16_f32 v{d+1}, v{d+1}, v{t+1}", [f"v{d+1}", f"v{t+1}"], [f"v{d+1}"])]

def xlane_reduce(regs, op, tmp):
    o = []
    for swap in ("v_permlane32_swap_b32", "v_permlane16_swap_b32"):
        for n, r in enumerate(regs): o.append(valu(f"v_mov_b32 v{tmp+n}, v{r}", [f"v{r}"], [f"v{tmp+n}"]))
        o.append(nop(1))
        for n, r in enumerate(regs):
            o.append(valu(f"{swap} v{r}, v{tmp+n}", [f"v{r}", f"v{tmp+n}"], [f"v{r}", f"v{tmp+n}"]))
        o.append(nop(1))
        for n, r in enumerate(regs):
            o.append(valu(f"{op} v{r}, v{r}, v{tmp+n}", [f"v{r}", f"v{tmp+n}"], [f"v{r}"]))
    return o

def wpairs(): return [(L_X, L_X + 16384), (vslot(1), kslot(3)), (vslot(2), vslot(3))]
def wslot(tile):
    p = wpairs(); return p[(tile // 2) % len(p)][tile % 2]
XBUF = [V_S, V_P]
def xfrag(qb, cs): return XBUF[(cs // 2) & 1] + ((cs % 2) * 4 + qb) * 4
V_XD = [128, 129]
V_XR = [130, 131]
S_XB = 34
S_XCUR = 35
def x_setup():
    o = []; a = o.append
    L = f"v{V_LANE}"
    a(salu(f"s_and_b32 s{S_T1}, s{S_W}, 1")); a(salu(f"s_lshl_b32 s{S_T1}, s{S_T1}, 13"))
    a(salu(f"s_cmp_lt_u32 s{S_W}, 2")); a(salu(f"s_cselect_b32 s{S_XB}, 2, 4")); a(salu(f"s_lshl_b32 s{S_XB}, s{S_XB}, 14"))
    a(salu(f"s_add_u32 s{S_XB}, s{S_XB}, s{S_T1}"))
    assert kslot(2) == 2 << 14 and vslot(0) == 4 << 14
    a(valu(f"v_lshrrev_b32 v1, 3, {L}", [L], ["v1"])); a(valu(f"v_and_b32 v2, 7, {L}", [L], ["v2"]))
    a(valu(f"v_lshl_add_u32 v3, s{S_W}, 6, v1", ["v1", f"s{S_W}"], ["v3"]))
    a(valu("v_mul_u32_u24 v3, 896, v3", ["v3"], ["v3"]))
    a(valu("v_lshrrev_b32 v1, 1, v1", ["v1"], ["v1"]))
    for par in range(2):
        r = V_XD[par]
        a(valu(f"v_or_b32 v{r}, {4*par}, v1", ["v1"], [f"v{r}"]))
        a(valu(f"v_xor_b32 v{r}, v{r}, v2", [f"v{r}", "v2"], [f"v{r}"]))
        a(valu(f"v_lshl_add_u32 v{r}, v{r}, 4, v3", [f"v{r}", "v3"], [f"v{r}"]))
        a(valu(f"v_add_u32 v{V_XR[par]}, s{S_XB}, v{V_KA[par]}", [f"v{V_KA[par]}"], [f"v{V_XR[par]}"]))
    return o
def x_items(j):
    out = []
    for i in range(8):
        sreg = S_T2 + (i & 1)
        sc = []
        if i == 0 and j > 0: sc.append(salu(f"s_add_u32 s{S_XCUR}, s{S_XCUR}, s{S_XSTEP}", [f"s{S_XCUR}"], [f"s{S_XCUR}"]))
        sc.append(salu(f"s_add_u32 s{sreg}, s{S_XCUR}, {i*7168}", [f"s{S_XCUR}"], [f"s{sreg}"]))
        sc.append(salu(f"s_add_u32 m0, s{S_XB}, {i*1024}", [f"s{S_XB}"], ["m0"]))
        out.append((sc, tag(dma(V_XD[i & 1], S_X, f"s{sreg}", 0, OPT.x_flags), f"x{j}")))
    return out
def x_read(qb, cs): return ds_read128("v", xfrag(qb, cs), V_XR[cs & 1], qb * 2048)
def w_read(dbp, cs, jj):
    s, e = dbp >> 1, dbp & 1
    base = wslot(cs); win = base // 65536
    off = base - win * 65536 + (s >> 1) * 4096 + jj * 512 + e * 8
    return ds_read_tr("v", V_POOL + 4 * ((2 * dbp + (cs & 1)) % 8) + 2 * jj, V_WA[win][s & 1], off)

V_PF = 28
def coop_setup():
    o = []; a = o.append
    a(salu(f"s_mul_i32 s{S_T1}, s{S_H}, {112*128}"))
    a(salu(f"s_lshl_b32 s{S_T2}, s{S_W}, 12")); a(salu(f"s_add_u32 s{S_T1}, s{S_T1}, s{S_T2}"))
    a(valu(f"v_and_b32 v{V_PF}, 31, v{V_LANE}", [f"v{V_LANE}"], [f"v{V_PF}"]))
    a(valu(f"v_lshlrev_b32 v{V_PF}, 7, v{V_PF}", [f"v{V_PF}"], [f"v{V_PF}"]))
    a(valu(f"v_add_u32 v{V_PF}, s{S_T1}, v{V_PF}", [f"v{V_PF}"], [f"v{V_PF}"]))
    return o
def coop_x():
    return [tag(bload(V_PF + 1, 1, V_PF, S_X, "0", 0, OPT.pf_flags), "pf")]

V_PFW = 132
def coop_w_setup():
    o = []; a = o.append
    L = f"v{V_LANE}"
    a(salu(f"s_lshr_b32 s{S_T1}, s2, 7")); a(salu(f"s_and_b32 s{S_T1}, s{S_T1}, 1")); a(salu(f"s_lshl_b32 s{S_T1}, s{S_T1}, 5"))
    a(salu(f"s_lshl_b32 s{S_T2}, s{S_W}, 3")); a(salu(f"s_add_u32 s{S_T1}, s{S_T1}, s{S_T2}"))
    a(valu(f"v_bfe_u32 v{V_PFW}, {L}, 2, 3", [L], [f"v{V_PFW}"])); a(valu(f"v_add_u32 v{V_PFW}, s{S_T1}, v{V_PFW}", [f"v{V_PFW}"], [f"v{V_PFW}"]))
    a(valu(f"v_lshlrev_b32 v{V_PFW}, 13, v{V_PFW}", [f"v{V_PFW}"], [f"v{V_PFW}"]))
    a(valu(f"v_and_b32 v{V_PFW+1}, 3, {L}", [L], [f"v{V_PFW+1}"]))
    a(valu(f"v_lshl_add_u32 v{V_PFW}, v{V_PFW+1}, 7, v{V_PFW}", [f"v{V_PFW}", f"v{V_PFW+1}"], [f"v{V_PFW}"]))
    return o
def coop_w(j):
    return [salu(f"s_mov_b32 s{S_PFO}, {j*524288}", [], [f"s{S_PFO}"])], tag(bload(V_PFW + 1, 1, V_PFW, S_WQ, f"s{S_PFO}", 0, OPT.pf_flags), "pf")
OOL = []
def phase1():
    o = []; a = o.append
    NP = 3
    a(salu(f"s_lshr_b32 s{S_T1}, s2, 7")); a(salu(f"s_and_b32 s{S_T1}, s{S_T1}, {1 if OPT.rev else 0}"))
    a(salu(f"s_cmp_eq_u32 s{S_T1}, 0"))
    a(salu(f"s_cselect_b32 s{S_WCUR}, 0, {6*524288}")); a(salu(f"s_cselect_b32 s{S_T2}, 1, -1"))
    a(salu(f"s_cselect_b32 s{S_XCUR}, 0, 768"))
    a(salu(f"s_mul_i32 s{S_WSTEP}, s{S_T2}, 524288")); a(salu(f"s_mul_i32 s{S_XSTEP}, s{S_T2}, 128"))
    o += x_setup()
    if OPT.coopx: o += coop_setup() + coop_x()
    if OPT.coopw:
        o += coop_w_setup()
        for j in range(OPT.coopw_init):
            sc, d = coop_w(j); o += sc + [d]
    def w_items(j):
        out = []
        for par in range(2):
            sreg = S_WCUR if par == 0 else S_WOFF
            for m, (m0, d) in enumerate(dma_tile("W", wslot(2 * j + par), f"s{sreg}", f"W{j}")):
                sc = [m0]
                if m == 0 and par == 0 and j > 0: sc = [salu(f"s_add_u32 s{S_WCUR}, s{S_WCUR}, s{S_WSTEP}", [f"s{S_WCUR}"], [f"s{S_WCUR}"]), m0]
                if m == 0 and par == 1: sc = [salu(f"s_add_u32 s{S_WOFF}, s{S_WCUR}, 262144", [f"s{S_WCUR}"], [f"s{S_WOFF}"]), m0]
                out.append((sc, d))
        return out
    def kv_items(kind, t):
        out = []
        for m, (m0, d) in enumerate(dma_tile(kind, kslot(t) if kind == "K" else vslot(t), f"s{S_T0}", f"{kind}{t}")):
            out.append(([salu(f"s_mov_b32 s{S_T0}, {t*16384}", [], [f"s{S_T0}"]), m0] if m == 0 else [m0], d))
        return out
    def now(items):
        for sc, d in items:
            o.extend(sc); a(nop(0)); a(d)
    w0 = w_items(0)
    for sc, d in w0[4:]: d.meta["tag"] = "W0b"
    now(x_items(0)); now(w0[:4]); now(w0[4:])
    if OPT.coopw:
        for j in range(OPT.coopw_init, 3):
            sc, d = coop_w(j); o += sc + [d]
    a(wait_tag("x0"))
    xr = [x_read(qb, cs) for cs in (0, 1) for qb in range(4)]
    o += xr
    a(wait_tag("W0")); a(barrier())
    if OPT.fused:
        a(salu(f"s_or_b32 s{S_T0}, s{S_XCC}, 0x80")); a(valu(f"v_mov_b32 v1, s{S_T0}", [], ["v1"])); a(valu("v_mov_b32 v2, 0", [], ["v2"]))
        a(tag(I(f"buffer_store_byte v1, v2, s[{S_DBG}:{S_DBG+3}], s{S_SIG} offen", "vst", ["v1", "v2"], data=["v1"]), "arr"))
    o += stamp("p1_first_data")
    def quad0(n): return V_POOL + 4 * (n % 8)
    def w_read0(n, jj):
        dbp, cs = n % 16, n // 16
        r = w_read(dbp, cs, jj)
        return ds_read_tr("v", quad0(n) + 2 * jj, int(r.rd[0][1:]), int(r.text.split("offset:")[1]))
    carried = [x.wr for x in xr]
    for n in range(3):
        for jj in range(2):
            r = w_read0(n, jj); a(r); carried.append(r.wr)
    early = {j: [] for j in range(7)}; after = {j: [] for j in range(7)}
    early[0] += w_items(1); early[1] += w_items(2)
    for j in range(NP, 7): after[j - NP + 1] += w_items(j)
    K = lambda t: kv_items("K", t)
    V = lambda t: kv_items("V", t)
    kv = {"early": {1: K(0), 2: K(1)}, "mid": {2: K(0), 3: K(1)}, "late": {3: K(0), 4: K(1)}}[OPT.kvpf]
    for j, l in kv.items(): early[j] += l
    after[5] += V(0)
    early[6] += K(2) + V(1) + K(3)
    after[6] += V(2)
    for j in range(7):
        ms = []
        if j == 0:
            for n in range(32):
                for qb in range(4):
                    acc = ((n % 16) * 4 + qb) * 4
                    first = n < 16
                    ms.append(mfma("a", acc, "v", quad0(n), "v", xfrag(qb, n // 16), None if first else "a", None if first else acc))
        else:
            for dbp in range(16):
                for qb in range(4):
                    for e2 in range(2):
                        acc = (dbp * 4 + qb) * 4
                        ms.append(mfma("a", acc, "v", V_POOL + 4 * ((2 * dbp + e2) % 8), "v", xfrag(qb, 2 * j + e2), "a", acc))
        g = Gaps(ms)
        if j == 0:
            for n in range(3, 32):
                for jj in range(2): g.put_mem(4 * n - 12 + 2 * jj, w_read0(n, jj))
        else:
            for dbp in range(3, 16):
                for n, (cs, jj) in enumerate([(2*j, 0), (2*j, 1), (2*j+1, 0), (2*j+1, 1)]):
                    g.put_mem(8 * dbp - 24 + 2 * n, w_read(dbp, cs, jj))
        nxt = []
        if j < 6:
            for dbp in range(3):
                for n, (cs, jj) in enumerate([(2*j+2, 0), (2*j+2, 1), (2*j+3, 0), (2*j+3, 1)]):
                    r = w_read(dbp, cs, jj); g.put_mem(104 + (1 if j == 0 else 0) + 8 * dbp + 2 * n, r); nxt.append(r.wr)
        XG = OPT.x_rd_gap if j > 0 else OPT.x_rd_gap0
        xreads = []
        if j < 6:
            for n, (cs, qb) in enumerate([(cs, qb) for cs in (2*j+2, 2*j+3) for qb in range(4)]):
                r = x_read(qb, cs); g.put_mem(XG + 2 * n, r); xreads.append(r)
        if j == 0:
            cons = [(4 * n, R("v", quad0(n), 4) + (R("v", V_S, 32) if n == 0 else [])) for n in range(32)]
        else:
            cons = [(8 * dbp, R("v", V_POOL + 4 * ((2 * dbp) % 8), 8)) for dbp in range(16)]
        if j < 6: cons.append((XG + 24, [w for r in xreads for w in r.wr]))
        cons.sort()
        lead = add_lgkm_waits(g, cons, carried)
        if j < 6:
            k = XG - 2
            while g.pre[k]: k -= 1
            g.pre[k] = [wait_tag(f"x{j+1}")]
        tags = [f"W{j+1}"] if j < 6 else ["K0"]
        k = 100
        while g.pre[k]: k -= 1
        g.pre[k] = [wait_tag(*tags), barrier()] if not OPT.p1_nowait else [barrier()]
        kb = k
        gp = 1
        if OPT.coopw and j + 3 <= 6:
            sc, d = coop_w(j + 3); gp = place_vmem(g, 2, sc, d, kb) + 1
        if j == 0:
            for sc, d in x_items(1): gp = place_vmem(g, gp, sc, d, XG - 3, stack=True) + 2
            k = 48
            while g.pre[k]: k -= 1
            g.pre[k] = [wait_tag("W0b"), barrier()]
            assert k < 52
        for sc, d in early[j]: gp = place_vmem(g, gp + len(sc) - 1, sc, d, kb) + (OPT.early_step if j != 6 else 7)
        if j < 5:
            gx = max(XG + 25, gp)
            for sc, d in x_items(j + 2): gx = place_vmem(g, gx, sc, d, stack=True) + 2
            gpa = max(kb + 2, gx)
        else: gpa = kb + 2
        for sc, d in after[j]: gpa = place_vmem(g, gpa, sc, d, stack=True) + 1
        left = []
        if j == 6:
            for dbp in range(16):
                for qb in range(4):
                    ops = conv_ops((dbp * 4 + qb) * 4, V_Q + (qb * 8 + (dbp >> 1)) * 4 + 2 * (dbp & 1), V_CT + 2 * (qb & 1))
                    if left: left += ops
                    else:
                        _, l2 = place_chain(g, ops, 8 * dbp + 2 * qb + 1 + 5, 128); left += l2
        if lead is not None: a(lead)
        em = g.emit()
        if OPT.p1_drop:
            def keep(x):
                if x.kind in ("dma", "vld"):
                    t = x.meta.get("tag", "")
                    for c in OPT.p1_drop:
                        if t.startswith(c): return False
                return True
            em = [x for x in em if keep(x)]
        if OPT.p1_noread: em = [x for x in em if x.kind != "ds" and not (x.kind == "wait" and "lgkm" in x.meta)]
        o += em
        carried = nxt
        if OPT.p1_steps: o += stamp(f"step{j}")
        if left: a(nop(7)); o += left
    if not OPT.p1_steps: o += stamp("p1_end")
    return o

def k_read(t, kb, s):
    return ds_read128("v", V_POOL + 4 * s, V_KA[s & 1], (kslot(t) - L_K) + (s >> 1) * 4096 + kb * 2048)
def v_read(t, db, jj):
    return ds_read_tr("v", V_POOL + 4 * (db % 8) + 2 * jj, V_VA[db & 3], (vslot(t) - L_V) + (db >> 2) * 4096 + jj * 2048)
def Sreg(kb, qb): return V_S + (kb * 4 + qb) * 4
def Preg(buf, qb): return V_P + buf * 16 + qb * 4
def qk_mfmas():
    ms = []
    for i in range(64):
        kb, sp, qb, e = i >> 5, (i >> 3) & 3, (i >> 1) & 3, i & 1
        s = 2 * sp + e; d = Sreg(kb, qb)
        ms.append(mfma("v", d, "v", V_POOL + 4 * s, "v", V_Q + (qb * 8 + s) * 4, None if s == 0 else "v", None if s == 0 else d))
    return ms
def pv_mfmas(t, first):
    ms = []
    for i in range(64):
        db, qb = i >> 2, i & 3
        acc = (db * 4 + qb) * 4
        ms.append(mfma("a", acc, "v", V_POOL + 4 * (db % 8), "v", Preg(t & 1, qb), None if first else "a", None if first else acc))
    return ms
def sm_group(tile, kb, qb):
    s = Sreg(kb, qb); p = Preg(tile & 1, qb) + 2 * kb; mc = V_MC + qb; l = V_L + qb
    f = lambda r: valu(f"v_fma_f32 v{s+r}, v{s+r}, s{S_C}, v{mc}", [f"v{s+r}", f"v{mc}", f"s{S_C}"], [f"v{s+r}"])
    x = lambda r: trans(f"v_exp_f32 v{s+r}, v{s+r}", [f"v{s+r}"], [f"v{s+r}"])
    ad = lambda r: valu(f"v_add_f32 v{l}, v{l}, v{s+r}", [f"v{l}", f"v{s+r}"], [f"v{l}"])
    cv = lambda r: valu(f"v_cvt_pk_bf16_f32 v{p+r//2}, v{s+r}, v{s+r+1}", [f"v{s+r}", f"v{s+r+1}"], [f"v{p+r//2}"])
    return [f(0), f(1), x(0), x(1), f(2), f(3), x(2), x(3), ad(0), ad(1), cv(0), ad(2), ad(3), cv(2)]

def pre_iter():
    o = []; a = o.append
    carried = []
    for s in range(8):
        r = k_read(0, 0, s); a(r); carried.append(r.wr)
    g = Gaps(qk_mfmas())
    for s in range(8): g.put_mem(8 * (s >> 1) + 10 + 4 * (s & 1), k_read(0, 1, s))
    cons = [(8 * p, R("v", V_POOL + 8 * (p % 4), 8)) for p in range(8)]
    a(add_lgkm_waits(g, cons, carried)); o += g.emit()
    a(wait_tag("K1", "V0")); a(barrier())
    a(salu(f"s_mov_b32 s{S_KOFF}, {4*16384}"))
    for m0, d in dma_tile("K", kslot(4), f"s{S_KOFF}", "K4"): a(m0); a(nop(0)); a(d)
    a(salu(f"s_mov_b32 s{S_KOFF}, {5*16384}")); a(salu(f"s_mov_b32 s{S_VOFF}, {3*16384}"))
    carried = []
    for s in range(8):
        r = k_read(1, 0, s); a(r); carried.append(r.wr)
    for qb in range(4):
        m = V_MC + qb; s0 = Sreg(0, qb); s1 = Sreg(1, qb)
        a(valu(f"v_max3_f32 v{m}, v{s0}, v{s0+1}, v{s0+2}", R("v", s0, 3), [f"v{m}"]))
        a(valu(f"v_max3_f32 v{m}, v{m}, v{s0+3}, v{s1}", [f"v{m}", f"v{s0+3}", f"v{s1}"], [f"v{m}"]))
        a(valu(f"v_max3_f32 v{m}, v{m}, v{s1+1}, v{s1+2}", [f"v{m}", f"v{s1+1}", f"v{s1+2}"], [f"v{m}"]))
        a(valu(f"v_max_f32 v{m}, v{m}, v{s1+3}", [f"v{m}", f"v{s1+3}"], [f"v{m}"]))
    o += xlane_reduce([V_MC + q for q in range(4)], "v_max_f32", V_SP)
    for qb in range(4):
        m = V_MC + qb
        a(valu(f"v_mul_f32 v{m}, s{S_C}, v{m}", [f"v{m}", f"s{S_C}"], [f"v{m}"]))
        a(valu(f"v_sub_f32 v{m}, 0, v{m}", [f"v{m}"], [f"v{m}"]))
        a(valu(f"v_mov_b32 v{V_L+qb}, 0", [], [f"v{V_L+qb}"]))
    for kb, qb in [(0, 0), (0, 1), (0, 2), (0, 3), (1, 0), (1, 1)]: o += exposed(sm_group(0, kb, qb))
    o += stamp("pre_iter_end")
    return o, carried

def attn_iter(t, carried, vmw, prev, cur, first=False, adv=True, loopctl=False, extra=None, loop_body=False):
    g = Gaps(qk_mfmas() + pv_mfmas(t, first))
    for s in range(8): g.put_mem(8 * (s >> 1) + 10 + 4 * (s & 1), k_read(t + 1, 1, s))
    for db in range(16):
        for jj in range(2): g.put_mem(44 + 4 * db + 2 * jj, v_read(t, db, jj))
    nxt = []
    if t + 2 <= 31:
        for s, gap in zip(range(8), [108, 110, 112, 114, 116, 120, 124, 127]):
            r = k_read(t + 2, 0, s); g.put_mem(gap, r); nxt.append(r.wr)
    else:
        for db in range(5):
            for jj in range(2):
                r = v_read(t + 1, db, jj); g.put_mem(108 + 4 * db + 2 * jj, r); nxt.append(r.wr)
    cons = [(8 * p, R("v", V_POOL + 8 * (p % 4), 8)) for p in range(8)]
    cons += [(64 + 4 * db, R("v", V_POOL + 4 * (db % 8), 4)) for db in range(16)]
    lead = add_lgkm_waits(g, cons, carried)
    kb = 98
    while g.pre[kb]: kb -= 1
    g.pre[kb] = [vmw, barrier()]
    if OPT.bar_stamps and loop_body:
        g.pre[kb] = [raw("s_memtime s[94:95]", "salu"), vmw, raw("s_memtime s[96:97]", "salu"), barrier(), raw("s_memtime s[98:99]", "salu"),
                     raw("s_waitcnt lgkmcnt(0)", "wait", lgkm=0),
                     salu("s_sub_u32 s96, s96, s94"), salu("s_add_u32 s92, s92, s96"),
                     salu("s_sub_u32 s98, s98, s94"), salu("s_add_u32 s93, s93, s98")]
    gp_prev, gp_cur = OPT.dma_gaps
    placed = [place_vmem(g, gap, [m0], d, kb) for gap, (m0, d) in zip(gp_prev, prev)]
    for gap, (m0, d) in zip(gp_cur, cur): place_vmem(g, gap, [m0], d)
    if adv:
        for reg, srd, at in ((S_VOFF, S_V, (placed[OPT.nv_prev - 1] if OPT.nv_prev else 1) + 1), (S_KOFF, S_K, placed[-1] + 1)):
            k = put_scalar(g, at, salu(f"s_add_u32 s{reg}, s{reg}, 16384", [f"s{reg}"], [f"s{reg}"]))
            k = put_scalar(g, k + 1, salu(f"s_cmp_lt_u32 s{reg}, 524288", [f"s{reg}"], ["scc"]),
                           salu(f"s_cselect_b32 s{srd+2}, 524288, 0", ["scc"], [f"s{srd+2}"]))
            assert k < 100
    if loopctl:
        k = put_scalar(g, 119, salu(f"s_sub_u32 s{S_LOOP}, s{S_LOOP}, 1", [f"s{S_LOOP}"], [f"s{S_LOOP}"]))
        k = put_scalar(g, k + 1, salu(f"s_cmp_lg_u32 s{S_LOOP}, 0", [f"s{S_LOOP}"], ["scc"]))
        assert k <= 127
        for kk in range(k + 1, 128):
            assert all(x.kind == "wait" for x in g.pre[kk]), "SCC clobbered before the loop branch"
    if extra: extra(g, kb)
    ops = []
    for qb in (2, 3): ops += sm_ops(t, 1, qb, 0, 31 + 2 * qb)
    for qb in range(4): ops += sm_ops(t + 1, 0, qb, 25 + 2 * qb + 6, 100 + 6 * qb)
    for qb in (0, 1): ops += sm_ops(t + 1, 1, qb, 57 + 2 * qb + 6, 124 + 3 * qb)
    left = list_schedule(g, ops)
    if OPT.pad_iter:
        for n in range(OPT.pad_iter): g.post[(n * 128) // OPT.pad_iter + 3].append(nop(3))
    assert not left, f"softmax groups do not fit: {len(left)} left"
    return [lead] + g.emit(), nxt

def last_iter(carried):
    o = []; a = o.append
    for qb in (2, 3): o += exposed(sm_group(31, 1, qb))
    o += xlane_reduce([V_L + q for q in range(4)], "v_add_f32", V_SP)
    for qb in range(4): a(trans(f"v_rcp_f32 v{V_L+qb}, v{V_L+qb}", [f"v{V_L+qb}"], [f"v{V_L+qb}"]))
    a(nop(0))
    g = Gaps(pv_mfmas(31, False))
    for db in range(5, 8):
        for jj in range(2): g.put_mem(4 * (db - 5) + 2 * jj, v_read(31, db, jj))
    for db in range(8, 16):
        for jj in range(2): g.put_mem(12 + 4 * (db - 8) + 2 * jj, v_read(31, db, jj))
    cons = [(4 * db, R("v", V_POOL + 4 * (db % 8), 4)) for db in range(16)]
    lead = add_lgkm_waits(g, cons, carried)
    gp = put_wo(g, 2, 2, step=0)
    put_wo(g, 3, gp, step=0)
    left = []
    for db in range(16):
        for qb in range(4):
            ops = conv_ops((db * 4 + qb) * 4, V_Q + (qb * 8 + (db >> 1)) * 4 + 2 * (db & 1), V_SP + 8 + 2 * (qb & 1))
            if left: left += ops
            else:
                _, l2 = place_chain(g, ops, 4 * db + qb + 5, 64); left += l2
    a(lead); o += g.emit()
    a(nop(7)); o += left
    return o

WOBUF = [L_X, L_K, L_K + 32768, L_V, L_V + 32768, L_X, L_K]
V_DWO = 3; V_STO = V_DV
V_FR3 = 32; V_ACC3 = V_P; V_STG = 16
def wo_dma(j):
    out = []
    for i in range(8):
        sreg = S_T0 + (i & 1)
        out.append(([salu(f"s_mov_b32 s{sreg}, {j*128 + i*32*896}", [], [f"s{sreg}"]),
                     salu(f"s_add_u32 m0, s{S_W1K}, {WOBUF[j] + i*4096}", [f"s{S_W1K}"], ["m0"])],
                    tag(dma(V_DWO, S_WO, f"s{sreg}", 0, OPT.wo_flags), f"wo{j}")))
    return out
def wo_setup():
    o = []; a = o.append
    L = f"v{V_LANE}"
    a(valu(f"v_lshrrev_b32 v1, 3, {L}", [L], ["v1"])); a(valu(f"v_and_b32 v2, 7, {L}", [L], ["v2"]))
    a(valu(f"v_lshl_add_u32 v3, s{S_W}, 3, v1", ["v1", f"s{S_W}"], ["v3"]))
    a(valu("v_bfe_u32 v1, v1, 1, 2", ["v1"], ["v1"])); a(valu("v_lshlrev_b32 v1, 1, v1", ["v1"], ["v1"]))
    a(valu("v_xor_b32 v1, v1, v2", ["v1", "v2"], ["v1"])); a(valu("v_lshlrev_b32 v1, 4, v1", ["v1"], ["v1"]))
    a(valu("v_mul_u32_u24 v3, 896, v3", ["v3"], ["v3"]))
    a(valu(f"v_add_u32 v{V_DWO}, v3, v1", ["v3", "v1"], [f"v{V_DWO}"]))
    return o
V_WOT = 2
def wo_touch_setup():
    return [valu(f"v_lshl_add_u32 v{V_WOT}, s{S_W}, 6, v{V_LANE}", [f"v{V_LANE}"], [f"v{V_WOT}"]),
            valu(f"v_mul_u32_u24 v{V_WOT}, 896, v{V_WOT}", [f"v{V_WOT}"], [f"v{V_WOT}"])]
def wo_touch(j): return tag(bload(1, 1, V_WOT, S_WO, "0", j * 128, OPT.wt_flags), "wt")
def put_wo(g, j, start, hi=None, step=3):
    gp = start
    for sc, d in wo_dma(j): gp = place_vmem(g, gp, sc, d, hi) + step
    return gp
def va_shift(delta):
    t = (lambda r: f"v_add_u32 v{r}, {delta}, v{r}") if delta >= 0 else (lambda r: f"v_subrev_u32 v{r}, {-delta}, v{r}")
    return [valu(t(r), [f"v{r}"], [f"v{r}"]) for r in V_VA]

def part_ops(nb, qb):
    acc = V_ACC3 + 4 * ((nb * 4 + qb) % 8)
    st = V_STG + 4 * qb + 2 * (nb & 1)
    li = V_L + qb
    ops = [valu(f"v_mul_f32 v{acc+r}, v{acc+r}, v{li}", [f"v{acc+r}", f"v{li}"], [f"v{acc+r}"]) for r in range(4)]
    ops += [valu(f"v_cvt_pk_bf16_f32 v{st}, v{acc}, v{acc+1}", [f"v{acc}", f"v{acc+1}"], [f"v{st}"]),
            valu(f"v_cvt_pk_bf16_f32 v{st+1}, v{acc+2}, v{acc+3}", [f"v{acc+2}", f"v{acc+3}"], [f"v{st+1}"])]
    return ops

A_FR3 = 0; A_SEL = 224
V_POLLA, V_POLL, V_ONE, V_ZERO, V_RLD, V_OUT = 32, 33, 34, 35, 36, 37
V_RD = 40
V_GRP = V_ARR + 3
def wo_read(nb, s_, jj):
    return ds_read_tr("a", A_FR3 + 4 * (8 * (nb & 1) + s_) + 2 * jj, V_VA[nb], s_ * 4096 + jj * 2048)

V_GA = V_ARR + 2
def grp_setup():
    return [salu(f"s_lshl_b32 s{S_T0}, s{S_G}, 4"), valu(f"v_and_b32 v{V_GA}, 3, v{V_LANE}", [f"v{V_LANE}"], [f"v{V_GA}"]),
            valu(f"v_lshlrev_b32 v{V_GA}, 2, v{V_GA}", [f"v{V_GA}"], [f"v{V_GA}"]), valu(f"v_add_u32 v{V_GA}, s{S_T0}, v{V_GA}", [f"v{V_GA}"], [f"v{V_GA}"])]
V_GA3 = 38
def grp_load(dst, tg, ga=V_GA): return tag(bload(dst, 1, ga, S_DBG, "0", 0, "sc1"), tg)
def splat(x): return x * 0x01010101
def mode_load(): return grp_load(V_ARR, "grp")
def mode_check():
    o = []; a = o.append
    a(salu(f"s_or_b32 s{S_T0}, s{S_XCC}, 0x80")); a(salu(f"s_mul_i32 s50, s{S_T0}, 0x01010101"))
    a(wait_tag("grp"))
    a(valu(f"v_and_b32 v{V_ARR}, 0x87878787, v{V_ARR}", [f"v{V_ARR}"], [f"v{V_ARR}"]))
    a(valu(f"v_cmp_eq_u32 vcc, s50, v{V_ARR}", [f"v{V_ARR}"], ["vcc"])); a(nop(0))
    a(salu("s_cmp_eq_u64 vcc, -1"))
    a(salu(f"s_cselect_b64 s[{S_LOCM}:{S_LOCM+1}], -1, 0"))
    if OPT.force_fallback: a(salu("s_cmp_eq_u32 s50, 0"))
    a(raw("s_cbranch_scc0 L_grp_far", "branch")); a(label("L_grp_ok"))
    f = [label("L_grp_far"), salu(f"s_or_b32 s{S_T0}, s{S_XCC}, 0x80"), valu(f"v_mov_b32 v{V_ARR+1}, s{S_T0}", [], []),
         valu(f"v_mov_b32 v{V_ARR+3}, 0", [], []),
         raw(f"buffer_store_byte v{V_ARR+1}, v{V_ARR+3}, s[{S_DBG}:{S_DBG+3}], s{S_SIG} offen sc1", "salu"), wait_vm(0),
         salu(f"s_mov_b32 s{S_SPIN}, {SPIN_MAX}"), label("L_grp_again"),
         salu(f"s_sub_u32 s{S_SPIN}, s{S_SPIN}, 1"), salu(f"s_cmp_eq_u32 s{S_SPIN}, 0"), raw("s_cbranch_scc1 L_grp_ok", "branch")]
    if not OPT.force_fallback:
        f += [raw(f"buffer_load_dword v{V_ARR}, v{V_GA}, s[{S_DBG}:{S_DBG+3}], 0 offen sc1", "salu"), wait_vm(0),
              valu(f"v_and_b32 v{V_ARR}, 0x87878787, v{V_ARR}", [], []), valu(f"v_cmp_eq_u32 vcc, s50, v{V_ARR}", [], []), nop(0),
              salu("s_cmp_eq_u64 vcc, -1"), salu(f"s_cselect_b64 s[{S_LOCM}:{S_LOCM+1}], -1, 0"), raw("s_cbranch_scc1 L_grp_ok", "branch")]
    f += far_read(V_ARR)
    f += [valu(f"v_and_b32 v{V_ARR+1}, 0x80808080, v{V_ARR}", [], []), valu(f"v_cmp_eq_u32 vcc, 0x80808080, v{V_ARR+1}", [], []), nop(0),
          salu("s_and_b64 s[52:53], vcc, 15"), salu("s_cmp_eq_u64 s[52:53], 15"), raw("s_cbranch_scc0 L_grp_again", "branch"),
          valu(f"v_and_b32 v{V_ARR}, 0x87878787, v{V_ARR}", [], []), valu(f"v_cmp_eq_u32 vcc, s50, v{V_ARR}", [], []), nop(0),
          salu("s_and_b64 s[52:53], vcc, 15"), salu("s_cmp_eq_u64 s[52:53], 15"),
          salu(f"s_cselect_b64 s[{S_LOCM}:{S_LOCM+1}], -1, 0")]
    if OPT.force_fallback: f.append(salu(f"s_mov_b64 s[{S_LOCM}:{S_LOCM+1}], 0"))
    f.append(raw("s_branch L_grp_ok", "branch"))
    OOL.extend(f)
    return o
def far_read(dst, ga=V_GA):
    return [valu(f"v_mov_b32 v{dst}, 0", [], []), valu(f"v_cmp_gt_u32 vcc, 4, v{V_LANE}", [], []),
            raw("s_and_saveexec_b64 s[54:55], vcc", "salu"),
            raw(f"buffer_atomic_add v{dst}, v{ga}, s[{S_DBG}:{S_DBG+3}], 0 offen sc0 sc1", "salu"), wait_vm(0),
            raw("s_mov_b64 exec, s[54:55]", "salu")]

def p3_setup():
    o = []; a = o.append
    L = f"v{V_LANE}"
    a(salu(f"s_mul_i32 s{S_PART}, s{S_G}, {7*16*16*2048}"))
    a(salu(f"s_lshl_b32 s{S_T2}, s{S_H}, 15")); a(salu(f"s_add_u32 s{S_RBASE}, s{S_PART}, s{S_T2}"))
    a(salu(f"s_lshl_b32 s{S_T2}, s{S_W}, 17")); a(salu(f"s_add_u32 s{S_PART}, s{S_PART}, s{S_T2}"))
    a(salu(f"s_lshl_b32 s{S_T2}, s{S_H}, 11")); a(salu(f"s_add_u32 s{S_PART}, s{S_PART}, s{S_T2}"))
    a(valu(f"v_lshlrev_b32 v{V_STO}, 4, {L}", [L], [f"v{V_STO}"]))
    if not OPT.fused: return o
    a(valu(f"v_mov_b32 v{V_ZERO}, 0", [], [f"v{V_ZERO}"])); a(valu(f"v_mov_b32 v{V_GA3}, v{V_GA}", [f"v{V_GA}"], [f"v{V_GA3}"]))
    a(salu(f"s_or_b32 s{S_T2}, s{S_XCC}, 0xf0")); a(valu(f"v_mov_b32 v{V_ONE}, s{S_T2}", [], [f"v{V_ONE}"]))
    a(valu(f"v_lshrrev_b32 v1, 5, {L}", [L], ["v1"])); a(valu("v_lshlrev_b32 v1, 11, v1", ["v1"], ["v1"]))
    a(valu(f"v_and_b32 v2, 31, {L}", [L], ["v2"])); a(valu(f"v_lshl_add_u32 v{V_RLD}, v2, 4, v1", ["v1", "v2"], [f"v{V_RLD}"]))
    a(salu(f"s_lshl_b32 s{S_T2}, s{S_W}, 9")); a(valu(f"v_add_u32 v{V_RLD}, s{S_T2}, v{V_RLD}", [f"v{V_RLD}"], [f"v{V_RLD}"]))
    a(valu(f"v_and_b32 v1, 15, {L}", [L], ["v1"])); a(valu(f"v_lshrrev_b32 v2, 4, {L}", [L], ["v2"]))
    a(valu("v_lshrrev_b32 v4, 3, v1", ["v1"], ["v4"])); a(valu("v_and_b32 v5, 1, v2", ["v2"], ["v5"]))
    a(valu("v_and_b32 v48, 1, v1", ["v1"], ["v48"])); a(valu("v_lshlrev_b32 v48, 4, v48", ["v48"], ["v48"]))
    a(valu("v_mov_b32 v49, 0x3f80", [], ["v49"])); a(valu("v_lshlrev_b32 v49, v48, v49", ["v48", "v49"], ["v49"]))
    a(valu("v_cmp_eq_u32 vcc, v4, v5", ["v4", "v5"], ["vcc"])); a(nop(1))
    a(valu("v_cndmask_b32 v49, 0, v49, vcc", ["v49", "vcc"], ["v49"]))
    a(valu("v_bfe_u32 v50, v1, 1, 2", ["v1"], ["v50"]))
    for r in range(4):
        a(valu(f"v_cmp_eq_u32 vcc, {r}, v50", ["v50"], ["vcc"])); a(nop(1))
        a(valu("v_cndmask_b32 v51, 0, v49, vcc", ["v49", "vcc"], ["v51"]))
        a(valu(f"v_accvgpr_write_b32 a{A_SEL+r}, v51", ["v51"], [f"a{A_SEL+r}"]))
    a(salu(f"s_lshl_b32 s{S_T2}, s{S_B}, 8")); a(salu(f"s_lshl_b32 s{S_T3}, s{S_H}, 4")); a(salu(f"s_add_u32 s{S_T2}, s{S_T2}, s{S_T3}"))
    a(valu(f"v_add_u32 v{V_OUT}, s{S_T2}, v1", ["v1"], [f"v{V_OUT}"])); a(valu(f"v_mul_u32_u24 v{V_OUT}, 896, v{V_OUT}", [f"v{V_OUT}"], [f"v{V_OUT}"]))
    a(salu(f"s_mul_i32 s{S_T2}, s{S_BR}, 448")); a(salu(f"s_lshr_b32 s{S_T3}, s{S_W}, 1")); a(salu(f"s_lshl_b32 s{S_T3}, s{S_T3}, 5"))
    a(salu(f"s_add_u32 s{S_T2}, s{S_T2}, s{S_T3}")); a(salu(f"s_and_b32 s{S_T3}, s{S_W}, 1")); a(salu(f"s_lshl_b32 s{S_T3}, s{S_T3}, 3"))
    a(salu(f"s_add_u32 s{S_T2}, s{S_T2}, s{S_T3}"))
    a(valu(f"v_add_u32 v{V_OUT}, s{S_T2}, v{V_OUT}", [f"v{V_OUT}"], [f"v{V_OUT}"]))
    a(valu(f"v_lshl_add_u32 v{V_OUT}, v5, 4, v{V_OUT}", ["v5", f"v{V_OUT}"], [f"v{V_OUT}"]))
    a(valu("v_lshrrev_b32 v4, 1, v2", ["v2"], ["v4"])); a(valu(f"v_lshl_add_u32 v{V_OUT}, v4, 2, v{V_OUT}", ["v4", f"v{V_OUT}"], [f"v{V_OUT}"]))
    a(valu(f"v_lshlrev_b32 v{V_OUT}, 1, v{V_OUT}", [f"v{V_OUT}"], [f"v{V_OUT}"]))
    return o

def handoff_far():
    o = [wait_vm(0), barrier(), raw("buffer_wbl2 sc1", "salu"), wait_vm(0), barrier(),
         raw(f"buffer_store_byte v{V_ONE}, v{V_ZERO}, s[{S_DBG}:{S_DBG+3}], s{S_SIG} offen sc1", "salu"), wait_vm(0),
         salu(f"s_mov_b32 s{S_SPIN}, {SPIN_MAX}"), label("L_far_poll"),
         salu(f"s_sub_u32 s{S_SPIN}, s{S_SPIN}, 1"), salu(f"s_cmp_eq_u32 s{S_SPIN}, 0"), raw("s_cbranch_scc1 L_far_done", "branch")]
    o += far_read(V_POLL, V_GA3)
    o += [valu(f"v_and_b32 v{V_POLL}, 0xf0f0f0f0, v{V_POLL}", [], []), valu(f"v_cmp_eq_u32 vcc, 0xf0f0f0f0, v{V_POLL}", [], []), nop(0),
          salu("s_and_b64 s[52:53], vcc, 15"), salu("s_cmp_eq_u64 s[52:53], 15"), raw("s_cbranch_scc0 L_far_poll", "branch"),
          label("L_far_done"), raw("buffer_inv sc1", "salu"), wait_vm(0)]
    return o

A_PIECE = 0; A_SEL2 = 224
def red_loads(j):
    out = []
    for i in range(8):
        sr = "s52" if i % 2 == 0 else "s53"
        out.append(([salu(f"s_add_u32 {sr}, s{S_RBASE}, {j*16*32768 + i*4096}", [f"s{S_RBASE}"], [sr])],
                    tag(bload_f("a", A_PIECE + 32 * j + 4 * i, 4, V_RLD, S_WS, sr, 0, "sc1"), f"rl{j}")))
    return out
def red_mfmas(j):
    d = V_RD + 4 * (j & 1)
    return [mfma("v", d, "a", A_SEL2, "a", A_PIECE + 32 * j + 4 * i, None if i == 0 else "v", None if i == 0 else d) for i in range(8)]
def red_out(j):
    d = V_RD + 4 * (j & 1)
    return [valu(f"v_cvt_pk_bf16_f32 v{d}, v{d}, v{d+1}", [f"v{d}", f"v{d+1}"], [f"v{d}"]),
            valu(f"v_cvt_pk_bf16_f32 v{d+1}, v{d+2}, v{d+3}", [f"v{d+2}", f"v{d+3}"], [f"v{d+1}"])], tag(bstore(d, 2, V_OUT, S_OUT, "0", j * 128), f"out{j}")

A_RING = 64; A_SEL4 = 96
V_RLD4, V_OUT4, V_FLA, V_FLAG1 = 48, 49, 50, 51
def ring_setup():
    o = []; a = o.append
    L = f"v{V_LANE}"
    a(salu(f"s_mul_i32 s{S_T0}, s{S_G}, {OPT.ring * 262144}"))
    a(salu(f"s_lshl_b32 s{S_T1}, s{S_W}, 16")); a(salu(f"s_add_u32 s{S_RST}, s{S_T0}, s{S_T1}"))
    a(salu(f"s_lshl_b32 s{S_T1}, s{S_H}, 10")); a(salu(f"s_add_u32 s{S_RST}, s{S_RST}, s{S_T1}"))
    a(salu(f"s_lshl_b32 s{S_T1}, s{S_H}, 14")); a(salu(f"s_add_u32 s{S_RLD}, s{S_T0}, s{S_T1}"))
    a(salu(f"s_mul_i32 s{S_T0}, s{S_G}, {14*64}"))
    a(salu(f"s_lshl_b32 s{S_T1}, s{S_W}, 4"))
    a(salu(f"s_add_u32 s{S_FPW}, s{S_T0}, s{S_T1}")); a(salu(f"s_add_u32 s{S_FPW}, s{S_FPW}, s{S_H}"))
    a(salu(f"s_add_u32 s{S_FCR}, s{S_T0}, s{S_T1}")); a(salu(f"s_add_u32 s{S_FCR}, s{S_FCR}, {CONS_OFF}"))
    a(salu(f"s_lshr_b32 s{S_T1}, s{S_H}, 2")); a(salu(f"s_lshl_b32 s{S_T1}, s{S_T1}, 4"))
    a(salu(f"s_add_u32 s{S_FPR}, s{S_T0}, s{S_T1}"))
    a(salu(f"s_lshl_b32 s{S_T1}, s{S_H}, 2")); a(salu(f"s_add_u32 s{S_FCW}, s{S_T0}, s{S_T1}"))
    a(salu(f"s_add_u32 s{S_FCW}, s{S_FCW}, s{S_W}")); a(salu(f"s_add_u32 s{S_FCW}, s{S_FCW}, {CONS_OFF}"))
    a(valu(f"v_and_b32 v{V_FLA}, 3, {L}", [L], [f"v{V_FLA}"])); a(valu(f"v_lshlrev_b32 v{V_FLA}, 2, v{V_FLA}", [f"v{V_FLA}"], [f"v{V_FLA}"]))
    a(valu(f"v_mov_b32 v{V_FLAG1}, 1", [], [f"v{V_FLAG1}"]))
    a(valu(f"v_and_b32 v1, 15, {L}", [L], ["v1"])); a(valu(f"v_lshrrev_b32 v2, 4, {L}", [L], ["v2"]))
    a(valu(f"v_lshlrev_b32 v{V_RLD4}, 10, v2", ["v2"], [f"v{V_RLD4}"])); a(valu(f"v_lshl_add_u32 v{V_RLD4}, v1, 4, v{V_RLD4}", ["v1", f"v{V_RLD4}"], [f"v{V_RLD4}"]))
    a(salu(f"s_lshl_b32 s{S_T1}, s{S_W}, 8")); a(valu(f"v_add_u32 v{V_RLD4}, s{S_T1}, v{V_RLD4}", [f"v{V_RLD4}"], [f"v{V_RLD4}"]))
    a(valu("v_and_b32 v4, 1, v1", ["v1"], ["v4"])); a(valu("v_lshlrev_b32 v4, 4, v4", ["v4"], ["v4"]))
    a(valu("v_mov_b32 v5, 0x3f80", [], ["v5"])); a(valu("v_lshlrev_b32 v5, v4, v5", ["v4", "v5"], ["v5"]))
    a(valu("v_lshrrev_b32 v4, 1, v1", ["v1"], ["v4"]))
    for r in range(4):
        a(valu(f"v_cmp_eq_u32 vcc, {r}, v4", ["v4"], ["vcc"])); a(nop(1))
        a(valu("v_cndmask_b32 v52, 0, v5, vcc", ["v5", "vcc"], ["v52"]))
        a(valu(f"v_accvgpr_write_b32 a{A_SEL4+r}, v52", ["v52"], [f"a{A_SEL4+r}"]))
    a(salu(f"s_lshl_b32 s{S_T0}, s{S_B}, 8")); a(salu(f"s_lshl_b32 s{S_T1}, s{S_H}, 4")); a(salu(f"s_add_u32 s{S_T0}, s{S_T0}, s{S_T1}"))
    a(valu(f"v_add_u32 v{V_OUT4}, s{S_T0}, v1", ["v1"], [f"v{V_OUT4}"])); a(valu(f"v_mul_u32_u24 v{V_OUT4}, 896, v{V_OUT4}", [f"v{V_OUT4}"], [f"v{V_OUT4}"]))
    a(salu(f"s_mul_i32 s{S_T0}, s{S_BR}, 448")); a(salu(f"s_lshl_b32 s{S_T1}, s{S_W}, 2")); a(salu(f"s_add_u32 s{S_T0}, s{S_T0}, s{S_T1}"))
    a(valu(f"v_add_u32 v{V_OUT4}, s{S_T0}, v{V_OUT4}", [f"v{V_OUT4}"], [f"v{V_OUT4}"]))
    a(valu(f"v_lshl_add_u32 v{V_OUT4}, v2, 4, v{V_OUT4}", ["v2", f"v{V_OUT4}"], [f"v{V_OUT4}"]))
    a(valu(f"v_lshlrev_b32 v{V_OUT4}, 1, v{V_OUT4}", [f"v{V_OUT4}"], [f"v{V_OUT4}"]))
    a(valu("v_cmp_gt_u32 vcc, 2, v2", ["v2"], ["vcc"])); a(salu(f"s_mov_b32 s{S_T0}, 0x7ff00000")); a(valu(f"v_mov_b32 v4, s{S_T0}", [], ["v4"]))
    a(valu(f"v_cndmask_b32 v{V_OUT4}, v4, v{V_OUT4}, vcc", ["v4", f"v{V_OUT4}", "vcc"], [f"v{V_OUT4}"]))
    return o

def flag_store(base, u, tg):
    return [salu(f"s_add_u32 s55, s{base}, {u*64}", [f"s{base}"], ["s55"])], \
           tag(I(f"buffer_store_byte v{V_FLAG1}, v{V_ZERO}, s[{S_FL}:{S_FL+3}], s55 offen", "vst", [f"v{V_FLAG1}", f"v{V_ZERO}", "s55"], data=[]), tg)
def flag_poll(base, u, dst, tg):
    return [salu(f"s_add_u32 s54, s{base}, {u*64}", [f"s{base}"], ["s54"])], tag(bload(dst, 1, V_FLA, S_FL, "s54", 0, "sc1"), tg)
def flag_check(base, u, dst, tg, name):
    OOL.extend([label(f"L_{name}_spin"), salu(f"s_add_u32 s54, s{base}, {u*64}"), salu(f"s_mov_b32 s{S_SPIN}, {SPIN_MAX}"),
                label(f"L_{name}_again"),
                salu(f"s_sub_u32 s{S_SPIN}, s{S_SPIN}, 1"), salu(f"s_cmp_eq_u32 s{S_SPIN}, 0"), raw(f"s_cbranch_scc1 L_{name}_ok", "branch"),
                raw(f"buffer_load_dword v{dst}, v{V_FLA}, s[{S_FL}:{S_FL+3}], s54 offen sc1", "salu"), wait_vm(0),
                valu(f"v_cmp_ne_u32 vcc, 0x01010101, v{dst}", [], []), nop(0),
                raw(f"s_cbranch_vccnz L_{name}_again", "branch"), raw(f"s_branch L_{name}_ok", "branch")])
    dd = (lambda n: stamp("d_" + n)) if name in (f"prod{OPT.p3detail}", f"cons{OPT.p3detail}") else (lambda n: [])
    return dd(name[:4] + "A") + [wait_tag(tg)] + dd(name[:4] + "B") + [valu(f"v_cmp_ne_u32 vcc, 0x01010101, v{dst}", [f"v{dst}"], ["vcc"]), nop(0),
            raw(f"s_cbranch_vccnz L_{name}_spin", "branch"), label(f"L_{name}_ok")] + dd(name[:4] + "C")
V_PP, V_PC = 53, 54
def ring_loads(u):
    out = []
    for i in range(4):
        sr = "s52" if i % 2 == 0 else "s53"
        out.append(([salu(f"s_add_u32 {sr}, s{S_RLD}, {(u % OPT.ring)*262144 + i*4096}", [f"s{S_RLD}"], [sr])],
                    tag(bload_f("a", A_RING + 16 * (u & 1) + 4 * i, 4, V_RLD4, S_RG, sr, 0, "sc1"), f"rl{u}")))
    return out
def ring_mfmas(u):
    d = V_RD + 4 * (u & 1)
    return [mfma("v", d, "a", A_SEL4, "a", A_RING + 16 * (u & 1) + 4 * i, None if i == 0 else "v", None if i == 0 else d) for i in range(4)]
def ring_out(u):
    d = V_RD + 4 * (u & 1)
    return [valu(f"v_cvt_pk_bf16_f32 v{d}, v{d}, v{d+1}", [f"v{d}", f"v{d+1}"], [f"v{d}"]),
            valu(f"v_cvt_pk_bf16_f32 v{d+1}, v{d+2}, v{d+3}", [f"v{d+2}", f"v{d+3}"], [f"v{d+1}"])], tag(bstore(d, 2, V_OUT4, S_OUT, "0", u * 64, OPT.out_flags), f"out{u}")

def p3_stream(local, carried):
    o = []; a = o.append
    NS, D = OPT.ring, OPT.prod_delay
    Q = lambda u: 8 * u + 7
    ins = {}
    if local:
        for u in range(14):
            m = 8 * (Q(u) + 22 + D) - 1
            if m < 895: ins[m] = u
    ms = []; pos = {}; redpos = {}
    for m in range(896):
        j, i = m >> 7, m & 127
        nb, qb, s_ = i >> 5, (i >> 3) & 3, i & 7
        acc = V_ACC3 + 4 * ((nb * 4 + qb) % 8)
        pos[m] = len(ms)
        ms.append(mfma("v", acc, "a", A_FR3 + 4 * (8 * (nb & 1) + s_), "v", V_Q + (qb * 8 + s_) * 4,
                       None if s_ == 0 else "v", None if s_ == 0 else acc))
        if m in ins:
            u = ins[m]; redpos[u] = len(ms); ms += ring_mfmas(u)
    g = Gaps(ms); N = g.n
    P = lambda j, i: pos[128 * j + i]
    def G(period, off):
        m = 8 * period + off
        return pos[m] if 0 <= m < 896 else None
    for j in range(7):
        for nb in range(4):
            jn, nbn = (j, nb + 1) if nb < 3 else (j + 1, 0)
            if jn > 6: continue
            for s_ in range(8):
                for jj in range(2): g.put_mem(P(j, 32 * nb + 4 * s_ + 2 * jj), wo_read(nbn, s_, jj))
    cons = []
    for j in range(7):
        for nb in range(4):
            for s_ in (0, 2, 4, 6): cons.append((P(j, 32 * nb + s_), R("a", A_FR3 + 4 * (8 * (nb & 1) + s_), 8)))
    cons.sort()
    lead = add_lgkm_waits(g, cons, carried)
    def put_vm(k, sc, d):
        assert g.mem[k] is None and not g.post[k], (k, d.text)
        for n, x in enumerate(reversed(sc)):
            kk = k - 1 - n
            assert not (g.mem[kk] is not None and g.mem[kk].kind == "dma" and "m0" in x.wr)
            g.pre[kk].append(x)
        g.mem[k] = d
    def put_seq(k, seq):
        assert g.mem[k] is None and not g.post[k], k
        g.post[k] = seq
    for j in range(6):
        k = P(j, 91)
        g.pre[k] += [wait_tag(f"wo{j+1}"), barrier()]
        sh = va_shift(WOBUF[j + 1] - WOBUF[j])
        for n, at in ((0, 85), (1, 61), (2, 69), (3, 101)):
            kk = P(j, at); g.vec[kk].append(sh[n])
    for j in (2, 3):
        items = wo_dma(j + 3)
        for n, (sc, d) in enumerate(items):
            u0 = 2 * j + (n >> 2)
            per, off = [(Q(u0) - 4, 7), (Q(u0) - 3, 3), (Q(u0) - 3, 7), (Q(u0) - 2, 7)][n & 3]
            put_vm(G(per, off), sc, d)
    stores = {}; sgap = {}
    for u in range(14):
        j, nb = u >> 1, 2 * (u & 1) + 1
        for qb in range(4):
            sreg = S_T2 + (qb & 1)
            if local:
                st = ([salu(f"s_add_u32 s{sreg}, s{S_RST}, {(u % NS)*262144 + qb*16384}", [f"s{S_RST}"], [f"s{sreg}"])],
                      tag(bstore(V_STG + 4 * qb, 4, V_STO, S_RG, f"s{sreg}", 0, OPT.last_st if u >= 14 - NS else ""), f"st{u}"))
            else:
                so = j * 16 * 16 * 2048 + qb * 16 * 2048 + (nb >> 1) * 1024
                st = ([salu(f"s_add_u32 s{sreg}, s{S_PART}, {so}", [f"s{S_PART}"], [f"s{sreg}"])],
                      tag(bstore(V_STG + 4 * qb, 4, V_STO, S_WS, f"s{sreg}", 0), f"st{u}"))
            stores[(u, qb)] = st
            k = G(Q(u) + qb, 3)
            sgap[(u, qb)] = k
            if k is not None: put_vm(k, *st)
    done = {}; out_left = []
    if local:
        for u in range(14):
            dd = (lambda n: stamp("d_" + n)) if u == OPT.p3detail else (lambda n: [])
            if u >= NS:
                kp, kc = G(Q(u) - 4, 3), G(Q(u) - 1, 3)
                put_vm(kp, *flag_poll(S_FCR, u - NS, V_PC, f"pc{u}"))
                put_seq(kc, flag_check(S_FCR, u - NS, V_PC, f"pc{u}", f"cons{u}"))
            done[u] = "sig"
            k = G(Q(u) + 7, 5)
            if k is None or sgap[(u, 3)] is None: continue
            sc, d = flag_store(S_FPW, u, f"sig{u}")
            g.pre[k - 1] += dd("sigA") + [wait_tag(f"st{u}")] + dd("sigB"); put_vm(k, sc, d)
            done[u] = "poll"
            k = G(Q(u) + 12 + D, 5)
            if k is None: continue
            put_vm(k, *flag_poll(S_FPR, u, V_PP, f"pp{u}"))
            done[u] = "check"
            k = G(Q(u) + 15 + D, 7)
            if k is None: continue
            put_seq(k, flag_check(S_FPR, u, V_PP, f"pp{u}", f"prod{u}"))
            done[u] = "loads"
            if u not in redpos: continue
            for n, (sc, d) in enumerate(ring_loads(u)): put_vm(G(Q(u) + 16 + D + n, 7), sc, d)
            g.pre[redpos[u] - 1] += dd("rlA") + [wait_tag(f"rl{u}")] + dd("rlB")
            if u <= 13 - NS: put_vm(G(Q(u) + 22 + D, 3), *flag_store(S_FCW, u, f"csig{u}"))
            done[u] = "out"
            cv, st = ring_out(u)
            if u + 1 in redpos:
                g.vec[redpos[u + 1]] += cv
                put_vm(G(Q(u) + 30 + D, 5), [], st)
                done[u] = "all"
    tail_main = []
    for p in range(112):
        j, nb, qb = p >> 4, (p >> 2) & 3, p & 3
        ops = part_ops(nb, qb)
        slots = [G(p + 2, 0), G(p + 2, 1), G(p + 2, 1), G(p + 2, 2), G(p + 2, 4), G(p + 2, 6)]
        if slots[0] is None:
            tail_main += ops
        else:
            for x, k in zip(ops, slots): g.vec[k].append(x)
        if nb & 1:
            u = 2 * j + (nb >> 1)
            if sgap[(u, qb)] is None: tail_main += stores[(u, qb)][0] + [nop(1), stores[(u, qb)][1]]
    if lead is not None: a(lead)
    em = g.emit()
    if "allst" in OPT.p3_drop: em = [x for x in em if x.kind != "vst"]
    if "pst" in OPT.p3_drop: em = [x for x in em if not (x.kind == "vst" and x.meta.get("tag", "").startswith("st"))]
    if "nospin" in OPT.p3_drop: em = [x for x in em if not (x.kind == "branch" and "vccnz" in x.text)]
    if "novm" in OPT.p3_drop: em = [x for x in em if not (x.kind == "wait" and "vmtags" in x.meta and not x.meta["vmtags"][0].startswith("wo"))]
    if "nold" in OPT.p3_drop: em = [x for x in em if not (x.kind == "vld" and x.meta.get("tag", "").startswith("rl"))]
    o += stamp("p3_stream_start") if (local or not OPT.fused) else []
    o += em
    if local or not OPT.fused: o += stamp("p3_mfma_end")
    a(nop(7)); o += exposed(tail_main)
    if local:
        todo = [u for u in range(14) if done[u] != "all"]
        for u in todo:
            if done[u] == "sig":
                sc, d = flag_store(S_FPW, u, f"sig{u}"); o += [wait_tag(f"st{u}")] + sc + [d]
        o += stamp("x_last_signal")
        if OPT.early_wb:
            o += [salu(f"s_or_b32 s{S_T0}, s{S_H}, s{S_W}"), salu(f"s_cmp_lg_u32 s{S_T0}, {0 if OPT.early_wb == 1 else 0}"),
                  raw("s_cbranch_scc1 L_no_wb", "branch"), raw("buffer_wbl2 sc1", "salu"), label("L_no_wb")]
        for u in todo:
            if done[u] != "out":
                if done[u] in ("sig", "poll"):
                    sc, d = flag_poll(S_FPR, u, V_PP, f"pp{u}"); o += sc + [d]
                if done[u] in ("sig", "poll", "check"): o += flag_check(S_FPR, u, V_PP, f"pp{u}", f"prod{u}")
                for sc, d in ring_loads(u): o += sc + [d]
                o.append(wait_tag(f"rl{u}"))
                o += ring_mfmas(u); a(nop(7))
            cv, st = ring_out(u); o += cv + [st]
    return o

def phase3():
    o = []; a = o.append
    a(wait_tag("wt"))
    o += p3_setup()
    if OPT.fused: o += ring_setup()
    o += va_shift(WOBUF[0] - L_V)
    if OPT.fused: o += mode_check()
    a(wait_tag("wo0")); a(barrier())
    carried = []
    for s_ in range(8):
        for jj in range(2):
            r = wo_read(0, s_, jj); a(r); carried.append(r.wr)
            if len(carried) == 14: a(wait_lgkm(6)); carried = carried[-6:]
    for sc, d in wo_dma(4): o += sc + [nop(0), d]
    if not OPT.fused:
        return o, p3_stream(False, carried) + stamp("p3_end") + ([wait_vm(0)] if OPT.stamps else []) + stamp("rt_end"), []
    o += [salu(f"s_cmp_eq_u32 s{S_LOCM}, 0"), raw("s_cbranch_scc1 L_p3_far", "branch")]
    loc = p3_stream(True, carried)
    loc += stamp("p3_end") + ([wait_vm(0)] if OPT.stamps else []) + stamp("rt_end")
    far = [label("L_p3_far")] + p3_stream(False, carried) + handoff_far()
    for j in range(7):
        for sc, d in red_loads(j): far += sc + [d]
    for j in range(7):
        far.append(wait_tag(f"rl{j}"))
        far += red_mfmas(j)
        if j > 0:
            cv, stt = red_out(j - 1); far += cv + [stt]
    far.append(nop(7))
    cv, stt = red_out(6); far += cv + [stt]
    far += [wait_vm(0), raw("s_endpgm", "branch")]
    return o, loc, far

def dump_regs(base, n, agpr=False):
    o = [wait_vm(0), raw("s_waitcnt lgkmcnt(0)", "wait", lgkm=0), nop(7), nop(7),
         salu(f"s_lshl_b32 s{S_T0}, s2, 2"), salu(f"s_add_u32 s{S_T0}, s{S_T0}, s{S_W}"),
         salu(f"s_mul_i32 s{S_T0}, s{S_T0}, {n*256}"), valu(f"v_lshlrev_b32 v1, 2, v{V_LANE}", [f"v{V_LANE}"], ["v1"])]
    for r in range(n):
        if agpr:
            o.append(valu(f"v_accvgpr_read_b32 v2, a{base+r}", [f"a{base+r}"], ["v2"])); o.append(bstore(2, 1, 1, S_WS, f"s{S_T0}", 0))
        else:
            o.append(bstore(base + r, 1, 1, S_WS, f"s{S_T0}", 0))
        o.append(salu(f"s_add_u32 s{S_T0}, s{S_T0}, 256"))
        if r % 32 == 31 or agpr: o.append(wait_vm(0))
    return o

def stamp_out():
    if not OPT.stamps: return []
    if OPT.bar_stamps: STAMPS.extend(["acc_vm", "acc_bar"])
    n = len(STAMPS)
    o = [raw("s_waitcnt lgkmcnt(0)", "wait", lgkm=0), salu(f"s_cmp_lg_u32 s{S_W}, 0"), raw("s_cbranch_scc1 L_nostamp", "branch")]
    if OPT.stamp_dbg >= 0:
        o += [salu(f"s_cmp_lg_u32 s2, {OPT.stamp_dbg}"), raw("s_cbranch_scc1 L_nostamp", "branch")]
        o += [salu("s_load_dwordx2 s[36:37], s[0:1], 88"), raw("s_waitcnt lgkmcnt(0)", "wait", lgkm=0)]
        o += [salu(f"s_mov_b32 s{S_WS}, s36"), salu(f"s_mov_b32 s{S_WS+1}, s37"), salu(f"s_mov_b32 s{S_WS+2}, 256"), salu(f"s_mov_b32 s{S_T0}, 0")]
    else:
        o.append(salu(f"s_mul_i32 s{S_T0}, s2, 64")); o.append(salu(f"s_add_u32 s{S_T0}, s{S_T0}, {STAMP_OFF}"))
        o.append(salu(f"s_mov_b32 s{S_WS+2}, {STAMP_OFF + 256*64}"))
    if OPT.trip_stamps:
        o += [valu(f"v_lshlrev_b32 v2, 2, v{V_LANE}", [], ["v2"]), salu(f"s_mul_i32 s{S_T1}, s2, 64"),
              salu(f"s_add_u32 s{S_T1}, s{S_T1}, {STAMP_OFF + 256*64}"), salu(f"s_mov_b32 s{S_WS+2}, {STAMP_OFF + 2*256*64}"),
              valu("v_cmp_gt_u32 vcc, 16, v0", ["v0"], ["vcc"]), raw("s_and_saveexec_b64 s[36:37], vcc", "salu"),
              bstore(1, 1, 2, S_WS, f"s{S_T1}", 0), wait_vm(0), raw("s_mov_b64 exec, s[36:37]", "salu")]
    o.append(valu("v_mov_b32 v1, 0", [], ["v1"]))
    for k in range(n):
        if OPT.stamp_dbg >= 0:
            ref = 0 if STAMPS[k].startswith("rt") else 1
            o.append(salu(f"s_sub_u32 s{S_T1}, s{S_STAMP+2*k}, s{S_STAMP+2*ref}"))
            o.append(valu(f"v_mov_b32 v2, s{S_T1}", [], ["v2"]))
        elif STAMPS[k] == "acc_vm": o.append(valu("v_mov_b32 v2, s92", [], ["v2"]))
        elif STAMPS[k] == "acc_bar": o.append(valu("v_mov_b32 v2, s93", [], ["v2"]))
        else:
            o.append(valu(f"v_mov_b32 v2, s{S_STAMP+2*k}", [], ["v2"]))
        o.append(bstore(2, 1, 1, S_WS, f"s{S_T0}", 4 * k)); o.append(wait_vm(0))
    o.append(label("L_nostamp"))
    return o

def finish(): return [wait_vm(0), label("L_end"), raw("s_endpgm", "branch")]

def build(debug=None):
    _stamp_n[0] = 0; STAMPS.clear(); OOL.clear()
    pre = setup() + phase1()
    if debug == "p1":
        pre += stamp("rt_end")
        resolve_vm(pre, [])
        return pre + stamp_out() + finish()
    if debug == "q":
        resolve_vm(pre, []); check(pre, "pre")
        return pre + dump_regs(V_Q, 128) + finish()
    if OPT.dma_mode == "cluster":
        OPT.dma_gaps = ([21, 23, 25, 27], [101, 103, 105, 107]); OPT.nv_prev = 0
    elif OPT.dma_mode == "cluster2":
        OPT.dma_gaps = ([41, 43, 47, 49], [101, 103, 105, 107]); OPT.nv_prev = 0
    NCUR = len(OPT.dma_gaps[1])
    p, carried = pre_iter(); pre += p
    def batch(t):
        return dma_tile("V", vslot(t + 3), f"s{S_VOFF}", f"V{t+3}") + dma_tile("K", kslot(t + 5), f"s{S_KOFF}", f"K{t+5}")
    pre += wo_setup()
    if OPT.fused: pre += grp_setup()
    def ex0(g, kb):
        put_wo(g, 0, 3, kb, step=8)
    s0, carried = attn_iter(0, carried, wait_tag("V1", "K2"), [], batch(0)[:NCUR], first=True, adv=False, extra=ex0)
    pre += s0
    pre.append(salu(f"s_mov_b32 s{S_LOOP}, 7"))
    if OPT.bar_stamps: pre += [salu("s_mov_b32 s92, 0"), salu("s_mov_b32 s93, 0")]
    pre += stamp("loop_start") + (stamp("rt_ls") if OPT.bar_stamps else [])
    loop = [label("L_attn")]
    for u in range(4):
        t = 1 + u
        s, carried = attn_iter(t, carried, wait_vm(12), batch(t - 1)[NCUR:], batch(t)[:NCUR], loopctl=(u == 3), loop_body=True)
        loop += s
    if OPT.trip_stamps:
        loop += [raw("s_memtime s[98:99]", "salu"), raw("s_waitcnt lgkmcnt(0)", "wait", lgkm=0),
                 salu(f"s_mov_b32 s99, m0"), salu(f"s_mov_b32 m0, s{S_LOOP}"), nop(0), valu(f"v_writelane_b32 v1, s98, m0", ["s98"], ["v1"]),
                 salu("s_mov_b32 m0, s99"), salu(f"s_cmp_lg_u32 s{S_LOOP}, 0")]
    if OPT.loop_nodma: loop = [x for x in loop if x.kind != "dma"]
    if OPT.loop_nods: loop = [x for x in loop if x.kind != "ds" and not (x.kind == "wait" and "lgkm" in x.meta and x.meta["lgkm"] > 0)]
    if OPT.loop_nomfma: loop = [(nop(1) if x.kind == "mfma" else x) for x in loop]
    if OPT.loop_novalu: loop = [x for x in loop if x.kind not in ("valu", "trans")]
    if OPT.loop_dma_every > 1:
        cnt = [0]
        def keep(x):
            if x.kind != "dma": return True
            cnt[0] += 1
            return cnt[0] % OPT.loop_dma_every == 0
        loop = [x for x in loop if keep(x)]
    loop.append(raw("s_cbranch_scc1 L_attn", "branch"))
    post = stamp("loop_end") + (stamp("rt_le") if OPT.bar_stamps else [])
    def ex29(g, kb):
        if OPT.fused: place_vmem(g, 40, [], mode_load(), kb)
        gp = 50
        for j in OPT.wo_touch: gp = place_vmem(g, gp, [], wo_touch(j), kb) + 12
    post += wo_touch_setup()
    s, carried = attn_iter(29, carried, wait_tag("V30", "K32"), batch(28)[NCUR:4], [], adv=False,
                           extra=ex29)
    post += s
    def ex30(g, kb):
        put_wo(g, 1, 3, kb, step=8)
    s, carried = attn_iter(30, carried, wait_tag("V31"), [], [], adv=False, extra=ex30)
    post += s
    post += last_iter(carried)
    post += stamp("attn_end")
    if debug == "o":
        tailq = dump_regs(V_Q, 128)
    elif debug == "l":
        tailq = dump_regs(V_L, 4)
    else:
        common, loc, far = phase3()
        tailq = common
    post += tailq
    q = resolve_vm(pre, [])
    qexit = ["V30"] * 4 + ["K32"] * 4 + ["V31"] * NCUR
    qb_ = resolve_vm(post, qexit)
    if debug is None:
        resolve_vm(loc, qb_); resolve_vm(far, qb_)
        if far and not OPT.p3_drop: check(loop[1:] + post + far[1:], "loop+post+far", init_lgkm=[x.wr for x in pre if x.kind == "ds"][-8:], init_vm=[[]] * (8 + NCUR))
        post = post + loc
        OOL.extend(far)
    if not (OPT.p1_nowait or OPT.p1_noread or OPT.p1_drop or OPT.loop_nodma or OPT.loop_dma_every > 1 or OPT.loop_nods or OPT.loop_nomfma or OPT.loop_novalu): check(pre + loop[1:] + loop[1:], "pre+loop")
    if not (OPT.p3_drop or OPT.loop_nodma or OPT.loop_dma_every > 1 or OPT.loop_nods or OPT.loop_nomfma or OPT.loop_novalu): check(loop[1:] + post, "loop+post", init_lgkm=[x.wr for x in pre if x.kind == "ds"][-8:], init_vm=[[]] * (8 + NCUR))
    return pre + loop + post + stamp_out() + finish() + OOL

def reduce_kernel():
    o = []; a = o.append
    a(salu("s_cmp_ge_u32 s2, 256")); a(raw("s_cbranch_scc1 R_end", "branch"))
    a(salu("s_load_dwordx2 s[4:5], s[0:1], 80")); a(salu("s_load_dwordx2 s[6:7], s[0:1], 96"))
    a(valu("v_lshrrev_b32 v1, 6, v0", ["v0"], ["v1"])); a(valu("v_and_b32 v0, 63, v0", ["v0"], ["v0"]))
    a(valu("v_readfirstlane_b32 s32, v1", ["v1"], ["s32"]))
    a(salu("s_lshr_b32 s33, s2, 4")); a(salu("s_and_b32 s34, s2, 15"))
    a(salu("s_lshr_b32 s35, s33, 3")); a(salu("s_and_b32 s36, s33, 7"))
    a(salu("s_lshr_b32 s37, s32, 1")); a(salu("s_and_b32 s38, s32, 1"))
    a(valu("v_lshrrev_b32 v2, 5, v0", ["v0"], ["v2"])); a(valu("v_lshlrev_b32 v2, 11, v2", ["v2"], ["v2"]))
    a(valu("v_and_b32 v3, 31, v0", ["v0"], ["v3"])); a(valu("v_lshl_add_u32 v2, v3, 4, v2", ["v3", "v2"], ["v2"]))
    a(salu("s_lshl_b32 s39, s37, 10")); a(salu("s_lshl_b32 s40, s38, 9")); a(salu("s_add_u32 s39, s39, s40"))
    a(valu("v_add_u32 v2, s39, v2", ["v2"], ["v2"]))
    a(valu("v_and_b32 v8, 15, v0", ["v0"], ["v8"])); a(valu("v_lshrrev_b32 v9, 4, v0", ["v0"], ["v9"]))
    a(valu("v_lshrrev_b32 v10, 3, v8", ["v8"], ["v10"])); a(valu("v_and_b32 v11, 1, v9", ["v9"], ["v11"]))
    a(valu("v_and_b32 v12, 1, v8", ["v8"], ["v12"])); a(valu("v_lshlrev_b32 v12, 4, v12", ["v12"], ["v12"]))
    a(valu("v_mov_b32 v13, 0x3f80", [], ["v13"])); a(valu("v_lshlrev_b32 v13, v12, v13", ["v12", "v13"], ["v13"]))
    a(valu("v_cmp_eq_u32 vcc, v10, v11", ["v10", "v11"], ["vcc"])); a(nop(1))
    a(valu("v_cndmask_b32 v13, 0, v13, vcc", ["v13", "vcc"], ["v13"]))
    a(valu("v_bfe_u32 v14, v8, 1, 2", ["v8"], ["v14"]))
    for r in range(4):
        a(valu(f"v_cmp_eq_u32 vcc, {r}, v14", ["v14"], ["vcc"])); a(nop(1))
        a(valu(f"v_cndmask_b32 v{4+r}, 0, v13, vcc", ["v13", "vcc"], [f"v{4+r}"]))
    a(salu("s_lshl_b32 s41, s36, 8")); a(salu("s_lshl_b32 s42, s34, 4")); a(salu("s_add_u32 s41, s41, s42"))
    a(valu("v_add_u32 v3, s41, v8", ["v8"], ["v3"])); a(valu("v_mul_u32_u24 v3, 896, v3", ["v3"], ["v3"]))
    a(salu("s_mul_i32 s42, s35, 448")); a(salu("s_lshl_b32 s43, s37, 5")); a(salu("s_add_u32 s42, s42, s43"))
    a(salu("s_lshl_b32 s43, s38, 3")); a(salu("s_add_u32 s42, s42, s43"))
    a(valu("v_add_u32 v3, s42, v3", ["v3"], ["v3"]))
    a(valu("v_lshl_add_u32 v3, v11, 4, v3", ["v11", "v3"], ["v3"]))
    a(valu("v_lshrrev_b32 v10, 1, v9", ["v9"], ["v10"])); a(valu("v_lshl_add_u32 v3, v10, 2, v3", ["v10", "v3"], ["v3"]))
    a(valu("v_lshlrev_b32 v3, 1, v3", ["v3"], ["v3"]))
    a(raw("s_waitcnt lgkmcnt(0)", "wait", lgkm=0))
    for base, lo, size in ((8, 6, 16 * 7 * 16 * 16 * 2048), (12, 4, 8 * 256 * 896 * 2)):
        a(salu(f"s_mov_b32 s{base}, s{lo}")); a(salu(f"s_mov_b32 s{base+1}, s{lo+1}"))
        a(salu(f"s_mov_b32 s{base+2}, {size}")); a(salu(f"s_mov_b32 s{base+3}, 0x20000"))
    a(salu(f"s_mul_i32 s44, s33, {7*16*32768}")); a(salu("s_lshl_b32 s45, s34, 15")); a(salu("s_add_u32 s44, s44, s45"))
    for j in range(7):
        for i in range(8):
            a(salu(f"s_add_u32 s46, s44, {j*16*32768 + i*4096}"))
            a(tag(bload(16 + (j * 8 + i) * 4, 4, 2, 8, "s46", 0), f"p{j}"))
    for j in range(7):
        a(wait_tag(f"p{j}"))
        d = 240 + 4 * (j & 1)
        for i in range(8):
            a(mfma("v", d, "v", 4, "v", 16 + (j * 8 + i) * 4, None if i == 0 else "v", None if i == 0 else d))
        a(nop(7))
        a(valu(f"v_cvt_pk_bf16_f32 v{d}, v{d}, v{d+1}", [f"v{d}", f"v{d+1}"], [f"v{d}"]))
        a(valu(f"v_cvt_pk_bf16_f32 v{d+1}, v{d+2}, v{d+3}", [f"v{d+2}", f"v{d+3}"], [f"v{d+1}"]))
        a(tag(bstore(d, 2, 3, 12, "0", j * 128), "o"))
    resolve_vm(o, []); check(o, "reduce")
    if OPT.stamps and OPT.stamp_fwd >= 0:
        o += [wait_vm(0), salu("s_cmp_lg_u32 s2, 0"), raw("s_cbranch_scc1 R_end", "branch"),
              salu("s_load_dwordx2 s[20:21], s[0:1], 88"), raw("s_waitcnt lgkmcnt(0)", "wait", lgkm=0),
              salu("s_mov_b32 s16, s20"), salu("s_mov_b32 s17, s21"), salu("s_mov_b32 s18, 64"), salu("s_mov_b32 s19, 0x20000"),
              salu(f"s_mov_b32 s10, {16*7*16*16*2048 + 256*64}"), salu(f"s_mov_b32 s46, {16*7*16*16*2048} + 64*{OPT.stamp_fwd}"),
              valu("v_lshlrev_b32 v2, 2, v0", ["v0"], ["v2"]), bload(3, 1, 2, 8, "s46", 0), wait_vm(0), bstore(3, 1, 2, 16, "0", 0)]
    o += [wait_vm(0), label("R_end"), raw("s_endpgm", "branch")]
    return o

KD = """.section .rodata,"a"
.p2align 6
.amdhsa_kernel {name}
  .amdhsa_next_free_vgpr {vgpr}
  .amdhsa_next_free_sgpr 102
  .amdhsa_accum_offset 256
  .amdhsa_group_segment_fixed_size 0
  .amdhsa_kernarg_size 104
  .amdhsa_user_sgpr_count 2
  .amdhsa_user_sgpr_kernarg_segment_ptr 1
  .amdhsa_system_sgpr_workgroup_id_x 1
.end_amdhsa_kernel
"""
def header_comments():
    ref = open("cdna_kernels/" + NAME + ".s.ref").read().splitlines()
    out = []
    for l in ref:
        if l.startswith("; Override launch") or not l.startswith(";"): break
        out.append(l)
    return out

def stream_kernel():
    t = """
  s_cmp_ge_u32 s2, 256
  s_cbranch_scc1 S_end
  s_load_dwordx2 s[4:5], s[0:1], 8
  s_load_dwordx2 s[6:7], s[0:1], 96
  s_load_dwordx2 s[8:9], s[0:1], 48
  v_lshrrev_b32 v2, 6, v0
  s_nop 0
  v_readfirstlane_b32 s24, v2
  v_and_b32 v1, 63, v0
  v_lshlrev_b32 v14, 4, v1
  s_nop 2
  s_lshl_b32 s25, s24, 12
  v_add_u32 v14, s25, v14
  s_waitcnt lgkmcnt(0)
  s_cmp_lt_u32 s2, 128
  s_cselect_b32 s36, s4, s8
  s_cselect_b32 s37, s5, s9
  s_mov_b32 s38, 0x4000000
  s_mov_b32 s39, 0x20000
  s_and_b32 s32, s2, 127
  s_lshl_b32 s32, s32, 19
  s_barrier
  s_memrealtime s[12:13]
  s_mov_b32 s20, 0
S_loop:
  s_mov_b32 m0, s25
  s_nop 0
  buffer_load_dwordx4 v14, s[36:39], s32 offen nt lds
  buffer_load_dwordx4 v14, s[36:39], s32 offen offset:1024 nt lds
  buffer_load_dwordx4 v14, s[36:39], s32 offen offset:2048 nt lds
  buffer_load_dwordx4 v14, s[36:39], s32 offen offset:3072 nt lds
  s_add_u32 s32, s32, 16384
  s_waitcnt vmcnt(8)
  s_barrier
  s_add_u32 s20, s20, 1
  s_cmp_lt_u32 s20, 32
  s_cbranch_scc1 S_loop
  s_waitcnt vmcnt(0)
  s_barrier
  s_memrealtime s[16:17]
  s_waitcnt lgkmcnt(0)
  s_sub_u32 s16, s16, s12
  s_mov_b32 s40, s6
  s_mov_b32 s41, s7
  s_mov_b32 s42, %d
  s_mov_b32 s43, 0x20000
  s_mul_i32 s33, s2, 64
  s_add_u32 s33, s33, %d
  v_mov_b32 v2, s16
  v_mov_b32 v1, 0
  buffer_store_dword v2, v1, s[40:43], s33 offen
  s_waitcnt vmcnt(0)
S_end:
  s_endpgm""" % (16*7*16*16*2048 + 256*64, 16*7*16*16*2048 + 60)
    return t

def assemble_file(debug=None):
    main = build(debug)
    red = reduce_kernel()
    k1 = NAME + "_kernel"; k2 = "reduce_heads_kernel"
    L = header_comments()
    if OPT.stream0: L.append(f"; @launch kernel=stream_test_kernel grid=(256,1,1) block=(256,1,1) lds={LDS_BYTES}")
    if OPT.fused and not OPT.stream0:
        L.append(f"; @launch grid=(256,1,1) block=(256,1,1) lds={LDS_BYTES}")
    else:
        L.append(f"; @launch kernel={k1} grid=(256,1,1) block=(256,1,1) lds={LDS_BYTES}")
        if debug is None and not OPT.fused: L.append(f"; @launch kernel={k2} grid=(256,1,1) block=(256,1,1) lds=0")
    L.append('.amdgcn_target "amdgcn-amd-amdhsa--gfx950"')
    L.append(".text")
    for nm, body in ((k1, main), (k2, red)) if not OPT.fused else ((k1, main),):
        L += [f".globl {nm}", ".p2align 8", f".type {nm},@function", f"{nm}:", text(body)]
    if OPT.stream0: L += [".globl stream_test_kernel", ".p2align 8", ".type stream_test_kernel,@function", "stream_test_kernel:", stream_kernel()]
    L.append(KD.format(name=k1, vgpr=512))
    if not OPT.fused: L.append(KD.format(name=k2, vgpr=256))
    if OPT.stream0: L.append(KD.format(name="stream_test_kernel", vgpr=512))
    return "\n".join(L) + "\n"

if __name__ == "__main__":
    dbg = sys.argv[2] if len(sys.argv) > 2 and sys.argv[2] != "none" else None
    for kv in sys.argv[3:]:
        k, v = kv.split("=")
        setattr(OPT, k, {"True": True, "False": False, "()": ()}.get(v, int(v) if v.lstrip("-").isdigit() else (eval(v) if v.startswith("(") else v)))
    open(sys.argv[1], "w").write(assemble_file(dbg))
    print("stamps:", STAMPS)
```

```python
import re

def R(f, b, n=1):
    return [f"{f}{i}" for i in range(b, b + n)]

def rng(f, b, n):
    return f"{f}{b}" if n == 1 else f"{f}[{b}:{b+n-1}]"

class I:
    __slots__ = ("text", "kind", "rd", "wr", "meta")
    def __init__(self, text, kind, rd=(), wr=(), **meta):
        self.text = text; self.kind = kind; self.rd = list(rd); self.wr = list(wr); self.meta = meta
    def __repr__(self): return self.text

def mfma(df, d, af, a, bf, b, cf=None, c=None):
    ct = "0" if c is None else rng(cf, c, 4)
    rd = R(af, a, 4) + R(bf, b, 4) + ([] if c is None else R(cf, c, 4))
    return I(f"v_mfma_f32_16x16x32_bf16 {rng(df,d,4)}, {rng(af,a,4)}, {rng(bf,b,4)}, {ct}", "mfma",
             rd, R(df, d, 4), d=(df, d), c=(cf, c) if c is not None else None, ab=R(af, a, 4) + R(bf, b, 4))

def valu(text, rd=(), wr=()): return I(text, "valu", rd, wr)
def trans(text, rd=(), wr=()): return I(text, "trans", rd, wr)
def salu(text, rd=(), wr=()): return I(text, "salu", rd, wr)
def wait_lgkm(n): return I(f"s_waitcnt lgkmcnt({n})", "wait", lgkm=n)
def wait_vm(n):
    assert 0 <= n <= 63, n
    return I(f"s_waitcnt vmcnt({n})", "wait", vm=n)
def barrier(): return I("s_barrier", "barrier")
def nop(n=0): return I(f"s_nop {n}", "nop", n=n)
def label(name): return I(f"{name}:", "label")
def raw(text, kind="salu", rd=(), wr=(), **m): return I(text, kind, rd, wr, **m)

def ds_read128(f, d, addr, off):
    assert 0 <= off < 65536, off
    return I(f"ds_read_b128 {rng(f,d,4)}, v{addr} offset:{off}", "ds", [f"v{addr}"], R(f, d, 4))
def ds_read_tr(f, d, addr, off):
    assert 0 <= off < 65536, off
    return I(f"ds_read_b64_tr_b16 {rng(f,d,2)}, v{addr} offset:{off}", "ds", [f"v{addr}"], R(f, d, 2))
def dma(voff, srd, soff, off, flags=""):
    assert 0 <= off < 4096
    so = soff if isinstance(soff, str) else str(soff)
    o = f" offset:{off}" if off else ""
    fl = f" {flags}" if flags else ""
    return I(f"buffer_load_dwordx4 v{voff}, s[{srd}:{srd+3}], {so} offen{o}{fl} lds", "dma",
             [f"v{voff}", "m0"] + R("s", srd, 4) + ([so] if so.startswith("s") else []))
def bload(d, n, voff, srd, soff, off, flags=""):
    assert 0 <= off < 4096
    so = soff if isinstance(soff, str) else str(soff)
    o = f" offset:{off}" if off else ""
    fl = f" {flags}" if flags else ""
    nm = {1: "dword", 2: "dwordx2", 4: "dwordx4"}[n]
    return I(f"buffer_load_{nm} {rng('v',d,n)}, v{voff}, s[{srd}:{srd+3}], {so} offen{o}{fl}", "vld",
             [f"v{voff}"] + R("s", srd, 4) + ([so] if so.startswith("s") else []), R("v", d, n))
def bload_f(f, d, n, voff, srd, soff, off, flags=""):
    so = soff if isinstance(soff, str) else str(soff)
    o = f" offset:{off}" if off else ""
    fl = f" {flags}" if flags else ""
    nm = {1: "dword", 2: "dwordx2", 4: "dwordx4"}[n]
    return I(f"buffer_load_{nm} {rng(f,d,n)}, v{voff}, s[{srd}:{srd+3}], {so} offen{o}{fl}", "vld",
             [f"v{voff}"] + R("s", srd, 4) + ([so] if so.startswith("s") else []), R(f, d, n))
def bstore(d, n, voff, srd, soff, off, flags=""):
    assert 0 <= off < 4096
    so = soff if isinstance(soff, str) else str(soff)
    o = f" offset:{off}" if off else ""
    fl = f" {flags}" if flags else ""
    nm = {1: "dword", 2: "dwordx2", 4: "dwordx4"}[n]
    return I(f"buffer_store_{nm} {rng('v',d,n)}, v{voff}, s[{srd}:{srd+3}], {so} offen{o}{fl}", "vst",
             [f"v{voff}"] + R("v", d, n) + R("s", srd, 4) + ([so] if so.startswith("s") else []), data=R("v", d, n))

class Gaps:
    def __init__(self, mf):
        self.m = list(mf)
        self.n = len(self.m)
        self.pre = [[] for _ in range(self.n)]
        self.mem = [None] * self.n
        self.vec = [[] for _ in range(self.n)]
        self.post = [[] for _ in range(self.n)]
        self.vec_first = set()
    def cost(self, k):
        pre = len(self.pre[k]); mem = self.mem[k]; vec = self.vec[k]
        v = sum(2 if x.kind == "trans" else 1 for x in vec) + len(self.post[k])
        if mem is not None:
            v += 1 if mem.kind == "ds" else 2
        return max(pre - 1, 0) + v
    def free_vec(self, k): return 2 - self.cost(k)
    def put_pre(self, k, ins): self.pre[k].append(ins)
    def put_mem(self, k, ins):
        assert self.mem[k] is None, f"gap {k} already has mem {self.mem[k]}"
        self.mem[k] = ins
    def find_mem_gap(self, lo, hi, need=1):
        for k in range(lo, hi + 1):
            if self.mem[k] is None and self.free_vec(k) >= need and not self.vec[k]:
                return k
        return None
    def place_vec(self, ins, lo, hi):
        need = 2 if ins.kind == "trans" else 1
        for k in range(lo, hi):
            if self.free_vec(k) >= need:
                if need == 2 and self.mem[k] is not None: continue
                self.vec[k].append(ins); return k
        return None
    def emit(self, lo=0, hi=None):
        out = []
        for k in range(lo, self.n if hi is None else hi):
            out.append(self.m[k])
            out += self.pre[k]
            if k in self.vec_first:
                out += self.vec[k]
                if self.mem[k] is not None: out.append(self.mem[k])
            else:
                if self.mem[k] is not None: out.append(self.mem[k])
                out += self.vec[k]
            out += self.post[k]
        return out

class HazardError(Exception): pass

def check(stream, name="", init_lgkm=(), init_vm=(), verbose=False):
    lg = list(init_lgkm)
    vm = list(init_vm)
    last_mfma_w = {}
    last_valu_w = {}
    last_trans_w = {}
    last_mfma_c = {}
    last_store_data = {}
    last_salu_m0 = -10
    last_valu_sgpr = {}
    slot = 0
    errs = []
    def err(i, msg): errs.append(f"[{name}] slot {slot}: {msg} :: {i.text}")
    for i in stream:
        k = i.kind
        if k == "label": continue
        pend_l = {r for op in lg for r in op}; pend_v = {r for op in vm for r in op}
        touched = set(i.rd) | set(i.wr)
        if k != "wait":
            bad = touched & pend_l
            if bad: err(i, f"touches pending LDS dest {sorted(bad)}")
            bad = touched & pend_v
            if bad and not (k == "vld" and i.meta.get("tag") in ("wt", "pf")): err(i, f"touches pending VMEM dest {sorted(bad)}")
        if k == "wait":
            if "lgkm" in i.meta:
                n = i.meta["lgkm"]
                while len(lg) > n: lg.pop(0)
            if "vm" in i.meta and not i.meta.get("notrim"):
                n = i.meta["vm"]
                while len(vm) > n: vm.pop(0)
        if k == "mfma":
            c = i.meta["c"]; d = i.meta["d"]
            for r in i.meta["ab"]:
                if r in last_mfma_w and slot - last_mfma_w[r][0] - 1 < 8: err(i, f"MFMA D->SrcA/B {r} dist {slot-last_mfma_w[r][0]-1}<8")
                if r in last_valu_w and slot - last_valu_w[r] - 1 < 2: err(i, f"VALU->MFMA A/B {r} dist<2")
            if c is not None:
                for r in R(c[0], c[1], 4):
                    if r in last_valu_w and slot - last_valu_w[r] - 1 < 2: err(i, f"VALU->MFMA C {r} dist<2")
                    if r in last_mfma_w and last_mfma_w[r][1] != c and slot - last_mfma_w[r][0] - 1 < 6:
                        err(i, f"MFMA D->SrcC partial overlap {r}")
            for r in i.wr:
                if r in last_valu_w and slot - last_valu_w[r] - 1 < 2 and False: pass
        elif k in ("valu", "trans", "ds", "vld", "vst", "dma"):
            for r in (set(i.rd) | set(i.wr)):
                if r in last_mfma_w and slot - last_mfma_w[r][0] - 1 < 8:
                    err(i, f"MFMA D->{k} access {r} dist {slot-last_mfma_w[r][0]-1}<8")
            if k in ("valu", "trans"):
                for r in i.wr:
                    if r in last_mfma_c and slot - last_mfma_c[r] - 1 < 3: err(i, f"MFMA SrcC WAR {r} dist<3")
                    if r in last_store_data and slot - last_store_data[r] - 1 < 2: err(i, f"store data WAR {r} dist<2")
                if k == "valu" or k == "trans":
                    for r in i.rd:
                        if r in last_trans_w and slot - last_trans_w[r] - 1 < 1 and k == "valu": err(i, f"trans->valu {r} dist<1")
                if "permlane" in i.text or "dpp" in i.text or "row_" in i.text:
                    for r in i.rd:
                        if r in last_valu_w and slot - last_valu_w[r] - 1 < 2: err(i, f"VALU->permlane/dpp {r} dist<2")
                if "readfirstlane" in i.text or "readlane" in i.text:
                    for r in i.rd:
                        if r in last_valu_w and slot - last_valu_w[r] - 1 < 1: err(i, f"VALU->readlane {r} dist<1")
                for r in i.rd:
                    if (r.startswith("s") or r == "vcc") and r in last_valu_sgpr and slot - last_valu_sgpr[r] - 1 < 2:
                        err(i, f"VALU sgpr write->VALU read {r} dist<2")
            if k in ("vld", "vst", "dma"):
                for r in i.rd:
                    if r in last_valu_sgpr and slot - last_valu_sgpr[r] - 1 < 5: err(i, f"VALU sgpr->VMEM {r} dist<5")
            if k == "dma" and slot - last_salu_m0 - 1 < 1: err(i, "M0 write -> LDS DMA dist<1")
        if k == "mfma":
            for r in i.wr: last_mfma_w[r] = (slot, i.meta["d"]); last_valu_w.pop(r, None)
            if i.meta["c"] is not None:
                for r in R(i.meta["c"][0], i.meta["c"][1], 4): last_mfma_c[r] = slot
        elif k in ("valu", "trans"):
            for r in i.wr:
                if r.startswith("s") or r == "vcc": last_valu_sgpr[r] = slot
                else:
                    last_valu_w[r] = slot; last_mfma_w.pop(r, None)
                    if k == "trans": last_trans_w[r] = slot
                    else: last_trans_w.pop(r, None)
        elif k == "ds":
            lg.append(list(i.wr))
            if len(lg) > 15: err(i, "more than 15 LDS ops outstanding")
            for r in i.wr: last_mfma_w.pop(r, None); last_valu_w.pop(r, None)
        elif k == "vld":
            vm.append(list(i.wr))
            for r in i.wr: last_mfma_w.pop(r, None); last_valu_w.pop(r, None)
        elif k in ("dma", "vst"):
            vm.append([])
            if k == "vst" and len(i.meta["data"]) >= 3:
                for r in i.meta["data"]: last_store_data[r] = slot
        elif k == "salu":
            if "m0" in i.wr: last_salu_m0 = slot
        if len(vm) > 63: err(i, "more than 63 VMEM ops outstanding")
        slot += (i.meta["n"] + 1) if k == "nop" else 1
    if errs:
        raise HazardError("\n".join(errs[:40]) + f"\n({len(errs)} errors)")
    return lg, vm

def text(stream):
    return "\n".join((i.text if i.kind == "label" else "  " + i.text) for i in stream if not i.meta.get("pseudo"))
```

```python
import math, struct, sys
from core import *

NAME = "concat_heads__mha_block_cached__mha_block_cached__near_ridge"
def f32bits(x): return struct.unpack("<I", struct.pack("<f", x))[0]
CSC = math.log2(math.e) / 16.0

S_X, S_WQ, S_K, S_V, S_WO, S_WS, S_OUT = 4, 8, 12, 16, 20, 24, 28
S_W, S_W1K = 32, 33
S_QB = ["0", "s34", "s35", "s62"]
S_C = 63
S_KOFF, S_VOFF = 64, 65
S_LOOP = 66
S_T0, S_T1, S_T2, S_T3 = 67, 68, 69, 70
S_G, S_H, S_B, S_BR = 71, 72, 73, 74
S_WOFF = 76
S_PART = 77
S_WCUR, S_WSTEP, S_XSTEP = 78, 79, 75
S_FL, S_DBG = 36, 40
S_LOCM = 44
S_RBASE, S_SIG, S_POLL, S_XCC = 46, 47, 48, 49
S_RG = 56
S_SPIN = 62
S_ROT = 52
S_PFO = 53
S_RST, S_RLD, S_FPW, S_FPR, S_FCW, S_FCR = 60, 61, 75, 78, 79, 76
S_STAMP = 80
V_LANE = 0
V_KA = [4, 5]
V_VA = [6, 7, 8, 9]
V_DK, V_DV = 10, 11
V_L = 12
V_MC = 16
V_SP = 20
V_POOL = 32
V_S = 64
V_P = 96
V_Q = 128
V_XA = 20; V_DW = 21; V_WA = [[22, 23], [24, 25], [26, 27]]
V_CT = 28
V_ARR = 24
L_K = 0; L_V = 65536; L_X = 131072
def kslot(t): return L_K + 16384 * (t % 4)
def vslot(t): return L_V + 16384 * (t % 4)
LDS_BYTES = 163840

PART_BYTES = 16 * 7 * 16 * 16 * 2048
FLAG_BYTES = 16 * 7 * 4 * 64
STAMP_OFF = PART_BYTES + 32768
RING_OFF = PART_BYTES + (1 << 20)
RING_BYTES = 32 << 20
CONS_OFF = 16384
SPIN_MAX = 1 << 19
class Opt:
    kv_flags = "nt"
    w_flags = ""
    x_flags = ""
    wo_flags = ""
    st_flags = ""
    stamps = False
    vfirst = 0
    dma_stamps = False
    rot = 0
    pad_iter = 0
    last_st = ''
    out_flags = ''
    coopw = False
    coopw_init = 2
    pf_flags = ''
    early_wb = 0
    wt_flags = ''
    prod_delay = 0
    ring = 4
    vm_space = 0
    p3_drop = ''
    wo_step = 13
    cons_chk = 22
    wo_touch = (4, 5, 6)
    red_m = 200
    cons_poll = 50
    ld_min = 16
    stamp_skip = 'p1_first_data,pre_iter_end'
    p3detail = -1
    st_lag = 21
    force_fallback = False
    red_at = 60
    sig_lag = 28
    poll_lag = 22
    chk_lag = 22
    fused = True
    stream0 = False
    loop_nods = False
    loop_nomfma = False
    loop_novalu = False
    loop_nodma = False
    loop_dma_every = 1
    bar_stamps = False
    trip_stamps = False
    dma_mode = 'spread'
    dma_gaps = ([5, 21, 37, 53, 69, 85], [101, 117])
    nv_prev = 2
    stamp_fwd = -1
    stamp_dbg = -1
    x_rd_gap0 = 65
    x_rd_gap = 33
    p1_steps = False
    p1_drop = ''
    rev = True
    init_w = 2
    early_step = 2
    x_gap = 60
    p1_nowait = False
    p1_noread = False
    wring = 3
    kvpf = 'early'
    coopx = False
    init_more = 0
OPT = Opt()

def wait_tag(*tags): return I("s_waitcnt vmcnt(?)", "wait", vmtags=list(tags))
def tag(ins, t):
    ins.meta["tag"] = t; return ins
def resolve_vm(stream, queue):
    q = list(queue)
    for ins in stream:
        if ins.kind in ("dma", "vld", "vst"):
            q.append(ins.meta.get("tag", "?"))
        elif ins.kind == "wait":
            if "vmtags" in ins.meta:
                idx = [n for n, t in enumerate(q) if t in ins.meta["vmtags"]]
                n = len(q) - 1 - max(idx) if idx else len(q)
                n = min(n, 63)
                ins.text = f"s_waitcnt vmcnt({n})"; ins.meta["vm"] = n
            if "vm" in ins.meta:
                n = ins.meta["vm"]
                if len(q) > n: q = q[len(q) - n:] if n else []
    return q

_stamp_n = [0]
def stamp(name):
    if not OPT.stamps: return []
    if OPT.dma_stamps:
        if name == "loop_start": return [raw("s_memtime s[100:101]", "salu"), raw("s_waitcnt lgkmcnt(0)", "wait", lgkm=0)]
        if name == "loop_end": return [raw("s_memtime s[76:77]", "salu"), raw("s_waitcnt lgkmcnt(0)", "wait", lgkm=0), salu("s_sub_u32 s100, s76, s100")]
        return []
    if OPT.stamp_skip and name in OPT.stamp_skip.split(","): return []
    if OPT.p3detail >= 0 and not name.startswith("d_") and name not in ("rt_end",): return []
    if OPT.bar_stamps and name not in ("rt_ls", "rt_le", "loop_start", "loop_end", "rt_end"): return []
    n = _stamp_n[0]; _stamp_n[0] += 1
    STAMPS.append(name)
    op = "s_memrealtime" if name.startswith("rt") else "s_memtime"
    return [raw(f"{op} s[{S_STAMP+2*n}:{S_STAMP+2*n+1}]", "salu")]
STAMPS = []

def m0_set(base): return salu(f"s_add_u32 m0, s{S_W1K}, {base}", [f"s{S_W1K}"], ["m0"])

def dma_tile(kind, slot_base, soff, tg):
    voff, srd, fl = {"K": (V_DK, S_K, OPT.kv_flags), "V": (V_DV, S_V, OPT.kv_flags), "W": (V_DW, S_WQ, OPT.w_flags)}[kind]
    return [(m0_set(slot_base + dc * 3968), tag(dma(voff, srd, soff, dc * 128, fl), tg)) for dc in range(4)]

def setup():
    o = []; a = o.append
    a(salu("s_cmp_ge_u32 s2, 256")); a(raw("s_cbranch_scc1 L_end", "branch"))
    o += stamp("rt_start") + stamp("start")
    a(salu("s_load_dwordx16 s[36:51], s[0:1], 0")); a(salu("s_load_dwordx8 s[52:59], s[0:1], 64"))
    a(salu("s_load_dwordx2 s[60:61], s[0:1], 96"))
    a(valu("v_lshrrev_b32 v1, 6, v0", ["v0"], ["v1"]))
    a(valu(f"v_and_b32 v{V_LANE}, 63, v0", ["v0"], ["v0"]))
    a(valu(f"v_readfirstlane_b32 s{S_W}, v1", ["v1"], [f"s{S_W}"]))
    a(salu(f"s_and_b32 s{S_T0}, s2, 7")); a(salu(f"s_lshr_b32 s{S_T1}, s2, 3"))
    a(salu(f"s_and_b32 s{S_H}, s{S_T1}, 15")); a(salu(f"s_lshr_b32 s{S_T1}, s{S_T1}, 4"))
    a(salu(f"s_lshl_b32 s{S_G}, s{S_T0}, 1")); a(salu(f"s_add_u32 s{S_G}, s{S_G}, s{S_T1}"))
    a(salu(f"s_lshr_b32 s{S_BR}, s{S_G}, 3")); a(salu(f"s_and_b32 s{S_B}, s{S_G}, 7"))
    a(salu(f"s_lshl_b32 s{S_W1K}, s{S_W}, 10"))
    if OPT.rot:
        a(salu(f"s_and_b32 s{S_T0}, s2, 7")); a(salu(f"s_mul_i32 s{S_T0}, s{S_T0}, {OPT.rot}")); a(salu(f"s_lshr_b32 s{S_T1}, s2, 3"))
        a(salu(f"s_add_u32 s{S_T0}, s{S_T0}, s{S_T1}")); a(salu(f"s_and_b32 s{S_T0}, s{S_T0}, 31")); a(salu(f"s_lshl_b32 s33, s{S_T0}, 14") if False else salu(f"s_lshl_b32 s{S_T3}, s{S_T0}, 14"))
    a(salu(f"s_mov_b32 s{S_C}, 0x{f32bits(CSC):08x}"))
    L = f"v{V_LANE}"
    def vv(t, rd, wr): a(valu(t, rd, wr))
    vv(f"v_and_b32 v1, 15, {L}", [L], ["v1"]); vv(f"v_lshrrev_b32 v2, 4, {L}", [L], ["v2"])
    vv("v_lshrrev_b32 v3, 1, v1", ["v1"], ["v3"])
    for sp in range(2):
        r = V_KA[sp]
        vv(f"v_add_u32 v{r}, {4*sp}, v2", ["v2"], [f"v{r}"])
        vv(f"v_xor_b32 v{r}, v{r}, v3", [f"v{r}", "v3"], [f"v{r}"])
        vv(f"v_lshlrev_b32 v{r}, 4, v{r}", [f"v{r}"], [f"v{r}"])
        vv(f"v_lshl_add_u32 v{r}, v1, 7, v{r}", ["v1", f"v{r}"], [f"v{r}"])
    vv(f"v_bfe_u32 v28, {L}, 2, 2", [L], ["v28"]); vv(f"v_and_b32 v29, 3, {L}", [L], ["v29"])
    vv("v_lshl_add_u32 v30, v2, 2, v28", ["v2", "v28"], ["v30"])
    vv("v_bfe_u32 v31, v30, 1, 2", ["v30"], ["v31"])
    for p in range(4):
        r = V_VA[p]
        vv(f"v_xor_b32 v{r}, {p}, v31", ["v31"], [f"v{r}"])
        vv(f"v_lshlrev_b32 v{r}, 5, v{r}", [f"v{r}"], [f"v{r}"])
        vv(f"v_lshl_add_u32 v{r}, v30, 7, v{r}", ["v30", f"v{r}"], [f"v{r}"])
        vv(f"v_lshl_add_u32 v{r}, v29, 3, v{r}", ["v29", f"v{r}"], [f"v{r}"])
        vv(f"v_add_u32 v{r}, {L_V}, v{r}", [f"v{r}"], [f"v{r}"])
    vv("v_lshl_add_u32 v30, v2, 3, v28", ["v2", "v28"], ["v30"])
    vv("v_lshrrev_b32 v31, 1, v28", ["v28"], ["v31"])
    for sp in range(2):
        r = V_WA[0][sp]
        vv(f"v_xor_b32 v{r}, {sp}, v31", ["v31"], [f"v{r}"])
        vv(f"v_lshl_add_u32 v{r}, v{r}, 2, v29", [f"v{r}", "v29"], [f"v{r}"])
        vv(f"v_lshlrev_b32 v{r}, 4, v{r}", [f"v{r}"], [f"v{r}"])
        vv(f"v_lshl_add_u32 v{r}, v30, 7, v{r}", ["v30", f"v{r}"], [f"v{r}"])
        for win in (1, 2):
            vv(f"v_add_u32 v{V_WA[win][sp]}, {65536*win}, v{r}", [f"v{r}"], [f"v{V_WA[win][sp]}"])
    vv(f"v_lshrrev_b32 v1, 3, {L}", [L], ["v1"]); vv(f"v_and_b32 v2, 7, {L}", [L], ["v2"])
    vv(f"v_lshl_add_u32 v3, s{S_W}, 3, v1", ["v1", f"s{S_W}"], ["v3"])
    vv("v_bfe_u32 v28, v3, 1, 3", ["v3"], ["v28"]); vv("v_xor_b32 v28, v28, v2", ["v28", "v2"], ["v28"])
    vv("v_lshlrev_b32 v28, 4, v28", ["v28"], ["v28"]); vv(f"v_lshl_add_u32 v{V_DK}, v3, 9, v28", ["v3", "v28"], [f"v{V_DK}"])
    vv("v_bfe_u32 v28, v3, 1, 2", ["v3"], ["v28"]); vv("v_lshlrev_b32 v28, 1, v28", ["v28"], ["v28"])
    vv("v_xor_b32 v28, v28, v2", ["v28", "v2"], ["v28"]); vv("v_lshlrev_b32 v28, 4, v28", ["v28"], ["v28"])
    vv(f"v_lshl_add_u32 v{V_DV}, v3, 9, v28", ["v3", "v28"], [f"v{V_DV}"])
    vv("v_bfe_u32 v28, v3, 1, 1", ["v3"], ["v28"]); vv("v_lshlrev_b32 v28, 2, v28", ["v28"], ["v28"])
    vv("v_xor_b32 v28, v28, v2", ["v28", "v2"], ["v28"]); vv("v_lshlrev_b32 v28, 4, v28", ["v28"], ["v28"])
    vv(f"v_lshl_add_u32 v{V_DW}, v3, 13, v28", ["v3", "v28"], [f"v{V_DW}"])
    a(raw("s_waitcnt lgkmcnt(0)", "wait", lgkm=0))
    a(salu(f"s_cmp_eq_u32 s{S_BR}, 0"))
    for i in range(10): a(salu(f"s_cselect_b32 s{36+i}, s{36+i}, s{46+i}"))
    if OPT.rot: a(salu(f"s_mov_b32 s{S_ROT}, s{S_T3}"))
    def srd(base, lo, hi, offs, size):
        if offs is None:
            a(salu(f"s_mov_b32 s{base}, s{lo}")); a(salu(f"s_mov_b32 s{base+1}, s{hi}"))
        else:
            a(salu(f"s_add_u32 s{base}, s{lo}, {offs}")); a(salu(f"s_addc_u32 s{base+1}, s{hi}, 0"))
        a(salu(f"s_mov_b32 s{base+2}, {size}")); a(salu(f"s_mov_b32 s{base+3}, 0x20000"))
    a(salu(f"s_mul_i32 s{S_T0}, s{S_B}, 229376")); srd(S_X, 36, 37, f"s{S_T0}", 229376)
    a(salu(f"s_lshl_b32 s{S_T0}, s{S_H}, 9")); srd(S_WQ, 42, 43, f"s{S_T0}", 0)
    a(salu(f"s_sub_u32 s{S_WQ+2}, {448*8192}, s{S_T0}"))
    a(salu(f"s_lshl_b32 s{S_T0}, s{S_B}, 4")); a(salu(f"s_add_u32 s{S_T0}, s{S_T0}, s{S_H}"))
    a(salu(f"s_lshl_b32 s{S_T0}, s{S_T0}, 19"))
    srd(S_K, 38, 39, f"s{S_T0}", 524288); srd(S_V, 40, 41, f"s{S_T0}", 524288)
    a(salu(f"s_mul_i32 s{S_T0}, s{S_H}, 229376")); srd(S_WO, 44, 45, f"s{S_T0}", 229376)
    srd(S_WS, 60, 61, None, 16 * 7 * 16 * 16 * 2048)
    srd(S_OUT, 56, 57, None, 8 * 256 * 896 * 2)
    if OPT.fused:
        srd(S_DBG, 58, 59, None, 256)
        a(salu(f"s_mov_b32 s{S_T0}, {PART_BYTES}")); srd(S_FL, 60, 61, f"s{S_T0}", 32768)
        a(salu(f"s_mov_b32 s{S_T0}, {RING_OFF}")); a(salu(f"s_add_u32 s54, s60, s{S_T0}")); a(salu("s_addc_u32 s55, s61, 0"))
        a(salu(f"s_mov_b32 s{S_RG}, s54")); a(salu(f"s_mov_b32 s{S_RG+1}, s55")); a(salu(f"s_mov_b32 s{S_RG+2}, {RING_BYTES}")); a(salu(f"s_mov_b32 s{S_RG+3}, 0x20000"))
        a(salu(f"s_getreg_b32 s{S_XCC}, hwreg(HW_REG_XCC_ID, 0, 3)"))
        a(salu(f"s_lshl_b32 s{S_SIG}, s{S_G}, 4")); a(salu(f"s_add_u32 s{S_SIG}, s{S_SIG}, s{S_H}"))
        a(salu(f"s_mul_i32 s{S_T0}, s{S_G}, {14*64}"))
        a(salu(f"s_lshl_b32 s{S_T1}, s{S_W}, 4")); a(salu(f"s_add_u32 s{S_T1}, s{S_T1}, s{S_H}")); a(salu(f"s_add_u32 s50, s{S_T0}, s{S_T1}"))
        a(salu(f"s_lshl_b32 s{S_T1}, s{S_H}, 2")); a(salu(f"s_add_u32 s{S_T1}, s{S_T1}, s{S_W}")); a(salu(f"s_add_u32 s51, s{S_T0}, s{S_T1}"))
        a(salu(f"s_add_u32 s51, s51, {CONS_OFF}"))
        a(valu(f"v_min_u32 v1, 13, v{V_LANE}", [f"v{V_LANE}"], ["v1"])); a(valu("v_lshlrev_b32 v1, 6, v1", ["v1"], ["v1"]))
        a(valu("v_mov_b32 v2, 0", [], ["v2"]))
        for sr in ("s50", "s51"):
            a(tag(I(f"buffer_store_byte v2, v1, s[{S_FL}:{S_FL+3}], {sr} offen", "vst", ["v1", "v2"], data=["v2"]), "reset"))
    return o

def add_lgkm_waits(g, cons, carried):
    seq = [(-1, regs) for regs in carried]
    for k in range(g.n):
        if g.mem[k] is not None and g.mem[k].kind == "ds": seq.append((k, g.mem[k].wr))
    lead = None
    for k, regs in cons:
        late = [n for n, (gap, w) in enumerate(seq) if gap == k - 1 and gap >= 0 and set(w) & set(regs)]
        assert not late, f"DS for MFMA {k} issued in gap {k-1}"
        idx = [n for n, (gap, w) in enumerate(seq) if gap < max(k - 1, 0) and set(w) & set(regs)]
        if not idx: continue
        last = max(idx)
        after = sum(1 for n, (gap, w) in enumerate(seq) if n > last and gap < max(k - 1, 0))
        assert after <= 15, (k, after)
        if k == 0: lead = wait_lgkm(after)
        else: g.pre[k - 1].insert(0, wait_lgkm(after))
    out = len(carried)
    if lead is not None: out = min(out, lead.meta["lgkm"])
    for k in range(g.n):
        for x in g.pre[k]:
            if "lgkm" in x.meta: out = min(out, x.meta["lgkm"])
        if g.mem[k] is not None and g.mem[k].kind == "ds":
            if out >= 14:
                assert len(g.pre[k]) == 0, k
                g.pre[k].append(wait_lgkm(8)); out = 8
            out += 1
    return lead

def place_vmem(g, gap, scalars, d, hi=None, stack=False, space=False):
    k = max(gap, 1 if stack else len(scalars))
    hi = g.n if hi is None else hi
    isdma = lambda x: x is not None and x.kind == "dma"
    while True:
        assert k < hi, f"no gap for {d.text}"
        near = OPT.vm_space and any(0 <= k + dd < g.n and dd != 0 and g.mem[k + dd] is not None and g.mem[k + dd].kind in ("vst", "vld", "dma")
                                    for dd in range(-OPT.vm_space, OPT.vm_space + 1))
        if g.mem[k] is None and not g.vec[k] and len(g.pre[k]) <= 1 and not (near and space):
            if stack:
                if not isdma(g.mem[k - 1]) and len(g.pre[k - 1]) + len(scalars) <= 3 and not any(x.kind == "barrier" for x in g.pre[k - 1]): break
            elif all(not g.pre[k - 1 - n] and not isdma(g.mem[k - 1 - n]) for n in range(len(scalars))): break
        k += 1
    if stack:
        for sc in scalars: g.put_pre(k - 1, sc)
    else:
        for n, sc in enumerate(scalars): g.put_pre(k - len(scalars) + n, sc)
    g.put_mem(k, d)
    return k

def put_scalar(g, gap, *ins):
    k = gap
    while g.pre[k]: k += 1
    g.pre[k] = list(ins)
    return k

def place_chain(g, ops, lo, hi):
    left = []
    for ins in ops:
        k = g.place_vec(ins, lo, hi) if (not left and lo < hi) else None
        if k is None: left.append(ins)
        else: lo = k + 1 if ins.kind == "trans" else k
    return lo, left

class Op:
    def __init__(self, ins, rel, dl, preds=()):
        self.ins = ins; self.rel = rel; self.dl = dl; self.preds = list(preds); self.gap = None

def list_schedule(g, ops, lo=0, hi=None):
    hi = g.n if hi is None else hi
    todo = list(ops)
    for k in range(lo, hi):
        while True:
            free = g.free_vec(k)
            if free <= 0: break
            ready = [x for x in todo if x.rel <= k and all(p.gap is not None and p.gap + d <= k for p, d in x.preds)]
            tr = [x for x in ready if x.ins.kind == "trans"]
            pl = [x for x in ready if x.ins.kind != "trans"]
            pick = None
            can_tr = free == 2 and g.mem[k] is None and not g.vec[k]
            if can_tr and tr: pick = min(tr, key=lambda x: x.dl)
            if pl:
                best = min(pl, key=lambda x: x.dl)
                if pick is None or (best.dl + 6 < pick.dl): pick = best
            if pick is None: break
            g.vec[k].append(pick.ins); pick.gap = k; todo.remove(pick)
    late = [x for x in ops if x.gap is not None and x.gap > x.dl]
    assert not late, [(x.ins.text, x.gap, x.dl) for x in late]
    return todo

def sm_ops(tile, kb, qb, rel, dl):
    i = sm_group(tile, kb, qb)
    f = [Op(i[0], rel, dl - 6), Op(i[1], rel, dl - 6), Op(i[4], rel, dl - 5), Op(i[5], rel, dl - 5)]
    x = [Op(i[2], rel, dl - 4, [(f[0], 1)]), Op(i[3], rel, dl - 4, [(f[1], 1)]), Op(i[6], rel, dl - 3, [(f[2], 1)]), Op(i[7], rel, dl - 3, [(f[3], 1)])]
    ad = [Op(i[8], rel, dl, [(x[0], 1)]), Op(i[9], rel, dl, [(x[1], 1)]), Op(i[11], rel, dl, [(x[2], 1)]), Op(i[12], rel, dl, [(x[3], 1)])]
    cv = [Op(i[10], rel, dl, [(x[0], 1), (x[1], 1)]), Op(i[13], rel, dl, [(x[2], 1), (x[3], 1)])]
    return f + x + ad + cv

def exposed(ops):
    o = []
    for n, ins in enumerate(ops):
        o.append(ins)
        if ins.kind == "trans" and n + 1 < len(ops) and ops[n + 1].kind != "trans": o.append(nop(0))
    return o

def conv_ops(acc, d, t):
    return [valu(f"v_accvgpr_read_b32 v{d}, a{acc}", [f"a{acc}"], [f"v{d}"]),
            valu(f"v_accvgpr_read_b32 v{t}, a{acc+1}", [f"a{acc+1}"], [f"v{t}"]),
            valu(f"v_accvgpr_read_b32 v{d+1}, a{acc+2}", [f"a{acc+2}"], [f"v{d+1}"]),
            valu(f"v_accvgpr_read_b32 v{t+1}, a{acc+3}", [f"a{acc+3}"], [f"v{t+1}"]),
            valu(f"v_cvt_pk_bf16_f32 v{d}, v{d}, v{t}", [f"v{d}", f"v{t}"], [f"v{d}"]),
            valu(f"v_cvt_pk_bf16_f32 v{d+1}, v{d+1}, v{t+1}", [f"v{d+1}", f"v{t+1}"], [f"v{d+1}"])]

def xlane_reduce(regs, op, tmp):
    o = []
    for swap in ("v_permlane32_swap_b32", "v_permlane16_swap_b32"):
        for n, r in enumerate(regs): o.append(valu(f"v_mov_b32 v{tmp+n}, v{r}", [f"v{r}"], [f"v{tmp+n}"]))
        o.append(nop(1))
        for n, r in enumerate(regs):
            o.append(valu(f"{swap} v{r}, v{tmp+n}", [f"v{r}", f"v{tmp+n}"], [f"v{r}", f"v{tmp+n}"]))
        o.append(nop(1))
        for n, r in enumerate(regs):
            o.append(valu(f"{op} v{r}, v{r}, v{tmp+n}", [f"v{r}", f"v{tmp+n}"], [f"v{r}"]))
    return o

def wpairs(): return [(L_X, L_X + 16384), (vslot(1), kslot(3)), (vslot(2), vslot(3))]
def wslot(tile):
    p = wpairs(); return p[(tile // 2) % len(p)][tile % 2]
XBUF = [V_S, V_P]
def xfrag(qb, cs): return XBUF[(cs // 2) & 1] + ((cs % 2) * 4 + qb) * 4
V_XD = [128, 129]
V_XR = [130, 131]
S_XB = 34
S_XCUR = 35
def x_setup():
    o = []; a = o.append
    L = f"v{V_LANE}"
    a(salu(f"s_and_b32 s{S_T1}, s{S_W}, 1")); a(salu(f"s_lshl_b32 s{S_T1}, s{S_T1}, 13"))
    a(salu(f"s_cmp_lt_u32 s{S_W}, 2")); a(salu(f"s_cselect_b32 s{S_XB}, 2, 4")); a(salu(f"s_lshl_b32 s{S_XB}, s{S_XB}, 14"))
    a(salu(f"s_add_u32 s{S_XB}, s{S_XB}, s{S_T1}"))
    assert kslot(2) == 2 << 14 and vslot(0) == 4 << 14
    a(valu(f"v_lshrrev_b32 v1, 3, {L}", [L], ["v1"])); a(valu(f"v_and_b32 v2, 7, {L}", [L], ["v2"]))
    a(valu(f"v_lshl_add_u32 v3, s{S_W}, 6, v1", ["v1", f"s{S_W}"], ["v3"]))
    a(valu("v_mul_u32_u24 v3, 896, v3", ["v3"], ["v3"]))
    a(valu("v_lshrrev_b32 v1, 1, v1", ["v1"], ["v1"]))
    for par in range(2):
        r = V_XD[par]
        a(valu(f"v_or_b32 v{r}, {4*par}, v1", ["v1"], [f"v{r}"]))
        a(valu(f"v_xor_b32 v{r}, v{r}, v2", [f"v{r}", "v2"], [f"v{r}"]))
        a(valu(f"v_lshl_add_u32 v{r}, v{r}, 4, v3", [f"v{r}", "v3"], [f"v{r}"]))
        a(valu(f"v_add_u32 v{V_XR[par]}, s{S_XB}, v{V_KA[par]}", [f"v{V_KA[par]}"], [f"v{V_XR[par]}"]))
    return o
def x_items(j):
    out = []
    for i in range(8):
        sreg = S_T2 + (i & 1)
        sc = []
        if i == 0 and j > 0: sc.append(salu(f"s_add_u32 s{S_XCUR}, s{S_XCUR}, s{S_XSTEP}", [f"s{S_XCUR}"], [f"s{S_XCUR}"]))
        sc.append(salu(f"s_add_u32 s{sreg}, s{S_XCUR}, {i*7168}", [f"s{S_XCUR}"], [f"s{sreg}"]))
        sc.append(salu(f"s_add_u32 m0, s{S_XB}, {i*1024}", [f"s{S_XB}"], ["m0"]))
        out.append((sc, tag(dma(V_XD[i & 1], S_X, f"s{sreg}", 0, OPT.x_flags), f"x{j}")))
    return out
def x_read(qb, cs): return ds_read128("v", xfrag(qb, cs), V_XR[cs & 1], qb * 2048)
def w_read(dbp, cs, jj):
    s, e = dbp >> 1, dbp & 1
    base = wslot(cs); win = base // 65536
    off = base - win * 65536 + (s >> 1) * 4096 + jj * 512 + e * 8
    return ds_read_tr("v", V_POOL + 4 * ((2 * dbp + (cs & 1)) % 8) + 2 * jj, V_WA[win][s & 1], off)

V_PF = 28
def coop_setup():
    o = []; a = o.append
    a(salu(f"s_mul_i32 s{S_T1}, s{S_H}, {112*128}"))
    a(salu(f"s_lshl_b32 s{S_T2}, s{S_W}, 12")); a(salu(f"s_add_u32 s{S_T1}, s{S_T1}, s{S_T2}"))
    a(valu(f"v_and_b32 v{V_PF}, 31, v{V_LANE}", [f"v{V_LANE}"], [f"v{V_PF}"]))
    a(valu(f"v_lshlrev_b32 v{V_PF}, 7, v{V_PF}", [f"v{V_PF}"], [f"v{V_PF}"]))
    a(valu(f"v_add_u32 v{V_PF}, s{S_T1}, v{V_PF}", [f"v{V_PF}"], [f"v{V_PF}"]))
    return o
def coop_x():
    return [tag(bload(V_PF + 1, 1, V_PF, S_X, "0", 0, OPT.pf_flags), "pf")]

V_PFW = 132
def coop_w_setup():
    o = []; a = o.append
    L = f"v{V_LANE}"
    a(salu(f"s_lshr_b32 s{S_T1}, s2, 7")); a(salu(f"s_and_b32 s{S_T1}, s{S_T1}, 1")); a(salu(f"s_lshl_b32 s{S_T1}, s{S_T1}, 5"))
    a(salu(f"s_lshl_b32 s{S_T2}, s{S_W}, 3")); a(salu(f"s_add_u32 s{S_T1}, s{S_T1}, s{S_T2}"))
    a(valu(f"v_bfe_u32 v{V_PFW}, {L}, 2, 3", [L], [f"v{V_PFW}"])); a(valu(f"v_add_u32 v{V_PFW}, s{S_T1}, v{V_PFW}", [f"v{V_PFW}"], [f"v{V_PFW}"]))
    a(valu(f"v_lshlrev_b32 v{V_PFW}, 13, v{V_PFW}", [f"v{V_PFW}"], [f"v{V_PFW}"]))
    a(valu(f"v_and_b32 v{V_PFW+1}, 3, {L}", [L], [f"v{V_PFW+1}"]))
    a(valu(f"v_lshl_add_u32 v{V_PFW}, v{V_PFW+1}, 7, v{V_PFW}", [f"v{V_PFW}", f"v{V_PFW+1}"], [f"v{V_PFW}"]))
    return o
def coop_w(j):
    return [salu(f"s_mov_b32 s{S_PFO}, {j*524288}", [], [f"s{S_PFO}"])], tag(bload(V_PFW + 1, 1, V_PFW, S_WQ, f"s{S_PFO}", 0, OPT.pf_flags), "pf")
OOL = []
def kv_off(reg, t):
    if not OPT.rot: return [salu(f"s_mov_b32 s{reg}, {t*16384}", [], [f"s{reg}"])]
    return [salu(f"s_add_u32 s{reg}, s{S_ROT}, {t*16384}", [f"s{S_ROT}"], [f"s{reg}"]), salu(f"s_and_b32 s{reg}, s{reg}, 0x7ffff", [f"s{reg}"], [f"s{reg}"])]
def phase1():
    o = []; a = o.append
    NP = 3
    a(salu(f"s_lshr_b32 s{S_T1}, s2, 7")); a(salu(f"s_and_b32 s{S_T1}, s{S_T1}, {1 if OPT.rev else 0}"))
    a(salu(f"s_cmp_eq_u32 s{S_T1}, 0"))
    a(salu(f"s_cselect_b32 s{S_WCUR}, 0, {6*524288}")); a(salu(f"s_cselect_b32 s{S_T2}, 1, -1"))
    a(salu(f"s_cselect_b32 s{S_XCUR}, 0, 768"))
    a(salu(f"s_mul_i32 s{S_WSTEP}, s{S_T2}, 524288")); a(salu(f"s_mul_i32 s{S_XSTEP}, s{S_T2}, 128"))
    o += x_setup()
    if OPT.coopx: o += coop_setup() + coop_x()
    if OPT.coopw:
        o += coop_w_setup()
        for j in range(OPT.coopw_init):
            sc, d = coop_w(j); o += sc + [d]
    def w_items(j):
        out = []
        for par in range(2):
            sreg = S_WCUR if par == 0 else S_WOFF
            for m, (m0, d) in enumerate(dma_tile("W", wslot(2 * j + par), f"s{sreg}", f"W{j}")):
                sc = [m0]
                if m == 0 and par == 0 and j > 0: sc = [salu(f"s_add_u32 s{S_WCUR}, s{S_WCUR}, s{S_WSTEP}", [f"s{S_WCUR}"], [f"s{S_WCUR}"]), m0]
                if m == 0 and par == 1: sc = [salu(f"s_add_u32 s{S_WOFF}, s{S_WCUR}, 262144", [f"s{S_WCUR}"], [f"s{S_WOFF}"]), m0]
                out.append((sc, d))
        return out
    def kv_items(kind, t):
        out = []
        for m, (m0, d) in enumerate(dma_tile(kind, kslot(t) if kind == "K" else vslot(t), f"s{S_T0}", f"{kind}{t}")):
            out.append((kv_off(S_T0, t) + [m0] if m == 0 else [m0], d))
        return out
    def now(items):
        for sc, d in items:
            o.extend(sc); a(nop(0)); a(d)
    w0 = w_items(0)
    for sc, d in w0[4:]: d.meta["tag"] = "W0b"
    now(x_items(0)); now(w0[:4]); now(w0[4:])
    if OPT.coopw:
        for j in range(OPT.coopw_init, 3):
            sc, d = coop_w(j); o += sc + [d]
    a(wait_tag("x0"))
    xr = [x_read(qb, cs) for cs in (0, 1) for qb in range(4)]
    o += xr
    a(wait_tag("W0")); a(barrier())
    if OPT.fused:
        a(salu(f"s_or_b32 s{S_T0}, s{S_XCC}, 0x80")); a(valu(f"v_mov_b32 v1, s{S_T0}", [], ["v1"])); a(valu("v_mov_b32 v2, 0", [], ["v2"]))
        a(tag(I(f"buffer_store_byte v1, v2, s[{S_DBG}:{S_DBG+3}], s{S_SIG} offen", "vst", ["v1", "v2"], data=["v1"]), "arr"))
    o += stamp("p1_first_data")
    def quad0(n): return V_POOL + 4 * (n % 8)
    def w_read0(n, jj):
        dbp, cs = n % 16, n // 16
        r = w_read(dbp, cs, jj)
        return ds_read_tr("v", quad0(n) + 2 * jj, int(r.rd[0][1:]), int(r.text.split("offset:")[1]))
    carried = [x.wr for x in xr]
    for n in range(3):
        for jj in range(2):
            r = w_read0(n, jj); a(r); carried.append(r.wr)
    early = {j: [] for j in range(7)}; after = {j: [] for j in range(7)}
    early[0] += w_items(1); early[1] += w_items(2)
    for j in range(NP, 7): after[j - NP + 1] += w_items(j)
    K = lambda t: kv_items("K", t)
    V = lambda t: kv_items("V", t)
    kv = {"early": {1: K(0), 2: K(1)}, "mid": {2: K(0), 3: K(1)}, "late": {3: K(0), 4: K(1)}}[OPT.kvpf]
    for j, l in kv.items(): early[j] += l
    after[5] += V(0)
    early[6] += K(2) + V(1) + K(3)
    after[6] += V(2)
    for j in range(7):
        ms = []
        if j == 0:
            for n in range(32):
                for qb in range(4):
                    acc = ((n % 16) * 4 + qb) * 4
                    first = n < 16
                    ms.append(mfma("a", acc, "v", quad0(n), "v", xfrag(qb, n // 16), None if first else "a", None if first else acc))
        else:
            for dbp in range(16):
                for qb in range(4):
                    for e2 in range(2):
                        acc = (dbp * 4 + qb) * 4
                        ms.append(mfma("a", acc, "v", V_POOL + 4 * ((2 * dbp + e2) % 8), "v", xfrag(qb, 2 * j + e2), "a", acc))
        g = Gaps(ms)
        if j == 0:
            for n in range(3, 32):
                for jj in range(2): g.put_mem(4 * n - 12 + 2 * jj, w_read0(n, jj))
        else:
            for dbp in range(3, 16):
                for n, (cs, jj) in enumerate([(2*j, 0), (2*j, 1), (2*j+1, 0), (2*j+1, 1)]):
                    g.put_mem(8 * dbp - 24 + 2 * n, w_read(dbp, cs, jj))
        nxt = []
        if j < 6:
            for dbp in range(3):
                for n, (cs, jj) in enumerate([(2*j+2, 0), (2*j+2, 1), (2*j+3, 0), (2*j+3, 1)]):
                    r = w_read(dbp, cs, jj); g.put_mem(104 + (1 if j == 0 else 0) + 8 * dbp + 2 * n, r); nxt.append(r.wr)
        XG = OPT.x_rd_gap if j > 0 else OPT.x_rd_gap0
        xreads = []
        if j < 6:
            for n, (cs, qb) in enumerate([(cs, qb) for cs in (2*j+2, 2*j+3) for qb in range(4)]):
                r = x_read(qb, cs); g.put_mem(XG + 2 * n, r); xreads.append(r)
        if j == 0:
            cons = [(4 * n, R("v", quad0(n), 4) + (R("v", V_S, 32) if n == 0 else [])) for n in range(32)]
        else:
            cons = [(8 * dbp, R("v", V_POOL + 4 * ((2 * dbp) % 8), 8)) for dbp in range(16)]
        if j < 6: cons.append((XG + 24, [w for r in xreads for w in r.wr]))
        cons.sort()
        lead = add_lgkm_waits(g, cons, carried)
        if j < 6:
            k = XG - 2
            while g.pre[k]: k -= 1
            g.pre[k] = [wait_tag(f"x{j+1}")]
        tags = [f"W{j+1}"] if j < 6 else ["K0"]
        k = 100
        while g.pre[k]: k -= 1
        g.pre[k] = [wait_tag(*tags), barrier()] if not OPT.p1_nowait else [barrier()]
        kb = k
        gp = 1
        if OPT.coopw and j + 3 <= 6:
            sc, d = coop_w(j + 3); gp = place_vmem(g, 2, sc, d, kb) + 1
        if j == 0:
            for sc, d in x_items(1): gp = place_vmem(g, gp, sc, d, XG - 3, stack=True) + 2
            k = 48
            while g.pre[k]: k -= 1
            g.pre[k] = [wait_tag("W0b"), barrier()]
            assert k < 52
        for sc, d in early[j]: gp = place_vmem(g, gp + len(sc) - 1, sc, d, kb) + (OPT.early_step if j != 6 else 7)
        if j < 5:
            gx = max(XG + 25, gp)
            for sc, d in x_items(j + 2): gx = place_vmem(g, gx, sc, d, stack=True) + 2
            gpa = max(kb + 2, gx)
        else: gpa = kb + 2
        for sc, d in after[j]: gpa = place_vmem(g, gpa, sc, d, stack=True) + 1
        left = []
        if j == 6:
            for dbp in range(16):
                for qb in range(4):
                    ops = conv_ops((dbp * 4 + qb) * 4, V_Q + (qb * 8 + (dbp >> 1)) * 4 + 2 * (dbp & 1), V_CT + 2 * (qb & 1))
                    if left: left += ops
                    else:
                        _, l2 = place_chain(g, ops, 8 * dbp + 2 * qb + 1 + 5, 128); left += l2
        if lead is not None: a(lead)
        em = g.emit()
        if OPT.p1_drop:
            def keep(x):
                if x.kind in ("dma", "vld"):
                    t = x.meta.get("tag", "")
                    for c in OPT.p1_drop:
                        if t.startswith(c): return False
                return True
            em = [x for x in em if keep(x)]
        if OPT.p1_noread: em = [x for x in em if x.kind != "ds" and not (x.kind == "wait" and "lgkm" in x.meta)]
        o += em
        carried = nxt
        if OPT.p1_steps: o += stamp(f"step{j}")
        if left: a(nop(7)); o += left
    if not OPT.p1_steps: o += stamp("p1_end")
    return o

def k_read(t, kb, s):
    return ds_read128("v", V_POOL + 4 * s, V_KA[s & 1], (kslot(t) - L_K) + (s >> 1) * 4096 + kb * 2048)
def v_read(t, db, jj):
    return ds_read_tr("v", V_POOL + 4 * (db % 8) + 2 * jj, V_VA[db & 3], (vslot(t) - L_V) + (db >> 2) * 4096 + jj * 2048)
def Sreg(kb, qb): return V_S + (kb * 4 + qb) * 4
def Preg(buf, qb): return V_P + buf * 16 + qb * 4
def qk_mfmas():
    ms = []
    for i in range(64):
        kb, sp, qb, e = i >> 5, (i >> 3) & 3, (i >> 1) & 3, i & 1
        s = 2 * sp + e; d = Sreg(kb, qb)
        ms.append(mfma("v", d, "v", V_POOL + 4 * s, "v", V_Q + (qb * 8 + s) * 4, None if s == 0 else "v", None if s == 0 else d))
    return ms
def pv_mfmas(t, first):
    ms = []
    for i in range(64):
        db, qb = i >> 2, i & 3
        acc = (db * 4 + qb) * 4
        ms.append(mfma("a", acc, "v", V_POOL + 4 * (db % 8), "v", Preg(t & 1, qb), None if first else "a", None if first else acc))
    return ms
def sm_group(tile, kb, qb):
    s = Sreg(kb, qb); p = Preg(tile & 1, qb) + 2 * kb; mc = V_MC + qb; l = V_L + qb
    f = lambda r: valu(f"v_fma_f32 v{s+r}, v{s+r}, s{S_C}, v{mc}", [f"v{s+r}", f"v{mc}", f"s{S_C}"], [f"v{s+r}"])
    x = lambda r: trans(f"v_exp_f32 v{s+r}, v{s+r}", [f"v{s+r}"], [f"v{s+r}"])
    ad = lambda r: valu(f"v_add_f32 v{l}, v{l}, v{s+r}", [f"v{l}", f"v{s+r}"], [f"v{l}"])
    cv = lambda r: valu(f"v_cvt_pk_bf16_f32 v{p+r//2}, v{s+r}, v{s+r+1}", [f"v{s+r}", f"v{s+r+1}"], [f"v{p+r//2}"])
    return [f(0), f(1), x(0), x(1), f(2), f(3), x(2), x(3), ad(0), ad(1), cv(0), ad(2), ad(3), cv(2)]

def pre_iter():
    o = []; a = o.append
    carried = []
    for s in range(8):
        r = k_read(0, 0, s); a(r); carried.append(r.wr)
    g = Gaps(qk_mfmas())
    for s in range(8): g.put_mem(8 * (s >> 1) + 10 + 4 * (s & 1), k_read(0, 1, s))
    cons = [(8 * p, R("v", V_POOL + 8 * (p % 4), 8)) for p in range(8)]
    a(add_lgkm_waits(g, cons, carried)); o += g.emit()
    a(wait_tag("K1", "V0")); a(barrier())
    o += kv_off(S_KOFF, 4)
    for m0, d in dma_tile("K", kslot(4), f"s{S_KOFF}", "K4"): a(m0); a(nop(0)); a(d)
    o += kv_off(S_KOFF, 5) + kv_off(S_VOFF, 3)
    carried = []
    for s in range(8):
        r = k_read(1, 0, s); a(r); carried.append(r.wr)
    for qb in range(4):
        m = V_MC + qb; s0 = Sreg(0, qb); s1 = Sreg(1, qb)
        a(valu(f"v_max3_f32 v{m}, v{s0}, v{s0+1}, v{s0+2}", R("v", s0, 3), [f"v{m}"]))
        a(valu(f"v_max3_f32 v{m}, v{m}, v{s0+3}, v{s1}", [f"v{m}", f"v{s0+3}", f"v{s1}"], [f"v{m}"]))
        a(valu(f"v_max3_f32 v{m}, v{m}, v{s1+1}, v{s1+2}", [f"v{m}", f"v{s1+1}", f"v{s1+2}"], [f"v{m}"]))
        a(valu(f"v_max_f32 v{m}, v{m}, v{s1+3}", [f"v{m}", f"v{s1+3}"], [f"v{m}"]))
    o += xlane_reduce([V_MC + q for q in range(4)], "v_max_f32", V_SP)
    for qb in range(4):
        m = V_MC + qb
        a(valu(f"v_mul_f32 v{m}, s{S_C}, v{m}", [f"v{m}", f"s{S_C}"], [f"v{m}"]))
        a(valu(f"v_sub_f32 v{m}, 0, v{m}", [f"v{m}"], [f"v{m}"]))
        a(valu(f"v_mov_b32 v{V_L+qb}, 0", [], [f"v{V_L+qb}"]))
    for kb, qb in [(0, 0), (0, 1), (0, 2), (0, 3), (1, 0), (1, 1)]: o += exposed(sm_group(0, kb, qb))
    o += stamp("pre_iter_end")
    return o, carried

def attn_iter(t, carried, vmw, prev, cur, first=False, adv=True, loopctl=False, extra=None, loop_body=False):
    g = Gaps(qk_mfmas() + pv_mfmas(t, first))
    for s in range(8): g.put_mem(8 * (s >> 1) + 10 + 4 * (s & 1), k_read(t + 1, 1, s))
    for db in range(16):
        for jj in range(2): g.put_mem(44 + 4 * db + 2 * jj, v_read(t, db, jj))
    nxt = []
    if t + 2 <= 31:
        for s, gap in zip(range(8), [108, 110, 112, 114, 116, 120, 124, 127]):
            r = k_read(t + 2, 0, s); g.put_mem(gap, r); nxt.append(r.wr)
    else:
        for db in range(5):
            for jj in range(2):
                r = v_read(t + 1, db, jj); g.put_mem(108 + 4 * db + 2 * jj, r); nxt.append(r.wr)
    cons = [(8 * p, R("v", V_POOL + 8 * (p % 4), 8)) for p in range(8)]
    cons += [(64 + 4 * db, R("v", V_POOL + 4 * (db % 8), 4)) for db in range(16)]
    lead = add_lgkm_waits(g, cons, carried)
    kb = 98
    while g.pre[kb]: kb -= 1
    g.pre[kb] = [vmw, barrier()]
    if OPT.bar_stamps and loop_body:
        g.pre[kb] = [raw("s_memtime s[94:95]", "salu"), vmw, raw("s_memtime s[96:97]", "salu"), barrier(), raw("s_memtime s[98:99]", "salu"),
                     raw("s_waitcnt lgkmcnt(0)", "wait", lgkm=0),
                     salu("s_sub_u32 s96, s96, s94"), salu("s_add_u32 s92, s92, s96"),
                     salu("s_sub_u32 s98, s98, s94"), salu("s_add_u32 s93, s93, s98")]
    gp_prev, gp_cur = OPT.dma_gaps
    placed = [place_vmem(g, gap, [m0], d, kb) for gap, (m0, d) in zip(gp_prev, prev)]
    for gap, (m0, d) in zip(gp_cur, cur): place_vmem(g, gap, [m0], d)
    if adv:
        for reg, srd, at in ((S_VOFF, S_V, (placed[OPT.nv_prev - 1] if OPT.nv_prev else 1) + 1), (S_KOFF, S_K, placed[-1] + 1)):
            k = put_scalar(g, at, salu(f"s_add_u32 s{reg}, s{reg}, 16384", [f"s{reg}"], [f"s{reg}"]))
            k = put_scalar(g, k + 1, salu(f"s_and_b32 s{reg}, s{reg}, 0x7ffff", [f"s{reg}"], [f"s{reg}"]))
            assert k < 100
        if loopctl:
            first_k = placed[-4]
            k = put_scalar(g, 2, salu(f"s_cmp_eq_u32 s{S_LOOP}, 1", [f"s{S_LOOP}"], ["scc"]),
                           salu(f"s_cselect_b32 s{S_K+2}, 0, 524288", ["scc"], [f"s{S_K+2}"]))
            assert k < first_k - 1
    if loopctl:
        k = put_scalar(g, 119, salu(f"s_sub_u32 s{S_LOOP}, s{S_LOOP}, 1", [f"s{S_LOOP}"], [f"s{S_LOOP}"]))
        k = put_scalar(g, k + 1, salu(f"s_cmp_lg_u32 s{S_LOOP}, 0", [f"s{S_LOOP}"], ["scc"]))
        assert k <= 127
        for kk in range(k + 1, 128):
            assert all(x.kind == "wait" for x in g.pre[kk]), "SCC clobbered before the loop branch"
    if extra: extra(g, kb)
    ops = []
    for qb in (2, 3): ops += sm_ops(t, 1, qb, 0, 31 + 2 * qb)
    for qb in range(4): ops += sm_ops(t + 1, 0, qb, 25 + 2 * qb + 6, 100 + 6 * qb)
    for qb in (0, 1): ops += sm_ops(t + 1, 1, qb, 57 + 2 * qb + 6, 124 + 3 * qb)
    left = list_schedule(g, ops)
    if OPT.vfirst:
        cand = [k for k in range(128) if g.mem[k] is not None and g.mem[k].kind == "ds" and len(g.vec[k]) == 1 and g.vec[k][0].kind == "valu"
                and not (set(g.vec[k][0].wr) & set(g.mem[k].rd + g.mem[k].wr))]
        n = min(OPT.vfirst, len(cand))
        for i in range(n): g.vec_first.add(cand[(i * len(cand)) // n])
    if OPT.pad_iter:
        for n in range(OPT.pad_iter): g.post[(n * 128) // OPT.pad_iter + 3].append(nop(3))
    assert not left, f"softmax groups do not fit: {len(left)} left"
    return [lead] + g.emit(), nxt

def last_iter(carried):
    o = []; a = o.append
    for qb in (2, 3): o += exposed(sm_group(31, 1, qb))
    o += xlane_reduce([V_L + q for q in range(4)], "v_add_f32", V_SP)
    for qb in range(4): a(trans(f"v_rcp_f32 v{V_L+qb}, v{V_L+qb}", [f"v{V_L+qb}"], [f"v{V_L+qb}"]))
    a(nop(0))
    g = Gaps(pv_mfmas(31, False))
    for db in range(5, 8):
        for jj in range(2): g.put_mem(4 * (db - 5) + 2 * jj, v_read(31, db, jj))
    for db in range(8, 16):
        for jj in range(2): g.put_mem(12 + 4 * (db - 8) + 2 * jj, v_read(31, db, jj))
    cons = [(4 * db, R("v", V_POOL + 4 * (db % 8), 4)) for db in range(16)]
    lead = add_lgkm_waits(g, cons, carried)
    gp = put_wo(g, 2, 2, step=0)
    put_wo(g, 3, gp, step=0)
    left = []
    for db in range(16):
        for qb in range(4):
            ops = conv_ops((db * 4 + qb) * 4, V_Q + (qb * 8 + (db >> 1)) * 4 + 2 * (db & 1), V_SP + 8 + 2 * (qb & 1))
            if left: left += ops
            else:
                _, l2 = place_chain(g, ops, 4 * db + qb + 5, 64); left += l2
    a(lead); o += g.emit()
    a(nop(7)); o += left
    return o

WOBUF = [L_X, L_K, L_K + 32768, L_V, L_V + 32768, L_X, L_K]
V_DWO = 3; V_STO = V_DV
V_FR3 = 32; V_ACC3 = V_P; V_STG = 16
def wo_dma(j):
    out = []
    for i in range(8):
        sreg = S_T0 + (i & 1)
        out.append(([salu(f"s_mov_b32 s{sreg}, {j*128 + i*32*896}", [], [f"s{sreg}"]),
                     salu(f"s_add_u32 m0, s{S_W1K}, {WOBUF[j] + i*4096}", [f"s{S_W1K}"], ["m0"])],
                    tag(dma(V_DWO, S_WO, f"s{sreg}", 0, OPT.wo_flags), f"wo{j}")))
    return out
def wo_setup():
    o = []; a = o.append
    L = f"v{V_LANE}"
    a(valu(f"v_lshrrev_b32 v1, 3, {L}", [L], ["v1"])); a(valu(f"v_and_b32 v2, 7, {L}", [L], ["v2"]))
    a(valu(f"v_lshl_add_u32 v3, s{S_W}, 3, v1", ["v1", f"s{S_W}"], ["v3"]))
    a(valu("v_bfe_u32 v1, v1, 1, 2", ["v1"], ["v1"])); a(valu("v_lshlrev_b32 v1, 1, v1", ["v1"], ["v1"]))
    a(valu("v_xor_b32 v1, v1, v2", ["v1", "v2"], ["v1"])); a(valu("v_lshlrev_b32 v1, 4, v1", ["v1"], ["v1"]))
    a(valu("v_mul_u32_u24 v3, 896, v3", ["v3"], ["v3"]))
    a(valu(f"v_add_u32 v{V_DWO}, v3, v1", ["v3", "v1"], [f"v{V_DWO}"]))
    return o
V_WOT = 2
def wo_touch_setup():
    return [valu(f"v_lshl_add_u32 v{V_WOT}, s{S_W}, 6, v{V_LANE}", [f"v{V_LANE}"], [f"v{V_WOT}"]),
            valu(f"v_mul_u32_u24 v{V_WOT}, 896, v{V_WOT}", [f"v{V_WOT}"], [f"v{V_WOT}"])]
def wo_touch(j): return tag(bload(1, 1, V_WOT, S_WO, "0", j * 128, OPT.wt_flags), "wt")
def put_wo(g, j, start, hi=None, step=3):
    gp = start
    for sc, d in wo_dma(j): gp = place_vmem(g, gp, sc, d, hi) + step
    return gp
def va_shift(delta):
    t = (lambda r: f"v_add_u32 v{r}, {delta}, v{r}") if delta >= 0 else (lambda r: f"v_subrev_u32 v{r}, {-delta}, v{r}")
    return [valu(t(r), [f"v{r}"], [f"v{r}"]) for r in V_VA]

def part_ops(nb, qb):
    acc = V_ACC3 + 4 * ((nb * 4 + qb) % 8)
    st = V_STG + 4 * qb + 2 * (nb & 1)
    li = V_L + qb
    ops = [valu(f"v_mul_f32 v{acc+r}, v{acc+r}, v{li}", [f"v{acc+r}", f"v{li}"], [f"v{acc+r}"]) for r in range(4)]
    ops += [valu(f"v_cvt_pk_bf16_f32 v{st}, v{acc}, v{acc+1}", [f"v{acc}", f"v{acc+1}"], [f"v{st}"]),
            valu(f"v_cvt_pk_bf16_f32 v{st+1}, v{acc+2}, v{acc+3}", [f"v{acc+2}", f"v{acc+3}"], [f"v{st+1}"])]
    return ops

A_FR3 = 0; A_SEL = 224
V_POLLA, V_POLL, V_ONE, V_ZERO, V_RLD, V_OUT = 32, 33, 34, 35, 36, 37
V_RD = 40
V_GRP = V_ARR + 3
def wo_read(nb, s_, jj):
    return ds_read_tr("a", A_FR3 + 4 * (8 * (nb & 1) + s_) + 2 * jj, V_VA[nb], s_ * 4096 + jj * 2048)

V_GA = V_ARR + 2
def grp_setup():
    return [salu(f"s_lshl_b32 s{S_T0}, s{S_G}, 4"), valu(f"v_and_b32 v{V_GA}, 3, v{V_LANE}", [f"v{V_LANE}"], [f"v{V_GA}"]),
            valu(f"v_lshlrev_b32 v{V_GA}, 2, v{V_GA}", [f"v{V_GA}"], [f"v{V_GA}"]), valu(f"v_add_u32 v{V_GA}, s{S_T0}, v{V_GA}", [f"v{V_GA}"], [f"v{V_GA}"])]
V_GA3 = 38
def grp_load(dst, tg, ga=V_GA): return tag(bload(dst, 1, ga, S_DBG, "0", 0, "sc1"), tg)
def splat(x): return x * 0x01010101
def mode_load(): return grp_load(V_ARR, "grp")
def mode_check():
    o = []; a = o.append
    a(salu(f"s_or_b32 s{S_T0}, s{S_XCC}, 0x80")); a(salu(f"s_mul_i32 s50, s{S_T0}, 0x01010101"))
    a(wait_tag("grp"))
    a(valu(f"v_and_b32 v{V_ARR}, 0x87878787, v{V_ARR}", [f"v{V_ARR}"], [f"v{V_ARR}"]))
    a(valu(f"v_cmp_eq_u32 vcc, s50, v{V_ARR}", [f"v{V_ARR}"], ["vcc"])); a(nop(0))
    a(salu("s_cmp_eq_u64 vcc, -1"))
    a(salu(f"s_cselect_b64 s[{S_LOCM}:{S_LOCM+1}], -1, 0"))
    if OPT.force_fallback: a(salu("s_cmp_eq_u32 s50, 0"))
    a(raw("s_cbranch_scc0 L_grp_far", "branch")); a(label("L_grp_ok"))
    f = [label("L_grp_far"), salu(f"s_or_b32 s{S_T0}, s{S_XCC}, 0x80"), valu(f"v_mov_b32 v{V_ARR+1}, s{S_T0}", [], []),
         valu(f"v_mov_b32 v{V_ARR+3}, 0", [], []),
         raw(f"buffer_store_byte v{V_ARR+1}, v{V_ARR+3}, s[{S_DBG}:{S_DBG+3}], s{S_SIG} offen sc1", "salu"), wait_vm(0),
         salu(f"s_mov_b32 s{S_SPIN}, {SPIN_MAX}"), label("L_grp_again"),
         salu(f"s_sub_u32 s{S_SPIN}, s{S_SPIN}, 1"), salu(f"s_cmp_eq_u32 s{S_SPIN}, 0"), raw("s_cbranch_scc1 L_grp_ok", "branch")]
    if not OPT.force_fallback:
        f += [raw(f"buffer_load_dword v{V_ARR}, v{V_GA}, s[{S_DBG}:{S_DBG+3}], 0 offen sc1", "salu"), wait_vm(0),
              valu(f"v_and_b32 v{V_ARR}, 0x87878787, v{V_ARR}", [], []), valu(f"v_cmp_eq_u32 vcc, s50, v{V_ARR}", [], []), nop(0),
              salu("s_cmp_eq_u64 vcc, -1"), salu(f"s_cselect_b64 s[{S_LOCM}:{S_LOCM+1}], -1, 0"), raw("s_cbranch_scc1 L_grp_ok", "branch")]
    f += far_read(V_ARR)
    f += [valu(f"v_and_b32 v{V_ARR+1}, 0x80808080, v{V_ARR}", [], []), valu(f"v_cmp_eq_u32 vcc, 0x80808080, v{V_ARR+1}", [], []), nop(0),
          salu("s_and_b64 s[52:53], vcc, 15"), salu("s_cmp_eq_u64 s[52:53], 15"), raw("s_cbranch_scc0 L_grp_again", "branch"),
          valu(f"v_and_b32 v{V_ARR}, 0x87878787, v{V_ARR}", [], []), valu(f"v_cmp_eq_u32 vcc, s50, v{V_ARR}", [], []), nop(0),
          salu("s_and_b64 s[52:53], vcc, 15"), salu("s_cmp_eq_u64 s[52:53], 15"),
          salu(f"s_cselect_b64 s[{S_LOCM}:{S_LOCM+1}], -1, 0")]
    if OPT.force_fallback: f.append(salu(f"s_mov_b64 s[{S_LOCM}:{S_LOCM+1}], 0"))
    f.append(raw("s_branch L_grp_ok", "branch"))
    OOL.extend(f)
    return o
def far_read(dst, ga=V_GA):
    return [valu(f"v_mov_b32 v{dst}, 0", [], []), valu(f"v_cmp_gt_u32 vcc, 4, v{V_LANE}", [], []),
            raw("s_and_saveexec_b64 s[54:55], vcc", "salu"),
            raw(f"buffer_atomic_add v{dst}, v{ga}, s[{S_DBG}:{S_DBG+3}], 0 offen sc0 sc1", "salu"), wait_vm(0),
            raw("s_mov_b64 exec, s[54:55]", "salu")]

def p3_setup():
    o = []; a = o.append
    L = f"v{V_LANE}"
    a(salu(f"s_mul_i32 s{S_PART}, s{S_G}, {7*16*16*2048}"))
    a(salu(f"s_lshl_b32 s{S_T2}, s{S_H}, 15")); a(salu(f"s_add_u32 s{S_RBASE}, s{S_PART}, s{S_T2}"))
    a(salu(f"s_lshl_b32 s{S_T2}, s{S_W}, 17")); a(salu(f"s_add_u32 s{S_PART}, s{S_PART}, s{S_T2}"))
    a(salu(f"s_lshl_b32 s{S_T2}, s{S_H}, 11")); a(salu(f"s_add_u32 s{S_PART}, s{S_PART}, s{S_T2}"))
    a(valu(f"v_lshlrev_b32 v{V_STO}, 4, {L}", [L], [f"v{V_STO}"]))
    if not OPT.fused: return o
    a(valu(f"v_mov_b32 v{V_ZERO}, 0", [], [f"v{V_ZERO}"])); a(valu(f"v_mov_b32 v{V_GA3}, v{V_GA}", [f"v{V_GA}"], [f"v{V_GA3}"]))
    a(salu(f"s_or_b32 s{S_T2}, s{S_XCC}, 0xf0")); a(valu(f"v_mov_b32 v{V_ONE}, s{S_T2}", [], [f"v{V_ONE}"]))
    a(valu(f"v_lshrrev_b32 v1, 5, {L}", [L], ["v1"])); a(valu("v_lshlrev_b32 v1, 11, v1", ["v1"], ["v1"]))
    a(valu(f"v_and_b32 v2, 31, {L}", [L], ["v2"])); a(valu(f"v_lshl_add_u32 v{V_RLD}, v2, 4, v1", ["v1", "v2"], [f"v{V_RLD}"]))
    a(salu(f"s_lshl_b32 s{S_T2}, s{S_W}, 9")); a(valu(f"v_add_u32 v{V_RLD}, s{S_T2}, v{V_RLD}", [f"v{V_RLD}"], [f"v{V_RLD}"]))
    a(valu(f"v_and_b32 v1, 15, {L}", [L], ["v1"])); a(valu(f"v_lshrrev_b32 v2, 4, {L}", [L], ["v2"]))
    a(valu("v_lshrrev_b32 v4, 3, v1", ["v1"], ["v4"])); a(valu("v_and_b32 v5, 1, v2", ["v2"], ["v5"]))
    a(valu("v_and_b32 v48, 1, v1", ["v1"], ["v48"])); a(valu("v_lshlrev_b32 v48, 4, v48", ["v48"], ["v48"]))
    a(valu("v_mov_b32 v49, 0x3f80", [], ["v49"])); a(valu("v_lshlrev_b32 v49, v48, v49", ["v48", "v49"], ["v49"]))
    a(valu("v_cmp_eq_u32 vcc, v4, v5", ["v4", "v5"], ["vcc"])); a(nop(1))
    a(valu("v_cndmask_b32 v49, 0, v49, vcc", ["v49", "vcc"], ["v49"]))
    a(valu("v_bfe_u32 v50, v1, 1, 2", ["v1"], ["v50"]))
    for r in range(4):
        a(valu(f"v_cmp_eq_u32 vcc, {r}, v50", ["v50"], ["vcc"])); a(nop(1))
        a(valu("v_cndmask_b32 v51, 0, v49, vcc", ["v49", "vcc"], ["v51"]))
        a(valu(f"v_accvgpr_write_b32 a{A_SEL+r}, v51", ["v51"], [f"a{A_SEL+r}"]))
    a(salu(f"s_lshl_b32 s{S_T2}, s{S_B}, 8")); a(salu(f"s_lshl_b32 s{S_T3}, s{S_H}, 4")); a(salu(f"s_add_u32 s{S_T2}, s{S_T2}, s{S_T3}"))
    a(valu(f"v_add_u32 v{V_OUT}, s{S_T2}, v1", ["v1"], [f"v{V_OUT}"])); a(valu(f"v_mul_u32_u24 v{V_OUT}, 896, v{V_OUT}", [f"v{V_OUT}"], [f"v{V_OUT}"]))
    a(salu(f"s_mul_i32 s{S_T2}, s{S_BR}, 448")); a(salu(f"s_lshr_b32 s{S_T3}, s{S_W}, 1")); a(salu(f"s_lshl_b32 s{S_T3}, s{S_T3}, 5"))
    a(salu(f"s_add_u32 s{S_T2}, s{S_T2}, s{S_T3}")); a(salu(f"s_and_b32 s{S_T3}, s{S_W}, 1")); a(salu(f"s_lshl_b32 s{S_T3}, s{S_T3}, 3"))
    a(salu(f"s_add_u32 s{S_T2}, s{S_T2}, s{S_T3}"))
    a(valu(f"v_add_u32 v{V_OUT}, s{S_T2}, v{V_OUT}", [f"v{V_OUT}"], [f"v{V_OUT}"]))
    a(valu(f"v_lshl_add_u32 v{V_OUT}, v5, 4, v{V_OUT}", ["v5", f"v{V_OUT}"], [f"v{V_OUT}"]))
    a(valu("v_lshrrev_b32 v4, 1, v2", ["v2"], ["v4"])); a(valu(f"v_lshl_add_u32 v{V_OUT}, v4, 2, v{V_OUT}", ["v4", f"v{V_OUT}"], [f"v{V_OUT}"]))
    a(valu(f"v_lshlrev_b32 v{V_OUT}, 1, v{V_OUT}", [f"v{V_OUT}"], [f"v{V_OUT}"]))
    return o

def handoff_far():
    o = [wait_vm(0), barrier(), raw("buffer_wbl2 sc1", "salu"), wait_vm(0), barrier(),
         raw(f"buffer_store_byte v{V_ONE}, v{V_ZERO}, s[{S_DBG}:{S_DBG+3}], s{S_SIG} offen sc1", "salu"), wait_vm(0),
         salu(f"s_mov_b32 s{S_SPIN}, {SPIN_MAX}"), label("L_far_poll"),
         salu(f"s_sub_u32 s{S_SPIN}, s{S_SPIN}, 1"), salu(f"s_cmp_eq_u32 s{S_SPIN}, 0"), raw("s_cbranch_scc1 L_far_done", "branch")]
    o += far_read(V_POLL, V_GA3)
    o += [valu(f"v_and_b32 v{V_POLL}, 0xf0f0f0f0, v{V_POLL}", [], []), valu(f"v_cmp_eq_u32 vcc, 0xf0f0f0f0, v{V_POLL}", [], []), nop(0),
          salu("s_and_b64 s[52:53], vcc, 15"), salu("s_cmp_eq_u64 s[52:53], 15"), raw("s_cbranch_scc0 L_far_poll", "branch"),
          label("L_far_done"), raw("buffer_inv sc1", "salu"), wait_vm(0)]
    return o

A_PIECE = 0; A_SEL2 = 224
def red_loads(j):
    out = []
    for i in range(8):
        sr = "s52" if i % 2 == 0 else "s53"
        out.append(([salu(f"s_add_u32 {sr}, s{S_RBASE}, {j*16*32768 + i*4096}", [f"s{S_RBASE}"], [sr])],
                    tag(bload_f("a", A_PIECE + 32 * j + 4 * i, 4, V_RLD, S_WS, sr, 0, "sc1"), f"rl{j}")))
    return out
def red_mfmas(j):
    d = V_RD + 4 * (j & 1)
    return [mfma("v", d, "a", A_SEL2, "a", A_PIECE + 32 * j + 4 * i, None if i == 0 else "v", None if i == 0 else d) for i in range(8)]
def red_out(j):
    d = V_RD + 4 * (j & 1)
    return [valu(f"v_cvt_pk_bf16_f32 v{d}, v{d}, v{d+1}", [f"v{d}", f"v{d+1}"], [f"v{d}"]),
            valu(f"v_cvt_pk_bf16_f32 v{d+1}, v{d+2}, v{d+3}", [f"v{d+2}", f"v{d+3}"], [f"v{d+1}"])], tag(bstore(d, 2, V_OUT, S_OUT, "0", j * 128), f"out{j}")

A_RING = 64; A_SEL4 = 96
V_RLD4, V_OUT4, V_FLA, V_FLAG1 = 48, 49, 50, 51
def ring_setup():
    o = []; a = o.append
    L = f"v{V_LANE}"
    a(salu(f"s_mul_i32 s{S_T0}, s{S_G}, {OPT.ring * 262144}"))
    a(salu(f"s_lshl_b32 s{S_T1}, s{S_W}, 16")); a(salu(f"s_add_u32 s{S_RST}, s{S_T0}, s{S_T1}"))
    a(salu(f"s_lshl_b32 s{S_T1}, s{S_H}, 10")); a(salu(f"s_add_u32 s{S_RST}, s{S_RST}, s{S_T1}"))
    a(salu(f"s_lshl_b32 s{S_T1}, s{S_H}, 14")); a(salu(f"s_add_u32 s{S_RLD}, s{S_T0}, s{S_T1}"))
    a(salu(f"s_mul_i32 s{S_T0}, s{S_G}, {14*64}"))
    a(salu(f"s_lshl_b32 s{S_T1}, s{S_W}, 4"))
    a(salu(f"s_add_u32 s{S_FPW}, s{S_T0}, s{S_T1}")); a(salu(f"s_add_u32 s{S_FPW}, s{S_FPW}, s{S_H}"))
    a(salu(f"s_add_u32 s{S_FCR}, s{S_T0}, s{S_T1}")); a(salu(f"s_add_u32 s{S_FCR}, s{S_FCR}, {CONS_OFF}"))
    a(salu(f"s_lshr_b32 s{S_T1}, s{S_H}, 2")); a(salu(f"s_lshl_b32 s{S_T1}, s{S_T1}, 4"))
    a(salu(f"s_add_u32 s{S_FPR}, s{S_T0}, s{S_T1}"))
    a(salu(f"s_lshl_b32 s{S_T1}, s{S_H}, 2")); a(salu(f"s_add_u32 s{S_FCW}, s{S_T0}, s{S_T1}"))
    a(salu(f"s_add_u32 s{S_FCW}, s{S_FCW}, s{S_W}")); a(salu(f"s_add_u32 s{S_FCW}, s{S_FCW}, {CONS_OFF}"))
    a(valu(f"v_and_b32 v{V_FLA}, 3, {L}", [L], [f"v{V_FLA}"])); a(valu(f"v_lshlrev_b32 v{V_FLA}, 2, v{V_FLA}", [f"v{V_FLA}"], [f"v{V_FLA}"]))
    a(valu(f"v_mov_b32 v{V_FLAG1}, 1", [], [f"v{V_FLAG1}"]))
    a(valu(f"v_and_b32 v1, 15, {L}", [L], ["v1"])); a(valu(f"v_lshrrev_b32 v2, 4, {L}", [L], ["v2"]))
    a(valu(f"v_lshlrev_b32 v{V_RLD4}, 10, v2", ["v2"], [f"v{V_RLD4}"])); a(valu(f"v_lshl_add_u32 v{V_RLD4}, v1, 4, v{V_RLD4}", ["v1", f"v{V_RLD4}"], [f"v{V_RLD4}"]))
    a(salu(f"s_lshl_b32 s{S_T1}, s{S_W}, 8")); a(valu(f"v_add_u32 v{V_RLD4}, s{S_T1}, v{V_RLD4}", [f"v{V_RLD4}"], [f"v{V_RLD4}"]))
    a(valu("v_and_b32 v4, 1, v1", ["v1"], ["v4"])); a(valu("v_lshlrev_b32 v4, 4, v4", ["v4"], ["v4"]))
    a(valu("v_mov_b32 v5, 0x3f80", [], ["v5"])); a(valu("v_lshlrev_b32 v5, v4, v5", ["v4", "v5"], ["v5"]))
    a(valu("v_lshrrev_b32 v4, 1, v1", ["v1"], ["v4"]))
    for r in range(4):
        a(valu(f"v_cmp_eq_u32 vcc, {r}, v4", ["v4"], ["vcc"])); a(nop(1))
        a(valu("v_cndmask_b32 v52, 0, v5, vcc", ["v5", "vcc"], ["v52"]))
        a(valu(f"v_accvgpr_write_b32 a{A_SEL4+r}, v52", ["v52"], [f"a{A_SEL4+r}"]))
    a(salu(f"s_lshl_b32 s{S_T0}, s{S_B}, 8")); a(salu(f"s_lshl_b32 s{S_T1}, s{S_H}, 4")); a(salu(f"s_add_u32 s{S_T0}, s{S_T0}, s{S_T1}"))
    a(valu(f"v_add_u32 v{V_OUT4}, s{S_T0}, v1", ["v1"], [f"v{V_OUT4}"])); a(valu(f"v_mul_u32_u24 v{V_OUT4}, 896, v{V_OUT4}", [f"v{V_OUT4}"], [f"v{V_OUT4}"]))
    a(salu(f"s_mul_i32 s{S_T0}, s{S_BR}, 448")); a(salu(f"s_lshl_b32 s{S_T1}, s{S_W}, 2")); a(salu(f"s_add_u32 s{S_T0}, s{S_T0}, s{S_T1}"))
    a(valu(f"v_add_u32 v{V_OUT4}, s{S_T0}, v{V_OUT4}", [f"v{V_OUT4}"], [f"v{V_OUT4}"]))
    a(valu(f"v_lshl_add_u32 v{V_OUT4}, v2, 4, v{V_OUT4}", ["v2", f"v{V_OUT4}"], [f"v{V_OUT4}"]))
    a(valu(f"v_lshlrev_b32 v{V_OUT4}, 1, v{V_OUT4}", [f"v{V_OUT4}"], [f"v{V_OUT4}"]))
    a(valu("v_cmp_gt_u32 vcc, 2, v2", ["v2"], ["vcc"])); a(salu(f"s_mov_b32 s{S_T0}, 0x7ff00000")); a(valu(f"v_mov_b32 v4, s{S_T0}", [], ["v4"]))
    a(valu(f"v_cndmask_b32 v{V_OUT4}, v4, v{V_OUT4}, vcc", ["v4", f"v{V_OUT4}", "vcc"], [f"v{V_OUT4}"]))
    return o

def flag_store(base, u, tg):
    return [salu(f"s_add_u32 s55, s{base}, {u*64}", [f"s{base}"], ["s55"])], \
           tag(I(f"buffer_store_byte v{V_FLAG1}, v{V_ZERO}, s[{S_FL}:{S_FL+3}], s55 offen", "vst", [f"v{V_FLAG1}", f"v{V_ZERO}", "s55"], data=[]), tg)
def flag_poll(base, u, dst, tg):
    return [salu(f"s_add_u32 s54, s{base}, {u*64}", [f"s{base}"], ["s54"])], tag(bload(dst, 1, V_FLA, S_FL, "s54", 0, "sc1"), tg)
def flag_check(base, u, dst, tg, name):
    OOL.extend([label(f"L_{name}_spin"), salu(f"s_add_u32 s54, s{base}, {u*64}"), salu(f"s_mov_b32 s{S_SPIN}, {SPIN_MAX}"),
                label(f"L_{name}_again"),
                salu(f"s_sub_u32 s{S_SPIN}, s{S_SPIN}, 1"), salu(f"s_cmp_eq_u32 s{S_SPIN}, 0"), raw(f"s_cbranch_scc1 L_{name}_ok", "branch"),
                raw(f"buffer_load_dword v{dst}, v{V_FLA}, s[{S_FL}:{S_FL+3}], s54 offen sc1", "salu"), wait_vm(0),
                valu(f"v_cmp_ne_u32 vcc, 0x01010101, v{dst}", [], []), nop(0),
                raw(f"s_cbranch_vccnz L_{name}_again", "branch"), raw(f"s_branch L_{name}_ok", "branch")])
    dd = (lambda n: stamp("d_" + n)) if name in (f"prod{OPT.p3detail}", f"cons{OPT.p3detail}") else (lambda n: [])
    return dd(name[:4] + "A") + [wait_tag(tg)] + dd(name[:4] + "B") + [valu(f"v_cmp_ne_u32 vcc, 0x01010101, v{dst}", [f"v{dst}"], ["vcc"]), nop(0),
            raw(f"s_cbranch_vccnz L_{name}_spin", "branch"), label(f"L_{name}_ok")] + dd(name[:4] + "C")
V_PP, V_PC = 53, 54
def ring_loads(u):
    out = []
    for i in range(4):
        sr = "s52" if i % 2 == 0 else "s53"
        out.append(([salu(f"s_add_u32 {sr}, s{S_RLD}, {(u % OPT.ring)*262144 + i*4096}", [f"s{S_RLD}"], [sr])],
                    tag(bload_f("a", A_RING + 16 * (u & 1) + 4 * i, 4, V_RLD4, S_RG, sr, 0, "sc1"), f"rl{u}")))
    return out
def ring_mfmas(u):
    d = V_RD + 4 * (u & 1)
    return [mfma("v", d, "a", A_SEL4, "a", A_RING + 16 * (u & 1) + 4 * i, None if i == 0 else "v", None if i == 0 else d) for i in range(4)]
def ring_out(u):
    d = V_RD + 4 * (u & 1)
    return [valu(f"v_cvt_pk_bf16_f32 v{d}, v{d}, v{d+1}", [f"v{d}", f"v{d+1}"], [f"v{d}"]),
            valu(f"v_cvt_pk_bf16_f32 v{d+1}, v{d+2}, v{d+3}", [f"v{d+2}", f"v{d+3}"], [f"v{d+1}"])], tag(bstore(d, 2, V_OUT4, S_OUT, "0", u * 64, OPT.out_flags), f"out{u}")

def p3_stream(local, carried):
    o = []; a = o.append
    NS, D = OPT.ring, OPT.prod_delay
    Q = lambda u: 8 * u + 7
    ins = {}
    if local:
        for u in range(14):
            m = 8 * (Q(u) + 22 + D) - 1
            if m < 895: ins[m] = u
    ms = []; pos = {}; redpos = {}
    for m in range(896):
        j, i = m >> 7, m & 127
        nb, qb, s_ = i >> 5, (i >> 3) & 3, i & 7
        acc = V_ACC3 + 4 * ((nb * 4 + qb) % 8)
        pos[m] = len(ms)
        ms.append(mfma("v", acc, "a", A_FR3 + 4 * (8 * (nb & 1) + s_), "v", V_Q + (qb * 8 + s_) * 4,
                       None if s_ == 0 else "v", None if s_ == 0 else acc))
        if m in ins:
            u = ins[m]; redpos[u] = len(ms); ms += ring_mfmas(u)
    g = Gaps(ms); N = g.n
    P = lambda j, i: pos[128 * j + i]
    def G(period, off):
        m = 8 * period + off
        return pos[m] if 0 <= m < 896 else None
    for j in range(7):
        for nb in range(4):
            jn, nbn = (j, nb + 1) if nb < 3 else (j + 1, 0)
            if jn > 6: continue
            for s_ in range(8):
                for jj in range(2): g.put_mem(P(j, 32 * nb + 4 * s_ + 2 * jj), wo_read(nbn, s_, jj))
    cons = []
    for j in range(7):
        for nb in range(4):
            for s_ in (0, 2, 4, 6): cons.append((P(j, 32 * nb + s_), R("a", A_FR3 + 4 * (8 * (nb & 1) + s_), 8)))
    cons.sort()
    lead = add_lgkm_waits(g, cons, carried)
    def put_vm(k, sc, d):
        assert g.mem[k] is None and not g.post[k], (k, d.text)
        for n, x in enumerate(reversed(sc)):
            kk = k - 1 - n
            assert not (g.mem[kk] is not None and g.mem[kk].kind == "dma" and "m0" in x.wr)
            g.pre[kk].append(x)
        g.mem[k] = d
    def put_seq(k, seq):
        assert g.mem[k] is None and not g.post[k], k
        g.post[k] = seq
    for j in range(6):
        k = P(j, 91)
        g.pre[k] += [wait_tag(f"wo{j+1}"), barrier()]
        sh = va_shift(WOBUF[j + 1] - WOBUF[j])
        for n, at in ((0, 85), (1, 61), (2, 69), (3, 101)):
            kk = P(j, at); g.vec[kk].append(sh[n])
    for j in (2, 3):
        items = wo_dma(j + 3)
        for n, (sc, d) in enumerate(items):
            u0 = 2 * j + (n >> 2)
            per, off = [(Q(u0) - 4, 7), (Q(u0) - 3, 3), (Q(u0) - 3, 7), (Q(u0) - 2, 7)][n & 3]
            put_vm(G(per, off), sc, d)
    stores = {}; sgap = {}
    for u in range(14):
        j, nb = u >> 1, 2 * (u & 1) + 1
        for qb in range(4):
            sreg = S_T2 + (qb & 1)
            if local:
                st = ([salu(f"s_add_u32 s{sreg}, s{S_RST}, {(u % NS)*262144 + qb*16384}", [f"s{S_RST}"], [f"s{sreg}"])],
                      tag(bstore(V_STG + 4 * qb, 4, V_STO, S_RG, f"s{sreg}", 0, OPT.last_st if u >= 14 - NS else ""), f"st{u}"))
            else:
                so = j * 16 * 16 * 2048 + qb * 16 * 2048 + (nb >> 1) * 1024
                st = ([salu(f"s_add_u32 s{sreg}, s{S_PART}, {so}", [f"s{S_PART}"], [f"s{sreg}"])],
                      tag(bstore(V_STG + 4 * qb, 4, V_STO, S_WS, f"s{sreg}", 0), f"st{u}"))
            stores[(u, qb)] = st
            k = G(Q(u) + qb, 3)
            sgap[(u, qb)] = k
            if k is not None: put_vm(k, *st)
    done = {}; out_left = []
    if local:
        for u in range(14):
            dd = (lambda n: stamp("d_" + n)) if u == OPT.p3detail else (lambda n: [])
            if u >= NS:
                kp, kc = G(Q(u) - 4, 3), G(Q(u) - 1, 3)
                put_vm(kp, *flag_poll(S_FCR, u - NS, V_PC, f"pc{u}"))
                put_seq(kc, flag_check(S_FCR, u - NS, V_PC, f"pc{u}", f"cons{u}"))
            done[u] = "sig"
            k = G(Q(u) + 7, 5)
            if k is None or sgap[(u, 3)] is None: continue
            sc, d = flag_store(S_FPW, u, f"sig{u}")
            g.pre[k - 1] += dd("sigA") + [wait_tag(f"st{u}")] + dd("sigB"); put_vm(k, sc, d)
            done[u] = "poll"
            k = G(Q(u) + 12 + D, 5)
            if k is None: continue
            put_vm(k, *flag_poll(S_FPR, u, V_PP, f"pp{u}"))
            done[u] = "check"
            k = G(Q(u) + 15 + D, 7)
            if k is None: continue
            put_seq(k, flag_check(S_FPR, u, V_PP, f"pp{u}", f"prod{u}"))
            done[u] = "loads"
            if u not in redpos: continue
            for n, (sc, d) in enumerate(ring_loads(u)): put_vm(G(Q(u) + 16 + D + n, 7), sc, d)
            g.pre[redpos[u] - 1] += dd("rlA") + [wait_tag(f"rl{u}")] + dd("rlB")
            if u <= 13 - NS: put_vm(G(Q(u) + 22 + D, 3), *flag_store(S_FCW, u, f"csig{u}"))
            done[u] = "out"
            cv, st = ring_out(u)
            if u + 1 in redpos:
                g.vec[redpos[u + 1]] += cv
                put_vm(G(Q(u) + 30 + D, 5), [], st)
                done[u] = "all"
    tail_main = []
    for p in range(112):
        j, nb, qb = p >> 4, (p >> 2) & 3, p & 3
        ops = part_ops(nb, qb)
        slots = [G(p + 2, 0), G(p + 2, 1), G(p + 2, 1), G(p + 2, 2), G(p + 2, 4), G(p + 2, 6)]
        if slots[0] is None:
            tail_main += ops
        else:
            for x, k in zip(ops, slots): g.vec[k].append(x)
        if nb & 1:
            u = 2 * j + (nb >> 1)
            if sgap[(u, qb)] is None: tail_main += stores[(u, qb)][0] + [nop(1), stores[(u, qb)][1]]
    if lead is not None: a(lead)
    em = g.emit()
    if "allst" in OPT.p3_drop: em = [x for x in em if x.kind != "vst"]
    if "pst" in OPT.p3_drop: em = [x for x in em if not (x.kind == "vst" and x.meta.get("tag", "").startswith("st"))]
    if "nospin" in OPT.p3_drop: em = [x for x in em if not (x.kind == "branch" and "vccnz" in x.text)]
    if "novm" in OPT.p3_drop: em = [x for x in em if not (x.kind == "wait" and "vmtags" in x.meta and not x.meta["vmtags"][0].startswith("wo"))]
    if "nold" in OPT.p3_drop: em = [x for x in em if not (x.kind == "vld" and x.meta.get("tag", "").startswith("rl"))]
    o += stamp("p3_stream_start") if (local or not OPT.fused) else []
    o += em
    if local or not OPT.fused: o += stamp("p3_mfma_end")
    a(nop(7)); o += exposed(tail_main)
    if local:
        todo = [u for u in range(14) if done[u] != "all"]
        for u in todo:
            if done[u] == "sig":
                sc, d = flag_store(S_FPW, u, f"sig{u}"); o += [wait_tag(f"st{u}")] + sc + [d]
        o += stamp("x_last_signal")
        if OPT.early_wb:
            o += [salu(f"s_or_b32 s{S_T0}, s{S_H}, s{S_W}"), salu(f"s_cmp_lg_u32 s{S_T0}, {0 if OPT.early_wb == 1 else 0}"),
                  raw("s_cbranch_scc1 L_no_wb", "branch"), raw("buffer_wbl2 sc1", "salu"), label("L_no_wb")]
        for u in todo:
            if done[u] != "out":
                if done[u] in ("sig", "poll"):
                    sc, d = flag_poll(S_FPR, u, V_PP, f"pp{u}"); o += sc + [d]
                if done[u] in ("sig", "poll", "check"): o += flag_check(S_FPR, u, V_PP, f"pp{u}", f"prod{u}")
                for sc, d in ring_loads(u): o += sc + [d]
                o.append(wait_tag(f"rl{u}"))
                o += ring_mfmas(u); a(nop(7))
            cv, st = ring_out(u); o += cv + [st]
    return o

def phase3():
    o = []; a = o.append
    a(wait_tag("wt"))
    o += p3_setup()
    if OPT.fused: o += ring_setup()
    o += va_shift(WOBUF[0] - L_V)
    if OPT.fused: o += mode_check()
    a(wait_tag("wo0")); a(barrier())
    carried = []
    for s_ in range(8):
        for jj in range(2):
            r = wo_read(0, s_, jj); a(r); carried.append(r.wr)
            if len(carried) == 14: a(wait_lgkm(6)); carried = carried[-6:]
    for sc, d in wo_dma(4): o += sc + [nop(0), d]
    if not OPT.fused:
        return o, p3_stream(False, carried) + stamp("p3_end") + ([wait_vm(0)] if OPT.stamps else []) + stamp("rt_end"), []
    o += [salu(f"s_cmp_eq_u32 s{S_LOCM}, 0"), raw("s_cbranch_scc1 L_p3_far", "branch")]
    loc = p3_stream(True, carried)
    loc += stamp("p3_end") + ([wait_vm(0)] if OPT.stamps else []) + stamp("rt_end")
    far = [label("L_p3_far")] + p3_stream(False, carried) + handoff_far()
    for j in range(7):
        for sc, d in red_loads(j): far += sc + [d]
    for j in range(7):
        far.append(wait_tag(f"rl{j}"))
        far += red_mfmas(j)
        if j > 0:
            cv, stt = red_out(j - 1); far += cv + [stt]
    far.append(nop(7))
    cv, stt = red_out(6); far += cv + [stt]
    far += [wait_vm(0), raw("s_endpgm", "branch")]
    return o, loc, far

def dump_regs(base, n, agpr=False):
    o = [wait_vm(0), raw("s_waitcnt lgkmcnt(0)", "wait", lgkm=0), nop(7), nop(7),
         salu(f"s_lshl_b32 s{S_T0}, s2, 2"), salu(f"s_add_u32 s{S_T0}, s{S_T0}, s{S_W}"),
         salu(f"s_mul_i32 s{S_T0}, s{S_T0}, {n*256}"), valu(f"v_lshlrev_b32 v1, 2, v{V_LANE}", [f"v{V_LANE}"], ["v1"])]
    for r in range(n):
        if agpr:
            o.append(valu(f"v_accvgpr_read_b32 v2, a{base+r}", [f"a{base+r}"], ["v2"])); o.append(bstore(2, 1, 1, S_WS, f"s{S_T0}", 0))
        else:
            o.append(bstore(base + r, 1, 1, S_WS, f"s{S_T0}", 0))
        o.append(salu(f"s_add_u32 s{S_T0}, s{S_T0}, 256"))
        if r % 32 == 31 or agpr: o.append(wait_vm(0))
    return o

def stamp_out():
    if not OPT.stamps: return []
    if OPT.dma_stamps: STAMPS[:] = [f"dma{i}" for i in range(10)] + ["loopcyc"]
    if OPT.bar_stamps: STAMPS.extend(["acc_vm", "acc_bar"])
    n = len(STAMPS)
    o = [raw("s_waitcnt lgkmcnt(0)", "wait", lgkm=0), salu(f"s_cmp_lg_u32 s{S_W}, 0"), raw("s_cbranch_scc1 L_nostamp", "branch")]
    if OPT.stamp_dbg >= 0:
        o += [salu(f"s_cmp_lg_u32 s2, {OPT.stamp_dbg}"), raw("s_cbranch_scc1 L_nostamp", "branch")]
        o += [salu("s_load_dwordx2 s[36:37], s[0:1], 88"), raw("s_waitcnt lgkmcnt(0)", "wait", lgkm=0)]
        o += [salu(f"s_mov_b32 s{S_WS}, s36"), salu(f"s_mov_b32 s{S_WS+1}, s37"), salu(f"s_mov_b32 s{S_WS+2}, 256"), salu(f"s_mov_b32 s{S_T0}, 0")]
    else:
        o.append(salu(f"s_mul_i32 s{S_T0}, s2, 64")); o.append(salu(f"s_add_u32 s{S_T0}, s{S_T0}, {STAMP_OFF}"))
        o.append(salu(f"s_mov_b32 s{S_WS+2}, {STAMP_OFF + 256*64}"))
    o.append(valu("v_mov_b32 v1, 0", [], ["v1"]))
    for k in range(n):
        if OPT.stamp_dbg >= 0:
            ref = 0 if STAMPS[k].startswith("rt") else 1
            o.append(salu(f"s_sub_u32 s{S_T1}, s{S_STAMP+2*k}, s{S_STAMP+2*ref}"))
            o.append(valu(f"v_mov_b32 v2, s{S_T1}", [], ["v2"]))
        elif STAMPS[k] == "loopcyc": o.append(valu("v_mov_b32 v2, s100", [], ["v2"]))
        elif STAMPS[k] == "acc_vm": o.append(valu("v_mov_b32 v2, s92", [], ["v2"]))
        elif STAMPS[k] == "acc_bar": o.append(valu("v_mov_b32 v2, s93", [], ["v2"]))
        else:
            o.append(valu(f"v_mov_b32 v2, s{S_STAMP+2*k}", [], ["v2"]))
        o.append(bstore(2, 1, 1, S_WS, f"s{S_T0}", 4 * k)); o.append(wait_vm(0))
    o.append(label("L_nostamp"))
    return o

def finish(): return [wait_vm(0), label("L_end"), raw("s_endpgm", "branch")]

def build(debug=None):
    _stamp_n[0] = 0; STAMPS.clear(); OOL.clear()
    pre = setup() + phase1()
    if debug == "p1":
        pre += stamp("rt_end")
        resolve_vm(pre, [])
        return pre + stamp_out() + finish()
    if debug == "q":
        resolve_vm(pre, []); check(pre, "pre")
        return pre + dump_regs(V_Q, 128) + finish()
    if OPT.dma_mode == "cluster":
        OPT.dma_gaps = ([21, 23, 25, 27], [101, 103, 105, 107]); OPT.nv_prev = 0
    elif OPT.dma_mode == "cluster2":
        OPT.dma_gaps = ([41, 43, 47, 49], [101, 103, 105, 107]); OPT.nv_prev = 0
    NCUR = len(OPT.dma_gaps[1])
    p, carried = pre_iter(); pre += p
    def batch(t):
        return dma_tile("V", vslot(t + 3), f"s{S_VOFF}", f"V{t+3}") + dma_tile("K", kslot(t + 5), f"s{S_KOFF}", f"K{t+5}")
    pre += wo_setup()
    if OPT.fused: pre += grp_setup()
    def ex0(g, kb):
        put_wo(g, 0, 3, kb, step=8)
    s0, carried = attn_iter(0, carried, wait_tag("V1", "K2"), [], batch(0)[:NCUR], first=True, adv=False, extra=ex0)
    pre += s0
    pre.append(salu(f"s_mov_b32 s{S_LOOP}, 7"))
    if OPT.bar_stamps: pre += [salu("s_mov_b32 s92, 0"), salu("s_mov_b32 s93, 0")]
    pre += stamp("loop_start") + (stamp("rt_ls") if OPT.bar_stamps else [])
    loop = [label("L_attn")]
    for u in range(4):
        t = 1 + u
        s, carried = attn_iter(t, carried, wait_vm(12), batch(t - 1)[NCUR:], batch(t)[:NCUR], loopctl=(u == 3), loop_body=True)
        if OPT.dma_stamps and u == 1:
            s2 = []; n = 0
            for x in s:
                if x.kind == "dma" and n < 5:
                    s2 += [raw(f"s_memtime s[{80+4*n}:{81+4*n}]", "salu"), x, raw(f"s_memtime s[{82+4*n}:{83+4*n}]", "salu")]; n += 1
                else: s2.append(x)
            s = s2
        loop += s
    if OPT.trip_stamps:
        loop += [raw("s_memtime s[98:99]", "salu"), raw("s_memrealtime s[100:101]", "salu"), raw("s_waitcnt lgkmcnt(0)", "wait", lgkm=0),
                 salu(f"s_mov_b32 s99, m0"), salu(f"s_mov_b32 m0, s{S_LOOP}"), nop(0), valu(f"v_writelane_b32 v1, s98, m0", ["s98"], ["v1"]),
                 salu(f"s_add_u32 m0, s{S_LOOP}, 8"), nop(0), valu(f"v_writelane_b32 v1, s100, m0", ["s100"], ["v1"]),
                 salu("s_mov_b32 m0, s99"), salu(f"s_cmp_lg_u32 s{S_LOOP}, 0")]
    if OPT.loop_nodma: loop = [x for x in loop if x.kind != "dma"]
    if OPT.loop_nods: loop = [x for x in loop if x.kind != "ds" and not (x.kind == "wait" and "lgkm" in x.meta and x.meta["lgkm"] > 0)]
    if OPT.loop_nomfma: loop = [(nop(1) if x.kind == "mfma" else x) for x in loop]
    if OPT.loop_novalu: loop = [x for x in loop if x.kind not in ("valu", "trans")]
    if OPT.loop_dma_every > 1:
        cnt = [0]
        def keep(x):
            if x.kind != "dma": return True
            cnt[0] += 1
            return cnt[0] % OPT.loop_dma_every == 0
        loop = [x for x in loop if keep(x)]
    loop.append(raw("s_cbranch_scc1 L_attn", "branch"))
    post = stamp("loop_end") + (stamp("rt_le") if OPT.bar_stamps else [])
    if OPT.trip_stamps:
        post += [valu(f"v_lshlrev_b32 v2, 2, v{V_LANE}", [], ["v2"]), salu(f"s_mul_i32 s{S_T1}, s2, 64"),
                 salu(f"s_add_u32 s{S_T1}, s{S_T1}, {STAMP_OFF + 256*64}"), salu(f"s_mov_b32 s{S_WS+2}, {STAMP_OFF + 2*256*64}"),
                 valu("v_cmp_gt_u32 vcc, 16, v0", ["v0"], ["vcc"]), salu(f"s_cmp_eq_u32 s{S_W}, 0"), raw("s_cselect_b64 s[50:51], vcc, 0", "salu"),
                 raw("s_mov_b64 s[54:55], exec", "salu"), raw("s_mov_b64 exec, s[50:51]", "salu"), raw("s_cbranch_execz L_notrip", "branch"),
                 raw(f"buffer_store_dword v1, v2, s[{S_WS}:{S_WS+3}], s{S_T1} offen", "salu"), wait_vm(0), label("L_notrip"), raw("s_mov_b64 exec, s[54:55]", "salu"), wait_vm(0)]
    def ex29(g, kb):
        if OPT.fused: place_vmem(g, 40, [], mode_load(), kb)
        gp = 50
        for j in OPT.wo_touch: gp = place_vmem(g, gp, [], wo_touch(j), kb) + 12
    post += wo_touch_setup()
    s, carried = attn_iter(29, carried, wait_tag("V30", "K32"), batch(28)[NCUR:4], [], adv=False,
                           extra=ex29)
    post += s
    def ex30(g, kb):
        put_wo(g, 1, 3, kb, step=8)
    s, carried = attn_iter(30, carried, wait_tag("V31"), [], [], adv=False, extra=ex30)
    post += s
    post += last_iter(carried)
    post += stamp("attn_end")
    if debug == "o":
        tailq = dump_regs(V_Q, 128)
    elif debug == "l":
        tailq = dump_regs(V_L, 4)
    else:
        common, loc, far = phase3()
        tailq = common
    post += tailq
    q = resolve_vm(pre, [])
    qexit = ["V30"] * 4 + ["K32"] * 4 + ["V31"] * NCUR
    qb_ = resolve_vm(post, qexit)
    if debug is None:
        resolve_vm(loc, qb_); resolve_vm(far, qb_)
        if far and not OPT.p3_drop: check(loop[1:] + post + far[1:], "loop+post+far", init_lgkm=[x.wr for x in pre if x.kind == "ds"][-8:], init_vm=[[]] * (8 + NCUR))
        post = post + loc
        OOL.extend(far)
    if not (OPT.p1_nowait or OPT.p1_noread or OPT.p1_drop or OPT.loop_nodma or OPT.loop_dma_every > 1 or OPT.loop_nods or OPT.loop_nomfma or OPT.loop_novalu): check(pre + loop[1:] + loop[1:], "pre+loop")
    if not (OPT.p3_drop or OPT.loop_nodma or OPT.loop_dma_every > 1 or OPT.loop_nods or OPT.loop_nomfma or OPT.loop_novalu): check(loop[1:] + post, "loop+post", init_lgkm=[x.wr for x in pre if x.kind == "ds"][-8:], init_vm=[[]] * (8 + NCUR))
    return pre + loop + post + stamp_out() + finish() + OOL

def reduce_kernel():
    o = []; a = o.append
    a(salu("s_cmp_ge_u32 s2, 256")); a(raw("s_cbranch_scc1 R_end", "branch"))
    a(salu("s_load_dwordx2 s[4:5], s[0:1], 80")); a(salu("s_load_dwordx2 s[6:7], s[0:1], 96"))
    a(valu("v_lshrrev_b32 v1, 6, v0", ["v0"], ["v1"])); a(valu("v_and_b32 v0, 63, v0", ["v0"], ["v0"]))
    a(valu("v_readfirstlane_b32 s32, v1", ["v1"], ["s32"]))
    a(salu("s_lshr_b32 s33, s2, 4")); a(salu("s_and_b32 s34, s2, 15"))
    a(salu("s_lshr_b32 s35, s33, 3")); a(salu("s_and_b32 s36, s33, 7"))
    a(salu("s_lshr_b32 s37, s32, 1")); a(salu("s_and_b32 s38, s32, 1"))
    a(valu("v_lshrrev_b32 v2, 5, v0", ["v0"], ["v2"])); a(valu("v_lshlrev_b32 v2, 11, v2", ["v2"], ["v2"]))
    a(valu("v_and_b32 v3, 31, v0", ["v0"], ["v3"])); a(valu("v_lshl_add_u32 v2, v3, 4, v2", ["v3", "v2"], ["v2"]))
    a(salu("s_lshl_b32 s39, s37, 10")); a(salu("s_lshl_b32 s40, s38, 9")); a(salu("s_add_u32 s39, s39, s40"))
    a(valu("v_add_u32 v2, s39, v2", ["v2"], ["v2"]))
    a(valu("v_and_b32 v8, 15, v0", ["v0"], ["v8"])); a(valu("v_lshrrev_b32 v9, 4, v0", ["v0"], ["v9"]))
    a(valu("v_lshrrev_b32 v10, 3, v8", ["v8"], ["v10"])); a(valu("v_and_b32 v11, 1, v9", ["v9"], ["v11"]))
    a(valu("v_and_b32 v12, 1, v8", ["v8"], ["v12"])); a(valu("v_lshlrev_b32 v12, 4, v12", ["v12"], ["v12"]))
    a(valu("v_mov_b32 v13, 0x3f80", [], ["v13"])); a(valu("v_lshlrev_b32 v13, v12, v13", ["v12", "v13"], ["v13"]))
    a(valu("v_cmp_eq_u32 vcc, v10, v11", ["v10", "v11"], ["vcc"])); a(nop(1))
    a(valu("v_cndmask_b32 v13, 0, v13, vcc", ["v13", "vcc"], ["v13"]))
    a(valu("v_bfe_u32 v14, v8, 1, 2", ["v8"], ["v14"]))
    for r in range(4):
        a(valu(f"v_cmp_eq_u32 vcc, {r}, v14", ["v14"], ["vcc"])); a(nop(1))
        a(valu(f"v_cndmask_b32 v{4+r}, 0, v13, vcc", ["v13", "vcc"], [f"v{4+r}"]))
    a(salu("s_lshl_b32 s41, s36, 8")); a(salu("s_lshl_b32 s42, s34, 4")); a(salu("s_add_u32 s41, s41, s42"))
    a(valu("v_add_u32 v3, s41, v8", ["v8"], ["v3"])); a(valu("v_mul_u32_u24 v3, 896, v3", ["v3"], ["v3"]))
    a(salu("s_mul_i32 s42, s35, 448")); a(salu("s_lshl_b32 s43, s37, 5")); a(salu("s_add_u32 s42, s42, s43"))
    a(salu("s_lshl_b32 s43, s38, 3")); a(salu("s_add_u32 s42, s42, s43"))
    a(valu("v_add_u32 v3, s42, v3", ["v3"], ["v3"]))
    a(valu("v_lshl_add_u32 v3, v11, 4, v3", ["v11", "v3"], ["v3"]))
    a(valu("v_lshrrev_b32 v10, 1, v9", ["v9"], ["v10"])); a(valu("v_lshl_add_u32 v3, v10, 2, v3", ["v10", "v3"], ["v3"]))
    a(valu("v_lshlrev_b32 v3, 1, v3", ["v3"], ["v3"]))
    a(raw("s_waitcnt lgkmcnt(0)", "wait", lgkm=0))
    for base, lo, size in ((8, 6, 16 * 7 * 16 * 16 * 2048), (12, 4, 8 * 256 * 896 * 2)):
        a(salu(f"s_mov_b32 s{base}, s{lo}")); a(salu(f"s_mov_b32 s{base+1}, s{lo+1}"))
        a(salu(f"s_mov_b32 s{base+2}, {size}")); a(salu(f"s_mov_b32 s{base+3}, 0x20000"))
    a(salu(f"s_mul_i32 s44, s33, {7*16*32768}")); a(salu("s_lshl_b32 s45, s34, 15")); a(salu("s_add_u32 s44, s44, s45"))
    for j in range(7):
        for i in range(8):
            a(salu(f"s_add_u32 s46, s44, {j*16*32768 + i*4096}"))
            a(tag(bload(16 + (j * 8 + i) * 4, 4, 2, 8, "s46", 0), f"p{j}"))
    for j in range(7):
        a(wait_tag(f"p{j}"))
        d = 240 + 4 * (j & 1)
        for i in range(8):
            a(mfma("v", d, "v", 4, "v", 16 + (j * 8 + i) * 4, None if i == 0 else "v", None if i == 0 else d))
        a(nop(7))
        a(valu(f"v_cvt_pk_bf16_f32 v{d}, v{d}, v{d+1}", [f"v{d}", f"v{d+1}"], [f"v{d}"]))
        a(valu(f"v_cvt_pk_bf16_f32 v{d+1}, v{d+2}, v{d+3}", [f"v{d+2}", f"v{d+3}"], [f"v{d+1}"]))
        a(tag(bstore(d, 2, 3, 12, "0", j * 128), "o"))
    resolve_vm(o, []); check(o, "reduce")
    if OPT.stamps and OPT.stamp_fwd >= 0:
        o += [wait_vm(0), salu("s_cmp_lg_u32 s2, 0"), raw("s_cbranch_scc1 R_end", "branch"),
              salu("s_load_dwordx2 s[20:21], s[0:1], 88"), raw("s_waitcnt lgkmcnt(0)", "wait", lgkm=0),
              salu("s_mov_b32 s16, s20"), salu("s_mov_b32 s17, s21"), salu("s_mov_b32 s18, 64"), salu("s_mov_b32 s19, 0x20000"),
              salu(f"s_mov_b32 s10, {16*7*16*16*2048 + 256*64}"), salu(f"s_mov_b32 s46, {16*7*16*16*2048} + 64*{OPT.stamp_fwd}"),
              valu("v_lshlrev_b32 v2, 2, v0", ["v0"], ["v2"]), bload(3, 1, 2, 8, "s46", 0), wait_vm(0), bstore(3, 1, 2, 16, "0", 0)]
    o += [wait_vm(0), label("R_end"), raw("s_endpgm", "branch")]
    return o

KD = """.section .rodata,"a"
.p2align 6
.amdhsa_kernel {name}
  .amdhsa_next_free_vgpr {vgpr}
  .amdhsa_next_free_sgpr 102
  .amdhsa_accum_offset 256
  .amdhsa_group_segment_fixed_size 0
  .amdhsa_kernarg_size 104
  .amdhsa_user_sgpr_count 2
  .amdhsa_user_sgpr_kernarg_segment_ptr 1
  .amdhsa_system_sgpr_workgroup_id_x 1
.end_amdhsa_kernel
"""
def header_comments():
    ref = open("cdna_kernels/" + NAME + ".s.ref").read().splitlines()
    out = []
    for l in ref:
        if l.startswith("; Override launch") or not l.startswith(";"): break
        out.append(l)
    return out

def stream_kernel():
    t = """
  s_cmp_ge_u32 s2, 256
  s_cbranch_scc1 S_end
  s_load_dwordx2 s[4:5], s[0:1], 8
  s_load_dwordx2 s[6:7], s[0:1], 96
  s_load_dwordx2 s[8:9], s[0:1], 48
  v_lshrrev_b32 v2, 6, v0
  s_nop 0
  v_readfirstlane_b32 s24, v2
  v_and_b32 v1, 63, v0
  v_lshlrev_b32 v14, 4, v1
  s_nop 2
  s_lshl_b32 s25, s24, 12
  v_add_u32 v14, s25, v14
  s_waitcnt lgkmcnt(0)
  s_cmp_lt_u32 s2, 128
  s_cselect_b32 s36, s4, s8
  s_cselect_b32 s37, s5, s9
  s_mov_b32 s38, 0x4000000
  s_mov_b32 s39, 0x20000
  s_and_b32 s32, s2, 127
  s_lshl_b32 s32, s32, 19
  s_barrier
  s_memrealtime s[12:13]
  s_mov_b32 s20, 0
S_loop:
  s_mov_b32 m0, s25
  s_nop 0
  buffer_load_dwordx4 v14, s[36:39], s32 offen nt lds
  buffer_load_dwordx4 v14, s[36:39], s32 offen offset:1024 nt lds
  buffer_load_dwordx4 v14, s[36:39], s32 offen offset:2048 nt lds
  buffer_load_dwordx4 v14, s[36:39], s32 offen offset:3072 nt lds
  s_add_u32 s32, s32, 16384
  s_waitcnt vmcnt(8)
  s_barrier
  s_add_u32 s20, s20, 1
  s_cmp_lt_u32 s20, 32
  s_cbranch_scc1 S_loop
  s_waitcnt vmcnt(0)
  s_barrier
  s_memrealtime s[16:17]
  s_waitcnt lgkmcnt(0)
  s_sub_u32 s16, s16, s12
  s_mov_b32 s40, s6
  s_mov_b32 s41, s7
  s_mov_b32 s42, %d
  s_mov_b32 s43, 0x20000
  s_mul_i32 s33, s2, 64
  s_add_u32 s33, s33, %d
  v_mov_b32 v2, s16
  v_mov_b32 v1, 0
  buffer_store_dword v2, v1, s[40:43], s33 offen
  s_waitcnt vmcnt(0)
S_end:
  s_endpgm""" % (16*7*16*16*2048 + 256*64, 16*7*16*16*2048 + 60)
    return t

def assemble_file(debug=None):
    main = build(debug)
    red = reduce_kernel()
    k1 = NAME + "_kernel"; k2 = "reduce_heads_kernel"
    L = header_comments()
    if OPT.stream0: L.append(f"; @launch kernel=stream_test_kernel grid=(256,1,1) block=(256,1,1) lds={LDS_BYTES}")
    if OPT.fused and not OPT.stream0:
        L.append(f"; @launch grid=(256,1,1) block=(256,1,1) lds={LDS_BYTES}")
    else:
        L.append(f"; @launch kernel={k1} grid=(256,1,1) block=(256,1,1) lds={LDS_BYTES}")
        if debug is None and not OPT.fused: L.append(f"; @launch kernel={k2} grid=(256,1,1) block=(256,1,1) lds=0")
    L.append('.amdgcn_target "amdgcn-amd-amdhsa--gfx950"')
    L.append(".text")
    for nm, body in ((k1, main), (k2, red)) if not OPT.fused else ((k1, main),):
        L += [f".globl {nm}", ".p2align 8", f".type {nm},@function", f"{nm}:", text(body)]
    if OPT.stream0: L += [".globl stream_test_kernel", ".p2align 8", ".type stream_test_kernel,@function", "stream_test_kernel:", stream_kernel()]
    L.append(KD.format(name=k1, vgpr=512))
    if not OPT.fused: L.append(KD.format(name=k2, vgpr=256))
    if OPT.stream0: L.append(KD.format(name="stream_test_kernel", vgpr=512))
    return "\n".join(L) + "\n"

if __name__ == "__main__":
    dbg = sys.argv[2] if len(sys.argv) > 2 and sys.argv[2] != "none" else None
    for kv in sys.argv[3:]:
        k, v = kv.split("=")
        v = v.replace("+", " ")
        setattr(OPT, k, {"True": True, "False": False, "()": ()}.get(v, int(v) if v.lstrip("-").isdigit() else (eval(v) if v.startswith("(") else v)))
    open(sys.argv[1], "w").write(assemble_file(dbg))
    print("stamps:", STAMPS)
```

```python
import math, struct, sys
from core import *

NAME = "concat_heads__mha_block_cached__mha_block_cached__near_ridge"
def f32bits(x): return struct.unpack("<I", struct.pack("<f", x))[0]
CSC = math.log2(math.e) / 16.0

S_X, S_WQ, S_K, S_V, S_WO, S_WS, S_OUT = 4, 8, 12, 16, 20, 24, 28
S_W, S_W1K = 32, 33
S_QB = ["0", "s34", "s35", "s62"]
S_C = 63
S_KOFF, S_VOFF = 64, 65
S_LOOP = 66
S_T0, S_T1, S_T2, S_T3 = 67, 68, 69, 70
S_G, S_H, S_B, S_BR = 71, 72, 73, 74
S_WOFF = 76
S_PART = 77
S_WCUR, S_WSTEP, S_XSTEP = 78, 79, 75
S_FL, S_DBG = 36, 40
S_LOCM = 44
S_RBASE, S_SIG, S_POLL, S_XCC = 46, 47, 48, 49
S_RG = 56
S_SPIN = 62
S_SAFE = 3
S_ROT = 52
S_PFO = 53
S_RST, S_RLD, S_FPW, S_FPR, S_FCW, S_FCR = 60, 61, 75, 78, 79, 76
S_STAMP = 80
V_LANE = 0
V_KA = [4, 5]
V_VA = [6, 7, 8, 9]
V_DK, V_DV = 10, 11
V_L = 12
V_MC = 16
V_SP = 20
V_POOL = 32
V_S = 64
V_P = 96
V_Q = 128
V_XA = 20; V_DW = 21; V_WA = [[22, 23], [24, 25], [26, 27]]
V_CT = 28
V_ARR = 24
L_K = 0; L_V = 65536; L_X = 131072
def kslot(t): return L_K + 16384 * (t % 4)
def vslot(t): return L_V + 16384 * (t % 4)
LDS_BYTES = 163840
L_VOTE = L_V + 2 * 16384
L_LIMIT = 2.0 ** 30

PART_BYTES = 16 * 7 * 16 * 16 * 2048
FLAG_BYTES = 16 * 7 * 4 * 64
STAMP_OFF = PART_BYTES + 32768
RING_OFF = PART_BYTES + (1 << 20)
RING_BYTES = 32 << 20
CONS_OFF = 16384
SPIN_MAX = 1 << 19
class Opt:
    kv_flags = "nt"
    w_flags = ""
    x_flags = ""
    wo_flags = ""
    st_flags = ""
    stamps = False
    vfirst = 0
    dma_stamps = False
    rot = 0
    pad_iter = 0
    last_st = ''
    out_flags = ''
    coopw = False
    coopw_init = 2
    pf_flags = ''
    early_wb = 0
    wt_flags = ''
    prod_delay = 0
    ring = 4
    vm_space = 0
    p3_drop = ''
    wo_step = 13
    cons_chk = 22
    wo_touch = (4, 5, 6)
    red_m = 200
    cons_poll = 50
    ld_min = 16
    stamp_skip = 'p1_first_data,pre_iter_end'
    p3detail = -1
    st_lag = 21
    force_fallback = False
    red_at = 60
    sig_lag = 28
    poll_lag = 22
    chk_lag = 22
    fused = True
    stream0 = False
    loop_nods = False
    loop_nomfma = False
    loop_novalu = False
    loop_nodma = False
    loop_dma_every = 1
    bar_stamps = False
    trip_stamps = False
    dma_mode = 'spread'
    dma_gaps = ([5, 21, 37, 53, 69, 85], [101, 117])
    nv_prev = 2
    stamp_fwd = -1
    stamp_dbg = -1
    x_rd_gap0 = 65
    x_rd_gap = 33
    p1_steps = False
    p1_drop = ''
    rev = True
    init_w = 2
    early_step = 2
    x_gap = 60
    p1_nowait = False
    p1_noread = False
    wring = 3
    kvpf = 'early'
    coopx = False
    init_more = 0
OPT = Opt()

def wait_tag(*tags): return I("s_waitcnt vmcnt(?)", "wait", vmtags=list(tags))
def tag(ins, t):
    ins.meta["tag"] = t; return ins
def resolve_vm(stream, queue):
    q = list(queue)
    for ins in stream:
        if ins.kind in ("dma", "vld", "vst"):
            q.append(ins.meta.get("tag", "?"))
        elif ins.kind == "wait":
            if "vmtags" in ins.meta:
                idx = [n for n, t in enumerate(q) if t in ins.meta["vmtags"]]
                n = len(q) - 1 - max(idx) if idx else len(q)
                n = min(n, 63)
                ins.text = f"s_waitcnt vmcnt({n})"; ins.meta["vm"] = n
            if "vm" in ins.meta:
                n = ins.meta["vm"]
                if len(q) > n: q = q[len(q) - n:] if n else []
    return q

_stamp_n = [0]
def stamp(name):
    if not OPT.stamps: return []
    if OPT.dma_stamps:
        if name == "loop_start": return [raw("s_memtime s[100:101]", "salu"), raw("s_waitcnt lgkmcnt(0)", "wait", lgkm=0)]
        if name == "loop_end": return [raw("s_memtime s[76:77]", "salu"), raw("s_waitcnt lgkmcnt(0)", "wait", lgkm=0), salu("s_sub_u32 s100, s76, s100")]
        return []
    if OPT.stamp_skip and name in OPT.stamp_skip.split(","): return []
    if OPT.p3detail >= 0 and not name.startswith("d_") and name not in ("rt_end",): return []
    if OPT.bar_stamps and name not in ("rt_ls", "rt_le", "loop_start", "loop_end", "rt_end"): return []
    n = _stamp_n[0]; _stamp_n[0] += 1
    STAMPS.append(name)
    op = "s_memrealtime" if name.startswith("rt") else "s_memtime"
    return [raw(f"{op} s[{S_STAMP+2*n}:{S_STAMP+2*n+1}]", "salu")]
STAMPS = []

def m0_set(base): return salu(f"s_add_u32 m0, s{S_W1K}, {base}", [f"s{S_W1K}"], ["m0"])

def dma_tile(kind, slot_base, soff, tg):
    voff, srd, fl = {"K": (V_DK, S_K, OPT.kv_flags), "V": (V_DV, S_V, OPT.kv_flags), "W": (V_DW, S_WQ, OPT.w_flags)}[kind]
    return [(m0_set(slot_base + dc * 3968), tag(dma(voff, srd, soff, dc * 128, fl), tg)) for dc in range(4)]

def setup():
    o = []; a = o.append
    a(salu("s_cmp_ge_u32 s2, 256")); a(raw("s_cbranch_scc1 L_end", "branch"))
    o += stamp("rt_start") + stamp("start")
    a(valu("v_lshrrev_b32 v1, 6, v0", ["v0"], ["v1"]))
    a(valu(f"v_and_b32 v{V_LANE}, 63, v0", ["v0"], ["v0"]))
    a(salu(f"s_mov_b32 s{S_SAFE}, 0"))
    a(valu(f"v_readfirstlane_b32 s{S_W}, v1", ["v1"], [f"s{S_W}"]))
    a(label("L_again"))
    a(salu("s_load_dwordx16 s[36:51], s[0:1], 0")); a(salu("s_load_dwordx8 s[52:59], s[0:1], 64"))
    a(salu("s_load_dwordx2 s[60:61], s[0:1], 96"))
    a(nop(3))
    a(salu(f"s_and_b32 s{S_T0}, s2, 7")); a(salu(f"s_lshr_b32 s{S_T1}, s2, 3"))
    a(salu(f"s_and_b32 s{S_H}, s{S_T1}, 15")); a(salu(f"s_lshr_b32 s{S_T1}, s{S_T1}, 4"))
    a(salu(f"s_lshl_b32 s{S_G}, s{S_T0}, 1")); a(salu(f"s_add_u32 s{S_G}, s{S_G}, s{S_T1}"))
    a(salu(f"s_lshr_b32 s{S_BR}, s{S_G}, 3")); a(salu(f"s_and_b32 s{S_B}, s{S_G}, 7"))
    a(salu(f"s_lshl_b32 s{S_W1K}, s{S_W}, 10"))
    if OPT.rot:
        a(salu(f"s_and_b32 s{S_T0}, s2, 7")); a(salu(f"s_mul_i32 s{S_T0}, s{S_T0}, {OPT.rot}")); a(salu(f"s_lshr_b32 s{S_T1}, s2, 3"))
        a(salu(f"s_add_u32 s{S_T0}, s{S_T0}, s{S_T1}")); a(salu(f"s_and_b32 s{S_T0}, s{S_T0}, 31")); a(salu(f"s_lshl_b32 s33, s{S_T0}, 14") if False else salu(f"s_lshl_b32 s{S_T3}, s{S_T0}, 14"))
    a(salu(f"s_mov_b32 s{S_C}, 0x{f32bits(CSC):08x}"))
    L = f"v{V_LANE}"
    def vv(t, rd, wr): a(valu(t, rd, wr))
    vv(f"v_and_b32 v1, 15, {L}", [L], ["v1"]); vv(f"v_lshrrev_b32 v2, 4, {L}", [L], ["v2"])
    vv("v_lshrrev_b32 v3, 1, v1", ["v1"], ["v3"])
    for sp in range(2):
        r = V_KA[sp]
        vv(f"v_add_u32 v{r}, {4*sp}, v2", ["v2"], [f"v{r}"])
        vv(f"v_xor_b32 v{r}, v{r}, v3", [f"v{r}", "v3"], [f"v{r}"])
        vv(f"v_lshlrev_b32 v{r}, 4, v{r}", [f"v{r}"], [f"v{r}"])
        vv(f"v_lshl_add_u32 v{r}, v1, 7, v{r}", ["v1", f"v{r}"], [f"v{r}"])
    vv(f"v_bfe_u32 v28, {L}, 2, 2", [L], ["v28"]); vv(f"v_and_b32 v29, 3, {L}", [L], ["v29"])
    vv("v_lshl_add_u32 v30, v2, 2, v28", ["v2", "v28"], ["v30"])
    vv("v_bfe_u32 v31, v30, 1, 2", ["v30"], ["v31"])
    for p in range(4):
        r = V_VA[p]
        vv(f"v_xor_b32 v{r}, {p}, v31", ["v31"], [f"v{r}"])
        vv(f"v_lshlrev_b32 v{r}, 5, v{r}", [f"v{r}"], [f"v{r}"])
        vv(f"v_lshl_add_u32 v{r}, v30, 7, v{r}", ["v30", f"v{r}"], [f"v{r}"])
        vv(f"v_lshl_add_u32 v{r}, v29, 3, v{r}", ["v29", f"v{r}"], [f"v{r}"])
        vv(f"v_add_u32 v{r}, {L_V}, v{r}", [f"v{r}"], [f"v{r}"])
    vv("v_lshl_add_u32 v30, v2, 3, v28", ["v2", "v28"], ["v30"])
    vv("v_lshrrev_b32 v31, 1, v28", ["v28"], ["v31"])
    for sp in range(2):
        r = V_WA[0][sp]
        vv(f"v_xor_b32 v{r}, {sp}, v31", ["v31"], [f"v{r}"])
        vv(f"v_lshl_add_u32 v{r}, v{r}, 2, v29", [f"v{r}", "v29"], [f"v{r}"])
        vv(f"v_lshlrev_b32 v{r}, 4, v{r}", [f"v{r}"], [f"v{r}"])
        vv(f"v_lshl_add_u32 v{r}, v30, 7, v{r}", ["v30", f"v{r}"], [f"v{r}"])
        for win in (1, 2):
            vv(f"v_add_u32 v{V_WA[win][sp]}, {65536*win}, v{r}", [f"v{r}"], [f"v{V_WA[win][sp]}"])
    vv(f"v_lshrrev_b32 v1, 3, {L}", [L], ["v1"]); vv(f"v_and_b32 v2, 7, {L}", [L], ["v2"])
    vv(f"v_lshl_add_u32 v3, s{S_W}, 3, v1", ["v1", f"s{S_W}"], ["v3"])
    vv("v_bfe_u32 v28, v3, 1, 3", ["v3"], ["v28"]); vv("v_xor_b32 v28, v28, v2", ["v28", "v2"], ["v28"])
    vv("v_lshlrev_b32 v28, 4, v28", ["v28"], ["v28"]); vv(f"v_lshl_add_u32 v{V_DK}, v3, 9, v28", ["v3", "v28"], [f"v{V_DK}"])
    vv("v_bfe_u32 v28, v3, 1, 2", ["v3"], ["v28"]); vv("v_lshlrev_b32 v28, 1, v28", ["v28"], ["v28"])
    vv("v_xor_b32 v28, v28, v2", ["v28", "v2"], ["v28"]); vv("v_lshlrev_b32 v28, 4, v28", ["v28"], ["v28"])
    vv(f"v_lshl_add_u32 v{V_DV}, v3, 9, v28", ["v3", "v28"], [f"v{V_DV}"])
    vv("v_bfe_u32 v28, v3, 1, 1", ["v3"], ["v28"]); vv("v_lshlrev_b32 v28, 2, v28", ["v28"], ["v28"])
    vv("v_xor_b32 v28, v28, v2", ["v28", "v2"], ["v28"]); vv("v_lshlrev_b32 v28, 4, v28", ["v28"], ["v28"])
    vv(f"v_lshl_add_u32 v{V_DW}, v3, 13, v28", ["v3", "v28"], [f"v{V_DW}"])
    a(raw("s_waitcnt lgkmcnt(0)", "wait", lgkm=0))
    a(salu(f"s_cmp_eq_u32 s{S_BR}, 0"))
    for i in range(10): a(salu(f"s_cselect_b32 s{36+i}, s{36+i}, s{46+i}"))
    if OPT.rot: a(salu(f"s_mov_b32 s{S_ROT}, s{S_T3}"))
    def srd(base, lo, hi, offs, size):
        if offs is None:
            a(salu(f"s_mov_b32 s{base}, s{lo}")); a(salu(f"s_mov_b32 s{base+1}, s{hi}"))
        else:
            a(salu(f"s_add_u32 s{base}, s{lo}, {offs}")); a(salu(f"s_addc_u32 s{base+1}, s{hi}, 0"))
        a(salu(f"s_mov_b32 s{base+2}, {size}")); a(salu(f"s_mov_b32 s{base+3}, 0x20000"))
    a(salu(f"s_mul_i32 s{S_T0}, s{S_B}, 229376")); srd(S_X, 36, 37, f"s{S_T0}", 229376)
    a(salu(f"s_lshl_b32 s{S_T0}, s{S_H}, 9")); srd(S_WQ, 42, 43, f"s{S_T0}", 0)
    a(salu(f"s_sub_u32 s{S_WQ+2}, {448*8192}, s{S_T0}"))
    a(salu(f"s_lshl_b32 s{S_T0}, s{S_B}, 4")); a(salu(f"s_add_u32 s{S_T0}, s{S_T0}, s{S_H}"))
    a(salu(f"s_lshl_b32 s{S_T0}, s{S_T0}, 19"))
    srd(S_K, 38, 39, f"s{S_T0}", 524288); srd(S_V, 40, 41, f"s{S_T0}", 524288)
    a(salu(f"s_mul_i32 s{S_T0}, s{S_H}, 229376")); srd(S_WO, 44, 45, f"s{S_T0}", 229376)
    srd(S_WS, 60, 61, None, 16 * 7 * 16 * 16 * 2048)
    srd(S_OUT, 56, 57, None, 8 * 256 * 896 * 2)
    if OPT.fused:
        srd(S_DBG, 58, 59, None, 256)
        a(salu(f"s_mov_b32 s{S_T0}, {PART_BYTES}")); srd(S_FL, 60, 61, f"s{S_T0}", 32768)
        a(salu(f"s_mov_b32 s{S_T0}, {RING_OFF}")); a(salu(f"s_add_u32 s54, s60, s{S_T0}")); a(salu("s_addc_u32 s55, s61, 0"))
        a(salu(f"s_mov_b32 s{S_RG}, s54")); a(salu(f"s_mov_b32 s{S_RG+1}, s55")); a(salu(f"s_mov_b32 s{S_RG+2}, {RING_BYTES}")); a(salu(f"s_mov_b32 s{S_RG+3}, 0x20000"))
        a(salu(f"s_getreg_b32 s{S_XCC}, hwreg(HW_REG_XCC_ID, 0, 3)"))
        a(salu(f"s_lshl_b32 s{S_SIG}, s{S_G}, 4")); a(salu(f"s_add_u32 s{S_SIG}, s{S_SIG}, s{S_H}"))
        a(salu(f"s_mul_i32 s{S_T0}, s{S_G}, {14*64}"))
        a(salu(f"s_lshl_b32 s{S_T1}, s{S_W}, 4")); a(salu(f"s_add_u32 s{S_T1}, s{S_T1}, s{S_H}")); a(salu(f"s_add_u32 s50, s{S_T0}, s{S_T1}"))
        a(salu(f"s_lshl_b32 s{S_T1}, s{S_H}, 2")); a(salu(f"s_add_u32 s{S_T1}, s{S_T1}, s{S_W}")); a(salu(f"s_add_u32 s51, s{S_T0}, s{S_T1}"))
        a(salu(f"s_add_u32 s51, s51, {CONS_OFF}"))
        a(valu(f"v_min_u32 v1, 13, v{V_LANE}", [f"v{V_LANE}"], ["v1"])); a(valu("v_lshlrev_b32 v1, 6, v1", ["v1"], ["v1"]))
        a(valu("v_mov_b32 v2, 0", [], ["v2"]))
        for sr in ("s50", "s51"):
            a(tag(I(f"buffer_store_byte v2, v1, s[{S_FL}:{S_FL+3}], {sr} offen", "vst", ["v1", "v2"], data=["v2"]), "reset"))
    return o

def add_lgkm_waits(g, cons, carried):
    seq = [(-1, regs) for regs in carried]
    for k in range(g.n):
        if g.mem[k] is not None and g.mem[k].kind == "ds": seq.append((k, g.mem[k].wr))
    lead = None
    for k, regs in cons:
        late = [n for n, (gap, w) in enumerate(seq) if gap == k - 1 and gap >= 0 and set(w) & set(regs)]
        assert not late, f"DS for MFMA {k} issued in gap {k-1}"
        idx = [n for n, (gap, w) in enumerate(seq) if gap < max(k - 1, 0) and set(w) & set(regs)]
        if not idx: continue
        last = max(idx)
        after = sum(1 for n, (gap, w) in enumerate(seq) if n > last and gap < max(k - 1, 0))
        assert after <= 15, (k, after)
        if k == 0: lead = wait_lgkm(after)
        else: g.pre[k - 1].insert(0, wait_lgkm(after))
    out = len(carried)
    if lead is not None: out = min(out, lead.meta["lgkm"])
    for k in range(g.n):
        for x in g.pre[k]:
            if "lgkm" in x.meta: out = min(out, x.meta["lgkm"])
        if g.mem[k] is not None and g.mem[k].kind == "ds":
            if out >= 14:
                assert len(g.pre[k]) == 0, k
                g.pre[k].append(wait_lgkm(8)); out = 8
            out += 1
    return lead

def place_vmem(g, gap, scalars, d, hi=None, stack=False, space=False):
    k = max(gap, 1 if stack else len(scalars))
    hi = g.n if hi is None else hi
    isdma = lambda x: x is not None and x.kind == "dma"
    while True:
        assert k < hi, f"no gap for {d.text}"
        near = OPT.vm_space and any(0 <= k + dd < g.n and dd != 0 and g.mem[k + dd] is not None and g.mem[k + dd].kind in ("vst", "vld", "dma")
                                    for dd in range(-OPT.vm_space, OPT.vm_space + 1))
        if g.mem[k] is None and not g.vec[k] and len(g.pre[k]) <= 1 and not (near and space):
            if stack:
                if not isdma(g.mem[k - 1]) and len(g.pre[k - 1]) + len(scalars) <= 3 and not any(x.kind == "barrier" for x in g.pre[k - 1]): break
            elif all(not g.pre[k - 1 - n] and not isdma(g.mem[k - 1 - n]) for n in range(len(scalars))): break
        k += 1
    if stack:
        for sc in scalars: g.put_pre(k - 1, sc)
    else:
        for n, sc in enumerate(scalars): g.put_pre(k - len(scalars) + n, sc)
    g.put_mem(k, d)
    return k

def put_scalar(g, gap, *ins):
    k = gap
    while g.pre[k]: k += 1
    g.pre[k] = list(ins)
    return k

def place_chain(g, ops, lo, hi):
    left = []
    for ins in ops:
        k = g.place_vec(ins, lo, hi) if (not left and lo < hi) else None
        if k is None: left.append(ins)
        else: lo = k + 1 if ins.kind == "trans" else k
    return lo, left

class Op:
    def __init__(self, ins, rel, dl, preds=()):
        self.ins = ins; self.rel = rel; self.dl = dl; self.preds = list(preds); self.gap = None

def list_schedule(g, ops, lo=0, hi=None):
    hi = g.n if hi is None else hi
    todo = list(ops)
    for k in range(lo, hi):
        while True:
            free = g.free_vec(k)
            if free <= 0: break
            ready = [x for x in todo if x.rel <= k and all(p.gap is not None and p.gap + d <= k for p, d in x.preds)]
            tr = [x for x in ready if x.ins.kind == "trans"]
            pl = [x for x in ready if x.ins.kind != "trans"]
            pick = None
            can_tr = free == 2 and g.mem[k] is None and not g.vec[k]
            if can_tr and tr: pick = min(tr, key=lambda x: x.dl)
            if pl:
                best = min(pl, key=lambda x: x.dl)
                if pick is None or (best.dl + 6 < pick.dl): pick = best
            if pick is None: break
            g.vec[k].append(pick.ins); pick.gap = k; todo.remove(pick)
    late = [x for x in ops if x.gap is not None and x.gap > x.dl]
    assert not late, [(x.ins.text, x.gap, x.dl) for x in late]
    return todo

def sm_ops(tile, kb, qb, rel, dl):
    i = sm_group(tile, kb, qb)
    f = [Op(i[0], rel, dl - 6), Op(i[1], rel, dl - 6), Op(i[4], rel, dl - 5), Op(i[5], rel, dl - 5)]
    x = [Op(i[2], rel, dl - 4, [(f[0], 1)]), Op(i[3], rel, dl - 4, [(f[1], 1)]), Op(i[6], rel, dl - 3, [(f[2], 1)]), Op(i[7], rel, dl - 3, [(f[3], 1)])]
    ad = [Op(i[8], rel, dl, [(x[0], 1)]), Op(i[9], rel, dl, [(x[1], 1)]), Op(i[11], rel, dl, [(x[2], 1)]), Op(i[12], rel, dl, [(x[3], 1)])]
    cv = [Op(i[10], rel, dl, [(x[0], 1), (x[1], 1)]), Op(i[13], rel, dl, [(x[2], 1), (x[3], 1)])]
    return f + x + ad + cv

def exposed(ops):
    o = []
    for n, ins in enumerate(ops):
        o.append(ins)
        if ins.kind == "trans" and n + 1 < len(ops) and ops[n + 1].kind != "trans": o.append(nop(0))
    return o

def conv_ops(acc, d, t):
    return [valu(f"v_accvgpr_read_b32 v{d}, a{acc}", [f"a{acc}"], [f"v{d}"]),
            valu(f"v_accvgpr_read_b32 v{t}, a{acc+1}", [f"a{acc+1}"], [f"v{t}"]),
            valu(f"v_accvgpr_read_b32 v{d+1}, a{acc+2}", [f"a{acc+2}"], [f"v{d+1}"]),
            valu(f"v_accvgpr_read_b32 v{t+1}, a{acc+3}", [f"a{acc+3}"], [f"v{t+1}"]),
            valu(f"v_cvt_pk_bf16_f32 v{d}, v{d}, v{t}", [f"v{d}", f"v{t}"], [f"v{d}"]),
            valu(f"v_cvt_pk_bf16_f32 v{d+1}, v{d+1}, v{t+1}", [f"v{d+1}", f"v{t+1}"], [f"v{d+1}"])]

def xlane_reduce(regs, op, tmp):
    o = []
    for swap in ("v_permlane32_swap_b32", "v_permlane16_swap_b32"):
        for n, r in enumerate(regs): o.append(valu(f"v_mov_b32 v{tmp+n}, v{r}", [f"v{r}"], [f"v{tmp+n}"]))
        o.append(nop(1))
        for n, r in enumerate(regs):
            o.append(valu(f"{swap} v{r}, v{tmp+n}", [f"v{r}", f"v{tmp+n}"], [f"v{r}", f"v{tmp+n}"]))
        o.append(nop(1))
        for n, r in enumerate(regs):
            o.append(valu(f"{op} v{r}, v{r}, v{tmp+n}", [f"v{r}", f"v{tmp+n}"], [f"v{r}"]))
    return o

def wpairs(): return [(L_X, L_X + 16384), (vslot(1), kslot(3)), (vslot(2), vslot(3))]
def wslot(tile):
    p = wpairs(); return p[(tile // 2) % len(p)][tile % 2]
XBUF = [V_S, V_P]
def xfrag(qb, cs): return XBUF[(cs // 2) & 1] + ((cs % 2) * 4 + qb) * 4
V_XD = [128, 129]
V_XR = [130, 131]
S_XB = 34
S_XCUR = 35
def x_setup():
    o = []; a = o.append
    L = f"v{V_LANE}"
    a(salu(f"s_and_b32 s{S_T1}, s{S_W}, 1")); a(salu(f"s_lshl_b32 s{S_T1}, s{S_T1}, 13"))
    a(salu(f"s_cmp_lt_u32 s{S_W}, 2")); a(salu(f"s_cselect_b32 s{S_XB}, 2, 4")); a(salu(f"s_lshl_b32 s{S_XB}, s{S_XB}, 14"))
    a(salu(f"s_add_u32 s{S_XB}, s{S_XB}, s{S_T1}"))
    assert kslot(2) == 2 << 14 and vslot(0) == 4 << 14
    a(valu(f"v_lshrrev_b32 v1, 3, {L}", [L], ["v1"])); a(valu(f"v_and_b32 v2, 7, {L}", [L], ["v2"]))
    a(valu(f"v_lshl_add_u32 v3, s{S_W}, 6, v1", ["v1", f"s{S_W}"], ["v3"]))
    a(valu("v_mul_u32_u24 v3, 896, v3", ["v3"], ["v3"]))
    a(valu("v_lshrrev_b32 v1, 1, v1", ["v1"], ["v1"]))
    for par in range(2):
        r = V_XD[par]
        a(valu(f"v_or_b32 v{r}, {4*par}, v1", ["v1"], [f"v{r}"]))
        a(valu(f"v_xor_b32 v{r}, v{r}, v2", [f"v{r}", "v2"], [f"v{r}"]))
        a(valu(f"v_lshl_add_u32 v{r}, v{r}, 4, v3", [f"v{r}", "v3"], [f"v{r}"]))
        a(valu(f"v_add_u32 v{V_XR[par]}, s{S_XB}, v{V_KA[par]}", [f"v{V_KA[par]}"], [f"v{V_XR[par]}"]))
    return o
def x_items(j):
    out = []
    for i in range(8):
        sreg = S_T2 + (i & 1)
        sc = []
        if i == 0 and j > 0: sc.append(salu(f"s_add_u32 s{S_XCUR}, s{S_XCUR}, s{S_XSTEP}", [f"s{S_XCUR}"], [f"s{S_XCUR}"]))
        sc.append(salu(f"s_add_u32 s{sreg}, s{S_XCUR}, {i*7168}", [f"s{S_XCUR}"], [f"s{sreg}"]))
        sc.append(salu(f"s_add_u32 m0, s{S_XB}, {i*1024}", [f"s{S_XB}"], ["m0"]))
        out.append((sc, tag(dma(V_XD[i & 1], S_X, f"s{sreg}", 0, OPT.x_flags), f"x{j}")))
    return out
def x_read(qb, cs): return ds_read128("v", xfrag(qb, cs), V_XR[cs & 1], qb * 2048)
def w_read(dbp, cs, jj):
    s, e = dbp >> 1, dbp & 1
    base = wslot(cs); win = base // 65536
    off = base - win * 65536 + (s >> 1) * 4096 + jj * 512 + e * 8
    return ds_read_tr("v", V_POOL + 4 * ((2 * dbp + (cs & 1)) % 8) + 2 * jj, V_WA[win][s & 1], off)

V_PF = 28
def coop_setup():
    o = []; a = o.append
    a(salu(f"s_mul_i32 s{S_T1}, s{S_H}, {112*128}"))
    a(salu(f"s_lshl_b32 s{S_T2}, s{S_W}, 12")); a(salu(f"s_add_u32 s{S_T1}, s{S_T1}, s{S_T2}"))
    a(valu(f"v_and_b32 v{V_PF}, 31, v{V_LANE}", [f"v{V_LANE}"], [f"v{V_PF}"]))
    a(valu(f"v_lshlrev_b32 v{V_PF}, 7, v{V_PF}", [f"v{V_PF}"], [f"v{V_PF}"]))
    a(valu(f"v_add_u32 v{V_PF}, s{S_T1}, v{V_PF}", [f"v{V_PF}"], [f"v{V_PF}"]))
    return o
def coop_x():
    return [tag(bload(V_PF + 1, 1, V_PF, S_X, "0", 0, OPT.pf_flags), "pf")]

V_PFW = 132
def coop_w_setup():
    o = []; a = o.append
    L = f"v{V_LANE}"
    a(salu(f"s_lshr_b32 s{S_T1}, s2, 7")); a(salu(f"s_and_b32 s{S_T1}, s{S_T1}, 1")); a(salu(f"s_lshl_b32 s{S_T1}, s{S_T1}, 5"))
    a(salu(f"s_lshl_b32 s{S_T2}, s{S_W}, 3")); a(salu(f"s_add_u32 s{S_T1}, s{S_T1}, s{S_T2}"))
    a(valu(f"v_bfe_u32 v{V_PFW}, {L}, 2, 3", [L], [f"v{V_PFW}"])); a(valu(f"v_add_u32 v{V_PFW}, s{S_T1}, v{V_PFW}", [f"v{V_PFW}"], [f"v{V_PFW}"]))
    a(valu(f"v_lshlrev_b32 v{V_PFW}, 13, v{V_PFW}", [f"v{V_PFW}"], [f"v{V_PFW}"]))
    a(valu(f"v_and_b32 v{V_PFW+1}, 3, {L}", [L], [f"v{V_PFW+1}"]))
    a(valu(f"v_lshl_add_u32 v{V_PFW}, v{V_PFW+1}, 7, v{V_PFW}", [f"v{V_PFW}", f"v{V_PFW+1}"], [f"v{V_PFW}"]))
    return o
def coop_w(j):
    return [salu(f"s_mov_b32 s{S_PFO}, {j*524288}", [], [f"s{S_PFO}"])], tag(bload(V_PFW + 1, 1, V_PFW, S_WQ, f"s{S_PFO}", 0, OPT.pf_flags), "pf")
OOL = []
def kv_off(reg, t):
    if not OPT.rot: return [salu(f"s_mov_b32 s{reg}, {t*16384}", [], [f"s{reg}"])]
    return [salu(f"s_add_u32 s{reg}, s{S_ROT}, {t*16384}", [f"s{S_ROT}"], [f"s{reg}"]), salu(f"s_and_b32 s{reg}, s{reg}, 0x7ffff", [f"s{reg}"], [f"s{reg}"])]
def phase1():
    o = []; a = o.append
    NP = 3
    a(salu(f"s_lshr_b32 s{S_T1}, s2, 7")); a(salu(f"s_and_b32 s{S_T1}, s{S_T1}, {1 if OPT.rev else 0}"))
    a(salu(f"s_cmp_eq_u32 s{S_T1}, 0"))
    a(salu(f"s_cselect_b32 s{S_WCUR}, 0, {6*524288}")); a(salu(f"s_cselect_b32 s{S_T2}, 1, -1"))
    a(salu(f"s_cselect_b32 s{S_XCUR}, 0, 768"))
    a(salu(f"s_mul_i32 s{S_WSTEP}, s{S_T2}, 524288")); a(salu(f"s_mul_i32 s{S_XSTEP}, s{S_T2}, 128"))
    o += x_setup()
    if OPT.coopx: o += coop_setup() + coop_x()
    if OPT.coopw:
        o += coop_w_setup()
        for j in range(OPT.coopw_init):
            sc, d = coop_w(j); o += sc + [d]
    def w_items(j):
        out = []
        for par in range(2):
            sreg = S_WCUR if par == 0 else S_WOFF
            for m, (m0, d) in enumerate(dma_tile("W", wslot(2 * j + par), f"s{sreg}", f"W{j}")):
                sc = [m0]
                if m == 0 and par == 0 and j > 0: sc = [salu(f"s_add_u32 s{S_WCUR}, s{S_WCUR}, s{S_WSTEP}", [f"s{S_WCUR}"], [f"s{S_WCUR}"]), m0]
                if m == 0 and par == 1: sc = [salu(f"s_add_u32 s{S_WOFF}, s{S_WCUR}, 262144", [f"s{S_WCUR}"], [f"s{S_WOFF}"]), m0]
                out.append((sc, d))
        return out
    def kv_items(kind, t):
        out = []
        for m, (m0, d) in enumerate(dma_tile(kind, kslot(t) if kind == "K" else vslot(t), f"s{S_T0}", f"{kind}{t}")):
            out.append((kv_off(S_T0, t) + [m0] if m == 0 else [m0], d))
        return out
    def now(items):
        for sc, d in items:
            o.extend(sc); a(nop(0)); a(d)
    w0 = w_items(0)
    for sc, d in w0[4:]: d.meta["tag"] = "W0b"
    now(x_items(0)); now(w0[:4]); now(w0[4:])
    if OPT.coopw:
        for j in range(OPT.coopw_init, 3):
            sc, d = coop_w(j); o += sc + [d]
    a(wait_tag("x0"))
    xr = [x_read(qb, cs) for cs in (0, 1) for qb in range(4)]
    o += xr
    a(wait_tag("W0")); a(barrier())
    if OPT.fused:
        a(salu(f"s_or_b32 s{S_T0}, s{S_XCC}, 0x80")); a(valu(f"v_mov_b32 v1, s{S_T0}", [], ["v1"])); a(valu("v_mov_b32 v2, 0", [], ["v2"]))
        a(tag(I(f"buffer_store_byte v1, v2, s[{S_DBG}:{S_DBG+3}], s{S_SIG} offen", "vst", ["v1", "v2"], data=["v1"]), "arr"))
    o += stamp("p1_first_data")
    def quad0(n): return V_POOL + 4 * (n % 8)
    def w_read0(n, jj):
        dbp, cs = n % 16, n // 16
        r = w_read(dbp, cs, jj)
        return ds_read_tr("v", quad0(n) + 2 * jj, int(r.rd[0][1:]), int(r.text.split("offset:")[1]))
    carried = [x.wr for x in xr]
    for n in range(3):
        for jj in range(2):
            r = w_read0(n, jj); a(r); carried.append(r.wr)
    early = {j: [] for j in range(7)}; after = {j: [] for j in range(7)}
    early[0] += w_items(1); early[1] += w_items(2)
    for j in range(NP, 7): after[j - NP + 1] += w_items(j)
    K = lambda t: kv_items("K", t)
    V = lambda t: kv_items("V", t)
    kv = {"early": {1: K(0), 2: K(1)}, "mid": {2: K(0), 3: K(1)}, "late": {3: K(0), 4: K(1)}}[OPT.kvpf]
    for j, l in kv.items(): early[j] += l
    after[5] += V(0)
    early[6] += K(2) + V(1) + K(3)
    after[6] += V(2)
    for j in range(7):
        ms = []
        if j == 0:
            for n in range(32):
                for qb in range(4):
                    acc = ((n % 16) * 4 + qb) * 4
                    first = n < 16
                    ms.append(mfma("a", acc, "v", quad0(n), "v", xfrag(qb, n // 16), None if first else "a", None if first else acc))
        else:
            for dbp in range(16):
                for qb in range(4):
                    for e2 in range(2):
                        acc = (dbp * 4 + qb) * 4
                        ms.append(mfma("a", acc, "v", V_POOL + 4 * ((2 * dbp + e2) % 8), "v", xfrag(qb, 2 * j + e2), "a", acc))
        g = Gaps(ms)
        if j == 0:
            for n in range(3, 32):
                for jj in range(2): g.put_mem(4 * n - 12 + 2 * jj, w_read0(n, jj))
        else:
            for dbp in range(3, 16):
                for n, (cs, jj) in enumerate([(2*j, 0), (2*j, 1), (2*j+1, 0), (2*j+1, 1)]):
                    g.put_mem(8 * dbp - 24 + 2 * n, w_read(dbp, cs, jj))
        nxt = []
        if j < 6:
            for dbp in range(3):
                for n, (cs, jj) in enumerate([(2*j+2, 0), (2*j+2, 1), (2*j+3, 0), (2*j+3, 1)]):
                    r = w_read(dbp, cs, jj); g.put_mem(104 + (1 if j == 0 else 0) + 8 * dbp + 2 * n, r); nxt.append(r.wr)
        XG = OPT.x_rd_gap if j > 0 else OPT.x_rd_gap0
        xreads = []
        if j < 6:
            for n, (cs, qb) in enumerate([(cs, qb) for cs in (2*j+2, 2*j+3) for qb in range(4)]):
                r = x_read(qb, cs); g.put_mem(XG + 2 * n, r); xreads.append(r)
        if j == 0:
            cons = [(4 * n, R("v", quad0(n), 4) + (R("v", V_S, 32) if n == 0 else [])) for n in range(32)]
        else:
            cons = [(8 * dbp, R("v", V_POOL + 4 * ((2 * dbp) % 8), 8)) for dbp in range(16)]
        if j < 6: cons.append((XG + 24, [w for r in xreads for w in r.wr]))
        cons.sort()
        lead = add_lgkm_waits(g, cons, carried)
        if j < 6:
            k = XG - 2
            while g.pre[k]: k -= 1
            g.pre[k] = [wait_tag(f"x{j+1}")]
        tags = [f"W{j+1}"] if j < 6 else ["K0"]
        k = 100
        while g.pre[k]: k -= 1
        g.pre[k] = [wait_tag(*tags), barrier()] if not OPT.p1_nowait else [barrier()]
        kb = k
        gp = 1
        if OPT.coopw and j + 3 <= 6:
            sc, d = coop_w(j + 3); gp = place_vmem(g, 2, sc, d, kb) + 1
        if j == 0:
            for sc, d in x_items(1): gp = place_vmem(g, gp, sc, d, XG - 3, stack=True) + 2
            k = 48
            while g.pre[k]: k -= 1
            g.pre[k] = [wait_tag("W0b"), barrier()]
            assert k < 52
        for sc, d in early[j]: gp = place_vmem(g, gp + len(sc) - 1, sc, d, kb) + (OPT.early_step if j != 6 else 7)
        if j < 5:
            gx = max(XG + 25, gp)
            for sc, d in x_items(j + 2): gx = place_vmem(g, gx, sc, d, stack=True) + 2
            gpa = max(kb + 2, gx)
        else: gpa = kb + 2
        for sc, d in after[j]: gpa = place_vmem(g, gpa, sc, d, stack=True) + 1
        left = []
        if j == 6:
            for dbp in range(16):
                for qb in range(4):
                    ops = conv_ops((dbp * 4 + qb) * 4, V_Q + (qb * 8 + (dbp >> 1)) * 4 + 2 * (dbp & 1), V_CT + 2 * (qb & 1))
                    if left: left += ops
                    else:
                        _, l2 = place_chain(g, ops, 8 * dbp + 2 * qb + 1 + 5, 128); left += l2
        if lead is not None: a(lead)
        em = g.emit()
        if OPT.p1_drop:
            def keep(x):
                if x.kind in ("dma", "vld"):
                    t = x.meta.get("tag", "")
                    for c in OPT.p1_drop:
                        if t.startswith(c): return False
                return True
            em = [x for x in em if keep(x)]
        if OPT.p1_noread: em = [x for x in em if x.kind != "ds" and not (x.kind == "wait" and "lgkm" in x.meta)]
        o += em
        carried = nxt
        if OPT.p1_steps: o += stamp(f"step{j}")
        if left: a(nop(7)); o += left
    if not OPT.p1_steps: o += stamp("p1_end")
    return o

def k_read(t, kb, s):
    return ds_read128("v", V_POOL + 4 * s, V_KA[s & 1], (kslot(t) - L_K) + (s >> 1) * 4096 + kb * 2048)
def v_read(t, db, jj):
    return ds_read_tr("v", V_POOL + 4 * (db % 8) + 2 * jj, V_VA[db & 3], (vslot(t) - L_V) + (db >> 2) * 4096 + jj * 2048)
def Sreg(kb, qb): return V_S + (kb * 4 + qb) * 4
def Preg(buf, qb): return V_P + buf * 16 + qb * 4
def qk_mfmas():
    ms = []
    for i in range(64):
        kb, sp, qb, e = i >> 5, (i >> 3) & 3, (i >> 1) & 3, i & 1
        s = 2 * sp + e; d = Sreg(kb, qb)
        ms.append(mfma("v", d, "v", V_POOL + 4 * s, "v", V_Q + (qb * 8 + s) * 4, None if s == 0 else "v", None if s == 0 else d))
    return ms
def pv_mfmas(t, first):
    ms = []
    for i in range(64):
        db, qb = i >> 2, i & 3
        acc = (db * 4 + qb) * 4
        ms.append(mfma("a", acc, "v", V_POOL + 4 * (db % 8), "v", Preg(t & 1, qb), None if first else "a", None if first else acc))
    return ms
def sm_group(tile, kb, qb):
    s = Sreg(kb, qb); p = Preg(tile & 1, qb) + 2 * kb; mc = V_MC + qb; l = V_L + qb
    f = lambda r: valu(f"v_fma_f32 v{s+r}, v{s+r}, s{S_C}, v{mc}", [f"v{s+r}", f"v{mc}", f"s{S_C}"], [f"v{s+r}"])
    x = lambda r: trans(f"v_exp_f32 v{s+r}, v{s+r}", [f"v{s+r}"], [f"v{s+r}"])
    ad = lambda r: valu(f"v_add_f32 v{l}, v{l}, v{s+r}", [f"v{l}", f"v{s+r}"], [f"v{l}"])
    cv = lambda r: valu(f"v_cvt_pk_bf16_f32 v{p+r//2}, v{s+r}, v{s+r+1}", [f"v{s+r}", f"v{s+r+1}"], [f"v{p+r//2}"])
    return [f(0), f(1), x(0), x(1), f(2), f(3), x(2), x(3), ad(0), ad(1), cv(0), ad(2), ad(3), cv(2)]

def pre_iter():
    o = []; a = o.append
    carried = []
    for s in range(8):
        r = k_read(0, 0, s); a(r); carried.append(r.wr)
    g = Gaps(qk_mfmas())
    for s in range(8): g.put_mem(8 * (s >> 1) + 10 + 4 * (s & 1), k_read(0, 1, s))
    cons = [(8 * p, R("v", V_POOL + 8 * (p % 4), 8)) for p in range(8)]
    a(add_lgkm_waits(g, cons, carried)); o += g.emit()
    a(wait_tag("K1", "V0")); a(barrier())
    o += kv_off(S_KOFF, 4)
    for m0, d in dma_tile("K", kslot(4), f"s{S_KOFF}", "K4"): a(m0); a(nop(0)); a(d)
    o += kv_off(S_KOFF, 5) + kv_off(S_VOFF, 3)
    carried = []
    for s in range(8):
        r = k_read(1, 0, s); a(r); carried.append(r.wr)
    for qb in range(4):
        m = V_MC + qb; s0 = Sreg(0, qb); s1 = Sreg(1, qb)
        a(valu(f"v_max3_f32 v{m}, v{s0}, v{s0+1}, v{s0+2}", R("v", s0, 3), [f"v{m}"]))
        a(valu(f"v_max3_f32 v{m}, v{m}, v{s0+3}, v{s1}", [f"v{m}", f"v{s0+3}", f"v{s1}"], [f"v{m}"]))
        a(valu(f"v_max3_f32 v{m}, v{m}, v{s1+1}, v{s1+2}", [f"v{m}", f"v{s1+1}", f"v{s1+2}"], [f"v{m}"]))
        a(valu(f"v_max_f32 v{m}, v{m}, v{s1+3}", [f"v{m}", f"v{s1+3}"], [f"v{m}"]))
    o += xlane_reduce([V_MC + q for q in range(4)], "v_max_f32", V_SP)
    for qb in range(4):
        m = V_MC + qb
        a(valu(f"v_mul_f32 v{m}, s{S_C}, v{m}", [f"v{m}", f"s{S_C}"], [f"v{m}"]))
        a(valu(f"v_sub_f32 v{m}, 0, v{m}", [f"v{m}"], [f"v{m}"]))
        a(valu(f"v_mov_b32 v{V_L+qb}, 0", [], [f"v{V_L+qb}"]))
    for kb, qb in [(0, 0), (0, 1), (0, 2), (0, 3), (1, 0), (1, 1)]: o += exposed(sm_group(0, kb, qb))
    o += stamp("pre_iter_end")
    return o, carried

def attn_iter(t, carried, vmw, prev, cur, first=False, adv=True, loopctl=False, extra=None, loop_body=False):
    g = Gaps(qk_mfmas() + pv_mfmas(t, first))
    for s in range(8): g.put_mem(8 * (s >> 1) + 10 + 4 * (s & 1), k_read(t + 1, 1, s))
    for db in range(16):
        for jj in range(2): g.put_mem(44 + 4 * db + 2 * jj, v_read(t, db, jj))
    nxt = []
    if t + 2 <= 31:
        for s, gap in zip(range(8), [108, 110, 112, 114, 116, 120, 124, 127]):
            r = k_read(t + 2, 0, s); g.put_mem(gap, r); nxt.append(r.wr)
    else:
        for db in range(5):
            for jj in range(2):
                r = v_read(t + 1, db, jj); g.put_mem(108 + 4 * db + 2 * jj, r); nxt.append(r.wr)
    cons = [(8 * p, R("v", V_POOL + 8 * (p % 4), 8)) for p in range(8)]
    cons += [(64 + 4 * db, R("v", V_POOL + 4 * (db % 8), 4)) for db in range(16)]
    lead = add_lgkm_waits(g, cons, carried)
    kb = 98
    while g.pre[kb]: kb -= 1
    g.pre[kb] = [vmw, barrier()]
    if OPT.bar_stamps and loop_body:
        g.pre[kb] = [raw("s_memtime s[94:95]", "salu"), vmw, raw("s_memtime s[96:97]", "salu"), barrier(), raw("s_memtime s[98:99]", "salu"),
                     raw("s_waitcnt lgkmcnt(0)", "wait", lgkm=0),
                     salu("s_sub_u32 s96, s96, s94"), salu("s_add_u32 s92, s92, s96"),
                     salu("s_sub_u32 s98, s98, s94"), salu("s_add_u32 s93, s93, s98")]
    gp_prev, gp_cur = OPT.dma_gaps
    placed = [place_vmem(g, gap, [m0], d, kb) for gap, (m0, d) in zip(gp_prev, prev)]
    for gap, (m0, d) in zip(gp_cur, cur): place_vmem(g, gap, [m0], d)
    if adv:
        for reg, srd, at in ((S_VOFF, S_V, (placed[OPT.nv_prev - 1] if OPT.nv_prev else 1) + 1), (S_KOFF, S_K, placed[-1] + 1)):
            k = put_scalar(g, at, salu(f"s_add_u32 s{reg}, s{reg}, 16384", [f"s{reg}"], [f"s{reg}"]))
            k = put_scalar(g, k + 1, salu(f"s_and_b32 s{reg}, s{reg}, 0x7ffff", [f"s{reg}"], [f"s{reg}"]))
            assert k < 100
        if loopctl:
            first_k = placed[-4]
            k = put_scalar(g, 2, salu(f"s_cmp_eq_u32 s{S_LOOP}, 1", [f"s{S_LOOP}"], ["scc"]),
                           salu(f"s_cselect_b32 s{S_K+2}, 0, 524288", ["scc"], [f"s{S_K+2}"]))
            assert k < first_k - 1
    if loopctl:
        k = put_scalar(g, 119, salu(f"s_sub_u32 s{S_LOOP}, s{S_LOOP}, 1", [f"s{S_LOOP}"], [f"s{S_LOOP}"]))
        k = put_scalar(g, k + 1, salu(f"s_cmp_lg_u32 s{S_LOOP}, 0", [f"s{S_LOOP}"], ["scc"]))
        assert k <= 127
        for kk in range(k + 1, 128):
            assert all(x.kind == "wait" for x in g.pre[kk]), "SCC clobbered before the loop branch"
    if extra: extra(g, kb)
    ops = []
    for qb in (2, 3): ops += sm_ops(t, 1, qb, 0, 31 + 2 * qb)
    for qb in range(4): ops += sm_ops(t + 1, 0, qb, 25 + 2 * qb + 6, 100 + 6 * qb)
    for qb in (0, 1): ops += sm_ops(t + 1, 1, qb, 57 + 2 * qb + 6, 124 + 3 * qb)
    left = list_schedule(g, ops)
    if OPT.vfirst:
        cand = [k for k in range(128) if g.mem[k] is not None and g.mem[k].kind == "ds" and len(g.vec[k]) == 1 and g.vec[k][0].kind == "valu"
                and not (set(g.vec[k][0].wr) & set(g.mem[k].rd + g.mem[k].wr))]
        n = min(OPT.vfirst, len(cand))
        for i in range(n): g.vec_first.add(cand[(i * len(cand)) // n])
    if OPT.pad_iter:
        for n in range(OPT.pad_iter): g.post[(n * 128) // OPT.pad_iter + 3].append(nop(3))
    assert not left, f"softmax groups do not fit: {len(left)} left"
    return [lead] + g.emit(), nxt

def safe_attn():
    o = []; a = o.append
    VM, VT, VA_, TMP = 20, 24, 28, 112
    a(label("L_safe_attn")); a(wait_vm(0)); a(raw("s_waitcnt lgkmcnt(0)", "wait", lgkm=0)); a(barrier())
    for r in range(256): a(valu(f"v_accvgpr_write_b32 a{r}, 0", [], [f"a{r}"]))
    for qb in range(4):
        a(valu(f"v_mov_b32 v{VM+qb}, 0xff800000", [], [f"v{VM+qb}"])); a(valu(f"v_mov_b32 v{V_L+qb}, 0", [], [f"v{V_L+qb}"]))
    a(salu(f"s_mov_b32 s{S_KOFF}, 0")); a(salu(f"s_mov_b32 s{S_LOOP}, 32"))
    a(label("L_safe_loop"))
    for kind, slot in (("K", kslot(0)), ("V", vslot(0))):
        for m0, d in dma_tile(kind, slot, f"s{S_KOFF}", "safe"): a(m0); a(nop(0)); a(d)
    a(wait_vm(0)); a(barrier())
    qk = qk_mfmas()
    for kb in range(2):
        for s_ in range(8): a(k_read(0, kb, s_))
        a(wait_lgkm(0)); o += qk[32 * kb:32 * kb + 32]
    a(nop(7)); a(nop(7))
    for qb in range(4):
        t = VT + qb; s0 = Sreg(0, qb); s1 = Sreg(1, qb)
        a(valu(f"v_max3_f32 v{t}, v{s0}, v{s0+1}, v{s0+2}", [], [])); a(valu(f"v_max3_f32 v{t}, v{t}, v{s0+3}, v{s1}", [], []))
        a(valu(f"v_max3_f32 v{t}, v{t}, v{s1+1}, v{s1+2}", [], [])); a(valu(f"v_max_f32 v{t}, v{t}, v{s1+3}", [], []))
    o += xlane_reduce([VT + q for q in range(4)], "v_max_f32", TMP)
    for qb in range(4):
        a(valu(f"v_max_f32 v{VT+qb}, v{VT+qb}, v{VM+qb}", [], []))
        a(valu(f"v_sub_f32 v{VA_+qb}, v{VM+qb}, v{VT+qb}", [], [])); a(valu(f"v_mul_f32 v{VA_+qb}, s{S_C}, v{VA_+qb}", [], []))
        a(trans(f"v_exp_f32 v{VA_+qb}, v{VA_+qb}", [], [])); a(valu(f"v_mov_b32 v{VM+qb}, v{VT+qb}", [], []))
        a(valu(f"v_mul_f32 v{V_MC+qb}, s{S_C}, v{VT+qb}", [], [])); a(valu(f"v_sub_f32 v{V_MC+qb}, 0, v{V_MC+qb}", [], []))
        a(valu(f"v_mul_f32 v{V_L+qb}, v{V_L+qb}, v{VA_+qb}", [], []))
    for r in range(256):
        qb = (r >> 2) & 3; t = TMP + (r & 7)
        a(valu(f"v_accvgpr_read_b32 v{t}, a{r}", [], [])); a(valu(f"v_mul_f32 v{t}, v{t}, v{VA_+qb}", [], [])); a(valu(f"v_accvgpr_write_b32 a{r}, v{t}", [], []))
    for kb in range(2):
        for qb in range(4): o += exposed(sm_group(0, kb, qb))
    pv = pv_mfmas(0, False)
    for half in range(2):
        for db in range(8 * half, 8 * half + 8):
            for jj in range(2):
                a(v_read(0, db, jj))
            if db % 4 == 3: a(wait_lgkm(0))
        a(nop(1)); o += pv[32 * half:32 * half + 32]
    a(salu(f"s_add_u32 s{S_KOFF}, s{S_KOFF}, 16384")); a(salu(f"s_sub_u32 s{S_LOOP}, s{S_LOOP}, 1")); a(salu(f"s_cmp_lg_u32 s{S_LOOP}, 0"))
    a(barrier()); a(raw("s_cbranch_scc1 L_safe_loop", "branch"))
    a(nop(7)); a(nop(7))
    o += xlane_reduce([V_L + q for q in range(4)], "v_add_f32", TMP)
    for qb in range(4): a(trans(f"v_rcp_f32 v{V_L+qb}, v{V_L+qb}", [], []))
    a(nop(0))
    for db in range(16):
        for qb in range(4):
            o += conv_ops((db * 4 + qb) * 4, V_Q + (qb * 8 + (db >> 1)) * 4 + 2 * (db & 1), V_SP + 8 + 2 * (qb & 1))
    o += wo_setup()
    if OPT.fused: o += grp_setup() + [nop(1), mode_load()]
    for j in range(4):
        for sc, d in wo_dma(j): o += sc + [nop(0), d]
    a(wait_vm(0)); a(raw("s_branch L_p3_entry", "branch"))
    return o

def last_iter(carried):
    o = []; a = o.append
    for qb in (2, 3): o += exposed(sm_group(31, 1, qb))
    o += xlane_reduce([V_L + q for q in range(4)], "v_add_f32", V_SP)
    a(salu(f"s_mov_b32 s{S_T0}, 0x{f32bits(L_LIMIT):08x}"))
    for qb in range(4):
        a(valu(f"v_cmp_nge_f32 s[{50+2*(qb&1)}:{51+2*(qb&1)}], s{S_T0}, v{V_L+qb}", [f"v{V_L+qb}"], [f"s{50+2*(qb&1)}", f"s{51+2*(qb&1)}"]))
        if qb & 1:
            a(nop(0)); a(salu("s_or_b64 s[50:51], s[50:51], s[52:53]"))
            a(salu("s_mov_b64 s[54:55], s[50:51]") if qb == 1 else salu("s_or_b64 s[54:55], s[54:55], s[50:51]"))
    a(salu("s_cselect_b32 s50, 1, 0"))
    a(salu(f"s_lshl_b32 s51, s{S_W}, 2")); a(salu(f"s_add_u32 s51, s51, {L_VOTE}"))
    a(valu(f"v_mov_b32 v{V_SP}, s50", [], [f"v{V_SP}"])); a(valu(f"v_mov_b32 v{V_SP+1}, s51", [], [f"v{V_SP+1}"]))
    a(I(f"ds_write_b32 v{V_SP+1}, v{V_SP}", "ds", [f"v{V_SP}", f"v{V_SP+1}"], []))
    carried = carried + [[]]
    for qb in range(4): a(trans(f"v_rcp_f32 v{V_L+qb}, v{V_L+qb}", [f"v{V_L+qb}"], [f"v{V_L+qb}"]))
    a(nop(0))
    g = Gaps(pv_mfmas(31, False))
    for db in range(5, 8):
        for jj in range(2): g.put_mem(4 * (db - 5) + 2 * jj, v_read(31, db, jj))
    for db in range(8, 16):
        for jj in range(2): g.put_mem(12 + 4 * (db - 8) + 2 * jj, v_read(31, db, jj))
    cons = [(4 * db, R("v", V_POOL + 4 * (db % 8), 4)) for db in range(16)]
    lead = add_lgkm_waits(g, cons, carried)
    gp = put_wo(g, 2, 2, step=0)
    put_wo(g, 3, gp, step=0)
    left = []
    for db in range(16):
        for qb in range(4):
            ops = conv_ops((db * 4 + qb) * 4, V_Q + (qb * 8 + (db >> 1)) * 4 + 2 * (db & 1), V_SP + 8 + 2 * (qb & 1))
            if left: left += ops
            else:
                _, l2 = place_chain(g, ops, 4 * db + qb + 5, 64); left += l2
    a(lead); o += g.emit()
    a(nop(7)); o += left
    return o

WOBUF = [L_X, L_K, L_K + 32768, L_V, L_V + 32768, L_X, L_K]
V_DWO = 3; V_STO = V_DV
V_FR3 = 32; V_ACC3 = V_P; V_STG = 16
def wo_dma(j):
    out = []
    for i in range(8):
        sreg = S_T0 + (i & 1)
        out.append(([salu(f"s_mov_b32 s{sreg}, {j*128 + i*32*896}", [], [f"s{sreg}"]),
                     salu(f"s_add_u32 m0, s{S_W1K}, {WOBUF[j] + i*4096}", [f"s{S_W1K}"], ["m0"])],
                    tag(dma(V_DWO, S_WO, f"s{sreg}", 0, OPT.wo_flags), f"wo{j}")))
    return out
def wo_setup():
    o = []; a = o.append
    L = f"v{V_LANE}"
    a(valu(f"v_lshrrev_b32 v1, 3, {L}", [L], ["v1"])); a(valu(f"v_and_b32 v2, 7, {L}", [L], ["v2"]))
    a(valu(f"v_lshl_add_u32 v3, s{S_W}, 3, v1", ["v1", f"s{S_W}"], ["v3"]))
    a(valu("v_bfe_u32 v1, v1, 1, 2", ["v1"], ["v1"])); a(valu("v_lshlrev_b32 v1, 1, v1", ["v1"], ["v1"]))
    a(valu("v_xor_b32 v1, v1, v2", ["v1", "v2"], ["v1"])); a(valu("v_lshlrev_b32 v1, 4, v1", ["v1"], ["v1"]))
    a(valu("v_mul_u32_u24 v3, 896, v3", ["v3"], ["v3"]))
    a(valu(f"v_add_u32 v{V_DWO}, v3, v1", ["v3", "v1"], [f"v{V_DWO}"]))
    return o
V_WOT = 2
def wo_touch_setup():
    return [valu(f"v_lshl_add_u32 v{V_WOT}, s{S_W}, 6, v{V_LANE}", [f"v{V_LANE}"], [f"v{V_WOT}"]),
            valu(f"v_mul_u32_u24 v{V_WOT}, 896, v{V_WOT}", [f"v{V_WOT}"], [f"v{V_WOT}"])]
def wo_touch(j): return tag(bload(1, 1, V_WOT, S_WO, "0", j * 128, OPT.wt_flags), "wt")
def put_wo(g, j, start, hi=None, step=3):
    gp = start
    for sc, d in wo_dma(j): gp = place_vmem(g, gp, sc, d, hi) + step
    return gp
def va_shift(delta):
    t = (lambda r: f"v_add_u32 v{r}, {delta}, v{r}") if delta >= 0 else (lambda r: f"v_subrev_u32 v{r}, {-delta}, v{r}")
    return [valu(t(r), [f"v{r}"], [f"v{r}"]) for r in V_VA]

def part_ops(nb, qb):
    acc = V_ACC3 + 4 * ((nb * 4 + qb) % 8)
    st = V_STG + 4 * qb + 2 * (nb & 1)
    li = V_L + qb
    ops = [valu(f"v_mul_f32 v{acc+r}, v{acc+r}, v{li}", [f"v{acc+r}", f"v{li}"], [f"v{acc+r}"]) for r in range(4)]
    ops += [valu(f"v_cvt_pk_bf16_f32 v{st}, v{acc}, v{acc+1}", [f"v{acc}", f"v{acc+1}"], [f"v{st}"]),
            valu(f"v_cvt_pk_bf16_f32 v{st+1}, v{acc+2}, v{acc+3}", [f"v{acc+2}", f"v{acc+3}"], [f"v{st+1}"])]
    return ops

A_FR3 = 0; A_SEL = 224
V_POLLA, V_POLL, V_ONE, V_ZERO, V_RLD, V_OUT = 32, 33, 34, 35, 36, 37
V_RD = 40
V_GRP = V_ARR + 3
def wo_read(nb, s_, jj):
    return ds_read_tr("a", A_FR3 + 4 * (8 * (nb & 1) + s_) + 2 * jj, V_VA[nb], s_ * 4096 + jj * 2048)

V_GA = V_ARR + 2
def grp_setup():
    return [salu(f"s_lshl_b32 s{S_T0}, s{S_G}, 4"), valu(f"v_and_b32 v{V_GA}, 3, v{V_LANE}", [f"v{V_LANE}"], [f"v{V_GA}"]),
            valu(f"v_lshlrev_b32 v{V_GA}, 2, v{V_GA}", [f"v{V_GA}"], [f"v{V_GA}"]), valu(f"v_add_u32 v{V_GA}, s{S_T0}, v{V_GA}", [f"v{V_GA}"], [f"v{V_GA}"])]
V_GA3 = 38
def grp_load(dst, tg, ga=V_GA): return tag(bload(dst, 1, ga, S_DBG, "0", 0, "sc1"), tg)
def splat(x): return x * 0x01010101
def mode_load(): return grp_load(V_ARR, "grp")
def mode_check():
    o = []; a = o.append
    a(salu(f"s_or_b32 s{S_T0}, s{S_XCC}, 0x80")); a(salu(f"s_mul_i32 s50, s{S_T0}, 0x01010101"))
    a(wait_tag("grp"))
    a(valu(f"v_and_b32 v{V_ARR}, 0x87878787, v{V_ARR}", [f"v{V_ARR}"], [f"v{V_ARR}"]))
    a(valu(f"v_cmp_eq_u32 vcc, s50, v{V_ARR}", [f"v{V_ARR}"], ["vcc"])); a(nop(0))
    a(salu("s_cmp_eq_u64 vcc, -1"))
    a(salu(f"s_cselect_b64 s[{S_LOCM}:{S_LOCM+1}], -1, 0"))
    if OPT.force_fallback: a(salu("s_cmp_eq_u32 s50, 0"))
    a(raw("s_cbranch_scc0 L_grp_far", "branch")); a(label("L_grp_ok"))
    f = [label("L_grp_far"), salu(f"s_or_b32 s{S_T0}, s{S_XCC}, 0x80"), valu(f"v_mov_b32 v{V_ARR+1}, s{S_T0}", [], []),
         valu(f"v_mov_b32 v{V_ARR+3}, 0", [], []),
         raw(f"buffer_store_byte v{V_ARR+1}, v{V_ARR+3}, s[{S_DBG}:{S_DBG+3}], s{S_SIG} offen sc1", "salu"), wait_vm(0),
         salu(f"s_mov_b32 s{S_SPIN}, {SPIN_MAX}"), label("L_grp_again"),
         salu(f"s_sub_u32 s{S_SPIN}, s{S_SPIN}, 1"), salu(f"s_cmp_eq_u32 s{S_SPIN}, 0"), raw("s_cbranch_scc1 L_grp_ok", "branch")]
    if not OPT.force_fallback:
        f += [raw(f"buffer_load_dword v{V_ARR}, v{V_GA}, s[{S_DBG}:{S_DBG+3}], 0 offen sc1", "salu"), wait_vm(0),
              valu(f"v_and_b32 v{V_ARR}, 0x87878787, v{V_ARR}", [], []), valu(f"v_cmp_eq_u32 vcc, s50, v{V_ARR}", [], []), nop(0),
              salu("s_cmp_eq_u64 vcc, -1"), salu(f"s_cselect_b64 s[{S_LOCM}:{S_LOCM+1}], -1, 0"), raw("s_cbranch_scc1 L_grp_ok", "branch")]
    f += far_read(V_ARR)
    f += [valu(f"v_and_b32 v{V_ARR+1}, 0x80808080, v{V_ARR}", [], []), valu(f"v_cmp_eq_u32 vcc, 0x80808080, v{V_ARR+1}", [], []), nop(0),
          salu("s_and_b64 s[52:53], vcc, 15"), salu("s_cmp_eq_u64 s[52:53], 15"), raw("s_cbranch_scc0 L_grp_again", "branch"),
          valu(f"v_and_b32 v{V_ARR}, 0x87878787, v{V_ARR}", [], []), valu(f"v_cmp_eq_u32 vcc, s50, v{V_ARR}", [], []), nop(0),
          salu("s_and_b64 s[52:53], vcc, 15"), salu("s_cmp_eq_u64 s[52:53], 15"),
          salu(f"s_cselect_b64 s[{S_LOCM}:{S_LOCM+1}], -1, 0")]
    if OPT.force_fallback: f.append(salu(f"s_mov_b64 s[{S_LOCM}:{S_LOCM+1}], 0"))
    f.append(raw("s_branch L_grp_ok", "branch"))
    OOL.extend(f)
    return o
def far_read(dst, ga=V_GA):
    return [valu(f"v_mov_b32 v{dst}, 0", [], []), valu(f"v_cmp_gt_u32 vcc, 4, v{V_LANE}", [], []),
            raw("s_and_saveexec_b64 s[54:55], vcc", "salu"),
            raw(f"buffer_atomic_add v{dst}, v{ga}, s[{S_DBG}:{S_DBG+3}], 0 offen sc0 sc1", "salu"), wait_vm(0),
            raw("s_mov_b64 exec, s[54:55]", "salu")]

def p3_setup():
    o = []; a = o.append
    L = f"v{V_LANE}"
    a(salu(f"s_mul_i32 s{S_PART}, s{S_G}, {7*16*16*2048}"))
    a(salu(f"s_lshl_b32 s{S_T2}, s{S_H}, 15")); a(salu(f"s_add_u32 s{S_RBASE}, s{S_PART}, s{S_T2}"))
    a(salu(f"s_lshl_b32 s{S_T2}, s{S_W}, 17")); a(salu(f"s_add_u32 s{S_PART}, s{S_PART}, s{S_T2}"))
    a(salu(f"s_lshl_b32 s{S_T2}, s{S_H}, 11")); a(salu(f"s_add_u32 s{S_PART}, s{S_PART}, s{S_T2}"))
    a(valu(f"v_lshlrev_b32 v{V_STO}, 4, {L}", [L], [f"v{V_STO}"]))
    if not OPT.fused: return o
    a(valu(f"v_mov_b32 v{V_ZERO}, 0", [], [f"v{V_ZERO}"])); a(valu(f"v_mov_b32 v{V_GA3}, v{V_GA}", [f"v{V_GA}"], [f"v{V_GA3}"]))
    a(salu(f"s_or_b32 s{S_T2}, s{S_XCC}, 0xf0")); a(valu(f"v_mov_b32 v{V_ONE}, s{S_T2}", [], [f"v{V_ONE}"]))
    a(valu(f"v_lshrrev_b32 v1, 5, {L}", [L], ["v1"])); a(valu("v_lshlrev_b32 v1, 11, v1", ["v1"], ["v1"]))
    a(valu(f"v_and_b32 v2, 31, {L}", [L], ["v2"])); a(valu(f"v_lshl_add_u32 v{V_RLD}, v2, 4, v1", ["v1", "v2"], [f"v{V_RLD}"]))
    a(salu(f"s_lshl_b32 s{S_T2}, s{S_W}, 9")); a(valu(f"v_add_u32 v{V_RLD}, s{S_T2}, v{V_RLD}", [f"v{V_RLD}"], [f"v{V_RLD}"]))
    a(valu(f"v_and_b32 v1, 15, {L}", [L], ["v1"])); a(valu(f"v_lshrrev_b32 v2, 4, {L}", [L], ["v2"]))
    a(valu("v_lshrrev_b32 v4, 3, v1", ["v1"], ["v4"])); a(valu("v_and_b32 v5, 1, v2", ["v2"], ["v5"]))
    a(valu("v_and_b32 v48, 1, v1", ["v1"], ["v48"])); a(valu("v_lshlrev_b32 v48, 4, v48", ["v48"], ["v48"]))
    a(valu("v_mov_b32 v49, 0x3f80", [], ["v49"])); a(valu("v_lshlrev_b32 v49, v48, v49", ["v48", "v49"], ["v49"]))
    a(valu("v_cmp_eq_u32 vcc, v4, v5", ["v4", "v5"], ["vcc"])); a(nop(1))
    a(valu("v_cndmask_b32 v49, 0, v49, vcc", ["v49", "vcc"], ["v49"]))
    a(valu("v_bfe_u32 v50, v1, 1, 2", ["v1"], ["v50"]))
    for r in range(4):
        a(valu(f"v_cmp_eq_u32 vcc, {r}, v50", ["v50"], ["vcc"])); a(nop(1))
        a(valu("v_cndmask_b32 v51, 0, v49, vcc", ["v49", "vcc"], ["v51"]))
        a(valu(f"v_accvgpr_write_b32 a{A_SEL+r}, v51", ["v51"], [f"a{A_SEL+r}"]))
    a(salu(f"s_lshl_b32 s{S_T2}, s{S_B}, 8")); a(salu(f"s_lshl_b32 s{S_T3}, s{S_H}, 4")); a(salu(f"s_add_u32 s{S_T2}, s{S_T2}, s{S_T3}"))
    a(valu(f"v_add_u32 v{V_OUT}, s{S_T2}, v1", ["v1"], [f"v{V_OUT}"])); a(valu(f"v_mul_u32_u24 v{V_OUT}, 896, v{V_OUT}", [f"v{V_OUT}"], [f"v{V_OUT}"]))
    a(salu(f"s_mul_i32 s{S_T2}, s{S_BR}, 448")); a(salu(f"s_lshr_b32 s{S_T3}, s{S_W}, 1")); a(salu(f"s_lshl_b32 s{S_T3}, s{S_T3}, 5"))
    a(salu(f"s_add_u32 s{S_T2}, s{S_T2}, s{S_T3}")); a(salu(f"s_and_b32 s{S_T3}, s{S_W}, 1")); a(salu(f"s_lshl_b32 s{S_T3}, s{S_T3}, 3"))
    a(salu(f"s_add_u32 s{S_T2}, s{S_T2}, s{S_T3}"))
    a(valu(f"v_add_u32 v{V_OUT}, s{S_T2}, v{V_OUT}", [f"v{V_OUT}"], [f"v{V_OUT}"]))
    a(valu(f"v_lshl_add_u32 v{V_OUT}, v5, 4, v{V_OUT}", ["v5", f"v{V_OUT}"], [f"v{V_OUT}"]))
    a(valu("v_lshrrev_b32 v4, 1, v2", ["v2"], ["v4"])); a(valu(f"v_lshl_add_u32 v{V_OUT}, v4, 2, v{V_OUT}", ["v4", f"v{V_OUT}"], [f"v{V_OUT}"]))
    a(valu(f"v_lshlrev_b32 v{V_OUT}, 1, v{V_OUT}", [f"v{V_OUT}"], [f"v{V_OUT}"]))
    return o

def handoff_far():
    o = [wait_vm(0), barrier(), raw("buffer_wbl2 sc1", "salu"), wait_vm(0), barrier(),
         raw(f"buffer_store_byte v{V_ONE}, v{V_ZERO}, s[{S_DBG}:{S_DBG+3}], s{S_SIG} offen sc1", "salu"), wait_vm(0),
         salu(f"s_mov_b32 s{S_SPIN}, {SPIN_MAX}"), label("L_far_poll"),
         salu(f"s_sub_u32 s{S_SPIN}, s{S_SPIN}, 1"), salu(f"s_cmp_eq_u32 s{S_SPIN}, 0"), raw("s_cbranch_scc1 L_far_done", "branch")]
    o += far_read(V_POLL, V_GA3)
    o += [valu(f"v_and_b32 v{V_POLL}, 0xf0f0f0f0, v{V_POLL}", [], []), valu(f"v_cmp_eq_u32 vcc, 0xf0f0f0f0, v{V_POLL}", [], []), nop(0),
          salu("s_and_b64 s[52:53], vcc, 15"), salu("s_cmp_eq_u64 s[52:53], 15"), raw("s_cbranch_scc0 L_far_poll", "branch"),
          label("L_far_done"), raw("buffer_inv sc1", "salu"), wait_vm(0)]
    return o

A_PIECE = 0; A_SEL2 = 224
def red_loads(j):
    out = []
    for i in range(8):
        sr = "s52" if i % 2 == 0 else "s53"
        out.append(([salu(f"s_add_u32 {sr}, s{S_RBASE}, {j*16*32768 + i*4096}", [f"s{S_RBASE}"], [sr])],
                    tag(bload_f("a", A_PIECE + 32 * j + 4 * i, 4, V_RLD, S_WS, sr, 0, "sc1"), f"rl{j}")))
    return out
def red_mfmas(j):
    d = V_RD + 4 * (j & 1)
    return [mfma("v", d, "a", A_SEL2, "a", A_PIECE + 32 * j + 4 * i, None if i == 0 else "v", None if i == 0 else d) for i in range(8)]
def red_out(j):
    d = V_RD + 4 * (j & 1)
    return [valu(f"v_cvt_pk_bf16_f32 v{d}, v{d}, v{d+1}", [f"v{d}", f"v{d+1}"], [f"v{d}"]),
            valu(f"v_cvt_pk_bf16_f32 v{d+1}, v{d+2}, v{d+3}", [f"v{d+2}", f"v{d+3}"], [f"v{d+1}"])], tag(bstore(d, 2, V_OUT, S_OUT, "0", j * 128), f"out{j}")

A_RING = 64; A_SEL4 = 96
V_RLD4, V_OUT4, V_FLA, V_FLAG1 = 48, 49, 50, 51
def ring_setup():
    o = []; a = o.append
    L = f"v{V_LANE}"
    a(salu(f"s_mul_i32 s{S_T0}, s{S_G}, {OPT.ring * 262144}"))
    a(salu(f"s_lshl_b32 s{S_T1}, s{S_W}, 16")); a(salu(f"s_add_u32 s{S_RST}, s{S_T0}, s{S_T1}"))
    a(salu(f"s_lshl_b32 s{S_T1}, s{S_H}, 10")); a(salu(f"s_add_u32 s{S_RST}, s{S_RST}, s{S_T1}"))
    a(salu(f"s_lshl_b32 s{S_T1}, s{S_H}, 14")); a(salu(f"s_add_u32 s{S_RLD}, s{S_T0}, s{S_T1}"))
    a(salu(f"s_mul_i32 s{S_T0}, s{S_G}, {14*64}"))
    a(salu(f"s_lshl_b32 s{S_T1}, s{S_W}, 4"))
    a(salu(f"s_add_u32 s{S_FPW}, s{S_T0}, s{S_T1}")); a(salu(f"s_add_u32 s{S_FPW}, s{S_FPW}, s{S_H}"))
    a(salu(f"s_add_u32 s{S_FCR}, s{S_T0}, s{S_T1}")); a(salu(f"s_add_u32 s{S_FCR}, s{S_FCR}, {CONS_OFF}"))
    a(salu(f"s_lshr_b32 s{S_T1}, s{S_H}, 2")); a(salu(f"s_lshl_b32 s{S_T1}, s{S_T1}, 4"))
    a(salu(f"s_add_u32 s{S_FPR}, s{S_T0}, s{S_T1}"))
    a(salu(f"s_lshl_b32 s{S_T1}, s{S_H}, 2")); a(salu(f"s_add_u32 s{S_FCW}, s{S_T0}, s{S_T1}"))
    a(salu(f"s_add_u32 s{S_FCW}, s{S_FCW}, s{S_W}")); a(salu(f"s_add_u32 s{S_FCW}, s{S_FCW}, {CONS_OFF}"))
    a(valu(f"v_and_b32 v{V_FLA}, 3, {L}", [L], [f"v{V_FLA}"])); a(valu(f"v_lshlrev_b32 v{V_FLA}, 2, v{V_FLA}", [f"v{V_FLA}"], [f"v{V_FLA}"]))
    a(valu(f"v_mov_b32 v{V_FLAG1}, 1", [], [f"v{V_FLAG1}"]))
    a(valu(f"v_and_b32 v1, 15, {L}", [L], ["v1"])); a(valu(f"v_lshrrev_b32 v2, 4, {L}", [L], ["v2"]))
    a(valu(f"v_lshlrev_b32 v{V_RLD4}, 10, v2", ["v2"], [f"v{V_RLD4}"])); a(valu(f"v_lshl_add_u32 v{V_RLD4}, v1, 4, v{V_RLD4}", ["v1", f"v{V_RLD4}"], [f"v{V_RLD4}"]))
    a(salu(f"s_lshl_b32 s{S_T1}, s{S_W}, 8")); a(valu(f"v_add_u32 v{V_RLD4}, s{S_T1}, v{V_RLD4}", [f"v{V_RLD4}"], [f"v{V_RLD4}"]))
    a(valu("v_and_b32 v4, 1, v1", ["v1"], ["v4"])); a(valu("v_lshlrev_b32 v4, 4, v4", ["v4"], ["v4"]))
    a(valu("v_mov_b32 v5, 0x3f80", [], ["v5"])); a(valu("v_lshlrev_b32 v5, v4, v5", ["v4", "v5"], ["v5"]))
    a(valu("v_lshrrev_b32 v4, 1, v1", ["v1"], ["v4"]))
    for r in range(4):
        a(valu(f"v_cmp_eq_u32 vcc, {r}, v4", ["v4"], ["vcc"])); a(nop(1))
        a(valu("v_cndmask_b32 v52, 0, v5, vcc", ["v5", "vcc"], ["v52"]))
        a(valu(f"v_accvgpr_write_b32 a{A_SEL4+r}, v52", ["v52"], [f"a{A_SEL4+r}"]))
    a(salu(f"s_lshl_b32 s{S_T0}, s{S_B}, 8")); a(salu(f"s_lshl_b32 s{S_T1}, s{S_H}, 4")); a(salu(f"s_add_u32 s{S_T0}, s{S_T0}, s{S_T1}"))
    a(valu(f"v_add_u32 v{V_OUT4}, s{S_T0}, v1", ["v1"], [f"v{V_OUT4}"])); a(valu(f"v_mul_u32_u24 v{V_OUT4}, 896, v{V_OUT4}", [f"v{V_OUT4}"], [f"v{V_OUT4}"]))
    a(salu(f"s_mul_i32 s{S_T0}, s{S_BR}, 448")); a(salu(f"s_lshl_b32 s{S_T1}, s{S_W}, 2")); a(salu(f"s_add_u32 s{S_T0}, s{S_T0}, s{S_T1}"))
    a(valu(f"v_add_u32 v{V_OUT4}, s{S_T0}, v{V_OUT4}", [f"v{V_OUT4}"], [f"v{V_OUT4}"]))
    a(valu(f"v_lshl_add_u32 v{V_OUT4}, v2, 4, v{V_OUT4}", ["v2", f"v{V_OUT4}"], [f"v{V_OUT4}"]))
    a(valu(f"v_lshlrev_b32 v{V_OUT4}, 1, v{V_OUT4}", [f"v{V_OUT4}"], [f"v{V_OUT4}"]))
    a(valu("v_cmp_gt_u32 vcc, 2, v2", ["v2"], ["vcc"])); a(salu(f"s_mov_b32 s{S_T0}, 0x7ff00000")); a(valu(f"v_mov_b32 v4, s{S_T0}", [], ["v4"]))
    a(valu(f"v_cndmask_b32 v{V_OUT4}, v4, v{V_OUT4}, vcc", ["v4", f"v{V_OUT4}", "vcc"], [f"v{V_OUT4}"]))
    return o

def flag_store(base, u, tg):
    return [salu(f"s_add_u32 s55, s{base}, {u*64}", [f"s{base}"], ["s55"])], \
           tag(I(f"buffer_store_byte v{V_FLAG1}, v{V_ZERO}, s[{S_FL}:{S_FL+3}], s55 offen", "vst", [f"v{V_FLAG1}", f"v{V_ZERO}", "s55"], data=[]), tg)
def flag_poll(base, u, dst, tg):
    return [salu(f"s_add_u32 s54, s{base}, {u*64}", [f"s{base}"], ["s54"])], tag(bload(dst, 1, V_FLA, S_FL, "s54", 0, "sc1"), tg)
def flag_check(base, u, dst, tg, name):
    OOL.extend([label(f"L_{name}_spin"), salu(f"s_add_u32 s54, s{base}, {u*64}"), salu(f"s_mov_b32 s{S_SPIN}, {SPIN_MAX}"),
                label(f"L_{name}_again"),
                salu(f"s_sub_u32 s{S_SPIN}, s{S_SPIN}, 1"), salu(f"s_cmp_eq_u32 s{S_SPIN}, 0"), raw(f"s_cbranch_scc1 L_{name}_ok", "branch"),
                raw(f"buffer_load_dword v{dst}, v{V_FLA}, s[{S_FL}:{S_FL+3}], s54 offen sc1", "salu"), wait_vm(0),
                valu(f"v_cmp_ne_u32 vcc, 0x01010101, v{dst}", [], []), nop(0),
                raw(f"s_cbranch_vccnz L_{name}_again", "branch"), raw(f"s_branch L_{name}_ok", "branch")])
    dd = (lambda n: stamp("d_" + n)) if name in (f"prod{OPT.p3detail}", f"cons{OPT.p3detail}") else (lambda n: [])
    return dd(name[:4] + "A") + [wait_tag(tg)] + dd(name[:4] + "B") + [valu(f"v_cmp_ne_u32 vcc, 0x01010101, v{dst}", [f"v{dst}"], ["vcc"]), nop(0),
            raw(f"s_cbranch_vccnz L_{name}_spin", "branch"), label(f"L_{name}_ok")] + dd(name[:4] + "C")
V_PP, V_PC = 53, 54
def ring_loads(u):
    out = []
    for i in range(4):
        sr = "s52" if i % 2 == 0 else "s53"
        out.append(([salu(f"s_add_u32 {sr}, s{S_RLD}, {(u % OPT.ring)*262144 + i*4096}", [f"s{S_RLD}"], [sr])],
                    tag(bload_f("a", A_RING + 16 * (u & 1) + 4 * i, 4, V_RLD4, S_RG, sr, 0, "sc1"), f"rl{u}")))
    return out
def ring_mfmas(u):
    d = V_RD + 4 * (u & 1)
    return [mfma("v", d, "a", A_SEL4, "a", A_RING + 16 * (u & 1) + 4 * i, None if i == 0 else "v", None if i == 0 else d) for i in range(4)]
def ring_out(u):
    d = V_RD + 4 * (u & 1)
    return [valu(f"v_cvt_pk_bf16_f32 v{d}, v{d}, v{d+1}", [f"v{d}", f"v{d+1}"], [f"v{d}"]),
            valu(f"v_cvt_pk_bf16_f32 v{d+1}, v{d+2}, v{d+3}", [f"v{d+2}", f"v{d+3}"], [f"v{d+1}"])], tag(bstore(d, 2, V_OUT4, S_OUT, "0", u * 64, OPT.out_flags), f"out{u}")

def p3_stream(local, carried):
    o = []; a = o.append
    NS, D = OPT.ring, OPT.prod_delay
    Q = lambda u: 8 * u + 7
    ins = {}
    if local:
        for u in range(14):
            m = 8 * (Q(u) + 22 + D) - 1
            if m < 895: ins[m] = u
    ms = []; pos = {}; redpos = {}
    for m in range(896):
        j, i = m >> 7, m & 127
        nb, qb, s_ = i >> 5, (i >> 3) & 3, i & 7
        acc = V_ACC3 + 4 * ((nb * 4 + qb) % 8)
        pos[m] = len(ms)
        ms.append(mfma("v", acc, "a", A_FR3 + 4 * (8 * (nb & 1) + s_), "v", V_Q + (qb * 8 + s_) * 4,
                       None if s_ == 0 else "v", None if s_ == 0 else acc))
        if m in ins:
            u = ins[m]; redpos[u] = len(ms); ms += ring_mfmas(u)
    g = Gaps(ms); N = g.n
    P = lambda j, i: pos[128 * j + i]
    def G(period, off):
        m = 8 * period + off
        return pos[m] if 0 <= m < 896 else None
    for j in range(7):
        for nb in range(4):
            jn, nbn = (j, nb + 1) if nb < 3 else (j + 1, 0)
            if jn > 6: continue
            for s_ in range(8):
                for jj in range(2): g.put_mem(P(j, 32 * nb + 4 * s_ + 2 * jj), wo_read(nbn, s_, jj))
    cons = []
    for j in range(7):
        for nb in range(4):
            for s_ in (0, 2, 4, 6): cons.append((P(j, 32 * nb + s_), R("a", A_FR3 + 4 * (8 * (nb & 1) + s_), 8)))
    cons.sort()
    lead = add_lgkm_waits(g, cons, carried)
    def put_vm(k, sc, d):
        assert g.mem[k] is None and not g.post[k], (k, d.text)
        for n, x in enumerate(reversed(sc)):
            kk = k - 1 - n
            assert not (g.mem[kk] is not None and g.mem[kk].kind == "dma" and "m0" in x.wr)
            g.pre[kk].append(x)
        g.mem[k] = d
    def put_seq(k, seq):
        assert g.mem[k] is None and not g.post[k], k
        g.post[k] = seq
    for j in range(6):
        k = P(j, 91)
        g.pre[k] += [wait_tag(f"wo{j+1}"), barrier()]
        sh = va_shift(WOBUF[j + 1] - WOBUF[j])
        for n, at in ((0, 85), (1, 61), (2, 69), (3, 101)):
            kk = P(j, at); g.vec[kk].append(sh[n])
    for j in (2, 3):
        items = wo_dma(j + 3)
        for n, (sc, d) in enumerate(items):
            u0 = 2 * j + (n >> 2)
            per, off = [(Q(u0) - 4, 7), (Q(u0) - 3, 3), (Q(u0) - 3, 7), (Q(u0) - 2, 7)][n & 3]
            put_vm(G(per, off), sc, d)
    stores = {}; sgap = {}
    for u in range(14):
        j, nb = u >> 1, 2 * (u & 1) + 1
        for qb in range(4):
            sreg = S_T2 + (qb & 1)
            if local:
                st = ([salu(f"s_add_u32 s{sreg}, s{S_RST}, {(u % NS)*262144 + qb*16384}", [f"s{S_RST}"], [f"s{sreg}"])],
                      tag(bstore(V_STG + 4 * qb, 4, V_STO, S_RG, f"s{sreg}", 0, OPT.last_st if u >= 14 - NS else ""), f"st{u}"))
            else:
                so = j * 16 * 16 * 2048 + qb * 16 * 2048 + (nb >> 1) * 1024
                st = ([salu(f"s_add_u32 s{sreg}, s{S_PART}, {so}", [f"s{S_PART}"], [f"s{sreg}"])],
                      tag(bstore(V_STG + 4 * qb, 4, V_STO, S_WS, f"s{sreg}", 0), f"st{u}"))
            stores[(u, qb)] = st
            k = G(Q(u) + qb, 3)
            sgap[(u, qb)] = k
            if k is not None: put_vm(k, *st)
    done = {}; out_left = []
    if local:
        for u in range(14):
            dd = (lambda n: stamp("d_" + n)) if u == OPT.p3detail else (lambda n: [])
            if u >= NS:
                kp, kc = G(Q(u) - 4, 3), G(Q(u) - 1, 3)
                put_vm(kp, *flag_poll(S_FCR, u - NS, V_PC, f"pc{u}"))
                put_seq(kc, flag_check(S_FCR, u - NS, V_PC, f"pc{u}", f"cons{u}"))
            done[u] = "sig"
            k = G(Q(u) + 7, 5)
            if k is None or sgap[(u, 3)] is None: continue
            sc, d = flag_store(S_FPW, u, f"sig{u}")
            g.pre[k - 1] += dd("sigA") + [wait_tag(f"st{u}")] + dd("sigB"); put_vm(k, sc, d)
            done[u] = "poll"
            k = G(Q(u) + 12 + D, 5)
            if k is None: continue
            put_vm(k, *flag_poll(S_FPR, u, V_PP, f"pp{u}"))
            done[u] = "check"
            k = G(Q(u) + 15 + D, 7)
            if k is None: continue
            put_seq(k, flag_check(S_FPR, u, V_PP, f"pp{u}", f"prod{u}"))
            done[u] = "loads"
            if u not in redpos: continue
            for n, (sc, d) in enumerate(ring_loads(u)): put_vm(G(Q(u) + 16 + D + n, 7), sc, d)
            g.pre[redpos[u] - 1] += dd("rlA") + [wait_tag(f"rl{u}")] + dd("rlB")
            if u <= 13 - NS: put_vm(G(Q(u) + 22 + D, 3), *flag_store(S_FCW, u, f"csig{u}"))
            done[u] = "out"
            cv, st = ring_out(u)
            if u + 1 in redpos:
                g.vec[redpos[u + 1]] += cv
                put_vm(G(Q(u) + 30 + D, 5), [], st)
                done[u] = "all"
    tail_main = []
    for p in range(112):
        j, nb, qb = p >> 4, (p >> 2) & 3, p & 3
        ops = part_ops(nb, qb)
        slots = [G(p + 2, 0), G(p + 2, 1), G(p + 2, 1), G(p + 2, 2), G(p + 2, 4), G(p + 2, 6)]
        if slots[0] is None:
            tail_main += ops
        else:
            for x, k in zip(ops, slots): g.vec[k].append(x)
        if nb & 1:
            u = 2 * j + (nb >> 1)
            if sgap[(u, qb)] is None: tail_main += stores[(u, qb)][0] + [nop(1), stores[(u, qb)][1]]
    if lead is not None: a(lead)
    em = g.emit()
    if "allst" in OPT.p3_drop: em = [x for x in em if x.kind != "vst"]
    if "pst" in OPT.p3_drop: em = [x for x in em if not (x.kind == "vst" and x.meta.get("tag", "").startswith("st"))]
    if "nospin" in OPT.p3_drop: em = [x for x in em if not (x.kind == "branch" and "vccnz" in x.text)]
    if "novm" in OPT.p3_drop: em = [x for x in em if not (x.kind == "wait" and "vmtags" in x.meta and not x.meta["vmtags"][0].startswith("wo"))]
    if "nold" in OPT.p3_drop: em = [x for x in em if not (x.kind == "vld" and x.meta.get("tag", "").startswith("rl"))]
    o += stamp("p3_stream_start") if (local or not OPT.fused) else []
    o += em
    if local or not OPT.fused: o += stamp("p3_mfma_end")
    a(nop(7)); o += exposed(tail_main)
    if local:
        todo = [u for u in range(14) if done[u] != "all"]
        for u in todo:
            if done[u] == "sig":
                sc, d = flag_store(S_FPW, u, f"sig{u}"); o += [wait_tag(f"st{u}")] + sc + [d]
        o += stamp("x_last_signal")
        if OPT.early_wb:
            o += [salu(f"s_or_b32 s{S_T0}, s{S_H}, s{S_W}"), salu(f"s_cmp_lg_u32 s{S_T0}, {0 if OPT.early_wb == 1 else 0}"),
                  raw("s_cbranch_scc1 L_no_wb", "branch"), raw("buffer_wbl2 sc1", "salu"), label("L_no_wb")]
        for u in todo:
            if done[u] != "out":
                if done[u] in ("sig", "poll"):
                    sc, d = flag_poll(S_FPR, u, V_PP, f"pp{u}"); o += sc + [d]
                if done[u] in ("sig", "poll", "check"): o += flag_check(S_FPR, u, V_PP, f"pp{u}", f"prod{u}")
                for sc, d in ring_loads(u): o += sc + [d]
                o.append(wait_tag(f"rl{u}"))
                o += ring_mfmas(u); a(nop(7))
            cv, st = ring_out(u); o += cv + [st]
    return o

def phase3():
    o = []; a = o.append
    a(label("L_p3_entry"))
    a(wait_tag("wt", "wo0")); a(raw("s_waitcnt lgkmcnt(0)", "wait", lgkm=0)); a(barrier())
    a(valu(f"v_mov_b32 v{V_SP+4}, {L_VOTE}", [], [f"v{V_SP+4}"]))
    a(ds_read128("v", V_SP, V_SP + 4, 0)); a(wait_lgkm(0))
    a(valu(f"v_or3_b32 v{V_SP}, v{V_SP}, v{V_SP+1}, v{V_SP+2}", R("v", V_SP, 3), [f"v{V_SP}"]))
    a(valu(f"v_or_b32 v{V_SP}, v{V_SP}, v{V_SP+3}", [f"v{V_SP}", f"v{V_SP+3}"], [f"v{V_SP}"])); a(nop(0))
    a(valu(f"v_readfirstlane_b32 s50, v{V_SP}", [f"v{V_SP}"], ["s50"])); a(nop(3))
    a(salu(f"s_cmp_eq_u32 s{S_SAFE}, 0")); a(salu("s_cselect_b32 s50, s50, 0"))
    a(salu("s_cmp_lg_u32 s50, 0")); a(raw("s_cbranch_scc1 L_restart", "branch"))
    OOL.extend([label("L_restart"), wait_vm(0), raw("s_waitcnt lgkmcnt(0)", "wait", lgkm=0), barrier(),
                salu(f"s_mov_b32 s{S_SAFE}, 1"), raw("s_branch L_again", "branch")])
    o += p3_setup()
    if OPT.fused: o += ring_setup()
    o += va_shift(WOBUF[0] - L_V)
    if OPT.fused: o += mode_check()
    carried = []
    for s_ in range(8):
        for jj in range(2):
            r = wo_read(0, s_, jj); a(r); carried.append(r.wr)
            if len(carried) == 14: a(wait_lgkm(6)); carried = carried[-6:]
    a(barrier())
    for sc, d in wo_dma(4): o += sc + [nop(0), d]
    if not OPT.fused:
        return o, p3_stream(False, carried) + stamp("p3_end") + ([wait_vm(0)] if OPT.stamps else []) + stamp("rt_end"), []
    o += [salu(f"s_cmp_eq_u32 s{S_LOCM}, 0"), raw("s_cbranch_scc1 L_p3_far", "branch")]
    loc = p3_stream(True, carried)
    loc += stamp("p3_end") + ([wait_vm(0)] if OPT.stamps else []) + stamp("rt_end")
    far = [label("L_p3_far")] + p3_stream(False, carried) + handoff_far()
    for j in range(7):
        for sc, d in red_loads(j): far += sc + [d]
    for j in range(7):
        far.append(wait_tag(f"rl{j}"))
        far += red_mfmas(j)
        if j > 0:
            cv, stt = red_out(j - 1); far += cv + [stt]
    far.append(nop(7))
    cv, stt = red_out(6); far += cv + [stt]
    far += [wait_vm(0), raw("s_endpgm", "branch")]
    return o, loc, far

def dump_regs(base, n, agpr=False):
    o = [wait_vm(0), raw("s_waitcnt lgkmcnt(0)", "wait", lgkm=0), nop(7), nop(7),
         salu(f"s_lshl_b32 s{S_T0}, s2, 2"), salu(f"s_add_u32 s{S_T0}, s{S_T0}, s{S_W}"),
         salu(f"s_mul_i32 s{S_T0}, s{S_T0}, {n*256}"), valu(f"v_lshlrev_b32 v1, 2, v{V_LANE}", [f"v{V_LANE}"], ["v1"])]
    for r in range(n):
        if agpr:
            o.append(valu(f"v_accvgpr_read_b32 v2, a{base+r}", [f"a{base+r}"], ["v2"])); o.append(bstore(2, 1, 1, S_WS, f"s{S_T0}", 0))
        else:
            o.append(bstore(base + r, 1, 1, S_WS, f"s{S_T0}", 0))
        o.append(salu(f"s_add_u32 s{S_T0}, s{S_T0}, 256"))
        if r % 32 == 31 or agpr: o.append(wait_vm(0))
    return o

def stamp_out():
    if not OPT.stamps: return []
    if OPT.dma_stamps: STAMPS[:] = [f"dma{i}" for i in range(10)] + ["loopcyc"]
    if OPT.bar_stamps: STAMPS.extend(["acc_vm", "acc_bar"])
    n = len(STAMPS)
    o = [raw("s_waitcnt lgkmcnt(0)", "wait", lgkm=0), salu(f"s_cmp_lg_u32 s{S_W}, 0"), raw("s_cbranch_scc1 L_nostamp", "branch")]
    if OPT.stamp_dbg >= 0:
        o += [salu(f"s_cmp_lg_u32 s2, {OPT.stamp_dbg}"), raw("s_cbranch_scc1 L_nostamp", "branch")]
        o += [salu("s_load_dwordx2 s[36:37], s[0:1], 88"), raw("s_waitcnt lgkmcnt(0)", "wait", lgkm=0)]
        o += [salu(f"s_mov_b32 s{S_WS}, s36"), salu(f"s_mov_b32 s{S_WS+1}, s37"), salu(f"s_mov_b32 s{S_WS+2}, 256"), salu(f"s_mov_b32 s{S_T0}, 0")]
    else:
        o.append(salu(f"s_mul_i32 s{S_T0}, s2, 64")); o.append(salu(f"s_add_u32 s{S_T0}, s{S_T0}, {STAMP_OFF}"))
        o.append(salu(f"s_mov_b32 s{S_WS+2}, {STAMP_OFF + 256*64}"))
    o.append(valu("v_mov_b32 v1, 0", [], ["v1"]))
    for k in range(n):
        if OPT.stamp_dbg >= 0:
            ref = 0 if STAMPS[k].startswith("rt") else 1
            o.append(salu(f"s_sub_u32 s{S_T1}, s{S_STAMP+2*k}, s{S_STAMP+2*ref}"))
            o.append(valu(f"v_mov_b32 v2, s{S_T1}", [], ["v2"]))
        elif STAMPS[k] == "loopcyc": o.append(valu("v_mov_b32 v2, s100", [], ["v2"]))
        elif STAMPS[k] == "acc_vm": o.append(valu("v_mov_b32 v2, s92", [], ["v2"]))
        elif STAMPS[k] == "acc_bar": o.append(valu("v_mov_b32 v2, s93", [], ["v2"]))
        else:
            o.append(valu(f"v_mov_b32 v2, s{S_STAMP+2*k}", [], ["v2"]))
        o.append(bstore(2, 1, 1, S_WS, f"s{S_T0}", 4 * k)); o.append(wait_vm(0))
    o.append(label("L_nostamp"))
    return o

def finish(): return [wait_vm(0), label("L_end"), raw("s_endpgm", "branch")]

def build(debug=None):
    _stamp_n[0] = 0; STAMPS.clear(); OOL.clear()
    pre = setup() + phase1()
    if debug == "p1":
        pre += stamp("rt_end")
        resolve_vm(pre, [])
        return pre + stamp_out() + finish()
    if debug == "q":
        resolve_vm(pre, []); check(pre, "pre")
        return pre + dump_regs(V_Q, 128) + finish()
    if OPT.dma_mode == "cluster":
        OPT.dma_gaps = ([21, 23, 25, 27], [101, 103, 105, 107]); OPT.nv_prev = 0
    elif OPT.dma_mode == "cluster2":
        OPT.dma_gaps = ([41, 43, 47, 49], [101, 103, 105, 107]); OPT.nv_prev = 0
    NCUR = len(OPT.dma_gaps[1])
    pre += [salu(f"s_cmp_lg_u32 s{S_SAFE}, 0"), raw("s_cbranch_scc1 L_safe_attn", "branch")]
    p, carried = pre_iter(); pre += p
    def batch(t):
        return dma_tile("V", vslot(t + 3), f"s{S_VOFF}", f"V{t+3}") + dma_tile("K", kslot(t + 5), f"s{S_KOFF}", f"K{t+5}")
    pre += wo_setup()
    if OPT.fused: pre += grp_setup()
    def ex0(g, kb):
        put_wo(g, 0, 3, kb, step=8)
    s0, carried = attn_iter(0, carried, wait_tag("V1", "K2"), [], batch(0)[:NCUR], first=True, adv=False, extra=ex0)
    pre += s0
    pre.append(salu(f"s_mov_b32 s{S_LOOP}, 7"))
    if OPT.bar_stamps: pre += [salu("s_mov_b32 s92, 0"), salu("s_mov_b32 s93, 0")]
    pre += stamp("loop_start") + (stamp("rt_ls") if OPT.bar_stamps else [])
    loop = [label("L_attn")]
    for u in range(4):
        t = 1 + u
        s, carried = attn_iter(t, carried, wait_vm(12), batch(t - 1)[NCUR:], batch(t)[:NCUR], loopctl=(u == 3), loop_body=True)
        if OPT.dma_stamps and u == 1:
            s2 = []; n = 0
            for x in s:
                if x.kind == "dma" and n < 5:
                    s2 += [raw(f"s_memtime s[{80+4*n}:{81+4*n}]", "salu"), x, raw(f"s_memtime s[{82+4*n}:{83+4*n}]", "salu")]; n += 1
                else: s2.append(x)
            s = s2
        loop += s
    if OPT.trip_stamps:
        loop += [raw("s_memtime s[98:99]", "salu"), raw("s_memrealtime s[100:101]", "salu"), raw("s_waitcnt lgkmcnt(0)", "wait", lgkm=0),
                 salu(f"s_mov_b32 s99, m0"), salu(f"s_mov_b32 m0, s{S_LOOP}"), nop(0), valu(f"v_writelane_b32 v1, s98, m0", ["s98"], ["v1"]),
                 salu(f"s_add_u32 m0, s{S_LOOP}, 8"), nop(0), valu(f"v_writelane_b32 v1, s100, m0", ["s100"], ["v1"]),
                 salu("s_mov_b32 m0, s99"), salu(f"s_cmp_lg_u32 s{S_LOOP}, 0")]
    if OPT.loop_nodma: loop = [x for x in loop if x.kind != "dma"]
    if OPT.loop_nods: loop = [x for x in loop if x.kind != "ds" and not (x.kind == "wait" and "lgkm" in x.meta and x.meta["lgkm"] > 0)]
    if OPT.loop_nomfma: loop = [(nop(1) if x.kind == "mfma" else x) for x in loop]
    if OPT.loop_novalu: loop = [x for x in loop if x.kind not in ("valu", "trans")]
    if OPT.loop_dma_every > 1:
        cnt = [0]
        def keep(x):
            if x.kind != "dma": return True
            cnt[0] += 1
            return cnt[0] % OPT.loop_dma_every == 0
        loop = [x for x in loop if keep(x)]
    loop.append(raw("s_cbranch_scc1 L_attn", "branch"))
    post = stamp("loop_end") + (stamp("rt_le") if OPT.bar_stamps else [])
    if OPT.trip_stamps:
        post += [valu(f"v_lshlrev_b32 v2, 2, v{V_LANE}", [], ["v2"]), salu(f"s_mul_i32 s{S_T1}, s2, 64"),
                 salu(f"s_add_u32 s{S_T1}, s{S_T1}, {STAMP_OFF + 256*64}"), salu(f"s_mov_b32 s{S_WS+2}, {STAMP_OFF + 2*256*64}"),
                 valu("v_cmp_gt_u32 vcc, 16, v0", ["v0"], ["vcc"]), salu(f"s_cmp_eq_u32 s{S_W}, 0"), raw("s_cselect_b64 s[50:51], vcc, 0", "salu"),
                 raw("s_mov_b64 s[54:55], exec", "salu"), raw("s_mov_b64 exec, s[50:51]", "salu"), raw("s_cbranch_execz L_notrip", "branch"),
                 raw(f"buffer_store_dword v1, v2, s[{S_WS}:{S_WS+3}], s{S_T1} offen", "salu"), wait_vm(0), label("L_notrip"), raw("s_mov_b64 exec, s[54:55]", "salu"), wait_vm(0)]
    def ex29(g, kb):
        if OPT.fused: place_vmem(g, 40, [], mode_load(), kb)
        gp = 50
        for j in OPT.wo_touch: gp = place_vmem(g, gp, [], wo_touch(j), kb) + 12
    post += wo_touch_setup()
    s, carried = attn_iter(29, carried, wait_tag("V30", "K32"), batch(28)[NCUR:4], [], adv=False,
                           extra=ex29)
    post += s
    def ex30(g, kb):
        put_wo(g, 1, 3, kb, step=8)
    s, carried = attn_iter(30, carried, wait_tag("V31"), [], [], adv=False, extra=ex30)
    post += s
    post += last_iter(carried)
    post += stamp("attn_end")
    if debug == "o":
        tailq = dump_regs(V_Q, 128)
    elif debug == "l":
        tailq = dump_regs(V_L, 4)
    else:
        common, loc, far = phase3()
        tailq = common
    post += tailq
    q = resolve_vm(pre, [])
    qexit = ["V30"] * 4 + ["K32"] * 4 + ["V31"] * NCUR
    qb_ = resolve_vm(post, qexit)
    if debug is None:
        resolve_vm(loc, qb_); resolve_vm(far, qb_)
        if far and not OPT.p3_drop: check(loop[1:] + post + far[1:], "loop+post+far", init_lgkm=[x.wr for x in pre if x.kind == "ds"][-8:], init_vm=[[]] * (8 + NCUR))
        post = post + loc
        OOL.extend(far)
    if not (OPT.p1_nowait or OPT.p1_noread or OPT.p1_drop or OPT.loop_nodma or OPT.loop_dma_every > 1 or OPT.loop_nods or OPT.loop_nomfma or OPT.loop_novalu): check(pre + loop[1:] + loop[1:], "pre+loop")
    if not (OPT.p3_drop or OPT.loop_nodma or OPT.loop_dma_every > 1 or OPT.loop_nods or OPT.loop_nomfma or OPT.loop_novalu): check(loop[1:] + post, "loop+post", init_lgkm=[x.wr for x in pre if x.kind == "ds"][-8:], init_vm=[[]] * (8 + NCUR))
    OOL.extend(safe_attn())
    return pre + loop + post + stamp_out() + finish() + OOL

def reduce_kernel():
    o = []; a = o.append
    a(salu("s_cmp_ge_u32 s2, 256")); a(raw("s_cbranch_scc1 R_end", "branch"))
    a(salu("s_load_dwordx2 s[4:5], s[0:1], 80")); a(salu("s_load_dwordx2 s[6:7], s[0:1], 96"))
    a(valu("v_lshrrev_b32 v1, 6, v0", ["v0"], ["v1"])); a(valu("v_and_b32 v0, 63, v0", ["v0"], ["v0"]))
    a(valu("v_readfirstlane_b32 s32, v1", ["v1"], ["s32"]))
    a(salu("s_lshr_b32 s33, s2, 4")); a(salu("s_and_b32 s34, s2, 15"))
    a(salu("s_lshr_b32 s35, s33, 3")); a(salu("s_and_b32 s36, s33, 7"))
    a(salu("s_lshr_b32 s37, s32, 1")); a(salu("s_and_b32 s38, s32, 1"))
    a(valu("v_lshrrev_b32 v2, 5, v0", ["v0"], ["v2"])); a(valu("v_lshlrev_b32 v2, 11, v2", ["v2"], ["v2"]))
    a(valu("v_and_b32 v3, 31, v0", ["v0"], ["v3"])); a(valu("v_lshl_add_u32 v2, v3, 4, v2", ["v3", "v2"], ["v2"]))
    a(salu("s_lshl_b32 s39, s37, 10")); a(salu("s_lshl_b32 s40, s38, 9")); a(salu("s_add_u32 s39, s39, s40"))
    a(valu("v_add_u32 v2, s39, v2", ["v2"], ["v2"]))
    a(valu("v_and_b32 v8, 15, v0", ["v0"], ["v8"])); a(valu("v_lshrrev_b32 v9, 4, v0", ["v0"], ["v9"]))
    a(valu("v_lshrrev_b32 v10, 3, v8", ["v8"], ["v10"])); a(valu("v_and_b32 v11, 1, v9", ["v9"], ["v11"]))
    a(valu("v_and_b32 v12, 1, v8", ["v8"], ["v12"])); a(valu("v_lshlrev_b32 v12, 4, v12", ["v12"], ["v12"]))
    a(valu("v_mov_b32 v13, 0x3f80", [], ["v13"])); a(valu("v_lshlrev_b32 v13, v12, v13", ["v12", "v13"], ["v13"]))
    a(valu("v_cmp_eq_u32 vcc, v10, v11", ["v10", "v11"], ["vcc"])); a(nop(1))
    a(valu("v_cndmask_b32 v13, 0, v13, vcc", ["v13", "vcc"], ["v13"]))
    a(valu("v_bfe_u32 v14, v8, 1, 2", ["v8"], ["v14"]))
    for r in range(4):
        a(valu(f"v_cmp_eq_u32 vcc, {r}, v14", ["v14"], ["vcc"])); a(nop(1))
        a(valu(f"v_cndmask_b32 v{4+r}, 0, v13, vcc", ["v13", "vcc"], [f"v{4+r}"]))
    a(salu("s_lshl_b32 s41, s36, 8")); a(salu("s_lshl_b32 s42, s34, 4")); a(salu("s_add_u32 s41, s41, s42"))
    a(valu("v_add_u32 v3, s41, v8", ["v8"], ["v3"])); a(valu("v_mul_u32_u24 v3, 896, v3", ["v3"], ["v3"]))
    a(salu("s_mul_i32 s42, s35, 448")); a(salu("s_lshl_b32 s43, s37, 5")); a(salu("s_add_u32 s42, s42, s43"))
    a(salu("s_lshl_b32 s43, s38, 3")); a(salu("s_add_u32 s42, s42, s43"))
    a(valu("v_add_u32 v3, s42, v3", ["v3"], ["v3"]))
    a(valu("v_lshl_add_u32 v3, v11, 4, v3", ["v11", "v3"], ["v3"]))
    a(valu("v_lshrrev_b32 v10, 1, v9", ["v9"], ["v10"])); a(valu("v_lshl_add_u32 v3, v10, 2, v3", ["v10", "v3"], ["v3"]))
    a(valu("v_lshlrev_b32 v3, 1, v3", ["v3"], ["v3"]))
    a(raw("s_waitcnt lgkmcnt(0)", "wait", lgkm=0))
    for base, lo, size in ((8, 6, 16 * 7 * 16 * 16 * 2048), (12, 4, 8 * 256 * 896 * 2)):
        a(salu(f"s_mov_b32 s{base}, s{lo}")); a(salu(f"s_mov_b32 s{base+1}, s{lo+1}"))
        a(salu(f"s_mov_b32 s{base+2}, {size}")); a(salu(f"s_mov_b32 s{base+3}, 0x20000"))
    a(salu(f"s_mul_i32 s44, s33, {7*16*32768}")); a(salu("s_lshl_b32 s45, s34, 15")); a(salu("s_add_u32 s44, s44, s45"))
    for j in range(7):
        for i in range(8):
            a(salu(f"s_add_u32 s46, s44, {j*16*32768 + i*4096}"))
            a(tag(bload(16 + (j * 8 + i) * 4, 4, 2, 8, "s46", 0), f"p{j}"))
    for j in range(7):
        a(wait_tag(f"p{j}"))
        d = 240 + 4 * (j & 1)
        for i in range(8):
            a(mfma("v", d, "v", 4, "v", 16 + (j * 8 + i) * 4, None if i == 0 else "v", None if i == 0 else d))
        a(nop(7))
        a(valu(f"v_cvt_pk_bf16_f32 v{d}, v{d}, v{d+1}", [f"v{d}", f"v{d+1}"], [f"v{d}"]))
        a(valu(f"v_cvt_pk_bf16_f32 v{d+1}, v{d+2}, v{d+3}", [f"v{d+2}", f"v{d+3}"], [f"v{d+1}"]))
        a(tag(bstore(d, 2, 3, 12, "0", j * 128), "o"))
    resolve_vm(o, []); check(o, "reduce")
    if OPT.stamps and OPT.stamp_fwd >= 0:
        o += [wait_vm(0), salu("s_cmp_lg_u32 s2, 0"), raw("s_cbranch_scc1 R_end", "branch"),
              salu("s_load_dwordx2 s[20:21], s[0:1], 88"), raw("s_waitcnt lgkmcnt(0)", "wait", lgkm=0),
              salu("s_mov_b32 s16, s20"), salu("s_mov_b32 s17, s21"), salu("s_mov_b32 s18, 64"), salu("s_mov_b32 s19, 0x20000"),
              salu(f"s_mov_b32 s10, {16*7*16*16*2048 + 256*64}"), salu(f"s_mov_b32 s46, {16*7*16*16*2048} + 64*{OPT.stamp_fwd}"),
              valu("v_lshlrev_b32 v2, 2, v0", ["v0"], ["v2"]), bload(3, 1, 2, 8, "s46", 0), wait_vm(0), bstore(3, 1, 2, 16, "0", 0)]
    o += [wait_vm(0), label("R_end"), raw("s_endpgm", "branch")]
    return o

KD = """.section .rodata,"a"
.p2align 6
.amdhsa_kernel {name}
  .amdhsa_next_free_vgpr {vgpr}
  .amdhsa_next_free_sgpr 102
  .amdhsa_accum_offset 256
  .amdhsa_group_segment_fixed_size 0
  .amdhsa_kernarg_size 104
  .amdhsa_user_sgpr_count 2
  .amdhsa_user_sgpr_kernarg_segment_ptr 1
  .amdhsa_system_sgpr_workgroup_id_x 1
.end_amdhsa_kernel
"""
def header_comments():
    ref = open("cdna_kernels/" + NAME + ".s.ref").read().splitlines()
    out = []
    for l in ref:
        if l.startswith("; Override launch") or not l.startswith(";"): break
        out.append(l)
    return out

def stream_kernel():
    t = """
  s_cmp_ge_u32 s2, 256
  s_cbranch_scc1 S_end
  s_load_dwordx2 s[4:5], s[0:1], 8
  s_load_dwordx2 s[6:7], s[0:1], 96
  s_load_dwordx2 s[8:9], s[0:1], 48
  v_lshrrev_b32 v2, 6, v0
  s_nop 0
  v_readfirstlane_b32 s24, v2
  v_and_b32 v1, 63, v0
  v_lshlrev_b32 v14, 4, v1
  s_nop 2
  s_lshl_b32 s25, s24, 12
  v_add_u32 v14, s25, v14
  s_waitcnt lgkmcnt(0)
  s_cmp_lt_u32 s2, 128
  s_cselect_b32 s36, s4, s8
  s_cselect_b32 s37, s5, s9
  s_mov_b32 s38, 0x4000000
  s_mov_b32 s39, 0x20000
  s_and_b32 s32, s2, 127
  s_lshl_b32 s32, s32, 19
  s_barrier
  s_memrealtime s[12:13]
  s_mov_b32 s20, 0
S_loop:
  s_mov_b32 m0, s25
  s_nop 0
  buffer_load_dwordx4 v14, s[36:39], s32 offen nt lds
  buffer_load_dwordx4 v14, s[36:39], s32 offen offset:1024 nt lds
  buffer_load_dwordx4 v14, s[36:39], s32 offen offset:2048 nt lds
  buffer_load_dwordx4 v14, s[36:39], s32 offen offset:3072 nt lds
  s_add_u32 s32, s32, 16384
  s_waitcnt vmcnt(8)
  s_barrier
  s_add_u32 s20, s20, 1
  s_cmp_lt_u32 s20, 32
  s_cbranch_scc1 S_loop
  s_waitcnt vmcnt(0)
  s_barrier
  s_memrealtime s[16:17]
  s_waitcnt lgkmcnt(0)
  s_sub_u32 s16, s16, s12
  s_mov_b32 s40, s6
  s_mov_b32 s41, s7
  s_mov_b32 s42, %d
  s_mov_b32 s43, 0x20000
  s_mul_i32 s33, s2, 64
  s_add_u32 s33, s33, %d
  v_mov_b32 v2, s16
  v_mov_b32 v1, 0
  buffer_store_dword v2, v1, s[40:43], s33 offen
  s_waitcnt vmcnt(0)
S_end:
  s_endpgm""" % (16*7*16*16*2048 + 256*64, 16*7*16*16*2048 + 60)
    return t

def assemble_file(debug=None):
    main = build(debug)
    red = reduce_kernel()
    k1 = NAME + "_kernel"; k2 = "reduce_heads_kernel"
    L = header_comments()
    if OPT.stream0: L.append(f"; @launch kernel=stream_test_kernel grid=(256,1,1) block=(256,1,1) lds={LDS_BYTES}")
    if OPT.fused and not OPT.stream0:
        L.append(f"; @launch grid=(256,1,1) block=(256,1,1) lds={LDS_BYTES}")
    else:
        L.append(f"; @launch kernel={k1} grid=(256,1,1) block=(256,1,1) lds={LDS_BYTES}")
        if debug is None and not OPT.fused: L.append(f"; @launch kernel={k2} grid=(256,1,1) block=(256,1,1) lds=0")
    L.append('.amdgcn_target "amdgcn-amd-amdhsa--gfx950"')
    L.append(".text")
    for nm, body in ((k1, main), (k2, red)) if not OPT.fused else ((k1, main),):
        L += [f".globl {nm}", ".p2align 8", f".type {nm},@function", f"{nm}:", text(body)]
    if OPT.stream0: L += [".globl stream_test_kernel", ".p2align 8", ".type stream_test_kernel,@function", "stream_test_kernel:", stream_kernel()]
    L.append(KD.format(name=k1, vgpr=512))
    if not OPT.fused: L.append(KD.format(name=k2, vgpr=256))
    if OPT.stream0: L.append(KD.format(name="stream_test_kernel", vgpr=512))
    return "\n".join(L) + "\n"

if __name__ == "__main__":
    dbg = sys.argv[2] if len(sys.argv) > 2 and sys.argv[2] != "none" else None
    for kv in sys.argv[3:]:
        k, v = kv.split("=")
        v = v.replace("+", " ")
        setattr(OPT, k, {"True": True, "False": False, "()": ()}.get(v, int(v) if v.lstrip("-").isdigit() else (eval(v) if v.startswith("(") else v)))
    open(sys.argv[1], "w").write(assemble_file(dbg))
    print("stamps:", STAMPS)
```

```python
import math, struct, sys
from core import *

NAME = "concat_heads__mha_block_cached__mha_block_cached__near_ridge"
def f32bits(x): return struct.unpack("<I", struct.pack("<f", x))[0]
CSC = math.log2(math.e) / 16.0

S_X, S_WQ, S_K, S_V, S_WO, S_WS, S_OUT = 4, 8, 12, 16, 20, 24, 28
S_W, S_W1K = 32, 33
S_QB = ["0", "s34", "s35", "s62"]
S_C = 63
S_KOFF, S_VOFF = 64, 65
S_LOOP = 66
S_T0, S_T1, S_T2, S_T3 = 67, 68, 69, 70
S_G, S_H, S_B, S_BR = 71, 72, 73, 74
S_WOFF = 76
S_PART = 77
S_WCUR, S_WSTEP, S_XSTEP = 78, 79, 75
S_FL, S_DBG = 36, 40
S_LOCM = 44
S_RBASE, S_SIG, S_POLL, S_XCC = 46, 47, 48, 49
S_RG = 56
S_SPIN = 62
S_SAFE = 3
S_ROT = 52
S_PFO = 53
S_RST, S_RLD, S_FPW, S_FPR, S_FCW, S_FCR = 60, 61, 75, 78, 79, 76
S_STAMP = 80
V_LANE = 0
V_KA = [4, 5]
V_VA = [6, 7, 8, 9]
V_DK, V_DV = 10, 11
V_L = 12
V_MC = 16
V_SP = 20
V_POOL = 32
V_S = 64
V_P = 96
V_Q = 128
V_XA = 20; V_DW = 21; V_WA = [[22, 23], [24, 25], [26, 27]]
V_CT = 28
V_ARR = 24
L_K = 0; L_V = 65536; L_X = 131072
def kslot(t): return L_K + 16384 * (t % 4)
def vslot(t): return L_V + 16384 * (t % 4)
LDS_BYTES = 163840
L_VOTE = L_V + 2 * 16384
L_LIMIT = 2.0 ** 30

PART_BYTES = 16 * 7 * 16 * 16 * 2048
FLAG_BYTES = 16 * 7 * 4 * 64
STAMP_OFF = PART_BYTES + 32768
RING_OFF = PART_BYTES + (1 << 20)
RING_BYTES = 32 << 20
CONS_OFF = 16384
SPIN_MAX = 1 << 19
class Opt:
    kv_flags = "nt"
    w_flags = ""
    x_flags = ""
    wo_flags = ""
    st_flags = ""
    stamps = False
    xwarm = False
    kvmin = False
    vfirst = 0
    dma_stamps = False
    rot = 0
    pad_iter = 0
    last_st = ''
    out_flags = ''
    coopw = False
    coopw_init = 2
    pf_flags = ''
    early_wb = 0
    wt_flags = ''
    prod_delay = 0
    ring = 4
    vm_space = 0
    p3_drop = ''
    wo_step = 13
    cons_chk = 22
    wo_touch = (4, 5, 6)
    red_m = 200
    cons_poll = 50
    ld_min = 16
    stamp_skip = 'p1_first_data,pre_iter_end'
    p3detail = -1
    st_lag = 21
    force_fallback = False
    red_at = 60
    sig_lag = 28
    poll_lag = 22
    chk_lag = 22
    fused = True
    stream0 = False
    loop_nods = False
    loop_nomfma = False
    loop_novalu = False
    loop_nodma = False
    loop_dma_every = 1
    bar_stamps = False
    trip_stamps = False
    dma_mode = 'spread'
    dma_gaps = ([5, 21, 37, 53, 69, 85], [101, 117])
    nv_prev = 2
    stamp_fwd = -1
    stamp_dbg = -1
    x_rd_gap0 = 65
    x_rd_gap = 33
    p1_steps = False
    p1_drop = ''
    rev = True
    init_w = 2
    early_step = 2
    x_gap = 60
    p1_nowait = False
    p1_noread = False
    wring = 3
    kvpf = 'early'
    coopx = False
    init_more = 0
OPT = Opt()

def wait_tag(*tags): return I("s_waitcnt vmcnt(?)", "wait", vmtags=list(tags))
def tag(ins, t):
    ins.meta["tag"] = t; return ins
def resolve_vm(stream, queue):
    q = list(queue)
    for ins in stream:
        if ins.kind in ("dma", "vld", "vst"):
            q.append(ins.meta.get("tag", "?"))
        elif ins.kind == "wait":
            if "vmtags" in ins.meta:
                idx = [n for n, t in enumerate(q) if t in ins.meta["vmtags"]]
                n = len(q) - 1 - max(idx) if idx else len(q)
                n = min(n, 63)
                ins.text = f"s_waitcnt vmcnt({n})"; ins.meta["vm"] = n
            if "vm" in ins.meta:
                n = ins.meta["vm"]
                if len(q) > n: q = q[len(q) - n:] if n else []
    return q

_stamp_n = [0]
def stamp(name):
    if not OPT.stamps: return []
    if OPT.dma_stamps:
        if name == "loop_start": return [raw("s_memtime s[100:101]", "salu"), raw("s_waitcnt lgkmcnt(0)", "wait", lgkm=0)]
        if name == "loop_end": return [raw("s_memtime s[76:77]", "salu"), raw("s_waitcnt lgkmcnt(0)", "wait", lgkm=0), salu("s_sub_u32 s100, s76, s100")]
        return []
    if OPT.stamp_skip and name in OPT.stamp_skip.split(","): return []
    if OPT.p3detail >= 0 and not name.startswith("d_") and name not in ("rt_end",): return []
    if OPT.bar_stamps and name not in ("rt_ls", "rt_le", "loop_start", "loop_end", "rt_end"): return []
    n = _stamp_n[0]; _stamp_n[0] += 1
    STAMPS.append(name)
    op = "s_memrealtime" if name.startswith("rt") else "s_memtime"
    return [raw(f"{op} s[{S_STAMP+2*n}:{S_STAMP+2*n+1}]", "salu")]
STAMPS = []

def m0_set(base): return salu(f"s_add_u32 m0, s{S_W1K}, {base}", [f"s{S_W1K}"], ["m0"])

def dma_tile(kind, slot_base, soff, tg):
    voff, srd, fl = {"K": (V_DK, S_K, OPT.kv_flags), "V": (V_DV, S_V, OPT.kv_flags), "W": (V_DW, S_WQ, OPT.w_flags)}[kind]
    return [(m0_set(slot_base + dc * 3968), tag(dma(voff, srd, soff, dc * 128, fl), tg)) for dc in range(4)]

def setup():
    o = []; a = o.append
    a(salu("s_cmp_ge_u32 s2, 256")); a(raw("s_cbranch_scc1 L_end", "branch"))
    o += stamp("rt_start") + stamp("start")
    a(valu("v_lshrrev_b32 v1, 6, v0", ["v0"], ["v1"]))
    a(valu(f"v_and_b32 v{V_LANE}, 63, v0", ["v0"], ["v0"]))
    a(salu(f"s_mov_b32 s{S_SAFE}, 0"))
    a(valu(f"v_readfirstlane_b32 s{S_W}, v1", ["v1"], [f"s{S_W}"]))
    a(label("L_again"))
    a(salu("s_load_dwordx16 s[36:51], s[0:1], 0")); a(salu("s_load_dwordx8 s[52:59], s[0:1], 64"))
    a(salu("s_load_dwordx2 s[60:61], s[0:1], 96"))
    a(nop(3))
    a(salu(f"s_and_b32 s{S_T0}, s2, 7")); a(salu(f"s_lshr_b32 s{S_T1}, s2, 3"))
    a(salu(f"s_and_b32 s{S_H}, s{S_T1}, 15")); a(salu(f"s_lshr_b32 s{S_T1}, s{S_T1}, 4"))
    a(salu(f"s_lshl_b32 s{S_G}, s{S_T0}, 1")); a(salu(f"s_add_u32 s{S_G}, s{S_G}, s{S_T1}"))
    a(salu(f"s_lshr_b32 s{S_BR}, s{S_G}, 3")); a(salu(f"s_and_b32 s{S_B}, s{S_G}, 7"))
    a(salu(f"s_lshl_b32 s{S_W1K}, s{S_W}, 10"))
    if OPT.rot:
        a(salu(f"s_and_b32 s{S_T0}, s2, 7")); a(salu(f"s_mul_i32 s{S_T0}, s{S_T0}, {OPT.rot}")); a(salu(f"s_lshr_b32 s{S_T1}, s2, 3"))
        a(salu(f"s_add_u32 s{S_T0}, s{S_T0}, s{S_T1}")); a(salu(f"s_and_b32 s{S_T0}, s{S_T0}, 31")); a(salu(f"s_lshl_b32 s33, s{S_T0}, 14") if False else salu(f"s_lshl_b32 s{S_T3}, s{S_T0}, 14"))
    a(salu(f"s_mov_b32 s{S_C}, 0x{f32bits(CSC):08x}"))
    L = f"v{V_LANE}"
    def vv(t, rd, wr): a(valu(t, rd, wr))
    vv(f"v_and_b32 v1, 15, {L}", [L], ["v1"]); vv(f"v_lshrrev_b32 v2, 4, {L}", [L], ["v2"])
    vv("v_lshrrev_b32 v3, 1, v1", ["v1"], ["v3"])
    for sp in range(2):
        r = V_KA[sp]
        vv(f"v_add_u32 v{r}, {4*sp}, v2", ["v2"], [f"v{r}"])
        vv(f"v_xor_b32 v{r}, v{r}, v3", [f"v{r}", "v3"], [f"v{r}"])
        vv(f"v_lshlrev_b32 v{r}, 4, v{r}", [f"v{r}"], [f"v{r}"])
        vv(f"v_lshl_add_u32 v{r}, v1, 7, v{r}", ["v1", f"v{r}"], [f"v{r}"])
    vv(f"v_bfe_u32 v28, {L}, 2, 2", [L], ["v28"]); vv(f"v_and_b32 v29, 3, {L}", [L], ["v29"])
    vv("v_lshl_add_u32 v30, v2, 2, v28", ["v2", "v28"], ["v30"])
    vv("v_bfe_u32 v31, v30, 1, 2", ["v30"], ["v31"])
    for p in range(4):
        r = V_VA[p]
        vv(f"v_xor_b32 v{r}, {p}, v31", ["v31"], [f"v{r}"])
        vv(f"v_lshlrev_b32 v{r}, 5, v{r}", [f"v{r}"], [f"v{r}"])
        vv(f"v_lshl_add_u32 v{r}, v30, 7, v{r}", ["v30", f"v{r}"], [f"v{r}"])
        vv(f"v_lshl_add_u32 v{r}, v29, 3, v{r}", ["v29", f"v{r}"], [f"v{r}"])
        vv(f"v_add_u32 v{r}, {L_V}, v{r}", [f"v{r}"], [f"v{r}"])
    vv("v_lshl_add_u32 v30, v2, 3, v28", ["v2", "v28"], ["v30"])
    vv("v_lshrrev_b32 v31, 1, v28", ["v28"], ["v31"])
    for sp in range(2):
        r = V_WA[0][sp]
        vv(f"v_xor_b32 v{r}, {sp}, v31", ["v31"], [f"v{r}"])
        vv(f"v_lshl_add_u32 v{r}, v{r}, 2, v29", [f"v{r}", "v29"], [f"v{r}"])
        vv(f"v_lshlrev_b32 v{r}, 4, v{r}", [f"v{r}"], [f"v{r}"])
        vv(f"v_lshl_add_u32 v{r}, v30, 7, v{r}", ["v30", f"v{r}"], [f"v{r}"])
        for win in (1, 2):
            vv(f"v_add_u32 v{V_WA[win][sp]}, {65536*win}, v{r}", [f"v{r}"], [f"v{V_WA[win][sp]}"])
    vv(f"v_lshrrev_b32 v1, 3, {L}", [L], ["v1"]); vv(f"v_and_b32 v2, 7, {L}", [L], ["v2"])
    vv(f"v_lshl_add_u32 v3, s{S_W}, 3, v1", ["v1", f"s{S_W}"], ["v3"])
    vv("v_bfe_u32 v28, v3, 1, 3", ["v3"], ["v28"]); vv("v_xor_b32 v28, v28, v2", ["v28", "v2"], ["v28"])
    vv("v_lshlrev_b32 v28, 4, v28", ["v28"], ["v28"]); vv(f"v_lshl_add_u32 v{V_DK}, v3, 9, v28", ["v3", "v28"], [f"v{V_DK}"])
    vv("v_bfe_u32 v28, v3, 1, 2", ["v3"], ["v28"]); vv("v_lshlrev_b32 v28, 1, v28", ["v28"], ["v28"])
    vv("v_xor_b32 v28, v28, v2", ["v28", "v2"], ["v28"]); vv("v_lshlrev_b32 v28, 4, v28", ["v28"], ["v28"])
    vv(f"v_lshl_add_u32 v{V_DV}, v3, 9, v28", ["v3", "v28"], [f"v{V_DV}"])
    vv("v_bfe_u32 v28, v3, 1, 1", ["v3"], ["v28"]); vv("v_lshlrev_b32 v28, 2, v28", ["v28"], ["v28"])
    vv("v_xor_b32 v28, v28, v2", ["v28", "v2"], ["v28"]); vv("v_lshlrev_b32 v28, 4, v28", ["v28"], ["v28"])
    vv(f"v_lshl_add_u32 v{V_DW}, v3, 13, v28", ["v3", "v28"], [f"v{V_DW}"])
    a(raw("s_waitcnt lgkmcnt(0)", "wait", lgkm=0))
    a(salu(f"s_cmp_eq_u32 s{S_BR}, 0"))
    for i in range(10): a(salu(f"s_cselect_b32 s{36+i}, s{36+i}, s{46+i}"))
    if OPT.rot: a(salu(f"s_mov_b32 s{S_ROT}, s{S_T3}"))
    def srd(base, lo, hi, offs, size):
        if offs is None:
            a(salu(f"s_mov_b32 s{base}, s{lo}")); a(salu(f"s_mov_b32 s{base+1}, s{hi}"))
        else:
            a(salu(f"s_add_u32 s{base}, s{lo}, {offs}")); a(salu(f"s_addc_u32 s{base+1}, s{hi}, 0"))
        a(salu(f"s_mov_b32 s{base+2}, {size}")); a(salu(f"s_mov_b32 s{base+3}, 0x20000"))
    a(salu(f"s_mul_i32 s{S_T0}, s{S_B}, 229376")); srd(S_X, 36, 37, f"s{S_T0}", 229376)
    a(salu(f"s_lshl_b32 s{S_T0}, s{S_H}, 9")); srd(S_WQ, 42, 43, f"s{S_T0}", 0)
    a(salu(f"s_sub_u32 s{S_WQ+2}, {448*8192}, s{S_T0}"))
    a(salu(f"s_lshl_b32 s{S_T0}, s{S_B}, 4")); a(salu(f"s_add_u32 s{S_T0}, s{S_T0}, s{S_H}"))
    a(salu(f"s_lshl_b32 s{S_T0}, s{S_T0}, 19"))
    srd(S_K, 38, 39, f"s{S_T0}", 524288); srd(S_V, 40, 41, f"s{S_T0}", 524288)
    a(salu(f"s_mul_i32 s{S_T0}, s{S_H}, 229376")); srd(S_WO, 44, 45, f"s{S_T0}", 229376)
    srd(S_WS, 60, 61, None, 16 * 7 * 16 * 16 * 2048)
    srd(S_OUT, 56, 57, None, 8 * 256 * 896 * 2)
    if OPT.fused:
        srd(S_DBG, 58, 59, None, 256)
        a(salu(f"s_mov_b32 s{S_T0}, {PART_BYTES}")); srd(S_FL, 60, 61, f"s{S_T0}", 32768)
        a(salu(f"s_mov_b32 s{S_T0}, {RING_OFF}")); a(salu(f"s_add_u32 s54, s60, s{S_T0}")); a(salu("s_addc_u32 s55, s61, 0"))
        a(salu(f"s_mov_b32 s{S_RG}, s54")); a(salu(f"s_mov_b32 s{S_RG+1}, s55")); a(salu(f"s_mov_b32 s{S_RG+2}, {RING_BYTES}")); a(salu(f"s_mov_b32 s{S_RG+3}, 0x20000"))
        a(salu(f"s_getreg_b32 s{S_XCC}, hwreg(HW_REG_XCC_ID, 0, 3)"))
        a(salu(f"s_lshl_b32 s{S_SIG}, s{S_G}, 4")); a(salu(f"s_add_u32 s{S_SIG}, s{S_SIG}, s{S_H}"))
        a(salu(f"s_mul_i32 s{S_T0}, s{S_G}, {14*64}"))
        a(salu(f"s_lshl_b32 s{S_T1}, s{S_W}, 4")); a(salu(f"s_add_u32 s{S_T1}, s{S_T1}, s{S_H}")); a(salu(f"s_add_u32 s50, s{S_T0}, s{S_T1}"))
        a(salu(f"s_lshl_b32 s{S_T1}, s{S_H}, 2")); a(salu(f"s_add_u32 s{S_T1}, s{S_T1}, s{S_W}")); a(salu(f"s_add_u32 s51, s{S_T0}, s{S_T1}"))
        a(salu(f"s_add_u32 s51, s51, {CONS_OFF}"))
        a(valu(f"v_min_u32 v1, 13, v{V_LANE}", [f"v{V_LANE}"], ["v1"])); a(valu("v_lshlrev_b32 v1, 6, v1", ["v1"], ["v1"]))
        a(valu("v_mov_b32 v2, 0", [], ["v2"]))
        for sr in ("s50", "s51"):
            a(tag(I(f"buffer_store_byte v2, v1, s[{S_FL}:{S_FL+3}], {sr} offen", "vst", ["v1", "v2"], data=["v2"]), "reset"))
    return o

def add_lgkm_waits(g, cons, carried):
    seq = [(-1, regs) for regs in carried]
    for k in range(g.n):
        if g.mem[k] is not None and g.mem[k].kind == "ds": seq.append((k, g.mem[k].wr))
    lead = None
    for k, regs in cons:
        late = [n for n, (gap, w) in enumerate(seq) if gap == k - 1 and gap >= 0 and set(w) & set(regs)]
        assert not late, f"DS for MFMA {k} issued in gap {k-1}"
        idx = [n for n, (gap, w) in enumerate(seq) if gap < max(k - 1, 0) and set(w) & set(regs)]
        if not idx: continue
        last = max(idx)
        after = sum(1 for n, (gap, w) in enumerate(seq) if n > last and gap < max(k - 1, 0))
        assert after <= 15, (k, after)
        if k == 0: lead = wait_lgkm(after)
        else: g.pre[k - 1].insert(0, wait_lgkm(after))
    out = len(carried)
    if lead is not None: out = min(out, lead.meta["lgkm"])
    for k in range(g.n):
        for x in g.pre[k]:
            if "lgkm" in x.meta: out = min(out, x.meta["lgkm"])
        if g.mem[k] is not None and g.mem[k].kind == "ds":
            if out >= 14:
                assert len(g.pre[k]) == 0, k
                g.pre[k].append(wait_lgkm(8)); out = 8
            out += 1
    return lead

def place_vmem(g, gap, scalars, d, hi=None, stack=False, space=False):
    k = max(gap, 1 if stack else len(scalars))
    hi = g.n if hi is None else hi
    isdma = lambda x: x is not None and x.kind == "dma"
    while True:
        assert k < hi, f"no gap for {d.text}"
        near = OPT.vm_space and any(0 <= k + dd < g.n and dd != 0 and g.mem[k + dd] is not None and g.mem[k + dd].kind in ("vst", "vld", "dma")
                                    for dd in range(-OPT.vm_space, OPT.vm_space + 1))
        if g.mem[k] is None and not g.vec[k] and len(g.pre[k]) <= 1 and not (near and space):
            if stack:
                if not isdma(g.mem[k - 1]) and len(g.pre[k - 1]) + len(scalars) <= 3 and not any(x.kind == "barrier" for x in g.pre[k - 1]): break
            elif all(not g.pre[k - 1 - n] and not isdma(g.mem[k - 1 - n]) for n in range(len(scalars))): break
        k += 1
    if stack:
        for sc in scalars: g.put_pre(k - 1, sc)
    else:
        for n, sc in enumerate(scalars): g.put_pre(k - len(scalars) + n, sc)
    g.put_mem(k, d)
    return k

def put_scalar(g, gap, *ins):
    k = gap
    while g.pre[k]: k += 1
    g.pre[k] = list(ins)
    return k

def place_chain(g, ops, lo, hi):
    left = []
    for ins in ops:
        k = g.place_vec(ins, lo, hi) if (not left and lo < hi) else None
        if k is None: left.append(ins)
        else: lo = k + 1 if ins.kind == "trans" else k
    return lo, left

class Op:
    def __init__(self, ins, rel, dl, preds=()):
        self.ins = ins; self.rel = rel; self.dl = dl; self.preds = list(preds); self.gap = None

def list_schedule(g, ops, lo=0, hi=None):
    hi = g.n if hi is None else hi
    todo = list(ops)
    for k in range(lo, hi):
        while True:
            free = g.free_vec(k)
            if free <= 0: break
            ready = [x for x in todo if x.rel <= k and all(p.gap is not None and p.gap + d <= k for p, d in x.preds)]
            tr = [x for x in ready if x.ins.kind == "trans"]
            pl = [x for x in ready if x.ins.kind != "trans"]
            pick = None
            can_tr = free == 2 and g.mem[k] is None and not g.vec[k]
            if can_tr and tr: pick = min(tr, key=lambda x: x.dl)
            if pl:
                best = min(pl, key=lambda x: x.dl)
                if pick is None or (best.dl + 6 < pick.dl): pick = best
            if pick is None: break
            g.vec[k].append(pick.ins); pick.gap = k; todo.remove(pick)
    late = [x for x in ops if x.gap is not None and x.gap > x.dl]
    assert not late, [(x.ins.text, x.gap, x.dl) for x in late]
    return todo

def sm_ops(tile, kb, qb, rel, dl):
    i = sm_group(tile, kb, qb)
    f = [Op(i[0], rel, dl - 6), Op(i[1], rel, dl - 6), Op(i[4], rel, dl - 5), Op(i[5], rel, dl - 5)]
    x = [Op(i[2], rel, dl - 4, [(f[0], 1)]), Op(i[3], rel, dl - 4, [(f[1], 1)]), Op(i[6], rel, dl - 3, [(f[2], 1)]), Op(i[7], rel, dl - 3, [(f[3], 1)])]
    ad = [Op(i[8], rel, dl, [(x[0], 1)]), Op(i[9], rel, dl, [(x[1], 1)]), Op(i[11], rel, dl, [(x[2], 1)]), Op(i[12], rel, dl, [(x[3], 1)])]
    cv = [Op(i[10], rel, dl, [(x[0], 1), (x[1], 1)]), Op(i[13], rel, dl, [(x[2], 1), (x[3], 1)])]
    return f + x + ad + cv

def exposed(ops):
    o = []
    for n, ins in enumerate(ops):
        o.append(ins)
        if ins.kind == "trans" and n + 1 < len(ops) and ops[n + 1].kind != "trans": o.append(nop(0))
    return o

def conv_ops(acc, d, t):
    return [valu(f"v_accvgpr_read_b32 v{d}, a{acc}", [f"a{acc}"], [f"v{d}"]),
            valu(f"v_accvgpr_read_b32 v{t}, a{acc+1}", [f"a{acc+1}"], [f"v{t}"]),
            valu(f"v_accvgpr_read_b32 v{d+1}, a{acc+2}", [f"a{acc+2}"], [f"v{d+1}"]),
            valu(f"v_accvgpr_read_b32 v{t+1}, a{acc+3}", [f"a{acc+3}"], [f"v{t+1}"]),
            valu(f"v_cvt_pk_bf16_f32 v{d}, v{d}, v{t}", [f"v{d}", f"v{t}"], [f"v{d}"]),
            valu(f"v_cvt_pk_bf16_f32 v{d+1}, v{d+1}, v{t+1}", [f"v{d+1}", f"v{t+1}"], [f"v{d+1}"])]

def xlane_reduce(regs, op, tmp):
    o = []
    for swap in ("v_permlane32_swap_b32", "v_permlane16_swap_b32"):
        for n, r in enumerate(regs): o.append(valu(f"v_mov_b32 v{tmp+n}, v{r}", [f"v{r}"], [f"v{tmp+n}"]))
        o.append(nop(1))
        for n, r in enumerate(regs):
            o.append(valu(f"{swap} v{r}, v{tmp+n}", [f"v{r}", f"v{tmp+n}"], [f"v{r}", f"v{tmp+n}"]))
        o.append(nop(1))
        for n, r in enumerate(regs):
            o.append(valu(f"{op} v{r}, v{r}, v{tmp+n}", [f"v{r}", f"v{tmp+n}"], [f"v{r}"]))
    return o

def wpairs(): return [(L_X, L_X + 16384), (vslot(1), kslot(3)), (vslot(2), vslot(3))]
def wslot(tile):
    p = wpairs(); return p[(tile // 2) % len(p)][tile % 2]
XBUF = [V_S, V_P]
def xfrag(qb, cs): return XBUF[(cs // 2) & 1] + ((cs % 2) * 4 + qb) * 4
V_XD = [128, 129]
V_XR = [130, 131]
S_XB = 34
S_XCUR = 35
def x_setup():
    o = []; a = o.append
    L = f"v{V_LANE}"
    a(salu(f"s_and_b32 s{S_T1}, s{S_W}, 1")); a(salu(f"s_lshl_b32 s{S_T1}, s{S_T1}, 13"))
    a(salu(f"s_cmp_lt_u32 s{S_W}, 2")); a(salu(f"s_cselect_b32 s{S_XB}, 2, 4")); a(salu(f"s_lshl_b32 s{S_XB}, s{S_XB}, 14"))
    a(salu(f"s_add_u32 s{S_XB}, s{S_XB}, s{S_T1}"))
    assert kslot(2) == 2 << 14 and vslot(0) == 4 << 14
    a(valu(f"v_lshrrev_b32 v1, 3, {L}", [L], ["v1"])); a(valu(f"v_and_b32 v2, 7, {L}", [L], ["v2"]))
    a(valu(f"v_lshl_add_u32 v3, s{S_W}, 6, v1", ["v1", f"s{S_W}"], ["v3"]))
    a(valu("v_mul_u32_u24 v3, 896, v3", ["v3"], ["v3"]))
    a(valu("v_lshrrev_b32 v1, 1, v1", ["v1"], ["v1"]))
    for par in range(2):
        r = V_XD[par]
        a(valu(f"v_or_b32 v{r}, {4*par}, v1", ["v1"], [f"v{r}"]))
        a(valu(f"v_xor_b32 v{r}, v{r}, v2", [f"v{r}", "v2"], [f"v{r}"]))
        a(valu(f"v_lshl_add_u32 v{r}, v{r}, 4, v3", [f"v{r}", "v3"], [f"v{r}"]))
        a(valu(f"v_add_u32 v{V_XR[par]}, s{S_XB}, v{V_KA[par]}", [f"v{V_KA[par]}"], [f"v{V_XR[par]}"]))
    return o
def x_items(j):
    out = []
    for i in range(8):
        sreg = S_T2 + (i & 1)
        sc = []
        if i == 0 and j > 0: sc.append(salu(f"s_add_u32 s{S_XCUR}, s{S_XCUR}, s{S_XSTEP}", [f"s{S_XCUR}"], [f"s{S_XCUR}"]))
        sc.append(salu(f"s_add_u32 s{sreg}, s{S_XCUR}, {i*7168}", [f"s{S_XCUR}"], [f"s{sreg}"]))
        sc.append(salu(f"s_add_u32 m0, s{S_XB}, {i*1024}", [f"s{S_XB}"], ["m0"]))
        out.append((sc, tag(dma(V_XD[i & 1], S_X, f"s{sreg}", 0, OPT.x_flags), f"x{j}")))
    return out
def x_read(qb, cs): return ds_read128("v", xfrag(qb, cs), V_XR[cs & 1], qb * 2048)
def w_read(dbp, cs, jj):
    s, e = dbp >> 1, dbp & 1
    base = wslot(cs); win = base // 65536
    off = base - win * 65536 + (s >> 1) * 4096 + jj * 512 + e * 8
    return ds_read_tr("v", V_POOL + 4 * ((2 * dbp + (cs & 1)) % 8) + 2 * jj, V_WA[win][s & 1], off)

V_PF = 28
def coop_setup():
    o = []; a = o.append
    a(salu(f"s_mul_i32 s{S_T1}, s{S_H}, {112*128}"))
    a(salu(f"s_lshl_b32 s{S_T2}, s{S_W}, 12")); a(salu(f"s_add_u32 s{S_T1}, s{S_T1}, s{S_T2}"))
    a(valu(f"v_and_b32 v{V_PF}, 31, v{V_LANE}", [f"v{V_LANE}"], [f"v{V_PF}"]))
    a(valu(f"v_lshlrev_b32 v{V_PF}, 7, v{V_PF}", [f"v{V_PF}"], [f"v{V_PF}"]))
    a(valu(f"v_add_u32 v{V_PF}, s{S_T1}, v{V_PF}", [f"v{V_PF}"], [f"v{V_PF}"]))
    return o
def coop_x():
    return [tag(bload(V_PF + 1, 1, V_PF, S_X, "0", 0, OPT.pf_flags), "pf")]

V_PFW = 132
def coop_w_setup():
    o = []; a = o.append
    L = f"v{V_LANE}"
    a(salu(f"s_lshr_b32 s{S_T1}, s2, 7")); a(salu(f"s_and_b32 s{S_T1}, s{S_T1}, 1")); a(salu(f"s_lshl_b32 s{S_T1}, s{S_T1}, 5"))
    a(salu(f"s_lshl_b32 s{S_T2}, s{S_W}, 3")); a(salu(f"s_add_u32 s{S_T1}, s{S_T1}, s{S_T2}"))
    a(valu(f"v_bfe_u32 v{V_PFW}, {L}, 2, 3", [L], [f"v{V_PFW}"])); a(valu(f"v_add_u32 v{V_PFW}, s{S_T1}, v{V_PFW}", [f"v{V_PFW}"], [f"v{V_PFW}"]))
    a(valu(f"v_lshlrev_b32 v{V_PFW}, 13, v{V_PFW}", [f"v{V_PFW}"], [f"v{V_PFW}"]))
    a(valu(f"v_and_b32 v{V_PFW+1}, 3, {L}", [L], [f"v{V_PFW+1}"]))
    a(valu(f"v_lshl_add_u32 v{V_PFW}, v{V_PFW+1}, 7, v{V_PFW}", [f"v{V_PFW}", f"v{V_PFW+1}"], [f"v{V_PFW}"]))
    return o
def coop_w(j):
    return [salu(f"s_mov_b32 s{S_PFO}, {j*524288}", [], [f"s{S_PFO}"])], tag(bload(V_PFW + 1, 1, V_PFW, S_WQ, f"s{S_PFO}", 0, OPT.pf_flags), "pf")
OOL = []
def kv_off(reg, t):
    if not OPT.rot: return [salu(f"s_mov_b32 s{reg}, {t*16384}", [], [f"s{reg}"])]
    return [salu(f"s_add_u32 s{reg}, s{S_ROT}, {t*16384}", [f"s{S_ROT}"], [f"s{reg}"]), salu(f"s_and_b32 s{reg}, s{reg}, 0x7ffff", [f"s{reg}"], [f"s{reg}"])]
def phase1():
    o = []; a = o.append
    NP = 3
    a(salu(f"s_lshr_b32 s{S_T1}, s2, 7")); a(salu(f"s_and_b32 s{S_T1}, s{S_T1}, {1 if OPT.rev else 0}"))
    a(salu(f"s_cmp_eq_u32 s{S_T1}, 0"))
    a(salu(f"s_cselect_b32 s{S_WCUR}, 0, {6*524288}")); a(salu(f"s_cselect_b32 s{S_T2}, 1, -1"))
    a(salu(f"s_cselect_b32 s{S_XCUR}, 0, 768"))
    a(salu(f"s_mul_i32 s{S_WSTEP}, s{S_T2}, 524288")); a(salu(f"s_mul_i32 s{S_XSTEP}, s{S_T2}, 128"))
    o += x_setup()
    if OPT.coopx: o += coop_setup() + coop_x()
    if OPT.coopw:
        o += coop_w_setup()
        for j in range(OPT.coopw_init):
            sc, d = coop_w(j); o += sc + [d]
    def w_items(j):
        out = []
        for par in range(2):
            sreg = S_WCUR if par == 0 else S_WOFF
            for m, (m0, d) in enumerate(dma_tile("W", wslot(2 * j + par), f"s{sreg}", f"W{j}")):
                sc = [m0]
                if m == 0 and par == 0 and j > 0: sc = [salu(f"s_add_u32 s{S_WCUR}, s{S_WCUR}, s{S_WSTEP}", [f"s{S_WCUR}"], [f"s{S_WCUR}"]), m0]
                if m == 0 and par == 1: sc = [salu(f"s_add_u32 s{S_WOFF}, s{S_WCUR}, 262144", [f"s{S_WCUR}"], [f"s{S_WOFF}"]), m0]
                out.append((sc, d))
        return out
    def kv_items(kind, t):
        out = []
        for m, (m0, d) in enumerate(dma_tile(kind, kslot(t) if kind == "K" else vslot(t), f"s{S_T0}", f"{kind}{t}")):
            out.append((kv_off(S_T0, t) + [m0] if m == 0 else [m0], d))
        return out
    def now(items):
        for sc, d in items:
            o.extend(sc); a(nop(0)); a(d)
    w0 = w_items(0)
    for sc, d in w0[4:]: d.meta["tag"] = "W0b"
    if OPT.xwarm:
        a(valu(f"v_lshlrev_b32 v{V_PFW}, 4, v{V_LANE}", [f"v{V_LANE}"], [f"v{V_PFW}"]))
        a(salu(f"s_mul_i32 s{S_T0}, s{S_H}, 14336")); a(salu(f"s_lshl_b32 s{S_T1}, s{S_W}, 12")); a(salu(f"s_add_u32 s{S_T0}, s{S_T0}, s{S_T1}"))
        a(salu(f"s_add_u32 m0, s{S_T1}, {kslot(0)}", [], ["m0"])); a(nop(0))
        now(w0[:4])
        a(salu(f"s_lshl_b32 s{S_T1}, s{S_W}, 12")); a(salu(f"s_add_u32 m0, s{S_T1}, {kslot(0)}", [], ["m0"])); a(nop(0))
        for i in range(4): a(tag(dma(V_PFW, S_X, f"s{S_T0}", i * 1024, OPT.x_flags), "xw"))
        now(w0[4:]); now(x_items(0))
    else:
        now(x_items(0)); now(w0[:4]); now(w0[4:])
    if OPT.coopw:
        for j in range(OPT.coopw_init, 3):
            sc, d = coop_w(j); o += sc + [d]
    a(wait_tag("x0"))
    xr = [x_read(qb, cs) for cs in (0, 1) for qb in range(4)]
    o += xr
    a(wait_tag("W0")); a(barrier())
    if OPT.fused:
        a(salu(f"s_or_b32 s{S_T0}, s{S_XCC}, 0x80")); a(valu(f"v_mov_b32 v1, s{S_T0}", [], ["v1"])); a(valu("v_mov_b32 v2, 0", [], ["v2"]))
        a(tag(I(f"buffer_store_byte v1, v2, s[{S_DBG}:{S_DBG+3}], s{S_SIG} offen", "vst", ["v1", "v2"], data=["v1"]), "arr"))
    o += stamp("p1_first_data") + (stamp("rt_fd") if OPT.trip_stamps else [])
    def quad0(n): return V_POOL + 4 * (n % 8)
    def w_read0(n, jj):
        dbp, cs = n % 16, n // 16
        r = w_read(dbp, cs, jj)
        return ds_read_tr("v", quad0(n) + 2 * jj, int(r.rd[0][1:]), int(r.text.split("offset:")[1]))
    carried = [x.wr for x in xr]
    for n in range(3):
        for jj in range(2):
            r = w_read0(n, jj); a(r); carried.append(r.wr)
    early = {j: [] for j in range(7)}; after = {j: [] for j in range(7)}
    early[0] += w_items(1); early[1] += w_items(2)
    for j in range(NP, 7): after[j - NP + 1] += w_items(j)
    K = lambda t: kv_items("K", t)
    V = lambda t: kv_items("V", t)
    kv = {"early": {1: K(0), 2: K(1)}, "mid": {2: K(0), 3: K(1)}, "late": {3: K(0), 4: K(1)}}[OPT.kvpf]
    for j, l in kv.items(): early[j] += l
    if OPT.kvmin:
        early = {j: (w_items(1) if j == 0 else w_items(2) if j == 1 else []) for j in range(7)} if False else early
        for j in range(7): early[j] = [it for it in early[j] if not it[1].meta["tag"].startswith("K")]
        early[4] += K(0); early[5] += K(1)
        after[5] += V(0)
        after[6] += K(2) + V(1)
    else:
        after[5] += V(0)
        early[6] += K(2) + V(1) + K(3)
        after[6] += V(2)
    for j in range(7):
        ms = []
        if j == 0:
            for n in range(32):
                for qb in range(4):
                    acc = ((n % 16) * 4 + qb) * 4
                    first = n < 16
                    ms.append(mfma("a", acc, "v", quad0(n), "v", xfrag(qb, n // 16), None if first else "a", None if first else acc))
        else:
            for dbp in range(16):
                for qb in range(4):
                    for e2 in range(2):
                        acc = (dbp * 4 + qb) * 4
                        ms.append(mfma("a", acc, "v", V_POOL + 4 * ((2 * dbp + e2) % 8), "v", xfrag(qb, 2 * j + e2), "a", acc))
        g = Gaps(ms)
        if j == 0:
            for n in range(3, 32):
                for jj in range(2): g.put_mem(4 * n - 12 + 2 * jj, w_read0(n, jj))
        else:
            for dbp in range(3, 16):
                for n, (cs, jj) in enumerate([(2*j, 0), (2*j, 1), (2*j+1, 0), (2*j+1, 1)]):
                    g.put_mem(8 * dbp - 24 + 2 * n, w_read(dbp, cs, jj))
        nxt = []
        if j < 6:
            for dbp in range(3):
                for n, (cs, jj) in enumerate([(2*j+2, 0), (2*j+2, 1), (2*j+3, 0), (2*j+3, 1)]):
                    r = w_read(dbp, cs, jj); g.put_mem(104 + (1 if j == 0 else 0) + 8 * dbp + 2 * n, r); nxt.append(r.wr)
        XG = OPT.x_rd_gap if j > 0 else OPT.x_rd_gap0
        xreads = []
        if j < 6:
            for n, (cs, qb) in enumerate([(cs, qb) for cs in (2*j+2, 2*j+3) for qb in range(4)]):
                r = x_read(qb, cs); g.put_mem(XG + 2 * n, r); xreads.append(r)
        if j == 0:
            cons = [(4 * n, R("v", quad0(n), 4) + (R("v", V_S, 32) if n == 0 else [])) for n in range(32)]
        else:
            cons = [(8 * dbp, R("v", V_POOL + 4 * ((2 * dbp) % 8), 8)) for dbp in range(16)]
        if j < 6: cons.append((XG + 24, [w for r in xreads for w in r.wr]))
        cons.sort()
        lead = add_lgkm_waits(g, cons, carried)
        if j < 6:
            k = XG - 2
            while g.pre[k]: k -= 1
            g.pre[k] = [wait_tag(f"x{j+1}")]
        tags = [f"W{j+1}"] if j < 6 else ["K0"]
        k = 100
        while g.pre[k]: k -= 1
        g.pre[k] = [wait_tag(*tags), barrier()] if not OPT.p1_nowait else [barrier()]
        kb = k
        gp = 1
        if OPT.coopw and j + 3 <= 6:
            sc, d = coop_w(j + 3); gp = place_vmem(g, 2, sc, d, kb) + 1
        if j == 0:
            for sc, d in x_items(1): gp = place_vmem(g, gp, sc, d, XG - 3, stack=True) + 2
            k = 48
            while g.pre[k]: k -= 1
            g.pre[k] = [wait_tag("W0b"), barrier()]
            assert k < 52
        for sc, d in early[j]: gp = place_vmem(g, gp + len(sc) - 1, sc, d, kb) + (OPT.early_step if j != 6 else 7)
        if j < 5:
            gx = max(XG + 25, gp)
            for sc, d in x_items(j + 2): gx = place_vmem(g, gx, sc, d, stack=True) + 2
            gpa = max(kb + 2, gx)
        else: gpa = kb + 2
        for sc, d in after[j]: gpa = place_vmem(g, gpa, sc, d, stack=True) + 1
        left = []
        if j == 6:
            for dbp in range(16):
                for qb in range(4):
                    ops = conv_ops((dbp * 4 + qb) * 4, V_Q + (qb * 8 + (dbp >> 1)) * 4 + 2 * (dbp & 1), V_CT + 2 * (qb & 1))
                    if left: left += ops
                    else:
                        _, l2 = place_chain(g, ops, 8 * dbp + 2 * qb + 1 + 5, 128); left += l2
        if lead is not None: a(lead)
        em = g.emit()
        if OPT.p1_drop:
            def keep(x):
                if x.kind in ("dma", "vld"):
                    t = x.meta.get("tag", "")
                    for c in OPT.p1_drop:
                        if t.startswith(c): return False
                return True
            em = [x for x in em if keep(x)]
        if OPT.p1_noread: em = [x for x in em if x.kind != "ds" and not (x.kind == "wait" and "lgkm" in x.meta)]
        o += em
        carried = nxt
        if OPT.p1_steps: o += stamp(f"step{j}")
        if left: a(nop(7)); o += left
    if not OPT.p1_steps: o += stamp("p1_end") + (stamp("rt_p1") if OPT.trip_stamps else [])
    return o

def k_read(t, kb, s):
    return ds_read128("v", V_POOL + 4 * s, V_KA[s & 1], (kslot(t) - L_K) + (s >> 1) * 4096 + kb * 2048)
def v_read(t, db, jj):
    return ds_read_tr("v", V_POOL + 4 * (db % 8) + 2 * jj, V_VA[db & 3], (vslot(t) - L_V) + (db >> 2) * 4096 + jj * 2048)
def Sreg(kb, qb): return V_S + (kb * 4 + qb) * 4
def Preg(buf, qb): return V_P + buf * 16 + qb * 4
def qk_mfmas():
    ms = []
    for i in range(64):
        kb, sp, qb, e = i >> 5, (i >> 3) & 3, (i >> 1) & 3, i & 1
        s = 2 * sp + e; d = Sreg(kb, qb)
        ms.append(mfma("v", d, "v", V_POOL + 4 * s, "v", V_Q + (qb * 8 + s) * 4, None if s == 0 else "v", None if s == 0 else d))
    return ms
def pv_mfmas(t, first):
    ms = []
    for i in range(64):
        db, qb = i >> 2, i & 3
        acc = (db * 4 + qb) * 4
        ms.append(mfma("a", acc, "v", V_POOL + 4 * (db % 8), "v", Preg(t & 1, qb), None if first else "a", None if first else acc))
    return ms
def sm_group(tile, kb, qb):
    s = Sreg(kb, qb); p = Preg(tile & 1, qb) + 2 * kb; mc = V_MC + qb; l = V_L + qb
    f = lambda r: valu(f"v_fma_f32 v{s+r}, v{s+r}, s{S_C}, v{mc}", [f"v{s+r}", f"v{mc}", f"s{S_C}"], [f"v{s+r}"])
    x = lambda r: trans(f"v_exp_f32 v{s+r}, v{s+r}", [f"v{s+r}"], [f"v{s+r}"])
    ad = lambda r: valu(f"v_add_f32 v{l}, v{l}, v{s+r}", [f"v{l}", f"v{s+r}"], [f"v{l}"])
    cv = lambda r: valu(f"v_cvt_pk_bf16_f32 v{p+r//2}, v{s+r}, v{s+r+1}", [f"v{s+r}", f"v{s+r+1}"], [f"v{p+r//2}"])
    return [f(0), f(1), x(0), x(1), f(2), f(3), x(2), x(3), ad(0), ad(1), cv(0), ad(2), ad(3), cv(2)]

def pre_iter():
    o = []; a = o.append
    carried = []
    for s in range(8):
        r = k_read(0, 0, s); a(r); carried.append(r.wr)
    g = Gaps(qk_mfmas())
    for s in range(8): g.put_mem(8 * (s >> 1) + 10 + 4 * (s & 1), k_read(0, 1, s))
    cons = [(8 * p, R("v", V_POOL + 8 * (p % 4), 8)) for p in range(8)]
    a(add_lgkm_waits(g, cons, carried))
    if OPT.kvmin:
        gp = 3
        for kind, t in (("K", 3), ("V", 2)):
            for m, (m0, d) in enumerate(dma_tile(kind, kslot(t) if kind == "K" else vslot(t), f"s{S_T0}", f"{kind}{t}")):
                gp = place_vmem(g, gp, (kv_off(S_T0, t) if m == 0 else []) + [m0], d, stack=True) + 5
    o += g.emit()
    a(wait_tag("K1", "V0")); a(barrier())
    o += kv_off(S_KOFF, 4)
    for m0, d in dma_tile("K", kslot(4), f"s{S_KOFF}", "K4"): a(m0); a(nop(0)); a(d)
    o += kv_off(S_KOFF, 5) + kv_off(S_VOFF, 3)
    carried = []
    for s in range(8):
        r = k_read(1, 0, s); a(r); carried.append(r.wr)
    for qb in range(4):
        m = V_MC + qb; s0 = Sreg(0, qb); s1 = Sreg(1, qb)
        a(valu(f"v_max3_f32 v{m}, v{s0}, v{s0+1}, v{s0+2}", R("v", s0, 3), [f"v{m}"]))
        a(valu(f"v_max3_f32 v{m}, v{m}, v{s0+3}, v{s1}", [f"v{m}", f"v{s0+3}", f"v{s1}"], [f"v{m}"]))
        a(valu(f"v_max3_f32 v{m}, v{m}, v{s1+1}, v{s1+2}", [f"v{m}", f"v{s1+1}", f"v{s1+2}"], [f"v{m}"]))
        a(valu(f"v_max_f32 v{m}, v{m}, v{s1+3}", [f"v{m}", f"v{s1+3}"], [f"v{m}"]))
    o += xlane_reduce([V_MC + q for q in range(4)], "v_max_f32", V_SP)
    for qb in range(4):
        m = V_MC + qb
        a(valu(f"v_mul_f32 v{m}, s{S_C}, v{m}", [f"v{m}", f"s{S_C}"], [f"v{m}"]))
        a(valu(f"v_sub_f32 v{m}, 0, v{m}", [f"v{m}"], [f"v{m}"]))
        a(valu(f"v_mov_b32 v{V_L+qb}, 0", [], [f"v{V_L+qb}"]))
    for kb, qb in [(0, 0), (0, 1), (0, 2), (0, 3), (1, 0), (1, 1)]: o += exposed(sm_group(0, kb, qb))
    o += stamp("pre_iter_end")
    return o, carried

def attn_iter(t, carried, vmw, prev, cur, first=False, adv=True, loopctl=False, extra=None, loop_body=False):
    g = Gaps(qk_mfmas() + pv_mfmas(t, first))
    for s in range(8): g.put_mem(8 * (s >> 1) + 10 + 4 * (s & 1), k_read(t + 1, 1, s))
    for db in range(16):
        for jj in range(2): g.put_mem(44 + 4 * db + 2 * jj, v_read(t, db, jj))
    nxt = []
    if t + 2 <= 31:
        for s, gap in zip(range(8), [108, 110, 112, 114, 116, 120, 124, 127]):
            r = k_read(t + 2, 0, s); g.put_mem(gap, r); nxt.append(r.wr)
    else:
        for db in range(5):
            for jj in range(2):
                r = v_read(t + 1, db, jj); g.put_mem(108 + 4 * db + 2 * jj, r); nxt.append(r.wr)
    cons = [(8 * p, R("v", V_POOL + 8 * (p % 4), 8)) for p in range(8)]
    cons += [(64 + 4 * db, R("v", V_POOL + 4 * (db % 8), 4)) for db in range(16)]
    lead = add_lgkm_waits(g, cons, carried)
    kb = 98
    while g.pre[kb]: kb -= 1
    g.pre[kb] = [vmw, barrier()]
    if OPT.bar_stamps and loop_body:
        g.pre[kb] = [raw("s_memtime s[94:95]", "salu"), vmw, raw("s_memtime s[96:97]", "salu"), barrier(), raw("s_memtime s[98:99]", "salu"),
                     raw("s_waitcnt lgkmcnt(0)", "wait", lgkm=0),
                     salu("s_sub_u32 s96, s96, s94"), salu("s_add_u32 s92, s92, s96"),
                     salu("s_sub_u32 s98, s98, s94"), salu("s_add_u32 s93, s93, s98")]
    gp_prev, gp_cur = OPT.dma_gaps
    placed = [place_vmem(g, gap, [m0], d, kb) for gap, (m0, d) in zip(gp_prev, prev)]
    for gap, (m0, d) in zip(gp_cur, cur): place_vmem(g, gap, [m0], d)
    if adv:
        for reg, srd, at in ((S_VOFF, S_V, (placed[OPT.nv_prev - 1] if OPT.nv_prev else 1) + 1), (S_KOFF, S_K, placed[-1] + 1)):
            k = put_scalar(g, at, salu(f"s_add_u32 s{reg}, s{reg}, 16384", [f"s{reg}"], [f"s{reg}"]))
            k = put_scalar(g, k + 1, salu(f"s_and_b32 s{reg}, s{reg}, 0x7ffff", [f"s{reg}"], [f"s{reg}"]))
            assert k < 100
        if loopctl:
            first_k = placed[-4]
            k = put_scalar(g, 2, salu(f"s_cmp_eq_u32 s{S_LOOP}, 1", [f"s{S_LOOP}"], ["scc"]),
                           salu(f"s_cselect_b32 s{S_K+2}, 0, 524288", ["scc"], [f"s{S_K+2}"]))
            assert k < first_k - 1
    if loopctl:
        k = put_scalar(g, 119, salu(f"s_sub_u32 s{S_LOOP}, s{S_LOOP}, 1", [f"s{S_LOOP}"], [f"s{S_LOOP}"]))
        k = put_scalar(g, k + 1, salu(f"s_cmp_lg_u32 s{S_LOOP}, 0", [f"s{S_LOOP}"], ["scc"]))
        assert k <= 127
        for kk in range(k + 1, 128):
            assert all(x.kind == "wait" for x in g.pre[kk]), "SCC clobbered before the loop branch"
    if extra: extra(g, kb)
    ops = []
    for qb in (2, 3): ops += sm_ops(t, 1, qb, 0, 31 + 2 * qb)
    for qb in range(4): ops += sm_ops(t + 1, 0, qb, 25 + 2 * qb + 6, 100 + 6 * qb)
    for qb in (0, 1): ops += sm_ops(t + 1, 1, qb, 57 + 2 * qb + 6, 124 + 3 * qb)
    left = list_schedule(g, ops)
    if OPT.vfirst:
        cand = [k for k in range(128) if g.mem[k] is not None and g.mem[k].kind == "ds" and len(g.vec[k]) == 1 and g.vec[k][0].kind == "valu"
                and not (set(g.vec[k][0].wr) & set(g.mem[k].rd + g.mem[k].wr))]
        n = min(OPT.vfirst, len(cand))
        for i in range(n): g.vec_first.add(cand[(i * len(cand)) // n])
    if OPT.pad_iter:
        for n in range(OPT.pad_iter): g.post[(n * 128) // OPT.pad_iter + 3].append(nop(3))
    assert not left, f"softmax groups do not fit: {len(left)} left"
    return [lead] + g.emit(), nxt

def safe_attn():
    o = []; a = o.append
    VM, VT, VA_, TMP = 20, 24, 28, 112
    a(label("L_safe_attn")); a(wait_vm(0)); a(raw("s_waitcnt lgkmcnt(0)", "wait", lgkm=0)); a(barrier())
    for r in range(256): a(valu(f"v_accvgpr_write_b32 a{r}, 0", [], [f"a{r}"]))
    for qb in range(4):
        a(valu(f"v_mov_b32 v{VM+qb}, 0xff800000", [], [f"v{VM+qb}"])); a(valu(f"v_mov_b32 v{V_L+qb}, 0", [], [f"v{V_L+qb}"]))
    a(salu(f"s_mov_b32 s{S_KOFF}, 0")); a(salu(f"s_mov_b32 s{S_LOOP}, 32"))
    a(label("L_safe_loop"))
    for kind, slot in (("K", kslot(0)), ("V", vslot(0))):
        for m0, d in dma_tile(kind, slot, f"s{S_KOFF}", "safe"): a(m0); a(nop(0)); a(d)
    a(wait_vm(0)); a(barrier())
    qk = qk_mfmas()
    for kb in range(2):
        for s_ in range(8): a(k_read(0, kb, s_))
        a(wait_lgkm(0)); o += qk[32 * kb:32 * kb + 32]
    a(nop(7)); a(nop(7))
    for qb in range(4):
        t = VT + qb; s0 = Sreg(0, qb); s1 = Sreg(1, qb)
        a(valu(f"v_max3_f32 v{t}, v{s0}, v{s0+1}, v{s0+2}", [], [])); a(valu(f"v_max3_f32 v{t}, v{t}, v{s0+3}, v{s1}", [], []))
        a(valu(f"v_max3_f32 v{t}, v{t}, v{s1+1}, v{s1+2}", [], [])); a(valu(f"v_max_f32 v{t}, v{t}, v{s1+3}", [], []))
    o += xlane_reduce([VT + q for q in range(4)], "v_max_f32", TMP)
    for qb in range(4):
        a(valu(f"v_max_f32 v{VT+qb}, v{VT+qb}, v{VM+qb}", [], []))
        a(valu(f"v_sub_f32 v{VA_+qb}, v{VM+qb}, v{VT+qb}", [], [])); a(valu(f"v_mul_f32 v{VA_+qb}, s{S_C}, v{VA_+qb}", [], []))
        a(trans(f"v_exp_f32 v{VA_+qb}, v{VA_+qb}", [], [])); a(valu(f"v_mov_b32 v{VM+qb}, v{VT+qb}", [], []))
        a(valu(f"v_mul_f32 v{V_MC+qb}, s{S_C}, v{VT+qb}", [], [])); a(valu(f"v_sub_f32 v{V_MC+qb}, 0, v{V_MC+qb}", [], []))
        a(valu(f"v_mul_f32 v{V_L+qb}, v{V_L+qb}, v{VA_+qb}", [], []))
    for r in range(256):
        qb = (r >> 2) & 3; t = TMP + (r & 7)
        a(valu(f"v_accvgpr_read_b32 v{t}, a{r}", [], [])); a(valu(f"v_mul_f32 v{t}, v{t}, v{VA_+qb}", [], [])); a(valu(f"v_accvgpr_write_b32 a{r}, v{t}", [], []))
    for kb in range(2):
        for qb in range(4): o += exposed(sm_group(0, kb, qb))
    pv = pv_mfmas(0, False)
    for half in range(2):
        for db in range(8 * half, 8 * half + 8):
            for jj in range(2):
                a(v_read(0, db, jj))
            if db % 4 == 3: a(wait_lgkm(0))
        a(nop(1)); o += pv[32 * half:32 * half + 32]
    a(salu(f"s_add_u32 s{S_KOFF}, s{S_KOFF}, 16384")); a(salu(f"s_sub_u32 s{S_LOOP}, s{S_LOOP}, 1")); a(salu(f"s_cmp_lg_u32 s{S_LOOP}, 0"))
    a(barrier()); a(raw("s_cbranch_scc1 L_safe_loop", "branch"))
    a(nop(7)); a(nop(7))
    o += xlane_reduce([V_L + q for q in range(4)], "v_add_f32", TMP)
    for qb in range(4): a(trans(f"v_rcp_f32 v{V_L+qb}, v{V_L+qb}", [], []))
    a(nop(0))
    for db in range(16):
        for qb in range(4):
            o += conv_ops((db * 4 + qb) * 4, V_Q + (qb * 8 + (db >> 1)) * 4 + 2 * (db & 1), V_SP + 8 + 2 * (qb & 1))
    o += wo_setup()
    if OPT.fused: o += grp_setup() + [nop(1), mode_load()]
    for j in range(4):
        for sc, d in wo_dma(j): o += sc + [nop(0), d]
    a(wait_vm(0)); a(raw("s_branch L_p3_entry", "branch"))
    return o

def last_iter(carried):
    o = []; a = o.append
    for qb in (2, 3): o += exposed(sm_group(31, 1, qb))
    o += xlane_reduce([V_L + q for q in range(4)], "v_add_f32", V_SP)
    a(salu(f"s_mov_b32 s{S_T0}, 0x{f32bits(L_LIMIT):08x}"))
    for qb in range(4):
        a(valu(f"v_cmp_nge_f32 s[{50+2*(qb&1)}:{51+2*(qb&1)}], s{S_T0}, v{V_L+qb}", [f"v{V_L+qb}"], [f"s{50+2*(qb&1)}", f"s{51+2*(qb&1)}"]))
        if qb & 1:
            a(nop(0)); a(salu("s_or_b64 s[50:51], s[50:51], s[52:53]"))
            a(salu("s_mov_b64 s[54:55], s[50:51]") if qb == 1 else salu("s_or_b64 s[54:55], s[54:55], s[50:51]"))
    a(salu("s_cselect_b32 s50, 1, 0"))
    a(salu(f"s_lshl_b32 s51, s{S_W}, 2")); a(salu(f"s_add_u32 s51, s51, {L_VOTE}"))
    a(valu(f"v_mov_b32 v{V_SP}, s50", [], [f"v{V_SP}"])); a(valu(f"v_mov_b32 v{V_SP+1}, s51", [], [f"v{V_SP+1}"]))
    a(I(f"ds_write_b32 v{V_SP+1}, v{V_SP}", "ds", [f"v{V_SP}", f"v{V_SP+1}"], []))
    carried = carried + [[]]
    for qb in range(4): a(trans(f"v_rcp_f32 v{V_L+qb}, v{V_L+qb}", [f"v{V_L+qb}"], [f"v{V_L+qb}"]))
    a(nop(0))
    g = Gaps(pv_mfmas(31, False))
    for db in range(5, 8):
        for jj in range(2): g.put_mem(4 * (db - 5) + 2 * jj, v_read(31, db, jj))
    for db in range(8, 16):
        for jj in range(2): g.put_mem(12 + 4 * (db - 8) + 2 * jj, v_read(31, db, jj))
    cons = [(4 * db, R("v", V_POOL + 4 * (db % 8), 4)) for db in range(16)]
    lead = add_lgkm_waits(g, cons, carried)
    gp = put_wo(g, 2, 2, step=0)
    put_wo(g, 3, gp, step=0)
    left = []
    for db in range(16):
        for qb in range(4):
            ops = conv_ops((db * 4 + qb) * 4, V_Q + (qb * 8 + (db >> 1)) * 4 + 2 * (db & 1), V_SP + 8 + 2 * (qb & 1))
            if left: left += ops
            else:
                _, l2 = place_chain(g, ops, 4 * db + qb + 5, 64); left += l2
    a(lead); o += g.emit()
    a(nop(7)); o += left
    return o

WOBUF = [L_X, L_K, L_K + 32768, L_V, L_V + 32768, L_X, L_K]
V_DWO = 3; V_STO = V_DV
V_FR3 = 32; V_ACC3 = V_P; V_STG = 16
def wo_dma(j):
    out = []
    for i in range(8):
        sreg = S_T0 + (i & 1)
        out.append(([salu(f"s_mov_b32 s{sreg}, {j*128 + i*32*896}", [], [f"s{sreg}"]),
                     salu(f"s_add_u32 m0, s{S_W1K}, {WOBUF[j] + i*4096}", [f"s{S_W1K}"], ["m0"])],
                    tag(dma(V_DWO, S_WO, f"s{sreg}", 0, OPT.wo_flags), f"wo{j}")))
    return out
def wo_setup():
    o = []; a = o.append
    L = f"v{V_LANE}"
    a(valu(f"v_lshrrev_b32 v1, 3, {L}", [L], ["v1"])); a(valu(f"v_and_b32 v2, 7, {L}", [L], ["v2"]))
    a(valu(f"v_lshl_add_u32 v3, s{S_W}, 3, v1", ["v1", f"s{S_W}"], ["v3"]))
    a(valu("v_bfe_u32 v1, v1, 1, 2", ["v1"], ["v1"])); a(valu("v_lshlrev_b32 v1, 1, v1", ["v1"], ["v1"]))
    a(valu("v_xor_b32 v1, v1, v2", ["v1", "v2"], ["v1"])); a(valu("v_lshlrev_b32 v1, 4, v1", ["v1"], ["v1"]))
    a(valu("v_mul_u32_u24 v3, 896, v3", ["v3"], ["v3"]))
    a(valu(f"v_add_u32 v{V_DWO}, v3, v1", ["v3", "v1"], [f"v{V_DWO}"]))
    return o
V_WOT = 2
def wo_touch_setup():
    return [valu(f"v_lshl_add_u32 v{V_WOT}, s{S_W}, 6, v{V_LANE}", [f"v{V_LANE}"], [f"v{V_WOT}"]),
            valu(f"v_mul_u32_u24 v{V_WOT}, 896, v{V_WOT}", [f"v{V_WOT}"], [f"v{V_WOT}"])]
def wo_touch(j): return tag(bload(1, 1, V_WOT, S_WO, "0", j * 128, OPT.wt_flags), "wt")
def put_wo(g, j, start, hi=None, step=3):
    gp = start
    for sc, d in wo_dma(j): gp = place_vmem(g, gp, sc, d, hi) + step
    return gp
def va_shift(delta):
    t = (lambda r: f"v_add_u32 v{r}, {delta}, v{r}") if delta >= 0 else (lambda r: f"v_subrev_u32 v{r}, {-delta}, v{r}")
    return [valu(t(r), [f"v{r}"], [f"v{r}"]) for r in V_VA]

def part_ops(nb, qb):
    acc = V_ACC3 + 4 * ((nb * 4 + qb) % 8)
    st = V_STG + 4 * qb + 2 * (nb & 1)
    li = V_L + qb
    ops = [valu(f"v_mul_f32 v{acc+r}, v{acc+r}, v{li}", [f"v{acc+r}", f"v{li}"], [f"v{acc+r}"]) for r in range(4)]
    ops += [valu(f"v_cvt_pk_bf16_f32 v{st}, v{acc}, v{acc+1}", [f"v{acc}", f"v{acc+1}"], [f"v{st}"]),
            valu(f"v_cvt_pk_bf16_f32 v{st+1}, v{acc+2}, v{acc+3}", [f"v{acc+2}", f"v{acc+3}"], [f"v{st+1}"])]
    return ops

A_FR3 = 0; A_SEL = 224
V_POLLA, V_POLL, V_ONE, V_ZERO, V_RLD, V_OUT = 32, 33, 34, 35, 36, 37
V_RD = 40
V_GRP = V_ARR + 3
def wo_read(nb, s_, jj):
    return ds_read_tr("a", A_FR3 + 4 * (8 * (nb & 1) + s_) + 2 * jj, V_VA[nb], s_ * 4096 + jj * 2048)

V_GA = V_ARR + 2
def grp_setup():
    return [salu(f"s_lshl_b32 s{S_T0}, s{S_G}, 4"), valu(f"v_and_b32 v{V_GA}, 3, v{V_LANE}", [f"v{V_LANE}"], [f"v{V_GA}"]),
            valu(f"v_lshlrev_b32 v{V_GA}, 2, v{V_GA}", [f"v{V_GA}"], [f"v{V_GA}"]), valu(f"v_add_u32 v{V_GA}, s{S_T0}, v{V_GA}", [f"v{V_GA}"], [f"v{V_GA}"])]
V_GA3 = 38
def grp_load(dst, tg, ga=V_GA): return tag(bload(dst, 1, ga, S_DBG, "0", 0, "sc1"), tg)
def splat(x): return x * 0x01010101
def mode_load(): return grp_load(V_ARR, "grp")
def mode_check():
    o = []; a = o.append
    a(salu(f"s_or_b32 s{S_T0}, s{S_XCC}, 0x80")); a(salu(f"s_mul_i32 s50, s{S_T0}, 0x01010101"))
    a(wait_tag("grp"))
    a(valu(f"v_and_b32 v{V_ARR}, 0x87878787, v{V_ARR}", [f"v{V_ARR}"], [f"v{V_ARR}"]))
    a(valu(f"v_cmp_eq_u32 vcc, s50, v{V_ARR}", [f"v{V_ARR}"], ["vcc"])); a(nop(0))
    a(salu("s_cmp_eq_u64 vcc, -1"))
    a(salu(f"s_cselect_b64 s[{S_LOCM}:{S_LOCM+1}], -1, 0"))
    if OPT.force_fallback: a(salu("s_cmp_eq_u32 s50, 0"))
    a(raw("s_cbranch_scc0 L_grp_far", "branch")); a(label("L_grp_ok"))
    f = [label("L_grp_far"), salu(f"s_or_b32 s{S_T0}, s{S_XCC}, 0x80"), valu(f"v_mov_b32 v{V_ARR+1}, s{S_T0}", [], []),
         valu(f"v_mov_b32 v{V_ARR+3}, 0", [], []),
         raw(f"buffer_store_byte v{V_ARR+1}, v{V_ARR+3}, s[{S_DBG}:{S_DBG+3}], s{S_SIG} offen sc1", "salu"), wait_vm(0),
         salu(f"s_mov_b32 s{S_SPIN}, {SPIN_MAX}"), label("L_grp_again"),
         salu(f"s_sub_u32 s{S_SPIN}, s{S_SPIN}, 1"), salu(f"s_cmp_eq_u32 s{S_SPIN}, 0"), raw("s_cbranch_scc1 L_grp_ok", "branch")]
    if not OPT.force_fallback:
        f += [raw(f"buffer_load_dword v{V_ARR}, v{V_GA}, s[{S_DBG}:{S_DBG+3}], 0 offen sc1", "salu"), wait_vm(0),
              valu(f"v_and_b32 v{V_ARR}, 0x87878787, v{V_ARR}", [], []), valu(f"v_cmp_eq_u32 vcc, s50, v{V_ARR}", [], []), nop(0),
              salu("s_cmp_eq_u64 vcc, -1"), salu(f"s_cselect_b64 s[{S_LOCM}:{S_LOCM+1}], -1, 0"), raw("s_cbranch_scc1 L_grp_ok", "branch")]
    f += far_read(V_ARR)
    f += [valu(f"v_and_b32 v{V_ARR+1}, 0x80808080, v{V_ARR}", [], []), valu(f"v_cmp_eq_u32 vcc, 0x80808080, v{V_ARR+1}", [], []), nop(0),
          salu("s_and_b64 s[52:53], vcc, 15"), salu("s_cmp_eq_u64 s[52:53], 15"), raw("s_cbranch_scc0 L_grp_again", "branch"),
          valu(f"v_and_b32 v{V_ARR}, 0x87878787, v{V_ARR}", [], []), valu(f"v_cmp_eq_u32 vcc, s50, v{V_ARR}", [], []), nop(0),
          salu("s_and_b64 s[52:53], vcc, 15"), salu("s_cmp_eq_u64 s[52:53], 15"),
          salu(f"s_cselect_b64 s[{S_LOCM}:{S_LOCM+1}], -1, 0")]
    if OPT.force_fallback: f.append(salu(f"s_mov_b64 s[{S_LOCM}:{S_LOCM+1}], 0"))
    f.append(raw("s_branch L_grp_ok", "branch"))
    OOL.extend(f)
    return o
def far_read(dst, ga=V_GA):
    return [valu(f"v_mov_b32 v{dst}, 0", [], []), valu(f"v_cmp_gt_u32 vcc, 4, v{V_LANE}", [], []),
            raw("s_and_saveexec_b64 s[54:55], vcc", "salu"),
            raw(f"buffer_atomic_add v{dst}, v{ga}, s[{S_DBG}:{S_DBG+3}], 0 offen sc0 sc1", "salu"), wait_vm(0),
            raw("s_mov_b64 exec, s[54:55]", "salu")]

def p3_setup():
    o = []; a = o.append
    L = f"v{V_LANE}"
    a(salu(f"s_mul_i32 s{S_PART}, s{S_G}, {7*16*16*2048}"))
    a(salu(f"s_lshl_b32 s{S_T2}, s{S_H}, 15")); a(salu(f"s_add_u32 s{S_RBASE}, s{S_PART}, s{S_T2}"))
    a(salu(f"s_lshl_b32 s{S_T2}, s{S_W}, 17")); a(salu(f"s_add_u32 s{S_PART}, s{S_PART}, s{S_T2}"))
    a(salu(f"s_lshl_b32 s{S_T2}, s{S_H}, 11")); a(salu(f"s_add_u32 s{S_PART}, s{S_PART}, s{S_T2}"))
    a(valu(f"v_lshlrev_b32 v{V_STO}, 4, {L}", [L], [f"v{V_STO}"]))
    if not OPT.fused: return o
    a(valu(f"v_mov_b32 v{V_ZERO}, 0", [], [f"v{V_ZERO}"])); a(valu(f"v_mov_b32 v{V_GA3}, v{V_GA}", [f"v{V_GA}"], [f"v{V_GA3}"]))
    a(salu(f"s_or_b32 s{S_T2}, s{S_XCC}, 0xf0")); a(valu(f"v_mov_b32 v{V_ONE}, s{S_T2}", [], [f"v{V_ONE}"]))
    a(valu(f"v_lshrrev_b32 v1, 5, {L}", [L], ["v1"])); a(valu("v_lshlrev_b32 v1, 11, v1", ["v1"], ["v1"]))
    a(valu(f"v_and_b32 v2, 31, {L}", [L], ["v2"])); a(valu(f"v_lshl_add_u32 v{V_RLD}, v2, 4, v1", ["v1", "v2"], [f"v{V_RLD}"]))
    a(salu(f"s_lshl_b32 s{S_T2}, s{S_W}, 9")); a(valu(f"v_add_u32 v{V_RLD}, s{S_T2}, v{V_RLD}", [f"v{V_RLD}"], [f"v{V_RLD}"]))
    a(valu(f"v_and_b32 v1, 15, {L}", [L], ["v1"])); a(valu(f"v_lshrrev_b32 v2, 4, {L}", [L], ["v2"]))
    a(valu("v_lshrrev_b32 v4, 3, v1", ["v1"], ["v4"])); a(valu("v_and_b32 v5, 1, v2", ["v2"], ["v5"]))
    a(valu("v_and_b32 v48, 1, v1", ["v1"], ["v48"])); a(valu("v_lshlrev_b32 v48, 4, v48", ["v48"], ["v48"]))
    a(valu("v_mov_b32 v49, 0x3f80", [], ["v49"])); a(valu("v_lshlrev_b32 v49, v48, v49", ["v48", "v49"], ["v49"]))
    a(valu("v_cmp_eq_u32 vcc, v4, v5", ["v4", "v5"], ["vcc"])); a(nop(1))
    a(valu("v_cndmask_b32 v49, 0, v49, vcc", ["v49", "vcc"], ["v49"]))
    a(valu("v_bfe_u32 v50, v1, 1, 2", ["v1"], ["v50"]))
    for r in range(4):
        a(valu(f"v_cmp_eq_u32 vcc, {r}, v50", ["v50"], ["vcc"])); a(nop(1))
        a(valu("v_cndmask_b32 v51, 0, v49, vcc", ["v49", "vcc"], ["v51"]))
        a(valu(f"v_accvgpr_write_b32 a{A_SEL+r}, v51", ["v51"], [f"a{A_SEL+r}"]))
    a(salu(f"s_lshl_b32 s{S_T2}, s{S_B}, 8")); a(salu(f"s_lshl_b32 s{S_T3}, s{S_H}, 4")); a(salu(f"s_add_u32 s{S_T2}, s{S_T2}, s{S_T3}"))
    a(valu(f"v_add_u32 v{V_OUT}, s{S_T2}, v1", ["v1"], [f"v{V_OUT}"])); a(valu(f"v_mul_u32_u24 v{V_OUT}, 896, v{V_OUT}", [f"v{V_OUT}"], [f"v{V_OUT}"]))
    a(salu(f"s_mul_i32 s{S_T2}, s{S_BR}, 448")); a(salu(f"s_lshr_b32 s{S_T3}, s{S_W}, 1")); a(salu(f"s_lshl_b32 s{S_T3}, s{S_T3}, 5"))
    a(salu(f"s_add_u32 s{S_T2}, s{S_T2}, s{S_T3}")); a(salu(f"s_and_b32 s{S_T3}, s{S_W}, 1")); a(salu(f"s_lshl_b32 s{S_T3}, s{S_T3}, 3"))
    a(salu(f"s_add_u32 s{S_T2}, s{S_T2}, s{S_T3}"))
    a(valu(f"v_add_u32 v{V_OUT}, s{S_T2}, v{V_OUT}", [f"v{V_OUT}"], [f"v{V_OUT}"]))
    a(valu(f"v_lshl_add_u32 v{V_OUT}, v5, 4, v{V_OUT}", ["v5", f"v{V_OUT}"], [f"v{V_OUT}"]))
    a(valu("v_lshrrev_b32 v4, 1, v2", ["v2"], ["v4"])); a(valu(f"v_lshl_add_u32 v{V_OUT}, v4, 2, v{V_OUT}", ["v4", f"v{V_OUT}"], [f"v{V_OUT}"]))
    a(valu(f"v_lshlrev_b32 v{V_OUT}, 1, v{V_OUT}", [f"v{V_OUT}"], [f"v{V_OUT}"]))
    return o

def handoff_far():
    o = [wait_vm(0), barrier(), raw("buffer_wbl2 sc1", "salu"), wait_vm(0), barrier(),
         raw(f"buffer_store_byte v{V_ONE}, v{V_ZERO}, s[{S_DBG}:{S_DBG+3}], s{S_SIG} offen sc1", "salu"), wait_vm(0),
         salu(f"s_mov_b32 s{S_SPIN}, {SPIN_MAX}"), label("L_far_poll"),
         salu(f"s_sub_u32 s{S_SPIN}, s{S_SPIN}, 1"), salu(f"s_cmp_eq_u32 s{S_SPIN}, 0"), raw("s_cbranch_scc1 L_far_done", "branch")]
    o += far_read(V_POLL, V_GA3)
    o += [valu(f"v_and_b32 v{V_POLL}, 0xf0f0f0f0, v{V_POLL}", [], []), valu(f"v_cmp_eq_u32 vcc, 0xf0f0f0f0, v{V_POLL}", [], []), nop(0),
          salu("s_and_b64 s[52:53], vcc, 15"), salu("s_cmp_eq_u64 s[52:53], 15"), raw("s_cbranch_scc0 L_far_poll", "branch"),
          label("L_far_done"), raw("buffer_inv sc1", "salu"), wait_vm(0)]
    return o

A_PIECE = 0; A_SEL2 = 224
def red_loads(j):
    out = []
    for i in range(8):
        sr = "s52" if i % 2 == 0 else "s53"
        out.append(([salu(f"s_add_u32 {sr}, s{S_RBASE}, {j*16*32768 + i*4096}", [f"s{S_RBASE}"], [sr])],
                    tag(bload_f("a", A_PIECE + 32 * j + 4 * i, 4, V_RLD, S_WS, sr, 0, "sc1"), f"rl{j}")))
    return out
def red_mfmas(j):
    d = V_RD + 4 * (j & 1)
    return [mfma("v", d, "a", A_SEL2, "a", A_PIECE + 32 * j + 4 * i, None if i == 0 else "v", None if i == 0 else d) for i in range(8)]
def red_out(j):
    d = V_RD + 4 * (j & 1)
    return [valu(f"v_cvt_pk_bf16_f32 v{d}, v{d}, v{d+1}", [f"v{d}", f"v{d+1}"], [f"v{d}"]),
            valu(f"v_cvt_pk_bf16_f32 v{d+1}, v{d+2}, v{d+3}", [f"v{d+2}", f"v{d+3}"], [f"v{d+1}"])], tag(bstore(d, 2, V_OUT, S_OUT, "0", j * 128), f"out{j}")

A_RING = 64; A_SEL4 = 96
V_RLD4, V_OUT4, V_FLA, V_FLAG1 = 48, 49, 50, 51
def ring_setup():
    o = []; a = o.append
    L = f"v{V_LANE}"
    a(salu(f"s_mul_i32 s{S_T0}, s{S_G}, {OPT.ring * 262144}"))
    a(salu(f"s_lshl_b32 s{S_T1}, s{S_W}, 16")); a(salu(f"s_add_u32 s{S_RST}, s{S_T0}, s{S_T1}"))
    a(salu(f"s_lshl_b32 s{S_T1}, s{S_H}, 10")); a(salu(f"s_add_u32 s{S_RST}, s{S_RST}, s{S_T1}"))
    a(salu(f"s_lshl_b32 s{S_T1}, s{S_H}, 14")); a(salu(f"s_add_u32 s{S_RLD}, s{S_T0}, s{S_T1}"))
    a(salu(f"s_mul_i32 s{S_T0}, s{S_G}, {14*64}"))
    a(salu(f"s_lshl_b32 s{S_T1}, s{S_W}, 4"))
    a(salu(f"s_add_u32 s{S_FPW}, s{S_T0}, s{S_T1}")); a(salu(f"s_add_u32 s{S_FPW}, s{S_FPW}, s{S_H}"))
    a(salu(f"s_add_u32 s{S_FCR}, s{S_T0}, s{S_T1}")); a(salu(f"s_add_u32 s{S_FCR}, s{S_FCR}, {CONS_OFF}"))
    a(salu(f"s_lshr_b32 s{S_T1}, s{S_H}, 2")); a(salu(f"s_lshl_b32 s{S_T1}, s{S_T1}, 4"))
    a(salu(f"s_add_u32 s{S_FPR}, s{S_T0}, s{S_T1}"))
    a(salu(f"s_lshl_b32 s{S_T1}, s{S_H}, 2")); a(salu(f"s_add_u32 s{S_FCW}, s{S_T0}, s{S_T1}"))
    a(salu(f"s_add_u32 s{S_FCW}, s{S_FCW}, s{S_W}")); a(salu(f"s_add_u32 s{S_FCW}, s{S_FCW}, {CONS_OFF}"))
    a(valu(f"v_and_b32 v{V_FLA}, 3, {L}", [L], [f"v{V_FLA}"])); a(valu(f"v_lshlrev_b32 v{V_FLA}, 2, v{V_FLA}", [f"v{V_FLA}"], [f"v{V_FLA}"]))
    a(valu(f"v_mov_b32 v{V_FLAG1}, 1", [], [f"v{V_FLAG1}"]))
    a(valu(f"v_and_b32 v1, 15, {L}", [L], ["v1"])); a(valu(f"v_lshrrev_b32 v2, 4, {L}", [L], ["v2"]))
    a(valu(f"v_lshlrev_b32 v{V_RLD4}, 10, v2", ["v2"], [f"v{V_RLD4}"])); a(valu(f"v_lshl_add_u32 v{V_RLD4}, v1, 4, v{V_RLD4}", ["v1", f"v{V_RLD4}"], [f"v{V_RLD4}"]))
    a(salu(f"s_lshl_b32 s{S_T1}, s{S_W}, 8")); a(valu(f"v_add_u32 v{V_RLD4}, s{S_T1}, v{V_RLD4}", [f"v{V_RLD4}"], [f"v{V_RLD4}"]))
    a(valu("v_and_b32 v4, 1, v1", ["v1"], ["v4"])); a(valu("v_lshlrev_b32 v4, 4, v4", ["v4"], ["v4"]))
    a(valu("v_mov_b32 v5, 0x3f80", [], ["v5"])); a(valu("v_lshlrev_b32 v5, v4, v5", ["v4", "v5"], ["v5"]))
    a(valu("v_lshrrev_b32 v4, 1, v1", ["v1"], ["v4"]))
    for r in range(4):
        a(valu(f"v_cmp_eq_u32 vcc, {r}, v4", ["v4"], ["vcc"])); a(nop(1))
        a(valu("v_cndmask_b32 v52, 0, v5, vcc", ["v5", "vcc"], ["v52"]))
        a(valu(f"v_accvgpr_write_b32 a{A_SEL4+r}, v52", ["v52"], [f"a{A_SEL4+r}"]))
    a(salu(f"s_lshl_b32 s{S_T0}, s{S_B}, 8")); a(salu(f"s_lshl_b32 s{S_T1}, s{S_H}, 4")); a(salu(f"s_add_u32 s{S_T0}, s{S_T0}, s{S_T1}"))
    a(valu(f"v_add_u32 v{V_OUT4}, s{S_T0}, v1", ["v1"], [f"v{V_OUT4}"])); a(valu(f"v_mul_u32_u24 v{V_OUT4}, 896, v{V_OUT4}", [f"v{V_OUT4}"], [f"v{V_OUT4}"]))
    a(salu(f"s_mul_i32 s{S_T0}, s{S_BR}, 448")); a(salu(f"s_lshl_b32 s{S_T1}, s{S_W}, 2")); a(salu(f"s_add_u32 s{S_T0}, s{S_T0}, s{S_T1}"))
    a(valu(f"v_add_u32 v{V_OUT4}, s{S_T0}, v{V_OUT4}", [f"v{V_OUT4}"], [f"v{V_OUT4}"]))
    a(valu(f"v_lshl_add_u32 v{V_OUT4}, v2, 4, v{V_OUT4}", ["v2", f"v{V_OUT4}"], [f"v{V_OUT4}"]))
    a(valu(f"v_lshlrev_b32 v{V_OUT4}, 1, v{V_OUT4}", [f"v{V_OUT4}"], [f"v{V_OUT4}"]))
    a(valu("v_cmp_gt_u32 vcc, 2, v2", ["v2"], ["vcc"])); a(salu(f"s_mov_b32 s{S_T0}, 0x7ff00000")); a(valu(f"v_mov_b32 v4, s{S_T0}", [], ["v4"]))
    a(valu(f"v_cndmask_b32 v{V_OUT4}, v4, v{V_OUT4}, vcc", ["v4", f"v{V_OUT4}", "vcc"], [f"v{V_OUT4}"]))
    return o

def flag_store(base, u, tg):
    return [salu(f"s_add_u32 s55, s{base}, {u*64}", [f"s{base}"], ["s55"])], \
           tag(I(f"buffer_store_byte v{V_FLAG1}, v{V_ZERO}, s[{S_FL}:{S_FL+3}], s55 offen", "vst", [f"v{V_FLAG1}", f"v{V_ZERO}", "s55"], data=[]), tg)
def flag_poll(base, u, dst, tg):
    return [salu(f"s_add_u32 s54, s{base}, {u*64}", [f"s{base}"], ["s54"])], tag(bload(dst, 1, V_FLA, S_FL, "s54", 0, "sc1"), tg)
def flag_check(base, u, dst, tg, name):
    OOL.extend([label(f"L_{name}_spin"), salu(f"s_add_u32 s54, s{base}, {u*64}"), salu(f"s_mov_b32 s{S_SPIN}, {SPIN_MAX}"),
                label(f"L_{name}_again"),
                salu(f"s_sub_u32 s{S_SPIN}, s{S_SPIN}, 1"), salu(f"s_cmp_eq_u32 s{S_SPIN}, 0"), raw(f"s_cbranch_scc1 L_{name}_ok", "branch"),
                raw(f"buffer_load_dword v{dst}, v{V_FLA}, s[{S_FL}:{S_FL+3}], s54 offen sc1", "salu"), wait_vm(0),
                valu(f"v_cmp_ne_u32 vcc, 0x01010101, v{dst}", [], []), nop(0),
                raw(f"s_cbranch_vccnz L_{name}_again", "branch"), raw(f"s_branch L_{name}_ok", "branch")])
    dd = (lambda n: stamp("d_" + n)) if name in (f"prod{OPT.p3detail}", f"cons{OPT.p3detail}") else (lambda n: [])
    return dd(name[:4] + "A") + [wait_tag(tg)] + dd(name[:4] + "B") + [valu(f"v_cmp_ne_u32 vcc, 0x01010101, v{dst}", [f"v{dst}"], ["vcc"]), nop(0),
            raw(f"s_cbranch_vccnz L_{name}_spin", "branch"), label(f"L_{name}_ok")] + dd(name[:4] + "C")
V_PP, V_PC = 53, 54
def ring_loads(u):
    out = []
    for i in range(4):
        sr = "s52" if i % 2 == 0 else "s53"
        out.append(([salu(f"s_add_u32 {sr}, s{S_RLD}, {(u % OPT.ring)*262144 + i*4096}", [f"s{S_RLD}"], [sr])],
                    tag(bload_f("a", A_RING + 16 * (u & 1) + 4 * i, 4, V_RLD4, S_RG, sr, 0, "sc1"), f"rl{u}")))
    return out
def ring_mfmas(u):
    d = V_RD + 4 * (u & 1)
    return [mfma("v", d, "a", A_SEL4, "a", A_RING + 16 * (u & 1) + 4 * i, None if i == 0 else "v", None if i == 0 else d) for i in range(4)]
def ring_out(u):
    d = V_RD + 4 * (u & 1)
    return [valu(f"v_cvt_pk_bf16_f32 v{d}, v{d}, v{d+1}", [f"v{d}", f"v{d+1}"], [f"v{d}"]),
            valu(f"v_cvt_pk_bf16_f32 v{d+1}, v{d+2}, v{d+3}", [f"v{d+2}", f"v{d+3}"], [f"v{d+1}"])], tag(bstore(d, 2, V_OUT4, S_OUT, "0", u * 64, OPT.out_flags), f"out{u}")

def p3_stream(local, carried):
    o = []; a = o.append
    NS, D = OPT.ring, OPT.prod_delay
    Q = lambda u: 8 * u + 7
    ins = {}
    if local:
        for u in range(14):
            m = 8 * (Q(u) + 22 + D) - 1
            if m < 895: ins[m] = u
    ms = []; pos = {}; redpos = {}
    for m in range(896):
        j, i = m >> 7, m & 127
        nb, qb, s_ = i >> 5, (i >> 3) & 3, i & 7
        acc = V_ACC3 + 4 * ((nb * 4 + qb) % 8)
        pos[m] = len(ms)
        ms.append(mfma("v", acc, "a", A_FR3 + 4 * (8 * (nb & 1) + s_), "v", V_Q + (qb * 8 + s_) * 4,
                       None if s_ == 0 else "v", None if s_ == 0 else acc))
        if m in ins:
            u = ins[m]; redpos[u] = len(ms); ms += ring_mfmas(u)
    g = Gaps(ms); N = g.n
    P = lambda j, i: pos[128 * j + i]
    def G(period, off):
        m = 8 * period + off
        return pos[m] if 0 <= m < 896 else None
    for j in range(7):
        for nb in range(4):
            jn, nbn = (j, nb + 1) if nb < 3 else (j + 1, 0)
            if jn > 6: continue
            for s_ in range(8):
                for jj in range(2): g.put_mem(P(j, 32 * nb + 4 * s_ + 2 * jj), wo_read(nbn, s_, jj))
    cons = []
    for j in range(7):
        for nb in range(4):
            for s_ in (0, 2, 4, 6): cons.append((P(j, 32 * nb + s_), R("a", A_FR3 + 4 * (8 * (nb & 1) + s_), 8)))
    cons.sort()
    lead = add_lgkm_waits(g, cons, carried)
    def put_vm(k, sc, d):
        assert g.mem[k] is None and not g.post[k], (k, d.text)
        for n, x in enumerate(reversed(sc)):
            kk = k - 1 - n
            assert not (g.mem[kk] is not None and g.mem[kk].kind == "dma" and "m0" in x.wr)
            g.pre[kk].append(x)
        g.mem[k] = d
    def put_seq(k, seq):
        assert g.mem[k] is None and not g.post[k], k
        g.post[k] = seq
    for j in range(6):
        k = P(j, 91)
        g.pre[k] += [wait_tag(f"wo{j+1}"), barrier()]
        sh = va_shift(WOBUF[j + 1] - WOBUF[j])
        for n, at in ((0, 85), (1, 61), (2, 69), (3, 101)):
            kk = P(j, at); g.vec[kk].append(sh[n])
    for j in (2, 3):
        items = wo_dma(j + 3)
        for n, (sc, d) in enumerate(items):
            u0 = 2 * j + (n >> 2)
            per, off = [(Q(u0) - 4, 7), (Q(u0) - 3, 3), (Q(u0) - 3, 7), (Q(u0) - 2, 7)][n & 3]
            put_vm(G(per, off), sc, d)
    stores = {}; sgap = {}
    for u in range(14):
        j, nb = u >> 1, 2 * (u & 1) + 1
        for qb in range(4):
            sreg = S_T2 + (qb & 1)
            if local:
                st = ([salu(f"s_add_u32 s{sreg}, s{S_RST}, {(u % NS)*262144 + qb*16384}", [f"s{S_RST}"], [f"s{sreg}"])],
                      tag(bstore(V_STG + 4 * qb, 4, V_STO, S_RG, f"s{sreg}", 0, OPT.last_st if u >= 14 - NS else ""), f"st{u}"))
            else:
                so = j * 16 * 16 * 2048 + qb * 16 * 2048 + (nb >> 1) * 1024
                st = ([salu(f"s_add_u32 s{sreg}, s{S_PART}, {so}", [f"s{S_PART}"], [f"s{sreg}"])],
                      tag(bstore(V_STG + 4 * qb, 4, V_STO, S_WS, f"s{sreg}", 0), f"st{u}"))
            stores[(u, qb)] = st
            k = G(Q(u) + qb, 3)
            sgap[(u, qb)] = k
            if k is not None: put_vm(k, *st)
    done = {}; out_left = []
    if local:
        for u in range(14):
            dd = (lambda n: stamp("d_" + n)) if u == OPT.p3detail else (lambda n: [])
            if u >= NS:
                kp, kc = G(Q(u) - 4, 3), G(Q(u) - 1, 3)
                put_vm(kp, *flag_poll(S_FCR, u - NS, V_PC, f"pc{u}"))
                put_seq(kc, flag_check(S_FCR, u - NS, V_PC, f"pc{u}", f"cons{u}"))
            done[u] = "sig"
            k = G(Q(u) + 7, 5)
            if k is None or sgap[(u, 3)] is None: continue
            sc, d = flag_store(S_FPW, u, f"sig{u}")
            g.pre[k - 1] += dd("sigA") + [wait_tag(f"st{u}")] + dd("sigB"); put_vm(k, sc, d)
            done[u] = "poll"
            k = G(Q(u) + 12 + D, 5)
            if k is None: continue
            put_vm(k, *flag_poll(S_FPR, u, V_PP, f"pp{u}"))
            done[u] = "check"
            k = G(Q(u) + 15 + D, 7)
            if k is None: continue
            put_seq(k, flag_check(S_FPR, u, V_PP, f"pp{u}", f"prod{u}"))
            done[u] = "loads"
            if u not in redpos: continue
            for n, (sc, d) in enumerate(ring_loads(u)): put_vm(G(Q(u) + 16 + D + n, 7), sc, d)
            g.pre[redpos[u] - 1] += dd("rlA") + [wait_tag(f"rl{u}")] + dd("rlB")
            if u <= 13 - NS: put_vm(G(Q(u) + 22 + D, 3), *flag_store(S_FCW, u, f"csig{u}"))
            done[u] = "out"
            cv, st = ring_out(u)
            if u + 1 in redpos:
                g.vec[redpos[u + 1]] += cv
                put_vm(G(Q(u) + 30 + D, 5), [], st)
                done[u] = "all"
    tail_main = []
    for p in range(112):
        j, nb, qb = p >> 4, (p >> 2) & 3, p & 3
        ops = part_ops(nb, qb)
        slots = [G(p + 2, 0), G(p + 2, 1), G(p + 2, 1), G(p + 2, 2), G(p + 2, 4), G(p + 2, 6)]
        if slots[0] is None:
            tail_main += ops
        else:
            for x, k in zip(ops, slots): g.vec[k].append(x)
        if nb & 1:
            u = 2 * j + (nb >> 1)
            if sgap[(u, qb)] is None: tail_main += stores[(u, qb)][0] + [nop(1), stores[(u, qb)][1]]
    if lead is not None: a(lead)
    em = g.emit()
    if "allst" in OPT.p3_drop: em = [x for x in em if x.kind != "vst"]
    if "pst" in OPT.p3_drop: em = [x for x in em if not (x.kind == "vst" and x.meta.get("tag", "").startswith("st"))]
    if "nospin" in OPT.p3_drop: em = [x for x in em if not (x.kind == "branch" and "vccnz" in x.text)]
    if "novm" in OPT.p3_drop: em = [x for x in em if not (x.kind == "wait" and "vmtags" in x.meta and not x.meta["vmtags"][0].startswith("wo"))]
    if "nold" in OPT.p3_drop: em = [x for x in em if not (x.kind == "vld" and x.meta.get("tag", "").startswith("rl"))]
    o += stamp("p3_stream_start") if (local or not OPT.fused) else []
    o += em
    if local or not OPT.fused: o += stamp("p3_mfma_end")
    a(nop(7)); o += exposed(tail_main)
    if local:
        todo = [u for u in range(14) if done[u] != "all"]
        for u in todo:
            if done[u] == "sig":
                sc, d = flag_store(S_FPW, u, f"sig{u}"); o += [wait_tag(f"st{u}")] + sc + [d]
        o += stamp("x_last_signal")
        if OPT.early_wb:
            o += [salu(f"s_or_b32 s{S_T0}, s{S_H}, s{S_W}"), salu(f"s_cmp_lg_u32 s{S_T0}, {0 if OPT.early_wb == 1 else 0}"),
                  raw("s_cbranch_scc1 L_no_wb", "branch"), raw("buffer_wbl2 sc1", "salu"), label("L_no_wb")]
        for u in todo:
            if done[u] != "out":
                if done[u] in ("sig", "poll"):
                    sc, d = flag_poll(S_FPR, u, V_PP, f"pp{u}"); o += sc + [d]
                if done[u] in ("sig", "poll", "check"): o += flag_check(S_FPR, u, V_PP, f"pp{u}", f"prod{u}")
                for sc, d in ring_loads(u): o += sc + [d]
                o.append(wait_tag(f"rl{u}"))
                o += ring_mfmas(u); a(nop(7))
            cv, st = ring_out(u); o += cv + [st]
    return o

def phase3():
    o = []; a = o.append
    a(label("L_p3_entry"))
    a(wait_tag("wt", "wo0")); a(raw("s_waitcnt lgkmcnt(0)", "wait", lgkm=0)); a(barrier())
    a(valu(f"v_mov_b32 v1, {L_VOTE}", [], ["v1"]))
    a(ds_read128("v", V_SP, 1, 0)); a(wait_lgkm(0))
    a(valu(f"v_or3_b32 v{V_SP}, v{V_SP}, v{V_SP+1}, v{V_SP+2}", R("v", V_SP, 3), [f"v{V_SP}"]))
    a(valu(f"v_or_b32 v{V_SP}, v{V_SP}, v{V_SP+3}", [f"v{V_SP}", f"v{V_SP+3}"], [f"v{V_SP}"])); a(nop(0))
    a(valu(f"v_readfirstlane_b32 s50, v{V_SP}", [f"v{V_SP}"], ["s50"])); a(nop(3))
    a(salu(f"s_cmp_eq_u32 s{S_SAFE}, 0")); a(salu("s_cselect_b32 s50, s50, 0"))
    a(salu("s_cmp_lg_u32 s50, 0")); a(raw("s_cbranch_scc1 L_restart", "branch"))
    OOL.extend([label("L_restart"), wait_vm(0), raw("s_waitcnt lgkmcnt(0)", "wait", lgkm=0), barrier(),
                salu(f"s_mov_b32 s{S_SAFE}, 1"), raw("s_branch L_again", "branch")])
    o += p3_setup()
    if OPT.fused: o += ring_setup()
    o += va_shift(WOBUF[0] - L_V)
    if OPT.fused: o += mode_check()
    carried = []
    for s_ in range(8):
        for jj in range(2):
            r = wo_read(0, s_, jj); a(r); carried.append(r.wr)
            if len(carried) == 14: a(wait_lgkm(6)); carried = carried[-6:]
    a(barrier())
    for sc, d in wo_dma(4): o += sc + [nop(0), d]
    if not OPT.fused:
        return o, p3_stream(False, carried) + stamp("p3_end") + ([wait_vm(0)] if OPT.stamps else []) + stamp("rt_end"), []
    o += [salu(f"s_cmp_eq_u32 s{S_LOCM}, 0"), raw("s_cbranch_scc1 L_p3_far", "branch")]
    loc = p3_stream(True, carried)
    loc += stamp("p3_end") + ([wait_vm(0)] if OPT.stamps else []) + stamp("rt_end")
    far = [label("L_p3_far")] + p3_stream(False, carried) + handoff_far()
    for j in range(7):
        for sc, d in red_loads(j): far += sc + [d]
    for j in range(7):
        far.append(wait_tag(f"rl{j}"))
        far += red_mfmas(j)
        if j > 0:
            cv, stt = red_out(j - 1); far += cv + [stt]
    far.append(nop(7))
    cv, stt = red_out(6); far += cv + [stt]
    far += [wait_vm(0), raw("s_endpgm", "branch")]
    return o, loc, far

def dump_regs(base, n, agpr=False):
    o = [wait_vm(0), raw("s_waitcnt lgkmcnt(0)", "wait", lgkm=0), nop(7), nop(7),
         salu(f"s_lshl_b32 s{S_T0}, s2, 2"), salu(f"s_add_u32 s{S_T0}, s{S_T0}, s{S_W}"),
         salu(f"s_mul_i32 s{S_T0}, s{S_T0}, {n*256}"), valu(f"v_lshlrev_b32 v1, 2, v{V_LANE}", [f"v{V_LANE}"], ["v1"])]
    for r in range(n):
        if agpr:
            o.append(valu(f"v_accvgpr_read_b32 v2, a{base+r}", [f"a{base+r}"], ["v2"])); o.append(bstore(2, 1, 1, S_WS, f"s{S_T0}", 0))
        else:
            o.append(bstore(base + r, 1, 1, S_WS, f"s{S_T0}", 0))
        o.append(salu(f"s_add_u32 s{S_T0}, s{S_T0}, 256"))
        if r % 32 == 31 or agpr: o.append(wait_vm(0))
    return o

def stamp_out():
    if not OPT.stamps: return []
    if OPT.dma_stamps: STAMPS[:] = [f"dma{i}" for i in range(10)] + ["loopcyc"]
    if OPT.bar_stamps: STAMPS.extend(["acc_vm", "acc_bar"])
    n = len(STAMPS)
    o = [raw("s_waitcnt lgkmcnt(0)", "wait", lgkm=0), salu(f"s_cmp_lg_u32 s{S_W}, 0"), raw("s_cbranch_scc1 L_nostamp", "branch")]
    if OPT.stamp_dbg >= 0:
        o += [salu(f"s_cmp_lg_u32 s2, {OPT.stamp_dbg}"), raw("s_cbranch_scc1 L_nostamp", "branch")]
        o += [salu("s_load_dwordx2 s[36:37], s[0:1], 88"), raw("s_waitcnt lgkmcnt(0)", "wait", lgkm=0)]
        o += [salu(f"s_mov_b32 s{S_WS}, s36"), salu(f"s_mov_b32 s{S_WS+1}, s37"), salu(f"s_mov_b32 s{S_WS+2}, 256"), salu(f"s_mov_b32 s{S_T0}, 0")]
    else:
        o.append(salu(f"s_mul_i32 s{S_T0}, s2, 64")); o.append(salu(f"s_add_u32 s{S_T0}, s{S_T0}, {STAMP_OFF}"))
        o.append(salu(f"s_mov_b32 s{S_WS+2}, {STAMP_OFF + 256*64}"))
    o.append(valu("v_mov_b32 v1, 0", [], ["v1"]))
    for k in range(n):
        if OPT.stamp_dbg >= 0:
            ref = 0 if STAMPS[k].startswith("rt") else 1
            o.append(salu(f"s_sub_u32 s{S_T1}, s{S_STAMP+2*k}, s{S_STAMP+2*ref}"))
            o.append(valu(f"v_mov_b32 v2, s{S_T1}", [], ["v2"]))
        elif STAMPS[k] == "loopcyc": o.append(valu("v_mov_b32 v2, s100", [], ["v2"]))
        elif STAMPS[k] == "acc_vm": o.append(valu("v_mov_b32 v2, s92", [], ["v2"]))
        elif STAMPS[k] == "acc_bar": o.append(valu("v_mov_b32 v2, s93", [], ["v2"]))
        else:
            o.append(valu(f"v_mov_b32 v2, s{S_STAMP+2*k}", [], ["v2"]))
        o.append(bstore(2, 1, 1, S_WS, f"s{S_T0}", 4 * k)); o.append(wait_vm(0))
    o.append(label("L_nostamp"))
    return o

def finish(): return [wait_vm(0), label("L_end"), raw("s_endpgm", "branch")]

def build(debug=None):
    _stamp_n[0] = 0; STAMPS.clear(); OOL.clear()
    pre = setup() + phase1()
    if debug == "p1":
        pre += stamp("rt_end")
        resolve_vm(pre, [])
        return pre + stamp_out() + finish()
    if debug == "q":
        resolve_vm(pre, []); check(pre, "pre")
        return pre + dump_regs(V_Q, 128) + finish()
    if OPT.dma_mode == "cluster":
        OPT.dma_gaps = ([21, 23, 25, 27], [101, 103, 105, 107]); OPT.nv_prev = 0
    elif OPT.dma_mode == "cluster2":
        OPT.dma_gaps = ([41, 43, 47, 49], [101, 103, 105, 107]); OPT.nv_prev = 0
    NCUR = len(OPT.dma_gaps[1])
    pre += [salu(f"s_cmp_lg_u32 s{S_SAFE}, 0"), raw("s_cbranch_scc1 L_safe_attn", "branch")]
    p, carried = pre_iter(); pre += p
    def batch(t):
        return dma_tile("V", vslot(t + 3), f"s{S_VOFF}", f"V{t+3}") + dma_tile("K", kslot(t + 5), f"s{S_KOFF}", f"K{t+5}")
    pre += wo_setup()
    if OPT.fused: pre += grp_setup()
    def ex0(g, kb):
        put_wo(g, 0, 3, kb, step=8)
    s0, carried = attn_iter(0, carried, wait_tag("V1", "K2"), [], batch(0)[:NCUR], first=True, adv=False, extra=ex0)
    pre += s0
    pre.append(salu(f"s_mov_b32 s{S_LOOP}, 7"))
    if OPT.bar_stamps: pre += [salu("s_mov_b32 s92, 0"), salu("s_mov_b32 s93, 0")]
    pre += stamp("loop_start") + (stamp("rt_ls") if (OPT.bar_stamps or OPT.trip_stamps) else [])
    loop = [label("L_attn")]
    for u in range(4):
        t = 1 + u
        s, carried = attn_iter(t, carried, wait_vm(12), batch(t - 1)[NCUR:], batch(t)[:NCUR], loopctl=(u == 3), loop_body=True)
        if OPT.dma_stamps and u == 1:
            s2 = []; n = 0
            for x in s:
                if x.kind == "dma" and n < 5:
                    s2 += [raw(f"s_memtime s[{80+4*n}:{81+4*n}]", "salu"), x, raw(f"s_memtime s[{82+4*n}:{83+4*n}]", "salu")]; n += 1
                else: s2.append(x)
            s = s2
        loop += s
    if OPT.trip_stamps:
        loop += [raw("s_memtime s[98:99]", "salu"), raw("s_memrealtime s[100:101]", "salu"), raw("s_waitcnt lgkmcnt(0)", "wait", lgkm=0),
                 salu(f"s_mov_b32 s99, m0"), salu(f"s_mov_b32 m0, s{S_LOOP}"), nop(0), valu(f"v_writelane_b32 v1, s98, m0", ["s98"], ["v1"]),
                 salu(f"s_add_u32 m0, s{S_LOOP}, 8"), nop(0), valu(f"v_writelane_b32 v1, s100, m0", ["s100"], ["v1"]),
                 salu("s_mov_b32 m0, s99"), salu(f"s_cmp_lg_u32 s{S_LOOP}, 0")]
    if OPT.loop_nodma: loop = [x for x in loop if x.kind != "dma"]
    if OPT.loop_nods: loop = [x for x in loop if x.kind != "ds" and not (x.kind == "wait" and "lgkm" in x.meta and x.meta["lgkm"] > 0)]
    if OPT.loop_nomfma: loop = [(nop(1) if x.kind == "mfma" else x) for x in loop]
    if OPT.loop_novalu: loop = [x for x in loop if x.kind not in ("valu", "trans")]
    if OPT.loop_dma_every > 1:
        cnt = [0]
        def keep(x):
            if x.kind != "dma": return True
            cnt[0] += 1
            return cnt[0] % OPT.loop_dma_every == 0
        loop = [x for x in loop if keep(x)]
    loop.append(raw("s_cbranch_scc1 L_attn", "branch"))
    post = stamp("loop_end") + (stamp("rt_le") if OPT.bar_stamps else [])
    if OPT.trip_stamps:
        post += [valu(f"v_lshlrev_b32 v2, 2, v{V_LANE}", [], ["v2"]), salu(f"s_mul_i32 s{S_T1}, s2, 64"),
                 salu(f"s_add_u32 s{S_T1}, s{S_T1}, {STAMP_OFF + 256*64}"), salu(f"s_mov_b32 s{S_WS+2}, {STAMP_OFF + 2*256*64}"),
                 valu("v_cmp_gt_u32 vcc, 16, v0", ["v0"], ["vcc"]), salu(f"s_cmp_eq_u32 s{S_W}, 0"), raw("s_cselect_b64 s[50:51], vcc, 0", "salu"),
                 raw("s_mov_b64 s[54:55], exec", "salu"), raw("s_mov_b64 exec, s[50:51]", "salu"), raw("s_cbranch_execz L_notrip", "branch"),
                 raw(f"buffer_store_dword v1, v2, s[{S_WS}:{S_WS+3}], s{S_T1} offen", "salu"), wait_vm(0), label("L_notrip"), raw("s_mov_b64 exec, s[54:55]", "salu"), wait_vm(0)]
    def ex29(g, kb):
        if OPT.fused: place_vmem(g, 40, [], mode_load(), kb)
        gp = 50
        for j in OPT.wo_touch: gp = place_vmem(g, gp, [], wo_touch(j), kb) + 12
    post += wo_touch_setup()
    s, carried = attn_iter(29, carried, wait_tag("V30", "K32"), batch(28)[NCUR:4], [], adv=False,
                           extra=ex29)
    post += s
    def ex30(g, kb):
        put_wo(g, 1, 3, kb, step=8)
    s, carried = attn_iter(30, carried, wait_tag("V31"), [], [], adv=False, extra=ex30)
    post += s
    post += last_iter(carried)
    post += stamp("attn_end")
    if debug == "o":
        tailq = dump_regs(V_Q, 128)
    elif debug == "l":
        tailq = dump_regs(V_L, 4)
    else:
        common, loc, far = phase3()
        tailq = common
    post += tailq
    q = resolve_vm(pre, [])
    qexit = ["V30"] * 4 + ["K32"] * 4 + ["V31"] * NCUR
    qb_ = resolve_vm(post, qexit)
    if debug is None:
        resolve_vm(loc, qb_); resolve_vm(far, qb_)
        if far and not OPT.p3_drop: check(loop[1:] + post + far[1:], "loop+post+far", init_lgkm=[x.wr for x in pre if x.kind == "ds"][-8:], init_vm=[[]] * (8 + NCUR))
        post = post + loc
        OOL.extend(far)
    if not (OPT.p1_nowait or OPT.p1_noread or OPT.p1_drop or OPT.loop_nodma or OPT.loop_dma_every > 1 or OPT.loop_nods or OPT.loop_nomfma or OPT.loop_novalu): check(pre + loop[1:] + loop[1:], "pre+loop")
    if not (OPT.p3_drop or OPT.loop_nodma or OPT.loop_dma_every > 1 or OPT.loop_nods or OPT.loop_nomfma or OPT.loop_novalu): check(loop[1:] + post, "loop+post", init_lgkm=[x.wr for x in pre if x.kind == "ds"][-8:], init_vm=[[]] * (8 + NCUR))
    OOL.extend(safe_attn())
    return pre + loop + post + stamp_out() + finish() + OOL

def reduce_kernel():
    o = []; a = o.append
    a(salu("s_cmp_ge_u32 s2, 256")); a(raw("s_cbranch_scc1 R_end", "branch"))
    a(salu("s_load_dwordx2 s[4:5], s[0:1], 80")); a(salu("s_load_dwordx2 s[6:7], s[0:1], 96"))
    a(valu("v_lshrrev_b32 v1, 6, v0", ["v0"], ["v1"])); a(valu("v_and_b32 v0, 63, v0", ["v0"], ["v0"]))
    a(valu("v_readfirstlane_b32 s32, v1", ["v1"], ["s32"]))
    a(salu("s_lshr_b32 s33, s2, 4")); a(salu("s_and_b32 s34, s2, 15"))
    a(salu("s_lshr_b32 s35, s33, 3")); a(salu("s_and_b32 s36, s33, 7"))
    a(salu("s_lshr_b32 s37, s32, 1")); a(salu("s_and_b32 s38, s32, 1"))
    a(valu("v_lshrrev_b32 v2, 5, v0", ["v0"], ["v2"])); a(valu("v_lshlrev_b32 v2, 11, v2", ["v2"], ["v2"]))
    a(valu("v_and_b32 v3, 31, v0", ["v0"], ["v3"])); a(valu("v_lshl_add_u32 v2, v3, 4, v2", ["v3", "v2"], ["v2"]))
    a(salu("s_lshl_b32 s39, s37, 10")); a(salu("s_lshl_b32 s40, s38, 9")); a(salu("s_add_u32 s39, s39, s40"))
    a(valu("v_add_u32 v2, s39, v2", ["v2"], ["v2"]))
    a(valu("v_and_b32 v8, 15, v0", ["v0"], ["v8"])); a(valu("v_lshrrev_b32 v9, 4, v0", ["v0"], ["v9"]))
    a(valu("v_lshrrev_b32 v10, 3, v8", ["v8"], ["v10"])); a(valu("v_and_b32 v11, 1, v9", ["v9"], ["v11"]))
    a(valu("v_and_b32 v12, 1, v8", ["v8"], ["v12"])); a(valu("v_lshlrev_b32 v12, 4, v12", ["v12"], ["v12"]))
    a(valu("v_mov_b32 v13, 0x3f80", [], ["v13"])); a(valu("v_lshlrev_b32 v13, v12, v13", ["v12", "v13"], ["v13"]))
    a(valu("v_cmp_eq_u32 vcc, v10, v11", ["v10", "v11"], ["vcc"])); a(nop(1))
    a(valu("v_cndmask_b32 v13, 0, v13, vcc", ["v13", "vcc"], ["v13"]))
    a(valu("v_bfe_u32 v14, v8, 1, 2", ["v8"], ["v14"]))
    for r in range(4):
        a(valu(f"v_cmp_eq_u32 vcc, {r}, v14", ["v14"], ["vcc"])); a(nop(1))
        a(valu(f"v_cndmask_b32 v{4+r}, 0, v13, vcc", ["v13", "vcc"], [f"v{4+r}"]))
    a(salu("s_lshl_b32 s41, s36, 8")); a(salu("s_lshl_b32 s42, s34, 4")); a(salu("s_add_u32 s41, s41, s42"))
    a(valu("v_add_u32 v3, s41, v8", ["v8"], ["v3"])); a(valu("v_mul_u32_u24 v3, 896, v3", ["v3"], ["v3"]))
    a(salu("s_mul_i32 s42, s35, 448")); a(salu("s_lshl_b32 s43, s37, 5")); a(salu("s_add_u32 s42, s42, s43"))
    a(salu("s_lshl_b32 s43, s38, 3")); a(salu("s_add_u32 s42, s42, s43"))
    a(valu("v_add_u32 v3, s42, v3", ["v3"], ["v3"]))
    a(valu("v_lshl_add_u32 v3, v11, 4, v3", ["v11", "v3"], ["v3"]))
    a(valu("v_lshrrev_b32 v10, 1, v9", ["v9"], ["v10"])); a(valu("v_lshl_add_u32 v3, v10, 2, v3", ["v10", "v3"], ["v3"]))
    a(valu("v_lshlrev_b32 v3, 1, v3", ["v3"], ["v3"]))
    a(raw("s_waitcnt lgkmcnt(0)", "wait", lgkm=0))
    for base, lo, size in ((8, 6, 16 * 7 * 16 * 16 * 2048), (12, 4, 8 * 256 * 896 * 2)):
        a(salu(f"s_mov_b32 s{base}, s{lo}")); a(salu(f"s_mov_b32 s{base+1}, s{lo+1}"))
        a(salu(f"s_mov_b32 s{base+2}, {size}")); a(salu(f"s_mov_b32 s{base+3}, 0x20000"))
    a(salu(f"s_mul_i32 s44, s33, {7*16*32768}")); a(salu("s_lshl_b32 s45, s34, 15")); a(salu("s_add_u32 s44, s44, s45"))
    for j in range(7):
        for i in range(8):
            a(salu(f"s_add_u32 s46, s44, {j*16*32768 + i*4096}"))
            a(tag(bload(16 + (j * 8 + i) * 4, 4, 2, 8, "s46", 0), f"p{j}"))
    for j in range(7):
        a(wait_tag(f"p{j}"))
        d = 240 + 4 * (j & 1)
        for i in range(8):
            a(mfma("v", d, "v", 4, "v", 16 + (j * 8 + i) * 4, None if i == 0 else "v", None if i == 0 else d))
        a(nop(7))
        a(valu(f"v_cvt_pk_bf16_f32 v{d}, v{d}, v{d+1}", [f"v{d}", f"v{d+1}"], [f"v{d}"]))
        a(valu(f"v_cvt_pk_bf16_f32 v{d+1}, v{d+2}, v{d+3}", [f"v{d+2}", f"v{d+3}"], [f"v{d+1}"]))
        a(tag(bstore(d, 2, 3, 12, "0", j * 128), "o"))
    resolve_vm(o, []); check(o, "reduce")
    if OPT.stamps and OPT.stamp_fwd >= 0:
        o += [wait_vm(0), salu("s_cmp_lg_u32 s2, 0"), raw("s_cbranch_scc1 R_end", "branch"),
              salu("s_load_dwordx2 s[20:21], s[0:1], 88"), raw("s_waitcnt lgkmcnt(0)", "wait", lgkm=0),
              salu("s_mov_b32 s16, s20"), salu("s_mov_b32 s17, s21"), salu("s_mov_b32 s18, 64"), salu("s_mov_b32 s19, 0x20000"),
              salu(f"s_mov_b32 s10, {16*7*16*16*2048 + 256*64}"), salu(f"s_mov_b32 s46, {16*7*16*16*2048} + 64*{OPT.stamp_fwd}"),
              valu("v_lshlrev_b32 v2, 2, v0", ["v0"], ["v2"]), bload(3, 1, 2, 8, "s46", 0), wait_vm(0), bstore(3, 1, 2, 16, "0", 0)]
    o += [wait_vm(0), label("R_end"), raw("s_endpgm", "branch")]
    return o

KD = """.section .rodata,"a"
.p2align 6
.amdhsa_kernel {name}
  .amdhsa_next_free_vgpr {vgpr}
  .amdhsa_next_free_sgpr 102
  .amdhsa_accum_offset 256
  .amdhsa_group_segment_fixed_size 0
  .amdhsa_kernarg_size 104
  .amdhsa_user_sgpr_count 2
  .amdhsa_user_sgpr_kernarg_segment_ptr 1
  .amdhsa_system_sgpr_workgroup_id_x 1
.end_amdhsa_kernel
"""
def header_comments():
    ref = open("cdna_kernels/" + NAME + ".s.ref").read().splitlines()
    out = []
    for l in ref:
        if l.startswith("; Override launch") or not l.startswith(";"): break
        out.append(l)
    return out

def stream_kernel():
    t = """
  s_cmp_ge_u32 s2, 256
  s_cbranch_scc1 S_end
  s_load_dwordx2 s[4:5], s[0:1], 8
  s_load_dwordx2 s[6:7], s[0:1], 96
  s_load_dwordx2 s[8:9], s[0:1], 48
  v_lshrrev_b32 v2, 6, v0
  s_nop 0
  v_readfirstlane_b32 s24, v2
  v_and_b32 v1, 63, v0
  v_lshlrev_b32 v14, 4, v1
  s_nop 2
  s_lshl_b32 s25, s24, 12
  v_add_u32 v14, s25, v14
  s_waitcnt lgkmcnt(0)
  s_cmp_lt_u32 s2, 128
  s_cselect_b32 s36, s4, s8
  s_cselect_b32 s37, s5, s9
  s_mov_b32 s38, 0x4000000
  s_mov_b32 s39, 0x20000
  s_and_b32 s32, s2, 127
  s_lshl_b32 s32, s32, 19
  s_barrier
  s_memrealtime s[12:13]
  s_mov_b32 s20, 0
S_loop:
  s_mov_b32 m0, s25
  s_nop 0
  buffer_load_dwordx4 v14, s[36:39], s32 offen nt lds
  buffer_load_dwordx4 v14, s[36:39], s32 offen offset:1024 nt lds
  buffer_load_dwordx4 v14, s[36:39], s32 offen offset:2048 nt lds
  buffer_load_dwordx4 v14, s[36:39], s32 offen offset:3072 nt lds
  s_add_u32 s32, s32, 16384
  s_waitcnt vmcnt(8)
  s_barrier
  s_add_u32 s20, s20, 1
  s_cmp_lt_u32 s20, 32
  s_cbranch_scc1 S_loop
  s_waitcnt vmcnt(0)
  s_barrier
  s_memrealtime s[16:17]
  s_waitcnt lgkmcnt(0)
  s_sub_u32 s16, s16, s12
  s_mov_b32 s40, s6
  s_mov_b32 s41, s7
  s_mov_b32 s42, %d
  s_mov_b32 s43, 0x20000
  s_mul_i32 s33, s2, 64
  s_add_u32 s33, s33, %d
  v_mov_b32 v2, s16
  v_mov_b32 v1, 0
  buffer_store_dword v2, v1, s[40:43], s33 offen
  s_waitcnt vmcnt(0)
S_end:
  s_endpgm""" % (16*7*16*16*2048 + 256*64, 16*7*16*16*2048 + 60)
    return t

def assemble_file(debug=None):
    main = build(debug)
    red = reduce_kernel()
    k1 = NAME + "_kernel"; k2 = "reduce_heads_kernel"
    L = header_comments()
    if OPT.stream0: L.append(f"; @launch kernel=stream_test_kernel grid=(256,1,1) block=(256,1,1) lds={LDS_BYTES}")
    if OPT.fused and not OPT.stream0:
        L.append(f"; @launch grid=(256,1,1) block=(256,1,1) lds={LDS_BYTES}")
    else:
        L.append(f"; @launch kernel={k1} grid=(256,1,1) block=(256,1,1) lds={LDS_BYTES}")
        if debug is None and not OPT.fused: L.append(f"; @launch kernel={k2} grid=(256,1,1) block=(256,1,1) lds=0")
    L.append('.amdgcn_target "amdgcn-amd-amdhsa--gfx950"')
    L.append(".text")
    for nm, body in ((k1, main), (k2, red)) if not OPT.fused else ((k1, main),):
        L += [f".globl {nm}", ".p2align 8", f".type {nm},@function", f"{nm}:", text(body)]
    if OPT.stream0: L += [".globl stream_test_kernel", ".p2align 8", ".type stream_test_kernel,@function", "stream_test_kernel:", stream_kernel()]
    L.append(KD.format(name=k1, vgpr=512))
    if not OPT.fused: L.append(KD.format(name=k2, vgpr=256))
    if OPT.stream0: L.append(KD.format(name="stream_test_kernel", vgpr=512))
    return "\n".join(L) + "\n"

if __name__ == "__main__":
    dbg = sys.argv[2] if len(sys.argv) > 2 and sys.argv[2] != "none" else None
    for kv in sys.argv[3:]:
        k, v = kv.split("=")
        v = v.replace("+", " ")
        setattr(OPT, k, {"True": True, "False": False, "()": ()}.get(v, int(v) if v.lstrip("-").isdigit() else (eval(v) if v.startswith("(") else v)))
    open(sys.argv[1], "w").write(assemble_file(dbg))
    print("stamps:", STAMPS)
```

```python
import math, struct, sys
from core import *

NAME = "concat_heads__mha_block_cached__mha_block_cached__near_ridge"
def f32bits(x): return struct.unpack("<I", struct.pack("<f", x))[0]
CSC = math.log2(math.e) / 16.0

S_X, S_WQ, S_K, S_V, S_WO, S_WS, S_OUT = 4, 8, 12, 16, 20, 24, 28
S_W, S_W1K = 32, 33
S_QB = ["0", "s34", "s35", "s62"]
S_C = 63
S_KOFF, S_VOFF = 64, 65
S_LOOP = 66
S_T0, S_T1, S_T2, S_T3 = 67, 68, 69, 70
S_G, S_H, S_B, S_BR = 71, 72, 73, 74
S_WOFF = 76
S_PART = 77
S_WCUR, S_WSTEP, S_XSTEP = 78, 79, 75
S_FL, S_DBG = 36, 40
S_LOCM = 44
S_RBASE, S_SIG, S_POLL, S_XCC = 46, 47, 48, 49
S_RG = 56
S_SPIN = 62
S_SAFE = 3
S_ROT = 52
S_PFO = 53
S_RST, S_RLD, S_FPW, S_FPR, S_FCW, S_FCR = 60, 61, 75, 78, 79, 76
S_STAMP = 80
V_LANE = 0
V_KA = [4, 5]
V_VA = [6, 7, 8, 9]
V_DK, V_DV = 10, 11
V_L = 12
V_MC = 16
V_SP = 20
V_POOL = 32
V_S = 64
V_P = 96
V_Q = 128
V_XA = 20; V_DW = 21; V_WA = [[22, 23], [24, 25], [26, 27]]
V_CT = 28
V_ARR = 24
L_K = 0; L_V = 65536; L_X = 131072
def kslot(t): return L_K + 16384 * (t % 4)
def vslot(t): return L_V + 16384 * (t % 4)
LDS_BYTES = 163840
L_VOTE = L_V + 2 * 16384
L_LIMIT = 2.0 ** 30

PART_BYTES = 16 * 7 * 16 * 16 * 2048
FLAG_BYTES = 16 * 7 * 4 * 64
STAMP_OFF = PART_BYTES + 32768
RING_OFF = PART_BYTES + (1 << 20)
RING_BYTES = 32 << 20
CONS_OFF = 16384
SPIN_MAX = 1 << 19
class Opt:
    kv_flags = "nt"
    w_flags = ""
    x_flags = ""
    wo_flags = ""
    st_flags = ""
    stamps = False
    p3_tiles = False
    early_trips = 0
    vfirst_early = 37
    loop_exit = 0
    xwarm = False
    kvmin = False
    vfirst = 0
    dma_stamps = False
    rot = 0
    pad_iter = 0
    last_st = ''
    out_flags = ''
    coopw = False
    coopw_init = 2
    pf_flags = ''
    early_wb = 0
    wt_flags = ''
    prod_delay = 0
    ring = 4
    vm_space = 0
    p3_drop = ''
    wo_step = 13
    cons_chk = 22
    wo_touch = (4, 5, 6)
    red_m = 200
    cons_poll = 50
    ld_min = 16
    stamp_skip = 'p1_first_data,pre_iter_end'
    p3detail = -1
    st_lag = 21
    force_fallback = False
    red_at = 60
    sig_lag = 28
    poll_lag = 22
    chk_lag = 22
    fused = True
    stream0 = False
    loop_nods = False
    loop_nomfma = False
    loop_novalu = False
    loop_nodma = False
    loop_dma_every = 1
    bar_stamps = False
    trip_stamps = False
    dma_mode = 'spread'
    dma_gaps = ([5, 21, 37, 53, 69, 85], [101, 117])
    nv_prev = 2
    stamp_fwd = -1
    stamp_dbg = -1
    x_rd_gap0 = 65
    x_rd_gap = 33
    p1_steps = False
    p1_drop = ''
    rev = True
    init_w = 2
    early_step = 2
    x_gap = 60
    p1_nowait = False
    p1_noread = False
    wring = 3
    kvpf = 'early'
    coopx = False
    init_more = 0
OPT = Opt()

def wait_tag(*tags): return I("s_waitcnt vmcnt(?)", "wait", vmtags=list(tags))
def tag(ins, t):
    ins.meta["tag"] = t; return ins
def resolve_vm(stream, queue):
    q = list(queue)
    for ins in stream:
        if ins.kind in ("dma", "vld", "vst"):
            q.append(ins.meta.get("tag", "?"))
        elif ins.kind == "wait":
            if "vmtags" in ins.meta:
                idx = [n for n, t in enumerate(q) if t in ins.meta["vmtags"]]
                n = len(q) - 1 - max(idx) if idx else len(q)
                n = min(n, 63)
                ins.text = f"s_waitcnt vmcnt({n})"; ins.meta["vm"] = n
            if "vm" in ins.meta:
                n = ins.meta["vm"]
                if len(q) > n: q = q[len(q) - n:] if n else []
    return q

_stamp_n = [0]
def stamp(name):
    if not OPT.stamps: return []
    if OPT.dma_stamps:
        if name == "loop_start": return [raw("s_memtime s[100:101]", "salu"), raw("s_waitcnt lgkmcnt(0)", "wait", lgkm=0)]
        if name == "loop_end": return [raw("s_memtime s[76:77]", "salu"), raw("s_waitcnt lgkmcnt(0)", "wait", lgkm=0), salu("s_sub_u32 s100, s76, s100")]
        return []
    if OPT.stamp_skip and name in OPT.stamp_skip.split(","): return []
    if OPT.p3detail >= 0 and not name.startswith("d_") and name not in ("rt_end",): return []
    if OPT.bar_stamps and name not in ("rt_ls", "rt_le", "loop_start", "loop_end", "rt_end"): return []
    n = _stamp_n[0]; _stamp_n[0] += 1
    STAMPS.append(name)
    op = "s_memrealtime" if name.startswith("rt") else "s_memtime"
    return [raw(f"{op} s[{S_STAMP+2*n}:{S_STAMP+2*n+1}]", "salu")]
STAMPS = []

def m0_set(base): return salu(f"s_add_u32 m0, s{S_W1K}, {base}", [f"s{S_W1K}"], ["m0"])

def dma_tile(kind, slot_base, soff, tg):
    voff, srd, fl = {"K": (V_DK, S_K, OPT.kv_flags), "V": (V_DV, S_V, OPT.kv_flags), "W": (V_DW, S_WQ, OPT.w_flags)}[kind]
    return [(m0_set(slot_base + dc * 3968), tag(dma(voff, srd, soff, dc * 128, fl), tg)) for dc in range(4)]

def setup():
    o = []; a = o.append
    a(salu("s_cmp_ge_u32 s2, 256")); a(raw("s_cbranch_scc1 L_end", "branch"))
    o += stamp("rt_start") + stamp("start")
    a(valu("v_lshrrev_b32 v1, 6, v0", ["v0"], ["v1"]))
    a(valu(f"v_and_b32 v{V_LANE}, 63, v0", ["v0"], ["v0"]))
    a(salu(f"s_mov_b32 s{S_SAFE}, 0"))
    a(valu(f"v_readfirstlane_b32 s{S_W}, v1", ["v1"], [f"s{S_W}"]))
    a(label("L_again"))
    a(salu("s_load_dwordx16 s[36:51], s[0:1], 0")); a(salu("s_load_dwordx8 s[52:59], s[0:1], 64"))
    a(salu("s_load_dwordx2 s[60:61], s[0:1], 96"))
    a(nop(3))
    a(salu(f"s_and_b32 s{S_T0}, s2, 7")); a(salu(f"s_lshr_b32 s{S_T1}, s2, 3"))
    a(salu(f"s_and_b32 s{S_H}, s{S_T1}, 15")); a(salu(f"s_lshr_b32 s{S_T1}, s{S_T1}, 4"))
    a(salu(f"s_lshl_b32 s{S_G}, s{S_T0}, 1")); a(salu(f"s_add_u32 s{S_G}, s{S_G}, s{S_T1}"))
    a(salu(f"s_lshr_b32 s{S_BR}, s{S_G}, 3")); a(salu(f"s_and_b32 s{S_B}, s{S_G}, 7"))
    a(salu(f"s_lshl_b32 s{S_W1K}, s{S_W}, 10"))
    if OPT.rot:
        a(salu(f"s_and_b32 s{S_T0}, s2, 7")); a(salu(f"s_mul_i32 s{S_T0}, s{S_T0}, {OPT.rot}")); a(salu(f"s_lshr_b32 s{S_T1}, s2, 3"))
        a(salu(f"s_add_u32 s{S_T0}, s{S_T0}, s{S_T1}")); a(salu(f"s_and_b32 s{S_T0}, s{S_T0}, 31")); a(salu(f"s_lshl_b32 s33, s{S_T0}, 14") if False else salu(f"s_lshl_b32 s{S_T3}, s{S_T0}, 14"))
    a(salu(f"s_mov_b32 s{S_C}, 0x{f32bits(CSC):08x}"))
    L = f"v{V_LANE}"
    def vv(t, rd, wr): a(valu(t, rd, wr))
    vv(f"v_and_b32 v1, 15, {L}", [L], ["v1"]); vv(f"v_lshrrev_b32 v2, 4, {L}", [L], ["v2"])
    vv("v_lshrrev_b32 v3, 1, v1", ["v1"], ["v3"])
    for sp in range(2):
        r = V_KA[sp]
        vv(f"v_add_u32 v{r}, {4*sp}, v2", ["v2"], [f"v{r}"])
        vv(f"v_xor_b32 v{r}, v{r}, v3", [f"v{r}", "v3"], [f"v{r}"])
        vv(f"v_lshlrev_b32 v{r}, 4, v{r}", [f"v{r}"], [f"v{r}"])
        vv(f"v_lshl_add_u32 v{r}, v1, 7, v{r}", ["v1", f"v{r}"], [f"v{r}"])
    vv(f"v_bfe_u32 v28, {L}, 2, 2", [L], ["v28"]); vv(f"v_and_b32 v29, 3, {L}", [L], ["v29"])
    vv("v_lshl_add_u32 v30, v2, 2, v28", ["v2", "v28"], ["v30"])
    vv("v_bfe_u32 v31, v30, 1, 2", ["v30"], ["v31"])
    for p in range(4):
        r = V_VA[p]
        vv(f"v_xor_b32 v{r}, {p}, v31", ["v31"], [f"v{r}"])
        vv(f"v_lshlrev_b32 v{r}, 5, v{r}", [f"v{r}"], [f"v{r}"])
        vv(f"v_lshl_add_u32 v{r}, v30, 7, v{r}", ["v30", f"v{r}"], [f"v{r}"])
        vv(f"v_lshl_add_u32 v{r}, v29, 3, v{r}", ["v29", f"v{r}"], [f"v{r}"])
        vv(f"v_add_u32 v{r}, {L_V}, v{r}", [f"v{r}"], [f"v{r}"])
    vv("v_lshl_add_u32 v30, v2, 3, v28", ["v2", "v28"], ["v30"])
    vv("v_lshrrev_b32 v31, 1, v28", ["v28"], ["v31"])
    for sp in range(2):
        r = V_WA[0][sp]
        vv(f"v_xor_b32 v{r}, {sp}, v31", ["v31"], [f"v{r}"])
        vv(f"v_lshl_add_u32 v{r}, v{r}, 2, v29", [f"v{r}", "v29"], [f"v{r}"])
        vv(f"v_lshlrev_b32 v{r}, 4, v{r}", [f"v{r}"], [f"v{r}"])
        vv(f"v_lshl_add_u32 v{r}, v30, 7, v{r}", ["v30", f"v{r}"], [f"v{r}"])
        for win in (1, 2):
            vv(f"v_add_u32 v{V_WA[win][sp]}, {65536*win}, v{r}", [f"v{r}"], [f"v{V_WA[win][sp]}"])
    vv(f"v_lshrrev_b32 v1, 3, {L}", [L], ["v1"]); vv(f"v_and_b32 v2, 7, {L}", [L], ["v2"])
    vv(f"v_lshl_add_u32 v3, s{S_W}, 3, v1", ["v1", f"s{S_W}"], ["v3"])
    vv("v_bfe_u32 v28, v3, 1, 3", ["v3"], ["v28"]); vv("v_xor_b32 v28, v28, v2", ["v28", "v2"], ["v28"])
    vv("v_lshlrev_b32 v28, 4, v28", ["v28"], ["v28"]); vv(f"v_lshl_add_u32 v{V_DK}, v3, 9, v28", ["v3", "v28"], [f"v{V_DK}"])
    vv("v_bfe_u32 v28, v3, 1, 2", ["v3"], ["v28"]); vv("v_lshlrev_b32 v28, 1, v28", ["v28"], ["v28"])
    vv("v_xor_b32 v28, v28, v2", ["v28", "v2"], ["v28"]); vv("v_lshlrev_b32 v28, 4, v28", ["v28"], ["v28"])
    vv(f"v_lshl_add_u32 v{V_DV}, v3, 9, v28", ["v3", "v28"], [f"v{V_DV}"])
    vv("v_bfe_u32 v28, v3, 1, 1", ["v3"], ["v28"]); vv("v_lshlrev_b32 v28, 2, v28", ["v28"], ["v28"])
    vv("v_xor_b32 v28, v28, v2", ["v28", "v2"], ["v28"]); vv("v_lshlrev_b32 v28, 4, v28", ["v28"], ["v28"])
    vv(f"v_lshl_add_u32 v{V_DW}, v3, 13, v28", ["v3", "v28"], [f"v{V_DW}"])
    a(raw("s_waitcnt lgkmcnt(0)", "wait", lgkm=0))
    a(salu(f"s_cmp_eq_u32 s{S_BR}, 0"))
    for i in range(10): a(salu(f"s_cselect_b32 s{36+i}, s{36+i}, s{46+i}"))
    if OPT.rot: a(salu(f"s_mov_b32 s{S_ROT}, s{S_T3}"))
    def srd(base, lo, hi, offs, size):
        if offs is None:
            a(salu(f"s_mov_b32 s{base}, s{lo}")); a(salu(f"s_mov_b32 s{base+1}, s{hi}"))
        else:
            a(salu(f"s_add_u32 s{base}, s{lo}, {offs}")); a(salu(f"s_addc_u32 s{base+1}, s{hi}, 0"))
        a(salu(f"s_mov_b32 s{base+2}, {size}")); a(salu(f"s_mov_b32 s{base+3}, 0x20000"))
    a(salu(f"s_mul_i32 s{S_T0}, s{S_B}, 229376")); srd(S_X, 36, 37, f"s{S_T0}", 229376)
    a(salu(f"s_lshl_b32 s{S_T0}, s{S_H}, 9")); srd(S_WQ, 42, 43, f"s{S_T0}", 0)
    a(salu(f"s_sub_u32 s{S_WQ+2}, {448*8192}, s{S_T0}"))
    a(salu(f"s_lshl_b32 s{S_T0}, s{S_B}, 4")); a(salu(f"s_add_u32 s{S_T0}, s{S_T0}, s{S_H}"))
    a(salu(f"s_lshl_b32 s{S_T0}, s{S_T0}, 19"))
    srd(S_K, 38, 39, f"s{S_T0}", 524288); srd(S_V, 40, 41, f"s{S_T0}", 524288)
    a(salu(f"s_mul_i32 s{S_T0}, s{S_H}, 229376")); srd(S_WO, 44, 45, f"s{S_T0}", 229376)
    srd(S_WS, 60, 61, None, 16 * 7 * 16 * 16 * 2048)
    srd(S_OUT, 56, 57, None, 8 * 256 * 896 * 2)
    if OPT.fused:
        srd(S_DBG, 58, 59, None, 256)
        a(salu(f"s_mov_b32 s{S_T0}, {PART_BYTES}")); srd(S_FL, 60, 61, f"s{S_T0}", 32768)
        a(salu(f"s_mov_b32 s{S_T0}, {RING_OFF}")); a(salu(f"s_add_u32 s54, s60, s{S_T0}")); a(salu("s_addc_u32 s55, s61, 0"))
        a(salu(f"s_mov_b32 s{S_RG}, s54")); a(salu(f"s_mov_b32 s{S_RG+1}, s55")); a(salu(f"s_mov_b32 s{S_RG+2}, {RING_BYTES}")); a(salu(f"s_mov_b32 s{S_RG+3}, 0x20000"))
        a(salu(f"s_getreg_b32 s{S_XCC}, hwreg(HW_REG_XCC_ID, 0, 3)"))
        a(salu(f"s_lshl_b32 s{S_SIG}, s{S_G}, 4")); a(salu(f"s_add_u32 s{S_SIG}, s{S_SIG}, s{S_H}"))
        a(salu(f"s_mul_i32 s{S_T0}, s{S_G}, {14*64}"))
        a(salu(f"s_lshl_b32 s{S_T1}, s{S_W}, 4")); a(salu(f"s_add_u32 s{S_T1}, s{S_T1}, s{S_H}")); a(salu(f"s_add_u32 s50, s{S_T0}, s{S_T1}"))
        a(salu(f"s_lshl_b32 s{S_T1}, s{S_H}, 2")); a(salu(f"s_add_u32 s{S_T1}, s{S_T1}, s{S_W}")); a(salu(f"s_add_u32 s51, s{S_T0}, s{S_T1}"))
        a(salu(f"s_add_u32 s51, s51, {CONS_OFF}"))
        a(valu(f"v_min_u32 v1, 13, v{V_LANE}", [f"v{V_LANE}"], ["v1"])); a(valu("v_lshlrev_b32 v1, 6, v1", ["v1"], ["v1"]))
        a(valu("v_mov_b32 v2, 0", [], ["v2"]))
        for sr in ("s50", "s51"):
            a(tag(I(f"buffer_store_byte v2, v1, s[{S_FL}:{S_FL+3}], {sr} offen", "vst", ["v1", "v2"], data=["v2"]), "reset"))
    return o

def add_lgkm_waits(g, cons, carried):
    seq = [(-1, regs) for regs in carried]
    for k in range(g.n):
        if g.mem[k] is not None and g.mem[k].kind == "ds": seq.append((k, g.mem[k].wr))
    lead = None
    for k, regs in cons:
        late = [n for n, (gap, w) in enumerate(seq) if gap == k - 1 and gap >= 0 and set(w) & set(regs)]
        assert not late, f"DS for MFMA {k} issued in gap {k-1}"
        idx = [n for n, (gap, w) in enumerate(seq) if gap < max(k - 1, 0) and set(w) & set(regs)]
        if not idx: continue
        last = max(idx)
        after = sum(1 for n, (gap, w) in enumerate(seq) if n > last and gap < max(k - 1, 0))
        assert after <= 15, (k, after)
        if k == 0: lead = wait_lgkm(after)
        else: g.pre[k - 1].insert(0, wait_lgkm(after))
    out = len(carried)
    if lead is not None: out = min(out, lead.meta["lgkm"])
    for k in range(g.n):
        for x in g.pre[k]:
            if "lgkm" in x.meta: out = min(out, x.meta["lgkm"])
        if g.mem[k] is not None and g.mem[k].kind == "ds":
            if out >= 14:
                assert len(g.pre[k]) == 0, k
                g.pre[k].append(wait_lgkm(8)); out = 8
            out += 1
    return lead

def place_vmem(g, gap, scalars, d, hi=None, stack=False, space=False):
    k = max(gap, 1 if stack else len(scalars))
    hi = g.n if hi is None else hi
    isdma = lambda x: x is not None and x.kind == "dma"
    while True:
        assert k < hi, f"no gap for {d.text}"
        near = OPT.vm_space and any(0 <= k + dd < g.n and dd != 0 and g.mem[k + dd] is not None and g.mem[k + dd].kind in ("vst", "vld", "dma")
                                    for dd in range(-OPT.vm_space, OPT.vm_space + 1))
        if g.mem[k] is None and not g.vec[k] and len(g.pre[k]) <= 1 and not (near and space):
            if stack:
                if not isdma(g.mem[k - 1]) and len(g.pre[k - 1]) + len(scalars) <= 3 and not any(x.kind == "barrier" for x in g.pre[k - 1]): break
            elif all(not g.pre[k - 1 - n] and not isdma(g.mem[k - 1 - n]) for n in range(len(scalars))): break
        k += 1
    if stack:
        for sc in scalars: g.put_pre(k - 1, sc)
    else:
        for n, sc in enumerate(scalars): g.put_pre(k - len(scalars) + n, sc)
    g.put_mem(k, d)
    return k

def put_scalar(g, gap, *ins):
    k = gap
    while g.pre[k]: k += 1
    g.pre[k] = list(ins)
    return k

def place_chain(g, ops, lo, hi):
    left = []
    for ins in ops:
        k = g.place_vec(ins, lo, hi) if (not left and lo < hi) else None
        if k is None: left.append(ins)
        else: lo = k + 1 if ins.kind == "trans" else k
    return lo, left

class Op:
    def __init__(self, ins, rel, dl, preds=()):
        self.ins = ins; self.rel = rel; self.dl = dl; self.preds = list(preds); self.gap = None

def list_schedule(g, ops, lo=0, hi=None):
    hi = g.n if hi is None else hi
    todo = list(ops)
    for k in range(lo, hi):
        while True:
            free = g.free_vec(k)
            if free <= 0: break
            ready = [x for x in todo if x.rel <= k and all(p.gap is not None and p.gap + d <= k for p, d in x.preds)]
            tr = [x for x in ready if x.ins.kind == "trans"]
            pl = [x for x in ready if x.ins.kind != "trans"]
            pick = None
            can_tr = free == 2 and g.mem[k] is None and not g.vec[k]
            if can_tr and tr: pick = min(tr, key=lambda x: x.dl)
            if pl:
                best = min(pl, key=lambda x: x.dl)
                if pick is None or (best.dl + 6 < pick.dl): pick = best
            if pick is None: break
            g.vec[k].append(pick.ins); pick.gap = k; todo.remove(pick)
    late = [x for x in ops if x.gap is not None and x.gap > x.dl]
    assert not late, [(x.ins.text, x.gap, x.dl) for x in late]
    return todo

def sm_ops(tile, kb, qb, rel, dl):
    i = sm_group(tile, kb, qb)
    f = [Op(i[0], rel, dl - 6), Op(i[1], rel, dl - 6), Op(i[4], rel, dl - 5), Op(i[5], rel, dl - 5)]
    x = [Op(i[2], rel, dl - 4, [(f[0], 1)]), Op(i[3], rel, dl - 4, [(f[1], 1)]), Op(i[6], rel, dl - 3, [(f[2], 1)]), Op(i[7], rel, dl - 3, [(f[3], 1)])]
    ad = [Op(i[8], rel, dl, [(x[0], 1)]), Op(i[9], rel, dl, [(x[1], 1)]), Op(i[11], rel, dl, [(x[2], 1)]), Op(i[12], rel, dl, [(x[3], 1)])]
    cv = [Op(i[10], rel, dl, [(x[0], 1), (x[1], 1)]), Op(i[13], rel, dl, [(x[2], 1), (x[3], 1)])]
    return f + x + ad + cv

def exposed(ops):
    o = []
    for n, ins in enumerate(ops):
        o.append(ins)
        if ins.kind == "trans" and n + 1 < len(ops) and ops[n + 1].kind != "trans": o.append(nop(0))
    return o

def conv_ops(acc, d, t):
    return [valu(f"v_accvgpr_read_b32 v{d}, a{acc}", [f"a{acc}"], [f"v{d}"]),
            valu(f"v_accvgpr_read_b32 v{t}, a{acc+1}", [f"a{acc+1}"], [f"v{t}"]),
            valu(f"v_accvgpr_read_b32 v{d+1}, a{acc+2}", [f"a{acc+2}"], [f"v{d+1}"]),
            valu(f"v_accvgpr_read_b32 v{t+1}, a{acc+3}", [f"a{acc+3}"], [f"v{t+1}"]),
            valu(f"v_cvt_pk_bf16_f32 v{d}, v{d}, v{t}", [f"v{d}", f"v{t}"], [f"v{d}"]),
            valu(f"v_cvt_pk_bf16_f32 v{d+1}, v{d+1}, v{t+1}", [f"v{d+1}", f"v{t+1}"], [f"v{d+1}"])]

def xlane_reduce(regs, op, tmp):
    o = []
    for swap in ("v_permlane32_swap_b32", "v_permlane16_swap_b32"):
        for n, r in enumerate(regs): o.append(valu(f"v_mov_b32 v{tmp+n}, v{r}", [f"v{r}"], [f"v{tmp+n}"]))
        o.append(nop(1))
        for n, r in enumerate(regs):
            o.append(valu(f"{swap} v{r}, v{tmp+n}", [f"v{r}", f"v{tmp+n}"], [f"v{r}", f"v{tmp+n}"]))
        o.append(nop(1))
        for n, r in enumerate(regs):
            o.append(valu(f"{op} v{r}, v{r}, v{tmp+n}", [f"v{r}", f"v{tmp+n}"], [f"v{r}"]))
    return o

def wpairs(): return [(L_X, L_X + 16384), (vslot(1), kslot(3)), (vslot(2), vslot(3))]
def wslot(tile):
    p = wpairs(); return p[(tile // 2) % len(p)][tile % 2]
XBUF = [V_S, V_P]
def xfrag(qb, cs): return XBUF[(cs // 2) & 1] + ((cs % 2) * 4 + qb) * 4
V_XD = [128, 129]
V_XR = [130, 131]
S_XB = 34
S_XCUR = 35
def x_setup():
    o = []; a = o.append
    L = f"v{V_LANE}"
    a(salu(f"s_and_b32 s{S_T1}, s{S_W}, 1")); a(salu(f"s_lshl_b32 s{S_T1}, s{S_T1}, 13"))
    a(salu(f"s_cmp_lt_u32 s{S_W}, 2")); a(salu(f"s_cselect_b32 s{S_XB}, 2, 4")); a(salu(f"s_lshl_b32 s{S_XB}, s{S_XB}, 14"))
    a(salu(f"s_add_u32 s{S_XB}, s{S_XB}, s{S_T1}"))
    assert kslot(2) == 2 << 14 and vslot(0) == 4 << 14
    a(valu(f"v_lshrrev_b32 v1, 3, {L}", [L], ["v1"])); a(valu(f"v_and_b32 v2, 7, {L}", [L], ["v2"]))
    a(valu(f"v_lshl_add_u32 v3, s{S_W}, 6, v1", ["v1", f"s{S_W}"], ["v3"]))
    a(valu("v_mul_u32_u24 v3, 896, v3", ["v3"], ["v3"]))
    a(valu("v_lshrrev_b32 v1, 1, v1", ["v1"], ["v1"]))
    for par in range(2):
        r = V_XD[par]
        a(valu(f"v_or_b32 v{r}, {4*par}, v1", ["v1"], [f"v{r}"]))
        a(valu(f"v_xor_b32 v{r}, v{r}, v2", [f"v{r}", "v2"], [f"v{r}"]))
        a(valu(f"v_lshl_add_u32 v{r}, v{r}, 4, v3", [f"v{r}", "v3"], [f"v{r}"]))
        a(valu(f"v_add_u32 v{V_XR[par]}, s{S_XB}, v{V_KA[par]}", [f"v{V_KA[par]}"], [f"v{V_XR[par]}"]))
    return o
def x_items(j):
    out = []
    for i in range(8):
        sreg = S_T2 + (i & 1)
        sc = []
        if i == 0 and j > 0: sc.append(salu(f"s_add_u32 s{S_XCUR}, s{S_XCUR}, s{S_XSTEP}", [f"s{S_XCUR}"], [f"s{S_XCUR}"]))
        sc.append(salu(f"s_add_u32 s{sreg}, s{S_XCUR}, {i*7168}", [f"s{S_XCUR}"], [f"s{sreg}"]))
        sc.append(salu(f"s_add_u32 m0, s{S_XB}, {i*1024}", [f"s{S_XB}"], ["m0"]))
        out.append((sc, tag(dma(V_XD[i & 1], S_X, f"s{sreg}", 0, OPT.x_flags), f"x{j}")))
    return out
def x_read(qb, cs): return ds_read128("v", xfrag(qb, cs), V_XR[cs & 1], qb * 2048)
def w_read(dbp, cs, jj):
    s, e = dbp >> 1, dbp & 1
    base = wslot(cs); win = base // 65536
    off = base - win * 65536 + (s >> 1) * 4096 + jj * 512 + e * 8
    return ds_read_tr("v", V_POOL + 4 * ((2 * dbp + (cs & 1)) % 8) + 2 * jj, V_WA[win][s & 1], off)

V_PF = 28
def coop_setup():
    o = []; a = o.append
    a(salu(f"s_mul_i32 s{S_T1}, s{S_H}, {112*128}"))
    a(salu(f"s_lshl_b32 s{S_T2}, s{S_W}, 12")); a(salu(f"s_add_u32 s{S_T1}, s{S_T1}, s{S_T2}"))
    a(valu(f"v_and_b32 v{V_PF}, 31, v{V_LANE}", [f"v{V_LANE}"], [f"v{V_PF}"]))
    a(valu(f"v_lshlrev_b32 v{V_PF}, 7, v{V_PF}", [f"v{V_PF}"], [f"v{V_PF}"]))
    a(valu(f"v_add_u32 v{V_PF}, s{S_T1}, v{V_PF}", [f"v{V_PF}"], [f"v{V_PF}"]))
    return o
def coop_x():
    return [tag(bload(V_PF + 1, 1, V_PF, S_X, "0", 0, OPT.pf_flags), "pf")]

V_PFW = 132
def coop_w_setup():
    o = []; a = o.append
    L = f"v{V_LANE}"
    a(salu(f"s_lshr_b32 s{S_T1}, s2, 7")); a(salu(f"s_and_b32 s{S_T1}, s{S_T1}, 1")); a(salu(f"s_lshl_b32 s{S_T1}, s{S_T1}, 5"))
    a(salu(f"s_lshl_b32 s{S_T2}, s{S_W}, 3")); a(salu(f"s_add_u32 s{S_T1}, s{S_T1}, s{S_T2}"))
    a(valu(f"v_bfe_u32 v{V_PFW}, {L}, 2, 3", [L], [f"v{V_PFW}"])); a(valu(f"v_add_u32 v{V_PFW}, s{S_T1}, v{V_PFW}", [f"v{V_PFW}"], [f"v{V_PFW}"]))
    a(valu(f"v_lshlrev_b32 v{V_PFW}, 13, v{V_PFW}", [f"v{V_PFW}"], [f"v{V_PFW}"]))
    a(valu(f"v_and_b32 v{V_PFW+1}, 3, {L}", [L], [f"v{V_PFW+1}"]))
    a(valu(f"v_lshl_add_u32 v{V_PFW}, v{V_PFW+1}, 7, v{V_PFW}", [f"v{V_PFW}", f"v{V_PFW+1}"], [f"v{V_PFW}"]))
    return o
def coop_w(j):
    return [salu(f"s_mov_b32 s{S_PFO}, {j*524288}", [], [f"s{S_PFO}"])], tag(bload(V_PFW + 1, 1, V_PFW, S_WQ, f"s{S_PFO}", 0, OPT.pf_flags), "pf")
OOL = []
def kv_off(reg, t):
    if not OPT.rot: return [salu(f"s_mov_b32 s{reg}, {t*16384}", [], [f"s{reg}"])]
    return [salu(f"s_add_u32 s{reg}, s{S_ROT}, {t*16384}", [f"s{S_ROT}"], [f"s{reg}"]), salu(f"s_and_b32 s{reg}, s{reg}, 0x7ffff", [f"s{reg}"], [f"s{reg}"])]
def phase1():
    o = []; a = o.append
    NP = 3
    a(salu(f"s_lshr_b32 s{S_T1}, s2, 7")); a(salu(f"s_and_b32 s{S_T1}, s{S_T1}, {1 if OPT.rev else 0}"))
    a(salu(f"s_cmp_eq_u32 s{S_T1}, 0"))
    a(salu(f"s_cselect_b32 s{S_WCUR}, 0, {6*524288}")); a(salu(f"s_cselect_b32 s{S_T2}, 1, -1"))
    a(salu(f"s_cselect_b32 s{S_XCUR}, 0, 768"))
    a(salu(f"s_mul_i32 s{S_WSTEP}, s{S_T2}, 524288")); a(salu(f"s_mul_i32 s{S_XSTEP}, s{S_T2}, 128"))
    o += x_setup()
    if OPT.coopx: o += coop_setup() + coop_x()
    if OPT.coopw:
        o += coop_w_setup()
        for j in range(OPT.coopw_init):
            sc, d = coop_w(j); o += sc + [d]
    def w_items(j):
        out = []
        for par in range(2):
            sreg = S_WCUR if par == 0 else S_WOFF
            for m, (m0, d) in enumerate(dma_tile("W", wslot(2 * j + par), f"s{sreg}", f"W{j}")):
                sc = [m0]
                if m == 0 and par == 0 and j > 0: sc = [salu(f"s_add_u32 s{S_WCUR}, s{S_WCUR}, s{S_WSTEP}", [f"s{S_WCUR}"], [f"s{S_WCUR}"]), m0]
                if m == 0 and par == 1: sc = [salu(f"s_add_u32 s{S_WOFF}, s{S_WCUR}, 262144", [f"s{S_WCUR}"], [f"s{S_WOFF}"]), m0]
                out.append((sc, d))
        return out
    def kv_items(kind, t):
        out = []
        for m, (m0, d) in enumerate(dma_tile(kind, kslot(t) if kind == "K" else vslot(t), f"s{S_T0}", f"{kind}{t}")):
            out.append((kv_off(S_T0, t) + [m0] if m == 0 else [m0], d))
        return out
    def now(items):
        for sc, d in items:
            o.extend(sc); a(nop(0)); a(d)
    w0 = w_items(0)
    for sc, d in w0[4:]: d.meta["tag"] = "W0b"
    if OPT.xwarm:
        a(valu(f"v_lshlrev_b32 v{V_PFW}, 4, v{V_LANE}", [f"v{V_LANE}"], [f"v{V_PFW}"]))
        a(salu(f"s_mul_i32 s{S_T0}, s{S_H}, 14336")); a(salu(f"s_lshl_b32 s{S_T1}, s{S_W}, 12")); a(salu(f"s_add_u32 s{S_T0}, s{S_T0}, s{S_T1}"))
        a(salu(f"s_add_u32 m0, s{S_T1}, {kslot(0)}", [], ["m0"])); a(nop(0))
        now(w0[:4])
        a(salu(f"s_lshl_b32 s{S_T1}, s{S_W}, 12")); a(salu(f"s_add_u32 m0, s{S_T1}, {kslot(0)}", [], ["m0"])); a(nop(0))
        for i in range(4): a(tag(dma(V_PFW, S_X, f"s{S_T0}", i * 1024, OPT.x_flags), "xw"))
        now(w0[4:]); now(x_items(0))
    else:
        now(x_items(0)); now(w0[:4]); now(w0[4:])
    if OPT.coopw:
        for j in range(OPT.coopw_init, 3):
            sc, d = coop_w(j); o += sc + [d]
    a(wait_tag("x0"))
    xr = [x_read(qb, cs) for cs in (0, 1) for qb in range(4)]
    o += xr
    a(wait_tag("W0")); a(barrier())
    if OPT.fused:
        a(salu(f"s_or_b32 s{S_T0}, s{S_XCC}, 0x80")); a(valu(f"v_mov_b32 v1, s{S_T0}", [], ["v1"])); a(valu("v_mov_b32 v2, 0", [], ["v2"]))
        a(tag(I(f"buffer_store_byte v1, v2, s[{S_DBG}:{S_DBG+3}], s{S_SIG} offen", "vst", ["v1", "v2"], data=["v1"]), "arr"))
    o += stamp("p1_first_data") + (stamp("rt_fd") if OPT.trip_stamps else [])
    def quad0(n): return V_POOL + 4 * (n % 8)
    def w_read0(n, jj):
        dbp, cs = n % 16, n // 16
        r = w_read(dbp, cs, jj)
        return ds_read_tr("v", quad0(n) + 2 * jj, int(r.rd[0][1:]), int(r.text.split("offset:")[1]))
    carried = [x.wr for x in xr]
    for n in range(3):
        for jj in range(2):
            r = w_read0(n, jj); a(r); carried.append(r.wr)
    early = {j: [] for j in range(7)}; after = {j: [] for j in range(7)}
    early[0] += w_items(1); early[1] += w_items(2)
    for j in range(NP, 7): after[j - NP + 1] += w_items(j)
    K = lambda t: kv_items("K", t)
    V = lambda t: kv_items("V", t)
    kv = {"early": {1: K(0), 2: K(1)}, "mid": {2: K(0), 3: K(1)}, "late": {3: K(0), 4: K(1)}}[OPT.kvpf]
    for j, l in kv.items(): early[j] += l
    if OPT.kvmin:
        early = {j: (w_items(1) if j == 0 else w_items(2) if j == 1 else []) for j in range(7)} if False else early
        for j in range(7): early[j] = [it for it in early[j] if not it[1].meta["tag"].startswith("K")]
        early[4] += K(0); early[5] += K(1)
        after[5] += V(0)
        after[6] += K(2) + V(1)
    else:
        after[5] += V(0)
        early[6] += K(2) + V(1) + K(3)
        after[6] += V(2)
    for j in range(7):
        ms = []
        if j == 0:
            for n in range(32):
                for qb in range(4):
                    acc = ((n % 16) * 4 + qb) * 4
                    first = n < 16
                    ms.append(mfma("a", acc, "v", quad0(n), "v", xfrag(qb, n // 16), None if first else "a", None if first else acc))
        else:
            for dbp in range(16):
                for qb in range(4):
                    for e2 in range(2):
                        acc = (dbp * 4 + qb) * 4
                        ms.append(mfma("a", acc, "v", V_POOL + 4 * ((2 * dbp + e2) % 8), "v", xfrag(qb, 2 * j + e2), "a", acc))
        g = Gaps(ms)
        if j == 0:
            for n in range(3, 32):
                for jj in range(2): g.put_mem(4 * n - 12 + 2 * jj, w_read0(n, jj))
        else:
            for dbp in range(3, 16):
                for n, (cs, jj) in enumerate([(2*j, 0), (2*j, 1), (2*j+1, 0), (2*j+1, 1)]):
                    g.put_mem(8 * dbp - 24 + 2 * n, w_read(dbp, cs, jj))
        nxt = []
        if j < 6:
            for dbp in range(3):
                for n, (cs, jj) in enumerate([(2*j+2, 0), (2*j+2, 1), (2*j+3, 0), (2*j+3, 1)]):
                    r = w_read(dbp, cs, jj); g.put_mem(104 + (1 if j == 0 else 0) + 8 * dbp + 2 * n, r); nxt.append(r.wr)
        XG = OPT.x_rd_gap if j > 0 else OPT.x_rd_gap0
        xreads = []
        if j < 6:
            for n, (cs, qb) in enumerate([(cs, qb) for cs in (2*j+2, 2*j+3) for qb in range(4)]):
                r = x_read(qb, cs); g.put_mem(XG + 2 * n, r); xreads.append(r)
        if j == 0:
            cons = [(4 * n, R("v", quad0(n), 4) + (R("v", V_S, 32) if n == 0 else [])) for n in range(32)]
        else:
            cons = [(8 * dbp, R("v", V_POOL + 4 * ((2 * dbp) % 8), 8)) for dbp in range(16)]
        if j < 6: cons.append((XG + 24, [w for r in xreads for w in r.wr]))
        cons.sort()
        lead = add_lgkm_waits(g, cons, carried)
        if j < 6:
            k = XG - 2
            while g.pre[k]: k -= 1
            g.pre[k] = [wait_tag(f"x{j+1}")]
        tags = [f"W{j+1}"] if j < 6 else ["K0"]
        k = 100
        while g.pre[k]: k -= 1
        g.pre[k] = [wait_tag(*tags), barrier()] if not OPT.p1_nowait else [barrier()]
        kb = k
        gp = 1
        if OPT.coopw and j + 3 <= 6:
            sc, d = coop_w(j + 3); gp = place_vmem(g, 2, sc, d, kb) + 1
        if j == 0:
            for sc, d in x_items(1): gp = place_vmem(g, gp, sc, d, XG - 3, stack=True) + 2
            k = 48
            while g.pre[k]: k -= 1
            g.pre[k] = [wait_tag("W0b"), barrier()]
            assert k < 52
        for sc, d in early[j]: gp = place_vmem(g, gp + len(sc) - 1, sc, d, kb) + (OPT.early_step if j != 6 else 7)
        if j < 5:
            gx = max(XG + 25, gp)
            for sc, d in x_items(j + 2): gx = place_vmem(g, gx, sc, d, stack=True) + 2
            gpa = max(kb + 2, gx)
        else: gpa = kb + 2
        for sc, d in after[j]: gpa = place_vmem(g, gpa, sc, d, stack=True) + 1
        left = []
        if j == 6:
            for dbp in range(16):
                for qb in range(4):
                    ops = conv_ops((dbp * 4 + qb) * 4, V_Q + (qb * 8 + (dbp >> 1)) * 4 + 2 * (dbp & 1), V_CT + 2 * (qb & 1))
                    if left: left += ops
                    else:
                        _, l2 = place_chain(g, ops, 8 * dbp + 2 * qb + 1 + 5, 128); left += l2
        if lead is not None: a(lead)
        em = g.emit()
        if OPT.p1_drop:
            def keep(x):
                if x.kind in ("dma", "vld"):
                    t = x.meta.get("tag", "")
                    for c in OPT.p1_drop:
                        if t.startswith(c): return False
                return True
            em = [x for x in em if keep(x)]
        if OPT.p1_noread: em = [x for x in em if x.kind != "ds" and not (x.kind == "wait" and "lgkm" in x.meta)]
        o += em
        carried = nxt
        if OPT.p1_steps: o += stamp(f"step{j}")
        if left: a(nop(7)); o += left
    if not OPT.p1_steps: o += stamp("p1_end") + (stamp("rt_p1") if OPT.trip_stamps else [])
    return o

def k_read(t, kb, s):
    return ds_read128("v", V_POOL + 4 * s, V_KA[s & 1], (kslot(t) - L_K) + (s >> 1) * 4096 + kb * 2048)
def v_read(t, db, jj):
    return ds_read_tr("v", V_POOL + 4 * (db % 8) + 2 * jj, V_VA[db & 3], (vslot(t) - L_V) + (db >> 2) * 4096 + jj * 2048)
def Sreg(kb, qb): return V_S + (kb * 4 + qb) * 4
def Preg(buf, qb): return V_P + buf * 16 + qb * 4
def qk_mfmas():
    ms = []
    for i in range(64):
        kb, sp, qb, e = i >> 5, (i >> 3) & 3, (i >> 1) & 3, i & 1
        s = 2 * sp + e; d = Sreg(kb, qb)
        ms.append(mfma("v", d, "v", V_POOL + 4 * s, "v", V_Q + (qb * 8 + s) * 4, None if s == 0 else "v", None if s == 0 else d))
    return ms
def pv_mfmas(t, first):
    ms = []
    for i in range(64):
        db, qb = i >> 2, i & 3
        acc = (db * 4 + qb) * 4
        ms.append(mfma("a", acc, "v", V_POOL + 4 * (db % 8), "v", Preg(t & 1, qb), None if first else "a", None if first else acc))
    return ms
def sm_group(tile, kb, qb):
    s = Sreg(kb, qb); p = Preg(tile & 1, qb) + 2 * kb; mc = V_MC + qb; l = V_L + qb
    f = lambda r: valu(f"v_fma_f32 v{s+r}, v{s+r}, s{S_C}, v{mc}", [f"v{s+r}", f"v{mc}", f"s{S_C}"], [f"v{s+r}"])
    x = lambda r: trans(f"v_exp_f32 v{s+r}, v{s+r}", [f"v{s+r}"], [f"v{s+r}"])
    ad = lambda r: valu(f"v_add_f32 v{l}, v{l}, v{s+r}", [f"v{l}", f"v{s+r}"], [f"v{l}"])
    cv = lambda r: valu(f"v_cvt_pk_bf16_f32 v{p+r//2}, v{s+r}, v{s+r+1}", [f"v{s+r}", f"v{s+r+1}"], [f"v{p+r//2}"])
    return [f(0), f(1), x(0), x(1), f(2), f(3), x(2), x(3), ad(0), ad(1), cv(0), ad(2), ad(3), cv(2)]

def pre_iter():
    o = []; a = o.append
    carried = []
    for s in range(8):
        r = k_read(0, 0, s); a(r); carried.append(r.wr)
    g = Gaps(qk_mfmas())
    for s in range(8): g.put_mem(8 * (s >> 1) + 10 + 4 * (s & 1), k_read(0, 1, s))
    cons = [(8 * p, R("v", V_POOL + 8 * (p % 4), 8)) for p in range(8)]
    a(add_lgkm_waits(g, cons, carried))
    if OPT.kvmin:
        gp = 3
        for kind, t in (("K", 3), ("V", 2)):
            for m, (m0, d) in enumerate(dma_tile(kind, kslot(t) if kind == "K" else vslot(t), f"s{S_T0}", f"{kind}{t}")):
                gp = place_vmem(g, gp, (kv_off(S_T0, t) if m == 0 else []) + [m0], d, stack=True) + 5
    o += g.emit()
    a(wait_tag("K1", "V0")); a(barrier())
    o += kv_off(S_KOFF, 4)
    for m0, d in dma_tile("K", kslot(4), f"s{S_KOFF}", "K4"): a(m0); a(nop(0)); a(d)
    o += kv_off(S_KOFF, 5) + kv_off(S_VOFF, 3)
    carried = []
    for s in range(8):
        r = k_read(1, 0, s); a(r); carried.append(r.wr)
    for qb in range(4):
        m = V_MC + qb; s0 = Sreg(0, qb); s1 = Sreg(1, qb)
        a(valu(f"v_max3_f32 v{m}, v{s0}, v{s0+1}, v{s0+2}", R("v", s0, 3), [f"v{m}"]))
        a(valu(f"v_max3_f32 v{m}, v{m}, v{s0+3}, v{s1}", [f"v{m}", f"v{s0+3}", f"v{s1}"], [f"v{m}"]))
        a(valu(f"v_max3_f32 v{m}, v{m}, v{s1+1}, v{s1+2}", [f"v{m}", f"v{s1+1}", f"v{s1+2}"], [f"v{m}"]))
        a(valu(f"v_max_f32 v{m}, v{m}, v{s1+3}", [f"v{m}", f"v{s1+3}"], [f"v{m}"]))
    o += xlane_reduce([V_MC + q for q in range(4)], "v_max_f32", V_SP)
    for qb in range(4):
        m = V_MC + qb
        a(valu(f"v_mul_f32 v{m}, s{S_C}, v{m}", [f"v{m}", f"s{S_C}"], [f"v{m}"]))
        a(valu(f"v_sub_f32 v{m}, 0, v{m}", [f"v{m}"], [f"v{m}"]))
        a(valu(f"v_mov_b32 v{V_L+qb}, 0", [], [f"v{V_L+qb}"]))
    for kb, qb in [(0, 0), (0, 1), (0, 2), (0, 3), (1, 0), (1, 1)]: o += exposed(sm_group(0, kb, qb))
    o += stamp("pre_iter_end")
    return o, carried

def attn_iter(t, carried, vmw, prev, cur, first=False, adv=True, loopctl=False, extra=None, loop_body=False):
    g = Gaps(qk_mfmas() + pv_mfmas(t, first))
    for s in range(8): g.put_mem(8 * (s >> 1) + 10 + 4 * (s & 1), k_read(t + 1, 1, s))
    for db in range(16):
        for jj in range(2): g.put_mem(44 + 4 * db + 2 * jj, v_read(t, db, jj))
    nxt = []
    if t + 2 <= 31:
        for s, gap in zip(range(8), [108, 110, 112, 114, 116, 120, 124, 127]):
            r = k_read(t + 2, 0, s); g.put_mem(gap, r); nxt.append(r.wr)
    else:
        for db in range(5):
            for jj in range(2):
                r = v_read(t + 1, db, jj); g.put_mem(108 + 4 * db + 2 * jj, r); nxt.append(r.wr)
    cons = [(8 * p, R("v", V_POOL + 8 * (p % 4), 8)) for p in range(8)]
    cons += [(64 + 4 * db, R("v", V_POOL + 4 * (db % 8), 4)) for db in range(16)]
    lead = add_lgkm_waits(g, cons, carried)
    kb = 98
    while g.pre[kb]: kb -= 1
    g.pre[kb] = [vmw, barrier()]
    if OPT.bar_stamps and loop_body:
        g.pre[kb] = [raw("s_memtime s[94:95]", "salu"), vmw, raw("s_memtime s[96:97]", "salu"), barrier(), raw("s_memtime s[98:99]", "salu"),
                     raw("s_waitcnt lgkmcnt(0)", "wait", lgkm=0),
                     salu("s_sub_u32 s96, s96, s94"), salu("s_add_u32 s92, s92, s96"),
                     salu("s_sub_u32 s98, s98, s94"), salu("s_add_u32 s93, s93, s98")]
    gp_prev, gp_cur = OPT.dma_gaps
    placed = [place_vmem(g, gap, [m0], d, kb) for gap, (m0, d) in zip(gp_prev, prev)]
    for gap, (m0, d) in zip(gp_cur, cur): place_vmem(g, gap, [m0], d)
    if adv:
        for reg, srd, at in ((S_VOFF, S_V, (placed[OPT.nv_prev - 1] if OPT.nv_prev else 1) + 1), (S_KOFF, S_K, placed[-1] + 1)):
            k = put_scalar(g, at, salu(f"s_add_u32 s{reg}, s{reg}, 16384", [f"s{reg}"], [f"s{reg}"]))
            k = put_scalar(g, k + 1, salu(f"s_and_b32 s{reg}, s{reg}, 0x7ffff", [f"s{reg}"], [f"s{reg}"]))
            assert k < 100
        if loopctl:
            first_k = placed[-4]
            k = put_scalar(g, 2, salu(f"s_cmp_eq_u32 s{S_LOOP}, 1", [f"s{S_LOOP}"], ["scc"]),
                           salu(f"s_cselect_b32 s{S_K+2}, 0, 524288", ["scc"], [f"s{S_K+2}"]))
            assert k < first_k - 1
    if loopctl:
        k = put_scalar(g, 119, salu(f"s_sub_u32 s{S_LOOP}, s{S_LOOP}, 1", [f"s{S_LOOP}"], [f"s{S_LOOP}"]))
        k = put_scalar(g, k + 1, salu(f"s_cmp_lg_u32 s{S_LOOP}, {OPT.loop_exit}", [f"s{S_LOOP}"], ["scc"]))
        assert k <= 127
        for kk in range(k + 1, 128):
            assert all(x.kind == "wait" for x in g.pre[kk]), "SCC clobbered before the loop branch"
    if extra: extra(g, kb)
    ops = []
    for qb in (2, 3): ops += sm_ops(t, 1, qb, 0, 31 + 2 * qb)
    for qb in range(4): ops += sm_ops(t + 1, 0, qb, 25 + 2 * qb + 6, 100 + 6 * qb)
    for qb in (0, 1): ops += sm_ops(t + 1, 1, qb, 57 + 2 * qb + 6, 124 + 3 * qb)
    left = list_schedule(g, ops)
    if OPT.vfirst:
        cand = [k for k in range(128) if g.mem[k] is not None and g.mem[k].kind == "ds" and len(g.vec[k]) == 1 and g.vec[k][0].kind == "valu"
                and not (set(g.vec[k][0].wr) & set(g.mem[k].rd + g.mem[k].wr))]
        n = min(OPT.vfirst, len(cand))
        for i in range(n): g.vec_first.add(cand[(i * len(cand)) // n])
    if OPT.pad_iter:
        for n in range(OPT.pad_iter): g.post[(n * 128) // OPT.pad_iter + 3].append(nop(3))
    assert not left, f"softmax groups do not fit: {len(left)} left"
    return [lead] + g.emit(), nxt

def safe_attn():
    o = []; a = o.append
    VM, VT, VA_, TMP = 20, 24, 28, 112
    a(label("L_safe_attn")); a(wait_vm(0)); a(raw("s_waitcnt lgkmcnt(0)", "wait", lgkm=0)); a(barrier())
    for r in range(256): a(valu(f"v_accvgpr_write_b32 a{r}, 0", [], [f"a{r}"]))
    for qb in range(4):
        a(valu(f"v_mov_b32 v{VM+qb}, 0xff800000", [], [f"v{VM+qb}"])); a(valu(f"v_mov_b32 v{V_L+qb}, 0", [], [f"v{V_L+qb}"]))
    a(salu(f"s_mov_b32 s{S_KOFF}, 0")); a(salu(f"s_mov_b32 s{S_LOOP}, 32"))
    a(label("L_safe_loop"))
    for kind, slot in (("K", kslot(0)), ("V", vslot(0))):
        for m0, d in dma_tile(kind, slot, f"s{S_KOFF}", "safe"): a(m0); a(nop(0)); a(d)
    a(wait_vm(0)); a(barrier())
    qk = qk_mfmas()
    for kb in range(2):
        for s_ in range(8): a(k_read(0, kb, s_))
        a(wait_lgkm(0)); o += qk[32 * kb:32 * kb + 32]
    a(nop(7)); a(nop(7))
    for qb in range(4):
        t = VT + qb; s0 = Sreg(0, qb); s1 = Sreg(1, qb)
        a(valu(f"v_max3_f32 v{t}, v{s0}, v{s0+1}, v{s0+2}", [], [])); a(valu(f"v_max3_f32 v{t}, v{t}, v{s0+3}, v{s1}", [], []))
        a(valu(f"v_max3_f32 v{t}, v{t}, v{s1+1}, v{s1+2}", [], [])); a(valu(f"v_max_f32 v{t}, v{t}, v{s1+3}", [], []))
    o += xlane_reduce([VT + q for q in range(4)], "v_max_f32", TMP)
    for qb in range(4):
        a(valu(f"v_max_f32 v{VT+qb}, v{VT+qb}, v{VM+qb}", [], []))
        a(valu(f"v_sub_f32 v{VA_+qb}, v{VM+qb}, v{VT+qb}", [], [])); a(valu(f"v_mul_f32 v{VA_+qb}, s{S_C}, v{VA_+qb}", [], []))
        a(trans(f"v_exp_f32 v{VA_+qb}, v{VA_+qb}", [], [])); a(valu(f"v_mov_b32 v{VM+qb}, v{VT+qb}", [], []))
        a(valu(f"v_mul_f32 v{V_MC+qb}, s{S_C}, v{VT+qb}", [], [])); a(valu(f"v_sub_f32 v{V_MC+qb}, 0, v{V_MC+qb}", [], []))
        a(valu(f"v_mul_f32 v{V_L+qb}, v{V_L+qb}, v{VA_+qb}", [], []))
    for r in range(256):
        qb = (r >> 2) & 3; t = TMP + (r & 7)
        a(valu(f"v_accvgpr_read_b32 v{t}, a{r}", [], [])); a(valu(f"v_mul_f32 v{t}, v{t}, v{VA_+qb}", [], [])); a(valu(f"v_accvgpr_write_b32 a{r}, v{t}", [], []))
    for kb in range(2):
        for qb in range(4): o += exposed(sm_group(0, kb, qb))
    pv = pv_mfmas(0, False)
    for half in range(2):
        for db in range(8 * half, 8 * half + 8):
            for jj in range(2):
                a(v_read(0, db, jj))
            if db % 4 == 3: a(wait_lgkm(0))
        a(nop(1)); o += pv[32 * half:32 * half + 32]
    a(salu(f"s_add_u32 s{S_KOFF}, s{S_KOFF}, 16384")); a(salu(f"s_sub_u32 s{S_LOOP}, s{S_LOOP}, 1")); a(salu(f"s_cmp_lg_u32 s{S_LOOP}, 0"))
    a(barrier()); a(raw("s_cbranch_scc1 L_safe_loop", "branch"))
    a(nop(7)); a(nop(7))
    o += xlane_reduce([V_L + q for q in range(4)], "v_add_f32", TMP)
    for qb in range(4): a(trans(f"v_rcp_f32 v{V_L+qb}, v{V_L+qb}", [], []))
    a(nop(0))
    for db in range(16):
        for qb in range(4):
            o += conv_ops((db * 4 + qb) * 4, V_Q + (qb * 8 + (db >> 1)) * 4 + 2 * (db & 1), V_SP + 8 + 2 * (qb & 1))
    o += wo_setup()
    if OPT.fused: o += grp_setup() + [nop(1), mode_load()] + ring_scalars()
    for j in range(4):
        for sc, d in wo_dma(j): o += sc + [nop(0), d]
    a(wait_vm(0)); a(raw("s_branch L_p3_entry", "branch"))
    return o

def last_iter(carried):
    o = []; a = o.append
    for qb in (2, 3): o += exposed(sm_group(31, 1, qb))
    o += xlane_reduce([V_L + q for q in range(4)], "v_add_f32", V_SP)
    a(salu(f"s_mov_b32 s{S_T0}, 0x{f32bits(L_LIMIT):08x}"))
    for qb in range(4):
        a(valu(f"v_cmp_nge_f32 s[{50+2*(qb&1)}:{51+2*(qb&1)}], s{S_T0}, v{V_L+qb}", [f"v{V_L+qb}"], [f"s{50+2*(qb&1)}", f"s{51+2*(qb&1)}"]))
        if qb & 1:
            a(nop(0)); a(salu("s_or_b64 s[50:51], s[50:51], s[52:53]"))
            a(salu("s_mov_b64 s[54:55], s[50:51]") if qb == 1 else salu("s_or_b64 s[54:55], s[54:55], s[50:51]"))
    a(salu("s_cselect_b32 s50, 1, 0"))
    a(salu(f"s_lshl_b32 s51, s{S_W}, 2")); a(salu(f"s_add_u32 s51, s51, {L_VOTE}"))
    a(valu(f"v_mov_b32 v{V_SP}, s50", [], [f"v{V_SP}"])); a(valu(f"v_mov_b32 v{V_SP+1}, s51", [], [f"v{V_SP+1}"]))
    a(I(f"ds_write_b32 v{V_SP+1}, v{V_SP}", "ds", [f"v{V_SP}", f"v{V_SP+1}"], []))
    carried = carried + [[]]
    for qb in range(4): a(trans(f"v_rcp_f32 v{V_L+qb}, v{V_L+qb}", [f"v{V_L+qb}"], [f"v{V_L+qb}"]))
    a(nop(0))
    g = Gaps(pv_mfmas(31, False))
    for db in range(5, 8):
        for jj in range(2): g.put_mem(4 * (db - 5) + 2 * jj, v_read(31, db, jj))
    for db in range(8, 16):
        for jj in range(2): g.put_mem(12 + 4 * (db - 8) + 2 * jj, v_read(31, db, jj))
    cons = [(4 * db, R("v", V_POOL + 4 * (db % 8), 4)) for db in range(16)]
    lead = add_lgkm_waits(g, cons, carried)
    gp = put_wo(g, 2, 2, step=0)
    put_wo(g, 3, gp, step=0)
    left = []
    for db in range(16):
        for qb in range(4):
            ops = conv_ops((db * 4 + qb) * 4, V_Q + (qb * 8 + (db >> 1)) * 4 + 2 * (db & 1), V_SP + 8 + 2 * (qb & 1))
            if left: left += ops
            else:
                _, l2 = place_chain(g, ops, 4 * db + qb + 5, 64); left += l2
    a(lead); o += g.emit()
    a(nop(7)); o += left
    return o

WOBUF = [L_X, L_K, L_K + 32768, L_V, L_V + 32768, L_X, L_K]
V_DWO = 3; V_STO = V_DV
V_FR3 = 32; V_ACC3 = V_P; V_STG = 16
def wo_dma(j):
    out = []
    for i in range(8):
        sreg = S_T0 + (i & 1)
        out.append(([salu(f"s_mov_b32 s{sreg}, {j*128 + i*32*896}", [], [f"s{sreg}"]),
                     salu(f"s_add_u32 m0, s{S_W1K}, {WOBUF[j] + i*4096}", [f"s{S_W1K}"], ["m0"])],
                    tag(dma(V_DWO, S_WO, f"s{sreg}", 0, OPT.wo_flags), f"wo{j}")))
    return out
def wo_setup():
    o = []; a = o.append
    L = f"v{V_LANE}"
    a(valu(f"v_lshrrev_b32 v1, 3, {L}", [L], ["v1"])); a(valu(f"v_and_b32 v2, 7, {L}", [L], ["v2"]))
    a(valu(f"v_lshl_add_u32 v3, s{S_W}, 3, v1", ["v1", f"s{S_W}"], ["v3"]))
    a(valu("v_bfe_u32 v1, v1, 1, 2", ["v1"], ["v1"])); a(valu("v_lshlrev_b32 v1, 1, v1", ["v1"], ["v1"]))
    a(valu("v_xor_b32 v1, v1, v2", ["v1", "v2"], ["v1"])); a(valu("v_lshlrev_b32 v1, 4, v1", ["v1"], ["v1"]))
    a(valu("v_mul_u32_u24 v3, 896, v3", ["v3"], ["v3"]))
    a(valu(f"v_add_u32 v{V_DWO}, v3, v1", ["v3", "v1"], [f"v{V_DWO}"]))
    return o
V_WOT = 2
def wo_touch_setup():
    return [valu(f"v_lshl_add_u32 v{V_WOT}, s{S_W}, 6, v{V_LANE}", [f"v{V_LANE}"], [f"v{V_WOT}"]),
            valu(f"v_mul_u32_u24 v{V_WOT}, 896, v{V_WOT}", [f"v{V_WOT}"], [f"v{V_WOT}"])]
def wo_touch(j): return tag(bload(1, 1, V_WOT, S_WO, "0", j * 128, OPT.wt_flags), "wt")
def put_wo(g, j, start, hi=None, step=3):
    gp = start
    for sc, d in wo_dma(j): gp = place_vmem(g, gp, sc, d, hi) + step
    return gp
def va_shift(delta):
    t = (lambda r: f"v_add_u32 v{r}, {delta}, v{r}") if delta >= 0 else (lambda r: f"v_subrev_u32 v{r}, {-delta}, v{r}")
    return [valu(t(r), [f"v{r}"], [f"v{r}"]) for r in V_VA]

def part_ops(nb, qb):
    acc = V_ACC3 + 4 * ((nb * 4 + qb) % 8)
    st = V_STG + 4 * qb + 2 * (nb & 1)
    li = V_L + qb
    ops = [valu(f"v_mul_f32 v{acc+r}, v{acc+r}, v{li}", [f"v{acc+r}", f"v{li}"], [f"v{acc+r}"]) for r in range(4)]
    ops += [valu(f"v_cvt_pk_bf16_f32 v{st}, v{acc}, v{acc+1}", [f"v{acc}", f"v{acc+1}"], [f"v{st}"]),
            valu(f"v_cvt_pk_bf16_f32 v{st+1}, v{acc+2}, v{acc+3}", [f"v{acc+2}", f"v{acc+3}"], [f"v{st+1}"])]
    return ops

A_FR3 = 0; A_SEL = 224
V_POLLA, V_POLL, V_ONE, V_ZERO, V_RLD, V_OUT = 32, 33, 34, 35, 36, 37
V_RD = 40
V_GRP = V_ARR + 3
def wo_read(nb, s_, jj):
    return ds_read_tr("a", A_FR3 + 4 * (8 * (nb & 1) + s_) + 2 * jj, V_VA[nb], s_ * 4096 + jj * 2048)

V_GA = V_ARR + 2
def grp_setup():
    return [salu(f"s_lshl_b32 s{S_T0}, s{S_G}, 4"), valu(f"v_and_b32 v{V_GA}, 3, v{V_LANE}", [f"v{V_LANE}"], [f"v{V_GA}"]),
            valu(f"v_lshlrev_b32 v{V_GA}, 2, v{V_GA}", [f"v{V_GA}"], [f"v{V_GA}"]), valu(f"v_add_u32 v{V_GA}, s{S_T0}, v{V_GA}", [f"v{V_GA}"], [f"v{V_GA}"])]
V_GA3 = 38
def grp_load(dst, tg, ga=V_GA): return tag(bload(dst, 1, ga, S_DBG, "0", 0, "sc1"), tg)
def splat(x): return x * 0x01010101
def mode_load(): return grp_load(V_ARR, "grp")
def mode_check():
    o = []; a = o.append
    a(salu(f"s_or_b32 s{S_T0}, s{S_XCC}, 0x80")); a(salu(f"s_mul_i32 s50, s{S_T0}, 0x01010101"))
    a(wait_tag("grp"))
    a(valu(f"v_and_b32 v{V_ARR}, 0x87878787, v{V_ARR}", [f"v{V_ARR}"], [f"v{V_ARR}"]))
    a(valu(f"v_cmp_eq_u32 vcc, s50, v{V_ARR}", [f"v{V_ARR}"], ["vcc"])); a(nop(0))
    a(salu("s_cmp_eq_u64 vcc, -1"))
    a(salu(f"s_cselect_b64 s[{S_LOCM}:{S_LOCM+1}], -1, 0"))
    if OPT.force_fallback: a(salu("s_cmp_eq_u32 s50, 0"))
    a(raw("s_cbranch_scc0 L_grp_far", "branch")); a(label("L_grp_ok"))
    f = [label("L_grp_far"), salu(f"s_or_b32 s{S_T0}, s{S_XCC}, 0x80"), valu(f"v_mov_b32 v{V_ARR+1}, s{S_T0}", [], []),
         valu(f"v_mov_b32 v{V_ARR+3}, 0", [], []),
         raw(f"buffer_store_byte v{V_ARR+1}, v{V_ARR+3}, s[{S_DBG}:{S_DBG+3}], s{S_SIG} offen sc1", "salu"), wait_vm(0),
         salu(f"s_mov_b32 s{S_SPIN}, {SPIN_MAX}"), label("L_grp_again"),
         salu(f"s_sub_u32 s{S_SPIN}, s{S_SPIN}, 1"), salu(f"s_cmp_eq_u32 s{S_SPIN}, 0"), raw("s_cbranch_scc1 L_grp_ok", "branch")]
    if not OPT.force_fallback:
        f += [raw(f"buffer_load_dword v{V_ARR}, v{V_GA}, s[{S_DBG}:{S_DBG+3}], 0 offen sc1", "salu"), wait_vm(0),
              valu(f"v_and_b32 v{V_ARR}, 0x87878787, v{V_ARR}", [], []), valu(f"v_cmp_eq_u32 vcc, s50, v{V_ARR}", [], []), nop(0),
              salu("s_cmp_eq_u64 vcc, -1"), salu(f"s_cselect_b64 s[{S_LOCM}:{S_LOCM+1}], -1, 0"), raw("s_cbranch_scc1 L_grp_ok", "branch")]
    f += far_read(V_ARR)
    f += [valu(f"v_and_b32 v{V_ARR+1}, 0x80808080, v{V_ARR}", [], []), valu(f"v_cmp_eq_u32 vcc, 0x80808080, v{V_ARR+1}", [], []), nop(0),
          salu("s_and_b64 s[52:53], vcc, 15"), salu("s_cmp_eq_u64 s[52:53], 15"), raw("s_cbranch_scc0 L_grp_again", "branch"),
          valu(f"v_and_b32 v{V_ARR}, 0x87878787, v{V_ARR}", [], []), valu(f"v_cmp_eq_u32 vcc, s50, v{V_ARR}", [], []), nop(0),
          salu("s_and_b64 s[52:53], vcc, 15"), salu("s_cmp_eq_u64 s[52:53], 15"),
          salu(f"s_cselect_b64 s[{S_LOCM}:{S_LOCM+1}], -1, 0")]
    if OPT.force_fallback: f.append(salu(f"s_mov_b64 s[{S_LOCM}:{S_LOCM+1}], 0"))
    f.append(raw("s_branch L_grp_ok", "branch"))
    OOL.extend(f)
    return o
def far_read(dst, ga=V_GA):
    return [valu(f"v_mov_b32 v{dst}, 0", [], []), valu(f"v_cmp_gt_u32 vcc, 4, v{V_LANE}", [], []),
            raw("s_and_saveexec_b64 s[54:55], vcc", "salu"),
            raw(f"buffer_atomic_add v{dst}, v{ga}, s[{S_DBG}:{S_DBG+3}], 0 offen sc0 sc1", "salu"), wait_vm(0),
            raw("s_mov_b64 exec, s[54:55]", "salu")]

def p3_setup():
    L = f"v{V_LANE}"
    o = [valu(f"v_lshlrev_b32 v{V_STO}, 4, {L}", [L], [f"v{V_STO}"])]
    if OPT.fused:
        o += [valu(f"v_mov_b32 v{V_ZERO}, 0", [], [f"v{V_ZERO}"]), valu(f"v_mov_b32 v{V_GA3}, v{V_GA}", [f"v{V_GA}"], [f"v{V_GA3}"])]
    else: o += far_setup()
    return o

def far_setup():
    o = []; a = o.append
    L = f"v{V_LANE}"
    a(salu(f"s_mul_i32 s{S_PART}, s{S_G}, {7*16*16*2048}"))
    a(salu(f"s_lshl_b32 s{S_T2}, s{S_H}, 15")); a(salu(f"s_add_u32 s{S_RBASE}, s{S_PART}, s{S_T2}"))
    a(salu(f"s_lshl_b32 s{S_T2}, s{S_W}, 17")); a(salu(f"s_add_u32 s{S_PART}, s{S_PART}, s{S_T2}"))
    a(salu(f"s_lshl_b32 s{S_T2}, s{S_H}, 11")); a(salu(f"s_add_u32 s{S_PART}, s{S_PART}, s{S_T2}"))
    if not OPT.fused: return o
    a(salu(f"s_or_b32 s{S_T2}, s{S_XCC}, 0xf0")); a(valu(f"v_mov_b32 v{V_ONE}, s{S_T2}", [], [f"v{V_ONE}"]))
    a(valu(f"v_lshrrev_b32 v1, 5, {L}", [L], ["v1"])); a(valu("v_lshlrev_b32 v1, 11, v1", ["v1"], ["v1"]))
    a(valu(f"v_and_b32 v2, 31, {L}", [L], ["v2"])); a(valu(f"v_lshl_add_u32 v{V_RLD}, v2, 4, v1", ["v1", "v2"], [f"v{V_RLD}"]))
    a(salu(f"s_lshl_b32 s{S_T2}, s{S_W}, 9")); a(valu(f"v_add_u32 v{V_RLD}, s{S_T2}, v{V_RLD}", [f"v{V_RLD}"], [f"v{V_RLD}"]))
    a(valu(f"v_and_b32 v1, 15, {L}", [L], ["v1"])); a(valu(f"v_lshrrev_b32 v2, 4, {L}", [L], ["v2"]))
    a(valu("v_lshrrev_b32 v4, 3, v1", ["v1"], ["v4"])); a(valu("v_and_b32 v5, 1, v2", ["v2"], ["v5"]))
    a(valu("v_and_b32 v48, 1, v1", ["v1"], ["v48"])); a(valu("v_lshlrev_b32 v48, 4, v48", ["v48"], ["v48"]))
    a(valu("v_mov_b32 v49, 0x3f80", [], ["v49"])); a(valu("v_lshlrev_b32 v49, v48, v49", ["v48", "v49"], ["v49"]))
    a(valu("v_cmp_eq_u32 vcc, v4, v5", ["v4", "v5"], ["vcc"])); a(nop(1))
    a(valu("v_cndmask_b32 v49, 0, v49, vcc", ["v49", "vcc"], ["v49"]))
    a(valu("v_bfe_u32 v50, v1, 1, 2", ["v1"], ["v50"]))
    for r in range(4):
        a(valu(f"v_cmp_eq_u32 vcc, {r}, v50", ["v50"], ["vcc"])); a(nop(1))
        a(valu("v_cndmask_b32 v51, 0, v49, vcc", ["v49", "vcc"], ["v51"]))
        a(valu(f"v_accvgpr_write_b32 a{A_SEL+r}, v51", ["v51"], [f"a{A_SEL+r}"]))
    a(salu(f"s_lshl_b32 s{S_T2}, s{S_B}, 8")); a(salu(f"s_lshl_b32 s{S_T3}, s{S_H}, 4")); a(salu(f"s_add_u32 s{S_T2}, s{S_T2}, s{S_T3}"))
    a(valu(f"v_add_u32 v{V_OUT}, s{S_T2}, v1", ["v1"], [f"v{V_OUT}"])); a(valu(f"v_mul_u32_u24 v{V_OUT}, 896, v{V_OUT}", [f"v{V_OUT}"], [f"v{V_OUT}"]))
    a(salu(f"s_mul_i32 s{S_T2}, s{S_BR}, 448")); a(salu(f"s_lshr_b32 s{S_T3}, s{S_W}, 1")); a(salu(f"s_lshl_b32 s{S_T3}, s{S_T3}, 5"))
    a(salu(f"s_add_u32 s{S_T2}, s{S_T2}, s{S_T3}")); a(salu(f"s_and_b32 s{S_T3}, s{S_W}, 1")); a(salu(f"s_lshl_b32 s{S_T3}, s{S_T3}, 3"))
    a(salu(f"s_add_u32 s{S_T2}, s{S_T2}, s{S_T3}"))
    a(valu(f"v_add_u32 v{V_OUT}, s{S_T2}, v{V_OUT}", [f"v{V_OUT}"], [f"v{V_OUT}"]))
    a(valu(f"v_lshl_add_u32 v{V_OUT}, v5, 4, v{V_OUT}", ["v5", f"v{V_OUT}"], [f"v{V_OUT}"]))
    a(valu("v_lshrrev_b32 v4, 1, v2", ["v2"], ["v4"])); a(valu(f"v_lshl_add_u32 v{V_OUT}, v4, 2, v{V_OUT}", ["v4", f"v{V_OUT}"], [f"v{V_OUT}"]))
    a(valu(f"v_lshlrev_b32 v{V_OUT}, 1, v{V_OUT}", [f"v{V_OUT}"], [f"v{V_OUT}"]))
    return o

def handoff_far():
    o = [wait_vm(0), barrier(), raw("buffer_wbl2 sc1", "salu"), wait_vm(0), barrier(),
         raw(f"buffer_store_byte v{V_ONE}, v{V_ZERO}, s[{S_DBG}:{S_DBG+3}], s{S_SIG} offen sc1", "salu"), wait_vm(0),
         salu(f"s_mov_b32 s{S_SPIN}, {SPIN_MAX}"), label("L_far_poll"),
         salu(f"s_sub_u32 s{S_SPIN}, s{S_SPIN}, 1"), salu(f"s_cmp_eq_u32 s{S_SPIN}, 0"), raw("s_cbranch_scc1 L_far_done", "branch")]
    o += far_read(V_POLL, V_GA3)
    o += [valu(f"v_and_b32 v{V_POLL}, 0xf0f0f0f0, v{V_POLL}", [], []), valu(f"v_cmp_eq_u32 vcc, 0xf0f0f0f0, v{V_POLL}", [], []), nop(0),
          salu("s_and_b64 s[52:53], vcc, 15"), salu("s_cmp_eq_u64 s[52:53], 15"), raw("s_cbranch_scc0 L_far_poll", "branch"),
          label("L_far_done"), raw("buffer_inv sc1", "salu"), wait_vm(0)]
    return o

A_PIECE = 0; A_SEL2 = 224
def red_loads(j):
    out = []
    for i in range(8):
        sr = "s52" if i % 2 == 0 else "s53"
        out.append(([salu(f"s_add_u32 {sr}, s{S_RBASE}, {j*16*32768 + i*4096}", [f"s{S_RBASE}"], [sr])],
                    tag(bload_f("a", A_PIECE + 32 * j + 4 * i, 4, V_RLD, S_WS, sr, 0, "sc1"), f"rl{j}")))
    return out
def red_mfmas(j):
    d = V_RD + 4 * (j & 1)
    return [mfma("v", d, "a", A_SEL2, "a", A_PIECE + 32 * j + 4 * i, None if i == 0 else "v", None if i == 0 else d) for i in range(8)]
def red_out(j):
    d = V_RD + 4 * (j & 1)
    return [valu(f"v_cvt_pk_bf16_f32 v{d}, v{d}, v{d+1}", [f"v{d}", f"v{d+1}"], [f"v{d}"]),
            valu(f"v_cvt_pk_bf16_f32 v{d+1}, v{d+2}, v{d+3}", [f"v{d+2}", f"v{d+3}"], [f"v{d+1}"])], tag(bstore(d, 2, V_OUT, S_OUT, "0", j * 128), f"out{j}")

A_RING = 64; A_SEL4 = 96
V_RLD4, V_OUT4, V_FLA, V_FLAG1 = 48, 49, 50, 51
def ring_scalars():
    o = []; a = o.append
    a(salu(f"s_mul_i32 s50, s{S_G}, {OPT.ring * 262144}"))
    a(salu(f"s_lshl_b32 s51, s{S_W}, 16")); a(salu(f"s_add_u32 s{S_RST}, s50, s51"))
    a(salu(f"s_lshl_b32 s51, s{S_H}, 10")); a(salu(f"s_add_u32 s{S_RST}, s{S_RST}, s51"))
    a(salu(f"s_lshl_b32 s51, s{S_H}, 14")); a(salu(f"s_add_u32 s{S_RLD}, s50, s51"))
    a(salu(f"s_mul_i32 s50, s{S_G}, {14*64}"))
    a(salu(f"s_lshl_b32 s51, s{S_W}, 4"))
    a(salu(f"s_add_u32 s{S_FPW}, s50, s51")); a(salu(f"s_add_u32 s{S_FPW}, s{S_FPW}, s{S_H}"))
    a(salu(f"s_add_u32 s{S_FCR}, s50, s51")); a(salu(f"s_add_u32 s{S_FCR}, s{S_FCR}, {CONS_OFF}"))
    a(salu(f"s_lshr_b32 s51, s{S_H}, 2")); a(salu(f"s_lshl_b32 s51, s51, 4"))
    a(salu(f"s_add_u32 s{S_FPR}, s50, s51"))
    a(salu(f"s_lshl_b32 s51, s{S_H}, 2")); a(salu(f"s_add_u32 s{S_FCW}, s50, s51"))
    a(salu(f"s_add_u32 s{S_FCW}, s{S_FCW}, s{S_W}")); a(salu(f"s_add_u32 s{S_FCW}, s{S_FCW}, {CONS_OFF}"))
    return o
def ring_setup():
    o = []; a = o.append
    L = f"v{V_LANE}"
    a(valu(f"v_and_b32 v{V_FLA}, 3, {L}", [L], [f"v{V_FLA}"])); a(valu(f"v_lshlrev_b32 v{V_FLA}, 2, v{V_FLA}", [f"v{V_FLA}"], [f"v{V_FLA}"]))
    a(valu(f"v_mov_b32 v{V_FLAG1}, 1", [], [f"v{V_FLAG1}"]))
    a(valu(f"v_and_b32 v1, 15, {L}", [L], ["v1"])); a(valu(f"v_lshrrev_b32 v2, 4, {L}", [L], ["v2"]))
    a(valu(f"v_lshlrev_b32 v{V_RLD4}, 10, v2", ["v2"], [f"v{V_RLD4}"])); a(valu(f"v_lshl_add_u32 v{V_RLD4}, v1, 4, v{V_RLD4}", ["v1", f"v{V_RLD4}"], [f"v{V_RLD4}"]))
    a(salu(f"s_lshl_b32 s{S_T1}, s{S_W}, 8")); a(valu(f"v_add_u32 v{V_RLD4}, s{S_T1}, v{V_RLD4}", [f"v{V_RLD4}"], [f"v{V_RLD4}"]))
    a(valu("v_and_b32 v4, 1, v1", ["v1"], ["v4"])); a(valu("v_lshlrev_b32 v4, 4, v4", ["v4"], ["v4"]))
    a(valu("v_mov_b32 v5, 0x3f80", [], ["v5"])); a(valu("v_lshlrev_b32 v5, v4, v5", ["v4", "v5"], ["v5"]))
    a(valu("v_lshrrev_b32 v4, 1, v1", ["v1"], ["v4"]))
    for r in range(4):
        a(valu(f"v_cmp_eq_u32 vcc, {r}, v4", ["v4"], ["vcc"])); a(nop(1))
        a(valu("v_cndmask_b32 v52, 0, v5, vcc", ["v5", "vcc"], ["v52"]))
        a(valu(f"v_accvgpr_write_b32 a{A_SEL4+r}, v52", ["v52"], [f"a{A_SEL4+r}"]))
    a(salu(f"s_lshl_b32 s{S_T0}, s{S_B}, 8")); a(salu(f"s_lshl_b32 s{S_T1}, s{S_H}, 4")); a(salu(f"s_add_u32 s{S_T0}, s{S_T0}, s{S_T1}"))
    a(valu(f"v_add_u32 v{V_OUT4}, s{S_T0}, v1", ["v1"], [f"v{V_OUT4}"])); a(valu(f"v_mul_u32_u24 v{V_OUT4}, 896, v{V_OUT4}", [f"v{V_OUT4}"], [f"v{V_OUT4}"]))
    a(salu(f"s_mul_i32 s{S_T0}, s{S_BR}, 448")); a(salu(f"s_lshl_b32 s{S_T1}, s{S_W}, 2")); a(salu(f"s_add_u32 s{S_T0}, s{S_T0}, s{S_T1}"))
    a(valu(f"v_add_u32 v{V_OUT4}, s{S_T0}, v{V_OUT4}", [f"v{V_OUT4}"], [f"v{V_OUT4}"]))
    a(valu(f"v_lshl_add_u32 v{V_OUT4}, v2, 4, v{V_OUT4}", ["v2", f"v{V_OUT4}"], [f"v{V_OUT4}"]))
    a(valu(f"v_lshlrev_b32 v{V_OUT4}, 1, v{V_OUT4}", [f"v{V_OUT4}"], [f"v{V_OUT4}"]))
    a(valu("v_cmp_gt_u32 vcc, 2, v2", ["v2"], ["vcc"])); a(salu(f"s_mov_b32 s{S_T0}, 0x7ff00000")); a(valu(f"v_mov_b32 v4, s{S_T0}", [], ["v4"]))
    a(valu(f"v_cndmask_b32 v{V_OUT4}, v4, v{V_OUT4}, vcc", ["v4", f"v{V_OUT4}", "vcc"], [f"v{V_OUT4}"]))
    return o

def flag_store(base, u, tg):
    return [salu(f"s_add_u32 s55, s{base}, {u*64}", [f"s{base}"], ["s55"])], \
           tag(I(f"buffer_store_byte v{V_FLAG1}, v{V_ZERO}, s[{S_FL}:{S_FL+3}], s55 offen", "vst", [f"v{V_FLAG1}", f"v{V_ZERO}", "s55"], data=[]), tg)
def flag_poll(base, u, dst, tg):
    return [salu(f"s_add_u32 s54, s{base}, {u*64}", [f"s{base}"], ["s54"])], tag(bload(dst, 1, V_FLA, S_FL, "s54", 0, "sc1"), tg)
def flag_check(base, u, dst, tg, name):
    OOL.extend([label(f"L_{name}_spin"), salu(f"s_add_u32 s54, s{base}, {u*64}"), salu(f"s_mov_b32 s{S_SPIN}, {SPIN_MAX}"),
                label(f"L_{name}_again"),
                salu(f"s_sub_u32 s{S_SPIN}, s{S_SPIN}, 1"), salu(f"s_cmp_eq_u32 s{S_SPIN}, 0"), raw(f"s_cbranch_scc1 L_{name}_ok", "branch"),
                raw(f"buffer_load_dword v{dst}, v{V_FLA}, s[{S_FL}:{S_FL+3}], s54 offen sc1", "salu"), wait_vm(0),
                valu(f"v_cmp_ne_u32 vcc, 0x01010101, v{dst}", [], []), nop(0),
                raw(f"s_cbranch_vccnz L_{name}_again", "branch"), raw(f"s_branch L_{name}_ok", "branch")])
    dd = (lambda n: stamp("d_" + n)) if name in (f"prod{OPT.p3detail}", f"cons{OPT.p3detail}") else (lambda n: [])
    return dd(name[:4] + "A") + [wait_tag(tg)] + dd(name[:4] + "B") + [valu(f"v_cmp_ne_u32 vcc, 0x01010101, v{dst}", [f"v{dst}"], ["vcc"]), nop(0),
            raw(f"s_cbranch_vccnz L_{name}_spin", "branch"), label(f"L_{name}_ok")] + dd(name[:4] + "C")
V_PP, V_PC = 53, 54
def ring_loads(u):
    out = []
    for i in range(4):
        sr = "s52" if i % 2 == 0 else "s53"
        out.append(([salu(f"s_add_u32 {sr}, s{S_RLD}, {(u % OPT.ring)*262144 + i*4096}", [f"s{S_RLD}"], [sr])],
                    tag(bload_f("a", A_RING + 16 * (u & 1) + 4 * i, 4, V_RLD4, S_RG, sr, 0, "sc1"), f"rl{u}")))
    return out
def ring_mfmas(u):
    d = V_RD + 4 * (u & 1)
    return [mfma("v", d, "a", A_SEL4, "a", A_RING + 16 * (u & 1) + 4 * i, None if i == 0 else "v", None if i == 0 else d) for i in range(4)]
def ring_out(u):
    d = V_RD + 4 * (u & 1)
    return [valu(f"v_cvt_pk_bf16_f32 v{d}, v{d}, v{d+1}", [f"v{d}", f"v{d+1}"], [f"v{d}"]),
            valu(f"v_cvt_pk_bf16_f32 v{d+1}, v{d+2}, v{d+3}", [f"v{d+2}", f"v{d+3}"], [f"v{d+1}"])], tag(bstore(d, 2, V_OUT4, S_OUT, "0", u * 64, OPT.out_flags), f"out{u}")

def p3_stream(local, carried):
    o = []; a = o.append
    NS, D = OPT.ring, OPT.prod_delay
    Q = lambda u: 8 * u + 7
    ins = {}
    if local:
        for u in range(14):
            m = 8 * (Q(u) + 22 + D) - 1
            if m < 895: ins[m] = u
    ms = []; pos = {}; redpos = {}
    for m in range(896):
        j, i = m >> 7, m & 127
        nb, qb, s_ = i >> 5, (i >> 3) & 3, i & 7
        acc = V_ACC3 + 4 * ((nb * 4 + qb) % 8)
        pos[m] = len(ms)
        ms.append(mfma("v", acc, "a", A_FR3 + 4 * (8 * (nb & 1) + s_), "v", V_Q + (qb * 8 + s_) * 4,
                       None if s_ == 0 else "v", None if s_ == 0 else acc))
        if m in ins:
            u = ins[m]; redpos[u] = len(ms); ms += ring_mfmas(u)
    g = Gaps(ms); N = g.n
    P = lambda j, i: pos[128 * j + i]
    def G(period, off):
        m = 8 * period + off
        return pos[m] if 0 <= m < 896 else None
    for j in range(7):
        for nb in range(4):
            jn, nbn = (j, nb + 1) if nb < 3 else (j + 1, 0)
            if jn > 6: continue
            for s_ in range(8):
                for jj in range(2): g.put_mem(P(j, 32 * nb + 4 * s_ + 2 * jj), wo_read(nbn, s_, jj))
    cons = []
    for j in range(7):
        for nb in range(4):
            for s_ in (0, 2, 4, 6): cons.append((P(j, 32 * nb + s_), R("a", A_FR3 + 4 * (8 * (nb & 1) + s_), 8)))
    cons.sort()
    lead = add_lgkm_waits(g, cons, carried)
    def put_vm(k, sc, d):
        assert g.mem[k] is None and not g.post[k], (k, d.text)
        for n, x in enumerate(reversed(sc)):
            kk = k - 1 - n
            assert not (g.mem[kk] is not None and g.mem[kk].kind == "dma" and "m0" in x.wr)
            g.pre[kk].append(x)
        g.mem[k] = d
    def put_seq(k, seq):
        assert g.mem[k] is None and not g.post[k], k
        g.post[k] = seq
    for j in range(6):
        k = P(j, 91)
        g.pre[k] += [wait_tag(f"wo{j+1}"), barrier()]
        sh = va_shift(WOBUF[j + 1] - WOBUF[j])
        for n, at in ((0, 85), (1, 61), (2, 69), (3, 101)):
            kk = P(j, at); g.vec[kk].append(sh[n])
    for j in (2, 3):
        items = wo_dma(j + 3)
        for n, (sc, d) in enumerate(items):
            u0 = 2 * j + (n >> 2)
            per, off = [(Q(u0) - 4, 7), (Q(u0) - 3, 3), (Q(u0) - 3, 7), (Q(u0) - 2, 7)][n & 3]
            put_vm(G(per, off), sc, d)
    stores = {}; sgap = {}
    for u in range(14):
        j, nb = u >> 1, 2 * (u & 1) + 1
        for qb in range(4):
            sreg = S_T2 + (qb & 1)
            if local:
                st = ([salu(f"s_add_u32 s{sreg}, s{S_RST}, {(u % NS)*262144 + qb*16384}", [f"s{S_RST}"], [f"s{sreg}"])],
                      tag(bstore(V_STG + 4 * qb, 4, V_STO, S_RG, f"s{sreg}", 0, OPT.last_st if u >= 14 - NS else ""), f"st{u}"))
            else:
                so = j * 16 * 16 * 2048 + qb * 16 * 2048 + (nb >> 1) * 1024
                st = ([salu(f"s_add_u32 s{sreg}, s{S_PART}, {so}", [f"s{S_PART}"], [f"s{sreg}"])],
                      tag(bstore(V_STG + 4 * qb, 4, V_STO, S_WS, f"s{sreg}", 0), f"st{u}"))
            stores[(u, qb)] = st
            k = G(Q(u) + qb, 3)
            sgap[(u, qb)] = k
            if k is not None: put_vm(k, *st)
    done = {}; out_left = []
    if local:
        for u in range(14):
            dd = (lambda n: stamp("d_" + n)) if u == OPT.p3detail else (lambda n: [])
            if u >= NS:
                kp, kc = G(Q(u) - 4, 3), G(Q(u) - 1, 3)
                put_vm(kp, *flag_poll(S_FCR, u - NS, V_PC, f"pc{u}"))
                put_seq(kc, flag_check(S_FCR, u - NS, V_PC, f"pc{u}", f"cons{u}"))
            done[u] = "sig"
            k = G(Q(u) + 7, 5)
            if k is None or sgap[(u, 3)] is None: continue
            sc, d = flag_store(S_FPW, u, f"sig{u}")
            g.pre[k - 1] += dd("sigA") + [wait_tag(f"st{u}")] + dd("sigB"); put_vm(k, sc, d)
            done[u] = "poll"
            k = G(Q(u) + 12 + D, 5)
            if k is None: continue
            put_vm(k, *flag_poll(S_FPR, u, V_PP, f"pp{u}"))
            done[u] = "check"
            k = G(Q(u) + 15 + D, 7)
            if k is None: continue
            put_seq(k, flag_check(S_FPR, u, V_PP, f"pp{u}", f"prod{u}"))
            done[u] = "loads"
            if u not in redpos: continue
            for n, (sc, d) in enumerate(ring_loads(u)): put_vm(G(Q(u) + 16 + D + n, 7), sc, d)
            g.pre[redpos[u] - 1] += dd("rlA") + [wait_tag(f"rl{u}")] + dd("rlB")
            if u <= 13 - NS: put_vm(G(Q(u) + 22 + D, 3), *flag_store(S_FCW, u, f"csig{u}"))
            done[u] = "out"
            cv, st = ring_out(u)
            if u + 1 in redpos:
                g.vec[redpos[u + 1]] += cv
                put_vm(G(Q(u) + 30 + D, 5), [], st)
                done[u] = "all"
    tail_main = []
    for p in range(112):
        j, nb, qb = p >> 4, (p >> 2) & 3, p & 3
        ops = part_ops(nb, qb)
        slots = [G(p + 2, 0), G(p + 2, 1), G(p + 2, 1), G(p + 2, 2), G(p + 2, 4), G(p + 2, 6)]
        if slots[0] is None:
            tail_main += ops
        else:
            for x, k in zip(ops, slots): g.vec[k].append(x)
        if nb & 1:
            u = 2 * j + (nb >> 1)
            if sgap[(u, qb)] is None: tail_main += stores[(u, qb)][0] + [nop(1), stores[(u, qb)][1]]
    if OPT.p3_tiles and local:
        for j in range(1, 7): g.pre[P(j, 0)] = stamp(f"tile{j}") + g.pre[P(j, 0)]
    if lead is not None: a(lead)
    em = g.emit()
    if "allst" in OPT.p3_drop: em = [x for x in em if x.kind != "vst"]
    if "pst" in OPT.p3_drop: em = [x for x in em if not (x.kind == "vst" and x.meta.get("tag", "").startswith("st"))]
    if "nospin" in OPT.p3_drop: em = [x for x in em if not (x.kind == "branch" and "vccnz" in x.text)]
    if "novm" in OPT.p3_drop: em = [x for x in em if not (x.kind == "wait" and "vmtags" in x.meta and not x.meta["vmtags"][0].startswith("wo"))]
    if "nold" in OPT.p3_drop: em = [x for x in em if not (x.kind == "vld" and x.meta.get("tag", "").startswith("rl"))]
    o += stamp("p3_stream_start") if (local or not OPT.fused) else []
    o += em
    if local or not OPT.fused: o += stamp("p3_mfma_end")
    a(nop(7)); o += exposed(tail_main)
    if local:
        todo = [u for u in range(14) if done[u] != "all"]
        for u in todo:
            if done[u] == "sig":
                sc, d = flag_store(S_FPW, u, f"sig{u}"); o += [wait_tag(f"st{u}")] + sc + [d]
        o += stamp("x_last_signal")
        if OPT.early_wb:
            o += [salu(f"s_or_b32 s{S_T0}, s{S_H}, s{S_W}"), salu(f"s_cmp_lg_u32 s{S_T0}, {0 if OPT.early_wb == 1 else 0}"),
                  raw("s_cbranch_scc1 L_no_wb", "branch"), raw("buffer_wbl2 sc1", "salu"), label("L_no_wb")]
        for u in todo:
            if done[u] != "out":
                if done[u] in ("sig", "poll"):
                    sc, d = flag_poll(S_FPR, u, V_PP, f"pp{u}"); o += sc + [d]
                if done[u] in ("sig", "poll", "check"): o += flag_check(S_FPR, u, V_PP, f"pp{u}", f"prod{u}")
                for sc, d in ring_loads(u): o += sc + [d]
                o.append(wait_tag(f"rl{u}"))
                o += ring_mfmas(u); a(nop(7))
            cv, st = ring_out(u); o += cv + [st]
    return o

def phase3():
    o = []; a = o.append
    a(label("L_p3_entry"))
    a(wait_tag("wt", "wo0")); a(raw("s_waitcnt lgkmcnt(0)", "wait", lgkm=0)); a(barrier())
    a(valu(f"v_mov_b32 v1, {L_VOTE}", [], ["v1"]))
    a(ds_read128("v", V_SP, 1, 0)); a(wait_lgkm(0))
    a(valu(f"v_or3_b32 v{V_SP}, v{V_SP}, v{V_SP+1}, v{V_SP+2}", R("v", V_SP, 3), [f"v{V_SP}"]))
    a(valu(f"v_or_b32 v{V_SP}, v{V_SP}, v{V_SP+3}", [f"v{V_SP}", f"v{V_SP+3}"], [f"v{V_SP}"])); a(nop(0))
    a(valu(f"v_readfirstlane_b32 s50, v{V_SP}", [f"v{V_SP}"], ["s50"])); a(nop(3))
    a(salu(f"s_cmp_eq_u32 s{S_SAFE}, 0")); a(salu("s_cselect_b32 s50, s50, 0"))
    a(salu("s_cmp_lg_u32 s50, 0")); a(raw("s_cbranch_scc1 L_restart", "branch"))
    OOL.extend([label("L_restart"), wait_vm(0), raw("s_waitcnt lgkmcnt(0)", "wait", lgkm=0), barrier(),
                salu(f"s_mov_b32 s{S_SAFE}, 1"), raw("s_branch L_again", "branch")])
    o += p3_setup()
    if OPT.fused: o += ring_setup()
    o += va_shift(WOBUF[0] - L_V)
    if OPT.fused: o += mode_check()
    carried = []
    for s_ in range(8):
        for jj in range(2):
            r = wo_read(0, s_, jj); a(r); carried.append(r.wr)
            if len(carried) == 14: a(wait_lgkm(6)); carried = carried[-6:]
    a(barrier())
    for sc, d in wo_dma(4): o += sc + [nop(0), d]
    if not OPT.fused:
        return o, p3_stream(False, carried) + stamp("p3_end") + ([wait_vm(0)] if OPT.stamps else []) + stamp("rt_end"), []
    o += [salu(f"s_cmp_eq_u32 s{S_LOCM}, 0"), raw("s_cbranch_scc1 L_p3_far", "branch")]
    loc = p3_stream(True, carried)
    loc += stamp("p3_end") + ([wait_vm(0)] if OPT.stamps else []) + stamp("rt_end")
    far = [label("L_p3_far")] + far_setup() + p3_stream(False, carried) + handoff_far()
    for j in range(7):
        for sc, d in red_loads(j): far += sc + [d]
    for j in range(7):
        far.append(wait_tag(f"rl{j}"))
        far += red_mfmas(j)
        if j > 0:
            cv, stt = red_out(j - 1); far += cv + [stt]
    far.append(nop(7))
    cv, stt = red_out(6); far += cv + [stt]
    far += [wait_vm(0), raw("s_endpgm", "branch")]
    return o, loc, far

def dump_regs(base, n, agpr=False):
    o = [wait_vm(0), raw("s_waitcnt lgkmcnt(0)", "wait", lgkm=0), nop(7), nop(7),
         salu(f"s_lshl_b32 s{S_T0}, s2, 2"), salu(f"s_add_u32 s{S_T0}, s{S_T0}, s{S_W}"),
         salu(f"s_mul_i32 s{S_T0}, s{S_T0}, {n*256}"), valu(f"v_lshlrev_b32 v1, 2, v{V_LANE}", [f"v{V_LANE}"], ["v1"])]
    for r in range(n):
        if agpr:
            o.append(valu(f"v_accvgpr_read_b32 v2, a{base+r}", [f"a{base+r}"], ["v2"])); o.append(bstore(2, 1, 1, S_WS, f"s{S_T0}", 0))
        else:
            o.append(bstore(base + r, 1, 1, S_WS, f"s{S_T0}", 0))
        o.append(salu(f"s_add_u32 s{S_T0}, s{S_T0}, 256"))
        if r % 32 == 31 or agpr: o.append(wait_vm(0))
    return o

def stamp_out():
    if not OPT.stamps: return []
    if OPT.dma_stamps: STAMPS[:] = [f"dma{i}" for i in range(10)] + ["loopcyc"]
    if OPT.bar_stamps: STAMPS.extend(["acc_vm", "acc_bar"])
    n = len(STAMPS)
    o = [raw("s_waitcnt lgkmcnt(0)", "wait", lgkm=0), salu(f"s_cmp_lg_u32 s{S_W}, 0"), raw("s_cbranch_scc1 L_nostamp", "branch")]
    if OPT.stamp_dbg >= 0:
        o += [salu(f"s_cmp_lg_u32 s2, {OPT.stamp_dbg}"), raw("s_cbranch_scc1 L_nostamp", "branch")]
        o += [salu("s_load_dwordx2 s[36:37], s[0:1], 88"), raw("s_waitcnt lgkmcnt(0)", "wait", lgkm=0)]
        o += [salu(f"s_mov_b32 s{S_WS}, s36"), salu(f"s_mov_b32 s{S_WS+1}, s37"), salu(f"s_mov_b32 s{S_WS+2}, 256"), salu(f"s_mov_b32 s{S_T0}, 0")]
    else:
        o.append(salu(f"s_mul_i32 s{S_T0}, s2, 64")); o.append(salu(f"s_add_u32 s{S_T0}, s{S_T0}, {STAMP_OFF}"))
        o.append(salu(f"s_mov_b32 s{S_WS+2}, {STAMP_OFF + 256*64}"))
    o.append(valu("v_mov_b32 v1, 0", [], ["v1"]))
    for k in range(n):
        if OPT.stamp_dbg >= 0:
            ref = 0 if STAMPS[k].startswith("rt") else 1
            o.append(salu(f"s_sub_u32 s{S_T1}, s{S_STAMP+2*k}, s{S_STAMP+2*ref}"))
            o.append(valu(f"v_mov_b32 v2, s{S_T1}", [], ["v2"]))
        elif STAMPS[k] == "loopcyc": o.append(valu("v_mov_b32 v2, s100", [], ["v2"]))
        elif STAMPS[k] == "acc_vm": o.append(valu("v_mov_b32 v2, s92", [], ["v2"]))
        elif STAMPS[k] == "acc_bar": o.append(valu("v_mov_b32 v2, s93", [], ["v2"]))
        else:
            o.append(valu(f"v_mov_b32 v2, s{S_STAMP+2*k}", [], ["v2"]))
        o.append(bstore(2, 1, 1, S_WS, f"s{S_T0}", 4 * k)); o.append(wait_vm(0))
    o.append(label("L_nostamp"))
    return o

def finish(): return [wait_vm(0), label("L_end"), raw("s_endpgm", "branch")]

def build(debug=None):
    _stamp_n[0] = 0; STAMPS.clear(); OOL.clear()
    pre = setup() + phase1()
    if debug == "p1":
        pre += stamp("rt_end")
        resolve_vm(pre, [])
        return pre + stamp_out() + finish()
    if debug == "q":
        resolve_vm(pre, []); check(pre, "pre")
        return pre + dump_regs(V_Q, 128) + finish()
    if OPT.dma_mode == "cluster":
        OPT.dma_gaps = ([21, 23, 25, 27], [101, 103, 105, 107]); OPT.nv_prev = 0
    elif OPT.dma_mode == "cluster2":
        OPT.dma_gaps = ([41, 43, 47, 49], [101, 103, 105, 107]); OPT.nv_prev = 0
    NCUR = len(OPT.dma_gaps[1])
    pre += [salu(f"s_cmp_lg_u32 s{S_SAFE}, 0"), raw("s_cbranch_scc1 L_safe_attn", "branch")]
    p, carried = pre_iter(); pre += p
    def batch(t):
        return dma_tile("V", vslot(t + 3), f"s{S_VOFF}", f"V{t+3}") + dma_tile("K", kslot(t + 5), f"s{S_KOFF}", f"K{t+5}")
    pre += wo_setup()
    if OPT.fused: pre += grp_setup()
    def ex0(g, kb):
        put_wo(g, 0, 3, kb, step=8)
    vf0 = OPT.vfirst
    if OPT.early_trips: OPT.vfirst = OPT.vfirst_early
    s0, carried = attn_iter(0, carried, wait_tag("V1", "K2"), [], batch(0)[:NCUR], first=True, adv=False, extra=ex0)
    OPT.vfirst = vf0
    pre += s0
    pre.append(salu(f"s_mov_b32 s{S_LOOP}, 7"))
    if OPT.bar_stamps: pre += [salu("s_mov_b32 s92, 0"), salu("s_mov_b32 s93, 0")]
    pre += stamp("loop_start") + (stamp("rt_ls") if (OPT.bar_stamps or OPT.trip_stamps) else [])
    def loop_body(name):
        nonlocal carried
        lp = [label(name)]
        for u in range(4):
            t = 1 + u
            s, carried = attn_iter(t, carried, wait_vm(12), batch(t - 1)[NCUR:], batch(t)[:NCUR], loopctl=(u == 3), loop_body=True)
            if OPT.dma_stamps and u == 1:
                s2 = []; n = 0
                for x in s:
                    if x.kind == "dma" and n < 5:
                        s2 += [raw(f"s_memtime s[{80+4*n}:{81+4*n}]", "salu"), x, raw(f"s_memtime s[{82+4*n}:{83+4*n}]", "salu")]; n += 1
                    else: s2.append(x)
                s = s2
            lp += s
        return lp
    first_loop = []
    if OPT.early_trips:
        vf = OPT.vfirst; OPT.vfirst = OPT.vfirst_early
        OPT.loop_exit = 7 - OPT.early_trips
        first_loop = loop_body("L_attn_early") + [raw("s_cbranch_scc1 L_attn_early", "branch")]
        OPT.vfirst = vf; OPT.loop_exit = 0
    loop = loop_body("L_attn")
    if OPT.trip_stamps:
        loop += [raw("s_memtime s[98:99]", "salu"), raw("s_memrealtime s[100:101]", "salu"), raw("s_waitcnt lgkmcnt(0)", "wait", lgkm=0),
                 salu(f"s_mov_b32 s99, m0"), salu(f"s_mov_b32 m0, s{S_LOOP}"), nop(0), valu(f"v_writelane_b32 v1, s98, m0", ["s98"], ["v1"]),
                 salu(f"s_add_u32 m0, s{S_LOOP}, 8"), nop(0), valu(f"v_writelane_b32 v1, s100, m0", ["s100"], ["v1"]),
                 salu("s_mov_b32 m0, s99"), salu(f"s_cmp_lg_u32 s{S_LOOP}, 0")]
    if OPT.loop_nodma: loop = [x for x in loop if x.kind != "dma"]
    if OPT.loop_nods: loop = [x for x in loop if x.kind != "ds" and not (x.kind == "wait" and "lgkm" in x.meta and x.meta["lgkm"] > 0)]
    if OPT.loop_nomfma: loop = [(nop(1) if x.kind == "mfma" else x) for x in loop]
    if OPT.loop_novalu: loop = [x for x in loop if x.kind not in ("valu", "trans")]
    if OPT.loop_dma_every > 1:
        cnt = [0]
        def keep(x):
            if x.kind != "dma": return True
            cnt[0] += 1
            return cnt[0] % OPT.loop_dma_every == 0
        loop = [x for x in loop if keep(x)]
    loop.append(raw("s_cbranch_scc1 L_attn", "branch"))
    post = stamp("loop_end") + (stamp("rt_le") if OPT.bar_stamps else [])
    if OPT.trip_stamps:
        post += [valu(f"v_lshlrev_b32 v2, 2, v{V_LANE}", [], ["v2"]), salu(f"s_mul_i32 s{S_T1}, s2, 64"),
                 salu(f"s_add_u32 s{S_T1}, s{S_T1}, {STAMP_OFF + 256*64}"), salu(f"s_mov_b32 s{S_WS+2}, {STAMP_OFF + 2*256*64}"),
                 valu("v_cmp_gt_u32 vcc, 16, v0", ["v0"], ["vcc"]), salu(f"s_cmp_eq_u32 s{S_W}, 0"), raw("s_cselect_b64 s[50:51], vcc, 0", "salu"),
                 raw("s_mov_b64 s[54:55], exec", "salu"), raw("s_mov_b64 exec, s[50:51]", "salu"), raw("s_cbranch_execz L_notrip", "branch"),
                 raw(f"buffer_store_dword v1, v2, s[{S_WS}:{S_WS+3}], s{S_T1} offen", "salu"), wait_vm(0), label("L_notrip"), raw("s_mov_b64 exec, s[54:55]", "salu"), wait_vm(0)]
    def ex29(g, kb):
        if OPT.fused: place_vmem(g, 40, [], mode_load(), kb)
        gp = 50
        for j in OPT.wo_touch: gp = place_vmem(g, gp, [], wo_touch(j), kb) + 12
    post += wo_touch_setup()
    s, carried = attn_iter(29, carried, wait_tag("V30", "K32"), batch(28)[NCUR:4], [], adv=False,
                           extra=ex29)
    post += s
    def ex30(g, kb):
        put_wo(g, 1, 3, kb, step=8)
        if OPT.fused:
            k = 2
            for x in ring_scalars(): k = put_scalar(g, k, x) + 1
    s, carried = attn_iter(30, carried, wait_tag("V31"), [], [], adv=False, extra=ex30)
    post += s
    post += last_iter(carried)
    post += stamp("attn_end")
    if debug == "o":
        tailq = dump_regs(V_Q, 128)
    elif debug == "l":
        tailq = dump_regs(V_L, 4)
    else:
        common, loc, far = phase3()
        tailq = common
    post += tailq
    q = resolve_vm(pre, [])
    qexit = ["V30"] * 4 + ["K32"] * 4 + ["V31"] * NCUR
    qb_ = resolve_vm(post, qexit)
    if debug is None:
        resolve_vm(loc, qb_); resolve_vm(far, qb_)
        if far and not OPT.p3_drop: check(loop[1:] + post + far[1:], "loop+post+far", init_lgkm=[x.wr for x in pre if x.kind == "ds"][-8:], init_vm=[[]] * (8 + NCUR))
        post = post + loc
        OOL.extend(far)
    if not (OPT.p1_nowait or OPT.p1_noread or OPT.p1_drop or OPT.loop_nodma or OPT.loop_dma_every > 1 or OPT.loop_nods or OPT.loop_nomfma or OPT.loop_novalu): check(pre + loop[1:] + loop[1:], "pre+loop")
    if not (OPT.p3_drop or OPT.loop_nodma or OPT.loop_dma_every > 1 or OPT.loop_nods or OPT.loop_nomfma or OPT.loop_novalu): check(loop[1:] + post, "loop+post", init_lgkm=[x.wr for x in pre if x.kind == "ds"][-8:], init_vm=[[]] * (8 + NCUR))
    OOL.extend(safe_attn())
    if first_loop: check(pre + first_loop[1:] + first_loop[1:] + loop[1:], "pre+early+loop")
    return pre + first_loop + loop + post + stamp_out() + finish() + OOL

def reduce_kernel():
    o = []; a = o.append
    a(salu("s_cmp_ge_u32 s2, 256")); a(raw("s_cbranch_scc1 R_end", "branch"))
    a(salu("s_load_dwordx2 s[4:5], s[0:1], 80")); a(salu("s_load_dwordx2 s[6:7], s[0:1], 96"))
    a(valu("v_lshrrev_b32 v1, 6, v0", ["v0"], ["v1"])); a(valu("v_and_b32 v0, 63, v0", ["v0"], ["v0"]))
    a(valu("v_readfirstlane_b32 s32, v1", ["v1"], ["s32"]))
    a(salu("s_lshr_b32 s33, s2, 4")); a(salu("s_and_b32 s34, s2, 15"))
    a(salu("s_lshr_b32 s35, s33, 3")); a(salu("s_and_b32 s36, s33, 7"))
    a(salu("s_lshr_b32 s37, s32, 1")); a(salu("s_and_b32 s38, s32, 1"))
    a(valu("v_lshrrev_b32 v2, 5, v0", ["v0"], ["v2"])); a(valu("v_lshlrev_b32 v2, 11, v2", ["v2"], ["v2"]))
    a(valu("v_and_b32 v3, 31, v0", ["v0"], ["v3"])); a(valu("v_lshl_add_u32 v2, v3, 4, v2", ["v3", "v2"], ["v2"]))
    a(salu("s_lshl_b32 s39, s37, 10")); a(salu("s_lshl_b32 s40, s38, 9")); a(salu("s_add_u32 s39, s39, s40"))
    a(valu("v_add_u32 v2, s39, v2", ["v2"], ["v2"]))
    a(valu("v_and_b32 v8, 15, v0", ["v0"], ["v8"])); a(valu("v_lshrrev_b32 v9, 4, v0", ["v0"], ["v9"]))
    a(valu("v_lshrrev_b32 v10, 3, v8", ["v8"], ["v10"])); a(valu("v_and_b32 v11, 1, v9", ["v9"], ["v11"]))
    a(valu("v_and_b32 v12, 1, v8", ["v8"], ["v12"])); a(valu("v_lshlrev_b32 v12, 4, v12", ["v12"], ["v12"]))
    a(valu("v_mov_b32 v13, 0x3f80", [], ["v13"])); a(valu("v_lshlrev_b32 v13, v12, v13", ["v12", "v13"], ["v13"]))
    a(valu("v_cmp_eq_u32 vcc, v10, v11", ["v10", "v11"], ["vcc"])); a(nop(1))
    a(valu("v_cndmask_b32 v13, 0, v13, vcc", ["v13", "vcc"], ["v13"]))
    a(valu("v_bfe_u32 v14, v8, 1, 2", ["v8"], ["v14"]))
    for r in range(4):
        a(valu(f"v_cmp_eq_u32 vcc, {r}, v14", ["v14"], ["vcc"])); a(nop(1))
        a(valu(f"v_cndmask_b32 v{4+r}, 0, v13, vcc", ["v13", "vcc"], [f"v{4+r}"]))
    a(salu("s_lshl_b32 s41, s36, 8")); a(salu("s_lshl_b32 s42, s34, 4")); a(salu("s_add_u32 s41, s41, s42"))
    a(valu("v_add_u32 v3, s41, v8", ["v8"], ["v3"])); a(valu("v_mul_u32_u24 v3, 896, v3", ["v3"], ["v3"]))
    a(salu("s_mul_i32 s42, s35, 448")); a(salu("s_lshl_b32 s43, s37, 5")); a(salu("s_add_u32 s42, s42, s43"))
    a(salu("s_lshl_b32 s43, s38, 3")); a(salu("s_add_u32 s42, s42, s43"))
    a(valu("v_add_u32 v3, s42, v3", ["v3"], ["v3"]))
    a(valu("v_lshl_add_u32 v3, v11, 4, v3", ["v11", "v3"], ["v3"]))
    a(valu("v_lshrrev_b32 v10, 1, v9", ["v9"], ["v10"])); a(valu("v_lshl_add_u32 v3, v10, 2, v3", ["v10", "v3"], ["v3"]))
    a(valu("v_lshlrev_b32 v3, 1, v3", ["v3"], ["v3"]))
    a(raw("s_waitcnt lgkmcnt(0)", "wait", lgkm=0))
    for base, lo, size in ((8, 6, 16 * 7 * 16 * 16 * 2048), (12, 4, 8 * 256 * 896 * 2)):
        a(salu(f"s_mov_b32 s{base}, s{lo}")); a(salu(f"s_mov_b32 s{base+1}, s{lo+1}"))
        a(salu(f"s_mov_b32 s{base+2}, {size}")); a(salu(f"s_mov_b32 s{base+3}, 0x20000"))
    a(salu(f"s_mul_i32 s44, s33, {7*16*32768}")); a(salu("s_lshl_b32 s45, s34, 15")); a(salu("s_add_u32 s44, s44, s45"))
    for j in range(7):
        for i in range(8):
            a(salu(f"s_add_u32 s46, s44, {j*16*32768 + i*4096}"))
            a(tag(bload(16 + (j * 8 + i) * 4, 4, 2, 8, "s46", 0), f"p{j}"))
    for j in range(7):
        a(wait_tag(f"p{j}"))
        d = 240 + 4 * (j & 1)
        for i in range(8):
            a(mfma("v", d, "v", 4, "v", 16 + (j * 8 + i) * 4, None if i == 0 else "v", None if i == 0 else d))
        a(nop(7))
        a(valu(f"v_cvt_pk_bf16_f32 v{d}, v{d}, v{d+1}", [f"v{d}", f"v{d+1}"], [f"v{d}"]))
        a(valu(f"v_cvt_pk_bf16_f32 v{d+1}, v{d+2}, v{d+3}", [f"v{d+2}", f"v{d+3}"], [f"v{d+1}"]))
        a(tag(bstore(d, 2, 3, 12, "0", j * 128), "o"))
    resolve_vm(o, []); check(o, "reduce")
    if OPT.stamps and OPT.stamp_fwd >= 0:
        o += [wait_vm(0), salu("s_cmp_lg_u32 s2, 0"), raw("s_cbranch_scc1 R_end", "branch"),
              salu("s_load_dwordx2 s[20:21], s[0:1], 88"), raw("s_waitcnt lgkmcnt(0)", "wait", lgkm=0),
              salu("s_mov_b32 s16, s20"), salu("s_mov_b32 s17, s21"), salu("s_mov_b32 s18, 64"), salu("s_mov_b32 s19, 0x20000"),
              salu(f"s_mov_b32 s10, {16*7*16*16*2048 + 256*64}"), salu(f"s_mov_b32 s46, {16*7*16*16*2048} + 64*{OPT.stamp_fwd}"),
              valu("v_lshlrev_b32 v2, 2, v0", ["v0"], ["v2"]), bload(3, 1, 2, 8, "s46", 0), wait_vm(0), bstore(3, 1, 2, 16, "0", 0)]
    o += [wait_vm(0), label("R_end"), raw("s_endpgm", "branch")]
    return o

KD = """.section .rodata,"a"
.p2align 6
.amdhsa_kernel {name}
  .amdhsa_next_free_vgpr {vgpr}
  .amdhsa_next_free_sgpr 102
  .amdhsa_accum_offset 256
  .amdhsa_group_segment_fixed_size 0
  .amdhsa_kernarg_size 104
  .amdhsa_user_sgpr_count 2
  .amdhsa_user_sgpr_kernarg_segment_ptr 1
  .amdhsa_system_sgpr_workgroup_id_x 1
.end_amdhsa_kernel
"""
def header_comments():
    ref = open("cdna_kernels/" + NAME + ".s.ref").read().splitlines()
    out = []
    for l in ref:
        if l.startswith("; Override launch") or not l.startswith(";"): break
        out.append(l)
    return out

def stream_kernel():
    t = """
  s_cmp_ge_u32 s2, 256
  s_cbranch_scc1 S_end
  s_load_dwordx2 s[4:5], s[0:1], 8
  s_load_dwordx2 s[6:7], s[0:1], 96
  s_load_dwordx2 s[8:9], s[0:1], 48
  v_lshrrev_b32 v2, 6, v0
  s_nop 0
  v_readfirstlane_b32 s24, v2
  v_and_b32 v1, 63, v0
  v_lshlrev_b32 v14, 4, v1
  s_nop 2
  s_lshl_b32 s25, s24, 12
  v_add_u32 v14, s25, v14
  s_waitcnt lgkmcnt(0)
  s_cmp_lt_u32 s2, 128
  s_cselect_b32 s36, s4, s8
  s_cselect_b32 s37, s5, s9
  s_mov_b32 s38, 0x4000000
  s_mov_b32 s39, 0x20000
  s_and_b32 s32, s2, 127
  s_lshl_b32 s32, s32, 19
  s_barrier
  s_memrealtime s[12:13]
  s_mov_b32 s20, 0
S_loop:
  s_mov_b32 m0, s25
  s_nop 0
  buffer_load_dwordx4 v14, s[36:39], s32 offen nt lds
  buffer_load_dwordx4 v14, s[36:39], s32 offen offset:1024 nt lds
  buffer_load_dwordx4 v14, s[36:39], s32 offen offset:2048 nt lds
  buffer_load_dwordx4 v14, s[36:39], s32 offen offset:3072 nt lds
  s_add_u32 s32, s32, 16384
  s_waitcnt vmcnt(8)
  s_barrier
  s_add_u32 s20, s20, 1
  s_cmp_lt_u32 s20, 32
  s_cbranch_scc1 S_loop
  s_waitcnt vmcnt(0)
  s_barrier
  s_memrealtime s[16:17]
  s_waitcnt lgkmcnt(0)
  s_sub_u32 s16, s16, s12
  s_mov_b32 s40, s6
  s_mov_b32 s41, s7
  s_mov_b32 s42, %d
  s_mov_b32 s43, 0x20000
  s_mul_i32 s33, s2, 64
  s_add_u32 s33, s33, %d
  v_mov_b32 v2, s16
  v_mov_b32 v1, 0
  buffer_store_dword v2, v1, s[40:43], s33 offen
  s_waitcnt vmcnt(0)
S_end:
  s_endpgm""" % (16*7*16*16*2048 + 256*64, 16*7*16*16*2048 + 60)
    return t

def assemble_file(debug=None):
    main = build(debug)
    red = reduce_kernel()
    k1 = NAME + "_kernel"; k2 = "reduce_heads_kernel"
    L = header_comments()
    if OPT.stream0: L.append(f"; @launch kernel=stream_test_kernel grid=(256,1,1) block=(256,1,1) lds={LDS_BYTES}")
    if OPT.fused and not OPT.stream0:
        L.append(f"; @launch grid=(256,1,1) block=(256,1,1) lds={LDS_BYTES}")
    else:
        L.append(f"; @launch kernel={k1} grid=(256,1,1) block=(256,1,1) lds={LDS_BYTES}")
        if debug is None and not OPT.fused: L.append(f"; @launch kernel={k2} grid=(256,1,1) block=(256,1,1) lds=0")
    L.append('.amdgcn_target "amdgcn-amd-amdhsa--gfx950"')
    L.append(".text")
    for nm, body in ((k1, main), (k2, red)) if not OPT.fused else ((k1, main),):
        L += [f".globl {nm}", ".p2align 8", f".type {nm},@function", f"{nm}:", text(body)]
    if OPT.stream0: L += [".globl stream_test_kernel", ".p2align 8", ".type stream_test_kernel,@function", "stream_test_kernel:", stream_kernel()]
    L.append(KD.format(name=k1, vgpr=512))
    if not OPT.fused: L.append(KD.format(name=k2, vgpr=256))
    if OPT.stream0: L.append(KD.format(name="stream_test_kernel", vgpr=512))
    return "\n".join(L) + "\n"

if __name__ == "__main__":
    dbg = sys.argv[2] if len(sys.argv) > 2 and sys.argv[2] != "none" else None
    for kv in sys.argv[3:]:
        k, v = kv.split("=")
        v = v.replace("+", " ")
        setattr(OPT, k, {"True": True, "False": False, "()": ()}.get(v, int(v) if v.lstrip("-").isdigit() else (eval(v) if v.startswith("(") else v)))
    open(sys.argv[1], "w").write(assemble_file(dbg))
    print("stamps:", STAMPS)
```

```python
import math, struct, sys
from core import *

NAME = "concat_heads__mha_block_cached__mha_block_cached__near_ridge"
def f32bits(x): return struct.unpack("<I", struct.pack("<f", x))[0]
CSC = math.log2(math.e) / 16.0

S_X, S_WQ, S_K, S_V, S_WO, S_WS, S_OUT = 4, 8, 12, 16, 20, 24, 28
S_W, S_W1K = 32, 33
S_QB = ["0", "s34", "s35", "s62"]
S_C = 63
S_KOFF, S_VOFF = 64, 65
S_LOOP = 66
S_T0, S_T1, S_T2, S_T3 = 67, 68, 69, 70
S_G, S_H, S_B, S_BR = 71, 72, 73, 74
S_WOFF = 76
S_PART = 77
S_WCUR, S_WSTEP, S_XSTEP = 78, 79, 75
S_FL, S_DBG = 36, 40
S_LOCM = 44
S_RBASE, S_SIG, S_POLL, S_XCC = 46, 47, 48, 49
S_RG = 56
S_SPIN = 62
S_SAFE = 3
S_ROT = 52
S_PFO = 53
S_RST, S_RLD, S_FPW, S_FPR, S_FCW, S_FCR = 60, 61, 75, 78, 79, 76
S_STAMP = 80
V_LANE = 0
V_KA = [4, 5]
V_VA = [6, 7, 8, 9]
V_DK, V_DV = 10, 11
V_L = 12
V_MC = 16
V_SP = 20
V_POOL = 32
V_S = 64
V_P = 96
V_Q = 128
V_XA = 20; V_DW = 21; V_WA = [[22, 23], [24, 25], [26, 27]]
V_CT = 28
V_ARR = 24
L_K = 0; L_V = 65536; L_X = 131072
def kslot(t): return L_K + 16384 * (t % 4)
def vslot(t): return L_V + 16384 * (t % 4)
LDS_BYTES = 163840
L_VOTE = L_V + 2 * 16384
L_LIMIT = 2.0 ** 30

PART_BYTES = 16 * 7 * 16 * 16 * 2048
FLAG_BYTES = 16 * 7 * 4 * 64
STAMP_OFF = PART_BYTES + 32768
RING_OFF = PART_BYTES + (1 << 20)
RING_BYTES = 32 << 20
CONS_OFF = 16384
SPIN_MAX = 1 << 19
class Opt:
    kv_flags = "nt"
    w_flags = ""
    x_flags = ""
    wo_flags = ""
    st_flags = ""
    stamps = False
    tmpl = 0
    wo_stage = False
    p3_tiles = False
    early_trips = 0
    vfirst_early = 37
    loop_exit = 0
    xwarm = False
    kvmin = False
    vfirst = 0
    dma_stamps = False
    rot = 0
    pad_iter = 0
    last_st = ''
    out_flags = ''
    coopw = False
    coopw_init = 2
    pf_flags = ''
    early_wb = 0
    wt_flags = ''
    prod_delay = 0
    ring = 4
    vm_space = 0
    p3_drop = ''
    wo_step = 13
    cons_chk = 22
    wo_touch = (4, 5, 6)
    red_m = 200
    cons_poll = 50
    ld_min = 16
    stamp_skip = 'p1_first_data,pre_iter_end'
    p3detail = -1
    st_lag = 21
    force_fallback = False
    red_at = 60
    sig_lag = 28
    poll_lag = 22
    chk_lag = 22
    fused = True
    stream0 = False
    loop_nods = False
    loop_nomfma = False
    loop_novalu = False
    loop_nodma = False
    loop_dma_every = 1
    bar_stamps = False
    trip_stamps = False
    dma_mode = 'spread'
    dma_gaps = ([5, 21, 37, 53, 69, 85], [101, 117])
    nv_prev = 2
    stamp_fwd = -1
    stamp_dbg = -1
    x_rd_gap0 = 65
    x_rd_gap = 33
    p1_steps = False
    p1_drop = ''
    rev = True
    init_w = 2
    early_step = 2
    x_gap = 60
    p1_nowait = False
    p1_noread = False
    wring = 3
    kvpf = 'early'
    coopx = False
    init_more = 0
OPT = Opt()

def wait_tag(*tags): return I("s_waitcnt vmcnt(?)", "wait", vmtags=list(tags))
def tag(ins, t):
    ins.meta["tag"] = t; return ins
def resolve_vm(stream, queue):
    q = list(queue)
    for ins in stream:
        if ins.kind in ("dma", "vld", "vst"):
            q.append(ins.meta.get("tag", "?"))
        elif ins.kind == "wait":
            if "vmtags" in ins.meta:
                idx = [n for n, t in enumerate(q) if t in ins.meta["vmtags"]]
                n = len(q) - 1 - max(idx) if idx else len(q)
                n = min(n, 63)
                ins.text = f"s_waitcnt vmcnt({n})"; ins.meta["vm"] = n
            if "vm" in ins.meta:
                n = ins.meta["vm"]
                if len(q) > n: q = q[len(q) - n:] if n else []
    return q

_stamp_n = [0]
def stamp(name):
    if not OPT.stamps: return []
    if OPT.dma_stamps:
        if name == "loop_start": return [raw("s_memtime s[100:101]", "salu"), raw("s_waitcnt lgkmcnt(0)", "wait", lgkm=0)]
        if name == "loop_end": return [raw("s_memtime s[76:77]", "salu"), raw("s_waitcnt lgkmcnt(0)", "wait", lgkm=0), salu("s_sub_u32 s100, s76, s100")]
        return []
    if OPT.stamp_skip and name in OPT.stamp_skip.split(","): return []
    if OPT.p3detail >= 0 and not name.startswith("d_") and name not in ("rt_end",): return []
    if OPT.bar_stamps and name not in ("rt_ls", "rt_le", "loop_start", "loop_end", "rt_end"): return []
    n = _stamp_n[0]; _stamp_n[0] += 1
    STAMPS.append(name)
    op = "s_memrealtime" if name.startswith("rt") else "s_memtime"
    return [raw(f"{op} s[{S_STAMP+2*n}:{S_STAMP+2*n+1}]", "salu")]
STAMPS = []

def m0_set(base): return salu(f"s_add_u32 m0, s{S_W1K}, {base}", [f"s{S_W1K}"], ["m0"])

def dma_tile(kind, slot_base, soff, tg):
    voff, srd, fl = {"K": (V_DK, S_K, OPT.kv_flags), "V": (V_DV, S_V, OPT.kv_flags), "W": (V_DW, S_WQ, OPT.w_flags)}[kind]
    return [(m0_set(slot_base + dc * 3968), tag(dma(voff, srd, soff, dc * 128, fl), tg)) for dc in range(4)]

def setup():
    o = []; a = o.append
    a(salu("s_cmp_ge_u32 s2, 256")); a(raw("s_cbranch_scc1 L_end", "branch"))
    o += stamp("rt_start") + stamp("start")
    a(valu("v_lshrrev_b32 v1, 6, v0", ["v0"], ["v1"]))
    a(valu(f"v_and_b32 v{V_LANE}, 63, v0", ["v0"], ["v0"]))
    a(salu(f"s_mov_b32 s{S_SAFE}, 0"))
    a(valu(f"v_readfirstlane_b32 s{S_W}, v1", ["v1"], [f"s{S_W}"]))
    a(label("L_again"))
    a(salu("s_load_dwordx16 s[36:51], s[0:1], 0")); a(salu("s_load_dwordx8 s[52:59], s[0:1], 64"))
    a(salu("s_load_dwordx2 s[60:61], s[0:1], 96"))
    a(nop(3))
    a(salu(f"s_and_b32 s{S_T0}, s2, 7")); a(salu(f"s_lshr_b32 s{S_T1}, s2, 3"))
    a(salu(f"s_and_b32 s{S_H}, s{S_T1}, 15")); a(salu(f"s_lshr_b32 s{S_T1}, s{S_T1}, 4"))
    a(salu(f"s_lshl_b32 s{S_G}, s{S_T0}, 1")); a(salu(f"s_add_u32 s{S_G}, s{S_G}, s{S_T1}"))
    a(salu(f"s_lshr_b32 s{S_BR}, s{S_G}, 3")); a(salu(f"s_and_b32 s{S_B}, s{S_G}, 7"))
    a(salu(f"s_lshl_b32 s{S_W1K}, s{S_W}, 10"))
    if OPT.rot:
        a(salu(f"s_and_b32 s{S_T0}, s2, 7")); a(salu(f"s_mul_i32 s{S_T0}, s{S_T0}, {OPT.rot}")); a(salu(f"s_lshr_b32 s{S_T1}, s2, 3"))
        a(salu(f"s_add_u32 s{S_T0}, s{S_T0}, s{S_T1}")); a(salu(f"s_and_b32 s{S_T0}, s{S_T0}, 31")); a(salu(f"s_lshl_b32 s33, s{S_T0}, 14") if False else salu(f"s_lshl_b32 s{S_T3}, s{S_T0}, 14"))
    a(salu(f"s_mov_b32 s{S_C}, 0x{f32bits(CSC):08x}"))
    L = f"v{V_LANE}"
    def vv(t, rd, wr): a(valu(t, rd, wr))
    vv(f"v_and_b32 v1, 15, {L}", [L], ["v1"]); vv(f"v_lshrrev_b32 v2, 4, {L}", [L], ["v2"])
    vv("v_lshrrev_b32 v3, 1, v1", ["v1"], ["v3"])
    for sp in range(2):
        r = V_KA[sp]
        vv(f"v_add_u32 v{r}, {4*sp}, v2", ["v2"], [f"v{r}"])
        vv(f"v_xor_b32 v{r}, v{r}, v3", [f"v{r}", "v3"], [f"v{r}"])
        vv(f"v_lshlrev_b32 v{r}, 4, v{r}", [f"v{r}"], [f"v{r}"])
        vv(f"v_lshl_add_u32 v{r}, v1, 7, v{r}", ["v1", f"v{r}"], [f"v{r}"])
    vv(f"v_bfe_u32 v28, {L}, 2, 2", [L], ["v28"]); vv(f"v_and_b32 v29, 3, {L}", [L], ["v29"])
    vv("v_lshl_add_u32 v30, v2, 2, v28", ["v2", "v28"], ["v30"])
    vv("v_bfe_u32 v31, v30, 1, 2", ["v30"], ["v31"])
    for p in range(4):
        r = V_VA[p]
        vv(f"v_xor_b32 v{r}, {p}, v31", ["v31"], [f"v{r}"])
        vv(f"v_lshlrev_b32 v{r}, 5, v{r}", [f"v{r}"], [f"v{r}"])
        vv(f"v_lshl_add_u32 v{r}, v30, 7, v{r}", ["v30", f"v{r}"], [f"v{r}"])
        vv(f"v_lshl_add_u32 v{r}, v29, 3, v{r}", ["v29", f"v{r}"], [f"v{r}"])
        vv(f"v_add_u32 v{r}, {L_V}, v{r}", [f"v{r}"], [f"v{r}"])
    vv("v_lshl_add_u32 v30, v2, 3, v28", ["v2", "v28"], ["v30"])
    vv("v_lshrrev_b32 v31, 1, v28", ["v28"], ["v31"])
    for sp in range(2):
        r = V_WA[0][sp]
        vv(f"v_xor_b32 v{r}, {sp}, v31", ["v31"], [f"v{r}"])
        vv(f"v_lshl_add_u32 v{r}, v{r}, 2, v29", [f"v{r}", "v29"], [f"v{r}"])
        vv(f"v_lshlrev_b32 v{r}, 4, v{r}", [f"v{r}"], [f"v{r}"])
        vv(f"v_lshl_add_u32 v{r}, v30, 7, v{r}", ["v30", f"v{r}"], [f"v{r}"])
        for win in (1, 2):
            vv(f"v_add_u32 v{V_WA[win][sp]}, {65536*win}, v{r}", [f"v{r}"], [f"v{V_WA[win][sp]}"])
    vv(f"v_lshrrev_b32 v1, 3, {L}", [L], ["v1"]); vv(f"v_and_b32 v2, 7, {L}", [L], ["v2"])
    vv(f"v_lshl_add_u32 v3, s{S_W}, 3, v1", ["v1", f"s{S_W}"], ["v3"])
    vv("v_bfe_u32 v28, v3, 1, 3", ["v3"], ["v28"]); vv("v_xor_b32 v28, v28, v2", ["v28", "v2"], ["v28"])
    vv("v_lshlrev_b32 v28, 4, v28", ["v28"], ["v28"]); vv(f"v_lshl_add_u32 v{V_DK}, v3, 9, v28", ["v3", "v28"], [f"v{V_DK}"])
    vv("v_bfe_u32 v28, v3, 1, 2", ["v3"], ["v28"]); vv("v_lshlrev_b32 v28, 1, v28", ["v28"], ["v28"])
    vv("v_xor_b32 v28, v28, v2", ["v28", "v2"], ["v28"]); vv("v_lshlrev_b32 v28, 4, v28", ["v28"], ["v28"])
    vv(f"v_lshl_add_u32 v{V_DV}, v3, 9, v28", ["v3", "v28"], [f"v{V_DV}"])
    vv("v_bfe_u32 v28, v3, 1, 1", ["v3"], ["v28"]); vv("v_lshlrev_b32 v28, 2, v28", ["v28"], ["v28"])
    vv("v_xor_b32 v28, v28, v2", ["v28", "v2"], ["v28"]); vv("v_lshlrev_b32 v28, 4, v28", ["v28"], ["v28"])
    vv(f"v_lshl_add_u32 v{V_DW}, v3, 13, v28", ["v3", "v28"], [f"v{V_DW}"])
    a(raw("s_waitcnt lgkmcnt(0)", "wait", lgkm=0))
    a(salu(f"s_cmp_eq_u32 s{S_BR}, 0"))
    for i in range(10): a(salu(f"s_cselect_b32 s{36+i}, s{36+i}, s{46+i}"))
    if OPT.rot: a(salu(f"s_mov_b32 s{S_ROT}, s{S_T3}"))
    def srd(base, lo, hi, offs, size):
        if offs is None:
            a(salu(f"s_mov_b32 s{base}, s{lo}")); a(salu(f"s_mov_b32 s{base+1}, s{hi}"))
        else:
            a(salu(f"s_add_u32 s{base}, s{lo}, {offs}")); a(salu(f"s_addc_u32 s{base+1}, s{hi}, 0"))
        a(salu(f"s_mov_b32 s{base+2}, {size}")); a(salu(f"s_mov_b32 s{base+3}, 0x20000"))
    a(salu(f"s_mul_i32 s{S_T0}, s{S_B}, 229376")); srd(S_X, 36, 37, f"s{S_T0}", 229376)
    a(salu(f"s_lshl_b32 s{S_T0}, s{S_H}, 9")); srd(S_WQ, 42, 43, f"s{S_T0}", 0)
    a(salu(f"s_sub_u32 s{S_WQ+2}, {448*8192}, s{S_T0}"))
    a(salu(f"s_lshl_b32 s{S_T0}, s{S_B}, 4")); a(salu(f"s_add_u32 s{S_T0}, s{S_T0}, s{S_H}"))
    a(salu(f"s_lshl_b32 s{S_T0}, s{S_T0}, 19"))
    srd(S_K, 38, 39, f"s{S_T0}", 524288); srd(S_V, 40, 41, f"s{S_T0}", 524288)
    a(salu(f"s_mul_i32 s{S_T0}, s{S_H}, 229376")); srd(S_WO, 44, 45, f"s{S_T0}", 229376)
    srd(S_WS, 60, 61, None, 16 * 7 * 16 * 16 * 2048)
    srd(S_OUT, 56, 57, None, 8 * 256 * 896 * 2)
    if OPT.fused:
        srd(S_DBG, 58, 59, None, 256)
        a(salu(f"s_mov_b32 s{S_T0}, {PART_BYTES}")); srd(S_FL, 60, 61, f"s{S_T0}", 32768)
        a(salu(f"s_mov_b32 s{S_T0}, {RING_OFF}")); a(salu(f"s_add_u32 s54, s60, s{S_T0}")); a(salu("s_addc_u32 s55, s61, 0"))
        a(salu(f"s_mov_b32 s{S_RG}, s54")); a(salu(f"s_mov_b32 s{S_RG+1}, s55")); a(salu(f"s_mov_b32 s{S_RG+2}, {RING_BYTES}")); a(salu(f"s_mov_b32 s{S_RG+3}, 0x20000"))
        a(salu(f"s_getreg_b32 s{S_XCC}, hwreg(HW_REG_XCC_ID, 0, 3)"))
        a(salu(f"s_lshl_b32 s{S_SIG}, s{S_G}, 4")); a(salu(f"s_add_u32 s{S_SIG}, s{S_SIG}, s{S_H}"))
        a(salu(f"s_mul_i32 s{S_T0}, s{S_G}, {14*64}"))
        a(salu(f"s_lshl_b32 s{S_T1}, s{S_W}, 4")); a(salu(f"s_add_u32 s{S_T1}, s{S_T1}, s{S_H}")); a(salu(f"s_add_u32 s50, s{S_T0}, s{S_T1}"))
        a(salu(f"s_lshl_b32 s{S_T1}, s{S_H}, 2")); a(salu(f"s_add_u32 s{S_T1}, s{S_T1}, s{S_W}")); a(salu(f"s_add_u32 s51, s{S_T0}, s{S_T1}"))
        a(salu(f"s_add_u32 s51, s51, {CONS_OFF}"))
        a(valu(f"v_min_u32 v1, 13, v{V_LANE}", [f"v{V_LANE}"], ["v1"])); a(valu("v_lshlrev_b32 v1, 6, v1", ["v1"], ["v1"]))
        a(valu("v_mov_b32 v2, 0", [], ["v2"]))
        for sr in ("s50", "s51"):
            a(tag(I(f"buffer_store_byte v2, v1, s[{S_FL}:{S_FL+3}], {sr} offen", "vst", ["v1", "v2"], data=["v2"]), "reset"))
    return o

def add_lgkm_waits(g, cons, carried):
    seq = [(-1, regs) for regs in carried]
    for k in range(g.n):
        if g.mem[k] is not None and g.mem[k].kind == "ds": seq.append((k, g.mem[k].wr))
    lead = None
    for k, regs in cons:
        late = [n for n, (gap, w) in enumerate(seq) if gap == k - 1 and gap >= 0 and set(w) & set(regs)]
        assert not late, f"DS for MFMA {k} issued in gap {k-1}"
        idx = [n for n, (gap, w) in enumerate(seq) if gap < max(k - 1, 0) and set(w) & set(regs)]
        if not idx: continue
        last = max(idx)
        after = sum(1 for n, (gap, w) in enumerate(seq) if n > last and gap < max(k - 1, 0))
        assert after <= 15, (k, after)
        if k == 0: lead = wait_lgkm(after)
        else: g.pre[k - 1].insert(0, wait_lgkm(after))
    out = len(carried)
    if lead is not None: out = min(out, lead.meta["lgkm"])
    for k in range(g.n):
        for x in g.pre[k]:
            if "lgkm" in x.meta: out = min(out, x.meta["lgkm"])
        if g.mem[k] is not None and g.mem[k].kind == "ds":
            if out >= 14:
                g.pre[k].insert(0, wait_lgkm(8)); out = 8
            out += 1
    return lead

def place_vmem(g, gap, scalars, d, hi=None, stack=False, space=False):
    k = max(gap, 1 if stack else len(scalars))
    hi = g.n if hi is None else hi
    isdma = lambda x: x is not None and x.kind == "dma"
    while True:
        assert k < hi, f"no gap for {d.text}"
        near = OPT.vm_space and any(0 <= k + dd < g.n and dd != 0 and g.mem[k + dd] is not None and g.mem[k + dd].kind in ("vst", "vld", "dma")
                                    for dd in range(-OPT.vm_space, OPT.vm_space + 1))
        if g.mem[k] is None and not g.vec[k] and len(g.pre[k]) <= 1 and not (near and space):
            if stack:
                if not isdma(g.mem[k - 1]) and len(g.pre[k - 1]) + len(scalars) <= 3 and not any(x.kind == "barrier" for x in g.pre[k - 1]): break
            elif all(not g.pre[k - 1 - n] and not isdma(g.mem[k - 1 - n]) for n in range(len(scalars))): break
        k += 1
    if stack:
        for sc in scalars: g.put_pre(k - 1, sc)
    else:
        for n, sc in enumerate(scalars): g.put_pre(k - len(scalars) + n, sc)
    g.put_mem(k, d)
    return k

def put_scalar(g, gap, *ins):
    k = gap
    while g.pre[k]: k += 1
    g.pre[k] = list(ins)
    return k

def place_chain(g, ops, lo, hi):
    left = []
    for ins in ops:
        k = g.place_vec(ins, lo, hi) if (not left and lo < hi) else None
        if k is None: left.append(ins)
        else: lo = k + 1 if ins.kind == "trans" else k
    return lo, left

class Op:
    def __init__(self, ins, rel, dl, preds=()):
        self.ins = ins; self.rel = rel; self.dl = dl; self.preds = list(preds); self.gap = None

def list_schedule(g, ops, lo=0, hi=None):
    hi = g.n if hi is None else hi
    todo = list(ops)
    for k in range(lo, hi):
        while True:
            free = g.free_vec(k)
            if free <= 0: break
            ready = [x for x in todo if x.rel <= k and all(p.gap is not None and p.gap + d <= k for p, d in x.preds)]
            tr = [x for x in ready if x.ins.kind == "trans"]
            pl = [x for x in ready if x.ins.kind != "trans"]
            pick = None
            can_tr = free == 2 and g.mem[k] is None and not g.vec[k]
            if can_tr and tr: pick = min(tr, key=lambda x: x.dl)
            if pl:
                best = min(pl, key=lambda x: x.dl)
                if pick is None or (best.dl + 6 < pick.dl): pick = best
            if pick is None: break
            g.vec[k].append(pick.ins); pick.gap = k; todo.remove(pick)
    late = [x for x in ops if x.gap is not None and x.gap > x.dl]
    assert not late, [(x.ins.text, x.gap, x.dl) for x in late]
    return todo

def sm_ops(tile, kb, qb, rel, dl):
    i = sm_group(tile, kb, qb)
    f = [Op(i[0], rel, dl - 6), Op(i[1], rel, dl - 6), Op(i[4], rel, dl - 5), Op(i[5], rel, dl - 5)]
    x = [Op(i[2], rel, dl - 4, [(f[0], 1)]), Op(i[3], rel, dl - 4, [(f[1], 1)]), Op(i[6], rel, dl - 3, [(f[2], 1)]), Op(i[7], rel, dl - 3, [(f[3], 1)])]
    ad = [Op(i[8], rel, dl, [(x[0], 1)]), Op(i[9], rel, dl, [(x[1], 1)]), Op(i[11], rel, dl, [(x[2], 1)]), Op(i[12], rel, dl, [(x[3], 1)])]
    cv = [Op(i[10], rel, dl, [(x[0], 1), (x[1], 1)]), Op(i[13], rel, dl, [(x[2], 1), (x[3], 1)])]
    return f + x + ad + cv

def exposed(ops):
    o = []
    for n, ins in enumerate(ops):
        o.append(ins)
        if ins.kind == "trans" and n + 1 < len(ops) and ops[n + 1].kind != "trans": o.append(nop(0))
    return o

def conv_ops(acc, d, t):
    return [valu(f"v_accvgpr_read_b32 v{d}, a{acc}", [f"a{acc}"], [f"v{d}"]),
            valu(f"v_accvgpr_read_b32 v{t}, a{acc+1}", [f"a{acc+1}"], [f"v{t}"]),
            valu(f"v_accvgpr_read_b32 v{d+1}, a{acc+2}", [f"a{acc+2}"], [f"v{d+1}"]),
            valu(f"v_accvgpr_read_b32 v{t+1}, a{acc+3}", [f"a{acc+3}"], [f"v{t+1}"]),
            valu(f"v_cvt_pk_bf16_f32 v{d}, v{d}, v{t}", [f"v{d}", f"v{t}"], [f"v{d}"]),
            valu(f"v_cvt_pk_bf16_f32 v{d+1}, v{d+1}, v{t+1}", [f"v{d+1}", f"v{t+1}"], [f"v{d+1}"])]

def xlane_reduce(regs, op, tmp):
    o = []
    for swap in ("v_permlane32_swap_b32", "v_permlane16_swap_b32"):
        for n, r in enumerate(regs): o.append(valu(f"v_mov_b32 v{tmp+n}, v{r}", [f"v{r}"], [f"v{tmp+n}"]))
        o.append(nop(1))
        for n, r in enumerate(regs):
            o.append(valu(f"{swap} v{r}, v{tmp+n}", [f"v{r}", f"v{tmp+n}"], [f"v{r}", f"v{tmp+n}"]))
        o.append(nop(1))
        for n, r in enumerate(regs):
            o.append(valu(f"{op} v{r}, v{r}, v{tmp+n}", [f"v{r}", f"v{tmp+n}"], [f"v{r}"]))
    return o

def wpairs(): return [(L_X, L_X + 16384), (vslot(1), kslot(3)), (vslot(2), vslot(3))]
def wslot(tile):
    p = wpairs(); return p[(tile // 2) % len(p)][tile % 2]
XBUF = [V_S, V_P]
def xfrag(qb, cs): return XBUF[(cs // 2) & 1] + ((cs % 2) * 4 + qb) * 4
V_XD = [128, 129]
V_XR = [130, 131]
S_XB = 34
S_XCUR = 35
def x_setup():
    o = []; a = o.append
    L = f"v{V_LANE}"
    a(salu(f"s_and_b32 s{S_T1}, s{S_W}, 1")); a(salu(f"s_lshl_b32 s{S_T1}, s{S_T1}, 13"))
    a(salu(f"s_cmp_lt_u32 s{S_W}, 2")); a(salu(f"s_cselect_b32 s{S_XB}, 2, 4")); a(salu(f"s_lshl_b32 s{S_XB}, s{S_XB}, 14"))
    a(salu(f"s_add_u32 s{S_XB}, s{S_XB}, s{S_T1}"))
    assert kslot(2) == 2 << 14 and vslot(0) == 4 << 14
    a(valu(f"v_lshrrev_b32 v1, 3, {L}", [L], ["v1"])); a(valu(f"v_and_b32 v2, 7, {L}", [L], ["v2"]))
    a(valu(f"v_lshl_add_u32 v3, s{S_W}, 6, v1", ["v1", f"s{S_W}"], ["v3"]))
    a(valu("v_mul_u32_u24 v3, 896, v3", ["v3"], ["v3"]))
    a(valu("v_lshrrev_b32 v1, 1, v1", ["v1"], ["v1"]))
    for par in range(2):
        r = V_XD[par]
        a(valu(f"v_or_b32 v{r}, {4*par}, v1", ["v1"], [f"v{r}"]))
        a(valu(f"v_xor_b32 v{r}, v{r}, v2", [f"v{r}", "v2"], [f"v{r}"]))
        a(valu(f"v_lshl_add_u32 v{r}, v{r}, 4, v3", [f"v{r}", "v3"], [f"v{r}"]))
        a(valu(f"v_add_u32 v{V_XR[par]}, s{S_XB}, v{V_KA[par]}", [f"v{V_KA[par]}"], [f"v{V_XR[par]}"]))
    return o
def x_items(j):
    out = []
    for i in range(8):
        sreg = S_T2 + (i & 1)
        sc = []
        if i == 0 and j > 0: sc.append(salu(f"s_add_u32 s{S_XCUR}, s{S_XCUR}, s{S_XSTEP}", [f"s{S_XCUR}"], [f"s{S_XCUR}"]))
        sc.append(salu(f"s_add_u32 s{sreg}, s{S_XCUR}, {i*7168}", [f"s{S_XCUR}"], [f"s{sreg}"]))
        sc.append(salu(f"s_add_u32 m0, s{S_XB}, {i*1024}", [f"s{S_XB}"], ["m0"]))
        out.append((sc, tag(dma(V_XD[i & 1], S_X, f"s{sreg}", 0, OPT.x_flags), f"x{j}")))
    return out
def x_read(qb, cs): return ds_read128("v", xfrag(qb, cs), V_XR[cs & 1], qb * 2048)
def w_read(dbp, cs, jj):
    s, e = dbp >> 1, dbp & 1
    base = wslot(cs); win = base // 65536
    off = base - win * 65536 + (s >> 1) * 4096 + jj * 512 + e * 8
    return ds_read_tr("v", V_POOL + 4 * ((2 * dbp + (cs & 1)) % 8) + 2 * jj, V_WA[win][s & 1], off)

V_PF = 28
def coop_setup():
    o = []; a = o.append
    a(salu(f"s_mul_i32 s{S_T1}, s{S_H}, {112*128}"))
    a(salu(f"s_lshl_b32 s{S_T2}, s{S_W}, 12")); a(salu(f"s_add_u32 s{S_T1}, s{S_T1}, s{S_T2}"))
    a(valu(f"v_and_b32 v{V_PF}, 31, v{V_LANE}", [f"v{V_LANE}"], [f"v{V_PF}"]))
    a(valu(f"v_lshlrev_b32 v{V_PF}, 7, v{V_PF}", [f"v{V_PF}"], [f"v{V_PF}"]))
    a(valu(f"v_add_u32 v{V_PF}, s{S_T1}, v{V_PF}", [f"v{V_PF}"], [f"v{V_PF}"]))
    return o
def coop_x():
    return [tag(bload(V_PF + 1, 1, V_PF, S_X, "0", 0, OPT.pf_flags), "pf")]

V_PFW = 132
def coop_w_setup():
    o = []; a = o.append
    L = f"v{V_LANE}"
    a(salu(f"s_lshr_b32 s{S_T1}, s2, 7")); a(salu(f"s_and_b32 s{S_T1}, s{S_T1}, 1")); a(salu(f"s_lshl_b32 s{S_T1}, s{S_T1}, 5"))
    a(salu(f"s_lshl_b32 s{S_T2}, s{S_W}, 3")); a(salu(f"s_add_u32 s{S_T1}, s{S_T1}, s{S_T2}"))
    a(valu(f"v_bfe_u32 v{V_PFW}, {L}, 2, 3", [L], [f"v{V_PFW}"])); a(valu(f"v_add_u32 v{V_PFW}, s{S_T1}, v{V_PFW}", [f"v{V_PFW}"], [f"v{V_PFW}"]))
    a(valu(f"v_lshlrev_b32 v{V_PFW}, 13, v{V_PFW}", [f"v{V_PFW}"], [f"v{V_PFW}"]))
    a(valu(f"v_and_b32 v{V_PFW+1}, 3, {L}", [L], [f"v{V_PFW+1}"]))
    a(valu(f"v_lshl_add_u32 v{V_PFW}, v{V_PFW+1}, 7, v{V_PFW}", [f"v{V_PFW}", f"v{V_PFW+1}"], [f"v{V_PFW}"]))
    return o
def coop_w(j):
    return [salu(f"s_mov_b32 s{S_PFO}, {j*524288}", [], [f"s{S_PFO}"])], tag(bload(V_PFW + 1, 1, V_PFW, S_WQ, f"s{S_PFO}", 0, OPT.pf_flags), "pf")
OOL = []
def kv_off(reg, t):
    if not OPT.rot: return [salu(f"s_mov_b32 s{reg}, {t*16384}", [], [f"s{reg}"])]
    return [salu(f"s_add_u32 s{reg}, s{S_ROT}, {t*16384}", [f"s{S_ROT}"], [f"s{reg}"]), salu(f"s_and_b32 s{reg}, s{reg}, 0x7ffff", [f"s{reg}"], [f"s{reg}"])]
def phase1():
    o = []; a = o.append
    NP = 3
    a(salu(f"s_lshr_b32 s{S_T1}, s2, 7")); a(salu(f"s_and_b32 s{S_T1}, s{S_T1}, {1 if OPT.rev else 0}"))
    a(salu(f"s_cmp_eq_u32 s{S_T1}, 0"))
    a(salu(f"s_cselect_b32 s{S_WCUR}, 0, {6*524288}")); a(salu(f"s_cselect_b32 s{S_T2}, 1, -1"))
    a(salu(f"s_cselect_b32 s{S_XCUR}, 0, 768"))
    a(salu(f"s_mul_i32 s{S_WSTEP}, s{S_T2}, 524288")); a(salu(f"s_mul_i32 s{S_XSTEP}, s{S_T2}, 128"))
    o += x_setup()
    if OPT.coopx: o += coop_setup() + coop_x()
    if OPT.coopw:
        o += coop_w_setup()
        for j in range(OPT.coopw_init):
            sc, d = coop_w(j); o += sc + [d]
    def w_items(j):
        out = []
        for par in range(2):
            sreg = S_WCUR if par == 0 else S_WOFF
            for m, (m0, d) in enumerate(dma_tile("W", wslot(2 * j + par), f"s{sreg}", f"W{j}")):
                sc = [m0]
                if m == 0 and par == 0 and j > 0: sc = [salu(f"s_add_u32 s{S_WCUR}, s{S_WCUR}, s{S_WSTEP}", [f"s{S_WCUR}"], [f"s{S_WCUR}"]), m0]
                if m == 0 and par == 1: sc = [salu(f"s_add_u32 s{S_WOFF}, s{S_WCUR}, 262144", [f"s{S_WCUR}"], [f"s{S_WOFF}"]), m0]
                out.append((sc, d))
        return out
    def kv_items(kind, t):
        out = []
        for m, (m0, d) in enumerate(dma_tile(kind, kslot(t) if kind == "K" else vslot(t), f"s{S_T0}", f"{kind}{t}")):
            out.append((kv_off(S_T0, t) + [m0] if m == 0 else [m0], d))
        return out
    def now(items):
        for sc, d in items:
            o.extend(sc); a(nop(0)); a(d)
    w0 = w_items(0)
    for sc, d in w0[4:]: d.meta["tag"] = "W0b"
    if OPT.xwarm:
        a(valu(f"v_lshlrev_b32 v{V_PFW}, 4, v{V_LANE}", [f"v{V_LANE}"], [f"v{V_PFW}"]))
        a(salu(f"s_mul_i32 s{S_T0}, s{S_H}, 14336")); a(salu(f"s_lshl_b32 s{S_T1}, s{S_W}, 12")); a(salu(f"s_add_u32 s{S_T0}, s{S_T0}, s{S_T1}"))
        a(salu(f"s_add_u32 m0, s{S_T1}, {kslot(0)}", [], ["m0"])); a(nop(0))
        now(w0[:4])
        a(salu(f"s_lshl_b32 s{S_T1}, s{S_W}, 12")); a(salu(f"s_add_u32 m0, s{S_T1}, {kslot(0)}", [], ["m0"])); a(nop(0))
        for i in range(4): a(tag(dma(V_PFW, S_X, f"s{S_T0}", i * 1024, OPT.x_flags), "xw"))
        now(w0[4:]); now(x_items(0))
    else:
        now(x_items(0)); now(w0[:4]); now(w0[4:])
    if OPT.coopw:
        for j in range(OPT.coopw_init, 3):
            sc, d = coop_w(j); o += sc + [d]
    a(wait_tag("x0"))
    xr = [x_read(qb, cs) for cs in (0, 1) for qb in range(4)]
    o += xr
    a(wait_tag("W0")); a(barrier())
    if OPT.fused:
        a(salu(f"s_or_b32 s{S_T0}, s{S_XCC}, 0x80")); a(valu(f"v_mov_b32 v1, s{S_T0}", [], ["v1"])); a(valu("v_mov_b32 v2, 0", [], ["v2"]))
        a(tag(I(f"buffer_store_byte v1, v2, s[{S_DBG}:{S_DBG+3}], s{S_SIG} offen", "vst", ["v1", "v2"], data=["v1"]), "arr"))
    o += stamp("p1_first_data") + (stamp("rt_fd") if OPT.trip_stamps else [])
    def quad0(n): return V_POOL + 4 * (n % 8)
    def w_read0(n, jj):
        dbp, cs = n % 16, n // 16
        r = w_read(dbp, cs, jj)
        return ds_read_tr("v", quad0(n) + 2 * jj, int(r.rd[0][1:]), int(r.text.split("offset:")[1]))
    carried = [x.wr for x in xr]
    for n in range(3):
        for jj in range(2):
            r = w_read0(n, jj); a(r); carried.append(r.wr)
    early = {j: [] for j in range(7)}; after = {j: [] for j in range(7)}
    early[0] += w_items(1); early[1] += w_items(2)
    for j in range(NP, 7): after[j - NP + 1] += w_items(j)
    K = lambda t: kv_items("K", t)
    V = lambda t: kv_items("V", t)
    kv = {"early": {1: K(0), 2: K(1)}, "mid": {2: K(0), 3: K(1)}, "late": {3: K(0), 4: K(1)}}[OPT.kvpf]
    for j, l in kv.items(): early[j] += l
    if OPT.kvmin:
        early = {j: (w_items(1) if j == 0 else w_items(2) if j == 1 else []) for j in range(7)} if False else early
        for j in range(7): early[j] = [it for it in early[j] if not it[1].meta["tag"].startswith("K")]
        early[4] += K(0); early[5] += K(1)
        after[5] += V(0)
        after[6] += K(2) + V(1)
    else:
        after[5] += V(0)
        early[6] += K(2) + V(1) + K(3)
        after[6] += V(2)
    for j in range(7):
        ms = []
        if j == 0:
            for n in range(32):
                for qb in range(4):
                    acc = ((n % 16) * 4 + qb) * 4
                    first = n < 16
                    ms.append(mfma("a", acc, "v", quad0(n), "v", xfrag(qb, n // 16), None if first else "a", None if first else acc))
        else:
            for dbp in range(16):
                for qb in range(4):
                    for e2 in range(2):
                        acc = (dbp * 4 + qb) * 4
                        ms.append(mfma("a", acc, "v", V_POOL + 4 * ((2 * dbp + e2) % 8), "v", xfrag(qb, 2 * j + e2), "a", acc))
        g = Gaps(ms)
        if j == 0:
            for n in range(3, 32):
                for jj in range(2): g.put_mem(4 * n - 12 + 2 * jj, w_read0(n, jj))
        else:
            for dbp in range(3, 16):
                for n, (cs, jj) in enumerate([(2*j, 0), (2*j, 1), (2*j+1, 0), (2*j+1, 1)]):
                    g.put_mem(8 * dbp - 24 + 2 * n, w_read(dbp, cs, jj))
        nxt = []
        if j < 6:
            for dbp in range(3):
                for n, (cs, jj) in enumerate([(2*j+2, 0), (2*j+2, 1), (2*j+3, 0), (2*j+3, 1)]):
                    r = w_read(dbp, cs, jj); g.put_mem(104 + (1 if j == 0 else 0) + 8 * dbp + 2 * n, r); nxt.append(r.wr)
        XG = OPT.x_rd_gap if j > 0 else OPT.x_rd_gap0
        xreads = []
        if j < 6:
            for n, (cs, qb) in enumerate([(cs, qb) for cs in (2*j+2, 2*j+3) for qb in range(4)]):
                r = x_read(qb, cs); g.put_mem(XG + 2 * n, r); xreads.append(r)
        if j == 0:
            cons = [(4 * n, R("v", quad0(n), 4) + (R("v", V_S, 32) if n == 0 else [])) for n in range(32)]
        else:
            cons = [(8 * dbp, R("v", V_POOL + 4 * ((2 * dbp) % 8), 8)) for dbp in range(16)]
        if j < 6: cons.append((XG + 24, [w for r in xreads for w in r.wr]))
        cons.sort()
        lead = add_lgkm_waits(g, cons, carried)
        if j < 6:
            k = XG - 2
            while g.pre[k]: k -= 1
            g.pre[k] = [wait_tag(f"x{j+1}")]
        tags = [f"W{j+1}"] if j < 6 else ["K0"]
        k = 100
        while g.pre[k]: k -= 1
        g.pre[k] = [wait_tag(*tags), barrier()] if not OPT.p1_nowait else [barrier()]
        kb = k
        gp = 1
        if OPT.coopw and j + 3 <= 6:
            sc, d = coop_w(j + 3); gp = place_vmem(g, 2, sc, d, kb) + 1
        if j == 0:
            for sc, d in x_items(1): gp = place_vmem(g, gp, sc, d, XG - 3, stack=True) + 2
            k = 48
            while g.pre[k]: k -= 1
            g.pre[k] = [wait_tag("W0b"), barrier()]
            assert k < 52
        for sc, d in early[j]: gp = place_vmem(g, gp + len(sc) - 1, sc, d, kb) + (OPT.early_step if j != 6 else 7)
        if j < 5:
            gx = max(XG + 25, gp)
            for sc, d in x_items(j + 2): gx = place_vmem(g, gx, sc, d, stack=True) + 2
            gpa = max(kb + 2, gx)
        else: gpa = kb + 2
        for sc, d in after[j]: gpa = place_vmem(g, gpa, sc, d, stack=True) + 1
        left = []
        if j == 6:
            for dbp in range(16):
                for qb in range(4):
                    ops = conv_ops((dbp * 4 + qb) * 4, V_Q + (qb * 8 + (dbp >> 1)) * 4 + 2 * (dbp & 1), V_CT + 2 * (qb & 1))
                    if left: left += ops
                    else:
                        _, l2 = place_chain(g, ops, 8 * dbp + 2 * qb + 1 + 5, 128); left += l2
        if lead is not None: a(lead)
        em = g.emit()
        if OPT.p1_drop:
            def keep(x):
                if x.kind in ("dma", "vld"):
                    t = x.meta.get("tag", "")
                    for c in OPT.p1_drop:
                        if t.startswith(c): return False
                return True
            em = [x for x in em if keep(x)]
        if OPT.p1_noread: em = [x for x in em if x.kind != "ds" and not (x.kind == "wait" and "lgkm" in x.meta)]
        o += em
        carried = nxt
        if OPT.p1_steps: o += stamp(f"step{j}")
        if left: a(nop(7)); o += left
    if not OPT.p1_steps: o += stamp("p1_end") + (stamp("rt_p1") if OPT.trip_stamps else [])
    return o

def k_read(t, kb, s):
    return ds_read128("v", V_POOL + 4 * s, V_KA[s & 1], (kslot(t) - L_K) + (s >> 1) * 4096 + kb * 2048)
def v_read(t, db, jj):
    return ds_read_tr("v", V_POOL + 4 * (db % 8) + 2 * jj, V_VA[db & 3], (vslot(t) - L_V) + (db >> 2) * 4096 + jj * 2048)
def Sreg(kb, qb): return V_S + (kb * 4 + qb) * 4
def Preg(buf, qb): return V_P + buf * 16 + qb * 4
def qk_mfmas():
    ms = []
    for i in range(64):
        kb, sp, qb, e = i >> 5, (i >> 3) & 3, (i >> 1) & 3, i & 1
        s = 2 * sp + e; d = Sreg(kb, qb)
        ms.append(mfma("v", d, "v", V_POOL + 4 * s, "v", V_Q + (qb * 8 + s) * 4, None if s == 0 else "v", None if s == 0 else d))
    return ms
def pv_mfmas(t, first):
    ms = []
    for i in range(64):
        db, qb = i >> 2, i & 3
        acc = (db * 4 + qb) * 4
        ms.append(mfma("a", acc, "v", V_POOL + 4 * (db % 8), "v", Preg(t & 1, qb), None if first else "a", None if first else acc))
    return ms
def sm_group(tile, kb, qb):
    s = Sreg(kb, qb); p = Preg(tile & 1, qb) + 2 * kb; mc = V_MC + qb; l = V_L + qb
    f = lambda r: valu(f"v_fma_f32 v{s+r}, v{s+r}, s{S_C}, v{mc}", [f"v{s+r}", f"v{mc}", f"s{S_C}"], [f"v{s+r}"])
    x = lambda r: trans(f"v_exp_f32 v{s+r}, v{s+r}", [f"v{s+r}"], [f"v{s+r}"])
    ad = lambda r: valu(f"v_add_f32 v{l}, v{l}, v{s+r}", [f"v{l}", f"v{s+r}"], [f"v{l}"])
    cv = lambda r: valu(f"v_cvt_pk_bf16_f32 v{p+r//2}, v{s+r}, v{s+r+1}", [f"v{s+r}", f"v{s+r+1}"], [f"v{p+r//2}"])
    return [f(0), f(1), x(0), x(1), f(2), f(3), x(2), x(3), ad(0), ad(1), cv(0), ad(2), ad(3), cv(2)]

def pre_iter():
    o = []; a = o.append
    carried = []
    for s in range(8):
        r = k_read(0, 0, s); a(r); carried.append(r.wr)
    g = Gaps(qk_mfmas())
    for s in range(8): g.put_mem(8 * (s >> 1) + 10 + 4 * (s & 1), k_read(0, 1, s))
    cons = [(8 * p, R("v", V_POOL + 8 * (p % 4), 8)) for p in range(8)]
    a(add_lgkm_waits(g, cons, carried))
    if OPT.kvmin:
        gp = 3
        for kind, t in (("K", 3), ("V", 2)):
            for m, (m0, d) in enumerate(dma_tile(kind, kslot(t) if kind == "K" else vslot(t), f"s{S_T0}", f"{kind}{t}")):
                gp = place_vmem(g, gp, (kv_off(S_T0, t) if m == 0 else []) + [m0], d, stack=True) + 5
    o += g.emit()
    a(wait_tag("K1", "V0")); a(barrier())
    o += kv_off(S_KOFF, 4)
    for m0, d in dma_tile("K", kslot(4), f"s{S_KOFF}", "K4"): a(m0); a(nop(0)); a(d)
    o += kv_off(S_KOFF, 5) + kv_off(S_VOFF, 3)
    carried = []
    for s in range(8):
        r = k_read(1, 0, s); a(r); carried.append(r.wr)
    for qb in range(4):
        m = V_MC + qb; s0 = Sreg(0, qb); s1 = Sreg(1, qb)
        a(valu(f"v_max3_f32 v{m}, v{s0}, v{s0+1}, v{s0+2}", R("v", s0, 3), [f"v{m}"]))
        a(valu(f"v_max3_f32 v{m}, v{m}, v{s0+3}, v{s1}", [f"v{m}", f"v{s0+3}", f"v{s1}"], [f"v{m}"]))
        a(valu(f"v_max3_f32 v{m}, v{m}, v{s1+1}, v{s1+2}", [f"v{m}", f"v{s1+1}", f"v{s1+2}"], [f"v{m}"]))
        a(valu(f"v_max_f32 v{m}, v{m}, v{s1+3}", [f"v{m}", f"v{s1+3}"], [f"v{m}"]))
    o += xlane_reduce([V_MC + q for q in range(4)], "v_max_f32", V_SP)
    for qb in range(4):
        m = V_MC + qb
        a(valu(f"v_mul_f32 v{m}, s{S_C}, v{m}", [f"v{m}", f"s{S_C}"], [f"v{m}"]))
        a(valu(f"v_sub_f32 v{m}, 0, v{m}", [f"v{m}"], [f"v{m}"]))
        a(valu(f"v_mov_b32 v{V_L+qb}, 0", [], [f"v{V_L+qb}"]))
    for kb, qb in [(0, 0), (0, 1), (0, 2), (0, 3), (1, 0), (1, 1)]: o += exposed(sm_group(0, kb, qb))
    o += stamp("pre_iter_end")
    return o, carried

def attn_iter(t, carried, vmw, prev, cur, first=False, adv=True, loopctl=False, extra=None, loop_body=False):
    g = Gaps(qk_mfmas() + pv_mfmas(t, first))
    for s in range(8): g.put_mem(8 * (s >> 1) + 10 + 4 * (s & 1), k_read(t + 1, 1, s))
    for db in range(16):
        for jj in range(2): g.put_mem(44 + 4 * db + 2 * jj, v_read(t, db, jj))
    nxt = []
    if t + 2 <= 31:
        for s, gap in zip(range(8), [108, 110, 112, 114, 116, 120, 124, 127]):
            r = k_read(t + 2, 0, s); g.put_mem(gap, r); nxt.append(r.wr)
    else:
        for db in range(5):
            for jj in range(2):
                r = v_read(t + 1, db, jj); g.put_mem(108 + 4 * db + 2 * jj, r); nxt.append(r.wr)
    cons = [(8 * p, R("v", V_POOL + 8 * (p % 4), 8)) for p in range(8)]
    cons += [(64 + 4 * db, R("v", V_POOL + 4 * (db % 8), 4)) for db in range(16)]
    lead = add_lgkm_waits(g, cons, carried)
    kb = 98
    while g.pre[kb]: kb -= 1
    g.pre[kb] = [vmw, barrier()]
    if OPT.bar_stamps and loop_body:
        g.pre[kb] = [raw("s_memtime s[94:95]", "salu"), vmw, raw("s_memtime s[96:97]", "salu"), barrier(), raw("s_memtime s[98:99]", "salu"),
                     raw("s_waitcnt lgkmcnt(0)", "wait", lgkm=0),
                     salu("s_sub_u32 s96, s96, s94"), salu("s_add_u32 s92, s92, s96"),
                     salu("s_sub_u32 s98, s98, s94"), salu("s_add_u32 s93, s93, s98")]
    gp_prev, gp_cur = OPT.dma_gaps
    placed = [place_vmem(g, gap, [m0], d, kb) for gap, (m0, d) in zip(gp_prev, prev)]
    for gap, (m0, d) in zip(gp_cur, cur): place_vmem(g, gap, [m0], d)
    if adv:
        for reg, srd, at in ((S_VOFF, S_V, (placed[OPT.nv_prev - 1] if OPT.nv_prev else 1) + 1), (S_KOFF, S_K, placed[-1] + 1)):
            k = put_scalar(g, at, salu(f"s_add_u32 s{reg}, s{reg}, 16384", [f"s{reg}"], [f"s{reg}"]))
            k = put_scalar(g, k + 1, salu(f"s_and_b32 s{reg}, s{reg}, 0x7ffff", [f"s{reg}"], [f"s{reg}"]))
            assert k < 100
        if loopctl:
            first_k = placed[-4]
            k = put_scalar(g, 2, salu(f"s_cmp_eq_u32 s{S_LOOP}, 1", [f"s{S_LOOP}"], ["scc"]),
                           salu(f"s_cselect_b32 s{S_K+2}, 0, 524288", ["scc"], [f"s{S_K+2}"]))
            assert k < first_k - 1
    if loopctl:
        k = put_scalar(g, 119, salu(f"s_sub_u32 s{S_LOOP}, s{S_LOOP}, 1", [f"s{S_LOOP}"], [f"s{S_LOOP}"]))
        k = put_scalar(g, k + 1, salu(f"s_cmp_lg_u32 s{S_LOOP}, {OPT.loop_exit}", [f"s{S_LOOP}"], ["scc"]))
        assert k <= 127
        for kk in range(k + 1, 128):
            assert all(x.kind == "wait" for x in g.pre[kk]), "SCC clobbered before the loop branch"
    if extra: extra(g, kb)
    ops = []
    for qb in (2, 3): ops += sm_ops(t, 1, qb, 0, 31 + 2 * qb)
    for qb in range(4): ops += sm_ops(t + 1, 0, qb, 25 + 2 * qb + 6, 100 + 6 * qb)
    for qb in (0, 1): ops += sm_ops(t + 1, 1, qb, 57 + 2 * qb + 6, 124 + 3 * qb)
    left = list_schedule(g, ops)
    if OPT.vfirst:
        cand = [k for k in range(128) if g.mem[k] is not None and g.mem[k].kind == "ds" and len(g.vec[k]) == 1 and g.vec[k][0].kind == "valu"
                and not (set(g.vec[k][0].wr) & set(g.mem[k].rd + g.mem[k].wr))]
        n = min(OPT.vfirst, len(cand))
        for i in range(n): g.vec_first.add(cand[(i * len(cand)) // n])
    if OPT.pad_iter:
        for n in range(OPT.pad_iter): g.post[(n * 128) // OPT.pad_iter + 3].append(nop(3))
    assert not left, f"softmax groups do not fit: {len(left)} left"
    return [lead] + g.emit(), nxt

def safe_attn():
    o = []; a = o.append
    VM, VT, VA_, TMP = 20, 24, 28, 112
    a(label("L_safe_attn")); a(wait_vm(0)); a(raw("s_waitcnt lgkmcnt(0)", "wait", lgkm=0)); a(barrier())
    for r in range(256): a(valu(f"v_accvgpr_write_b32 a{r}, 0", [], [f"a{r}"]))
    for qb in range(4):
        a(valu(f"v_mov_b32 v{VM+qb}, 0xff800000", [], [f"v{VM+qb}"])); a(valu(f"v_mov_b32 v{V_L+qb}, 0", [], [f"v{V_L+qb}"]))
    a(salu(f"s_mov_b32 s{S_KOFF}, 0")); a(salu(f"s_mov_b32 s{S_LOOP}, 32"))
    a(label("L_safe_loop"))
    for kind, slot in (("K", kslot(0)), ("V", vslot(0))):
        for m0, d in dma_tile(kind, slot, f"s{S_KOFF}", "safe"): a(m0); a(nop(0)); a(d)
    a(wait_vm(0)); a(barrier())
    qk = qk_mfmas()
    for kb in range(2):
        for s_ in range(8): a(k_read(0, kb, s_))
        a(wait_lgkm(0)); o += qk[32 * kb:32 * kb + 32]
    a(nop(7)); a(nop(7))
    for qb in range(4):
        t = VT + qb; s0 = Sreg(0, qb); s1 = Sreg(1, qb)
        a(valu(f"v_max3_f32 v{t}, v{s0}, v{s0+1}, v{s0+2}", [], [])); a(valu(f"v_max3_f32 v{t}, v{t}, v{s0+3}, v{s1}", [], []))
        a(valu(f"v_max3_f32 v{t}, v{t}, v{s1+1}, v{s1+2}", [], [])); a(valu(f"v_max_f32 v{t}, v{t}, v{s1+3}", [], []))
    o += xlane_reduce([VT + q for q in range(4)], "v_max_f32", TMP)
    for qb in range(4):
        a(valu(f"v_max_f32 v{VT+qb}, v{VT+qb}, v{VM+qb}", [], []))
        a(valu(f"v_sub_f32 v{VA_+qb}, v{VM+qb}, v{VT+qb}", [], [])); a(valu(f"v_mul_f32 v{VA_+qb}, s{S_C}, v{VA_+qb}", [], []))
        a(trans(f"v_exp_f32 v{VA_+qb}, v{VA_+qb}", [], [])); a(valu(f"v_mov_b32 v{VM+qb}, v{VT+qb}", [], []))
        a(valu(f"v_mul_f32 v{V_MC+qb}, s{S_C}, v{VT+qb}", [], [])); a(valu(f"v_sub_f32 v{V_MC+qb}, 0, v{V_MC+qb}", [], []))
        a(valu(f"v_mul_f32 v{V_L+qb}, v{V_L+qb}, v{VA_+qb}", [], []))
    for r in range(256):
        qb = (r >> 2) & 3; t = TMP + (r & 7)
        a(valu(f"v_accvgpr_read_b32 v{t}, a{r}", [], [])); a(valu(f"v_mul_f32 v{t}, v{t}, v{VA_+qb}", [], [])); a(valu(f"v_accvgpr_write_b32 a{r}, v{t}", [], []))
    for kb in range(2):
        for qb in range(4): o += exposed(sm_group(0, kb, qb))
    pv = pv_mfmas(0, False)
    for half in range(2):
        for db in range(8 * half, 8 * half + 8):
            for jj in range(2):
                a(v_read(0, db, jj))
            if db % 4 == 3: a(wait_lgkm(0))
        a(nop(1)); o += pv[32 * half:32 * half + 32]
    a(salu(f"s_add_u32 s{S_KOFF}, s{S_KOFF}, 16384")); a(salu(f"s_sub_u32 s{S_LOOP}, s{S_LOOP}, 1")); a(salu(f"s_cmp_lg_u32 s{S_LOOP}, 0"))
    a(barrier()); a(raw("s_cbranch_scc1 L_safe_loop", "branch"))
    a(nop(7)); a(nop(7))
    o += xlane_reduce([V_L + q for q in range(4)], "v_add_f32", TMP)
    for qb in range(4): a(trans(f"v_rcp_f32 v{V_L+qb}, v{V_L+qb}", [], []))
    a(nop(0))
    for db in range(16):
        for qb in range(4):
            o += conv_ops((db * 4 + qb) * 4, V_Q + (qb * 8 + (db >> 1)) * 4 + 2 * (db & 1), V_SP + 8 + 2 * (qb & 1))
    o += wo_setup()
    if OPT.fused: o += grp_setup() + [nop(1), mode_load()] + ring_scalars()
    for j in range(4):
        for sc, d in wo_dma(j): o += sc + [nop(0), d]
    a(wait_vm(0)); a(raw("s_branch L_p3_entry", "branch"))
    return o

def last_iter(carried):
    o = []; a = o.append
    for qb in (2, 3): o += exposed(sm_group(31, 1, qb))
    o += xlane_reduce([V_L + q for q in range(4)], "v_add_f32", V_SP)
    a(salu(f"s_mov_b32 s{S_T0}, 0x{f32bits(L_LIMIT):08x}"))
    for qb in range(4):
        a(valu(f"v_cmp_nge_f32 s[{50+2*(qb&1)}:{51+2*(qb&1)}], s{S_T0}, v{V_L+qb}", [f"v{V_L+qb}"], [f"s{50+2*(qb&1)}", f"s{51+2*(qb&1)}"]))
        if qb & 1:
            a(nop(0)); a(salu("s_or_b64 s[50:51], s[50:51], s[52:53]"))
            a(salu("s_mov_b64 s[54:55], s[50:51]") if qb == 1 else salu("s_or_b64 s[54:55], s[54:55], s[50:51]"))
    a(salu("s_cselect_b32 s50, 1, 0"))
    a(salu(f"s_lshl_b32 s51, s{S_W}, 2")); a(salu(f"s_add_u32 s51, s51, {L_VOTE}"))
    a(valu(f"v_mov_b32 v{V_SP}, s50", [], [f"v{V_SP}"])); a(valu(f"v_mov_b32 v{V_SP+1}, s51", [], [f"v{V_SP+1}"]))
    a(I(f"ds_write_b32 v{V_SP+1}, v{V_SP}", "ds", [f"v{V_SP}", f"v{V_SP+1}"], []))
    carried = carried + [[]]
    for qb in range(4): a(trans(f"v_rcp_f32 v{V_L+qb}, v{V_L+qb}", [f"v{V_L+qb}"], [f"v{V_L+qb}"]))
    a(nop(0))
    g = Gaps(pv_mfmas(31, False))
    for db in range(5, 8):
        for jj in range(2): g.put_mem(4 * (db - 5) + 2 * jj, v_read(31, db, jj))
    for db in range(8, 16):
        for jj in range(2): g.put_mem(12 + 4 * (db - 8) + 2 * jj, v_read(31, db, jj))
    cons = [(4 * db, R("v", V_POOL + 4 * (db % 8), 4)) for db in range(16)]
    lead = add_lgkm_waits(g, cons, carried)
    gp = put_wo(g, 2, 2, step=0)
    put_wo(g, 3, gp, step=0)
    left = []
    for db in range(16):
        for qb in range(4):
            ops = conv_ops((db * 4 + qb) * 4, V_Q + (qb * 8 + (db >> 1)) * 4 + 2 * (db & 1), V_SP + 8 + 2 * (qb & 1))
            if left: left += ops
            else:
                _, l2 = place_chain(g, ops, 4 * db + qb + 5, 64); left += l2
    a(lead); o += g.emit()
    a(nop(7)); o += left
    return o

WOBUF = [L_X, L_K, L_K + 32768, L_V, L_V + 32768, L_X, L_K]
V_DWO = 3; V_STO = V_DV
V_FR3 = 32; V_ACC3 = V_P; V_STG = 16
def wo_dma(j):
    out = []
    for i in range(8):
        sreg = S_T0 + (i & 1)
        out.append(([salu(f"s_mov_b32 s{sreg}, {j*128 + i*32*896}", [], [f"s{sreg}"]),
                     salu(f"s_add_u32 m0, s{S_W1K}, {WOBUF[j] + i*4096}", [f"s{S_W1K}"], ["m0"])],
                    tag(dma(V_DWO, S_WO, f"s{sreg}", 0, OPT.wo_flags), f"wo{j}")))
    return out
A_WOS = 100
V_WOW = 39
def wo_stage_loads(j):
    out = []
    for i in range(8):
        sreg = S_T0 + (i & 1)
        out.append(([salu(f"s_mov_b32 s{sreg}, {j*128 + i*32*896}", [], [f"s{sreg}"])],
                    tag(bload_f("a", A_WOS + 32 * (j - 5) + 4 * i, 4, V_DWO, S_WO, f"s{sreg}", 0, OPT.wo_flags), f"wos{j}")))
    return out
def wo_stage_write(j, i):
    r = A_WOS + 32 * (j - 5) + 4 * i
    return I(f"ds_write_b128 v{V_WOW + (j - 5) * 0}, {rng('a', r, 4)} offset:{i*4096}", "ds", [f"v{V_WOW}"] + R("a", r, 4), [])
def wo_setup():
    o = []; a = o.append
    L = f"v{V_LANE}"
    a(valu(f"v_lshrrev_b32 v1, 3, {L}", [L], ["v1"])); a(valu(f"v_and_b32 v2, 7, {L}", [L], ["v2"]))
    a(valu(f"v_lshl_add_u32 v3, s{S_W}, 3, v1", ["v1", f"s{S_W}"], ["v3"]))
    a(valu("v_bfe_u32 v1, v1, 1, 2", ["v1"], ["v1"])); a(valu("v_lshlrev_b32 v1, 1, v1", ["v1"], ["v1"]))
    a(valu("v_xor_b32 v1, v1, v2", ["v1", "v2"], ["v1"])); a(valu("v_lshlrev_b32 v1, 4, v1", ["v1"], ["v1"]))
    a(valu("v_mul_u32_u24 v3, 896, v3", ["v3"], ["v3"]))
    a(valu(f"v_add_u32 v{V_DWO}, v3, v1", ["v3", "v1"], [f"v{V_DWO}"]))
    return o
V_WOT = 2
def wo_touch_setup():
    return [valu(f"v_lshl_add_u32 v{V_WOT}, s{S_W}, 6, v{V_LANE}", [f"v{V_LANE}"], [f"v{V_WOT}"]),
            valu(f"v_mul_u32_u24 v{V_WOT}, 896, v{V_WOT}", [f"v{V_WOT}"], [f"v{V_WOT}"])]
def wo_touch(j): return tag(bload(1, 1, V_WOT, S_WO, "0", j * 128, OPT.wt_flags), "wt")
def put_wo(g, j, start, hi=None, step=3):
    gp = start
    for sc, d in wo_dma(j): gp = place_vmem(g, gp, sc, d, hi) + step
    return gp
def va_shift(delta):
    t = (lambda r: f"v_add_u32 v{r}, {delta}, v{r}") if delta >= 0 else (lambda r: f"v_subrev_u32 v{r}, {-delta}, v{r}")
    return [valu(t(r), [f"v{r}"], [f"v{r}"]) for r in V_VA]

def part_ops(nb, qb):
    acc = V_ACC3 + 4 * ((nb * 4 + qb) % 8)
    st = V_STG + 4 * qb + 2 * (nb & 1)
    li = V_L + qb
    ops = [valu(f"v_mul_f32 v{acc+r}, v{acc+r}, v{li}", [f"v{acc+r}", f"v{li}"], [f"v{acc+r}"]) for r in range(4)]
    ops += [valu(f"v_cvt_pk_bf16_f32 v{st}, v{acc}, v{acc+1}", [f"v{acc}", f"v{acc+1}"], [f"v{st}"]),
            valu(f"v_cvt_pk_bf16_f32 v{st+1}, v{acc+2}, v{acc+3}", [f"v{acc+2}", f"v{acc+3}"], [f"v{st+1}"])]
    return ops

A_FR3 = 0; A_SEL = 224
V_POLLA, V_POLL, V_ONE, V_ZERO, V_RLD, V_OUT = 32, 33, 34, 35, 36, 37
V_RD = 40
V_GRP = V_ARR + 3
def wo_read(nb, s_, jj):
    return ds_read_tr("a", A_FR3 + 4 * (8 * (nb & 1) + s_) + 2 * jj, V_VA[nb], s_ * 4096 + jj * 2048)

V_GA = V_ARR + 2
def grp_setup():
    return [salu(f"s_lshl_b32 s{S_T0}, s{S_G}, 4"), valu(f"v_and_b32 v{V_GA}, 3, v{V_LANE}", [f"v{V_LANE}"], [f"v{V_GA}"]),
            valu(f"v_lshlrev_b32 v{V_GA}, 2, v{V_GA}", [f"v{V_GA}"], [f"v{V_GA}"]), valu(f"v_add_u32 v{V_GA}, s{S_T0}, v{V_GA}", [f"v{V_GA}"], [f"v{V_GA}"])]
V_GA3 = 38
def grp_load(dst, tg, ga=V_GA): return tag(bload(dst, 1, ga, S_DBG, "0", 0, "sc1"), tg)
def splat(x): return x * 0x01010101
def mode_load(): return grp_load(V_ARR, "grp")
def mode_check():
    o = []; a = o.append
    a(salu(f"s_or_b32 s{S_T0}, s{S_XCC}, 0x80")); a(salu(f"s_mul_i32 s50, s{S_T0}, 0x01010101"))
    a(wait_tag("grp"))
    a(valu(f"v_and_b32 v{V_ARR}, 0x87878787, v{V_ARR}", [f"v{V_ARR}"], [f"v{V_ARR}"]))
    a(valu(f"v_cmp_eq_u32 vcc, s50, v{V_ARR}", [f"v{V_ARR}"], ["vcc"])); a(nop(0))
    a(salu("s_cmp_eq_u64 vcc, -1"))
    a(salu(f"s_cselect_b64 s[{S_LOCM}:{S_LOCM+1}], -1, 0"))
    if OPT.force_fallback: a(salu("s_cmp_eq_u32 s50, 0"))
    a(raw("s_cbranch_scc0 L_grp_far", "branch")); a(label("L_grp_ok"))
    f = [label("L_grp_far"), salu(f"s_or_b32 s{S_T0}, s{S_XCC}, 0x80"), valu(f"v_mov_b32 v{V_ARR+1}, s{S_T0}", [], []),
         valu(f"v_mov_b32 v{V_ARR+3}, 0", [], []),
         raw(f"buffer_store_byte v{V_ARR+1}, v{V_ARR+3}, s[{S_DBG}:{S_DBG+3}], s{S_SIG} offen sc1", "salu"), wait_vm(0),
         salu(f"s_mov_b32 s{S_SPIN}, {SPIN_MAX}"), label("L_grp_again"),
         salu(f"s_sub_u32 s{S_SPIN}, s{S_SPIN}, 1"), salu(f"s_cmp_eq_u32 s{S_SPIN}, 0"), raw("s_cbranch_scc1 L_grp_ok", "branch")]
    if not OPT.force_fallback:
        f += [raw(f"buffer_load_dword v{V_ARR}, v{V_GA}, s[{S_DBG}:{S_DBG+3}], 0 offen sc1", "salu"), wait_vm(0),
              valu(f"v_and_b32 v{V_ARR}, 0x87878787, v{V_ARR}", [], []), valu(f"v_cmp_eq_u32 vcc, s50, v{V_ARR}", [], []), nop(0),
              salu("s_cmp_eq_u64 vcc, -1"), salu(f"s_cselect_b64 s[{S_LOCM}:{S_LOCM+1}], -1, 0"), raw("s_cbranch_scc1 L_grp_ok", "branch")]
    f += far_read(V_ARR)
    f += [valu(f"v_and_b32 v{V_ARR+1}, 0x80808080, v{V_ARR}", [], []), valu(f"v_cmp_eq_u32 vcc, 0x80808080, v{V_ARR+1}", [], []), nop(0),
          salu("s_and_b64 s[52:53], vcc, 15"), salu("s_cmp_eq_u64 s[52:53], 15"), raw("s_cbranch_scc0 L_grp_again", "branch"),
          valu(f"v_and_b32 v{V_ARR}, 0x87878787, v{V_ARR}", [], []), valu(f"v_cmp_eq_u32 vcc, s50, v{V_ARR}", [], []), nop(0),
          salu("s_and_b64 s[52:53], vcc, 15"), salu("s_cmp_eq_u64 s[52:53], 15"),
          salu(f"s_cselect_b64 s[{S_LOCM}:{S_LOCM+1}], -1, 0")]
    if OPT.force_fallback: f.append(salu(f"s_mov_b64 s[{S_LOCM}:{S_LOCM+1}], 0"))
    f.append(raw("s_branch L_grp_ok", "branch"))
    OOL.extend(f)
    return o
def far_read(dst, ga=V_GA):
    return [valu(f"v_mov_b32 v{dst}, 0", [], []), valu(f"v_cmp_gt_u32 vcc, 4, v{V_LANE}", [], []),
            raw("s_and_saveexec_b64 s[54:55], vcc", "salu"),
            raw(f"buffer_atomic_add v{dst}, v{ga}, s[{S_DBG}:{S_DBG+3}], 0 offen sc0 sc1", "salu"), wait_vm(0),
            raw("s_mov_b64 exec, s[54:55]", "salu")]

def p3_setup():
    L = f"v{V_LANE}"
    o = [valu(f"v_lshlrev_b32 v{V_STO}, 4, {L}", [L], [f"v{V_STO}"])]
    if OPT.fused:
        o += [valu(f"v_mov_b32 v{V_ZERO}, 0", [], [f"v{V_ZERO}"]), valu(f"v_mov_b32 v{V_GA3}, v{V_GA}", [f"v{V_GA}"], [f"v{V_GA3}"])]
    else: o += far_setup()
    return o

def far_setup():
    o = []; a = o.append
    L = f"v{V_LANE}"
    a(salu(f"s_mul_i32 s{S_PART}, s{S_G}, {7*16*16*2048}"))
    a(salu(f"s_lshl_b32 s{S_T2}, s{S_H}, 15")); a(salu(f"s_add_u32 s{S_RBASE}, s{S_PART}, s{S_T2}"))
    a(salu(f"s_lshl_b32 s{S_T2}, s{S_W}, 17")); a(salu(f"s_add_u32 s{S_PART}, s{S_PART}, s{S_T2}"))
    a(salu(f"s_lshl_b32 s{S_T2}, s{S_H}, 11")); a(salu(f"s_add_u32 s{S_PART}, s{S_PART}, s{S_T2}"))
    if not OPT.fused: return o
    a(salu(f"s_or_b32 s{S_T2}, s{S_XCC}, 0xf0")); a(valu(f"v_mov_b32 v{V_ONE}, s{S_T2}", [], [f"v{V_ONE}"]))
    a(valu(f"v_lshrrev_b32 v1, 5, {L}", [L], ["v1"])); a(valu("v_lshlrev_b32 v1, 11, v1", ["v1"], ["v1"]))
    a(valu(f"v_and_b32 v2, 31, {L}", [L], ["v2"])); a(valu(f"v_lshl_add_u32 v{V_RLD}, v2, 4, v1", ["v1", "v2"], [f"v{V_RLD}"]))
    a(salu(f"s_lshl_b32 s{S_T2}, s{S_W}, 9")); a(valu(f"v_add_u32 v{V_RLD}, s{S_T2}, v{V_RLD}", [f"v{V_RLD}"], [f"v{V_RLD}"]))
    a(valu(f"v_and_b32 v1, 15, {L}", [L], ["v1"])); a(valu(f"v_lshrrev_b32 v2, 4, {L}", [L], ["v2"]))
    a(valu("v_lshrrev_b32 v4, 3, v1", ["v1"], ["v4"])); a(valu("v_and_b32 v5, 1, v2", ["v2"], ["v5"]))
    a(valu("v_and_b32 v48, 1, v1", ["v1"], ["v48"])); a(valu("v_lshlrev_b32 v48, 4, v48", ["v48"], ["v48"]))
    a(valu("v_mov_b32 v49, 0x3f80", [], ["v49"])); a(valu("v_lshlrev_b32 v49, v48, v49", ["v48", "v49"], ["v49"]))
    a(valu("v_cmp_eq_u32 vcc, v4, v5", ["v4", "v5"], ["vcc"])); a(nop(1))
    a(valu("v_cndmask_b32 v49, 0, v49, vcc", ["v49", "vcc"], ["v49"]))
    a(valu("v_bfe_u32 v50, v1, 1, 2", ["v1"], ["v50"]))
    for r in range(4):
        a(valu(f"v_cmp_eq_u32 vcc, {r}, v50", ["v50"], ["vcc"])); a(nop(1))
        a(valu("v_cndmask_b32 v51, 0, v49, vcc", ["v49", "vcc"], ["v51"]))
        a(valu(f"v_accvgpr_write_b32 a{A_SEL+r}, v51", ["v51"], [f"a{A_SEL+r}"]))
    a(salu(f"s_lshl_b32 s{S_T2}, s{S_B}, 8")); a(salu(f"s_lshl_b32 s{S_T3}, s{S_H}, 4")); a(salu(f"s_add_u32 s{S_T2}, s{S_T2}, s{S_T3}"))
    a(valu(f"v_add_u32 v{V_OUT}, s{S_T2}, v1", ["v1"], [f"v{V_OUT}"])); a(valu(f"v_mul_u32_u24 v{V_OUT}, 896, v{V_OUT}", [f"v{V_OUT}"], [f"v{V_OUT}"]))
    a(salu(f"s_mul_i32 s{S_T2}, s{S_BR}, 448")); a(salu(f"s_lshr_b32 s{S_T3}, s{S_W}, 1")); a(salu(f"s_lshl_b32 s{S_T3}, s{S_T3}, 5"))
    a(salu(f"s_add_u32 s{S_T2}, s{S_T2}, s{S_T3}")); a(salu(f"s_and_b32 s{S_T3}, s{S_W}, 1")); a(salu(f"s_lshl_b32 s{S_T3}, s{S_T3}, 3"))
    a(salu(f"s_add_u32 s{S_T2}, s{S_T2}, s{S_T3}"))
    a(valu(f"v_add_u32 v{V_OUT}, s{S_T2}, v{V_OUT}", [f"v{V_OUT}"], [f"v{V_OUT}"]))
    a(valu(f"v_lshl_add_u32 v{V_OUT}, v5, 4, v{V_OUT}", ["v5", f"v{V_OUT}"], [f"v{V_OUT}"]))
    a(valu("v_lshrrev_b32 v4, 1, v2", ["v2"], ["v4"])); a(valu(f"v_lshl_add_u32 v{V_OUT}, v4, 2, v{V_OUT}", ["v4", f"v{V_OUT}"], [f"v{V_OUT}"]))
    a(valu(f"v_lshlrev_b32 v{V_OUT}, 1, v{V_OUT}", [f"v{V_OUT}"], [f"v{V_OUT}"]))
    return o

def handoff_far():
    o = [wait_vm(0), barrier(), raw("buffer_wbl2 sc1", "salu"), wait_vm(0), barrier(),
         raw(f"buffer_store_byte v{V_ONE}, v{V_ZERO}, s[{S_DBG}:{S_DBG+3}], s{S_SIG} offen sc1", "salu"), wait_vm(0),
         salu(f"s_mov_b32 s{S_SPIN}, {SPIN_MAX}"), label("L_far_poll"),
         salu(f"s_sub_u32 s{S_SPIN}, s{S_SPIN}, 1"), salu(f"s_cmp_eq_u32 s{S_SPIN}, 0"), raw("s_cbranch_scc1 L_far_done", "branch")]
    o += far_read(V_POLL, V_GA3)
    o += [valu(f"v_and_b32 v{V_POLL}, 0xf0f0f0f0, v{V_POLL}", [], []), valu(f"v_cmp_eq_u32 vcc, 0xf0f0f0f0, v{V_POLL}", [], []), nop(0),
          salu("s_and_b64 s[52:53], vcc, 15"), salu("s_cmp_eq_u64 s[52:53], 15"), raw("s_cbranch_scc0 L_far_poll", "branch"),
          label("L_far_done"), raw("buffer_inv sc1", "salu"), wait_vm(0)]
    return o

A_PIECE = 0; A_SEL2 = 224
def red_loads(j):
    out = []
    for i in range(8):
        sr = "s52" if i % 2 == 0 else "s53"
        out.append(([salu(f"s_add_u32 {sr}, s{S_RBASE}, {j*16*32768 + i*4096}", [f"s{S_RBASE}"], [sr])],
                    tag(bload_f("a", A_PIECE + 32 * j + 4 * i, 4, V_RLD, S_WS, sr, 0, "sc1"), f"rl{j}")))
    return out
def red_mfmas(j):
    d = V_RD + 4 * (j & 1)
    return [mfma("v", d, "a", A_SEL2, "a", A_PIECE + 32 * j + 4 * i, None if i == 0 else "v", None if i == 0 else d) for i in range(8)]
def red_out(j):
    d = V_RD + 4 * (j & 1)
    return [valu(f"v_cvt_pk_bf16_f32 v{d}, v{d}, v{d+1}", [f"v{d}", f"v{d+1}"], [f"v{d}"]),
            valu(f"v_cvt_pk_bf16_f32 v{d+1}, v{d+2}, v{d+3}", [f"v{d+2}", f"v{d+3}"], [f"v{d+1}"])], tag(bstore(d, 2, V_OUT, S_OUT, "0", j * 128), f"out{j}")

A_RING = 64; A_SEL4 = 96
V_RLD4, V_OUT4, V_FLA, V_FLAG1 = 48, 49, 50, 51
def ring_scalars():
    o = []; a = o.append
    a(salu(f"s_mul_i32 s50, s{S_G}, {OPT.ring * 262144}"))
    a(salu(f"s_lshl_b32 s51, s{S_W}, 16")); a(salu(f"s_add_u32 s{S_RST}, s50, s51"))
    a(salu(f"s_lshl_b32 s51, s{S_H}, 10")); a(salu(f"s_add_u32 s{S_RST}, s{S_RST}, s51"))
    a(salu(f"s_lshl_b32 s51, s{S_H}, 14")); a(salu(f"s_add_u32 s{S_RLD}, s50, s51"))
    a(salu(f"s_mul_i32 s50, s{S_G}, {14*64}"))
    a(salu(f"s_lshl_b32 s51, s{S_W}, 4"))
    a(salu(f"s_add_u32 s{S_FPW}, s50, s51")); a(salu(f"s_add_u32 s{S_FPW}, s{S_FPW}, s{S_H}"))
    a(salu(f"s_add_u32 s{S_FCR}, s50, s51")); a(salu(f"s_add_u32 s{S_FCR}, s{S_FCR}, {CONS_OFF}"))
    a(salu(f"s_lshr_b32 s51, s{S_H}, 2")); a(salu(f"s_lshl_b32 s51, s51, 4"))
    a(salu(f"s_add_u32 s{S_FPR}, s50, s51"))
    a(salu(f"s_lshl_b32 s51, s{S_H}, 2")); a(salu(f"s_add_u32 s{S_FCW}, s50, s51"))
    a(salu(f"s_add_u32 s{S_FCW}, s{S_FCW}, s{S_W}")); a(salu(f"s_add_u32 s{S_FCW}, s{S_FCW}, {CONS_OFF}"))
    return o
def ring_setup():
    o = []; a = o.append
    L = f"v{V_LANE}"
    a(valu(f"v_and_b32 v{V_FLA}, 3, {L}", [L], [f"v{V_FLA}"])); a(valu(f"v_lshlrev_b32 v{V_FLA}, 2, v{V_FLA}", [f"v{V_FLA}"], [f"v{V_FLA}"]))
    a(valu(f"v_mov_b32 v{V_FLAG1}, 1", [], [f"v{V_FLAG1}"]))
    a(valu(f"v_and_b32 v1, 15, {L}", [L], ["v1"])); a(valu(f"v_lshrrev_b32 v2, 4, {L}", [L], ["v2"]))
    a(valu(f"v_lshlrev_b32 v{V_RLD4}, 10, v2", ["v2"], [f"v{V_RLD4}"])); a(valu(f"v_lshl_add_u32 v{V_RLD4}, v1, 4, v{V_RLD4}", ["v1", f"v{V_RLD4}"], [f"v{V_RLD4}"]))
    a(salu(f"s_lshl_b32 s{S_T1}, s{S_W}, 8")); a(valu(f"v_add_u32 v{V_RLD4}, s{S_T1}, v{V_RLD4}", [f"v{V_RLD4}"], [f"v{V_RLD4}"]))
    a(valu("v_and_b32 v4, 1, v1", ["v1"], ["v4"])); a(valu("v_lshlrev_b32 v4, 4, v4", ["v4"], ["v4"]))
    a(valu("v_mov_b32 v5, 0x3f80", [], ["v5"])); a(valu("v_lshlrev_b32 v5, v4, v5", ["v4", "v5"], ["v5"]))
    a(valu("v_lshrrev_b32 v4, 1, v1", ["v1"], ["v4"]))
    for r in range(4):
        a(valu(f"v_cmp_eq_u32 vcc, {r}, v4", ["v4"], ["vcc"])); a(nop(1))
        a(valu("v_cndmask_b32 v52, 0, v5, vcc", ["v5", "vcc"], ["v52"]))
        a(valu(f"v_accvgpr_write_b32 a{A_SEL4+r}, v52", ["v52"], [f"a{A_SEL4+r}"]))
    a(salu(f"s_lshl_b32 s{S_T0}, s{S_B}, 8")); a(salu(f"s_lshl_b32 s{S_T1}, s{S_H}, 4")); a(salu(f"s_add_u32 s{S_T0}, s{S_T0}, s{S_T1}"))
    a(valu(f"v_add_u32 v{V_OUT4}, s{S_T0}, v1", ["v1"], [f"v{V_OUT4}"])); a(valu(f"v_mul_u32_u24 v{V_OUT4}, 896, v{V_OUT4}", [f"v{V_OUT4}"], [f"v{V_OUT4}"]))
    a(salu(f"s_mul_i32 s{S_T0}, s{S_BR}, 448")); a(salu(f"s_lshl_b32 s{S_T1}, s{S_W}, 2")); a(salu(f"s_add_u32 s{S_T0}, s{S_T0}, s{S_T1}"))
    a(valu(f"v_add_u32 v{V_OUT4}, s{S_T0}, v{V_OUT4}", [f"v{V_OUT4}"], [f"v{V_OUT4}"]))
    a(valu(f"v_lshl_add_u32 v{V_OUT4}, v2, 4, v{V_OUT4}", ["v2", f"v{V_OUT4}"], [f"v{V_OUT4}"]))
    a(valu(f"v_lshlrev_b32 v{V_OUT4}, 1, v{V_OUT4}", [f"v{V_OUT4}"], [f"v{V_OUT4}"]))
    a(valu("v_cmp_gt_u32 vcc, 2, v2", ["v2"], ["vcc"])); a(salu(f"s_mov_b32 s{S_T0}, 0x7ff00000")); a(valu(f"v_mov_b32 v4, s{S_T0}", [], ["v4"]))
    a(valu(f"v_cndmask_b32 v{V_OUT4}, v4, v{V_OUT4}, vcc", ["v4", f"v{V_OUT4}", "vcc"], [f"v{V_OUT4}"]))
    return o

def flag_store(base, u, tg):
    return [salu(f"s_add_u32 s55, s{base}, {u*64}", [f"s{base}"], ["s55"])], \
           tag(I(f"buffer_store_byte v{V_FLAG1}, v{V_ZERO}, s[{S_FL}:{S_FL+3}], s55 offen", "vst", [f"v{V_FLAG1}", f"v{V_ZERO}", "s55"], data=[]), tg)
def flag_poll(base, u, dst, tg):
    return [salu(f"s_add_u32 s54, s{base}, {u*64}", [f"s{base}"], ["s54"])], tag(bload(dst, 1, V_FLA, S_FL, "s54", 0, "sc1"), tg)
def flag_check(base, u, dst, tg, name):
    OOL.extend([label(f"L_{name}_spin"), salu(f"s_add_u32 s54, s{base}, {u*64}"), salu(f"s_mov_b32 s{S_SPIN}, {SPIN_MAX}"),
                label(f"L_{name}_again"),
                salu(f"s_sub_u32 s{S_SPIN}, s{S_SPIN}, 1"), salu(f"s_cmp_eq_u32 s{S_SPIN}, 0"), raw(f"s_cbranch_scc1 L_{name}_ok", "branch"),
                raw(f"buffer_load_dword v{dst}, v{V_FLA}, s[{S_FL}:{S_FL+3}], s54 offen sc1", "salu"), wait_vm(0),
                valu(f"v_cmp_ne_u32 vcc, 0x01010101, v{dst}", [], []), nop(0),
                raw(f"s_cbranch_vccnz L_{name}_again", "branch"), raw(f"s_branch L_{name}_ok", "branch")])
    dd = (lambda n: stamp("d_" + n)) if name in (f"prod{OPT.p3detail}", f"cons{OPT.p3detail}") else (lambda n: [])
    return dd(name[:4] + "A") + [wait_tag(tg)] + dd(name[:4] + "B") + [valu(f"v_cmp_ne_u32 vcc, 0x01010101, v{dst}", [f"v{dst}"], ["vcc"]), nop(0),
            raw(f"s_cbranch_vccnz L_{name}_spin", "branch"), label(f"L_{name}_ok")] + dd(name[:4] + "C")
V_PP, V_PC = 53, 54
def ring_loads(u):
    out = []
    for i in range(4):
        sr = "s52" if i % 2 == 0 else "s53"
        out.append(([salu(f"s_add_u32 {sr}, s{S_RLD}, {(u % OPT.ring)*262144 + i*4096}", [f"s{S_RLD}"], [sr])],
                    tag(bload_f("a", A_RING + 16 * (u & 1) + 4 * i, 4, V_RLD4, S_RG, sr, 0, "sc1"), f"rl{u}")))
    return out
def ring_mfmas(u):
    d = V_RD + 4 * (u & 1)
    return [mfma("v", d, "a", A_SEL4, "a", A_RING + 16 * (u & 1) + 4 * i, None if i == 0 else "v", None if i == 0 else d) for i in range(4)]
def ring_out(u):
    d = V_RD + 4 * (u & 1)
    return [valu(f"v_cvt_pk_bf16_f32 v{d}, v{d}, v{d+1}", [f"v{d}", f"v{d+1}"], [f"v{d}"]),
            valu(f"v_cvt_pk_bf16_f32 v{d+1}, v{d+2}, v{d+3}", [f"v{d+2}", f"v{d+3}"], [f"v{d+1}"])], tag(bstore(d, 2, V_OUT4, S_OUT, "0", u * 64, OPT.out_flags), f"out{u}")

def p3_stream(local, carried):
    o = []; a = o.append
    NS, D = OPT.ring, OPT.prod_delay
    Q = lambda u: 8 * u + 7
    if OPT.tmpl == 0:
        T = dict(st=[0, 1, 2, 3], sig=(7, 5), poll=(12, 5), chk=(15, 7), ld=[(16, 7), (17, 7), (18, 7), (19, 7)], csig=(22, 3), out=(30, 5),
                 cpoll=(-4, 3), cchk=(-1, 3), wo=[(-4, 7), (-3, 3), (-3, 7), (-2, 7)], va=((0, 85), (1, 61), (2, 69), (3, 101)))
    else:
        T = dict(st=[0, 2, 4, 5], sig=(8, 5), poll=(13, 7), chk=(16, 7), ld=[(17, 3), (17, 7), (19, 3), (19, 7)], csig=(22, 3), out=(30, 5),
                 cpoll=(-4, 7), cchk=(-1, 3), wo=[(-6, 7), (-2, 7), (-1, 5), (-1, 7)], va=((0, 85), (1, 37), (2, 69), (3, 101)))
    ins = {}
    if local:
        for u in range(14):
            m = 8 * (Q(u) + 22 + D) - 1
            if m < 895: ins[m] = u
    ms = []; pos = {}; redpos = {}
    for m in range(896):
        j, i = m >> 7, m & 127
        nb, qb, s_ = i >> 5, (i >> 3) & 3, i & 7
        acc = V_ACC3 + 4 * ((nb * 4 + qb) % 8)
        pos[m] = len(ms)
        ms.append(mfma("v", acc, "a", A_FR3 + 4 * (8 * (nb & 1) + s_), "v", V_Q + (qb * 8 + s_) * 4,
                       None if s_ == 0 else "v", None if s_ == 0 else acc))
        if m in ins:
            u = ins[m]; redpos[u] = len(ms); ms += ring_mfmas(u)
    g = Gaps(ms); N = g.n
    P = lambda j, i: pos[128 * j + i]
    def G(period, off):
        m = 8 * period + off
        return pos[m] if 0 <= m < 896 else None
    for j in range(7):
        for nb in range(4):
            jn, nbn = (j, nb + 1) if nb < 3 else (j + 1, 0)
            if jn > 6: continue
            for s_ in range(8):
                for jj in range(2): g.put_mem(P(j, 32 * nb + 4 * s_ + 2 * jj), wo_read(nbn, s_, jj))
    cons = []
    for j in range(7):
        for nb in range(4):
            for s_ in (0, 2, 4, 6): cons.append((P(j, 32 * nb + s_), R("a", A_FR3 + 4 * (8 * (nb & 1) + s_), 8)))
    cons.sort()
    def put_vm(k, sc, d):
        assert g.mem[k] is None and not g.post[k], (k, d.text)
        for n, x in enumerate(reversed(sc)):
            kk = k - 1 - n
            assert kk >= 0
            assert not (g.mem[kk] is not None and g.mem[kk].kind == "dma" and "m0" in x.wr)
            g.pre[kk].append(x)
        g.mem[k] = d
    def put_seq(k, seq):
        assert g.mem[k] is None and not g.post[k], k
        g.post[k] = seq
    for j in range(6):
        k = P(j, 91)
        g.pre[k] += ([wait_tag(f"wo{j+1}")] if not (OPT.wo_stage and j + 1 >= 5) else []) + [barrier()]
        sh = va_shift(WOBUF[j + 1] - WOBUF[j])
        for n, at in T['va']:
            kk = P(j, at); g.vec[kk].append(sh[n])
    if OPT.wo_stage:
        items = wo_dma(4) + wo_stage_loads(5) + wo_stage_loads(6)
        slots = [(0, 3), (0, 5), (0, 7), (1, 1), (1, 3), (1, 5), (1, 7)] + [(per, off) for per in range(2, 7) for off in (3, 5, 7)] + [(7, 5), (7, 7)]
        if OPT.tmpl == 1:
            slots = [(0, 3), (0, 5), (0, 7), (1, 1), (1, 3), (1, 5), (1, 7)] + [(per, off) for per in range(2, 7) for off in (3, 5, 7)] + [(7, 5), (7, 7)]
        for (sc, d), (per, off) in zip(items, slots): put_vm(G(per, off), sc, d)
        for j in (5, 6):
            jj_ = j - 3
            g.vec[P(jj_, 1)].insert(0, valu(f"v_add_u32 v{V_WOW}, {(WOBUF[j] - (WOBUF[j-1] if j == 6 else 0)) & 0xffffffff}, v{V_WOW}", [f"v{V_WOW}"], [f"v{V_WOW}"]))
            for i in range(8):
                u0 = 2 * jj_ + (i >> 2)
                per, off = Q(u0) + T['wo'][i & 3][0], T['wo'][i & 3][1]
                k = G(per, off)
                assert g.mem[k] is None
                g.mem[k] = wo_stage_write(j, i)
            u1 = 2 * jj_
            g.pre[G(Q(u1) + T['wo'][0][0], T['wo'][0][1]) - 1].append(wait_tag(f"wos{j}"))
    else:
      for j in (2, 3):
        items = wo_dma(j + 3)
        for n, (sc, d) in enumerate(items):
            u0 = 2 * j + (n >> 2)
            per, off = Q(u0) + T['wo'][n & 3][0], T['wo'][n & 3][1]
            put_vm(G(per, off), sc, d)
    lead = add_lgkm_waits(g, cons, carried)
    stores = {}; sgap = {}
    for u in range(14):
        j, nb = u >> 1, 2 * (u & 1) + 1
        for qb in range(4):
            sreg = S_T2 + (qb & 1)
            if local:
                st = ([salu(f"s_add_u32 s{sreg}, s{S_RST}, {(u % NS)*262144 + qb*16384}", [f"s{S_RST}"], [f"s{sreg}"])],
                      tag(bstore(V_STG + 4 * qb, 4, V_STO, S_RG, f"s{sreg}", 0, OPT.last_st if u >= 14 - NS else ""), f"st{u}"))
            else:
                so = j * 16 * 16 * 2048 + qb * 16 * 2048 + (nb >> 1) * 1024
                st = ([salu(f"s_add_u32 s{sreg}, s{S_PART}, {so}", [f"s{S_PART}"], [f"s{sreg}"])],
                      tag(bstore(V_STG + 4 * qb, 4, V_STO, S_WS, f"s{sreg}", 0), f"st{u}"))
            stores[(u, qb)] = st
            k = G(Q(u) + T['st'][qb], 3)
            sgap[(u, qb)] = k
            if k is not None: put_vm(k, *st)
    done = {}; out_left = []
    if local:
        for u in range(14):
            dd = (lambda n: stamp("d_" + n)) if u == OPT.p3detail else (lambda n: [])
            if u >= NS:
                kp, kc = G(Q(u) + T['cpoll'][0], T['cpoll'][1]), G(Q(u) + T['cchk'][0], T['cchk'][1])
                put_vm(kp, *flag_poll(S_FCR, u - NS, V_PC, f"pc{u}"))
                put_seq(kc, flag_check(S_FCR, u - NS, V_PC, f"pc{u}", f"cons{u}"))
            done[u] = "sig"
            k = G(Q(u) + T['sig'][0], T['sig'][1])
            if k is None or sgap[(u, 3)] is None: continue
            sc, d = flag_store(S_FPW, u, f"sig{u}")
            g.pre[k - 1] += dd("sigA") + [wait_tag(f"st{u}")] + dd("sigB"); put_vm(k, sc, d)
            done[u] = "poll"
            k = G(Q(u) + T['poll'][0] + D, T['poll'][1])
            if k is None: continue
            put_vm(k, *flag_poll(S_FPR, u, V_PP, f"pp{u}"))
            done[u] = "check"
            k = G(Q(u) + T['chk'][0] + D, T['chk'][1])
            if k is None: continue
            put_seq(k, flag_check(S_FPR, u, V_PP, f"pp{u}", f"prod{u}"))
            done[u] = "loads"
            if u not in redpos: continue
            for n, (sc, d) in enumerate(ring_loads(u)): put_vm(G(Q(u) + T['ld'][n][0] + D, T['ld'][n][1]), sc, d)
            g.pre[redpos[u] - 1] += dd("rlA") + [wait_tag(f"rl{u}")] + dd("rlB")
            if u <= 13 - NS: put_vm(G(Q(u) + T['csig'][0] + D, T['csig'][1]), *flag_store(S_FCW, u, f"csig{u}"))
            done[u] = "out"
            cv, st = ring_out(u)
            if u + 1 in redpos:
                g.vec[redpos[u + 1]] += cv
                put_vm(G(Q(u) + T['out'][0] + D, T['out'][1]), [], st)
                done[u] = "all"
    tail_main = []
    for p in range(112):
        j, nb, qb = p >> 4, (p >> 2) & 3, p & 3
        ops = part_ops(nb, qb)
        slots = [G(p + 2, 0), G(p + 2, 1), G(p + 2, 1), G(p + 2, 2), G(p + 2, 4), G(p + 2, 6)]
        if slots[0] is None:
            tail_main += ops
        else:
            for x, k in zip(ops, slots): g.vec[k].append(x)
        if nb & 1:
            u = 2 * j + (nb >> 1)
            if sgap[(u, qb)] is None: tail_main += stores[(u, qb)][0] + [nop(1), stores[(u, qb)][1]]
    if OPT.p3_tiles and local:
        for j in range(1, 7): g.pre[P(j, 0)] = stamp(f"tile{j}") + g.pre[P(j, 0)]
    if lead is not None: a(lead)
    em = g.emit()
    if "allst" in OPT.p3_drop: em = [x for x in em if x.kind != "vst"]
    if "pst" in OPT.p3_drop: em = [x for x in em if not (x.kind == "vst" and x.meta.get("tag", "").startswith("st"))]
    if "nospin" in OPT.p3_drop: em = [x for x in em if not (x.kind == "branch" and "vccnz" in x.text)]
    if "novm" in OPT.p3_drop: em = [x for x in em if not (x.kind == "wait" and "vmtags" in x.meta and not x.meta["vmtags"][0].startswith("wo"))]
    if "nold" in OPT.p3_drop: em = [x for x in em if not (x.kind == "vld" and x.meta.get("tag", "").startswith("rl"))]
    o += stamp("p3_stream_start") if (local or not OPT.fused) else []
    o += em
    if local or not OPT.fused: o += stamp("p3_mfma_end")
    a(nop(7)); o += exposed(tail_main)
    if local:
        todo = [u for u in range(14) if done[u] != "all"]
        for u in todo:
            if done[u] == "sig":
                sc, d = flag_store(S_FPW, u, f"sig{u}"); o += [wait_tag(f"st{u}")] + sc + [d]
        o += stamp("x_last_signal")
        if OPT.early_wb:
            o += [salu(f"s_or_b32 s{S_T0}, s{S_H}, s{S_W}"), salu(f"s_cmp_lg_u32 s{S_T0}, {0 if OPT.early_wb == 1 else 0}"),
                  raw("s_cbranch_scc1 L_no_wb", "branch"), raw("buffer_wbl2 sc1", "salu"), label("L_no_wb")]
        for u in todo:
            if done[u] != "out":
                if done[u] in ("sig", "poll"):
                    sc, d = flag_poll(S_FPR, u, V_PP, f"pp{u}"); o += sc + [d]
                if done[u] in ("sig", "poll", "check"): o += flag_check(S_FPR, u, V_PP, f"pp{u}", f"prod{u}")
                for sc, d in ring_loads(u): o += sc + [d]
                o.append(wait_tag(f"rl{u}"))
                o += ring_mfmas(u); a(nop(7))
            cv, st = ring_out(u); o += cv + [st]
    return o

def phase3():
    o = []; a = o.append
    a(label("L_p3_entry"))
    a(wait_tag("wt", "wo0")); a(raw("s_waitcnt lgkmcnt(0)", "wait", lgkm=0)); a(barrier())
    a(valu(f"v_mov_b32 v1, {L_VOTE}", [], ["v1"]))
    a(ds_read128("v", V_SP, 1, 0)); a(wait_lgkm(0))
    a(valu(f"v_or3_b32 v{V_SP}, v{V_SP}, v{V_SP+1}, v{V_SP+2}", R("v", V_SP, 3), [f"v{V_SP}"]))
    a(valu(f"v_or_b32 v{V_SP}, v{V_SP}, v{V_SP+3}", [f"v{V_SP}", f"v{V_SP+3}"], [f"v{V_SP}"])); a(nop(0))
    a(valu(f"v_readfirstlane_b32 s50, v{V_SP}", [f"v{V_SP}"], ["s50"])); a(nop(3))
    a(salu(f"s_cmp_eq_u32 s{S_SAFE}, 0")); a(salu("s_cselect_b32 s50, s50, 0"))
    a(salu("s_cmp_lg_u32 s50, 0")); a(raw("s_cbranch_scc1 L_restart", "branch"))
    OOL.extend([label("L_restart"), wait_vm(0), raw("s_waitcnt lgkmcnt(0)", "wait", lgkm=0), barrier(),
                salu(f"s_mov_b32 s{S_SAFE}, 1"), raw("s_branch L_again", "branch")])
    o += p3_setup()
    if OPT.fused: o += ring_setup()
    o += va_shift(WOBUF[0] - L_V)
    if OPT.fused: o += mode_check()
    carried = []
    for s_ in range(8):
        for jj in range(2):
            r = wo_read(0, s_, jj); a(r); carried.append(r.wr)
            if len(carried) == 14: a(wait_lgkm(6)); carried = carried[-6:]
    a(barrier())
    if OPT.wo_stage:
        a(valu(f"v_lshlrev_b32 v{V_WOW}, 4, v{V_LANE}", [f"v{V_LANE}"], [f"v{V_WOW}"]))
        a(valu(f"v_add_u32 v{V_WOW}, s{S_W1K}, v{V_WOW}", [f"v{V_WOW}"], [f"v{V_WOW}"]))
    else:
        for sc, d in wo_dma(4): o += sc + [nop(0), d]
    if not OPT.fused:
        return o, p3_stream(False, carried) + stamp("p3_end") + ([wait_vm(0)] if OPT.stamps else []) + stamp("rt_end"), []
    o += [salu(f"s_cmp_eq_u32 s{S_LOCM}, 0"), raw("s_cbranch_scc1 L_p3_far", "branch")]
    loc = p3_stream(True, carried)
    loc += stamp("p3_end") + ([wait_vm(0)] if OPT.stamps else []) + stamp("rt_end")
    far = [label("L_p3_far")] + far_setup() + p3_stream(False, carried) + handoff_far()
    for j in range(7):
        for sc, d in red_loads(j): far += sc + [d]
    for j in range(7):
        far.append(wait_tag(f"rl{j}"))
        far += red_mfmas(j)
        if j > 0:
            cv, stt = red_out(j - 1); far += cv + [stt]
    far.append(nop(7))
    cv, stt = red_out(6); far += cv + [stt]
    far += [wait_vm(0), raw("s_endpgm", "branch")]
    return o, loc, far

def dump_regs(base, n, agpr=False):
    o = [wait_vm(0), raw("s_waitcnt lgkmcnt(0)", "wait", lgkm=0), nop(7), nop(7),
         salu(f"s_lshl_b32 s{S_T0}, s2, 2"), salu(f"s_add_u32 s{S_T0}, s{S_T0}, s{S_W}"),
         salu(f"s_mul_i32 s{S_T0}, s{S_T0}, {n*256}"), valu(f"v_lshlrev_b32 v1, 2, v{V_LANE}", [f"v{V_LANE}"], ["v1"])]
    for r in range(n):
        if agpr:
            o.append(valu(f"v_accvgpr_read_b32 v2, a{base+r}", [f"a{base+r}"], ["v2"])); o.append(bstore(2, 1, 1, S_WS, f"s{S_T0}", 0))
        else:
            o.append(bstore(base + r, 1, 1, S_WS, f"s{S_T0}", 0))
        o.append(salu(f"s_add_u32 s{S_T0}, s{S_T0}, 256"))
        if r % 32 == 31 or agpr: o.append(wait_vm(0))
    return o

def stamp_out():
    if not OPT.stamps: return []
    if OPT.dma_stamps: STAMPS[:] = [f"dma{i}" for i in range(10)] + ["loopcyc"]
    if OPT.bar_stamps: STAMPS.extend(["acc_vm", "acc_bar"])
    n = len(STAMPS)
    o = [raw("s_waitcnt lgkmcnt(0)", "wait", lgkm=0), salu(f"s_cmp_lg_u32 s{S_W}, 0"), raw("s_cbranch_scc1 L_nostamp", "branch")]
    if OPT.stamp_dbg >= 0:
        o += [salu(f"s_cmp_lg_u32 s2, {OPT.stamp_dbg}"), raw("s_cbranch_scc1 L_nostamp", "branch")]
        o += [salu("s_load_dwordx2 s[36:37], s[0:1], 88"), raw("s_waitcnt lgkmcnt(0)", "wait", lgkm=0)]
        o += [salu(f"s_mov_b32 s{S_WS}, s36"), salu(f"s_mov_b32 s{S_WS+1}, s37"), salu(f"s_mov_b32 s{S_WS+2}, 256"), salu(f"s_mov_b32 s{S_T0}, 0")]
    else:
        o.append(salu(f"s_mul_i32 s{S_T0}, s2, 64")); o.append(salu(f"s_add_u32 s{S_T0}, s{S_T0}, {STAMP_OFF}"))
        o.append(salu(f"s_mov_b32 s{S_WS+2}, {STAMP_OFF + 256*64}"))
    o.append(valu("v_mov_b32 v1, 0", [], ["v1"]))
    for k in range(n):
        if OPT.stamp_dbg >= 0:
            ref = 0 if STAMPS[k].startswith("rt") else 1
            o.append(salu(f"s_sub_u32 s{S_T1}, s{S_STAMP+2*k}, s{S_STAMP+2*ref}"))
            o.append(valu(f"v_mov_b32 v2, s{S_T1}", [], ["v2"]))
        elif STAMPS[k] == "loopcyc": o.append(valu("v_mov_b32 v2, s100", [], ["v2"]))
        elif STAMPS[k] == "acc_vm": o.append(valu("v_mov_b32 v2, s92", [], ["v2"]))
        elif STAMPS[k] == "acc_bar": o.append(valu("v_mov_b32 v2, s93", [], ["v2"]))
        else:
            o.append(valu(f"v_mov_b32 v2, s{S_STAMP+2*k}", [], ["v2"]))
        o.append(bstore(2, 1, 1, S_WS, f"s{S_T0}", 4 * k)); o.append(wait_vm(0))
    o.append(label("L_nostamp"))
    return o

def finish(): return [wait_vm(0), label("L_end"), raw("s_endpgm", "branch")]

def build(debug=None):
    _stamp_n[0] = 0; STAMPS.clear(); OOL.clear()
    pre = setup() + phase1()
    if debug == "p1":
        pre += stamp("rt_end")
        resolve_vm(pre, [])
        return pre + stamp_out() + finish()
    if debug == "q":
        resolve_vm(pre, []); check(pre, "pre")
        return pre + dump_regs(V_Q, 128) + finish()
    if OPT.dma_mode == "cluster":
        OPT.dma_gaps = ([21, 23, 25, 27], [101, 103, 105, 107]); OPT.nv_prev = 0
    elif OPT.dma_mode == "cluster2":
        OPT.dma_gaps = ([41, 43, 47, 49], [101, 103, 105, 107]); OPT.nv_prev = 0
    NCUR = len(OPT.dma_gaps[1])
    pre += [salu(f"s_cmp_lg_u32 s{S_SAFE}, 0"), raw("s_cbranch_scc1 L_safe_attn", "branch")]
    p, carried = pre_iter(); pre += p
    def batch(t):
        return dma_tile("V", vslot(t + 3), f"s{S_VOFF}", f"V{t+3}") + dma_tile("K", kslot(t + 5), f"s{S_KOFF}", f"K{t+5}")
    pre += wo_setup()
    if OPT.fused: pre += grp_setup()
    def ex0(g, kb):
        put_wo(g, 0, 3, kb, step=8)
    vf0 = OPT.vfirst
    if OPT.early_trips: OPT.vfirst = OPT.vfirst_early
    s0, carried = attn_iter(0, carried, wait_tag("V1", "K2"), [], batch(0)[:NCUR], first=True, adv=False, extra=ex0)
    OPT.vfirst = vf0
    pre += s0
    pre.append(salu(f"s_mov_b32 s{S_LOOP}, 7"))
    if OPT.bar_stamps: pre += [salu("s_mov_b32 s92, 0"), salu("s_mov_b32 s93, 0")]
    pre += stamp("loop_start") + (stamp("rt_ls") if (OPT.bar_stamps or OPT.trip_stamps) else [])
    def loop_body(name):
        nonlocal carried
        lp = [label(name)]
        for u in range(4):
            t = 1 + u
            s, carried = attn_iter(t, carried, wait_vm(12), batch(t - 1)[NCUR:], batch(t)[:NCUR], loopctl=(u == 3), loop_body=True)
            if OPT.dma_stamps and u == 1:
                s2 = []; n = 0
                for x in s:
                    if x.kind == "dma" and n < 5:
                        s2 += [raw(f"s_memtime s[{80+4*n}:{81+4*n}]", "salu"), x, raw(f"s_memtime s[{82+4*n}:{83+4*n}]", "salu")]; n += 1
                    else: s2.append(x)
                s = s2
            lp += s
        return lp
    first_loop = []
    if OPT.early_trips:
        vf = OPT.vfirst; OPT.vfirst = OPT.vfirst_early
        OPT.loop_exit = 7 - OPT.early_trips
        first_loop = loop_body("L_attn_early") + [raw("s_cbranch_scc1 L_attn_early", "branch")]
        OPT.vfirst = vf; OPT.loop_exit = 0
    loop = loop_body("L_attn")
    if OPT.trip_stamps:
        loop += [raw("s_memtime s[98:99]", "salu"), raw("s_memrealtime s[100:101]", "salu"), raw("s_waitcnt lgkmcnt(0)", "wait", lgkm=0),
                 salu(f"s_mov_b32 s99, m0"), salu(f"s_mov_b32 m0, s{S_LOOP}"), nop(0), valu(f"v_writelane_b32 v1, s98, m0", ["s98"], ["v1"]),
                 salu(f"s_add_u32 m0, s{S_LOOP}, 8"), nop(0), valu(f"v_writelane_b32 v1, s100, m0", ["s100"], ["v1"]),
                 salu("s_mov_b32 m0, s99"), salu(f"s_cmp_lg_u32 s{S_LOOP}, 0")]
    if OPT.loop_nodma: loop = [x for x in loop if x.kind != "dma"]
    if OPT.loop_nods: loop = [x for x in loop if x.kind != "ds" and not (x.kind == "wait" and "lgkm" in x.meta and x.meta["lgkm"] > 0)]
    if OPT.loop_nomfma: loop = [(nop(1) if x.kind == "mfma" else x) for x in loop]
    if OPT.loop_novalu: loop = [x for x in loop if x.kind not in ("valu", "trans")]
    if OPT.loop_dma_every > 1:
        cnt = [0]
        def keep(x):
            if x.kind != "dma": return True
            cnt[0] += 1
            return cnt[0] % OPT.loop_dma_every == 0
        loop = [x for x in loop if keep(x)]
    loop.append(raw("s_cbranch_scc1 L_attn", "branch"))
    post = stamp("loop_end") + (stamp("rt_le") if OPT.bar_stamps else [])
    if OPT.trip_stamps:
        post += [valu(f"v_lshlrev_b32 v2, 2, v{V_LANE}", [], ["v2"]), salu(f"s_mul_i32 s{S_T1}, s2, 64"),
                 salu(f"s_add_u32 s{S_T1}, s{S_T1}, {STAMP_OFF + 256*64}"), salu(f"s_mov_b32 s{S_WS+2}, {STAMP_OFF + 2*256*64}"),
                 valu("v_cmp_gt_u32 vcc, 16, v0", ["v0"], ["vcc"]), salu(f"s_cmp_eq_u32 s{S_W}, 0"), raw("s_cselect_b64 s[50:51], vcc, 0", "salu"),
                 raw("s_mov_b64 s[54:55], exec", "salu"), raw("s_mov_b64 exec, s[50:51]", "salu"), raw("s_cbranch_execz L_notrip", "branch"),
                 raw(f"buffer_store_dword v1, v2, s[{S_WS}:{S_WS+3}], s{S_T1} offen", "salu"), wait_vm(0), label("L_notrip"), raw("s_mov_b64 exec, s[54:55]", "salu"), wait_vm(0)]
    def ex29(g, kb):
        if OPT.fused: place_vmem(g, 40, [], mode_load(), kb)
        gp = 50
        for j in OPT.wo_touch: gp = place_vmem(g, gp, [], wo_touch(j), kb) + 12
    post += wo_touch_setup()
    s, carried = attn_iter(29, carried, wait_tag("V30", "K32"), batch(28)[NCUR:4], [], adv=False,
                           extra=ex29)
    post += s
    def ex30(g, kb):
        put_wo(g, 1, 3, kb, step=8)
        if OPT.fused:
            k = 2
            for x in ring_scalars(): k = put_scalar(g, k, x) + 1
    s, carried = attn_iter(30, carried, wait_tag("V31"), [], [], adv=False, extra=ex30)
    post += s
    post += last_iter(carried)
    post += stamp("attn_end")
    if debug == "o":
        tailq = dump_regs(V_Q, 128)
    elif debug == "l":
        tailq = dump_regs(V_L, 4)
    else:
        common, loc, far = phase3()
        tailq = common
    post += tailq
    q = resolve_vm(pre, [])
    qexit = ["V30"] * 4 + ["K32"] * 4 + ["V31"] * NCUR
    qb_ = resolve_vm(post, qexit)
    if debug is None:
        resolve_vm(loc, qb_); resolve_vm(far, qb_)
        if far and not OPT.p3_drop: check(loop[1:] + post + far[1:], "loop+post+far", init_lgkm=[x.wr for x in pre if x.kind == "ds"][-8:], init_vm=[[]] * (8 + NCUR))
        post = post + loc
        OOL.extend(far)
    if not (OPT.p1_nowait or OPT.p1_noread or OPT.p1_drop or OPT.loop_nodma or OPT.loop_dma_every > 1 or OPT.loop_nods or OPT.loop_nomfma or OPT.loop_novalu): check(pre + loop[1:] + loop[1:], "pre+loop")
    if not (OPT.p3_drop or OPT.loop_nodma or OPT.loop_dma_every > 1 or OPT.loop_nods or OPT.loop_nomfma or OPT.loop_novalu): check(loop[1:] + post, "loop+post", init_lgkm=[x.wr for x in pre if x.kind == "ds"][-8:], init_vm=[[]] * (8 + NCUR))
    OOL.extend(safe_attn())
    if first_loop: check(pre + first_loop[1:] + first_loop[1:] + loop[1:], "pre+early+loop")
    return pre + first_loop + loop + post + stamp_out() + finish() + OOL

def reduce_kernel():
    o = []; a = o.append
    a(salu("s_cmp_ge_u32 s2, 256")); a(raw("s_cbranch_scc1 R_end", "branch"))
    a(salu("s_load_dwordx2 s[4:5], s[0:1], 80")); a(salu("s_load_dwordx2 s[6:7], s[0:1], 96"))
    a(valu("v_lshrrev_b32 v1, 6, v0", ["v0"], ["v1"])); a(valu("v_and_b32 v0, 63, v0", ["v0"], ["v0"]))
    a(valu("v_readfirstlane_b32 s32, v1", ["v1"], ["s32"]))
    a(salu("s_lshr_b32 s33, s2, 4")); a(salu("s_and_b32 s34, s2, 15"))
    a(salu("s_lshr_b32 s35, s33, 3")); a(salu("s_and_b32 s36, s33, 7"))
    a(salu("s_lshr_b32 s37, s32, 1")); a(salu("s_and_b32 s38, s32, 1"))
    a(valu("v_lshrrev_b32 v2, 5, v0", ["v0"], ["v2"])); a(valu("v_lshlrev_b32 v2, 11, v2", ["v2"], ["v2"]))
    a(valu("v_and_b32 v3, 31, v0", ["v0"], ["v3"])); a(valu("v_lshl_add_u32 v2, v3, 4, v2", ["v3", "v2"], ["v2"]))
    a(salu("s_lshl_b32 s39, s37, 10")); a(salu("s_lshl_b32 s40, s38, 9")); a(salu("s_add_u32 s39, s39, s40"))
    a(valu("v_add_u32 v2, s39, v2", ["v2"], ["v2"]))
    a(valu("v_and_b32 v8, 15, v0", ["v0"], ["v8"])); a(valu("v_lshrrev_b32 v9, 4, v0", ["v0"], ["v9"]))
    a(valu("v_lshrrev_b32 v10, 3, v8", ["v8"], ["v10"])); a(valu("v_and_b32 v11, 1, v9", ["v9"], ["v11"]))
    a(valu("v_and_b32 v12, 1, v8", ["v8"], ["v12"])); a(valu("v_lshlrev_b32 v12, 4, v12", ["v12"], ["v12"]))
    a(valu("v_mov_b32 v13, 0x3f80", [], ["v13"])); a(valu("v_lshlrev_b32 v13, v12, v13", ["v12", "v13"], ["v13"]))
    a(valu("v_cmp_eq_u32 vcc, v10, v11", ["v10", "v11"], ["vcc"])); a(nop(1))
    a(valu("v_cndmask_b32 v13, 0, v13, vcc", ["v13", "vcc"], ["v13"]))
    a(valu("v_bfe_u32 v14, v8, 1, 2", ["v8"], ["v14"]))
    for r in range(4):
        a(valu(f"v_cmp_eq_u32 vcc, {r}, v14", ["v14"], ["vcc"])); a(nop(1))
        a(valu(f"v_cndmask_b32 v{4+r}, 0, v13, vcc", ["v13", "vcc"], [f"v{4+r}"]))
    a(salu("s_lshl_b32 s41, s36, 8")); a(salu("s_lshl_b32 s42, s34, 4")); a(salu("s_add_u32 s41, s41, s42"))
    a(valu("v_add_u32 v3, s41, v8", ["v8"], ["v3"])); a(valu("v_mul_u32_u24 v3, 896, v3", ["v3"], ["v3"]))
    a(salu("s_mul_i32 s42, s35, 448")); a(salu("s_lshl_b32 s43, s37, 5")); a(salu("s_add_u32 s42, s42, s43"))
    a(salu("s_lshl_b32 s43, s38, 3")); a(salu("s_add_u32 s42, s42, s43"))
    a(valu("v_add_u32 v3, s42, v3", ["v3"], ["v3"]))
    a(valu("v_lshl_add_u32 v3, v11, 4, v3", ["v11", "v3"], ["v3"]))
    a(valu("v_lshrrev_b32 v10, 1, v9", ["v9"], ["v10"])); a(valu("v_lshl_add_u32 v3, v10, 2, v3", ["v10", "v3"], ["v3"]))
    a(valu("v_lshlrev_b32 v3, 1, v3", ["v3"], ["v3"]))
    a(raw("s_waitcnt lgkmcnt(0)", "wait", lgkm=0))
    for base, lo, size in ((8, 6, 16 * 7 * 16 * 16 * 2048), (12, 4, 8 * 256 * 896 * 2)):
        a(salu(f"s_mov_b32 s{base}, s{lo}")); a(salu(f"s_mov_b32 s{base+1}, s{lo+1}"))
        a(salu(f"s_mov_b32 s{base+2}, {size}")); a(salu(f"s_mov_b32 s{base+3}, 0x20000"))
    a(salu(f"s_mul_i32 s44, s33, {7*16*32768}")); a(salu("s_lshl_b32 s45, s34, 15")); a(salu("s_add_u32 s44, s44, s45"))
    for j in range(7):
        for i in range(8):
            a(salu(f"s_add_u32 s46, s44, {j*16*32768 + i*4096}"))
            a(tag(bload(16 + (j * 8 + i) * 4, 4, 2, 8, "s46", 0), f"p{j}"))
    for j in range(7):
        a(wait_tag(f"p{j}"))
        d = 240 + 4 * (j & 1)
        for i in range(8):
            a(mfma("v", d, "v", 4, "v", 16 + (j * 8 + i) * 4, None if i == 0 else "v", None if i == 0 else d))
        a(nop(7))
        a(valu(f"v_cvt_pk_bf16_f32 v{d}, v{d}, v{d+1}", [f"v{d}", f"v{d+1}"], [f"v{d}"]))
        a(valu(f"v_cvt_pk_bf16_f32 v{d+1}, v{d+2}, v{d+3}", [f"v{d+2}", f"v{d+3}"], [f"v{d+1}"]))
        a(tag(bstore(d, 2, 3, 12, "0", j * 128), "o"))
    resolve_vm(o, []); check(o, "reduce")
    if OPT.stamps and OPT.stamp_fwd >= 0:
        o += [wait_vm(0), salu("s_cmp_lg_u32 s2, 0"), raw("s_cbranch_scc1 R_end", "branch"),
              salu("s_load_dwordx2 s[20:21], s[0:1], 88"), raw("s_waitcnt lgkmcnt(0)", "wait", lgkm=0),
              salu("s_mov_b32 s16, s20"), salu("s_mov_b32 s17, s21"), salu("s_mov_b32 s18, 64"), salu("s_mov_b32 s19, 0x20000"),
              salu(f"s_mov_b32 s10, {16*7*16*16*2048 + 256*64}"), salu(f"s_mov_b32 s46, {16*7*16*16*2048} + 64*{OPT.stamp_fwd}"),
              valu("v_lshlrev_b32 v2, 2, v0", ["v0"], ["v2"]), bload(3, 1, 2, 8, "s46", 0), wait_vm(0), bstore(3, 1, 2, 16, "0", 0)]
    o += [wait_vm(0), label("R_end"), raw("s_endpgm", "branch")]
    return o

KD = """.section .rodata,"a"
.p2align 6
.amdhsa_kernel {name}
  .amdhsa_next_free_vgpr {vgpr}
  .amdhsa_next_free_sgpr 102
  .amdhsa_accum_offset 256
  .amdhsa_group_segment_fixed_size 0
  .amdhsa_kernarg_size 104
  .amdhsa_user_sgpr_count 2
  .amdhsa_user_sgpr_kernarg_segment_ptr 1
  .amdhsa_system_sgpr_workgroup_id_x 1
.end_amdhsa_kernel
"""
def header_comments():
    ref = open("cdna_kernels/" + NAME + ".s.ref").read().splitlines()
    out = []
    for l in ref:
        if l.startswith("; Override launch") or not l.startswith(";"): break
        out.append(l)
    return out

def stream_kernel():
    t = """
  s_cmp_ge_u32 s2, 256
  s_cbranch_scc1 S_end
  s_load_dwordx2 s[4:5], s[0:1], 8
  s_load_dwordx2 s[6:7], s[0:1], 96
  s_load_dwordx2 s[8:9], s[0:1], 48
  v_lshrrev_b32 v2, 6, v0
  s_nop 0
  v_readfirstlane_b32 s24, v2
  v_and_b32 v1, 63, v0
  v_lshlrev_b32 v14, 4, v1
  s_nop 2
  s_lshl_b32 s25, s24, 12
  v_add_u32 v14, s25, v14
  s_waitcnt lgkmcnt(0)
  s_cmp_lt_u32 s2, 128
  s_cselect_b32 s36, s4, s8
  s_cselect_b32 s37, s5, s9
  s_mov_b32 s38, 0x4000000
  s_mov_b32 s39, 0x20000
  s_and_b32 s32, s2, 127
  s_lshl_b32 s32, s32, 19
  s_barrier
  s_memrealtime s[12:13]
  s_mov_b32 s20, 0
S_loop:
  s_mov_b32 m0, s25
  s_nop 0
  buffer_load_dwordx4 v14, s[36:39], s32 offen nt lds
  buffer_load_dwordx4 v14, s[36:39], s32 offen offset:1024 nt lds
  buffer_load_dwordx4 v14, s[36:39], s32 offen offset:2048 nt lds
  buffer_load_dwordx4 v14, s[36:39], s32 offen offset:3072 nt lds
  s_add_u32 s32, s32, 16384
  s_waitcnt vmcnt(8)
  s_barrier
  s_add_u32 s20, s20, 1
  s_cmp_lt_u32 s20, 32
  s_cbranch_scc1 S_loop
  s_waitcnt vmcnt(0)
  s_barrier
  s_memrealtime s[16:17]
  s_waitcnt lgkmcnt(0)
  s_sub_u32 s16, s16, s12
  s_mov_b32 s40, s6
  s_mov_b32 s41, s7
  s_mov_b32 s42, %d
  s_mov_b32 s43, 0x20000
  s_mul_i32 s33, s2, 64
  s_add_u32 s33, s33, %d
  v_mov_b32 v2, s16
  v_mov_b32 v1, 0
  buffer_store_dword v2, v1, s[40:43], s33 offen
  s_waitcnt vmcnt(0)
S_end:
  s_endpgm""" % (16*7*16*16*2048 + 256*64, 16*7*16*16*2048 + 60)
    return t

def assemble_file(debug=None):
    main = build(debug)
    red = reduce_kernel()
    k1 = NAME + "_kernel"; k2 = "reduce_heads_kernel"
    L = header_comments()
    if OPT.stream0: L.append(f"; @launch kernel=stream_test_kernel grid=(256,1,1) block=(256,1,1) lds={LDS_BYTES}")
    if OPT.fused and not OPT.stream0:
        L.append(f"; @launch grid=(256,1,1) block=(256,1,1) lds={LDS_BYTES}")
    else:
        L.append(f"; @launch kernel={k1} grid=(256,1,1) block=(256,1,1) lds={LDS_BYTES}")
        if debug is None and not OPT.fused: L.append(f"; @launch kernel={k2} grid=(256,1,1) block=(256,1,1) lds=0")
    L.append('.amdgcn_target "amdgcn-amd-amdhsa--gfx950"')
    L.append(".text")
    for nm, body in ((k1, main), (k2, red)) if not OPT.fused else ((k1, main),):
        L += [f".globl {nm}", ".p2align 8", f".type {nm},@function", f"{nm}:", text(body)]
    if OPT.stream0: L += [".globl stream_test_kernel", ".p2align 8", ".type stream_test_kernel,@function", "stream_test_kernel:", stream_kernel()]
    L.append(KD.format(name=k1, vgpr=512))
    if not OPT.fused: L.append(KD.format(name=k2, vgpr=256))
    if OPT.stream0: L.append(KD.format(name="stream_test_kernel", vgpr=512))
    return "\n".join(L) + "\n"

if __name__ == "__main__":
    dbg = sys.argv[2] if len(sys.argv) > 2 and sys.argv[2] != "none" else None
    for kv in sys.argv[3:]:
        k, v = kv.split("=")
        v = v.replace("+", " ")
        setattr(OPT, k, {"True": True, "False": False, "()": ()}.get(v, int(v) if v.lstrip("-").isdigit() else (eval(v) if v.startswith("(") else v)))
    open(sys.argv[1], "w").write(assemble_file(dbg))
    print("stamps:", STAMPS)
```

```python
import math, struct, sys
from core import *

NAME = "concat_heads__mha_block_cached__mha_block_cached__near_ridge"
def f32bits(x): return struct.unpack("<I", struct.pack("<f", x))[0]
CSC = math.log2(math.e) / 16.0

S_X, S_WQ, S_K, S_V, S_WO, S_WS, S_OUT = 4, 8, 12, 16, 20, 24, 28
S_W, S_W1K = 32, 33
S_QB = ["0", "s34", "s35", "s62"]
S_C = 63
S_KOFF, S_VOFF = 64, 65
S_LOOP = 66
S_T0, S_T1, S_T2, S_T3 = 67, 68, 69, 70
S_G, S_H, S_B, S_BR = 71, 72, 73, 74
S_WOFF = 76
S_PART = 77
S_WCUR, S_WSTEP, S_XSTEP = 78, 79, 75
S_FL, S_DBG = 36, 40
S_LOCM = 44
S_RBASE, S_SIG, S_POLL, S_XCC = 46, 47, 48, 49
S_RG = 56
S_SPIN = 62
S_SAFE = 3
S_ROT = 52
S_PFO = 53
S_RST, S_RLD, S_FPW, S_FPR, S_FCW, S_FCR = 60, 61, 75, 78, 79, 76
S_STAMP = 80
V_LANE = 0
V_KA = [4, 5]
V_VA = [6, 7, 8, 9]
V_DK, V_DV = 10, 11
V_L = 12
V_MC = 16
V_SP = 20
V_POOL = 32
V_S = 64
V_P = 96
V_Q = 128
V_XA = 20; V_DW = 21; V_WA = [[22, 23], [24, 25], [26, 27]]
V_CT = 28
V_ARR = 24
L_K = 0; L_V = 65536; L_X = 131072
def kslot(t): return L_K + 16384 * (t % 4)
def vslot(t): return L_V + 16384 * (t % 4)
LDS_BYTES = 163840
L_VOTE = L_V + 2 * 16384
L_LIMIT = 2.0 ** 30

PART_BYTES = 16 * 7 * 16 * 16 * 2048
FLAG_BYTES = 16 * 7 * 4 * 64
STAMP_OFF = PART_BYTES + 32768
RING_OFF = PART_BYTES + (1 << 20)
RING_BYTES = 32 << 20
CONS_OFF = 16384
SPIN_MAX = 1 << 19
class Opt:
    kv_flags = "nt"
    w_flags = ""
    x_flags = ""
    wo_flags = ""
    st_flags = ""
    stamps = False
    tail2 = True
    tmpl = 0
    wo_stage = False
    p3_tiles = False
    early_trips = 0
    vfirst_early = 37
    loop_exit = 0
    xwarm = False
    kvmin = False
    vfirst = 0
    dma_stamps = False
    rot = 0
    pad_iter = 0
    last_st = ''
    out_flags = ''
    coopw = False
    coopw_init = 2
    pf_flags = ''
    early_wb = 0
    wt_flags = ''
    prod_delay = 0
    ring = 4
    vm_space = 0
    p3_drop = ''
    wo_step = 13
    cons_chk = 22
    wo_touch = (4, 5, 6)
    red_m = 200
    cons_poll = 50
    ld_min = 16
    stamp_skip = 'p1_first_data,pre_iter_end'
    p3detail = -1
    st_lag = 21
    force_fallback = False
    red_at = 60
    sig_lag = 28
    poll_lag = 22
    chk_lag = 22
    fused = True
    stream0 = False
    loop_nods = False
    loop_nomfma = False
    loop_novalu = False
    loop_nodma = False
    loop_dma_every = 1
    bar_stamps = False
    trip_stamps = False
    dma_mode = 'spread'
    dma_gaps = ([5, 21, 37, 53, 69, 85], [101, 117])
    nv_prev = 2
    stamp_fwd = -1
    stamp_dbg = -1
    x_rd_gap0 = 65
    x_rd_gap = 33
    p1_steps = False
    p1_drop = ''
    rev = True
    init_w = 2
    early_step = 2
    x_gap = 60
    p1_nowait = False
    p1_noread = False
    wring = 3
    kvpf = 'early'
    coopx = False
    init_more = 0
OPT = Opt()

def wait_tag(*tags): return I("s_waitcnt vmcnt(?)", "wait", vmtags=list(tags))
def tag(ins, t):
    ins.meta["tag"] = t; return ins
def resolve_vm(stream, queue):
    q = list(queue)
    for ins in stream:
        if ins.kind in ("dma", "vld", "vst"):
            q.append(ins.meta.get("tag", "?"))
        elif ins.kind == "wait":
            if "vmtags" in ins.meta:
                idx = [n for n, t in enumerate(q) if t in ins.meta["vmtags"]]
                n = len(q) - 1 - max(idx) if idx else len(q)
                n = min(n, 63)
                ins.text = f"s_waitcnt vmcnt({n})"; ins.meta["vm"] = n
            if "vm" in ins.meta:
                n = ins.meta["vm"]
                if len(q) > n: q = q[len(q) - n:] if n else []
    return q

_stamp_n = [0]
def stamp(name):
    if not OPT.stamps: return []
    if OPT.dma_stamps:
        if name == "loop_start": return [raw("s_memtime s[100:101]", "salu"), raw("s_waitcnt lgkmcnt(0)", "wait", lgkm=0)]
        if name == "loop_end": return [raw("s_memtime s[76:77]", "salu"), raw("s_waitcnt lgkmcnt(0)", "wait", lgkm=0), salu("s_sub_u32 s100, s76, s100")]
        return []
    if OPT.stamp_skip and name in OPT.stamp_skip.split(","): return []
    if OPT.p3detail >= 0 and not name.startswith("d_") and name not in ("rt_end",): return []
    if OPT.bar_stamps and name not in ("rt_ls", "rt_le", "loop_start", "loop_end", "rt_end"): return []
    n = _stamp_n[0]; _stamp_n[0] += 1
    STAMPS.append(name)
    op = "s_memrealtime" if name.startswith("rt") else "s_memtime"
    return [raw(f"{op} s[{S_STAMP+2*n}:{S_STAMP+2*n+1}]", "salu")]
STAMPS = []

def m0_set(base): return salu(f"s_add_u32 m0, s{S_W1K}, {base}", [f"s{S_W1K}"], ["m0"])

def dma_tile(kind, slot_base, soff, tg):
    voff, srd, fl = {"K": (V_DK, S_K, OPT.kv_flags), "V": (V_DV, S_V, OPT.kv_flags), "W": (V_DW, S_WQ, OPT.w_flags)}[kind]
    return [(m0_set(slot_base + dc * 3968), tag(dma(voff, srd, soff, dc * 128, fl), tg)) for dc in range(4)]

def setup():
    o = []; a = o.append
    a(salu("s_cmp_ge_u32 s2, 256")); a(raw("s_cbranch_scc1 L_end", "branch"))
    o += stamp("rt_start") + stamp("start")
    a(valu("v_lshrrev_b32 v1, 6, v0", ["v0"], ["v1"]))
    a(valu(f"v_and_b32 v{V_LANE}, 63, v0", ["v0"], ["v0"]))
    a(salu(f"s_mov_b32 s{S_SAFE}, 0"))
    a(valu(f"v_readfirstlane_b32 s{S_W}, v1", ["v1"], [f"s{S_W}"]))
    a(label("L_again"))
    a(salu("s_load_dwordx16 s[36:51], s[0:1], 0")); a(salu("s_load_dwordx8 s[52:59], s[0:1], 64"))
    a(salu("s_load_dwordx2 s[60:61], s[0:1], 96"))
    a(nop(3))
    a(salu(f"s_and_b32 s{S_T0}, s2, 7")); a(salu(f"s_lshr_b32 s{S_T1}, s2, 3"))
    a(salu(f"s_and_b32 s{S_H}, s{S_T1}, 15")); a(salu(f"s_lshr_b32 s{S_T1}, s{S_T1}, 4"))
    a(salu(f"s_lshl_b32 s{S_G}, s{S_T0}, 1")); a(salu(f"s_add_u32 s{S_G}, s{S_G}, s{S_T1}"))
    a(salu(f"s_lshr_b32 s{S_BR}, s{S_G}, 3")); a(salu(f"s_and_b32 s{S_B}, s{S_G}, 7"))
    a(salu(f"s_lshl_b32 s{S_W1K}, s{S_W}, 10"))
    if OPT.rot:
        a(salu(f"s_and_b32 s{S_T0}, s2, 7")); a(salu(f"s_mul_i32 s{S_T0}, s{S_T0}, {OPT.rot}")); a(salu(f"s_lshr_b32 s{S_T1}, s2, 3"))
        a(salu(f"s_add_u32 s{S_T0}, s{S_T0}, s{S_T1}")); a(salu(f"s_and_b32 s{S_T0}, s{S_T0}, 31")); a(salu(f"s_lshl_b32 s33, s{S_T0}, 14") if False else salu(f"s_lshl_b32 s{S_T3}, s{S_T0}, 14"))
    a(salu(f"s_mov_b32 s{S_C}, 0x{f32bits(CSC):08x}"))
    L = f"v{V_LANE}"
    def vv(t, rd, wr): a(valu(t, rd, wr))
    vv(f"v_and_b32 v1, 15, {L}", [L], ["v1"]); vv(f"v_lshrrev_b32 v2, 4, {L}", [L], ["v2"])
    vv("v_lshrrev_b32 v3, 1, v1", ["v1"], ["v3"])
    for sp in range(2):
        r = V_KA[sp]
        vv(f"v_add_u32 v{r}, {4*sp}, v2", ["v2"], [f"v{r}"])
        vv(f"v_xor_b32 v{r}, v{r}, v3", [f"v{r}", "v3"], [f"v{r}"])
        vv(f"v_lshlrev_b32 v{r}, 4, v{r}", [f"v{r}"], [f"v{r}"])
        vv(f"v_lshl_add_u32 v{r}, v1, 7, v{r}", ["v1", f"v{r}"], [f"v{r}"])
    vv(f"v_lshrrev_b32 v1, 3, {L}", [L], ["v1"]); vv(f"v_and_b32 v2, 7, {L}", [L], ["v2"])
    vv(f"v_lshl_add_u32 v3, s{S_W}, 3, v1", ["v1", f"s{S_W}"], ["v3"])
    vv("v_bfe_u32 v28, v3, 1, 1", ["v3"], ["v28"]); vv("v_lshlrev_b32 v28, 2, v28", ["v28"], ["v28"])
    vv("v_xor_b32 v28, v28, v2", ["v28", "v2"], ["v28"]); vv("v_lshlrev_b32 v28, 4, v28", ["v28"], ["v28"])
    vv(f"v_lshl_add_u32 v{V_DW}, v3, 13, v28", ["v3", "v28"], [f"v{V_DW}"])
    a(raw("s_waitcnt lgkmcnt(0)", "wait", lgkm=0))
    a(salu(f"s_cmp_eq_u32 s{S_BR}, 0"))
    for i in range(10): a(salu(f"s_cselect_b32 s{36+i}, s{36+i}, s{46+i}"))
    if OPT.rot: a(salu(f"s_mov_b32 s{S_ROT}, s{S_T3}"))
    def srd(base, lo, hi, offs, size):
        if offs is None:
            a(salu(f"s_mov_b32 s{base}, s{lo}")); a(salu(f"s_mov_b32 s{base+1}, s{hi}"))
        else:
            a(salu(f"s_add_u32 s{base}, s{lo}, {offs}")); a(salu(f"s_addc_u32 s{base+1}, s{hi}, 0"))
        a(salu(f"s_mov_b32 s{base+2}, {size}")); a(salu(f"s_mov_b32 s{base+3}, 0x20000"))
    a(salu(f"s_mul_i32 s{S_T0}, s{S_B}, 229376")); srd(S_X, 36, 37, f"s{S_T0}", 229376)
    a(salu(f"s_lshl_b32 s{S_T0}, s{S_H}, 9")); srd(S_WQ, 42, 43, f"s{S_T0}", 0)
    a(salu(f"s_sub_u32 s{S_WQ+2}, {448*8192}, s{S_T0}"))
    return o

def setup_b():
    o = []; a = o.append
    L = f"v{V_LANE}"
    def vv(t, rd, wr): a(valu(t, rd, wr))
    vv(f"v_lshrrev_b32 v2, 4, {L}", [L], ["v2"])
    vv(f"v_bfe_u32 v28, {L}, 2, 2", [L], ["v28"]); vv(f"v_and_b32 v29, 3, {L}", [L], ["v29"])
    vv("v_lshl_add_u32 v30, v2, 2, v28", ["v2", "v28"], ["v30"])
    vv("v_bfe_u32 v31, v30, 1, 2", ["v30"], ["v31"])
    for p in range(4):
        r = V_VA[p]
        vv(f"v_xor_b32 v{r}, {p}, v31", ["v31"], [f"v{r}"])
        vv(f"v_lshlrev_b32 v{r}, 5, v{r}", [f"v{r}"], [f"v{r}"])
        vv(f"v_lshl_add_u32 v{r}, v30, 7, v{r}", ["v30", f"v{r}"], [f"v{r}"])
        vv(f"v_lshl_add_u32 v{r}, v29, 3, v{r}", ["v29", f"v{r}"], [f"v{r}"])
        vv(f"v_add_u32 v{r}, {L_V}, v{r}", [f"v{r}"], [f"v{r}"])
    vv("v_lshl_add_u32 v30, v2, 3, v28", ["v2", "v28"], ["v30"])
    vv("v_lshrrev_b32 v31, 1, v28", ["v28"], ["v31"])
    for sp in range(2):
        r = V_WA[0][sp]
        vv(f"v_xor_b32 v{r}, {sp}, v31", ["v31"], [f"v{r}"])
        vv(f"v_lshl_add_u32 v{r}, v{r}, 2, v29", [f"v{r}", "v29"], [f"v{r}"])
        vv(f"v_lshlrev_b32 v{r}, 4, v{r}", [f"v{r}"], [f"v{r}"])
        vv(f"v_lshl_add_u32 v{r}, v30, 7, v{r}", ["v30", f"v{r}"], [f"v{r}"])
        for win in (1, 2):
            vv(f"v_add_u32 v{V_WA[win][sp]}, {65536*win}, v{r}", [f"v{r}"], [f"v{V_WA[win][sp]}"])
    vv(f"v_lshrrev_b32 v1, 3, {L}", [L], ["v1"]); vv(f"v_and_b32 v2, 7, {L}", [L], ["v2"])
    vv(f"v_lshl_add_u32 v3, s{S_W}, 3, v1", ["v1", f"s{S_W}"], ["v3"])
    vv("v_bfe_u32 v28, v3, 1, 3", ["v3"], ["v28"]); vv("v_xor_b32 v28, v28, v2", ["v28", "v2"], ["v28"])
    vv("v_lshlrev_b32 v28, 4, v28", ["v28"], ["v28"]); vv(f"v_lshl_add_u32 v{V_DK}, v3, 9, v28", ["v3", "v28"], [f"v{V_DK}"])
    vv("v_bfe_u32 v28, v3, 1, 2", ["v3"], ["v28"]); vv("v_lshlrev_b32 v28, 1, v28", ["v28"], ["v28"])
    vv("v_xor_b32 v28, v28, v2", ["v28", "v2"], ["v28"]); vv("v_lshlrev_b32 v28, 4, v28", ["v28"], ["v28"])
    vv(f"v_lshl_add_u32 v{V_DV}, v3, 9, v28", ["v3", "v28"], [f"v{V_DV}"])
    def srd(base, lo, hi, offs, size):
        if offs is None:
            a(salu(f"s_mov_b32 s{base}, s{lo}")); a(salu(f"s_mov_b32 s{base+1}, s{hi}"))
        else:
            a(salu(f"s_add_u32 s{base}, s{lo}, {offs}")); a(salu(f"s_addc_u32 s{base+1}, s{hi}, 0"))
        a(salu(f"s_mov_b32 s{base+2}, {size}")); a(salu(f"s_mov_b32 s{base+3}, 0x20000"))
    a(salu(f"s_lshl_b32 s{S_T0}, s{S_B}, 4")); a(salu(f"s_add_u32 s{S_T0}, s{S_T0}, s{S_H}"))
    a(salu(f"s_lshl_b32 s{S_T0}, s{S_T0}, 19"))
    srd(S_K, 38, 39, f"s{S_T0}", 524288); srd(S_V, 40, 41, f"s{S_T0}", 524288)
    a(salu(f"s_mul_i32 s{S_T0}, s{S_H}, 229376")); srd(S_WO, 44, 45, f"s{S_T0}", 229376)
    srd(S_WS, 60, 61, None, 16 * 7 * 16 * 16 * 2048)
    srd(S_OUT, 56, 57, None, 8 * 256 * 896 * 2)
    if OPT.fused:
        srd(S_DBG, 58, 59, None, 256)
        a(salu(f"s_mov_b32 s{S_T0}, {PART_BYTES}")); srd(S_FL, 60, 61, f"s{S_T0}", 32768)
        a(salu(f"s_mov_b32 s{S_T0}, {RING_OFF}")); a(salu(f"s_add_u32 s54, s60, s{S_T0}")); a(salu("s_addc_u32 s55, s61, 0"))
        a(salu(f"s_mov_b32 s{S_RG}, s54")); a(salu(f"s_mov_b32 s{S_RG+1}, s55")); a(salu(f"s_mov_b32 s{S_RG+2}, {RING_BYTES}")); a(salu(f"s_mov_b32 s{S_RG+3}, 0x20000"))
        a(salu(f"s_getreg_b32 s{S_XCC}, hwreg(HW_REG_XCC_ID, 0, 3)"))
        a(salu(f"s_lshl_b32 s{S_SIG}, s{S_G}, 4")); a(salu(f"s_add_u32 s{S_SIG}, s{S_SIG}, s{S_H}"))
        a(salu(f"s_mul_i32 s{S_T0}, s{S_G}, {14*64}"))
        a(salu(f"s_lshl_b32 s{S_T1}, s{S_W}, 4")); a(salu(f"s_add_u32 s{S_T1}, s{S_T1}, s{S_H}")); a(salu(f"s_add_u32 s50, s{S_T0}, s{S_T1}"))
        a(salu(f"s_lshl_b32 s{S_T1}, s{S_H}, 2")); a(salu(f"s_add_u32 s{S_T1}, s{S_T1}, s{S_W}")); a(salu(f"s_add_u32 s51, s{S_T0}, s{S_T1}"))
        a(salu(f"s_add_u32 s51, s51, {CONS_OFF}"))
        a(valu(f"v_min_u32 v1, 13, v{V_LANE}", [f"v{V_LANE}"], ["v1"])); a(valu("v_lshlrev_b32 v1, 6, v1", ["v1"], ["v1"]))
        a(valu("v_mov_b32 v2, 0", [], ["v2"]))
        for sr in ("s50", "s51"):
            a(tag(I(f"buffer_store_byte v2, v1, s[{S_FL}:{S_FL+3}], {sr} offen", "vst", ["v1", "v2"], data=["v2"]), "reset"))
    return o

def add_lgkm_waits(g, cons, carried):
    seq = [(-1, regs) for regs in carried]
    for k in range(g.n):
        if g.mem[k] is not None and g.mem[k].kind == "ds": seq.append((k, g.mem[k].wr))
    lead = None
    for k, regs in cons:
        late = [n for n, (gap, w) in enumerate(seq) if gap == k - 1 and gap >= 0 and set(w) & set(regs)]
        assert not late, f"DS for MFMA {k} issued in gap {k-1}"
        idx = [n for n, (gap, w) in enumerate(seq) if gap < max(k - 1, 0) and set(w) & set(regs)]
        if not idx: continue
        last = max(idx)
        after = sum(1 for n, (gap, w) in enumerate(seq) if n > last and gap < max(k - 1, 0))
        assert after <= 15, (k, after)
        if k == 0: lead = wait_lgkm(after)
        else: g.pre[k - 1].insert(0, wait_lgkm(after))
    out = len(carried)
    if lead is not None: out = min(out, lead.meta["lgkm"])
    for k in range(g.n):
        for x in g.pre[k]:
            if "lgkm" in x.meta: out = min(out, x.meta["lgkm"])
        if g.mem[k] is not None and g.mem[k].kind == "ds":
            if out >= 14:
                g.pre[k].insert(0, wait_lgkm(8)); out = 8
            out += 1
    return lead

def place_vmem(g, gap, scalars, d, hi=None, stack=False, space=False):
    k = max(gap, 1 if stack else len(scalars))
    hi = g.n if hi is None else hi
    isdma = lambda x: x is not None and x.kind == "dma"
    while True:
        assert k < hi, f"no gap for {d.text}"
        near = OPT.vm_space and any(0 <= k + dd < g.n and dd != 0 and g.mem[k + dd] is not None and g.mem[k + dd].kind in ("vst", "vld", "dma")
                                    for dd in range(-OPT.vm_space, OPT.vm_space + 1))
        if g.mem[k] is None and not g.vec[k] and len(g.pre[k]) <= 1 and not (near and space):
            if stack:
                if not isdma(g.mem[k - 1]) and len(g.pre[k - 1]) + len(scalars) <= 3 and not any(x.kind == "barrier" for x in g.pre[k - 1]): break
            elif all(not g.pre[k - 1 - n] and not isdma(g.mem[k - 1 - n]) for n in range(len(scalars))): break
        k += 1
    if stack:
        for sc in scalars: g.put_pre(k - 1, sc)
    else:
        for n, sc in enumerate(scalars): g.put_pre(k - len(scalars) + n, sc)
    g.put_mem(k, d)
    return k

def put_scalar(g, gap, *ins):
    k = gap
    while g.pre[k]: k += 1
    g.pre[k] = list(ins)
    return k

def place_chain(g, ops, lo, hi):
    left = []
    for ins in ops:
        k = g.place_vec(ins, lo, hi) if (not left and lo < hi) else None
        if k is None: left.append(ins)
        else: lo = k + 1 if ins.kind == "trans" else k
    return lo, left

class Op:
    def __init__(self, ins, rel, dl, preds=()):
        self.ins = ins; self.rel = rel; self.dl = dl; self.preds = list(preds); self.gap = None

def list_schedule(g, ops, lo=0, hi=None):
    hi = g.n if hi is None else hi
    todo = list(ops)
    for k in range(lo, hi):
        while True:
            free = g.free_vec(k)
            if free <= 0: break
            ready = [x for x in todo if x.rel <= k and all(p.gap is not None and p.gap + d <= k for p, d in x.preds)]
            tr = [x for x in ready if x.ins.kind == "trans"]
            pl = [x for x in ready if x.ins.kind != "trans"]
            pick = None
            can_tr = free == 2 and g.mem[k] is None and not g.vec[k]
            if can_tr and tr: pick = min(tr, key=lambda x: x.dl)
            if pl:
                best = min(pl, key=lambda x: x.dl)
                if pick is None or (best.dl + 6 < pick.dl): pick = best
            if pick is None: break
            g.vec[k].append(pick.ins); pick.gap = k; todo.remove(pick)
    late = [x for x in ops if x.gap is not None and x.gap > x.dl]
    assert not late, [(x.ins.text, x.gap, x.dl) for x in late]
    return todo

def sm_ops(tile, kb, qb, rel, dl):
    i = sm_group(tile, kb, qb)
    f = [Op(i[0], rel, dl - 6), Op(i[1], rel, dl - 6), Op(i[4], rel, dl - 5), Op(i[5], rel, dl - 5)]
    x = [Op(i[2], rel, dl - 4, [(f[0], 1)]), Op(i[3], rel, dl - 4, [(f[1], 1)]), Op(i[6], rel, dl - 3, [(f[2], 1)]), Op(i[7], rel, dl - 3, [(f[3], 1)])]
    ad = [Op(i[8], rel, dl, [(x[0], 1)]), Op(i[9], rel, dl, [(x[1], 1)]), Op(i[11], rel, dl, [(x[2], 1)]), Op(i[12], rel, dl, [(x[3], 1)])]
    cv = [Op(i[10], rel, dl, [(x[0], 1), (x[1], 1)]), Op(i[13], rel, dl, [(x[2], 1), (x[3], 1)])]
    return f + x + ad + cv

def exposed(ops):
    o = []
    for n, ins in enumerate(ops):
        o.append(ins)
        if ins.kind == "trans" and n + 1 < len(ops) and ops[n + 1].kind != "trans": o.append(nop(0))
    return o

def conv_ops(acc, d, t):
    return [valu(f"v_accvgpr_read_b32 v{d}, a{acc}", [f"a{acc}"], [f"v{d}"]),
            valu(f"v_accvgpr_read_b32 v{t}, a{acc+1}", [f"a{acc+1}"], [f"v{t}"]),
            valu(f"v_accvgpr_read_b32 v{d+1}, a{acc+2}", [f"a{acc+2}"], [f"v{d+1}"]),
            valu(f"v_accvgpr_read_b32 v{t+1}, a{acc+3}", [f"a{acc+3}"], [f"v{t+1}"]),
            valu(f"v_cvt_pk_bf16_f32 v{d}, v{d}, v{t}", [f"v{d}", f"v{t}"], [f"v{d}"]),
            valu(f"v_cvt_pk_bf16_f32 v{d+1}, v{d+1}, v{t+1}", [f"v{d+1}", f"v{t+1}"], [f"v{d+1}"])]

def xlane_reduce(regs, op, tmp):
    o = []
    for swap in ("v_permlane32_swap_b32", "v_permlane16_swap_b32"):
        for n, r in enumerate(regs): o.append(valu(f"v_mov_b32 v{tmp+n}, v{r}", [f"v{r}"], [f"v{tmp+n}"]))
        o.append(nop(1))
        for n, r in enumerate(regs):
            o.append(valu(f"{swap} v{r}, v{tmp+n}", [f"v{r}", f"v{tmp+n}"], [f"v{r}", f"v{tmp+n}"]))
        o.append(nop(1))
        for n, r in enumerate(regs):
            o.append(valu(f"{op} v{r}, v{r}, v{tmp+n}", [f"v{r}", f"v{tmp+n}"], [f"v{r}"]))
    return o

def wpairs(): return [(L_X, L_X + 16384), (vslot(1), kslot(3)), (vslot(2), vslot(3))]
def wslot(tile):
    p = wpairs(); return p[(tile // 2) % len(p)][tile % 2]
XBUF = [V_S, V_P]
def xfrag(qb, cs): return XBUF[(cs // 2) & 1] + ((cs % 2) * 4 + qb) * 4
V_XD = [128, 129]
V_XR = [130, 131]
S_XB = 34
S_XCUR = 35
def x_setup():
    o = []; a = o.append
    L = f"v{V_LANE}"
    a(salu(f"s_and_b32 s{S_T1}, s{S_W}, 1")); a(salu(f"s_lshl_b32 s{S_T1}, s{S_T1}, 13"))
    a(salu(f"s_cmp_lt_u32 s{S_W}, 2")); a(salu(f"s_cselect_b32 s{S_XB}, 2, 4")); a(salu(f"s_lshl_b32 s{S_XB}, s{S_XB}, 14"))
    a(salu(f"s_add_u32 s{S_XB}, s{S_XB}, s{S_T1}"))
    assert kslot(2) == 2 << 14 and vslot(0) == 4 << 14
    a(valu(f"v_lshrrev_b32 v1, 3, {L}", [L], ["v1"])); a(valu(f"v_and_b32 v2, 7, {L}", [L], ["v2"]))
    a(valu(f"v_lshl_add_u32 v3, s{S_W}, 6, v1", ["v1", f"s{S_W}"], ["v3"]))
    a(valu("v_mul_u32_u24 v3, 896, v3", ["v3"], ["v3"]))
    a(valu("v_lshrrev_b32 v1, 1, v1", ["v1"], ["v1"]))
    for par in range(2):
        r = V_XD[par]
        a(valu(f"v_or_b32 v{r}, {4*par}, v1", ["v1"], [f"v{r}"]))
        a(valu(f"v_xor_b32 v{r}, v{r}, v2", [f"v{r}", "v2"], [f"v{r}"]))
        a(valu(f"v_lshl_add_u32 v{r}, v{r}, 4, v3", [f"v{r}", "v3"], [f"v{r}"]))
        a(valu(f"v_add_u32 v{V_XR[par]}, s{S_XB}, v{V_KA[par]}", [f"v{V_KA[par]}"], [f"v{V_XR[par]}"]))
    return o
def x_items(j):
    out = []
    for i in range(8):
        sreg = S_T2 + (i & 1)
        sc = []
        if i == 0 and j > 0: sc.append(salu(f"s_add_u32 s{S_XCUR}, s{S_XCUR}, s{S_XSTEP}", [f"s{S_XCUR}"], [f"s{S_XCUR}"]))
        sc.append(salu(f"s_add_u32 s{sreg}, s{S_XCUR}, {i*7168}", [f"s{S_XCUR}"], [f"s{sreg}"]))
        sc.append(salu(f"s_add_u32 m0, s{S_XB}, {i*1024}", [f"s{S_XB}"], ["m0"]))
        out.append((sc, tag(dma(V_XD[i & 1], S_X, f"s{sreg}", 0, OPT.x_flags), f"x{j}")))
    return out
def x_read(qb, cs): return ds_read128("v", xfrag(qb, cs), V_XR[cs & 1], qb * 2048)
def w_read(dbp, cs, jj):
    s, e = dbp >> 1, dbp & 1
    base = wslot(cs); win = base // 65536
    off = base - win * 65536 + (s >> 1) * 4096 + jj * 512 + e * 8
    return ds_read_tr("v", V_POOL + 4 * ((2 * dbp + (cs & 1)) % 8) + 2 * jj, V_WA[win][s & 1], off)

V_PF = 28
def coop_setup():
    o = []; a = o.append
    a(salu(f"s_mul_i32 s{S_T1}, s{S_H}, {112*128}"))
    a(salu(f"s_lshl_b32 s{S_T2}, s{S_W}, 12")); a(salu(f"s_add_u32 s{S_T1}, s{S_T1}, s{S_T2}"))
    a(valu(f"v_and_b32 v{V_PF}, 31, v{V_LANE}", [f"v{V_LANE}"], [f"v{V_PF}"]))
    a(valu(f"v_lshlrev_b32 v{V_PF}, 7, v{V_PF}", [f"v{V_PF}"], [f"v{V_PF}"]))
    a(valu(f"v_add_u32 v{V_PF}, s{S_T1}, v{V_PF}", [f"v{V_PF}"], [f"v{V_PF}"]))
    return o
def coop_x():
    return [tag(bload(V_PF + 1, 1, V_PF, S_X, "0", 0, OPT.pf_flags), "pf")]

V_PFW = 132
def coop_w_setup():
    o = []; a = o.append
    L = f"v{V_LANE}"
    a(salu(f"s_lshr_b32 s{S_T1}, s2, 7")); a(salu(f"s_and_b32 s{S_T1}, s{S_T1}, 1")); a(salu(f"s_lshl_b32 s{S_T1}, s{S_T1}, 5"))
    a(salu(f"s_lshl_b32 s{S_T2}, s{S_W}, 3")); a(salu(f"s_add_u32 s{S_T1}, s{S_T1}, s{S_T2}"))
    a(valu(f"v_bfe_u32 v{V_PFW}, {L}, 2, 3", [L], [f"v{V_PFW}"])); a(valu(f"v_add_u32 v{V_PFW}, s{S_T1}, v{V_PFW}", [f"v{V_PFW}"], [f"v{V_PFW}"]))
    a(valu(f"v_lshlrev_b32 v{V_PFW}, 13, v{V_PFW}", [f"v{V_PFW}"], [f"v{V_PFW}"]))
    a(valu(f"v_and_b32 v{V_PFW+1}, 3, {L}", [L], [f"v{V_PFW+1}"]))
    a(valu(f"v_lshl_add_u32 v{V_PFW}, v{V_PFW+1}, 7, v{V_PFW}", [f"v{V_PFW}", f"v{V_PFW+1}"], [f"v{V_PFW}"]))
    return o
def coop_w(j):
    return [salu(f"s_mov_b32 s{S_PFO}, {j*524288}", [], [f"s{S_PFO}"])], tag(bload(V_PFW + 1, 1, V_PFW, S_WQ, f"s{S_PFO}", 0, OPT.pf_flags), "pf")
OOL = []
def kv_off(reg, t):
    if not OPT.rot: return [salu(f"s_mov_b32 s{reg}, {t*16384}", [], [f"s{reg}"])]
    return [salu(f"s_add_u32 s{reg}, s{S_ROT}, {t*16384}", [f"s{S_ROT}"], [f"s{reg}"]), salu(f"s_and_b32 s{reg}, s{reg}, 0x7ffff", [f"s{reg}"], [f"s{reg}"])]
def phase1():
    o = []; a = o.append
    NP = 3
    a(salu(f"s_lshr_b32 s{S_T1}, s2, 7")); a(salu(f"s_and_b32 s{S_T1}, s{S_T1}, {1 if OPT.rev else 0}"))
    a(salu(f"s_cmp_eq_u32 s{S_T1}, 0"))
    a(salu(f"s_cselect_b32 s{S_WCUR}, 0, {6*524288}")); a(salu(f"s_cselect_b32 s{S_T2}, 1, -1"))
    a(salu(f"s_cselect_b32 s{S_XCUR}, 0, 768"))
    a(salu(f"s_mul_i32 s{S_WSTEP}, s{S_T2}, 524288")); a(salu(f"s_mul_i32 s{S_XSTEP}, s{S_T2}, 128"))
    o += x_setup()
    if OPT.coopx: o += coop_setup() + coop_x()
    if OPT.coopw:
        o += coop_w_setup()
        for j in range(OPT.coopw_init):
            sc, d = coop_w(j); o += sc + [d]
    def w_items(j):
        out = []
        for par in range(2):
            sreg = S_WCUR if par == 0 else S_WOFF
            for m, (m0, d) in enumerate(dma_tile("W", wslot(2 * j + par), f"s{sreg}", f"W{j}")):
                sc = [m0]
                if m == 0 and par == 0 and j > 0: sc = [salu(f"s_add_u32 s{S_WCUR}, s{S_WCUR}, s{S_WSTEP}", [f"s{S_WCUR}"], [f"s{S_WCUR}"]), m0]
                if m == 0 and par == 1: sc = [salu(f"s_add_u32 s{S_WOFF}, s{S_WCUR}, 262144", [f"s{S_WCUR}"], [f"s{S_WOFF}"]), m0]
                out.append((sc, d))
        return out
    def kv_items(kind, t):
        out = []
        for m, (m0, d) in enumerate(dma_tile(kind, kslot(t) if kind == "K" else vslot(t), f"s{S_T0}", f"{kind}{t}")):
            out.append((kv_off(S_T0, t) + [m0] if m == 0 else [m0], d))
        return out
    def now(items):
        for sc, d in items:
            o.extend(sc); a(nop(0)); a(d)
    w0 = w_items(0)
    for sc, d in w0[4:]: d.meta["tag"] = "W0b"
    if OPT.xwarm:
        a(valu(f"v_lshlrev_b32 v{V_PFW}, 4, v{V_LANE}", [f"v{V_LANE}"], [f"v{V_PFW}"]))
        a(salu(f"s_mul_i32 s{S_T0}, s{S_H}, 14336")); a(salu(f"s_lshl_b32 s{S_T1}, s{S_W}, 12")); a(salu(f"s_add_u32 s{S_T0}, s{S_T0}, s{S_T1}"))
        a(salu(f"s_add_u32 m0, s{S_T1}, {kslot(0)}", [], ["m0"])); a(nop(0))
        now(w0[:4])
        a(salu(f"s_lshl_b32 s{S_T1}, s{S_W}, 12")); a(salu(f"s_add_u32 m0, s{S_T1}, {kslot(0)}", [], ["m0"])); a(nop(0))
        for i in range(4): a(tag(dma(V_PFW, S_X, f"s{S_T0}", i * 1024, OPT.x_flags), "xw"))
        now(w0[4:]); now(x_items(0))
    else:
        now(x_items(0)); now(w0[:4]); now(w0[4:])
    if OPT.coopw:
        for j in range(OPT.coopw_init, 3):
            sc, d = coop_w(j); o += sc + [d]
    o += setup_b()
    a(wait_tag("x0"))
    xr = [x_read(qb, cs) for cs in (0, 1) for qb in range(4)]
    o += xr
    a(wait_tag("W0", "reset")); a(barrier())
    if OPT.fused:
        a(salu(f"s_or_b32 s{S_T0}, s{S_XCC}, 0x80")); a(valu(f"v_mov_b32 v1, s{S_T0}", [], ["v1"])); a(valu("v_mov_b32 v2, 0", [], ["v2"]))
        a(tag(I(f"buffer_store_byte v1, v2, s[{S_DBG}:{S_DBG+3}], s{S_SIG} offen", "vst", ["v1", "v2"], data=["v1"]), "arr"))
    o += stamp("p1_first_data") + (stamp("rt_fd") if OPT.trip_stamps else [])
    def quad0(n): return V_POOL + 4 * (n % 8)
    def w_read0(n, jj):
        dbp, cs = n % 16, n // 16
        r = w_read(dbp, cs, jj)
        return ds_read_tr("v", quad0(n) + 2 * jj, int(r.rd[0][1:]), int(r.text.split("offset:")[1]))
    carried = [x.wr for x in xr]
    for n in range(3):
        for jj in range(2):
            r = w_read0(n, jj); a(r); carried.append(r.wr)
    early = {j: [] for j in range(7)}; after = {j: [] for j in range(7)}
    early[0] += w_items(1); early[1] += w_items(2)
    for j in range(NP, 7): after[j - NP + 1] += w_items(j)
    K = lambda t: kv_items("K", t)
    V = lambda t: kv_items("V", t)
    kv = {"early": {1: K(0), 2: K(1)}, "mid": {2: K(0), 3: K(1)}, "late": {3: K(0), 4: K(1)}}[OPT.kvpf]
    for j, l in kv.items(): early[j] += l
    if OPT.kvmin:
        early = {j: (w_items(1) if j == 0 else w_items(2) if j == 1 else []) for j in range(7)} if False else early
        for j in range(7): early[j] = [it for it in early[j] if not it[1].meta["tag"].startswith("K")]
        early[4] += K(0); early[5] += K(1)
        after[5] += V(0)
        after[6] += K(2) + V(1)
    else:
        after[5] += V(0)
        early[6] += K(2) + V(1) + K(3)
        after[6] += V(2)
    for j in range(7):
        ms = []
        if j == 0:
            for n in range(32):
                for qb in range(4):
                    acc = ((n % 16) * 4 + qb) * 4
                    first = n < 16
                    ms.append(mfma("a", acc, "v", quad0(n), "v", xfrag(qb, n // 16), None if first else "a", None if first else acc))
        else:
            for dbp in range(16):
                for qb in range(4):
                    for e2 in range(2):
                        acc = (dbp * 4 + qb) * 4
                        ms.append(mfma("a", acc, "v", V_POOL + 4 * ((2 * dbp + e2) % 8), "v", xfrag(qb, 2 * j + e2), "a", acc))
        g = Gaps(ms)
        if j == 0:
            for n in range(3, 32):
                for jj in range(2): g.put_mem(4 * n - 12 + 2 * jj, w_read0(n, jj))
        else:
            for dbp in range(3, 16):
                for n, (cs, jj) in enumerate([(2*j, 0), (2*j, 1), (2*j+1, 0), (2*j+1, 1)]):
                    g.put_mem(8 * dbp - 24 + 2 * n, w_read(dbp, cs, jj))
        nxt = []
        if j < 6:
            for dbp in range(3):
                for n, (cs, jj) in enumerate([(2*j+2, 0), (2*j+2, 1), (2*j+3, 0), (2*j+3, 1)]):
                    r = w_read(dbp, cs, jj); g.put_mem(104 + (1 if j == 0 else 0) + 8 * dbp + 2 * n, r); nxt.append(r.wr)
        XG = OPT.x_rd_gap if j > 0 else OPT.x_rd_gap0
        xreads = []
        if j < 6:
            for n, (cs, qb) in enumerate([(cs, qb) for cs in (2*j+2, 2*j+3) for qb in range(4)]):
                r = x_read(qb, cs); g.put_mem(XG + 2 * n, r); xreads.append(r)
        if j == 0:
            cons = [(4 * n, R("v", quad0(n), 4) + (R("v", V_S, 32) if n == 0 else [])) for n in range(32)]
        else:
            cons = [(8 * dbp, R("v", V_POOL + 4 * ((2 * dbp) % 8), 8)) for dbp in range(16)]
        if j < 6: cons.append((XG + 24, [w for r in xreads for w in r.wr]))
        cons.sort()
        lead = add_lgkm_waits(g, cons, carried)
        if j < 6:
            k = XG - 2
            while g.pre[k]: k -= 1
            g.pre[k] = [wait_tag(f"x{j+1}")]
        tags = [f"W{j+1}"] if j < 6 else ["K0"]
        k = 100
        while g.pre[k]: k -= 1
        g.pre[k] = [wait_tag(*tags), barrier()] if not OPT.p1_nowait else [barrier()]
        kb = k
        gp = 1
        if OPT.coopw and j + 3 <= 6:
            sc, d = coop_w(j + 3); gp = place_vmem(g, 2, sc, d, kb) + 1
        if j == 0:
            for sc, d in x_items(1): gp = place_vmem(g, gp, sc, d, XG - 3, stack=True) + 2
            k = 48
            while g.pre[k]: k -= 1
            g.pre[k] = [wait_tag("W0b"), barrier()]
            assert k < 52
        for sc, d in early[j]: gp = place_vmem(g, gp + len(sc) - 1, sc, d, kb) + (OPT.early_step if j != 6 else 7)
        if j < 5:
            gx = max(XG + 25, gp)
            for sc, d in x_items(j + 2): gx = place_vmem(g, gx, sc, d, stack=True) + 2
            gpa = max(kb + 2, gx)
        else: gpa = kb + 2
        for sc, d in after[j]: gpa = place_vmem(g, gpa, sc, d, stack=True) + 1
        left = []
        if j == 6:
            for dbp in range(16):
                for qb in range(4):
                    ops = conv_ops((dbp * 4 + qb) * 4, V_Q + (qb * 8 + (dbp >> 1)) * 4 + 2 * (dbp & 1), V_CT + 2 * (qb & 1))
                    if left: left += ops
                    else:
                        _, l2 = place_chain(g, ops, 8 * dbp + 2 * qb + 1 + 5, 128); left += l2
        if lead is not None: a(lead)
        em = g.emit()
        if OPT.p1_drop:
            def keep(x):
                if x.kind in ("dma", "vld"):
                    t = x.meta.get("tag", "")
                    for c in OPT.p1_drop:
                        if t.startswith(c): return False
                return True
            em = [x for x in em if keep(x)]
        if OPT.p1_noread: em = [x for x in em if x.kind != "ds" and not (x.kind == "wait" and "lgkm" in x.meta)]
        o += em
        carried = nxt
        if OPT.p1_steps: o += stamp(f"step{j}")
        if left: a(nop(7)); o += left
    if not OPT.p1_steps: o += stamp("p1_end") + (stamp("rt_p1") if OPT.trip_stamps else [])
    return o

def k_read(t, kb, s):
    return ds_read128("v", V_POOL + 4 * s, V_KA[s & 1], (kslot(t) - L_K) + (s >> 1) * 4096 + kb * 2048)
def v_read(t, db, jj):
    return ds_read_tr("v", V_POOL + 4 * (db % 8) + 2 * jj, V_VA[db & 3], (vslot(t) - L_V) + (db >> 2) * 4096 + jj * 2048)
def Sreg(kb, qb): return V_S + (kb * 4 + qb) * 4
def Preg(buf, qb): return V_P + buf * 16 + qb * 4
def qk_mfmas():
    ms = []
    for i in range(64):
        kb, sp, qb, e = i >> 5, (i >> 3) & 3, (i >> 1) & 3, i & 1
        s = 2 * sp + e; d = Sreg(kb, qb)
        ms.append(mfma("v", d, "v", V_POOL + 4 * s, "v", V_Q + (qb * 8 + s) * 4, None if s == 0 else "v", None if s == 0 else d))
    return ms
def pv_mfmas(t, first):
    ms = []
    for i in range(64):
        db, qb = i >> 2, i & 3
        acc = (db * 4 + qb) * 4
        ms.append(mfma("a", acc, "v", V_POOL + 4 * (db % 8), "v", Preg(t & 1, qb), None if first else "a", None if first else acc))
    return ms
def sm_group(tile, kb, qb):
    s = Sreg(kb, qb); p = Preg(tile & 1, qb) + 2 * kb; mc = V_MC + qb; l = V_L + qb
    f = lambda r: valu(f"v_fma_f32 v{s+r}, v{s+r}, s{S_C}, v{mc}", [f"v{s+r}", f"v{mc}", f"s{S_C}"], [f"v{s+r}"])
    x = lambda r: trans(f"v_exp_f32 v{s+r}, v{s+r}", [f"v{s+r}"], [f"v{s+r}"])
    ad = lambda r: valu(f"v_add_f32 v{l}, v{l}, v{s+r}", [f"v{l}", f"v{s+r}"], [f"v{l}"])
    cv = lambda r: valu(f"v_cvt_pk_bf16_f32 v{p+r//2}, v{s+r}, v{s+r+1}", [f"v{s+r}", f"v{s+r+1}"], [f"v{p+r//2}"])
    return [f(0), f(1), x(0), x(1), f(2), f(3), x(2), x(3), ad(0), ad(1), cv(0), ad(2), ad(3), cv(2)]

def pre_iter():
    o = []; a = o.append
    carried = []
    for s in range(8):
        r = k_read(0, 0, s); a(r); carried.append(r.wr)
    g = Gaps(qk_mfmas())
    for s in range(8): g.put_mem(8 * (s >> 1) + 10 + 4 * (s & 1), k_read(0, 1, s))
    cons = [(8 * p, R("v", V_POOL + 8 * (p % 4), 8)) for p in range(8)]
    a(add_lgkm_waits(g, cons, carried))
    if OPT.kvmin:
        gp = 3
        for kind, t in (("K", 3), ("V", 2)):
            for m, (m0, d) in enumerate(dma_tile(kind, kslot(t) if kind == "K" else vslot(t), f"s{S_T0}", f"{kind}{t}")):
                gp = place_vmem(g, gp, (kv_off(S_T0, t) if m == 0 else []) + [m0], d, stack=True) + 5
    o += g.emit()
    a(wait_tag("K1", "V0")); a(barrier())
    o += kv_off(S_KOFF, 4)
    for m0, d in dma_tile("K", kslot(4), f"s{S_KOFF}", "K4"): a(m0); a(nop(0)); a(d)
    o += kv_off(S_KOFF, 5) + kv_off(S_VOFF, 3)
    carried = []
    for s in range(8):
        r = k_read(1, 0, s); a(r); carried.append(r.wr)
    for qb in range(4):
        m = V_MC + qb; s0 = Sreg(0, qb); s1 = Sreg(1, qb)
        a(valu(f"v_max3_f32 v{m}, v{s0}, v{s0+1}, v{s0+2}", R("v", s0, 3), [f"v{m}"]))
        a(valu(f"v_max3_f32 v{m}, v{m}, v{s0+3}, v{s1}", [f"v{m}", f"v{s0+3}", f"v{s1}"], [f"v{m}"]))
        a(valu(f"v_max3_f32 v{m}, v{m}, v{s1+1}, v{s1+2}", [f"v{m}", f"v{s1+1}", f"v{s1+2}"], [f"v{m}"]))
        a(valu(f"v_max_f32 v{m}, v{m}, v{s1+3}", [f"v{m}", f"v{s1+3}"], [f"v{m}"]))
    o += xlane_reduce([V_MC + q for q in range(4)], "v_max_f32", V_SP)
    for qb in range(4):
        m = V_MC + qb
        a(valu(f"v_mul_f32 v{m}, s{S_C}, v{m}", [f"v{m}", f"s{S_C}"], [f"v{m}"]))
        a(valu(f"v_sub_f32 v{m}, 0, v{m}", [f"v{m}"], [f"v{m}"]))
        a(valu(f"v_mov_b32 v{V_L+qb}, 0", [], [f"v{V_L+qb}"]))
    for kb, qb in [(0, 0), (0, 1), (0, 2), (0, 3), (1, 0), (1, 1)]: o += exposed(sm_group(0, kb, qb))
    o += stamp("pre_iter_end")
    return o, carried

def attn_iter(t, carried, vmw, prev, cur, first=False, adv=True, loopctl=False, extra=None, loop_body=False):
    g = Gaps(qk_mfmas() + pv_mfmas(t, first))
    for s in range(8): g.put_mem(8 * (s >> 1) + 10 + 4 * (s & 1), k_read(t + 1, 1, s))
    for db in range(16):
        for jj in range(2): g.put_mem(44 + 4 * db + 2 * jj, v_read(t, db, jj))
    nxt = []
    if t + 2 <= 31:
        for s, gap in zip(range(8), [108, 110, 112, 114, 116, 120, 124, 127]):
            r = k_read(t + 2, 0, s); g.put_mem(gap, r); nxt.append(r.wr)
    else:
        for db in range(5):
            for jj in range(2):
                r = v_read(t + 1, db, jj); g.put_mem(108 + 4 * db + 2 * jj, r); nxt.append(r.wr)
    cons = [(8 * p, R("v", V_POOL + 8 * (p % 4), 8)) for p in range(8)]
    cons += [(64 + 4 * db, R("v", V_POOL + 4 * (db % 8), 4)) for db in range(16)]
    lead = add_lgkm_waits(g, cons, carried)
    kb = 98
    while g.pre[kb]: kb -= 1
    g.pre[kb] = [vmw, barrier()]
    if OPT.bar_stamps and loop_body:
        g.pre[kb] = [raw("s_memtime s[94:95]", "salu"), vmw, raw("s_memtime s[96:97]", "salu"), barrier(), raw("s_memtime s[98:99]", "salu"),
                     raw("s_waitcnt lgkmcnt(0)", "wait", lgkm=0),
                     salu("s_sub_u32 s96, s96, s94"), salu("s_add_u32 s92, s92, s96"),
                     salu("s_sub_u32 s98, s98, s94"), salu("s_add_u32 s93, s93, s98")]
    gp_prev, gp_cur = OPT.dma_gaps
    placed = [place_vmem(g, gap, [m0], d, kb) for gap, (m0, d) in zip(gp_prev, prev)]
    for gap, (m0, d) in zip(gp_cur, cur): place_vmem(g, gap, [m0], d)
    if adv:
        for reg, srd, at in ((S_VOFF, S_V, (placed[OPT.nv_prev - 1] if OPT.nv_prev else 1) + 1), (S_KOFF, S_K, placed[-1] + 1)):
            k = put_scalar(g, at, salu(f"s_add_u32 s{reg}, s{reg}, 16384", [f"s{reg}"], [f"s{reg}"]))
            k = put_scalar(g, k + 1, salu(f"s_and_b32 s{reg}, s{reg}, 0x7ffff", [f"s{reg}"], [f"s{reg}"]))
            assert k < 100
        if loopctl:
            first_k = placed[-4]
            k = put_scalar(g, 2, salu(f"s_cmp_eq_u32 s{S_LOOP}, 1", [f"s{S_LOOP}"], ["scc"]),
                           salu(f"s_cselect_b32 s{S_K+2}, 0, 524288", ["scc"], [f"s{S_K+2}"]))
            assert k < first_k - 1
    if loopctl:
        k = put_scalar(g, 119, salu(f"s_sub_u32 s{S_LOOP}, s{S_LOOP}, 1", [f"s{S_LOOP}"], [f"s{S_LOOP}"]))
        k = put_scalar(g, k + 1, salu(f"s_cmp_lg_u32 s{S_LOOP}, {OPT.loop_exit}", [f"s{S_LOOP}"], ["scc"]))
        assert k <= 127
        for kk in range(k + 1, 128):
            assert all(x.kind == "wait" for x in g.pre[kk]), "SCC clobbered before the loop branch"
    if extra: extra(g, kb)
    ops = []
    for qb in (2, 3): ops += sm_ops(t, 1, qb, 0, 31 + 2 * qb)
    for qb in range(4): ops += sm_ops(t + 1, 0, qb, 25 + 2 * qb + 6, 100 + 6 * qb)
    for qb in (0, 1): ops += sm_ops(t + 1, 1, qb, 57 + 2 * qb + 6, 124 + 3 * qb)
    left = list_schedule(g, ops)
    if OPT.vfirst:
        cand = [k for k in range(128) if g.mem[k] is not None and g.mem[k].kind == "ds" and len(g.vec[k]) == 1 and g.vec[k][0].kind == "valu"
                and not (set(g.vec[k][0].wr) & set(g.mem[k].rd + g.mem[k].wr))]
        n = min(OPT.vfirst, len(cand))
        for i in range(n): g.vec_first.add(cand[(i * len(cand)) // n])
    if OPT.pad_iter:
        for n in range(OPT.pad_iter): g.post[(n * 128) // OPT.pad_iter + 3].append(nop(3))
    assert not left, f"softmax groups do not fit: {len(left)} left"
    return [lead] + g.emit(), nxt

def safe_attn():
    o = []; a = o.append
    VM, VT, VA_, TMP = 20, 24, 28, 112
    a(label("L_safe_attn")); a(wait_vm(0)); a(raw("s_waitcnt lgkmcnt(0)", "wait", lgkm=0)); a(barrier())
    for r in range(256): a(valu(f"v_accvgpr_write_b32 a{r}, 0", [], [f"a{r}"]))
    for qb in range(4):
        a(valu(f"v_mov_b32 v{VM+qb}, 0xff800000", [], [f"v{VM+qb}"])); a(valu(f"v_mov_b32 v{V_L+qb}, 0", [], [f"v{V_L+qb}"]))
    a(salu(f"s_mov_b32 s{S_KOFF}, 0")); a(salu(f"s_mov_b32 s{S_LOOP}, 32"))
    a(label("L_safe_loop"))
    for kind, slot in (("K", kslot(0)), ("V", vslot(0))):
        for m0, d in dma_tile(kind, slot, f"s{S_KOFF}", "safe"): a(m0); a(nop(0)); a(d)
    a(wait_vm(0)); a(barrier())
    qk = qk_mfmas()
    for kb in range(2):
        for s_ in range(8): a(k_read(0, kb, s_))
        a(wait_lgkm(0)); o += qk[32 * kb:32 * kb + 32]
    a(nop(7)); a(nop(7))
    for qb in range(4):
        t = VT + qb; s0 = Sreg(0, qb); s1 = Sreg(1, qb)
        a(valu(f"v_max3_f32 v{t}, v{s0}, v{s0+1}, v{s0+2}", [], [])); a(valu(f"v_max3_f32 v{t}, v{t}, v{s0+3}, v{s1}", [], []))
        a(valu(f"v_max3_f32 v{t}, v{t}, v{s1+1}, v{s1+2}", [], [])); a(valu(f"v_max_f32 v{t}, v{t}, v{s1+3}", [], []))
    o += xlane_reduce([VT + q for q in range(4)], "v_max_f32", TMP)
    for qb in range(4):
        a(valu(f"v_max_f32 v{VT+qb}, v{VT+qb}, v{VM+qb}", [], []))
        a(valu(f"v_sub_f32 v{VA_+qb}, v{VM+qb}, v{VT+qb}", [], [])); a(valu(f"v_mul_f32 v{VA_+qb}, s{S_C}, v{VA_+qb}", [], []))
        a(trans(f"v_exp_f32 v{VA_+qb}, v{VA_+qb}", [], [])); a(valu(f"v_mov_b32 v{VM+qb}, v{VT+qb}", [], []))
        a(valu(f"v_mul_f32 v{V_MC+qb}, s{S_C}, v{VT+qb}", [], [])); a(valu(f"v_sub_f32 v{V_MC+qb}, 0, v{V_MC+qb}", [], []))
        a(valu(f"v_mul_f32 v{V_L+qb}, v{V_L+qb}, v{VA_+qb}", [], []))
    for r in range(256):
        qb = (r >> 2) & 3; t = TMP + (r & 7)
        a(valu(f"v_accvgpr_read_b32 v{t}, a{r}", [], [])); a(valu(f"v_mul_f32 v{t}, v{t}, v{VA_+qb}", [], [])); a(valu(f"v_accvgpr_write_b32 a{r}, v{t}", [], []))
    for kb in range(2):
        for qb in range(4): o += exposed(sm_group(0, kb, qb))
    pv = pv_mfmas(0, False)
    for half in range(2):
        for db in range(8 * half, 8 * half + 8):
            for jj in range(2):
                a(v_read(0, db, jj))
            if db % 4 == 3: a(wait_lgkm(0))
        a(nop(1)); o += pv[32 * half:32 * half + 32]
    a(salu(f"s_add_u32 s{S_KOFF}, s{S_KOFF}, 16384")); a(salu(f"s_sub_u32 s{S_LOOP}, s{S_LOOP}, 1")); a(salu(f"s_cmp_lg_u32 s{S_LOOP}, 0"))
    a(barrier()); a(raw("s_cbranch_scc1 L_safe_loop", "branch"))
    a(nop(7)); a(nop(7))
    o += xlane_reduce([V_L + q for q in range(4)], "v_add_f32", TMP)
    for qb in range(4): a(trans(f"v_rcp_f32 v{V_L+qb}, v{V_L+qb}", [], []))
    a(nop(0))
    for db in range(16):
        for qb in range(4):
            o += conv_ops((db * 4 + qb) * 4, V_Q + (qb * 8 + (db >> 1)) * 4 + 2 * (db & 1), V_SP + 8 + 2 * (qb & 1))
    o += wo_setup()
    if OPT.fused: o += grp_setup() + [nop(1), mode_load()] + ring_scalars()
    for j in range(4):
        for sc, d in wo_dma(j): o += sc + [nop(0), d]
    a(wait_vm(0)); a(raw("s_branch L_p3_entry", "branch"))
    return o

def last_iter(carried):
    o = []; a = o.append
    for qb in (2, 3): o += exposed(sm_group(31, 1, qb))
    o += xlane_reduce([V_L + q for q in range(4)], "v_add_f32", V_SP)
    a(salu(f"s_mov_b32 s{S_T0}, 0x{f32bits(L_LIMIT):08x}"))
    for qb in range(4):
        a(valu(f"v_cmp_nge_f32 s[{50+2*(qb&1)}:{51+2*(qb&1)}], s{S_T0}, v{V_L+qb}", [f"v{V_L+qb}"], [f"s{50+2*(qb&1)}", f"s{51+2*(qb&1)}"]))
        if qb & 1:
            a(nop(0)); a(salu("s_or_b64 s[50:51], s[50:51], s[52:53]"))
            a(salu("s_mov_b64 s[54:55], s[50:51]") if qb == 1 else salu("s_or_b64 s[54:55], s[54:55], s[50:51]"))
    a(salu("s_cselect_b32 s50, 1, 0"))
    a(salu(f"s_lshl_b32 s51, s{S_W}, 2")); a(salu(f"s_add_u32 s51, s51, {L_VOTE}"))
    a(valu(f"v_mov_b32 v{V_SP}, s50", [], [f"v{V_SP}"])); a(valu(f"v_mov_b32 v{V_SP+1}, s51", [], [f"v{V_SP+1}"]))
    a(I(f"ds_write_b32 v{V_SP+1}, v{V_SP}", "ds", [f"v{V_SP}", f"v{V_SP+1}"], []))
    carried = carried + [[]]
    for qb in range(4): a(trans(f"v_rcp_f32 v{V_L+qb}, v{V_L+qb}", [f"v{V_L+qb}"], [f"v{V_L+qb}"]))
    a(nop(0))
    g = Gaps(pv_mfmas(31, False))
    for db in range(5, 8):
        for jj in range(2): g.put_mem(4 * (db - 5) + 2 * jj, v_read(31, db, jj))
    for db in range(8, 16):
        for jj in range(2): g.put_mem(12 + 4 * (db - 8) + 2 * jj, v_read(31, db, jj))
    cons = [(4 * db, R("v", V_POOL + 4 * (db % 8), 4)) for db in range(16)]
    lead = add_lgkm_waits(g, cons, carried)
    gp = put_wo(g, 2, 2, step=0)
    put_wo(g, 3, gp, step=0)
    left = []
    for db in range(16):
        for qb in range(4):
            ops = conv_ops((db * 4 + qb) * 4, V_Q + (qb * 8 + (db >> 1)) * 4 + 2 * (db & 1), V_SP + 8 + 2 * (qb & 1))
            if left: left += ops
            else:
                _, l2 = place_chain(g, ops, 4 * db + qb + 5, 64); left += l2
    a(lead); o += g.emit()
    a(nop(7)); o += left
    return o

WOBUF = [L_X, L_K, L_K + 32768, L_V, L_V + 32768, L_X, L_K]
V_DWO = 3; V_STO = V_DV
V_FR3 = 32; V_ACC3 = V_P; V_STG = 16
def wo_dma(j):
    out = []
    for i in range(8):
        sreg = S_T0 + (i & 1)
        out.append(([salu(f"s_mov_b32 s{sreg}, {j*128 + i*32*896}", [], [f"s{sreg}"]),
                     salu(f"s_add_u32 m0, s{S_W1K}, {WOBUF[j] + i*4096}", [f"s{S_W1K}"], ["m0"])],
                    tag(dma(V_DWO, S_WO, f"s{sreg}", 0, OPT.wo_flags), f"wo{j}")))
    return out
A_WOS = 100
V_WOW = 39
def wo_stage_loads(j):
    out = []
    for i in range(8):
        sreg = S_T0 + (i & 1)
        out.append(([salu(f"s_mov_b32 s{sreg}, {j*128 + i*32*896}", [], [f"s{sreg}"])],
                    tag(bload_f("a", A_WOS + 32 * (j - 5) + 4 * i, 4, V_DWO, S_WO, f"s{sreg}", 0, OPT.wo_flags), f"wos{j}")))
    return out
def wo_stage_write(j, i):
    r = A_WOS + 32 * (j - 5) + 4 * i
    return I(f"ds_write_b128 v{V_WOW + (j - 5) * 0}, {rng('a', r, 4)} offset:{i*4096}", "ds", [f"v{V_WOW}"] + R("a", r, 4), [])
def wo_setup():
    o = []; a = o.append
    L = f"v{V_LANE}"
    a(valu(f"v_lshrrev_b32 v1, 3, {L}", [L], ["v1"])); a(valu(f"v_and_b32 v2, 7, {L}", [L], ["v2"]))
    a(valu(f"v_lshl_add_u32 v3, s{S_W}, 3, v1", ["v1", f"s{S_W}"], ["v3"]))
    a(valu("v_bfe_u32 v1, v1, 1, 2", ["v1"], ["v1"])); a(valu("v_lshlrev_b32 v1, 1, v1", ["v1"], ["v1"]))
    a(valu("v_xor_b32 v1, v1, v2", ["v1", "v2"], ["v1"])); a(valu("v_lshlrev_b32 v1, 4, v1", ["v1"], ["v1"]))
    a(valu("v_mul_u32_u24 v3, 896, v3", ["v3"], ["v3"]))
    a(valu(f"v_add_u32 v{V_DWO}, v3, v1", ["v3", "v1"], [f"v{V_DWO}"]))
    return o
V_WOT = 2
def wo_touch_setup():
    return [valu(f"v_lshl_add_u32 v{V_WOT}, s{S_W}, 6, v{V_LANE}", [f"v{V_LANE}"], [f"v{V_WOT}"]),
            valu(f"v_mul_u32_u24 v{V_WOT}, 896, v{V_WOT}", [f"v{V_WOT}"], [f"v{V_WOT}"])]
def wo_touch(j): return tag(bload(1, 1, V_WOT, S_WO, "0", j * 128, OPT.wt_flags), "wt")
def put_wo(g, j, start, hi=None, step=3):
    gp = start
    for sc, d in wo_dma(j): gp = place_vmem(g, gp, sc, d, hi) + step
    return gp
def va_shift(delta):
    t = (lambda r: f"v_add_u32 v{r}, {delta}, v{r}") if delta >= 0 else (lambda r: f"v_subrev_u32 v{r}, {-delta}, v{r}")
    return [valu(t(r), [f"v{r}"], [f"v{r}"]) for r in V_VA]

def part_ops(nb, qb):
    acc = V_ACC3 + 4 * ((nb * 4 + qb) % 8)
    st = V_STG + 4 * qb + 2 * (nb & 1)
    li = V_L + qb
    ops = [valu(f"v_mul_f32 v{acc+r}, v{acc+r}, v{li}", [f"v{acc+r}", f"v{li}"], [f"v{acc+r}"]) for r in range(4)]
    ops += [valu(f"v_cvt_pk_bf16_f32 v{st}, v{acc}, v{acc+1}", [f"v{acc}", f"v{acc+1}"], [f"v{st}"]),
            valu(f"v_cvt_pk_bf16_f32 v{st+1}, v{acc+2}, v{acc+3}", [f"v{acc+2}", f"v{acc+3}"], [f"v{st+1}"])]
    return ops

A_FR3 = 0; A_SEL = 224
V_POLLA, V_POLL, V_ONE, V_ZERO, V_RLD, V_OUT = 32, 33, 34, 35, 36, 37
V_RD = 40
V_GRP = V_ARR + 3
def wo_read(nb, s_, jj):
    return ds_read_tr("a", A_FR3 + 4 * (8 * (nb & 1) + s_) + 2 * jj, V_VA[nb], s_ * 4096 + jj * 2048)

V_GA = V_ARR + 2
def grp_setup():
    return [salu(f"s_lshl_b32 s{S_T0}, s{S_G}, 4"), valu(f"v_and_b32 v{V_GA}, 3, v{V_LANE}", [f"v{V_LANE}"], [f"v{V_GA}"]),
            valu(f"v_lshlrev_b32 v{V_GA}, 2, v{V_GA}", [f"v{V_GA}"], [f"v{V_GA}"]), valu(f"v_add_u32 v{V_GA}, s{S_T0}, v{V_GA}", [f"v{V_GA}"], [f"v{V_GA}"])]
V_GA3 = 38
def grp_load(dst, tg, ga=V_GA): return tag(bload(dst, 1, ga, S_DBG, "0", 0, "sc1"), tg)
def splat(x): return x * 0x01010101
def mode_load(): return grp_load(V_ARR, "grp")
def mode_check():
    o = []; a = o.append
    a(salu(f"s_or_b32 s{S_T0}, s{S_XCC}, 0x80")); a(salu(f"s_mul_i32 s50, s{S_T0}, 0x01010101"))
    a(wait_tag("grp"))
    a(valu(f"v_and_b32 v{V_ARR}, 0x87878787, v{V_ARR}", [f"v{V_ARR}"], [f"v{V_ARR}"]))
    a(valu(f"v_cmp_eq_u32 vcc, s50, v{V_ARR}", [f"v{V_ARR}"], ["vcc"])); a(nop(0))
    a(salu("s_cmp_eq_u64 vcc, -1"))
    a(salu(f"s_cselect_b64 s[{S_LOCM}:{S_LOCM+1}], -1, 0"))
    if OPT.force_fallback: a(salu("s_cmp_eq_u32 s50, 0"))
    a(raw("s_cbranch_scc0 L_grp_far", "branch")); a(label("L_grp_ok"))
    f = [label("L_grp_far"), salu(f"s_or_b32 s{S_T0}, s{S_XCC}, 0x80"), valu(f"v_mov_b32 v{V_ARR+1}, s{S_T0}", [], []),
         valu(f"v_mov_b32 v{V_ARR+3}, 0", [], []),
         raw(f"buffer_store_byte v{V_ARR+1}, v{V_ARR+3}, s[{S_DBG}:{S_DBG+3}], s{S_SIG} offen sc1", "salu"), wait_vm(0),
         salu(f"s_mov_b32 s{S_SPIN}, {SPIN_MAX}"), label("L_grp_again"),
         salu(f"s_sub_u32 s{S_SPIN}, s{S_SPIN}, 1"), salu(f"s_cmp_eq_u32 s{S_SPIN}, 0"), raw("s_cbranch_scc1 L_grp_ok", "branch")]
    if not OPT.force_fallback:
        f += [raw(f"buffer_load_dword v{V_ARR}, v{V_GA}, s[{S_DBG}:{S_DBG+3}], 0 offen sc1", "salu"), wait_vm(0),
              valu(f"v_and_b32 v{V_ARR}, 0x87878787, v{V_ARR}", [], []), valu(f"v_cmp_eq_u32 vcc, s50, v{V_ARR}", [], []), nop(0),
              salu("s_cmp_eq_u64 vcc, -1"), salu(f"s_cselect_b64 s[{S_LOCM}:{S_LOCM+1}], -1, 0"), raw("s_cbranch_scc1 L_grp_ok", "branch")]
    f += far_read(V_ARR)
    f += [valu(f"v_and_b32 v{V_ARR+1}, 0x80808080, v{V_ARR}", [], []), valu(f"v_cmp_eq_u32 vcc, 0x80808080, v{V_ARR+1}", [], []), nop(0),
          salu("s_and_b64 s[52:53], vcc, 15"), salu("s_cmp_eq_u64 s[52:53], 15"), raw("s_cbranch_scc0 L_grp_again", "branch"),
          valu(f"v_and_b32 v{V_ARR}, 0x87878787, v{V_ARR}", [], []), valu(f"v_cmp_eq_u32 vcc, s50, v{V_ARR}", [], []), nop(0),
          salu("s_and_b64 s[52:53], vcc, 15"), salu("s_cmp_eq_u64 s[52:53], 15"),
          salu(f"s_cselect_b64 s[{S_LOCM}:{S_LOCM+1}], -1, 0")]
    if OPT.force_fallback: f.append(salu(f"s_mov_b64 s[{S_LOCM}:{S_LOCM+1}], 0"))
    f.append(raw("s_branch L_grp_ok", "branch"))
    OOL.extend(f)
    return o
def far_read(dst, ga=V_GA):
    return [valu(f"v_mov_b32 v{dst}, 0", [], []), valu(f"v_cmp_gt_u32 vcc, 4, v{V_LANE}", [], []),
            raw("s_and_saveexec_b64 s[54:55], vcc", "salu"),
            raw(f"buffer_atomic_add v{dst}, v{ga}, s[{S_DBG}:{S_DBG+3}], 0 offen sc0 sc1", "salu"), wait_vm(0),
            raw("s_mov_b64 exec, s[54:55]", "salu")]

def p3_setup():
    L = f"v{V_LANE}"
    o = [valu(f"v_lshlrev_b32 v{V_STO}, 4, {L}", [L], [f"v{V_STO}"])]
    if OPT.fused:
        o += [valu(f"v_mov_b32 v{V_ZERO}, 0", [], [f"v{V_ZERO}"]), valu(f"v_mov_b32 v{V_GA3}, v{V_GA}", [f"v{V_GA}"], [f"v{V_GA3}"])]
    else: o += far_setup()
    return o

def far_setup():
    o = []; a = o.append
    L = f"v{V_LANE}"
    a(salu(f"s_mul_i32 s{S_PART}, s{S_G}, {7*16*16*2048}"))
    a(salu(f"s_lshl_b32 s{S_T2}, s{S_H}, 15")); a(salu(f"s_add_u32 s{S_RBASE}, s{S_PART}, s{S_T2}"))
    a(salu(f"s_lshl_b32 s{S_T2}, s{S_W}, 17")); a(salu(f"s_add_u32 s{S_PART}, s{S_PART}, s{S_T2}"))
    a(salu(f"s_lshl_b32 s{S_T2}, s{S_H}, 11")); a(salu(f"s_add_u32 s{S_PART}, s{S_PART}, s{S_T2}"))
    if not OPT.fused: return o
    a(salu(f"s_or_b32 s{S_T2}, s{S_XCC}, 0xf0")); a(valu(f"v_mov_b32 v{V_ONE}, s{S_T2}", [], [f"v{V_ONE}"]))
    a(valu(f"v_lshrrev_b32 v1, 5, {L}", [L], ["v1"])); a(valu("v_lshlrev_b32 v1, 11, v1", ["v1"], ["v1"]))
    a(valu(f"v_and_b32 v2, 31, {L}", [L], ["v2"])); a(valu(f"v_lshl_add_u32 v{V_RLD}, v2, 4, v1", ["v1", "v2"], [f"v{V_RLD}"]))
    a(salu(f"s_lshl_b32 s{S_T2}, s{S_W}, 9")); a(valu(f"v_add_u32 v{V_RLD}, s{S_T2}, v{V_RLD}", [f"v{V_RLD}"], [f"v{V_RLD}"]))
    a(valu(f"v_and_b32 v1, 15, {L}", [L], ["v1"])); a(valu(f"v_lshrrev_b32 v2, 4, {L}", [L], ["v2"]))
    a(valu("v_lshrrev_b32 v4, 3, v1", ["v1"], ["v4"])); a(valu("v_and_b32 v5, 1, v2", ["v2"], ["v5"]))
    a(valu("v_and_b32 v48, 1, v1", ["v1"], ["v48"])); a(valu("v_lshlrev_b32 v48, 4, v48", ["v48"], ["v48"]))
    a(valu("v_mov_b32 v49, 0x3f80", [], ["v49"])); a(valu("v_lshlrev_b32 v49, v48, v49", ["v48", "v49"], ["v49"]))
    a(valu("v_cmp_eq_u32 vcc, v4, v5", ["v4", "v5"], ["vcc"])); a(nop(1))
    a(valu("v_cndmask_b32 v49, 0, v49, vcc", ["v49", "vcc"], ["v49"]))
    a(valu("v_bfe_u32 v50, v1, 1, 2", ["v1"], ["v50"]))
    for r in range(4):
        a(valu(f"v_cmp_eq_u32 vcc, {r}, v50", ["v50"], ["vcc"])); a(nop(1))
        a(valu("v_cndmask_b32 v51, 0, v49, vcc", ["v49", "vcc"], ["v51"]))
        a(valu(f"v_accvgpr_write_b32 a{A_SEL+r}, v51", ["v51"], [f"a{A_SEL+r}"]))
    a(salu(f"s_lshl_b32 s{S_T2}, s{S_B}, 8")); a(salu(f"s_lshl_b32 s{S_T3}, s{S_H}, 4")); a(salu(f"s_add_u32 s{S_T2}, s{S_T2}, s{S_T3}"))
    a(valu(f"v_add_u32 v{V_OUT}, s{S_T2}, v1", ["v1"], [f"v{V_OUT}"])); a(valu(f"v_mul_u32_u24 v{V_OUT}, 896, v{V_OUT}", [f"v{V_OUT}"], [f"v{V_OUT}"]))
    a(salu(f"s_mul_i32 s{S_T2}, s{S_BR}, 448")); a(salu(f"s_lshr_b32 s{S_T3}, s{S_W}, 1")); a(salu(f"s_lshl_b32 s{S_T3}, s{S_T3}, 5"))
    a(salu(f"s_add_u32 s{S_T2}, s{S_T2}, s{S_T3}")); a(salu(f"s_and_b32 s{S_T3}, s{S_W}, 1")); a(salu(f"s_lshl_b32 s{S_T3}, s{S_T3}, 3"))
    a(salu(f"s_add_u32 s{S_T2}, s{S_T2}, s{S_T3}"))
    a(valu(f"v_add_u32 v{V_OUT}, s{S_T2}, v{V_OUT}", [f"v{V_OUT}"], [f"v{V_OUT}"]))
    a(valu(f"v_lshl_add_u32 v{V_OUT}, v5, 4, v{V_OUT}", ["v5", f"v{V_OUT}"], [f"v{V_OUT}"]))
    a(valu("v_lshrrev_b32 v4, 1, v2", ["v2"], ["v4"])); a(valu(f"v_lshl_add_u32 v{V_OUT}, v4, 2, v{V_OUT}", ["v4", f"v{V_OUT}"], [f"v{V_OUT}"]))
    a(valu(f"v_lshlrev_b32 v{V_OUT}, 1, v{V_OUT}", [f"v{V_OUT}"], [f"v{V_OUT}"]))
    return o

def handoff_far():
    o = [wait_vm(0), barrier(), raw("buffer_wbl2 sc1", "salu"), wait_vm(0), barrier(),
         raw(f"buffer_store_byte v{V_ONE}, v{V_ZERO}, s[{S_DBG}:{S_DBG+3}], s{S_SIG} offen sc1", "salu"), wait_vm(0),
         salu(f"s_mov_b32 s{S_SPIN}, {SPIN_MAX}"), label("L_far_poll"),
         salu(f"s_sub_u32 s{S_SPIN}, s{S_SPIN}, 1"), salu(f"s_cmp_eq_u32 s{S_SPIN}, 0"), raw("s_cbranch_scc1 L_far_done", "branch")]
    o += far_read(V_POLL, V_GA3)
    o += [valu(f"v_and_b32 v{V_POLL}, 0xf0f0f0f0, v{V_POLL}", [], []), valu(f"v_cmp_eq_u32 vcc, 0xf0f0f0f0, v{V_POLL}", [], []), nop(0),
          salu("s_and_b64 s[52:53], vcc, 15"), salu("s_cmp_eq_u64 s[52:53], 15"), raw("s_cbranch_scc0 L_far_poll", "branch"),
          label("L_far_done"), raw("buffer_inv sc1", "salu"), wait_vm(0)]
    return o

A_PIECE = 0; A_SEL2 = 224
def red_loads(j):
    out = []
    for i in range(8):
        sr = "s52" if i % 2 == 0 else "s53"
        out.append(([salu(f"s_add_u32 {sr}, s{S_RBASE}, {j*16*32768 + i*4096}", [f"s{S_RBASE}"], [sr])],
                    tag(bload_f("a", A_PIECE + 32 * j + 4 * i, 4, V_RLD, S_WS, sr, 0, "sc1"), f"rl{j}")))
    return out
def red_mfmas(j):
    d = V_RD + 4 * (j & 1)
    return [mfma("v", d, "a", A_SEL2, "a", A_PIECE + 32 * j + 4 * i, None if i == 0 else "v", None if i == 0 else d) for i in range(8)]
def red_out(j):
    d = V_RD + 4 * (j & 1)
    return [valu(f"v_cvt_pk_bf16_f32 v{d}, v{d}, v{d+1}", [f"v{d}", f"v{d+1}"], [f"v{d}"]),
            valu(f"v_cvt_pk_bf16_f32 v{d+1}, v{d+2}, v{d+3}", [f"v{d+2}", f"v{d+3}"], [f"v{d+1}"])], tag(bstore(d, 2, V_OUT, S_OUT, "0", j * 128), f"out{j}")

A_RING = 64; A_SEL4 = 96
V_RLD4, V_OUT4, V_FLA, V_FLAG1 = 48, 49, 50, 51
def ring_scalars():
    o = []; a = o.append
    a(salu(f"s_mul_i32 s50, s{S_G}, {OPT.ring * 262144}"))
    a(salu(f"s_lshl_b32 s51, s{S_W}, 16")); a(salu(f"s_add_u32 s{S_RST}, s50, s51"))
    a(salu(f"s_lshl_b32 s51, s{S_H}, 10")); a(salu(f"s_add_u32 s{S_RST}, s{S_RST}, s51"))
    a(salu(f"s_lshl_b32 s51, s{S_H}, 14")); a(salu(f"s_add_u32 s{S_RLD}, s50, s51"))
    a(salu(f"s_mul_i32 s50, s{S_G}, {14*64}"))
    a(salu(f"s_lshl_b32 s51, s{S_W}, 4"))
    a(salu(f"s_add_u32 s{S_FPW}, s50, s51")); a(salu(f"s_add_u32 s{S_FPW}, s{S_FPW}, s{S_H}"))
    a(salu(f"s_add_u32 s{S_FCR}, s50, s51")); a(salu(f"s_add_u32 s{S_FCR}, s{S_FCR}, {CONS_OFF}"))
    a(salu(f"s_lshr_b32 s51, s{S_H}, 2")); a(salu(f"s_lshl_b32 s51, s51, 4"))
    a(salu(f"s_add_u32 s{S_FPR}, s50, s51"))
    a(salu(f"s_lshl_b32 s51, s{S_H}, 2")); a(salu(f"s_add_u32 s{S_FCW}, s50, s51"))
    a(salu(f"s_add_u32 s{S_FCW}, s{S_FCW}, s{S_W}")); a(salu(f"s_add_u32 s{S_FCW}, s{S_FCW}, {CONS_OFF}"))
    return o
def ring_setup():
    o = []; a = o.append
    L = f"v{V_LANE}"
    a(valu(f"v_and_b32 v{V_FLA}, 3, {L}", [L], [f"v{V_FLA}"])); a(valu(f"v_lshlrev_b32 v{V_FLA}, 2, v{V_FLA}", [f"v{V_FLA}"], [f"v{V_FLA}"]))
    a(valu(f"v_mov_b32 v{V_FLAG1}, 1", [], [f"v{V_FLAG1}"]))
    a(valu(f"v_and_b32 v1, 15, {L}", [L], ["v1"])); a(valu(f"v_lshrrev_b32 v2, 4, {L}", [L], ["v2"]))
    a(valu(f"v_lshlrev_b32 v{V_RLD4}, 10, v2", ["v2"], [f"v{V_RLD4}"])); a(valu(f"v_lshl_add_u32 v{V_RLD4}, v1, 4, v{V_RLD4}", ["v1", f"v{V_RLD4}"], [f"v{V_RLD4}"]))
    a(salu(f"s_lshl_b32 s{S_T1}, s{S_W}, 8")); a(valu(f"v_add_u32 v{V_RLD4}, s{S_T1}, v{V_RLD4}", [f"v{V_RLD4}"], [f"v{V_RLD4}"]))
    a(valu("v_and_b32 v4, 1, v1", ["v1"], ["v4"])); a(valu("v_lshlrev_b32 v4, 4, v4", ["v4"], ["v4"]))
    a(valu("v_mov_b32 v5, 0x3f80", [], ["v5"])); a(valu("v_lshlrev_b32 v5, v4, v5", ["v4", "v5"], ["v5"]))
    a(valu("v_lshrrev_b32 v4, 1, v1", ["v1"], ["v4"]))
    for r in range(4):
        a(valu(f"v_cmp_eq_u32 vcc, {r}, v4", ["v4"], ["vcc"])); a(nop(1))
        a(valu("v_cndmask_b32 v52, 0, v5, vcc", ["v5", "vcc"], ["v52"]))
        a(valu(f"v_accvgpr_write_b32 a{A_SEL4+r}, v52", ["v52"], [f"a{A_SEL4+r}"]))
    a(salu(f"s_lshl_b32 s{S_T0}, s{S_B}, 8")); a(salu(f"s_lshl_b32 s{S_T1}, s{S_H}, 4")); a(salu(f"s_add_u32 s{S_T0}, s{S_T0}, s{S_T1}"))
    a(valu(f"v_add_u32 v{V_OUT4}, s{S_T0}, v1", ["v1"], [f"v{V_OUT4}"])); a(valu(f"v_mul_u32_u24 v{V_OUT4}, 896, v{V_OUT4}", [f"v{V_OUT4}"], [f"v{V_OUT4}"]))
    a(salu(f"s_mul_i32 s{S_T0}, s{S_BR}, 448")); a(salu(f"s_lshl_b32 s{S_T1}, s{S_W}, 2")); a(salu(f"s_add_u32 s{S_T0}, s{S_T0}, s{S_T1}"))
    a(valu(f"v_add_u32 v{V_OUT4}, s{S_T0}, v{V_OUT4}", [f"v{V_OUT4}"], [f"v{V_OUT4}"]))
    a(valu(f"v_lshl_add_u32 v{V_OUT4}, v2, 4, v{V_OUT4}", ["v2", f"v{V_OUT4}"], [f"v{V_OUT4}"]))
    a(valu(f"v_lshlrev_b32 v{V_OUT4}, 1, v{V_OUT4}", [f"v{V_OUT4}"], [f"v{V_OUT4}"]))
    a(valu("v_cmp_gt_u32 vcc, 2, v2", ["v2"], ["vcc"])); a(salu(f"s_mov_b32 s{S_T0}, 0x7ff00000")); a(valu(f"v_mov_b32 v4, s{S_T0}", [], ["v4"]))
    a(valu(f"v_cndmask_b32 v{V_OUT4}, v4, v{V_OUT4}, vcc", ["v4", f"v{V_OUT4}", "vcc"], [f"v{V_OUT4}"]))
    return o

def flag_store(base, u, tg):
    return [salu(f"s_add_u32 s55, s{base}, {u*64}", [f"s{base}"], ["s55"])], \
           tag(I(f"buffer_store_byte v{V_FLAG1}, v{V_ZERO}, s[{S_FL}:{S_FL+3}], s55 offen", "vst", [f"v{V_FLAG1}", f"v{V_ZERO}", "s55"], data=[]), tg)
def flag_poll(base, u, dst, tg):
    return [salu(f"s_add_u32 s54, s{base}, {u*64}", [f"s{base}"], ["s54"])], tag(bload(dst, 1, V_FLA, S_FL, "s54", 0, "sc1"), tg)
def flag_check(base, u, dst, tg, name):
    OOL.extend([label(f"L_{name}_spin"), salu(f"s_add_u32 s54, s{base}, {u*64}"), salu(f"s_mov_b32 s{S_SPIN}, {SPIN_MAX}"),
                label(f"L_{name}_again"),
                salu(f"s_sub_u32 s{S_SPIN}, s{S_SPIN}, 1"), salu(f"s_cmp_eq_u32 s{S_SPIN}, 0"), raw(f"s_cbranch_scc1 L_{name}_ok", "branch"),
                raw(f"buffer_load_dword v{dst}, v{V_FLA}, s[{S_FL}:{S_FL+3}], s54 offen sc1", "salu"), wait_vm(0),
                valu(f"v_cmp_ne_u32 vcc, 0x01010101, v{dst}", [], []), nop(0),
                raw(f"s_cbranch_vccnz L_{name}_again", "branch"), raw(f"s_branch L_{name}_ok", "branch")])
    dd = (lambda n: stamp("d_" + n)) if name in (f"prod{OPT.p3detail}", f"cons{OPT.p3detail}") else (lambda n: [])
    return dd(name[:4] + "A") + [wait_tag(tg)] + dd(name[:4] + "B") + [valu(f"v_cmp_ne_u32 vcc, 0x01010101, v{dst}", [f"v{dst}"], ["vcc"]), nop(0),
            raw(f"s_cbranch_vccnz L_{name}_spin", "branch"), label(f"L_{name}_ok")] + dd(name[:4] + "C")
V_PP, V_PC = 53, 54
def ring_loads(u):
    out = []
    for i in range(4):
        sr = "s52" if i % 2 == 0 else "s53"
        out.append(([salu(f"s_add_u32 {sr}, s{S_RLD}, {(u % OPT.ring)*262144 + i*4096}", [f"s{S_RLD}"], [sr])],
                    tag(bload_f("a", A_RING + 16 * (u & 1) + 4 * i, 4, V_RLD4, S_RG, sr, 0, "sc1"), f"rl{u}")))
    return out
def ring_mfmas(u):
    d = V_RD + 4 * (u & 1)
    return [mfma("v", d, "a", A_SEL4, "a", A_RING + 16 * (u & 1) + 4 * i, None if i == 0 else "v", None if i == 0 else d) for i in range(4)]
def ring_out(u):
    d = V_RD + 4 * (u & 1)
    return [valu(f"v_cvt_pk_bf16_f32 v{d}, v{d}, v{d+1}", [f"v{d}", f"v{d+1}"], [f"v{d}"]),
            valu(f"v_cvt_pk_bf16_f32 v{d+1}, v{d+2}, v{d+3}", [f"v{d+2}", f"v{d+3}"], [f"v{d+1}"])], tag(bstore(d, 2, V_OUT4, S_OUT, "0", u * 64, OPT.out_flags), f"out{u}")

def p3_stream(local, carried):
    o = []; a = o.append
    NS, D = OPT.ring, OPT.prod_delay
    Q = lambda u: 8 * u + 7
    if OPT.tmpl == 0:
        T = dict(st=[0, 1, 2, 3], sig=(7, 5), poll=(12, 5), chk=(15, 7), ld=[(16, 7), (17, 7), (18, 7), (19, 7)], csig=(22, 3), out=(30, 5),
                 cpoll=(-4, 3), cchk=(-1, 3), wo=[(-4, 7), (-3, 3), (-3, 7), (-2, 7)], va=((0, 85), (1, 61), (2, 69), (3, 101)))
    else:
        T = dict(st=[0, 2, 4, 5], sig=(8, 5), poll=(13, 7), chk=(16, 7), ld=[(17, 3), (17, 7), (19, 3), (19, 7)], csig=(22, 3), out=(30, 5),
                 cpoll=(-4, 7), cchk=(-1, 3), wo=[(-6, 7), (-2, 7), (-1, 5), (-1, 7)], va=((0, 85), (1, 37), (2, 69), (3, 101)))
    ins = {}
    if local:
        for u in range(14):
            m = 8 * (Q(u) + 22 + D) - 1
            if m < 895: ins[m] = u
    ms = []; pos = {}; redpos = {}
    for m in range(896):
        j, i = m >> 7, m & 127
        nb, qb, s_ = i >> 5, (i >> 3) & 3, i & 7
        acc = V_ACC3 + 4 * ((nb * 4 + qb) % 8)
        pos[m] = len(ms)
        ms.append(mfma("v", acc, "a", A_FR3 + 4 * (8 * (nb & 1) + s_), "v", V_Q + (qb * 8 + s_) * 4,
                       None if s_ == 0 else "v", None if s_ == 0 else acc))
        if m in ins:
            u = ins[m]; redpos[u] = len(ms); ms += ring_mfmas(u)
    g = Gaps(ms); N = g.n
    P = lambda j, i: pos[128 * j + i]
    def G(period, off):
        m = 8 * period + off
        return pos[m] if 0 <= m < 896 else None
    for j in range(7):
        for nb in range(4):
            jn, nbn = (j, nb + 1) if nb < 3 else (j + 1, 0)
            if jn > 6: continue
            for s_ in range(8):
                for jj in range(2): g.put_mem(P(j, 32 * nb + 4 * s_ + 2 * jj), wo_read(nbn, s_, jj))
    cons = []
    for j in range(7):
        for nb in range(4):
            for s_ in (0, 2, 4, 6): cons.append((P(j, 32 * nb + s_), R("a", A_FR3 + 4 * (8 * (nb & 1) + s_), 8)))
    cons.sort()
    def put_vm(k, sc, d):
        assert g.mem[k] is None and not g.post[k], (k, d.text)
        for n, x in enumerate(reversed(sc)):
            kk = k - 1 - n
            assert kk >= 0
            assert not (g.mem[kk] is not None and g.mem[kk].kind == "dma" and "m0" in x.wr)
            g.pre[kk].append(x)
        g.mem[k] = d
    def put_seq(k, seq):
        assert g.mem[k] is None and not g.post[k], k
        g.post[k] = seq
    for j in range(6):
        k = P(j, 91)
        g.pre[k] += ([wait_tag(f"wo{j+1}")] if not (OPT.wo_stage and j + 1 >= 5) else []) + [barrier()]
        sh = va_shift(WOBUF[j + 1] - WOBUF[j])
        for n, at in T['va']:
            kk = P(j, at); g.vec[kk].append(sh[n])
    if OPT.wo_stage:
        items = wo_dma(4) + wo_stage_loads(5) + wo_stage_loads(6)
        slots = [(0, 3), (0, 5), (0, 7), (1, 1), (1, 3), (1, 5), (1, 7)] + [(per, off) for per in range(2, 7) for off in (3, 5, 7)] + [(7, 5), (7, 7)]
        if OPT.tmpl == 1:
            slots = [(0, 3), (0, 5), (0, 7), (1, 1), (1, 3), (1, 5), (1, 7)] + [(per, off) for per in range(2, 7) for off in (3, 5, 7)] + [(7, 5), (7, 7)]
        for (sc, d), (per, off) in zip(items, slots): put_vm(G(per, off), sc, d)
        for j in (5, 6):
            jj_ = j - 3
            g.vec[P(jj_, 1)].insert(0, valu(f"v_add_u32 v{V_WOW}, {(WOBUF[j] - (WOBUF[j-1] if j == 6 else 0)) & 0xffffffff}, v{V_WOW}", [f"v{V_WOW}"], [f"v{V_WOW}"]))
            for i in range(8):
                u0 = 2 * jj_ + (i >> 2)
                per, off = Q(u0) + T['wo'][i & 3][0], T['wo'][i & 3][1]
                k = G(per, off)
                assert g.mem[k] is None
                g.mem[k] = wo_stage_write(j, i)
            u1 = 2 * jj_
            g.pre[G(Q(u1) + T['wo'][0][0], T['wo'][0][1]) - 1].append(wait_tag(f"wos{j}"))
    else:
      for j in (2, 3):
        items = wo_dma(j + 3)
        for n, (sc, d) in enumerate(items):
            u0 = 2 * j + (n >> 2)
            per, off = Q(u0) + T['wo'][n & 3][0], T['wo'][n & 3][1]
            put_vm(G(per, off), sc, d)
    lead = add_lgkm_waits(g, cons, carried)
    stores = {}; sgap = {}
    for u in range(14):
        j, nb = u >> 1, 2 * (u & 1) + 1
        for qb in range(4):
            sreg = S_T2 + (qb & 1)
            if local:
                st = ([salu(f"s_add_u32 s{sreg}, s{S_RST}, {(u % NS)*262144 + qb*16384}", [f"s{S_RST}"], [f"s{sreg}"])],
                      tag(bstore(V_STG + 4 * qb, 4, V_STO, S_RG, f"s{sreg}", 0, OPT.last_st if u >= 14 - NS else ""), f"st{u}"))
            else:
                so = j * 16 * 16 * 2048 + qb * 16 * 2048 + (nb >> 1) * 1024
                st = ([salu(f"s_add_u32 s{sreg}, s{S_PART}, {so}", [f"s{S_PART}"], [f"s{sreg}"])],
                      tag(bstore(V_STG + 4 * qb, 4, V_STO, S_WS, f"s{sreg}", 0), f"st{u}"))
            stores[(u, qb)] = st
            k = G(Q(u) + T['st'][qb], 3)
            sgap[(u, qb)] = k
            if k is not None: put_vm(k, *st)
    done = {}; out_left = []
    if local:
        for u in range(14):
            dd = (lambda n: stamp("d_" + n)) if u == OPT.p3detail else (lambda n: [])
            if u >= NS:
                kp, kc = G(Q(u) + T['cpoll'][0], T['cpoll'][1]), G(Q(u) + T['cchk'][0], T['cchk'][1])
                put_vm(kp, *flag_poll(S_FCR, u - NS, V_PC, f"pc{u}"))
                put_seq(kc, flag_check(S_FCR, u - NS, V_PC, f"pc{u}", f"cons{u}"))
            done[u] = "sig"
            k = G(Q(u) + T['sig'][0], T['sig'][1])
            if k is None or sgap[(u, 3)] is None: continue
            sc, d = flag_store(S_FPW, u, f"sig{u}")
            g.pre[k - 1] += dd("sigA") + [wait_tag(f"st{u}")] + dd("sigB"); put_vm(k, sc, d)
            done[u] = "poll"
            k = G(Q(u) + T['poll'][0] + D, T['poll'][1])
            if k is None: continue
            put_vm(k, *flag_poll(S_FPR, u, V_PP, f"pp{u}"))
            done[u] = "check"
            k = G(Q(u) + T['chk'][0] + D, T['chk'][1])
            if k is None: continue
            put_seq(k, flag_check(S_FPR, u, V_PP, f"pp{u}", f"prod{u}"))
            done[u] = "loads"
            if u not in redpos: continue
            for n, (sc, d) in enumerate(ring_loads(u)): put_vm(G(Q(u) + T['ld'][n][0] + D, T['ld'][n][1]), sc, d)
            g.pre[redpos[u] - 1] += dd("rlA") + [wait_tag(f"rl{u}")] + dd("rlB")
            if u <= 13 - NS: put_vm(G(Q(u) + T['csig'][0] + D, T['csig'][1]), *flag_store(S_FCW, u, f"csig{u}"))
            done[u] = "out"
            cv, st = ring_out(u)
            if u + 1 in redpos:
                g.vec[redpos[u + 1]] += cv
                put_vm(G(Q(u) + T['out'][0] + D, T['out'][1]), [], st)
                done[u] = "all"
    tail_main = []
    for p in range(112):
        j, nb, qb = p >> 4, (p >> 2) & 3, p & 3
        ops = part_ops(nb, qb)
        slots = [G(p + 2, 0), G(p + 2, 1), G(p + 2, 1), G(p + 2, 2), G(p + 2, 4), G(p + 2, 6)]
        if slots[0] is None:
            tail_main += ops
        else:
            for x, k in zip(ops, slots): g.vec[k].append(x)
        if nb & 1:
            u = 2 * j + (nb >> 1)
            if sgap[(u, qb)] is None: tail_main += stores[(u, qb)][0] + [nop(1), stores[(u, qb)][1]]
    if OPT.p3_tiles and local:
        for j in range(1, 7): g.pre[P(j, 0)] = stamp(f"tile{j}") + g.pre[P(j, 0)]
    if lead is not None: a(lead)
    em = g.emit()
    if "allst" in OPT.p3_drop: em = [x for x in em if x.kind != "vst"]
    if "pst" in OPT.p3_drop: em = [x for x in em if not (x.kind == "vst" and x.meta.get("tag", "").startswith("st"))]
    if "nospin" in OPT.p3_drop: em = [x for x in em if not (x.kind == "branch" and "vccnz" in x.text)]
    if "novm" in OPT.p3_drop: em = [x for x in em if not (x.kind == "wait" and "vmtags" in x.meta and not x.meta["vmtags"][0].startswith("wo"))]
    if "nold" in OPT.p3_drop: em = [x for x in em if not (x.kind == "vld" and x.meta.get("tag", "").startswith("rl"))]
    o += stamp("p3_stream_start") if (local or not OPT.fused) else []
    o += em
    if local or not OPT.fused: o += stamp("p3_mfma_end")
    a(nop(7)); o += exposed(tail_main)
    if local:
        todo = [u for u in range(14) if done[u] != "all"]
        LD = lambda u: [x for sc, d in ring_loads(u) for x in sc + [d]]
        POLL = lambda u: (lambda p: p[0] + [p[1]])(flag_poll(S_FPR, u, V_PP, f"pp{u}"))
        CHK = lambda u: flag_check(S_FPR, u, V_PP, f"pp{u}", f"prod{u}")
        SIG = lambda u: (lambda p: [wait_tag(f"st{u}")] + p[0] + [p[1]])(flag_store(S_FPW, u, f"sig{u}"))
        OUT = lambda u: (lambda p: p[0] + [p[1]])(ring_out(u))
        if OPT.tail2 and [done[u] for u in todo] == ["out", "loads", "poll", "sig"] and todo == [10, 11, 12, 13]:
            o += LD(11) + POLL(12) + SIG(13) + stamp("x_last_signal") + OUT(10)
            o += CHK(12) + LD(12) + [wait_tag("rl11")] + ring_mfmas(11)
            o += POLL(13) + CHK(13) + LD(13)
            o += [wait_tag("rl12")] + ring_mfmas(12) + [nop(3)] + OUT(11)
            o += [wait_tag("rl13")] + ring_mfmas(13) + [nop(3)] + OUT(12) + [nop(7)] + OUT(13)
        else:
            for u in todo:
                if done[u] == "sig": o += SIG(u)
            o += stamp("x_last_signal")
            for u in todo:
                if done[u] != "out":
                    if done[u] in ("sig", "poll"): o += POLL(u)
                    if done[u] in ("sig", "poll", "check"): o += CHK(u)
                    o += LD(u) + [wait_tag(f"rl{u}")] + ring_mfmas(u) + [nop(7)]
                o += OUT(u)
    return o

def phase3():
    o = []; a = o.append
    a(label("L_p3_entry"))
    a(wait_tag("wt", "wo0")); a(raw("s_waitcnt lgkmcnt(0)", "wait", lgkm=0)); a(barrier())
    a(valu(f"v_mov_b32 v1, {L_VOTE}", [], ["v1"]))
    a(ds_read128("v", V_SP, 1, 0)); a(wait_lgkm(0))
    a(valu(f"v_or3_b32 v{V_SP}, v{V_SP}, v{V_SP+1}, v{V_SP+2}", R("v", V_SP, 3), [f"v{V_SP}"]))
    a(valu(f"v_or_b32 v{V_SP}, v{V_SP}, v{V_SP+3}", [f"v{V_SP}", f"v{V_SP+3}"], [f"v{V_SP}"])); a(nop(0))
    a(valu(f"v_readfirstlane_b32 s50, v{V_SP}", [f"v{V_SP}"], ["s50"])); a(nop(3))
    a(salu(f"s_cmp_eq_u32 s{S_SAFE}, 0")); a(salu("s_cselect_b32 s50, s50, 0"))
    a(salu("s_cmp_lg_u32 s50, 0")); a(raw("s_cbranch_scc1 L_restart", "branch"))
    OOL.extend([label("L_restart"), wait_vm(0), raw("s_waitcnt lgkmcnt(0)", "wait", lgkm=0), barrier(),
                salu(f"s_mov_b32 s{S_SAFE}, 1"), raw("s_branch L_again", "branch")])
    o += p3_setup()
    if OPT.fused: o += ring_setup()
    o += va_shift(WOBUF[0] - L_V)
    if OPT.fused: o += mode_check()
    carried = []
    for s_ in range(8):
        for jj in range(2):
            r = wo_read(0, s_, jj); a(r); carried.append(r.wr)
            if len(carried) == 14: a(wait_lgkm(6)); carried = carried[-6:]
    a(barrier())
    if OPT.wo_stage:
        a(valu(f"v_lshlrev_b32 v{V_WOW}, 4, v{V_LANE}", [f"v{V_LANE}"], [f"v{V_WOW}"]))
        a(valu(f"v_add_u32 v{V_WOW}, s{S_W1K}, v{V_WOW}", [f"v{V_WOW}"], [f"v{V_WOW}"]))
    else:
        for sc, d in wo_dma(4): o += sc + [nop(0), d]
    if not OPT.fused:
        return o, p3_stream(False, carried) + stamp("p3_end") + ([wait_vm(0)] if OPT.stamps else []) + stamp("rt_end"), []
    o += [salu(f"s_cmp_eq_u32 s{S_LOCM}, 0"), raw("s_cbranch_scc1 L_p3_far", "branch")]
    loc = p3_stream(True, carried)
    loc += stamp("p3_end") + ([wait_vm(0)] if OPT.stamps else []) + stamp("rt_end")
    far = [label("L_p3_far")] + far_setup() + p3_stream(False, carried) + handoff_far()
    for j in range(7):
        for sc, d in red_loads(j): far += sc + [d]
    for j in range(7):
        far.append(wait_tag(f"rl{j}"))
        far += red_mfmas(j)
        if j > 0:
            cv, stt = red_out(j - 1); far += cv + [stt]
    far.append(nop(7))
    cv, stt = red_out(6); far += cv + [stt]
    far += [wait_vm(0), raw("s_endpgm", "branch")]
    return o, loc, far

def dump_regs(base, n, agpr=False):
    o = [wait_vm(0), raw("s_waitcnt lgkmcnt(0)", "wait", lgkm=0), nop(7), nop(7),
         salu(f"s_lshl_b32 s{S_T0}, s2, 2"), salu(f"s_add_u32 s{S_T0}, s{S_T0}, s{S_W}"),
         salu(f"s_mul_i32 s{S_T0}, s{S_T0}, {n*256}"), valu(f"v_lshlrev_b32 v1, 2, v{V_LANE}", [f"v{V_LANE}"], ["v1"])]
    for r in range(n):
        if agpr:
            o.append(valu(f"v_accvgpr_read_b32 v2, a{base+r}", [f"a{base+r}"], ["v2"])); o.append(bstore(2, 1, 1, S_WS, f"s{S_T0}", 0))
        else:
            o.append(bstore(base + r, 1, 1, S_WS, f"s{S_T0}", 0))
        o.append(salu(f"s_add_u32 s{S_T0}, s{S_T0}, 256"))
        if r % 32 == 31 or agpr: o.append(wait_vm(0))
    return o

def stamp_out():
    if not OPT.stamps: return []
    if OPT.dma_stamps: STAMPS[:] = [f"dma{i}" for i in range(10)] + ["loopcyc"]
    if OPT.bar_stamps: STAMPS.extend(["acc_vm", "acc_bar"])
    n = len(STAMPS)
    o = [raw("s_waitcnt lgkmcnt(0)", "wait", lgkm=0), salu(f"s_cmp_lg_u32 s{S_W}, 0"), raw("s_cbranch_scc1 L_nostamp", "branch")]
    if OPT.stamp_dbg >= 0:
        o += [salu(f"s_cmp_lg_u32 s2, {OPT.stamp_dbg}"), raw("s_cbranch_scc1 L_nostamp", "branch")]
        o += [salu("s_load_dwordx2 s[36:37], s[0:1], 88"), raw("s_waitcnt lgkmcnt(0)", "wait", lgkm=0)]
        o += [salu(f"s_mov_b32 s{S_WS}, s36"), salu(f"s_mov_b32 s{S_WS+1}, s37"), salu(f"s_mov_b32 s{S_WS+2}, 256"), salu(f"s_mov_b32 s{S_T0}, 0")]
    else:
        o.append(salu(f"s_mul_i32 s{S_T0}, s2, 64")); o.append(salu(f"s_add_u32 s{S_T0}, s{S_T0}, {STAMP_OFF}"))
        o.append(salu(f"s_mov_b32 s{S_WS+2}, {STAMP_OFF + 256*64}"))
    o.append(valu("v_mov_b32 v1, 0", [], ["v1"]))
    for k in range(n):
        if OPT.stamp_dbg >= 0:
            ref = 0 if STAMPS[k].startswith("rt") else 1
            o.append(salu(f"s_sub_u32 s{S_T1}, s{S_STAMP+2*k}, s{S_STAMP+2*ref}"))
            o.append(valu(f"v_mov_b32 v2, s{S_T1}", [], ["v2"]))
        elif STAMPS[k] == "loopcyc": o.append(valu("v_mov_b32 v2, s100", [], ["v2"]))
        elif STAMPS[k] == "acc_vm": o.append(valu("v_mov_b32 v2, s92", [], ["v2"]))
        elif STAMPS[k] == "acc_bar": o.append(valu("v_mov_b32 v2, s93", [], ["v2"]))
        else:
            o.append(valu(f"v_mov_b32 v2, s{S_STAMP+2*k}", [], ["v2"]))
        o.append(bstore(2, 1, 1, S_WS, f"s{S_T0}", 4 * k)); o.append(wait_vm(0))
    o.append(label("L_nostamp"))
    return o

def finish(): return [wait_vm(0), label("L_end"), raw("s_endpgm", "branch")]

def build(debug=None):
    _stamp_n[0] = 0; STAMPS.clear(); OOL.clear()
    pre = setup() + phase1()
    if debug == "p1":
        pre += stamp("rt_end")
        resolve_vm(pre, [])
        return pre + stamp_out() + finish()
    if debug == "q":
        resolve_vm(pre, []); check(pre, "pre")
        return pre + dump_regs(V_Q, 128) + finish()
    if OPT.dma_mode == "cluster":
        OPT.dma_gaps = ([21, 23, 25, 27], [101, 103, 105, 107]); OPT.nv_prev = 0
    elif OPT.dma_mode == "cluster2":
        OPT.dma_gaps = ([41, 43, 47, 49], [101, 103, 105, 107]); OPT.nv_prev = 0
    NCUR = len(OPT.dma_gaps[1])
    pre += [salu(f"s_cmp_lg_u32 s{S_SAFE}, 0"), raw("s_cbranch_scc1 L_safe_attn", "branch")]
    p, carried = pre_iter(); pre += p
    def batch(t):
        return dma_tile("V", vslot(t + 3), f"s{S_VOFF}", f"V{t+3}") + dma_tile("K", kslot(t + 5), f"s{S_KOFF}", f"K{t+5}")
    pre += wo_setup()
    if OPT.fused: pre += grp_setup()
    def ex0(g, kb):
        put_wo(g, 0, 3, kb, step=8)
    vf0 = OPT.vfirst
    if OPT.early_trips: OPT.vfirst = OPT.vfirst_early
    s0, carried = attn_iter(0, carried, wait_tag("V1", "K2"), [], batch(0)[:NCUR], first=True, adv=False, extra=ex0)
    OPT.vfirst = vf0
    pre += s0
    pre.append(salu(f"s_mov_b32 s{S_LOOP}, 7"))
    if OPT.bar_stamps: pre += [salu("s_mov_b32 s92, 0"), salu("s_mov_b32 s93, 0")]
    pre += stamp("loop_start") + (stamp("rt_ls") if (OPT.bar_stamps or OPT.trip_stamps) else [])
    def loop_body(name):
        nonlocal carried
        lp = [label(name)]
        for u in range(4):
            t = 1 + u
            s, carried = attn_iter(t, carried, wait_vm(12), batch(t - 1)[NCUR:], batch(t)[:NCUR], loopctl=(u == 3), loop_body=True)
            if OPT.dma_stamps and u == 1:
                s2 = []; n = 0
                for x in s:
                    if x.kind == "dma" and n < 5:
                        s2 += [raw(f"s_memtime s[{80+4*n}:{81+4*n}]", "salu"), x, raw(f"s_memtime s[{82+4*n}:{83+4*n}]", "salu")]; n += 1
                    else: s2.append(x)
                s = s2
            lp += s
        return lp
    first_loop = []
    if OPT.early_trips:
        vf = OPT.vfirst; OPT.vfirst = OPT.vfirst_early
        OPT.loop_exit = 7 - OPT.early_trips
        first_loop = loop_body("L_attn_early") + [raw("s_cbranch_scc1 L_attn_early", "branch")]
        OPT.vfirst = vf; OPT.loop_exit = 0
    loop = loop_body("L_attn")
    if OPT.trip_stamps:
        loop += [raw("s_memtime s[98:99]", "salu"), raw("s_memrealtime s[100:101]", "salu"), raw("s_waitcnt lgkmcnt(0)", "wait", lgkm=0),
                 salu(f"s_mov_b32 s99, m0"), salu(f"s_mov_b32 m0, s{S_LOOP}"), nop(0), valu(f"v_writelane_b32 v1, s98, m0", ["s98"], ["v1"]),
                 salu(f"s_add_u32 m0, s{S_LOOP}, 8"), nop(0), valu(f"v_writelane_b32 v1, s100, m0", ["s100"], ["v1"]),
                 salu("s_mov_b32 m0, s99"), salu(f"s_cmp_lg_u32 s{S_LOOP}, 0")]
    if OPT.loop_nodma: loop = [x for x in loop if x.kind != "dma"]
    if OPT.loop_nods: loop = [x for x in loop if x.kind != "ds" and not (x.kind == "wait" and "lgkm" in x.meta and x.meta["lgkm"] > 0)]
    if OPT.loop_nomfma: loop = [(nop(1) if x.kind == "mfma" else x) for x in loop]
    if OPT.loop_novalu: loop = [x for x in loop if x.kind not in ("valu", "trans")]
    if OPT.loop_dma_every > 1:
        cnt = [0]
        def keep(x):
            if x.kind != "dma": return True
            cnt[0] += 1
            return cnt[0] % OPT.loop_dma_every == 0
        loop = [x for x in loop if keep(x)]
    loop.append(raw("s_cbranch_scc1 L_attn", "branch"))
    post = stamp("loop_end") + (stamp("rt_le") if OPT.bar_stamps else [])
    if OPT.trip_stamps:
        post += [valu(f"v_lshlrev_b32 v2, 2, v{V_LANE}", [], ["v2"]), salu(f"s_mul_i32 s{S_T1}, s2, 64"),
                 salu(f"s_add_u32 s{S_T1}, s{S_T1}, {STAMP_OFF + 256*64}"), salu(f"s_mov_b32 s{S_WS+2}, {STAMP_OFF + 2*256*64}"),
                 valu("v_cmp_gt_u32 vcc, 16, v0", ["v0"], ["vcc"]), salu(f"s_cmp_eq_u32 s{S_W}, 0"), raw("s_cselect_b64 s[50:51], vcc, 0", "salu"),
                 raw("s_mov_b64 s[54:55], exec", "salu"), raw("s_mov_b64 exec, s[50:51]", "salu"), raw("s_cbranch_execz L_notrip", "branch"),
                 raw(f"buffer_store_dword v1, v2, s[{S_WS}:{S_WS+3}], s{S_T1} offen", "salu"), wait_vm(0), label("L_notrip"), raw("s_mov_b64 exec, s[54:55]", "salu"), wait_vm(0)]
    def ex29(g, kb):
        if OPT.fused: place_vmem(g, 40, [], mode_load(), kb)
        gp = 50
        for j in OPT.wo_touch: gp = place_vmem(g, gp, [], wo_touch(j), kb) + 12
    post += wo_touch_setup()
    s, carried = attn_iter(29, carried, wait_tag("V30", "K32"), batch(28)[NCUR:4], [], adv=False,
                           extra=ex29)
    post += s
    def ex30(g, kb):
        put_wo(g, 1, 3, kb, step=8)
        if OPT.fused:
            k = 2
            for x in ring_scalars(): k = put_scalar(g, k, x) + 1
    s, carried = attn_iter(30, carried, wait_tag("V31"), [], [], adv=False, extra=ex30)
    post += s
    post += last_iter(carried)
    post += stamp("attn_end")
    if debug == "o":
        tailq = dump_regs(V_Q, 128)
    elif debug == "l":
        tailq = dump_regs(V_L, 4)
    else:
        common, loc, far = phase3()
        tailq = common
    post += tailq
    q = resolve_vm(pre, [])
    qexit = ["V30"] * 4 + ["K32"] * 4 + ["V31"] * NCUR
    qb_ = resolve_vm(post, qexit)
    if debug is None:
        resolve_vm(loc, qb_); resolve_vm(far, qb_)
        if far and not OPT.p3_drop: check(loop[1:] + post + far[1:], "loop+post+far", init_lgkm=[x.wr for x in pre if x.kind == "ds"][-8:], init_vm=[[]] * (8 + NCUR))
        post = post + loc
        OOL.extend(far)
    if not (OPT.p1_nowait or OPT.p1_noread or OPT.p1_drop or OPT.loop_nodma or OPT.loop_dma_every > 1 or OPT.loop_nods or OPT.loop_nomfma or OPT.loop_novalu): check(pre + loop[1:] + loop[1:], "pre+loop")
    if not (OPT.p3_drop or OPT.loop_nodma or OPT.loop_dma_every > 1 or OPT.loop_nods or OPT.loop_nomfma or OPT.loop_novalu): check(loop[1:] + post, "loop+post", init_lgkm=[x.wr for x in pre if x.kind == "ds"][-8:], init_vm=[[]] * (8 + NCUR))
    OOL.extend(safe_attn())
    if first_loop: check(pre + first_loop[1:] + first_loop[1:] + loop[1:], "pre+early+loop")
    return pre + first_loop + loop + post + stamp_out() + finish() + OOL

def reduce_kernel():
    o = []; a = o.append
    a(salu("s_cmp_ge_u32 s2, 256")); a(raw("s_cbranch_scc1 R_end", "branch"))
    a(salu("s_load_dwordx2 s[4:5], s[0:1], 80")); a(salu("s_load_dwordx2 s[6:7], s[0:1], 96"))
    a(valu("v_lshrrev_b32 v1, 6, v0", ["v0"], ["v1"])); a(valu("v_and_b32 v0, 63, v0", ["v0"], ["v0"]))
    a(valu("v_readfirstlane_b32 s32, v1", ["v1"], ["s32"]))
    a(salu("s_lshr_b32 s33, s2, 4")); a(salu("s_and_b32 s34, s2, 15"))
    a(salu("s_lshr_b32 s35, s33, 3")); a(salu("s_and_b32 s36, s33, 7"))
    a(salu("s_lshr_b32 s37, s32, 1")); a(salu("s_and_b32 s38, s32, 1"))
    a(valu("v_lshrrev_b32 v2, 5, v0", ["v0"], ["v2"])); a(valu("v_lshlrev_b32 v2, 11, v2", ["v2"], ["v2"]))
    a(valu("v_and_b32 v3, 31, v0", ["v0"], ["v3"])); a(valu("v_lshl_add_u32 v2, v3, 4, v2", ["v3", "v2"], ["v2"]))
    a(salu("s_lshl_b32 s39, s37, 10")); a(salu("s_lshl_b32 s40, s38, 9")); a(salu("s_add_u32 s39, s39, s40"))
    a(valu("v_add_u32 v2, s39, v2", ["v2"], ["v2"]))
    a(valu("v_and_b32 v8, 15, v0", ["v0"], ["v8"])); a(valu("v_lshrrev_b32 v9, 4, v0", ["v0"], ["v9"]))
    a(valu("v_lshrrev_b32 v10, 3, v8", ["v8"], ["v10"])); a(valu("v_and_b32 v11, 1, v9", ["v9"], ["v11"]))
    a(valu("v_and_b32 v12, 1, v8", ["v8"], ["v12"])); a(valu("v_lshlrev_b32 v12, 4, v12", ["v12"], ["v12"]))
    a(valu("v_mov_b32 v13, 0x3f80", [], ["v13"])); a(valu("v_lshlrev_b32 v13, v12, v13", ["v12", "v13"], ["v13"]))
    a(valu("v_cmp_eq_u32 vcc, v10, v11", ["v10", "v11"], ["vcc"])); a(nop(1))
    a(valu("v_cndmask_b32 v13, 0, v13, vcc", ["v13", "vcc"], ["v13"]))
    a(valu("v_bfe_u32 v14, v8, 1, 2", ["v8"], ["v14"]))
    for r in range(4):
        a(valu(f"v_cmp_eq_u32 vcc, {r}, v14", ["v14"], ["vcc"])); a(nop(1))
        a(valu(f"v_cndmask_b32 v{4+r}, 0, v13, vcc", ["v13", "vcc"], [f"v{4+r}"]))
    a(salu("s_lshl_b32 s41, s36, 8")); a(salu("s_lshl_b32 s42, s34, 4")); a(salu("s_add_u32 s41, s41, s42"))
    a(valu("v_add_u32 v3, s41, v8", ["v8"], ["v3"])); a(valu("v_mul_u32_u24 v3, 896, v3", ["v3"], ["v3"]))
    a(salu("s_mul_i32 s42, s35, 448")); a(salu("s_lshl_b32 s43, s37, 5")); a(salu("s_add_u32 s42, s42, s43"))
    a(salu("s_lshl_b32 s43, s38, 3")); a(salu("s_add_u32 s42, s42, s43"))
    a(valu("v_add_u32 v3, s42, v3", ["v3"], ["v3"]))
    a(valu("v_lshl_add_u32 v3, v11, 4, v3", ["v11", "v3"], ["v3"]))
    a(valu("v_lshrrev_b32 v10, 1, v9", ["v9"], ["v10"])); a(valu("v_lshl_add_u32 v3, v10, 2, v3", ["v10", "v3"], ["v3"]))
    a(valu("v_lshlrev_b32 v3, 1, v3", ["v3"], ["v3"]))
    a(raw("s_waitcnt lgkmcnt(0)", "wait", lgkm=0))
    for base, lo, size in ((8, 6, 16 * 7 * 16 * 16 * 2048), (12, 4, 8 * 256 * 896 * 2)):
        a(salu(f"s_mov_b32 s{base}, s{lo}")); a(salu(f"s_mov_b32 s{base+1}, s{lo+1}"))
        a(salu(f"s_mov_b32 s{base+2}, {size}")); a(salu(f"s_mov_b32 s{base+3}, 0x20000"))
    a(salu(f"s_mul_i32 s44, s33, {7*16*32768}")); a(salu("s_lshl_b32 s45, s34, 15")); a(salu("s_add_u32 s44, s44, s45"))
    for j in range(7):
        for i in range(8):
            a(salu(f"s_add_u32 s46, s44, {j*16*32768 + i*4096}"))
            a(tag(bload(16 + (j * 8 + i) * 4, 4, 2, 8, "s46", 0), f"p{j}"))
    for j in range(7):
        a(wait_tag(f"p{j}"))
        d = 240 + 4 * (j & 1)
        for i in range(8):
            a(mfma("v", d, "v", 4, "v", 16 + (j * 8 + i) * 4, None if i == 0 else "v", None if i == 0 else d))
        a(nop(7))
        a(valu(f"v_cvt_pk_bf16_f32 v{d}, v{d}, v{d+1}", [f"v{d}", f"v{d+1}"], [f"v{d}"]))
        a(valu(f"v_cvt_pk_bf16_f32 v{d+1}, v{d+2}, v{d+3}", [f"v{d+2}", f"v{d+3}"], [f"v{d+1}"]))
        a(tag(bstore(d, 2, 3, 12, "0", j * 128), "o"))
    resolve_vm(o, []); check(o, "reduce")
    if OPT.stamps and OPT.stamp_fwd >= 0:
        o += [wait_vm(0), salu("s_cmp_lg_u32 s2, 0"), raw("s_cbranch_scc1 R_end", "branch"),
              salu("s_load_dwordx2 s[20:21], s[0:1], 88"), raw("s_waitcnt lgkmcnt(0)", "wait", lgkm=0),
              salu("s_mov_b32 s16, s20"), salu("s_mov_b32 s17, s21"), salu("s_mov_b32 s18, 64"), salu("s_mov_b32 s19, 0x20000"),
              salu(f"s_mov_b32 s10, {16*7*16*16*2048 + 256*64}"), salu(f"s_mov_b32 s46, {16*7*16*16*2048} + 64*{OPT.stamp_fwd}"),
              valu("v_lshlrev_b32 v2, 2, v0", ["v0"], ["v2"]), bload(3, 1, 2, 8, "s46", 0), wait_vm(0), bstore(3, 1, 2, 16, "0", 0)]
    o += [wait_vm(0), label("R_end"), raw("s_endpgm", "branch")]
    return o

KD = """.section .rodata,"a"
.p2align 6
.amdhsa_kernel {name}
  .amdhsa_next_free_vgpr {vgpr}
  .amdhsa_next_free_sgpr 102
  .amdhsa_accum_offset 256
  .amdhsa_group_segment_fixed_size 0
  .amdhsa_kernarg_size 104
  .amdhsa_user_sgpr_count 2
  .amdhsa_user_sgpr_kernarg_segment_ptr 1
  .amdhsa_system_sgpr_workgroup_id_x 1
.end_amdhsa_kernel
"""
def header_comments():
    ref = open("cdna_kernels/" + NAME + ".s.ref").read().splitlines()
    out = []
    for l in ref:
        if l.startswith("; Override launch") or not l.startswith(";"): break
        out.append(l)
    return out

def stream_kernel():
    t = """
  s_cmp_ge_u32 s2, 256
  s_cbranch_scc1 S_end
  s_load_dwordx2 s[4:5], s[0:1], 8
  s_load_dwordx2 s[6:7], s[0:1], 96
  s_load_dwordx2 s[8:9], s[0:1], 48
  v_lshrrev_b32 v2, 6, v0
  s_nop 0
  v_readfirstlane_b32 s24, v2
  v_and_b32 v1, 63, v0
  v_lshlrev_b32 v14, 4, v1
  s_nop 2
  s_lshl_b32 s25, s24, 12
  v_add_u32 v14, s25, v14
  s_waitcnt lgkmcnt(0)
  s_cmp_lt_u32 s2, 128
  s_cselect_b32 s36, s4, s8
  s_cselect_b32 s37, s5, s9
  s_mov_b32 s38, 0x4000000
  s_mov_b32 s39, 0x20000
  s_and_b32 s32, s2, 127
  s_lshl_b32 s32, s32, 19
  s_barrier
  s_memrealtime s[12:13]
  s_mov_b32 s20, 0
S_loop:
  s_mov_b32 m0, s25
  s_nop 0
  buffer_load_dwordx4 v14, s[36:39], s32 offen nt lds
  buffer_load_dwordx4 v14, s[36:39], s32 offen offset:1024 nt lds
  buffer_load_dwordx4 v14, s[36:39], s32 offen offset:2048 nt lds
  buffer_load_dwordx4 v14, s[36:39], s32 offen offset:3072 nt lds
  s_add_u32 s32, s32, 16384
  s_waitcnt vmcnt(8)
  s_barrier
  s_add_u32 s20, s20, 1
  s_cmp_lt_u32 s20, 32
  s_cbranch_scc1 S_loop
  s_waitcnt vmcnt(0)
  s_barrier
  s_memrealtime s[16:17]
  s_waitcnt lgkmcnt(0)
  s_sub_u32 s16, s16, s12
  s_mov_b32 s40, s6
  s_mov_b32 s41, s7
  s_mov_b32 s42, %d
  s_mov_b32 s43, 0x20000
  s_mul_i32 s33, s2, 64
  s_add_u32 s33, s33, %d
  v_mov_b32 v2, s16
  v_mov_b32 v1, 0
  buffer_store_dword v2, v1, s[40:43], s33 offen
  s_waitcnt vmcnt(0)
S_end:
  s_endpgm""" % (16*7*16*16*2048 + 256*64, 16*7*16*16*2048 + 60)
    return t

def assemble_file(debug=None):
    main = build(debug)
    red = reduce_kernel()
    k1 = NAME + "_kernel"; k2 = "reduce_heads_kernel"
    L = header_comments()
    if OPT.stream0: L.append(f"; @launch kernel=stream_test_kernel grid=(256,1,1) block=(256,1,1) lds={LDS_BYTES}")
    if OPT.fused and not OPT.stream0:
        L.append(f"; @launch grid=(256,1,1) block=(256,1,1) lds={LDS_BYTES}")
    else:
        L.append(f"; @launch kernel={k1} grid=(256,1,1) block=(256,1,1) lds={LDS_BYTES}")
        if debug is None and not OPT.fused: L.append(f"; @launch kernel={k2} grid=(256,1,1) block=(256,1,1) lds=0")
    L.append('.amdgcn_target "amdgcn-amd-amdhsa--gfx950"')
    L.append(".text")
    for nm, body in ((k1, main), (k2, red)) if not OPT.fused else ((k1, main),):
        L += [f".globl {nm}", ".p2align 8", f".type {nm},@function", f"{nm}:", text(body)]
    if OPT.stream0: L += [".globl stream_test_kernel", ".p2align 8", ".type stream_test_kernel,@function", "stream_test_kernel:", stream_kernel()]
    L.append(KD.format(name=k1, vgpr=512))
    if not OPT.fused: L.append(KD.format(name=k2, vgpr=256))
    if OPT.stream0: L.append(KD.format(name="stream_test_kernel", vgpr=512))
    return "\n".join(L) + "\n"

if __name__ == "__main__":
    dbg = sys.argv[2] if len(sys.argv) > 2 and sys.argv[2] != "none" else None
    for kv in sys.argv[3:]:
        k, v = kv.split("=")
        v = v.replace("+", " ")
        setattr(OPT, k, {"True": True, "False": False, "()": ()}.get(v, int(v) if v.lstrip("-").isdigit() else (eval(v) if v.startswith("(") else v)))
    open(sys.argv[1], "w").write(assemble_file(dbg))
    print("stamps:", STAMPS)
```

```python
import math, struct, sys
from core import *

NAME = "concat_heads__mha_block_cached__mha_block_cached__near_ridge"
def f32bits(x): return struct.unpack("<I", struct.pack("<f", x))[0]
CSC = math.log2(math.e) / 16.0

S_X, S_WQ, S_K, S_V, S_WO, S_WS, S_OUT = 4, 8, 12, 16, 20, 24, 28
S_W, S_W1K = 32, 33
S_QB = ["0", "s34", "s35", "s62"]
S_C = 63
S_KOFF, S_VOFF = 64, 65
S_LOOP = 66
S_T0, S_T1, S_T2, S_T3 = 67, 68, 69, 70
S_G, S_H, S_B, S_BR = 71, 72, 73, 74
S_WOFF = 76
S_PART = 77
S_WCUR, S_WSTEP, S_XSTEP = 78, 79, 75
S_FL, S_DBG = 36, 40
S_LOCM = 44
S_RBASE, S_SIG, S_POLL, S_XCC = 46, 47, 48, 49
S_RG = 56
S_SPIN = 62
S_SAFE = 3
S_ROT = 52
S_PFO = 53
S_RST, S_RLD, S_FPW, S_FPR, S_FCW, S_FCR = 60, 61, 75, 78, 79, 76
S_STAMP = 80
V_LANE = 0
V_KA = [4, 5]
V_VA = [6, 7, 8, 9]
V_DK, V_DV = 10, 11
V_L = 12
V_MC = 16
V_SP = 20
V_POOL = 32
V_S = 64
V_P = 96
V_Q = 128
V_XA = 20; V_DW = 21; V_WA = [[22, 23], [24, 25], [26, 27]]
V_CT = 28
V_ARR = 24
L_K = 0; L_V = 65536; L_X = 131072
def kslot(t): return L_K + 16384 * (t % 4)
def vslot(t): return L_V + 16384 * (t % 4)
LDS_BYTES = 163840
L_VOTE = L_V + 2 * 16384
L_LIMIT = 2.0 ** 30

PART_BYTES = 16 * 7 * 16 * 16 * 2048
FLAG_BYTES = 16 * 7 * 4 * 64
STAMP_OFF = PART_BYTES + 32768
RING_OFF = PART_BYTES + (1 << 20)
RING_BYTES = 32 << 20
CONS_OFF = 16384
SPIN_MAX = 1 << 19
class Opt:
    kv_flags = "nt"
    w_flags = ""
    x_flags = ""
    wo_flags = ""
    st_flags = ""
    stamps = False
    tail2 = True
    tmpl = 0
    wo_stage = False
    p3_tiles = False
    early_trips = 0
    vfirst_early = 37
    loop_exit = 0
    xwarm = False
    kvmin = False
    vfirst = 0
    dma_stamps = False
    rot = 0
    pad_iter = 0
    last_st = ''
    out_flags = ''
    coopw = False
    coopw_init = 2
    pf_flags = ''
    early_wb = 0
    wt_flags = ''
    prod_delay = 0
    ring = 4
    vm_space = 0
    p3_drop = ''
    wo_step = 13
    cons_chk = 22
    wo_touch = (4, 5, 6)
    red_m = 200
    cons_poll = 50
    ld_min = 16
    stamp_skip = 'p1_first_data,pre_iter_end'
    p3detail = -1
    st_lag = 21
    force_fallback = False
    red_at = 60
    sig_lag = 28
    poll_lag = 22
    chk_lag = 22
    fused = True
    stream0 = False
    loop_nods = False
    loop_nomfma = False
    loop_novalu = False
    loop_nodma = False
    loop_dma_every = 1
    bar_stamps = False
    trip_stamps = False
    dma_mode = 'spread'
    dma_gaps = ([5, 21, 37, 53, 69, 85], [101, 117])
    nv_prev = 2
    stamp_fwd = -1
    stamp_dbg = -1
    x_rd_gap0 = 65
    x_rd_gap = 33
    p1_steps = False
    p1_drop = ''
    rev = True
    init_w = 2
    early_step = 2
    x_gap = 60
    p1_nowait = False
    p1_noread = False
    wring = 3
    kvpf = 'early'
    coopx = False
    init_more = 0
OPT = Opt()

def wait_tag(*tags): return I("s_waitcnt vmcnt(?)", "wait", vmtags=list(tags))
def tag(ins, t):
    ins.meta["tag"] = t; return ins
def resolve_vm(stream, queue):
    q = list(queue)
    for ins in stream:
        if ins.kind in ("dma", "vld", "vst"):
            q.append(ins.meta.get("tag", "?"))
        elif ins.kind == "wait":
            if "vmtags" in ins.meta:
                idx = [n for n, t in enumerate(q) if t in ins.meta["vmtags"]]
                n = len(q) - 1 - max(idx) if idx else len(q)
                n = min(n, 63)
                ins.text = f"s_waitcnt vmcnt({n})"; ins.meta["vm"] = n
            if "vm" in ins.meta:
                n = ins.meta["vm"]
                if len(q) > n: q = q[len(q) - n:] if n else []
    return q

_stamp_n = [0]
def stamp(name):
    if not OPT.stamps: return []
    if OPT.dma_stamps:
        if name == "loop_start": return [raw("s_memtime s[100:101]", "salu"), raw("s_waitcnt lgkmcnt(0)", "wait", lgkm=0)]
        if name == "loop_end": return [raw("s_memtime s[76:77]", "salu"), raw("s_waitcnt lgkmcnt(0)", "wait", lgkm=0), salu("s_sub_u32 s100, s76, s100")]
        return []
    if OPT.stamp_skip and name in OPT.stamp_skip.split(","): return []
    if OPT.p3detail >= 0 and not name.startswith("d_") and name not in ("rt_end",): return []
    if OPT.bar_stamps and name not in ("rt_ls", "rt_le", "loop_start", "loop_end", "rt_end"): return []
    n = _stamp_n[0]; _stamp_n[0] += 1
    STAMPS.append(name)
    op = "s_memrealtime" if name.startswith("rt") else "s_memtime"
    return [raw(f"{op} s[{S_STAMP+2*n}:{S_STAMP+2*n+1}]", "salu")]
STAMPS = []

def m0_set(base): return salu(f"s_add_u32 m0, s{S_W1K}, {base}", [f"s{S_W1K}"], ["m0"])

def dma_tile(kind, slot_base, soff, tg):
    voff, srd, fl = {"K": (V_DK, S_K, OPT.kv_flags), "V": (V_DV, S_V, OPT.kv_flags), "W": (V_DW, S_WQ, OPT.w_flags)}[kind]
    return [(m0_set(slot_base + dc * 3968), tag(dma(voff, srd, soff, dc * 128, fl), tg)) for dc in range(4)]

def setup():
    o = []; a = o.append
    a(salu("s_cmp_ge_u32 s2, 256")); a(raw("s_cbranch_scc1 L_end", "branch"))
    o += stamp("rt_start") + stamp("start")
    a(valu("v_lshrrev_b32 v1, 6, v0", ["v0"], ["v1"]))
    a(valu(f"v_and_b32 v{V_LANE}, 63, v0", ["v0"], ["v0"]))
    a(salu(f"s_mov_b32 s{S_SAFE}, 0"))
    a(valu(f"v_readfirstlane_b32 s{S_W}, v1", ["v1"], [f"s{S_W}"]))
    a(label("L_again"))
    a(salu("s_load_dwordx16 s[36:51], s[0:1], 0")); a(salu("s_load_dwordx8 s[52:59], s[0:1], 64"))
    a(salu("s_load_dwordx2 s[60:61], s[0:1], 96"))
    a(nop(3))
    a(salu(f"s_and_b32 s{S_T0}, s2, 7")); a(salu(f"s_lshr_b32 s{S_T1}, s2, 3"))
    a(salu(f"s_and_b32 s{S_H}, s{S_T1}, 15")); a(salu(f"s_lshr_b32 s{S_T1}, s{S_T1}, 4"))
    a(salu(f"s_lshl_b32 s{S_G}, s{S_T0}, 1")); a(salu(f"s_add_u32 s{S_G}, s{S_G}, s{S_T1}"))
    a(salu(f"s_lshr_b32 s{S_BR}, s{S_G}, 3")); a(salu(f"s_and_b32 s{S_B}, s{S_G}, 7"))
    a(salu(f"s_lshl_b32 s{S_W1K}, s{S_W}, 10"))
    if OPT.rot:
        a(salu(f"s_and_b32 s{S_T0}, s2, 7")); a(salu(f"s_mul_i32 s{S_T0}, s{S_T0}, {OPT.rot}")); a(salu(f"s_lshr_b32 s{S_T1}, s2, 3"))
        a(salu(f"s_add_u32 s{S_T0}, s{S_T0}, s{S_T1}")); a(salu(f"s_and_b32 s{S_T0}, s{S_T0}, 31")); a(salu(f"s_lshl_b32 s33, s{S_T0}, 14") if False else salu(f"s_lshl_b32 s{S_T3}, s{S_T0}, 14"))
    a(salu(f"s_mov_b32 s{S_C}, 0x{f32bits(CSC):08x}"))
    L = f"v{V_LANE}"
    def vv(t, rd, wr): a(valu(t, rd, wr))
    vv(f"v_and_b32 v1, 15, {L}", [L], ["v1"]); vv(f"v_lshrrev_b32 v2, 4, {L}", [L], ["v2"])
    vv("v_lshrrev_b32 v3, 1, v1", ["v1"], ["v3"])
    for sp in range(2):
        r = V_KA[sp]
        vv(f"v_add_u32 v{r}, {4*sp}, v2", ["v2"], [f"v{r}"])
        vv(f"v_xor_b32 v{r}, v{r}, v3", [f"v{r}", "v3"], [f"v{r}"])
        vv(f"v_lshlrev_b32 v{r}, 4, v{r}", [f"v{r}"], [f"v{r}"])
        vv(f"v_lshl_add_u32 v{r}, v1, 7, v{r}", ["v1", f"v{r}"], [f"v{r}"])
    vv(f"v_lshrrev_b32 v1, 3, {L}", [L], ["v1"]); vv(f"v_and_b32 v2, 7, {L}", [L], ["v2"])
    vv(f"v_lshl_add_u32 v3, s{S_W}, 3, v1", ["v1", f"s{S_W}"], ["v3"])
    vv("v_bfe_u32 v28, v3, 1, 1", ["v3"], ["v28"]); vv("v_lshlrev_b32 v28, 2, v28", ["v28"], ["v28"])
    vv("v_xor_b32 v28, v28, v2", ["v28", "v2"], ["v28"]); vv("v_lshlrev_b32 v28, 4, v28", ["v28"], ["v28"])
    vv(f"v_lshl_add_u32 v{V_DW}, v3, 13, v28", ["v3", "v28"], [f"v{V_DW}"])
    a(raw("s_waitcnt lgkmcnt(0)", "wait", lgkm=0))
    a(salu(f"s_cmp_eq_u32 s{S_BR}, 0"))
    for i in range(10): a(salu(f"s_cselect_b32 s{36+i}, s{36+i}, s{46+i}"))
    if OPT.rot: a(salu(f"s_mov_b32 s{S_ROT}, s{S_T3}"))
    def srd(base, lo, hi, offs, size):
        if offs is None:
            a(salu(f"s_mov_b32 s{base}, s{lo}")); a(salu(f"s_mov_b32 s{base+1}, s{hi}"))
        else:
            a(salu(f"s_add_u32 s{base}, s{lo}, {offs}")); a(salu(f"s_addc_u32 s{base+1}, s{hi}, 0"))
        a(salu(f"s_mov_b32 s{base+2}, {size}")); a(salu(f"s_mov_b32 s{base+3}, 0x20000"))
    a(salu(f"s_mul_i32 s{S_T0}, s{S_B}, 229376")); srd(S_X, 36, 37, f"s{S_T0}", 229376)
    a(salu(f"s_lshl_b32 s{S_T0}, s{S_H}, 9")); srd(S_WQ, 42, 43, f"s{S_T0}", 0)
    a(salu(f"s_sub_u32 s{S_WQ+2}, {448*8192}, s{S_T0}"))
    return o

def setup_b():
    o = []; a = o.append
    L = f"v{V_LANE}"
    def vv(t, rd, wr): a(valu(t, rd, wr))
    vv(f"v_lshrrev_b32 v2, 4, {L}", [L], ["v2"])
    vv(f"v_bfe_u32 v28, {L}, 2, 2", [L], ["v28"]); vv(f"v_and_b32 v29, 3, {L}", [L], ["v29"])
    vv("v_lshl_add_u32 v30, v2, 2, v28", ["v2", "v28"], ["v30"])
    vv("v_bfe_u32 v31, v30, 1, 2", ["v30"], ["v31"])
    for p in range(4):
        r = V_VA[p]
        vv(f"v_xor_b32 v{r}, {p}, v31", ["v31"], [f"v{r}"])
        vv(f"v_lshlrev_b32 v{r}, 5, v{r}", [f"v{r}"], [f"v{r}"])
        vv(f"v_lshl_add_u32 v{r}, v30, 7, v{r}", ["v30", f"v{r}"], [f"v{r}"])
        vv(f"v_lshl_add_u32 v{r}, v29, 3, v{r}", ["v29", f"v{r}"], [f"v{r}"])
        vv(f"v_add_u32 v{r}, {L_V}, v{r}", [f"v{r}"], [f"v{r}"])
    vv("v_lshl_add_u32 v30, v2, 3, v28", ["v2", "v28"], ["v30"])
    vv("v_lshrrev_b32 v31, 1, v28", ["v28"], ["v31"])
    for sp in range(2):
        r = V_WA[0][sp]
        vv(f"v_xor_b32 v{r}, {sp}, v31", ["v31"], [f"v{r}"])
        vv(f"v_lshl_add_u32 v{r}, v{r}, 2, v29", [f"v{r}", "v29"], [f"v{r}"])
        vv(f"v_lshlrev_b32 v{r}, 4, v{r}", [f"v{r}"], [f"v{r}"])
        vv(f"v_lshl_add_u32 v{r}, v30, 7, v{r}", ["v30", f"v{r}"], [f"v{r}"])
        for win in (1, 2):
            vv(f"v_add_u32 v{V_WA[win][sp]}, {65536*win}, v{r}", [f"v{r}"], [f"v{V_WA[win][sp]}"])
    vv(f"v_lshrrev_b32 v1, 3, {L}", [L], ["v1"]); vv(f"v_and_b32 v2, 7, {L}", [L], ["v2"])
    vv(f"v_lshl_add_u32 v3, s{S_W}, 3, v1", ["v1", f"s{S_W}"], ["v3"])
    vv("v_bfe_u32 v28, v3, 1, 3", ["v3"], ["v28"]); vv("v_xor_b32 v28, v28, v2", ["v28", "v2"], ["v28"])
    vv("v_lshlrev_b32 v28, 4, v28", ["v28"], ["v28"]); vv(f"v_lshl_add_u32 v{V_DK}, v3, 9, v28", ["v3", "v28"], [f"v{V_DK}"])
    vv("v_bfe_u32 v28, v3, 1, 2", ["v3"], ["v28"]); vv("v_lshlrev_b32 v28, 1, v28", ["v28"], ["v28"])
    vv("v_xor_b32 v28, v28, v2", ["v28", "v2"], ["v28"]); vv("v_lshlrev_b32 v28, 4, v28", ["v28"], ["v28"])
    vv(f"v_lshl_add_u32 v{V_DV}, v3, 9, v28", ["v3", "v28"], [f"v{V_DV}"])
    def srd(base, lo, hi, offs, size):
        if offs is None:
            a(salu(f"s_mov_b32 s{base}, s{lo}")); a(salu(f"s_mov_b32 s{base+1}, s{hi}"))
        else:
            a(salu(f"s_add_u32 s{base}, s{lo}, {offs}")); a(salu(f"s_addc_u32 s{base+1}, s{hi}, 0"))
        a(salu(f"s_mov_b32 s{base+2}, {size}")); a(salu(f"s_mov_b32 s{base+3}, 0x20000"))
    a(salu(f"s_lshl_b32 s{S_T0}, s{S_B}, 4")); a(salu(f"s_add_u32 s{S_T0}, s{S_T0}, s{S_H}"))
    a(salu(f"s_lshl_b32 s{S_T0}, s{S_T0}, 19"))
    srd(S_K, 38, 39, f"s{S_T0}", 524288); srd(S_V, 40, 41, f"s{S_T0}", 524288)
    a(salu(f"s_mul_i32 s{S_T0}, s{S_H}, 229376")); srd(S_WO, 44, 45, f"s{S_T0}", 229376)
    srd(S_WS, 60, 61, None, 16 * 7 * 16 * 16 * 2048)
    srd(S_OUT, 56, 57, None, 8 * 256 * 896 * 2)
    if OPT.fused:
        srd(S_DBG, 58, 59, None, 256)
        a(salu(f"s_mov_b32 s{S_T0}, {PART_BYTES}")); srd(S_FL, 60, 61, f"s{S_T0}", 32768)
        a(salu(f"s_mov_b32 s{S_T0}, {RING_OFF}")); a(salu(f"s_add_u32 s54, s60, s{S_T0}")); a(salu("s_addc_u32 s55, s61, 0"))
        a(salu(f"s_mov_b32 s{S_RG}, s54")); a(salu(f"s_mov_b32 s{S_RG+1}, s55")); a(salu(f"s_mov_b32 s{S_RG+2}, {RING_BYTES}")); a(salu(f"s_mov_b32 s{S_RG+3}, 0x20000"))
        a(salu(f"s_getreg_b32 s{S_XCC}, hwreg(HW_REG_XCC_ID, 0, 3)"))
        a(salu(f"s_lshl_b32 s{S_SIG}, s{S_G}, 4")); a(salu(f"s_add_u32 s{S_SIG}, s{S_SIG}, s{S_H}"))
        a(salu(f"s_mul_i32 s{S_T0}, s{S_G}, {14*64}"))
        a(salu(f"s_lshl_b32 s{S_T1}, s{S_W}, 4")); a(salu(f"s_add_u32 s{S_T1}, s{S_T1}, s{S_H}")); a(salu(f"s_add_u32 s50, s{S_T0}, s{S_T1}"))
        a(salu(f"s_lshl_b32 s{S_T1}, s{S_H}, 2")); a(salu(f"s_add_u32 s{S_T1}, s{S_T1}, s{S_W}")); a(salu(f"s_add_u32 s51, s{S_T0}, s{S_T1}"))
        a(salu(f"s_add_u32 s51, s51, {CONS_OFF}"))
        a(valu(f"v_min_u32 v1, 13, v{V_LANE}", [f"v{V_LANE}"], ["v1"])); a(valu("v_lshlrev_b32 v1, 6, v1", ["v1"], ["v1"]))
        a(valu("v_mov_b32 v2, 0", [], ["v2"]))
        for sr in ("s50", "s51"):
            a(tag(I(f"buffer_store_byte v2, v1, s[{S_FL}:{S_FL+3}], {sr} offen", "vst", ["v1", "v2"], data=["v2"]), "reset"))
    return o

def add_lgkm_waits(g, cons, carried):
    seq = [(-1, regs) for regs in carried]
    for k in range(g.n):
        if g.mem[k] is not None and g.mem[k].kind == "ds": seq.append((k, g.mem[k].wr))
    lead = None
    for k, regs in cons:
        late = [n for n, (gap, w) in enumerate(seq) if gap == k - 1 and gap >= 0 and set(w) & set(regs)]
        assert not late, f"DS for MFMA {k} issued in gap {k-1}"
        idx = [n for n, (gap, w) in enumerate(seq) if gap < max(k - 1, 0) and set(w) & set(regs)]
        if not idx: continue
        last = max(idx)
        after = sum(1 for n, (gap, w) in enumerate(seq) if n > last and gap < max(k - 1, 0))
        assert after <= 15, (k, after)
        if k == 0: lead = wait_lgkm(after)
        else: g.pre[k - 1].insert(0, wait_lgkm(after))
    out = len(carried)
    if lead is not None: out = min(out, lead.meta["lgkm"])
    for k in range(g.n):
        for x in g.pre[k]:
            if "lgkm" in x.meta: out = min(out, x.meta["lgkm"])
        if g.mem[k] is not None and g.mem[k].kind == "ds":
            if out >= 14:
                g.pre[k].insert(0, wait_lgkm(8)); out = 8
            out += 1
    return lead

def place_vmem(g, gap, scalars, d, hi=None, stack=False, space=False):
    k = max(gap, 1 if stack else len(scalars))
    hi = g.n if hi is None else hi
    isdma = lambda x: x is not None and x.kind == "dma"
    while True:
        assert k < hi, f"no gap for {d.text}"
        near = OPT.vm_space and any(0 <= k + dd < g.n and dd != 0 and g.mem[k + dd] is not None and g.mem[k + dd].kind in ("vst", "vld", "dma")
                                    for dd in range(-OPT.vm_space, OPT.vm_space + 1))
        if g.mem[k] is None and not g.vec[k] and len(g.pre[k]) <= 1 and not (near and space):
            if stack:
                if not isdma(g.mem[k - 1]) and len(g.pre[k - 1]) + len(scalars) <= 3 and not any(x.kind == "barrier" for x in g.pre[k - 1]): break
            elif all(not g.pre[k - 1 - n] and not isdma(g.mem[k - 1 - n]) for n in range(len(scalars))): break
        k += 1
    if stack:
        for sc in scalars: g.put_pre(k - 1, sc)
    else:
        for n, sc in enumerate(scalars): g.put_pre(k - len(scalars) + n, sc)
    g.put_mem(k, d)
    return k

def put_scalar(g, gap, *ins):
    k = gap
    while g.pre[k]: k += 1
    g.pre[k] = list(ins)
    return k

def place_chain(g, ops, lo, hi):
    left = []
    for ins in ops:
        k = g.place_vec(ins, lo, hi) if (not left and lo < hi) else None
        if k is None: left.append(ins)
        else: lo = k + 1 if ins.kind == "trans" else k
    return lo, left

class Op:
    def __init__(self, ins, rel, dl, preds=()):
        self.ins = ins; self.rel = rel; self.dl = dl; self.preds = list(preds); self.gap = None

def list_schedule(g, ops, lo=0, hi=None):
    hi = g.n if hi is None else hi
    todo = list(ops)
    for k in range(lo, hi):
        while True:
            free = g.free_vec(k)
            if free <= 0: break
            ready = [x for x in todo if x.rel <= k and all(p.gap is not None and p.gap + d <= k for p, d in x.preds)]
            tr = [x for x in ready if x.ins.kind == "trans"]
            pl = [x for x in ready if x.ins.kind != "trans"]
            pick = None
            can_tr = free == 2 and g.mem[k] is None and not g.vec[k]
            if can_tr and tr: pick = min(tr, key=lambda x: x.dl)
            if pl:
                best = min(pl, key=lambda x: x.dl)
                if pick is None or (best.dl + 6 < pick.dl): pick = best
            if pick is None: break
            g.vec[k].append(pick.ins); pick.gap = k; todo.remove(pick)
    late = [x for x in ops if x.gap is not None and x.gap > x.dl]
    assert not late, [(x.ins.text, x.gap, x.dl) for x in late]
    return todo

def sm_ops(tile, kb, qb, rel, dl):
    i = sm_group(tile, kb, qb)
    f = [Op(i[0], rel, dl - 6), Op(i[1], rel, dl - 6), Op(i[4], rel, dl - 5), Op(i[5], rel, dl - 5)]
    x = [Op(i[2], rel, dl - 4, [(f[0], 1)]), Op(i[3], rel, dl - 4, [(f[1], 1)]), Op(i[6], rel, dl - 3, [(f[2], 1)]), Op(i[7], rel, dl - 3, [(f[3], 1)])]
    ad = [Op(i[8], rel, dl, [(x[0], 1)]), Op(i[9], rel, dl, [(x[1], 1)]), Op(i[11], rel, dl, [(x[2], 1)]), Op(i[12], rel, dl, [(x[3], 1)])]
    cv = [Op(i[10], rel, dl, [(x[0], 1), (x[1], 1)]), Op(i[13], rel, dl, [(x[2], 1), (x[3], 1)])]
    return f + x + ad + cv

def exposed(ops):
    o = []
    for n, ins in enumerate(ops):
        o.append(ins)
        if ins.kind == "trans" and n + 1 < len(ops) and ops[n + 1].kind != "trans": o.append(nop(0))
    return o

def conv_ops(acc, d, t):
    return [valu(f"v_accvgpr_read_b32 v{d}, a{acc}", [f"a{acc}"], [f"v{d}"]),
            valu(f"v_accvgpr_read_b32 v{t}, a{acc+1}", [f"a{acc+1}"], [f"v{t}"]),
            valu(f"v_accvgpr_read_b32 v{d+1}, a{acc+2}", [f"a{acc+2}"], [f"v{d+1}"]),
            valu(f"v_accvgpr_read_b32 v{t+1}, a{acc+3}", [f"a{acc+3}"], [f"v{t+1}"]),
            valu(f"v_cvt_pk_bf16_f32 v{d}, v{d}, v{t}", [f"v{d}", f"v{t}"], [f"v{d}"]),
            valu(f"v_cvt_pk_bf16_f32 v{d+1}, v{d+1}, v{t+1}", [f"v{d+1}", f"v{t+1}"], [f"v{d+1}"])]

def xlane_reduce(regs, op, tmp):
    o = []
    for swap in ("v_permlane32_swap_b32", "v_permlane16_swap_b32"):
        for n, r in enumerate(regs): o.append(valu(f"v_mov_b32 v{tmp+n}, v{r}", [f"v{r}"], [f"v{tmp+n}"]))
        o.append(nop(1))
        for n, r in enumerate(regs):
            o.append(valu(f"{swap} v{r}, v{tmp+n}", [f"v{r}", f"v{tmp+n}"], [f"v{r}", f"v{tmp+n}"]))
        o.append(nop(1))
        for n, r in enumerate(regs):
            o.append(valu(f"{op} v{r}, v{r}, v{tmp+n}", [f"v{r}", f"v{tmp+n}"], [f"v{r}"]))
    return o

def wpairs(): return [(L_X, L_X + 16384), (vslot(1), kslot(3)), (vslot(2), vslot(3))]
def wslot(tile):
    p = wpairs(); return p[(tile // 2) % len(p)][tile % 2]
XBUF = [V_S, V_P]
def xfrag(qb, cs): return XBUF[(cs // 2) & 1] + ((cs % 2) * 4 + qb) * 4
V_XD = [128, 129]
V_XR = [130, 131]
S_XB = 34
S_XCUR = 35
def x_setup():
    o = []; a = o.append
    L = f"v{V_LANE}"
    a(salu(f"s_and_b32 s{S_T1}, s{S_W}, 1")); a(salu(f"s_lshl_b32 s{S_T1}, s{S_T1}, 13"))
    a(salu(f"s_cmp_lt_u32 s{S_W}, 2")); a(salu(f"s_cselect_b32 s{S_XB}, 2, 4")); a(salu(f"s_lshl_b32 s{S_XB}, s{S_XB}, 14"))
    a(salu(f"s_add_u32 s{S_XB}, s{S_XB}, s{S_T1}"))
    assert kslot(2) == 2 << 14 and vslot(0) == 4 << 14
    a(valu(f"v_lshrrev_b32 v1, 3, {L}", [L], ["v1"])); a(valu(f"v_and_b32 v2, 7, {L}", [L], ["v2"]))
    a(valu(f"v_lshl_add_u32 v3, s{S_W}, 6, v1", ["v1", f"s{S_W}"], ["v3"]))
    a(valu("v_mul_u32_u24 v3, 896, v3", ["v3"], ["v3"]))
    a(valu("v_lshrrev_b32 v1, 1, v1", ["v1"], ["v1"]))
    for par in range(2):
        r = V_XD[par]
        a(valu(f"v_or_b32 v{r}, {4*par}, v1", ["v1"], [f"v{r}"]))
        a(valu(f"v_xor_b32 v{r}, v{r}, v2", [f"v{r}", "v2"], [f"v{r}"]))
        a(valu(f"v_lshl_add_u32 v{r}, v{r}, 4, v3", [f"v{r}", "v3"], [f"v{r}"]))
        a(valu(f"v_add_u32 v{V_XR[par]}, s{S_XB}, v{V_KA[par]}", [f"v{V_KA[par]}"], [f"v{V_XR[par]}"]))
    return o
def x_items(j):
    out = []
    for i in range(8):
        sreg = S_T2 + (i & 1)
        sc = []
        if i == 0 and j > 0: sc.append(salu(f"s_add_u32 s{S_XCUR}, s{S_XCUR}, s{S_XSTEP}", [f"s{S_XCUR}"], [f"s{S_XCUR}"]))
        sc.append(salu(f"s_add_u32 s{sreg}, s{S_XCUR}, {i*7168}", [f"s{S_XCUR}"], [f"s{sreg}"]))
        sc.append(salu(f"s_add_u32 m0, s{S_XB}, {i*1024}", [f"s{S_XB}"], ["m0"]))
        out.append((sc, tag(dma(V_XD[i & 1], S_X, f"s{sreg}", 0, OPT.x_flags), f"x{j}")))
    return out
def x_read(qb, cs): return ds_read128("v", xfrag(qb, cs), V_XR[cs & 1], qb * 2048)
def w_read(dbp, cs, jj):
    s, e = dbp >> 1, dbp & 1
    base = wslot(cs); win = base // 65536
    off = base - win * 65536 + (s >> 1) * 4096 + jj * 512 + e * 8
    return ds_read_tr("v", V_POOL + 4 * ((2 * dbp + (cs & 1)) % 8) + 2 * jj, V_WA[win][s & 1], off)

V_PF = 28
def coop_setup():
    o = []; a = o.append
    a(salu(f"s_mul_i32 s{S_T1}, s{S_H}, {112*128}"))
    a(salu(f"s_lshl_b32 s{S_T2}, s{S_W}, 12")); a(salu(f"s_add_u32 s{S_T1}, s{S_T1}, s{S_T2}"))
    a(valu(f"v_and_b32 v{V_PF}, 31, v{V_LANE}", [f"v{V_LANE}"], [f"v{V_PF}"]))
    a(valu(f"v_lshlrev_b32 v{V_PF}, 7, v{V_PF}", [f"v{V_PF}"], [f"v{V_PF}"]))
    a(valu(f"v_add_u32 v{V_PF}, s{S_T1}, v{V_PF}", [f"v{V_PF}"], [f"v{V_PF}"]))
    return o
def coop_x():
    return [tag(bload(V_PF + 1, 1, V_PF, S_X, "0", 0, OPT.pf_flags), "pf")]

V_PFW = 132
def coop_w_setup():
    o = []; a = o.append
    L = f"v{V_LANE}"
    a(salu(f"s_lshr_b32 s{S_T1}, s2, 7")); a(salu(f"s_and_b32 s{S_T1}, s{S_T1}, 1")); a(salu(f"s_lshl_b32 s{S_T1}, s{S_T1}, 5"))
    a(salu(f"s_lshl_b32 s{S_T2}, s{S_W}, 3")); a(salu(f"s_add_u32 s{S_T1}, s{S_T1}, s{S_T2}"))
    a(valu(f"v_bfe_u32 v{V_PFW}, {L}, 2, 3", [L], [f"v{V_PFW}"])); a(valu(f"v_add_u32 v{V_PFW}, s{S_T1}, v{V_PFW}", [f"v{V_PFW}"], [f"v{V_PFW}"]))
    a(valu(f"v_lshlrev_b32 v{V_PFW}, 13, v{V_PFW}", [f"v{V_PFW}"], [f"v{V_PFW}"]))
    a(valu(f"v_and_b32 v{V_PFW+1}, 3, {L}", [L], [f"v{V_PFW+1}"]))
    a(valu(f"v_lshl_add_u32 v{V_PFW}, v{V_PFW+1}, 7, v{V_PFW}", [f"v{V_PFW}", f"v{V_PFW+1}"], [f"v{V_PFW}"]))
    return o
def coop_w(j):
    return [salu(f"s_mov_b32 s{S_PFO}, {j*524288}", [], [f"s{S_PFO}"])], tag(bload(V_PFW + 1, 1, V_PFW, S_WQ, f"s{S_PFO}", 0, OPT.pf_flags), "pf")
OOL = []
def kv_off(reg, t):
    if not OPT.rot: return [salu(f"s_mov_b32 s{reg}, {t*16384}", [], [f"s{reg}"])]
    return [salu(f"s_add_u32 s{reg}, s{S_ROT}, {t*16384}", [f"s{S_ROT}"], [f"s{reg}"]), salu(f"s_and_b32 s{reg}, s{reg}, 0x7ffff", [f"s{reg}"], [f"s{reg}"])]
def phase1():
    o = []; a = o.append
    NP = 3
    a(salu(f"s_lshr_b32 s{S_T1}, s2, 7")); a(salu(f"s_and_b32 s{S_T1}, s{S_T1}, {1 if OPT.rev else 0}"))
    a(salu(f"s_cmp_eq_u32 s{S_T1}, 0"))
    a(salu(f"s_cselect_b32 s{S_WCUR}, 0, {6*524288}")); a(salu(f"s_cselect_b32 s{S_T2}, 1, -1"))
    a(salu(f"s_cselect_b32 s{S_XCUR}, 0, 768"))
    a(salu(f"s_mul_i32 s{S_WSTEP}, s{S_T2}, 524288")); a(salu(f"s_mul_i32 s{S_XSTEP}, s{S_T2}, 128"))
    o += x_setup()
    if OPT.coopx: o += coop_setup() + coop_x()
    if OPT.coopw:
        o += coop_w_setup()
        for j in range(OPT.coopw_init):
            sc, d = coop_w(j); o += sc + [d]
    def w_items(j):
        out = []
        for par in range(2):
            sreg = S_WCUR if par == 0 else S_WOFF
            for m, (m0, d) in enumerate(dma_tile("W", wslot(2 * j + par), f"s{sreg}", f"W{j}")):
                sc = [m0]
                if m == 0 and par == 0 and j > 0: sc = [salu(f"s_add_u32 s{S_WCUR}, s{S_WCUR}, s{S_WSTEP}", [f"s{S_WCUR}"], [f"s{S_WCUR}"]), m0]
                if m == 0 and par == 1: sc = [salu(f"s_add_u32 s{S_WOFF}, s{S_WCUR}, 262144", [f"s{S_WCUR}"], [f"s{S_WOFF}"]), m0]
                out.append((sc, d))
        return out
    def kv_items(kind, t):
        out = []
        for m, (m0, d) in enumerate(dma_tile(kind, kslot(t) if kind == "K" else vslot(t), f"s{S_T0}", f"{kind}{t}")):
            out.append((kv_off(S_T0, t) + [m0] if m == 0 else [m0], d))
        return out
    def now(items):
        for sc, d in items:
            o.extend(sc); a(nop(0)); a(d)
    w0 = w_items(0)
    for sc, d in w0[4:]: d.meta["tag"] = "W0b"
    if OPT.xwarm:
        a(valu(f"v_lshlrev_b32 v{V_PFW}, 4, v{V_LANE}", [f"v{V_LANE}"], [f"v{V_PFW}"]))
        a(salu(f"s_mul_i32 s{S_T0}, s{S_H}, 14336")); a(salu(f"s_lshl_b32 s{S_T1}, s{S_W}, 12")); a(salu(f"s_add_u32 s{S_T0}, s{S_T0}, s{S_T1}"))
        a(salu(f"s_add_u32 m0, s{S_T1}, {kslot(0)}", [], ["m0"])); a(nop(0))
        now(w0[:4])
        a(salu(f"s_lshl_b32 s{S_T1}, s{S_W}, 12")); a(salu(f"s_add_u32 m0, s{S_T1}, {kslot(0)}", [], ["m0"])); a(nop(0))
        for i in range(4): a(tag(dma(V_PFW, S_X, f"s{S_T0}", i * 1024, OPT.x_flags), "xw"))
        now(w0[4:]); now(x_items(0))
    else:
        now(x_items(0)); now(w0[:4]); now(w0[4:])
    if OPT.coopw:
        for j in range(OPT.coopw_init, 3):
            sc, d = coop_w(j); o += sc + [d]
    o += setup_b()
    a(wait_tag("x0"))
    xr = [x_read(qb, cs) for cs in (0, 1) for qb in range(4)]
    o += xr
    a(wait_tag("W0", "reset")); a(barrier())
    if OPT.fused:
        a(salu(f"s_or_b32 s{S_T0}, s{S_XCC}, 0x80")); a(valu(f"v_mov_b32 v1, s{S_T0}", [], ["v1"])); a(valu("v_mov_b32 v2, 0", [], ["v2"]))
        a(tag(I(f"buffer_store_byte v1, v2, s[{S_DBG}:{S_DBG+3}], s{S_SIG} offen", "vst", ["v1", "v2"], data=["v1"]), "arr"))
    o += stamp("p1_first_data") + (stamp("rt_fd") if OPT.trip_stamps else [])
    def quad0(n): return V_POOL + 4 * (n % 8)
    def w_read0(n, jj):
        dbp, cs = n % 16, n // 16
        r = w_read(dbp, cs, jj)
        return ds_read_tr("v", quad0(n) + 2 * jj, int(r.rd[0][1:]), int(r.text.split("offset:")[1]))
    carried = [x.wr for x in xr]
    for n in range(3):
        for jj in range(2):
            r = w_read0(n, jj); a(r); carried.append(r.wr)
    early = {j: [] for j in range(7)}; after = {j: [] for j in range(7)}
    early[0] += w_items(1); early[1] += w_items(2)
    for j in range(NP, 7): after[j - NP + 1] += w_items(j)
    K = lambda t: kv_items("K", t)
    V = lambda t: kv_items("V", t)
    kv = {"early": {1: K(0), 2: K(1)}, "mid": {2: K(0), 3: K(1)}, "late": {3: K(0), 4: K(1)}}[OPT.kvpf]
    for j, l in kv.items(): early[j] += l
    if OPT.kvmin:
        early = {j: (w_items(1) if j == 0 else w_items(2) if j == 1 else []) for j in range(7)} if False else early
        for j in range(7): early[j] = [it for it in early[j] if not it[1].meta["tag"].startswith("K")]
        early[4] += K(0); early[5] += K(1)
        after[5] += V(0)
        after[6] += K(2) + V(1)
    else:
        after[5] += V(0)
        early[6] += K(2) + V(1) + K(3)
        after[6] += V(2)
    for j in range(7):
        ms = []
        if j == 0:
            for n in range(32):
                for qb in range(4):
                    acc = ((n % 16) * 4 + qb) * 4
                    first = n < 16
                    ms.append(mfma("a", acc, "v", quad0(n), "v", xfrag(qb, n // 16), None if first else "a", None if first else acc))
        else:
            for dbp in range(16):
                for qb in range(4):
                    for e2 in range(2):
                        acc = (dbp * 4 + qb) * 4
                        ms.append(mfma("a", acc, "v", V_POOL + 4 * ((2 * dbp + e2) % 8), "v", xfrag(qb, 2 * j + e2), "a", acc))
        g = Gaps(ms)
        if j == 0:
            for n in range(3, 32):
                for jj in range(2): g.put_mem(4 * n - 12 + 2 * jj, w_read0(n, jj))
        else:
            for dbp in range(3, 16):
                for n, (cs, jj) in enumerate([(2*j, 0), (2*j, 1), (2*j+1, 0), (2*j+1, 1)]):
                    g.put_mem(8 * dbp - 24 + 2 * n, w_read(dbp, cs, jj))
        nxt = []
        if j < 6:
            for dbp in range(3):
                for n, (cs, jj) in enumerate([(2*j+2, 0), (2*j+2, 1), (2*j+3, 0), (2*j+3, 1)]):
                    r = w_read(dbp, cs, jj); g.put_mem(104 + (1 if j == 0 else 0) + 8 * dbp + 2 * n, r); nxt.append(r.wr)
        XG = OPT.x_rd_gap if j > 0 else OPT.x_rd_gap0
        xreads = []
        if j < 6:
            for n, (cs, qb) in enumerate([(cs, qb) for cs in (2*j+2, 2*j+3) for qb in range(4)]):
                r = x_read(qb, cs); g.put_mem(XG + 2 * n, r); xreads.append(r)
        if j == 0:
            cons = [(4 * n, R("v", quad0(n), 4) + (R("v", V_S, 32) if n == 0 else [])) for n in range(32)]
        else:
            cons = [(8 * dbp, R("v", V_POOL + 4 * ((2 * dbp) % 8), 8)) for dbp in range(16)]
        if j < 6: cons.append((XG + 24, [w for r in xreads for w in r.wr]))
        cons.sort()
        lead = add_lgkm_waits(g, cons, carried)
        if j < 6:
            k = XG - 2
            while g.pre[k]: k -= 1
            g.pre[k] = [wait_tag(f"x{j+1}")]
        tags = [f"W{j+1}"] if j < 6 else ["K0"]
        k = 100
        while g.pre[k]: k -= 1
        g.pre[k] = [wait_tag(*tags), barrier()] if not OPT.p1_nowait else [barrier()]
        kb = k
        gp = 1
        if OPT.coopw and j + 3 <= 6:
            sc, d = coop_w(j + 3); gp = place_vmem(g, 2, sc, d, kb) + 1
        if j == 0:
            for sc, d in x_items(1): gp = place_vmem(g, gp, sc, d, XG - 3, stack=True) + 2
            k = 48
            while g.pre[k]: k -= 1
            g.pre[k] = [wait_tag("W0b"), barrier()]
            assert k < 52
        for sc, d in early[j]: gp = place_vmem(g, gp + len(sc) - 1, sc, d, kb) + (OPT.early_step if j != 6 else 7)
        if j < 5:
            gx = max(XG + 25, gp)
            for sc, d in x_items(j + 2): gx = place_vmem(g, gx, sc, d, stack=True) + 2
            gpa = max(kb + 2, gx)
        else: gpa = kb + 2
        for sc, d in after[j]: gpa = place_vmem(g, gpa, sc, d, stack=True) + 1
        left = []
        if j == 6:
            for dbp in range(16):
                for qb in range(4):
                    ops = conv_ops((dbp * 4 + qb) * 4, V_Q + (qb * 8 + (dbp >> 1)) * 4 + 2 * (dbp & 1), V_CT + 2 * (qb & 1))
                    if left: left += ops
                    else:
                        _, l2 = place_chain(g, ops, 8 * dbp + 2 * qb + 1 + 5, 128); left += l2
        if lead is not None: a(lead)
        em = g.emit()
        if OPT.p1_drop:
            def keep(x):
                if x.kind in ("dma", "vld"):
                    t = x.meta.get("tag", "")
                    for c in OPT.p1_drop:
                        if t.startswith(c): return False
                return True
            em = [x for x in em if keep(x)]
        if OPT.p1_noread: em = [x for x in em if x.kind != "ds" and not (x.kind == "wait" and "lgkm" in x.meta)]
        o += em
        carried = nxt
        if OPT.p1_steps: o += stamp(f"step{j}")
        if left: a(nop(7)); o += left
    if not OPT.p1_steps: o += stamp("p1_end") + (stamp("rt_p1") if OPT.trip_stamps else [])
    return o

def k_read(t, kb, s):
    return ds_read128("v", V_POOL + 4 * s, V_KA[s & 1], (kslot(t) - L_K) + (s >> 1) * 4096 + kb * 2048)
def v_read(t, db, jj):
    return ds_read_tr("v", V_POOL + 4 * (db % 8) + 2 * jj, V_VA[db & 3], (vslot(t) - L_V) + (db >> 2) * 4096 + jj * 2048)
def Sreg(kb, qb): return V_S + (kb * 4 + qb) * 4
def Preg(buf, qb): return V_P + buf * 16 + qb * 4
def qk_mfmas():
    ms = []
    for i in range(64):
        kb, sp, qb, e = i >> 5, (i >> 3) & 3, (i >> 1) & 3, i & 1
        s = 2 * sp + e; d = Sreg(kb, qb)
        ms.append(mfma("v", d, "v", V_POOL + 4 * s, "v", V_Q + (qb * 8 + s) * 4, None if s == 0 else "v", None if s == 0 else d))
    return ms
def pv_mfmas(t, first):
    ms = []
    for i in range(64):
        db, qb = i >> 2, i & 3
        acc = (db * 4 + qb) * 4
        ms.append(mfma("a", acc, "v", V_POOL + 4 * (db % 8), "v", Preg(t & 1, qb), None if first else "a", None if first else acc))
    return ms
def sm_group(tile, kb, qb):
    s = Sreg(kb, qb); p = Preg(tile & 1, qb) + 2 * kb; mc = V_MC + qb; l = V_L + qb
    f = lambda r: valu(f"v_fma_f32 v{s+r}, v{s+r}, s{S_C}, v{mc}", [f"v{s+r}", f"v{mc}", f"s{S_C}"], [f"v{s+r}"])
    x = lambda r: trans(f"v_exp_f32 v{s+r}, v{s+r}", [f"v{s+r}"], [f"v{s+r}"])
    ad = lambda r: valu(f"v_add_f32 v{l}, v{l}, v{s+r}", [f"v{l}", f"v{s+r}"], [f"v{l}"])
    cv = lambda r: valu(f"v_cvt_pk_bf16_f32 v{p+r//2}, v{s+r}, v{s+r+1}", [f"v{s+r}", f"v{s+r+1}"], [f"v{p+r//2}"])
    return [f(0), f(1), x(0), x(1), f(2), f(3), x(2), x(3), ad(0), ad(1), cv(0), ad(2), ad(3), cv(2)]

def pre_iter():
    o = []; a = o.append
    carried = []
    for s in range(8):
        r = k_read(0, 0, s); a(r); carried.append(r.wr)
    g = Gaps(qk_mfmas())
    for s in range(8): g.put_mem(8 * (s >> 1) + 10 + 4 * (s & 1), k_read(0, 1, s))
    cons = [(8 * p, R("v", V_POOL + 8 * (p % 4), 8)) for p in range(8)]
    a(add_lgkm_waits(g, cons, carried))
    if OPT.kvmin:
        gp = 3
        for kind, t in (("K", 3), ("V", 2)):
            for m, (m0, d) in enumerate(dma_tile(kind, kslot(t) if kind == "K" else vslot(t), f"s{S_T0}", f"{kind}{t}")):
                gp = place_vmem(g, gp, (kv_off(S_T0, t) if m == 0 else []) + [m0], d, stack=True) + 5
    o += g.emit()
    a(wait_tag("K1", "V0")); a(barrier())
    o += kv_off(S_KOFF, 4)
    for m0, d in dma_tile("K", kslot(4), f"s{S_KOFF}", "K4"): a(m0); a(nop(0)); a(d)
    o += kv_off(S_KOFF, 5) + kv_off(S_VOFF, 3)
    carried = []
    for s in range(8):
        r = k_read(1, 0, s); a(r); carried.append(r.wr)
    for qb in range(4):
        m = V_MC + qb; s0 = Sreg(0, qb); s1 = Sreg(1, qb)
        a(valu(f"v_max3_f32 v{m}, v{s0}, v{s0+1}, v{s0+2}", R("v", s0, 3), [f"v{m}"]))
        a(valu(f"v_max3_f32 v{m}, v{m}, v{s0+3}, v{s1}", [f"v{m}", f"v{s0+3}", f"v{s1}"], [f"v{m}"]))
        a(valu(f"v_max3_f32 v{m}, v{m}, v{s1+1}, v{s1+2}", [f"v{m}", f"v{s1+1}", f"v{s1+2}"], [f"v{m}"]))
        a(valu(f"v_max_f32 v{m}, v{m}, v{s1+3}", [f"v{m}", f"v{s1+3}"], [f"v{m}"]))
    o += xlane_reduce([V_MC + q for q in range(4)], "v_max_f32", V_SP)
    for qb in range(4):
        m = V_MC + qb
        a(valu(f"v_mul_f32 v{m}, s{S_C}, v{m}", [f"v{m}", f"s{S_C}"], [f"v{m}"]))
        a(valu(f"v_sub_f32 v{m}, 0, v{m}", [f"v{m}"], [f"v{m}"]))
        a(valu(f"v_mov_b32 v{V_L+qb}, 0", [], [f"v{V_L+qb}"]))
    for kb, qb in [(0, 0), (0, 1), (0, 2), (0, 3), (1, 0), (1, 1)]: o += exposed(sm_group(0, kb, qb))
    o += stamp("pre_iter_end")
    return o, carried

def attn_iter(t, carried, vmw, prev, cur, first=False, adv=True, loopctl=False, extra=None, loop_body=False):
    g = Gaps(qk_mfmas() + pv_mfmas(t, first))
    for s in range(8): g.put_mem(8 * (s >> 1) + 10 + 4 * (s & 1), k_read(t + 1, 1, s))
    for db in range(16):
        for jj in range(2): g.put_mem(44 + 4 * db + 2 * jj, v_read(t, db, jj))
    nxt = []
    if t + 2 <= 31:
        for s, gap in zip(range(8), [108, 110, 112, 114, 116, 120, 124, 127]):
            r = k_read(t + 2, 0, s); g.put_mem(gap, r); nxt.append(r.wr)
    else:
        for db in range(5):
            for jj in range(2):
                r = v_read(t + 1, db, jj); g.put_mem(108 + 4 * db + 2 * jj, r); nxt.append(r.wr)
    cons = [(8 * p, R("v", V_POOL + 8 * (p % 4), 8)) for p in range(8)]
    cons += [(64 + 4 * db, R("v", V_POOL + 4 * (db % 8), 4)) for db in range(16)]
    lead = add_lgkm_waits(g, cons, carried)
    kb = 98
    while g.pre[kb]: kb -= 1
    g.pre[kb] = [vmw, barrier()]
    if OPT.bar_stamps and loop_body:
        g.pre[kb] = [raw("s_memtime s[94:95]", "salu"), vmw, raw("s_memtime s[96:97]", "salu"), barrier(), raw("s_memtime s[98:99]", "salu"),
                     raw("s_waitcnt lgkmcnt(0)", "wait", lgkm=0),
                     salu("s_sub_u32 s96, s96, s94"), salu("s_add_u32 s92, s92, s96"),
                     salu("s_sub_u32 s98, s98, s94"), salu("s_add_u32 s93, s93, s98")]
    gp_prev, gp_cur = OPT.dma_gaps
    placed = [place_vmem(g, gap, [m0], d, kb) for gap, (m0, d) in zip(gp_prev, prev)]
    for gap, (m0, d) in zip(gp_cur, cur): place_vmem(g, gap, [m0], d)
    if adv:
        for reg, srd, at in ((S_VOFF, S_V, (placed[OPT.nv_prev - 1] if OPT.nv_prev else 1) + 1), (S_KOFF, S_K, placed[-1] + 1)):
            k = put_scalar(g, at, salu(f"s_add_u32 s{reg}, s{reg}, 16384", [f"s{reg}"], [f"s{reg}"]))
            k = put_scalar(g, k + 1, salu(f"s_and_b32 s{reg}, s{reg}, 0x7ffff", [f"s{reg}"], [f"s{reg}"]))
            assert k < 100
        if loopctl:
            first_k = placed[-4]
            k = put_scalar(g, 2, salu(f"s_cmp_eq_u32 s{S_LOOP}, 1", [f"s{S_LOOP}"], ["scc"]),
                           salu(f"s_cselect_b32 s{S_K+2}, 0, 524288", ["scc"], [f"s{S_K+2}"]))
            assert k < first_k - 1
    if loopctl:
        k = put_scalar(g, 119, salu(f"s_sub_u32 s{S_LOOP}, s{S_LOOP}, 1", [f"s{S_LOOP}"], [f"s{S_LOOP}"]))
        k = put_scalar(g, k + 1, salu(f"s_cmp_lg_u32 s{S_LOOP}, {OPT.loop_exit}", [f"s{S_LOOP}"], ["scc"]))
        assert k <= 127
        for kk in range(k + 1, 128):
            assert all(x.kind == "wait" for x in g.pre[kk]), "SCC clobbered before the loop branch"
    if extra: extra(g, kb)
    ops = []
    for qb in (2, 3): ops += sm_ops(t, 1, qb, 0, 31 + 2 * qb)
    for qb in range(4): ops += sm_ops(t + 1, 0, qb, 25 + 2 * qb + 6, 100 + 6 * qb)
    for qb in (0, 1): ops += sm_ops(t + 1, 1, qb, 57 + 2 * qb + 6, 124 + 3 * qb)
    left = list_schedule(g, ops)
    if OPT.vfirst:
        cand = [k for k in range(128) if g.mem[k] is not None and g.mem[k].kind == "ds" and len(g.vec[k]) == 1 and g.vec[k][0].kind == "valu"
                and not (set(g.vec[k][0].wr) & set(g.mem[k].rd + g.mem[k].wr))]
        n = min(OPT.vfirst, len(cand))
        for i in range(n): g.vec_first.add(cand[(i * len(cand)) // n])
    if OPT.pad_iter:
        for n in range(OPT.pad_iter): g.post[(n * 128) // OPT.pad_iter + 3].append(nop(3))
    assert not left, f"softmax groups do not fit: {len(left)} left"
    return [lead] + g.emit(), nxt

def safe_attn():
    o = []; a = o.append
    VM, VT, VA_, TMP = 20, 24, 28, 112
    a(label("L_safe_attn")); a(wait_vm(0)); a(raw("s_waitcnt lgkmcnt(0)", "wait", lgkm=0)); a(barrier())
    for r in range(256): a(valu(f"v_accvgpr_write_b32 a{r}, 0", [], [f"a{r}"]))
    for qb in range(4):
        a(valu(f"v_mov_b32 v{VM+qb}, 0xff800000", [], [f"v{VM+qb}"])); a(valu(f"v_mov_b32 v{V_L+qb}, 0", [], [f"v{V_L+qb}"]))
    a(salu(f"s_mov_b32 s{S_KOFF}, 0")); a(salu(f"s_mov_b32 s{S_LOOP}, 32"))
    a(label("L_safe_loop"))
    for kind, slot in (("K", kslot(0)), ("V", vslot(0))):
        for m0, d in dma_tile(kind, slot, f"s{S_KOFF}", "safe"): a(m0); a(nop(0)); a(d)
    a(wait_vm(0)); a(barrier())
    qk = qk_mfmas()
    for kb in range(2):
        for s_ in range(8): a(k_read(0, kb, s_))
        a(wait_lgkm(0)); o += qk[32 * kb:32 * kb + 32]
    a(nop(7)); a(nop(7))
    for qb in range(4):
        t = VT + qb; s0 = Sreg(0, qb); s1 = Sreg(1, qb)
        a(valu(f"v_max3_f32 v{t}, v{s0}, v{s0+1}, v{s0+2}", [], [])); a(valu(f"v_max3_f32 v{t}, v{t}, v{s0+3}, v{s1}", [], []))
        a(valu(f"v_max3_f32 v{t}, v{t}, v{s1+1}, v{s1+2}", [], [])); a(valu(f"v_max_f32 v{t}, v{t}, v{s1+3}", [], []))
    o += xlane_reduce([VT + q for q in range(4)], "v_max_f32", TMP)
    for qb in range(4):
        a(valu(f"v_max_f32 v{VT+qb}, v{VT+qb}, v{VM+qb}", [], []))
        a(valu(f"v_sub_f32 v{VA_+qb}, v{VM+qb}, v{VT+qb}", [], [])); a(valu(f"v_mul_f32 v{VA_+qb}, s{S_C}, v{VA_+qb}", [], []))
        a(trans(f"v_exp_f32 v{VA_+qb}, v{VA_+qb}", [], [])); a(valu(f"v_mov_b32 v{VM+qb}, v{VT+qb}", [], []))
        a(valu(f"v_mul_f32 v{V_MC+qb}, s{S_C}, v{VT+qb}", [], [])); a(valu(f"v_sub_f32 v{V_MC+qb}, 0, v{V_MC+qb}", [], []))
        a(valu(f"v_mul_f32 v{V_L+qb}, v{V_L+qb}, v{VA_+qb}", [], []))
    for r in range(256):
        qb = (r >> 2) & 3; t = TMP + (r & 7)
        a(valu(f"v_accvgpr_read_b32 v{t}, a{r}", [], [])); a(valu(f"v_mul_f32 v{t}, v{t}, v{VA_+qb}", [], [])); a(valu(f"v_accvgpr_write_b32 a{r}, v{t}", [], []))
    for kb in range(2):
        for qb in range(4): o += exposed(sm_group(0, kb, qb))
    pv = pv_mfmas(0, False)
    for half in range(2):
        for db in range(8 * half, 8 * half + 8):
            for jj in range(2):
                a(v_read(0, db, jj))
            if db % 4 == 3: a(wait_lgkm(0))
        a(nop(1)); o += pv[32 * half:32 * half + 32]
    a(salu(f"s_add_u32 s{S_KOFF}, s{S_KOFF}, 16384")); a(salu(f"s_sub_u32 s{S_LOOP}, s{S_LOOP}, 1")); a(salu(f"s_cmp_lg_u32 s{S_LOOP}, 0"))
    a(barrier()); a(raw("s_cbranch_scc1 L_safe_loop", "branch"))
    a(nop(7)); a(nop(7))
    o += xlane_reduce([V_L + q for q in range(4)], "v_add_f32", TMP)
    for qb in range(4): a(trans(f"v_rcp_f32 v{V_L+qb}, v{V_L+qb}", [], []))
    a(nop(0))
    for db in range(16):
        for qb in range(4):
            o += conv_ops((db * 4 + qb) * 4, V_Q + (qb * 8 + (db >> 1)) * 4 + 2 * (db & 1), V_SP + 8 + 2 * (qb & 1))
    o += wo_setup()
    if OPT.fused: o += grp_setup() + [nop(1), mode_load()] + ring_scalars()
    for j in range(4):
        for sc, d in wo_dma(j): o += sc + [nop(0), d]
    a(wait_vm(0)); a(raw("s_branch L_p3_entry", "branch"))
    return o

def last_iter(carried):
    o = []; a = o.append
    for qb in (2, 3): o += exposed(sm_group(31, 1, qb))
    o += xlane_reduce([V_L + q for q in range(4)], "v_add_f32", V_SP)
    a(salu(f"s_mov_b32 s{S_T0}, 0x{f32bits(L_LIMIT):08x}"))
    for qb in range(4):
        a(valu(f"v_cmp_nge_f32 s[{50+2*(qb&1)}:{51+2*(qb&1)}], s{S_T0}, v{V_L+qb}", [f"v{V_L+qb}"], [f"s{50+2*(qb&1)}", f"s{51+2*(qb&1)}"]))
        if qb & 1:
            a(nop(0)); a(salu("s_or_b64 s[50:51], s[50:51], s[52:53]"))
            a(salu("s_mov_b64 s[54:55], s[50:51]") if qb == 1 else salu("s_or_b64 s[54:55], s[54:55], s[50:51]"))
    a(salu("s_cselect_b32 s50, 1, 0"))
    a(salu(f"s_lshl_b32 s51, s{S_W}, 2")); a(salu(f"s_add_u32 s51, s51, {L_VOTE}"))
    a(valu(f"v_mov_b32 v{V_SP}, s50", [], [f"v{V_SP}"])); a(valu(f"v_mov_b32 v{V_SP+1}, s51", [], [f"v{V_SP+1}"]))
    a(I(f"ds_write_b32 v{V_SP+1}, v{V_SP}", "ds", [f"v{V_SP}", f"v{V_SP+1}"], []))
    carried = carried + [[]]
    for qb in range(4): a(trans(f"v_rcp_f32 v{V_L+qb}, v{V_L+qb}", [f"v{V_L+qb}"], [f"v{V_L+qb}"]))
    a(nop(0))
    g = Gaps(pv_mfmas(31, False))
    for db in range(5, 8):
        for jj in range(2): g.put_mem(4 * (db - 5) + 2 * jj, v_read(31, db, jj))
    for db in range(8, 16):
        for jj in range(2): g.put_mem(12 + 4 * (db - 8) + 2 * jj, v_read(31, db, jj))
    cons = [(4 * db, R("v", V_POOL + 4 * (db % 8), 4)) for db in range(16)]
    lead = add_lgkm_waits(g, cons, carried)
    gp = put_wo(g, 2, 2, step=0)
    put_wo(g, 3, gp, step=0)
    left = []
    for db in range(16):
        for qb in range(4):
            ops = conv_ops((db * 4 + qb) * 4, V_Q + (qb * 8 + (db >> 1)) * 4 + 2 * (db & 1), V_SP + 8 + 2 * (qb & 1))
            if left: left += ops
            else:
                _, l2 = place_chain(g, ops, 4 * db + qb + 5, 64); left += l2
    a(lead); o += g.emit()
    a(nop(7)); o += left
    return o

WOBUF = [L_X, L_K, L_K + 32768, L_V, L_V + 32768, L_X, L_K]
V_DWO = 3; V_STO = V_DV
V_FR3 = 32; V_ACC3 = V_P; V_STG = 16
def wo_dma(j):
    out = []
    for i in range(8):
        sreg = S_T0 + (i & 1)
        out.append(([salu(f"s_mov_b32 s{sreg}, {j*128 + i*32*896}", [], [f"s{sreg}"]),
                     salu(f"s_add_u32 m0, s{S_W1K}, {WOBUF[j] + i*4096}", [f"s{S_W1K}"], ["m0"])],
                    tag(dma(V_DWO, S_WO, f"s{sreg}", 0, OPT.wo_flags), f"wo{j}")))
    return out
A_WOS = 100
V_WOW = 39
def wo_stage_loads(j):
    out = []
    for i in range(8):
        sreg = S_T0 + (i & 1)
        out.append(([salu(f"s_mov_b32 s{sreg}, {j*128 + i*32*896}", [], [f"s{sreg}"])],
                    tag(bload_f("a", A_WOS + 32 * (j - 5) + 4 * i, 4, V_DWO, S_WO, f"s{sreg}", 0, OPT.wo_flags), f"wos{j}")))
    return out
def wo_stage_write(j, i):
    r = A_WOS + 32 * (j - 5) + 4 * i
    return I(f"ds_write_b128 v{V_WOW + (j - 5) * 0}, {rng('a', r, 4)} offset:{i*4096}", "ds", [f"v{V_WOW}"] + R("a", r, 4), [])
def wo_setup():
    o = []; a = o.append
    L = f"v{V_LANE}"
    a(valu(f"v_lshrrev_b32 v1, 3, {L}", [L], ["v1"])); a(valu(f"v_and_b32 v2, 7, {L}", [L], ["v2"]))
    a(valu(f"v_lshl_add_u32 v3, s{S_W}, 3, v1", ["v1", f"s{S_W}"], ["v3"]))
    a(valu("v_bfe_u32 v1, v1, 1, 2", ["v1"], ["v1"])); a(valu("v_lshlrev_b32 v1, 1, v1", ["v1"], ["v1"]))
    a(valu("v_xor_b32 v1, v1, v2", ["v1", "v2"], ["v1"])); a(valu("v_lshlrev_b32 v1, 4, v1", ["v1"], ["v1"]))
    a(valu("v_mul_u32_u24 v3, 896, v3", ["v3"], ["v3"]))
    a(valu(f"v_add_u32 v{V_DWO}, v3, v1", ["v3", "v1"], [f"v{V_DWO}"]))
    return o
V_WOT = 2
def wo_touch_setup():
    return [valu(f"v_lshl_add_u32 v{V_WOT}, s{S_W}, 6, v{V_LANE}", [f"v{V_LANE}"], [f"v{V_WOT}"]),
            valu(f"v_mul_u32_u24 v{V_WOT}, 896, v{V_WOT}", [f"v{V_WOT}"], [f"v{V_WOT}"])]
def wo_touch(j): return tag(bload(1, 1, V_WOT, S_WO, "0", j * 128, OPT.wt_flags), "wt")
def put_wo(g, j, start, hi=None, step=3):
    gp = start
    for sc, d in wo_dma(j): gp = place_vmem(g, gp, sc, d, hi) + step
    return gp
def va_shift(delta):
    t = (lambda r: f"v_add_u32 v{r}, {delta}, v{r}") if delta >= 0 else (lambda r: f"v_subrev_u32 v{r}, {-delta}, v{r}")
    return [valu(t(r), [f"v{r}"], [f"v{r}"]) for r in V_VA]

def part_ops(nb, qb):
    acc = V_ACC3 + 4 * ((nb * 4 + qb) % 8)
    st = V_STG + 4 * qb + 2 * (nb & 1)
    li = V_L + qb
    ops = [valu(f"v_mul_f32 v{acc+r}, v{acc+r}, v{li}", [f"v{acc+r}", f"v{li}"], [f"v{acc+r}"]) for r in range(4)]
    ops += [valu(f"v_cvt_pk_bf16_f32 v{st}, v{acc}, v{acc+1}", [f"v{acc}", f"v{acc+1}"], [f"v{st}"]),
            valu(f"v_cvt_pk_bf16_f32 v{st+1}, v{acc+2}, v{acc+3}", [f"v{acc+2}", f"v{acc+3}"], [f"v{st+1}"])]
    return ops

A_FR3 = 0; A_SEL = 224
V_POLLA, V_POLL, V_ONE, V_ZERO, V_RLD, V_OUT = 32, 33, 34, 35, 36, 37
V_RD = 40
V_GRP = V_ARR + 3
def wo_read(nb, s_, jj):
    return ds_read_tr("a", A_FR3 + 4 * (8 * (nb & 1) + s_) + 2 * jj, V_VA[nb], s_ * 4096 + jj * 2048)

V_GA = V_ARR + 2
def grp_setup():
    return [salu(f"s_lshl_b32 s{S_T0}, s{S_G}, 4"), valu(f"v_and_b32 v{V_GA}, 3, v{V_LANE}", [f"v{V_LANE}"], [f"v{V_GA}"]),
            valu(f"v_lshlrev_b32 v{V_GA}, 2, v{V_GA}", [f"v{V_GA}"], [f"v{V_GA}"]), valu(f"v_add_u32 v{V_GA}, s{S_T0}, v{V_GA}", [f"v{V_GA}"], [f"v{V_GA}"])]
V_GA3 = 38
def grp_load(dst, tg, ga=V_GA): return tag(bload(dst, 1, ga, S_DBG, "0", 0, "sc1"), tg)
def splat(x): return x * 0x01010101
def mode_load(): return grp_load(V_ARR, "grp")
def mode_check():
    o = []; a = o.append
    a(salu(f"s_or_b32 s{S_T0}, s{S_XCC}, 0x80")); a(salu(f"s_mul_i32 s50, s{S_T0}, 0x01010101"))
    a(wait_tag("grp"))
    a(valu(f"v_and_b32 v{V_ARR}, 0x87878787, v{V_ARR}", [f"v{V_ARR}"], [f"v{V_ARR}"]))
    a(valu(f"v_cmp_eq_u32 vcc, s50, v{V_ARR}", [f"v{V_ARR}"], ["vcc"])); a(nop(0))
    a(salu("s_cmp_eq_u64 vcc, -1"))
    a(salu(f"s_cselect_b64 s[{S_LOCM}:{S_LOCM+1}], -1, 0"))
    if OPT.force_fallback: a(salu("s_cmp_eq_u32 s50, 0"))
    a(raw("s_cbranch_scc0 L_grp_far", "branch")); a(label("L_grp_ok"))
    f = [label("L_grp_far"), salu(f"s_or_b32 s{S_T0}, s{S_XCC}, 0x80"), valu(f"v_mov_b32 v{V_ARR+1}, s{S_T0}", [], []),
         valu(f"v_mov_b32 v{V_ARR+3}, 0", [], []),
         raw(f"buffer_store_byte v{V_ARR+1}, v{V_ARR+3}, s[{S_DBG}:{S_DBG+3}], s{S_SIG} offen sc1", "salu"), wait_vm(0),
         salu(f"s_mov_b32 s{S_SPIN}, {SPIN_MAX}"), label("L_grp_again"),
         salu(f"s_sub_u32 s{S_SPIN}, s{S_SPIN}, 1"), salu(f"s_cmp_eq_u32 s{S_SPIN}, 0"), raw("s_cbranch_scc1 L_grp_ok", "branch")]
    if not OPT.force_fallback:
        f += [raw(f"buffer_load_dword v{V_ARR}, v{V_GA}, s[{S_DBG}:{S_DBG+3}], 0 offen sc1", "salu"), wait_vm(0),
              valu(f"v_and_b32 v{V_ARR}, 0x87878787, v{V_ARR}", [], []), valu(f"v_cmp_eq_u32 vcc, s50, v{V_ARR}", [], []), nop(0),
              salu("s_cmp_eq_u64 vcc, -1"), salu(f"s_cselect_b64 s[{S_LOCM}:{S_LOCM+1}], -1, 0"), raw("s_cbranch_scc1 L_grp_ok", "branch")]
    f += far_read(V_ARR)
    f += [valu(f"v_and_b32 v{V_ARR+1}, 0x80808080, v{V_ARR}", [], []), valu(f"v_cmp_eq_u32 vcc, 0x80808080, v{V_ARR+1}", [], []), nop(0),
          salu("s_and_b64 s[52:53], vcc, 15"), salu("s_cmp_eq_u64 s[52:53], 15"), raw("s_cbranch_scc0 L_grp_again", "branch"),
          valu(f"v_and_b32 v{V_ARR}, 0x87878787, v{V_ARR}", [], []), valu(f"v_cmp_eq_u32 vcc, s50, v{V_ARR}", [], []), nop(0),
          salu("s_and_b64 s[52:53], vcc, 15"), salu("s_cmp_eq_u64 s[52:53], 15"),
          salu(f"s_cselect_b64 s[{S_LOCM}:{S_LOCM+1}], -1, 0")]
    if OPT.force_fallback: f.append(salu(f"s_mov_b64 s[{S_LOCM}:{S_LOCM+1}], 0"))
    f.append(raw("s_branch L_grp_ok", "branch"))
    OOL.extend(f)
    return o
def far_read(dst, ga=V_GA):
    return [valu(f"v_mov_b32 v{dst}, 0", [], []), valu(f"v_cmp_gt_u32 vcc, 4, v{V_LANE}", [], []),
            raw("s_and_saveexec_b64 s[54:55], vcc", "salu"),
            raw(f"buffer_atomic_add v{dst}, v{ga}, s[{S_DBG}:{S_DBG+3}], 0 offen sc0 sc1", "salu"), wait_vm(0),
            raw("s_mov_b64 exec, s[54:55]", "salu")]

def p3_setup():
    L = f"v{V_LANE}"
    o = [valu(f"v_lshlrev_b32 v{V_STO}, 4, {L}", [L], [f"v{V_STO}"])]
    if OPT.fused:
        o += [valu(f"v_mov_b32 v{V_ZERO}, 0", [], [f"v{V_ZERO}"]), valu(f"v_mov_b32 v{V_GA3}, v{V_GA}", [f"v{V_GA}"], [f"v{V_GA3}"])]
    else: o += far_setup()
    return o

def far_setup():
    o = []; a = o.append
    L = f"v{V_LANE}"
    a(salu(f"s_mul_i32 s{S_PART}, s{S_G}, {7*16*16*2048}"))
    a(salu(f"s_lshl_b32 s{S_T2}, s{S_H}, 15")); a(salu(f"s_add_u32 s{S_RBASE}, s{S_PART}, s{S_T2}"))
    a(salu(f"s_lshl_b32 s{S_T2}, s{S_W}, 17")); a(salu(f"s_add_u32 s{S_PART}, s{S_PART}, s{S_T2}"))
    a(salu(f"s_lshl_b32 s{S_T2}, s{S_H}, 11")); a(salu(f"s_add_u32 s{S_PART}, s{S_PART}, s{S_T2}"))
    if not OPT.fused: return o
    a(salu(f"s_or_b32 s{S_T2}, s{S_XCC}, 0xf0")); a(valu(f"v_mov_b32 v{V_ONE}, s{S_T2}", [], [f"v{V_ONE}"]))
    a(valu(f"v_lshrrev_b32 v1, 5, {L}", [L], ["v1"])); a(valu("v_lshlrev_b32 v1, 11, v1", ["v1"], ["v1"]))
    a(valu(f"v_and_b32 v2, 31, {L}", [L], ["v2"])); a(valu(f"v_lshl_add_u32 v{V_RLD}, v2, 4, v1", ["v1", "v2"], [f"v{V_RLD}"]))
    a(salu(f"s_lshl_b32 s{S_T2}, s{S_W}, 9")); a(valu(f"v_add_u32 v{V_RLD}, s{S_T2}, v{V_RLD}", [f"v{V_RLD}"], [f"v{V_RLD}"]))
    a(valu(f"v_and_b32 v1, 15, {L}", [L], ["v1"])); a(valu(f"v_lshrrev_b32 v2, 4, {L}", [L], ["v2"]))
    a(valu("v_lshrrev_b32 v4, 3, v1", ["v1"], ["v4"])); a(valu("v_and_b32 v5, 1, v2", ["v2"], ["v5"]))
    a(valu("v_and_b32 v48, 1, v1", ["v1"], ["v48"])); a(valu("v_lshlrev_b32 v48, 4, v48", ["v48"], ["v48"]))
    a(valu("v_mov_b32 v49, 0x3f80", [], ["v49"])); a(valu("v_lshlrev_b32 v49, v48, v49", ["v48", "v49"], ["v49"]))
    a(valu("v_cmp_eq_u32 vcc, v4, v5", ["v4", "v5"], ["vcc"])); a(nop(1))
    a(valu("v_cndmask_b32 v49, 0, v49, vcc", ["v49", "vcc"], ["v49"]))
    a(valu("v_bfe_u32 v50, v1, 1, 2", ["v1"], ["v50"]))
    for r in range(4):
        a(valu(f"v_cmp_eq_u32 vcc, {r}, v50", ["v50"], ["vcc"])); a(nop(1))
        a(valu("v_cndmask_b32 v51, 0, v49, vcc", ["v49", "vcc"], ["v51"]))
        a(valu(f"v_accvgpr_write_b32 a{A_SEL+r}, v51", ["v51"], [f"a{A_SEL+r}"]))
    a(salu(f"s_lshl_b32 s{S_T2}, s{S_B}, 8")); a(salu(f"s_lshl_b32 s{S_T3}, s{S_H}, 4")); a(salu(f"s_add_u32 s{S_T2}, s{S_T2}, s{S_T3}"))
    a(valu(f"v_add_u32 v{V_OUT}, s{S_T2}, v1", ["v1"], [f"v{V_OUT}"])); a(valu(f"v_mul_u32_u24 v{V_OUT}, 896, v{V_OUT}", [f"v{V_OUT}"], [f"v{V_OUT}"]))
    a(salu(f"s_mul_i32 s{S_T2}, s{S_BR}, 448")); a(salu(f"s_lshr_b32 s{S_T3}, s{S_W}, 1")); a(salu(f"s_lshl_b32 s{S_T3}, s{S_T3}, 5"))
    a(salu(f"s_add_u32 s{S_T2}, s{S_T2}, s{S_T3}")); a(salu(f"s_and_b32 s{S_T3}, s{S_W}, 1")); a(salu(f"s_lshl_b32 s{S_T3}, s{S_T3}, 3"))
    a(salu(f"s_add_u32 s{S_T2}, s{S_T2}, s{S_T3}"))
    a(valu(f"v_add_u32 v{V_OUT}, s{S_T2}, v{V_OUT}", [f"v{V_OUT}"], [f"v{V_OUT}"]))
    a(valu(f"v_lshl_add_u32 v{V_OUT}, v5, 4, v{V_OUT}", ["v5", f"v{V_OUT}"], [f"v{V_OUT}"]))
    a(valu("v_lshrrev_b32 v4, 1, v2", ["v2"], ["v4"])); a(valu(f"v_lshl_add_u32 v{V_OUT}, v4, 2, v{V_OUT}", ["v4", f"v{V_OUT}"], [f"v{V_OUT}"]))
    a(valu(f"v_lshlrev_b32 v{V_OUT}, 1, v{V_OUT}", [f"v{V_OUT}"], [f"v{V_OUT}"]))
    return o

def handoff_far():
    o = [wait_vm(0), barrier(), raw("buffer_wbl2 sc1", "salu"), wait_vm(0), barrier(),
         raw(f"buffer_store_byte v{V_ONE}, v{V_ZERO}, s[{S_DBG}:{S_DBG+3}], s{S_SIG} offen sc1", "salu"), wait_vm(0),
         salu(f"s_mov_b32 s{S_SPIN}, {SPIN_MAX}"), label("L_far_poll"),
         salu(f"s_sub_u32 s{S_SPIN}, s{S_SPIN}, 1"), salu(f"s_cmp_eq_u32 s{S_SPIN}, 0"), raw("s_cbranch_scc1 L_far_done", "branch")]
    o += far_read(V_POLL, V_GA3)
    o += [valu(f"v_and_b32 v{V_POLL}, 0xf0f0f0f0, v{V_POLL}", [], []), valu(f"v_cmp_eq_u32 vcc, 0xf0f0f0f0, v{V_POLL}", [], []), nop(0),
          salu("s_and_b64 s[52:53], vcc, 15"), salu("s_cmp_eq_u64 s[52:53], 15"), raw("s_cbranch_scc0 L_far_poll", "branch"),
          label("L_far_done"), raw("buffer_inv sc1", "salu"), wait_vm(0)]
    return o

A_PIECE = 0; A_SEL2 = 224
def red_loads(j):
    out = []
    for i in range(8):
        sr = "s52" if i % 2 == 0 else "s53"
        out.append(([salu(f"s_add_u32 {sr}, s{S_RBASE}, {j*16*32768 + i*4096}", [f"s{S_RBASE}"], [sr])],
                    tag(bload_f("a", A_PIECE + 32 * j + 4 * i, 4, V_RLD, S_WS, sr, 0, "sc1"), f"rl{j}")))
    return out
def red_mfmas(j):
    d = V_RD + 4 * (j & 1)
    return [mfma("v", d, "a", A_SEL2, "a", A_PIECE + 32 * j + 4 * i, None if i == 0 else "v", None if i == 0 else d) for i in range(8)]
def red_out(j):
    d = V_RD + 4 * (j & 1)
    return [valu(f"v_cvt_pk_bf16_f32 v{d}, v{d}, v{d+1}", [f"v{d}", f"v{d+1}"], [f"v{d}"]),
            valu(f"v_cvt_pk_bf16_f32 v{d+1}, v{d+2}, v{d+3}", [f"v{d+2}", f"v{d+3}"], [f"v{d+1}"])], tag(bstore(d, 2, V_OUT, S_OUT, "0", j * 128), f"out{j}")

A_RING = 64; A_SEL4 = 96
V_RLD4, V_OUT4, V_FLA, V_FLAG1 = 48, 49, 50, 51
def ring_scalars():
    o = []; a = o.append
    a(salu(f"s_mul_i32 s50, s{S_G}, {OPT.ring * 262144}"))
    a(salu(f"s_lshl_b32 s51, s{S_W}, 16")); a(salu(f"s_add_u32 s{S_RST}, s50, s51"))
    a(salu(f"s_lshl_b32 s51, s{S_H}, 10")); a(salu(f"s_add_u32 s{S_RST}, s{S_RST}, s51"))
    a(salu(f"s_lshl_b32 s51, s{S_H}, 14")); a(salu(f"s_add_u32 s{S_RLD}, s50, s51"))
    a(salu(f"s_mul_i32 s50, s{S_G}, {14*64}"))
    a(salu(f"s_lshl_b32 s51, s{S_W}, 4"))
    a(salu(f"s_add_u32 s{S_FPW}, s50, s51")); a(salu(f"s_add_u32 s{S_FPW}, s{S_FPW}, s{S_H}"))
    a(salu(f"s_add_u32 s{S_FCR}, s50, s51")); a(salu(f"s_add_u32 s{S_FCR}, s{S_FCR}, {CONS_OFF}"))
    a(salu(f"s_lshr_b32 s51, s{S_H}, 2")); a(salu(f"s_lshl_b32 s51, s51, 4"))
    a(salu(f"s_add_u32 s{S_FPR}, s50, s51"))
    a(salu(f"s_lshl_b32 s51, s{S_H}, 2")); a(salu(f"s_add_u32 s{S_FCW}, s50, s51"))
    a(salu(f"s_add_u32 s{S_FCW}, s{S_FCW}, s{S_W}")); a(salu(f"s_add_u32 s{S_FCW}, s{S_FCW}, {CONS_OFF}"))
    return o
def ring_setup():
    o = []; a = o.append
    L = f"v{V_LANE}"
    a(valu(f"v_and_b32 v{V_FLA}, 3, {L}", [L], [f"v{V_FLA}"])); a(valu(f"v_lshlrev_b32 v{V_FLA}, 2, v{V_FLA}", [f"v{V_FLA}"], [f"v{V_FLA}"]))
    a(valu(f"v_mov_b32 v{V_FLAG1}, 1", [], [f"v{V_FLAG1}"]))
    a(valu(f"v_and_b32 v1, 15, {L}", [L], ["v1"])); a(valu(f"v_lshrrev_b32 v2, 4, {L}", [L], ["v2"]))
    a(valu(f"v_lshlrev_b32 v{V_RLD4}, 10, v2", ["v2"], [f"v{V_RLD4}"])); a(valu(f"v_lshl_add_u32 v{V_RLD4}, v1, 4, v{V_RLD4}", ["v1", f"v{V_RLD4}"], [f"v{V_RLD4}"]))
    a(salu(f"s_lshl_b32 s{S_T1}, s{S_W}, 8")); a(valu(f"v_add_u32 v{V_RLD4}, s{S_T1}, v{V_RLD4}", [f"v{V_RLD4}"], [f"v{V_RLD4}"]))
    a(valu("v_and_b32 v4, 1, v1", ["v1"], ["v4"])); a(valu("v_lshlrev_b32 v4, 4, v4", ["v4"], ["v4"]))
    a(valu("v_mov_b32 v5, 0x3f80", [], ["v5"])); a(valu("v_lshlrev_b32 v5, v4, v5", ["v4", "v5"], ["v5"]))
    a(valu("v_lshrrev_b32 v4, 1, v1", ["v1"], ["v4"]))
    for r in range(4):
        a(valu(f"v_cmp_eq_u32 vcc, {r}, v4", ["v4"], ["vcc"])); a(nop(1))
        a(valu("v_cndmask_b32 v52, 0, v5, vcc", ["v5", "vcc"], ["v52"]))
        a(valu(f"v_accvgpr_write_b32 a{A_SEL4+r}, v52", ["v52"], [f"a{A_SEL4+r}"]))
    a(salu(f"s_lshl_b32 s{S_T0}, s{S_B}, 8")); a(salu(f"s_lshl_b32 s{S_T1}, s{S_H}, 4")); a(salu(f"s_add_u32 s{S_T0}, s{S_T0}, s{S_T1}"))
    a(valu(f"v_add_u32 v{V_OUT4}, s{S_T0}, v1", ["v1"], [f"v{V_OUT4}"])); a(valu(f"v_mul_u32_u24 v{V_OUT4}, 896, v{V_OUT4}", [f"v{V_OUT4}"], [f"v{V_OUT4}"]))
    a(salu(f"s_mul_i32 s{S_T0}, s{S_BR}, 448")); a(salu(f"s_lshl_b32 s{S_T1}, s{S_W}, 2")); a(salu(f"s_add_u32 s{S_T0}, s{S_T0}, s{S_T1}"))
    a(valu(f"v_add_u32 v{V_OUT4}, s{S_T0}, v{V_OUT4}", [f"v{V_OUT4}"], [f"v{V_OUT4}"]))
    a(valu(f"v_lshl_add_u32 v{V_OUT4}, v2, 4, v{V_OUT4}", ["v2", f"v{V_OUT4}"], [f"v{V_OUT4}"]))
    a(valu(f"v_lshlrev_b32 v{V_OUT4}, 1, v{V_OUT4}", [f"v{V_OUT4}"], [f"v{V_OUT4}"]))
    a(valu("v_cmp_gt_u32 vcc, 2, v2", ["v2"], ["vcc"])); a(salu(f"s_mov_b32 s{S_T0}, 0x7ff00000")); a(valu(f"v_mov_b32 v4, s{S_T0}", [], ["v4"]))
    a(valu(f"v_cndmask_b32 v{V_OUT4}, v4, v{V_OUT4}, vcc", ["v4", f"v{V_OUT4}", "vcc"], [f"v{V_OUT4}"]))
    return o

def flag_store(base, u, tg):
    return [salu(f"s_add_u32 s55, s{base}, {u*64}", [f"s{base}"], ["s55"])], \
           tag(I(f"buffer_store_byte v{V_FLAG1}, v{V_ZERO}, s[{S_FL}:{S_FL+3}], s55 offen", "vst", [f"v{V_FLAG1}", f"v{V_ZERO}", "s55"], data=[]), tg)
def flag_poll(base, u, dst, tg):
    return [salu(f"s_add_u32 s54, s{base}, {u*64}", [f"s{base}"], ["s54"])], tag(bload(dst, 1, V_FLA, S_FL, "s54", 0, "sc1"), tg)
def flag_check(base, u, dst, tg, name):
    OOL.extend([label(f"L_{name}_spin"), salu(f"s_add_u32 s54, s{base}, {u*64}"), salu(f"s_mov_b32 s{S_SPIN}, {SPIN_MAX}"),
                label(f"L_{name}_again"),
                salu(f"s_sub_u32 s{S_SPIN}, s{S_SPIN}, 1"), salu(f"s_cmp_eq_u32 s{S_SPIN}, 0"), raw(f"s_cbranch_scc1 L_{name}_ok", "branch"),
                raw(f"buffer_load_dword v{dst}, v{V_FLA}, s[{S_FL}:{S_FL+3}], s54 offen sc1", "salu"), wait_vm(0),
                valu(f"v_cmp_ne_u32 vcc, 0x01010101, v{dst}", [], []), nop(0),
                raw(f"s_cbranch_vccnz L_{name}_again", "branch"), raw(f"s_branch L_{name}_ok", "branch")])
    dd = (lambda n: stamp("d_" + n)) if name in (f"prod{OPT.p3detail}", f"cons{OPT.p3detail}") else (lambda n: [])
    return dd(name[:4] + "A") + [wait_tag(tg)] + dd(name[:4] + "B") + [valu(f"v_cmp_ne_u32 vcc, 0x01010101, v{dst}", [f"v{dst}"], ["vcc"]), nop(0),
            raw(f"s_cbranch_vccnz L_{name}_spin", "branch"), label(f"L_{name}_ok")] + dd(name[:4] + "C")
V_PP, V_PC = 53, 54
def ring_loads(u):
    out = []
    for i in range(4):
        sr = "s52" if i % 2 == 0 else "s53"
        out.append(([salu(f"s_add_u32 {sr}, s{S_RLD}, {(u % OPT.ring)*262144 + i*4096}", [f"s{S_RLD}"], [sr])],
                    tag(bload_f("a", A_RING + 16 * (u & 1) + 4 * i, 4, V_RLD4, S_RG, sr, 0, "sc1"), f"rl{u}")))
    return out
def ring_mfmas(u):
    d = V_RD + 4 * (u & 1)
    return [mfma("v", d, "a", A_SEL4, "a", A_RING + 16 * (u & 1) + 4 * i, None if i == 0 else "v", None if i == 0 else d) for i in range(4)]
def ring_out(u):
    d = V_RD + 4 * (u & 1)
    return [valu(f"v_cvt_pk_bf16_f32 v{d}, v{d}, v{d+1}", [f"v{d}", f"v{d+1}"], [f"v{d}"]),
            valu(f"v_cvt_pk_bf16_f32 v{d+1}, v{d+2}, v{d+3}", [f"v{d+2}", f"v{d+3}"], [f"v{d+1}"])], tag(bstore(d, 2, V_OUT4, S_OUT, "0", u * 64, OPT.out_flags), f"out{u}")

def p3_stream(local, carried):
    o = []; a = o.append
    NS, D = OPT.ring, OPT.prod_delay
    Q = lambda u: 8 * u + 7
    if OPT.tmpl == 0:
        T = dict(st=[0, 1, 2, 3], sig=(7, 5), poll=(12, 5), chk=(15, 7), ld=[(16, 7), (17, 7), (18, 7), (19, 7)], csig=(22, 3), out=(30, 5),
                 cpoll=(-4, 3), cchk=(-1, 3), wo=[(-4, 7), (-3, 3), (-3, 7), (-2, 7)], va=((0, 85), (1, 61), (2, 69), (3, 101)))
    else:
        T = dict(st=[0, 2, 4, 5], sig=(8, 5), poll=(13, 7), chk=(16, 7), ld=[(17, 3), (17, 7), (19, 3), (19, 7)], csig=(22, 3), out=(30, 5),
                 cpoll=(-4, 7), cchk=(-1, 3), wo=[(-6, 7), (-2, 7), (-1, 5), (-1, 7)], va=((0, 85), (1, 37), (2, 69), (3, 101)))
    ins = {}
    if local:
        for u in range(14):
            m = 8 * (Q(u) + 22 + D) - 1
            if m < 895: ins[m] = u
    ms = []; pos = {}; redpos = {}
    for m in range(896):
        j, i = m >> 7, m & 127
        nb, qb, s_ = i >> 5, (i >> 3) & 3, i & 7
        acc = V_ACC3 + 4 * ((nb * 4 + qb) % 8)
        pos[m] = len(ms)
        ms.append(mfma("v", acc, "a", A_FR3 + 4 * (8 * (nb & 1) + s_), "v", V_Q + (qb * 8 + s_) * 4,
                       None if s_ == 0 else "v", None if s_ == 0 else acc))
        if m in ins:
            u = ins[m]; redpos[u] = len(ms); ms += ring_mfmas(u)
    g = Gaps(ms); N = g.n
    P = lambda j, i: pos[128 * j + i]
    def G(period, off):
        m = 8 * period + off
        return pos[m] if 0 <= m < 896 else None
    for j in range(7):
        for nb in range(4):
            jn, nbn = (j, nb + 1) if nb < 3 else (j + 1, 0)
            if jn > 6: continue
            for s_ in range(8):
                for jj in range(2): g.put_mem(P(j, 32 * nb + 4 * s_ + 2 * jj), wo_read(nbn, s_, jj))
    cons = []
    for j in range(7):
        for nb in range(4):
            for s_ in (0, 2, 4, 6): cons.append((P(j, 32 * nb + s_), R("a", A_FR3 + 4 * (8 * (nb & 1) + s_), 8)))
    cons.sort()
    def put_vm(k, sc, d):
        assert g.mem[k] is None and not g.post[k], (k, d.text)
        for n, x in enumerate(reversed(sc)):
            kk = k - 1 - n
            assert kk >= 0
            assert not (g.mem[kk] is not None and g.mem[kk].kind == "dma" and "m0" in x.wr)
            g.pre[kk].append(x)
        g.mem[k] = d
    def put_seq(k, seq):
        assert g.mem[k] is None and not g.post[k], k
        g.post[k] = seq
    for j in range(6):
        k = P(j, 91)
        g.pre[k] += ([wait_tag(f"wo{j+1}")] if not (OPT.wo_stage and j + 1 >= 5) else []) + [barrier()]
        sh = va_shift(WOBUF[j + 1] - WOBUF[j])
        for n, at in T['va']:
            kk = P(j, at); g.vec[kk].append(sh[n])
    if OPT.wo_stage:
        items = wo_dma(4) + wo_stage_loads(5) + wo_stage_loads(6)
        slots = [(0, 3), (0, 5), (0, 7), (1, 1), (1, 3), (1, 5), (1, 7)] + [(per, off) for per in range(2, 7) for off in (3, 5, 7)] + [(7, 5), (7, 7)]
        if OPT.tmpl == 1:
            slots = [(0, 3), (0, 5), (0, 7), (1, 1), (1, 3), (1, 5), (1, 7)] + [(per, off) for per in range(2, 7) for off in (3, 5, 7)] + [(7, 5), (7, 7)]
        for (sc, d), (per, off) in zip(items, slots): put_vm(G(per, off), sc, d)
        for j in (5, 6):
            jj_ = j - 3
            g.vec[P(jj_, 1)].insert(0, valu(f"v_add_u32 v{V_WOW}, {(WOBUF[j] - (WOBUF[j-1] if j == 6 else 0)) & 0xffffffff}, v{V_WOW}", [f"v{V_WOW}"], [f"v{V_WOW}"]))
            for i in range(8):
                u0 = 2 * jj_ + (i >> 2)
                per, off = Q(u0) + T['wo'][i & 3][0], T['wo'][i & 3][1]
                k = G(per, off)
                assert g.mem[k] is None
                g.mem[k] = wo_stage_write(j, i)
            u1 = 2 * jj_
            g.pre[G(Q(u1) + T['wo'][0][0], T['wo'][0][1]) - 1].append(wait_tag(f"wos{j}"))
    else:
      for j in (2, 3):
        items = wo_dma(j + 3)
        for n, (sc, d) in enumerate(items):
            u0 = 2 * j + (n >> 2)
            per, off = Q(u0) + T['wo'][n & 3][0], T['wo'][n & 3][1]
            put_vm(G(per, off), sc, d)
    lead = add_lgkm_waits(g, cons, carried)
    stores = {}; sgap = {}
    for u in range(14):
        j, nb = u >> 1, 2 * (u & 1) + 1
        for qb in range(4):
            sreg = S_T2 + (qb & 1)
            if local:
                st = ([salu(f"s_add_u32 s{sreg}, s{S_RST}, {(u % NS)*262144 + qb*16384}", [f"s{S_RST}"], [f"s{sreg}"])],
                      tag(bstore(V_STG + 4 * qb, 4, V_STO, S_RG, f"s{sreg}", 0, OPT.last_st if u >= 14 - NS else ""), f"st{u}"))
            else:
                so = j * 16 * 16 * 2048 + qb * 16 * 2048 + (nb >> 1) * 1024
                st = ([salu(f"s_add_u32 s{sreg}, s{S_PART}, {so}", [f"s{S_PART}"], [f"s{sreg}"])],
                      tag(bstore(V_STG + 4 * qb, 4, V_STO, S_WS, f"s{sreg}", 0), f"st{u}"))
            stores[(u, qb)] = st
            k = G(Q(u) + T['st'][qb], 3)
            sgap[(u, qb)] = k
            if k is not None: put_vm(k, *st)
    done = {}; out_left = []
    if local:
        for u in range(14):
            dd = (lambda n: stamp("d_" + n)) if u == OPT.p3detail else (lambda n: [])
            if u >= NS:
                kp, kc = G(Q(u) + T['cpoll'][0], T['cpoll'][1]), G(Q(u) + T['cchk'][0], T['cchk'][1])
                put_vm(kp, *flag_poll(S_FCR, u - NS, V_PC, f"pc{u}"))
                put_seq(kc, flag_check(S_FCR, u - NS, V_PC, f"pc{u}", f"cons{u}"))
            done[u] = "sig"
            k = G(Q(u) + T['sig'][0], T['sig'][1])
            if k is None or sgap[(u, 3)] is None: continue
            sc, d = flag_store(S_FPW, u, f"sig{u}")
            g.pre[k - 1] += dd("sigA") + [wait_tag(f"st{u}")] + dd("sigB"); put_vm(k, sc, d)
            done[u] = "poll"
            k = G(Q(u) + T['poll'][0] + D, T['poll'][1])
            if k is None: continue
            put_vm(k, *flag_poll(S_FPR, u, V_PP, f"pp{u}"))
            done[u] = "check"
            k = G(Q(u) + T['chk'][0] + D, T['chk'][1])
            if k is None: continue
            put_seq(k, flag_check(S_FPR, u, V_PP, f"pp{u}", f"prod{u}"))
            done[u] = "loads"
            if u not in redpos: continue
            for n, (sc, d) in enumerate(ring_loads(u)): put_vm(G(Q(u) + T['ld'][n][0] + D, T['ld'][n][1]), sc, d)
            g.pre[redpos[u] - 1] += dd("rlA") + [wait_tag(f"rl{u}")] + dd("rlB")
            if u <= 13 - NS: put_vm(G(Q(u) + T['csig'][0] + D, T['csig'][1]), *flag_store(S_FCW, u, f"csig{u}"))
            done[u] = "out"
            cv, st = ring_out(u)
            if u + 1 in redpos:
                g.vec[redpos[u + 1]] += cv
                put_vm(G(Q(u) + T['out'][0] + D, T['out'][1]), [], st)
                done[u] = "all"
    tail_main = []
    for p in range(112):
        j, nb, qb = p >> 4, (p >> 2) & 3, p & 3
        ops = part_ops(nb, qb)
        slots = [G(p + 2, 0), G(p + 2, 1), G(p + 2, 1), G(p + 2, 2), G(p + 2, 4), G(p + 2, 6)]
        if slots[0] is None:
            tail_main += ops
        else:
            for x, k in zip(ops, slots): g.vec[k].append(x)
        if nb & 1:
            u = 2 * j + (nb >> 1)
            if sgap[(u, qb)] is None: tail_main += stores[(u, qb)][0] + [nop(1), stores[(u, qb)][1]]
    if OPT.p3_tiles and local:
        for j in range(1, 7): g.pre[P(j, 0)] = stamp(f"tile{j}") + g.pre[P(j, 0)]
    if lead is not None: a(lead)
    em = g.emit()
    if "allst" in OPT.p3_drop: em = [x for x in em if x.kind != "vst"]
    if "pst" in OPT.p3_drop: em = [x for x in em if not (x.kind == "vst" and x.meta.get("tag", "").startswith("st"))]
    if "nospin" in OPT.p3_drop: em = [x for x in em if not (x.kind == "branch" and "vccnz" in x.text)]
    if "novm" in OPT.p3_drop: em = [x for x in em if not (x.kind == "wait" and "vmtags" in x.meta and not x.meta["vmtags"][0].startswith("wo"))]
    if "nold" in OPT.p3_drop: em = [x for x in em if not (x.kind == "vld" and x.meta.get("tag", "").startswith("rl"))]
    o += stamp("p3_stream_start") if (local or not OPT.fused) else []
    o += em
    if local or not OPT.fused: o += stamp("p3_mfma_end")
    a(nop(7)); o += exposed(tail_main)
    if local:
        todo = [u for u in range(14) if done[u] != "all"]
        LD = lambda u: [x for sc, d in ring_loads(u) for x in sc + [d]]
        POLL = lambda u: (lambda p: p[0] + [p[1]])(flag_poll(S_FPR, u, V_PP, f"pp{u}"))
        CHK = lambda u: flag_check(S_FPR, u, V_PP, f"pp{u}", f"prod{u}")
        SIG = lambda u: (lambda p: [wait_tag(f"st{u}")] + p[0] + [p[1]])(flag_store(S_FPW, u, f"sig{u}"))
        OUT = lambda u: (lambda p: p[0] + [p[1]])(ring_out(u))
        if OPT.tail2 and [done[u] for u in todo] == ["out", "loads", "poll", "sig"] and todo == [10, 11, 12, 13]:
            o += LD(11) + POLL(12) + SIG(13) + stamp("x_last_signal") + OUT(10)
            o += CHK(12) + LD(12) + [wait_tag("rl11")] + ring_mfmas(11)
            o += POLL(13) + CHK(13) + LD(13)
            o += [wait_tag("rl12")] + ring_mfmas(12) + [nop(3)] + OUT(11)
            o += [wait_tag("rl13")] + ring_mfmas(13) + [nop(3)] + OUT(12) + [nop(7)] + OUT(13)
        else:
            for u in todo:
                if done[u] == "sig": o += SIG(u)
            o += stamp("x_last_signal")
            for u in todo:
                if done[u] != "out":
                    if done[u] in ("sig", "poll"): o += POLL(u)
                    if done[u] in ("sig", "poll", "check"): o += CHK(u)
                    o += LD(u) + [wait_tag(f"rl{u}")] + ring_mfmas(u) + [nop(7)]
                o += OUT(u)
    return o

def phase3():
    o = []; a = o.append
    a(label("L_p3_entry"))
    a(wait_tag("wt", "wo0")); a(raw("s_waitcnt lgkmcnt(0)", "wait", lgkm=0)); a(barrier())
    a(valu(f"v_mov_b32 v1, {L_VOTE}", [], ["v1"]))
    a(ds_read128("v", V_SP, 1, 0)); a(wait_lgkm(0))
    a(valu(f"v_or3_b32 v{V_SP}, v{V_SP}, v{V_SP+1}, v{V_SP+2}", R("v", V_SP, 3), [f"v{V_SP}"]))
    a(valu(f"v_or_b32 v{V_SP}, v{V_SP}, v{V_SP+3}", [f"v{V_SP}", f"v{V_SP+3}"], [f"v{V_SP}"])); a(nop(0))
    a(valu(f"v_readfirstlane_b32 s50, v{V_SP}", [f"v{V_SP}"], ["s50"])); a(nop(3))
    a(salu(f"s_cmp_eq_u32 s{S_SAFE}, 0")); a(salu("s_cselect_b32 s50, s50, 0"))
    a(salu("s_cmp_lg_u32 s50, 0")); a(raw("s_cbranch_scc1 L_restart", "branch"))
    OOL.extend([label("L_restart"), wait_vm(0), raw("s_waitcnt lgkmcnt(0)", "wait", lgkm=0), barrier(),
                salu(f"s_mov_b32 s{S_SAFE}, 1"), raw("s_branch L_again", "branch")])
    o += p3_setup()
    if OPT.fused: o += ring_setup()
    o += va_shift(WOBUF[0] - L_V)
    if OPT.fused: o += mode_check()
    carried = []
    for s_ in range(8):
        for jj in range(2):
            r = wo_read(0, s_, jj); a(r); carried.append(r.wr)
            if len(carried) == 14: a(wait_lgkm(6)); carried = carried[-6:]
    a(barrier())
    if OPT.wo_stage:
        a(valu(f"v_lshlrev_b32 v{V_WOW}, 4, v{V_LANE}", [f"v{V_LANE}"], [f"v{V_WOW}"]))
        a(valu(f"v_add_u32 v{V_WOW}, s{S_W1K}, v{V_WOW}", [f"v{V_WOW}"], [f"v{V_WOW}"]))
    else:
        for sc, d in wo_dma(4): o += sc + [nop(0), d]
    if not OPT.fused:
        return o, p3_stream(False, carried) + stamp("p3_end") + ([wait_vm(0)] if OPT.stamps else []) + stamp("rt_end"), []
    o += [salu(f"s_cmp_eq_u32 s{S_LOCM}, 0"), raw("s_cbranch_scc1 L_p3_far", "branch")]
    loc = p3_stream(True, carried)
    loc += stamp("p3_end") + ([wait_vm(0)] if OPT.stamps else []) + stamp("rt_end")
    far = [label("L_p3_far")] + far_setup() + p3_stream(False, carried) + handoff_far()
    for j in range(7):
        for sc, d in red_loads(j): far += sc + [d]
    for j in range(7):
        far.append(wait_tag(f"rl{j}"))
        far += red_mfmas(j)
        if j > 0:
            cv, stt = red_out(j - 1); far += cv + [stt]
    far.append(nop(7))
    cv, stt = red_out(6); far += cv + [stt]
    far += [wait_vm(0), raw("s_endpgm", "branch")]
    return o, loc, far

def dump_regs(base, n, agpr=False):
    o = [wait_vm(0), raw("s_waitcnt lgkmcnt(0)", "wait", lgkm=0), nop(7), nop(7),
         salu(f"s_lshl_b32 s{S_T0}, s2, 2"), salu(f"s_add_u32 s{S_T0}, s{S_T0}, s{S_W}"),
         salu(f"s_mul_i32 s{S_T0}, s{S_T0}, {n*256}"), valu(f"v_lshlrev_b32 v1, 2, v{V_LANE}", [f"v{V_LANE}"], ["v1"])]
    for r in range(n):
        if agpr:
            o.append(valu(f"v_accvgpr_read_b32 v2, a{base+r}", [f"a{base+r}"], ["v2"])); o.append(bstore(2, 1, 1, S_WS, f"s{S_T0}", 0))
        else:
            o.append(bstore(base + r, 1, 1, S_WS, f"s{S_T0}", 0))
        o.append(salu(f"s_add_u32 s{S_T0}, s{S_T0}, 256"))
        if r % 32 == 31 or agpr: o.append(wait_vm(0))
    return o

def stamp_out():
    if not OPT.stamps: return []
    if OPT.dma_stamps: STAMPS[:] = [f"dma{i}" for i in range(10)] + ["loopcyc"]
    if OPT.bar_stamps: STAMPS.extend(["acc_vm", "acc_bar"])
    n = len(STAMPS)
    o = [raw("s_waitcnt lgkmcnt(0)", "wait", lgkm=0), salu(f"s_cmp_lg_u32 s{S_W}, 0"), raw("s_cbranch_scc1 L_nostamp", "branch")]
    if OPT.stamp_dbg >= 0:
        o += [salu(f"s_cmp_lg_u32 s2, {OPT.stamp_dbg}"), raw("s_cbranch_scc1 L_nostamp", "branch")]
        o += [salu("s_load_dwordx2 s[36:37], s[0:1], 88"), raw("s_waitcnt lgkmcnt(0)", "wait", lgkm=0)]
        o += [salu(f"s_mov_b32 s{S_WS}, s36"), salu(f"s_mov_b32 s{S_WS+1}, s37"), salu(f"s_mov_b32 s{S_WS+2}, 256"), salu(f"s_mov_b32 s{S_T0}, 0")]
    else:
        o.append(salu(f"s_mul_i32 s{S_T0}, s2, 64")); o.append(salu(f"s_add_u32 s{S_T0}, s{S_T0}, {STAMP_OFF}"))
        o.append(salu(f"s_mov_b32 s{S_WS+2}, {STAMP_OFF + 256*64}"))
    o.append(valu("v_mov_b32 v1, 0", [], ["v1"]))
    for k in range(n):
        if OPT.stamp_dbg >= 0:
            ref = 0 if STAMPS[k].startswith("rt") else 1
            o.append(salu(f"s_sub_u32 s{S_T1}, s{S_STAMP+2*k}, s{S_STAMP+2*ref}"))
            o.append(valu(f"v_mov_b32 v2, s{S_T1}", [], ["v2"]))
        elif STAMPS[k] == "loopcyc": o.append(valu("v_mov_b32 v2, s100", [], ["v2"]))
        elif STAMPS[k] == "acc_vm": o.append(valu("v_mov_b32 v2, s92", [], ["v2"]))
        elif STAMPS[k] == "acc_bar": o.append(valu("v_mov_b32 v2, s93", [], ["v2"]))
        else:
            o.append(valu(f"v_mov_b32 v2, s{S_STAMP+2*k}", [], ["v2"]))
        o.append(bstore(2, 1, 1, S_WS, f"s{S_T0}", 4 * k)); o.append(wait_vm(0))
    o.append(label("L_nostamp"))
    return o

def finish(): return [wait_vm(0), label("L_end"), raw("s_endpgm", "branch")]

def trip_seq(ex):
    return [raw("s_memtime s[98:99]", "salu"), raw("s_memrealtime s[100:101]", "salu"), raw("s_waitcnt lgkmcnt(0)", "wait", lgkm=0),
            salu(f"s_mov_b32 s99, m0"), salu(f"s_mov_b32 m0, s{S_LOOP}"), nop(0), valu(f"v_writelane_b32 v1, s98, m0", ["s98"], ["v1"]),
            salu(f"s_add_u32 m0, s{S_LOOP}, 8"), nop(0), valu(f"v_writelane_b32 v1, s100, m0", ["s100"], ["v1"]),
            salu("s_mov_b32 m0, s99"), salu(f"s_cmp_lg_u32 s{S_LOOP}, {ex}")]
def build(debug=None):
    _stamp_n[0] = 0; STAMPS.clear(); OOL.clear()
    pre = setup() + phase1()
    if debug == "p1":
        pre += stamp("rt_end")
        resolve_vm(pre, [])
        return pre + stamp_out() + finish()
    if debug == "q":
        resolve_vm(pre, []); check(pre, "pre")
        return pre + dump_regs(V_Q, 128) + finish()
    if OPT.dma_mode == "cluster":
        OPT.dma_gaps = ([21, 23, 25, 27], [101, 103, 105, 107]); OPT.nv_prev = 0
    elif OPT.dma_mode == "cluster2":
        OPT.dma_gaps = ([41, 43, 47, 49], [101, 103, 105, 107]); OPT.nv_prev = 0
    NCUR = len(OPT.dma_gaps[1])
    pre += [salu(f"s_cmp_lg_u32 s{S_SAFE}, 0"), raw("s_cbranch_scc1 L_safe_attn", "branch")]
    p, carried = pre_iter(); pre += p
    def batch(t):
        return dma_tile("V", vslot(t + 3), f"s{S_VOFF}", f"V{t+3}") + dma_tile("K", kslot(t + 5), f"s{S_KOFF}", f"K{t+5}")
    pre += wo_setup()
    if OPT.fused: pre += grp_setup()
    def ex0(g, kb):
        put_wo(g, 0, 3, kb, step=8)
    vf0 = OPT.vfirst
    if OPT.early_trips: OPT.vfirst = OPT.vfirst_early
    s0, carried = attn_iter(0, carried, wait_tag("V1", "K2"), [], batch(0)[:NCUR], first=True, adv=False, extra=ex0)
    OPT.vfirst = vf0
    pre += s0
    pre.append(salu(f"s_mov_b32 s{S_LOOP}, 7"))
    if OPT.bar_stamps: pre += [salu("s_mov_b32 s92, 0"), salu("s_mov_b32 s93, 0")]
    pre += stamp("loop_start") + (stamp("rt_ls") if (OPT.bar_stamps or OPT.trip_stamps) else [])
    def loop_body(name):
        nonlocal carried
        lp = [label(name)]
        for u in range(4):
            t = 1 + u
            s, carried = attn_iter(t, carried, wait_vm(12), batch(t - 1)[NCUR:], batch(t)[:NCUR], loopctl=(u == 3), loop_body=True)
            if OPT.dma_stamps and u == 1:
                s2 = []; n = 0
                for x in s:
                    if x.kind == "dma" and n < 5:
                        s2 += [raw(f"s_memtime s[{80+4*n}:{81+4*n}]", "salu"), x, raw(f"s_memtime s[{82+4*n}:{83+4*n}]", "salu")]; n += 1
                    else: s2.append(x)
                s = s2
            lp += s
        return lp
    first_loop = []
    if OPT.early_trips:
        vf = OPT.vfirst; OPT.vfirst = OPT.vfirst_early
        OPT.loop_exit = 7 - OPT.early_trips
        first_loop = loop_body("L_attn_early") + (trip_seq(OPT.loop_exit) if OPT.trip_stamps else []) + [raw("s_cbranch_scc1 L_attn_early", "branch")]
        OPT.vfirst = vf; OPT.loop_exit = 0
    loop = loop_body("L_attn")
    if OPT.trip_stamps: loop += trip_seq(0)
    if OPT.loop_nodma: loop = [x for x in loop if x.kind != "dma"]
    if OPT.loop_nods: loop = [x for x in loop if x.kind != "ds" and not (x.kind == "wait" and "lgkm" in x.meta and x.meta["lgkm"] > 0)]
    if OPT.loop_nomfma: loop = [(nop(1) if x.kind == "mfma" else x) for x in loop]
    if OPT.loop_novalu: loop = [x for x in loop if x.kind not in ("valu", "trans")]
    if OPT.loop_dma_every > 1:
        cnt = [0]
        def keep(x):
            if x.kind != "dma": return True
            cnt[0] += 1
            return cnt[0] % OPT.loop_dma_every == 0
        loop = [x for x in loop if keep(x)]
    loop.append(raw("s_cbranch_scc1 L_attn", "branch"))
    post = stamp("loop_end") + (stamp("rt_le") if OPT.bar_stamps else [])
    if OPT.trip_stamps:
        post += [valu(f"v_lshlrev_b32 v2, 2, v{V_LANE}", [], ["v2"]), salu(f"s_mul_i32 s{S_T1}, s2, 64"),
                 salu(f"s_add_u32 s{S_T1}, s{S_T1}, {STAMP_OFF + 256*64}"), salu(f"s_mov_b32 s{S_WS+2}, {STAMP_OFF + 2*256*64}"),
                 valu("v_cmp_gt_u32 vcc, 16, v0", ["v0"], ["vcc"]), salu(f"s_cmp_eq_u32 s{S_W}, 0"), raw("s_cselect_b64 s[50:51], vcc, 0", "salu"),
                 raw("s_mov_b64 s[54:55], exec", "salu"), raw("s_mov_b64 exec, s[50:51]", "salu"), raw("s_cbranch_execz L_notrip", "branch"),
                 raw(f"buffer_store_dword v1, v2, s[{S_WS}:{S_WS+3}], s{S_T1} offen", "salu"), wait_vm(0), label("L_notrip"), raw("s_mov_b64 exec, s[54:55]", "salu"), wait_vm(0)]
    def ex29(g, kb):
        if OPT.fused: place_vmem(g, 40, [], mode_load(), kb)
        gp = 50
        for j in OPT.wo_touch: gp = place_vmem(g, gp, [], wo_touch(j), kb) + 12
    post += wo_touch_setup()
    s, carried = attn_iter(29, carried, wait_tag("V30", "K32"), batch(28)[NCUR:4], [], adv=False,
                           extra=ex29)
    post += s
    def ex30(g, kb):
        put_wo(g, 1, 3, kb, step=8)
        if OPT.fused:
            k = 2
            for x in ring_scalars(): k = put_scalar(g, k, x) + 1
    s, carried = attn_iter(30, carried, wait_tag("V31"), [], [], adv=False, extra=ex30)
    post += s
    post += last_iter(carried)
    post += stamp("attn_end")
    if debug == "o":
        tailq = dump_regs(V_Q, 128)
    elif debug == "l":
        tailq = dump_regs(V_L, 4)
    else:
        common, loc, far = phase3()
        tailq = common
    post += tailq
    q = resolve_vm(pre, [])
    qexit = ["V30"] * 4 + ["K32"] * 4 + ["V31"] * NCUR
    qb_ = resolve_vm(post, qexit)
    if debug is None:
        resolve_vm(loc, qb_); resolve_vm(far, qb_)
        if far and not OPT.p3_drop: check(loop[1:] + post + far[1:], "loop+post+far", init_lgkm=[x.wr for x in pre if x.kind == "ds"][-8:], init_vm=[[]] * (8 + NCUR))
        post = post + loc
        OOL.extend(far)
    if not (OPT.p1_nowait or OPT.p1_noread or OPT.p1_drop or OPT.loop_nodma or OPT.loop_dma_every > 1 or OPT.loop_nods or OPT.loop_nomfma or OPT.loop_novalu): check(pre + loop[1:] + loop[1:], "pre+loop")
    if not (OPT.p3_drop or OPT.loop_nodma or OPT.loop_dma_every > 1 or OPT.loop_nods or OPT.loop_nomfma or OPT.loop_novalu): check(loop[1:] + post, "loop+post", init_lgkm=[x.wr for x in pre if x.kind == "ds"][-8:], init_vm=[[]] * (8 + NCUR))
    OOL.extend(safe_attn())
    if first_loop: check(pre + first_loop[1:] + first_loop[1:] + loop[1:], "pre+early+loop")
    return pre + first_loop + loop + post + stamp_out() + finish() + OOL

def reduce_kernel():
    o = []; a = o.append
    a(salu("s_cmp_ge_u32 s2, 256")); a(raw("s_cbranch_scc1 R_end", "branch"))
    a(salu("s_load_dwordx2 s[4:5], s[0:1], 80")); a(salu("s_load_dwordx2 s[6:7], s[0:1], 96"))
    a(valu("v_lshrrev_b32 v1, 6, v0", ["v0"], ["v1"])); a(valu("v_and_b32 v0, 63, v0", ["v0"], ["v0"]))
    a(valu("v_readfirstlane_b32 s32, v1", ["v1"], ["s32"]))
    a(salu("s_lshr_b32 s33, s2, 4")); a(salu("s_and_b32 s34, s2, 15"))
    a(salu("s_lshr_b32 s35, s33, 3")); a(salu("s_and_b32 s36, s33, 7"))
    a(salu("s_lshr_b32 s37, s32, 1")); a(salu("s_and_b32 s38, s32, 1"))
    a(valu("v_lshrrev_b32 v2, 5, v0", ["v0"], ["v2"])); a(valu("v_lshlrev_b32 v2, 11, v2", ["v2"], ["v2"]))
    a(valu("v_and_b32 v3, 31, v0", ["v0"], ["v3"])); a(valu("v_lshl_add_u32 v2, v3, 4, v2", ["v3", "v2"], ["v2"]))
    a(salu("s_lshl_b32 s39, s37, 10")); a(salu("s_lshl_b32 s40, s38, 9")); a(salu("s_add_u32 s39, s39, s40"))
    a(valu("v_add_u32 v2, s39, v2", ["v2"], ["v2"]))
    a(valu("v_and_b32 v8, 15, v0", ["v0"], ["v8"])); a(valu("v_lshrrev_b32 v9, 4, v0", ["v0"], ["v9"]))
    a(valu("v_lshrrev_b32 v10, 3, v8", ["v8"], ["v10"])); a(valu("v_and_b32 v11, 1, v9", ["v9"], ["v11"]))
    a(valu("v_and_b32 v12, 1, v8", ["v8"], ["v12"])); a(valu("v_lshlrev_b32 v12, 4, v12", ["v12"], ["v12"]))
    a(valu("v_mov_b32 v13, 0x3f80", [], ["v13"])); a(valu("v_lshlrev_b32 v13, v12, v13", ["v12", "v13"], ["v13"]))
    a(valu("v_cmp_eq_u32 vcc, v10, v11", ["v10", "v11"], ["vcc"])); a(nop(1))
    a(valu("v_cndmask_b32 v13, 0, v13, vcc", ["v13", "vcc"], ["v13"]))
    a(valu("v_bfe_u32 v14, v8, 1, 2", ["v8"], ["v14"]))
    for r in range(4):
        a(valu(f"v_cmp_eq_u32 vcc, {r}, v14", ["v14"], ["vcc"])); a(nop(1))
        a(valu(f"v_cndmask_b32 v{4+r}, 0, v13, vcc", ["v13", "vcc"], [f"v{4+r}"]))
    a(salu("s_lshl_b32 s41, s36, 8")); a(salu("s_lshl_b32 s42, s34, 4")); a(salu("s_add_u32 s41, s41, s42"))
    a(valu("v_add_u32 v3, s41, v8", ["v8"], ["v3"])); a(valu("v_mul_u32_u24 v3, 896, v3", ["v3"], ["v3"]))
    a(salu("s_mul_i32 s42, s35, 448")); a(salu("s_lshl_b32 s43, s37, 5")); a(salu("s_add_u32 s42, s42, s43"))
    a(salu("s_lshl_b32 s43, s38, 3")); a(salu("s_add_u32 s42, s42, s43"))
    a(valu("v_add_u32 v3, s42, v3", ["v3"], ["v3"]))
    a(valu("v_lshl_add_u32 v3, v11, 4, v3", ["v11", "v3"], ["v3"]))
    a(valu("v_lshrrev_b32 v10, 1, v9", ["v9"], ["v10"])); a(valu("v_lshl_add_u32 v3, v10, 2, v3", ["v10", "v3"], ["v3"]))
    a(valu("v_lshlrev_b32 v3, 1, v3", ["v3"], ["v3"]))
    a(raw("s_waitcnt lgkmcnt(0)", "wait", lgkm=0))
    for base, lo, size in ((8, 6, 16 * 7 * 16 * 16 * 2048), (12, 4, 8 * 256 * 896 * 2)):
        a(salu(f"s_mov_b32 s{base}, s{lo}")); a(salu(f"s_mov_b32 s{base+1}, s{lo+1}"))
        a(salu(f"s_mov_b32 s{base+2}, {size}")); a(salu(f"s_mov_b32 s{base+3}, 0x20000"))
    a(salu(f"s_mul_i32 s44, s33, {7*16*32768}")); a(salu("s_lshl_b32 s45, s34, 15")); a(salu("s_add_u32 s44, s44, s45"))
    for j in range(7):
        for i in range(8):
            a(salu(f"s_add_u32 s46, s44, {j*16*32768 + i*4096}"))
            a(tag(bload(16 + (j * 8 + i) * 4, 4, 2, 8, "s46", 0), f"p{j}"))
    for j in range(7):
        a(wait_tag(f"p{j}"))
        d = 240 + 4 * (j & 1)
        for i in range(8):
            a(mfma("v", d, "v", 4, "v", 16 + (j * 8 + i) * 4, None if i == 0 else "v", None if i == 0 else d))
        a(nop(7))
        a(valu(f"v_cvt_pk_bf16_f32 v{d}, v{d}, v{d+1}", [f"v{d}", f"v{d+1}"], [f"v{d}"]))
        a(valu(f"v_cvt_pk_bf16_f32 v{d+1}, v{d+2}, v{d+3}", [f"v{d+2}", f"v{d+3}"], [f"v{d+1}"]))
        a(tag(bstore(d, 2, 3, 12, "0", j * 128), "o"))
    resolve_vm(o, []); check(o, "reduce")
    if OPT.stamps and OPT.stamp_fwd >= 0:
        o += [wait_vm(0), salu("s_cmp_lg_u32 s2, 0"), raw("s_cbranch_scc1 R_end", "branch"),
              salu("s_load_dwordx2 s[20:21], s[0:1], 88"), raw("s_waitcnt lgkmcnt(0)", "wait", lgkm=0),
              salu("s_mov_b32 s16, s20"), salu("s_mov_b32 s17, s21"), salu("s_mov_b32 s18, 64"), salu("s_mov_b32 s19, 0x20000"),
              salu(f"s_mov_b32 s10, {16*7*16*16*2048 + 256*64}"), salu(f"s_mov_b32 s46, {16*7*16*16*2048} + 64*{OPT.stamp_fwd}"),
              valu("v_lshlrev_b32 v2, 2, v0", ["v0"], ["v2"]), bload(3, 1, 2, 8, "s46", 0), wait_vm(0), bstore(3, 1, 2, 16, "0", 0)]
    o += [wait_vm(0), label("R_end"), raw("s_endpgm", "branch")]
    return o

KD = """.section .rodata,"a"
.p2align 6
.amdhsa_kernel {name}
  .amdhsa_next_free_vgpr {vgpr}
  .amdhsa_next_free_sgpr 102
  .amdhsa_accum_offset 256
  .amdhsa_group_segment_fixed_size 0
  .amdhsa_kernarg_size 104
  .amdhsa_user_sgpr_count 2
  .amdhsa_user_sgpr_kernarg_segment_ptr 1
  .amdhsa_system_sgpr_workgroup_id_x 1
.end_amdhsa_kernel
"""
def header_comments():
    ref = open("cdna_kernels/" + NAME + ".s.ref").read().splitlines()
    out = []
    for l in ref:
        if l.startswith("; Override launch") or not l.startswith(";"): break
        out.append(l)
    return out

def stream_kernel():
    t = """
  s_cmp_ge_u32 s2, 256
  s_cbranch_scc1 S_end
  s_load_dwordx2 s[4:5], s[0:1], 8
  s_load_dwordx2 s[6:7], s[0:1], 96
  s_load_dwordx2 s[8:9], s[0:1], 48
  v_lshrrev_b32 v2, 6, v0
  s_nop 0
  v_readfirstlane_b32 s24, v2
  v_and_b32 v1, 63, v0
  v_lshlrev_b32 v14, 4, v1
  s_nop 2
  s_lshl_b32 s25, s24, 12
  v_add_u32 v14, s25, v14
  s_waitcnt lgkmcnt(0)
  s_cmp_lt_u32 s2, 128
  s_cselect_b32 s36, s4, s8
  s_cselect_b32 s37, s5, s9
  s_mov_b32 s38, 0x4000000
  s_mov_b32 s39, 0x20000
  s_and_b32 s32, s2, 127
  s_lshl_b32 s32, s32, 19
  s_barrier
  s_memrealtime s[12:13]
  s_mov_b32 s20, 0
S_loop:
  s_mov_b32 m0, s25
  s_nop 0
  buffer_load_dwordx4 v14, s[36:39], s32 offen nt lds
  buffer_load_dwordx4 v14, s[36:39], s32 offen offset:1024 nt lds
  buffer_load_dwordx4 v14, s[36:39], s32 offen offset:2048 nt lds
  buffer_load_dwordx4 v14, s[36:39], s32 offen offset:3072 nt lds
  s_add_u32 s32, s32, 16384
  s_waitcnt vmcnt(8)
  s_barrier
  s_add_u32 s20, s20, 1
  s_cmp_lt_u32 s20, 32
  s_cbranch_scc1 S_loop
  s_waitcnt vmcnt(0)
  s_barrier
  s_memrealtime s[16:17]
  s_waitcnt lgkmcnt(0)
  s_sub_u32 s16, s16, s12
  s_mov_b32 s40, s6
  s_mov_b32 s41, s7
  s_mov_b32 s42, %d
  s_mov_b32 s43, 0x20000
  s_mul_i32 s33, s2, 64
  s_add_u32 s33, s33, %d
  v_mov_b32 v2, s16
  v_mov_b32 v1, 0
  buffer_store_dword v2, v1, s[40:43], s33 offen
  s_waitcnt vmcnt(0)
S_end:
  s_endpgm""" % (16*7*16*16*2048 + 256*64, 16*7*16*16*2048 + 60)
    return t

def assemble_file(debug=None):
    main = build(debug)
    red = reduce_kernel()
    k1 = NAME + "_kernel"; k2 = "reduce_heads_kernel"
    L = header_comments()
    if OPT.stream0: L.append(f"; @launch kernel=stream_test_kernel grid=(256,1,1) block=(256,1,1) lds={LDS_BYTES}")
    if OPT.fused and not OPT.stream0:
        L.append(f"; @launch grid=(256,1,1) block=(256,1,1) lds={LDS_BYTES}")
    else:
        L.append(f"; @launch kernel={k1} grid=(256,1,1) block=(256,1,1) lds={LDS_BYTES}")
        if debug is None and not OPT.fused: L.append(f"; @launch kernel={k2} grid=(256,1,1) block=(256,1,1) lds=0")
    L.append('.amdgcn_target "amdgcn-amd-amdhsa--gfx950"')
    L.append(".text")
    for nm, body in ((k1, main), (k2, red)) if not OPT.fused else ((k1, main),):
        L += [f".globl {nm}", ".p2align 8", f".type {nm},@function", f"{nm}:", text(body)]
    if OPT.stream0: L += [".globl stream_test_kernel", ".p2align 8", ".type stream_test_kernel,@function", "stream_test_kernel:", stream_kernel()]
    L.append(KD.format(name=k1, vgpr=512))
    if not OPT.fused: L.append(KD.format(name=k2, vgpr=256))
    if OPT.stream0: L.append(KD.format(name="stream_test_kernel", vgpr=512))
    return "\n".join(L) + "\n"

if __name__ == "__main__":
    dbg = sys.argv[2] if len(sys.argv) > 2 and sys.argv[2] != "none" else None
    for kv in sys.argv[3:]:
        k, v = kv.split("=")
        v = v.replace("+", " ")
        setattr(OPT, k, {"True": True, "False": False, "()": ()}.get(v, int(v) if v.lstrip("-").isdigit() else (eval(v) if v.startswith("(") else v)))
    open(sys.argv[1], "w").write(assemble_file(dbg))
    print("stamps:", STAMPS)
```

```python
import math, struct, sys
from core import *

NAME = "concat_heads__mha_block_cached__mha_block_cached__near_ridge"
def f32bits(x): return struct.unpack("<I", struct.pack("<f", x))[0]
CSC = math.log2(math.e) / 16.0

S_X, S_WQ, S_K, S_V, S_WO, S_WS, S_OUT = 4, 8, 12, 16, 20, 24, 28
S_W, S_W1K = 32, 33
S_QB = ["0", "s34", "s35", "s62"]
S_C = 63
S_KOFF, S_VOFF = 64, 65
S_LOOP = 66
S_T0, S_T1, S_T2, S_T3 = 67, 68, 69, 70
S_G, S_H, S_B, S_BR = 71, 72, 73, 74
S_WOFF = 76
S_PART = 77
S_WCUR, S_WSTEP, S_XSTEP = 78, 79, 75
S_FL, S_DBG = 36, 40
S_LOCM = 44
S_RBASE, S_SIG, S_POLL, S_XCC = 46, 47, 48, 49
S_RG = 56
S_SPIN = 62
S_SAFE = 3
S_ROT = 52
S_PFO = 53
S_RST, S_RLD, S_FPW, S_FPR, S_FCW, S_FCR = 60, 61, 75, 78, 79, 76
S_STAMP = 80
V_LANE = 0
V_KA = [4, 5]
V_VA = [6, 7, 8, 9]
V_DK, V_DV = 10, 11
V_L = 12
V_MC = 16
V_SP = 20
V_POOL = 32
V_S = 64
V_P = 96
V_Q = 128
V_XA = 20; V_DW = 21; V_WA = [[22, 23], [24, 25], [26, 27]]
V_CT = 28
V_ARR = 24
L_K = 0; L_V = 65536; L_X = 131072
def kslot(t): return L_K + 16384 * (t % 4)
def vslot(t): return L_V + 16384 * (t % 4)
LDS_BYTES = 163840
L_VOTE = L_V + 2 * 16384
L_LIMIT = 2.0 ** 30

PART_BYTES = 16 * 7 * 16 * 16 * 2048
FLAG_BYTES = 16 * 7 * 4 * 64
STAMP_OFF = PART_BYTES + 32768
RING_OFF = PART_BYTES + (1 << 20)
RING_BYTES = 32 << 20
CONS_OFF = 16384
SPIN_MAX = 1 << 19
class Opt:
    kv_flags = "nt"
    w_flags = ""
    x_flags = ""
    wo_flags = ""
    st_flags = ""
    stamps = False
    remap = 0
    tail2 = True
    tmpl = 0
    wo_stage = False
    p3_tiles = False
    early_trips = 0
    vfirst_early = 37
    loop_exit = 0
    xwarm = False
    kvmin = False
    vfirst = 0
    dma_stamps = False
    rot = 0
    pad_iter = 0
    last_st = ''
    out_flags = ''
    coopw = False
    coopw_init = 2
    pf_flags = ''
    early_wb = 0
    wt_flags = ''
    prod_delay = 0
    ring = 4
    vm_space = 0
    p3_drop = ''
    wo_step = 13
    cons_chk = 22
    wo_touch = (4, 5, 6)
    red_m = 200
    cons_poll = 50
    ld_min = 16
    stamp_skip = 'p1_first_data,pre_iter_end'
    p3detail = -1
    st_lag = 21
    force_fallback = False
    red_at = 60
    sig_lag = 28
    poll_lag = 22
    chk_lag = 22
    fused = True
    stream0 = False
    loop_nods = False
    loop_nomfma = False
    loop_novalu = False
    loop_nodma = False
    loop_dma_every = 1
    bar_stamps = False
    trip_stamps = False
    dma_mode = 'spread'
    dma_gaps = ([5, 21, 37, 53, 69, 85], [101, 117])
    nv_prev = 2
    stamp_fwd = -1
    stamp_dbg = -1
    x_rd_gap0 = 65
    x_rd_gap = 33
    p1_steps = False
    p1_drop = ''
    rev = True
    init_w = 2
    early_step = 2
    x_gap = 60
    p1_nowait = False
    p1_noread = False
    wring = 3
    kvpf = 'early'
    coopx = False
    init_more = 0
OPT = Opt()

def wait_tag(*tags): return I("s_waitcnt vmcnt(?)", "wait", vmtags=list(tags))
def tag(ins, t):
    ins.meta["tag"] = t; return ins
def resolve_vm(stream, queue):
    q = list(queue)
    for ins in stream:
        if ins.kind in ("dma", "vld", "vst"):
            q.append(ins.meta.get("tag", "?"))
        elif ins.kind == "wait":
            if "vmtags" in ins.meta:
                idx = [n for n, t in enumerate(q) if t in ins.meta["vmtags"]]
                n = len(q) - 1 - max(idx) if idx else len(q)
                n = min(n, 63)
                ins.text = f"s_waitcnt vmcnt({n})"; ins.meta["vm"] = n
            if "vm" in ins.meta:
                n = ins.meta["vm"]
                if len(q) > n: q = q[len(q) - n:] if n else []
    return q

_stamp_n = [0]
def stamp(name):
    if not OPT.stamps: return []
    if OPT.dma_stamps:
        if name == "loop_start": return [raw("s_memtime s[100:101]", "salu"), raw("s_waitcnt lgkmcnt(0)", "wait", lgkm=0)]
        if name == "loop_end": return [raw("s_memtime s[76:77]", "salu"), raw("s_waitcnt lgkmcnt(0)", "wait", lgkm=0), salu("s_sub_u32 s100, s76, s100")]
        return []
    if OPT.stamp_skip and name in OPT.stamp_skip.split(","): return []
    if OPT.p3detail >= 0 and not name.startswith("d_") and name not in ("rt_end",): return []
    if OPT.bar_stamps and name not in ("rt_ls", "rt_le", "loop_start", "loop_end", "rt_end"): return []
    n = _stamp_n[0]; _stamp_n[0] += 1
    STAMPS.append(name)
    op = "s_memrealtime" if name.startswith("rt") else "s_memtime"
    return [raw(f"{op} s[{S_STAMP+2*n}:{S_STAMP+2*n+1}]", "salu")]
STAMPS = []

def m0_set(base): return salu(f"s_add_u32 m0, s{S_W1K}, {base}", [f"s{S_W1K}"], ["m0"])

def dma_tile(kind, slot_base, soff, tg):
    voff, srd, fl = {"K": (V_DK, S_K, OPT.kv_flags), "V": (V_DV, S_V, OPT.kv_flags), "W": (V_DW, S_WQ, OPT.w_flags)}[kind]
    return [(m0_set(slot_base + dc * 3968), tag(dma(voff, srd, soff, dc * 128, fl), tg)) for dc in range(4)]

def setup():
    o = []; a = o.append
    a(salu("s_cmp_ge_u32 s2, 256")); a(raw("s_cbranch_scc1 L_end", "branch"))
    o += stamp("rt_start") + stamp("start")
    if OPT.remap:
        a(salu("s_lshr_b32 s4, s2, 3")); a(salu("s_add_u32 s4, s4, s2")); a(salu("s_and_b32 s4, s4, 7"))
        a(salu("s_andn2_b32 s5, s2, 7")); a(salu("s_or_b32 s4, s4, s5"))
        if OPT.remap == 2: a(salu("s_cmp_ge_u32 s2, 128")); a(salu("s_cselect_b32 s2, s4, s2"))
        else: a(salu("s_mov_b32 s2, s4"))
    a(valu("v_lshrrev_b32 v1, 6, v0", ["v0"], ["v1"]))
    a(valu(f"v_and_b32 v{V_LANE}, 63, v0", ["v0"], ["v0"]))
    a(salu(f"s_mov_b32 s{S_SAFE}, 0"))
    a(valu(f"v_readfirstlane_b32 s{S_W}, v1", ["v1"], [f"s{S_W}"]))
    a(label("L_again"))
    a(salu("s_load_dwordx16 s[36:51], s[0:1], 0")); a(salu("s_load_dwordx8 s[52:59], s[0:1], 64"))
    a(salu("s_load_dwordx2 s[60:61], s[0:1], 96"))
    a(nop(3))
    a(salu(f"s_and_b32 s{S_T0}, s2, 7")); a(salu(f"s_lshr_b32 s{S_T1}, s2, 3"))
    a(salu(f"s_and_b32 s{S_H}, s{S_T1}, 15")); a(salu(f"s_lshr_b32 s{S_T1}, s{S_T1}, 4"))
    a(salu(f"s_lshl_b32 s{S_G}, s{S_T0}, 1")); a(salu(f"s_add_u32 s{S_G}, s{S_G}, s{S_T1}"))
    a(salu(f"s_lshr_b32 s{S_BR}, s{S_G}, 3")); a(salu(f"s_and_b32 s{S_B}, s{S_G}, 7"))
    a(salu(f"s_lshl_b32 s{S_W1K}, s{S_W}, 10"))
    if OPT.rot:
        a(salu(f"s_and_b32 s{S_T0}, s2, 7")); a(salu(f"s_mul_i32 s{S_T0}, s{S_T0}, {OPT.rot}")); a(salu(f"s_lshr_b32 s{S_T1}, s2, 3"))
        a(salu(f"s_add_u32 s{S_T0}, s{S_T0}, s{S_T1}")); a(salu(f"s_and_b32 s{S_T0}, s{S_T0}, 31")); a(salu(f"s_lshl_b32 s33, s{S_T0}, 14") if False else salu(f"s_lshl_b32 s{S_T3}, s{S_T0}, 14"))
    a(salu(f"s_mov_b32 s{S_C}, 0x{f32bits(CSC):08x}"))
    L = f"v{V_LANE}"
    def vv(t, rd, wr): a(valu(t, rd, wr))
    vv(f"v_and_b32 v1, 15, {L}", [L], ["v1"]); vv(f"v_lshrrev_b32 v2, 4, {L}", [L], ["v2"])
    vv("v_lshrrev_b32 v3, 1, v1", ["v1"], ["v3"])
    for sp in range(2):
        r = V_KA[sp]
        vv(f"v_add_u32 v{r}, {4*sp}, v2", ["v2"], [f"v{r}"])
        vv(f"v_xor_b32 v{r}, v{r}, v3", [f"v{r}", "v3"], [f"v{r}"])
        vv(f"v_lshlrev_b32 v{r}, 4, v{r}", [f"v{r}"], [f"v{r}"])
        vv(f"v_lshl_add_u32 v{r}, v1, 7, v{r}", ["v1", f"v{r}"], [f"v{r}"])
    vv(f"v_lshrrev_b32 v1, 3, {L}", [L], ["v1"]); vv(f"v_and_b32 v2, 7, {L}", [L], ["v2"])
    vv(f"v_lshl_add_u32 v3, s{S_W}, 3, v1", ["v1", f"s{S_W}"], ["v3"])
    vv("v_bfe_u32 v28, v3, 1, 1", ["v3"], ["v28"]); vv("v_lshlrev_b32 v28, 2, v28", ["v28"], ["v28"])
    vv("v_xor_b32 v28, v28, v2", ["v28", "v2"], ["v28"]); vv("v_lshlrev_b32 v28, 4, v28", ["v28"], ["v28"])
    vv(f"v_lshl_add_u32 v{V_DW}, v3, 13, v28", ["v3", "v28"], [f"v{V_DW}"])
    a(raw("s_waitcnt lgkmcnt(0)", "wait", lgkm=0))
    a(salu(f"s_cmp_eq_u32 s{S_BR}, 0"))
    for i in range(10): a(salu(f"s_cselect_b32 s{36+i}, s{36+i}, s{46+i}"))
    if OPT.rot: a(salu(f"s_mov_b32 s{S_ROT}, s{S_T3}"))
    def srd(base, lo, hi, offs, size):
        if offs is None:
            a(salu(f"s_mov_b32 s{base}, s{lo}")); a(salu(f"s_mov_b32 s{base+1}, s{hi}"))
        else:
            a(salu(f"s_add_u32 s{base}, s{lo}, {offs}")); a(salu(f"s_addc_u32 s{base+1}, s{hi}, 0"))
        a(salu(f"s_mov_b32 s{base+2}, {size}")); a(salu(f"s_mov_b32 s{base+3}, 0x20000"))
    a(salu(f"s_mul_i32 s{S_T0}, s{S_B}, 229376")); srd(S_X, 36, 37, f"s{S_T0}", 229376)
    a(salu(f"s_lshl_b32 s{S_T0}, s{S_H}, 9")); srd(S_WQ, 42, 43, f"s{S_T0}", 0)
    a(salu(f"s_sub_u32 s{S_WQ+2}, {448*8192}, s{S_T0}"))
    return o

def setup_b():
    o = []; a = o.append
    L = f"v{V_LANE}"
    def vv(t, rd, wr): a(valu(t, rd, wr))
    vv(f"v_lshrrev_b32 v2, 4, {L}", [L], ["v2"])
    vv(f"v_bfe_u32 v28, {L}, 2, 2", [L], ["v28"]); vv(f"v_and_b32 v29, 3, {L}", [L], ["v29"])
    vv("v_lshl_add_u32 v30, v2, 2, v28", ["v2", "v28"], ["v30"])
    vv("v_bfe_u32 v31, v30, 1, 2", ["v30"], ["v31"])
    for p in range(4):
        r = V_VA[p]
        vv(f"v_xor_b32 v{r}, {p}, v31", ["v31"], [f"v{r}"])
        vv(f"v_lshlrev_b32 v{r}, 5, v{r}", [f"v{r}"], [f"v{r}"])
        vv(f"v_lshl_add_u32 v{r}, v30, 7, v{r}", ["v30", f"v{r}"], [f"v{r}"])
        vv(f"v_lshl_add_u32 v{r}, v29, 3, v{r}", ["v29", f"v{r}"], [f"v{r}"])
        vv(f"v_add_u32 v{r}, {L_V}, v{r}", [f"v{r}"], [f"v{r}"])
    vv("v_lshl_add_u32 v30, v2, 3, v28", ["v2", "v28"], ["v30"])
    vv("v_lshrrev_b32 v31, 1, v28", ["v28"], ["v31"])
    for sp in range(2):
        r = V_WA[0][sp]
        vv(f"v_xor_b32 v{r}, {sp}, v31", ["v31"], [f"v{r}"])
        vv(f"v_lshl_add_u32 v{r}, v{r}, 2, v29", [f"v{r}", "v29"], [f"v{r}"])
        vv(f"v_lshlrev_b32 v{r}, 4, v{r}", [f"v{r}"], [f"v{r}"])
        vv(f"v_lshl_add_u32 v{r}, v30, 7, v{r}", ["v30", f"v{r}"], [f"v{r}"])
        for win in (1, 2):
            vv(f"v_add_u32 v{V_WA[win][sp]}, {65536*win}, v{r}", [f"v{r}"], [f"v{V_WA[win][sp]}"])
    vv(f"v_lshrrev_b32 v1, 3, {L}", [L], ["v1"]); vv(f"v_and_b32 v2, 7, {L}", [L], ["v2"])
    vv(f"v_lshl_add_u32 v3, s{S_W}, 3, v1", ["v1", f"s{S_W}"], ["v3"])
    vv("v_bfe_u32 v28, v3, 1, 3", ["v3"], ["v28"]); vv("v_xor_b32 v28, v28, v2", ["v28", "v2"], ["v28"])
    vv("v_lshlrev_b32 v28, 4, v28", ["v28"], ["v28"]); vv(f"v_lshl_add_u32 v{V_DK}, v3, 9, v28", ["v3", "v28"], [f"v{V_DK}"])
    vv("v_bfe_u32 v28, v3, 1, 2", ["v3"], ["v28"]); vv("v_lshlrev_b32 v28, 1, v28", ["v28"], ["v28"])
    vv("v_xor_b32 v28, v28, v2", ["v28", "v2"], ["v28"]); vv("v_lshlrev_b32 v28, 4, v28", ["v28"], ["v28"])
    vv(f"v_lshl_add_u32 v{V_DV}, v3, 9, v28", ["v3", "v28"], [f"v{V_DV}"])
    def srd(base, lo, hi, offs, size):
        if offs is None:
            a(salu(f"s_mov_b32 s{base}, s{lo}")); a(salu(f"s_mov_b32 s{base+1}, s{hi}"))
        else:
            a(salu(f"s_add_u32 s{base}, s{lo}, {offs}")); a(salu(f"s_addc_u32 s{base+1}, s{hi}, 0"))
        a(salu(f"s_mov_b32 s{base+2}, {size}")); a(salu(f"s_mov_b32 s{base+3}, 0x20000"))
    a(salu(f"s_lshl_b32 s{S_T0}, s{S_B}, 4")); a(salu(f"s_add_u32 s{S_T0}, s{S_T0}, s{S_H}"))
    a(salu(f"s_lshl_b32 s{S_T0}, s{S_T0}, 19"))
    srd(S_K, 38, 39, f"s{S_T0}", 524288); srd(S_V, 40, 41, f"s{S_T0}", 524288)
    a(salu(f"s_mul_i32 s{S_T0}, s{S_H}, 229376")); srd(S_WO, 44, 45, f"s{S_T0}", 229376)
    srd(S_WS, 60, 61, None, 16 * 7 * 16 * 16 * 2048)
    srd(S_OUT, 56, 57, None, 8 * 256 * 896 * 2)
    if OPT.fused:
        srd(S_DBG, 58, 59, None, 256)
        a(salu(f"s_mov_b32 s{S_T0}, {PART_BYTES}")); srd(S_FL, 60, 61, f"s{S_T0}", 32768)
        a(salu(f"s_mov_b32 s{S_T0}, {RING_OFF}")); a(salu(f"s_add_u32 s54, s60, s{S_T0}")); a(salu("s_addc_u32 s55, s61, 0"))
        a(salu(f"s_mov_b32 s{S_RG}, s54")); a(salu(f"s_mov_b32 s{S_RG+1}, s55")); a(salu(f"s_mov_b32 s{S_RG+2}, {RING_BYTES}")); a(salu(f"s_mov_b32 s{S_RG+3}, 0x20000"))
        a(salu(f"s_getreg_b32 s{S_XCC}, hwreg(HW_REG_XCC_ID, 0, 3)"))
        a(salu(f"s_lshl_b32 s{S_SIG}, s{S_G}, 4")); a(salu(f"s_add_u32 s{S_SIG}, s{S_SIG}, s{S_H}"))
        a(salu(f"s_mul_i32 s{S_T0}, s{S_G}, {14*64}"))
        a(salu(f"s_lshl_b32 s{S_T1}, s{S_W}, 4")); a(salu(f"s_add_u32 s{S_T1}, s{S_T1}, s{S_H}")); a(salu(f"s_add_u32 s50, s{S_T0}, s{S_T1}"))
        a(salu(f"s_lshl_b32 s{S_T1}, s{S_H}, 2")); a(salu(f"s_add_u32 s{S_T1}, s{S_T1}, s{S_W}")); a(salu(f"s_add_u32 s51, s{S_T0}, s{S_T1}"))
        a(salu(f"s_add_u32 s51, s51, {CONS_OFF}"))
        a(valu(f"v_min_u32 v1, 13, v{V_LANE}", [f"v{V_LANE}"], ["v1"])); a(valu("v_lshlrev_b32 v1, 6, v1", ["v1"], ["v1"]))
        a(valu("v_mov_b32 v2, 0", [], ["v2"]))
        for sr in ("s50", "s51"):
            a(tag(I(f"buffer_store_byte v2, v1, s[{S_FL}:{S_FL+3}], {sr} offen", "vst", ["v1", "v2"], data=["v2"]), "reset"))
    return o

def add_lgkm_waits(g, cons, carried):
    seq = [(-1, regs) for regs in carried]
    for k in range(g.n):
        if g.mem[k] is not None and g.mem[k].kind == "ds": seq.append((k, g.mem[k].wr))
    lead = None
    for k, regs in cons:
        late = [n for n, (gap, w) in enumerate(seq) if gap == k - 1 and gap >= 0 and set(w) & set(regs)]
        assert not late, f"DS for MFMA {k} issued in gap {k-1}"
        idx = [n for n, (gap, w) in enumerate(seq) if gap < max(k - 1, 0) and set(w) & set(regs)]
        if not idx: continue
        last = max(idx)
        after = sum(1 for n, (gap, w) in enumerate(seq) if n > last and gap < max(k - 1, 0))
        assert after <= 15, (k, after)
        if k == 0: lead = wait_lgkm(after)
        else: g.pre[k - 1].insert(0, wait_lgkm(after))
    out = len(carried)
    if lead is not None: out = min(out, lead.meta["lgkm"])
    for k in range(g.n):
        for x in g.pre[k]:
            if "lgkm" in x.meta: out = min(out, x.meta["lgkm"])
        if g.mem[k] is not None and g.mem[k].kind == "ds":
            if out >= 14:
                g.pre[k].insert(0, wait_lgkm(8)); out = 8
            out += 1
    return lead

def place_vmem(g, gap, scalars, d, hi=None, stack=False, space=False):
    k = max(gap, 1 if stack else len(scalars))
    hi = g.n if hi is None else hi
    isdma = lambda x: x is not None and x.kind == "dma"
    while True:
        assert k < hi, f"no gap for {d.text}"
        near = OPT.vm_space and any(0 <= k + dd < g.n and dd != 0 and g.mem[k + dd] is not None and g.mem[k + dd].kind in ("vst", "vld", "dma")
                                    for dd in range(-OPT.vm_space, OPT.vm_space + 1))
        if g.mem[k] is None and not g.vec[k] and len(g.pre[k]) <= 1 and not (near and space):
            if stack:
                if not isdma(g.mem[k - 1]) and len(g.pre[k - 1]) + len(scalars) <= 3 and not any(x.kind == "barrier" for x in g.pre[k - 1]): break
            elif all(not g.pre[k - 1 - n] and not isdma(g.mem[k - 1 - n]) for n in range(len(scalars))): break
        k += 1
    if stack:
        for sc in scalars: g.put_pre(k - 1, sc)
    else:
        for n, sc in enumerate(scalars): g.put_pre(k - len(scalars) + n, sc)
    g.put_mem(k, d)
    return k

def put_scalar(g, gap, *ins):
    k = gap
    while g.pre[k]: k += 1
    g.pre[k] = list(ins)
    return k

def place_chain(g, ops, lo, hi):
    left = []
    for ins in ops:
        k = g.place_vec(ins, lo, hi) if (not left and lo < hi) else None
        if k is None: left.append(ins)
        else: lo = k + 1 if ins.kind == "trans" else k
    return lo, left

class Op:
    def __init__(self, ins, rel, dl, preds=()):
        self.ins = ins; self.rel = rel; self.dl = dl; self.preds = list(preds); self.gap = None

def list_schedule(g, ops, lo=0, hi=None):
    hi = g.n if hi is None else hi
    todo = list(ops)
    for k in range(lo, hi):
        while True:
            free = g.free_vec(k)
            if free <= 0: break
            ready = [x for x in todo if x.rel <= k and all(p.gap is not None and p.gap + d <= k for p, d in x.preds)]
            tr = [x for x in ready if x.ins.kind == "trans"]
            pl = [x for x in ready if x.ins.kind != "trans"]
            pick = None
            can_tr = free == 2 and g.mem[k] is None and not g.vec[k]
            if can_tr and tr: pick = min(tr, key=lambda x: x.dl)
            if pl:
                best = min(pl, key=lambda x: x.dl)
                if pick is None or (best.dl + 6 < pick.dl): pick = best
            if pick is None: break
            g.vec[k].append(pick.ins); pick.gap = k; todo.remove(pick)
    late = [x for x in ops if x.gap is not None and x.gap > x.dl]
    assert not late, [(x.ins.text, x.gap, x.dl) for x in late]
    return todo

def sm_ops(tile, kb, qb, rel, dl):
    i = sm_group(tile, kb, qb)
    f = [Op(i[0], rel, dl - 6), Op(i[1], rel, dl - 6), Op(i[4], rel, dl - 5), Op(i[5], rel, dl - 5)]
    x = [Op(i[2], rel, dl - 4, [(f[0], 1)]), Op(i[3], rel, dl - 4, [(f[1], 1)]), Op(i[6], rel, dl - 3, [(f[2], 1)]), Op(i[7], rel, dl - 3, [(f[3], 1)])]
    ad = [Op(i[8], rel, dl, [(x[0], 1)]), Op(i[9], rel, dl, [(x[1], 1)]), Op(i[11], rel, dl, [(x[2], 1)]), Op(i[12], rel, dl, [(x[3], 1)])]
    cv = [Op(i[10], rel, dl, [(x[0], 1), (x[1], 1)]), Op(i[13], rel, dl, [(x[2], 1), (x[3], 1)])]
    return f + x + ad + cv

def exposed(ops):
    o = []
    for n, ins in enumerate(ops):
        o.append(ins)
        if ins.kind == "trans" and n + 1 < len(ops) and ops[n + 1].kind != "trans": o.append(nop(0))
    return o

def conv_ops(acc, d, t):
    return [valu(f"v_accvgpr_read_b32 v{d}, a{acc}", [f"a{acc}"], [f"v{d}"]),
            valu(f"v_accvgpr_read_b32 v{t}, a{acc+1}", [f"a{acc+1}"], [f"v{t}"]),
            valu(f"v_accvgpr_read_b32 v{d+1}, a{acc+2}", [f"a{acc+2}"], [f"v{d+1}"]),
            valu(f"v_accvgpr_read_b32 v{t+1}, a{acc+3}", [f"a{acc+3}"], [f"v{t+1}"]),
            valu(f"v_cvt_pk_bf16_f32 v{d}, v{d}, v{t}", [f"v{d}", f"v{t}"], [f"v{d}"]),
            valu(f"v_cvt_pk_bf16_f32 v{d+1}, v{d+1}, v{t+1}", [f"v{d+1}", f"v{t+1}"], [f"v{d+1}"])]

def xlane_reduce(regs, op, tmp):
    o = []
    for swap in ("v_permlane32_swap_b32", "v_permlane16_swap_b32"):
        for n, r in enumerate(regs): o.append(valu(f"v_mov_b32 v{tmp+n}, v{r}", [f"v{r}"], [f"v{tmp+n}"]))
        o.append(nop(1))
        for n, r in enumerate(regs):
            o.append(valu(f"{swap} v{r}, v{tmp+n}", [f"v{r}", f"v{tmp+n}"], [f"v{r}", f"v{tmp+n}"]))
        o.append(nop(1))
        for n, r in enumerate(regs):
            o.append(valu(f"{op} v{r}, v{r}, v{tmp+n}", [f"v{r}", f"v{tmp+n}"], [f"v{r}"]))
    return o

def wpairs(): return [(L_X, L_X + 16384), (vslot(1), kslot(3)), (vslot(2), vslot(3))]
def wslot(tile):
    p = wpairs(); return p[(tile // 2) % len(p)][tile % 2]
XBUF = [V_S, V_P]
def xfrag(qb, cs): return XBUF[(cs // 2) & 1] + ((cs % 2) * 4 + qb) * 4
V_XD = [128, 129]
V_XR = [130, 131]
S_XB = 34
S_XCUR = 35
def x_setup():
    o = []; a = o.append
    L = f"v{V_LANE}"
    a(salu(f"s_and_b32 s{S_T1}, s{S_W}, 1")); a(salu(f"s_lshl_b32 s{S_T1}, s{S_T1}, 13"))
    a(salu(f"s_cmp_lt_u32 s{S_W}, 2")); a(salu(f"s_cselect_b32 s{S_XB}, 2, 4")); a(salu(f"s_lshl_b32 s{S_XB}, s{S_XB}, 14"))
    a(salu(f"s_add_u32 s{S_XB}, s{S_XB}, s{S_T1}"))
    assert kslot(2) == 2 << 14 and vslot(0) == 4 << 14
    a(valu(f"v_lshrrev_b32 v1, 3, {L}", [L], ["v1"])); a(valu(f"v_and_b32 v2, 7, {L}", [L], ["v2"]))
    a(valu(f"v_lshl_add_u32 v3, s{S_W}, 6, v1", ["v1", f"s{S_W}"], ["v3"]))
    a(valu("v_mul_u32_u24 v3, 896, v3", ["v3"], ["v3"]))
    a(valu("v_lshrrev_b32 v1, 1, v1", ["v1"], ["v1"]))
    for par in range(2):
        r = V_XD[par]
        a(valu(f"v_or_b32 v{r}, {4*par}, v1", ["v1"], [f"v{r}"]))
        a(valu(f"v_xor_b32 v{r}, v{r}, v2", [f"v{r}", "v2"], [f"v{r}"]))
        a(valu(f"v_lshl_add_u32 v{r}, v{r}, 4, v3", [f"v{r}", "v3"], [f"v{r}"]))
        a(valu(f"v_add_u32 v{V_XR[par]}, s{S_XB}, v{V_KA[par]}", [f"v{V_KA[par]}"], [f"v{V_XR[par]}"]))
    return o
def x_items(j):
    out = []
    for i in range(8):
        sreg = S_T2 + (i & 1)
        sc = []
        if i == 0 and j > 0: sc.append(salu(f"s_add_u32 s{S_XCUR}, s{S_XCUR}, s{S_XSTEP}", [f"s{S_XCUR}"], [f"s{S_XCUR}"]))
        sc.append(salu(f"s_add_u32 s{sreg}, s{S_XCUR}, {i*7168}", [f"s{S_XCUR}"], [f"s{sreg}"]))
        sc.append(salu(f"s_add_u32 m0, s{S_XB}, {i*1024}", [f"s{S_XB}"], ["m0"]))
        out.append((sc, tag(dma(V_XD[i & 1], S_X, f"s{sreg}", 0, OPT.x_flags), f"x{j}")))
    return out
def x_read(qb, cs): return ds_read128("v", xfrag(qb, cs), V_XR[cs & 1], qb * 2048)
def w_read(dbp, cs, jj):
    s, e = dbp >> 1, dbp & 1
    base = wslot(cs); win = base // 65536
    off = base - win * 65536 + (s >> 1) * 4096 + jj * 512 + e * 8
    return ds_read_tr("v", V_POOL + 4 * ((2 * dbp + (cs & 1)) % 8) + 2 * jj, V_WA[win][s & 1], off)

V_PF = 28
def coop_setup():
    o = []; a = o.append
    a(salu(f"s_mul_i32 s{S_T1}, s{S_H}, {112*128}"))
    a(salu(f"s_lshl_b32 s{S_T2}, s{S_W}, 12")); a(salu(f"s_add_u32 s{S_T1}, s{S_T1}, s{S_T2}"))
    a(valu(f"v_and_b32 v{V_PF}, 31, v{V_LANE}", [f"v{V_LANE}"], [f"v{V_PF}"]))
    a(valu(f"v_lshlrev_b32 v{V_PF}, 7, v{V_PF}", [f"v{V_PF}"], [f"v{V_PF}"]))
    a(valu(f"v_add_u32 v{V_PF}, s{S_T1}, v{V_PF}", [f"v{V_PF}"], [f"v{V_PF}"]))
    return o
def coop_x():
    return [tag(bload(V_PF + 1, 1, V_PF, S_X, "0", 0, OPT.pf_flags), "pf")]

V_PFW = 132
def coop_w_setup():
    o = []; a = o.append
    L = f"v{V_LANE}"
    a(salu(f"s_lshr_b32 s{S_T1}, s2, 7")); a(salu(f"s_and_b32 s{S_T1}, s{S_T1}, 1")); a(salu(f"s_lshl_b32 s{S_T1}, s{S_T1}, 5"))
    a(salu(f"s_lshl_b32 s{S_T2}, s{S_W}, 3")); a(salu(f"s_add_u32 s{S_T1}, s{S_T1}, s{S_T2}"))
    a(valu(f"v_bfe_u32 v{V_PFW}, {L}, 2, 3", [L], [f"v{V_PFW}"])); a(valu(f"v_add_u32 v{V_PFW}, s{S_T1}, v{V_PFW}", [f"v{V_PFW}"], [f"v{V_PFW}"]))
    a(valu(f"v_lshlrev_b32 v{V_PFW}, 13, v{V_PFW}", [f"v{V_PFW}"], [f"v{V_PFW}"]))
    a(valu(f"v_and_b32 v{V_PFW+1}, 3, {L}", [L], [f"v{V_PFW+1}"]))
    a(valu(f"v_lshl_add_u32 v{V_PFW}, v{V_PFW+1}, 7, v{V_PFW}", [f"v{V_PFW}", f"v{V_PFW+1}"], [f"v{V_PFW}"]))
    return o
def coop_w(j):
    return [salu(f"s_mov_b32 s{S_PFO}, {j*524288}", [], [f"s{S_PFO}"])], tag(bload(V_PFW + 1, 1, V_PFW, S_WQ, f"s{S_PFO}", 0, OPT.pf_flags), "pf")
OOL = []
def kv_off(reg, t):
    if not OPT.rot: return [salu(f"s_mov_b32 s{reg}, {t*16384}", [], [f"s{reg}"])]
    return [salu(f"s_add_u32 s{reg}, s{S_ROT}, {t*16384}", [f"s{S_ROT}"], [f"s{reg}"]), salu(f"s_and_b32 s{reg}, s{reg}, 0x7ffff", [f"s{reg}"], [f"s{reg}"])]
def phase1():
    o = []; a = o.append
    NP = 3
    a(salu(f"s_lshr_b32 s{S_T1}, s2, 7")); a(salu(f"s_and_b32 s{S_T1}, s{S_T1}, {1 if OPT.rev else 0}"))
    a(salu(f"s_cmp_eq_u32 s{S_T1}, 0"))
    a(salu(f"s_cselect_b32 s{S_WCUR}, 0, {6*524288}")); a(salu(f"s_cselect_b32 s{S_T2}, 1, -1"))
    a(salu(f"s_cselect_b32 s{S_XCUR}, 0, 768"))
    a(salu(f"s_mul_i32 s{S_WSTEP}, s{S_T2}, 524288")); a(salu(f"s_mul_i32 s{S_XSTEP}, s{S_T2}, 128"))
    o += x_setup()
    if OPT.coopx: o += coop_setup() + coop_x()
    if OPT.coopw:
        o += coop_w_setup()
        for j in range(OPT.coopw_init):
            sc, d = coop_w(j); o += sc + [d]
    def w_items(j):
        out = []
        for par in range(2):
            sreg = S_WCUR if par == 0 else S_WOFF
            for m, (m0, d) in enumerate(dma_tile("W", wslot(2 * j + par), f"s{sreg}", f"W{j}")):
                sc = [m0]
                if m == 0 and par == 0 and j > 0: sc = [salu(f"s_add_u32 s{S_WCUR}, s{S_WCUR}, s{S_WSTEP}", [f"s{S_WCUR}"], [f"s{S_WCUR}"]), m0]
                if m == 0 and par == 1: sc = [salu(f"s_add_u32 s{S_WOFF}, s{S_WCUR}, 262144", [f"s{S_WCUR}"], [f"s{S_WOFF}"]), m0]
                out.append((sc, d))
        return out
    def kv_items(kind, t):
        out = []
        for m, (m0, d) in enumerate(dma_tile(kind, kslot(t) if kind == "K" else vslot(t), f"s{S_T0}", f"{kind}{t}")):
            out.append((kv_off(S_T0, t) + [m0] if m == 0 else [m0], d))
        return out
    def now(items):
        for sc, d in items:
            o.extend(sc); a(nop(0)); a(d)
    w0 = w_items(0)
    for sc, d in w0[4:]: d.meta["tag"] = "W0b"
    if OPT.xwarm:
        a(valu(f"v_lshlrev_b32 v{V_PFW}, 4, v{V_LANE}", [f"v{V_LANE}"], [f"v{V_PFW}"]))
        a(salu(f"s_mul_i32 s{S_T0}, s{S_H}, 14336")); a(salu(f"s_lshl_b32 s{S_T1}, s{S_W}, 12")); a(salu(f"s_add_u32 s{S_T0}, s{S_T0}, s{S_T1}"))
        a(salu(f"s_add_u32 m0, s{S_T1}, {kslot(0)}", [], ["m0"])); a(nop(0))
        now(w0[:4])
        a(salu(f"s_lshl_b32 s{S_T1}, s{S_W}, 12")); a(salu(f"s_add_u32 m0, s{S_T1}, {kslot(0)}", [], ["m0"])); a(nop(0))
        for i in range(4): a(tag(dma(V_PFW, S_X, f"s{S_T0}", i * 1024, OPT.x_flags), "xw"))
        now(w0[4:]); now(x_items(0))
    else:
        now(x_items(0)); now(w0[:4]); now(w0[4:])
    if OPT.coopw:
        for j in range(OPT.coopw_init, 3):
            sc, d = coop_w(j); o += sc + [d]
    o += setup_b()
    a(wait_tag("x0"))
    xr = [x_read(qb, cs) for cs in (0, 1) for qb in range(4)]
    o += xr
    a(wait_tag("W0", "reset")); a(barrier())
    if OPT.fused:
        a(salu(f"s_or_b32 s{S_T0}, s{S_XCC}, 0x80")); a(valu(f"v_mov_b32 v1, s{S_T0}", [], ["v1"])); a(valu("v_mov_b32 v2, 0", [], ["v2"]))
        a(tag(I(f"buffer_store_byte v1, v2, s[{S_DBG}:{S_DBG+3}], s{S_SIG} offen", "vst", ["v1", "v2"], data=["v1"]), "arr"))
    o += stamp("p1_first_data") + (stamp("rt_fd") if OPT.trip_stamps else [])
    def quad0(n): return V_POOL + 4 * (n % 8)
    def w_read0(n, jj):
        dbp, cs = n % 16, n // 16
        r = w_read(dbp, cs, jj)
        return ds_read_tr("v", quad0(n) + 2 * jj, int(r.rd[0][1:]), int(r.text.split("offset:")[1]))
    carried = [x.wr for x in xr]
    for n in range(3):
        for jj in range(2):
            r = w_read0(n, jj); a(r); carried.append(r.wr)
    early = {j: [] for j in range(7)}; after = {j: [] for j in range(7)}
    early[0] += w_items(1); early[1] += w_items(2)
    for j in range(NP, 7): after[j - NP + 1] += w_items(j)
    K = lambda t: kv_items("K", t)
    V = lambda t: kv_items("V", t)
    kv = {"early": {1: K(0), 2: K(1)}, "mid": {2: K(0), 3: K(1)}, "late": {3: K(0), 4: K(1)}}[OPT.kvpf]
    for j, l in kv.items(): early[j] += l
    if OPT.kvmin:
        early = {j: (w_items(1) if j == 0 else w_items(2) if j == 1 else []) for j in range(7)} if False else early
        for j in range(7): early[j] = [it for it in early[j] if not it[1].meta["tag"].startswith("K")]
        early[4] += K(0); early[5] += K(1)
        after[5] += V(0)
        after[6] += K(2) + V(1)
    else:
        after[5] += V(0)
        early[6] += K(2) + V(1) + K(3)
        after[6] += V(2)
    for j in range(7):
        ms = []
        if j == 0:
            for n in range(32):
                for qb in range(4):
                    acc = ((n % 16) * 4 + qb) * 4
                    first = n < 16
                    ms.append(mfma("a", acc, "v", quad0(n), "v", xfrag(qb, n // 16), None if first else "a", None if first else acc))
        else:
            for dbp in range(16):
                for qb in range(4):
                    for e2 in range(2):
                        acc = (dbp * 4 + qb) * 4
                        ms.append(mfma("a", acc, "v", V_POOL + 4 * ((2 * dbp + e2) % 8), "v", xfrag(qb, 2 * j + e2), "a", acc))
        g = Gaps(ms)
        if j == 0:
            for n in range(3, 32):
                for jj in range(2): g.put_mem(4 * n - 12 + 2 * jj, w_read0(n, jj))
        else:
            for dbp in range(3, 16):
                for n, (cs, jj) in enumerate([(2*j, 0), (2*j, 1), (2*j+1, 0), (2*j+1, 1)]):
                    g.put_mem(8 * dbp - 24 + 2 * n, w_read(dbp, cs, jj))
        nxt = []
        if j < 6:
            for dbp in range(3):
                for n, (cs, jj) in enumerate([(2*j+2, 0), (2*j+2, 1), (2*j+3, 0), (2*j+3, 1)]):
                    r = w_read(dbp, cs, jj); g.put_mem(104 + (1 if j == 0 else 0) + 8 * dbp + 2 * n, r); nxt.append(r.wr)
        XG = OPT.x_rd_gap if j > 0 else OPT.x_rd_gap0
        xreads = []
        if j < 6:
            for n, (cs, qb) in enumerate([(cs, qb) for cs in (2*j+2, 2*j+3) for qb in range(4)]):
                r = x_read(qb, cs); g.put_mem(XG + 2 * n, r); xreads.append(r)
        if j == 0:
            cons = [(4 * n, R("v", quad0(n), 4) + (R("v", V_S, 32) if n == 0 else [])) for n in range(32)]
        else:
            cons = [(8 * dbp, R("v", V_POOL + 4 * ((2 * dbp) % 8), 8)) for dbp in range(16)]
        if j < 6: cons.append((XG + 24, [w for r in xreads for w in r.wr]))
        cons.sort()
        lead = add_lgkm_waits(g, cons, carried)
        if j < 6:
            k = XG - 2
            while g.pre[k]: k -= 1
            g.pre[k] = [wait_tag(f"x{j+1}")]
        tags = [f"W{j+1}"] if j < 6 else ["K0"]
        k = 100
        while g.pre[k]: k -= 1
        g.pre[k] = [wait_tag(*tags), barrier()] if not OPT.p1_nowait else [barrier()]
        kb = k
        gp = 1
        if OPT.coopw and j + 3 <= 6:
            sc, d = coop_w(j + 3); gp = place_vmem(g, 2, sc, d, kb) + 1
        if j == 0:
            for sc, d in x_items(1): gp = place_vmem(g, gp, sc, d, XG - 3, stack=True) + 2
            k = 48
            while g.pre[k]: k -= 1
            g.pre[k] = [wait_tag("W0b"), barrier()]
            assert k < 52
        for sc, d in early[j]: gp = place_vmem(g, gp + len(sc) - 1, sc, d, kb) + (OPT.early_step if j != 6 else 7)
        if j < 5:
            gx = max(XG + 25, gp)
            for sc, d in x_items(j + 2): gx = place_vmem(g, gx, sc, d, stack=True) + 2
            gpa = max(kb + 2, gx)
        else: gpa = kb + 2
        for sc, d in after[j]: gpa = place_vmem(g, gpa, sc, d, stack=True) + 1
        left = []
        if j == 6:
            for dbp in range(16):
                for qb in range(4):
                    ops = conv_ops((dbp * 4 + qb) * 4, V_Q + (qb * 8 + (dbp >> 1)) * 4 + 2 * (dbp & 1), V_CT + 2 * (qb & 1))
                    if left: left += ops
                    else:
                        _, l2 = place_chain(g, ops, 8 * dbp + 2 * qb + 1 + 5, 128); left += l2
        if lead is not None: a(lead)
        em = g.emit()
        if OPT.p1_drop:
            def keep(x):
                if x.kind in ("dma", "vld"):
                    t = x.meta.get("tag", "")
                    for c in OPT.p1_drop:
                        if t.startswith(c): return False
                return True
            em = [x for x in em if keep(x)]
        if OPT.p1_noread: em = [x for x in em if x.kind != "ds" and not (x.kind == "wait" and "lgkm" in x.meta)]
        o += em
        carried = nxt
        if OPT.p1_steps: o += stamp(f"step{j}")
        if left: a(nop(7)); o += left
    if not OPT.p1_steps: o += stamp("p1_end") + (stamp("rt_p1") if OPT.trip_stamps else [])
    return o

def k_read(t, kb, s):
    return ds_read128("v", V_POOL + 4 * s, V_KA[s & 1], (kslot(t) - L_K) + (s >> 1) * 4096 + kb * 2048)
def v_read(t, db, jj):
    return ds_read_tr("v", V_POOL + 4 * (db % 8) + 2 * jj, V_VA[db & 3], (vslot(t) - L_V) + (db >> 2) * 4096 + jj * 2048)
def Sreg(kb, qb): return V_S + (kb * 4 + qb) * 4
def Preg(buf, qb): return V_P + buf * 16 + qb * 4
def qk_mfmas():
    ms = []
    for i in range(64):
        kb, sp, qb, e = i >> 5, (i >> 3) & 3, (i >> 1) & 3, i & 1
        s = 2 * sp + e; d = Sreg(kb, qb)
        ms.append(mfma("v", d, "v", V_POOL + 4 * s, "v", V_Q + (qb * 8 + s) * 4, None if s == 0 else "v", None if s == 0 else d))
    return ms
def pv_mfmas(t, first):
    ms = []
    for i in range(64):
        db, qb = i >> 2, i & 3
        acc = (db * 4 + qb) * 4
        ms.append(mfma("a", acc, "v", V_POOL + 4 * (db % 8), "v", Preg(t & 1, qb), None if first else "a", None if first else acc))
    return ms
def sm_group(tile, kb, qb):
    s = Sreg(kb, qb); p = Preg(tile & 1, qb) + 2 * kb; mc = V_MC + qb; l = V_L + qb
    f = lambda r: valu(f"v_fma_f32 v{s+r}, v{s+r}, s{S_C}, v{mc}", [f"v{s+r}", f"v{mc}", f"s{S_C}"], [f"v{s+r}"])
    x = lambda r: trans(f"v_exp_f32 v{s+r}, v{s+r}", [f"v{s+r}"], [f"v{s+r}"])
    ad = lambda r: valu(f"v_add_f32 v{l}, v{l}, v{s+r}", [f"v{l}", f"v{s+r}"], [f"v{l}"])
    cv = lambda r: valu(f"v_cvt_pk_bf16_f32 v{p+r//2}, v{s+r}, v{s+r+1}", [f"v{s+r}", f"v{s+r+1}"], [f"v{p+r//2}"])
    return [f(0), f(1), x(0), x(1), f(2), f(3), x(2), x(3), ad(0), ad(1), cv(0), ad(2), ad(3), cv(2)]

def pre_iter():
    o = []; a = o.append
    carried = []
    for s in range(8):
        r = k_read(0, 0, s); a(r); carried.append(r.wr)
    g = Gaps(qk_mfmas())
    for s in range(8): g.put_mem(8 * (s >> 1) + 10 + 4 * (s & 1), k_read(0, 1, s))
    cons = [(8 * p, R("v", V_POOL + 8 * (p % 4), 8)) for p in range(8)]
    a(add_lgkm_waits(g, cons, carried))
    if OPT.kvmin:
        gp = 3
        for kind, t in (("K", 3), ("V", 2)):
            for m, (m0, d) in enumerate(dma_tile(kind, kslot(t) if kind == "K" else vslot(t), f"s{S_T0}", f"{kind}{t}")):
                gp = place_vmem(g, gp, (kv_off(S_T0, t) if m == 0 else []) + [m0], d, stack=True) + 5
    o += g.emit()
    a(wait_tag("K1", "V0")); a(barrier())
    o += kv_off(S_KOFF, 4)
    for m0, d in dma_tile("K", kslot(4), f"s{S_KOFF}", "K4"): a(m0); a(nop(0)); a(d)
    o += kv_off(S_KOFF, 5) + kv_off(S_VOFF, 3)
    carried = []
    for s in range(8):
        r = k_read(1, 0, s); a(r); carried.append(r.wr)
    for qb in range(4):
        m = V_MC + qb; s0 = Sreg(0, qb); s1 = Sreg(1, qb)
        a(valu(f"v_max3_f32 v{m}, v{s0}, v{s0+1}, v{s0+2}", R("v", s0, 3), [f"v{m}"]))
        a(valu(f"v_max3_f32 v{m}, v{m}, v{s0+3}, v{s1}", [f"v{m}", f"v{s0+3}", f"v{s1}"], [f"v{m}"]))
        a(valu(f"v_max3_f32 v{m}, v{m}, v{s1+1}, v{s1+2}", [f"v{m}", f"v{s1+1}", f"v{s1+2}"], [f"v{m}"]))
        a(valu(f"v_max_f32 v{m}, v{m}, v{s1+3}", [f"v{m}", f"v{s1+3}"], [f"v{m}"]))
    o += xlane_reduce([V_MC + q for q in range(4)], "v_max_f32", V_SP)
    for qb in range(4):
        m = V_MC + qb
        a(valu(f"v_mul_f32 v{m}, s{S_C}, v{m}", [f"v{m}", f"s{S_C}"], [f"v{m}"]))
        a(valu(f"v_sub_f32 v{m}, 0, v{m}", [f"v{m}"], [f"v{m}"]))
        a(valu(f"v_mov_b32 v{V_L+qb}, 0", [], [f"v{V_L+qb}"]))
    for kb, qb in [(0, 0), (0, 1), (0, 2), (0, 3), (1, 0), (1, 1)]: o += exposed(sm_group(0, kb, qb))
    o += stamp("pre_iter_end")
    return o, carried

def attn_iter(t, carried, vmw, prev, cur, first=False, adv=True, loopctl=False, extra=None, loop_body=False):
    g = Gaps(qk_mfmas() + pv_mfmas(t, first))
    for s in range(8): g.put_mem(8 * (s >> 1) + 10 + 4 * (s & 1), k_read(t + 1, 1, s))
    for db in range(16):
        for jj in range(2): g.put_mem(44 + 4 * db + 2 * jj, v_read(t, db, jj))
    nxt = []
    if t + 2 <= 31:
        for s, gap in zip(range(8), [108, 110, 112, 114, 116, 120, 124, 127]):
            r = k_read(t + 2, 0, s); g.put_mem(gap, r); nxt.append(r.wr)
    else:
        for db in range(5):
            for jj in range(2):
                r = v_read(t + 1, db, jj); g.put_mem(108 + 4 * db + 2 * jj, r); nxt.append(r.wr)
    cons = [(8 * p, R("v", V_POOL + 8 * (p % 4), 8)) for p in range(8)]
    cons += [(64 + 4 * db, R("v", V_POOL + 4 * (db % 8), 4)) for db in range(16)]
    lead = add_lgkm_waits(g, cons, carried)
    kb = 98
    while g.pre[kb]: kb -= 1
    g.pre[kb] = [vmw, barrier()]
    if OPT.bar_stamps and loop_body:
        g.pre[kb] = [raw("s_memtime s[94:95]", "salu"), vmw, raw("s_memtime s[96:97]", "salu"), barrier(), raw("s_memtime s[98:99]", "salu"),
                     raw("s_waitcnt lgkmcnt(0)", "wait", lgkm=0),
                     salu("s_sub_u32 s96, s96, s94"), salu("s_add_u32 s92, s92, s96"),
                     salu("s_sub_u32 s98, s98, s94"), salu("s_add_u32 s93, s93, s98")]
    gp_prev, gp_cur = OPT.dma_gaps
    placed = [place_vmem(g, gap, [m0], d, kb) for gap, (m0, d) in zip(gp_prev, prev)]
    for gap, (m0, d) in zip(gp_cur, cur): place_vmem(g, gap, [m0], d)
    if adv:
        for reg, srd, at in ((S_VOFF, S_V, (placed[OPT.nv_prev - 1] if OPT.nv_prev else 1) + 1), (S_KOFF, S_K, placed[-1] + 1)):
            k = put_scalar(g, at, salu(f"s_add_u32 s{reg}, s{reg}, 16384", [f"s{reg}"], [f"s{reg}"]))
            k = put_scalar(g, k + 1, salu(f"s_and_b32 s{reg}, s{reg}, 0x7ffff", [f"s{reg}"], [f"s{reg}"]))
            assert k < 100
        if loopctl:
            first_k = placed[-4]
            k = put_scalar(g, 2, salu(f"s_cmp_eq_u32 s{S_LOOP}, 1", [f"s{S_LOOP}"], ["scc"]),
                           salu(f"s_cselect_b32 s{S_K+2}, 0, 524288", ["scc"], [f"s{S_K+2}"]))
            assert k < first_k - 1
    if loopctl:
        k = put_scalar(g, 119, salu(f"s_sub_u32 s{S_LOOP}, s{S_LOOP}, 1", [f"s{S_LOOP}"], [f"s{S_LOOP}"]))
        k = put_scalar(g, k + 1, salu(f"s_cmp_lg_u32 s{S_LOOP}, {OPT.loop_exit}", [f"s{S_LOOP}"], ["scc"]))
        assert k <= 127
        for kk in range(k + 1, 128):
            assert all(x.kind == "wait" for x in g.pre[kk]), "SCC clobbered before the loop branch"
    if extra: extra(g, kb)
    ops = []
    for qb in (2, 3): ops += sm_ops(t, 1, qb, 0, 31 + 2 * qb)
    for qb in range(4): ops += sm_ops(t + 1, 0, qb, 25 + 2 * qb + 6, 100 + 6 * qb)
    for qb in (0, 1): ops += sm_ops(t + 1, 1, qb, 57 + 2 * qb + 6, 124 + 3 * qb)
    left = list_schedule(g, ops)
    if OPT.vfirst:
        cand = [k for k in range(128) if g.mem[k] is not None and g.mem[k].kind == "ds" and len(g.vec[k]) == 1 and g.vec[k][0].kind == "valu"
                and not (set(g.vec[k][0].wr) & set(g.mem[k].rd + g.mem[k].wr))]
        n = min(OPT.vfirst, len(cand))
        for i in range(n): g.vec_first.add(cand[(i * len(cand)) // n])
    if OPT.pad_iter:
        for n in range(OPT.pad_iter): g.post[(n * 128) // OPT.pad_iter + 3].append(nop(3))
    assert not left, f"softmax groups do not fit: {len(left)} left"
    return [lead] + g.emit(), nxt

def safe_attn():
    o = []; a = o.append
    VM, VT, VA_, TMP = 20, 24, 28, 112
    a(label("L_safe_attn")); a(wait_vm(0)); a(raw("s_waitcnt lgkmcnt(0)", "wait", lgkm=0)); a(barrier())
    for r in range(256): a(valu(f"v_accvgpr_write_b32 a{r}, 0", [], [f"a{r}"]))
    for qb in range(4):
        a(valu(f"v_mov_b32 v{VM+qb}, 0xff800000", [], [f"v{VM+qb}"])); a(valu(f"v_mov_b32 v{V_L+qb}, 0", [], [f"v{V_L+qb}"]))
    a(salu(f"s_mov_b32 s{S_KOFF}, 0")); a(salu(f"s_mov_b32 s{S_LOOP}, 32"))
    a(label("L_safe_loop"))
    for kind, slot in (("K", kslot(0)), ("V", vslot(0))):
        for m0, d in dma_tile(kind, slot, f"s{S_KOFF}", "safe"): a(m0); a(nop(0)); a(d)
    a(wait_vm(0)); a(barrier())
    qk = qk_mfmas()
    for kb in range(2):
        for s_ in range(8): a(k_read(0, kb, s_))
        a(wait_lgkm(0)); o += qk[32 * kb:32 * kb + 32]
    a(nop(7)); a(nop(7))
    for qb in range(4):
        t = VT + qb; s0 = Sreg(0, qb); s1 = Sreg(1, qb)
        a(valu(f"v_max3_f32 v{t}, v{s0}, v{s0+1}, v{s0+2}", [], [])); a(valu(f"v_max3_f32 v{t}, v{t}, v{s0+3}, v{s1}", [], []))
        a(valu(f"v_max3_f32 v{t}, v{t}, v{s1+1}, v{s1+2}", [], [])); a(valu(f"v_max_f32 v{t}, v{t}, v{s1+3}", [], []))
    o += xlane_reduce([VT + q for q in range(4)], "v_max_f32", TMP)
    for qb in range(4):
        a(valu(f"v_max_f32 v{VT+qb}, v{VT+qb}, v{VM+qb}", [], []))
        a(valu(f"v_sub_f32 v{VA_+qb}, v{VM+qb}, v{VT+qb}", [], [])); a(valu(f"v_mul_f32 v{VA_+qb}, s{S_C}, v{VA_+qb}", [], []))
        a(trans(f"v_exp_f32 v{VA_+qb}, v{VA_+qb}", [], [])); a(valu(f"v_mov_b32 v{VM+qb}, v{VT+qb}", [], []))
        a(valu(f"v_mul_f32 v{V_MC+qb}, s{S_C}, v{VT+qb}", [], [])); a(valu(f"v_sub_f32 v{V_MC+qb}, 0, v{V_MC+qb}", [], []))
        a(valu(f"v_mul_f32 v{V_L+qb}, v{V_L+qb}, v{VA_+qb}", [], []))
    for r in range(256):
        qb = (r >> 2) & 3; t = TMP + (r & 7)
        a(valu(f"v_accvgpr_read_b32 v{t}, a{r}", [], [])); a(valu(f"v_mul_f32 v{t}, v{t}, v{VA_+qb}", [], [])); a(valu(f"v_accvgpr_write_b32 a{r}, v{t}", [], []))
    for kb in range(2):
        for qb in range(4): o += exposed(sm_group(0, kb, qb))
    pv = pv_mfmas(0, False)
    for half in range(2):
        for db in range(8 * half, 8 * half + 8):
            for jj in range(2):
                a(v_read(0, db, jj))
            if db % 4 == 3: a(wait_lgkm(0))
        a(nop(1)); o += pv[32 * half:32 * half + 32]
    a(salu(f"s_add_u32 s{S_KOFF}, s{S_KOFF}, 16384")); a(salu(f"s_sub_u32 s{S_LOOP}, s{S_LOOP}, 1")); a(salu(f"s_cmp_lg_u32 s{S_LOOP}, 0"))
    a(barrier()); a(raw("s_cbranch_scc1 L_safe_loop", "branch"))
    a(nop(7)); a(nop(7))
    o += xlane_reduce([V_L + q for q in range(4)], "v_add_f32", TMP)
    for qb in range(4): a(trans(f"v_rcp_f32 v{V_L+qb}, v{V_L+qb}", [], []))
    a(nop(0))
    for db in range(16):
        for qb in range(4):
            o += conv_ops((db * 4 + qb) * 4, V_Q + (qb * 8 + (db >> 1)) * 4 + 2 * (db & 1), V_SP + 8 + 2 * (qb & 1))
    o += wo_setup()
    if OPT.fused: o += grp_setup() + [nop(1), mode_load()] + ring_scalars()
    for j in range(4):
        for sc, d in wo_dma(j): o += sc + [nop(0), d]
    a(wait_vm(0)); a(raw("s_branch L_p3_entry", "branch"))
    return o

def last_iter(carried):
    o = []; a = o.append
    for qb in (2, 3): o += exposed(sm_group(31, 1, qb))
    o += xlane_reduce([V_L + q for q in range(4)], "v_add_f32", V_SP)
    a(salu(f"s_mov_b32 s{S_T0}, 0x{f32bits(L_LIMIT):08x}"))
    for qb in range(4):
        a(valu(f"v_cmp_nge_f32 s[{50+2*(qb&1)}:{51+2*(qb&1)}], s{S_T0}, v{V_L+qb}", [f"v{V_L+qb}"], [f"s{50+2*(qb&1)}", f"s{51+2*(qb&1)}"]))
        if qb & 1:
            a(nop(0)); a(salu("s_or_b64 s[50:51], s[50:51], s[52:53]"))
            a(salu("s_mov_b64 s[54:55], s[50:51]") if qb == 1 else salu("s_or_b64 s[54:55], s[54:55], s[50:51]"))
    a(salu("s_cselect_b32 s50, 1, 0"))
    a(salu(f"s_lshl_b32 s51, s{S_W}, 2")); a(salu(f"s_add_u32 s51, s51, {L_VOTE}"))
    a(valu(f"v_mov_b32 v{V_SP}, s50", [], [f"v{V_SP}"])); a(valu(f"v_mov_b32 v{V_SP+1}, s51", [], [f"v{V_SP+1}"]))
    a(I(f"ds_write_b32 v{V_SP+1}, v{V_SP}", "ds", [f"v{V_SP}", f"v{V_SP+1}"], []))
    carried = carried + [[]]
    for qb in range(4): a(trans(f"v_rcp_f32 v{V_L+qb}, v{V_L+qb}", [f"v{V_L+qb}"], [f"v{V_L+qb}"]))
    a(nop(0))
    g = Gaps(pv_mfmas(31, False))
    for db in range(5, 8):
        for jj in range(2): g.put_mem(4 * (db - 5) + 2 * jj, v_read(31, db, jj))
    for db in range(8, 16):
        for jj in range(2): g.put_mem(12 + 4 * (db - 8) + 2 * jj, v_read(31, db, jj))
    cons = [(4 * db, R("v", V_POOL + 4 * (db % 8), 4)) for db in range(16)]
    lead = add_lgkm_waits(g, cons, carried)
    gp = put_wo(g, 2, 2, step=0)
    put_wo(g, 3, gp, step=0)
    left = []
    for db in range(16):
        for qb in range(4):
            ops = conv_ops((db * 4 + qb) * 4, V_Q + (qb * 8 + (db >> 1)) * 4 + 2 * (db & 1), V_SP + 8 + 2 * (qb & 1))
            if left: left += ops
            else:
                _, l2 = place_chain(g, ops, 4 * db + qb + 5, 64); left += l2
    a(lead); o += g.emit()
    a(nop(7)); o += left
    return o

WOBUF = [L_X, L_K, L_K + 32768, L_V, L_V + 32768, L_X, L_K]
V_DWO = 3; V_STO = V_DV
V_FR3 = 32; V_ACC3 = V_P; V_STG = 16
def wo_dma(j):
    out = []
    for i in range(8):
        sreg = S_T0 + (i & 1)
        out.append(([salu(f"s_mov_b32 s{sreg}, {j*128 + i*32*896}", [], [f"s{sreg}"]),
                     salu(f"s_add_u32 m0, s{S_W1K}, {WOBUF[j] + i*4096}", [f"s{S_W1K}"], ["m0"])],
                    tag(dma(V_DWO, S_WO, f"s{sreg}", 0, OPT.wo_flags), f"wo{j}")))
    return out
A_WOS = 100
V_WOW = 39
def wo_stage_loads(j):
    out = []
    for i in range(8):
        sreg = S_T0 + (i & 1)
        out.append(([salu(f"s_mov_b32 s{sreg}, {j*128 + i*32*896}", [], [f"s{sreg}"])],
                    tag(bload_f("a", A_WOS + 32 * (j - 5) + 4 * i, 4, V_DWO, S_WO, f"s{sreg}", 0, OPT.wo_flags), f"wos{j}")))
    return out
def wo_stage_write(j, i):
    r = A_WOS + 32 * (j - 5) + 4 * i
    return I(f"ds_write_b128 v{V_WOW + (j - 5) * 0}, {rng('a', r, 4)} offset:{i*4096}", "ds", [f"v{V_WOW}"] + R("a", r, 4), [])
def wo_setup():
    o = []; a = o.append
    L = f"v{V_LANE}"
    a(valu(f"v_lshrrev_b32 v1, 3, {L}", [L], ["v1"])); a(valu(f"v_and_b32 v2, 7, {L}", [L], ["v2"]))
    a(valu(f"v_lshl_add_u32 v3, s{S_W}, 3, v1", ["v1", f"s{S_W}"], ["v3"]))
    a(valu("v_bfe_u32 v1, v1, 1, 2", ["v1"], ["v1"])); a(valu("v_lshlrev_b32 v1, 1, v1", ["v1"], ["v1"]))
    a(valu("v_xor_b32 v1, v1, v2", ["v1", "v2"], ["v1"])); a(valu("v_lshlrev_b32 v1, 4, v1", ["v1"], ["v1"]))
    a(valu("v_mul_u32_u24 v3, 896, v3", ["v3"], ["v3"]))
    a(valu(f"v_add_u32 v{V_DWO}, v3, v1", ["v3", "v1"], [f"v{V_DWO}"]))
    return o
V_WOT = 2
def wo_touch_setup():
    return [valu(f"v_lshl_add_u32 v{V_WOT}, s{S_W}, 6, v{V_LANE}", [f"v{V_LANE}"], [f"v{V_WOT}"]),
            valu(f"v_mul_u32_u24 v{V_WOT}, 896, v{V_WOT}", [f"v{V_WOT}"], [f"v{V_WOT}"])]
def wo_touch(j): return tag(bload(1, 1, V_WOT, S_WO, "0", j * 128, OPT.wt_flags), "wt")
def put_wo(g, j, start, hi=None, step=3):
    gp = start
    for sc, d in wo_dma(j): gp = place_vmem(g, gp, sc, d, hi) + step
    return gp
def va_shift(delta):
    t = (lambda r: f"v_add_u32 v{r}, {delta}, v{r}") if delta >= 0 else (lambda r: f"v_subrev_u32 v{r}, {-delta}, v{r}")
    return [valu(t(r), [f"v{r}"], [f"v{r}"]) for r in V_VA]

def part_ops(nb, qb):
    acc = V_ACC3 + 4 * ((nb * 4 + qb) % 8)
    st = V_STG + 4 * qb + 2 * (nb & 1)
    li = V_L + qb
    ops = [valu(f"v_mul_f32 v{acc+r}, v{acc+r}, v{li}", [f"v{acc+r}", f"v{li}"], [f"v{acc+r}"]) for r in range(4)]
    ops += [valu(f"v_cvt_pk_bf16_f32 v{st}, v{acc}, v{acc+1}", [f"v{acc}", f"v{acc+1}"], [f"v{st}"]),
            valu(f"v_cvt_pk_bf16_f32 v{st+1}, v{acc+2}, v{acc+3}", [f"v{acc+2}", f"v{acc+3}"], [f"v{st+1}"])]
    return ops

A_FR3 = 0; A_SEL = 224
V_POLLA, V_POLL, V_ONE, V_ZERO, V_RLD, V_OUT = 32, 33, 34, 35, 36, 37
V_RD = 40
V_GRP = V_ARR + 3
def wo_read(nb, s_, jj):
    return ds_read_tr("a", A_FR3 + 4 * (8 * (nb & 1) + s_) + 2 * jj, V_VA[nb], s_ * 4096 + jj * 2048)

V_GA = V_ARR + 2
def grp_setup():
    return [salu(f"s_lshl_b32 s{S_T0}, s{S_G}, 4"), valu(f"v_and_b32 v{V_GA}, 3, v{V_LANE}", [f"v{V_LANE}"], [f"v{V_GA}"]),
            valu(f"v_lshlrev_b32 v{V_GA}, 2, v{V_GA}", [f"v{V_GA}"], [f"v{V_GA}"]), valu(f"v_add_u32 v{V_GA}, s{S_T0}, v{V_GA}", [f"v{V_GA}"], [f"v{V_GA}"])]
V_GA3 = 38
def grp_load(dst, tg, ga=V_GA): return tag(bload(dst, 1, ga, S_DBG, "0", 0, "sc1"), tg)
def splat(x): return x * 0x01010101
def mode_load(): return grp_load(V_ARR, "grp")
def mode_check():
    o = []; a = o.append
    a(salu(f"s_or_b32 s{S_T0}, s{S_XCC}, 0x80")); a(salu(f"s_mul_i32 s50, s{S_T0}, 0x01010101"))
    a(wait_tag("grp"))
    a(valu(f"v_and_b32 v{V_ARR}, 0x87878787, v{V_ARR}", [f"v{V_ARR}"], [f"v{V_ARR}"]))
    a(valu(f"v_cmp_eq_u32 vcc, s50, v{V_ARR}", [f"v{V_ARR}"], ["vcc"])); a(nop(0))
    a(salu("s_cmp_eq_u64 vcc, -1"))
    a(salu(f"s_cselect_b64 s[{S_LOCM}:{S_LOCM+1}], -1, 0"))
    if OPT.force_fallback: a(salu("s_cmp_eq_u32 s50, 0"))
    a(raw("s_cbranch_scc0 L_grp_far", "branch")); a(label("L_grp_ok"))
    f = [label("L_grp_far"), salu(f"s_or_b32 s{S_T0}, s{S_XCC}, 0x80"), valu(f"v_mov_b32 v{V_ARR+1}, s{S_T0}", [], []),
         valu(f"v_mov_b32 v{V_ARR+3}, 0", [], []),
         raw(f"buffer_store_byte v{V_ARR+1}, v{V_ARR+3}, s[{S_DBG}:{S_DBG+3}], s{S_SIG} offen sc1", "salu"), wait_vm(0),
         salu(f"s_mov_b32 s{S_SPIN}, {SPIN_MAX}"), label("L_grp_again"),
         salu(f"s_sub_u32 s{S_SPIN}, s{S_SPIN}, 1"), salu(f"s_cmp_eq_u32 s{S_SPIN}, 0"), raw("s_cbranch_scc1 L_grp_ok", "branch")]
    if not OPT.force_fallback:
        f += [raw(f"buffer_load_dword v{V_ARR}, v{V_GA}, s[{S_DBG}:{S_DBG+3}], 0 offen sc1", "salu"), wait_vm(0),
              valu(f"v_and_b32 v{V_ARR}, 0x87878787, v{V_ARR}", [], []), valu(f"v_cmp_eq_u32 vcc, s50, v{V_ARR}", [], []), nop(0),
              salu("s_cmp_eq_u64 vcc, -1"), salu(f"s_cselect_b64 s[{S_LOCM}:{S_LOCM+1}], -1, 0"), raw("s_cbranch_scc1 L_grp_ok", "branch")]
    f += far_read(V_ARR)
    f += [valu(f"v_and_b32 v{V_ARR+1}, 0x80808080, v{V_ARR}", [], []), valu(f"v_cmp_eq_u32 vcc, 0x80808080, v{V_ARR+1}", [], []), nop(0),
          salu("s_and_b64 s[52:53], vcc, 15"), salu("s_cmp_eq_u64 s[52:53], 15"), raw("s_cbranch_scc0 L_grp_again", "branch"),
          valu(f"v_and_b32 v{V_ARR}, 0x87878787, v{V_ARR}", [], []), valu(f"v_cmp_eq_u32 vcc, s50, v{V_ARR}", [], []), nop(0),
          salu("s_and_b64 s[52:53], vcc, 15"), salu("s_cmp_eq_u64 s[52:53], 15"),
          salu(f"s_cselect_b64 s[{S_LOCM}:{S_LOCM+1}], -1, 0")]
    if OPT.force_fallback: f.append(salu(f"s_mov_b64 s[{S_LOCM}:{S_LOCM+1}], 0"))
    f.append(raw("s_branch L_grp_ok", "branch"))
    OOL.extend(f)
    return o
def far_read(dst, ga=V_GA):
    return [valu(f"v_mov_b32 v{dst}, 0", [], []), valu(f"v_cmp_gt_u32 vcc, 4, v{V_LANE}", [], []),
            raw("s_and_saveexec_b64 s[54:55], vcc", "salu"),
            raw(f"buffer_atomic_add v{dst}, v{ga}, s[{S_DBG}:{S_DBG+3}], 0 offen sc0 sc1", "salu"), wait_vm(0),
            raw("s_mov_b64 exec, s[54:55]", "salu")]

def p3_setup():
    L = f"v{V_LANE}"
    o = [valu(f"v_lshlrev_b32 v{V_STO}, 4, {L}", [L], [f"v{V_STO}"])]
    if OPT.fused:
        o += [valu(f"v_mov_b32 v{V_ZERO}, 0", [], [f"v{V_ZERO}"]), valu(f"v_mov_b32 v{V_GA3}, v{V_GA}", [f"v{V_GA}"], [f"v{V_GA3}"])]
    else: o += far_setup()
    return o

def far_setup():
    o = []; a = o.append
    L = f"v{V_LANE}"
    a(salu(f"s_mul_i32 s{S_PART}, s{S_G}, {7*16*16*2048}"))
    a(salu(f"s_lshl_b32 s{S_T2}, s{S_H}, 15")); a(salu(f"s_add_u32 s{S_RBASE}, s{S_PART}, s{S_T2}"))
    a(salu(f"s_lshl_b32 s{S_T2}, s{S_W}, 17")); a(salu(f"s_add_u32 s{S_PART}, s{S_PART}, s{S_T2}"))
    a(salu(f"s_lshl_b32 s{S_T2}, s{S_H}, 11")); a(salu(f"s_add_u32 s{S_PART}, s{S_PART}, s{S_T2}"))
    if not OPT.fused: return o
    a(salu(f"s_or_b32 s{S_T2}, s{S_XCC}, 0xf0")); a(valu(f"v_mov_b32 v{V_ONE}, s{S_T2}", [], [f"v{V_ONE}"]))
    a(valu(f"v_lshrrev_b32 v1, 5, {L}", [L], ["v1"])); a(valu("v_lshlrev_b32 v1, 11, v1", ["v1"], ["v1"]))
    a(valu(f"v_and_b32 v2, 31, {L}", [L], ["v2"])); a(valu(f"v_lshl_add_u32 v{V_RLD}, v2, 4, v1", ["v1", "v2"], [f"v{V_RLD}"]))
    a(salu(f"s_lshl_b32 s{S_T2}, s{S_W}, 9")); a(valu(f"v_add_u32 v{V_RLD}, s{S_T2}, v{V_RLD}", [f"v{V_RLD}"], [f"v{V_RLD}"]))
    a(valu(f"v_and_b32 v1, 15, {L}", [L], ["v1"])); a(valu(f"v_lshrrev_b32 v2, 4, {L}", [L], ["v2"]))
    a(valu("v_lshrrev_b32 v4, 3, v1", ["v1"], ["v4"])); a(valu("v_and_b32 v5, 1, v2", ["v2"], ["v5"]))
    a(valu("v_and_b32 v48, 1, v1", ["v1"], ["v48"])); a(valu("v_lshlrev_b32 v48, 4, v48", ["v48"], ["v48"]))
    a(valu("v_mov_b32 v49, 0x3f80", [], ["v49"])); a(valu("v_lshlrev_b32 v49, v48, v49", ["v48", "v49"], ["v49"]))
    a(valu("v_cmp_eq_u32 vcc, v4, v5", ["v4", "v5"], ["vcc"])); a(nop(1))
    a(valu("v_cndmask_b32 v49, 0, v49, vcc", ["v49", "vcc"], ["v49"]))
    a(valu("v_bfe_u32 v50, v1, 1, 2", ["v1"], ["v50"]))
    for r in range(4):
        a(valu(f"v_cmp_eq_u32 vcc, {r}, v50", ["v50"], ["vcc"])); a(nop(1))
        a(valu("v_cndmask_b32 v51, 0, v49, vcc", ["v49", "vcc"], ["v51"]))
        a(valu(f"v_accvgpr_write_b32 a{A_SEL+r}, v51", ["v51"], [f"a{A_SEL+r}"]))
    a(salu(f"s_lshl_b32 s{S_T2}, s{S_B}, 8")); a(salu(f"s_lshl_b32 s{S_T3}, s{S_H}, 4")); a(salu(f"s_add_u32 s{S_T2}, s{S_T2}, s{S_T3}"))
    a(valu(f"v_add_u32 v{V_OUT}, s{S_T2}, v1", ["v1"], [f"v{V_OUT}"])); a(valu(f"v_mul_u32_u24 v{V_OUT}, 896, v{V_OUT}", [f"v{V_OUT}"], [f"v{V_OUT}"]))
    a(salu(f"s_mul_i32 s{S_T2}, s{S_BR}, 448")); a(salu(f"s_lshr_b32 s{S_T3}, s{S_W}, 1")); a(salu(f"s_lshl_b32 s{S_T3}, s{S_T3}, 5"))
    a(salu(f"s_add_u32 s{S_T2}, s{S_T2}, s{S_T3}")); a(salu(f"s_and_b32 s{S_T3}, s{S_W}, 1")); a(salu(f"s_lshl_b32 s{S_T3}, s{S_T3}, 3"))
    a(salu(f"s_add_u32 s{S_T2}, s{S_T2}, s{S_T3}"))
    a(valu(f"v_add_u32 v{V_OUT}, s{S_T2}, v{V_OUT}", [f"v{V_OUT}"], [f"v{V_OUT}"]))
    a(valu(f"v_lshl_add_u32 v{V_OUT}, v5, 4, v{V_OUT}", ["v5", f"v{V_OUT}"], [f"v{V_OUT}"]))
    a(valu("v_lshrrev_b32 v4, 1, v2", ["v2"], ["v4"])); a(valu(f"v_lshl_add_u32 v{V_OUT}, v4, 2, v{V_OUT}", ["v4", f"v{V_OUT}"], [f"v{V_OUT}"]))
    a(valu(f"v_lshlrev_b32 v{V_OUT}, 1, v{V_OUT}", [f"v{V_OUT}"], [f"v{V_OUT}"]))
    return o

def handoff_far():
    o = [wait_vm(0), barrier(), raw("buffer_wbl2 sc1", "salu"), wait_vm(0), barrier(),
         raw(f"buffer_store_byte v{V_ONE}, v{V_ZERO}, s[{S_DBG}:{S_DBG+3}], s{S_SIG} offen sc1", "salu"), wait_vm(0),
         salu(f"s_mov_b32 s{S_SPIN}, {SPIN_MAX}"), label("L_far_poll"),
         salu(f"s_sub_u32 s{S_SPIN}, s{S_SPIN}, 1"), salu(f"s_cmp_eq_u32 s{S_SPIN}, 0"), raw("s_cbranch_scc1 L_far_done", "branch")]
    o += far_read(V_POLL, V_GA3)
    o += [valu(f"v_and_b32 v{V_POLL}, 0xf0f0f0f0, v{V_POLL}", [], []), valu(f"v_cmp_eq_u32 vcc, 0xf0f0f0f0, v{V_POLL}", [], []), nop(0),
          salu("s_and_b64 s[52:53], vcc, 15"), salu("s_cmp_eq_u64 s[52:53], 15"), raw("s_cbranch_scc0 L_far_poll", "branch"),
          label("L_far_done"), raw("buffer_inv sc1", "salu"), wait_vm(0)]
    return o

A_PIECE = 0; A_SEL2 = 224
def red_loads(j):
    out = []
    for i in range(8):
        sr = "s52" if i % 2 == 0 else "s53"
        out.append(([salu(f"s_add_u32 {sr}, s{S_RBASE}, {j*16*32768 + i*4096}", [f"s{S_RBASE}"], [sr])],
                    tag(bload_f("a", A_PIECE + 32 * j + 4 * i, 4, V_RLD, S_WS, sr, 0, "sc1"), f"rl{j}")))
    return out
def red_mfmas(j):
    d = V_RD + 4 * (j & 1)
    return [mfma("v", d, "a", A_SEL2, "a", A_PIECE + 32 * j + 4 * i, None if i == 0 else "v", None if i == 0 else d) for i in range(8)]
def red_out(j):
    d = V_RD + 4 * (j & 1)
    return [valu(f"v_cvt_pk_bf16_f32 v{d}, v{d}, v{d+1}", [f"v{d}", f"v{d+1}"], [f"v{d}"]),
            valu(f"v_cvt_pk_bf16_f32 v{d+1}, v{d+2}, v{d+3}", [f"v{d+2}", f"v{d+3}"], [f"v{d+1}"])], tag(bstore(d, 2, V_OUT, S_OUT, "0", j * 128), f"out{j}")

A_RING = 64; A_SEL4 = 96
V_RLD4, V_OUT4, V_FLA, V_FLAG1 = 48, 49, 50, 51
def ring_scalars():
    o = []; a = o.append
    a(salu(f"s_mul_i32 s50, s{S_G}, {OPT.ring * 262144}"))
    a(salu(f"s_lshl_b32 s51, s{S_W}, 16")); a(salu(f"s_add_u32 s{S_RST}, s50, s51"))
    a(salu(f"s_lshl_b32 s51, s{S_H}, 10")); a(salu(f"s_add_u32 s{S_RST}, s{S_RST}, s51"))
    a(salu(f"s_lshl_b32 s51, s{S_H}, 14")); a(salu(f"s_add_u32 s{S_RLD}, s50, s51"))
    a(salu(f"s_mul_i32 s50, s{S_G}, {14*64}"))
    a(salu(f"s_lshl_b32 s51, s{S_W}, 4"))
    a(salu(f"s_add_u32 s{S_FPW}, s50, s51")); a(salu(f"s_add_u32 s{S_FPW}, s{S_FPW}, s{S_H}"))
    a(salu(f"s_add_u32 s{S_FCR}, s50, s51")); a(salu(f"s_add_u32 s{S_FCR}, s{S_FCR}, {CONS_OFF}"))
    a(salu(f"s_lshr_b32 s51, s{S_H}, 2")); a(salu(f"s_lshl_b32 s51, s51, 4"))
    a(salu(f"s_add_u32 s{S_FPR}, s50, s51"))
    a(salu(f"s_lshl_b32 s51, s{S_H}, 2")); a(salu(f"s_add_u32 s{S_FCW}, s50, s51"))
    a(salu(f"s_add_u32 s{S_FCW}, s{S_FCW}, s{S_W}")); a(salu(f"s_add_u32 s{S_FCW}, s{S_FCW}, {CONS_OFF}"))
    return o
def ring_setup():
    o = []; a = o.append
    L = f"v{V_LANE}"
    a(valu(f"v_and_b32 v{V_FLA}, 3, {L}", [L], [f"v{V_FLA}"])); a(valu(f"v_lshlrev_b32 v{V_FLA}, 2, v{V_FLA}", [f"v{V_FLA}"], [f"v{V_FLA}"]))
    a(valu(f"v_mov_b32 v{V_FLAG1}, 1", [], [f"v{V_FLAG1}"]))
    a(valu(f"v_and_b32 v1, 15, {L}", [L], ["v1"])); a(valu(f"v_lshrrev_b32 v2, 4, {L}", [L], ["v2"]))
    a(valu(f"v_lshlrev_b32 v{V_RLD4}, 10, v2", ["v2"], [f"v{V_RLD4}"])); a(valu(f"v_lshl_add_u32 v{V_RLD4}, v1, 4, v{V_RLD4}", ["v1", f"v{V_RLD4}"], [f"v{V_RLD4}"]))
    a(salu(f"s_lshl_b32 s{S_T1}, s{S_W}, 8")); a(valu(f"v_add_u32 v{V_RLD4}, s{S_T1}, v{V_RLD4}", [f"v{V_RLD4}"], [f"v{V_RLD4}"]))
    a(valu("v_and_b32 v4, 1, v1", ["v1"], ["v4"])); a(valu("v_lshlrev_b32 v4, 4, v4", ["v4"], ["v4"]))
    a(valu("v_mov_b32 v5, 0x3f80", [], ["v5"])); a(valu("v_lshlrev_b32 v5, v4, v5", ["v4", "v5"], ["v5"]))
    a(valu("v_lshrrev_b32 v4, 1, v1", ["v1"], ["v4"]))
    for r in range(4):
        a(valu(f"v_cmp_eq_u32 vcc, {r}, v4", ["v4"], ["vcc"])); a(nop(1))
        a(valu("v_cndmask_b32 v52, 0, v5, vcc", ["v5", "vcc"], ["v52"]))
        a(valu(f"v_accvgpr_write_b32 a{A_SEL4+r}, v52", ["v52"], [f"a{A_SEL4+r}"]))
    a(salu(f"s_lshl_b32 s{S_T0}, s{S_B}, 8")); a(salu(f"s_lshl_b32 s{S_T1}, s{S_H}, 4")); a(salu(f"s_add_u32 s{S_T0}, s{S_T0}, s{S_T1}"))
    a(valu(f"v_add_u32 v{V_OUT4}, s{S_T0}, v1", ["v1"], [f"v{V_OUT4}"])); a(valu(f"v_mul_u32_u24 v{V_OUT4}, 896, v{V_OUT4}", [f"v{V_OUT4}"], [f"v{V_OUT4}"]))
    a(salu(f"s_mul_i32 s{S_T0}, s{S_BR}, 448")); a(salu(f"s_lshl_b32 s{S_T1}, s{S_W}, 2")); a(salu(f"s_add_u32 s{S_T0}, s{S_T0}, s{S_T1}"))
    a(valu(f"v_add_u32 v{V_OUT4}, s{S_T0}, v{V_OUT4}", [f"v{V_OUT4}"], [f"v{V_OUT4}"]))
    a(valu(f"v_lshl_add_u32 v{V_OUT4}, v2, 4, v{V_OUT4}", ["v2", f"v{V_OUT4}"], [f"v{V_OUT4}"]))
    a(valu(f"v_lshlrev_b32 v{V_OUT4}, 1, v{V_OUT4}", [f"v{V_OUT4}"], [f"v{V_OUT4}"]))
    a(valu("v_cmp_gt_u32 vcc, 2, v2", ["v2"], ["vcc"])); a(salu(f"s_mov_b32 s{S_T0}, 0x7ff00000")); a(valu(f"v_mov_b32 v4, s{S_T0}", [], ["v4"]))
    a(valu(f"v_cndmask_b32 v{V_OUT4}, v4, v{V_OUT4}, vcc", ["v4", f"v{V_OUT4}", "vcc"], [f"v{V_OUT4}"]))
    return o

def flag_store(base, u, tg):
    return [salu(f"s_add_u32 s55, s{base}, {u*64}", [f"s{base}"], ["s55"])], \
           tag(I(f"buffer_store_byte v{V_FLAG1}, v{V_ZERO}, s[{S_FL}:{S_FL+3}], s55 offen", "vst", [f"v{V_FLAG1}", f"v{V_ZERO}", "s55"], data=[]), tg)
def flag_poll(base, u, dst, tg):
    return [salu(f"s_add_u32 s54, s{base}, {u*64}", [f"s{base}"], ["s54"])], tag(bload(dst, 1, V_FLA, S_FL, "s54", 0, "sc1"), tg)
def flag_check(base, u, dst, tg, name):
    OOL.extend([label(f"L_{name}_spin"), salu(f"s_add_u32 s54, s{base}, {u*64}"), salu(f"s_mov_b32 s{S_SPIN}, {SPIN_MAX}"),
                label(f"L_{name}_again"),
                salu(f"s_sub_u32 s{S_SPIN}, s{S_SPIN}, 1"), salu(f"s_cmp_eq_u32 s{S_SPIN}, 0"), raw(f"s_cbranch_scc1 L_{name}_ok", "branch"),
                raw(f"buffer_load_dword v{dst}, v{V_FLA}, s[{S_FL}:{S_FL+3}], s54 offen sc1", "salu"), wait_vm(0),
                valu(f"v_cmp_ne_u32 vcc, 0x01010101, v{dst}", [], []), nop(0),
                raw(f"s_cbranch_vccnz L_{name}_again", "branch"), raw(f"s_branch L_{name}_ok", "branch")])
    dd = (lambda n: stamp("d_" + n)) if name in (f"prod{OPT.p3detail}", f"cons{OPT.p3detail}") else (lambda n: [])
    return dd(name[:4] + "A") + [wait_tag(tg)] + dd(name[:4] + "B") + [valu(f"v_cmp_ne_u32 vcc, 0x01010101, v{dst}", [f"v{dst}"], ["vcc"]), nop(0),
            raw(f"s_cbranch_vccnz L_{name}_spin", "branch"), label(f"L_{name}_ok")] + dd(name[:4] + "C")
V_PP, V_PC = 53, 54
def ring_loads(u):
    out = []
    for i in range(4):
        sr = "s52" if i % 2 == 0 else "s53"
        out.append(([salu(f"s_add_u32 {sr}, s{S_RLD}, {(u % OPT.ring)*262144 + i*4096}", [f"s{S_RLD}"], [sr])],
                    tag(bload_f("a", A_RING + 16 * (u & 1) + 4 * i, 4, V_RLD4, S_RG, sr, 0, "sc1"), f"rl{u}")))
    return out
def ring_mfmas(u):
    d = V_RD + 4 * (u & 1)
    return [mfma("v", d, "a", A_SEL4, "a", A_RING + 16 * (u & 1) + 4 * i, None if i == 0 else "v", None if i == 0 else d) for i in range(4)]
def ring_out(u):
    d = V_RD + 4 * (u & 1)
    return [valu(f"v_cvt_pk_bf16_f32 v{d}, v{d}, v{d+1}", [f"v{d}", f"v{d+1}"], [f"v{d}"]),
            valu(f"v_cvt_pk_bf16_f32 v{d+1}, v{d+2}, v{d+3}", [f"v{d+2}", f"v{d+3}"], [f"v{d+1}"])], tag(bstore(d, 2, V_OUT4, S_OUT, "0", u * 64, OPT.out_flags), f"out{u}")

def p3_stream(local, carried):
    o = []; a = o.append
    NS, D = OPT.ring, OPT.prod_delay
    Q = lambda u: 8 * u + 7
    if OPT.tmpl == 0:
        T = dict(st=[0, 1, 2, 3], sig=(7, 5), poll=(12, 5), chk=(15, 7), ld=[(16, 7), (17, 7), (18, 7), (19, 7)], csig=(22, 3), out=(30, 5),
                 cpoll=(-4, 3), cchk=(-1, 3), wo=[(-4, 7), (-3, 3), (-3, 7), (-2, 7)], va=((0, 85), (1, 61), (2, 69), (3, 101)))
    else:
        T = dict(st=[0, 2, 4, 5], sig=(8, 5), poll=(13, 7), chk=(16, 7), ld=[(17, 3), (17, 7), (19, 3), (19, 7)], csig=(22, 3), out=(30, 5),
                 cpoll=(-4, 7), cchk=(-1, 3), wo=[(-6, 7), (-2, 7), (-1, 5), (-1, 7)], va=((0, 85), (1, 37), (2, 69), (3, 101)))
    ins = {}
    if local:
        for u in range(14):
            m = 8 * (Q(u) + 22 + D) - 1
            if m < 895: ins[m] = u
    ms = []; pos = {}; redpos = {}
    for m in range(896):
        j, i = m >> 7, m & 127
        nb, qb, s_ = i >> 5, (i >> 3) & 3, i & 7
        acc = V_ACC3 + 4 * ((nb * 4 + qb) % 8)
        pos[m] = len(ms)
        ms.append(mfma("v", acc, "a", A_FR3 + 4 * (8 * (nb & 1) + s_), "v", V_Q + (qb * 8 + s_) * 4,
                       None if s_ == 0 else "v", None if s_ == 0 else acc))
        if m in ins:
            u = ins[m]; redpos[u] = len(ms); ms += ring_mfmas(u)
    g = Gaps(ms); N = g.n
    P = lambda j, i: pos[128 * j + i]
    def G(period, off):
        m = 8 * period + off
        return pos[m] if 0 <= m < 896 else None
    for j in range(7):
        for nb in range(4):
            jn, nbn = (j, nb + 1) if nb < 3 else (j + 1, 0)
            if jn > 6: continue
            for s_ in range(8):
                for jj in range(2): g.put_mem(P(j, 32 * nb + 4 * s_ + 2 * jj), wo_read(nbn, s_, jj))
    cons = []
    for j in range(7):
        for nb in range(4):
            for s_ in (0, 2, 4, 6): cons.append((P(j, 32 * nb + s_), R("a", A_FR3 + 4 * (8 * (nb & 1) + s_), 8)))
    cons.sort()
    def put_vm(k, sc, d):
        assert g.mem[k] is None and not g.post[k], (k, d.text)
        for n, x in enumerate(reversed(sc)):
            kk = k - 1 - n
            assert kk >= 0
            assert not (g.mem[kk] is not None and g.mem[kk].kind == "dma" and "m0" in x.wr)
            g.pre[kk].append(x)
        g.mem[k] = d
    def put_seq(k, seq):
        assert g.mem[k] is None and not g.post[k], k
        g.post[k] = seq
    for j in range(6):
        k = P(j, 91)
        g.pre[k] += ([wait_tag(f"wo{j+1}")] if not (OPT.wo_stage and j + 1 >= 5) else []) + [barrier()]
        sh = va_shift(WOBUF[j + 1] - WOBUF[j])
        for n, at in T['va']:
            kk = P(j, at); g.vec[kk].append(sh[n])
    if OPT.wo_stage:
        items = wo_dma(4) + wo_stage_loads(5) + wo_stage_loads(6)
        slots = [(0, 3), (0, 5), (0, 7), (1, 1), (1, 3), (1, 5), (1, 7)] + [(per, off) for per in range(2, 7) for off in (3, 5, 7)] + [(7, 5), (7, 7)]
        if OPT.tmpl == 1:
            slots = [(0, 3), (0, 5), (0, 7), (1, 1), (1, 3), (1, 5), (1, 7)] + [(per, off) for per in range(2, 7) for off in (3, 5, 7)] + [(7, 5), (7, 7)]
        for (sc, d), (per, off) in zip(items, slots): put_vm(G(per, off), sc, d)
        for j in (5, 6):
            jj_ = j - 3
            g.vec[P(jj_, 1)].insert(0, valu(f"v_add_u32 v{V_WOW}, {(WOBUF[j] - (WOBUF[j-1] if j == 6 else 0)) & 0xffffffff}, v{V_WOW}", [f"v{V_WOW}"], [f"v{V_WOW}"]))
            for i in range(8):
                u0 = 2 * jj_ + (i >> 2)
                per, off = Q(u0) + T['wo'][i & 3][0], T['wo'][i & 3][1]
                k = G(per, off)
                assert g.mem[k] is None
                g.mem[k] = wo_stage_write(j, i)
            u1 = 2 * jj_
            g.pre[G(Q(u1) + T['wo'][0][0], T['wo'][0][1]) - 1].append(wait_tag(f"wos{j}"))
    else:
      for j in (2, 3):
        items = wo_dma(j + 3)
        for n, (sc, d) in enumerate(items):
            u0 = 2 * j + (n >> 2)
            per, off = Q(u0) + T['wo'][n & 3][0], T['wo'][n & 3][1]
            put_vm(G(per, off), sc, d)
    lead = add_lgkm_waits(g, cons, carried)
    stores = {}; sgap = {}
    for u in range(14):
        j, nb = u >> 1, 2 * (u & 1) + 1
        for qb in range(4):
            sreg = S_T2 + (qb & 1)
            if local:
                st = ([salu(f"s_add_u32 s{sreg}, s{S_RST}, {(u % NS)*262144 + qb*16384}", [f"s{S_RST}"], [f"s{sreg}"])],
                      tag(bstore(V_STG + 4 * qb, 4, V_STO, S_RG, f"s{sreg}", 0, OPT.last_st if u >= 14 - NS else ""), f"st{u}"))
            else:
                so = j * 16 * 16 * 2048 + qb * 16 * 2048 + (nb >> 1) * 1024
                st = ([salu(f"s_add_u32 s{sreg}, s{S_PART}, {so}", [f"s{S_PART}"], [f"s{sreg}"])],
                      tag(bstore(V_STG + 4 * qb, 4, V_STO, S_WS, f"s{sreg}", 0), f"st{u}"))
            stores[(u, qb)] = st
            k = G(Q(u) + T['st'][qb], 3)
            sgap[(u, qb)] = k
            if k is not None: put_vm(k, *st)
    done = {}; out_left = []
    if local:
        for u in range(14):
            dd = (lambda n: stamp("d_" + n)) if u == OPT.p3detail else (lambda n: [])
            if u >= NS:
                kp, kc = G(Q(u) + T['cpoll'][0], T['cpoll'][1]), G(Q(u) + T['cchk'][0], T['cchk'][1])
                put_vm(kp, *flag_poll(S_FCR, u - NS, V_PC, f"pc{u}"))
                put_seq(kc, flag_check(S_FCR, u - NS, V_PC, f"pc{u}", f"cons{u}"))
            done[u] = "sig"
            k = G(Q(u) + T['sig'][0], T['sig'][1])
            if k is None or sgap[(u, 3)] is None: continue
            sc, d = flag_store(S_FPW, u, f"sig{u}")
            g.pre[k - 1] += dd("sigA") + [wait_tag(f"st{u}")] + dd("sigB"); put_vm(k, sc, d)
            done[u] = "poll"
            k = G(Q(u) + T['poll'][0] + D, T['poll'][1])
            if k is None: continue
            put_vm(k, *flag_poll(S_FPR, u, V_PP, f"pp{u}"))
            done[u] = "check"
            k = G(Q(u) + T['chk'][0] + D, T['chk'][1])
            if k is None: continue
            put_seq(k, flag_check(S_FPR, u, V_PP, f"pp{u}", f"prod{u}"))
            done[u] = "loads"
            if u not in redpos: continue
            for n, (sc, d) in enumerate(ring_loads(u)): put_vm(G(Q(u) + T['ld'][n][0] + D, T['ld'][n][1]), sc, d)
            g.pre[redpos[u] - 1] += dd("rlA") + [wait_tag(f"rl{u}")] + dd("rlB")
            if u <= 13 - NS: put_vm(G(Q(u) + T['csig'][0] + D, T['csig'][1]), *flag_store(S_FCW, u, f"csig{u}"))
            done[u] = "out"
            cv, st = ring_out(u)
            if u + 1 in redpos:
                g.vec[redpos[u + 1]] += cv
                put_vm(G(Q(u) + T['out'][0] + D, T['out'][1]), [], st)
                done[u] = "all"
    tail_main = []
    for p in range(112):
        j, nb, qb = p >> 4, (p >> 2) & 3, p & 3
        ops = part_ops(nb, qb)
        slots = [G(p + 2, 0), G(p + 2, 1), G(p + 2, 1), G(p + 2, 2), G(p + 2, 4), G(p + 2, 6)]
        if slots[0] is None:
            tail_main += ops
        else:
            for x, k in zip(ops, slots): g.vec[k].append(x)
        if nb & 1:
            u = 2 * j + (nb >> 1)
            if sgap[(u, qb)] is None: tail_main += stores[(u, qb)][0] + [nop(1), stores[(u, qb)][1]]
    if OPT.p3_tiles and local:
        for j in range(1, 7): g.pre[P(j, 0)] = stamp(f"tile{j}") + g.pre[P(j, 0)]
    if lead is not None: a(lead)
    em = g.emit()
    if "allst" in OPT.p3_drop: em = [x for x in em if x.kind != "vst"]
    if "pst" in OPT.p3_drop: em = [x for x in em if not (x.kind == "vst" and x.meta.get("tag", "").startswith("st"))]
    if "nospin" in OPT.p3_drop: em = [x for x in em if not (x.kind == "branch" and "vccnz" in x.text)]
    if "novm" in OPT.p3_drop: em = [x for x in em if not (x.kind == "wait" and "vmtags" in x.meta and not x.meta["vmtags"][0].startswith("wo"))]
    if "nold" in OPT.p3_drop: em = [x for x in em if not (x.kind == "vld" and x.meta.get("tag", "").startswith("rl"))]
    o += stamp("p3_stream_start") if (local or not OPT.fused) else []
    o += em
    if local or not OPT.fused: o += stamp("p3_mfma_end")
    a(nop(7)); o += exposed(tail_main)
    if local:
        todo = [u for u in range(14) if done[u] != "all"]
        LD = lambda u: [x for sc, d in ring_loads(u) for x in sc + [d]]
        POLL = lambda u: (lambda p: p[0] + [p[1]])(flag_poll(S_FPR, u, V_PP, f"pp{u}"))
        CHK = lambda u: flag_check(S_FPR, u, V_PP, f"pp{u}", f"prod{u}")
        SIG = lambda u: (lambda p: [wait_tag(f"st{u}")] + p[0] + [p[1]])(flag_store(S_FPW, u, f"sig{u}"))
        OUT = lambda u: (lambda p: p[0] + [p[1]])(ring_out(u))
        if OPT.tail2 and [done[u] for u in todo] == ["out", "loads", "poll", "sig"] and todo == [10, 11, 12, 13]:
            o += LD(11) + POLL(12) + SIG(13) + stamp("x_last_signal") + OUT(10)
            o += CHK(12) + LD(12) + [wait_tag("rl11")] + ring_mfmas(11)
            o += POLL(13) + CHK(13) + LD(13)
            o += [wait_tag("rl12")] + ring_mfmas(12) + [nop(3)] + OUT(11)
            o += [wait_tag("rl13")] + ring_mfmas(13) + [nop(3)] + OUT(12) + [nop(7)] + OUT(13)
        else:
            for u in todo:
                if done[u] == "sig": o += SIG(u)
            o += stamp("x_last_signal")
            for u in todo:
                if done[u] != "out":
                    if done[u] in ("sig", "poll"): o += POLL(u)
                    if done[u] in ("sig", "poll", "check"): o += CHK(u)
                    o += LD(u) + [wait_tag(f"rl{u}")] + ring_mfmas(u) + [nop(7)]
                o += OUT(u)
    return o

def phase3():
    o = []; a = o.append
    a(label("L_p3_entry"))
    a(wait_tag("wt", "wo0")); a(raw("s_waitcnt lgkmcnt(0)", "wait", lgkm=0)); a(barrier())
    a(valu(f"v_mov_b32 v1, {L_VOTE}", [], ["v1"]))
    a(ds_read128("v", V_SP, 1, 0)); a(wait_lgkm(0))
    a(valu(f"v_or3_b32 v{V_SP}, v{V_SP}, v{V_SP+1}, v{V_SP+2}", R("v", V_SP, 3), [f"v{V_SP}"]))
    a(valu(f"v_or_b32 v{V_SP}, v{V_SP}, v{V_SP+3}", [f"v{V_SP}", f"v{V_SP+3}"], [f"v{V_SP}"])); a(nop(0))
    a(valu(f"v_readfirstlane_b32 s50, v{V_SP}", [f"v{V_SP}"], ["s50"])); a(nop(3))
    a(salu(f"s_cmp_eq_u32 s{S_SAFE}, 0")); a(salu("s_cselect_b32 s50, s50, 0"))
    a(salu("s_cmp_lg_u32 s50, 0")); a(raw("s_cbranch_scc1 L_restart", "branch"))
    OOL.extend([label("L_restart"), wait_vm(0), raw("s_waitcnt lgkmcnt(0)", "wait", lgkm=0), barrier(),
                salu(f"s_mov_b32 s{S_SAFE}, 1"), raw("s_branch L_again", "branch")])
    o += p3_setup()
    if OPT.fused: o += ring_setup()
    o += va_shift(WOBUF[0] - L_V)
    if OPT.fused: o += mode_check()
    carried = []
    for s_ in range(8):
        for jj in range(2):
            r = wo_read(0, s_, jj); a(r); carried.append(r.wr)
            if len(carried) == 14: a(wait_lgkm(6)); carried = carried[-6:]
    a(barrier())
    if OPT.wo_stage:
        a(valu(f"v_lshlrev_b32 v{V_WOW}, 4, v{V_LANE}", [f"v{V_LANE}"], [f"v{V_WOW}"]))
        a(valu(f"v_add_u32 v{V_WOW}, s{S_W1K}, v{V_WOW}", [f"v{V_WOW}"], [f"v{V_WOW}"]))
    else:
        for sc, d in wo_dma(4): o += sc + [nop(0), d]
    if not OPT.fused:
        return o, p3_stream(False, carried) + stamp("p3_end") + ([wait_vm(0)] if OPT.stamps else []) + stamp("rt_end"), []
    o += [salu(f"s_cmp_eq_u32 s{S_LOCM}, 0"), raw("s_cbranch_scc1 L_p3_far", "branch")]
    loc = p3_stream(True, carried)
    loc += stamp("p3_end") + ([wait_vm(0)] if OPT.stamps else []) + stamp("rt_end")
    far = [label("L_p3_far")] + far_setup() + p3_stream(False, carried) + handoff_far()
    for j in range(7):
        for sc, d in red_loads(j): far += sc + [d]
    for j in range(7):
        far.append(wait_tag(f"rl{j}"))
        far += red_mfmas(j)
        if j > 0:
            cv, stt = red_out(j - 1); far += cv + [stt]
    far.append(nop(7))
    cv, stt = red_out(6); far += cv + [stt]
    far += [wait_vm(0), raw("s_endpgm", "branch")]
    return o, loc, far

def dump_regs(base, n, agpr=False):
    o = [wait_vm(0), raw("s_waitcnt lgkmcnt(0)", "wait", lgkm=0), nop(7), nop(7),
         salu(f"s_lshl_b32 s{S_T0}, s2, 2"), salu(f"s_add_u32 s{S_T0}, s{S_T0}, s{S_W}"),
         salu(f"s_mul_i32 s{S_T0}, s{S_T0}, {n*256}"), valu(f"v_lshlrev_b32 v1, 2, v{V_LANE}", [f"v{V_LANE}"], ["v1"])]
    for r in range(n):
        if agpr:
            o.append(valu(f"v_accvgpr_read_b32 v2, a{base+r}", [f"a{base+r}"], ["v2"])); o.append(bstore(2, 1, 1, S_WS, f"s{S_T0}", 0))
        else:
            o.append(bstore(base + r, 1, 1, S_WS, f"s{S_T0}", 0))
        o.append(salu(f"s_add_u32 s{S_T0}, s{S_T0}, 256"))
        if r % 32 == 31 or agpr: o.append(wait_vm(0))
    return o

def stamp_out():
    if not OPT.stamps: return []
    if OPT.dma_stamps: STAMPS[:] = [f"dma{i}" for i in range(10)] + ["loopcyc"]
    if OPT.bar_stamps: STAMPS.extend(["acc_vm", "acc_bar"])
    n = len(STAMPS)
    o = [raw("s_waitcnt lgkmcnt(0)", "wait", lgkm=0), salu(f"s_cmp_lg_u32 s{S_W}, 0"), raw("s_cbranch_scc1 L_nostamp", "branch")]
    if OPT.stamp_dbg >= 0:
        o += [salu(f"s_cmp_lg_u32 s2, {OPT.stamp_dbg}"), raw("s_cbranch_scc1 L_nostamp", "branch")]
        o += [salu("s_load_dwordx2 s[36:37], s[0:1], 88"), raw("s_waitcnt lgkmcnt(0)", "wait", lgkm=0)]
        o += [salu(f"s_mov_b32 s{S_WS}, s36"), salu(f"s_mov_b32 s{S_WS+1}, s37"), salu(f"s_mov_b32 s{S_WS+2}, 256"), salu(f"s_mov_b32 s{S_T0}, 0")]
    else:
        o.append(salu(f"s_mul_i32 s{S_T0}, s2, 64")); o.append(salu(f"s_add_u32 s{S_T0}, s{S_T0}, {STAMP_OFF}"))
        o.append(salu(f"s_mov_b32 s{S_WS+2}, {STAMP_OFF + 256*64}"))
    o.append(valu("v_mov_b32 v1, 0", [], ["v1"]))
    for k in range(n):
        if OPT.stamp_dbg >= 0:
            ref = 0 if STAMPS[k].startswith("rt") else 1
            o.append(salu(f"s_sub_u32 s{S_T1}, s{S_STAMP+2*k}, s{S_STAMP+2*ref}"))
            o.append(valu(f"v_mov_b32 v2, s{S_T1}", [], ["v2"]))
        elif STAMPS[k] == "loopcyc": o.append(valu("v_mov_b32 v2, s100", [], ["v2"]))
        elif STAMPS[k] == "acc_vm": o.append(valu("v_mov_b32 v2, s92", [], ["v2"]))
        elif STAMPS[k] == "acc_bar": o.append(valu("v_mov_b32 v2, s93", [], ["v2"]))
        else:
            o.append(valu(f"v_mov_b32 v2, s{S_STAMP+2*k}", [], ["v2"]))
        o.append(bstore(2, 1, 1, S_WS, f"s{S_T0}", 4 * k)); o.append(wait_vm(0))
    o.append(label("L_nostamp"))
    return o

def finish(): return [wait_vm(0), label("L_end"), raw("s_endpgm", "branch")]

def trip_seq(ex):
    return [raw("s_memtime s[98:99]", "salu"), raw("s_memrealtime s[100:101]", "salu"), raw("s_waitcnt lgkmcnt(0)", "wait", lgkm=0),
            salu(f"s_mov_b32 s99, m0"), salu(f"s_mov_b32 m0, s{S_LOOP}"), nop(0), valu(f"v_writelane_b32 v1, s98, m0", ["s98"], ["v1"]),
            salu(f"s_add_u32 m0, s{S_LOOP}, 8"), nop(0), valu(f"v_writelane_b32 v1, s100, m0", ["s100"], ["v1"]),
            salu("s_mov_b32 m0, s99"), salu(f"s_cmp_lg_u32 s{S_LOOP}, {ex}")]
def build(debug=None):
    _stamp_n[0] = 0; STAMPS.clear(); OOL.clear()
    pre = setup() + phase1()
    if debug == "p1":
        pre += stamp("rt_end")
        resolve_vm(pre, [])
        return pre + stamp_out() + finish()
    if debug == "q":
        resolve_vm(pre, []); check(pre, "pre")
        return pre + dump_regs(V_Q, 128) + finish()
    if OPT.dma_mode == "cluster":
        OPT.dma_gaps = ([21, 23, 25, 27], [101, 103, 105, 107]); OPT.nv_prev = 0
    elif OPT.dma_mode == "cluster2":
        OPT.dma_gaps = ([41, 43, 47, 49], [101, 103, 105, 107]); OPT.nv_prev = 0
    NCUR = len(OPT.dma_gaps[1])
    pre += [salu(f"s_cmp_lg_u32 s{S_SAFE}, 0"), raw("s_cbranch_scc1 L_safe_attn", "branch")]
    p, carried = pre_iter(); pre += p
    def batch(t):
        return dma_tile("V", vslot(t + 3), f"s{S_VOFF}", f"V{t+3}") + dma_tile("K", kslot(t + 5), f"s{S_KOFF}", f"K{t+5}")
    pre += wo_setup()
    if OPT.fused: pre += grp_setup()
    def ex0(g, kb):
        put_wo(g, 0, 3, kb, step=8)
    vf0 = OPT.vfirst
    if OPT.early_trips: OPT.vfirst = OPT.vfirst_early
    s0, carried = attn_iter(0, carried, wait_tag("V1", "K2"), [], batch(0)[:NCUR], first=True, adv=False, extra=ex0)
    OPT.vfirst = vf0
    pre += s0
    pre.append(salu(f"s_mov_b32 s{S_LOOP}, 7"))
    if OPT.bar_stamps: pre += [salu("s_mov_b32 s92, 0"), salu("s_mov_b32 s93, 0")]
    pre += stamp("loop_start") + (stamp("rt_ls") if (OPT.bar_stamps or OPT.trip_stamps) else [])
    def loop_body(name):
        nonlocal carried
        lp = [label(name)]
        for u in range(4):
            t = 1 + u
            s, carried = attn_iter(t, carried, wait_vm(12), batch(t - 1)[NCUR:], batch(t)[:NCUR], loopctl=(u == 3), loop_body=True)
            if OPT.dma_stamps and u == 1:
                s2 = []; n = 0
                for x in s:
                    if x.kind == "dma" and n < 5:
                        s2 += [raw(f"s_memtime s[{80+4*n}:{81+4*n}]", "salu"), x, raw(f"s_memtime s[{82+4*n}:{83+4*n}]", "salu")]; n += 1
                    else: s2.append(x)
                s = s2
            lp += s
        return lp
    first_loop = []
    if OPT.early_trips:
        vf = OPT.vfirst; OPT.vfirst = OPT.vfirst_early
        OPT.loop_exit = 7 - OPT.early_trips
        first_loop = loop_body("L_attn_early") + (trip_seq(OPT.loop_exit) if OPT.trip_stamps else []) + [raw("s_cbranch_scc1 L_attn_early", "branch")]
        OPT.vfirst = vf; OPT.loop_exit = 0
    loop = loop_body("L_attn")
    if OPT.trip_stamps: loop += trip_seq(0)
    if OPT.loop_nodma: loop = [x for x in loop if x.kind != "dma"]
    if OPT.loop_nods: loop = [x for x in loop if x.kind != "ds" and not (x.kind == "wait" and "lgkm" in x.meta and x.meta["lgkm"] > 0)]
    if OPT.loop_nomfma: loop = [(nop(1) if x.kind == "mfma" else x) for x in loop]
    if OPT.loop_novalu: loop = [x for x in loop if x.kind not in ("valu", "trans")]
    if OPT.loop_dma_every > 1:
        cnt = [0]
        def keep(x):
            if x.kind != "dma": return True
            cnt[0] += 1
            return cnt[0] % OPT.loop_dma_every == 0
        loop = [x for x in loop if keep(x)]
    loop.append(raw("s_cbranch_scc1 L_attn", "branch"))
    post = stamp("loop_end") + (stamp("rt_le") if OPT.bar_stamps else [])
    if OPT.trip_stamps:
        post += [valu(f"v_lshlrev_b32 v2, 2, v{V_LANE}", [], ["v2"]), salu(f"s_mul_i32 s{S_T1}, s2, 64"),
                 salu(f"s_add_u32 s{S_T1}, s{S_T1}, {STAMP_OFF + 256*64}"), salu(f"s_mov_b32 s{S_WS+2}, {STAMP_OFF + 2*256*64}"),
                 valu("v_cmp_gt_u32 vcc, 16, v0", ["v0"], ["vcc"]), salu(f"s_cmp_eq_u32 s{S_W}, 0"), raw("s_cselect_b64 s[50:51], vcc, 0", "salu"),
                 raw("s_mov_b64 s[54:55], exec", "salu"), raw("s_mov_b64 exec, s[50:51]", "salu"), raw("s_cbranch_execz L_notrip", "branch"),
                 raw(f"buffer_store_dword v1, v2, s[{S_WS}:{S_WS+3}], s{S_T1} offen", "salu"), wait_vm(0), label("L_notrip"), raw("s_mov_b64 exec, s[54:55]", "salu"), wait_vm(0)]
    def ex29(g, kb):
        if OPT.fused: place_vmem(g, 40, [], mode_load(), kb)
        gp = 50
        for j in OPT.wo_touch: gp = place_vmem(g, gp, [], wo_touch(j), kb) + 12
    post += wo_touch_setup()
    s, carried = attn_iter(29, carried, wait_tag("V30", "K32"), batch(28)[NCUR:4], [], adv=False,
                           extra=ex29)
    post += s
    def ex30(g, kb):
        put_wo(g, 1, 3, kb, step=8)
        if OPT.fused:
            k = 2
            for x in ring_scalars(): k = put_scalar(g, k, x) + 1
    s, carried = attn_iter(30, carried, wait_tag("V31"), [], [], adv=False, extra=ex30)
    post += s
    post += last_iter(carried)
    post += stamp("attn_end")
    if debug == "o":
        tailq = dump_regs(V_Q, 128)
    elif debug == "l":
        tailq = dump_regs(V_L, 4)
    else:
        common, loc, far = phase3()
        tailq = common
    post += tailq
    q = resolve_vm(pre, [])
    qexit = ["V30"] * 4 + ["K32"] * 4 + ["V31"] * NCUR
    qb_ = resolve_vm(post, qexit)
    if debug is None:
        resolve_vm(loc, qb_); resolve_vm(far, qb_)
        if far and not OPT.p3_drop: check(loop[1:] + post + far[1:], "loop+post+far", init_lgkm=[x.wr for x in pre if x.kind == "ds"][-8:], init_vm=[[]] * (8 + NCUR))
        post = post + loc
        OOL.extend(far)
    if not (OPT.p1_nowait or OPT.p1_noread or OPT.p1_drop or OPT.loop_nodma or OPT.loop_dma_every > 1 or OPT.loop_nods or OPT.loop_nomfma or OPT.loop_novalu): check(pre + loop[1:] + loop[1:], "pre+loop")
    if not (OPT.p3_drop or OPT.loop_nodma or OPT.loop_dma_every > 1 or OPT.loop_nods or OPT.loop_nomfma or OPT.loop_novalu): check(loop[1:] + post, "loop+post", init_lgkm=[x.wr for x in pre if x.kind == "ds"][-8:], init_vm=[[]] * (8 + NCUR))
    OOL.extend(safe_attn())
    if first_loop: check(pre + first_loop[1:] + first_loop[1:] + loop[1:], "pre+early+loop")
    return pre + first_loop + loop + post + stamp_out() + finish() + OOL

def reduce_kernel():
    o = []; a = o.append
    a(salu("s_cmp_ge_u32 s2, 256")); a(raw("s_cbranch_scc1 R_end", "branch"))
    a(salu("s_load_dwordx2 s[4:5], s[0:1], 80")); a(salu("s_load_dwordx2 s[6:7], s[0:1], 96"))
    a(valu("v_lshrrev_b32 v1, 6, v0", ["v0"], ["v1"])); a(valu("v_and_b32 v0, 63, v0", ["v0"], ["v0"]))
    a(valu("v_readfirstlane_b32 s32, v1", ["v1"], ["s32"]))
    a(salu("s_lshr_b32 s33, s2, 4")); a(salu("s_and_b32 s34, s2, 15"))
    a(salu("s_lshr_b32 s35, s33, 3")); a(salu("s_and_b32 s36, s33, 7"))
    a(salu("s_lshr_b32 s37, s32, 1")); a(salu("s_and_b32 s38, s32, 1"))
    a(valu("v_lshrrev_b32 v2, 5, v0", ["v0"], ["v2"])); a(valu("v_lshlrev_b32 v2, 11, v2", ["v2"], ["v2"]))
    a(valu("v_and_b32 v3, 31, v0", ["v0"], ["v3"])); a(valu("v_lshl_add_u32 v2, v3, 4, v2", ["v3", "v2"], ["v2"]))
    a(salu("s_lshl_b32 s39, s37, 10")); a(salu("s_lshl_b32 s40, s38, 9")); a(salu("s_add_u32 s39, s39, s40"))
    a(valu("v_add_u32 v2, s39, v2", ["v2"], ["v2"]))
    a(valu("v_and_b32 v8, 15, v0", ["v0"], ["v8"])); a(valu("v_lshrrev_b32 v9, 4, v0", ["v0"], ["v9"]))
    a(valu("v_lshrrev_b32 v10, 3, v8", ["v8"], ["v10"])); a(valu("v_and_b32 v11, 1, v9", ["v9"], ["v11"]))
    a(valu("v_and_b32 v12, 1, v8", ["v8"], ["v12"])); a(valu("v_lshlrev_b32 v12, 4, v12", ["v12"], ["v12"]))
    a(valu("v_mov_b32 v13, 0x3f80", [], ["v13"])); a(valu("v_lshlrev_b32 v13, v12, v13", ["v12", "v13"], ["v13"]))
    a(valu("v_cmp_eq_u32 vcc, v10, v11", ["v10", "v11"], ["vcc"])); a(nop(1))
    a(valu("v_cndmask_b32 v13, 0, v13, vcc", ["v13", "vcc"], ["v13"]))
    a(valu("v_bfe_u32 v14, v8, 1, 2", ["v8"], ["v14"]))
    for r in range(4):
        a(valu(f"v_cmp_eq_u32 vcc, {r}, v14", ["v14"], ["vcc"])); a(nop(1))
        a(valu(f"v_cndmask_b32 v{4+r}, 0, v13, vcc", ["v13", "vcc"], [f"v{4+r}"]))
    a(salu("s_lshl_b32 s41, s36, 8")); a(salu("s_lshl_b32 s42, s34, 4")); a(salu("s_add_u32 s41, s41, s42"))
    a(valu("v_add_u32 v3, s41, v8", ["v8"], ["v3"])); a(valu("v_mul_u32_u24 v3, 896, v3", ["v3"], ["v3"]))
    a(salu("s_mul_i32 s42, s35, 448")); a(salu("s_lshl_b32 s43, s37, 5")); a(salu("s_add_u32 s42, s42, s43"))
    a(salu("s_lshl_b32 s43, s38, 3")); a(salu("s_add_u32 s42, s42, s43"))
    a(valu("v_add_u32 v3, s42, v3", ["v3"], ["v3"]))
    a(valu("v_lshl_add_u32 v3, v11, 4, v3", ["v11", "v3"], ["v3"]))
    a(valu("v_lshrrev_b32 v10, 1, v9", ["v9"], ["v10"])); a(valu("v_lshl_add_u32 v3, v10, 2, v3", ["v10", "v3"], ["v3"]))
    a(valu("v_lshlrev_b32 v3, 1, v3", ["v3"], ["v3"]))
    a(raw("s_waitcnt lgkmcnt(0)", "wait", lgkm=0))
    for base, lo, size in ((8, 6, 16 * 7 * 16 * 16 * 2048), (12, 4, 8 * 256 * 896 * 2)):
        a(salu(f"s_mov_b32 s{base}, s{lo}")); a(salu(f"s_mov_b32 s{base+1}, s{lo+1}"))
        a(salu(f"s_mov_b32 s{base+2}, {size}")); a(salu(f"s_mov_b32 s{base+3}, 0x20000"))
    a(salu(f"s_mul_i32 s44, s33, {7*16*32768}")); a(salu("s_lshl_b32 s45, s34, 15")); a(salu("s_add_u32 s44, s44, s45"))
    for j in range(7):
        for i in range(8):
            a(salu(f"s_add_u32 s46, s44, {j*16*32768 + i*4096}"))
            a(tag(bload(16 + (j * 8 + i) * 4, 4, 2, 8, "s46", 0), f"p{j}"))
    for j in range(7):
        a(wait_tag(f"p{j}"))
        d = 240 + 4 * (j & 1)
        for i in range(8):
            a(mfma("v", d, "v", 4, "v", 16 + (j * 8 + i) * 4, None if i == 0 else "v", None if i == 0 else d))
        a(nop(7))
        a(valu(f"v_cvt_pk_bf16_f32 v{d}, v{d}, v{d+1}", [f"v{d}", f"v{d+1}"], [f"v{d}"]))
        a(valu(f"v_cvt_pk_bf16_f32 v{d+1}, v{d+2}, v{d+3}", [f"v{d+2}", f"v{d+3}"], [f"v{d+1}"]))
        a(tag(bstore(d, 2, 3, 12, "0", j * 128), "o"))
    resolve_vm(o, []); check(o, "reduce")
    if OPT.stamps and OPT.stamp_fwd >= 0:
        o += [wait_vm(0), salu("s_cmp_lg_u32 s2, 0"), raw("s_cbranch_scc1 R_end", "branch"),
              salu("s_load_dwordx2 s[20:21], s[0:1], 88"), raw("s_waitcnt lgkmcnt(0)", "wait", lgkm=0),
              salu("s_mov_b32 s16, s20"), salu("s_mov_b32 s17, s21"), salu("s_mov_b32 s18, 64"), salu("s_mov_b32 s19, 0x20000"),
              salu(f"s_mov_b32 s10, {16*7*16*16*2048 + 256*64}"), salu(f"s_mov_b32 s46, {16*7*16*16*2048} + 64*{OPT.stamp_fwd}"),
              valu("v_lshlrev_b32 v2, 2, v0", ["v0"], ["v2"]), bload(3, 1, 2, 8, "s46", 0), wait_vm(0), bstore(3, 1, 2, 16, "0", 0)]
    o += [wait_vm(0), label("R_end"), raw("s_endpgm", "branch")]
    return o

KD = """.section .rodata,"a"
.p2align 6
.amdhsa_kernel {name}
  .amdhsa_next_free_vgpr {vgpr}
  .amdhsa_next_free_sgpr 102
  .amdhsa_accum_offset 256
  .amdhsa_group_segment_fixed_size 0
  .amdhsa_kernarg_size 104
  .amdhsa_user_sgpr_count 2
  .amdhsa_user_sgpr_kernarg_segment_ptr 1
  .amdhsa_system_sgpr_workgroup_id_x 1
.end_amdhsa_kernel
"""
def header_comments():
    ref = open("cdna_kernels/" + NAME + ".s.ref").read().splitlines()
    out = []
    for l in ref:
        if l.startswith("; Override launch") or not l.startswith(";"): break
        out.append(l)
    return out

def stream_kernel():
    t = """
  s_cmp_ge_u32 s2, 256
  s_cbranch_scc1 S_end
  s_load_dwordx2 s[4:5], s[0:1], 8
  s_load_dwordx2 s[6:7], s[0:1], 96
  s_load_dwordx2 s[8:9], s[0:1], 48
  v_lshrrev_b32 v2, 6, v0
  s_nop 0
  v_readfirstlane_b32 s24, v2
  v_and_b32 v1, 63, v0
  v_lshlrev_b32 v14, 4, v1
  s_nop 2
  s_lshl_b32 s25, s24, 12
  v_add_u32 v14, s25, v14
  s_waitcnt lgkmcnt(0)
  s_cmp_lt_u32 s2, 128
  s_cselect_b32 s36, s4, s8
  s_cselect_b32 s37, s5, s9
  s_mov_b32 s38, 0x4000000
  s_mov_b32 s39, 0x20000
  s_and_b32 s32, s2, 127
  s_lshl_b32 s32, s32, 19
  s_barrier
  s_memrealtime s[12:13]
  s_mov_b32 s20, 0
S_loop:
  s_mov_b32 m0, s25
  s_nop 0
  buffer_load_dwordx4 v14, s[36:39], s32 offen nt lds
  buffer_load_dwordx4 v14, s[36:39], s32 offen offset:1024 nt lds
  buffer_load_dwordx4 v14, s[36:39], s32 offen offset:2048 nt lds
  buffer_load_dwordx4 v14, s[36:39], s32 offen offset:3072 nt lds
  s_add_u32 s32, s32, 16384
  s_waitcnt vmcnt(8)
  s_barrier
  s_add_u32 s20, s20, 1
  s_cmp_lt_u32 s20, 32
  s_cbranch_scc1 S_loop
  s_waitcnt vmcnt(0)
  s_barrier
  s_memrealtime s[16:17]
  s_waitcnt lgkmcnt(0)
  s_sub_u32 s16, s16, s12
  s_mov_b32 s40, s6
  s_mov_b32 s41, s7
  s_mov_b32 s42, %d
  s_mov_b32 s43, 0x20000
  s_mul_i32 s33, s2, 64
  s_add_u32 s33, s33, %d
  v_mov_b32 v2, s16
  v_mov_b32 v1, 0
  buffer_store_dword v2, v1, s[40:43], s33 offen
  s_waitcnt vmcnt(0)
S_end:
  s_endpgm""" % (16*7*16*16*2048 + 256*64, 16*7*16*16*2048 + 60)
    return t

def assemble_file(debug=None):
    main = build(debug)
    red = reduce_kernel()
    k1 = NAME + "_kernel"; k2 = "reduce_heads_kernel"
    L = header_comments()
    if OPT.stream0: L.append(f"; @launch kernel=stream_test_kernel grid=(256,1,1) block=(256,1,1) lds={LDS_BYTES}")
    if OPT.fused and not OPT.stream0:
        L.append(f"; @launch grid=(256,1,1) block=(256,1,1) lds={LDS_BYTES}")
    else:
        L.append(f"; @launch kernel={k1} grid=(256,1,1) block=(256,1,1) lds={LDS_BYTES}")
        if debug is None and not OPT.fused: L.append(f"; @launch kernel={k2} grid=(256,1,1) block=(256,1,1) lds=0")
    L.append('.amdgcn_target "amdgcn-amd-amdhsa--gfx950"')
    L.append(".text")
    for nm, body in ((k1, main), (k2, red)) if not OPT.fused else ((k1, main),):
        L += [f".globl {nm}", ".p2align 8", f".type {nm},@function", f"{nm}:", text(body)]
    if OPT.stream0: L += [".globl stream_test_kernel", ".p2align 8", ".type stream_test_kernel,@function", "stream_test_kernel:", stream_kernel()]
    L.append(KD.format(name=k1, vgpr=512))
    if not OPT.fused: L.append(KD.format(name=k2, vgpr=256))
    if OPT.stream0: L.append(KD.format(name="stream_test_kernel", vgpr=512))
    return "\n".join(L) + "\n"

if __name__ == "__main__":
    dbg = sys.argv[2] if len(sys.argv) > 2 and sys.argv[2] != "none" else None
    for kv in sys.argv[3:]:
        k, v = kv.split("=")
        v = v.replace("+", " ")
        setattr(OPT, k, {"True": True, "False": False, "()": ()}.get(v, int(v) if v.lstrip("-").isdigit() else (eval(v) if v.startswith("(") else v)))
    open(sys.argv[1], "w").write(assemble_file(dbg))
    print("stamps:", STAMPS)
```

```python
import math, struct, sys
from core import *

NAME = "concat_heads__mha_block_cached__mha_block_cached__near_ridge"
def f32bits(x): return struct.unpack("<I", struct.pack("<f", x))[0]
CSC = math.log2(math.e) / 16.0

S_X, S_WQ, S_K, S_V, S_WO, S_WS, S_OUT = 4, 8, 12, 16, 20, 24, 28
S_W, S_W1K = 32, 33
S_QB = ["0", "s34", "s35", "s62"]
S_C = 63
S_KOFF, S_VOFF = 64, 65
S_LOOP = 66
S_T0, S_T1, S_T2, S_T3 = 67, 68, 69, 70
S_G, S_H, S_B, S_BR = 71, 72, 73, 74
S_WOFF = 76
S_PART = 77
S_WCUR, S_WSTEP, S_XSTEP = 78, 79, 75
S_FL, S_DBG = 36, 40
S_LOCM = 44
S_RBASE, S_SIG, S_POLL, S_XCC = 46, 47, 48, 49
S_RG = 56
S_SPIN = 62
S_SAFE = 3
S_ROT = 52
S_PFO = 53
S_RST, S_RLD, S_FPW, S_FPR, S_FCW, S_FCR = 60, 61, 75, 78, 79, 76
S_STAMP = 80
V_LANE = 0
V_KA = [4, 5]
V_VA = [6, 7, 8, 9]
V_DK, V_DV = 10, 11
V_L = 12
V_MC = 16
V_SP = 20
V_POOL = 32
V_S = 64
V_P = 96
V_Q = 128
V_XA = 20; V_DW = 21; V_WA = [[22, 23], [24, 25], [26, 27]]
V_CT = 28
V_ARR = 24
L_K = 0; L_V = 65536; L_X = 131072
def kslot(t): return L_K + 16384 * (t % 4)
def vslot(t): return L_V + 16384 * (t % 4)
LDS_BYTES = 163840
L_VOTE = L_V + 2 * 16384
L_LIMIT = 2.0 ** 30

PART_BYTES = 16 * 7 * 16 * 16 * 2048
FLAG_BYTES = 16 * 7 * 4 * 64
STAMP_OFF = PART_BYTES + 32768
RING_OFF = PART_BYTES + (1 << 20)
RING_BYTES = 32 << 20
CONS_OFF = 16384
SPIN_MAX = 1 << 19
class Opt:
    kv_flags = "nt"
    w_flags = ""
    x_flags = ""
    wo_flags = ""
    st_flags = ""
    stamps = False
    tlbwarm = 0
    remap = 0
    tail2 = True
    tmpl = 0
    wo_stage = False
    p3_tiles = False
    early_trips = 0
    vfirst_early = 37
    loop_exit = 0
    xwarm = False
    kvmin = False
    vfirst = 0
    dma_stamps = False
    rot = 0
    pad_iter = 0
    last_st = ''
    out_flags = ''
    coopw = False
    coopw_init = 2
    pf_flags = ''
    early_wb = 0
    wt_flags = ''
    prod_delay = 0
    ring = 4
    vm_space = 0
    p3_drop = ''
    wo_step = 13
    cons_chk = 22
    wo_touch = (4, 5, 6)
    red_m = 200
    cons_poll = 50
    ld_min = 16
    stamp_skip = 'p1_first_data,pre_iter_end'
    p3detail = -1
    st_lag = 21
    force_fallback = False
    red_at = 60
    sig_lag = 28
    poll_lag = 22
    chk_lag = 22
    fused = True
    stream0 = False
    loop_nods = False
    loop_nomfma = False
    loop_novalu = False
    loop_nodma = False
    loop_dma_every = 1
    bar_stamps = False
    trip_stamps = False
    dma_mode = 'spread'
    dma_gaps = ([5, 21, 37, 53, 69, 85], [101, 117])
    nv_prev = 2
    stamp_fwd = -1
    stamp_dbg = -1
    x_rd_gap0 = 65
    x_rd_gap = 33
    p1_steps = False
    p1_drop = ''
    rev = True
    init_w = 2
    early_step = 2
    x_gap = 60
    p1_nowait = False
    p1_noread = False
    wring = 3
    kvpf = 'early'
    coopx = False
    init_more = 0
OPT = Opt()

def wait_tag(*tags): return I("s_waitcnt vmcnt(?)", "wait", vmtags=list(tags))
def tag(ins, t):
    ins.meta["tag"] = t; return ins
def resolve_vm(stream, queue):
    q = list(queue)
    for ins in stream:
        if ins.kind in ("dma", "vld", "vst"):
            q.append(ins.meta.get("tag", "?"))
        elif ins.kind == "wait":
            if "vmtags" in ins.meta:
                idx = [n for n, t in enumerate(q) if t in ins.meta["vmtags"]]
                n = len(q) - 1 - max(idx) if idx else len(q)
                n = min(n, 63)
                ins.text = f"s_waitcnt vmcnt({n})"; ins.meta["vm"] = n
            if "vm" in ins.meta:
                n = ins.meta["vm"]
                if len(q) > n: q = q[len(q) - n:] if n else []
    return q

_stamp_n = [0]
def stamp(name):
    if not OPT.stamps: return []
    if OPT.dma_stamps:
        if name == "loop_start": return [raw("s_memtime s[100:101]", "salu"), raw("s_waitcnt lgkmcnt(0)", "wait", lgkm=0)]
        if name == "loop_end": return [raw("s_memtime s[76:77]", "salu"), raw("s_waitcnt lgkmcnt(0)", "wait", lgkm=0), salu("s_sub_u32 s100, s76, s100")]
        return []
    if OPT.stamp_skip and name in OPT.stamp_skip.split(","): return []
    if OPT.p3detail >= 0 and not name.startswith("d_") and name not in ("rt_end",): return []
    if OPT.bar_stamps and name not in ("rt_ls", "rt_le", "loop_start", "loop_end", "rt_end"): return []
    n = _stamp_n[0]; _stamp_n[0] += 1
    STAMPS.append(name)
    op = "s_memrealtime" if name.startswith("rt") else "s_memtime"
    return [raw(f"{op} s[{S_STAMP+2*n}:{S_STAMP+2*n+1}]", "salu")]
STAMPS = []

def m0_set(base): return salu(f"s_add_u32 m0, s{S_W1K}, {base}", [f"s{S_W1K}"], ["m0"])

def dma_tile(kind, slot_base, soff, tg):
    voff, srd, fl = {"K": (V_DK, S_K, OPT.kv_flags), "V": (V_DV, S_V, OPT.kv_flags), "W": (V_DW, S_WQ, OPT.w_flags)}[kind]
    return [(m0_set(slot_base + dc * 3968), tag(dma(voff, srd, soff, dc * 128, fl), tg)) for dc in range(4)]

def setup():
    o = []; a = o.append
    a(salu("s_cmp_ge_u32 s2, 256")); a(raw("s_cbranch_scc1 L_end", "branch"))
    o += stamp("rt_start") + stamp("start")
    if OPT.remap:
        a(salu("s_lshr_b32 s4, s2, 3")); a(salu("s_add_u32 s4, s4, s2")); a(salu("s_and_b32 s4, s4, 7"))
        a(salu("s_andn2_b32 s5, s2, 7")); a(salu("s_or_b32 s4, s4, s5"))
        if OPT.remap == 2: a(salu("s_cmp_ge_u32 s2, 128")); a(salu("s_cselect_b32 s2, s4, s2"))
        else: a(salu("s_mov_b32 s2, s4"))
    a(valu("v_lshrrev_b32 v1, 6, v0", ["v0"], ["v1"]))
    a(valu(f"v_and_b32 v{V_LANE}, 63, v0", ["v0"], ["v0"]))
    a(salu(f"s_mov_b32 s{S_SAFE}, 0"))
    a(valu(f"v_readfirstlane_b32 s{S_W}, v1", ["v1"], [f"s{S_W}"]))
    a(label("L_again"))
    a(salu("s_load_dwordx16 s[36:51], s[0:1], 0")); a(salu("s_load_dwordx8 s[52:59], s[0:1], 64"))
    a(salu("s_load_dwordx2 s[60:61], s[0:1], 96"))
    a(nop(3))
    a(salu(f"s_and_b32 s{S_T0}, s2, 7")); a(salu(f"s_lshr_b32 s{S_T1}, s2, 3"))
    a(salu(f"s_and_b32 s{S_H}, s{S_T1}, 15")); a(salu(f"s_lshr_b32 s{S_T1}, s{S_T1}, 4"))
    a(salu(f"s_lshl_b32 s{S_G}, s{S_T0}, 1")); a(salu(f"s_add_u32 s{S_G}, s{S_G}, s{S_T1}"))
    a(salu(f"s_lshr_b32 s{S_BR}, s{S_G}, 3")); a(salu(f"s_and_b32 s{S_B}, s{S_G}, 7"))
    a(salu(f"s_lshl_b32 s{S_W1K}, s{S_W}, 10"))
    if OPT.rot:
        a(salu(f"s_and_b32 s{S_T0}, s2, 7")); a(salu(f"s_mul_i32 s{S_T0}, s{S_T0}, {OPT.rot}")); a(salu(f"s_lshr_b32 s{S_T1}, s2, 3"))
        a(salu(f"s_add_u32 s{S_T0}, s{S_T0}, s{S_T1}")); a(salu(f"s_and_b32 s{S_T0}, s{S_T0}, 31")); a(salu(f"s_lshl_b32 s33, s{S_T0}, 14") if False else salu(f"s_lshl_b32 s{S_T3}, s{S_T0}, 14"))
    a(salu(f"s_mov_b32 s{S_C}, 0x{f32bits(CSC):08x}"))
    L = f"v{V_LANE}"
    def vv(t, rd, wr): a(valu(t, rd, wr))
    vv(f"v_and_b32 v1, 15, {L}", [L], ["v1"]); vv(f"v_lshrrev_b32 v2, 4, {L}", [L], ["v2"])
    vv("v_lshrrev_b32 v3, 1, v1", ["v1"], ["v3"])
    for sp in range(2):
        r = V_KA[sp]
        vv(f"v_add_u32 v{r}, {4*sp}, v2", ["v2"], [f"v{r}"])
        vv(f"v_xor_b32 v{r}, v{r}, v3", [f"v{r}", "v3"], [f"v{r}"])
        vv(f"v_lshlrev_b32 v{r}, 4, v{r}", [f"v{r}"], [f"v{r}"])
        vv(f"v_lshl_add_u32 v{r}, v1, 7, v{r}", ["v1", f"v{r}"], [f"v{r}"])
    vv(f"v_lshrrev_b32 v1, 3, {L}", [L], ["v1"]); vv(f"v_and_b32 v2, 7, {L}", [L], ["v2"])
    vv(f"v_lshl_add_u32 v3, s{S_W}, 3, v1", ["v1", f"s{S_W}"], ["v3"])
    vv("v_bfe_u32 v28, v3, 1, 1", ["v3"], ["v28"]); vv("v_lshlrev_b32 v28, 2, v28", ["v28"], ["v28"])
    vv("v_xor_b32 v28, v28, v2", ["v28", "v2"], ["v28"]); vv("v_lshlrev_b32 v28, 4, v28", ["v28"], ["v28"])
    vv(f"v_lshl_add_u32 v{V_DW}, v3, 13, v28", ["v3", "v28"], [f"v{V_DW}"])
    a(raw("s_waitcnt lgkmcnt(0)", "wait", lgkm=0))
    a(salu(f"s_cmp_eq_u32 s{S_BR}, 0"))
    for i in range(10): a(salu(f"s_cselect_b32 s{36+i}, s{36+i}, s{46+i}"))
    if OPT.rot: a(salu(f"s_mov_b32 s{S_ROT}, s{S_T3}"))
    def srd(base, lo, hi, offs, size):
        if offs is None:
            a(salu(f"s_mov_b32 s{base}, s{lo}")); a(salu(f"s_mov_b32 s{base+1}, s{hi}"))
        else:
            a(salu(f"s_add_u32 s{base}, s{lo}, {offs}")); a(salu(f"s_addc_u32 s{base+1}, s{hi}, 0"))
        a(salu(f"s_mov_b32 s{base+2}, {size}")); a(salu(f"s_mov_b32 s{base+3}, 0x20000"))
    a(salu(f"s_mul_i32 s{S_T0}, s{S_B}, 229376")); srd(S_X, 36, 37, f"s{S_T0}", 229376)
    a(salu(f"s_lshl_b32 s{S_T0}, s{S_H}, 9")); srd(S_WQ, 42, 43, f"s{S_T0}", 0)
    a(salu(f"s_sub_u32 s{S_WQ+2}, {448*8192}, s{S_T0}"))
    return o

def setup_b():
    o = []; a = o.append
    L = f"v{V_LANE}"
    def vv(t, rd, wr): a(valu(t, rd, wr))
    vv(f"v_lshrrev_b32 v2, 4, {L}", [L], ["v2"])
    vv(f"v_bfe_u32 v28, {L}, 2, 2", [L], ["v28"]); vv(f"v_and_b32 v29, 3, {L}", [L], ["v29"])
    vv("v_lshl_add_u32 v30, v2, 2, v28", ["v2", "v28"], ["v30"])
    vv("v_bfe_u32 v31, v30, 1, 2", ["v30"], ["v31"])
    for p in range(4):
        r = V_VA[p]
        vv(f"v_xor_b32 v{r}, {p}, v31", ["v31"], [f"v{r}"])
        vv(f"v_lshlrev_b32 v{r}, 5, v{r}", [f"v{r}"], [f"v{r}"])
        vv(f"v_lshl_add_u32 v{r}, v30, 7, v{r}", ["v30", f"v{r}"], [f"v{r}"])
        vv(f"v_lshl_add_u32 v{r}, v29, 3, v{r}", ["v29", f"v{r}"], [f"v{r}"])
        vv(f"v_add_u32 v{r}, {L_V}, v{r}", [f"v{r}"], [f"v{r}"])
    vv("v_lshl_add_u32 v30, v2, 3, v28", ["v2", "v28"], ["v30"])
    vv("v_lshrrev_b32 v31, 1, v28", ["v28"], ["v31"])
    for sp in range(2):
        r = V_WA[0][sp]
        vv(f"v_xor_b32 v{r}, {sp}, v31", ["v31"], [f"v{r}"])
        vv(f"v_lshl_add_u32 v{r}, v{r}, 2, v29", [f"v{r}", "v29"], [f"v{r}"])
        vv(f"v_lshlrev_b32 v{r}, 4, v{r}", [f"v{r}"], [f"v{r}"])
        vv(f"v_lshl_add_u32 v{r}, v30, 7, v{r}", ["v30", f"v{r}"], [f"v{r}"])
        for win in (1, 2):
            vv(f"v_add_u32 v{V_WA[win][sp]}, {65536*win}, v{r}", [f"v{r}"], [f"v{V_WA[win][sp]}"])
    vv(f"v_lshrrev_b32 v1, 3, {L}", [L], ["v1"]); vv(f"v_and_b32 v2, 7, {L}", [L], ["v2"])
    vv(f"v_lshl_add_u32 v3, s{S_W}, 3, v1", ["v1", f"s{S_W}"], ["v3"])
    vv("v_bfe_u32 v28, v3, 1, 3", ["v3"], ["v28"]); vv("v_xor_b32 v28, v28, v2", ["v28", "v2"], ["v28"])
    vv("v_lshlrev_b32 v28, 4, v28", ["v28"], ["v28"]); vv(f"v_lshl_add_u32 v{V_DK}, v3, 9, v28", ["v3", "v28"], [f"v{V_DK}"])
    vv("v_bfe_u32 v28, v3, 1, 2", ["v3"], ["v28"]); vv("v_lshlrev_b32 v28, 1, v28", ["v28"], ["v28"])
    vv("v_xor_b32 v28, v28, v2", ["v28", "v2"], ["v28"]); vv("v_lshlrev_b32 v28, 4, v28", ["v28"], ["v28"])
    vv(f"v_lshl_add_u32 v{V_DV}, v3, 9, v28", ["v3", "v28"], [f"v{V_DV}"])
    def srd(base, lo, hi, offs, size):
        if offs is None:
            a(salu(f"s_mov_b32 s{base}, s{lo}")); a(salu(f"s_mov_b32 s{base+1}, s{hi}"))
        else:
            a(salu(f"s_add_u32 s{base}, s{lo}, {offs}")); a(salu(f"s_addc_u32 s{base+1}, s{hi}, 0"))
        a(salu(f"s_mov_b32 s{base+2}, {size}")); a(salu(f"s_mov_b32 s{base+3}, 0x20000"))
    a(salu(f"s_lshl_b32 s{S_T0}, s{S_B}, 4")); a(salu(f"s_add_u32 s{S_T0}, s{S_T0}, s{S_H}"))
    a(salu(f"s_lshl_b32 s{S_T0}, s{S_T0}, 19"))
    srd(S_K, 38, 39, f"s{S_T0}", 524288); srd(S_V, 40, 41, f"s{S_T0}", 524288)
    a(salu(f"s_mul_i32 s{S_T0}, s{S_H}, 229376")); srd(S_WO, 44, 45, f"s{S_T0}", 229376)
    srd(S_WS, 60, 61, None, 16 * 7 * 16 * 16 * 2048)
    srd(S_OUT, 56, 57, None, 8 * 256 * 896 * 2)
    if OPT.fused:
        srd(S_DBG, 58, 59, None, 256)
        a(salu(f"s_mov_b32 s{S_T0}, {PART_BYTES}")); srd(S_FL, 60, 61, f"s{S_T0}", 32768)
        a(salu(f"s_mov_b32 s{S_T0}, {RING_OFF}")); a(salu(f"s_add_u32 s54, s60, s{S_T0}")); a(salu("s_addc_u32 s55, s61, 0"))
        a(salu(f"s_mov_b32 s{S_RG}, s54")); a(salu(f"s_mov_b32 s{S_RG+1}, s55")); a(salu(f"s_mov_b32 s{S_RG+2}, {RING_BYTES}")); a(salu(f"s_mov_b32 s{S_RG+3}, 0x20000"))
        a(salu(f"s_getreg_b32 s{S_XCC}, hwreg(HW_REG_XCC_ID, 0, 3)"))
        a(salu(f"s_lshl_b32 s{S_SIG}, s{S_G}, 4")); a(salu(f"s_add_u32 s{S_SIG}, s{S_SIG}, s{S_H}"))
        a(salu(f"s_mul_i32 s{S_T0}, s{S_G}, {14*64}"))
        a(salu(f"s_lshl_b32 s{S_T1}, s{S_W}, 4")); a(salu(f"s_add_u32 s{S_T1}, s{S_T1}, s{S_H}")); a(salu(f"s_add_u32 s50, s{S_T0}, s{S_T1}"))
        a(salu(f"s_lshl_b32 s{S_T1}, s{S_H}, 2")); a(salu(f"s_add_u32 s{S_T1}, s{S_T1}, s{S_W}")); a(salu(f"s_add_u32 s51, s{S_T0}, s{S_T1}"))
        a(salu(f"s_add_u32 s51, s51, {CONS_OFF}"))
        a(valu(f"v_min_u32 v1, 13, v{V_LANE}", [f"v{V_LANE}"], ["v1"])); a(valu("v_lshlrev_b32 v1, 6, v1", ["v1"], ["v1"]))
        a(valu("v_mov_b32 v2, 0", [], ["v2"]))
        for sr in ("s50", "s51"):
            a(tag(I(f"buffer_store_byte v2, v1, s[{S_FL}:{S_FL+3}], {sr} offen", "vst", ["v1", "v2"], data=["v2"]), "reset"))
    if OPT.tlbwarm:
        a(valu("v_mov_b32 v134, 0", [], ["v134"]))
        items = [(S_K, "0"), (S_V, "0"), (S_WO, "0")]
        a(salu(f"s_mul_i32 s50, s{S_G}, {OPT.ring * 262144}")); items.append((S_RG, "s50"))
        a(salu(f"s_mul_i32 s51, s{S_B}, {256*896*2}")); items.append((S_OUT, "s51"))
        for n, (srd_, so) in enumerate(items[:OPT.tlbwarm]):
            a(tag(bload(135 + n, 1, 134, srd_, so, 0), "tlb"))
    return o

def add_lgkm_waits(g, cons, carried):
    seq = [(-1, regs) for regs in carried]
    for k in range(g.n):
        if g.mem[k] is not None and g.mem[k].kind == "ds": seq.append((k, g.mem[k].wr))
    lead = None
    for k, regs in cons:
        late = [n for n, (gap, w) in enumerate(seq) if gap == k - 1 and gap >= 0 and set(w) & set(regs)]
        assert not late, f"DS for MFMA {k} issued in gap {k-1}"
        idx = [n for n, (gap, w) in enumerate(seq) if gap < max(k - 1, 0) and set(w) & set(regs)]
        if not idx: continue
        last = max(idx)
        after = sum(1 for n, (gap, w) in enumerate(seq) if n > last and gap < max(k - 1, 0))
        assert after <= 15, (k, after)
        if k == 0: lead = wait_lgkm(after)
        else: g.pre[k - 1].insert(0, wait_lgkm(after))
    out = len(carried)
    if lead is not None: out = min(out, lead.meta["lgkm"])
    for k in range(g.n):
        for x in g.pre[k]:
            if "lgkm" in x.meta: out = min(out, x.meta["lgkm"])
        if g.mem[k] is not None and g.mem[k].kind == "ds":
            if out >= 14:
                g.pre[k].insert(0, wait_lgkm(8)); out = 8
            out += 1
    return lead

def place_vmem(g, gap, scalars, d, hi=None, stack=False, space=False):
    k = max(gap, 1 if stack else len(scalars))
    hi = g.n if hi is None else hi
    isdma = lambda x: x is not None and x.kind == "dma"
    while True:
        assert k < hi, f"no gap for {d.text}"
        near = OPT.vm_space and any(0 <= k + dd < g.n and dd != 0 and g.mem[k + dd] is not None and g.mem[k + dd].kind in ("vst", "vld", "dma")
                                    for dd in range(-OPT.vm_space, OPT.vm_space + 1))
        if g.mem[k] is None and not g.vec[k] and len(g.pre[k]) <= 1 and not (near and space):
            if stack:
                if not isdma(g.mem[k - 1]) and len(g.pre[k - 1]) + len(scalars) <= 3 and not any(x.kind == "barrier" for x in g.pre[k - 1]): break
            elif all(not g.pre[k - 1 - n] and not isdma(g.mem[k - 1 - n]) for n in range(len(scalars))): break
        k += 1
    if stack:
        for sc in scalars: g.put_pre(k - 1, sc)
    else:
        for n, sc in enumerate(scalars): g.put_pre(k - len(scalars) + n, sc)
    g.put_mem(k, d)
    return k

def put_scalar(g, gap, *ins):
    k = gap
    while g.pre[k]: k += 1
    g.pre[k] = list(ins)
    return k

def place_chain(g, ops, lo, hi):
    left = []
    for ins in ops:
        k = g.place_vec(ins, lo, hi) if (not left and lo < hi) else None
        if k is None: left.append(ins)
        else: lo = k + 1 if ins.kind == "trans" else k
    return lo, left

class Op:
    def __init__(self, ins, rel, dl, preds=()):
        self.ins = ins; self.rel = rel; self.dl = dl; self.preds = list(preds); self.gap = None

def list_schedule(g, ops, lo=0, hi=None):
    hi = g.n if hi is None else hi
    todo = list(ops)
    for k in range(lo, hi):
        while True:
            free = g.free_vec(k)
            if free <= 0: break
            ready = [x for x in todo if x.rel <= k and all(p.gap is not None and p.gap + d <= k for p, d in x.preds)]
            tr = [x for x in ready if x.ins.kind == "trans"]
            pl = [x for x in ready if x.ins.kind != "trans"]
            pick = None
            can_tr = free == 2 and g.mem[k] is None and not g.vec[k]
            if can_tr and tr: pick = min(tr, key=lambda x: x.dl)
            if pl:
                best = min(pl, key=lambda x: x.dl)
                if pick is None or (best.dl + 6 < pick.dl): pick = best
            if pick is None: break
            g.vec[k].append(pick.ins); pick.gap = k; todo.remove(pick)
    late = [x for x in ops if x.gap is not None and x.gap > x.dl]
    assert not late, [(x.ins.text, x.gap, x.dl) for x in late]
    return todo

def sm_ops(tile, kb, qb, rel, dl):
    i = sm_group(tile, kb, qb)
    f = [Op(i[0], rel, dl - 6), Op(i[1], rel, dl - 6), Op(i[4], rel, dl - 5), Op(i[5], rel, dl - 5)]
    x = [Op(i[2], rel, dl - 4, [(f[0], 1)]), Op(i[3], rel, dl - 4, [(f[1], 1)]), Op(i[6], rel, dl - 3, [(f[2], 1)]), Op(i[7], rel, dl - 3, [(f[3], 1)])]
    ad = [Op(i[8], rel, dl, [(x[0], 1)]), Op(i[9], rel, dl, [(x[1], 1)]), Op(i[11], rel, dl, [(x[2], 1)]), Op(i[12], rel, dl, [(x[3], 1)])]
    cv = [Op(i[10], rel, dl, [(x[0], 1), (x[1], 1)]), Op(i[13], rel, dl, [(x[2], 1), (x[3], 1)])]
    return f + x + ad + cv

def exposed(ops):
    o = []
    for n, ins in enumerate(ops):
        o.append(ins)
        if ins.kind == "trans" and n + 1 < len(ops) and ops[n + 1].kind != "trans": o.append(nop(0))
    return o

def conv_ops(acc, d, t):
    return [valu(f"v_accvgpr_read_b32 v{d}, a{acc}", [f"a{acc}"], [f"v{d}"]),
            valu(f"v_accvgpr_read_b32 v{t}, a{acc+1}", [f"a{acc+1}"], [f"v{t}"]),
            valu(f"v_accvgpr_read_b32 v{d+1}, a{acc+2}", [f"a{acc+2}"], [f"v{d+1}"]),
            valu(f"v_accvgpr_read_b32 v{t+1}, a{acc+3}", [f"a{acc+3}"], [f"v{t+1}"]),
            valu(f"v_cvt_pk_bf16_f32 v{d}, v{d}, v{t}", [f"v{d}", f"v{t}"], [f"v{d}"]),
            valu(f"v_cvt_pk_bf16_f32 v{d+1}, v{d+1}, v{t+1}", [f"v{d+1}", f"v{t+1}"], [f"v{d+1}"])]

def xlane_reduce(regs, op, tmp):
    o = []
    for swap in ("v_permlane32_swap_b32", "v_permlane16_swap_b32"):
        for n, r in enumerate(regs): o.append(valu(f"v_mov_b32 v{tmp+n}, v{r}", [f"v{r}"], [f"v{tmp+n}"]))
        o.append(nop(1))
        for n, r in enumerate(regs):
            o.append(valu(f"{swap} v{r}, v{tmp+n}", [f"v{r}", f"v{tmp+n}"], [f"v{r}", f"v{tmp+n}"]))
        o.append(nop(1))
        for n, r in enumerate(regs):
            o.append(valu(f"{op} v{r}, v{r}, v{tmp+n}", [f"v{r}", f"v{tmp+n}"], [f"v{r}"]))
    return o

def wpairs(): return [(L_X, L_X + 16384), (vslot(1), kslot(3)), (vslot(2), vslot(3))]
def wslot(tile):
    p = wpairs(); return p[(tile // 2) % len(p)][tile % 2]
XBUF = [V_S, V_P]
def xfrag(qb, cs): return XBUF[(cs // 2) & 1] + ((cs % 2) * 4 + qb) * 4
V_XD = [128, 129]
V_XR = [130, 131]
S_XB = 34
S_XCUR = 35
def x_setup():
    o = []; a = o.append
    L = f"v{V_LANE}"
    a(salu(f"s_and_b32 s{S_T1}, s{S_W}, 1")); a(salu(f"s_lshl_b32 s{S_T1}, s{S_T1}, 13"))
    a(salu(f"s_cmp_lt_u32 s{S_W}, 2")); a(salu(f"s_cselect_b32 s{S_XB}, 2, 4")); a(salu(f"s_lshl_b32 s{S_XB}, s{S_XB}, 14"))
    a(salu(f"s_add_u32 s{S_XB}, s{S_XB}, s{S_T1}"))
    assert kslot(2) == 2 << 14 and vslot(0) == 4 << 14
    a(valu(f"v_lshrrev_b32 v1, 3, {L}", [L], ["v1"])); a(valu(f"v_and_b32 v2, 7, {L}", [L], ["v2"]))
    a(valu(f"v_lshl_add_u32 v3, s{S_W}, 6, v1", ["v1", f"s{S_W}"], ["v3"]))
    a(valu("v_mul_u32_u24 v3, 896, v3", ["v3"], ["v3"]))
    a(valu("v_lshrrev_b32 v1, 1, v1", ["v1"], ["v1"]))
    for par in range(2):
        r = V_XD[par]
        a(valu(f"v_or_b32 v{r}, {4*par}, v1", ["v1"], [f"v{r}"]))
        a(valu(f"v_xor_b32 v{r}, v{r}, v2", [f"v{r}", "v2"], [f"v{r}"]))
        a(valu(f"v_lshl_add_u32 v{r}, v{r}, 4, v3", [f"v{r}", "v3"], [f"v{r}"]))
        a(valu(f"v_add_u32 v{V_XR[par]}, s{S_XB}, v{V_KA[par]}", [f"v{V_KA[par]}"], [f"v{V_XR[par]}"]))
    return o
def x_items(j):
    out = []
    for i in range(8):
        sreg = S_T2 + (i & 1)
        sc = []
        if i == 0 and j > 0: sc.append(salu(f"s_add_u32 s{S_XCUR}, s{S_XCUR}, s{S_XSTEP}", [f"s{S_XCUR}"], [f"s{S_XCUR}"]))
        sc.append(salu(f"s_add_u32 s{sreg}, s{S_XCUR}, {i*7168}", [f"s{S_XCUR}"], [f"s{sreg}"]))
        sc.append(salu(f"s_add_u32 m0, s{S_XB}, {i*1024}", [f"s{S_XB}"], ["m0"]))
        out.append((sc, tag(dma(V_XD[i & 1], S_X, f"s{sreg}", 0, OPT.x_flags), f"x{j}")))
    return out
def x_read(qb, cs): return ds_read128("v", xfrag(qb, cs), V_XR[cs & 1], qb * 2048)
def w_read(dbp, cs, jj):
    s, e = dbp >> 1, dbp & 1
    base = wslot(cs); win = base // 65536
    off = base - win * 65536 + (s >> 1) * 4096 + jj * 512 + e * 8
    return ds_read_tr("v", V_POOL + 4 * ((2 * dbp + (cs & 1)) % 8) + 2 * jj, V_WA[win][s & 1], off)

V_PF = 28
def coop_setup():
    o = []; a = o.append
    a(salu(f"s_mul_i32 s{S_T1}, s{S_H}, {112*128}"))
    a(salu(f"s_lshl_b32 s{S_T2}, s{S_W}, 12")); a(salu(f"s_add_u32 s{S_T1}, s{S_T1}, s{S_T2}"))
    a(valu(f"v_and_b32 v{V_PF}, 31, v{V_LANE}", [f"v{V_LANE}"], [f"v{V_PF}"]))
    a(valu(f"v_lshlrev_b32 v{V_PF}, 7, v{V_PF}", [f"v{V_PF}"], [f"v{V_PF}"]))
    a(valu(f"v_add_u32 v{V_PF}, s{S_T1}, v{V_PF}", [f"v{V_PF}"], [f"v{V_PF}"]))
    return o
def coop_x():
    return [tag(bload(V_PF + 1, 1, V_PF, S_X, "0", 0, OPT.pf_flags), "pf")]

V_PFW = 132
def coop_w_setup():
    o = []; a = o.append
    L = f"v{V_LANE}"
    a(salu(f"s_lshr_b32 s{S_T1}, s2, 7")); a(salu(f"s_and_b32 s{S_T1}, s{S_T1}, 1")); a(salu(f"s_lshl_b32 s{S_T1}, s{S_T1}, 5"))
    a(salu(f"s_lshl_b32 s{S_T2}, s{S_W}, 3")); a(salu(f"s_add_u32 s{S_T1}, s{S_T1}, s{S_T2}"))
    a(valu(f"v_bfe_u32 v{V_PFW}, {L}, 2, 3", [L], [f"v{V_PFW}"])); a(valu(f"v_add_u32 v{V_PFW}, s{S_T1}, v{V_PFW}", [f"v{V_PFW}"], [f"v{V_PFW}"]))
    a(valu(f"v_lshlrev_b32 v{V_PFW}, 13, v{V_PFW}", [f"v{V_PFW}"], [f"v{V_PFW}"]))
    a(valu(f"v_and_b32 v{V_PFW+1}, 3, {L}", [L], [f"v{V_PFW+1}"]))
    a(valu(f"v_lshl_add_u32 v{V_PFW}, v{V_PFW+1}, 7, v{V_PFW}", [f"v{V_PFW}", f"v{V_PFW+1}"], [f"v{V_PFW}"]))
    return o
def coop_w(j):
    return [salu(f"s_mov_b32 s{S_PFO}, {j*524288}", [], [f"s{S_PFO}"])], tag(bload(V_PFW + 1, 1, V_PFW, S_WQ, f"s{S_PFO}", 0, OPT.pf_flags), "pf")
OOL = []
def kv_off(reg, t):
    if not OPT.rot: return [salu(f"s_mov_b32 s{reg}, {t*16384}", [], [f"s{reg}"])]
    return [salu(f"s_add_u32 s{reg}, s{S_ROT}, {t*16384}", [f"s{S_ROT}"], [f"s{reg}"]), salu(f"s_and_b32 s{reg}, s{reg}, 0x7ffff", [f"s{reg}"], [f"s{reg}"])]
def phase1():
    o = []; a = o.append
    NP = 3
    a(salu(f"s_lshr_b32 s{S_T1}, s2, 7")); a(salu(f"s_and_b32 s{S_T1}, s{S_T1}, {1 if OPT.rev else 0}"))
    a(salu(f"s_cmp_eq_u32 s{S_T1}, 0"))
    a(salu(f"s_cselect_b32 s{S_WCUR}, 0, {6*524288}")); a(salu(f"s_cselect_b32 s{S_T2}, 1, -1"))
    a(salu(f"s_cselect_b32 s{S_XCUR}, 0, 768"))
    a(salu(f"s_mul_i32 s{S_WSTEP}, s{S_T2}, 524288")); a(salu(f"s_mul_i32 s{S_XSTEP}, s{S_T2}, 128"))
    o += x_setup()
    if OPT.coopx: o += coop_setup() + coop_x()
    if OPT.coopw:
        o += coop_w_setup()
        for j in range(OPT.coopw_init):
            sc, d = coop_w(j); o += sc + [d]
    def w_items(j):
        out = []
        for par in range(2):
            sreg = S_WCUR if par == 0 else S_WOFF
            for m, (m0, d) in enumerate(dma_tile("W", wslot(2 * j + par), f"s{sreg}", f"W{j}")):
                sc = [m0]
                if m == 0 and par == 0 and j > 0: sc = [salu(f"s_add_u32 s{S_WCUR}, s{S_WCUR}, s{S_WSTEP}", [f"s{S_WCUR}"], [f"s{S_WCUR}"]), m0]
                if m == 0 and par == 1: sc = [salu(f"s_add_u32 s{S_WOFF}, s{S_WCUR}, 262144", [f"s{S_WCUR}"], [f"s{S_WOFF}"]), m0]
                out.append((sc, d))
        return out
    def kv_items(kind, t):
        out = []
        for m, (m0, d) in enumerate(dma_tile(kind, kslot(t) if kind == "K" else vslot(t), f"s{S_T0}", f"{kind}{t}")):
            out.append((kv_off(S_T0, t) + [m0] if m == 0 else [m0], d))
        return out
    def now(items):
        for sc, d in items:
            o.extend(sc); a(nop(0)); a(d)
    w0 = w_items(0)
    for sc, d in w0[4:]: d.meta["tag"] = "W0b"
    if OPT.xwarm:
        a(valu(f"v_lshlrev_b32 v{V_PFW}, 4, v{V_LANE}", [f"v{V_LANE}"], [f"v{V_PFW}"]))
        a(salu(f"s_mul_i32 s{S_T0}, s{S_H}, 14336")); a(salu(f"s_lshl_b32 s{S_T1}, s{S_W}, 12")); a(salu(f"s_add_u32 s{S_T0}, s{S_T0}, s{S_T1}"))
        a(salu(f"s_add_u32 m0, s{S_T1}, {kslot(0)}", [], ["m0"])); a(nop(0))
        now(w0[:4])
        a(salu(f"s_lshl_b32 s{S_T1}, s{S_W}, 12")); a(salu(f"s_add_u32 m0, s{S_T1}, {kslot(0)}", [], ["m0"])); a(nop(0))
        for i in range(4): a(tag(dma(V_PFW, S_X, f"s{S_T0}", i * 1024, OPT.x_flags), "xw"))
        now(w0[4:]); now(x_items(0))
    else:
        now(x_items(0)); now(w0[:4]); now(w0[4:])
    if OPT.coopw:
        for j in range(OPT.coopw_init, 3):
            sc, d = coop_w(j); o += sc + [d]
    o += setup_b()
    a(wait_tag("x0"))
    xr = [x_read(qb, cs) for cs in (0, 1) for qb in range(4)]
    o += xr
    a(wait_tag("W0", "reset")); a(barrier())
    if OPT.fused:
        a(salu(f"s_or_b32 s{S_T0}, s{S_XCC}, 0x80")); a(valu(f"v_mov_b32 v1, s{S_T0}", [], ["v1"])); a(valu("v_mov_b32 v2, 0", [], ["v2"]))
        a(tag(I(f"buffer_store_byte v1, v2, s[{S_DBG}:{S_DBG+3}], s{S_SIG} offen", "vst", ["v1", "v2"], data=["v1"]), "arr"))
    o += stamp("p1_first_data") + (stamp("rt_fd") if OPT.trip_stamps else [])
    def quad0(n): return V_POOL + 4 * (n % 8)
    def w_read0(n, jj):
        dbp, cs = n % 16, n // 16
        r = w_read(dbp, cs, jj)
        return ds_read_tr("v", quad0(n) + 2 * jj, int(r.rd[0][1:]), int(r.text.split("offset:")[1]))
    carried = [x.wr for x in xr]
    for n in range(3):
        for jj in range(2):
            r = w_read0(n, jj); a(r); carried.append(r.wr)
    early = {j: [] for j in range(7)}; after = {j: [] for j in range(7)}
    early[0] += w_items(1); early[1] += w_items(2)
    for j in range(NP, 7): after[j - NP + 1] += w_items(j)
    K = lambda t: kv_items("K", t)
    V = lambda t: kv_items("V", t)
    kv = {"early": {1: K(0), 2: K(1)}, "mid": {2: K(0), 3: K(1)}, "late": {3: K(0), 4: K(1)}}[OPT.kvpf]
    for j, l in kv.items(): early[j] += l
    if OPT.kvmin:
        early = {j: (w_items(1) if j == 0 else w_items(2) if j == 1 else []) for j in range(7)} if False else early
        for j in range(7): early[j] = [it for it in early[j] if not it[1].meta["tag"].startswith("K")]
        early[4] += K(0); early[5] += K(1)
        after[5] += V(0)
        after[6] += K(2) + V(1)
    else:
        after[5] += V(0)
        early[6] += K(2) + V(1) + K(3)
        after[6] += V(2)
    for j in range(7):
        ms = []
        if j == 0:
            for n in range(32):
                for qb in range(4):
                    acc = ((n % 16) * 4 + qb) * 4
                    first = n < 16
                    ms.append(mfma("a", acc, "v", quad0(n), "v", xfrag(qb, n // 16), None if first else "a", None if first else acc))
        else:
            for dbp in range(16):
                for qb in range(4):
                    for e2 in range(2):
                        acc = (dbp * 4 + qb) * 4
                        ms.append(mfma("a", acc, "v", V_POOL + 4 * ((2 * dbp + e2) % 8), "v", xfrag(qb, 2 * j + e2), "a", acc))
        g = Gaps(ms)
        if j == 0:
            for n in range(3, 32):
                for jj in range(2): g.put_mem(4 * n - 12 + 2 * jj, w_read0(n, jj))
        else:
            for dbp in range(3, 16):
                for n, (cs, jj) in enumerate([(2*j, 0), (2*j, 1), (2*j+1, 0), (2*j+1, 1)]):
                    g.put_mem(8 * dbp - 24 + 2 * n, w_read(dbp, cs, jj))
        nxt = []
        if j < 6:
            for dbp in range(3):
                for n, (cs, jj) in enumerate([(2*j+2, 0), (2*j+2, 1), (2*j+3, 0), (2*j+3, 1)]):
                    r = w_read(dbp, cs, jj); g.put_mem(104 + (1 if j == 0 else 0) + 8 * dbp + 2 * n, r); nxt.append(r.wr)
        XG = OPT.x_rd_gap if j > 0 else OPT.x_rd_gap0
        xreads = []
        if j < 6:
            for n, (cs, qb) in enumerate([(cs, qb) for cs in (2*j+2, 2*j+3) for qb in range(4)]):
                r = x_read(qb, cs); g.put_mem(XG + 2 * n, r); xreads.append(r)
        if j == 0:
            cons = [(4 * n, R("v", quad0(n), 4) + (R("v", V_S, 32) if n == 0 else [])) for n in range(32)]
        else:
            cons = [(8 * dbp, R("v", V_POOL + 4 * ((2 * dbp) % 8), 8)) for dbp in range(16)]
        if j < 6: cons.append((XG + 24, [w for r in xreads for w in r.wr]))
        cons.sort()
        lead = add_lgkm_waits(g, cons, carried)
        if j < 6:
            k = XG - 2
            while g.pre[k]: k -= 1
            g.pre[k] = [wait_tag(f"x{j+1}")]
        tags = [f"W{j+1}"] if j < 6 else ["K0"]
        k = 100
        while g.pre[k]: k -= 1
        g.pre[k] = [wait_tag(*tags), barrier()] if not OPT.p1_nowait else [barrier()]
        kb = k
        gp = 1
        if OPT.coopw and j + 3 <= 6:
            sc, d = coop_w(j + 3); gp = place_vmem(g, 2, sc, d, kb) + 1
        if j == 0:
            for sc, d in x_items(1): gp = place_vmem(g, gp, sc, d, XG - 3, stack=True) + 2
            k = 48
            while g.pre[k]: k -= 1
            g.pre[k] = [wait_tag("W0b"), barrier()]
            assert k < 52
        for sc, d in early[j]: gp = place_vmem(g, gp + len(sc) - 1, sc, d, kb) + (OPT.early_step if j != 6 else 7)
        if j < 5:
            gx = max(XG + 25, gp)
            for sc, d in x_items(j + 2): gx = place_vmem(g, gx, sc, d, stack=True) + 2
            gpa = max(kb + 2, gx)
        else: gpa = kb + 2
        for sc, d in after[j]: gpa = place_vmem(g, gpa, sc, d, stack=True) + 1
        left = []
        if j == 6:
            for dbp in range(16):
                for qb in range(4):
                    ops = conv_ops((dbp * 4 + qb) * 4, V_Q + (qb * 8 + (dbp >> 1)) * 4 + 2 * (dbp & 1), V_CT + 2 * (qb & 1))
                    if left: left += ops
                    else:
                        _, l2 = place_chain(g, ops, 8 * dbp + 2 * qb + 1 + 5, 128); left += l2
        if lead is not None: a(lead)
        em = g.emit()
        if OPT.p1_drop:
            def keep(x):
                if x.kind in ("dma", "vld"):
                    t = x.meta.get("tag", "")
                    for c in OPT.p1_drop:
                        if t.startswith(c): return False
                return True
            em = [x for x in em if keep(x)]
        if OPT.p1_noread: em = [x for x in em if x.kind != "ds" and not (x.kind == "wait" and "lgkm" in x.meta)]
        o += em
        carried = nxt
        if OPT.p1_steps: o += stamp(f"step{j}")
        if left: a(nop(7)); o += left
    if not OPT.p1_steps: o += stamp("p1_end") + (stamp("rt_p1") if OPT.trip_stamps else [])
    return o

def k_read(t, kb, s):
    return ds_read128("v", V_POOL + 4 * s, V_KA[s & 1], (kslot(t) - L_K) + (s >> 1) * 4096 + kb * 2048)
def v_read(t, db, jj):
    return ds_read_tr("v", V_POOL + 4 * (db % 8) + 2 * jj, V_VA[db & 3], (vslot(t) - L_V) + (db >> 2) * 4096 + jj * 2048)
def Sreg(kb, qb): return V_S + (kb * 4 + qb) * 4
def Preg(buf, qb): return V_P + buf * 16 + qb * 4
def qk_mfmas():
    ms = []
    for i in range(64):
        kb, sp, qb, e = i >> 5, (i >> 3) & 3, (i >> 1) & 3, i & 1
        s = 2 * sp + e; d = Sreg(kb, qb)
        ms.append(mfma("v", d, "v", V_POOL + 4 * s, "v", V_Q + (qb * 8 + s) * 4, None if s == 0 else "v", None if s == 0 else d))
    return ms
def pv_mfmas(t, first):
    ms = []
    for i in range(64):
        db, qb = i >> 2, i & 3
        acc = (db * 4 + qb) * 4
        ms.append(mfma("a", acc, "v", V_POOL + 4 * (db % 8), "v", Preg(t & 1, qb), None if first else "a", None if first else acc))
    return ms
def sm_group(tile, kb, qb):
    s = Sreg(kb, qb); p = Preg(tile & 1, qb) + 2 * kb; mc = V_MC + qb; l = V_L + qb
    f = lambda r: valu(f"v_fma_f32 v{s+r}, v{s+r}, s{S_C}, v{mc}", [f"v{s+r}", f"v{mc}", f"s{S_C}"], [f"v{s+r}"])
    x = lambda r: trans(f"v_exp_f32 v{s+r}, v{s+r}", [f"v{s+r}"], [f"v{s+r}"])
    ad = lambda r: valu(f"v_add_f32 v{l}, v{l}, v{s+r}", [f"v{l}", f"v{s+r}"], [f"v{l}"])
    cv = lambda r: valu(f"v_cvt_pk_bf16_f32 v{p+r//2}, v{s+r}, v{s+r+1}", [f"v{s+r}", f"v{s+r+1}"], [f"v{p+r//2}"])
    return [f(0), f(1), x(0), x(1), f(2), f(3), x(2), x(3), ad(0), ad(1), cv(0), ad(2), ad(3), cv(2)]

def pre_iter():
    o = []; a = o.append
    carried = []
    for s in range(8):
        r = k_read(0, 0, s); a(r); carried.append(r.wr)
    g = Gaps(qk_mfmas())
    for s in range(8): g.put_mem(8 * (s >> 1) + 10 + 4 * (s & 1), k_read(0, 1, s))
    cons = [(8 * p, R("v", V_POOL + 8 * (p % 4), 8)) for p in range(8)]
    a(add_lgkm_waits(g, cons, carried))
    if OPT.kvmin:
        gp = 3
        for kind, t in (("K", 3), ("V", 2)):
            for m, (m0, d) in enumerate(dma_tile(kind, kslot(t) if kind == "K" else vslot(t), f"s{S_T0}", f"{kind}{t}")):
                gp = place_vmem(g, gp, (kv_off(S_T0, t) if m == 0 else []) + [m0], d, stack=True) + 5
    o += g.emit()
    a(wait_tag("K1", "V0")); a(barrier())
    o += kv_off(S_KOFF, 4)
    for m0, d in dma_tile("K", kslot(4), f"s{S_KOFF}", "K4"): a(m0); a(nop(0)); a(d)
    o += kv_off(S_KOFF, 5) + kv_off(S_VOFF, 3)
    carried = []
    for s in range(8):
        r = k_read(1, 0, s); a(r); carried.append(r.wr)
    for qb in range(4):
        m = V_MC + qb; s0 = Sreg(0, qb); s1 = Sreg(1, qb)
        a(valu(f"v_max3_f32 v{m}, v{s0}, v{s0+1}, v{s0+2}", R("v", s0, 3), [f"v{m}"]))
        a(valu(f"v_max3_f32 v{m}, v{m}, v{s0+3}, v{s1}", [f"v{m}", f"v{s0+3}", f"v{s1}"], [f"v{m}"]))
        a(valu(f"v_max3_f32 v{m}, v{m}, v{s1+1}, v{s1+2}", [f"v{m}", f"v{s1+1}", f"v{s1+2}"], [f"v{m}"]))
        a(valu(f"v_max_f32 v{m}, v{m}, v{s1+3}", [f"v{m}", f"v{s1+3}"], [f"v{m}"]))
    o += xlane_reduce([V_MC + q for q in range(4)], "v_max_f32", V_SP)
    for qb in range(4):
        m = V_MC + qb
        a(valu(f"v_mul_f32 v{m}, s{S_C}, v{m}", [f"v{m}", f"s{S_C}"], [f"v{m}"]))
        a(valu(f"v_sub_f32 v{m}, 0, v{m}", [f"v{m}"], [f"v{m}"]))
        a(valu(f"v_mov_b32 v{V_L+qb}, 0", [], [f"v{V_L+qb}"]))
    for kb, qb in [(0, 0), (0, 1), (0, 2), (0, 3), (1, 0), (1, 1)]: o += exposed(sm_group(0, kb, qb))
    o += stamp("pre_iter_end")
    return o, carried

def attn_iter(t, carried, vmw, prev, cur, first=False, adv=True, loopctl=False, extra=None, loop_body=False):
    g = Gaps(qk_mfmas() + pv_mfmas(t, first))
    for s in range(8): g.put_mem(8 * (s >> 1) + 10 + 4 * (s & 1), k_read(t + 1, 1, s))
    for db in range(16):
        for jj in range(2): g.put_mem(44 + 4 * db + 2 * jj, v_read(t, db, jj))
    nxt = []
    if t + 2 <= 31:
        for s, gap in zip(range(8), [108, 110, 112, 114, 116, 120, 124, 127]):
            r = k_read(t + 2, 0, s); g.put_mem(gap, r); nxt.append(r.wr)
    else:
        for db in range(5):
            for jj in range(2):
                r = v_read(t + 1, db, jj); g.put_mem(108 + 4 * db + 2 * jj, r); nxt.append(r.wr)
    cons = [(8 * p, R("v", V_POOL + 8 * (p % 4), 8)) for p in range(8)]
    cons += [(64 + 4 * db, R("v", V_POOL + 4 * (db % 8), 4)) for db in range(16)]
    lead = add_lgkm_waits(g, cons, carried)
    kb = 98
    while g.pre[kb]: kb -= 1
    g.pre[kb] = [vmw, barrier()]
    if OPT.bar_stamps and loop_body:
        g.pre[kb] = [raw("s_memtime s[94:95]", "salu"), vmw, raw("s_memtime s[96:97]", "salu"), barrier(), raw("s_memtime s[98:99]", "salu"),
                     raw("s_waitcnt lgkmcnt(0)", "wait", lgkm=0),
                     salu("s_sub_u32 s96, s96, s94"), salu("s_add_u32 s92, s92, s96"),
                     salu("s_sub_u32 s98, s98, s94"), salu("s_add_u32 s93, s93, s98")]
    gp_prev, gp_cur = OPT.dma_gaps
    placed = [place_vmem(g, gap, [m0], d, kb) for gap, (m0, d) in zip(gp_prev, prev)]
    for gap, (m0, d) in zip(gp_cur, cur): place_vmem(g, gap, [m0], d)
    if adv:
        for reg, srd, at in ((S_VOFF, S_V, (placed[OPT.nv_prev - 1] if OPT.nv_prev else 1) + 1), (S_KOFF, S_K, placed[-1] + 1)):
            k = put_scalar(g, at, salu(f"s_add_u32 s{reg}, s{reg}, 16384", [f"s{reg}"], [f"s{reg}"]))
            k = put_scalar(g, k + 1, salu(f"s_and_b32 s{reg}, s{reg}, 0x7ffff", [f"s{reg}"], [f"s{reg}"]))
            assert k < 100
        if loopctl:
            first_k = placed[-4]
            k = put_scalar(g, 2, salu(f"s_cmp_eq_u32 s{S_LOOP}, 1", [f"s{S_LOOP}"], ["scc"]),
                           salu(f"s_cselect_b32 s{S_K+2}, 0, 524288", ["scc"], [f"s{S_K+2}"]))
            assert k < first_k - 1
    if loopctl:
        k = put_scalar(g, 119, salu(f"s_sub_u32 s{S_LOOP}, s{S_LOOP}, 1", [f"s{S_LOOP}"], [f"s{S_LOOP}"]))
        k = put_scalar(g, k + 1, salu(f"s_cmp_lg_u32 s{S_LOOP}, {OPT.loop_exit}", [f"s{S_LOOP}"], ["scc"]))
        assert k <= 127
        for kk in range(k + 1, 128):
            assert all(x.kind == "wait" for x in g.pre[kk]), "SCC clobbered before the loop branch"
    if extra: extra(g, kb)
    ops = []
    for qb in (2, 3): ops += sm_ops(t, 1, qb, 0, 31 + 2 * qb)
    for qb in range(4): ops += sm_ops(t + 1, 0, qb, 25 + 2 * qb + 6, 100 + 6 * qb)
    for qb in (0, 1): ops += sm_ops(t + 1, 1, qb, 57 + 2 * qb + 6, 124 + 3 * qb)
    left = list_schedule(g, ops)
    if OPT.vfirst:
        cand = [k for k in range(128) if g.mem[k] is not None and g.mem[k].kind == "ds" and len(g.vec[k]) == 1 and g.vec[k][0].kind == "valu"
                and not (set(g.vec[k][0].wr) & set(g.mem[k].rd + g.mem[k].wr))]
        n = min(OPT.vfirst, len(cand))
        for i in range(n): g.vec_first.add(cand[(i * len(cand)) // n])
    if OPT.pad_iter:
        for n in range(OPT.pad_iter): g.post[(n * 128) // OPT.pad_iter + 3].append(nop(3))
    assert not left, f"softmax groups do not fit: {len(left)} left"
    return [lead] + g.emit(), nxt

def safe_attn():
    o = []; a = o.append
    VM, VT, VA_, TMP = 20, 24, 28, 112
    a(label("L_safe_attn")); a(wait_vm(0)); a(raw("s_waitcnt lgkmcnt(0)", "wait", lgkm=0)); a(barrier())
    for r in range(256): a(valu(f"v_accvgpr_write_b32 a{r}, 0", [], [f"a{r}"]))
    for qb in range(4):
        a(valu(f"v_mov_b32 v{VM+qb}, 0xff800000", [], [f"v{VM+qb}"])); a(valu(f"v_mov_b32 v{V_L+qb}, 0", [], [f"v{V_L+qb}"]))
    a(salu(f"s_mov_b32 s{S_KOFF}, 0")); a(salu(f"s_mov_b32 s{S_LOOP}, 32"))
    a(label("L_safe_loop"))
    for kind, slot in (("K", kslot(0)), ("V", vslot(0))):
        for m0, d in dma_tile(kind, slot, f"s{S_KOFF}", "safe"): a(m0); a(nop(0)); a(d)
    a(wait_vm(0)); a(barrier())
    qk = qk_mfmas()
    for kb in range(2):
        for s_ in range(8): a(k_read(0, kb, s_))
        a(wait_lgkm(0)); o += qk[32 * kb:32 * kb + 32]
    a(nop(7)); a(nop(7))
    for qb in range(4):
        t = VT + qb; s0 = Sreg(0, qb); s1 = Sreg(1, qb)
        a(valu(f"v_max3_f32 v{t}, v{s0}, v{s0+1}, v{s0+2}", [], [])); a(valu(f"v_max3_f32 v{t}, v{t}, v{s0+3}, v{s1}", [], []))
        a(valu(f"v_max3_f32 v{t}, v{t}, v{s1+1}, v{s1+2}", [], [])); a(valu(f"v_max_f32 v{t}, v{t}, v{s1+3}", [], []))
    o += xlane_reduce([VT + q for q in range(4)], "v_max_f32", TMP)
    for qb in range(4):
        a(valu(f"v_max_f32 v{VT+qb}, v{VT+qb}, v{VM+qb}", [], []))
        a(valu(f"v_sub_f32 v{VA_+qb}, v{VM+qb}, v{VT+qb}", [], [])); a(valu(f"v_mul_f32 v{VA_+qb}, s{S_C}, v{VA_+qb}", [], []))
        a(trans(f"v_exp_f32 v{VA_+qb}, v{VA_+qb}", [], [])); a(valu(f"v_mov_b32 v{VM+qb}, v{VT+qb}", [], []))
        a(valu(f"v_mul_f32 v{V_MC+qb}, s{S_C}, v{VT+qb}", [], [])); a(valu(f"v_sub_f32 v{V_MC+qb}, 0, v{V_MC+qb}", [], []))
        a(valu(f"v_mul_f32 v{V_L+qb}, v{V_L+qb}, v{VA_+qb}", [], []))
    for r in range(256):
        qb = (r >> 2) & 3; t = TMP + (r & 7)
        a(valu(f"v_accvgpr_read_b32 v{t}, a{r}", [], [])); a(valu(f"v_mul_f32 v{t}, v{t}, v{VA_+qb}", [], [])); a(valu(f"v_accvgpr_write_b32 a{r}, v{t}", [], []))
    for kb in range(2):
        for qb in range(4): o += exposed(sm_group(0, kb, qb))
    pv = pv_mfmas(0, False)
    for half in range(2):
        for db in range(8 * half, 8 * half + 8):
            for jj in range(2):
                a(v_read(0, db, jj))
            if db % 4 == 3: a(wait_lgkm(0))
        a(nop(1)); o += pv[32 * half:32 * half + 32]
    a(salu(f"s_add_u32 s{S_KOFF}, s{S_KOFF}, 16384")); a(salu(f"s_sub_u32 s{S_LOOP}, s{S_LOOP}, 1")); a(salu(f"s_cmp_lg_u32 s{S_LOOP}, 0"))
    a(barrier()); a(raw("s_cbranch_scc1 L_safe_loop", "branch"))
    a(nop(7)); a(nop(7))
    o += xlane_reduce([V_L + q for q in range(4)], "v_add_f32", TMP)
    for qb in range(4): a(trans(f"v_rcp_f32 v{V_L+qb}, v{V_L+qb}", [], []))
    a(nop(0))
    for db in range(16):
        for qb in range(4):
            o += conv_ops((db * 4 + qb) * 4, V_Q + (qb * 8 + (db >> 1)) * 4 + 2 * (db & 1), V_SP + 8 + 2 * (qb & 1))
    o += wo_setup()
    if OPT.fused: o += grp_setup() + [nop(1), mode_load()] + ring_scalars()
    for j in range(4):
        for sc, d in wo_dma(j): o += sc + [nop(0), d]
    a(wait_vm(0)); a(raw("s_branch L_p3_entry", "branch"))
    return o

def last_iter(carried):
    o = []; a = o.append
    for qb in (2, 3): o += exposed(sm_group(31, 1, qb))
    o += xlane_reduce([V_L + q for q in range(4)], "v_add_f32", V_SP)
    a(salu(f"s_mov_b32 s{S_T0}, 0x{f32bits(L_LIMIT):08x}"))
    for qb in range(4):
        a(valu(f"v_cmp_nge_f32 s[{50+2*(qb&1)}:{51+2*(qb&1)}], s{S_T0}, v{V_L+qb}", [f"v{V_L+qb}"], [f"s{50+2*(qb&1)}", f"s{51+2*(qb&1)}"]))
        if qb & 1:
            a(nop(0)); a(salu("s_or_b64 s[50:51], s[50:51], s[52:53]"))
            a(salu("s_mov_b64 s[54:55], s[50:51]") if qb == 1 else salu("s_or_b64 s[54:55], s[54:55], s[50:51]"))
    a(salu("s_cselect_b32 s50, 1, 0"))
    a(salu(f"s_lshl_b32 s51, s{S_W}, 2")); a(salu(f"s_add_u32 s51, s51, {L_VOTE}"))
    a(valu(f"v_mov_b32 v{V_SP}, s50", [], [f"v{V_SP}"])); a(valu(f"v_mov_b32 v{V_SP+1}, s51", [], [f"v{V_SP+1}"]))
    a(I(f"ds_write_b32 v{V_SP+1}, v{V_SP}", "ds", [f"v{V_SP}", f"v{V_SP+1}"], []))
    carried = carried + [[]]
    for qb in range(4): a(trans(f"v_rcp_f32 v{V_L+qb}, v{V_L+qb}", [f"v{V_L+qb}"], [f"v{V_L+qb}"]))
    a(nop(0))
    g = Gaps(pv_mfmas(31, False))
    for db in range(5, 8):
        for jj in range(2): g.put_mem(4 * (db - 5) + 2 * jj, v_read(31, db, jj))
    for db in range(8, 16):
        for jj in range(2): g.put_mem(12 + 4 * (db - 8) + 2 * jj, v_read(31, db, jj))
    cons = [(4 * db, R("v", V_POOL + 4 * (db % 8), 4)) for db in range(16)]
    lead = add_lgkm_waits(g, cons, carried)
    gp = put_wo(g, 2, 2, step=0)
    put_wo(g, 3, gp, step=0)
    left = []
    for db in range(16):
        for qb in range(4):
            ops = conv_ops((db * 4 + qb) * 4, V_Q + (qb * 8 + (db >> 1)) * 4 + 2 * (db & 1), V_SP + 8 + 2 * (qb & 1))
            if left: left += ops
            else:
                _, l2 = place_chain(g, ops, 4 * db + qb + 5, 64); left += l2
    a(lead); o += g.emit()
    a(nop(7)); o += left
    return o

WOBUF = [L_X, L_K, L_K + 32768, L_V, L_V + 32768, L_X, L_K]
V_DWO = 3; V_STO = V_DV
V_FR3 = 32; V_ACC3 = V_P; V_STG = 16
def wo_dma(j):
    out = []
    for i in range(8):
        sreg = S_T0 + (i & 1)
        out.append(([salu(f"s_mov_b32 s{sreg}, {j*128 + i*32*896}", [], [f"s{sreg}"]),
                     salu(f"s_add_u32 m0, s{S_W1K}, {WOBUF[j] + i*4096}", [f"s{S_W1K}"], ["m0"])],
                    tag(dma(V_DWO, S_WO, f"s{sreg}", 0, OPT.wo_flags), f"wo{j}")))
    return out
A_WOS = 100
V_WOW = 39
def wo_stage_loads(j):
    out = []
    for i in range(8):
        sreg = S_T0 + (i & 1)
        out.append(([salu(f"s_mov_b32 s{sreg}, {j*128 + i*32*896}", [], [f"s{sreg}"])],
                    tag(bload_f("a", A_WOS + 32 * (j - 5) + 4 * i, 4, V_DWO, S_WO, f"s{sreg}", 0, OPT.wo_flags), f"wos{j}")))
    return out
def wo_stage_write(j, i):
    r = A_WOS + 32 * (j - 5) + 4 * i
    return I(f"ds_write_b128 v{V_WOW + (j - 5) * 0}, {rng('a', r, 4)} offset:{i*4096}", "ds", [f"v{V_WOW}"] + R("a", r, 4), [])
def wo_setup():
    o = []; a = o.append
    L = f"v{V_LANE}"
    a(valu(f"v_lshrrev_b32 v1, 3, {L}", [L], ["v1"])); a(valu(f"v_and_b32 v2, 7, {L}", [L], ["v2"]))
    a(valu(f"v_lshl_add_u32 v3, s{S_W}, 3, v1", ["v1", f"s{S_W}"], ["v3"]))
    a(valu("v_bfe_u32 v1, v1, 1, 2", ["v1"], ["v1"])); a(valu("v_lshlrev_b32 v1, 1, v1", ["v1"], ["v1"]))
    a(valu("v_xor_b32 v1, v1, v2", ["v1", "v2"], ["v1"])); a(valu("v_lshlrev_b32 v1, 4, v1", ["v1"], ["v1"]))
    a(valu("v_mul_u32_u24 v3, 896, v3", ["v3"], ["v3"]))
    a(valu(f"v_add_u32 v{V_DWO}, v3, v1", ["v3", "v1"], [f"v{V_DWO}"]))
    return o
V_WOT = 2
def wo_touch_setup():
    return [valu(f"v_lshl_add_u32 v{V_WOT}, s{S_W}, 6, v{V_LANE}", [f"v{V_LANE}"], [f"v{V_WOT}"]),
            valu(f"v_mul_u32_u24 v{V_WOT}, 896, v{V_WOT}", [f"v{V_WOT}"], [f"v{V_WOT}"])]
def wo_touch(j): return tag(bload(1, 1, V_WOT, S_WO, "0", j * 128, OPT.wt_flags), "wt")
def put_wo(g, j, start, hi=None, step=3):
    gp = start
    for sc, d in wo_dma(j): gp = place_vmem(g, gp, sc, d, hi) + step
    return gp
def va_shift(delta):
    t = (lambda r: f"v_add_u32 v{r}, {delta}, v{r}") if delta >= 0 else (lambda r: f"v_subrev_u32 v{r}, {-delta}, v{r}")
    return [valu(t(r), [f"v{r}"], [f"v{r}"]) for r in V_VA]

def part_ops(nb, qb):
    acc = V_ACC3 + 4 * ((nb * 4 + qb) % 8)
    st = V_STG + 4 * qb + 2 * (nb & 1)
    li = V_L + qb
    ops = [valu(f"v_mul_f32 v{acc+r}, v{acc+r}, v{li}", [f"v{acc+r}", f"v{li}"], [f"v{acc+r}"]) for r in range(4)]
    ops += [valu(f"v_cvt_pk_bf16_f32 v{st}, v{acc}, v{acc+1}", [f"v{acc}", f"v{acc+1}"], [f"v{st}"]),
            valu(f"v_cvt_pk_bf16_f32 v{st+1}, v{acc+2}, v{acc+3}", [f"v{acc+2}", f"v{acc+3}"], [f"v{st+1}"])]
    return ops

A_FR3 = 0; A_SEL = 224
V_POLLA, V_POLL, V_ONE, V_ZERO, V_RLD, V_OUT = 32, 33, 34, 35, 36, 37
V_RD = 40
V_GRP = V_ARR + 3
def wo_read(nb, s_, jj):
    return ds_read_tr("a", A_FR3 + 4 * (8 * (nb & 1) + s_) + 2 * jj, V_VA[nb], s_ * 4096 + jj * 2048)

V_GA = V_ARR + 2
def grp_setup():
    return [salu(f"s_lshl_b32 s{S_T0}, s{S_G}, 4"), valu(f"v_and_b32 v{V_GA}, 3, v{V_LANE}", [f"v{V_LANE}"], [f"v{V_GA}"]),
            valu(f"v_lshlrev_b32 v{V_GA}, 2, v{V_GA}", [f"v{V_GA}"], [f"v{V_GA}"]), valu(f"v_add_u32 v{V_GA}, s{S_T0}, v{V_GA}", [f"v{V_GA}"], [f"v{V_GA}"])]
V_GA3 = 38
def grp_load(dst, tg, ga=V_GA): return tag(bload(dst, 1, ga, S_DBG, "0", 0, "sc1"), tg)
def splat(x): return x * 0x01010101
def mode_load(): return grp_load(V_ARR, "grp")
def mode_check():
    o = []; a = o.append
    a(salu(f"s_or_b32 s{S_T0}, s{S_XCC}, 0x80")); a(salu(f"s_mul_i32 s50, s{S_T0}, 0x01010101"))
    a(wait_tag("grp"))
    a(valu(f"v_and_b32 v{V_ARR}, 0x87878787, v{V_ARR}", [f"v{V_ARR}"], [f"v{V_ARR}"]))
    a(valu(f"v_cmp_eq_u32 vcc, s50, v{V_ARR}", [f"v{V_ARR}"], ["vcc"])); a(nop(0))
    a(salu("s_cmp_eq_u64 vcc, -1"))
    a(salu(f"s_cselect_b64 s[{S_LOCM}:{S_LOCM+1}], -1, 0"))
    if OPT.force_fallback: a(salu("s_cmp_eq_u32 s50, 0"))
    a(raw("s_cbranch_scc0 L_grp_far", "branch")); a(label("L_grp_ok"))
    f = [label("L_grp_far"), salu(f"s_or_b32 s{S_T0}, s{S_XCC}, 0x80"), valu(f"v_mov_b32 v{V_ARR+1}, s{S_T0}", [], []),
         valu(f"v_mov_b32 v{V_ARR+3}, 0", [], []),
         raw(f"buffer_store_byte v{V_ARR+1}, v{V_ARR+3}, s[{S_DBG}:{S_DBG+3}], s{S_SIG} offen sc1", "salu"), wait_vm(0),
         salu(f"s_mov_b32 s{S_SPIN}, {SPIN_MAX}"), label("L_grp_again"),
         salu(f"s_sub_u32 s{S_SPIN}, s{S_SPIN}, 1"), salu(f"s_cmp_eq_u32 s{S_SPIN}, 0"), raw("s_cbranch_scc1 L_grp_ok", "branch")]
    if not OPT.force_fallback:
        f += [raw(f"buffer_load_dword v{V_ARR}, v{V_GA}, s[{S_DBG}:{S_DBG+3}], 0 offen sc1", "salu"), wait_vm(0),
              valu(f"v_and_b32 v{V_ARR}, 0x87878787, v{V_ARR}", [], []), valu(f"v_cmp_eq_u32 vcc, s50, v{V_ARR}", [], []), nop(0),
              salu("s_cmp_eq_u64 vcc, -1"), salu(f"s_cselect_b64 s[{S_LOCM}:{S_LOCM+1}], -1, 0"), raw("s_cbranch_scc1 L_grp_ok", "branch")]
    f += far_read(V_ARR)
    f += [valu(f"v_and_b32 v{V_ARR+1}, 0x80808080, v{V_ARR}", [], []), valu(f"v_cmp_eq_u32 vcc, 0x80808080, v{V_ARR+1}", [], []), nop(0),
          salu("s_and_b64 s[52:53], vcc, 15"), salu("s_cmp_eq_u64 s[52:53], 15"), raw("s_cbranch_scc0 L_grp_again", "branch"),
          valu(f"v_and_b32 v{V_ARR}, 0x87878787, v{V_ARR}", [], []), valu(f"v_cmp_eq_u32 vcc, s50, v{V_ARR}", [], []), nop(0),
          salu("s_and_b64 s[52:53], vcc, 15"), salu("s_cmp_eq_u64 s[52:53], 15"),
          salu(f"s_cselect_b64 s[{S_LOCM}:{S_LOCM+1}], -1, 0")]
    if OPT.force_fallback: f.append(salu(f"s_mov_b64 s[{S_LOCM}:{S_LOCM+1}], 0"))
    f.append(raw("s_branch L_grp_ok", "branch"))
    OOL.extend(f)
    return o
def far_read(dst, ga=V_GA):
    return [valu(f"v_mov_b32 v{dst}, 0", [], []), valu(f"v_cmp_gt_u32 vcc, 4, v{V_LANE}", [], []),
            raw("s_and_saveexec_b64 s[54:55], vcc", "salu"),
            raw(f"buffer_atomic_add v{dst}, v{ga}, s[{S_DBG}:{S_DBG+3}], 0 offen sc0 sc1", "salu"), wait_vm(0),
            raw("s_mov_b64 exec, s[54:55]", "salu")]

def p3_setup():
    L = f"v{V_LANE}"
    o = [valu(f"v_lshlrev_b32 v{V_STO}, 4, {L}", [L], [f"v{V_STO}"])]
    if OPT.fused:
        o += [valu(f"v_mov_b32 v{V_ZERO}, 0", [], [f"v{V_ZERO}"]), valu(f"v_mov_b32 v{V_GA3}, v{V_GA}", [f"v{V_GA}"], [f"v{V_GA3}"])]
    else: o += far_setup()
    return o

def far_setup():
    o = []; a = o.append
    L = f"v{V_LANE}"
    a(salu(f"s_mul_i32 s{S_PART}, s{S_G}, {7*16*16*2048}"))
    a(salu(f"s_lshl_b32 s{S_T2}, s{S_H}, 15")); a(salu(f"s_add_u32 s{S_RBASE}, s{S_PART}, s{S_T2}"))
    a(salu(f"s_lshl_b32 s{S_T2}, s{S_W}, 17")); a(salu(f"s_add_u32 s{S_PART}, s{S_PART}, s{S_T2}"))
    a(salu(f"s_lshl_b32 s{S_T2}, s{S_H}, 11")); a(salu(f"s_add_u32 s{S_PART}, s{S_PART}, s{S_T2}"))
    if not OPT.fused: return o
    a(salu(f"s_or_b32 s{S_T2}, s{S_XCC}, 0xf0")); a(valu(f"v_mov_b32 v{V_ONE}, s{S_T2}", [], [f"v{V_ONE}"]))
    a(valu(f"v_lshrrev_b32 v1, 5, {L}", [L], ["v1"])); a(valu("v_lshlrev_b32 v1, 11, v1", ["v1"], ["v1"]))
    a(valu(f"v_and_b32 v2, 31, {L}", [L], ["v2"])); a(valu(f"v_lshl_add_u32 v{V_RLD}, v2, 4, v1", ["v1", "v2"], [f"v{V_RLD}"]))
    a(salu(f"s_lshl_b32 s{S_T2}, s{S_W}, 9")); a(valu(f"v_add_u32 v{V_RLD}, s{S_T2}, v{V_RLD}", [f"v{V_RLD}"], [f"v{V_RLD}"]))
    a(valu(f"v_and_b32 v1, 15, {L}", [L], ["v1"])); a(valu(f"v_lshrrev_b32 v2, 4, {L}", [L], ["v2"]))
    a(valu("v_lshrrev_b32 v4, 3, v1", ["v1"], ["v4"])); a(valu("v_and_b32 v5, 1, v2", ["v2"], ["v5"]))
    a(valu("v_and_b32 v48, 1, v1", ["v1"], ["v48"])); a(valu("v_lshlrev_b32 v48, 4, v48", ["v48"], ["v48"]))
    a(valu("v_mov_b32 v49, 0x3f80", [], ["v49"])); a(valu("v_lshlrev_b32 v49, v48, v49", ["v48", "v49"], ["v49"]))
    a(valu("v_cmp_eq_u32 vcc, v4, v5", ["v4", "v5"], ["vcc"])); a(nop(1))
    a(valu("v_cndmask_b32 v49, 0, v49, vcc", ["v49", "vcc"], ["v49"]))
    a(valu("v_bfe_u32 v50, v1, 1, 2", ["v1"], ["v50"]))
    for r in range(4):
        a(valu(f"v_cmp_eq_u32 vcc, {r}, v50", ["v50"], ["vcc"])); a(nop(1))
        a(valu("v_cndmask_b32 v51, 0, v49, vcc", ["v49", "vcc"], ["v51"]))
        a(valu(f"v_accvgpr_write_b32 a{A_SEL+r}, v51", ["v51"], [f"a{A_SEL+r}"]))
    a(salu(f"s_lshl_b32 s{S_T2}, s{S_B}, 8")); a(salu(f"s_lshl_b32 s{S_T3}, s{S_H}, 4")); a(salu(f"s_add_u32 s{S_T2}, s{S_T2}, s{S_T3}"))
    a(valu(f"v_add_u32 v{V_OUT}, s{S_T2}, v1", ["v1"], [f"v{V_OUT}"])); a(valu(f"v_mul_u32_u24 v{V_OUT}, 896, v{V_OUT}", [f"v{V_OUT}"], [f"v{V_OUT}"]))
    a(salu(f"s_mul_i32 s{S_T2}, s{S_BR}, 448")); a(salu(f"s_lshr_b32 s{S_T3}, s{S_W}, 1")); a(salu(f"s_lshl_b32 s{S_T3}, s{S_T3}, 5"))
    a(salu(f"s_add_u32 s{S_T2}, s{S_T2}, s{S_T3}")); a(salu(f"s_and_b32 s{S_T3}, s{S_W}, 1")); a(salu(f"s_lshl_b32 s{S_T3}, s{S_T3}, 3"))
    a(salu(f"s_add_u32 s{S_T2}, s{S_T2}, s{S_T3}"))
    a(valu(f"v_add_u32 v{V_OUT}, s{S_T2}, v{V_OUT}", [f"v{V_OUT}"], [f"v{V_OUT}"]))
    a(valu(f"v_lshl_add_u32 v{V_OUT}, v5, 4, v{V_OUT}", ["v5", f"v{V_OUT}"], [f"v{V_OUT}"]))
    a(valu("v_lshrrev_b32 v4, 1, v2", ["v2"], ["v4"])); a(valu(f"v_lshl_add_u32 v{V_OUT}, v4, 2, v{V_OUT}", ["v4", f"v{V_OUT}"], [f"v{V_OUT}"]))
    a(valu(f"v_lshlrev_b32 v{V_OUT}, 1, v{V_OUT}", [f"v{V_OUT}"], [f"v{V_OUT}"]))
    return o

def handoff_far():
    o = [wait_vm(0), barrier(), raw("buffer_wbl2 sc1", "salu"), wait_vm(0), barrier(),
         raw(f"buffer_store_byte v{V_ONE}, v{V_ZERO}, s[{S_DBG}:{S_DBG+3}], s{S_SIG} offen sc1", "salu"), wait_vm(0),
         salu(f"s_mov_b32 s{S_SPIN}, {SPIN_MAX}"), label("L_far_poll"),
         salu(f"s_sub_u32 s{S_SPIN}, s{S_SPIN}, 1"), salu(f"s_cmp_eq_u32 s{S_SPIN}, 0"), raw("s_cbranch_scc1 L_far_done", "branch")]
    o += far_read(V_POLL, V_GA3)
    o += [valu(f"v_and_b32 v{V_POLL}, 0xf0f0f0f0, v{V_POLL}", [], []), valu(f"v_cmp_eq_u32 vcc, 0xf0f0f0f0, v{V_POLL}", [], []), nop(0),
          salu("s_and_b64 s[52:53], vcc, 15"), salu("s_cmp_eq_u64 s[52:53], 15"), raw("s_cbranch_scc0 L_far_poll", "branch"),
          label("L_far_done"), raw("buffer_inv sc1", "salu"), wait_vm(0)]
    return o

A_PIECE = 0; A_SEL2 = 224
def red_loads(j):
    out = []
    for i in range(8):
        sr = "s52" if i % 2 == 0 else "s53"
        out.append(([salu(f"s_add_u32 {sr}, s{S_RBASE}, {j*16*32768 + i*4096}", [f"s{S_RBASE}"], [sr])],
                    tag(bload_f("a", A_PIECE + 32 * j + 4 * i, 4, V_RLD, S_WS, sr, 0, "sc1"), f"rl{j}")))
    return out
def red_mfmas(j):
    d = V_RD + 4 * (j & 1)
    return [mfma("v", d, "a", A_SEL2, "a", A_PIECE + 32 * j + 4 * i, None if i == 0 else "v", None if i == 0 else d) for i in range(8)]
def red_out(j):
    d = V_RD + 4 * (j & 1)
    return [valu(f"v_cvt_pk_bf16_f32 v{d}, v{d}, v{d+1}", [f"v{d}", f"v{d+1}"], [f"v{d}"]),
            valu(f"v_cvt_pk_bf16_f32 v{d+1}, v{d+2}, v{d+3}", [f"v{d+2}", f"v{d+3}"], [f"v{d+1}"])], tag(bstore(d, 2, V_OUT, S_OUT, "0", j * 128), f"out{j}")

A_RING = 64; A_SEL4 = 96
V_RLD4, V_OUT4, V_FLA, V_FLAG1 = 48, 49, 50, 51
def ring_scalars():
    o = []; a = o.append
    a(salu(f"s_mul_i32 s50, s{S_G}, {OPT.ring * 262144}"))
    a(salu(f"s_lshl_b32 s51, s{S_W}, 16")); a(salu(f"s_add_u32 s{S_RST}, s50, s51"))
    a(salu(f"s_lshl_b32 s51, s{S_H}, 10")); a(salu(f"s_add_u32 s{S_RST}, s{S_RST}, s51"))
    a(salu(f"s_lshl_b32 s51, s{S_H}, 14")); a(salu(f"s_add_u32 s{S_RLD}, s50, s51"))
    a(salu(f"s_mul_i32 s50, s{S_G}, {14*64}"))
    a(salu(f"s_lshl_b32 s51, s{S_W}, 4"))
    a(salu(f"s_add_u32 s{S_FPW}, s50, s51")); a(salu(f"s_add_u32 s{S_FPW}, s{S_FPW}, s{S_H}"))
    a(salu(f"s_add_u32 s{S_FCR}, s50, s51")); a(salu(f"s_add_u32 s{S_FCR}, s{S_FCR}, {CONS_OFF}"))
    a(salu(f"s_lshr_b32 s51, s{S_H}, 2")); a(salu(f"s_lshl_b32 s51, s51, 4"))
    a(salu(f"s_add_u32 s{S_FPR}, s50, s51"))
    a(salu(f"s_lshl_b32 s51, s{S_H}, 2")); a(salu(f"s_add_u32 s{S_FCW}, s50, s51"))
    a(salu(f"s_add_u32 s{S_FCW}, s{S_FCW}, s{S_W}")); a(salu(f"s_add_u32 s{S_FCW}, s{S_FCW}, {CONS_OFF}"))
    return o
def ring_setup():
    o = []; a = o.append
    L = f"v{V_LANE}"
    a(valu(f"v_and_b32 v{V_FLA}, 3, {L}", [L], [f"v{V_FLA}"])); a(valu(f"v_lshlrev_b32 v{V_FLA}, 2, v{V_FLA}", [f"v{V_FLA}"], [f"v{V_FLA}"]))
    a(valu(f"v_mov_b32 v{V_FLAG1}, 1", [], [f"v{V_FLAG1}"]))
    a(valu(f"v_and_b32 v1, 15, {L}", [L], ["v1"])); a(valu(f"v_lshrrev_b32 v2, 4, {L}", [L], ["v2"]))
    a(valu(f"v_lshlrev_b32 v{V_RLD4}, 10, v2", ["v2"], [f"v{V_RLD4}"])); a(valu(f"v_lshl_add_u32 v{V_RLD4}, v1, 4, v{V_RLD4}", ["v1", f"v{V_RLD4}"], [f"v{V_RLD4}"]))
    a(salu(f"s_lshl_b32 s{S_T1}, s{S_W}, 8")); a(valu(f"v_add_u32 v{V_RLD4}, s{S_T1}, v{V_RLD4}", [f"v{V_RLD4}"], [f"v{V_RLD4}"]))
    a(valu("v_and_b32 v4, 1, v1", ["v1"], ["v4"])); a(valu("v_lshlrev_b32 v4, 4, v4", ["v4"], ["v4"]))
    a(valu("v_mov_b32 v5, 0x3f80", [], ["v5"])); a(valu("v_lshlrev_b32 v5, v4, v5", ["v4", "v5"], ["v5"]))
    a(valu("v_lshrrev_b32 v4, 1, v1", ["v1"], ["v4"]))
    for r in range(4):
        a(valu(f"v_cmp_eq_u32 vcc, {r}, v4", ["v4"], ["vcc"])); a(nop(1))
        a(valu("v_cndmask_b32 v52, 0, v5, vcc", ["v5", "vcc"], ["v52"]))
        a(valu(f"v_accvgpr_write_b32 a{A_SEL4+r}, v52", ["v52"], [f"a{A_SEL4+r}"]))
    a(salu(f"s_lshl_b32 s{S_T0}, s{S_B}, 8")); a(salu(f"s_lshl_b32 s{S_T1}, s{S_H}, 4")); a(salu(f"s_add_u32 s{S_T0}, s{S_T0}, s{S_T1}"))
    a(valu(f"v_add_u32 v{V_OUT4}, s{S_T0}, v1", ["v1"], [f"v{V_OUT4}"])); a(valu(f"v_mul_u32_u24 v{V_OUT4}, 896, v{V_OUT4}", [f"v{V_OUT4}"], [f"v{V_OUT4}"]))
    a(salu(f"s_mul_i32 s{S_T0}, s{S_BR}, 448")); a(salu(f"s_lshl_b32 s{S_T1}, s{S_W}, 2")); a(salu(f"s_add_u32 s{S_T0}, s{S_T0}, s{S_T1}"))
    a(valu(f"v_add_u32 v{V_OUT4}, s{S_T0}, v{V_OUT4}", [f"v{V_OUT4}"], [f"v{V_OUT4}"]))
    a(valu(f"v_lshl_add_u32 v{V_OUT4}, v2, 4, v{V_OUT4}", ["v2", f"v{V_OUT4}"], [f"v{V_OUT4}"]))
    a(valu(f"v_lshlrev_b32 v{V_OUT4}, 1, v{V_OUT4}", [f"v{V_OUT4}"], [f"v{V_OUT4}"]))
    a(valu("v_cmp_gt_u32 vcc, 2, v2", ["v2"], ["vcc"])); a(salu(f"s_mov_b32 s{S_T0}, 0x7ff00000")); a(valu(f"v_mov_b32 v4, s{S_T0}", [], ["v4"]))
    a(valu(f"v_cndmask_b32 v{V_OUT4}, v4, v{V_OUT4}, vcc", ["v4", f"v{V_OUT4}", "vcc"], [f"v{V_OUT4}"]))
    return o

def flag_store(base, u, tg):
    return [salu(f"s_add_u32 s55, s{base}, {u*64}", [f"s{base}"], ["s55"])], \
           tag(I(f"buffer_store_byte v{V_FLAG1}, v{V_ZERO}, s[{S_FL}:{S_FL+3}], s55 offen", "vst", [f"v{V_FLAG1}", f"v{V_ZERO}", "s55"], data=[]), tg)
def flag_poll(base, u, dst, tg):
    return [salu(f"s_add_u32 s54, s{base}, {u*64}", [f"s{base}"], ["s54"])], tag(bload(dst, 1, V_FLA, S_FL, "s54", 0, "sc1"), tg)
def flag_check(base, u, dst, tg, name):
    OOL.extend([label(f"L_{name}_spin"), salu(f"s_add_u32 s54, s{base}, {u*64}"), salu(f"s_mov_b32 s{S_SPIN}, {SPIN_MAX}"),
                label(f"L_{name}_again"),
                salu(f"s_sub_u32 s{S_SPIN}, s{S_SPIN}, 1"), salu(f"s_cmp_eq_u32 s{S_SPIN}, 0"), raw(f"s_cbranch_scc1 L_{name}_ok", "branch"),
                raw(f"buffer_load_dword v{dst}, v{V_FLA}, s[{S_FL}:{S_FL+3}], s54 offen sc1", "salu"), wait_vm(0),
                valu(f"v_cmp_ne_u32 vcc, 0x01010101, v{dst}", [], []), nop(0),
                raw(f"s_cbranch_vccnz L_{name}_again", "branch"), raw(f"s_branch L_{name}_ok", "branch")])
    dd = (lambda n: stamp("d_" + n)) if name in (f"prod{OPT.p3detail}", f"cons{OPT.p3detail}") else (lambda n: [])
    return dd(name[:4] + "A") + [wait_tag(tg)] + dd(name[:4] + "B") + [valu(f"v_cmp_ne_u32 vcc, 0x01010101, v{dst}", [f"v{dst}"], ["vcc"]), nop(0),
            raw(f"s_cbranch_vccnz L_{name}_spin", "branch"), label(f"L_{name}_ok")] + dd(name[:4] + "C")
V_PP, V_PC = 53, 54
def ring_loads(u):
    out = []
    for i in range(4):
        sr = "s52" if i % 2 == 0 else "s53"
        out.append(([salu(f"s_add_u32 {sr}, s{S_RLD}, {(u % OPT.ring)*262144 + i*4096}", [f"s{S_RLD}"], [sr])],
                    tag(bload_f("a", A_RING + 16 * (u & 1) + 4 * i, 4, V_RLD4, S_RG, sr, 0, "sc1"), f"rl{u}")))
    return out
def ring_mfmas(u):
    d = V_RD + 4 * (u & 1)
    return [mfma("v", d, "a", A_SEL4, "a", A_RING + 16 * (u & 1) + 4 * i, None if i == 0 else "v", None if i == 0 else d) for i in range(4)]
def ring_out(u):
    d = V_RD + 4 * (u & 1)
    return [valu(f"v_cvt_pk_bf16_f32 v{d}, v{d}, v{d+1}", [f"v{d}", f"v{d+1}"], [f"v{d}"]),
            valu(f"v_cvt_pk_bf16_f32 v{d+1}, v{d+2}, v{d+3}", [f"v{d+2}", f"v{d+3}"], [f"v{d+1}"])], tag(bstore(d, 2, V_OUT4, S_OUT, "0", u * 64, OPT.out_flags), f"out{u}")

def p3_stream(local, carried):
    o = []; a = o.append
    NS, D = OPT.ring, OPT.prod_delay
    Q = lambda u: 8 * u + 7
    if OPT.tmpl == 0:
        T = dict(st=[0, 1, 2, 3], sig=(7, 5), poll=(12, 5), chk=(15, 7), ld=[(16, 7), (17, 7), (18, 7), (19, 7)], csig=(22, 3), out=(30, 5),
                 cpoll=(-4, 3), cchk=(-1, 3), wo=[(-4, 7), (-3, 3), (-3, 7), (-2, 7)], va=((0, 85), (1, 61), (2, 69), (3, 101)))
    else:
        T = dict(st=[0, 2, 4, 5], sig=(8, 5), poll=(13, 7), chk=(16, 7), ld=[(17, 3), (17, 7), (19, 3), (19, 7)], csig=(22, 3), out=(30, 5),
                 cpoll=(-4, 7), cchk=(-1, 3), wo=[(-6, 7), (-2, 7), (-1, 5), (-1, 7)], va=((0, 85), (1, 37), (2, 69), (3, 101)))
    ins = {}
    if local:
        for u in range(14):
            m = 8 * (Q(u) + 22 + D) - 1
            if m < 895: ins[m] = u
    ms = []; pos = {}; redpos = {}
    for m in range(896):
        j, i = m >> 7, m & 127
        nb, qb, s_ = i >> 5, (i >> 3) & 3, i & 7
        acc = V_ACC3 + 4 * ((nb * 4 + qb) % 8)
        pos[m] = len(ms)
        ms.append(mfma("v", acc, "a", A_FR3 + 4 * (8 * (nb & 1) + s_), "v", V_Q + (qb * 8 + s_) * 4,
                       None if s_ == 0 else "v", None if s_ == 0 else acc))
        if m in ins:
            u = ins[m]; redpos[u] = len(ms); ms += ring_mfmas(u)
    g = Gaps(ms); N = g.n
    P = lambda j, i: pos[128 * j + i]
    def G(period, off):
        m = 8 * period + off
        return pos[m] if 0 <= m < 896 else None
    for j in range(7):
        for nb in range(4):
            jn, nbn = (j, nb + 1) if nb < 3 else (j + 1, 0)
            if jn > 6: continue
            for s_ in range(8):
                for jj in range(2): g.put_mem(P(j, 32 * nb + 4 * s_ + 2 * jj), wo_read(nbn, s_, jj))
    cons = []
    for j in range(7):
        for nb in range(4):
            for s_ in (0, 2, 4, 6): cons.append((P(j, 32 * nb + s_), R("a", A_FR3 + 4 * (8 * (nb & 1) + s_), 8)))
    cons.sort()
    def put_vm(k, sc, d):
        assert g.mem[k] is None and not g.post[k], (k, d.text)
        for n, x in enumerate(reversed(sc)):
            kk = k - 1 - n
            assert kk >= 0
            assert not (g.mem[kk] is not None and g.mem[kk].kind == "dma" and "m0" in x.wr)
            g.pre[kk].append(x)
        g.mem[k] = d
    def put_seq(k, seq):
        assert g.mem[k] is None and not g.post[k], k
        g.post[k] = seq
    for j in range(6):
        k = P(j, 91)
        g.pre[k] += ([wait_tag(f"wo{j+1}")] if not (OPT.wo_stage and j + 1 >= 5) else []) + [barrier()]
        sh = va_shift(WOBUF[j + 1] - WOBUF[j])
        for n, at in T['va']:
            kk = P(j, at); g.vec[kk].append(sh[n])
    if OPT.wo_stage:
        items = wo_dma(4) + wo_stage_loads(5) + wo_stage_loads(6)
        slots = [(0, 3), (0, 5), (0, 7), (1, 1), (1, 3), (1, 5), (1, 7)] + [(per, off) for per in range(2, 7) for off in (3, 5, 7)] + [(7, 5), (7, 7)]
        if OPT.tmpl == 1:
            slots = [(0, 3), (0, 5), (0, 7), (1, 1), (1, 3), (1, 5), (1, 7)] + [(per, off) for per in range(2, 7) for off in (3, 5, 7)] + [(7, 5), (7, 7)]
        for (sc, d), (per, off) in zip(items, slots): put_vm(G(per, off), sc, d)
        for j in (5, 6):
            jj_ = j - 3
            g.vec[P(jj_, 1)].insert(0, valu(f"v_add_u32 v{V_WOW}, {(WOBUF[j] - (WOBUF[j-1] if j == 6 else 0)) & 0xffffffff}, v{V_WOW}", [f"v{V_WOW}"], [f"v{V_WOW}"]))
            for i in range(8):
                u0 = 2 * jj_ + (i >> 2)
                per, off = Q(u0) + T['wo'][i & 3][0], T['wo'][i & 3][1]
                k = G(per, off)
                assert g.mem[k] is None
                g.mem[k] = wo_stage_write(j, i)
            u1 = 2 * jj_
            g.pre[G(Q(u1) + T['wo'][0][0], T['wo'][0][1]) - 1].append(wait_tag(f"wos{j}"))
    else:
      for j in (2, 3):
        items = wo_dma(j + 3)
        for n, (sc, d) in enumerate(items):
            u0 = 2 * j + (n >> 2)
            per, off = Q(u0) + T['wo'][n & 3][0], T['wo'][n & 3][1]
            put_vm(G(per, off), sc, d)
    lead = add_lgkm_waits(g, cons, carried)
    stores = {}; sgap = {}
    for u in range(14):
        j, nb = u >> 1, 2 * (u & 1) + 1
        for qb in range(4):
            sreg = S_T2 + (qb & 1)
            if local:
                st = ([salu(f"s_add_u32 s{sreg}, s{S_RST}, {(u % NS)*262144 + qb*16384}", [f"s{S_RST}"], [f"s{sreg}"])],
                      tag(bstore(V_STG + 4 * qb, 4, V_STO, S_RG, f"s{sreg}", 0, OPT.last_st if u >= 14 - NS else ""), f"st{u}"))
            else:
                so = j * 16 * 16 * 2048 + qb * 16 * 2048 + (nb >> 1) * 1024
                st = ([salu(f"s_add_u32 s{sreg}, s{S_PART}, {so}", [f"s{S_PART}"], [f"s{sreg}"])],
                      tag(bstore(V_STG + 4 * qb, 4, V_STO, S_WS, f"s{sreg}", 0), f"st{u}"))
            stores[(u, qb)] = st
            k = G(Q(u) + T['st'][qb], 3)
            sgap[(u, qb)] = k
            if k is not None: put_vm(k, *st)
    done = {}; out_left = []
    if local:
        for u in range(14):
            dd = (lambda n: stamp("d_" + n)) if u == OPT.p3detail else (lambda n: [])
            if u >= NS:
                kp, kc = G(Q(u) + T['cpoll'][0], T['cpoll'][1]), G(Q(u) + T['cchk'][0], T['cchk'][1])
                put_vm(kp, *flag_poll(S_FCR, u - NS, V_PC, f"pc{u}"))
                put_seq(kc, flag_check(S_FCR, u - NS, V_PC, f"pc{u}", f"cons{u}"))
            done[u] = "sig"
            k = G(Q(u) + T['sig'][0], T['sig'][1])
            if k is None or sgap[(u, 3)] is None: continue
            sc, d = flag_store(S_FPW, u, f"sig{u}")
            g.pre[k - 1] += dd("sigA") + [wait_tag(f"st{u}")] + dd("sigB"); put_vm(k, sc, d)
            done[u] = "poll"
            k = G(Q(u) + T['poll'][0] + D, T['poll'][1])
            if k is None: continue
            put_vm(k, *flag_poll(S_FPR, u, V_PP, f"pp{u}"))
            done[u] = "check"
            k = G(Q(u) + T['chk'][0] + D, T['chk'][1])
            if k is None: continue
            put_seq(k, flag_check(S_FPR, u, V_PP, f"pp{u}", f"prod{u}"))
            done[u] = "loads"
            if u not in redpos: continue
            for n, (sc, d) in enumerate(ring_loads(u)): put_vm(G(Q(u) + T['ld'][n][0] + D, T['ld'][n][1]), sc, d)
            g.pre[redpos[u] - 1] += dd("rlA") + [wait_tag(f"rl{u}")] + dd("rlB")
            if u <= 13 - NS: put_vm(G(Q(u) + T['csig'][0] + D, T['csig'][1]), *flag_store(S_FCW, u, f"csig{u}"))
            done[u] = "out"
            cv, st = ring_out(u)
            if u + 1 in redpos:
                g.vec[redpos[u + 1]] += cv
                put_vm(G(Q(u) + T['out'][0] + D, T['out'][1]), [], st)
                done[u] = "all"
    tail_main = []
    for p in range(112):
        j, nb, qb = p >> 4, (p >> 2) & 3, p & 3
        ops = part_ops(nb, qb)
        slots = [G(p + 2, 0), G(p + 2, 1), G(p + 2, 1), G(p + 2, 2), G(p + 2, 4), G(p + 2, 6)]
        if slots[0] is None:
            tail_main += ops
        else:
            for x, k in zip(ops, slots): g.vec[k].append(x)
        if nb & 1:
            u = 2 * j + (nb >> 1)
            if sgap[(u, qb)] is None: tail_main += stores[(u, qb)][0] + [nop(1), stores[(u, qb)][1]]
    if OPT.p3_tiles and local:
        for j in range(1, 7): g.pre[P(j, 0)] = stamp(f"tile{j}") + g.pre[P(j, 0)]
    if lead is not None: a(lead)
    em = g.emit()
    if "allst" in OPT.p3_drop: em = [x for x in em if x.kind != "vst"]
    if "pst" in OPT.p3_drop: em = [x for x in em if not (x.kind == "vst" and x.meta.get("tag", "").startswith("st"))]
    if "nospin" in OPT.p3_drop: em = [x for x in em if not (x.kind == "branch" and "vccnz" in x.text)]
    if "novm" in OPT.p3_drop: em = [x for x in em if not (x.kind == "wait" and "vmtags" in x.meta and not x.meta["vmtags"][0].startswith("wo"))]
    if "nold" in OPT.p3_drop: em = [x for x in em if not (x.kind == "vld" and x.meta.get("tag", "").startswith("rl"))]
    o += stamp("p3_stream_start") if (local or not OPT.fused) else []
    o += em
    if local or not OPT.fused: o += stamp("p3_mfma_end")
    a(nop(7)); o += exposed(tail_main)
    if local:
        todo = [u for u in range(14) if done[u] != "all"]
        LD = lambda u: [x for sc, d in ring_loads(u) for x in sc + [d]]
        POLL = lambda u: (lambda p: p[0] + [p[1]])(flag_poll(S_FPR, u, V_PP, f"pp{u}"))
        CHK = lambda u: flag_check(S_FPR, u, V_PP, f"pp{u}", f"prod{u}")
        SIG = lambda u: (lambda p: [wait_tag(f"st{u}")] + p[0] + [p[1]])(flag_store(S_FPW, u, f"sig{u}"))
        OUT = lambda u: (lambda p: p[0] + [p[1]])(ring_out(u))
        if OPT.tail2 and [done[u] for u in todo] == ["out", "loads", "poll", "sig"] and todo == [10, 11, 12, 13]:
            o += LD(11) + POLL(12) + SIG(13) + stamp("x_last_signal") + OUT(10)
            o += CHK(12) + LD(12) + [wait_tag("rl11")] + ring_mfmas(11)
            o += POLL(13) + CHK(13) + LD(13)
            o += [wait_tag("rl12")] + ring_mfmas(12) + [nop(3)] + OUT(11)
            o += [wait_tag("rl13")] + ring_mfmas(13) + [nop(3)] + OUT(12) + [nop(7)] + OUT(13)
        else:
            for u in todo:
                if done[u] == "sig": o += SIG(u)
            o += stamp("x_last_signal")
            for u in todo:
                if done[u] != "out":
                    if done[u] in ("sig", "poll"): o += POLL(u)
                    if done[u] in ("sig", "poll", "check"): o += CHK(u)
                    o += LD(u) + [wait_tag(f"rl{u}")] + ring_mfmas(u) + [nop(7)]
                o += OUT(u)
    return o

def phase3():
    o = []; a = o.append
    a(label("L_p3_entry"))
    a(wait_tag("wt", "wo0")); a(raw("s_waitcnt lgkmcnt(0)", "wait", lgkm=0)); a(barrier())
    a(valu(f"v_mov_b32 v1, {L_VOTE}", [], ["v1"]))
    a(ds_read128("v", V_SP, 1, 0)); a(wait_lgkm(0))
    a(valu(f"v_or3_b32 v{V_SP}, v{V_SP}, v{V_SP+1}, v{V_SP+2}", R("v", V_SP, 3), [f"v{V_SP}"]))
    a(valu(f"v_or_b32 v{V_SP}, v{V_SP}, v{V_SP+3}", [f"v{V_SP}", f"v{V_SP+3}"], [f"v{V_SP}"])); a(nop(0))
    a(valu(f"v_readfirstlane_b32 s50, v{V_SP}", [f"v{V_SP}"], ["s50"])); a(nop(3))
    a(salu(f"s_cmp_eq_u32 s{S_SAFE}, 0")); a(salu("s_cselect_b32 s50, s50, 0"))
    a(salu("s_cmp_lg_u32 s50, 0")); a(raw("s_cbranch_scc1 L_restart", "branch"))
    OOL.extend([label("L_restart"), wait_vm(0), raw("s_waitcnt lgkmcnt(0)", "wait", lgkm=0), barrier(),
                salu(f"s_mov_b32 s{S_SAFE}, 1"), raw("s_branch L_again", "branch")])
    o += p3_setup()
    if OPT.fused: o += ring_setup()
    o += va_shift(WOBUF[0] - L_V)
    if OPT.fused: o += mode_check()
    carried = []
    for s_ in range(8):
        for jj in range(2):
            r = wo_read(0, s_, jj); a(r); carried.append(r.wr)
            if len(carried) == 14: a(wait_lgkm(6)); carried = carried[-6:]
    a(barrier())
    if OPT.wo_stage:
        a(valu(f"v_lshlrev_b32 v{V_WOW}, 4, v{V_LANE}", [f"v{V_LANE}"], [f"v{V_WOW}"]))
        a(valu(f"v_add_u32 v{V_WOW}, s{S_W1K}, v{V_WOW}", [f"v{V_WOW}"], [f"v{V_WOW}"]))
    else:
        for sc, d in wo_dma(4): o += sc + [nop(0), d]
    if not OPT.fused:
        return o, p3_stream(False, carried) + stamp("p3_end") + ([wait_vm(0)] if OPT.stamps else []) + stamp("rt_end"), []
    o += [salu(f"s_cmp_eq_u32 s{S_LOCM}, 0"), raw("s_cbranch_scc1 L_p3_far", "branch")]
    loc = p3_stream(True, carried)
    loc += stamp("p3_end") + ([wait_vm(0)] if OPT.stamps else []) + stamp("rt_end")
    far = [label("L_p3_far")] + far_setup() + p3_stream(False, carried) + handoff_far()
    for j in range(7):
        for sc, d in red_loads(j): far += sc + [d]
    for j in range(7):
        far.append(wait_tag(f"rl{j}"))
        far += red_mfmas(j)
        if j > 0:
            cv, stt = red_out(j - 1); far += cv + [stt]
    far.append(nop(7))
    cv, stt = red_out(6); far += cv + [stt]
    far += [wait_vm(0), raw("s_endpgm", "branch")]
    return o, loc, far

def dump_regs(base, n, agpr=False):
    o = [wait_vm(0), raw("s_waitcnt lgkmcnt(0)", "wait", lgkm=0), nop(7), nop(7),
         salu(f"s_lshl_b32 s{S_T0}, s2, 2"), salu(f"s_add_u32 s{S_T0}, s{S_T0}, s{S_W}"),
         salu(f"s_mul_i32 s{S_T0}, s{S_T0}, {n*256}"), valu(f"v_lshlrev_b32 v1, 2, v{V_LANE}", [f"v{V_LANE}"], ["v1"])]
    for r in range(n):
        if agpr:
            o.append(valu(f"v_accvgpr_read_b32 v2, a{base+r}", [f"a{base+r}"], ["v2"])); o.append(bstore(2, 1, 1, S_WS, f"s{S_T0}", 0))
        else:
            o.append(bstore(base + r, 1, 1, S_WS, f"s{S_T0}", 0))
        o.append(salu(f"s_add_u32 s{S_T0}, s{S_T0}, 256"))
        if r % 32 == 31 or agpr: o.append(wait_vm(0))
    return o

def stamp_out():
    if not OPT.stamps: return []
    if OPT.dma_stamps: STAMPS[:] = [f"dma{i}" for i in range(10)] + ["loopcyc"]
    if OPT.bar_stamps: STAMPS.extend(["acc_vm", "acc_bar"])
    n = len(STAMPS)
    o = [raw("s_waitcnt lgkmcnt(0)", "wait", lgkm=0), salu(f"s_cmp_lg_u32 s{S_W}, 0"), raw("s_cbranch_scc1 L_nostamp", "branch")]
    if OPT.stamp_dbg >= 0:
        o += [salu(f"s_cmp_lg_u32 s2, {OPT.stamp_dbg}"), raw("s_cbranch_scc1 L_nostamp", "branch")]
        o += [salu("s_load_dwordx2 s[36:37], s[0:1], 88"), raw("s_waitcnt lgkmcnt(0)", "wait", lgkm=0)]
        o += [salu(f"s_mov_b32 s{S_WS}, s36"), salu(f"s_mov_b32 s{S_WS+1}, s37"), salu(f"s_mov_b32 s{S_WS+2}, 256"), salu(f"s_mov_b32 s{S_T0}, 0")]
    else:
        o.append(salu(f"s_mul_i32 s{S_T0}, s2, 64")); o.append(salu(f"s_add_u32 s{S_T0}, s{S_T0}, {STAMP_OFF}"))
        o.append(salu(f"s_mov_b32 s{S_WS+2}, {STAMP_OFF + 256*64}"))
    o.append(valu("v_mov_b32 v1, 0", [], ["v1"]))
    for k in range(n):
        if OPT.stamp_dbg >= 0:
            ref = 0 if STAMPS[k].startswith("rt") else 1
            o.append(salu(f"s_sub_u32 s{S_T1}, s{S_STAMP+2*k}, s{S_STAMP+2*ref}"))
            o.append(valu(f"v_mov_b32 v2, s{S_T1}", [], ["v2"]))
        elif STAMPS[k] == "loopcyc": o.append(valu("v_mov_b32 v2, s100", [], ["v2"]))
        elif STAMPS[k] == "acc_vm": o.append(valu("v_mov_b32 v2, s92", [], ["v2"]))
        elif STAMPS[k] == "acc_bar": o.append(valu("v_mov_b32 v2, s93", [], ["v2"]))
        else:
            o.append(valu(f"v_mov_b32 v2, s{S_STAMP+2*k}", [], ["v2"]))
        o.append(bstore(2, 1, 1, S_WS, f"s{S_T0}", 4 * k)); o.append(wait_vm(0))
    o.append(label("L_nostamp"))
    return o

def finish(): return [wait_vm(0), label("L_end"), raw("s_endpgm", "branch")]

def trip_seq(ex):
    return [raw("s_memtime s[98:99]", "salu"), raw("s_memrealtime s[100:101]", "salu"), raw("s_waitcnt lgkmcnt(0)", "wait", lgkm=0),
            salu(f"s_mov_b32 s99, m0"), salu(f"s_mov_b32 m0, s{S_LOOP}"), nop(0), valu(f"v_writelane_b32 v1, s98, m0", ["s98"], ["v1"]),
            salu(f"s_add_u32 m0, s{S_LOOP}, 8"), nop(0), valu(f"v_writelane_b32 v1, s100, m0", ["s100"], ["v1"]),
            salu("s_mov_b32 m0, s99"), salu(f"s_cmp_lg_u32 s{S_LOOP}, {ex}")]
def build(debug=None):
    _stamp_n[0] = 0; STAMPS.clear(); OOL.clear()
    pre = setup() + phase1()
    if debug == "p1":
        pre += stamp("rt_end")
        resolve_vm(pre, [])
        return pre + stamp_out() + finish()
    if debug == "q":
        resolve_vm(pre, []); check(pre, "pre")
        return pre + dump_regs(V_Q, 128) + finish()
    if OPT.dma_mode == "cluster":
        OPT.dma_gaps = ([21, 23, 25, 27], [101, 103, 105, 107]); OPT.nv_prev = 0
    elif OPT.dma_mode == "cluster2":
        OPT.dma_gaps = ([41, 43, 47, 49], [101, 103, 105, 107]); OPT.nv_prev = 0
    NCUR = len(OPT.dma_gaps[1])
    pre += [salu(f"s_cmp_lg_u32 s{S_SAFE}, 0"), raw("s_cbranch_scc1 L_safe_attn", "branch")]
    p, carried = pre_iter(); pre += p
    def batch(t):
        return dma_tile("V", vslot(t + 3), f"s{S_VOFF}", f"V{t+3}") + dma_tile("K", kslot(t + 5), f"s{S_KOFF}", f"K{t+5}")
    pre += wo_setup()
    if OPT.fused: pre += grp_setup()
    def ex0(g, kb):
        put_wo(g, 0, 3, kb, step=8)
    vf0 = OPT.vfirst
    if OPT.early_trips: OPT.vfirst = OPT.vfirst_early
    s0, carried = attn_iter(0, carried, wait_tag("V1", "K2"), [], batch(0)[:NCUR], first=True, adv=False, extra=ex0)
    OPT.vfirst = vf0
    pre += s0
    pre.append(salu(f"s_mov_b32 s{S_LOOP}, 7"))
    if OPT.bar_stamps: pre += [salu("s_mov_b32 s92, 0"), salu("s_mov_b32 s93, 0")]
    pre += stamp("loop_start") + (stamp("rt_ls") if (OPT.bar_stamps or OPT.trip_stamps) else [])
    def loop_body(name):
        nonlocal carried
        lp = [label(name)]
        for u in range(4):
            t = 1 + u
            s, carried = attn_iter(t, carried, wait_vm(12), batch(t - 1)[NCUR:], batch(t)[:NCUR], loopctl=(u == 3), loop_body=True)
            if OPT.dma_stamps and u == 1:
                s2 = []; n = 0
                for x in s:
                    if x.kind == "dma" and n < 5:
                        s2 += [raw(f"s_memtime s[{80+4*n}:{81+4*n}]", "salu"), x, raw(f"s_memtime s[{82+4*n}:{83+4*n}]", "salu")]; n += 1
                    else: s2.append(x)
                s = s2
            lp += s
        return lp
    first_loop = []
    if OPT.early_trips:
        vf = OPT.vfirst; OPT.vfirst = OPT.vfirst_early
        OPT.loop_exit = 7 - OPT.early_trips
        first_loop = loop_body("L_attn_early") + (trip_seq(OPT.loop_exit) if OPT.trip_stamps else []) + [raw("s_cbranch_scc1 L_attn_early", "branch")]
        OPT.vfirst = vf; OPT.loop_exit = 0
    loop = loop_body("L_attn")
    if OPT.trip_stamps: loop += trip_seq(0)
    if OPT.loop_nodma: loop = [x for x in loop if x.kind != "dma"]
    if OPT.loop_nods: loop = [x for x in loop if x.kind != "ds" and not (x.kind == "wait" and "lgkm" in x.meta and x.meta["lgkm"] > 0)]
    if OPT.loop_nomfma: loop = [(nop(1) if x.kind == "mfma" else x) for x in loop]
    if OPT.loop_novalu: loop = [x for x in loop if x.kind not in ("valu", "trans")]
    if OPT.loop_dma_every > 1:
        cnt = [0]
        def keep(x):
            if x.kind != "dma": return True
            cnt[0] += 1
            return cnt[0] % OPT.loop_dma_every == 0
        loop = [x for x in loop if keep(x)]
    loop.append(raw("s_cbranch_scc1 L_attn", "branch"))
    post = stamp("loop_end") + (stamp("rt_le") if OPT.bar_stamps else [])
    if OPT.trip_stamps:
        post += [valu(f"v_lshlrev_b32 v2, 2, v{V_LANE}", [], ["v2"]), salu(f"s_mul_i32 s{S_T1}, s2, 64"),
                 salu(f"s_add_u32 s{S_T1}, s{S_T1}, {STAMP_OFF + 256*64}"), salu(f"s_mov_b32 s{S_WS+2}, {STAMP_OFF + 2*256*64}"),
                 valu("v_cmp_gt_u32 vcc, 16, v0", ["v0"], ["vcc"]), salu(f"s_cmp_eq_u32 s{S_W}, 0"), raw("s_cselect_b64 s[50:51], vcc, 0", "salu"),
                 raw("s_mov_b64 s[54:55], exec", "salu"), raw("s_mov_b64 exec, s[50:51]", "salu"), raw("s_cbranch_execz L_notrip", "branch"),
                 raw(f"buffer_store_dword v1, v2, s[{S_WS}:{S_WS+3}], s{S_T1} offen", "salu"), wait_vm(0), label("L_notrip"), raw("s_mov_b64 exec, s[54:55]", "salu"), wait_vm(0)]
    def ex29(g, kb):
        if OPT.fused: place_vmem(g, 40, [], mode_load(), kb)
        gp = 50
        for j in OPT.wo_touch: gp = place_vmem(g, gp, [], wo_touch(j), kb) + 12
    post += wo_touch_setup()
    s, carried = attn_iter(29, carried, wait_tag("V30", "K32"), batch(28)[NCUR:4], [], adv=False,
                           extra=ex29)
    post += s
    def ex30(g, kb):
        put_wo(g, 1, 3, kb, step=8)
        if OPT.fused:
            k = 2
            for x in ring_scalars(): k = put_scalar(g, k, x) + 1
    s, carried = attn_iter(30, carried, wait_tag("V31"), [], [], adv=False, extra=ex30)
    post += s
    post += last_iter(carried)
    post += stamp("attn_end")
    if debug == "o":
        tailq = dump_regs(V_Q, 128)
    elif debug == "l":
        tailq = dump_regs(V_L, 4)
    else:
        common, loc, far = phase3()
        tailq = common
    post += tailq
    q = resolve_vm(pre, [])
    qexit = ["V30"] * 4 + ["K32"] * 4 + ["V31"] * NCUR
    qb_ = resolve_vm(post, qexit)
    if debug is None:
        resolve_vm(loc, qb_); resolve_vm(far, qb_)
        if far and not OPT.p3_drop: check(loop[1:] + post + far[1:], "loop+post+far", init_lgkm=[x.wr for x in pre if x.kind == "ds"][-8:], init_vm=[[]] * (8 + NCUR))
        post = post + loc
        OOL.extend(far)
    if not (OPT.p1_nowait or OPT.p1_noread or OPT.p1_drop or OPT.loop_nodma or OPT.loop_dma_every > 1 or OPT.loop_nods or OPT.loop_nomfma or OPT.loop_novalu): check(pre + loop[1:] + loop[1:], "pre+loop")
    if not (OPT.p3_drop or OPT.loop_nodma or OPT.loop_dma_every > 1 or OPT.loop_nods or OPT.loop_nomfma or OPT.loop_novalu): check(loop[1:] + post, "loop+post", init_lgkm=[x.wr for x in pre if x.kind == "ds"][-8:], init_vm=[[]] * (8 + NCUR))
    OOL.extend(safe_attn())
    if first_loop: check(pre + first_loop[1:] + first_loop[1:] + loop[1:], "pre+early+loop")
    return pre + first_loop + loop + post + stamp_out() + finish() + OOL

def reduce_kernel():
    o = []; a = o.append
    a(salu("s_cmp_ge_u32 s2, 256")); a(raw("s_cbranch_scc1 R_end", "branch"))
    a(salu("s_load_dwordx2 s[4:5], s[0:1], 80")); a(salu("s_load_dwordx2 s[6:7], s[0:1], 96"))
    a(valu("v_lshrrev_b32 v1, 6, v0", ["v0"], ["v1"])); a(valu("v_and_b32 v0, 63, v0", ["v0"], ["v0"]))
    a(valu("v_readfirstlane_b32 s32, v1", ["v1"], ["s32"]))
    a(salu("s_lshr_b32 s33, s2, 4")); a(salu("s_and_b32 s34, s2, 15"))
    a(salu("s_lshr_b32 s35, s33, 3")); a(salu("s_and_b32 s36, s33, 7"))
    a(salu("s_lshr_b32 s37, s32, 1")); a(salu("s_and_b32 s38, s32, 1"))
    a(valu("v_lshrrev_b32 v2, 5, v0", ["v0"], ["v2"])); a(valu("v_lshlrev_b32 v2, 11, v2", ["v2"], ["v2"]))
    a(valu("v_and_b32 v3, 31, v0", ["v0"], ["v3"])); a(valu("v_lshl_add_u32 v2, v3, 4, v2", ["v3", "v2"], ["v2"]))
    a(salu("s_lshl_b32 s39, s37, 10")); a(salu("s_lshl_b32 s40, s38, 9")); a(salu("s_add_u32 s39, s39, s40"))
    a(valu("v_add_u32 v2, s39, v2", ["v2"], ["v2"]))
    a(valu("v_and_b32 v8, 15, v0", ["v0"], ["v8"])); a(valu("v_lshrrev_b32 v9, 4, v0", ["v0"], ["v9"]))
    a(valu("v_lshrrev_b32 v10, 3, v8", ["v8"], ["v10"])); a(valu("v_and_b32 v11, 1, v9", ["v9"], ["v11"]))
    a(valu("v_and_b32 v12, 1, v8", ["v8"], ["v12"])); a(valu("v_lshlrev_b32 v12, 4, v12", ["v12"], ["v12"]))
    a(valu("v_mov_b32 v13, 0x3f80", [], ["v13"])); a(valu("v_lshlrev_b32 v13, v12, v13", ["v12", "v13"], ["v13"]))
    a(valu("v_cmp_eq_u32 vcc, v10, v11", ["v10", "v11"], ["vcc"])); a(nop(1))
    a(valu("v_cndmask_b32 v13, 0, v13, vcc", ["v13", "vcc"], ["v13"]))
    a(valu("v_bfe_u32 v14, v8, 1, 2", ["v8"], ["v14"]))
    for r in range(4):
        a(valu(f"v_cmp_eq_u32 vcc, {r}, v14", ["v14"], ["vcc"])); a(nop(1))
        a(valu(f"v_cndmask_b32 v{4+r}, 0, v13, vcc", ["v13", "vcc"], [f"v{4+r}"]))
    a(salu("s_lshl_b32 s41, s36, 8")); a(salu("s_lshl_b32 s42, s34, 4")); a(salu("s_add_u32 s41, s41, s42"))
    a(valu("v_add_u32 v3, s41, v8", ["v8"], ["v3"])); a(valu("v_mul_u32_u24 v3, 896, v3", ["v3"], ["v3"]))
    a(salu("s_mul_i32 s42, s35, 448")); a(salu("s_lshl_b32 s43, s37, 5")); a(salu("s_add_u32 s42, s42, s43"))
    a(salu("s_lshl_b32 s43, s38, 3")); a(salu("s_add_u32 s42, s42, s43"))
    a(valu("v_add_u32 v3, s42, v3", ["v3"], ["v3"]))
    a(valu("v_lshl_add_u32 v3, v11, 4, v3", ["v11", "v3"], ["v3"]))
    a(valu("v_lshrrev_b32 v10, 1, v9", ["v9"], ["v10"])); a(valu("v_lshl_add_u32 v3, v10, 2, v3", ["v10", "v3"], ["v3"]))
    a(valu("v_lshlrev_b32 v3, 1, v3", ["v3"], ["v3"]))
    a(raw("s_waitcnt lgkmcnt(0)", "wait", lgkm=0))
    for base, lo, size in ((8, 6, 16 * 7 * 16 * 16 * 2048), (12, 4, 8 * 256 * 896 * 2)):
        a(salu(f"s_mov_b32 s{base}, s{lo}")); a(salu(f"s_mov_b32 s{base+1}, s{lo+1}"))
        a(salu(f"s_mov_b32 s{base+2}, {size}")); a(salu(f"s_mov_b32 s{base+3}, 0x20000"))
    a(salu(f"s_mul_i32 s44, s33, {7*16*32768}")); a(salu("s_lshl_b32 s45, s34, 15")); a(salu("s_add_u32 s44, s44, s45"))
    for j in range(7):
        for i in range(8):
            a(salu(f"s_add_u32 s46, s44, {j*16*32768 + i*4096}"))
            a(tag(bload(16 + (j * 8 + i) * 4, 4, 2, 8, "s46", 0), f"p{j}"))
    for j in range(7):
        a(wait_tag(f"p{j}"))
        d = 240 + 4 * (j & 1)
        for i in range(8):
            a(mfma("v", d, "v", 4, "v", 16 + (j * 8 + i) * 4, None if i == 0 else "v", None if i == 0 else d))
        a(nop(7))
        a(valu(f"v_cvt_pk_bf16_f32 v{d}, v{d}, v{d+1}", [f"v{d}", f"v{d+1}"], [f"v{d}"]))
        a(valu(f"v_cvt_pk_bf16_f32 v{d+1}, v{d+2}, v{d+3}", [f"v{d+2}", f"v{d+3}"], [f"v{d+1}"]))
        a(tag(bstore(d, 2, 3, 12, "0", j * 128), "o"))
    resolve_vm(o, []); check(o, "reduce")
    if OPT.stamps and OPT.stamp_fwd >= 0:
        o += [wait_vm(0), salu("s_cmp_lg_u32 s2, 0"), raw("s_cbranch_scc1 R_end", "branch"),
              salu("s_load_dwordx2 s[20:21], s[0:1], 88"), raw("s_waitcnt lgkmcnt(0)", "wait", lgkm=0),
              salu("s_mov_b32 s16, s20"), salu("s_mov_b32 s17, s21"), salu("s_mov_b32 s18, 64"), salu("s_mov_b32 s19, 0x20000"),
              salu(f"s_mov_b32 s10, {16*7*16*16*2048 + 256*64}"), salu(f"s_mov_b32 s46, {16*7*16*16*2048} + 64*{OPT.stamp_fwd}"),
              valu("v_lshlrev_b32 v2, 2, v0", ["v0"], ["v2"]), bload(3, 1, 2, 8, "s46", 0), wait_vm(0), bstore(3, 1, 2, 16, "0", 0)]
    o += [wait_vm(0), label("R_end"), raw("s_endpgm", "branch")]
    return o

KD = """.section .rodata,"a"
.p2align 6
.amdhsa_kernel {name}
  .amdhsa_next_free_vgpr {vgpr}
  .amdhsa_next_free_sgpr 102
  .amdhsa_accum_offset 256
  .amdhsa_group_segment_fixed_size 0
  .amdhsa_kernarg_size 104
  .amdhsa_user_sgpr_count 2
  .amdhsa_user_sgpr_kernarg_segment_ptr 1
  .amdhsa_system_sgpr_workgroup_id_x 1
.end_amdhsa_kernel
"""
def header_comments():
    ref = open("cdna_kernels/" + NAME + ".s.ref").read().splitlines()
    out = []
    for l in ref:
        if l.startswith("; Override launch") or not l.startswith(";"): break
        out.append(l)
    return out

def stream_kernel():
    t = """
  s_cmp_ge_u32 s2, 256
  s_cbranch_scc1 S_end
  s_load_dwordx2 s[4:5], s[0:1], 8
  s_load_dwordx2 s[6:7], s[0:1], 96
  s_load_dwordx2 s[8:9], s[0:1], 48
  v_lshrrev_b32 v2, 6, v0
  s_nop 0
  v_readfirstlane_b32 s24, v2
  v_and_b32 v1, 63, v0
  v_lshlrev_b32 v14, 4, v1
  s_nop 2
  s_lshl_b32 s25, s24, 12
  v_add_u32 v14, s25, v14
  s_waitcnt lgkmcnt(0)
  s_cmp_lt_u32 s2, 128
  s_cselect_b32 s36, s4, s8
  s_cselect_b32 s37, s5, s9
  s_mov_b32 s38, 0x4000000
  s_mov_b32 s39, 0x20000
  s_and_b32 s32, s2, 127
  s_lshl_b32 s32, s32, 19
  s_barrier
  s_memrealtime s[12:13]
  s_mov_b32 s20, 0
S_loop:
  s_mov_b32 m0, s25
  s_nop 0
  buffer_load_dwordx4 v14, s[36:39], s32 offen nt lds
  buffer_load_dwordx4 v14, s[36:39], s32 offen offset:1024 nt lds
  buffer_load_dwordx4 v14, s[36:39], s32 offen offset:2048 nt lds
  buffer_load_dwordx4 v14, s[36:39], s32 offen offset:3072 nt lds
  s_add_u32 s32, s32, 16384
  s_waitcnt vmcnt(8)
  s_barrier
  s_add_u32 s20, s20, 1
  s_cmp_lt_u32 s20, 32
  s_cbranch_scc1 S_loop
  s_waitcnt vmcnt(0)
  s_barrier
  s_memrealtime s[16:17]
  s_waitcnt lgkmcnt(0)
  s_sub_u32 s16, s16, s12
  s_mov_b32 s40, s6
  s_mov_b32 s41, s7
  s_mov_b32 s42, %d
  s_mov_b32 s43, 0x20000
  s_mul_i32 s33, s2, 64
  s_add_u32 s33, s33, %d
  v_mov_b32 v2, s16
  v_mov_b32 v1, 0
  buffer_store_dword v2, v1, s[40:43], s33 offen
  s_waitcnt vmcnt(0)
S_end:
  s_endpgm""" % (16*7*16*16*2048 + 256*64, 16*7*16*16*2048 + 60)
    return t

def assemble_file(debug=None):
    main = build(debug)
    red = reduce_kernel()
    k1 = NAME + "_kernel"; k2 = "reduce_heads_kernel"
    L = header_comments()
    if OPT.stream0: L.append(f"; @launch kernel=stream_test_kernel grid=(256,1,1) block=(256,1,1) lds={LDS_BYTES}")
    if OPT.fused and not OPT.stream0:
        L.append(f"; @launch grid=(256,1,1) block=(256,1,1) lds={LDS_BYTES}")
    else:
        L.append(f"; @launch kernel={k1} grid=(256,1,1) block=(256,1,1) lds={LDS_BYTES}")
        if debug is None and not OPT.fused: L.append(f"; @launch kernel={k2} grid=(256,1,1) block=(256,1,1) lds=0")
    L.append('.amdgcn_target "amdgcn-amd-amdhsa--gfx950"')
    L.append(".text")
    for nm, body in ((k1, main), (k2, red)) if not OPT.fused else ((k1, main),):
        L += [f".globl {nm}", ".p2align 8", f".type {nm},@function", f"{nm}:", text(body)]
    if OPT.stream0: L += [".globl stream_test_kernel", ".p2align 8", ".type stream_test_kernel,@function", "stream_test_kernel:", stream_kernel()]
    L.append(KD.format(name=k1, vgpr=512))
    if not OPT.fused: L.append(KD.format(name=k2, vgpr=256))
    if OPT.stream0: L.append(KD.format(name="stream_test_kernel", vgpr=512))
    return "\n".join(L) + "\n"

if __name__ == "__main__":
    dbg = sys.argv[2] if len(sys.argv) > 2 and sys.argv[2] != "none" else None
    for kv in sys.argv[3:]:
        k, v = kv.split("=")
        v = v.replace("+", " ")
        setattr(OPT, k, {"True": True, "False": False, "()": ()}.get(v, int(v) if v.lstrip("-").isdigit() else (eval(v) if v.startswith("(") else v)))
    open(sys.argv[1], "w").write(assemble_file(dbg))
    print("stamps:", STAMPS)
```

```python
import math, struct, sys
from core import *

NAME = "concat_heads__mha_block_cached__mha_block_cached__near_ridge"
def f32bits(x): return struct.unpack("<I", struct.pack("<f", x))[0]
CSC = math.log2(math.e) / 16.0

S_X, S_WQ, S_K, S_V, S_WO, S_WS, S_OUT = 4, 8, 12, 16, 20, 24, 28
S_W, S_W1K = 32, 33
S_QB = ["0", "s34", "s35", "s62"]
S_C = 63
S_KOFF, S_VOFF = 64, 65
S_LOOP = 66
S_T0, S_T1, S_T2, S_T3 = 67, 68, 69, 70
S_G, S_H, S_B, S_BR = 71, 72, 73, 74
S_WOFF = 76
S_PART = 77
S_WCUR, S_WSTEP, S_XSTEP = 78, 79, 75
S_FL, S_DBG = 36, 40
S_LOCM = 44
S_RBASE, S_SIG, S_POLL, S_XCC = 46, 47, 48, 49
S_RG = 56
S_SPIN = 62
S_SAFE = 3
S_ROT = 52
S_PFO = 53
S_RST, S_RLD, S_FPW, S_FPR, S_FCW, S_FCR = 60, 61, 75, 78, 79, 76
S_STAMP = 80
V_LANE = 0
V_KA = [4, 5]
V_VA = [6, 7, 8, 9]
V_DK, V_DV = 10, 11
V_L = 12
V_MC = 16
V_SP = 20
V_POOL = 32
V_S = 64
V_P = 96
V_Q = 128
V_XA = 20; V_DW = 21; V_WA = [[22, 23], [24, 25], [26, 27]]
V_CT = 28
V_ARR = 24
L_K = 0; L_V = 65536; L_X = 131072
def kslot(t): return L_K + 16384 * (t % 4)
def vslot(t): return L_V + 16384 * (t % 4)
LDS_BYTES = 163840
L_VOTE = L_V + 2 * 16384
L_LIMIT = 2.0 ** 30

PART_BYTES = 16 * 7 * 16 * 16 * 2048
FLAG_BYTES = 16 * 7 * 4 * 64
STAMP_OFF = PART_BYTES + 32768
RING_OFF = PART_BYTES + (1 << 20)
RING_BYTES = 32 << 20
CONS_OFF = 16384
SPIN_MAX = 1 << 19
class Opt:
    kv_flags = "nt"
    w_flags = ""
    x_flags = ""
    wo_flags = ""
    st_flags = ""
    stamps = False
    kvspread = False
    tlbwarm = 0
    remap = 0
    tail2 = True
    tmpl = 0
    wo_stage = False
    p3_tiles = False
    early_trips = 0
    vfirst_early = 37
    loop_exit = 0
    xwarm = False
    kvmin = False
    vfirst = 0
    dma_stamps = False
    rot = 0
    pad_iter = 0
    last_st = ''
    out_flags = ''
    coopw = False
    coopw_init = 2
    pf_flags = ''
    early_wb = 0
    wt_flags = ''
    prod_delay = 0
    ring = 4
    vm_space = 0
    p3_drop = ''
    wo_step = 13
    cons_chk = 22
    wo_touch = (4, 5, 6)
    red_m = 200
    cons_poll = 50
    ld_min = 16
    stamp_skip = 'p1_first_data,pre_iter_end'
    p3detail = -1
    st_lag = 21
    force_fallback = False
    red_at = 60
    sig_lag = 28
    poll_lag = 22
    chk_lag = 22
    fused = True
    stream0 = False
    loop_nods = False
    loop_nomfma = False
    loop_novalu = False
    loop_nodma = False
    loop_dma_every = 1
    bar_stamps = False
    trip_stamps = False
    dma_mode = 'spread'
    dma_gaps = ([5, 21, 37, 53, 69, 85], [101, 117])
    nv_prev = 2
    stamp_fwd = -1
    stamp_dbg = -1
    x_rd_gap0 = 65
    x_rd_gap = 33
    p1_steps = False
    p1_drop = ''
    rev = True
    init_w = 2
    early_step = 2
    x_gap = 60
    p1_nowait = False
    p1_noread = False
    wring = 3
    kvpf = 'early'
    coopx = False
    init_more = 0
OPT = Opt()

def wait_tag(*tags): return I("s_waitcnt vmcnt(?)", "wait", vmtags=list(tags))
def tag(ins, t):
    ins.meta["tag"] = t; return ins
def resolve_vm(stream, queue):
    q = list(queue)
    for ins in stream:
        if ins.kind in ("dma", "vld", "vst"):
            q.append(ins.meta.get("tag", "?"))
        elif ins.kind == "wait":
            if "vmtags" in ins.meta:
                idx = [n for n, t in enumerate(q) if t in ins.meta["vmtags"]]
                n = len(q) - 1 - max(idx) if idx else len(q)
                n = min(n, 63)
                ins.text = f"s_waitcnt vmcnt({n})"; ins.meta["vm"] = n
            if "vm" in ins.meta:
                n = ins.meta["vm"]
                if len(q) > n: q = q[len(q) - n:] if n else []
    return q

_stamp_n = [0]
def stamp(name):
    if not OPT.stamps: return []
    if OPT.dma_stamps:
        if name == "loop_start": return [raw("s_memtime s[100:101]", "salu"), raw("s_waitcnt lgkmcnt(0)", "wait", lgkm=0)]
        if name == "loop_end": return [raw("s_memtime s[76:77]", "salu"), raw("s_waitcnt lgkmcnt(0)", "wait", lgkm=0), salu("s_sub_u32 s100, s76, s100")]
        return []
    if OPT.stamp_skip and name in OPT.stamp_skip.split(","): return []
    if OPT.p3detail >= 0 and not name.startswith("d_") and name not in ("rt_end",): return []
    if OPT.bar_stamps and name not in ("rt_ls", "rt_le", "loop_start", "loop_end", "rt_end"): return []
    n = _stamp_n[0]; _stamp_n[0] += 1
    STAMPS.append(name)
    op = "s_memrealtime" if name.startswith("rt") else "s_memtime"
    return [raw(f"{op} s[{S_STAMP+2*n}:{S_STAMP+2*n+1}]", "salu")]
STAMPS = []

def m0_set(base): return salu(f"s_add_u32 m0, s{S_W1K}, {base}", [f"s{S_W1K}"], ["m0"])

def dma_tile(kind, slot_base, soff, tg):
    voff, srd, fl = {"K": (V_DK, S_K, OPT.kv_flags), "V": (V_DV, S_V, OPT.kv_flags), "W": (V_DW, S_WQ, OPT.w_flags)}[kind]
    return [(m0_set(slot_base + dc * 3968), tag(dma(voff, srd, soff, dc * 128, fl), tg)) for dc in range(4)]

def setup():
    o = []; a = o.append
    a(salu("s_cmp_ge_u32 s2, 256")); a(raw("s_cbranch_scc1 L_end", "branch"))
    o += stamp("rt_start") + stamp("start")
    if OPT.remap:
        a(salu("s_lshr_b32 s4, s2, 3")); a(salu("s_add_u32 s4, s4, s2")); a(salu("s_and_b32 s4, s4, 7"))
        a(salu("s_andn2_b32 s5, s2, 7")); a(salu("s_or_b32 s4, s4, s5"))
        if OPT.remap == 2: a(salu("s_cmp_ge_u32 s2, 128")); a(salu("s_cselect_b32 s2, s4, s2"))
        else: a(salu("s_mov_b32 s2, s4"))
    a(valu("v_lshrrev_b32 v1, 6, v0", ["v0"], ["v1"]))
    a(valu(f"v_and_b32 v{V_LANE}, 63, v0", ["v0"], ["v0"]))
    a(salu(f"s_mov_b32 s{S_SAFE}, 0"))
    a(valu(f"v_readfirstlane_b32 s{S_W}, v1", ["v1"], [f"s{S_W}"]))
    a(label("L_again"))
    a(salu("s_load_dwordx16 s[36:51], s[0:1], 0")); a(salu("s_load_dwordx8 s[52:59], s[0:1], 64"))
    a(salu("s_load_dwordx2 s[60:61], s[0:1], 96"))
    a(nop(3))
    a(salu(f"s_and_b32 s{S_T0}, s2, 7")); a(salu(f"s_lshr_b32 s{S_T1}, s2, 3"))
    a(salu(f"s_and_b32 s{S_H}, s{S_T1}, 15")); a(salu(f"s_lshr_b32 s{S_T1}, s{S_T1}, 4"))
    a(salu(f"s_lshl_b32 s{S_G}, s{S_T0}, 1")); a(salu(f"s_add_u32 s{S_G}, s{S_G}, s{S_T1}"))
    a(salu(f"s_lshr_b32 s{S_BR}, s{S_G}, 3")); a(salu(f"s_and_b32 s{S_B}, s{S_G}, 7"))
    a(salu(f"s_lshl_b32 s{S_W1K}, s{S_W}, 10"))
    if OPT.rot:
        a(salu(f"s_and_b32 s{S_T0}, s2, 7")); a(salu(f"s_mul_i32 s{S_T0}, s{S_T0}, {OPT.rot}")); a(salu(f"s_lshr_b32 s{S_T1}, s2, 3"))
        a(salu(f"s_add_u32 s{S_T0}, s{S_T0}, s{S_T1}")); a(salu(f"s_and_b32 s{S_T0}, s{S_T0}, 31")); a(salu(f"s_lshl_b32 s33, s{S_T0}, 14") if False else salu(f"s_lshl_b32 s{S_T3}, s{S_T0}, 14"))
    a(salu(f"s_mov_b32 s{S_C}, 0x{f32bits(CSC):08x}"))
    L = f"v{V_LANE}"
    def vv(t, rd, wr): a(valu(t, rd, wr))
    vv(f"v_and_b32 v1, 15, {L}", [L], ["v1"]); vv(f"v_lshrrev_b32 v2, 4, {L}", [L], ["v2"])
    vv("v_lshrrev_b32 v3, 1, v1", ["v1"], ["v3"])
    for sp in range(2):
        r = V_KA[sp]
        vv(f"v_add_u32 v{r}, {4*sp}, v2", ["v2"], [f"v{r}"])
        vv(f"v_xor_b32 v{r}, v{r}, v3", [f"v{r}", "v3"], [f"v{r}"])
        vv(f"v_lshlrev_b32 v{r}, 4, v{r}", [f"v{r}"], [f"v{r}"])
        vv(f"v_lshl_add_u32 v{r}, v1, 7, v{r}", ["v1", f"v{r}"], [f"v{r}"])
    vv(f"v_lshrrev_b32 v1, 3, {L}", [L], ["v1"]); vv(f"v_and_b32 v2, 7, {L}", [L], ["v2"])
    vv(f"v_lshl_add_u32 v3, s{S_W}, 3, v1", ["v1", f"s{S_W}"], ["v3"])
    vv("v_bfe_u32 v28, v3, 1, 1", ["v3"], ["v28"]); vv("v_lshlrev_b32 v28, 2, v28", ["v28"], ["v28"])
    vv("v_xor_b32 v28, v28, v2", ["v28", "v2"], ["v28"]); vv("v_lshlrev_b32 v28, 4, v28", ["v28"], ["v28"])
    vv(f"v_lshl_add_u32 v{V_DW}, v3, 13, v28", ["v3", "v28"], [f"v{V_DW}"])
    a(raw("s_waitcnt lgkmcnt(0)", "wait", lgkm=0))
    a(salu(f"s_cmp_eq_u32 s{S_BR}, 0"))
    for i in range(10): a(salu(f"s_cselect_b32 s{36+i}, s{36+i}, s{46+i}"))
    if OPT.rot: a(salu(f"s_mov_b32 s{S_ROT}, s{S_T3}"))
    def srd(base, lo, hi, offs, size):
        if offs is None:
            a(salu(f"s_mov_b32 s{base}, s{lo}")); a(salu(f"s_mov_b32 s{base+1}, s{hi}"))
        else:
            a(salu(f"s_add_u32 s{base}, s{lo}, {offs}")); a(salu(f"s_addc_u32 s{base+1}, s{hi}, 0"))
        a(salu(f"s_mov_b32 s{base+2}, {size}")); a(salu(f"s_mov_b32 s{base+3}, 0x20000"))
    a(salu(f"s_mul_i32 s{S_T0}, s{S_B}, 229376")); srd(S_X, 36, 37, f"s{S_T0}", 229376)
    a(salu(f"s_lshl_b32 s{S_T0}, s{S_H}, 9")); srd(S_WQ, 42, 43, f"s{S_T0}", 0)
    a(salu(f"s_sub_u32 s{S_WQ+2}, {448*8192}, s{S_T0}"))
    return o

def setup_b():
    o = []; a = o.append
    L = f"v{V_LANE}"
    def vv(t, rd, wr): a(valu(t, rd, wr))
    vv(f"v_lshrrev_b32 v2, 4, {L}", [L], ["v2"])
    vv(f"v_bfe_u32 v28, {L}, 2, 2", [L], ["v28"]); vv(f"v_and_b32 v29, 3, {L}", [L], ["v29"])
    vv("v_lshl_add_u32 v30, v2, 2, v28", ["v2", "v28"], ["v30"])
    vv("v_bfe_u32 v31, v30, 1, 2", ["v30"], ["v31"])
    for p in range(4):
        r = V_VA[p]
        vv(f"v_xor_b32 v{r}, {p}, v31", ["v31"], [f"v{r}"])
        vv(f"v_lshlrev_b32 v{r}, 5, v{r}", [f"v{r}"], [f"v{r}"])
        vv(f"v_lshl_add_u32 v{r}, v30, 7, v{r}", ["v30", f"v{r}"], [f"v{r}"])
        vv(f"v_lshl_add_u32 v{r}, v29, 3, v{r}", ["v29", f"v{r}"], [f"v{r}"])
        vv(f"v_add_u32 v{r}, {L_V}, v{r}", [f"v{r}"], [f"v{r}"])
    vv("v_lshl_add_u32 v30, v2, 3, v28", ["v2", "v28"], ["v30"])
    vv("v_lshrrev_b32 v31, 1, v28", ["v28"], ["v31"])
    for sp in range(2):
        r = V_WA[0][sp]
        vv(f"v_xor_b32 v{r}, {sp}, v31", ["v31"], [f"v{r}"])
        vv(f"v_lshl_add_u32 v{r}, v{r}, 2, v29", [f"v{r}", "v29"], [f"v{r}"])
        vv(f"v_lshlrev_b32 v{r}, 4, v{r}", [f"v{r}"], [f"v{r}"])
        vv(f"v_lshl_add_u32 v{r}, v30, 7, v{r}", ["v30", f"v{r}"], [f"v{r}"])
        for win in (1, 2):
            vv(f"v_add_u32 v{V_WA[win][sp]}, {65536*win}, v{r}", [f"v{r}"], [f"v{V_WA[win][sp]}"])
    vv(f"v_lshrrev_b32 v1, 3, {L}", [L], ["v1"]); vv(f"v_and_b32 v2, 7, {L}", [L], ["v2"])
    vv(f"v_lshl_add_u32 v3, s{S_W}, 3, v1", ["v1", f"s{S_W}"], ["v3"])
    vv("v_bfe_u32 v28, v3, 1, 3", ["v3"], ["v28"]); vv("v_xor_b32 v28, v28, v2", ["v28", "v2"], ["v28"])
    vv("v_lshlrev_b32 v28, 4, v28", ["v28"], ["v28"]); vv(f"v_lshl_add_u32 v{V_DK}, v3, 9, v28", ["v3", "v28"], [f"v{V_DK}"])
    vv("v_bfe_u32 v28, v3, 1, 2", ["v3"], ["v28"]); vv("v_lshlrev_b32 v28, 1, v28", ["v28"], ["v28"])
    vv("v_xor_b32 v28, v28, v2", ["v28", "v2"], ["v28"]); vv("v_lshlrev_b32 v28, 4, v28", ["v28"], ["v28"])
    vv(f"v_lshl_add_u32 v{V_DV}, v3, 9, v28", ["v3", "v28"], [f"v{V_DV}"])
    def srd(base, lo, hi, offs, size):
        if offs is None:
            a(salu(f"s_mov_b32 s{base}, s{lo}")); a(salu(f"s_mov_b32 s{base+1}, s{hi}"))
        else:
            a(salu(f"s_add_u32 s{base}, s{lo}, {offs}")); a(salu(f"s_addc_u32 s{base+1}, s{hi}, 0"))
        a(salu(f"s_mov_b32 s{base+2}, {size}")); a(salu(f"s_mov_b32 s{base+3}, 0x20000"))
    a(salu(f"s_lshl_b32 s{S_T0}, s{S_B}, 4")); a(salu(f"s_add_u32 s{S_T0}, s{S_T0}, s{S_H}"))
    a(salu(f"s_lshl_b32 s{S_T0}, s{S_T0}, 19"))
    srd(S_K, 38, 39, f"s{S_T0}", 524288); srd(S_V, 40, 41, f"s{S_T0}", 524288)
    a(salu(f"s_mul_i32 s{S_T0}, s{S_H}, 229376")); srd(S_WO, 44, 45, f"s{S_T0}", 229376)
    srd(S_WS, 60, 61, None, 16 * 7 * 16 * 16 * 2048)
    srd(S_OUT, 56, 57, None, 8 * 256 * 896 * 2)
    if OPT.fused:
        srd(S_DBG, 58, 59, None, 256)
        a(salu(f"s_mov_b32 s{S_T0}, {PART_BYTES}")); srd(S_FL, 60, 61, f"s{S_T0}", 32768)
        a(salu(f"s_mov_b32 s{S_T0}, {RING_OFF}")); a(salu(f"s_add_u32 s54, s60, s{S_T0}")); a(salu("s_addc_u32 s55, s61, 0"))
        a(salu(f"s_mov_b32 s{S_RG}, s54")); a(salu(f"s_mov_b32 s{S_RG+1}, s55")); a(salu(f"s_mov_b32 s{S_RG+2}, {RING_BYTES}")); a(salu(f"s_mov_b32 s{S_RG+3}, 0x20000"))
        a(salu(f"s_getreg_b32 s{S_XCC}, hwreg(HW_REG_XCC_ID, 0, 3)"))
        a(salu(f"s_lshl_b32 s{S_SIG}, s{S_G}, 4")); a(salu(f"s_add_u32 s{S_SIG}, s{S_SIG}, s{S_H}"))
        a(salu(f"s_mul_i32 s{S_T0}, s{S_G}, {14*64}"))
        a(salu(f"s_lshl_b32 s{S_T1}, s{S_W}, 4")); a(salu(f"s_add_u32 s{S_T1}, s{S_T1}, s{S_H}")); a(salu(f"s_add_u32 s50, s{S_T0}, s{S_T1}"))
        a(salu(f"s_lshl_b32 s{S_T1}, s{S_H}, 2")); a(salu(f"s_add_u32 s{S_T1}, s{S_T1}, s{S_W}")); a(salu(f"s_add_u32 s51, s{S_T0}, s{S_T1}"))
        a(salu(f"s_add_u32 s51, s51, {CONS_OFF}"))
        a(valu(f"v_min_u32 v1, 13, v{V_LANE}", [f"v{V_LANE}"], ["v1"])); a(valu("v_lshlrev_b32 v1, 6, v1", ["v1"], ["v1"]))
        a(valu("v_mov_b32 v2, 0", [], ["v2"]))
        for sr in ("s50", "s51"):
            a(tag(I(f"buffer_store_byte v2, v1, s[{S_FL}:{S_FL+3}], {sr} offen", "vst", ["v1", "v2"], data=["v2"]), "reset"))
    if OPT.tlbwarm:
        a(valu("v_mov_b32 v134, 0", [], ["v134"]))
        items = [(S_K, "0"), (S_V, "0"), (S_WO, "0")]
        a(salu(f"s_mul_i32 s50, s{S_G}, {OPT.ring * 262144}")); items.append((S_RG, "s50"))
        a(salu(f"s_mul_i32 s51, s{S_B}, {256*896*2}")); items.append((S_OUT, "s51"))
        for n, (srd_, so) in enumerate(items[:OPT.tlbwarm]):
            a(tag(bload(135 + n, 1, 134, srd_, so, 0), "tlb"))
    return o

def add_lgkm_waits(g, cons, carried):
    seq = [(-1, regs) for regs in carried]
    for k in range(g.n):
        if g.mem[k] is not None and g.mem[k].kind == "ds": seq.append((k, g.mem[k].wr))
    lead = None
    for k, regs in cons:
        late = [n for n, (gap, w) in enumerate(seq) if gap == k - 1 and gap >= 0 and set(w) & set(regs)]
        assert not late, f"DS for MFMA {k} issued in gap {k-1}"
        idx = [n for n, (gap, w) in enumerate(seq) if gap < max(k - 1, 0) and set(w) & set(regs)]
        if not idx: continue
        last = max(idx)
        after = sum(1 for n, (gap, w) in enumerate(seq) if n > last and gap < max(k - 1, 0))
        assert after <= 15, (k, after)
        if k == 0: lead = wait_lgkm(after)
        else: g.pre[k - 1].insert(0, wait_lgkm(after))
    out = len(carried)
    if lead is not None: out = min(out, lead.meta["lgkm"])
    for k in range(g.n):
        for x in g.pre[k]:
            if "lgkm" in x.meta: out = min(out, x.meta["lgkm"])
        if g.mem[k] is not None and g.mem[k].kind == "ds":
            if out >= 14:
                g.pre[k].insert(0, wait_lgkm(8)); out = 8
            out += 1
    return lead

def place_vmem(g, gap, scalars, d, hi=None, stack=False, space=False):
    k = max(gap, 1 if stack else len(scalars))
    hi = g.n if hi is None else hi
    isdma = lambda x: x is not None and x.kind == "dma"
    while True:
        assert k < hi, f"no gap for {d.text}"
        near = OPT.vm_space and any(0 <= k + dd < g.n and dd != 0 and g.mem[k + dd] is not None and g.mem[k + dd].kind in ("vst", "vld", "dma")
                                    for dd in range(-OPT.vm_space, OPT.vm_space + 1))
        if g.mem[k] is None and not g.vec[k] and len(g.pre[k]) <= 1 and not (near and space):
            if stack:
                if not isdma(g.mem[k - 1]) and len(g.pre[k - 1]) + len(scalars) <= 3 and not any(x.kind == "barrier" for x in g.pre[k - 1]): break
            elif all(not g.pre[k - 1 - n] and not isdma(g.mem[k - 1 - n]) for n in range(len(scalars))): break
        k += 1
    if stack:
        for sc in scalars: g.put_pre(k - 1, sc)
    else:
        for n, sc in enumerate(scalars): g.put_pre(k - len(scalars) + n, sc)
    g.put_mem(k, d)
    return k

def put_scalar(g, gap, *ins):
    k = gap
    while g.pre[k]: k += 1
    g.pre[k] = list(ins)
    return k

def place_chain(g, ops, lo, hi):
    left = []
    for ins in ops:
        k = g.place_vec(ins, lo, hi) if (not left and lo < hi) else None
        if k is None: left.append(ins)
        else: lo = k + 1 if ins.kind == "trans" else k
    return lo, left

class Op:
    def __init__(self, ins, rel, dl, preds=()):
        self.ins = ins; self.rel = rel; self.dl = dl; self.preds = list(preds); self.gap = None

def list_schedule(g, ops, lo=0, hi=None):
    hi = g.n if hi is None else hi
    todo = list(ops)
    for k in range(lo, hi):
        while True:
            free = g.free_vec(k)
            if free <= 0: break
            ready = [x for x in todo if x.rel <= k and all(p.gap is not None and p.gap + d <= k for p, d in x.preds)]
            tr = [x for x in ready if x.ins.kind == "trans"]
            pl = [x for x in ready if x.ins.kind != "trans"]
            pick = None
            can_tr = free == 2 and g.mem[k] is None and not g.vec[k]
            if can_tr and tr: pick = min(tr, key=lambda x: x.dl)
            if pl:
                best = min(pl, key=lambda x: x.dl)
                if pick is None or (best.dl + 6 < pick.dl): pick = best
            if pick is None: break
            g.vec[k].append(pick.ins); pick.gap = k; todo.remove(pick)
    late = [x for x in ops if x.gap is not None and x.gap > x.dl]
    assert not late, [(x.ins.text, x.gap, x.dl) for x in late]
    return todo

def sm_ops(tile, kb, qb, rel, dl):
    i = sm_group(tile, kb, qb)
    f = [Op(i[0], rel, dl - 6), Op(i[1], rel, dl - 6), Op(i[4], rel, dl - 5), Op(i[5], rel, dl - 5)]
    x = [Op(i[2], rel, dl - 4, [(f[0], 1)]), Op(i[3], rel, dl - 4, [(f[1], 1)]), Op(i[6], rel, dl - 3, [(f[2], 1)]), Op(i[7], rel, dl - 3, [(f[3], 1)])]
    ad = [Op(i[8], rel, dl, [(x[0], 1)]), Op(i[9], rel, dl, [(x[1], 1)]), Op(i[11], rel, dl, [(x[2], 1)]), Op(i[12], rel, dl, [(x[3], 1)])]
    cv = [Op(i[10], rel, dl, [(x[0], 1), (x[1], 1)]), Op(i[13], rel, dl, [(x[2], 1), (x[3], 1)])]
    return f + x + ad + cv

def exposed(ops):
    o = []
    for n, ins in enumerate(ops):
        o.append(ins)
        if ins.kind == "trans" and n + 1 < len(ops) and ops[n + 1].kind != "trans": o.append(nop(0))
    return o

def conv_ops(acc, d, t):
    return [valu(f"v_accvgpr_read_b32 v{d}, a{acc}", [f"a{acc}"], [f"v{d}"]),
            valu(f"v_accvgpr_read_b32 v{t}, a{acc+1}", [f"a{acc+1}"], [f"v{t}"]),
            valu(f"v_accvgpr_read_b32 v{d+1}, a{acc+2}", [f"a{acc+2}"], [f"v{d+1}"]),
            valu(f"v_accvgpr_read_b32 v{t+1}, a{acc+3}", [f"a{acc+3}"], [f"v{t+1}"]),
            valu(f"v_cvt_pk_bf16_f32 v{d}, v{d}, v{t}", [f"v{d}", f"v{t}"], [f"v{d}"]),
            valu(f"v_cvt_pk_bf16_f32 v{d+1}, v{d+1}, v{t+1}", [f"v{d+1}", f"v{t+1}"], [f"v{d+1}"])]

def xlane_reduce(regs, op, tmp):
    o = []
    for swap in ("v_permlane32_swap_b32", "v_permlane16_swap_b32"):
        for n, r in enumerate(regs): o.append(valu(f"v_mov_b32 v{tmp+n}, v{r}", [f"v{r}"], [f"v{tmp+n}"]))
        o.append(nop(1))
        for n, r in enumerate(regs):
            o.append(valu(f"{swap} v{r}, v{tmp+n}", [f"v{r}", f"v{tmp+n}"], [f"v{r}", f"v{tmp+n}"]))
        o.append(nop(1))
        for n, r in enumerate(regs):
            o.append(valu(f"{op} v{r}, v{r}, v{tmp+n}", [f"v{r}", f"v{tmp+n}"], [f"v{r}"]))
    return o

def wpairs(): return [(L_X, L_X + 16384), (vslot(1), kslot(3)), (vslot(2), vslot(3))]
def wslot(tile):
    p = wpairs(); return p[(tile // 2) % len(p)][tile % 2]
XBUF = [V_S, V_P]
def xfrag(qb, cs): return XBUF[(cs // 2) & 1] + ((cs % 2) * 4 + qb) * 4
V_XD = [128, 129]
V_XR = [130, 131]
S_XB = 34
S_XCUR = 35
def x_setup():
    o = []; a = o.append
    L = f"v{V_LANE}"
    a(salu(f"s_and_b32 s{S_T1}, s{S_W}, 1")); a(salu(f"s_lshl_b32 s{S_T1}, s{S_T1}, 13"))
    a(salu(f"s_cmp_lt_u32 s{S_W}, 2")); a(salu(f"s_cselect_b32 s{S_XB}, 2, 4")); a(salu(f"s_lshl_b32 s{S_XB}, s{S_XB}, 14"))
    a(salu(f"s_add_u32 s{S_XB}, s{S_XB}, s{S_T1}"))
    assert kslot(2) == 2 << 14 and vslot(0) == 4 << 14
    a(valu(f"v_lshrrev_b32 v1, 3, {L}", [L], ["v1"])); a(valu(f"v_and_b32 v2, 7, {L}", [L], ["v2"]))
    a(valu(f"v_lshl_add_u32 v3, s{S_W}, 6, v1", ["v1", f"s{S_W}"], ["v3"]))
    a(valu("v_mul_u32_u24 v3, 896, v3", ["v3"], ["v3"]))
    a(valu("v_lshrrev_b32 v1, 1, v1", ["v1"], ["v1"]))
    for par in range(2):
        r = V_XD[par]
        a(valu(f"v_or_b32 v{r}, {4*par}, v1", ["v1"], [f"v{r}"]))
        a(valu(f"v_xor_b32 v{r}, v{r}, v2", [f"v{r}", "v2"], [f"v{r}"]))
        a(valu(f"v_lshl_add_u32 v{r}, v{r}, 4, v3", [f"v{r}", "v3"], [f"v{r}"]))
        a(valu(f"v_add_u32 v{V_XR[par]}, s{S_XB}, v{V_KA[par]}", [f"v{V_KA[par]}"], [f"v{V_XR[par]}"]))
    return o
def x_items(j):
    out = []
    for i in range(8):
        sreg = S_T2 + (i & 1)
        sc = []
        if i == 0 and j > 0: sc.append(salu(f"s_add_u32 s{S_XCUR}, s{S_XCUR}, s{S_XSTEP}", [f"s{S_XCUR}"], [f"s{S_XCUR}"]))
        sc.append(salu(f"s_add_u32 s{sreg}, s{S_XCUR}, {i*7168}", [f"s{S_XCUR}"], [f"s{sreg}"]))
        sc.append(salu(f"s_add_u32 m0, s{S_XB}, {i*1024}", [f"s{S_XB}"], ["m0"]))
        out.append((sc, tag(dma(V_XD[i & 1], S_X, f"s{sreg}", 0, OPT.x_flags), f"x{j}")))
    return out
def x_read(qb, cs): return ds_read128("v", xfrag(qb, cs), V_XR[cs & 1], qb * 2048)
def w_read(dbp, cs, jj):
    s, e = dbp >> 1, dbp & 1
    base = wslot(cs); win = base // 65536
    off = base - win * 65536 + (s >> 1) * 4096 + jj * 512 + e * 8
    return ds_read_tr("v", V_POOL + 4 * ((2 * dbp + (cs & 1)) % 8) + 2 * jj, V_WA[win][s & 1], off)

V_PF = 28
def coop_setup():
    o = []; a = o.append
    a(salu(f"s_mul_i32 s{S_T1}, s{S_H}, {112*128}"))
    a(salu(f"s_lshl_b32 s{S_T2}, s{S_W}, 12")); a(salu(f"s_add_u32 s{S_T1}, s{S_T1}, s{S_T2}"))
    a(valu(f"v_and_b32 v{V_PF}, 31, v{V_LANE}", [f"v{V_LANE}"], [f"v{V_PF}"]))
    a(valu(f"v_lshlrev_b32 v{V_PF}, 7, v{V_PF}", [f"v{V_PF}"], [f"v{V_PF}"]))
    a(valu(f"v_add_u32 v{V_PF}, s{S_T1}, v{V_PF}", [f"v{V_PF}"], [f"v{V_PF}"]))
    return o
def coop_x():
    return [tag(bload(V_PF + 1, 1, V_PF, S_X, "0", 0, OPT.pf_flags), "pf")]

V_PFW = 132
def coop_w_setup():
    o = []; a = o.append
    L = f"v{V_LANE}"
    a(salu(f"s_lshr_b32 s{S_T1}, s2, 7")); a(salu(f"s_and_b32 s{S_T1}, s{S_T1}, 1")); a(salu(f"s_lshl_b32 s{S_T1}, s{S_T1}, 5"))
    a(salu(f"s_lshl_b32 s{S_T2}, s{S_W}, 3")); a(salu(f"s_add_u32 s{S_T1}, s{S_T1}, s{S_T2}"))
    a(valu(f"v_bfe_u32 v{V_PFW}, {L}, 2, 3", [L], [f"v{V_PFW}"])); a(valu(f"v_add_u32 v{V_PFW}, s{S_T1}, v{V_PFW}", [f"v{V_PFW}"], [f"v{V_PFW}"]))
    a(valu(f"v_lshlrev_b32 v{V_PFW}, 13, v{V_PFW}", [f"v{V_PFW}"], [f"v{V_PFW}"]))
    a(valu(f"v_and_b32 v{V_PFW+1}, 3, {L}", [L], [f"v{V_PFW+1}"]))
    a(valu(f"v_lshl_add_u32 v{V_PFW}, v{V_PFW+1}, 7, v{V_PFW}", [f"v{V_PFW}", f"v{V_PFW+1}"], [f"v{V_PFW}"]))
    return o
def coop_w(j):
    return [salu(f"s_mov_b32 s{S_PFO}, {j*524288}", [], [f"s{S_PFO}"])], tag(bload(V_PFW + 1, 1, V_PFW, S_WQ, f"s{S_PFO}", 0, OPT.pf_flags), "pf")
OOL = []
def kv_off(reg, t):
    if not OPT.rot: return [salu(f"s_mov_b32 s{reg}, {t*16384}", [], [f"s{reg}"])]
    return [salu(f"s_add_u32 s{reg}, s{S_ROT}, {t*16384}", [f"s{S_ROT}"], [f"s{reg}"]), salu(f"s_and_b32 s{reg}, s{reg}, 0x7ffff", [f"s{reg}"], [f"s{reg}"])]
def phase1():
    o = []; a = o.append
    NP = 3
    a(salu(f"s_lshr_b32 s{S_T1}, s2, 7")); a(salu(f"s_and_b32 s{S_T1}, s{S_T1}, {1 if OPT.rev else 0}"))
    a(salu(f"s_cmp_eq_u32 s{S_T1}, 0"))
    a(salu(f"s_cselect_b32 s{S_WCUR}, 0, {6*524288}")); a(salu(f"s_cselect_b32 s{S_T2}, 1, -1"))
    a(salu(f"s_cselect_b32 s{S_XCUR}, 0, 768"))
    a(salu(f"s_mul_i32 s{S_WSTEP}, s{S_T2}, 524288")); a(salu(f"s_mul_i32 s{S_XSTEP}, s{S_T2}, 128"))
    o += x_setup()
    if OPT.coopx: o += coop_setup() + coop_x()
    if OPT.coopw:
        o += coop_w_setup()
        for j in range(OPT.coopw_init):
            sc, d = coop_w(j); o += sc + [d]
    def w_items(j):
        out = []
        for par in range(2):
            sreg = S_WCUR if par == 0 else S_WOFF
            for m, (m0, d) in enumerate(dma_tile("W", wslot(2 * j + par), f"s{sreg}", f"W{j}")):
                sc = [m0]
                if m == 0 and par == 0 and j > 0: sc = [salu(f"s_add_u32 s{S_WCUR}, s{S_WCUR}, s{S_WSTEP}", [f"s{S_WCUR}"], [f"s{S_WCUR}"]), m0]
                if m == 0 and par == 1: sc = [salu(f"s_add_u32 s{S_WOFF}, s{S_WCUR}, 262144", [f"s{S_WCUR}"], [f"s{S_WOFF}"]), m0]
                out.append((sc, d))
        return out
    def kv_items(kind, t):
        out = []
        for m, (m0, d) in enumerate(dma_tile(kind, kslot(t) if kind == "K" else vslot(t), f"s{S_T0}", f"{kind}{t}")):
            out.append((kv_off(S_T0, t) + [m0] if m == 0 else [m0], d))
        return out
    def now(items):
        for sc, d in items:
            o.extend(sc); a(nop(0)); a(d)
    w0 = w_items(0)
    for sc, d in w0[4:]: d.meta["tag"] = "W0b"
    if OPT.xwarm:
        a(valu(f"v_lshlrev_b32 v{V_PFW}, 4, v{V_LANE}", [f"v{V_LANE}"], [f"v{V_PFW}"]))
        a(salu(f"s_mul_i32 s{S_T0}, s{S_H}, 14336")); a(salu(f"s_lshl_b32 s{S_T1}, s{S_W}, 12")); a(salu(f"s_add_u32 s{S_T0}, s{S_T0}, s{S_T1}"))
        a(salu(f"s_add_u32 m0, s{S_T1}, {kslot(0)}", [], ["m0"])); a(nop(0))
        now(w0[:4])
        a(salu(f"s_lshl_b32 s{S_T1}, s{S_W}, 12")); a(salu(f"s_add_u32 m0, s{S_T1}, {kslot(0)}", [], ["m0"])); a(nop(0))
        for i in range(4): a(tag(dma(V_PFW, S_X, f"s{S_T0}", i * 1024, OPT.x_flags), "xw"))
        now(w0[4:]); now(x_items(0))
    else:
        now(x_items(0)); now(w0[:4]); now(w0[4:])
    if OPT.coopw:
        for j in range(OPT.coopw_init, 3):
            sc, d = coop_w(j); o += sc + [d]
    o += setup_b()
    a(wait_tag("x0"))
    xr = [x_read(qb, cs) for cs in (0, 1) for qb in range(4)]
    o += xr
    a(wait_tag("W0", "reset")); a(barrier())
    if OPT.fused:
        a(salu(f"s_or_b32 s{S_T0}, s{S_XCC}, 0x80")); a(valu(f"v_mov_b32 v1, s{S_T0}", [], ["v1"])); a(valu("v_mov_b32 v2, 0", [], ["v2"]))
        a(tag(I(f"buffer_store_byte v1, v2, s[{S_DBG}:{S_DBG+3}], s{S_SIG} offen", "vst", ["v1", "v2"], data=["v1"]), "arr"))
    o += stamp("p1_first_data") + (stamp("rt_fd") if OPT.trip_stamps else [])
    def quad0(n): return V_POOL + 4 * (n % 8)
    def w_read0(n, jj):
        dbp, cs = n % 16, n // 16
        r = w_read(dbp, cs, jj)
        return ds_read_tr("v", quad0(n) + 2 * jj, int(r.rd[0][1:]), int(r.text.split("offset:")[1]))
    carried = [x.wr for x in xr]
    for n in range(3):
        for jj in range(2):
            r = w_read0(n, jj); a(r); carried.append(r.wr)
    early = {j: [] for j in range(7)}; after = {j: [] for j in range(7)}
    early[0] += w_items(1); early[1] += w_items(2)
    for j in range(NP, 7): after[j - NP + 1] += w_items(j)
    K = lambda t: kv_items("K", t)
    V = lambda t: kv_items("V", t)
    kv = {"early": {1: K(0), 2: K(1)}, "mid": {2: K(0), 3: K(1)}, "late": {3: K(0), 4: K(1)}}[OPT.kvpf]
    for j, l in kv.items(): early[j] += l
    if OPT.kvmin:
        early = {j: (w_items(1) if j == 0 else w_items(2) if j == 1 else []) for j in range(7)} if False else early
        for j in range(7): early[j] = [it for it in early[j] if not it[1].meta["tag"].startswith("K")]
        early[4] += K(0); early[5] += K(1)
        after[5] += V(0)
        after[6] += K(2) + V(1)
    elif OPT.kvspread:
        after[5] += V(0)
        early[6] += K(2) + V(1)
        after[6] += K(3)
    else:
        after[5] += V(0)
        early[6] += K(2) + V(1) + K(3)
        after[6] += V(2)
    for j in range(7):
        ms = []
        if j == 0:
            for n in range(32):
                for qb in range(4):
                    acc = ((n % 16) * 4 + qb) * 4
                    first = n < 16
                    ms.append(mfma("a", acc, "v", quad0(n), "v", xfrag(qb, n // 16), None if first else "a", None if first else acc))
        else:
            for dbp in range(16):
                for qb in range(4):
                    for e2 in range(2):
                        acc = (dbp * 4 + qb) * 4
                        ms.append(mfma("a", acc, "v", V_POOL + 4 * ((2 * dbp + e2) % 8), "v", xfrag(qb, 2 * j + e2), "a", acc))
        g = Gaps(ms)
        if j == 0:
            for n in range(3, 32):
                for jj in range(2): g.put_mem(4 * n - 12 + 2 * jj, w_read0(n, jj))
        else:
            for dbp in range(3, 16):
                for n, (cs, jj) in enumerate([(2*j, 0), (2*j, 1), (2*j+1, 0), (2*j+1, 1)]):
                    g.put_mem(8 * dbp - 24 + 2 * n, w_read(dbp, cs, jj))
        nxt = []
        if j < 6:
            for dbp in range(3):
                for n, (cs, jj) in enumerate([(2*j+2, 0), (2*j+2, 1), (2*j+3, 0), (2*j+3, 1)]):
                    r = w_read(dbp, cs, jj); g.put_mem(104 + (1 if j == 0 else 0) + 8 * dbp + 2 * n, r); nxt.append(r.wr)
        XG = OPT.x_rd_gap if j > 0 else OPT.x_rd_gap0
        xreads = []
        if j < 6:
            for n, (cs, qb) in enumerate([(cs, qb) for cs in (2*j+2, 2*j+3) for qb in range(4)]):
                r = x_read(qb, cs); g.put_mem(XG + 2 * n, r); xreads.append(r)
        if j == 0:
            cons = [(4 * n, R("v", quad0(n), 4) + (R("v", V_S, 32) if n == 0 else [])) for n in range(32)]
        else:
            cons = [(8 * dbp, R("v", V_POOL + 4 * ((2 * dbp) % 8), 8)) for dbp in range(16)]
        if j < 6: cons.append((XG + 24, [w for r in xreads for w in r.wr]))
        cons.sort()
        lead = add_lgkm_waits(g, cons, carried)
        if j < 6:
            k = XG - 2
            while g.pre[k]: k -= 1
            g.pre[k] = [wait_tag(f"x{j+1}")]
        tags = [f"W{j+1}"] if j < 6 else ["K0"]
        k = 100
        while g.pre[k]: k -= 1
        g.pre[k] = [wait_tag(*tags), barrier()] if not OPT.p1_nowait else [barrier()]
        kb = k
        gp = 1
        if OPT.coopw and j + 3 <= 6:
            sc, d = coop_w(j + 3); gp = place_vmem(g, 2, sc, d, kb) + 1
        if j == 0:
            for sc, d in x_items(1): gp = place_vmem(g, gp, sc, d, XG - 3, stack=True) + 2
            k = 48
            while g.pre[k]: k -= 1
            g.pre[k] = [wait_tag("W0b"), barrier()]
            assert k < 52
        for sc, d in early[j]: gp = place_vmem(g, gp + len(sc) - 1 + (16 if (j == 6 and OPT.kvspread and gp == 1) else 0), sc, d, kb) + (OPT.early_step if j != 6 else (9 if OPT.kvspread else 7))
        if j < 5:
            gx = max(XG + 25, gp)
            for sc, d in x_items(j + 2): gx = place_vmem(g, gx, sc, d, stack=True) + 2
            gpa = max(kb + 2, gx)
        else: gpa = kb + 2
        for sc, d in after[j]: gpa = place_vmem(g, gpa, sc, d, stack=True) + 1
        left = []
        if j == 6:
            for dbp in range(16):
                for qb in range(4):
                    ops = conv_ops((dbp * 4 + qb) * 4, V_Q + (qb * 8 + (dbp >> 1)) * 4 + 2 * (dbp & 1), V_CT + 2 * (qb & 1))
                    if left: left += ops
                    else:
                        _, l2 = place_chain(g, ops, 8 * dbp + 2 * qb + 1 + 5, 128); left += l2
        if lead is not None: a(lead)
        em = g.emit()
        if OPT.p1_drop:
            def keep(x):
                if x.kind in ("dma", "vld"):
                    t = x.meta.get("tag", "")
                    for c in OPT.p1_drop:
                        if t.startswith(c): return False
                return True
            em = [x for x in em if keep(x)]
        if OPT.p1_noread: em = [x for x in em if x.kind != "ds" and not (x.kind == "wait" and "lgkm" in x.meta)]
        o += em
        carried = nxt
        if OPT.p1_steps: o += stamp(f"step{j}")
        if left: a(nop(7)); o += left
    if not OPT.p1_steps: o += stamp("p1_end") + (stamp("rt_p1") if OPT.trip_stamps else [])
    return o

def k_read(t, kb, s):
    return ds_read128("v", V_POOL + 4 * s, V_KA[s & 1], (kslot(t) - L_K) + (s >> 1) * 4096 + kb * 2048)
def v_read(t, db, jj):
    return ds_read_tr("v", V_POOL + 4 * (db % 8) + 2 * jj, V_VA[db & 3], (vslot(t) - L_V) + (db >> 2) * 4096 + jj * 2048)
def Sreg(kb, qb): return V_S + (kb * 4 + qb) * 4
def Preg(buf, qb): return V_P + buf * 16 + qb * 4
def qk_mfmas():
    ms = []
    for i in range(64):
        kb, sp, qb, e = i >> 5, (i >> 3) & 3, (i >> 1) & 3, i & 1
        s = 2 * sp + e; d = Sreg(kb, qb)
        ms.append(mfma("v", d, "v", V_POOL + 4 * s, "v", V_Q + (qb * 8 + s) * 4, None if s == 0 else "v", None if s == 0 else d))
    return ms
def pv_mfmas(t, first):
    ms = []
    for i in range(64):
        db, qb = i >> 2, i & 3
        acc = (db * 4 + qb) * 4
        ms.append(mfma("a", acc, "v", V_POOL + 4 * (db % 8), "v", Preg(t & 1, qb), None if first else "a", None if first else acc))
    return ms
def sm_group(tile, kb, qb):
    s = Sreg(kb, qb); p = Preg(tile & 1, qb) + 2 * kb; mc = V_MC + qb; l = V_L + qb
    f = lambda r: valu(f"v_fma_f32 v{s+r}, v{s+r}, s{S_C}, v{mc}", [f"v{s+r}", f"v{mc}", f"s{S_C}"], [f"v{s+r}"])
    x = lambda r: trans(f"v_exp_f32 v{s+r}, v{s+r}", [f"v{s+r}"], [f"v{s+r}"])
    ad = lambda r: valu(f"v_add_f32 v{l}, v{l}, v{s+r}", [f"v{l}", f"v{s+r}"], [f"v{l}"])
    cv = lambda r: valu(f"v_cvt_pk_bf16_f32 v{p+r//2}, v{s+r}, v{s+r+1}", [f"v{s+r}", f"v{s+r+1}"], [f"v{p+r//2}"])
    return [f(0), f(1), x(0), x(1), f(2), f(3), x(2), x(3), ad(0), ad(1), cv(0), ad(2), ad(3), cv(2)]

def pre_iter():
    o = []; a = o.append
    carried = []
    for s in range(8):
        r = k_read(0, 0, s); a(r); carried.append(r.wr)
    g = Gaps(qk_mfmas())
    for s in range(8): g.put_mem(8 * (s >> 1) + 10 + 4 * (s & 1), k_read(0, 1, s))
    cons = [(8 * p, R("v", V_POOL + 8 * (p % 4), 8)) for p in range(8)]
    a(add_lgkm_waits(g, cons, carried))
    if OPT.kvmin or OPT.kvspread:
        gp = 3
        for kind, t in ((("K", 3), ("V", 2)) if OPT.kvmin else (("V", 2),)):
            for m, (m0, d) in enumerate(dma_tile(kind, kslot(t) if kind == "K" else vslot(t), f"s{S_T0}", f"{kind}{t}")):
                gp = place_vmem(g, gp, (kv_off(S_T0, t) if m == 0 else []) + [m0], d, stack=True) + 5
    o += g.emit()
    a(wait_tag("K1", "V0")); a(barrier())
    o += kv_off(S_KOFF, 4)
    for m0, d in dma_tile("K", kslot(4), f"s{S_KOFF}", "K4"): a(m0); a(nop(0)); a(d)
    o += kv_off(S_KOFF, 5) + kv_off(S_VOFF, 3)
    carried = []
    for s in range(8):
        r = k_read(1, 0, s); a(r); carried.append(r.wr)
    for qb in range(4):
        m = V_MC + qb; s0 = Sreg(0, qb); s1 = Sreg(1, qb)
        a(valu(f"v_max3_f32 v{m}, v{s0}, v{s0+1}, v{s0+2}", R("v", s0, 3), [f"v{m}"]))
        a(valu(f"v_max3_f32 v{m}, v{m}, v{s0+3}, v{s1}", [f"v{m}", f"v{s0+3}", f"v{s1}"], [f"v{m}"]))
        a(valu(f"v_max3_f32 v{m}, v{m}, v{s1+1}, v{s1+2}", [f"v{m}", f"v{s1+1}", f"v{s1+2}"], [f"v{m}"]))
        a(valu(f"v_max_f32 v{m}, v{m}, v{s1+3}", [f"v{m}", f"v{s1+3}"], [f"v{m}"]))
    o += xlane_reduce([V_MC + q for q in range(4)], "v_max_f32", V_SP)
    for qb in range(4):
        m = V_MC + qb
        a(valu(f"v_mul_f32 v{m}, s{S_C}, v{m}", [f"v{m}", f"s{S_C}"], [f"v{m}"]))
        a(valu(f"v_sub_f32 v{m}, 0, v{m}", [f"v{m}"], [f"v{m}"]))
        a(valu(f"v_mov_b32 v{V_L+qb}, 0", [], [f"v{V_L+qb}"]))
    for kb, qb in [(0, 0), (0, 1), (0, 2), (0, 3), (1, 0), (1, 1)]: o += exposed(sm_group(0, kb, qb))
    o += stamp("pre_iter_end")
    return o, carried

def attn_iter(t, carried, vmw, prev, cur, first=False, adv=True, loopctl=False, extra=None, loop_body=False):
    g = Gaps(qk_mfmas() + pv_mfmas(t, first))
    for s in range(8): g.put_mem(8 * (s >> 1) + 10 + 4 * (s & 1), k_read(t + 1, 1, s))
    for db in range(16):
        for jj in range(2): g.put_mem(44 + 4 * db + 2 * jj, v_read(t, db, jj))
    nxt = []
    if t + 2 <= 31:
        for s, gap in zip(range(8), [108, 110, 112, 114, 116, 120, 124, 127]):
            r = k_read(t + 2, 0, s); g.put_mem(gap, r); nxt.append(r.wr)
    else:
        for db in range(5):
            for jj in range(2):
                r = v_read(t + 1, db, jj); g.put_mem(108 + 4 * db + 2 * jj, r); nxt.append(r.wr)
    cons = [(8 * p, R("v", V_POOL + 8 * (p % 4), 8)) for p in range(8)]
    cons += [(64 + 4 * db, R("v", V_POOL + 4 * (db % 8), 4)) for db in range(16)]
    lead = add_lgkm_waits(g, cons, carried)
    kb = 98
    while g.pre[kb]: kb -= 1
    g.pre[kb] = [vmw, barrier()]
    if OPT.bar_stamps and loop_body:
        g.pre[kb] = [raw("s_memtime s[94:95]", "salu"), vmw, raw("s_memtime s[96:97]", "salu"), barrier(), raw("s_memtime s[98:99]", "salu"),
                     raw("s_waitcnt lgkmcnt(0)", "wait", lgkm=0),
                     salu("s_sub_u32 s96, s96, s94"), salu("s_add_u32 s92, s92, s96"),
                     salu("s_sub_u32 s98, s98, s94"), salu("s_add_u32 s93, s93, s98")]
    gp_prev, gp_cur = OPT.dma_gaps
    placed = [place_vmem(g, gap, [m0], d, kb) for gap, (m0, d) in zip(gp_prev, prev)]
    for gap, (m0, d) in zip(gp_cur, cur): place_vmem(g, gap, [m0], d)
    if adv:
        for reg, srd, at in ((S_VOFF, S_V, (placed[OPT.nv_prev - 1] if OPT.nv_prev else 1) + 1), (S_KOFF, S_K, placed[-1] + 1)):
            k = put_scalar(g, at, salu(f"s_add_u32 s{reg}, s{reg}, 16384", [f"s{reg}"], [f"s{reg}"]))
            k = put_scalar(g, k + 1, salu(f"s_and_b32 s{reg}, s{reg}, 0x7ffff", [f"s{reg}"], [f"s{reg}"]))
            assert k < 100
        if loopctl:
            first_k = placed[-4]
            k = put_scalar(g, 2, salu(f"s_cmp_eq_u32 s{S_LOOP}, 1", [f"s{S_LOOP}"], ["scc"]),
                           salu(f"s_cselect_b32 s{S_K+2}, 0, 524288", ["scc"], [f"s{S_K+2}"]))
            assert k < first_k - 1
    if loopctl:
        k = put_scalar(g, 119, salu(f"s_sub_u32 s{S_LOOP}, s{S_LOOP}, 1", [f"s{S_LOOP}"], [f"s{S_LOOP}"]))
        k = put_scalar(g, k + 1, salu(f"s_cmp_lg_u32 s{S_LOOP}, {OPT.loop_exit}", [f"s{S_LOOP}"], ["scc"]))
        assert k <= 127
        for kk in range(k + 1, 128):
            assert all(x.kind == "wait" for x in g.pre[kk]), "SCC clobbered before the loop branch"
    if extra: extra(g, kb)
    ops = []
    for qb in (2, 3): ops += sm_ops(t, 1, qb, 0, 31 + 2 * qb)
    for qb in range(4): ops += sm_ops(t + 1, 0, qb, 25 + 2 * qb + 6, 100 + 6 * qb)
    for qb in (0, 1): ops += sm_ops(t + 1, 1, qb, 57 + 2 * qb + 6, 124 + 3 * qb)
    left = list_schedule(g, ops)
    if OPT.vfirst:
        cand = [k for k in range(128) if g.mem[k] is not None and g.mem[k].kind == "ds" and len(g.vec[k]) == 1 and g.vec[k][0].kind == "valu"
                and not (set(g.vec[k][0].wr) & set(g.mem[k].rd + g.mem[k].wr))]
        n = min(OPT.vfirst, len(cand))
        for i in range(n): g.vec_first.add(cand[(i * len(cand)) // n])
    if OPT.pad_iter:
        for n in range(OPT.pad_iter): g.post[(n * 128) // OPT.pad_iter + 3].append(nop(3))
    assert not left, f"softmax groups do not fit: {len(left)} left"
    return [lead] + g.emit(), nxt

def safe_attn():
    o = []; a = o.append
    VM, VT, VA_, TMP = 20, 24, 28, 112
    a(label("L_safe_attn")); a(wait_vm(0)); a(raw("s_waitcnt lgkmcnt(0)", "wait", lgkm=0)); a(barrier())
    for r in range(256): a(valu(f"v_accvgpr_write_b32 a{r}, 0", [], [f"a{r}"]))
    for qb in range(4):
        a(valu(f"v_mov_b32 v{VM+qb}, 0xff800000", [], [f"v{VM+qb}"])); a(valu(f"v_mov_b32 v{V_L+qb}, 0", [], [f"v{V_L+qb}"]))
    a(salu(f"s_mov_b32 s{S_KOFF}, 0")); a(salu(f"s_mov_b32 s{S_LOOP}, 32"))
    a(label("L_safe_loop"))
    for kind, slot in (("K", kslot(0)), ("V", vslot(0))):
        for m0, d in dma_tile(kind, slot, f"s{S_KOFF}", "safe"): a(m0); a(nop(0)); a(d)
    a(wait_vm(0)); a(barrier())
    qk = qk_mfmas()
    for kb in range(2):
        for s_ in range(8): a(k_read(0, kb, s_))
        a(wait_lgkm(0)); o += qk[32 * kb:32 * kb + 32]
    a(nop(7)); a(nop(7))
    for qb in range(4):
        t = VT + qb; s0 = Sreg(0, qb); s1 = Sreg(1, qb)
        a(valu(f"v_max3_f32 v{t}, v{s0}, v{s0+1}, v{s0+2}", [], [])); a(valu(f"v_max3_f32 v{t}, v{t}, v{s0+3}, v{s1}", [], []))
        a(valu(f"v_max3_f32 v{t}, v{t}, v{s1+1}, v{s1+2}", [], [])); a(valu(f"v_max_f32 v{t}, v{t}, v{s1+3}", [], []))
    o += xlane_reduce([VT + q for q in range(4)], "v_max_f32", TMP)
    for qb in range(4):
        a(valu(f"v_max_f32 v{VT+qb}, v{VT+qb}, v{VM+qb}", [], []))
        a(valu(f"v_sub_f32 v{VA_+qb}, v{VM+qb}, v{VT+qb}", [], [])); a(valu(f"v_mul_f32 v{VA_+qb}, s{S_C}, v{VA_+qb}", [], []))
        a(trans(f"v_exp_f32 v{VA_+qb}, v{VA_+qb}", [], [])); a(valu(f"v_mov_b32 v{VM+qb}, v{VT+qb}", [], []))
        a(valu(f"v_mul_f32 v{V_MC+qb}, s{S_C}, v{VT+qb}", [], [])); a(valu(f"v_sub_f32 v{V_MC+qb}, 0, v{V_MC+qb}", [], []))
        a(valu(f"v_mul_f32 v{V_L+qb}, v{V_L+qb}, v{VA_+qb}", [], []))
    for r in range(256):
        qb = (r >> 2) & 3; t = TMP + (r & 7)
        a(valu(f"v_accvgpr_read_b32 v{t}, a{r}", [], [])); a(valu(f"v_mul_f32 v{t}, v{t}, v{VA_+qb}", [], [])); a(valu(f"v_accvgpr_write_b32 a{r}, v{t}", [], []))
    for kb in range(2):
        for qb in range(4): o += exposed(sm_group(0, kb, qb))
    pv = pv_mfmas(0, False)
    for half in range(2):
        for db in range(8 * half, 8 * half + 8):
            for jj in range(2):
                a(v_read(0, db, jj))
            if db % 4 == 3: a(wait_lgkm(0))
        a(nop(1)); o += pv[32 * half:32 * half + 32]
    a(salu(f"s_add_u32 s{S_KOFF}, s{S_KOFF}, 16384")); a(salu(f"s_sub_u32 s{S_LOOP}, s{S_LOOP}, 1")); a(salu(f"s_cmp_lg_u32 s{S_LOOP}, 0"))
    a(barrier()); a(raw("s_cbranch_scc1 L_safe_loop", "branch"))
    a(nop(7)); a(nop(7))
    o += xlane_reduce([V_L + q for q in range(4)], "v_add_f32", TMP)
    for qb in range(4): a(trans(f"v_rcp_f32 v{V_L+qb}, v{V_L+qb}", [], []))
    a(nop(0))
    for db in range(16):
        for qb in range(4):
            o += conv_ops((db * 4 + qb) * 4, V_Q + (qb * 8 + (db >> 1)) * 4 + 2 * (db & 1), V_SP + 8 + 2 * (qb & 1))
    o += wo_setup()
    if OPT.fused: o += grp_setup() + [nop(1), mode_load()] + ring_scalars()
    for j in range(4):
        for sc, d in wo_dma(j): o += sc + [nop(0), d]
    a(wait_vm(0)); a(raw("s_branch L_p3_entry", "branch"))
    return o

def last_iter(carried):
    o = []; a = o.append
    for qb in (2, 3): o += exposed(sm_group(31, 1, qb))
    o += xlane_reduce([V_L + q for q in range(4)], "v_add_f32", V_SP)
    a(salu(f"s_mov_b32 s{S_T0}, 0x{f32bits(L_LIMIT):08x}"))
    for qb in range(4):
        a(valu(f"v_cmp_nge_f32 s[{50+2*(qb&1)}:{51+2*(qb&1)}], s{S_T0}, v{V_L+qb}", [f"v{V_L+qb}"], [f"s{50+2*(qb&1)}", f"s{51+2*(qb&1)}"]))
        if qb & 1:
            a(nop(0)); a(salu("s_or_b64 s[50:51], s[50:51], s[52:53]"))
            a(salu("s_mov_b64 s[54:55], s[50:51]") if qb == 1 else salu("s_or_b64 s[54:55], s[54:55], s[50:51]"))
    a(salu("s_cselect_b32 s50, 1, 0"))
    a(salu(f"s_lshl_b32 s51, s{S_W}, 2")); a(salu(f"s_add_u32 s51, s51, {L_VOTE}"))
    a(valu(f"v_mov_b32 v{V_SP}, s50", [], [f"v{V_SP}"])); a(valu(f"v_mov_b32 v{V_SP+1}, s51", [], [f"v{V_SP+1}"]))
    a(I(f"ds_write_b32 v{V_SP+1}, v{V_SP}", "ds", [f"v{V_SP}", f"v{V_SP+1}"], []))
    carried = carried + [[]]
    for qb in range(4): a(trans(f"v_rcp_f32 v{V_L+qb}, v{V_L+qb}", [f"v{V_L+qb}"], [f"v{V_L+qb}"]))
    a(nop(0))
    g = Gaps(pv_mfmas(31, False))
    for db in range(5, 8):
        for jj in range(2): g.put_mem(4 * (db - 5) + 2 * jj, v_read(31, db, jj))
    for db in range(8, 16):
        for jj in range(2): g.put_mem(12 + 4 * (db - 8) + 2 * jj, v_read(31, db, jj))
    cons = [(4 * db, R("v", V_POOL + 4 * (db % 8), 4)) for db in range(16)]
    lead = add_lgkm_waits(g, cons, carried)
    gp = put_wo(g, 2, 2, step=0)
    put_wo(g, 3, gp, step=0)
    left = []
    for db in range(16):
        for qb in range(4):
            ops = conv_ops((db * 4 + qb) * 4, V_Q + (qb * 8 + (db >> 1)) * 4 + 2 * (db & 1), V_SP + 8 + 2 * (qb & 1))
            if left: left += ops
            else:
                _, l2 = place_chain(g, ops, 4 * db + qb + 5, 64); left += l2
    a(lead); o += g.emit()
    a(nop(7)); o += left
    return o

WOBUF = [L_X, L_K, L_K + 32768, L_V, L_V + 32768, L_X, L_K]
V_DWO = 3; V_STO = V_DV
V_FR3 = 32; V_ACC3 = V_P; V_STG = 16
def wo_dma(j):
    out = []
    for i in range(8):
        sreg = S_T0 + (i & 1)
        out.append(([salu(f"s_mov_b32 s{sreg}, {j*128 + i*32*896}", [], [f"s{sreg}"]),
                     salu(f"s_add_u32 m0, s{S_W1K}, {WOBUF[j] + i*4096}", [f"s{S_W1K}"], ["m0"])],
                    tag(dma(V_DWO, S_WO, f"s{sreg}", 0, OPT.wo_flags), f"wo{j}")))
    return out
A_WOS = 100
V_WOW = 39
def wo_stage_loads(j):
    out = []
    for i in range(8):
        sreg = S_T0 + (i & 1)
        out.append(([salu(f"s_mov_b32 s{sreg}, {j*128 + i*32*896}", [], [f"s{sreg}"])],
                    tag(bload_f("a", A_WOS + 32 * (j - 5) + 4 * i, 4, V_DWO, S_WO, f"s{sreg}", 0, OPT.wo_flags), f"wos{j}")))
    return out
def wo_stage_write(j, i):
    r = A_WOS + 32 * (j - 5) + 4 * i
    return I(f"ds_write_b128 v{V_WOW + (j - 5) * 0}, {rng('a', r, 4)} offset:{i*4096}", "ds", [f"v{V_WOW}"] + R("a", r, 4), [])
def wo_setup():
    o = []; a = o.append
    L = f"v{V_LANE}"
    a(valu(f"v_lshrrev_b32 v1, 3, {L}", [L], ["v1"])); a(valu(f"v_and_b32 v2, 7, {L}", [L], ["v2"]))
    a(valu(f"v_lshl_add_u32 v3, s{S_W}, 3, v1", ["v1", f"s{S_W}"], ["v3"]))
    a(valu("v_bfe_u32 v1, v1, 1, 2", ["v1"], ["v1"])); a(valu("v_lshlrev_b32 v1, 1, v1", ["v1"], ["v1"]))
    a(valu("v_xor_b32 v1, v1, v2", ["v1", "v2"], ["v1"])); a(valu("v_lshlrev_b32 v1, 4, v1", ["v1"], ["v1"]))
    a(valu("v_mul_u32_u24 v3, 896, v3", ["v3"], ["v3"]))
    a(valu(f"v_add_u32 v{V_DWO}, v3, v1", ["v3", "v1"], [f"v{V_DWO}"]))
    return o
V_WOT = 2
def wo_touch_setup():
    return [valu(f"v_lshl_add_u32 v{V_WOT}, s{S_W}, 6, v{V_LANE}", [f"v{V_LANE}"], [f"v{V_WOT}"]),
            valu(f"v_mul_u32_u24 v{V_WOT}, 896, v{V_WOT}", [f"v{V_WOT}"], [f"v{V_WOT}"])]
def wo_touch(j): return tag(bload(1, 1, V_WOT, S_WO, "0", j * 128, OPT.wt_flags), "wt")
def put_wo(g, j, start, hi=None, step=3):
    gp = start
    for sc, d in wo_dma(j): gp = place_vmem(g, gp, sc, d, hi) + step
    return gp
def va_shift(delta):
    t = (lambda r: f"v_add_u32 v{r}, {delta}, v{r}") if delta >= 0 else (lambda r: f"v_subrev_u32 v{r}, {-delta}, v{r}")
    return [valu(t(r), [f"v{r}"], [f"v{r}"]) for r in V_VA]

def part_ops(nb, qb):
    acc = V_ACC3 + 4 * ((nb * 4 + qb) % 8)
    st = V_STG + 4 * qb + 2 * (nb & 1)
    li = V_L + qb
    ops = [valu(f"v_mul_f32 v{acc+r}, v{acc+r}, v{li}", [f"v{acc+r}", f"v{li}"], [f"v{acc+r}"]) for r in range(4)]
    ops += [valu(f"v_cvt_pk_bf16_f32 v{st}, v{acc}, v{acc+1}", [f"v{acc}", f"v{acc+1}"], [f"v{st}"]),
            valu(f"v_cvt_pk_bf16_f32 v{st+1}, v{acc+2}, v{acc+3}", [f"v{acc+2}", f"v{acc+3}"], [f"v{st+1}"])]
    return ops

A_FR3 = 0; A_SEL = 224
V_POLLA, V_POLL, V_ONE, V_ZERO, V_RLD, V_OUT = 32, 33, 34, 35, 36, 37
V_RD = 40
V_GRP = V_ARR + 3
def wo_read(nb, s_, jj):
    return ds_read_tr("a", A_FR3 + 4 * (8 * (nb & 1) + s_) + 2 * jj, V_VA[nb], s_ * 4096 + jj * 2048)

V_GA = V_ARR + 2
def grp_setup():
    return [salu(f"s_lshl_b32 s{S_T0}, s{S_G}, 4"), valu(f"v_and_b32 v{V_GA}, 3, v{V_LANE}", [f"v{V_LANE}"], [f"v{V_GA}"]),
            valu(f"v_lshlrev_b32 v{V_GA}, 2, v{V_GA}", [f"v{V_GA}"], [f"v{V_GA}"]), valu(f"v_add_u32 v{V_GA}, s{S_T0}, v{V_GA}", [f"v{V_GA}"], [f"v{V_GA}"])]
V_GA3 = 38
def grp_load(dst, tg, ga=V_GA): return tag(bload(dst, 1, ga, S_DBG, "0", 0, "sc1"), tg)
def splat(x): return x * 0x01010101
def mode_load(): return grp_load(V_ARR, "grp")
def mode_check():
    o = []; a = o.append
    a(salu(f"s_or_b32 s{S_T0}, s{S_XCC}, 0x80")); a(salu(f"s_mul_i32 s50, s{S_T0}, 0x01010101"))
    a(wait_tag("grp"))
    a(valu(f"v_and_b32 v{V_ARR}, 0x87878787, v{V_ARR}", [f"v{V_ARR}"], [f"v{V_ARR}"]))
    a(valu(f"v_cmp_eq_u32 vcc, s50, v{V_ARR}", [f"v{V_ARR}"], ["vcc"])); a(nop(0))
    a(salu("s_cmp_eq_u64 vcc, -1"))
    a(salu(f"s_cselect_b64 s[{S_LOCM}:{S_LOCM+1}], -1, 0"))
    if OPT.force_fallback: a(salu("s_cmp_eq_u32 s50, 0"))
    a(raw("s_cbranch_scc0 L_grp_far", "branch")); a(label("L_grp_ok"))
    f = [label("L_grp_far"), salu(f"s_or_b32 s{S_T0}, s{S_XCC}, 0x80"), valu(f"v_mov_b32 v{V_ARR+1}, s{S_T0}", [], []),
         valu(f"v_mov_b32 v{V_ARR+3}, 0", [], []),
         raw(f"buffer_store_byte v{V_ARR+1}, v{V_ARR+3}, s[{S_DBG}:{S_DBG+3}], s{S_SIG} offen sc1", "salu"), wait_vm(0),
         salu(f"s_mov_b32 s{S_SPIN}, {SPIN_MAX}"), label("L_grp_again"),
         salu(f"s_sub_u32 s{S_SPIN}, s{S_SPIN}, 1"), salu(f"s_cmp_eq_u32 s{S_SPIN}, 0"), raw("s_cbranch_scc1 L_grp_ok", "branch")]
    if not OPT.force_fallback:
        f += [raw(f"buffer_load_dword v{V_ARR}, v{V_GA}, s[{S_DBG}:{S_DBG+3}], 0 offen sc1", "salu"), wait_vm(0),
              valu(f"v_and_b32 v{V_ARR}, 0x87878787, v{V_ARR}", [], []), valu(f"v_cmp_eq_u32 vcc, s50, v{V_ARR}", [], []), nop(0),
              salu("s_cmp_eq_u64 vcc, -1"), salu(f"s_cselect_b64 s[{S_LOCM}:{S_LOCM+1}], -1, 0"), raw("s_cbranch_scc1 L_grp_ok", "branch")]
    f += far_read(V_ARR)
    f += [valu(f"v_and_b32 v{V_ARR+1}, 0x80808080, v{V_ARR}", [], []), valu(f"v_cmp_eq_u32 vcc, 0x80808080, v{V_ARR+1}", [], []), nop(0),
          salu("s_and_b64 s[52:53], vcc, 15"), salu("s_cmp_eq_u64 s[52:53], 15"), raw("s_cbranch_scc0 L_grp_again", "branch"),
          valu(f"v_and_b32 v{V_ARR}, 0x87878787, v{V_ARR}", [], []), valu(f"v_cmp_eq_u32 vcc, s50, v{V_ARR}", [], []), nop(0),
          salu("s_and_b64 s[52:53], vcc, 15"), salu("s_cmp_eq_u64 s[52:53], 15"),
          salu(f"s_cselect_b64 s[{S_LOCM}:{S_LOCM+1}], -1, 0")]
    if OPT.force_fallback: f.append(salu(f"s_mov_b64 s[{S_LOCM}:{S_LOCM+1}], 0"))
    f.append(raw("s_branch L_grp_ok", "branch"))
    OOL.extend(f)
    return o
def far_read(dst, ga=V_GA):
    return [valu(f"v_mov_b32 v{dst}, 0", [], []), valu(f"v_cmp_gt_u32 vcc, 4, v{V_LANE}", [], []),
            raw("s_and_saveexec_b64 s[54:55], vcc", "salu"),
            raw(f"buffer_atomic_add v{dst}, v{ga}, s[{S_DBG}:{S_DBG+3}], 0 offen sc0 sc1", "salu"), wait_vm(0),
            raw("s_mov_b64 exec, s[54:55]", "salu")]

def p3_setup():
    L = f"v{V_LANE}"
    o = [valu(f"v_lshlrev_b32 v{V_STO}, 4, {L}", [L], [f"v{V_STO}"])]
    if OPT.fused:
        o += [valu(f"v_mov_b32 v{V_ZERO}, 0", [], [f"v{V_ZERO}"]), valu(f"v_mov_b32 v{V_GA3}, v{V_GA}", [f"v{V_GA}"], [f"v{V_GA3}"])]
    else: o += far_setup()
    return o

def far_setup():
    o = []; a = o.append
    L = f"v{V_LANE}"
    a(salu(f"s_mul_i32 s{S_PART}, s{S_G}, {7*16*16*2048}"))
    a(salu(f"s_lshl_b32 s{S_T2}, s{S_H}, 15")); a(salu(f"s_add_u32 s{S_RBASE}, s{S_PART}, s{S_T2}"))
    a(salu(f"s_lshl_b32 s{S_T2}, s{S_W}, 17")); a(salu(f"s_add_u32 s{S_PART}, s{S_PART}, s{S_T2}"))
    a(salu(f"s_lshl_b32 s{S_T2}, s{S_H}, 11")); a(salu(f"s_add_u32 s{S_PART}, s{S_PART}, s{S_T2}"))
    if not OPT.fused: return o
    a(salu(f"s_or_b32 s{S_T2}, s{S_XCC}, 0xf0")); a(valu(f"v_mov_b32 v{V_ONE}, s{S_T2}", [], [f"v{V_ONE}"]))
    a(valu(f"v_lshrrev_b32 v1, 5, {L}", [L], ["v1"])); a(valu("v_lshlrev_b32 v1, 11, v1", ["v1"], ["v1"]))
    a(valu(f"v_and_b32 v2, 31, {L}", [L], ["v2"])); a(valu(f"v_lshl_add_u32 v{V_RLD}, v2, 4, v1", ["v1", "v2"], [f"v{V_RLD}"]))
    a(salu(f"s_lshl_b32 s{S_T2}, s{S_W}, 9")); a(valu(f"v_add_u32 v{V_RLD}, s{S_T2}, v{V_RLD}", [f"v{V_RLD}"], [f"v{V_RLD}"]))
    a(valu(f"v_and_b32 v1, 15, {L}", [L], ["v1"])); a(valu(f"v_lshrrev_b32 v2, 4, {L}", [L], ["v2"]))
    a(valu("v_lshrrev_b32 v4, 3, v1", ["v1"], ["v4"])); a(valu("v_and_b32 v5, 1, v2", ["v2"], ["v5"]))
    a(valu("v_and_b32 v48, 1, v1", ["v1"], ["v48"])); a(valu("v_lshlrev_b32 v48, 4, v48", ["v48"], ["v48"]))
    a(valu("v_mov_b32 v49, 0x3f80", [], ["v49"])); a(valu("v_lshlrev_b32 v49, v48, v49", ["v48", "v49"], ["v49"]))
    a(valu("v_cmp_eq_u32 vcc, v4, v5", ["v4", "v5"], ["vcc"])); a(nop(1))
    a(valu("v_cndmask_b32 v49, 0, v49, vcc", ["v49", "vcc"], ["v49"]))
    a(valu("v_bfe_u32 v50, v1, 1, 2", ["v1"], ["v50"]))
    for r in range(4):
        a(valu(f"v_cmp_eq_u32 vcc, {r}, v50", ["v50"], ["vcc"])); a(nop(1))
        a(valu("v_cndmask_b32 v51, 0, v49, vcc", ["v49", "vcc"], ["v51"]))
        a(valu(f"v_accvgpr_write_b32 a{A_SEL+r}, v51", ["v51"], [f"a{A_SEL+r}"]))
    a(salu(f"s_lshl_b32 s{S_T2}, s{S_B}, 8")); a(salu(f"s_lshl_b32 s{S_T3}, s{S_H}, 4")); a(salu(f"s_add_u32 s{S_T2}, s{S_T2}, s{S_T3}"))
    a(valu(f"v_add_u32 v{V_OUT}, s{S_T2}, v1", ["v1"], [f"v{V_OUT}"])); a(valu(f"v_mul_u32_u24 v{V_OUT}, 896, v{V_OUT}", [f"v{V_OUT}"], [f"v{V_OUT}"]))
    a(salu(f"s_mul_i32 s{S_T2}, s{S_BR}, 448")); a(salu(f"s_lshr_b32 s{S_T3}, s{S_W}, 1")); a(salu(f"s_lshl_b32 s{S_T3}, s{S_T3}, 5"))
    a(salu(f"s_add_u32 s{S_T2}, s{S_T2}, s{S_T3}")); a(salu(f"s_and_b32 s{S_T3}, s{S_W}, 1")); a(salu(f"s_lshl_b32 s{S_T3}, s{S_T3}, 3"))
    a(salu(f"s_add_u32 s{S_T2}, s{S_T2}, s{S_T3}"))
    a(valu(f"v_add_u32 v{V_OUT}, s{S_T2}, v{V_OUT}", [f"v{V_OUT}"], [f"v{V_OUT}"]))
    a(valu(f"v_lshl_add_u32 v{V_OUT}, v5, 4, v{V_OUT}", ["v5", f"v{V_OUT}"], [f"v{V_OUT}"]))
    a(valu("v_lshrrev_b32 v4, 1, v2", ["v2"], ["v4"])); a(valu(f"v_lshl_add_u32 v{V_OUT}, v4, 2, v{V_OUT}", ["v4", f"v{V_OUT}"], [f"v{V_OUT}"]))
    a(valu(f"v_lshlrev_b32 v{V_OUT}, 1, v{V_OUT}", [f"v{V_OUT}"], [f"v{V_OUT}"]))
    return o

def handoff_far():
    o = [wait_vm(0), barrier(), raw("buffer_wbl2 sc1", "salu"), wait_vm(0), barrier(),
         raw(f"buffer_store_byte v{V_ONE}, v{V_ZERO}, s[{S_DBG}:{S_DBG+3}], s{S_SIG} offen sc1", "salu"), wait_vm(0),
         salu(f"s_mov_b32 s{S_SPIN}, {SPIN_MAX}"), label("L_far_poll"),
         salu(f"s_sub_u32 s{S_SPIN}, s{S_SPIN}, 1"), salu(f"s_cmp_eq_u32 s{S_SPIN}, 0"), raw("s_cbranch_scc1 L_far_done", "branch")]
    o += far_read(V_POLL, V_GA3)
    o += [valu(f"v_and_b32 v{V_POLL}, 0xf0f0f0f0, v{V_POLL}", [], []), valu(f"v_cmp_eq_u32 vcc, 0xf0f0f0f0, v{V_POLL}", [], []), nop(0),
          salu("s_and_b64 s[52:53], vcc, 15"), salu("s_cmp_eq_u64 s[52:53], 15"), raw("s_cbranch_scc0 L_far_poll", "branch"),
          label("L_far_done"), raw("buffer_inv sc1", "salu"), wait_vm(0)]
    return o

A_PIECE = 0; A_SEL2 = 224
def red_loads(j):
    out = []
    for i in range(8):
        sr = "s52" if i % 2 == 0 else "s53"
        out.append(([salu(f"s_add_u32 {sr}, s{S_RBASE}, {j*16*32768 + i*4096}", [f"s{S_RBASE}"], [sr])],
                    tag(bload_f("a", A_PIECE + 32 * j + 4 * i, 4, V_RLD, S_WS, sr, 0, "sc1"), f"rl{j}")))
    return out
def red_mfmas(j):
    d = V_RD + 4 * (j & 1)
    return [mfma("v", d, "a", A_SEL2, "a", A_PIECE + 32 * j + 4 * i, None if i == 0 else "v", None if i == 0 else d) for i in range(8)]
def red_out(j):
    d = V_RD + 4 * (j & 1)
    return [valu(f"v_cvt_pk_bf16_f32 v{d}, v{d}, v{d+1}", [f"v{d}", f"v{d+1}"], [f"v{d}"]),
            valu(f"v_cvt_pk_bf16_f32 v{d+1}, v{d+2}, v{d+3}", [f"v{d+2}", f"v{d+3}"], [f"v{d+1}"])], tag(bstore(d, 2, V_OUT, S_OUT, "0", j * 128), f"out{j}")

A_RING = 64; A_SEL4 = 96
V_RLD4, V_OUT4, V_FLA, V_FLAG1 = 48, 49, 50, 51
def ring_scalars():
    o = []; a = o.append
    a(salu(f"s_mul_i32 s50, s{S_G}, {OPT.ring * 262144}"))
    a(salu(f"s_lshl_b32 s51, s{S_W}, 16")); a(salu(f"s_add_u32 s{S_RST}, s50, s51"))
    a(salu(f"s_lshl_b32 s51, s{S_H}, 10")); a(salu(f"s_add_u32 s{S_RST}, s{S_RST}, s51"))
    a(salu(f"s_lshl_b32 s51, s{S_H}, 14")); a(salu(f"s_add_u32 s{S_RLD}, s50, s51"))
    a(salu(f"s_mul_i32 s50, s{S_G}, {14*64}"))
    a(salu(f"s_lshl_b32 s51, s{S_W}, 4"))
    a(salu(f"s_add_u32 s{S_FPW}, s50, s51")); a(salu(f"s_add_u32 s{S_FPW}, s{S_FPW}, s{S_H}"))
    a(salu(f"s_add_u32 s{S_FCR}, s50, s51")); a(salu(f"s_add_u32 s{S_FCR}, s{S_FCR}, {CONS_OFF}"))
    a(salu(f"s_lshr_b32 s51, s{S_H}, 2")); a(salu(f"s_lshl_b32 s51, s51, 4"))
    a(salu(f"s_add_u32 s{S_FPR}, s50, s51"))
    a(salu(f"s_lshl_b32 s51, s{S_H}, 2")); a(salu(f"s_add_u32 s{S_FCW}, s50, s51"))
    a(salu(f"s_add_u32 s{S_FCW}, s{S_FCW}, s{S_W}")); a(salu(f"s_add_u32 s{S_FCW}, s{S_FCW}, {CONS_OFF}"))
    return o
def ring_setup():
    o = []; a = o.append
    L = f"v{V_LANE}"
    a(valu(f"v_and_b32 v{V_FLA}, 3, {L}", [L], [f"v{V_FLA}"])); a(valu(f"v_lshlrev_b32 v{V_FLA}, 2, v{V_FLA}", [f"v{V_FLA}"], [f"v{V_FLA}"]))
    a(valu(f"v_mov_b32 v{V_FLAG1}, 1", [], [f"v{V_FLAG1}"]))
    a(valu(f"v_and_b32 v1, 15, {L}", [L], ["v1"])); a(valu(f"v_lshrrev_b32 v2, 4, {L}", [L], ["v2"]))
    a(valu(f"v_lshlrev_b32 v{V_RLD4}, 10, v2", ["v2"], [f"v{V_RLD4}"])); a(valu(f"v_lshl_add_u32 v{V_RLD4}, v1, 4, v{V_RLD4}", ["v1", f"v{V_RLD4}"], [f"v{V_RLD4}"]))
    a(salu(f"s_lshl_b32 s{S_T1}, s{S_W}, 8")); a(valu(f"v_add_u32 v{V_RLD4}, s{S_T1}, v{V_RLD4}", [f"v{V_RLD4}"], [f"v{V_RLD4}"]))
    a(valu("v_and_b32 v4, 1, v1", ["v1"], ["v4"])); a(valu("v_lshlrev_b32 v4, 4, v4", ["v4"], ["v4"]))
    a(valu("v_mov_b32 v5, 0x3f80", [], ["v5"])); a(valu("v_lshlrev_b32 v5, v4, v5", ["v4", "v5"], ["v5"]))
    a(valu("v_lshrrev_b32 v4, 1, v1", ["v1"], ["v4"]))
    for r in range(4):
        a(valu(f"v_cmp_eq_u32 vcc, {r}, v4", ["v4"], ["vcc"])); a(nop(1))
        a(valu("v_cndmask_b32 v52, 0, v5, vcc", ["v5", "vcc"], ["v52"]))
        a(valu(f"v_accvgpr_write_b32 a{A_SEL4+r}, v52", ["v52"], [f"a{A_SEL4+r}"]))
    a(salu(f"s_lshl_b32 s{S_T0}, s{S_B}, 8")); a(salu(f"s_lshl_b32 s{S_T1}, s{S_H}, 4")); a(salu(f"s_add_u32 s{S_T0}, s{S_T0}, s{S_T1}"))
    a(valu(f"v_add_u32 v{V_OUT4}, s{S_T0}, v1", ["v1"], [f"v{V_OUT4}"])); a(valu(f"v_mul_u32_u24 v{V_OUT4}, 896, v{V_OUT4}", [f"v{V_OUT4}"], [f"v{V_OUT4}"]))
    a(salu(f"s_mul_i32 s{S_T0}, s{S_BR}, 448")); a(salu(f"s_lshl_b32 s{S_T1}, s{S_W}, 2")); a(salu(f"s_add_u32 s{S_T0}, s{S_T0}, s{S_T1}"))
    a(valu(f"v_add_u32 v{V_OUT4}, s{S_T0}, v{V_OUT4}", [f"v{V_OUT4}"], [f"v{V_OUT4}"]))
    a(valu(f"v_lshl_add_u32 v{V_OUT4}, v2, 4, v{V_OUT4}", ["v2", f"v{V_OUT4}"], [f"v{V_OUT4}"]))
    a(valu(f"v_lshlrev_b32 v{V_OUT4}, 1, v{V_OUT4}", [f"v{V_OUT4}"], [f"v{V_OUT4}"]))
    a(valu("v_cmp_gt_u32 vcc, 2, v2", ["v2"], ["vcc"])); a(salu(f"s_mov_b32 s{S_T0}, 0x7ff00000")); a(valu(f"v_mov_b32 v4, s{S_T0}", [], ["v4"]))
    a(valu(f"v_cndmask_b32 v{V_OUT4}, v4, v{V_OUT4}, vcc", ["v4", f"v{V_OUT4}", "vcc"], [f"v{V_OUT4}"]))
    return o

def flag_store(base, u, tg):
    return [salu(f"s_add_u32 s55, s{base}, {u*64}", [f"s{base}"], ["s55"])], \
           tag(I(f"buffer_store_byte v{V_FLAG1}, v{V_ZERO}, s[{S_FL}:{S_FL+3}], s55 offen", "vst", [f"v{V_FLAG1}", f"v{V_ZERO}", "s55"], data=[]), tg)
def flag_poll(base, u, dst, tg):
    return [salu(f"s_add_u32 s54, s{base}, {u*64}", [f"s{base}"], ["s54"])], tag(bload(dst, 1, V_FLA, S_FL, "s54", 0, "sc1"), tg)
def flag_check(base, u, dst, tg, name):
    OOL.extend([label(f"L_{name}_spin"), salu(f"s_add_u32 s54, s{base}, {u*64}"), salu(f"s_mov_b32 s{S_SPIN}, {SPIN_MAX}"),
                label(f"L_{name}_again"),
                salu(f"s_sub_u32 s{S_SPIN}, s{S_SPIN}, 1"), salu(f"s_cmp_eq_u32 s{S_SPIN}, 0"), raw(f"s_cbranch_scc1 L_{name}_ok", "branch"),
                raw(f"buffer_load_dword v{dst}, v{V_FLA}, s[{S_FL}:{S_FL+3}], s54 offen sc1", "salu"), wait_vm(0),
                valu(f"v_cmp_ne_u32 vcc, 0x01010101, v{dst}", [], []), nop(0),
                raw(f"s_cbranch_vccnz L_{name}_again", "branch"), raw(f"s_branch L_{name}_ok", "branch")])
    dd = (lambda n: stamp("d_" + n)) if name in (f"prod{OPT.p3detail}", f"cons{OPT.p3detail}") else (lambda n: [])
    return dd(name[:4] + "A") + [wait_tag(tg)] + dd(name[:4] + "B") + [valu(f"v_cmp_ne_u32 vcc, 0x01010101, v{dst}", [f"v{dst}"], ["vcc"]), nop(0),
            raw(f"s_cbranch_vccnz L_{name}_spin", "branch"), label(f"L_{name}_ok")] + dd(name[:4] + "C")
V_PP, V_PC = 53, 54
def ring_loads(u):
    out = []
    for i in range(4):
        sr = "s52" if i % 2 == 0 else "s53"
        out.append(([salu(f"s_add_u32 {sr}, s{S_RLD}, {(u % OPT.ring)*262144 + i*4096}", [f"s{S_RLD}"], [sr])],
                    tag(bload_f("a", A_RING + 16 * (u & 1) + 4 * i, 4, V_RLD4, S_RG, sr, 0, "sc1"), f"rl{u}")))
    return out
def ring_mfmas(u):
    d = V_RD + 4 * (u & 1)
    return [mfma("v", d, "a", A_SEL4, "a", A_RING + 16 * (u & 1) + 4 * i, None if i == 0 else "v", None if i == 0 else d) for i in range(4)]
def ring_out(u):
    d = V_RD + 4 * (u & 1)
    return [valu(f"v_cvt_pk_bf16_f32 v{d}, v{d}, v{d+1}", [f"v{d}", f"v{d+1}"], [f"v{d}"]),
            valu(f"v_cvt_pk_bf16_f32 v{d+1}, v{d+2}, v{d+3}", [f"v{d+2}", f"v{d+3}"], [f"v{d+1}"])], tag(bstore(d, 2, V_OUT4, S_OUT, "0", u * 64, OPT.out_flags), f"out{u}")

def p3_stream(local, carried):
    o = []; a = o.append
    NS, D = OPT.ring, OPT.prod_delay
    Q = lambda u: 8 * u + 7
    if OPT.tmpl == 0:
        T = dict(st=[0, 1, 2, 3], sig=(7, 5), poll=(12, 5), chk=(15, 7), ld=[(16, 7), (17, 7), (18, 7), (19, 7)], csig=(22, 3), out=(30, 5),
                 cpoll=(-4, 3), cchk=(-1, 3), wo=[(-4, 7), (-3, 3), (-3, 7), (-2, 7)], va=((0, 85), (1, 61), (2, 69), (3, 101)))
    else:
        T = dict(st=[0, 2, 4, 5], sig=(8, 5), poll=(13, 7), chk=(16, 7), ld=[(17, 3), (17, 7), (19, 3), (19, 7)], csig=(22, 3), out=(30, 5),
                 cpoll=(-4, 7), cchk=(-1, 3), wo=[(-6, 7), (-2, 7), (-1, 5), (-1, 7)], va=((0, 85), (1, 37), (2, 69), (3, 101)))
    ins = {}
    if local:
        for u in range(14):
            m = 8 * (Q(u) + 22 + D) - 1
            if m < 895: ins[m] = u
    ms = []; pos = {}; redpos = {}
    for m in range(896):
        j, i = m >> 7, m & 127
        nb, qb, s_ = i >> 5, (i >> 3) & 3, i & 7
        acc = V_ACC3 + 4 * ((nb * 4 + qb) % 8)
        pos[m] = len(ms)
        ms.append(mfma("v", acc, "a", A_FR3 + 4 * (8 * (nb & 1) + s_), "v", V_Q + (qb * 8 + s_) * 4,
                       None if s_ == 0 else "v", None if s_ == 0 else acc))
        if m in ins:
            u = ins[m]; redpos[u] = len(ms); ms += ring_mfmas(u)
    g = Gaps(ms); N = g.n
    P = lambda j, i: pos[128 * j + i]
    def G(period, off):
        m = 8 * period + off
        return pos[m] if 0 <= m < 896 else None
    for j in range(7):
        for nb in range(4):
            jn, nbn = (j, nb + 1) if nb < 3 else (j + 1, 0)
            if jn > 6: continue
            for s_ in range(8):
                for jj in range(2): g.put_mem(P(j, 32 * nb + 4 * s_ + 2 * jj), wo_read(nbn, s_, jj))
    cons = []
    for j in range(7):
        for nb in range(4):
            for s_ in (0, 2, 4, 6): cons.append((P(j, 32 * nb + s_), R("a", A_FR3 + 4 * (8 * (nb & 1) + s_), 8)))
    cons.sort()
    def put_vm(k, sc, d):
        assert g.mem[k] is None and not g.post[k], (k, d.text)
        for n, x in enumerate(reversed(sc)):
            kk = k - 1 - n
            assert kk >= 0
            assert not (g.mem[kk] is not None and g.mem[kk].kind == "dma" and "m0" in x.wr)
            g.pre[kk].append(x)
        g.mem[k] = d
    def put_seq(k, seq):
        assert g.mem[k] is None and not g.post[k], k
        g.post[k] = seq
    for j in range(6):
        k = P(j, 91)
        g.pre[k] += ([wait_tag(f"wo{j+1}")] if not (OPT.wo_stage and j + 1 >= 5) else []) + [barrier()]
        sh = va_shift(WOBUF[j + 1] - WOBUF[j])
        for n, at in T['va']:
            kk = P(j, at); g.vec[kk].append(sh[n])
    if OPT.wo_stage:
        items = wo_dma(4) + wo_stage_loads(5) + wo_stage_loads(6)
        slots = [(0, 3), (0, 5), (0, 7), (1, 1), (1, 3), (1, 5), (1, 7)] + [(per, off) for per in range(2, 7) for off in (3, 5, 7)] + [(7, 5), (7, 7)]
        if OPT.tmpl == 1:
            slots = [(0, 3), (0, 5), (0, 7), (1, 1), (1, 3), (1, 5), (1, 7)] + [(per, off) for per in range(2, 7) for off in (3, 5, 7)] + [(7, 5), (7, 7)]
        for (sc, d), (per, off) in zip(items, slots): put_vm(G(per, off), sc, d)
        for j in (5, 6):
            jj_ = j - 3
            g.vec[P(jj_, 1)].insert(0, valu(f"v_add_u32 v{V_WOW}, {(WOBUF[j] - (WOBUF[j-1] if j == 6 else 0)) & 0xffffffff}, v{V_WOW}", [f"v{V_WOW}"], [f"v{V_WOW}"]))
            for i in range(8):
                u0 = 2 * jj_ + (i >> 2)
                per, off = Q(u0) + T['wo'][i & 3][0], T['wo'][i & 3][1]
                k = G(per, off)
                assert g.mem[k] is None
                g.mem[k] = wo_stage_write(j, i)
            u1 = 2 * jj_
            g.pre[G(Q(u1) + T['wo'][0][0], T['wo'][0][1]) - 1].append(wait_tag(f"wos{j}"))
    else:
      for j in (2, 3):
        items = wo_dma(j + 3)
        for n, (sc, d) in enumerate(items):
            u0 = 2 * j + (n >> 2)
            per, off = Q(u0) + T['wo'][n & 3][0], T['wo'][n & 3][1]
            put_vm(G(per, off), sc, d)
    lead = add_lgkm_waits(g, cons, carried)
    stores = {}; sgap = {}
    for u in range(14):
        j, nb = u >> 1, 2 * (u & 1) + 1
        for qb in range(4):
            sreg = S_T2 + (qb & 1)
            if local:
                st = ([salu(f"s_add_u32 s{sreg}, s{S_RST}, {(u % NS)*262144 + qb*16384}", [f"s{S_RST}"], [f"s{sreg}"])],
                      tag(bstore(V_STG + 4 * qb, 4, V_STO, S_RG, f"s{sreg}", 0, OPT.last_st if u >= 14 - NS else ""), f"st{u}"))
            else:
                so = j * 16 * 16 * 2048 + qb * 16 * 2048 + (nb >> 1) * 1024
                st = ([salu(f"s_add_u32 s{sreg}, s{S_PART}, {so}", [f"s{S_PART}"], [f"s{sreg}"])],
                      tag(bstore(V_STG + 4 * qb, 4, V_STO, S_WS, f"s{sreg}", 0), f"st{u}"))
            stores[(u, qb)] = st
            k = G(Q(u) + T['st'][qb], 3)
            sgap[(u, qb)] = k
            if k is not None: put_vm(k, *st)
    done = {}; out_left = []
    if local:
        for u in range(14):
            dd = (lambda n: stamp("d_" + n)) if u == OPT.p3detail else (lambda n: [])
            if u >= NS:
                kp, kc = G(Q(u) + T['cpoll'][0], T['cpoll'][1]), G(Q(u) + T['cchk'][0], T['cchk'][1])
                put_vm(kp, *flag_poll(S_FCR, u - NS, V_PC, f"pc{u}"))
                put_seq(kc, flag_check(S_FCR, u - NS, V_PC, f"pc{u}", f"cons{u}"))
            done[u] = "sig"
            k = G(Q(u) + T['sig'][0], T['sig'][1])
            if k is None or sgap[(u, 3)] is None: continue
            sc, d = flag_store(S_FPW, u, f"sig{u}")
            g.pre[k - 1] += dd("sigA") + [wait_tag(f"st{u}")] + dd("sigB"); put_vm(k, sc, d)
            done[u] = "poll"
            k = G(Q(u) + T['poll'][0] + D, T['poll'][1])
            if k is None: continue
            put_vm(k, *flag_poll(S_FPR, u, V_PP, f"pp{u}"))
            done[u] = "check"
            k = G(Q(u) + T['chk'][0] + D, T['chk'][1])
            if k is None: continue
            put_seq(k, flag_check(S_FPR, u, V_PP, f"pp{u}", f"prod{u}"))
            done[u] = "loads"
            if u not in redpos: continue
            for n, (sc, d) in enumerate(ring_loads(u)): put_vm(G(Q(u) + T['ld'][n][0] + D, T['ld'][n][1]), sc, d)
            g.pre[redpos[u] - 1] += dd("rlA") + [wait_tag(f"rl{u}")] + dd("rlB")
            if u <= 13 - NS: put_vm(G(Q(u) + T['csig'][0] + D, T['csig'][1]), *flag_store(S_FCW, u, f"csig{u}"))
            done[u] = "out"
            cv, st = ring_out(u)
            if u + 1 in redpos:
                g.vec[redpos[u + 1]] += cv
                put_vm(G(Q(u) + T['out'][0] + D, T['out'][1]), [], st)
                done[u] = "all"
    tail_main = []
    for p in range(112):
        j, nb, qb = p >> 4, (p >> 2) & 3, p & 3
        ops = part_ops(nb, qb)
        slots = [G(p + 2, 0), G(p + 2, 1), G(p + 2, 1), G(p + 2, 2), G(p + 2, 4), G(p + 2, 6)]
        if slots[0] is None:
            tail_main += ops
        else:
            for x, k in zip(ops, slots): g.vec[k].append(x)
        if nb & 1:
            u = 2 * j + (nb >> 1)
            if sgap[(u, qb)] is None: tail_main += stores[(u, qb)][0] + [nop(1), stores[(u, qb)][1]]
    if OPT.p3_tiles and local:
        for j in range(1, 7): g.pre[P(j, 0)] = stamp(f"tile{j}") + g.pre[P(j, 0)]
    if lead is not None: a(lead)
    em = g.emit()
    if "allst" in OPT.p3_drop: em = [x for x in em if x.kind != "vst"]
    if "pst" in OPT.p3_drop: em = [x for x in em if not (x.kind == "vst" and x.meta.get("tag", "").startswith("st"))]
    if "nospin" in OPT.p3_drop: em = [x for x in em if not (x.kind == "branch" and "vccnz" in x.text)]
    if "novm" in OPT.p3_drop: em = [x for x in em if not (x.kind == "wait" and "vmtags" in x.meta and not x.meta["vmtags"][0].startswith("wo"))]
    if "nold" in OPT.p3_drop: em = [x for x in em if not (x.kind == "vld" and x.meta.get("tag", "").startswith("rl"))]
    o += stamp("p3_stream_start") if (local or not OPT.fused) else []
    o += em
    if local or not OPT.fused: o += stamp("p3_mfma_end")
    a(nop(7)); o += exposed(tail_main)
    if local:
        todo = [u for u in range(14) if done[u] != "all"]
        LD = lambda u: [x for sc, d in ring_loads(u) for x in sc + [d]]
        POLL = lambda u: (lambda p: p[0] + [p[1]])(flag_poll(S_FPR, u, V_PP, f"pp{u}"))
        CHK = lambda u: flag_check(S_FPR, u, V_PP, f"pp{u}", f"prod{u}")
        SIG = lambda u: (lambda p: [wait_tag(f"st{u}")] + p[0] + [p[1]])(flag_store(S_FPW, u, f"sig{u}"))
        OUT = lambda u: (lambda p: p[0] + [p[1]])(ring_out(u))
        if OPT.tail2 and [done[u] for u in todo] == ["out", "loads", "poll", "sig"] and todo == [10, 11, 12, 13]:
            o += LD(11) + POLL(12) + SIG(13) + stamp("x_last_signal") + OUT(10)
            o += CHK(12) + LD(12) + [wait_tag("rl11")] + ring_mfmas(11)
            o += POLL(13) + CHK(13) + LD(13)
            o += [wait_tag("rl12")] + ring_mfmas(12) + [nop(3)] + OUT(11)
            o += [wait_tag("rl13")] + ring_mfmas(13) + [nop(3)] + OUT(12) + [nop(7)] + OUT(13)
        else:
            for u in todo:
                if done[u] == "sig": o += SIG(u)
            o += stamp("x_last_signal")
            for u in todo:
                if done[u] != "out":
                    if done[u] in ("sig", "poll"): o += POLL(u)
                    if done[u] in ("sig", "poll", "check"): o += CHK(u)
                    o += LD(u) + [wait_tag(f"rl{u}")] + ring_mfmas(u) + [nop(7)]
                o += OUT(u)
    return o

def phase3():
    o = []; a = o.append
    a(label("L_p3_entry"))
    a(wait_tag("wt", "wo0")); a(raw("s_waitcnt lgkmcnt(0)", "wait", lgkm=0)); a(barrier())
    a(valu(f"v_mov_b32 v1, {L_VOTE}", [], ["v1"]))
    a(ds_read128("v", V_SP, 1, 0)); a(wait_lgkm(0))
    a(valu(f"v_or3_b32 v{V_SP}, v{V_SP}, v{V_SP+1}, v{V_SP+2}", R("v", V_SP, 3), [f"v{V_SP}"]))
    a(valu(f"v_or_b32 v{V_SP}, v{V_SP}, v{V_SP+3}", [f"v{V_SP}", f"v{V_SP+3}"], [f"v{V_SP}"])); a(nop(0))
    a(valu(f"v_readfirstlane_b32 s50, v{V_SP}", [f"v{V_SP}"], ["s50"])); a(nop(3))
    a(salu(f"s_cmp_eq_u32 s{S_SAFE}, 0")); a(salu("s_cselect_b32 s50, s50, 0"))
    a(salu("s_cmp_lg_u32 s50, 0")); a(raw("s_cbranch_scc1 L_restart", "branch"))
    OOL.extend([label("L_restart"), wait_vm(0), raw("s_waitcnt lgkmcnt(0)", "wait", lgkm=0), barrier(),
                salu(f"s_mov_b32 s{S_SAFE}, 1"), raw("s_branch L_again", "branch")])
    o += p3_setup()
    if OPT.fused: o += ring_setup()
    o += va_shift(WOBUF[0] - L_V)
    if OPT.fused: o += mode_check()
    carried = []
    for s_ in range(8):
        for jj in range(2):
            r = wo_read(0, s_, jj); a(r); carried.append(r.wr)
            if len(carried) == 14: a(wait_lgkm(6)); carried = carried[-6:]
    a(barrier())
    if OPT.wo_stage:
        a(valu(f"v_lshlrev_b32 v{V_WOW}, 4, v{V_LANE}", [f"v{V_LANE}"], [f"v{V_WOW}"]))
        a(valu(f"v_add_u32 v{V_WOW}, s{S_W1K}, v{V_WOW}", [f"v{V_WOW}"], [f"v{V_WOW}"]))
    else:
        for sc, d in wo_dma(4): o += sc + [nop(0), d]
    if not OPT.fused:
        return o, p3_stream(False, carried) + stamp("p3_end") + ([wait_vm(0)] if OPT.stamps else []) + stamp("rt_end"), []
    o += [salu(f"s_cmp_eq_u32 s{S_LOCM}, 0"), raw("s_cbranch_scc1 L_p3_far", "branch")]
    loc = p3_stream(True, carried)
    loc += stamp("p3_end") + ([wait_vm(0)] if OPT.stamps else []) + stamp("rt_end")
    far = [label("L_p3_far")] + far_setup() + p3_stream(False, carried) + handoff_far()
    for j in range(7):
        for sc, d in red_loads(j): far += sc + [d]
    for j in range(7):
        far.append(wait_tag(f"rl{j}"))
        far += red_mfmas(j)
        if j > 0:
            cv, stt = red_out(j - 1); far += cv + [stt]
    far.append(nop(7))
    cv, stt = red_out(6); far += cv + [stt]
    far += [wait_vm(0), raw("s_endpgm", "branch")]
    return o, loc, far

def dump_regs(base, n, agpr=False):
    o = [wait_vm(0), raw("s_waitcnt lgkmcnt(0)", "wait", lgkm=0), nop(7), nop(7),
         salu(f"s_lshl_b32 s{S_T0}, s2, 2"), salu(f"s_add_u32 s{S_T0}, s{S_T0}, s{S_W}"),
         salu(f"s_mul_i32 s{S_T0}, s{S_T0}, {n*256}"), valu(f"v_lshlrev_b32 v1, 2, v{V_LANE}", [f"v{V_LANE}"], ["v1"])]
    for r in range(n):
        if agpr:
            o.append(valu(f"v_accvgpr_read_b32 v2, a{base+r}", [f"a{base+r}"], ["v2"])); o.append(bstore(2, 1, 1, S_WS, f"s{S_T0}", 0))
        else:
            o.append(bstore(base + r, 1, 1, S_WS, f"s{S_T0}", 0))
        o.append(salu(f"s_add_u32 s{S_T0}, s{S_T0}, 256"))
        if r % 32 == 31 or agpr: o.append(wait_vm(0))
    return o

def stamp_out():
    if not OPT.stamps: return []
    if OPT.dma_stamps: STAMPS[:] = [f"dma{i}" for i in range(10)] + ["loopcyc"]
    if OPT.bar_stamps: STAMPS.extend(["acc_vm", "acc_bar"])
    n = len(STAMPS)
    o = [raw("s_waitcnt lgkmcnt(0)", "wait", lgkm=0), salu(f"s_cmp_lg_u32 s{S_W}, 0"), raw("s_cbranch_scc1 L_nostamp", "branch")]
    if OPT.stamp_dbg >= 0:
        o += [salu(f"s_cmp_lg_u32 s2, {OPT.stamp_dbg}"), raw("s_cbranch_scc1 L_nostamp", "branch")]
        o += [salu("s_load_dwordx2 s[36:37], s[0:1], 88"), raw("s_waitcnt lgkmcnt(0)", "wait", lgkm=0)]
        o += [salu(f"s_mov_b32 s{S_WS}, s36"), salu(f"s_mov_b32 s{S_WS+1}, s37"), salu(f"s_mov_b32 s{S_WS+2}, 256"), salu(f"s_mov_b32 s{S_T0}, 0")]
    else:
        o.append(salu(f"s_mul_i32 s{S_T0}, s2, 64")); o.append(salu(f"s_add_u32 s{S_T0}, s{S_T0}, {STAMP_OFF}"))
        o.append(salu(f"s_mov_b32 s{S_WS+2}, {STAMP_OFF + 256*64}"))
    o.append(valu("v_mov_b32 v1, 0", [], ["v1"]))
    for k in range(n):
        if OPT.stamp_dbg >= 0:
            ref = 0 if STAMPS[k].startswith("rt") else 1
            o.append(salu(f"s_sub_u32 s{S_T1}, s{S_STAMP+2*k}, s{S_STAMP+2*ref}"))
            o.append(valu(f"v_mov_b32 v2, s{S_T1}", [], ["v2"]))
        elif STAMPS[k] == "loopcyc": o.append(valu("v_mov_b32 v2, s100", [], ["v2"]))
        elif STAMPS[k] == "acc_vm": o.append(valu("v_mov_b32 v2, s92", [], ["v2"]))
        elif STAMPS[k] == "acc_bar": o.append(valu("v_mov_b32 v2, s93", [], ["v2"]))
        else:
            o.append(valu(f"v_mov_b32 v2, s{S_STAMP+2*k}", [], ["v2"]))
        o.append(bstore(2, 1, 1, S_WS, f"s{S_T0}", 4 * k)); o.append(wait_vm(0))
    o.append(label("L_nostamp"))
    return o

def finish(): return [wait_vm(0), label("L_end"), raw("s_endpgm", "branch")]

def trip_seq(ex):
    return [raw("s_memtime s[98:99]", "salu"), raw("s_memrealtime s[100:101]", "salu"), raw("s_waitcnt lgkmcnt(0)", "wait", lgkm=0),
            salu(f"s_mov_b32 s99, m0"), salu(f"s_mov_b32 m0, s{S_LOOP}"), nop(0), valu(f"v_writelane_b32 v1, s98, m0", ["s98"], ["v1"]),
            salu(f"s_add_u32 m0, s{S_LOOP}, 8"), nop(0), valu(f"v_writelane_b32 v1, s100, m0", ["s100"], ["v1"]),
            salu("s_mov_b32 m0, s99"), salu(f"s_cmp_lg_u32 s{S_LOOP}, {ex}")]
def build(debug=None):
    _stamp_n[0] = 0; STAMPS.clear(); OOL.clear()
    pre = setup() + phase1()
    if debug == "p1":
        pre += stamp("rt_end")
        resolve_vm(pre, [])
        return pre + stamp_out() + finish()
    if debug == "q":
        resolve_vm(pre, []); check(pre, "pre")
        return pre + dump_regs(V_Q, 128) + finish()
    if OPT.dma_mode == "cluster":
        OPT.dma_gaps = ([21, 23, 25, 27], [101, 103, 105, 107]); OPT.nv_prev = 0
    elif OPT.dma_mode == "cluster2":
        OPT.dma_gaps = ([41, 43, 47, 49], [101, 103, 105, 107]); OPT.nv_prev = 0
    NCUR = len(OPT.dma_gaps[1])
    pre += [salu(f"s_cmp_lg_u32 s{S_SAFE}, 0"), raw("s_cbranch_scc1 L_safe_attn", "branch")]
    p, carried = pre_iter(); pre += p
    def batch(t):
        return dma_tile("V", vslot(t + 3), f"s{S_VOFF}", f"V{t+3}") + dma_tile("K", kslot(t + 5), f"s{S_KOFF}", f"K{t+5}")
    pre += wo_setup()
    if OPT.fused: pre += grp_setup()
    def ex0(g, kb):
        put_wo(g, 0, 3, kb, step=8)
    vf0 = OPT.vfirst
    if OPT.early_trips: OPT.vfirst = OPT.vfirst_early
    s0, carried = attn_iter(0, carried, wait_tag("V1", "K2"), [], batch(0)[:NCUR], first=True, adv=False, extra=ex0)
    OPT.vfirst = vf0
    pre += s0
    pre.append(salu(f"s_mov_b32 s{S_LOOP}, 7"))
    if OPT.bar_stamps: pre += [salu("s_mov_b32 s92, 0"), salu("s_mov_b32 s93, 0")]
    pre += stamp("loop_start") + (stamp("rt_ls") if (OPT.bar_stamps or OPT.trip_stamps) else [])
    def loop_body(name):
        nonlocal carried
        lp = [label(name)]
        for u in range(4):
            t = 1 + u
            s, carried = attn_iter(t, carried, wait_vm(12), batch(t - 1)[NCUR:], batch(t)[:NCUR], loopctl=(u == 3), loop_body=True)
            if OPT.dma_stamps and u == 1:
                s2 = []; n = 0
                for x in s:
                    if x.kind == "dma" and n < 5:
                        s2 += [raw(f"s_memtime s[{80+4*n}:{81+4*n}]", "salu"), x, raw(f"s_memtime s[{82+4*n}:{83+4*n}]", "salu")]; n += 1
                    else: s2.append(x)
                s = s2
            lp += s
        return lp
    first_loop = []
    if OPT.early_trips:
        vf = OPT.vfirst; OPT.vfirst = OPT.vfirst_early
        OPT.loop_exit = 7 - OPT.early_trips
        first_loop = loop_body("L_attn_early") + (trip_seq(OPT.loop_exit) if OPT.trip_stamps else []) + [raw("s_cbranch_scc1 L_attn_early", "branch")]
        OPT.vfirst = vf; OPT.loop_exit = 0
    loop = loop_body("L_attn")
    if OPT.trip_stamps: loop += trip_seq(0)
    if OPT.loop_nodma: loop = [x for x in loop if x.kind != "dma"]
    if OPT.loop_nods: loop = [x for x in loop if x.kind != "ds" and not (x.kind == "wait" and "lgkm" in x.meta and x.meta["lgkm"] > 0)]
    if OPT.loop_nomfma: loop = [(nop(1) if x.kind == "mfma" else x) for x in loop]
    if OPT.loop_novalu: loop = [x for x in loop if x.kind not in ("valu", "trans")]
    if OPT.loop_dma_every > 1:
        cnt = [0]
        def keep(x):
            if x.kind != "dma": return True
            cnt[0] += 1
            return cnt[0] % OPT.loop_dma_every == 0
        loop = [x for x in loop if keep(x)]
    loop.append(raw("s_cbranch_scc1 L_attn", "branch"))
    post = stamp("loop_end") + (stamp("rt_le") if OPT.bar_stamps else [])
    if OPT.trip_stamps:
        post += [valu(f"v_lshlrev_b32 v2, 2, v{V_LANE}", [], ["v2"]), salu(f"s_mul_i32 s{S_T1}, s2, 64"),
                 salu(f"s_add_u32 s{S_T1}, s{S_T1}, {STAMP_OFF + 256*64}"), salu(f"s_mov_b32 s{S_WS+2}, {STAMP_OFF + 2*256*64}"),
                 valu("v_cmp_gt_u32 vcc, 16, v0", ["v0"], ["vcc"]), salu(f"s_cmp_eq_u32 s{S_W}, 0"), raw("s_cselect_b64 s[50:51], vcc, 0", "salu"),
                 raw("s_mov_b64 s[54:55], exec", "salu"), raw("s_mov_b64 exec, s[50:51]", "salu"), raw("s_cbranch_execz L_notrip", "branch"),
                 raw(f"buffer_store_dword v1, v2, s[{S_WS}:{S_WS+3}], s{S_T1} offen", "salu"), wait_vm(0), label("L_notrip"), raw("s_mov_b64 exec, s[54:55]", "salu"), wait_vm(0)]
    def ex29(g, kb):
        if OPT.fused: place_vmem(g, 40, [], mode_load(), kb)
        gp = 50
        for j in OPT.wo_touch: gp = place_vmem(g, gp, [], wo_touch(j), kb) + 12
    post += wo_touch_setup()
    s, carried = attn_iter(29, carried, wait_tag("V30", "K32"), batch(28)[NCUR:4], [], adv=False,
                           extra=ex29)
    post += s
    def ex30(g, kb):
        put_wo(g, 1, 3, kb, step=8)
        if OPT.fused:
            k = 2
            for x in ring_scalars(): k = put_scalar(g, k, x) + 1
    s, carried = attn_iter(30, carried, wait_tag("V31"), [], [], adv=False, extra=ex30)
    post += s
    post += last_iter(carried)
    post += stamp("attn_end")
    if debug == "o":
        tailq = dump_regs(V_Q, 128)
    elif debug == "l":
        tailq = dump_regs(V_L, 4)
    else:
        common, loc, far = phase3()
        tailq = common
    post += tailq
    q = resolve_vm(pre, [])
    qexit = ["V30"] * 4 + ["K32"] * 4 + ["V31"] * NCUR
    qb_ = resolve_vm(post, qexit)
    if debug is None:
        resolve_vm(loc, qb_); resolve_vm(far, qb_)
        if far and not OPT.p3_drop: check(loop[1:] + post + far[1:], "loop+post+far", init_lgkm=[x.wr for x in pre if x.kind == "ds"][-8:], init_vm=[[]] * (8 + NCUR))
        post = post + loc
        OOL.extend(far)
    if not (OPT.p1_nowait or OPT.p1_noread or OPT.p1_drop or OPT.loop_nodma or OPT.loop_dma_every > 1 or OPT.loop_nods or OPT.loop_nomfma or OPT.loop_novalu): check(pre + loop[1:] + loop[1:], "pre+loop")
    if not (OPT.p3_drop or OPT.loop_nodma or OPT.loop_dma_every > 1 or OPT.loop_nods or OPT.loop_nomfma or OPT.loop_novalu): check(loop[1:] + post, "loop+post", init_lgkm=[x.wr for x in pre if x.kind == "ds"][-8:], init_vm=[[]] * (8 + NCUR))
    OOL.extend(safe_attn())
    if first_loop: check(pre + first_loop[1:] + first_loop[1:] + loop[1:], "pre+early+loop")
    return pre + first_loop + loop + post + stamp_out() + finish() + OOL

def reduce_kernel():
    o = []; a = o.append
    a(salu("s_cmp_ge_u32 s2, 256")); a(raw("s_cbranch_scc1 R_end", "branch"))
    a(salu("s_load_dwordx2 s[4:5], s[0:1], 80")); a(salu("s_load_dwordx2 s[6:7], s[0:1], 96"))
    a(valu("v_lshrrev_b32 v1, 6, v0", ["v0"], ["v1"])); a(valu("v_and_b32 v0, 63, v0", ["v0"], ["v0"]))
    a(valu("v_readfirstlane_b32 s32, v1", ["v1"], ["s32"]))
    a(salu("s_lshr_b32 s33, s2, 4")); a(salu("s_and_b32 s34, s2, 15"))
    a(salu("s_lshr_b32 s35, s33, 3")); a(salu("s_and_b32 s36, s33, 7"))
    a(salu("s_lshr_b32 s37, s32, 1")); a(salu("s_and_b32 s38, s32, 1"))
    a(valu("v_lshrrev_b32 v2, 5, v0", ["v0"], ["v2"])); a(valu("v_lshlrev_b32 v2, 11, v2", ["v2"], ["v2"]))
    a(valu("v_and_b32 v3, 31, v0", ["v0"], ["v3"])); a(valu("v_lshl_add_u32 v2, v3, 4, v2", ["v3", "v2"], ["v2"]))
    a(salu("s_lshl_b32 s39, s37, 10")); a(salu("s_lshl_b32 s40, s38, 9")); a(salu("s_add_u32 s39, s39, s40"))
    a(valu("v_add_u32 v2, s39, v2", ["v2"], ["v2"]))
    a(valu("v_and_b32 v8, 15, v0", ["v0"], ["v8"])); a(valu("v_lshrrev_b32 v9, 4, v0", ["v0"], ["v9"]))
    a(valu("v_lshrrev_b32 v10, 3, v8", ["v8"], ["v10"])); a(valu("v_and_b32 v11, 1, v9", ["v9"], ["v11"]))
    a(valu("v_and_b32 v12, 1, v8", ["v8"], ["v12"])); a(valu("v_lshlrev_b32 v12, 4, v12", ["v12"], ["v12"]))
    a(valu("v_mov_b32 v13, 0x3f80", [], ["v13"])); a(valu("v_lshlrev_b32 v13, v12, v13", ["v12", "v13"], ["v13"]))
    a(valu("v_cmp_eq_u32 vcc, v10, v11", ["v10", "v11"], ["vcc"])); a(nop(1))
    a(valu("v_cndmask_b32 v13, 0, v13, vcc", ["v13", "vcc"], ["v13"]))
    a(valu("v_bfe_u32 v14, v8, 1, 2", ["v8"], ["v14"]))
    for r in range(4):
        a(valu(f"v_cmp_eq_u32 vcc, {r}, v14", ["v14"], ["vcc"])); a(nop(1))
        a(valu(f"v_cndmask_b32 v{4+r}, 0, v13, vcc", ["v13", "vcc"], [f"v{4+r}"]))
    a(salu("s_lshl_b32 s41, s36, 8")); a(salu("s_lshl_b32 s42, s34, 4")); a(salu("s_add_u32 s41, s41, s42"))
    a(valu("v_add_u32 v3, s41, v8", ["v8"], ["v3"])); a(valu("v_mul_u32_u24 v3, 896, v3", ["v3"], ["v3"]))
    a(salu("s_mul_i32 s42, s35, 448")); a(salu("s_lshl_b32 s43, s37, 5")); a(salu("s_add_u32 s42, s42, s43"))
    a(salu("s_lshl_b32 s43, s38, 3")); a(salu("s_add_u32 s42, s42, s43"))
    a(valu("v_add_u32 v3, s42, v3", ["v3"], ["v3"]))
    a(valu("v_lshl_add_u32 v3, v11, 4, v3", ["v11", "v3"], ["v3"]))
    a(valu("v_lshrrev_b32 v10, 1, v9", ["v9"], ["v10"])); a(valu("v_lshl_add_u32 v3, v10, 2, v3", ["v10", "v3"], ["v3"]))
    a(valu("v_lshlrev_b32 v3, 1, v3", ["v3"], ["v3"]))
    a(raw("s_waitcnt lgkmcnt(0)", "wait", lgkm=0))
    for base, lo, size in ((8, 6, 16 * 7 * 16 * 16 * 2048), (12, 4, 8 * 256 * 896 * 2)):
        a(salu(f"s_mov_b32 s{base}, s{lo}")); a(salu(f"s_mov_b32 s{base+1}, s{lo+1}"))
        a(salu(f"s_mov_b32 s{base+2}, {size}")); a(salu(f"s_mov_b32 s{base+3}, 0x20000"))
    a(salu(f"s_mul_i32 s44, s33, {7*16*32768}")); a(salu("s_lshl_b32 s45, s34, 15")); a(salu("s_add_u32 s44, s44, s45"))
    for j in range(7):
        for i in range(8):
            a(salu(f"s_add_u32 s46, s44, {j*16*32768 + i*4096}"))
            a(tag(bload(16 + (j * 8 + i) * 4, 4, 2, 8, "s46", 0), f"p{j}"))
    for j in range(7):
        a(wait_tag(f"p{j}"))
        d = 240 + 4 * (j & 1)
        for i in range(8):
            a(mfma("v", d, "v", 4, "v", 16 + (j * 8 + i) * 4, None if i == 0 else "v", None if i == 0 else d))
        a(nop(7))
        a(valu(f"v_cvt_pk_bf16_f32 v{d}, v{d}, v{d+1}", [f"v{d}", f"v{d+1}"], [f"v{d}"]))
        a(valu(f"v_cvt_pk_bf16_f32 v{d+1}, v{d+2}, v{d+3}", [f"v{d+2}", f"v{d+3}"], [f"v{d+1}"]))
        a(tag(bstore(d, 2, 3, 12, "0", j * 128), "o"))
    resolve_vm(o, []); check(o, "reduce")
    if OPT.stamps and OPT.stamp_fwd >= 0:
        o += [wait_vm(0), salu("s_cmp_lg_u32 s2, 0"), raw("s_cbranch_scc1 R_end", "branch"),
              salu("s_load_dwordx2 s[20:21], s[0:1], 88"), raw("s_waitcnt lgkmcnt(0)", "wait", lgkm=0),
              salu("s_mov_b32 s16, s20"), salu("s_mov_b32 s17, s21"), salu("s_mov_b32 s18, 64"), salu("s_mov_b32 s19, 0x20000"),
              salu(f"s_mov_b32 s10, {16*7*16*16*2048 + 256*64}"), salu(f"s_mov_b32 s46, {16*7*16*16*2048} + 64*{OPT.stamp_fwd}"),
              valu("v_lshlrev_b32 v2, 2, v0", ["v0"], ["v2"]), bload(3, 1, 2, 8, "s46", 0), wait_vm(0), bstore(3, 1, 2, 16, "0", 0)]
    o += [wait_vm(0), label("R_end"), raw("s_endpgm", "branch")]
    return o

KD = """.section .rodata,"a"
.p2align 6
.amdhsa_kernel {name}
  .amdhsa_next_free_vgpr {vgpr}
  .amdhsa_next_free_sgpr 102
  .amdhsa_accum_offset 256
  .amdhsa_group_segment_fixed_size 0
  .amdhsa_kernarg_size 104
  .amdhsa_user_sgpr_count 2
  .amdhsa_user_sgpr_kernarg_segment_ptr 1
  .amdhsa_system_sgpr_workgroup_id_x 1
.end_amdhsa_kernel
"""
def header_comments():
    ref = open("cdna_kernels/" + NAME + ".s.ref").read().splitlines()
    out = []
    for l in ref:
        if l.startswith("; Override launch") or not l.startswith(";"): break
        out.append(l)
    return out

def stream_kernel():
    t = """
  s_cmp_ge_u32 s2, 256
  s_cbranch_scc1 S_end
  s_load_dwordx2 s[4:5], s[0:1], 8
  s_load_dwordx2 s[6:7], s[0:1], 96
  s_load_dwordx2 s[8:9], s[0:1], 48
  v_lshrrev_b32 v2, 6, v0
  s_nop 0
  v_readfirstlane_b32 s24, v2
  v_and_b32 v1, 63, v0
  v_lshlrev_b32 v14, 4, v1
  s_nop 2
  s_lshl_b32 s25, s24, 12
  v_add_u32 v14, s25, v14
  s_waitcnt lgkmcnt(0)
  s_cmp_lt_u32 s2, 128
  s_cselect_b32 s36, s4, s8
  s_cselect_b32 s37, s5, s9
  s_mov_b32 s38, 0x4000000
  s_mov_b32 s39, 0x20000
  s_and_b32 s32, s2, 127
  s_lshl_b32 s32, s32, 19
  s_barrier
  s_memrealtime s[12:13]
  s_mov_b32 s20, 0
S_loop:
  s_mov_b32 m0, s25
  s_nop 0
  buffer_load_dwordx4 v14, s[36:39], s32 offen nt lds
  buffer_load_dwordx4 v14, s[36:39], s32 offen offset:1024 nt lds
  buffer_load_dwordx4 v14, s[36:39], s32 offen offset:2048 nt lds
  buffer_load_dwordx4 v14, s[36:39], s32 offen offset:3072 nt lds
  s_add_u32 s32, s32, 16384
  s_waitcnt vmcnt(8)
  s_barrier
  s_add_u32 s20, s20, 1
  s_cmp_lt_u32 s20, 32
  s_cbranch_scc1 S_loop
  s_waitcnt vmcnt(0)
  s_barrier
  s_memrealtime s[16:17]
  s_waitcnt lgkmcnt(0)
  s_sub_u32 s16, s16, s12
  s_mov_b32 s40, s6
  s_mov_b32 s41, s7
  s_mov_b32 s42, %d
  s_mov_b32 s43, 0x20000
  s_mul_i32 s33, s2, 64
  s_add_u32 s33, s33, %d
  v_mov_b32 v2, s16
  v_mov_b32 v1, 0
  buffer_store_dword v2, v1, s[40:43], s33 offen
  s_waitcnt vmcnt(0)
S_end:
  s_endpgm""" % (16*7*16*16*2048 + 256*64, 16*7*16*16*2048 + 60)
    return t

def assemble_file(debug=None):
    main = build(debug)
    red = reduce_kernel()
    k1 = NAME + "_kernel"; k2 = "reduce_heads_kernel"
    L = header_comments()
    if OPT.stream0: L.append(f"; @launch kernel=stream_test_kernel grid=(256,1,1) block=(256,1,1) lds={LDS_BYTES}")
    if OPT.fused and not OPT.stream0:
        L.append(f"; @launch grid=(256,1,1) block=(256,1,1) lds={LDS_BYTES}")
    else:
        L.append(f"; @launch kernel={k1} grid=(256,1,1) block=(256,1,1) lds={LDS_BYTES}")
        if debug is None and not OPT.fused: L.append(f"; @launch kernel={k2} grid=(256,1,1) block=(256,1,1) lds=0")
    L.append('.amdgcn_target "amdgcn-amd-amdhsa--gfx950"')
    L.append(".text")
    for nm, body in ((k1, main), (k2, red)) if not OPT.fused else ((k1, main),):
        L += [f".globl {nm}", ".p2align 8", f".type {nm},@function", f"{nm}:", text(body)]
    if OPT.stream0: L += [".globl stream_test_kernel", ".p2align 8", ".type stream_test_kernel,@function", "stream_test_kernel:", stream_kernel()]
    L.append(KD.format(name=k1, vgpr=512))
    if not OPT.fused: L.append(KD.format(name=k2, vgpr=256))
    if OPT.stream0: L.append(KD.format(name="stream_test_kernel", vgpr=512))
    return "\n".join(L) + "\n"

if __name__ == "__main__":
    dbg = sys.argv[2] if len(sys.argv) > 2 and sys.argv[2] != "none" else None
    for kv in sys.argv[3:]:
        k, v = kv.split("=")
        v = v.replace("+", " ")
        setattr(OPT, k, {"True": True, "False": False, "()": ()}.get(v, int(v) if v.lstrip("-").isdigit() else (eval(v) if v.startswith("(") else v)))
    open(sys.argv[1], "w").write(assemble_file(dbg))
    print("stamps:", STAMPS)
```

```python
import math, struct, sys
from core import *

NAME = "concat_heads__mha_block_cached__mha_block_cached__near_ridge"
def f32bits(x): return struct.unpack("<I", struct.pack("<f", x))[0]
CSC = math.log2(math.e) / 16.0

S_X, S_WQ, S_K, S_V, S_WO, S_WS, S_OUT = 4, 8, 12, 16, 20, 24, 28
S_W, S_W1K = 32, 33
S_QB = ["0", "s34", "s35", "s62"]
S_C = 63
S_KOFF, S_VOFF = 64, 65
S_LOOP = 66
S_T0, S_T1, S_T2, S_T3 = 67, 68, 69, 70
S_G, S_H, S_B, S_BR = 71, 72, 73, 74
S_WOFF = 76
S_PART = 77
S_WCUR, S_WSTEP, S_XSTEP = 78, 79, 75
S_FL, S_DBG = 36, 40
S_LOCM = 44
S_RBASE, S_SIG, S_POLL, S_XCC = 46, 47, 48, 49
S_RG = 56
S_SPIN = 62
S_WARM = 34
S_SAFE = 3
S_ROT = 52
S_PFO = 53
S_RST, S_RLD, S_FPW, S_FPR, S_FCW, S_FCR = 60, 61, 75, 78, 79, 76
S_STAMP = 80
V_LANE = 0
V_KA = [4, 5]
V_VA = [6, 7, 8, 9]
V_DK, V_DV = 10, 11
V_L = 12
V_MC = 16
V_SP = 20
V_POOL = 32
V_S = 64
V_P = 96
V_Q = 128
V_XA = 20; V_DW = 21; V_WA = [[22, 23], [24, 25], [26, 27]]
V_CT = 28
V_ARR = 24
L_K = 0; L_V = 65536; L_X = 131072
def kslot(t): return L_K + 16384 * (t % 4)
def vslot(t): return L_V + 16384 * (t % 4)
LDS_BYTES = 163840
L_VOTE = L_V + 2 * 16384
L_LIMIT = 2.0 ** 30

PART_BYTES = 16 * 7 * 16 * 16 * 2048
FLAG_BYTES = 16 * 7 * 4 * 64
STAMP_OFF = PART_BYTES + 32768
RING_OFF = PART_BYTES + (1 << 20)
RING_BYTES = 32 << 20
CONS_OFF = 16384
SPIN_MAX = 1 << 19
class Opt:
    kv_flags = "nt"
    w_flags = ""
    x_flags = ""
    wo_flags = ""
    st_flags = ""
    stamps = False
    pad_early = 0
    v_lead = 20
    v_lead_early = 20
    l2warm = False
    kvspread = False
    tlbwarm = 0
    remap = 0
    tail2 = True
    tmpl = 0
    wo_stage = False
    p3_tiles = False
    early_trips = 0
    vfirst_early = 37
    loop_exit = 0
    xwarm = False
    kvmin = False
    vfirst = 0
    dma_stamps = False
    rot = 0
    pad_iter = 0
    last_st = ''
    out_flags = ''
    coopw = False
    coopw_init = 2
    pf_flags = ''
    early_wb = 0
    wt_flags = ''
    prod_delay = 0
    ring = 4
    vm_space = 0
    p3_drop = ''
    wo_step = 13
    cons_chk = 22
    wo_touch = (4, 5, 6)
    red_m = 200
    cons_poll = 50
    ld_min = 16
    stamp_skip = 'p1_first_data,pre_iter_end'
    p3detail = -1
    st_lag = 21
    force_fallback = False
    red_at = 60
    sig_lag = 28
    poll_lag = 22
    chk_lag = 22
    fused = True
    stream0 = False
    loop_nods = False
    loop_nomfma = False
    loop_novalu = False
    loop_nodma = False
    loop_dma_every = 1
    bar_stamps = False
    trip_stamps = False
    dma_mode = 'spread'
    dma_gaps = ([5, 21, 37, 53, 69, 85], [101, 117])
    nv_prev = 2
    stamp_fwd = -1
    stamp_dbg = -1
    x_rd_gap0 = 65
    x_rd_gap = 33
    p1_steps = False
    p1_drop = ''
    rev = True
    init_w = 2
    early_step = 2
    x_gap = 60
    p1_nowait = False
    p1_noread = False
    wring = 3
    kvpf = 'early'
    coopx = False
    init_more = 0
OPT = Opt()

def wait_tag(*tags): return I("s_waitcnt vmcnt(?)", "wait", vmtags=list(tags))
def tag(ins, t):
    ins.meta["tag"] = t; return ins
def resolve_vm(stream, queue):
    q = list(queue)
    for ins in stream:
        if ins.kind in ("dma", "vld", "vst"):
            q.append(ins.meta.get("tag", "?"))
        elif ins.kind == "wait":
            if "vmtags" in ins.meta:
                idx = [n for n, t in enumerate(q) if t in ins.meta["vmtags"]]
                n = len(q) - 1 - max(idx) if idx else len(q)
                n = min(n, 63)
                ins.text = f"s_waitcnt vmcnt({n})"; ins.meta["vm"] = n
            if "vm" in ins.meta:
                n = ins.meta["vm"]
                if len(q) > n: q = q[len(q) - n:] if n else []
    return q

_stamp_n = [0]
def stamp(name):
    if not OPT.stamps: return []
    if OPT.dma_stamps:
        if name == "loop_start": return [raw("s_memtime s[100:101]", "salu"), raw("s_waitcnt lgkmcnt(0)", "wait", lgkm=0)]
        if name == "loop_end": return [raw("s_memtime s[76:77]", "salu"), raw("s_waitcnt lgkmcnt(0)", "wait", lgkm=0), salu("s_sub_u32 s100, s76, s100")]
        return []
    if OPT.stamp_skip and name in OPT.stamp_skip.split(","): return []
    if OPT.p3detail >= 0 and not name.startswith("d_") and name not in ("rt_end",): return []
    if OPT.bar_stamps and name not in ("rt_ls", "rt_le", "loop_start", "loop_end", "rt_end"): return []
    n = _stamp_n[0]; _stamp_n[0] += 1
    STAMPS.append(name)
    op = "s_memrealtime" if name.startswith("rt") else "s_memtime"
    return [raw(f"{op} s[{S_STAMP+2*n}:{S_STAMP+2*n+1}]", "salu")]
STAMPS = []

def m0_set(base): return salu(f"s_add_u32 m0, s{S_W1K}, {base}", [f"s{S_W1K}"], ["m0"])

def dma_tile(kind, slot_base, soff, tg):
    voff, srd, fl = {"K": (V_DK, S_K, OPT.kv_flags), "V": (V_DV, S_V, OPT.kv_flags), "W": (V_DW, S_WQ, OPT.w_flags)}[kind]
    return [(m0_set(slot_base + dc * 3968), tag(dma(voff, srd, soff, dc * 128, fl), tg)) for dc in range(4)]

def setup():
    o = []; a = o.append
    a(salu("s_cmp_ge_u32 s2, 256")); a(raw("s_cbranch_scc1 L_end", "branch"))
    o += stamp("rt_start") + stamp("start")
    if OPT.remap:
        a(salu("s_lshr_b32 s4, s2, 3")); a(salu("s_add_u32 s4, s4, s2")); a(salu("s_and_b32 s4, s4, 7"))
        a(salu("s_andn2_b32 s5, s2, 7")); a(salu("s_or_b32 s4, s4, s5"))
        if OPT.remap == 2: a(salu("s_cmp_ge_u32 s2, 128")); a(salu("s_cselect_b32 s2, s4, s2"))
        else: a(salu("s_mov_b32 s2, s4"))
    a(valu("v_lshrrev_b32 v1, 6, v0", ["v0"], ["v1"]))
    a(valu(f"v_and_b32 v{V_LANE}, 63, v0", ["v0"], ["v0"]))
    a(salu(f"s_mov_b32 s{S_SAFE}, 0"))
    a(valu(f"v_readfirstlane_b32 s{S_W}, v1", ["v1"], [f"s{S_W}"]))
    a(label("L_again"))
    a(salu("s_load_dwordx16 s[36:51], s[0:1], 0")); a(salu("s_load_dwordx8 s[52:59], s[0:1], 64"))
    a(salu("s_load_dwordx2 s[60:61], s[0:1], 96"))
    a(nop(3))
    a(salu(f"s_and_b32 s{S_T0}, s2, 7")); a(salu(f"s_lshr_b32 s{S_T1}, s2, 3"))
    a(salu(f"s_and_b32 s{S_H}, s{S_T1}, 15")); a(salu(f"s_lshr_b32 s{S_T1}, s{S_T1}, 4"))
    a(salu(f"s_lshl_b32 s{S_G}, s{S_T0}, 1")); a(salu(f"s_add_u32 s{S_G}, s{S_G}, s{S_T1}"))
    a(salu(f"s_lshr_b32 s{S_BR}, s{S_G}, 3")); a(salu(f"s_and_b32 s{S_B}, s{S_G}, 7"))
    a(salu(f"s_lshl_b32 s{S_W1K}, s{S_W}, 10"))
    if OPT.rot:
        a(salu(f"s_and_b32 s{S_T0}, s2, 7")); a(salu(f"s_mul_i32 s{S_T0}, s{S_T0}, {OPT.rot}")); a(salu(f"s_lshr_b32 s{S_T1}, s2, 3"))
        a(salu(f"s_add_u32 s{S_T0}, s{S_T0}, s{S_T1}")); a(salu(f"s_and_b32 s{S_T0}, s{S_T0}, 31")); a(salu(f"s_lshl_b32 s33, s{S_T0}, 14") if False else salu(f"s_lshl_b32 s{S_T3}, s{S_T0}, 14"))
    a(salu(f"s_mov_b32 s{S_C}, 0x{f32bits(CSC):08x}"))
    L = f"v{V_LANE}"
    def vv(t, rd, wr): a(valu(t, rd, wr))
    vv(f"v_and_b32 v1, 15, {L}", [L], ["v1"]); vv(f"v_lshrrev_b32 v2, 4, {L}", [L], ["v2"])
    vv("v_lshrrev_b32 v3, 1, v1", ["v1"], ["v3"])
    for sp in range(2):
        r = V_KA[sp]
        vv(f"v_add_u32 v{r}, {4*sp}, v2", ["v2"], [f"v{r}"])
        vv(f"v_xor_b32 v{r}, v{r}, v3", [f"v{r}", "v3"], [f"v{r}"])
        vv(f"v_lshlrev_b32 v{r}, 4, v{r}", [f"v{r}"], [f"v{r}"])
        vv(f"v_lshl_add_u32 v{r}, v1, 7, v{r}", ["v1", f"v{r}"], [f"v{r}"])
    vv(f"v_lshrrev_b32 v1, 3, {L}", [L], ["v1"]); vv(f"v_and_b32 v2, 7, {L}", [L], ["v2"])
    vv(f"v_lshl_add_u32 v3, s{S_W}, 3, v1", ["v1", f"s{S_W}"], ["v3"])
    vv("v_bfe_u32 v28, v3, 1, 1", ["v3"], ["v28"]); vv("v_lshlrev_b32 v28, 2, v28", ["v28"], ["v28"])
    vv("v_xor_b32 v28, v28, v2", ["v28", "v2"], ["v28"]); vv("v_lshlrev_b32 v28, 4, v28", ["v28"], ["v28"])
    vv(f"v_lshl_add_u32 v{V_DW}, v3, 13, v28", ["v3", "v28"], [f"v{V_DW}"])
    a(raw("s_waitcnt lgkmcnt(0)", "wait", lgkm=0))
    a(salu(f"s_cmp_eq_u32 s{S_BR}, 0"))
    for i in range(10): a(salu(f"s_cselect_b32 s{36+i}, s{36+i}, s{46+i}"))
    if OPT.rot: a(salu(f"s_mov_b32 s{S_ROT}, s{S_T3}"))
    def srd(base, lo, hi, offs, size):
        if offs is None:
            a(salu(f"s_mov_b32 s{base}, s{lo}")); a(salu(f"s_mov_b32 s{base+1}, s{hi}"))
        else:
            a(salu(f"s_add_u32 s{base}, s{lo}, {offs}")); a(salu(f"s_addc_u32 s{base+1}, s{hi}, 0"))
        a(salu(f"s_mov_b32 s{base+2}, {size}")); a(salu(f"s_mov_b32 s{base+3}, 0x20000"))
    a(salu(f"s_mul_i32 s{S_T0}, s{S_B}, 229376")); srd(S_X, 36, 37, f"s{S_T0}", 229376)
    a(salu(f"s_lshl_b32 s{S_T0}, s{S_H}, 9")); srd(S_WQ, 42, 43, f"s{S_T0}", 0)
    a(salu(f"s_sub_u32 s{S_WQ+2}, {448*8192}, s{S_T0}"))
    return o

def setup_b():
    o = []; a = o.append
    L = f"v{V_LANE}"
    def vv(t, rd, wr): a(valu(t, rd, wr))
    vv(f"v_lshrrev_b32 v2, 4, {L}", [L], ["v2"])
    vv(f"v_bfe_u32 v28, {L}, 2, 2", [L], ["v28"]); vv(f"v_and_b32 v29, 3, {L}", [L], ["v29"])
    vv("v_lshl_add_u32 v30, v2, 2, v28", ["v2", "v28"], ["v30"])
    vv("v_bfe_u32 v31, v30, 1, 2", ["v30"], ["v31"])
    for p in range(4):
        r = V_VA[p]
        vv(f"v_xor_b32 v{r}, {p}, v31", ["v31"], [f"v{r}"])
        vv(f"v_lshlrev_b32 v{r}, 5, v{r}", [f"v{r}"], [f"v{r}"])
        vv(f"v_lshl_add_u32 v{r}, v30, 7, v{r}", ["v30", f"v{r}"], [f"v{r}"])
        vv(f"v_lshl_add_u32 v{r}, v29, 3, v{r}", ["v29", f"v{r}"], [f"v{r}"])
        vv(f"v_add_u32 v{r}, {L_V}, v{r}", [f"v{r}"], [f"v{r}"])
    vv("v_lshl_add_u32 v30, v2, 3, v28", ["v2", "v28"], ["v30"])
    vv("v_lshrrev_b32 v31, 1, v28", ["v28"], ["v31"])
    for sp in range(2):
        r = V_WA[0][sp]
        vv(f"v_xor_b32 v{r}, {sp}, v31", ["v31"], [f"v{r}"])
        vv(f"v_lshl_add_u32 v{r}, v{r}, 2, v29", [f"v{r}", "v29"], [f"v{r}"])
        vv(f"v_lshlrev_b32 v{r}, 4, v{r}", [f"v{r}"], [f"v{r}"])
        vv(f"v_lshl_add_u32 v{r}, v30, 7, v{r}", ["v30", f"v{r}"], [f"v{r}"])
        for win in (1, 2):
            vv(f"v_add_u32 v{V_WA[win][sp]}, {65536*win}, v{r}", [f"v{r}"], [f"v{V_WA[win][sp]}"])
    vv(f"v_lshrrev_b32 v1, 3, {L}", [L], ["v1"]); vv(f"v_and_b32 v2, 7, {L}", [L], ["v2"])
    vv(f"v_lshl_add_u32 v3, s{S_W}, 3, v1", ["v1", f"s{S_W}"], ["v3"])
    vv("v_bfe_u32 v28, v3, 1, 3", ["v3"], ["v28"]); vv("v_xor_b32 v28, v28, v2", ["v28", "v2"], ["v28"])
    vv("v_lshlrev_b32 v28, 4, v28", ["v28"], ["v28"]); vv(f"v_lshl_add_u32 v{V_DK}, v3, 9, v28", ["v3", "v28"], [f"v{V_DK}"])
    vv("v_bfe_u32 v28, v3, 1, 2", ["v3"], ["v28"]); vv("v_lshlrev_b32 v28, 1, v28", ["v28"], ["v28"])
    vv("v_xor_b32 v28, v28, v2", ["v28", "v2"], ["v28"]); vv("v_lshlrev_b32 v28, 4, v28", ["v28"], ["v28"])
    vv(f"v_lshl_add_u32 v{V_DV}, v3, 9, v28", ["v3", "v28"], [f"v{V_DV}"])
    def srd(base, lo, hi, offs, size):
        if offs is None:
            a(salu(f"s_mov_b32 s{base}, s{lo}")); a(salu(f"s_mov_b32 s{base+1}, s{hi}"))
        else:
            a(salu(f"s_add_u32 s{base}, s{lo}, {offs}")); a(salu(f"s_addc_u32 s{base+1}, s{hi}, 0"))
        a(salu(f"s_mov_b32 s{base+2}, {size}")); a(salu(f"s_mov_b32 s{base+3}, 0x20000"))
    a(salu(f"s_lshl_b32 s{S_T0}, s{S_B}, 4")); a(salu(f"s_add_u32 s{S_T0}, s{S_T0}, s{S_H}"))
    a(salu(f"s_lshl_b32 s{S_T0}, s{S_T0}, 19"))
    srd(S_K, 38, 39, f"s{S_T0}", 524288); srd(S_V, 40, 41, f"s{S_T0}", 524288)
    a(salu(f"s_mul_i32 s{S_T0}, s{S_H}, 229376")); srd(S_WO, 44, 45, f"s{S_T0}", 229376)
    srd(S_WS, 60, 61, None, 16 * 7 * 16 * 16 * 2048)
    srd(S_OUT, 56, 57, None, 8 * 256 * 896 * 2)
    if OPT.fused:
        srd(S_DBG, 58, 59, None, 256)
        a(salu(f"s_mov_b32 s{S_T0}, {PART_BYTES}")); srd(S_FL, 60, 61, f"s{S_T0}", 32768)
        a(salu(f"s_mov_b32 s{S_T0}, {RING_OFF}")); a(salu(f"s_add_u32 s54, s60, s{S_T0}")); a(salu("s_addc_u32 s55, s61, 0"))
        a(salu(f"s_mov_b32 s{S_RG}, s54")); a(salu(f"s_mov_b32 s{S_RG+1}, s55")); a(salu(f"s_mov_b32 s{S_RG+2}, {RING_BYTES}")); a(salu(f"s_mov_b32 s{S_RG+3}, 0x20000"))
        a(salu(f"s_getreg_b32 s{S_XCC}, hwreg(HW_REG_XCC_ID, 0, 3)"))
        a(salu(f"s_lshl_b32 s{S_SIG}, s{S_G}, 4")); a(salu(f"s_add_u32 s{S_SIG}, s{S_SIG}, s{S_H}"))
        a(salu(f"s_mul_i32 s{S_T0}, s{S_G}, {14*64}"))
        a(salu(f"s_lshl_b32 s{S_T1}, s{S_W}, 4")); a(salu(f"s_add_u32 s{S_T1}, s{S_T1}, s{S_H}")); a(salu(f"s_add_u32 s50, s{S_T0}, s{S_T1}"))
        a(salu(f"s_lshl_b32 s{S_T1}, s{S_H}, 2")); a(salu(f"s_add_u32 s{S_T1}, s{S_T1}, s{S_W}")); a(salu(f"s_add_u32 s51, s{S_T0}, s{S_T1}"))
        a(salu(f"s_add_u32 s51, s51, {CONS_OFF}"))
        a(valu(f"v_min_u32 v1, 13, v{V_LANE}", [f"v{V_LANE}"], ["v1"])); a(valu("v_lshlrev_b32 v1, 6, v1", ["v1"], ["v1"]))
        a(valu("v_mov_b32 v2, 0", [], ["v2"]))
        for sr in ("s50", "s51"):
            a(tag(I(f"buffer_store_byte v2, v1, s[{S_FL}:{S_FL+3}], {sr} offen", "vst", ["v1", "v2"], data=["v2"]), "reset"))
    if OPT.tlbwarm:
        a(valu("v_mov_b32 v134, 0", [], ["v134"]))
        items = [(S_K, "0"), (S_V, "0"), (S_WO, "0")]
        a(salu(f"s_mul_i32 s50, s{S_G}, {OPT.ring * 262144}")); items.append((S_RG, "s50"))
        a(salu(f"s_mul_i32 s51, s{S_B}, {256*896*2}")); items.append((S_OUT, "s51"))
        for n, (srd_, so) in enumerate(items[:OPT.tlbwarm]):
            a(tag(bload(135 + n, 1, 134, srd_, so, 0), "tlb"))
    return o

def add_lgkm_waits(g, cons, carried):
    seq = [(-1, regs) for regs in carried]
    for k in range(g.n):
        if g.mem[k] is not None and g.mem[k].kind == "ds": seq.append((k, g.mem[k].wr))
    lead = None
    for k, regs in cons:
        late = [n for n, (gap, w) in enumerate(seq) if gap == k - 1 and gap >= 0 and set(w) & set(regs)]
        assert not late, f"DS for MFMA {k} issued in gap {k-1}"
        idx = [n for n, (gap, w) in enumerate(seq) if gap < max(k - 1, 0) and set(w) & set(regs)]
        if not idx: continue
        last = max(idx)
        after = sum(1 for n, (gap, w) in enumerate(seq) if n > last and gap < max(k - 1, 0))
        assert after <= 15, (k, after)
        if k == 0: lead = wait_lgkm(after)
        else: g.pre[k - 1].insert(0, wait_lgkm(after))
    out = len(carried)
    if lead is not None: out = min(out, lead.meta["lgkm"])
    for k in range(g.n):
        for x in g.pre[k]:
            if "lgkm" in x.meta: out = min(out, x.meta["lgkm"])
        if g.mem[k] is not None and g.mem[k].kind == "ds":
            if out >= 14:
                g.pre[k].insert(0, wait_lgkm(8)); out = 8
            out += 1
    return lead

def place_vmem(g, gap, scalars, d, hi=None, stack=False, space=False):
    k = max(gap, 1 if stack else len(scalars))
    hi = g.n if hi is None else hi
    isdma = lambda x: x is not None and x.kind == "dma"
    while True:
        assert k < hi, f"no gap for {d.text}"
        near = OPT.vm_space and any(0 <= k + dd < g.n and dd != 0 and g.mem[k + dd] is not None and g.mem[k + dd].kind in ("vst", "vld", "dma")
                                    for dd in range(-OPT.vm_space, OPT.vm_space + 1))
        if g.mem[k] is None and not g.vec[k] and len(g.pre[k]) <= 1 and not (near and space):
            if stack:
                if not isdma(g.mem[k - 1]) and len(g.pre[k - 1]) + len(scalars) <= 3 and not any(x.kind == "barrier" for x in g.pre[k - 1]): break
            elif all(not g.pre[k - 1 - n] and not isdma(g.mem[k - 1 - n]) for n in range(len(scalars))): break
        k += 1
    if stack:
        for sc in scalars: g.put_pre(k - 1, sc)
    else:
        for n, sc in enumerate(scalars): g.put_pre(k - len(scalars) + n, sc)
    g.put_mem(k, d)
    return k

def put_scalar(g, gap, *ins):
    k = gap
    while g.pre[k]: k += 1
    g.pre[k] = list(ins)
    return k

def place_chain(g, ops, lo, hi):
    left = []
    for ins in ops:
        k = g.place_vec(ins, lo, hi) if (not left and lo < hi) else None
        if k is None: left.append(ins)
        else: lo = k + 1 if ins.kind == "trans" else k
    return lo, left

class Op:
    def __init__(self, ins, rel, dl, preds=()):
        self.ins = ins; self.rel = rel; self.dl = dl; self.preds = list(preds); self.gap = None

def list_schedule(g, ops, lo=0, hi=None):
    hi = g.n if hi is None else hi
    todo = list(ops)
    for k in range(lo, hi):
        while True:
            free = g.free_vec(k)
            if free <= 0: break
            ready = [x for x in todo if x.rel <= k and all(p.gap is not None and p.gap + d <= k for p, d in x.preds)]
            tr = [x for x in ready if x.ins.kind == "trans"]
            pl = [x for x in ready if x.ins.kind != "trans"]
            pick = None
            can_tr = free == 2 and g.mem[k] is None and not g.vec[k]
            if can_tr and tr: pick = min(tr, key=lambda x: x.dl)
            if pl:
                best = min(pl, key=lambda x: x.dl)
                if pick is None or (best.dl + 6 < pick.dl): pick = best
            if pick is None: break
            g.vec[k].append(pick.ins); pick.gap = k; todo.remove(pick)
    late = [x for x in ops if x.gap is not None and x.gap > x.dl]
    assert not late, [(x.ins.text, x.gap, x.dl) for x in late]
    return todo

def sm_ops(tile, kb, qb, rel, dl):
    i = sm_group(tile, kb, qb)
    f = [Op(i[0], rel, dl - 6), Op(i[1], rel, dl - 6), Op(i[4], rel, dl - 5), Op(i[5], rel, dl - 5)]
    x = [Op(i[2], rel, dl - 4, [(f[0], 1)]), Op(i[3], rel, dl - 4, [(f[1], 1)]), Op(i[6], rel, dl - 3, [(f[2], 1)]), Op(i[7], rel, dl - 3, [(f[3], 1)])]
    ad = [Op(i[8], rel, dl, [(x[0], 1)]), Op(i[9], rel, dl, [(x[1], 1)]), Op(i[11], rel, dl, [(x[2], 1)]), Op(i[12], rel, dl, [(x[3], 1)])]
    cv = [Op(i[10], rel, dl, [(x[0], 1), (x[1], 1)]), Op(i[13], rel, dl, [(x[2], 1), (x[3], 1)])]
    return f + x + ad + cv

def exposed(ops):
    o = []
    for n, ins in enumerate(ops):
        o.append(ins)
        if ins.kind == "trans" and n + 1 < len(ops) and ops[n + 1].kind != "trans": o.append(nop(0))
    return o

def conv_ops(acc, d, t):
    return [valu(f"v_accvgpr_read_b32 v{d}, a{acc}", [f"a{acc}"], [f"v{d}"]),
            valu(f"v_accvgpr_read_b32 v{t}, a{acc+1}", [f"a{acc+1}"], [f"v{t}"]),
            valu(f"v_accvgpr_read_b32 v{d+1}, a{acc+2}", [f"a{acc+2}"], [f"v{d+1}"]),
            valu(f"v_accvgpr_read_b32 v{t+1}, a{acc+3}", [f"a{acc+3}"], [f"v{t+1}"]),
            valu(f"v_cvt_pk_bf16_f32 v{d}, v{d}, v{t}", [f"v{d}", f"v{t}"], [f"v{d}"]),
            valu(f"v_cvt_pk_bf16_f32 v{d+1}, v{d+1}, v{t+1}", [f"v{d+1}", f"v{t+1}"], [f"v{d+1}"])]

def xlane_reduce(regs, op, tmp):
    o = []
    for swap in ("v_permlane32_swap_b32", "v_permlane16_swap_b32"):
        for n, r in enumerate(regs): o.append(valu(f"v_mov_b32 v{tmp+n}, v{r}", [f"v{r}"], [f"v{tmp+n}"]))
        o.append(nop(1))
        for n, r in enumerate(regs):
            o.append(valu(f"{swap} v{r}, v{tmp+n}", [f"v{r}", f"v{tmp+n}"], [f"v{r}", f"v{tmp+n}"]))
        o.append(nop(1))
        for n, r in enumerate(regs):
            o.append(valu(f"{op} v{r}, v{r}, v{tmp+n}", [f"v{r}", f"v{tmp+n}"], [f"v{r}"]))
    return o

def wpairs(): return [(L_X, L_X + 16384), (vslot(1), kslot(3)), (vslot(2), vslot(3))]
def wslot(tile):
    p = wpairs(); return p[(tile // 2) % len(p)][tile % 2]
XBUF = [V_S, V_P]
def xfrag(qb, cs): return XBUF[(cs // 2) & 1] + ((cs % 2) * 4 + qb) * 4
V_XD = [128, 129]
V_XR = [130, 131]
S_XB = 34
S_XCUR = 35
def x_setup():
    o = []; a = o.append
    L = f"v{V_LANE}"
    a(salu(f"s_and_b32 s{S_T1}, s{S_W}, 1")); a(salu(f"s_lshl_b32 s{S_T1}, s{S_T1}, 13"))
    a(salu(f"s_cmp_lt_u32 s{S_W}, 2")); a(salu(f"s_cselect_b32 s{S_XB}, 2, 4")); a(salu(f"s_lshl_b32 s{S_XB}, s{S_XB}, 14"))
    a(salu(f"s_add_u32 s{S_XB}, s{S_XB}, s{S_T1}"))
    assert kslot(2) == 2 << 14 and vslot(0) == 4 << 14
    a(valu(f"v_lshrrev_b32 v1, 3, {L}", [L], ["v1"])); a(valu(f"v_and_b32 v2, 7, {L}", [L], ["v2"]))
    a(valu(f"v_lshl_add_u32 v3, s{S_W}, 6, v1", ["v1", f"s{S_W}"], ["v3"]))
    a(valu("v_mul_u32_u24 v3, 896, v3", ["v3"], ["v3"]))
    a(valu("v_lshrrev_b32 v1, 1, v1", ["v1"], ["v1"]))
    for par in range(2):
        r = V_XD[par]
        a(valu(f"v_or_b32 v{r}, {4*par}, v1", ["v1"], [f"v{r}"]))
        a(valu(f"v_xor_b32 v{r}, v{r}, v2", [f"v{r}", "v2"], [f"v{r}"]))
        a(valu(f"v_lshl_add_u32 v{r}, v{r}, 4, v3", [f"v{r}", "v3"], [f"v{r}"]))
        a(valu(f"v_add_u32 v{V_XR[par]}, s{S_XB}, v{V_KA[par]}", [f"v{V_KA[par]}"], [f"v{V_XR[par]}"]))
    return o
def x_items(j):
    out = []
    for i in range(8):
        sreg = S_T2 + (i & 1)
        sc = []
        if i == 0 and j > 0: sc.append(salu(f"s_add_u32 s{S_XCUR}, s{S_XCUR}, s{S_XSTEP}", [f"s{S_XCUR}"], [f"s{S_XCUR}"]))
        sc.append(salu(f"s_add_u32 s{sreg}, s{S_XCUR}, {i*7168}", [f"s{S_XCUR}"], [f"s{sreg}"]))
        sc.append(salu(f"s_add_u32 m0, s{S_XB}, {i*1024}", [f"s{S_XB}"], ["m0"]))
        out.append((sc, tag(dma(V_XD[i & 1], S_X, f"s{sreg}", 0, OPT.x_flags), f"x{j}")))
    return out
def x_read(qb, cs): return ds_read128("v", xfrag(qb, cs), V_XR[cs & 1], qb * 2048)
def w_read(dbp, cs, jj):
    s, e = dbp >> 1, dbp & 1
    base = wslot(cs); win = base // 65536
    off = base - win * 65536 + (s >> 1) * 4096 + jj * 512 + e * 8
    return ds_read_tr("v", V_POOL + 4 * ((2 * dbp + (cs & 1)) % 8) + 2 * jj, V_WA[win][s & 1], off)

V_PF = 28
def coop_setup():
    o = []; a = o.append
    a(salu(f"s_mul_i32 s{S_T1}, s{S_H}, {112*128}"))
    a(salu(f"s_lshl_b32 s{S_T2}, s{S_W}, 12")); a(salu(f"s_add_u32 s{S_T1}, s{S_T1}, s{S_T2}"))
    a(valu(f"v_and_b32 v{V_PF}, 31, v{V_LANE}", [f"v{V_LANE}"], [f"v{V_PF}"]))
    a(valu(f"v_lshlrev_b32 v{V_PF}, 7, v{V_PF}", [f"v{V_PF}"], [f"v{V_PF}"]))
    a(valu(f"v_add_u32 v{V_PF}, s{S_T1}, v{V_PF}", [f"v{V_PF}"], [f"v{V_PF}"]))
    return o
def coop_x():
    return [tag(bload(V_PF + 1, 1, V_PF, S_X, "0", 0, OPT.pf_flags), "pf")]

V_PFW = 132
def coop_w_setup():
    o = []; a = o.append
    L = f"v{V_LANE}"
    a(salu(f"s_lshr_b32 s{S_T1}, s2, 7")); a(salu(f"s_and_b32 s{S_T1}, s{S_T1}, 1")); a(salu(f"s_lshl_b32 s{S_T1}, s{S_T1}, 5"))
    a(salu(f"s_lshl_b32 s{S_T2}, s{S_W}, 3")); a(salu(f"s_add_u32 s{S_T1}, s{S_T1}, s{S_T2}"))
    a(valu(f"v_bfe_u32 v{V_PFW}, {L}, 2, 3", [L], [f"v{V_PFW}"])); a(valu(f"v_add_u32 v{V_PFW}, s{S_T1}, v{V_PFW}", [f"v{V_PFW}"], [f"v{V_PFW}"]))
    a(valu(f"v_lshlrev_b32 v{V_PFW}, 13, v{V_PFW}", [f"v{V_PFW}"], [f"v{V_PFW}"]))
    a(valu(f"v_and_b32 v{V_PFW+1}, 3, {L}", [L], [f"v{V_PFW+1}"]))
    a(valu(f"v_lshl_add_u32 v{V_PFW}, v{V_PFW+1}, 7, v{V_PFW}", [f"v{V_PFW}", f"v{V_PFW+1}"], [f"v{V_PFW}"]))
    return o
def coop_w(j):
    return [salu(f"s_mov_b32 s{S_PFO}, {j*524288}", [], [f"s{S_PFO}"])], tag(bload(V_PFW + 1, 1, V_PFW, S_WQ, f"s{S_PFO}", 0, OPT.pf_flags), "pf")
OOL = []
def kv_off(reg, t):
    if not OPT.rot: return [salu(f"s_mov_b32 s{reg}, {t*16384}", [], [f"s{reg}"])]
    return [salu(f"s_add_u32 s{reg}, s{S_ROT}, {t*16384}", [f"s{S_ROT}"], [f"s{reg}"]), salu(f"s_and_b32 s{reg}, s{reg}, 0x7ffff", [f"s{reg}"], [f"s{reg}"])]
def phase1():
    o = []; a = o.append
    NP = 3
    a(salu(f"s_lshr_b32 s{S_T1}, s2, 7")); a(salu(f"s_and_b32 s{S_T1}, s{S_T1}, {1 if OPT.rev else 0}"))
    a(salu(f"s_cmp_eq_u32 s{S_T1}, 0"))
    a(salu(f"s_cselect_b32 s{S_WCUR}, 0, {6*524288}")); a(salu(f"s_cselect_b32 s{S_T2}, 1, -1"))
    a(salu(f"s_cselect_b32 s{S_XCUR}, 0, 768"))
    a(salu(f"s_mul_i32 s{S_WSTEP}, s{S_T2}, 524288")); a(salu(f"s_mul_i32 s{S_XSTEP}, s{S_T2}, 128"))
    o += x_setup()
    if OPT.coopx: o += coop_setup() + coop_x()
    if OPT.coopw:
        o += coop_w_setup()
        for j in range(OPT.coopw_init):
            sc, d = coop_w(j); o += sc + [d]
    def w_items(j):
        out = []
        for par in range(2):
            sreg = S_WCUR if par == 0 else S_WOFF
            for m, (m0, d) in enumerate(dma_tile("W", wslot(2 * j + par), f"s{sreg}", f"W{j}")):
                sc = [m0]
                if m == 0 and par == 0 and j > 0: sc = [salu(f"s_add_u32 s{S_WCUR}, s{S_WCUR}, s{S_WSTEP}", [f"s{S_WCUR}"], [f"s{S_WCUR}"]), m0]
                if m == 0 and par == 1: sc = [salu(f"s_add_u32 s{S_WOFF}, s{S_WCUR}, 262144", [f"s{S_WCUR}"], [f"s{S_WOFF}"]), m0]
                out.append((sc, d))
        return out
    def kv_items(kind, t):
        out = []
        for m, (m0, d) in enumerate(dma_tile(kind, kslot(t) if kind == "K" else vslot(t), f"s{S_T0}", f"{kind}{t}")):
            out.append((kv_off(S_T0, t) + [m0] if m == 0 else [m0], d))
        return out
    def now(items):
        for sc, d in items:
            o.extend(sc); a(nop(0)); a(d)
    w0 = w_items(0)
    for sc, d in w0[4:]: d.meta["tag"] = "W0b"
    if OPT.xwarm:
        a(valu(f"v_lshlrev_b32 v{V_PFW}, 4, v{V_LANE}", [f"v{V_LANE}"], [f"v{V_PFW}"]))
        a(salu(f"s_mul_i32 s{S_T0}, s{S_H}, 14336")); a(salu(f"s_lshl_b32 s{S_T1}, s{S_W}, 12")); a(salu(f"s_add_u32 s{S_T0}, s{S_T0}, s{S_T1}"))
        a(salu(f"s_add_u32 m0, s{S_T1}, {kslot(0)}", [], ["m0"])); a(nop(0))
        now(w0[:4])
        a(salu(f"s_lshl_b32 s{S_T1}, s{S_W}, 12")); a(salu(f"s_add_u32 m0, s{S_T1}, {kslot(0)}", [], ["m0"])); a(nop(0))
        for i in range(4): a(tag(dma(V_PFW, S_X, f"s{S_T0}", i * 1024, OPT.x_flags), "xw"))
        now(w0[4:]); now(x_items(0))
    else:
        now(x_items(0)); now(w0[:4]); now(w0[4:])
    if OPT.coopw:
        for j in range(OPT.coopw_init, 3):
            sc, d = coop_w(j); o += sc + [d]
    o += setup_b()
    a(wait_tag("x0"))
    xr = [x_read(qb, cs) for cs in (0, 1) for qb in range(4)]
    o += xr
    a(wait_tag("W0", "reset")); a(barrier())
    if OPT.fused:
        a(salu(f"s_or_b32 s{S_T0}, s{S_XCC}, 0x80")); a(valu(f"v_mov_b32 v1, s{S_T0}", [], ["v1"])); a(valu("v_mov_b32 v2, 0", [], ["v2"]))
        a(tag(I(f"buffer_store_byte v1, v2, s[{S_DBG}:{S_DBG+3}], s{S_SIG} offen", "vst", ["v1", "v2"], data=["v1"]), "arr"))
    o += stamp("p1_first_data") + (stamp("rt_fd") if OPT.trip_stamps else [])
    def quad0(n): return V_POOL + 4 * (n % 8)
    def w_read0(n, jj):
        dbp, cs = n % 16, n // 16
        r = w_read(dbp, cs, jj)
        return ds_read_tr("v", quad0(n) + 2 * jj, int(r.rd[0][1:]), int(r.text.split("offset:")[1]))
    carried = [x.wr for x in xr]
    for n in range(3):
        for jj in range(2):
            r = w_read0(n, jj); a(r); carried.append(r.wr)
    early = {j: [] for j in range(7)}; after = {j: [] for j in range(7)}
    early[0] += w_items(1); early[1] += w_items(2)
    for j in range(NP, 7): after[j - NP + 1] += w_items(j)
    K = lambda t: kv_items("K", t)
    V = lambda t: kv_items("V", t)
    kv = {"early": {1: K(0), 2: K(1)}, "mid": {2: K(0), 3: K(1)}, "late": {3: K(0), 4: K(1)}}[OPT.kvpf]
    for j, l in kv.items(): early[j] += l
    if OPT.kvmin:
        early = {j: (w_items(1) if j == 0 else w_items(2) if j == 1 else []) for j in range(7)} if False else early
        for j in range(7): early[j] = [it for it in early[j] if not it[1].meta["tag"].startswith("K")]
        early[4] += K(0); early[5] += K(1)
        after[5] += V(0)
        after[6] += K(2) + V(1)
    elif OPT.kvspread:
        after[5] += V(0)
        early[6] += K(2) + V(1)
        after[6] += K(3)
    else:
        after[5] += V(0)
        early[6] += K(2) + V(1) + K(3)
        after[6] += V(2)
    for j in range(7):
        ms = []
        if j == 0:
            for n in range(32):
                for qb in range(4):
                    acc = ((n % 16) * 4 + qb) * 4
                    first = n < 16
                    ms.append(mfma("a", acc, "v", quad0(n), "v", xfrag(qb, n // 16), None if first else "a", None if first else acc))
        else:
            for dbp in range(16):
                for qb in range(4):
                    for e2 in range(2):
                        acc = (dbp * 4 + qb) * 4
                        ms.append(mfma("a", acc, "v", V_POOL + 4 * ((2 * dbp + e2) % 8), "v", xfrag(qb, 2 * j + e2), "a", acc))
        g = Gaps(ms)
        if j == 0:
            for n in range(3, 32):
                for jj in range(2): g.put_mem(4 * n - 12 + 2 * jj, w_read0(n, jj))
        else:
            for dbp in range(3, 16):
                for n, (cs, jj) in enumerate([(2*j, 0), (2*j, 1), (2*j+1, 0), (2*j+1, 1)]):
                    g.put_mem(8 * dbp - 24 + 2 * n, w_read(dbp, cs, jj))
        nxt = []
        if j < 6:
            for dbp in range(3):
                for n, (cs, jj) in enumerate([(2*j+2, 0), (2*j+2, 1), (2*j+3, 0), (2*j+3, 1)]):
                    r = w_read(dbp, cs, jj); g.put_mem(104 + (1 if j == 0 else 0) + 8 * dbp + 2 * n, r); nxt.append(r.wr)
        XG = OPT.x_rd_gap if j > 0 else OPT.x_rd_gap0
        xreads = []
        if j < 6:
            for n, (cs, qb) in enumerate([(cs, qb) for cs in (2*j+2, 2*j+3) for qb in range(4)]):
                r = x_read(qb, cs); g.put_mem(XG + 2 * n, r); xreads.append(r)
        if j == 0:
            cons = [(4 * n, R("v", quad0(n), 4) + (R("v", V_S, 32) if n == 0 else [])) for n in range(32)]
        else:
            cons = [(8 * dbp, R("v", V_POOL + 4 * ((2 * dbp) % 8), 8)) for dbp in range(16)]
        if j < 6: cons.append((XG + 24, [w for r in xreads for w in r.wr]))
        cons.sort()
        lead = add_lgkm_waits(g, cons, carried)
        if j < 6:
            k = XG - 2
            while g.pre[k]: k -= 1
            g.pre[k] = [wait_tag(f"x{j+1}")]
        tags = [f"W{j+1}"] if j < 6 else ["K0"]
        k = 100
        while g.pre[k]: k -= 1
        g.pre[k] = [wait_tag(*tags), barrier()] if not OPT.p1_nowait else [barrier()]
        kb = k
        gp = 1
        if OPT.coopw and j + 3 <= 6:
            sc, d = coop_w(j + 3); gp = place_vmem(g, 2, sc, d, kb) + 1
        if j == 0:
            for sc, d in x_items(1): gp = place_vmem(g, gp, sc, d, XG - 3, stack=True) + 2
            k = 48
            while g.pre[k]: k -= 1
            g.pre[k] = [wait_tag("W0b"), barrier()]
            assert k < 52
        for sc, d in early[j]: gp = place_vmem(g, gp + len(sc) - 1 + (16 if (j == 6 and OPT.kvspread and gp == 1) else 0), sc, d, kb) + (OPT.early_step if j != 6 else (9 if OPT.kvspread else 7))
        if j < 5:
            gx = max(XG + 25, gp)
            for sc, d in x_items(j + 2): gx = place_vmem(g, gx, sc, d, stack=True) + 2
            gpa = max(kb + 2, gx)
        else: gpa = kb + 2
        for sc, d in after[j]: gpa = place_vmem(g, gpa, sc, d, stack=True) + 1
        left = []
        if j == 6:
            for dbp in range(16):
                for qb in range(4):
                    ops = conv_ops((dbp * 4 + qb) * 4, V_Q + (qb * 8 + (dbp >> 1)) * 4 + 2 * (dbp & 1), V_CT + 2 * (qb & 1))
                    if left: left += ops
                    else:
                        _, l2 = place_chain(g, ops, 8 * dbp + 2 * qb + 1 + 5, 128); left += l2
        if lead is not None: a(lead)
        em = g.emit()
        if OPT.p1_drop:
            def keep(x):
                if x.kind in ("dma", "vld"):
                    t = x.meta.get("tag", "")
                    for c in OPT.p1_drop:
                        if t.startswith(c): return False
                return True
            em = [x for x in em if keep(x)]
        if OPT.p1_noread: em = [x for x in em if x.kind != "ds" and not (x.kind == "wait" and "lgkm" in x.meta)]
        o += em
        carried = nxt
        if OPT.p1_steps: o += stamp(f"step{j}")
        if left: a(nop(7)); o += left
    if not OPT.p1_steps: o += stamp("p1_end") + (stamp("rt_p1") if OPT.trip_stamps else [])
    return o

def k_read(t, kb, s):
    return ds_read128("v", V_POOL + 4 * s, V_KA[s & 1], (kslot(t) - L_K) + (s >> 1) * 4096 + kb * 2048)
def v_read(t, db, jj):
    return ds_read_tr("v", V_POOL + 4 * (db % 8) + 2 * jj, V_VA[db & 3], (vslot(t) - L_V) + (db >> 2) * 4096 + jj * 2048)
def Sreg(kb, qb): return V_S + (kb * 4 + qb) * 4
def Preg(buf, qb): return V_P + buf * 16 + qb * 4
def qk_mfmas():
    ms = []
    for i in range(64):
        kb, sp, qb, e = i >> 5, (i >> 3) & 3, (i >> 1) & 3, i & 1
        s = 2 * sp + e; d = Sreg(kb, qb)
        ms.append(mfma("v", d, "v", V_POOL + 4 * s, "v", V_Q + (qb * 8 + s) * 4, None if s == 0 else "v", None if s == 0 else d))
    return ms
def pv_mfmas(t, first):
    ms = []
    for i in range(64):
        db, qb = i >> 2, i & 3
        acc = (db * 4 + qb) * 4
        ms.append(mfma("a", acc, "v", V_POOL + 4 * (db % 8), "v", Preg(t & 1, qb), None if first else "a", None if first else acc))
    return ms
def sm_group(tile, kb, qb):
    s = Sreg(kb, qb); p = Preg(tile & 1, qb) + 2 * kb; mc = V_MC + qb; l = V_L + qb
    f = lambda r: valu(f"v_fma_f32 v{s+r}, v{s+r}, s{S_C}, v{mc}", [f"v{s+r}", f"v{mc}", f"s{S_C}"], [f"v{s+r}"])
    x = lambda r: trans(f"v_exp_f32 v{s+r}, v{s+r}", [f"v{s+r}"], [f"v{s+r}"])
    ad = lambda r: valu(f"v_add_f32 v{l}, v{l}, v{s+r}", [f"v{l}", f"v{s+r}"], [f"v{l}"])
    cv = lambda r: valu(f"v_cvt_pk_bf16_f32 v{p+r//2}, v{s+r}, v{s+r+1}", [f"v{s+r}", f"v{s+r+1}"], [f"v{p+r//2}"])
    return [f(0), f(1), x(0), x(1), f(2), f(3), x(2), x(3), ad(0), ad(1), cv(0), ad(2), ad(3), cv(2)]

def pre_iter():
    o = []; a = o.append
    carried = []
    for s in range(8):
        r = k_read(0, 0, s); a(r); carried.append(r.wr)
    g = Gaps(qk_mfmas())
    for s in range(8): g.put_mem(8 * (s >> 1) + 10 + 4 * (s & 1), k_read(0, 1, s))
    cons = [(8 * p, R("v", V_POOL + 8 * (p % 4), 8)) for p in range(8)]
    a(add_lgkm_waits(g, cons, carried))
    if OPT.kvmin or OPT.kvspread:
        gp = 3
        for kind, t in ((("K", 3), ("V", 2)) if OPT.kvmin else (("V", 2),)):
            for m, (m0, d) in enumerate(dma_tile(kind, kslot(t) if kind == "K" else vslot(t), f"s{S_T0}", f"{kind}{t}")):
                gp = place_vmem(g, gp, (kv_off(S_T0, t) if m == 0 else []) + [m0], d, stack=True) + 5
    o += g.emit()
    a(wait_tag("K1", "V0")); a(barrier())
    o += kv_off(S_KOFF, 4)
    for m0, d in dma_tile("K", kslot(4), f"s{S_KOFF}", "K4"): a(m0); a(nop(0)); a(d)
    o += kv_off(S_KOFF, 5) + kv_off(S_VOFF, 3)
    carried = []
    for s in range(8):
        r = k_read(1, 0, s); a(r); carried.append(r.wr)
    for qb in range(4):
        m = V_MC + qb; s0 = Sreg(0, qb); s1 = Sreg(1, qb)
        a(valu(f"v_max3_f32 v{m}, v{s0}, v{s0+1}, v{s0+2}", R("v", s0, 3), [f"v{m}"]))
        a(valu(f"v_max3_f32 v{m}, v{m}, v{s0+3}, v{s1}", [f"v{m}", f"v{s0+3}", f"v{s1}"], [f"v{m}"]))
        a(valu(f"v_max3_f32 v{m}, v{m}, v{s1+1}, v{s1+2}", [f"v{m}", f"v{s1+1}", f"v{s1+2}"], [f"v{m}"]))
        a(valu(f"v_max_f32 v{m}, v{m}, v{s1+3}", [f"v{m}", f"v{s1+3}"], [f"v{m}"]))
    o += xlane_reduce([V_MC + q for q in range(4)], "v_max_f32", V_SP)
    for qb in range(4):
        m = V_MC + qb
        a(valu(f"v_mul_f32 v{m}, s{S_C}, v{m}", [f"v{m}", f"s{S_C}"], [f"v{m}"]))
        a(valu(f"v_sub_f32 v{m}, 0, v{m}", [f"v{m}"], [f"v{m}"]))
        a(valu(f"v_mov_b32 v{V_L+qb}, 0", [], [f"v{V_L+qb}"]))
    for kb, qb in [(0, 0), (0, 1), (0, 2), (0, 3), (1, 0), (1, 1)]: o += exposed(sm_group(0, kb, qb))
    o += stamp("pre_iter_end")
    return o, carried

def attn_iter(t, carried, vmw, prev, cur, first=False, adv=True, loopctl=False, extra=None, loop_body=False):
    g = Gaps(qk_mfmas() + pv_mfmas(t, first))
    for s in range(8): g.put_mem(8 * (s >> 1) + 10 + 4 * (s & 1), k_read(t + 1, 1, s))
    for db in range(16):
        for jj in range(2): g.put_mem(min(64 - OPT.v_lead + 4 * db + 2 * jj, 44 + 4 * db + 2 * jj + 18), v_read(t, db, jj))
    nxt = []
    if t + 2 <= 31:
        for s, gap in zip(range(8), [108, 110, 112, 114, 116, 120, 124, 127] if OPT.v_lead >= 20 else [109, 111, 113, 115, 117, 121, 125, 127]):
            r = k_read(t + 2, 0, s); g.put_mem(gap, r); nxt.append(r.wr)
    else:
        for db in range(5):
            for jj in range(2):
                r = v_read(t + 1, db, jj); g.put_mem(108 + 4 * db + 2 * jj, r); nxt.append(r.wr)
    cons = [(8 * p, R("v", V_POOL + 8 * (p % 4), 8)) for p in range(8)]
    cons += [(64 + 4 * db, R("v", V_POOL + 4 * (db % 8), 4)) for db in range(16)]
    lead = add_lgkm_waits(g, cons, carried)
    kb = 98
    while g.pre[kb]: kb -= 1
    g.pre[kb] = [vmw, barrier()]
    if OPT.bar_stamps and loop_body:
        g.pre[kb] = [raw("s_memtime s[94:95]", "salu"), vmw, raw("s_memtime s[96:97]", "salu"), barrier(), raw("s_memtime s[98:99]", "salu"),
                     raw("s_waitcnt lgkmcnt(0)", "wait", lgkm=0),
                     salu("s_sub_u32 s96, s96, s94"), salu("s_add_u32 s92, s92, s96"),
                     salu("s_sub_u32 s98, s98, s94"), salu("s_add_u32 s93, s93, s98")]
    gp_prev, gp_cur = OPT.dma_gaps
    placed = [place_vmem(g, gap, [m0], d, kb) for gap, (m0, d) in zip(gp_prev, prev)]
    for gap, (m0, d) in zip(gp_cur, cur): place_vmem(g, gap, [m0], d)
    if adv:
        for reg, srd, at in ((S_VOFF, S_V, (placed[OPT.nv_prev - 1] if OPT.nv_prev else 1) + 1), (S_KOFF, S_K, placed[-1] + 1)):
            k = put_scalar(g, at, salu(f"s_add_u32 s{reg}, s{reg}, 16384", [f"s{reg}"], [f"s{reg}"]))
            k = put_scalar(g, k + 1, salu(f"s_and_b32 s{reg}, s{reg}, 0x7ffff", [f"s{reg}"], [f"s{reg}"]))
            assert k < 100
        if loopctl:
            first_k = placed[-4]
            k = put_scalar(g, 2, salu(f"s_cmp_eq_u32 s{S_LOOP}, 1", [f"s{S_LOOP}"], ["scc"]),
                           salu(f"s_cselect_b32 s{S_K+2}, 0, 524288", ["scc"], [f"s{S_K+2}"]))
            assert k < first_k - 1
    if loopctl:
        k = put_scalar(g, 119, salu(f"s_sub_u32 s{S_LOOP}, s{S_LOOP}, 1", [f"s{S_LOOP}"], [f"s{S_LOOP}"]))
        k = put_scalar(g, k + 1, salu(f"s_cmp_lg_u32 s{S_LOOP}, {OPT.loop_exit}", [f"s{S_LOOP}"], ["scc"]))
        assert k <= 127
        for kk in range(k + 1, 128):
            assert all(x.kind == "wait" for x in g.pre[kk]), "SCC clobbered before the loop branch"
    if extra: extra(g, kb)
    ops = []
    for qb in (2, 3): ops += sm_ops(t, 1, qb, 0, 31 + 2 * qb)
    for qb in range(4): ops += sm_ops(t + 1, 0, qb, 25 + 2 * qb + 6, 100 + 6 * qb)
    for qb in (0, 1): ops += sm_ops(t + 1, 1, qb, 57 + 2 * qb + 6, 124 + 3 * qb)
    left = list_schedule(g, ops)
    if OPT.vfirst:
        cand = [k for k in range(128) if g.mem[k] is not None and g.mem[k].kind == "ds" and len(g.vec[k]) == 1 and g.vec[k][0].kind == "valu"
                and not (set(g.vec[k][0].wr) & set(g.mem[k].rd + g.mem[k].wr))]
        n = min(OPT.vfirst, len(cand))
        for i in range(n): g.vec_first.add(cand[(i * len(cand)) // n])
    if OPT.pad_iter:
        for n in range(OPT.pad_iter): g.post[(n * 128) // OPT.pad_iter + 3].append(nop(3))
    assert not left, f"softmax groups do not fit: {len(left)} left"
    return [lead] + g.emit(), nxt

def safe_attn():
    o = []; a = o.append
    VM, VT, VA_, TMP = 20, 24, 28, 112
    a(label("L_safe_attn")); a(wait_vm(0)); a(raw("s_waitcnt lgkmcnt(0)", "wait", lgkm=0)); a(barrier())
    for r in range(256): a(valu(f"v_accvgpr_write_b32 a{r}, 0", [], [f"a{r}"]))
    for qb in range(4):
        a(valu(f"v_mov_b32 v{VM+qb}, 0xff800000", [], [f"v{VM+qb}"])); a(valu(f"v_mov_b32 v{V_L+qb}, 0", [], [f"v{V_L+qb}"]))
    a(salu(f"s_mov_b32 s{S_KOFF}, 0")); a(salu(f"s_mov_b32 s{S_LOOP}, 32"))
    a(label("L_safe_loop"))
    for kind, slot in (("K", kslot(0)), ("V", vslot(0))):
        for m0, d in dma_tile(kind, slot, f"s{S_KOFF}", "safe"): a(m0); a(nop(0)); a(d)
    a(wait_vm(0)); a(barrier())
    qk = qk_mfmas()
    for kb in range(2):
        for s_ in range(8): a(k_read(0, kb, s_))
        a(wait_lgkm(0)); o += qk[32 * kb:32 * kb + 32]
    a(nop(7)); a(nop(7))
    for qb in range(4):
        t = VT + qb; s0 = Sreg(0, qb); s1 = Sreg(1, qb)
        a(valu(f"v_max3_f32 v{t}, v{s0}, v{s0+1}, v{s0+2}", [], [])); a(valu(f"v_max3_f32 v{t}, v{t}, v{s0+3}, v{s1}", [], []))
        a(valu(f"v_max3_f32 v{t}, v{t}, v{s1+1}, v{s1+2}", [], [])); a(valu(f"v_max_f32 v{t}, v{t}, v{s1+3}", [], []))
    o += xlane_reduce([VT + q for q in range(4)], "v_max_f32", TMP)
    for qb in range(4):
        a(valu(f"v_max_f32 v{VT+qb}, v{VT+qb}, v{VM+qb}", [], []))
        a(valu(f"v_sub_f32 v{VA_+qb}, v{VM+qb}, v{VT+qb}", [], [])); a(valu(f"v_mul_f32 v{VA_+qb}, s{S_C}, v{VA_+qb}", [], []))
        a(trans(f"v_exp_f32 v{VA_+qb}, v{VA_+qb}", [], [])); a(valu(f"v_mov_b32 v{VM+qb}, v{VT+qb}", [], []))
        a(valu(f"v_mul_f32 v{V_MC+qb}, s{S_C}, v{VT+qb}", [], [])); a(valu(f"v_sub_f32 v{V_MC+qb}, 0, v{V_MC+qb}", [], []))
        a(valu(f"v_mul_f32 v{V_L+qb}, v{V_L+qb}, v{VA_+qb}", [], []))
    for r in range(256):
        qb = (r >> 2) & 3; t = TMP + (r & 7)
        a(valu(f"v_accvgpr_read_b32 v{t}, a{r}", [], [])); a(valu(f"v_mul_f32 v{t}, v{t}, v{VA_+qb}", [], [])); a(valu(f"v_accvgpr_write_b32 a{r}, v{t}", [], []))
    for kb in range(2):
        for qb in range(4): o += exposed(sm_group(0, kb, qb))
    pv = pv_mfmas(0, False)
    for half in range(2):
        for db in range(8 * half, 8 * half + 8):
            for jj in range(2):
                a(v_read(0, db, jj))
            if db % 4 == 3: a(wait_lgkm(0))
        a(nop(1)); o += pv[32 * half:32 * half + 32]
    a(salu(f"s_add_u32 s{S_KOFF}, s{S_KOFF}, 16384")); a(salu(f"s_sub_u32 s{S_LOOP}, s{S_LOOP}, 1")); a(salu(f"s_cmp_lg_u32 s{S_LOOP}, 0"))
    a(barrier()); a(raw("s_cbranch_scc1 L_safe_loop", "branch"))
    a(nop(7)); a(nop(7))
    o += xlane_reduce([V_L + q for q in range(4)], "v_add_f32", TMP)
    for qb in range(4): a(trans(f"v_rcp_f32 v{V_L+qb}, v{V_L+qb}", [], []))
    a(nop(0))
    for db in range(16):
        for qb in range(4):
            o += conv_ops((db * 4 + qb) * 4, V_Q + (qb * 8 + (db >> 1)) * 4 + 2 * (db & 1), V_SP + 8 + 2 * (qb & 1))
    o += wo_setup()
    if OPT.fused: o += grp_setup() + [nop(1), mode_load()] + ring_scalars()
    for j in range(4):
        for sc, d in wo_dma(j): o += sc + [nop(0), d]
    a(wait_vm(0)); a(raw("s_branch L_p3_entry", "branch"))
    return o

def last_iter(carried):
    o = []; a = o.append
    for qb in (2, 3): o += exposed(sm_group(31, 1, qb))
    o += xlane_reduce([V_L + q for q in range(4)], "v_add_f32", V_SP)
    a(salu(f"s_mov_b32 s{S_T0}, 0x{f32bits(L_LIMIT):08x}"))
    for qb in range(4):
        a(valu(f"v_cmp_nge_f32 s[{50+2*(qb&1)}:{51+2*(qb&1)}], s{S_T0}, v{V_L+qb}", [f"v{V_L+qb}"], [f"s{50+2*(qb&1)}", f"s{51+2*(qb&1)}"]))
        if qb & 1:
            a(nop(0)); a(salu("s_or_b64 s[50:51], s[50:51], s[52:53]"))
            a(salu("s_mov_b64 s[54:55], s[50:51]") if qb == 1 else salu("s_or_b64 s[54:55], s[54:55], s[50:51]"))
    a(salu("s_cselect_b32 s50, 1, 0"))
    a(salu(f"s_lshl_b32 s51, s{S_W}, 2")); a(salu(f"s_add_u32 s51, s51, {L_VOTE}"))
    a(valu(f"v_mov_b32 v{V_SP}, s50", [], [f"v{V_SP}"])); a(valu(f"v_mov_b32 v{V_SP+1}, s51", [], [f"v{V_SP+1}"]))
    a(I(f"ds_write_b32 v{V_SP+1}, v{V_SP}", "ds", [f"v{V_SP}", f"v{V_SP+1}"], []))
    carried = carried + [[]]
    for qb in range(4): a(trans(f"v_rcp_f32 v{V_L+qb}, v{V_L+qb}", [f"v{V_L+qb}"], [f"v{V_L+qb}"]))
    a(nop(0))
    g = Gaps(pv_mfmas(31, False))
    for db in range(5, 8):
        for jj in range(2): g.put_mem(4 * (db - 5) + 2 * jj, v_read(31, db, jj))
    for db in range(8, 16):
        for jj in range(2): g.put_mem(12 + 4 * (db - 8) + 2 * jj, v_read(31, db, jj))
    cons = [(4 * db, R("v", V_POOL + 4 * (db % 8), 4)) for db in range(16)]
    lead = add_lgkm_waits(g, cons, carried)
    gp = put_wo(g, 2, 2, step=0)
    put_wo(g, 3, gp, step=0)
    left = []
    for db in range(16):
        for qb in range(4):
            ops = conv_ops((db * 4 + qb) * 4, V_Q + (qb * 8 + (db >> 1)) * 4 + 2 * (db & 1), V_SP + 8 + 2 * (qb & 1))
            if left: left += ops
            else:
                _, l2 = place_chain(g, ops, 4 * db + qb + 5, 64); left += l2
    a(lead); o += g.emit()
    a(nop(7)); o += left
    return o

WOBUF = [L_X, L_K, L_K + 32768, L_V, L_V + 32768, L_X, L_K]
V_DWO = 3; V_STO = V_DV
V_FR3 = 32; V_ACC3 = V_P; V_STG = 16
def wo_dma(j):
    out = []
    for i in range(8):
        sreg = S_T0 + (i & 1)
        out.append(([salu(f"s_mov_b32 s{sreg}, {j*128 + i*32*896}", [], [f"s{sreg}"]),
                     salu(f"s_add_u32 m0, s{S_W1K}, {WOBUF[j] + i*4096}", [f"s{S_W1K}"], ["m0"])],
                    tag(dma(V_DWO, S_WO, f"s{sreg}", 0, OPT.wo_flags), f"wo{j}")))
    return out
A_WOS = 100
V_WOW = 39
def wo_stage_loads(j):
    out = []
    for i in range(8):
        sreg = S_T0 + (i & 1)
        out.append(([salu(f"s_mov_b32 s{sreg}, {j*128 + i*32*896}", [], [f"s{sreg}"])],
                    tag(bload_f("a", A_WOS + 32 * (j - 5) + 4 * i, 4, V_DWO, S_WO, f"s{sreg}", 0, OPT.wo_flags), f"wos{j}")))
    return out
def wo_stage_write(j, i):
    r = A_WOS + 32 * (j - 5) + 4 * i
    return I(f"ds_write_b128 v{V_WOW + (j - 5) * 0}, {rng('a', r, 4)} offset:{i*4096}", "ds", [f"v{V_WOW}"] + R("a", r, 4), [])
def wo_setup():
    o = []; a = o.append
    L = f"v{V_LANE}"
    a(valu(f"v_lshrrev_b32 v1, 3, {L}", [L], ["v1"])); a(valu(f"v_and_b32 v2, 7, {L}", [L], ["v2"]))
    a(valu(f"v_lshl_add_u32 v3, s{S_W}, 3, v1", ["v1", f"s{S_W}"], ["v3"]))
    a(valu("v_bfe_u32 v1, v1, 1, 2", ["v1"], ["v1"])); a(valu("v_lshlrev_b32 v1, 1, v1", ["v1"], ["v1"]))
    a(valu("v_xor_b32 v1, v1, v2", ["v1", "v2"], ["v1"])); a(valu("v_lshlrev_b32 v1, 4, v1", ["v1"], ["v1"]))
    a(valu("v_mul_u32_u24 v3, 896, v3", ["v3"], ["v3"]))
    a(valu(f"v_add_u32 v{V_DWO}, v3, v1", ["v3", "v1"], [f"v{V_DWO}"]))
    return o
V_WOT = 2
def wo_touch_setup():
    return [valu(f"v_lshl_add_u32 v{V_WOT}, s{S_W}, 6, v{V_LANE}", [f"v{V_LANE}"], [f"v{V_WOT}"]),
            valu(f"v_mul_u32_u24 v{V_WOT}, 896, v{V_WOT}", [f"v{V_WOT}"], [f"v{V_WOT}"])]
def wo_touch(j): return tag(bload(1, 1, V_WOT, S_WO, "0", j * 128, OPT.wt_flags), "wt")
def l2warm_setup():
    o = []; a = o.append
    L = f"v{V_LANE}"
    a(valu(f"v_min_u32 v20, 13, {L}", [L], ["v20"]))
    a(valu("v_cmp_lt_u32 vcc, 6, v20", ["v20"], ["vcc"])); a(valu("v_lshlrev_b32 v20, 7, v20", ["v20"], ["v20"]))
    a(valu(f"v_add_u32 v21, {CONS_OFF - 7*128}, v20", ["v20"], ["v21"]))
    a(valu("v_cndmask_b32 v20, v20, v21, vcc", ["v20", "v21", "vcc"], ["v20"]))
    a(valu(f"v_min_u32 v21, 27, {L}", [L], ["v21"])); a(salu(f"s_mul_i32 s50, s{S_W}, 28")); a(valu("v_add_u32 v21, s50, v21", ["v21"], ["v21"]))
    a(valu("v_mul_u32_u24 v22, 9363, v21", ["v21"], ["v22"])); a(valu("v_lshrrev_b32 v22, 16, v22", ["v22"], ["v22"]))
    a(valu("v_mul_u32_u24 v23, 7, v22", ["v22"], ["v23"])); a(valu("v_sub_u32 v21, v21, v23", ["v21", "v23"], ["v21"]))
    a(valu("v_mul_u32_u24 v22, 1792, v22", ["v22"], ["v22"])); a(valu("v_lshl_add_u32 v21, v21, 7, v22", ["v21", "v22"], ["v21"]))
    a(salu(f"s_lshl_b32 s50, s{S_B}, 8")); a(salu(f"s_lshl_b32 s51, s{S_H}, 4")); a(salu("s_add_u32 s50, s50, s51"))
    a(salu("s_mul_i32 s50, s50, 1792")); a(salu(f"s_mul_i32 s51, s{S_BR}, 896")); a(salu(f"s_add_u32 s{S_WARM}, s50, s51"))
    a(salu(f"s_mul_i32 s{S_WARM+1}, s{S_G}, {14*64}"))
    return o
def l2warm_loads():
    return [tag(bload(22, 1, 20, S_FL, f"s{S_WARM+1}", 0), "wt"), tag(bload(23, 1, 21, S_OUT, f"s{S_WARM}", 0), "wt")]
def put_wo(g, j, start, hi=None, step=3):
    gp = start
    for sc, d in wo_dma(j): gp = place_vmem(g, gp, sc, d, hi) + step
    return gp
def va_shift(delta):
    t = (lambda r: f"v_add_u32 v{r}, {delta}, v{r}") if delta >= 0 else (lambda r: f"v_subrev_u32 v{r}, {-delta}, v{r}")
    return [valu(t(r), [f"v{r}"], [f"v{r}"]) for r in V_VA]

def part_ops(nb, qb):
    acc = V_ACC3 + 4 * ((nb * 4 + qb) % 8)
    st = V_STG + 4 * qb + 2 * (nb & 1)
    li = V_L + qb
    ops = [valu(f"v_mul_f32 v{acc+r}, v{acc+r}, v{li}", [f"v{acc+r}", f"v{li}"], [f"v{acc+r}"]) for r in range(4)]
    ops += [valu(f"v_cvt_pk_bf16_f32 v{st}, v{acc}, v{acc+1}", [f"v{acc}", f"v{acc+1}"], [f"v{st}"]),
            valu(f"v_cvt_pk_bf16_f32 v{st+1}, v{acc+2}, v{acc+3}", [f"v{acc+2}", f"v{acc+3}"], [f"v{st+1}"])]
    return ops

A_FR3 = 0; A_SEL = 224
V_POLLA, V_POLL, V_ONE, V_ZERO, V_RLD, V_OUT = 32, 33, 34, 35, 36, 37
V_RD = 40
V_GRP = V_ARR + 3
def wo_read(nb, s_, jj):
    return ds_read_tr("a", A_FR3 + 4 * (8 * (nb & 1) + s_) + 2 * jj, V_VA[nb], s_ * 4096 + jj * 2048)

V_GA = V_ARR + 2
def grp_setup():
    return [salu(f"s_lshl_b32 s{S_T0}, s{S_G}, 4"), valu(f"v_and_b32 v{V_GA}, 3, v{V_LANE}", [f"v{V_LANE}"], [f"v{V_GA}"]),
            valu(f"v_lshlrev_b32 v{V_GA}, 2, v{V_GA}", [f"v{V_GA}"], [f"v{V_GA}"]), valu(f"v_add_u32 v{V_GA}, s{S_T0}, v{V_GA}", [f"v{V_GA}"], [f"v{V_GA}"])]
V_GA3 = 38
def grp_load(dst, tg, ga=V_GA): return tag(bload(dst, 1, ga, S_DBG, "0", 0, "sc1"), tg)
def splat(x): return x * 0x01010101
def mode_load(): return grp_load(V_ARR, "grp")
def mode_check():
    o = []; a = o.append
    a(salu(f"s_or_b32 s{S_T0}, s{S_XCC}, 0x80")); a(salu(f"s_mul_i32 s50, s{S_T0}, 0x01010101"))
    a(wait_tag("grp"))
    a(valu(f"v_and_b32 v{V_ARR}, 0x87878787, v{V_ARR}", [f"v{V_ARR}"], [f"v{V_ARR}"]))
    a(valu(f"v_cmp_eq_u32 vcc, s50, v{V_ARR}", [f"v{V_ARR}"], ["vcc"])); a(nop(0))
    a(salu("s_cmp_eq_u64 vcc, -1"))
    a(salu(f"s_cselect_b64 s[{S_LOCM}:{S_LOCM+1}], -1, 0"))
    if OPT.force_fallback: a(salu("s_cmp_eq_u32 s50, 0"))
    a(raw("s_cbranch_scc0 L_grp_far", "branch")); a(label("L_grp_ok"))
    f = [label("L_grp_far"), salu(f"s_or_b32 s{S_T0}, s{S_XCC}, 0x80"), valu(f"v_mov_b32 v{V_ARR+1}, s{S_T0}", [], []),
         valu(f"v_mov_b32 v{V_ARR+3}, 0", [], []),
         raw(f"buffer_store_byte v{V_ARR+1}, v{V_ARR+3}, s[{S_DBG}:{S_DBG+3}], s{S_SIG} offen sc1", "salu"), wait_vm(0),
         salu(f"s_mov_b32 s{S_SPIN}, {SPIN_MAX}"), label("L_grp_again"),
         salu(f"s_sub_u32 s{S_SPIN}, s{S_SPIN}, 1"), salu(f"s_cmp_eq_u32 s{S_SPIN}, 0"), raw("s_cbranch_scc1 L_grp_ok", "branch")]
    if not OPT.force_fallback:
        f += [raw(f"buffer_load_dword v{V_ARR}, v{V_GA}, s[{S_DBG}:{S_DBG+3}], 0 offen sc1", "salu"), wait_vm(0),
              valu(f"v_and_b32 v{V_ARR}, 0x87878787, v{V_ARR}", [], []), valu(f"v_cmp_eq_u32 vcc, s50, v{V_ARR}", [], []), nop(0),
              salu("s_cmp_eq_u64 vcc, -1"), salu(f"s_cselect_b64 s[{S_LOCM}:{S_LOCM+1}], -1, 0"), raw("s_cbranch_scc1 L_grp_ok", "branch")]
    f += far_read(V_ARR)
    f += [valu(f"v_and_b32 v{V_ARR+1}, 0x80808080, v{V_ARR}", [], []), valu(f"v_cmp_eq_u32 vcc, 0x80808080, v{V_ARR+1}", [], []), nop(0),
          salu("s_and_b64 s[52:53], vcc, 15"), salu("s_cmp_eq_u64 s[52:53], 15"), raw("s_cbranch_scc0 L_grp_again", "branch"),
          valu(f"v_and_b32 v{V_ARR}, 0x87878787, v{V_ARR}", [], []), valu(f"v_cmp_eq_u32 vcc, s50, v{V_ARR}", [], []), nop(0),
          salu("s_and_b64 s[52:53], vcc, 15"), salu("s_cmp_eq_u64 s[52:53], 15"),
          salu(f"s_cselect_b64 s[{S_LOCM}:{S_LOCM+1}], -1, 0")]
    if OPT.force_fallback: f.append(salu(f"s_mov_b64 s[{S_LOCM}:{S_LOCM+1}], 0"))
    f.append(raw("s_branch L_grp_ok", "branch"))
    OOL.extend(f)
    return o
def far_read(dst, ga=V_GA):
    return [valu(f"v_mov_b32 v{dst}, 0", [], []), valu(f"v_cmp_gt_u32 vcc, 4, v{V_LANE}", [], []),
            raw("s_and_saveexec_b64 s[54:55], vcc", "salu"),
            raw(f"buffer_atomic_add v{dst}, v{ga}, s[{S_DBG}:{S_DBG+3}], 0 offen sc0 sc1", "salu"), wait_vm(0),
            raw("s_mov_b64 exec, s[54:55]", "salu")]

def p3_setup():
    L = f"v{V_LANE}"
    o = [valu(f"v_lshlrev_b32 v{V_STO}, 4, {L}", [L], [f"v{V_STO}"])]
    if OPT.fused:
        o += [valu(f"v_mov_b32 v{V_ZERO}, 0", [], [f"v{V_ZERO}"]), valu(f"v_mov_b32 v{V_GA3}, v{V_GA}", [f"v{V_GA}"], [f"v{V_GA3}"])]
    else: o += far_setup()
    return o

def far_setup():
    o = []; a = o.append
    L = f"v{V_LANE}"
    a(salu(f"s_mul_i32 s{S_PART}, s{S_G}, {7*16*16*2048}"))
    a(salu(f"s_lshl_b32 s{S_T2}, s{S_H}, 15")); a(salu(f"s_add_u32 s{S_RBASE}, s{S_PART}, s{S_T2}"))
    a(salu(f"s_lshl_b32 s{S_T2}, s{S_W}, 17")); a(salu(f"s_add_u32 s{S_PART}, s{S_PART}, s{S_T2}"))
    a(salu(f"s_lshl_b32 s{S_T2}, s{S_H}, 11")); a(salu(f"s_add_u32 s{S_PART}, s{S_PART}, s{S_T2}"))
    if not OPT.fused: return o
    a(salu(f"s_or_b32 s{S_T2}, s{S_XCC}, 0xf0")); a(valu(f"v_mov_b32 v{V_ONE}, s{S_T2}", [], [f"v{V_ONE}"]))
    a(valu(f"v_lshrrev_b32 v1, 5, {L}", [L], ["v1"])); a(valu("v_lshlrev_b32 v1, 11, v1", ["v1"], ["v1"]))
    a(valu(f"v_and_b32 v2, 31, {L}", [L], ["v2"])); a(valu(f"v_lshl_add_u32 v{V_RLD}, v2, 4, v1", ["v1", "v2"], [f"v{V_RLD}"]))
    a(salu(f"s_lshl_b32 s{S_T2}, s{S_W}, 9")); a(valu(f"v_add_u32 v{V_RLD}, s{S_T2}, v{V_RLD}", [f"v{V_RLD}"], [f"v{V_RLD}"]))
    a(valu(f"v_and_b32 v1, 15, {L}", [L], ["v1"])); a(valu(f"v_lshrrev_b32 v2, 4, {L}", [L], ["v2"]))
    a(valu("v_lshrrev_b32 v4, 3, v1", ["v1"], ["v4"])); a(valu("v_and_b32 v5, 1, v2", ["v2"], ["v5"]))
    a(valu("v_and_b32 v48, 1, v1", ["v1"], ["v48"])); a(valu("v_lshlrev_b32 v48, 4, v48", ["v48"], ["v48"]))
    a(valu("v_mov_b32 v49, 0x3f80", [], ["v49"])); a(valu("v_lshlrev_b32 v49, v48, v49", ["v48", "v49"], ["v49"]))
    a(valu("v_cmp_eq_u32 vcc, v4, v5", ["v4", "v5"], ["vcc"])); a(nop(1))
    a(valu("v_cndmask_b32 v49, 0, v49, vcc", ["v49", "vcc"], ["v49"]))
    a(valu("v_bfe_u32 v50, v1, 1, 2", ["v1"], ["v50"]))
    for r in range(4):
        a(valu(f"v_cmp_eq_u32 vcc, {r}, v50", ["v50"], ["vcc"])); a(nop(1))
        a(valu("v_cndmask_b32 v51, 0, v49, vcc", ["v49", "vcc"], ["v51"]))
        a(valu(f"v_accvgpr_write_b32 a{A_SEL+r}, v51", ["v51"], [f"a{A_SEL+r}"]))
    a(salu(f"s_lshl_b32 s{S_T2}, s{S_B}, 8")); a(salu(f"s_lshl_b32 s{S_T3}, s{S_H}, 4")); a(salu(f"s_add_u32 s{S_T2}, s{S_T2}, s{S_T3}"))
    a(valu(f"v_add_u32 v{V_OUT}, s{S_T2}, v1", ["v1"], [f"v{V_OUT}"])); a(valu(f"v_mul_u32_u24 v{V_OUT}, 896, v{V_OUT}", [f"v{V_OUT}"], [f"v{V_OUT}"]))
    a(salu(f"s_mul_i32 s{S_T2}, s{S_BR}, 448")); a(salu(f"s_lshr_b32 s{S_T3}, s{S_W}, 1")); a(salu(f"s_lshl_b32 s{S_T3}, s{S_T3}, 5"))
    a(salu(f"s_add_u32 s{S_T2}, s{S_T2}, s{S_T3}")); a(salu(f"s_and_b32 s{S_T3}, s{S_W}, 1")); a(salu(f"s_lshl_b32 s{S_T3}, s{S_T3}, 3"))
    a(salu(f"s_add_u32 s{S_T2}, s{S_T2}, s{S_T3}"))
    a(valu(f"v_add_u32 v{V_OUT}, s{S_T2}, v{V_OUT}", [f"v{V_OUT}"], [f"v{V_OUT}"]))
    a(valu(f"v_lshl_add_u32 v{V_OUT}, v5, 4, v{V_OUT}", ["v5", f"v{V_OUT}"], [f"v{V_OUT}"]))
    a(valu("v_lshrrev_b32 v4, 1, v2", ["v2"], ["v4"])); a(valu(f"v_lshl_add_u32 v{V_OUT}, v4, 2, v{V_OUT}", ["v4", f"v{V_OUT}"], [f"v{V_OUT}"]))
    a(valu(f"v_lshlrev_b32 v{V_OUT}, 1, v{V_OUT}", [f"v{V_OUT}"], [f"v{V_OUT}"]))
    return o

def handoff_far():
    o = [wait_vm(0), barrier(), raw("buffer_wbl2 sc1", "salu"), wait_vm(0), barrier(),
         raw(f"buffer_store_byte v{V_ONE}, v{V_ZERO}, s[{S_DBG}:{S_DBG+3}], s{S_SIG} offen sc1", "salu"), wait_vm(0),
         salu(f"s_mov_b32 s{S_SPIN}, {SPIN_MAX}"), label("L_far_poll"),
         salu(f"s_sub_u32 s{S_SPIN}, s{S_SPIN}, 1"), salu(f"s_cmp_eq_u32 s{S_SPIN}, 0"), raw("s_cbranch_scc1 L_far_done", "branch")]
    o += far_read(V_POLL, V_GA3)
    o += [valu(f"v_and_b32 v{V_POLL}, 0xf0f0f0f0, v{V_POLL}", [], []), valu(f"v_cmp_eq_u32 vcc, 0xf0f0f0f0, v{V_POLL}", [], []), nop(0),
          salu("s_and_b64 s[52:53], vcc, 15"), salu("s_cmp_eq_u64 s[52:53], 15"), raw("s_cbranch_scc0 L_far_poll", "branch"),
          label("L_far_done"), raw("buffer_inv sc1", "salu"), wait_vm(0)]
    return o

A_PIECE = 0; A_SEL2 = 224
def red_loads(j):
    out = []
    for i in range(8):
        sr = "s52" if i % 2 == 0 else "s53"
        out.append(([salu(f"s_add_u32 {sr}, s{S_RBASE}, {j*16*32768 + i*4096}", [f"s{S_RBASE}"], [sr])],
                    tag(bload_f("a", A_PIECE + 32 * j + 4 * i, 4, V_RLD, S_WS, sr, 0, "sc1"), f"rl{j}")))
    return out
def red_mfmas(j):
    d = V_RD + 4 * (j & 1)
    return [mfma("v", d, "a", A_SEL2, "a", A_PIECE + 32 * j + 4 * i, None if i == 0 else "v", None if i == 0 else d) for i in range(8)]
def red_out(j):
    d = V_RD + 4 * (j & 1)
    return [valu(f"v_cvt_pk_bf16_f32 v{d}, v{d}, v{d+1}", [f"v{d}", f"v{d+1}"], [f"v{d}"]),
            valu(f"v_cvt_pk_bf16_f32 v{d+1}, v{d+2}, v{d+3}", [f"v{d+2}", f"v{d+3}"], [f"v{d+1}"])], tag(bstore(d, 2, V_OUT, S_OUT, "0", j * 128), f"out{j}")

A_RING = 64; A_SEL4 = 96
V_RLD4, V_OUT4, V_FLA, V_FLAG1 = 48, 49, 50, 51
def ring_scalars():
    o = []; a = o.append
    a(salu(f"s_mul_i32 s50, s{S_G}, {OPT.ring * 262144}"))
    a(salu(f"s_lshl_b32 s51, s{S_W}, 16")); a(salu(f"s_add_u32 s{S_RST}, s50, s51"))
    a(salu(f"s_lshl_b32 s51, s{S_H}, 10")); a(salu(f"s_add_u32 s{S_RST}, s{S_RST}, s51"))
    a(salu(f"s_lshl_b32 s51, s{S_H}, 14")); a(salu(f"s_add_u32 s{S_RLD}, s50, s51"))
    a(salu(f"s_mul_i32 s50, s{S_G}, {14*64}"))
    a(salu(f"s_lshl_b32 s51, s{S_W}, 4"))
    a(salu(f"s_add_u32 s{S_FPW}, s50, s51")); a(salu(f"s_add_u32 s{S_FPW}, s{S_FPW}, s{S_H}"))
    a(salu(f"s_add_u32 s{S_FCR}, s50, s51")); a(salu(f"s_add_u32 s{S_FCR}, s{S_FCR}, {CONS_OFF}"))
    a(salu(f"s_lshr_b32 s51, s{S_H}, 2")); a(salu(f"s_lshl_b32 s51, s51, 4"))
    a(salu(f"s_add_u32 s{S_FPR}, s50, s51"))
    a(salu(f"s_lshl_b32 s51, s{S_H}, 2")); a(salu(f"s_add_u32 s{S_FCW}, s50, s51"))
    a(salu(f"s_add_u32 s{S_FCW}, s{S_FCW}, s{S_W}")); a(salu(f"s_add_u32 s{S_FCW}, s{S_FCW}, {CONS_OFF}"))
    return o
def ring_setup():
    o = []; a = o.append
    L = f"v{V_LANE}"
    a(valu(f"v_and_b32 v{V_FLA}, 3, {L}", [L], [f"v{V_FLA}"])); a(valu(f"v_lshlrev_b32 v{V_FLA}, 2, v{V_FLA}", [f"v{V_FLA}"], [f"v{V_FLA}"]))
    a(valu(f"v_mov_b32 v{V_FLAG1}, 1", [], [f"v{V_FLAG1}"]))
    a(valu(f"v_and_b32 v1, 15, {L}", [L], ["v1"])); a(valu(f"v_lshrrev_b32 v2, 4, {L}", [L], ["v2"]))
    a(valu(f"v_lshlrev_b32 v{V_RLD4}, 10, v2", ["v2"], [f"v{V_RLD4}"])); a(valu(f"v_lshl_add_u32 v{V_RLD4}, v1, 4, v{V_RLD4}", ["v1", f"v{V_RLD4}"], [f"v{V_RLD4}"]))
    a(salu(f"s_lshl_b32 s{S_T1}, s{S_W}, 8")); a(valu(f"v_add_u32 v{V_RLD4}, s{S_T1}, v{V_RLD4}", [f"v{V_RLD4}"], [f"v{V_RLD4}"]))
    a(valu("v_and_b32 v4, 1, v1", ["v1"], ["v4"])); a(valu("v_lshlrev_b32 v4, 4, v4", ["v4"], ["v4"]))
    a(valu("v_mov_b32 v5, 0x3f80", [], ["v5"])); a(valu("v_lshlrev_b32 v5, v4, v5", ["v4", "v5"], ["v5"]))
    a(valu("v_lshrrev_b32 v4, 1, v1", ["v1"], ["v4"]))
    for r in range(4):
        a(valu(f"v_cmp_eq_u32 vcc, {r}, v4", ["v4"], ["vcc"])); a(nop(1))
        a(valu("v_cndmask_b32 v52, 0, v5, vcc", ["v5", "vcc"], ["v52"]))
        a(valu(f"v_accvgpr_write_b32 a{A_SEL4+r}, v52", ["v52"], [f"a{A_SEL4+r}"]))
    a(salu(f"s_lshl_b32 s{S_T0}, s{S_B}, 8")); a(salu(f"s_lshl_b32 s{S_T1}, s{S_H}, 4")); a(salu(f"s_add_u32 s{S_T0}, s{S_T0}, s{S_T1}"))
    a(valu(f"v_add_u32 v{V_OUT4}, s{S_T0}, v1", ["v1"], [f"v{V_OUT4}"])); a(valu(f"v_mul_u32_u24 v{V_OUT4}, 896, v{V_OUT4}", [f"v{V_OUT4}"], [f"v{V_OUT4}"]))
    a(salu(f"s_mul_i32 s{S_T0}, s{S_BR}, 448")); a(salu(f"s_lshl_b32 s{S_T1}, s{S_W}, 2")); a(salu(f"s_add_u32 s{S_T0}, s{S_T0}, s{S_T1}"))
    a(valu(f"v_add_u32 v{V_OUT4}, s{S_T0}, v{V_OUT4}", [f"v{V_OUT4}"], [f"v{V_OUT4}"]))
    a(valu(f"v_lshl_add_u32 v{V_OUT4}, v2, 4, v{V_OUT4}", ["v2", f"v{V_OUT4}"], [f"v{V_OUT4}"]))
    a(valu(f"v_lshlrev_b32 v{V_OUT4}, 1, v{V_OUT4}", [f"v{V_OUT4}"], [f"v{V_OUT4}"]))
    a(valu("v_cmp_gt_u32 vcc, 2, v2", ["v2"], ["vcc"])); a(salu(f"s_mov_b32 s{S_T0}, 0x7ff00000")); a(valu(f"v_mov_b32 v4, s{S_T0}", [], ["v4"]))
    a(valu(f"v_cndmask_b32 v{V_OUT4}, v4, v{V_OUT4}, vcc", ["v4", f"v{V_OUT4}", "vcc"], [f"v{V_OUT4}"]))
    return o

def flag_store(base, u, tg):
    return [salu(f"s_add_u32 s55, s{base}, {u*64}", [f"s{base}"], ["s55"])], \
           tag(I(f"buffer_store_byte v{V_FLAG1}, v{V_ZERO}, s[{S_FL}:{S_FL+3}], s55 offen", "vst", [f"v{V_FLAG1}", f"v{V_ZERO}", "s55"], data=[]), tg)
def flag_poll(base, u, dst, tg):
    return [salu(f"s_add_u32 s54, s{base}, {u*64}", [f"s{base}"], ["s54"])], tag(bload(dst, 1, V_FLA, S_FL, "s54", 0, "sc1"), tg)
def flag_check(base, u, dst, tg, name):
    OOL.extend([label(f"L_{name}_spin"), salu(f"s_add_u32 s54, s{base}, {u*64}"), salu(f"s_mov_b32 s{S_SPIN}, {SPIN_MAX}"),
                label(f"L_{name}_again"),
                salu(f"s_sub_u32 s{S_SPIN}, s{S_SPIN}, 1"), salu(f"s_cmp_eq_u32 s{S_SPIN}, 0"), raw(f"s_cbranch_scc1 L_{name}_ok", "branch"),
                raw(f"buffer_load_dword v{dst}, v{V_FLA}, s[{S_FL}:{S_FL+3}], s54 offen sc1", "salu"), wait_vm(0),
                valu(f"v_cmp_ne_u32 vcc, 0x01010101, v{dst}", [], []), nop(0),
                raw(f"s_cbranch_vccnz L_{name}_again", "branch"), raw(f"s_branch L_{name}_ok", "branch")])
    dd = (lambda n: stamp("d_" + n)) if name in (f"prod{OPT.p3detail}", f"cons{OPT.p3detail}") else (lambda n: [])
    return dd(name[:4] + "A") + [wait_tag(tg)] + dd(name[:4] + "B") + [valu(f"v_cmp_ne_u32 vcc, 0x01010101, v{dst}", [f"v{dst}"], ["vcc"]), nop(0),
            raw(f"s_cbranch_vccnz L_{name}_spin", "branch"), label(f"L_{name}_ok")] + dd(name[:4] + "C")
V_PP, V_PC = 53, 54
def ring_loads(u):
    out = []
    for i in range(4):
        sr = "s52" if i % 2 == 0 else "s53"
        out.append(([salu(f"s_add_u32 {sr}, s{S_RLD}, {(u % OPT.ring)*262144 + i*4096}", [f"s{S_RLD}"], [sr])],
                    tag(bload_f("a", A_RING + 16 * (u & 1) + 4 * i, 4, V_RLD4, S_RG, sr, 0, "sc1"), f"rl{u}")))
    return out
def ring_mfmas(u):
    d = V_RD + 4 * (u & 1)
    return [mfma("v", d, "a", A_SEL4, "a", A_RING + 16 * (u & 1) + 4 * i, None if i == 0 else "v", None if i == 0 else d) for i in range(4)]
def ring_out(u):
    d = V_RD + 4 * (u & 1)
    return [valu(f"v_cvt_pk_bf16_f32 v{d}, v{d}, v{d+1}", [f"v{d}", f"v{d+1}"], [f"v{d}"]),
            valu(f"v_cvt_pk_bf16_f32 v{d+1}, v{d+2}, v{d+3}", [f"v{d+2}", f"v{d+3}"], [f"v{d+1}"])], tag(bstore(d, 2, V_OUT4, S_OUT, "0", u * 64, OPT.out_flags), f"out{u}")

def p3_stream(local, carried):
    o = []; a = o.append
    NS, D = OPT.ring, OPT.prod_delay
    Q = lambda u: 8 * u + 7
    if OPT.tmpl == 0:
        T = dict(st=[0, 1, 2, 3], sig=(7, 5), poll=(12, 5), chk=(15, 7), ld=[(16, 7), (17, 7), (18, 7), (19, 7)], csig=(22, 3), out=(30, 5),
                 cpoll=(-4, 3), cchk=(-1, 3), wo=[(-4, 7), (-3, 3), (-3, 7), (-2, 7)], va=((0, 85), (1, 61), (2, 69), (3, 101)))
    else:
        T = dict(st=[0, 2, 4, 5], sig=(8, 5), poll=(13, 7), chk=(16, 7), ld=[(17, 3), (17, 7), (19, 3), (19, 7)], csig=(22, 3), out=(30, 5),
                 cpoll=(-4, 7), cchk=(-1, 3), wo=[(-6, 7), (-2, 7), (-1, 5), (-1, 7)], va=((0, 85), (1, 37), (2, 69), (3, 101)))
    ins = {}
    if local:
        for u in range(14):
            m = 8 * (Q(u) + 22 + D) - 1
            if m < 895: ins[m] = u
    ms = []; pos = {}; redpos = {}
    for m in range(896):
        j, i = m >> 7, m & 127
        nb, qb, s_ = i >> 5, (i >> 3) & 3, i & 7
        acc = V_ACC3 + 4 * ((nb * 4 + qb) % 8)
        pos[m] = len(ms)
        ms.append(mfma("v", acc, "a", A_FR3 + 4 * (8 * (nb & 1) + s_), "v", V_Q + (qb * 8 + s_) * 4,
                       None if s_ == 0 else "v", None if s_ == 0 else acc))
        if m in ins:
            u = ins[m]; redpos[u] = len(ms); ms += ring_mfmas(u)
    g = Gaps(ms); N = g.n
    P = lambda j, i: pos[128 * j + i]
    def G(period, off):
        m = 8 * period + off
        return pos[m] if 0 <= m < 896 else None
    for j in range(7):
        for nb in range(4):
            jn, nbn = (j, nb + 1) if nb < 3 else (j + 1, 0)
            if jn > 6: continue
            for s_ in range(8):
                for jj in range(2): g.put_mem(P(j, 32 * nb + 4 * s_ + 2 * jj), wo_read(nbn, s_, jj))
    cons = []
    for j in range(7):
        for nb in range(4):
            for s_ in (0, 2, 4, 6): cons.append((P(j, 32 * nb + s_), R("a", A_FR3 + 4 * (8 * (nb & 1) + s_), 8)))
    cons.sort()
    def put_vm(k, sc, d):
        assert g.mem[k] is None and not g.post[k], (k, d.text)
        for n, x in enumerate(reversed(sc)):
            kk = k - 1 - n
            assert kk >= 0
            assert not (g.mem[kk] is not None and g.mem[kk].kind == "dma" and "m0" in x.wr)
            g.pre[kk].append(x)
        g.mem[k] = d
    def put_seq(k, seq):
        assert g.mem[k] is None and not g.post[k], k
        g.post[k] = seq
    for j in range(6):
        k = P(j, 91)
        g.pre[k] += ([wait_tag(f"wo{j+1}")] if not (OPT.wo_stage and j + 1 >= 5) else []) + [barrier()]
        sh = va_shift(WOBUF[j + 1] - WOBUF[j])
        for n, at in T['va']:
            kk = P(j, at); g.vec[kk].append(sh[n])
    if OPT.wo_stage:
        items = wo_dma(4) + wo_stage_loads(5) + wo_stage_loads(6)
        slots = [(0, 3), (0, 5), (0, 7), (1, 1), (1, 3), (1, 5), (1, 7)] + [(per, off) for per in range(2, 7) for off in (3, 5, 7)] + [(7, 5), (7, 7)]
        if OPT.tmpl == 1:
            slots = [(0, 3), (0, 5), (0, 7), (1, 1), (1, 3), (1, 5), (1, 7)] + [(per, off) for per in range(2, 7) for off in (3, 5, 7)] + [(7, 5), (7, 7)]
        for (sc, d), (per, off) in zip(items, slots): put_vm(G(per, off), sc, d)
        for j in (5, 6):
            jj_ = j - 3
            g.vec[P(jj_, 1)].insert(0, valu(f"v_add_u32 v{V_WOW}, {(WOBUF[j] - (WOBUF[j-1] if j == 6 else 0)) & 0xffffffff}, v{V_WOW}", [f"v{V_WOW}"], [f"v{V_WOW}"]))
            for i in range(8):
                u0 = 2 * jj_ + (i >> 2)
                per, off = Q(u0) + T['wo'][i & 3][0], T['wo'][i & 3][1]
                k = G(per, off)
                assert g.mem[k] is None
                g.mem[k] = wo_stage_write(j, i)
            u1 = 2 * jj_
            g.pre[G(Q(u1) + T['wo'][0][0], T['wo'][0][1]) - 1].append(wait_tag(f"wos{j}"))
    else:
      for j in (2, 3):
        items = wo_dma(j + 3)
        for n, (sc, d) in enumerate(items):
            u0 = 2 * j + (n >> 2)
            per, off = Q(u0) + T['wo'][n & 3][0], T['wo'][n & 3][1]
            put_vm(G(per, off), sc, d)
    lead = add_lgkm_waits(g, cons, carried)
    stores = {}; sgap = {}
    for u in range(14):
        j, nb = u >> 1, 2 * (u & 1) + 1
        for qb in range(4):
            sreg = S_T2 + (qb & 1)
            if local:
                st = ([salu(f"s_add_u32 s{sreg}, s{S_RST}, {(u % NS)*262144 + qb*16384}", [f"s{S_RST}"], [f"s{sreg}"])],
                      tag(bstore(V_STG + 4 * qb, 4, V_STO, S_RG, f"s{sreg}", 0, OPT.last_st if u >= 14 - NS else ""), f"st{u}"))
            else:
                so = j * 16 * 16 * 2048 + qb * 16 * 2048 + (nb >> 1) * 1024
                st = ([salu(f"s_add_u32 s{sreg}, s{S_PART}, {so}", [f"s{S_PART}"], [f"s{sreg}"])],
                      tag(bstore(V_STG + 4 * qb, 4, V_STO, S_WS, f"s{sreg}", 0), f"st{u}"))
            stores[(u, qb)] = st
            k = G(Q(u) + T['st'][qb], 3)
            sgap[(u, qb)] = k
            if k is not None: put_vm(k, *st)
    done = {}; out_left = []
    if local:
        for u in range(14):
            dd = (lambda n: stamp("d_" + n)) if u == OPT.p3detail else (lambda n: [])
            if u >= NS:
                kp, kc = G(Q(u) + T['cpoll'][0], T['cpoll'][1]), G(Q(u) + T['cchk'][0], T['cchk'][1])
                put_vm(kp, *flag_poll(S_FCR, u - NS, V_PC, f"pc{u}"))
                put_seq(kc, flag_check(S_FCR, u - NS, V_PC, f"pc{u}", f"cons{u}"))
            done[u] = "sig"
            k = G(Q(u) + T['sig'][0], T['sig'][1])
            if k is None or sgap[(u, 3)] is None: continue
            sc, d = flag_store(S_FPW, u, f"sig{u}")
            g.pre[k - 1] += dd("sigA") + [wait_tag(f"st{u}")] + dd("sigB"); put_vm(k, sc, d)
            done[u] = "poll"
            k = G(Q(u) + T['poll'][0] + D, T['poll'][1])
            if k is None: continue
            put_vm(k, *flag_poll(S_FPR, u, V_PP, f"pp{u}"))
            done[u] = "check"
            k = G(Q(u) + T['chk'][0] + D, T['chk'][1])
            if k is None: continue
            put_seq(k, flag_check(S_FPR, u, V_PP, f"pp{u}", f"prod{u}"))
            done[u] = "loads"
            if u not in redpos: continue
            for n, (sc, d) in enumerate(ring_loads(u)): put_vm(G(Q(u) + T['ld'][n][0] + D, T['ld'][n][1]), sc, d)
            g.pre[redpos[u] - 1] += dd("rlA") + [wait_tag(f"rl{u}")] + dd("rlB")
            if u <= 13 - NS: put_vm(G(Q(u) + T['csig'][0] + D, T['csig'][1]), *flag_store(S_FCW, u, f"csig{u}"))
            done[u] = "out"
            cv, st = ring_out(u)
            if u + 1 in redpos:
                g.vec[redpos[u + 1]] += cv
                put_vm(G(Q(u) + T['out'][0] + D, T['out'][1]), [], st)
                done[u] = "all"
    tail_main = []
    for p in range(112):
        j, nb, qb = p >> 4, (p >> 2) & 3, p & 3
        ops = part_ops(nb, qb)
        slots = [G(p + 2, 0), G(p + 2, 1), G(p + 2, 1), G(p + 2, 2), G(p + 2, 4), G(p + 2, 6)]
        if slots[0] is None:
            tail_main += ops
        else:
            for x, k in zip(ops, slots): g.vec[k].append(x)
        if nb & 1:
            u = 2 * j + (nb >> 1)
            if sgap[(u, qb)] is None: tail_main += stores[(u, qb)][0] + [nop(1), stores[(u, qb)][1]]
    if OPT.p3_tiles and local:
        for j in range(1, 7): g.pre[P(j, 0)] = stamp(f"tile{j}") + g.pre[P(j, 0)]
    if lead is not None: a(lead)
    em = g.emit()
    if "allst" in OPT.p3_drop: em = [x for x in em if x.kind != "vst"]
    if "pst" in OPT.p3_drop: em = [x for x in em if not (x.kind == "vst" and x.meta.get("tag", "").startswith("st"))]
    if "nospin" in OPT.p3_drop: em = [x for x in em if not (x.kind == "branch" and "vccnz" in x.text)]
    if "novm" in OPT.p3_drop: em = [x for x in em if not (x.kind == "wait" and "vmtags" in x.meta and not x.meta["vmtags"][0].startswith("wo"))]
    if "nold" in OPT.p3_drop: em = [x for x in em if not (x.kind == "vld" and x.meta.get("tag", "").startswith("rl"))]
    o += stamp("p3_stream_start") if (local or not OPT.fused) else []
    o += em
    if local or not OPT.fused: o += stamp("p3_mfma_end")
    a(nop(7)); o += exposed(tail_main)
    if local:
        todo = [u for u in range(14) if done[u] != "all"]
        LD = lambda u: [x for sc, d in ring_loads(u) for x in sc + [d]]
        POLL = lambda u: (lambda p: p[0] + [p[1]])(flag_poll(S_FPR, u, V_PP, f"pp{u}"))
        CHK = lambda u: flag_check(S_FPR, u, V_PP, f"pp{u}", f"prod{u}")
        SIG = lambda u: (lambda p: [wait_tag(f"st{u}")] + p[0] + [p[1]])(flag_store(S_FPW, u, f"sig{u}"))
        OUT = lambda u: (lambda p: p[0] + [p[1]])(ring_out(u))
        if OPT.tail2 and [done[u] for u in todo] == ["out", "loads", "poll", "sig"] and todo == [10, 11, 12, 13]:
            o += LD(11) + POLL(12) + SIG(13) + stamp("x_last_signal") + OUT(10)
            o += CHK(12) + LD(12) + [wait_tag("rl11")] + ring_mfmas(11)
            o += POLL(13) + CHK(13) + LD(13)
            o += [wait_tag("rl12")] + ring_mfmas(12) + [nop(3)] + OUT(11)
            o += [wait_tag("rl13")] + ring_mfmas(13) + [nop(3)] + OUT(12) + [nop(7)] + OUT(13)
        else:
            for u in todo:
                if done[u] == "sig": o += SIG(u)
            o += stamp("x_last_signal")
            for u in todo:
                if done[u] != "out":
                    if done[u] in ("sig", "poll"): o += POLL(u)
                    if done[u] in ("sig", "poll", "check"): o += CHK(u)
                    o += LD(u) + [wait_tag(f"rl{u}")] + ring_mfmas(u) + [nop(7)]
                o += OUT(u)
    return o

def phase3():
    o = []; a = o.append
    a(label("L_p3_entry"))
    a(wait_tag("wt", "wo0")); a(raw("s_waitcnt lgkmcnt(0)", "wait", lgkm=0)); a(barrier())
    a(valu(f"v_mov_b32 v1, {L_VOTE}", [], ["v1"]))
    a(ds_read128("v", V_SP, 1, 0)); a(wait_lgkm(0))
    a(valu(f"v_or3_b32 v{V_SP}, v{V_SP}, v{V_SP+1}, v{V_SP+2}", R("v", V_SP, 3), [f"v{V_SP}"]))
    a(valu(f"v_or_b32 v{V_SP}, v{V_SP}, v{V_SP+3}", [f"v{V_SP}", f"v{V_SP+3}"], [f"v{V_SP}"])); a(nop(0))
    a(valu(f"v_readfirstlane_b32 s50, v{V_SP}", [f"v{V_SP}"], ["s50"])); a(nop(3))
    a(salu(f"s_cmp_eq_u32 s{S_SAFE}, 0")); a(salu("s_cselect_b32 s50, s50, 0"))
    a(salu("s_cmp_lg_u32 s50, 0")); a(raw("s_cbranch_scc1 L_restart", "branch"))
    OOL.extend([label("L_restart"), wait_vm(0), raw("s_waitcnt lgkmcnt(0)", "wait", lgkm=0), barrier(),
                salu(f"s_mov_b32 s{S_SAFE}, 1"), raw("s_branch L_again", "branch")])
    o += p3_setup()
    if OPT.fused: o += ring_setup()
    o += va_shift(WOBUF[0] - L_V)
    if OPT.fused: o += mode_check()
    carried = []
    for s_ in range(8):
        for jj in range(2):
            r = wo_read(0, s_, jj); a(r); carried.append(r.wr)
            if len(carried) == 14: a(wait_lgkm(6)); carried = carried[-6:]
    a(barrier())
    if OPT.wo_stage:
        a(valu(f"v_lshlrev_b32 v{V_WOW}, 4, v{V_LANE}", [f"v{V_LANE}"], [f"v{V_WOW}"]))
        a(valu(f"v_add_u32 v{V_WOW}, s{S_W1K}, v{V_WOW}", [f"v{V_WOW}"], [f"v{V_WOW}"]))
    else:
        for sc, d in wo_dma(4): o += sc + [nop(0), d]
    if not OPT.fused:
        return o, p3_stream(False, carried) + stamp("p3_end") + ([wait_vm(0)] if OPT.stamps else []) + stamp("rt_end"), []
    o += [salu(f"s_cmp_eq_u32 s{S_LOCM}, 0"), raw("s_cbranch_scc1 L_p3_far", "branch")]
    loc = p3_stream(True, carried)
    loc += stamp("p3_end") + ([wait_vm(0)] if OPT.stamps else []) + stamp("rt_end")
    far = [label("L_p3_far")] + far_setup() + p3_stream(False, carried) + handoff_far()
    for j in range(7):
        for sc, d in red_loads(j): far += sc + [d]
    for j in range(7):
        far.append(wait_tag(f"rl{j}"))
        far += red_mfmas(j)
        if j > 0:
            cv, stt = red_out(j - 1); far += cv + [stt]
    far.append(nop(7))
    cv, stt = red_out(6); far += cv + [stt]
    far += [wait_vm(0), raw("s_endpgm", "branch")]
    return o, loc, far

def dump_regs(base, n, agpr=False):
    o = [wait_vm(0), raw("s_waitcnt lgkmcnt(0)", "wait", lgkm=0), nop(7), nop(7),
         salu(f"s_lshl_b32 s{S_T0}, s2, 2"), salu(f"s_add_u32 s{S_T0}, s{S_T0}, s{S_W}"),
         salu(f"s_mul_i32 s{S_T0}, s{S_T0}, {n*256}"), valu(f"v_lshlrev_b32 v1, 2, v{V_LANE}", [f"v{V_LANE}"], ["v1"])]
    for r in range(n):
        if agpr:
            o.append(valu(f"v_accvgpr_read_b32 v2, a{base+r}", [f"a{base+r}"], ["v2"])); o.append(bstore(2, 1, 1, S_WS, f"s{S_T0}", 0))
        else:
            o.append(bstore(base + r, 1, 1, S_WS, f"s{S_T0}", 0))
        o.append(salu(f"s_add_u32 s{S_T0}, s{S_T0}, 256"))
        if r % 32 == 31 or agpr: o.append(wait_vm(0))
    return o

def stamp_out():
    if not OPT.stamps: return []
    if OPT.dma_stamps: STAMPS[:] = [f"dma{i}" for i in range(10)] + ["loopcyc"]
    if OPT.bar_stamps: STAMPS.extend(["acc_vm", "acc_bar"])
    n = len(STAMPS)
    o = [raw("s_waitcnt lgkmcnt(0)", "wait", lgkm=0), salu(f"s_cmp_lg_u32 s{S_W}, 0"), raw("s_cbranch_scc1 L_nostamp", "branch")]
    if OPT.stamp_dbg >= 0:
        o += [salu(f"s_cmp_lg_u32 s2, {OPT.stamp_dbg}"), raw("s_cbranch_scc1 L_nostamp", "branch")]
        o += [salu("s_load_dwordx2 s[36:37], s[0:1], 88"), raw("s_waitcnt lgkmcnt(0)", "wait", lgkm=0)]
        o += [salu(f"s_mov_b32 s{S_WS}, s36"), salu(f"s_mov_b32 s{S_WS+1}, s37"), salu(f"s_mov_b32 s{S_WS+2}, 256"), salu(f"s_mov_b32 s{S_T0}, 0")]
    else:
        o.append(salu(f"s_mul_i32 s{S_T0}, s2, 64")); o.append(salu(f"s_add_u32 s{S_T0}, s{S_T0}, {STAMP_OFF}"))
        o.append(salu(f"s_mov_b32 s{S_WS+2}, {STAMP_OFF + 256*64}"))
    o.append(valu("v_mov_b32 v1, 0", [], ["v1"]))
    for k in range(n):
        if OPT.stamp_dbg >= 0:
            ref = 0 if STAMPS[k].startswith("rt") else 1
            o.append(salu(f"s_sub_u32 s{S_T1}, s{S_STAMP+2*k}, s{S_STAMP+2*ref}"))
            o.append(valu(f"v_mov_b32 v2, s{S_T1}", [], ["v2"]))
        elif STAMPS[k] == "loopcyc": o.append(valu("v_mov_b32 v2, s100", [], ["v2"]))
        elif STAMPS[k] == "acc_vm": o.append(valu("v_mov_b32 v2, s92", [], ["v2"]))
        elif STAMPS[k] == "acc_bar": o.append(valu("v_mov_b32 v2, s93", [], ["v2"]))
        else:
            o.append(valu(f"v_mov_b32 v2, s{S_STAMP+2*k}", [], ["v2"]))
        o.append(bstore(2, 1, 1, S_WS, f"s{S_T0}", 4 * k)); o.append(wait_vm(0))
    o.append(label("L_nostamp"))
    return o

def finish(): return [wait_vm(0), label("L_end"), raw("s_endpgm", "branch")]

def trip_seq(ex):
    return [raw("s_memtime s[98:99]", "salu"), raw("s_memrealtime s[100:101]", "salu"), raw("s_waitcnt lgkmcnt(0)", "wait", lgkm=0),
            salu(f"s_mov_b32 s99, m0"), salu(f"s_mov_b32 m0, s{S_LOOP}"), nop(0), valu(f"v_writelane_b32 v1, s98, m0", ["s98"], ["v1"]),
            salu(f"s_add_u32 m0, s{S_LOOP}, 8"), nop(0), valu(f"v_writelane_b32 v1, s100, m0", ["s100"], ["v1"]),
            salu("s_mov_b32 m0, s99"), salu(f"s_cmp_lg_u32 s{S_LOOP}, {ex}")]
def build(debug=None):
    _stamp_n[0] = 0; STAMPS.clear(); OOL.clear()
    pre = setup() + phase1()
    if debug == "p1":
        pre += stamp("rt_end")
        resolve_vm(pre, [])
        return pre + stamp_out() + finish()
    if debug == "q":
        resolve_vm(pre, []); check(pre, "pre")
        return pre + dump_regs(V_Q, 128) + finish()
    if OPT.dma_mode == "cluster":
        OPT.dma_gaps = ([21, 23, 25, 27], [101, 103, 105, 107]); OPT.nv_prev = 0
    elif OPT.dma_mode == "cluster2":
        OPT.dma_gaps = ([41, 43, 47, 49], [101, 103, 105, 107]); OPT.nv_prev = 0
    NCUR = len(OPT.dma_gaps[1])
    pre += [salu(f"s_cmp_lg_u32 s{S_SAFE}, 0"), raw("s_cbranch_scc1 L_safe_attn", "branch")]
    p, carried = pre_iter(); pre += p
    def batch(t):
        return dma_tile("V", vslot(t + 3), f"s{S_VOFF}", f"V{t+3}") + dma_tile("K", kslot(t + 5), f"s{S_KOFF}", f"K{t+5}")
    pre += wo_setup()
    if OPT.fused: pre += grp_setup()
    def ex0(g, kb):
        put_wo(g, 0, 3, kb, step=8)
    vf0 = OPT.vfirst
    if OPT.early_trips: OPT.vfirst = OPT.vfirst_early
    s0, carried = attn_iter(0, carried, wait_tag("V1", "K2"), [], batch(0)[:NCUR], first=True, adv=False, extra=ex0)
    OPT.vfirst = vf0
    pre += s0
    pre.append(salu(f"s_mov_b32 s{S_LOOP}, 7"))
    if OPT.bar_stamps: pre += [salu("s_mov_b32 s92, 0"), salu("s_mov_b32 s93, 0")]
    pre += stamp("loop_start") + (stamp("rt_ls") if (OPT.bar_stamps or OPT.trip_stamps) else [])
    def loop_body(name):
        nonlocal carried
        lp = [label(name)]
        for u in range(4):
            t = 1 + u
            s, carried = attn_iter(t, carried, wait_vm(12), batch(t - 1)[NCUR:], batch(t)[:NCUR], loopctl=(u == 3), loop_body=True)
            if OPT.dma_stamps and u == 1:
                s2 = []; n = 0
                for x in s:
                    if x.kind == "dma" and n < 5:
                        s2 += [raw(f"s_memtime s[{80+4*n}:{81+4*n}]", "salu"), x, raw(f"s_memtime s[{82+4*n}:{83+4*n}]", "salu")]; n += 1
                    else: s2.append(x)
                s = s2
            lp += s
        return lp
    first_loop = []
    if OPT.early_trips:
        vf = OPT.vfirst; OPT.vfirst = OPT.vfirst_early
        pd = OPT.pad_iter; OPT.pad_iter = OPT.pad_early
        vl = OPT.v_lead; OPT.v_lead = OPT.v_lead_early
        OPT.loop_exit = 7 - OPT.early_trips
        first_loop = loop_body("L_attn_early") + (trip_seq(OPT.loop_exit) if OPT.trip_stamps else []) + [raw("s_cbranch_scc1 L_attn_early", "branch")]
        OPT.vfirst = vf; OPT.loop_exit = 0; OPT.pad_iter = pd; OPT.v_lead = vl
    loop = loop_body("L_attn")
    if OPT.trip_stamps: loop += trip_seq(0)
    if OPT.loop_nodma: loop = [x for x in loop if x.kind != "dma"]
    if OPT.loop_nods: loop = [x for x in loop if x.kind != "ds" and not (x.kind == "wait" and "lgkm" in x.meta and x.meta["lgkm"] > 0)]
    if OPT.loop_nomfma: loop = [(nop(1) if x.kind == "mfma" else x) for x in loop]
    if OPT.loop_novalu: loop = [x for x in loop if x.kind not in ("valu", "trans")]
    if OPT.loop_dma_every > 1:
        cnt = [0]
        def keep(x):
            if x.kind != "dma": return True
            cnt[0] += 1
            return cnt[0] % OPT.loop_dma_every == 0
        loop = [x for x in loop if keep(x)]
    loop.append(raw("s_cbranch_scc1 L_attn", "branch"))
    post = stamp("loop_end") + (stamp("rt_le") if OPT.bar_stamps else [])
    if OPT.trip_stamps:
        post += [valu(f"v_lshlrev_b32 v2, 2, v{V_LANE}", [], ["v2"]), salu(f"s_mul_i32 s{S_T1}, s2, 64"),
                 salu(f"s_add_u32 s{S_T1}, s{S_T1}, {STAMP_OFF + 256*64}"), salu(f"s_mov_b32 s{S_WS+2}, {STAMP_OFF + 2*256*64}"),
                 valu("v_cmp_gt_u32 vcc, 16, v0", ["v0"], ["vcc"]), salu(f"s_cmp_eq_u32 s{S_W}, 0"), raw("s_cselect_b64 s[50:51], vcc, 0", "salu"),
                 raw("s_mov_b64 s[54:55], exec", "salu"), raw("s_mov_b64 exec, s[50:51]", "salu"), raw("s_cbranch_execz L_notrip", "branch"),
                 raw(f"buffer_store_dword v1, v2, s[{S_WS}:{S_WS+3}], s{S_T1} offen", "salu"), wait_vm(0), label("L_notrip"), raw("s_mov_b64 exec, s[54:55]", "salu"), wait_vm(0)]
    def ex29(g, kb):
        if OPT.fused: place_vmem(g, 40, [], mode_load(), kb)
        gp = 50
        for j in OPT.wo_touch: gp = place_vmem(g, gp, [], wo_touch(j), kb) + 12
        if OPT.l2warm and OPT.fused:
            gp = 8
            for d in l2warm_loads(): gp = place_vmem(g, gp, [], d, kb) + 10
    post += wo_touch_setup()
    if OPT.l2warm and OPT.fused: post += l2warm_setup()
    s, carried = attn_iter(29, carried, wait_tag("V30", "K32"), batch(28)[NCUR:4], [], adv=False,
                           extra=ex29)
    post += s
    def ex30(g, kb):
        put_wo(g, 1, 3, kb, step=8)
        if OPT.fused:
            k = 2
            for x in ring_scalars(): k = put_scalar(g, k, x) + 1
    s, carried = attn_iter(30, carried, wait_tag("V31"), [], [], adv=False, extra=ex30)
    post += s
    post += last_iter(carried)
    post += stamp("attn_end")
    if debug == "o":
        tailq = dump_regs(V_Q, 128)
    elif debug == "l":
        tailq = dump_regs(V_L, 4)
    else:
        common, loc, far = phase3()
        tailq = common
    post += tailq
    q = resolve_vm(pre, [])
    qexit = ["V30"] * 4 + ["K32"] * 4 + ["V31"] * NCUR
    qb_ = resolve_vm(post, qexit)
    if debug is None:
        resolve_vm(loc, qb_); resolve_vm(far, qb_)
        if far and not OPT.p3_drop: check(loop[1:] + post + far[1:], "loop+post+far", init_lgkm=[x.wr for x in pre if x.kind == "ds"][-8:], init_vm=[[]] * (8 + NCUR))
        post = post + loc
        OOL.extend(far)
    if not (OPT.p1_nowait or OPT.p1_noread or OPT.p1_drop or OPT.loop_nodma or OPT.loop_dma_every > 1 or OPT.loop_nods or OPT.loop_nomfma or OPT.loop_novalu): check(pre + loop[1:] + loop[1:], "pre+loop")
    if not (OPT.p3_drop or OPT.loop_nodma or OPT.loop_dma_every > 1 or OPT.loop_nods or OPT.loop_nomfma or OPT.loop_novalu): check(loop[1:] + post, "loop+post", init_lgkm=[x.wr for x in pre if x.kind == "ds"][-8:], init_vm=[[]] * (8 + NCUR))
    OOL.extend(safe_attn())
    if first_loop: check(pre + first_loop[1:] + first_loop[1:] + loop[1:], "pre+early+loop")
    return pre + first_loop + loop + post + stamp_out() + finish() + OOL

def reduce_kernel():
    o = []; a = o.append
    a(salu("s_cmp_ge_u32 s2, 256")); a(raw("s_cbranch_scc1 R_end", "branch"))
    a(salu("s_load_dwordx2 s[4:5], s[0:1], 80")); a(salu("s_load_dwordx2 s[6:7], s[0:1], 96"))
    a(valu("v_lshrrev_b32 v1, 6, v0", ["v0"], ["v1"])); a(valu("v_and_b32 v0, 63, v0", ["v0"], ["v0"]))
    a(valu("v_readfirstlane_b32 s32, v1", ["v1"], ["s32"]))
    a(salu("s_lshr_b32 s33, s2, 4")); a(salu("s_and_b32 s34, s2, 15"))
    a(salu("s_lshr_b32 s35, s33, 3")); a(salu("s_and_b32 s36, s33, 7"))
    a(salu("s_lshr_b32 s37, s32, 1")); a(salu("s_and_b32 s38, s32, 1"))
    a(valu("v_lshrrev_b32 v2, 5, v0", ["v0"], ["v2"])); a(valu("v_lshlrev_b32 v2, 11, v2", ["v2"], ["v2"]))
    a(valu("v_and_b32 v3, 31, v0", ["v0"], ["v3"])); a(valu("v_lshl_add_u32 v2, v3, 4, v2", ["v3", "v2"], ["v2"]))
    a(salu("s_lshl_b32 s39, s37, 10")); a(salu("s_lshl_b32 s40, s38, 9")); a(salu("s_add_u32 s39, s39, s40"))
    a(valu("v_add_u32 v2, s39, v2", ["v2"], ["v2"]))
    a(valu("v_and_b32 v8, 15, v0", ["v0"], ["v8"])); a(valu("v_lshrrev_b32 v9, 4, v0", ["v0"], ["v9"]))
    a(valu("v_lshrrev_b32 v10, 3, v8", ["v8"], ["v10"])); a(valu("v_and_b32 v11, 1, v9", ["v9"], ["v11"]))
    a(valu("v_and_b32 v12, 1, v8", ["v8"], ["v12"])); a(valu("v_lshlrev_b32 v12, 4, v12", ["v12"], ["v12"]))
    a(valu("v_mov_b32 v13, 0x3f80", [], ["v13"])); a(valu("v_lshlrev_b32 v13, v12, v13", ["v12", "v13"], ["v13"]))
    a(valu("v_cmp_eq_u32 vcc, v10, v11", ["v10", "v11"], ["vcc"])); a(nop(1))
    a(valu("v_cndmask_b32 v13, 0, v13, vcc", ["v13", "vcc"], ["v13"]))
    a(valu("v_bfe_u32 v14, v8, 1, 2", ["v8"], ["v14"]))
    for r in range(4):
        a(valu(f"v_cmp_eq_u32 vcc, {r}, v14", ["v14"], ["vcc"])); a(nop(1))
        a(valu(f"v_cndmask_b32 v{4+r}, 0, v13, vcc", ["v13", "vcc"], [f"v{4+r}"]))
    a(salu("s_lshl_b32 s41, s36, 8")); a(salu("s_lshl_b32 s42, s34, 4")); a(salu("s_add_u32 s41, s41, s42"))
    a(valu("v_add_u32 v3, s41, v8", ["v8"], ["v3"])); a(valu("v_mul_u32_u24 v3, 896, v3", ["v3"], ["v3"]))
    a(salu("s_mul_i32 s42, s35, 448")); a(salu("s_lshl_b32 s43, s37, 5")); a(salu("s_add_u32 s42, s42, s43"))
    a(salu("s_lshl_b32 s43, s38, 3")); a(salu("s_add_u32 s42, s42, s43"))
    a(valu("v_add_u32 v3, s42, v3", ["v3"], ["v3"]))
    a(valu("v_lshl_add_u32 v3, v11, 4, v3", ["v11", "v3"], ["v3"]))
    a(valu("v_lshrrev_b32 v10, 1, v9", ["v9"], ["v10"])); a(valu("v_lshl_add_u32 v3, v10, 2, v3", ["v10", "v3"], ["v3"]))
    a(valu("v_lshlrev_b32 v3, 1, v3", ["v3"], ["v3"]))
    a(raw("s_waitcnt lgkmcnt(0)", "wait", lgkm=0))
    for base, lo, size in ((8, 6, 16 * 7 * 16 * 16 * 2048), (12, 4, 8 * 256 * 896 * 2)):
        a(salu(f"s_mov_b32 s{base}, s{lo}")); a(salu(f"s_mov_b32 s{base+1}, s{lo+1}"))
        a(salu(f"s_mov_b32 s{base+2}, {size}")); a(salu(f"s_mov_b32 s{base+3}, 0x20000"))
    a(salu(f"s_mul_i32 s44, s33, {7*16*32768}")); a(salu("s_lshl_b32 s45, s34, 15")); a(salu("s_add_u32 s44, s44, s45"))
    for j in range(7):
        for i in range(8):
            a(salu(f"s_add_u32 s46, s44, {j*16*32768 + i*4096}"))
            a(tag(bload(16 + (j * 8 + i) * 4, 4, 2, 8, "s46", 0), f"p{j}"))
    for j in range(7):
        a(wait_tag(f"p{j}"))
        d = 240 + 4 * (j & 1)
        for i in range(8):
            a(mfma("v", d, "v", 4, "v", 16 + (j * 8 + i) * 4, None if i == 0 else "v", None if i == 0 else d))
        a(nop(7))
        a(valu(f"v_cvt_pk_bf16_f32 v{d}, v{d}, v{d+1}", [f"v{d}", f"v{d+1}"], [f"v{d}"]))
        a(valu(f"v_cvt_pk_bf16_f32 v{d+1}, v{d+2}, v{d+3}", [f"v{d+2}", f"v{d+3}"], [f"v{d+1}"]))
        a(tag(bstore(d, 2, 3, 12, "0", j * 128), "o"))
    resolve_vm(o, []); check(o, "reduce")
    if OPT.stamps and OPT.stamp_fwd >= 0:
        o += [wait_vm(0), salu("s_cmp_lg_u32 s2, 0"), raw("s_cbranch_scc1 R_end", "branch"),
              salu("s_load_dwordx2 s[20:21], s[0:1], 88"), raw("s_waitcnt lgkmcnt(0)", "wait", lgkm=0),
              salu("s_mov_b32 s16, s20"), salu("s_mov_b32 s17, s21"), salu("s_mov_b32 s18, 64"), salu("s_mov_b32 s19, 0x20000"),
              salu(f"s_mov_b32 s10, {16*7*16*16*2048 + 256*64}"), salu(f"s_mov_b32 s46, {16*7*16*16*2048} + 64*{OPT.stamp_fwd}"),
              valu("v_lshlrev_b32 v2, 2, v0", ["v0"], ["v2"]), bload(3, 1, 2, 8, "s46", 0), wait_vm(0), bstore(3, 1, 2, 16, "0", 0)]
    o += [wait_vm(0), label("R_end"), raw("s_endpgm", "branch")]
    return o

KD = """.section .rodata,"a"
.p2align 6
.amdhsa_kernel {name}
  .amdhsa_next_free_vgpr {vgpr}
  .amdhsa_next_free_sgpr 102
  .amdhsa_accum_offset 256
  .amdhsa_group_segment_fixed_size 0
  .amdhsa_kernarg_size 104
  .amdhsa_user_sgpr_count 2
  .amdhsa_user_sgpr_kernarg_segment_ptr 1
  .amdhsa_system_sgpr_workgroup_id_x 1
.end_amdhsa_kernel
"""
def header_comments():
    ref = open("cdna_kernels/" + NAME + ".s.ref").read().splitlines()
    out = []
    for l in ref:
        if l.startswith("; Override launch") or not l.startswith(";"): break
        out.append(l)
    return out

def stream_kernel():
    t = """
  s_cmp_ge_u32 s2, 256
  s_cbranch_scc1 S_end
  s_load_dwordx2 s[4:5], s[0:1], 8
  s_load_dwordx2 s[6:7], s[0:1], 96
  s_load_dwordx2 s[8:9], s[0:1], 48
  v_lshrrev_b32 v2, 6, v0
  s_nop 0
  v_readfirstlane_b32 s24, v2
  v_and_b32 v1, 63, v0
  v_lshlrev_b32 v14, 4, v1
  s_nop 2
  s_lshl_b32 s25, s24, 12
  v_add_u32 v14, s25, v14
  s_waitcnt lgkmcnt(0)
  s_cmp_lt_u32 s2, 128
  s_cselect_b32 s36, s4, s8
  s_cselect_b32 s37, s5, s9
  s_mov_b32 s38, 0x4000000
  s_mov_b32 s39, 0x20000
  s_and_b32 s32, s2, 127
  s_lshl_b32 s32, s32, 19
  s_barrier
  s_memrealtime s[12:13]
  s_mov_b32 s20, 0
S_loop:
  s_mov_b32 m0, s25
  s_nop 0
  buffer_load_dwordx4 v14, s[36:39], s32 offen nt lds
  buffer_load_dwordx4 v14, s[36:39], s32 offen offset:1024 nt lds
  buffer_load_dwordx4 v14, s[36:39], s32 offen offset:2048 nt lds
  buffer_load_dwordx4 v14, s[36:39], s32 offen offset:3072 nt lds
  s_add_u32 s32, s32, 16384
  s_waitcnt vmcnt(8)
  s_barrier
  s_add_u32 s20, s20, 1
  s_cmp_lt_u32 s20, 32
  s_cbranch_scc1 S_loop
  s_waitcnt vmcnt(0)
  s_barrier
  s_memrealtime s[16:17]
  s_waitcnt lgkmcnt(0)
  s_sub_u32 s16, s16, s12
  s_mov_b32 s40, s6
  s_mov_b32 s41, s7
  s_mov_b32 s42, %d
  s_mov_b32 s43, 0x20000
  s_mul_i32 s33, s2, 64
  s_add_u32 s33, s33, %d
  v_mov_b32 v2, s16
  v_mov_b32 v1, 0
  buffer_store_dword v2, v1, s[40:43], s33 offen
  s_waitcnt vmcnt(0)
S_end:
  s_endpgm""" % (16*7*16*16*2048 + 256*64, 16*7*16*16*2048 + 60)
    return t

def assemble_file(debug=None):
    main = build(debug)
    red = reduce_kernel()
    k1 = NAME + "_kernel"; k2 = "reduce_heads_kernel"
    L = header_comments()
    if OPT.stream0: L.append(f"; @launch kernel=stream_test_kernel grid=(256,1,1) block=(256,1,1) lds={LDS_BYTES}")
    if OPT.fused and not OPT.stream0:
        L.append(f"; @launch grid=(256,1,1) block=(256,1,1) lds={LDS_BYTES}")
    else:
        L.append(f"; @launch kernel={k1} grid=(256,1,1) block=(256,1,1) lds={LDS_BYTES}")
        if debug is None and not OPT.fused: L.append(f"; @launch kernel={k2} grid=(256,1,1) block=(256,1,1) lds=0")
    L.append('.amdgcn_target "amdgcn-amd-amdhsa--gfx950"')
    L.append(".text")
    for nm, body in ((k1, main), (k2, red)) if not OPT.fused else ((k1, main),):
        L += [f".globl {nm}", ".p2align 8", f".type {nm},@function", f"{nm}:", text(body)]
    if OPT.stream0: L += [".globl stream_test_kernel", ".p2align 8", ".type stream_test_kernel,@function", "stream_test_kernel:", stream_kernel()]
    L.append(KD.format(name=k1, vgpr=512))
    if not OPT.fused: L.append(KD.format(name=k2, vgpr=256))
    if OPT.stream0: L.append(KD.format(name="stream_test_kernel", vgpr=512))
    return "\n".join(L) + "\n"

if __name__ == "__main__":
    dbg = sys.argv[2] if len(sys.argv) > 2 and sys.argv[2] != "none" else None
    for kv in sys.argv[3:]:
        k, v = kv.split("=")
        v = v.replace("+", " ")
        setattr(OPT, k, {"True": True, "False": False, "()": ()}.get(v, int(v) if v.lstrip("-").isdigit() else (eval(v) if v.startswith("(") else v)))
    open(sys.argv[1], "w").write(assemble_file(dbg))
    print("stamps:", STAMPS)
```

```python
import math, struct, sys
from core import *

NAME = "concat_heads__mha_block_cached__mha_block_cached__near_ridge"
def f32bits(x): return struct.unpack("<I", struct.pack("<f", x))[0]
CSC = math.log2(math.e) / 16.0

S_X, S_WQ, S_K, S_V, S_WO, S_WS, S_OUT = 4, 8, 12, 16, 20, 24, 28
S_W, S_W1K = 32, 33
S_QB = ["0", "s34", "s35", "s62"]
S_C = 63
S_KOFF, S_VOFF = 64, 65
S_LOOP = 66
S_T0, S_T1, S_T2, S_T3 = 67, 68, 69, 70
S_G, S_H, S_B, S_BR = 71, 72, 73, 74
S_WOFF = 76
S_PART = 77
S_WCUR, S_WSTEP, S_XSTEP = 78, 79, 75
S_FL, S_DBG = 36, 40
S_LOCM = 44
S_RBASE, S_SIG, S_POLL, S_XCC = 46, 47, 48, 49
S_RG = 56
S_SPIN = 62
S_WARM = 34
S_SAFE = 3
S_ROT = 52
S_PFO = 53
S_RST, S_RLD, S_FPW, S_FPR, S_FCW, S_FCR = 60, 61, 75, 78, 79, 76
S_STAMP = 80
V_LANE = 0
V_KA = [4, 5]
V_VA = [6, 7, 8, 9]
V_DK, V_DV = 10, 11
V_L = 12
V_MC = 16
V_SP = 20
V_POOL = 32
V_S = 64
V_P = 96
V_Q = 128
V_XA = 20; V_DW = 21; V_WA = [[22, 23], [24, 25], [26, 27]]
V_CT = 28
V_ARR = 24
L_K = 0; L_V = 65536; L_X = 131072
def kslot(t): return L_K + 16384 * (t % 4)
def vslot(t): return L_V + 16384 * (t % 4)
LDS_BYTES = 163840
L_VOTE = L_V + 2 * 16384
L_LIMIT = 2.0 ** 30

PART_BYTES = 16 * 7 * 16 * 16 * 2048
FLAG_BYTES = 16 * 7 * 4 * 64
STAMP_OFF = PART_BYTES + 32768
RING_OFF = PART_BYTES + (1 << 20)
RING_BYTES = 32 << 20
CONS_OFF = 16384
SPIN_MAX = 1 << 19
class Opt:
    kv_flags = "nt"
    w_flags = ""
    x_flags = ""
    wo_flags = ""
    st_flags = ""
    stamps = False
    codewarm = 0
    pad_early = 0
    v_lead = 20
    v_lead_early = 20
    l2warm = False
    kvspread = False
    tlbwarm = 0
    remap = 0
    tail2 = True
    tmpl = 0
    wo_stage = False
    p3_tiles = False
    early_trips = 0
    vfirst_early = 37
    loop_exit = 0
    xwarm = False
    kvmin = False
    vfirst = 0
    dma_stamps = False
    rot = 0
    pad_iter = 0
    last_st = ''
    out_flags = ''
    coopw = False
    coopw_init = 2
    pf_flags = ''
    early_wb = 0
    wt_flags = ''
    prod_delay = 0
    ring = 4
    vm_space = 0
    p3_drop = ''
    wo_step = 13
    cons_chk = 22
    wo_touch = (4, 5, 6)
    red_m = 200
    cons_poll = 50
    ld_min = 16
    stamp_skip = 'p1_first_data,pre_iter_end'
    p3detail = -1
    st_lag = 21
    force_fallback = False
    red_at = 60
    sig_lag = 28
    poll_lag = 22
    chk_lag = 22
    fused = True
    stream0 = False
    loop_nods = False
    loop_nomfma = False
    loop_novalu = False
    loop_nodma = False
    loop_dma_every = 1
    bar_stamps = False
    trip_stamps = False
    dma_mode = 'spread'
    dma_gaps = ([5, 21, 37, 53, 69, 85], [101, 117])
    nv_prev = 2
    stamp_fwd = -1
    stamp_dbg = -1
    x_rd_gap0 = 65
    x_rd_gap = 33
    p1_steps = False
    p1_drop = ''
    rev = True
    init_w = 2
    early_step = 2
    x_gap = 60
    p1_nowait = False
    p1_noread = False
    wring = 3
    kvpf = 'early'
    coopx = False
    init_more = 0
OPT = Opt()

def wait_tag(*tags): return I("s_waitcnt vmcnt(?)", "wait", vmtags=list(tags))
def tag(ins, t):
    ins.meta["tag"] = t; return ins
def resolve_vm(stream, queue):
    q = list(queue)
    for ins in stream:
        if ins.kind in ("dma", "vld", "vst"):
            q.append(ins.meta.get("tag", "?"))
        elif ins.kind == "wait":
            if "vmtags" in ins.meta:
                idx = [n for n, t in enumerate(q) if t in ins.meta["vmtags"]]
                n = len(q) - 1 - max(idx) if idx else len(q)
                n = min(n, 63)
                ins.text = f"s_waitcnt vmcnt({n})"; ins.meta["vm"] = n
            if "vm" in ins.meta:
                n = ins.meta["vm"]
                if len(q) > n: q = q[len(q) - n:] if n else []
    return q

_stamp_n = [0]
def stamp(name):
    if not OPT.stamps: return []
    if OPT.dma_stamps:
        if name == "loop_start": return [raw("s_memtime s[100:101]", "salu"), raw("s_waitcnt lgkmcnt(0)", "wait", lgkm=0)]
        if name == "loop_end": return [raw("s_memtime s[76:77]", "salu"), raw("s_waitcnt lgkmcnt(0)", "wait", lgkm=0), salu("s_sub_u32 s100, s76, s100")]
        return []
    if OPT.stamp_skip and name in OPT.stamp_skip.split(","): return []
    if OPT.p3detail >= 0 and not name.startswith("d_") and name not in ("rt_end",): return []
    if OPT.bar_stamps and name not in ("rt_ls", "rt_le", "loop_start", "loop_end", "rt_end"): return []
    n = _stamp_n[0]; _stamp_n[0] += 1
    STAMPS.append(name)
    op = "s_memrealtime" if name.startswith("rt") else "s_memtime"
    return [raw(f"{op} s[{S_STAMP+2*n}:{S_STAMP+2*n+1}]", "salu")]
STAMPS = []

def m0_set(base): return salu(f"s_add_u32 m0, s{S_W1K}, {base}", [f"s{S_W1K}"], ["m0"])

def dma_tile(kind, slot_base, soff, tg):
    voff, srd, fl = {"K": (V_DK, S_K, OPT.kv_flags), "V": (V_DV, S_V, OPT.kv_flags), "W": (V_DW, S_WQ, OPT.w_flags)}[kind]
    return [(m0_set(slot_base + dc * 3968), tag(dma(voff, srd, soff, dc * 128, fl), tg)) for dc in range(4)]

def setup():
    o = []; a = o.append
    a(salu("s_cmp_ge_u32 s2, 256")); a(raw("s_cbranch_scc1 L_end", "branch"))
    o += stamp("rt_start") + stamp("start")
    if OPT.remap:
        a(salu("s_lshr_b32 s4, s2, 3")); a(salu("s_add_u32 s4, s4, s2")); a(salu("s_and_b32 s4, s4, 7"))
        a(salu("s_andn2_b32 s5, s2, 7")); a(salu("s_or_b32 s4, s4, s5"))
        if OPT.remap == 2: a(salu("s_cmp_ge_u32 s2, 128")); a(salu("s_cselect_b32 s2, s4, s2"))
        else: a(salu("s_mov_b32 s2, s4"))
    a(valu("v_lshrrev_b32 v1, 6, v0", ["v0"], ["v1"]))
    a(valu(f"v_and_b32 v{V_LANE}, 63, v0", ["v0"], ["v0"]))
    a(salu(f"s_mov_b32 s{S_SAFE}, 0"))
    a(valu(f"v_readfirstlane_b32 s{S_W}, v1", ["v1"], [f"s{S_W}"]))
    a(label("L_again"))
    a(salu("s_load_dwordx16 s[36:51], s[0:1], 0")); a(salu("s_load_dwordx8 s[52:59], s[0:1], 64"))
    a(salu("s_load_dwordx2 s[60:61], s[0:1], 96"))
    a(nop(3))
    a(salu(f"s_and_b32 s{S_T0}, s2, 7")); a(salu(f"s_lshr_b32 s{S_T1}, s2, 3"))
    a(salu(f"s_and_b32 s{S_H}, s{S_T1}, 15")); a(salu(f"s_lshr_b32 s{S_T1}, s{S_T1}, 4"))
    a(salu(f"s_lshl_b32 s{S_G}, s{S_T0}, 1")); a(salu(f"s_add_u32 s{S_G}, s{S_G}, s{S_T1}"))
    a(salu(f"s_lshr_b32 s{S_BR}, s{S_G}, 3")); a(salu(f"s_and_b32 s{S_B}, s{S_G}, 7"))
    a(salu(f"s_lshl_b32 s{S_W1K}, s{S_W}, 10"))
    if OPT.rot:
        a(salu(f"s_and_b32 s{S_T0}, s2, 7")); a(salu(f"s_mul_i32 s{S_T0}, s{S_T0}, {OPT.rot}")); a(salu(f"s_lshr_b32 s{S_T1}, s2, 3"))
        a(salu(f"s_add_u32 s{S_T0}, s{S_T0}, s{S_T1}")); a(salu(f"s_and_b32 s{S_T0}, s{S_T0}, 31")); a(salu(f"s_lshl_b32 s33, s{S_T0}, 14") if False else salu(f"s_lshl_b32 s{S_T3}, s{S_T0}, 14"))
    a(salu(f"s_mov_b32 s{S_C}, 0x{f32bits(CSC):08x}"))
    L = f"v{V_LANE}"
    def vv(t, rd, wr): a(valu(t, rd, wr))
    vv(f"v_and_b32 v1, 15, {L}", [L], ["v1"]); vv(f"v_lshrrev_b32 v2, 4, {L}", [L], ["v2"])
    vv("v_lshrrev_b32 v3, 1, v1", ["v1"], ["v3"])
    for sp in range(2):
        r = V_KA[sp]
        vv(f"v_add_u32 v{r}, {4*sp}, v2", ["v2"], [f"v{r}"])
        vv(f"v_xor_b32 v{r}, v{r}, v3", [f"v{r}", "v3"], [f"v{r}"])
        vv(f"v_lshlrev_b32 v{r}, 4, v{r}", [f"v{r}"], [f"v{r}"])
        vv(f"v_lshl_add_u32 v{r}, v1, 7, v{r}", ["v1", f"v{r}"], [f"v{r}"])
    vv(f"v_lshrrev_b32 v1, 3, {L}", [L], ["v1"]); vv(f"v_and_b32 v2, 7, {L}", [L], ["v2"])
    vv(f"v_lshl_add_u32 v3, s{S_W}, 3, v1", ["v1", f"s{S_W}"], ["v3"])
    vv("v_bfe_u32 v28, v3, 1, 1", ["v3"], ["v28"]); vv("v_lshlrev_b32 v28, 2, v28", ["v28"], ["v28"])
    vv("v_xor_b32 v28, v28, v2", ["v28", "v2"], ["v28"]); vv("v_lshlrev_b32 v28, 4, v28", ["v28"], ["v28"])
    vv(f"v_lshl_add_u32 v{V_DW}, v3, 13, v28", ["v3", "v28"], [f"v{V_DW}"])
    a(raw("s_waitcnt lgkmcnt(0)", "wait", lgkm=0))
    a(salu(f"s_cmp_eq_u32 s{S_BR}, 0"))
    for i in range(10): a(salu(f"s_cselect_b32 s{36+i}, s{36+i}, s{46+i}"))
    if OPT.rot: a(salu(f"s_mov_b32 s{S_ROT}, s{S_T3}"))
    def srd(base, lo, hi, offs, size):
        if offs is None:
            a(salu(f"s_mov_b32 s{base}, s{lo}")); a(salu(f"s_mov_b32 s{base+1}, s{hi}"))
        else:
            a(salu(f"s_add_u32 s{base}, s{lo}, {offs}")); a(salu(f"s_addc_u32 s{base+1}, s{hi}, 0"))
        a(salu(f"s_mov_b32 s{base+2}, {size}")); a(salu(f"s_mov_b32 s{base+3}, 0x20000"))
    a(salu(f"s_mul_i32 s{S_T0}, s{S_B}, 229376")); srd(S_X, 36, 37, f"s{S_T0}", 229376)
    a(salu(f"s_lshl_b32 s{S_T0}, s{S_H}, 9")); srd(S_WQ, 42, 43, f"s{S_T0}", 0)
    a(salu(f"s_sub_u32 s{S_WQ+2}, {448*8192}, s{S_T0}"))
    return o

def setup_b():
    o = []; a = o.append
    L = f"v{V_LANE}"
    def vv(t, rd, wr): a(valu(t, rd, wr))
    vv(f"v_lshrrev_b32 v2, 4, {L}", [L], ["v2"])
    vv(f"v_bfe_u32 v28, {L}, 2, 2", [L], ["v28"]); vv(f"v_and_b32 v29, 3, {L}", [L], ["v29"])
    vv("v_lshl_add_u32 v30, v2, 2, v28", ["v2", "v28"], ["v30"])
    vv("v_bfe_u32 v31, v30, 1, 2", ["v30"], ["v31"])
    for p in range(4):
        r = V_VA[p]
        vv(f"v_xor_b32 v{r}, {p}, v31", ["v31"], [f"v{r}"])
        vv(f"v_lshlrev_b32 v{r}, 5, v{r}", [f"v{r}"], [f"v{r}"])
        vv(f"v_lshl_add_u32 v{r}, v30, 7, v{r}", ["v30", f"v{r}"], [f"v{r}"])
        vv(f"v_lshl_add_u32 v{r}, v29, 3, v{r}", ["v29", f"v{r}"], [f"v{r}"])
        vv(f"v_add_u32 v{r}, {L_V}, v{r}", [f"v{r}"], [f"v{r}"])
    vv("v_lshl_add_u32 v30, v2, 3, v28", ["v2", "v28"], ["v30"])
    vv("v_lshrrev_b32 v31, 1, v28", ["v28"], ["v31"])
    for sp in range(2):
        r = V_WA[0][sp]
        vv(f"v_xor_b32 v{r}, {sp}, v31", ["v31"], [f"v{r}"])
        vv(f"v_lshl_add_u32 v{r}, v{r}, 2, v29", [f"v{r}", "v29"], [f"v{r}"])
        vv(f"v_lshlrev_b32 v{r}, 4, v{r}", [f"v{r}"], [f"v{r}"])
        vv(f"v_lshl_add_u32 v{r}, v30, 7, v{r}", ["v30", f"v{r}"], [f"v{r}"])
        for win in (1, 2):
            vv(f"v_add_u32 v{V_WA[win][sp]}, {65536*win}, v{r}", [f"v{r}"], [f"v{V_WA[win][sp]}"])
    vv(f"v_lshrrev_b32 v1, 3, {L}", [L], ["v1"]); vv(f"v_and_b32 v2, 7, {L}", [L], ["v2"])
    vv(f"v_lshl_add_u32 v3, s{S_W}, 3, v1", ["v1", f"s{S_W}"], ["v3"])
    vv("v_bfe_u32 v28, v3, 1, 3", ["v3"], ["v28"]); vv("v_xor_b32 v28, v28, v2", ["v28", "v2"], ["v28"])
    vv("v_lshlrev_b32 v28, 4, v28", ["v28"], ["v28"]); vv(f"v_lshl_add_u32 v{V_DK}, v3, 9, v28", ["v3", "v28"], [f"v{V_DK}"])
    vv("v_bfe_u32 v28, v3, 1, 2", ["v3"], ["v28"]); vv("v_lshlrev_b32 v28, 1, v28", ["v28"], ["v28"])
    vv("v_xor_b32 v28, v28, v2", ["v28", "v2"], ["v28"]); vv("v_lshlrev_b32 v28, 4, v28", ["v28"], ["v28"])
    vv(f"v_lshl_add_u32 v{V_DV}, v3, 9, v28", ["v3", "v28"], [f"v{V_DV}"])
    def srd(base, lo, hi, offs, size):
        if offs is None:
            a(salu(f"s_mov_b32 s{base}, s{lo}")); a(salu(f"s_mov_b32 s{base+1}, s{hi}"))
        else:
            a(salu(f"s_add_u32 s{base}, s{lo}, {offs}")); a(salu(f"s_addc_u32 s{base+1}, s{hi}, 0"))
        a(salu(f"s_mov_b32 s{base+2}, {size}")); a(salu(f"s_mov_b32 s{base+3}, 0x20000"))
    a(salu(f"s_lshl_b32 s{S_T0}, s{S_B}, 4")); a(salu(f"s_add_u32 s{S_T0}, s{S_T0}, s{S_H}"))
    a(salu(f"s_lshl_b32 s{S_T0}, s{S_T0}, 19"))
    srd(S_K, 38, 39, f"s{S_T0}", 524288); srd(S_V, 40, 41, f"s{S_T0}", 524288)
    a(salu(f"s_mul_i32 s{S_T0}, s{S_H}, 229376")); srd(S_WO, 44, 45, f"s{S_T0}", 229376)
    srd(S_WS, 60, 61, None, 16 * 7 * 16 * 16 * 2048)
    srd(S_OUT, 56, 57, None, 8 * 256 * 896 * 2)
    if OPT.fused:
        srd(S_DBG, 58, 59, None, 256)
        a(salu(f"s_mov_b32 s{S_T0}, {PART_BYTES}")); srd(S_FL, 60, 61, f"s{S_T0}", 32768)
        a(salu(f"s_mov_b32 s{S_T0}, {RING_OFF}")); a(salu(f"s_add_u32 s54, s60, s{S_T0}")); a(salu("s_addc_u32 s55, s61, 0"))
        a(salu(f"s_mov_b32 s{S_RG}, s54")); a(salu(f"s_mov_b32 s{S_RG+1}, s55")); a(salu(f"s_mov_b32 s{S_RG+2}, {RING_BYTES}")); a(salu(f"s_mov_b32 s{S_RG+3}, 0x20000"))
        a(salu(f"s_getreg_b32 s{S_XCC}, hwreg(HW_REG_XCC_ID, 0, 3)"))
        a(salu(f"s_lshl_b32 s{S_SIG}, s{S_G}, 4")); a(salu(f"s_add_u32 s{S_SIG}, s{S_SIG}, s{S_H}"))
        a(salu(f"s_mul_i32 s{S_T0}, s{S_G}, {14*64}"))
        a(salu(f"s_lshl_b32 s{S_T1}, s{S_W}, 4")); a(salu(f"s_add_u32 s{S_T1}, s{S_T1}, s{S_H}")); a(salu(f"s_add_u32 s50, s{S_T0}, s{S_T1}"))
        a(salu(f"s_lshl_b32 s{S_T1}, s{S_H}, 2")); a(salu(f"s_add_u32 s{S_T1}, s{S_T1}, s{S_W}")); a(salu(f"s_add_u32 s51, s{S_T0}, s{S_T1}"))
        a(salu(f"s_add_u32 s51, s51, {CONS_OFF}"))
        a(valu(f"v_min_u32 v1, 13, v{V_LANE}", [f"v{V_LANE}"], ["v1"])); a(valu("v_lshlrev_b32 v1, 6, v1", ["v1"], ["v1"]))
        a(valu("v_mov_b32 v2, 0", [], ["v2"]))
        for sr in ("s50", "s51"):
            a(tag(I(f"buffer_store_byte v2, v1, s[{S_FL}:{S_FL+3}], {sr} offen", "vst", ["v1", "v2"], data=["v2"]), "reset"))
    if OPT.codewarm:
        NL = OPT.codewarm
        a(raw("s_getpc_b64 s[50:51]", "salu")); a(salu("s_and_b32 s50, s50, 0xffffff80"))
        a(salu("s_lshr_b32 s52, s2, 3")); a(salu(f"s_mul_i32 s52, s52, {NL}"))
        a(valu(f"v_min_u32 v140, {NL-1}, v{V_LANE}", [f"v{V_LANE}"], ["v140"])); a(valu("v_add_u32 v140, s52, v140", ["v140"], ["v140"]))
        a(valu("v_lshlrev_b32 v140, 7, v140", ["v140"], ["v140"]))
        a(tag(I("global_load_dword v141, v140, s[50:51]", "vld", ["v140"], ["v141"]), "tlb"))
    if OPT.tlbwarm:
        a(valu("v_mov_b32 v134, 0", [], ["v134"]))
        items = [(S_K, "0"), (S_V, "0"), (S_WO, "0")]
        a(salu(f"s_mul_i32 s50, s{S_G}, {OPT.ring * 262144}")); items.append((S_RG, "s50"))
        a(salu(f"s_mul_i32 s51, s{S_B}, {256*896*2}")); items.append((S_OUT, "s51"))
        for n, (srd_, so) in enumerate(items[:OPT.tlbwarm]):
            a(tag(bload(135 + n, 1, 134, srd_, so, 0), "tlb"))
    return o

def add_lgkm_waits(g, cons, carried):
    seq = [(-1, regs) for regs in carried]
    for k in range(g.n):
        if g.mem[k] is not None and g.mem[k].kind == "ds": seq.append((k, g.mem[k].wr))
    lead = None
    for k, regs in cons:
        late = [n for n, (gap, w) in enumerate(seq) if gap == k - 1 and gap >= 0 and set(w) & set(regs)]
        assert not late, f"DS for MFMA {k} issued in gap {k-1}"
        idx = [n for n, (gap, w) in enumerate(seq) if gap < max(k - 1, 0) and set(w) & set(regs)]
        if not idx: continue
        last = max(idx)
        after = sum(1 for n, (gap, w) in enumerate(seq) if n > last and gap < max(k - 1, 0))
        assert after <= 15, (k, after)
        if k == 0: lead = wait_lgkm(after)
        else: g.pre[k - 1].insert(0, wait_lgkm(after))
    out = len(carried)
    if lead is not None: out = min(out, lead.meta["lgkm"])
    for k in range(g.n):
        for x in g.pre[k]:
            if "lgkm" in x.meta: out = min(out, x.meta["lgkm"])
        if g.mem[k] is not None and g.mem[k].kind == "ds":
            if out >= 14:
                g.pre[k].insert(0, wait_lgkm(8)); out = 8
            out += 1
    return lead

def place_vmem(g, gap, scalars, d, hi=None, stack=False, space=False):
    k = max(gap, 1 if stack else len(scalars))
    hi = g.n if hi is None else hi
    isdma = lambda x: x is not None and x.kind == "dma"
    while True:
        assert k < hi, f"no gap for {d.text}"
        near = OPT.vm_space and any(0 <= k + dd < g.n and dd != 0 and g.mem[k + dd] is not None and g.mem[k + dd].kind in ("vst", "vld", "dma")
                                    for dd in range(-OPT.vm_space, OPT.vm_space + 1))
        if g.mem[k] is None and not g.vec[k] and len(g.pre[k]) <= 1 and not (near and space):
            if stack:
                if not isdma(g.mem[k - 1]) and len(g.pre[k - 1]) + len(scalars) <= 3 and not any(x.kind == "barrier" for x in g.pre[k - 1]): break
            elif all(not g.pre[k - 1 - n] and not isdma(g.mem[k - 1 - n]) for n in range(len(scalars))): break
        k += 1
    if stack:
        for sc in scalars: g.put_pre(k - 1, sc)
    else:
        for n, sc in enumerate(scalars): g.put_pre(k - len(scalars) + n, sc)
    g.put_mem(k, d)
    return k

def put_scalar(g, gap, *ins):
    k = gap
    while g.pre[k]: k += 1
    g.pre[k] = list(ins)
    return k

def place_chain(g, ops, lo, hi):
    left = []
    for ins in ops:
        k = g.place_vec(ins, lo, hi) if (not left and lo < hi) else None
        if k is None: left.append(ins)
        else: lo = k + 1 if ins.kind == "trans" else k
    return lo, left

class Op:
    def __init__(self, ins, rel, dl, preds=()):
        self.ins = ins; self.rel = rel; self.dl = dl; self.preds = list(preds); self.gap = None

def list_schedule(g, ops, lo=0, hi=None):
    hi = g.n if hi is None else hi
    todo = list(ops)
    for k in range(lo, hi):
        while True:
            free = g.free_vec(k)
            if free <= 0: break
            ready = [x for x in todo if x.rel <= k and all(p.gap is not None and p.gap + d <= k for p, d in x.preds)]
            tr = [x for x in ready if x.ins.kind == "trans"]
            pl = [x for x in ready if x.ins.kind != "trans"]
            pick = None
            can_tr = free == 2 and g.mem[k] is None and not g.vec[k]
            if can_tr and tr: pick = min(tr, key=lambda x: x.dl)
            if pl:
                best = min(pl, key=lambda x: x.dl)
                if pick is None or (best.dl + 6 < pick.dl): pick = best
            if pick is None: break
            g.vec[k].append(pick.ins); pick.gap = k; todo.remove(pick)
    late = [x for x in ops if x.gap is not None and x.gap > x.dl]
    assert not late, [(x.ins.text, x.gap, x.dl) for x in late]
    return todo

def sm_ops(tile, kb, qb, rel, dl):
    i = sm_group(tile, kb, qb)
    f = [Op(i[0], rel, dl - 6), Op(i[1], rel, dl - 6), Op(i[4], rel, dl - 5), Op(i[5], rel, dl - 5)]
    x = [Op(i[2], rel, dl - 4, [(f[0], 1)]), Op(i[3], rel, dl - 4, [(f[1], 1)]), Op(i[6], rel, dl - 3, [(f[2], 1)]), Op(i[7], rel, dl - 3, [(f[3], 1)])]
    ad = [Op(i[8], rel, dl, [(x[0], 1)]), Op(i[9], rel, dl, [(x[1], 1)]), Op(i[11], rel, dl, [(x[2], 1)]), Op(i[12], rel, dl, [(x[3], 1)])]
    cv = [Op(i[10], rel, dl, [(x[0], 1), (x[1], 1)]), Op(i[13], rel, dl, [(x[2], 1), (x[3], 1)])]
    return f + x + ad + cv

def exposed(ops):
    o = []
    for n, ins in enumerate(ops):
        o.append(ins)
        if ins.kind == "trans" and n + 1 < len(ops) and ops[n + 1].kind != "trans": o.append(nop(0))
    return o

def conv_ops(acc, d, t):
    return [valu(f"v_accvgpr_read_b32 v{d}, a{acc}", [f"a{acc}"], [f"v{d}"]),
            valu(f"v_accvgpr_read_b32 v{t}, a{acc+1}", [f"a{acc+1}"], [f"v{t}"]),
            valu(f"v_accvgpr_read_b32 v{d+1}, a{acc+2}", [f"a{acc+2}"], [f"v{d+1}"]),
            valu(f"v_accvgpr_read_b32 v{t+1}, a{acc+3}", [f"a{acc+3}"], [f"v{t+1}"]),
            valu(f"v_cvt_pk_bf16_f32 v{d}, v{d}, v{t}", [f"v{d}", f"v{t}"], [f"v{d}"]),
            valu(f"v_cvt_pk_bf16_f32 v{d+1}, v{d+1}, v{t+1}", [f"v{d+1}", f"v{t+1}"], [f"v{d+1}"])]

def xlane_reduce(regs, op, tmp):
    o = []
    for swap in ("v_permlane32_swap_b32", "v_permlane16_swap_b32"):
        for n, r in enumerate(regs): o.append(valu(f"v_mov_b32 v{tmp+n}, v{r}", [f"v{r}"], [f"v{tmp+n}"]))
        o.append(nop(1))
        for n, r in enumerate(regs):
            o.append(valu(f"{swap} v{r}, v{tmp+n}", [f"v{r}", f"v{tmp+n}"], [f"v{r}", f"v{tmp+n}"]))
        o.append(nop(1))
        for n, r in enumerate(regs):
            o.append(valu(f"{op} v{r}, v{r}, v{tmp+n}", [f"v{r}", f"v{tmp+n}"], [f"v{r}"]))
    return o

def wpairs(): return [(L_X, L_X + 16384), (vslot(1), kslot(3)), (vslot(2), vslot(3))]
def wslot(tile):
    p = wpairs(); return p[(tile // 2) % len(p)][tile % 2]
XBUF = [V_S, V_P]
def xfrag(qb, cs): return XBUF[(cs // 2) & 1] + ((cs % 2) * 4 + qb) * 4
V_XD = [128, 129]
V_XR = [130, 131]
S_XB = 34
S_XCUR = 35
def x_setup():
    o = []; a = o.append
    L = f"v{V_LANE}"
    a(salu(f"s_and_b32 s{S_T1}, s{S_W}, 1")); a(salu(f"s_lshl_b32 s{S_T1}, s{S_T1}, 13"))
    a(salu(f"s_cmp_lt_u32 s{S_W}, 2")); a(salu(f"s_cselect_b32 s{S_XB}, 2, 4")); a(salu(f"s_lshl_b32 s{S_XB}, s{S_XB}, 14"))
    a(salu(f"s_add_u32 s{S_XB}, s{S_XB}, s{S_T1}"))
    assert kslot(2) == 2 << 14 and vslot(0) == 4 << 14
    a(valu(f"v_lshrrev_b32 v1, 3, {L}", [L], ["v1"])); a(valu(f"v_and_b32 v2, 7, {L}", [L], ["v2"]))
    a(valu(f"v_lshl_add_u32 v3, s{S_W}, 6, v1", ["v1", f"s{S_W}"], ["v3"]))
    a(valu("v_mul_u32_u24 v3, 896, v3", ["v3"], ["v3"]))
    a(valu("v_lshrrev_b32 v1, 1, v1", ["v1"], ["v1"]))
    for par in range(2):
        r = V_XD[par]
        a(valu(f"v_or_b32 v{r}, {4*par}, v1", ["v1"], [f"v{r}"]))
        a(valu(f"v_xor_b32 v{r}, v{r}, v2", [f"v{r}", "v2"], [f"v{r}"]))
        a(valu(f"v_lshl_add_u32 v{r}, v{r}, 4, v3", [f"v{r}", "v3"], [f"v{r}"]))
        a(valu(f"v_add_u32 v{V_XR[par]}, s{S_XB}, v{V_KA[par]}", [f"v{V_KA[par]}"], [f"v{V_XR[par]}"]))
    return o
def x_items(j):
    out = []
    for i in range(8):
        sreg = S_T2 + (i & 1)
        sc = []
        if i == 0 and j > 0: sc.append(salu(f"s_add_u32 s{S_XCUR}, s{S_XCUR}, s{S_XSTEP}", [f"s{S_XCUR}"], [f"s{S_XCUR}"]))
        sc.append(salu(f"s_add_u32 s{sreg}, s{S_XCUR}, {i*7168}", [f"s{S_XCUR}"], [f"s{sreg}"]))
        sc.append(salu(f"s_add_u32 m0, s{S_XB}, {i*1024}", [f"s{S_XB}"], ["m0"]))
        out.append((sc, tag(dma(V_XD[i & 1], S_X, f"s{sreg}", 0, OPT.x_flags), f"x{j}")))
    return out
def x_read(qb, cs): return ds_read128("v", xfrag(qb, cs), V_XR[cs & 1], qb * 2048)
def w_read(dbp, cs, jj):
    s, e = dbp >> 1, dbp & 1
    base = wslot(cs); win = base // 65536
    off = base - win * 65536 + (s >> 1) * 4096 + jj * 512 + e * 8
    return ds_read_tr("v", V_POOL + 4 * ((2 * dbp + (cs & 1)) % 8) + 2 * jj, V_WA[win][s & 1], off)

V_PF = 28
def coop_setup():
    o = []; a = o.append
    a(salu(f"s_mul_i32 s{S_T1}, s{S_H}, {112*128}"))
    a(salu(f"s_lshl_b32 s{S_T2}, s{S_W}, 12")); a(salu(f"s_add_u32 s{S_T1}, s{S_T1}, s{S_T2}"))
    a(valu(f"v_and_b32 v{V_PF}, 31, v{V_LANE}", [f"v{V_LANE}"], [f"v{V_PF}"]))
    a(valu(f"v_lshlrev_b32 v{V_PF}, 7, v{V_PF}", [f"v{V_PF}"], [f"v{V_PF}"]))
    a(valu(f"v_add_u32 v{V_PF}, s{S_T1}, v{V_PF}", [f"v{V_PF}"], [f"v{V_PF}"]))
    return o
def coop_x():
    return [tag(bload(V_PF + 1, 1, V_PF, S_X, "0", 0, OPT.pf_flags), "pf")]

V_PFW = 132
def coop_w_setup():
    o = []; a = o.append
    L = f"v{V_LANE}"
    a(salu(f"s_lshr_b32 s{S_T1}, s2, 7")); a(salu(f"s_and_b32 s{S_T1}, s{S_T1}, 1")); a(salu(f"s_lshl_b32 s{S_T1}, s{S_T1}, 5"))
    a(salu(f"s_lshl_b32 s{S_T2}, s{S_W}, 3")); a(salu(f"s_add_u32 s{S_T1}, s{S_T1}, s{S_T2}"))
    a(valu(f"v_bfe_u32 v{V_PFW}, {L}, 2, 3", [L], [f"v{V_PFW}"])); a(valu(f"v_add_u32 v{V_PFW}, s{S_T1}, v{V_PFW}", [f"v{V_PFW}"], [f"v{V_PFW}"]))
    a(valu(f"v_lshlrev_b32 v{V_PFW}, 13, v{V_PFW}", [f"v{V_PFW}"], [f"v{V_PFW}"]))
    a(valu(f"v_and_b32 v{V_PFW+1}, 3, {L}", [L], [f"v{V_PFW+1}"]))
    a(valu(f"v_lshl_add_u32 v{V_PFW}, v{V_PFW+1}, 7, v{V_PFW}", [f"v{V_PFW}", f"v{V_PFW+1}"], [f"v{V_PFW}"]))
    return o
def coop_w(j):
    return [salu(f"s_mov_b32 s{S_PFO}, {j*524288}", [], [f"s{S_PFO}"])], tag(bload(V_PFW + 1, 1, V_PFW, S_WQ, f"s{S_PFO}", 0, OPT.pf_flags), "pf")
OOL = []
def kv_off(reg, t):
    if not OPT.rot: return [salu(f"s_mov_b32 s{reg}, {t*16384}", [], [f"s{reg}"])]
    return [salu(f"s_add_u32 s{reg}, s{S_ROT}, {t*16384}", [f"s{S_ROT}"], [f"s{reg}"]), salu(f"s_and_b32 s{reg}, s{reg}, 0x7ffff", [f"s{reg}"], [f"s{reg}"])]
def phase1():
    o = []; a = o.append
    NP = 3
    a(salu(f"s_lshr_b32 s{S_T1}, s2, 7")); a(salu(f"s_and_b32 s{S_T1}, s{S_T1}, {1 if OPT.rev else 0}"))
    a(salu(f"s_cmp_eq_u32 s{S_T1}, 0"))
    a(salu(f"s_cselect_b32 s{S_WCUR}, 0, {6*524288}")); a(salu(f"s_cselect_b32 s{S_T2}, 1, -1"))
    a(salu(f"s_cselect_b32 s{S_XCUR}, 0, 768"))
    a(salu(f"s_mul_i32 s{S_WSTEP}, s{S_T2}, 524288")); a(salu(f"s_mul_i32 s{S_XSTEP}, s{S_T2}, 128"))
    o += x_setup()
    if OPT.coopx: o += coop_setup() + coop_x()
    if OPT.coopw:
        o += coop_w_setup()
        for j in range(OPT.coopw_init):
            sc, d = coop_w(j); o += sc + [d]
    def w_items(j):
        out = []
        for par in range(2):
            sreg = S_WCUR if par == 0 else S_WOFF
            for m, (m0, d) in enumerate(dma_tile("W", wslot(2 * j + par), f"s{sreg}", f"W{j}")):
                sc = [m0]
                if m == 0 and par == 0 and j > 0: sc = [salu(f"s_add_u32 s{S_WCUR}, s{S_WCUR}, s{S_WSTEP}", [f"s{S_WCUR}"], [f"s{S_WCUR}"]), m0]
                if m == 0 and par == 1: sc = [salu(f"s_add_u32 s{S_WOFF}, s{S_WCUR}, 262144", [f"s{S_WCUR}"], [f"s{S_WOFF}"]), m0]
                out.append((sc, d))
        return out
    def kv_items(kind, t):
        out = []
        for m, (m0, d) in enumerate(dma_tile(kind, kslot(t) if kind == "K" else vslot(t), f"s{S_T0}", f"{kind}{t}")):
            out.append((kv_off(S_T0, t) + [m0] if m == 0 else [m0], d))
        return out
    def now(items):
        for sc, d in items:
            o.extend(sc); a(nop(0)); a(d)
    w0 = w_items(0)
    for sc, d in w0[4:]: d.meta["tag"] = "W0b"
    if OPT.xwarm:
        a(valu(f"v_lshlrev_b32 v{V_PFW}, 4, v{V_LANE}", [f"v{V_LANE}"], [f"v{V_PFW}"]))
        a(salu(f"s_mul_i32 s{S_T0}, s{S_H}, 14336")); a(salu(f"s_lshl_b32 s{S_T1}, s{S_W}, 12")); a(salu(f"s_add_u32 s{S_T0}, s{S_T0}, s{S_T1}"))
        a(salu(f"s_add_u32 m0, s{S_T1}, {kslot(0)}", [], ["m0"])); a(nop(0))
        now(w0[:4])
        a(salu(f"s_lshl_b32 s{S_T1}, s{S_W}, 12")); a(salu(f"s_add_u32 m0, s{S_T1}, {kslot(0)}", [], ["m0"])); a(nop(0))
        for i in range(4): a(tag(dma(V_PFW, S_X, f"s{S_T0}", i * 1024, OPT.x_flags), "xw"))
        now(w0[4:]); now(x_items(0))
    else:
        now(x_items(0)); now(w0[:4]); now(w0[4:])
    if OPT.coopw:
        for j in range(OPT.coopw_init, 3):
            sc, d = coop_w(j); o += sc + [d]
    o += setup_b()
    a(wait_tag("x0"))
    xr = [x_read(qb, cs) for cs in (0, 1) for qb in range(4)]
    o += xr
    a(wait_tag("W0", "reset")); a(barrier())
    if OPT.fused:
        a(salu(f"s_or_b32 s{S_T0}, s{S_XCC}, 0x80")); a(valu(f"v_mov_b32 v1, s{S_T0}", [], ["v1"])); a(valu("v_mov_b32 v2, 0", [], ["v2"]))
        a(tag(I(f"buffer_store_byte v1, v2, s[{S_DBG}:{S_DBG+3}], s{S_SIG} offen", "vst", ["v1", "v2"], data=["v1"]), "arr"))
    o += stamp("p1_first_data") + (stamp("rt_fd") if OPT.trip_stamps else [])
    def quad0(n): return V_POOL + 4 * (n % 8)
    def w_read0(n, jj):
        dbp, cs = n % 16, n // 16
        r = w_read(dbp, cs, jj)
        return ds_read_tr("v", quad0(n) + 2 * jj, int(r.rd[0][1:]), int(r.text.split("offset:")[1]))
    carried = [x.wr for x in xr]
    for n in range(3):
        for jj in range(2):
            r = w_read0(n, jj); a(r); carried.append(r.wr)
    early = {j: [] for j in range(7)}; after = {j: [] for j in range(7)}
    early[0] += w_items(1); early[1] += w_items(2)
    for j in range(NP, 7): after[j - NP + 1] += w_items(j)
    K = lambda t: kv_items("K", t)
    V = lambda t: kv_items("V", t)
    kv = {"early": {1: K(0), 2: K(1)}, "mid": {2: K(0), 3: K(1)}, "late": {3: K(0), 4: K(1)}}[OPT.kvpf]
    for j, l in kv.items(): early[j] += l
    if OPT.kvmin:
        early = {j: (w_items(1) if j == 0 else w_items(2) if j == 1 else []) for j in range(7)} if False else early
        for j in range(7): early[j] = [it for it in early[j] if not it[1].meta["tag"].startswith("K")]
        early[4] += K(0); early[5] += K(1)
        after[5] += V(0)
        after[6] += K(2) + V(1)
    elif OPT.kvspread:
        after[5] += V(0)
        early[6] += K(2) + V(1)
        after[6] += K(3)
    else:
        after[5] += V(0)
        early[6] += K(2) + V(1) + K(3)
        after[6] += V(2)
    for j in range(7):
        ms = []
        if j == 0:
            for n in range(32):
                for qb in range(4):
                    acc = ((n % 16) * 4 + qb) * 4
                    first = n < 16
                    ms.append(mfma("a", acc, "v", quad0(n), "v", xfrag(qb, n // 16), None if first else "a", None if first else acc))
        else:
            for dbp in range(16):
                for qb in range(4):
                    for e2 in range(2):
                        acc = (dbp * 4 + qb) * 4
                        ms.append(mfma("a", acc, "v", V_POOL + 4 * ((2 * dbp + e2) % 8), "v", xfrag(qb, 2 * j + e2), "a", acc))
        g = Gaps(ms)
        if j == 0:
            for n in range(3, 32):
                for jj in range(2): g.put_mem(4 * n - 12 + 2 * jj, w_read0(n, jj))
        else:
            for dbp in range(3, 16):
                for n, (cs, jj) in enumerate([(2*j, 0), (2*j, 1), (2*j+1, 0), (2*j+1, 1)]):
                    g.put_mem(8 * dbp - 24 + 2 * n, w_read(dbp, cs, jj))
        nxt = []
        if j < 6:
            for dbp in range(3):
                for n, (cs, jj) in enumerate([(2*j+2, 0), (2*j+2, 1), (2*j+3, 0), (2*j+3, 1)]):
                    r = w_read(dbp, cs, jj); g.put_mem(104 + (1 if j == 0 else 0) + 8 * dbp + 2 * n, r); nxt.append(r.wr)
        XG = OPT.x_rd_gap if j > 0 else OPT.x_rd_gap0
        xreads = []
        if j < 6:
            for n, (cs, qb) in enumerate([(cs, qb) for cs in (2*j+2, 2*j+3) for qb in range(4)]):
                r = x_read(qb, cs); g.put_mem(XG + 2 * n, r); xreads.append(r)
        if j == 0:
            cons = [(4 * n, R("v", quad0(n), 4) + (R("v", V_S, 32) if n == 0 else [])) for n in range(32)]
        else:
            cons = [(8 * dbp, R("v", V_POOL + 4 * ((2 * dbp) % 8), 8)) for dbp in range(16)]
        if j < 6: cons.append((XG + 24, [w for r in xreads for w in r.wr]))
        cons.sort()
        lead = add_lgkm_waits(g, cons, carried)
        if j < 6:
            k = XG - 2
            while g.pre[k]: k -= 1
            g.pre[k] = [wait_tag(f"x{j+1}")]
        tags = [f"W{j+1}"] if j < 6 else ["K0"]
        k = 100
        while g.pre[k]: k -= 1
        g.pre[k] = [wait_tag(*tags), barrier()] if not OPT.p1_nowait else [barrier()]
        kb = k
        gp = 1
        if OPT.coopw and j + 3 <= 6:
            sc, d = coop_w(j + 3); gp = place_vmem(g, 2, sc, d, kb) + 1
        if j == 0:
            for sc, d in x_items(1): gp = place_vmem(g, gp, sc, d, XG - 3, stack=True) + 2
            k = 48
            while g.pre[k]: k -= 1
            g.pre[k] = [wait_tag("W0b"), barrier()]
            assert k < 52
        for sc, d in early[j]: gp = place_vmem(g, gp + len(sc) - 1 + (16 if (j == 6 and OPT.kvspread and gp == 1) else 0), sc, d, kb) + (OPT.early_step if j != 6 else (9 if OPT.kvspread else 7))
        if j < 5:
            gx = max(XG + 25, gp)
            for sc, d in x_items(j + 2): gx = place_vmem(g, gx, sc, d, stack=True) + 2
            gpa = max(kb + 2, gx)
        else: gpa = kb + 2
        for sc, d in after[j]: gpa = place_vmem(g, gpa, sc, d, stack=True) + 1
        left = []
        if j == 6:
            for dbp in range(16):
                for qb in range(4):
                    ops = conv_ops((dbp * 4 + qb) * 4, V_Q + (qb * 8 + (dbp >> 1)) * 4 + 2 * (dbp & 1), V_CT + 2 * (qb & 1))
                    if left: left += ops
                    else:
                        _, l2 = place_chain(g, ops, 8 * dbp + 2 * qb + 1 + 5, 128); left += l2
        if lead is not None: a(lead)
        em = g.emit()
        if OPT.p1_drop:
            def keep(x):
                if x.kind in ("dma", "vld"):
                    t = x.meta.get("tag", "")
                    for c in OPT.p1_drop:
                        if t.startswith(c): return False
                return True
            em = [x for x in em if keep(x)]
        if OPT.p1_noread: em = [x for x in em if x.kind != "ds" and not (x.kind == "wait" and "lgkm" in x.meta)]
        o += em
        carried = nxt
        if OPT.p1_steps: o += stamp(f"step{j}")
        if left: a(nop(7)); o += left
    if not OPT.p1_steps: o += stamp("p1_end") + (stamp("rt_p1") if OPT.trip_stamps else [])
    return o

def k_read(t, kb, s):
    return ds_read128("v", V_POOL + 4 * s, V_KA[s & 1], (kslot(t) - L_K) + (s >> 1) * 4096 + kb * 2048)
def v_read(t, db, jj):
    return ds_read_tr("v", V_POOL + 4 * (db % 8) + 2 * jj, V_VA[db & 3], (vslot(t) - L_V) + (db >> 2) * 4096 + jj * 2048)
def Sreg(kb, qb): return V_S + (kb * 4 + qb) * 4
def Preg(buf, qb): return V_P + buf * 16 + qb * 4
def qk_mfmas():
    ms = []
    for i in range(64):
        kb, sp, qb, e = i >> 5, (i >> 3) & 3, (i >> 1) & 3, i & 1
        s = 2 * sp + e; d = Sreg(kb, qb)
        ms.append(mfma("v", d, "v", V_POOL + 4 * s, "v", V_Q + (qb * 8 + s) * 4, None if s == 0 else "v", None if s == 0 else d))
    return ms
def pv_mfmas(t, first):
    ms = []
    for i in range(64):
        db, qb = i >> 2, i & 3
        acc = (db * 4 + qb) * 4
        ms.append(mfma("a", acc, "v", V_POOL + 4 * (db % 8), "v", Preg(t & 1, qb), None if first else "a", None if first else acc))
    return ms
def sm_group(tile, kb, qb):
    s = Sreg(kb, qb); p = Preg(tile & 1, qb) + 2 * kb; mc = V_MC + qb; l = V_L + qb
    f = lambda r: valu(f"v_fma_f32 v{s+r}, v{s+r}, s{S_C}, v{mc}", [f"v{s+r}", f"v{mc}", f"s{S_C}"], [f"v{s+r}"])
    x = lambda r: trans(f"v_exp_f32 v{s+r}, v{s+r}", [f"v{s+r}"], [f"v{s+r}"])
    ad = lambda r: valu(f"v_add_f32 v{l}, v{l}, v{s+r}", [f"v{l}", f"v{s+r}"], [f"v{l}"])
    cv = lambda r: valu(f"v_cvt_pk_bf16_f32 v{p+r//2}, v{s+r}, v{s+r+1}", [f"v{s+r}", f"v{s+r+1}"], [f"v{p+r//2}"])
    return [f(0), f(1), x(0), x(1), f(2), f(3), x(2), x(3), ad(0), ad(1), cv(0), ad(2), ad(3), cv(2)]

def pre_iter():
    o = []; a = o.append
    carried = []
    for s in range(8):
        r = k_read(0, 0, s); a(r); carried.append(r.wr)
    g = Gaps(qk_mfmas())
    for s in range(8): g.put_mem(8 * (s >> 1) + 10 + 4 * (s & 1), k_read(0, 1, s))
    cons = [(8 * p, R("v", V_POOL + 8 * (p % 4), 8)) for p in range(8)]
    a(add_lgkm_waits(g, cons, carried))
    if OPT.kvmin or OPT.kvspread:
        gp = 3
        for kind, t in ((("K", 3), ("V", 2)) if OPT.kvmin else (("V", 2),)):
            for m, (m0, d) in enumerate(dma_tile(kind, kslot(t) if kind == "K" else vslot(t), f"s{S_T0}", f"{kind}{t}")):
                gp = place_vmem(g, gp, (kv_off(S_T0, t) if m == 0 else []) + [m0], d, stack=True) + 5
    o += g.emit()
    a(wait_tag("K1", "V0")); a(barrier())
    o += kv_off(S_KOFF, 4)
    for m0, d in dma_tile("K", kslot(4), f"s{S_KOFF}", "K4"): a(m0); a(nop(0)); a(d)
    o += kv_off(S_KOFF, 5) + kv_off(S_VOFF, 3)
    carried = []
    for s in range(8):
        r = k_read(1, 0, s); a(r); carried.append(r.wr)
    for qb in range(4):
        m = V_MC + qb; s0 = Sreg(0, qb); s1 = Sreg(1, qb)
        a(valu(f"v_max3_f32 v{m}, v{s0}, v{s0+1}, v{s0+2}", R("v", s0, 3), [f"v{m}"]))
        a(valu(f"v_max3_f32 v{m}, v{m}, v{s0+3}, v{s1}", [f"v{m}", f"v{s0+3}", f"v{s1}"], [f"v{m}"]))
        a(valu(f"v_max3_f32 v{m}, v{m}, v{s1+1}, v{s1+2}", [f"v{m}", f"v{s1+1}", f"v{s1+2}"], [f"v{m}"]))
        a(valu(f"v_max_f32 v{m}, v{m}, v{s1+3}", [f"v{m}", f"v{s1+3}"], [f"v{m}"]))
    o += xlane_reduce([V_MC + q for q in range(4)], "v_max_f32", V_SP)
    for qb in range(4):
        m = V_MC + qb
        a(valu(f"v_mul_f32 v{m}, s{S_C}, v{m}", [f"v{m}", f"s{S_C}"], [f"v{m}"]))
        a(valu(f"v_sub_f32 v{m}, 0, v{m}", [f"v{m}"], [f"v{m}"]))
        a(valu(f"v_mov_b32 v{V_L+qb}, 0", [], [f"v{V_L+qb}"]))
    for kb, qb in [(0, 0), (0, 1), (0, 2), (0, 3), (1, 0), (1, 1)]: o += exposed(sm_group(0, kb, qb))
    o += stamp("pre_iter_end")
    return o, carried

def attn_iter(t, carried, vmw, prev, cur, first=False, adv=True, loopctl=False, extra=None, loop_body=False):
    g = Gaps(qk_mfmas() + pv_mfmas(t, first))
    for s in range(8): g.put_mem(8 * (s >> 1) + 10 + 4 * (s & 1), k_read(t + 1, 1, s))
    for db in range(16):
        for jj in range(2): g.put_mem(min(64 - OPT.v_lead + 4 * db + 2 * jj, 44 + 4 * db + 2 * jj + 18), v_read(t, db, jj))
    nxt = []
    if t + 2 <= 31:
        for s, gap in zip(range(8), [108, 110, 112, 114, 116, 120, 124, 127] if OPT.v_lead >= 20 else [109, 111, 113, 115, 117, 121, 125, 127]):
            r = k_read(t + 2, 0, s); g.put_mem(gap, r); nxt.append(r.wr)
    else:
        for db in range(5):
            for jj in range(2):
                r = v_read(t + 1, db, jj); g.put_mem(108 + 4 * db + 2 * jj, r); nxt.append(r.wr)
    cons = [(8 * p, R("v", V_POOL + 8 * (p % 4), 8)) for p in range(8)]
    cons += [(64 + 4 * db, R("v", V_POOL + 4 * (db % 8), 4)) for db in range(16)]
    lead = add_lgkm_waits(g, cons, carried)
    kb = 98
    while g.pre[kb]: kb -= 1
    g.pre[kb] = [vmw, barrier()]
    if OPT.bar_stamps and loop_body:
        g.pre[kb] = [raw("s_memtime s[94:95]", "salu"), vmw, raw("s_memtime s[96:97]", "salu"), barrier(), raw("s_memtime s[98:99]", "salu"),
                     raw("s_waitcnt lgkmcnt(0)", "wait", lgkm=0),
                     salu("s_sub_u32 s96, s96, s94"), salu("s_add_u32 s92, s92, s96"),
                     salu("s_sub_u32 s98, s98, s94"), salu("s_add_u32 s93, s93, s98")]
    gp_prev, gp_cur = OPT.dma_gaps
    placed = [place_vmem(g, gap, [m0], d, kb) for gap, (m0, d) in zip(gp_prev, prev)]
    for gap, (m0, d) in zip(gp_cur, cur): place_vmem(g, gap, [m0], d)
    if adv:
        for reg, srd, at in ((S_VOFF, S_V, (placed[OPT.nv_prev - 1] if OPT.nv_prev else 1) + 1), (S_KOFF, S_K, placed[-1] + 1)):
            k = put_scalar(g, at, salu(f"s_add_u32 s{reg}, s{reg}, 16384", [f"s{reg}"], [f"s{reg}"]))
            k = put_scalar(g, k + 1, salu(f"s_and_b32 s{reg}, s{reg}, 0x7ffff", [f"s{reg}"], [f"s{reg}"]))
            assert k < 100
        if loopctl:
            first_k = placed[-4]
            k = put_scalar(g, 2, salu(f"s_cmp_eq_u32 s{S_LOOP}, 1", [f"s{S_LOOP}"], ["scc"]),
                           salu(f"s_cselect_b32 s{S_K+2}, 0, 524288", ["scc"], [f"s{S_K+2}"]))
            assert k < first_k - 1
    if loopctl:
        k = put_scalar(g, 119, salu(f"s_sub_u32 s{S_LOOP}, s{S_LOOP}, 1", [f"s{S_LOOP}"], [f"s{S_LOOP}"]))
        k = put_scalar(g, k + 1, salu(f"s_cmp_lg_u32 s{S_LOOP}, {OPT.loop_exit}", [f"s{S_LOOP}"], ["scc"]))
        assert k <= 127
        for kk in range(k + 1, 128):
            assert all(x.kind == "wait" for x in g.pre[kk]), "SCC clobbered before the loop branch"
    if extra: extra(g, kb)
    ops = []
    for qb in (2, 3): ops += sm_ops(t, 1, qb, 0, 31 + 2 * qb)
    for qb in range(4): ops += sm_ops(t + 1, 0, qb, 25 + 2 * qb + 6, 100 + 6 * qb)
    for qb in (0, 1): ops += sm_ops(t + 1, 1, qb, 57 + 2 * qb + 6, 124 + 3 * qb)
    left = list_schedule(g, ops)
    if OPT.vfirst:
        cand = [k for k in range(128) if g.mem[k] is not None and g.mem[k].kind == "ds" and len(g.vec[k]) == 1 and g.vec[k][0].kind == "valu"
                and not (set(g.vec[k][0].wr) & set(g.mem[k].rd + g.mem[k].wr))]
        n = min(OPT.vfirst, len(cand))
        for i in range(n): g.vec_first.add(cand[(i * len(cand)) // n])
    if OPT.pad_iter:
        for n in range(OPT.pad_iter): g.post[(n * 128) // OPT.pad_iter + 3].append(nop(3))
    assert not left, f"softmax groups do not fit: {len(left)} left"
    return [lead] + g.emit(), nxt

def safe_attn():
    o = []; a = o.append
    VM, VT, VA_, TMP = 20, 24, 28, 112
    a(label("L_safe_attn")); a(wait_vm(0)); a(raw("s_waitcnt lgkmcnt(0)", "wait", lgkm=0)); a(barrier())
    for r in range(256): a(valu(f"v_accvgpr_write_b32 a{r}, 0", [], [f"a{r}"]))
    for qb in range(4):
        a(valu(f"v_mov_b32 v{VM+qb}, 0xff800000", [], [f"v{VM+qb}"])); a(valu(f"v_mov_b32 v{V_L+qb}, 0", [], [f"v{V_L+qb}"]))
    a(salu(f"s_mov_b32 s{S_KOFF}, 0")); a(salu(f"s_mov_b32 s{S_LOOP}, 32"))
    a(label("L_safe_loop"))
    for kind, slot in (("K", kslot(0)), ("V", vslot(0))):
        for m0, d in dma_tile(kind, slot, f"s{S_KOFF}", "safe"): a(m0); a(nop(0)); a(d)
    a(wait_vm(0)); a(barrier())
    qk = qk_mfmas()
    for kb in range(2):
        for s_ in range(8): a(k_read(0, kb, s_))
        a(wait_lgkm(0)); o += qk[32 * kb:32 * kb + 32]
    a(nop(7)); a(nop(7))
    for qb in range(4):
        t = VT + qb; s0 = Sreg(0, qb); s1 = Sreg(1, qb)
        a(valu(f"v_max3_f32 v{t}, v{s0}, v{s0+1}, v{s0+2}", [], [])); a(valu(f"v_max3_f32 v{t}, v{t}, v{s0+3}, v{s1}", [], []))
        a(valu(f"v_max3_f32 v{t}, v{t}, v{s1+1}, v{s1+2}", [], [])); a(valu(f"v_max_f32 v{t}, v{t}, v{s1+3}", [], []))
    o += xlane_reduce([VT + q for q in range(4)], "v_max_f32", TMP)
    for qb in range(4):
        a(valu(f"v_max_f32 v{VT+qb}, v{VT+qb}, v{VM+qb}", [], []))
        a(valu(f"v_sub_f32 v{VA_+qb}, v{VM+qb}, v{VT+qb}", [], [])); a(valu(f"v_mul_f32 v{VA_+qb}, s{S_C}, v{VA_+qb}", [], []))
        a(trans(f"v_exp_f32 v{VA_+qb}, v{VA_+qb}", [], [])); a(valu(f"v_mov_b32 v{VM+qb}, v{VT+qb}", [], []))
        a(valu(f"v_mul_f32 v{V_MC+qb}, s{S_C}, v{VT+qb}", [], [])); a(valu(f"v_sub_f32 v{V_MC+qb}, 0, v{V_MC+qb}", [], []))
        a(valu(f"v_mul_f32 v{V_L+qb}, v{V_L+qb}, v{VA_+qb}", [], []))
    for r in range(256):
        qb = (r >> 2) & 3; t = TMP + (r & 7)
        a(valu(f"v_accvgpr_read_b32 v{t}, a{r}", [], [])); a(valu(f"v_mul_f32 v{t}, v{t}, v{VA_+qb}", [], [])); a(valu(f"v_accvgpr_write_b32 a{r}, v{t}", [], []))
    for kb in range(2):
        for qb in range(4): o += exposed(sm_group(0, kb, qb))
    pv = pv_mfmas(0, False)
    for half in range(2):
        for db in range(8 * half, 8 * half + 8):
            for jj in range(2):
                a(v_read(0, db, jj))
            if db % 4 == 3: a(wait_lgkm(0))
        a(nop(1)); o += pv[32 * half:32 * half + 32]
    a(salu(f"s_add_u32 s{S_KOFF}, s{S_KOFF}, 16384")); a(salu(f"s_sub_u32 s{S_LOOP}, s{S_LOOP}, 1")); a(salu(f"s_cmp_lg_u32 s{S_LOOP}, 0"))
    a(barrier()); a(raw("s_cbranch_scc1 L_safe_loop", "branch"))
    a(nop(7)); a(nop(7))
    o += xlane_reduce([V_L + q for q in range(4)], "v_add_f32", TMP)
    for qb in range(4): a(trans(f"v_rcp_f32 v{V_L+qb}, v{V_L+qb}", [], []))
    a(nop(0))
    for db in range(16):
        for qb in range(4):
            o += conv_ops((db * 4 + qb) * 4, V_Q + (qb * 8 + (db >> 1)) * 4 + 2 * (db & 1), V_SP + 8 + 2 * (qb & 1))
    o += wo_setup()
    if OPT.fused: o += grp_setup() + [nop(1), mode_load()] + ring_scalars()
    for j in range(4):
        for sc, d in wo_dma(j): o += sc + [nop(0), d]
    a(wait_vm(0)); a(raw("s_branch L_p3_entry", "branch"))
    return o

def last_iter(carried):
    o = []; a = o.append
    for qb in (2, 3): o += exposed(sm_group(31, 1, qb))
    o += xlane_reduce([V_L + q for q in range(4)], "v_add_f32", V_SP)
    a(salu(f"s_mov_b32 s{S_T0}, 0x{f32bits(L_LIMIT):08x}"))
    for qb in range(4):
        a(valu(f"v_cmp_nge_f32 s[{50+2*(qb&1)}:{51+2*(qb&1)}], s{S_T0}, v{V_L+qb}", [f"v{V_L+qb}"], [f"s{50+2*(qb&1)}", f"s{51+2*(qb&1)}"]))
        if qb & 1:
            a(nop(0)); a(salu("s_or_b64 s[50:51], s[50:51], s[52:53]"))
            a(salu("s_mov_b64 s[54:55], s[50:51]") if qb == 1 else salu("s_or_b64 s[54:55], s[54:55], s[50:51]"))
    a(salu("s_cselect_b32 s50, 1, 0"))
    a(salu(f"s_lshl_b32 s51, s{S_W}, 2")); a(salu(f"s_add_u32 s51, s51, {L_VOTE}"))
    a(valu(f"v_mov_b32 v{V_SP}, s50", [], [f"v{V_SP}"])); a(valu(f"v_mov_b32 v{V_SP+1}, s51", [], [f"v{V_SP+1}"]))
    a(I(f"ds_write_b32 v{V_SP+1}, v{V_SP}", "ds", [f"v{V_SP}", f"v{V_SP+1}"], []))
    carried = carried + [[]]
    for qb in range(4): a(trans(f"v_rcp_f32 v{V_L+qb}, v{V_L+qb}", [f"v{V_L+qb}"], [f"v{V_L+qb}"]))
    a(nop(0))
    g = Gaps(pv_mfmas(31, False))
    for db in range(5, 8):
        for jj in range(2): g.put_mem(4 * (db - 5) + 2 * jj, v_read(31, db, jj))
    for db in range(8, 16):
        for jj in range(2): g.put_mem(12 + 4 * (db - 8) + 2 * jj, v_read(31, db, jj))
    cons = [(4 * db, R("v", V_POOL + 4 * (db % 8), 4)) for db in range(16)]
    lead = add_lgkm_waits(g, cons, carried)
    gp = put_wo(g, 2, 2, step=0)
    put_wo(g, 3, gp, step=0)
    left = []
    for db in range(16):
        for qb in range(4):
            ops = conv_ops((db * 4 + qb) * 4, V_Q + (qb * 8 + (db >> 1)) * 4 + 2 * (db & 1), V_SP + 8 + 2 * (qb & 1))
            if left: left += ops
            else:
                _, l2 = place_chain(g, ops, 4 * db + qb + 5, 64); left += l2
    a(lead); o += g.emit()
    a(nop(7)); o += left
    return o

WOBUF = [L_X, L_K, L_K + 32768, L_V, L_V + 32768, L_X, L_K]
V_DWO = 3; V_STO = V_DV
V_FR3 = 32; V_ACC3 = V_P; V_STG = 16
def wo_dma(j):
    out = []
    for i in range(8):
        sreg = S_T0 + (i & 1)
        out.append(([salu(f"s_mov_b32 s{sreg}, {j*128 + i*32*896}", [], [f"s{sreg}"]),
                     salu(f"s_add_u32 m0, s{S_W1K}, {WOBUF[j] + i*4096}", [f"s{S_W1K}"], ["m0"])],
                    tag(dma(V_DWO, S_WO, f"s{sreg}", 0, OPT.wo_flags), f"wo{j}")))
    return out
A_WOS = 100
V_WOW = 39
def wo_stage_loads(j):
    out = []
    for i in range(8):
        sreg = S_T0 + (i & 1)
        out.append(([salu(f"s_mov_b32 s{sreg}, {j*128 + i*32*896}", [], [f"s{sreg}"])],
                    tag(bload_f("a", A_WOS + 32 * (j - 5) + 4 * i, 4, V_DWO, S_WO, f"s{sreg}", 0, OPT.wo_flags), f"wos{j}")))
    return out
def wo_stage_write(j, i):
    r = A_WOS + 32 * (j - 5) + 4 * i
    return I(f"ds_write_b128 v{V_WOW + (j - 5) * 0}, {rng('a', r, 4)} offset:{i*4096}", "ds", [f"v{V_WOW}"] + R("a", r, 4), [])
def wo_setup():
    o = []; a = o.append
    L = f"v{V_LANE}"
    a(valu(f"v_lshrrev_b32 v1, 3, {L}", [L], ["v1"])); a(valu(f"v_and_b32 v2, 7, {L}", [L], ["v2"]))
    a(valu(f"v_lshl_add_u32 v3, s{S_W}, 3, v1", ["v1", f"s{S_W}"], ["v3"]))
    a(valu("v_bfe_u32 v1, v1, 1, 2", ["v1"], ["v1"])); a(valu("v_lshlrev_b32 v1, 1, v1", ["v1"], ["v1"]))
    a(valu("v_xor_b32 v1, v1, v2", ["v1", "v2"], ["v1"])); a(valu("v_lshlrev_b32 v1, 4, v1", ["v1"], ["v1"]))
    a(valu("v_mul_u32_u24 v3, 896, v3", ["v3"], ["v3"]))
    a(valu(f"v_add_u32 v{V_DWO}, v3, v1", ["v3", "v1"], [f"v{V_DWO}"]))
    return o
V_WOT = 2
def wo_touch_setup():
    return [valu(f"v_lshl_add_u32 v{V_WOT}, s{S_W}, 6, v{V_LANE}", [f"v{V_LANE}"], [f"v{V_WOT}"]),
            valu(f"v_mul_u32_u24 v{V_WOT}, 896, v{V_WOT}", [f"v{V_WOT}"], [f"v{V_WOT}"])]
def wo_touch(j): return tag(bload(1, 1, V_WOT, S_WO, "0", j * 128, OPT.wt_flags), "wt")
def l2warm_setup():
    o = []; a = o.append
    L = f"v{V_LANE}"
    a(valu(f"v_min_u32 v20, 13, {L}", [L], ["v20"]))
    a(valu("v_cmp_lt_u32 vcc, 6, v20", ["v20"], ["vcc"])); a(valu("v_lshlrev_b32 v20, 7, v20", ["v20"], ["v20"]))
    a(valu(f"v_add_u32 v21, {CONS_OFF - 7*128}, v20", ["v20"], ["v21"]))
    a(valu("v_cndmask_b32 v20, v20, v21, vcc", ["v20", "v21", "vcc"], ["v20"]))
    a(valu(f"v_min_u32 v21, 27, {L}", [L], ["v21"])); a(salu(f"s_mul_i32 s50, s{S_W}, 28")); a(valu("v_add_u32 v21, s50, v21", ["v21"], ["v21"]))
    a(valu("v_mul_u32_u24 v22, 9363, v21", ["v21"], ["v22"])); a(valu("v_lshrrev_b32 v22, 16, v22", ["v22"], ["v22"]))
    a(valu("v_mul_u32_u24 v23, 7, v22", ["v22"], ["v23"])); a(valu("v_sub_u32 v21, v21, v23", ["v21", "v23"], ["v21"]))
    a(valu("v_mul_u32_u24 v22, 1792, v22", ["v22"], ["v22"])); a(valu("v_lshl_add_u32 v21, v21, 7, v22", ["v21", "v22"], ["v21"]))
    a(salu(f"s_lshl_b32 s50, s{S_B}, 8")); a(salu(f"s_lshl_b32 s51, s{S_H}, 4")); a(salu("s_add_u32 s50, s50, s51"))
    a(salu("s_mul_i32 s50, s50, 1792")); a(salu(f"s_mul_i32 s51, s{S_BR}, 896")); a(salu(f"s_add_u32 s{S_WARM}, s50, s51"))
    a(salu(f"s_mul_i32 s{S_WARM+1}, s{S_G}, {14*64}"))
    return o
def l2warm_loads():
    return [tag(bload(22, 1, 20, S_FL, f"s{S_WARM+1}", 0), "wt"), tag(bload(23, 1, 21, S_OUT, f"s{S_WARM}", 0), "wt")]
def put_wo(g, j, start, hi=None, step=3):
    gp = start
    for sc, d in wo_dma(j): gp = place_vmem(g, gp, sc, d, hi) + step
    return gp
def va_shift(delta):
    t = (lambda r: f"v_add_u32 v{r}, {delta}, v{r}") if delta >= 0 else (lambda r: f"v_subrev_u32 v{r}, {-delta}, v{r}")
    return [valu(t(r), [f"v{r}"], [f"v{r}"]) for r in V_VA]

def part_ops(nb, qb):
    acc = V_ACC3 + 4 * ((nb * 4 + qb) % 8)
    st = V_STG + 4 * qb + 2 * (nb & 1)
    li = V_L + qb
    ops = [valu(f"v_mul_f32 v{acc+r}, v{acc+r}, v{li}", [f"v{acc+r}", f"v{li}"], [f"v{acc+r}"]) for r in range(4)]
    ops += [valu(f"v_cvt_pk_bf16_f32 v{st}, v{acc}, v{acc+1}", [f"v{acc}", f"v{acc+1}"], [f"v{st}"]),
            valu(f"v_cvt_pk_bf16_f32 v{st+1}, v{acc+2}, v{acc+3}", [f"v{acc+2}", f"v{acc+3}"], [f"v{st+1}"])]
    return ops

A_FR3 = 0; A_SEL = 224
V_POLLA, V_POLL, V_ONE, V_ZERO, V_RLD, V_OUT = 32, 33, 34, 35, 36, 37
V_RD = 40
V_GRP = V_ARR + 3
def wo_read(nb, s_, jj):
    return ds_read_tr("a", A_FR3 + 4 * (8 * (nb & 1) + s_) + 2 * jj, V_VA[nb], s_ * 4096 + jj * 2048)

V_GA = V_ARR + 2
def grp_setup():
    return [salu(f"s_lshl_b32 s{S_T0}, s{S_G}, 4"), valu(f"v_and_b32 v{V_GA}, 3, v{V_LANE}", [f"v{V_LANE}"], [f"v{V_GA}"]),
            valu(f"v_lshlrev_b32 v{V_GA}, 2, v{V_GA}", [f"v{V_GA}"], [f"v{V_GA}"]), valu(f"v_add_u32 v{V_GA}, s{S_T0}, v{V_GA}", [f"v{V_GA}"], [f"v{V_GA}"])]
V_GA3 = 38
def grp_load(dst, tg, ga=V_GA): return tag(bload(dst, 1, ga, S_DBG, "0", 0, "sc1"), tg)
def splat(x): return x * 0x01010101
def mode_load(): return grp_load(V_ARR, "grp")
def mode_check():
    o = []; a = o.append
    a(salu(f"s_or_b32 s{S_T0}, s{S_XCC}, 0x80")); a(salu(f"s_mul_i32 s50, s{S_T0}, 0x01010101"))
    a(wait_tag("grp"))
    a(valu(f"v_and_b32 v{V_ARR}, 0x87878787, v{V_ARR}", [f"v{V_ARR}"], [f"v{V_ARR}"]))
    a(valu(f"v_cmp_eq_u32 vcc, s50, v{V_ARR}", [f"v{V_ARR}"], ["vcc"])); a(nop(0))
    a(salu("s_cmp_eq_u64 vcc, -1"))
    a(salu(f"s_cselect_b64 s[{S_LOCM}:{S_LOCM+1}], -1, 0"))
    if OPT.force_fallback: a(salu("s_cmp_eq_u32 s50, 0"))
    a(raw("s_cbranch_scc0 L_grp_far", "branch")); a(label("L_grp_ok"))
    f = [label("L_grp_far"), salu(f"s_or_b32 s{S_T0}, s{S_XCC}, 0x80"), valu(f"v_mov_b32 v{V_ARR+1}, s{S_T0}", [], []),
         valu(f"v_mov_b32 v{V_ARR+3}, 0", [], []),
         raw(f"buffer_store_byte v{V_ARR+1}, v{V_ARR+3}, s[{S_DBG}:{S_DBG+3}], s{S_SIG} offen sc1", "salu"), wait_vm(0),
         salu(f"s_mov_b32 s{S_SPIN}, {SPIN_MAX}"), label("L_grp_again"),
         salu(f"s_sub_u32 s{S_SPIN}, s{S_SPIN}, 1"), salu(f"s_cmp_eq_u32 s{S_SPIN}, 0"), raw("s_cbranch_scc1 L_grp_ok", "branch")]
    if not OPT.force_fallback:
        f += [raw(f"buffer_load_dword v{V_ARR}, v{V_GA}, s[{S_DBG}:{S_DBG+3}], 0 offen sc1", "salu"), wait_vm(0),
              valu(f"v_and_b32 v{V_ARR}, 0x87878787, v{V_ARR}", [], []), valu(f"v_cmp_eq_u32 vcc, s50, v{V_ARR}", [], []), nop(0),
              salu("s_cmp_eq_u64 vcc, -1"), salu(f"s_cselect_b64 s[{S_LOCM}:{S_LOCM+1}], -1, 0"), raw("s_cbranch_scc1 L_grp_ok", "branch")]
    f += far_read(V_ARR)
    f += [valu(f"v_and_b32 v{V_ARR+1}, 0x80808080, v{V_ARR}", [], []), valu(f"v_cmp_eq_u32 vcc, 0x80808080, v{V_ARR+1}", [], []), nop(0),
          salu("s_and_b64 s[52:53], vcc, 15"), salu("s_cmp_eq_u64 s[52:53], 15"), raw("s_cbranch_scc0 L_grp_again", "branch"),
          valu(f"v_and_b32 v{V_ARR}, 0x87878787, v{V_ARR}", [], []), valu(f"v_cmp_eq_u32 vcc, s50, v{V_ARR}", [], []), nop(0),
          salu("s_and_b64 s[52:53], vcc, 15"), salu("s_cmp_eq_u64 s[52:53], 15"),
          salu(f"s_cselect_b64 s[{S_LOCM}:{S_LOCM+1}], -1, 0")]
    if OPT.force_fallback: f.append(salu(f"s_mov_b64 s[{S_LOCM}:{S_LOCM+1}], 0"))
    f.append(raw("s_branch L_grp_ok", "branch"))
    OOL.extend(f)
    return o
def far_read(dst, ga=V_GA):
    return [valu(f"v_mov_b32 v{dst}, 0", [], []), valu(f"v_cmp_gt_u32 vcc, 4, v{V_LANE}", [], []),
            raw("s_and_saveexec_b64 s[54:55], vcc", "salu"),
            raw(f"buffer_atomic_add v{dst}, v{ga}, s[{S_DBG}:{S_DBG+3}], 0 offen sc0 sc1", "salu"), wait_vm(0),
            raw("s_mov_b64 exec, s[54:55]", "salu")]

def p3_setup():
    L = f"v{V_LANE}"
    o = [valu(f"v_lshlrev_b32 v{V_STO}, 4, {L}", [L], [f"v{V_STO}"])]
    if OPT.fused:
        o += [valu(f"v_mov_b32 v{V_ZERO}, 0", [], [f"v{V_ZERO}"]), valu(f"v_mov_b32 v{V_GA3}, v{V_GA}", [f"v{V_GA}"], [f"v{V_GA3}"])]
    else: o += far_setup()
    return o

def far_setup():
    o = []; a = o.append
    L = f"v{V_LANE}"
    a(salu(f"s_mul_i32 s{S_PART}, s{S_G}, {7*16*16*2048}"))
    a(salu(f"s_lshl_b32 s{S_T2}, s{S_H}, 15")); a(salu(f"s_add_u32 s{S_RBASE}, s{S_PART}, s{S_T2}"))
    a(salu(f"s_lshl_b32 s{S_T2}, s{S_W}, 17")); a(salu(f"s_add_u32 s{S_PART}, s{S_PART}, s{S_T2}"))
    a(salu(f"s_lshl_b32 s{S_T2}, s{S_H}, 11")); a(salu(f"s_add_u32 s{S_PART}, s{S_PART}, s{S_T2}"))
    if not OPT.fused: return o
    a(salu(f"s_or_b32 s{S_T2}, s{S_XCC}, 0xf0")); a(valu(f"v_mov_b32 v{V_ONE}, s{S_T2}", [], [f"v{V_ONE}"]))
    a(valu(f"v_lshrrev_b32 v1, 5, {L}", [L], ["v1"])); a(valu("v_lshlrev_b32 v1, 11, v1", ["v1"], ["v1"]))
    a(valu(f"v_and_b32 v2, 31, {L}", [L], ["v2"])); a(valu(f"v_lshl_add_u32 v{V_RLD}, v2, 4, v1", ["v1", "v2"], [f"v{V_RLD}"]))
    a(salu(f"s_lshl_b32 s{S_T2}, s{S_W}, 9")); a(valu(f"v_add_u32 v{V_RLD}, s{S_T2}, v{V_RLD}", [f"v{V_RLD}"], [f"v{V_RLD}"]))
    a(valu(f"v_and_b32 v1, 15, {L}", [L], ["v1"])); a(valu(f"v_lshrrev_b32 v2, 4, {L}", [L], ["v2"]))
    a(valu("v_lshrrev_b32 v4, 3, v1", ["v1"], ["v4"])); a(valu("v_and_b32 v5, 1, v2", ["v2"], ["v5"]))
    a(valu("v_and_b32 v48, 1, v1", ["v1"], ["v48"])); a(valu("v_lshlrev_b32 v48, 4, v48", ["v48"], ["v48"]))
    a(valu("v_mov_b32 v49, 0x3f80", [], ["v49"])); a(valu("v_lshlrev_b32 v49, v48, v49", ["v48", "v49"], ["v49"]))
    a(valu("v_cmp_eq_u32 vcc, v4, v5", ["v4", "v5"], ["vcc"])); a(nop(1))
    a(valu("v_cndmask_b32 v49, 0, v49, vcc", ["v49", "vcc"], ["v49"]))
    a(valu("v_bfe_u32 v50, v1, 1, 2", ["v1"], ["v50"]))
    for r in range(4):
        a(valu(f"v_cmp_eq_u32 vcc, {r}, v50", ["v50"], ["vcc"])); a(nop(1))
        a(valu("v_cndmask_b32 v51, 0, v49, vcc", ["v49", "vcc"], ["v51"]))
        a(valu(f"v_accvgpr_write_b32 a{A_SEL+r}, v51", ["v51"], [f"a{A_SEL+r}"]))
    a(salu(f"s_lshl_b32 s{S_T2}, s{S_B}, 8")); a(salu(f"s_lshl_b32 s{S_T3}, s{S_H}, 4")); a(salu(f"s_add_u32 s{S_T2}, s{S_T2}, s{S_T3}"))
    a(valu(f"v_add_u32 v{V_OUT}, s{S_T2}, v1", ["v1"], [f"v{V_OUT}"])); a(valu(f"v_mul_u32_u24 v{V_OUT}, 896, v{V_OUT}", [f"v{V_OUT}"], [f"v{V_OUT}"]))
    a(salu(f"s_mul_i32 s{S_T2}, s{S_BR}, 448")); a(salu(f"s_lshr_b32 s{S_T3}, s{S_W}, 1")); a(salu(f"s_lshl_b32 s{S_T3}, s{S_T3}, 5"))
    a(salu(f"s_add_u32 s{S_T2}, s{S_T2}, s{S_T3}")); a(salu(f"s_and_b32 s{S_T3}, s{S_W}, 1")); a(salu(f"s_lshl_b32 s{S_T3}, s{S_T3}, 3"))
    a(salu(f"s_add_u32 s{S_T2}, s{S_T2}, s{S_T3}"))
    a(valu(f"v_add_u32 v{V_OUT}, s{S_T2}, v{V_OUT}", [f"v{V_OUT}"], [f"v{V_OUT}"]))
    a(valu(f"v_lshl_add_u32 v{V_OUT}, v5, 4, v{V_OUT}", ["v5", f"v{V_OUT}"], [f"v{V_OUT}"]))
    a(valu("v_lshrrev_b32 v4, 1, v2", ["v2"], ["v4"])); a(valu(f"v_lshl_add_u32 v{V_OUT}, v4, 2, v{V_OUT}", ["v4", f"v{V_OUT}"], [f"v{V_OUT}"]))
    a(valu(f"v_lshlrev_b32 v{V_OUT}, 1, v{V_OUT}", [f"v{V_OUT}"], [f"v{V_OUT}"]))
    return o

def handoff_far():
    o = [wait_vm(0), barrier(), raw("buffer_wbl2 sc1", "salu"), wait_vm(0), barrier(),
         raw(f"buffer_store_byte v{V_ONE}, v{V_ZERO}, s[{S_DBG}:{S_DBG+3}], s{S_SIG} offen sc1", "salu"), wait_vm(0),
         salu(f"s_mov_b32 s{S_SPIN}, {SPIN_MAX}"), label("L_far_poll"),
         salu(f"s_sub_u32 s{S_SPIN}, s{S_SPIN}, 1"), salu(f"s_cmp_eq_u32 s{S_SPIN}, 0"), raw("s_cbranch_scc1 L_far_done", "branch")]
    o += far_read(V_POLL, V_GA3)
    o += [valu(f"v_and_b32 v{V_POLL}, 0xf0f0f0f0, v{V_POLL}", [], []), valu(f"v_cmp_eq_u32 vcc, 0xf0f0f0f0, v{V_POLL}", [], []), nop(0),
          salu("s_and_b64 s[52:53], vcc, 15"), salu("s_cmp_eq_u64 s[52:53], 15"), raw("s_cbranch_scc0 L_far_poll", "branch"),
          label("L_far_done"), raw("buffer_inv sc1", "salu"), wait_vm(0)]
    return o

A_PIECE = 0; A_SEL2 = 224
def red_loads(j):
    out = []
    for i in range(8):
        sr = "s52" if i % 2 == 0 else "s53"
        out.append(([salu(f"s_add_u32 {sr}, s{S_RBASE}, {j*16*32768 + i*4096}", [f"s{S_RBASE}"], [sr])],
                    tag(bload_f("a", A_PIECE + 32 * j + 4 * i, 4, V_RLD, S_WS, sr, 0, "sc1"), f"rl{j}")))
    return out
def red_mfmas(j):
    d = V_RD + 4 * (j & 1)
    return [mfma("v", d, "a", A_SEL2, "a", A_PIECE + 32 * j + 4 * i, None if i == 0 else "v", None if i == 0 else d) for i in range(8)]
def red_out(j):
    d = V_RD + 4 * (j & 1)
    return [valu(f"v_cvt_pk_bf16_f32 v{d}, v{d}, v{d+1}", [f"v{d}", f"v{d+1}"], [f"v{d}"]),
            valu(f"v_cvt_pk_bf16_f32 v{d+1}, v{d+2}, v{d+3}", [f"v{d+2}", f"v{d+3}"], [f"v{d+1}"])], tag(bstore(d, 2, V_OUT, S_OUT, "0", j * 128), f"out{j}")

A_RING = 64; A_SEL4 = 96
V_RLD4, V_OUT4, V_FLA, V_FLAG1 = 48, 49, 50, 51
def ring_scalars():
    o = []; a = o.append
    a(salu(f"s_mul_i32 s50, s{S_G}, {OPT.ring * 262144}"))
    a(salu(f"s_lshl_b32 s51, s{S_W}, 16")); a(salu(f"s_add_u32 s{S_RST}, s50, s51"))
    a(salu(f"s_lshl_b32 s51, s{S_H}, 10")); a(salu(f"s_add_u32 s{S_RST}, s{S_RST}, s51"))
    a(salu(f"s_lshl_b32 s51, s{S_H}, 14")); a(salu(f"s_add_u32 s{S_RLD}, s50, s51"))
    a(salu(f"s_mul_i32 s50, s{S_G}, {14*64}"))
    a(salu(f"s_lshl_b32 s51, s{S_W}, 4"))
    a(salu(f"s_add_u32 s{S_FPW}, s50, s51")); a(salu(f"s_add_u32 s{S_FPW}, s{S_FPW}, s{S_H}"))
    a(salu(f"s_add_u32 s{S_FCR}, s50, s51")); a(salu(f"s_add_u32 s{S_FCR}, s{S_FCR}, {CONS_OFF}"))
    a(salu(f"s_lshr_b32 s51, s{S_H}, 2")); a(salu(f"s_lshl_b32 s51, s51, 4"))
    a(salu(f"s_add_u32 s{S_FPR}, s50, s51"))
    a(salu(f"s_lshl_b32 s51, s{S_H}, 2")); a(salu(f"s_add_u32 s{S_FCW}, s50, s51"))
    a(salu(f"s_add_u32 s{S_FCW}, s{S_FCW}, s{S_W}")); a(salu(f"s_add_u32 s{S_FCW}, s{S_FCW}, {CONS_OFF}"))
    return o
def ring_setup():
    o = []; a = o.append
    L = f"v{V_LANE}"
    a(valu(f"v_and_b32 v{V_FLA}, 3, {L}", [L], [f"v{V_FLA}"])); a(valu(f"v_lshlrev_b32 v{V_FLA}, 2, v{V_FLA}", [f"v{V_FLA}"], [f"v{V_FLA}"]))
    a(valu(f"v_mov_b32 v{V_FLAG1}, 1", [], [f"v{V_FLAG1}"]))
    a(valu(f"v_and_b32 v1, 15, {L}", [L], ["v1"])); a(valu(f"v_lshrrev_b32 v2, 4, {L}", [L], ["v2"]))
    a(valu(f"v_lshlrev_b32 v{V_RLD4}, 10, v2", ["v2"], [f"v{V_RLD4}"])); a(valu(f"v_lshl_add_u32 v{V_RLD4}, v1, 4, v{V_RLD4}", ["v1", f"v{V_RLD4}"], [f"v{V_RLD4}"]))
    a(salu(f"s_lshl_b32 s{S_T1}, s{S_W}, 8")); a(valu(f"v_add_u32 v{V_RLD4}, s{S_T1}, v{V_RLD4}", [f"v{V_RLD4}"], [f"v{V_RLD4}"]))
    a(valu("v_and_b32 v4, 1, v1", ["v1"], ["v4"])); a(valu("v_lshlrev_b32 v4, 4, v4", ["v4"], ["v4"]))
    a(valu("v_mov_b32 v5, 0x3f80", [], ["v5"])); a(valu("v_lshlrev_b32 v5, v4, v5", ["v4", "v5"], ["v5"]))
    a(valu("v_lshrrev_b32 v4, 1, v1", ["v1"], ["v4"]))
    for r in range(4):
        a(valu(f"v_cmp_eq_u32 vcc, {r}, v4", ["v4"], ["vcc"])); a(nop(1))
        a(valu("v_cndmask_b32 v52, 0, v5, vcc", ["v5", "vcc"], ["v52"]))
        a(valu(f"v_accvgpr_write_b32 a{A_SEL4+r}, v52", ["v52"], [f"a{A_SEL4+r}"]))
    a(salu(f"s_lshl_b32 s{S_T0}, s{S_B}, 8")); a(salu(f"s_lshl_b32 s{S_T1}, s{S_H}, 4")); a(salu(f"s_add_u32 s{S_T0}, s{S_T0}, s{S_T1}"))
    a(valu(f"v_add_u32 v{V_OUT4}, s{S_T0}, v1", ["v1"], [f"v{V_OUT4}"])); a(valu(f"v_mul_u32_u24 v{V_OUT4}, 896, v{V_OUT4}", [f"v{V_OUT4}"], [f"v{V_OUT4}"]))
    a(salu(f"s_mul_i32 s{S_T0}, s{S_BR}, 448")); a(salu(f"s_lshl_b32 s{S_T1}, s{S_W}, 2")); a(salu(f"s_add_u32 s{S_T0}, s{S_T0}, s{S_T1}"))
    a(valu(f"v_add_u32 v{V_OUT4}, s{S_T0}, v{V_OUT4}", [f"v{V_OUT4}"], [f"v{V_OUT4}"]))
    a(valu(f"v_lshl_add_u32 v{V_OUT4}, v2, 4, v{V_OUT4}", ["v2", f"v{V_OUT4}"], [f"v{V_OUT4}"]))
    a(valu(f"v_lshlrev_b32 v{V_OUT4}, 1, v{V_OUT4}", [f"v{V_OUT4}"], [f"v{V_OUT4}"]))
    a(valu("v_cmp_gt_u32 vcc, 2, v2", ["v2"], ["vcc"])); a(salu(f"s_mov_b32 s{S_T0}, 0x7ff00000")); a(valu(f"v_mov_b32 v4, s{S_T0}", [], ["v4"]))
    a(valu(f"v_cndmask_b32 v{V_OUT4}, v4, v{V_OUT4}, vcc", ["v4", f"v{V_OUT4}", "vcc"], [f"v{V_OUT4}"]))
    return o

def flag_store(base, u, tg):
    return [salu(f"s_add_u32 s55, s{base}, {u*64}", [f"s{base}"], ["s55"])], \
           tag(I(f"buffer_store_byte v{V_FLAG1}, v{V_ZERO}, s[{S_FL}:{S_FL+3}], s55 offen", "vst", [f"v{V_FLAG1}", f"v{V_ZERO}", "s55"], data=[]), tg)
def flag_poll(base, u, dst, tg):
    return [salu(f"s_add_u32 s54, s{base}, {u*64}", [f"s{base}"], ["s54"])], tag(bload(dst, 1, V_FLA, S_FL, "s54", 0, "sc1"), tg)
def flag_check(base, u, dst, tg, name):
    OOL.extend([label(f"L_{name}_spin"), salu(f"s_add_u32 s54, s{base}, {u*64}"), salu(f"s_mov_b32 s{S_SPIN}, {SPIN_MAX}"),
                label(f"L_{name}_again"),
                salu(f"s_sub_u32 s{S_SPIN}, s{S_SPIN}, 1"), salu(f"s_cmp_eq_u32 s{S_SPIN}, 0"), raw(f"s_cbranch_scc1 L_{name}_ok", "branch"),
                raw(f"buffer_load_dword v{dst}, v{V_FLA}, s[{S_FL}:{S_FL+3}], s54 offen sc1", "salu"), wait_vm(0),
                valu(f"v_cmp_ne_u32 vcc, 0x01010101, v{dst}", [], []), nop(0),
                raw(f"s_cbranch_vccnz L_{name}_again", "branch"), raw(f"s_branch L_{name}_ok", "branch")])
    dd = (lambda n: stamp("d_" + n)) if name in (f"prod{OPT.p3detail}", f"cons{OPT.p3detail}") else (lambda n: [])
    return dd(name[:4] + "A") + [wait_tag(tg)] + dd(name[:4] + "B") + [valu(f"v_cmp_ne_u32 vcc, 0x01010101, v{dst}", [f"v{dst}"], ["vcc"]), nop(0),
            raw(f"s_cbranch_vccnz L_{name}_spin", "branch"), label(f"L_{name}_ok")] + dd(name[:4] + "C")
V_PP, V_PC = 53, 54
def ring_loads(u):
    out = []
    for i in range(4):
        sr = "s52" if i % 2 == 0 else "s53"
        out.append(([salu(f"s_add_u32 {sr}, s{S_RLD}, {(u % OPT.ring)*262144 + i*4096}", [f"s{S_RLD}"], [sr])],
                    tag(bload_f("a", A_RING + 16 * (u & 1) + 4 * i, 4, V_RLD4, S_RG, sr, 0, "sc1"), f"rl{u}")))
    return out
def ring_mfmas(u):
    d = V_RD + 4 * (u & 1)
    return [mfma("v", d, "a", A_SEL4, "a", A_RING + 16 * (u & 1) + 4 * i, None if i == 0 else "v", None if i == 0 else d) for i in range(4)]
def ring_out(u):
    d = V_RD + 4 * (u & 1)
    return [valu(f"v_cvt_pk_bf16_f32 v{d}, v{d}, v{d+1}", [f"v{d}", f"v{d+1}"], [f"v{d}"]),
            valu(f"v_cvt_pk_bf16_f32 v{d+1}, v{d+2}, v{d+3}", [f"v{d+2}", f"v{d+3}"], [f"v{d+1}"])], tag(bstore(d, 2, V_OUT4, S_OUT, "0", u * 64, OPT.out_flags), f"out{u}")

def p3_stream(local, carried):
    o = []; a = o.append
    NS, D = OPT.ring, OPT.prod_delay
    Q = lambda u: 8 * u + 7
    if OPT.tmpl == 0:
        T = dict(st=[0, 1, 2, 3], sig=(7, 5), poll=(12, 5), chk=(15, 7), ld=[(16, 7), (17, 7), (18, 7), (19, 7)], csig=(22, 3), out=(30, 5),
                 cpoll=(-4, 3), cchk=(-1, 3), wo=[(-4, 7), (-3, 3), (-3, 7), (-2, 7)], va=((0, 85), (1, 61), (2, 69), (3, 101)))
    else:
        T = dict(st=[0, 2, 4, 5], sig=(8, 5), poll=(13, 7), chk=(16, 7), ld=[(17, 3), (17, 7), (19, 3), (19, 7)], csig=(22, 3), out=(30, 5),
                 cpoll=(-4, 7), cchk=(-1, 3), wo=[(-6, 7), (-2, 7), (-1, 5), (-1, 7)], va=((0, 85), (1, 37), (2, 69), (3, 101)))
    ins = {}
    if local:
        for u in range(14):
            m = 8 * (Q(u) + 22 + D) - 1
            if m < 895: ins[m] = u
    ms = []; pos = {}; redpos = {}
    for m in range(896):
        j, i = m >> 7, m & 127
        nb, qb, s_ = i >> 5, (i >> 3) & 3, i & 7
        acc = V_ACC3 + 4 * ((nb * 4 + qb) % 8)
        pos[m] = len(ms)
        ms.append(mfma("v", acc, "a", A_FR3 + 4 * (8 * (nb & 1) + s_), "v", V_Q + (qb * 8 + s_) * 4,
                       None if s_ == 0 else "v", None if s_ == 0 else acc))
        if m in ins:
            u = ins[m]; redpos[u] = len(ms); ms += ring_mfmas(u)
    g = Gaps(ms); N = g.n
    P = lambda j, i: pos[128 * j + i]
    def G(period, off):
        m = 8 * period + off
        return pos[m] if 0 <= m < 896 else None
    for j in range(7):
        for nb in range(4):
            jn, nbn = (j, nb + 1) if nb < 3 else (j + 1, 0)
            if jn > 6: continue
            for s_ in range(8):
                for jj in range(2): g.put_mem(P(j, 32 * nb + 4 * s_ + 2 * jj), wo_read(nbn, s_, jj))
    cons = []
    for j in range(7):
        for nb in range(4):
            for s_ in (0, 2, 4, 6): cons.append((P(j, 32 * nb + s_), R("a", A_FR3 + 4 * (8 * (nb & 1) + s_), 8)))
    cons.sort()
    def put_vm(k, sc, d):
        assert g.mem[k] is None and not g.post[k], (k, d.text)
        for n, x in enumerate(reversed(sc)):
            kk = k - 1 - n
            assert kk >= 0
            assert not (g.mem[kk] is not None and g.mem[kk].kind == "dma" and "m0" in x.wr)
            g.pre[kk].append(x)
        g.mem[k] = d
    def put_seq(k, seq):
        assert g.mem[k] is None and not g.post[k], k
        g.post[k] = seq
    for j in range(6):
        k = P(j, 91)
        g.pre[k] += ([wait_tag(f"wo{j+1}")] if not (OPT.wo_stage and j + 1 >= 5) else []) + [barrier()]
        sh = va_shift(WOBUF[j + 1] - WOBUF[j])
        for n, at in T['va']:
            kk = P(j, at); g.vec[kk].append(sh[n])
    if OPT.wo_stage:
        items = wo_dma(4) + wo_stage_loads(5) + wo_stage_loads(6)
        slots = [(0, 3), (0, 5), (0, 7), (1, 1), (1, 3), (1, 5), (1, 7)] + [(per, off) for per in range(2, 7) for off in (3, 5, 7)] + [(7, 5), (7, 7)]
        if OPT.tmpl == 1:
            slots = [(0, 3), (0, 5), (0, 7), (1, 1), (1, 3), (1, 5), (1, 7)] + [(per, off) for per in range(2, 7) for off in (3, 5, 7)] + [(7, 5), (7, 7)]
        for (sc, d), (per, off) in zip(items, slots): put_vm(G(per, off), sc, d)
        for j in (5, 6):
            jj_ = j - 3
            g.vec[P(jj_, 1)].insert(0, valu(f"v_add_u32 v{V_WOW}, {(WOBUF[j] - (WOBUF[j-1] if j == 6 else 0)) & 0xffffffff}, v{V_WOW}", [f"v{V_WOW}"], [f"v{V_WOW}"]))
            for i in range(8):
                u0 = 2 * jj_ + (i >> 2)
                per, off = Q(u0) + T['wo'][i & 3][0], T['wo'][i & 3][1]
                k = G(per, off)
                assert g.mem[k] is None
                g.mem[k] = wo_stage_write(j, i)
            u1 = 2 * jj_
            g.pre[G(Q(u1) + T['wo'][0][0], T['wo'][0][1]) - 1].append(wait_tag(f"wos{j}"))
    else:
      for j in (2, 3):
        items = wo_dma(j + 3)
        for n, (sc, d) in enumerate(items):
            u0 = 2 * j + (n >> 2)
            per, off = Q(u0) + T['wo'][n & 3][0], T['wo'][n & 3][1]
            put_vm(G(per, off), sc, d)
    lead = add_lgkm_waits(g, cons, carried)
    stores = {}; sgap = {}
    for u in range(14):
        j, nb = u >> 1, 2 * (u & 1) + 1
        for qb in range(4):
            sreg = S_T2 + (qb & 1)
            if local:
                st = ([salu(f"s_add_u32 s{sreg}, s{S_RST}, {(u % NS)*262144 + qb*16384}", [f"s{S_RST}"], [f"s{sreg}"])],
                      tag(bstore(V_STG + 4 * qb, 4, V_STO, S_RG, f"s{sreg}", 0, OPT.last_st if u >= 14 - NS else ""), f"st{u}"))
            else:
                so = j * 16 * 16 * 2048 + qb * 16 * 2048 + (nb >> 1) * 1024
                st = ([salu(f"s_add_u32 s{sreg}, s{S_PART}, {so}", [f"s{S_PART}"], [f"s{sreg}"])],
                      tag(bstore(V_STG + 4 * qb, 4, V_STO, S_WS, f"s{sreg}", 0), f"st{u}"))
            stores[(u, qb)] = st
            k = G(Q(u) + T['st'][qb], 3)
            sgap[(u, qb)] = k
            if k is not None: put_vm(k, *st)
    done = {}; out_left = []
    if local:
        for u in range(14):
            dd = (lambda n: stamp("d_" + n)) if u == OPT.p3detail else (lambda n: [])
            if u >= NS:
                kp, kc = G(Q(u) + T['cpoll'][0], T['cpoll'][1]), G(Q(u) + T['cchk'][0], T['cchk'][1])
                put_vm(kp, *flag_poll(S_FCR, u - NS, V_PC, f"pc{u}"))
                put_seq(kc, flag_check(S_FCR, u - NS, V_PC, f"pc{u}", f"cons{u}"))
            done[u] = "sig"
            k = G(Q(u) + T['sig'][0], T['sig'][1])
            if k is None or sgap[(u, 3)] is None: continue
            sc, d = flag_store(S_FPW, u, f"sig{u}")
            g.pre[k - 1] += dd("sigA") + [wait_tag(f"st{u}")] + dd("sigB"); put_vm(k, sc, d)
            done[u] = "poll"
            k = G(Q(u) + T['poll'][0] + D, T['poll'][1])
            if k is None: continue
            put_vm(k, *flag_poll(S_FPR, u, V_PP, f"pp{u}"))
            done[u] = "check"
            k = G(Q(u) + T['chk'][0] + D, T['chk'][1])
            if k is None: continue
            put_seq(k, flag_check(S_FPR, u, V_PP, f"pp{u}", f"prod{u}"))
            done[u] = "loads"
            if u not in redpos: continue
            for n, (sc, d) in enumerate(ring_loads(u)): put_vm(G(Q(u) + T['ld'][n][0] + D, T['ld'][n][1]), sc, d)
            g.pre[redpos[u] - 1] += dd("rlA") + [wait_tag(f"rl{u}")] + dd("rlB")
            if u <= 13 - NS: put_vm(G(Q(u) + T['csig'][0] + D, T['csig'][1]), *flag_store(S_FCW, u, f"csig{u}"))
            done[u] = "out"
            cv, st = ring_out(u)
            if u + 1 in redpos:
                g.vec[redpos[u + 1]] += cv
                put_vm(G(Q(u) + T['out'][0] + D, T['out'][1]), [], st)
                done[u] = "all"
    tail_main = []
    for p in range(112):
        j, nb, qb = p >> 4, (p >> 2) & 3, p & 3
        ops = part_ops(nb, qb)
        slots = [G(p + 2, 0), G(p + 2, 1), G(p + 2, 1), G(p + 2, 2), G(p + 2, 4), G(p + 2, 6)]
        if slots[0] is None:
            tail_main += ops
        else:
            for x, k in zip(ops, slots): g.vec[k].append(x)
        if nb & 1:
            u = 2 * j + (nb >> 1)
            if sgap[(u, qb)] is None: tail_main += stores[(u, qb)][0] + [nop(1), stores[(u, qb)][1]]
    if OPT.p3_tiles and local:
        for j in range(1, 7): g.pre[P(j, 0)] = stamp(f"tile{j}") + g.pre[P(j, 0)]
    if lead is not None: a(lead)
    em = g.emit()
    if "allst" in OPT.p3_drop: em = [x for x in em if x.kind != "vst"]
    if "pst" in OPT.p3_drop: em = [x for x in em if not (x.kind == "vst" and x.meta.get("tag", "").startswith("st"))]
    if "nospin" in OPT.p3_drop: em = [x for x in em if not (x.kind == "branch" and "vccnz" in x.text)]
    if "novm" in OPT.p3_drop: em = [x for x in em if not (x.kind == "wait" and "vmtags" in x.meta and not x.meta["vmtags"][0].startswith("wo"))]
    if "nold" in OPT.p3_drop: em = [x for x in em if not (x.kind == "vld" and x.meta.get("tag", "").startswith("rl"))]
    o += stamp("p3_stream_start") if (local or not OPT.fused) else []
    o += em
    if local or not OPT.fused: o += stamp("p3_mfma_end")
    a(nop(7)); o += exposed(tail_main)
    if local:
        todo = [u for u in range(14) if done[u] != "all"]
        LD = lambda u: [x for sc, d in ring_loads(u) for x in sc + [d]]
        POLL = lambda u: (lambda p: p[0] + [p[1]])(flag_poll(S_FPR, u, V_PP, f"pp{u}"))
        CHK = lambda u: flag_check(S_FPR, u, V_PP, f"pp{u}", f"prod{u}")
        SIG = lambda u: (lambda p: [wait_tag(f"st{u}")] + p[0] + [p[1]])(flag_store(S_FPW, u, f"sig{u}"))
        OUT = lambda u: (lambda p: p[0] + [p[1]])(ring_out(u))
        if OPT.tail2 and [done[u] for u in todo] == ["out", "loads", "poll", "sig"] and todo == [10, 11, 12, 13]:
            o += LD(11) + POLL(12) + SIG(13) + stamp("x_last_signal") + OUT(10)
            o += CHK(12) + LD(12) + [wait_tag("rl11")] + ring_mfmas(11)
            o += POLL(13) + CHK(13) + LD(13)
            o += [wait_tag("rl12")] + ring_mfmas(12) + [nop(3)] + OUT(11)
            o += [wait_tag("rl13")] + ring_mfmas(13) + [nop(3)] + OUT(12) + [nop(7)] + OUT(13)
        else:
            for u in todo:
                if done[u] == "sig": o += SIG(u)
            o += stamp("x_last_signal")
            for u in todo:
                if done[u] != "out":
                    if done[u] in ("sig", "poll"): o += POLL(u)
                    if done[u] in ("sig", "poll", "check"): o += CHK(u)
                    o += LD(u) + [wait_tag(f"rl{u}")] + ring_mfmas(u) + [nop(7)]
                o += OUT(u)
    return o

def phase3():
    o = []; a = o.append
    a(label("L_p3_entry"))
    a(wait_tag("wt", "wo0")); a(raw("s_waitcnt lgkmcnt(0)", "wait", lgkm=0)); a(barrier())
    a(valu(f"v_mov_b32 v1, {L_VOTE}", [], ["v1"]))
    a(ds_read128("v", V_SP, 1, 0)); a(wait_lgkm(0))
    a(valu(f"v_or3_b32 v{V_SP}, v{V_SP}, v{V_SP+1}, v{V_SP+2}", R("v", V_SP, 3), [f"v{V_SP}"]))
    a(valu(f"v_or_b32 v{V_SP}, v{V_SP}, v{V_SP+3}", [f"v{V_SP}", f"v{V_SP+3}"], [f"v{V_SP}"])); a(nop(0))
    a(valu(f"v_readfirstlane_b32 s50, v{V_SP}", [f"v{V_SP}"], ["s50"])); a(nop(3))
    a(salu(f"s_cmp_eq_u32 s{S_SAFE}, 0")); a(salu("s_cselect_b32 s50, s50, 0"))
    a(salu("s_cmp_lg_u32 s50, 0")); a(raw("s_cbranch_scc1 L_restart", "branch"))
    OOL.extend([label("L_restart"), wait_vm(0), raw("s_waitcnt lgkmcnt(0)", "wait", lgkm=0), barrier(),
                salu(f"s_mov_b32 s{S_SAFE}, 1"), raw("s_branch L_again", "branch")])
    o += p3_setup()
    if OPT.fused: o += ring_setup()
    o += va_shift(WOBUF[0] - L_V)
    if OPT.fused: o += mode_check()
    carried = []
    for s_ in range(8):
        for jj in range(2):
            r = wo_read(0, s_, jj); a(r); carried.append(r.wr)
            if len(carried) == 14: a(wait_lgkm(6)); carried = carried[-6:]
    a(barrier())
    if OPT.wo_stage:
        a(valu(f"v_lshlrev_b32 v{V_WOW}, 4, v{V_LANE}", [f"v{V_LANE}"], [f"v{V_WOW}"]))
        a(valu(f"v_add_u32 v{V_WOW}, s{S_W1K}, v{V_WOW}", [f"v{V_WOW}"], [f"v{V_WOW}"]))
    else:
        for sc, d in wo_dma(4): o += sc + [nop(0), d]
    if not OPT.fused:
        return o, p3_stream(False, carried) + stamp("p3_end") + ([wait_vm(0)] if OPT.stamps else []) + stamp("rt_end"), []
    o += [salu(f"s_cmp_eq_u32 s{S_LOCM}, 0"), raw("s_cbranch_scc1 L_p3_far", "branch")]
    loc = p3_stream(True, carried)
    loc += stamp("p3_end") + ([wait_vm(0)] if OPT.stamps else []) + stamp("rt_end")
    far = [label("L_p3_far")] + far_setup() + p3_stream(False, carried) + handoff_far()
    for j in range(7):
        for sc, d in red_loads(j): far += sc + [d]
    for j in range(7):
        far.append(wait_tag(f"rl{j}"))
        far += red_mfmas(j)
        if j > 0:
            cv, stt = red_out(j - 1); far += cv + [stt]
    far.append(nop(7))
    cv, stt = red_out(6); far += cv + [stt]
    far += [wait_vm(0), raw("s_endpgm", "branch")]
    return o, loc, far

def dump_regs(base, n, agpr=False):
    o = [wait_vm(0), raw("s_waitcnt lgkmcnt(0)", "wait", lgkm=0), nop(7), nop(7),
         salu(f"s_lshl_b32 s{S_T0}, s2, 2"), salu(f"s_add_u32 s{S_T0}, s{S_T0}, s{S_W}"),
         salu(f"s_mul_i32 s{S_T0}, s{S_T0}, {n*256}"), valu(f"v_lshlrev_b32 v1, 2, v{V_LANE}", [f"v{V_LANE}"], ["v1"])]
    for r in range(n):
        if agpr:
            o.append(valu(f"v_accvgpr_read_b32 v2, a{base+r}", [f"a{base+r}"], ["v2"])); o.append(bstore(2, 1, 1, S_WS, f"s{S_T0}", 0))
        else:
            o.append(bstore(base + r, 1, 1, S_WS, f"s{S_T0}", 0))
        o.append(salu(f"s_add_u32 s{S_T0}, s{S_T0}, 256"))
        if r % 32 == 31 or agpr: o.append(wait_vm(0))
    return o

def stamp_out():
    if not OPT.stamps: return []
    if OPT.dma_stamps: STAMPS[:] = [f"dma{i}" for i in range(10)] + ["loopcyc"]
    if OPT.bar_stamps: STAMPS.extend(["acc_vm", "acc_bar"])
    n = len(STAMPS)
    o = [raw("s_waitcnt lgkmcnt(0)", "wait", lgkm=0), salu(f"s_cmp_lg_u32 s{S_W}, 0"), raw("s_cbranch_scc1 L_nostamp", "branch")]
    if OPT.stamp_dbg >= 0:
        o += [salu(f"s_cmp_lg_u32 s2, {OPT.stamp_dbg}"), raw("s_cbranch_scc1 L_nostamp", "branch")]
        o += [salu("s_load_dwordx2 s[36:37], s[0:1], 88"), raw("s_waitcnt lgkmcnt(0)", "wait", lgkm=0)]
        o += [salu(f"s_mov_b32 s{S_WS}, s36"), salu(f"s_mov_b32 s{S_WS+1}, s37"), salu(f"s_mov_b32 s{S_WS+2}, 256"), salu(f"s_mov_b32 s{S_T0}, 0")]
    else:
        o.append(salu(f"s_mul_i32 s{S_T0}, s2, 64")); o.append(salu(f"s_add_u32 s{S_T0}, s{S_T0}, {STAMP_OFF}"))
        o.append(salu(f"s_mov_b32 s{S_WS+2}, {STAMP_OFF + 256*64}"))
    o.append(valu("v_mov_b32 v1, 0", [], ["v1"]))
    for k in range(n):
        if OPT.stamp_dbg >= 0:
            ref = 0 if STAMPS[k].startswith("rt") else 1
            o.append(salu(f"s_sub_u32 s{S_T1}, s{S_STAMP+2*k}, s{S_STAMP+2*ref}"))
            o.append(valu(f"v_mov_b32 v2, s{S_T1}", [], ["v2"]))
        elif STAMPS[k] == "loopcyc": o.append(valu("v_mov_b32 v2, s100", [], ["v2"]))
        elif STAMPS[k] == "acc_vm": o.append(valu("v_mov_b32 v2, s92", [], ["v2"]))
        elif STAMPS[k] == "acc_bar": o.append(valu("v_mov_b32 v2, s93", [], ["v2"]))
        else:
            o.append(valu(f"v_mov_b32 v2, s{S_STAMP+2*k}", [], ["v2"]))
        o.append(bstore(2, 1, 1, S_WS, f"s{S_T0}", 4 * k)); o.append(wait_vm(0))
    o.append(label("L_nostamp"))
    return o

def finish(): return [wait_vm(0), label("L_end"), raw("s_endpgm", "branch")]

def trip_seq(ex):
    return [raw("s_memtime s[98:99]", "salu"), raw("s_memrealtime s[100:101]", "salu"), raw("s_waitcnt lgkmcnt(0)", "wait", lgkm=0),
            salu(f"s_mov_b32 s99, m0"), salu(f"s_mov_b32 m0, s{S_LOOP}"), nop(0), valu(f"v_writelane_b32 v1, s98, m0", ["s98"], ["v1"]),
            salu(f"s_add_u32 m0, s{S_LOOP}, 8"), nop(0), valu(f"v_writelane_b32 v1, s100, m0", ["s100"], ["v1"]),
            salu("s_mov_b32 m0, s99"), salu(f"s_cmp_lg_u32 s{S_LOOP}, {ex}")]
def build(debug=None):
    _stamp_n[0] = 0; STAMPS.clear(); OOL.clear()
    pre = setup() + phase1()
    if debug == "p1":
        pre += stamp("rt_end")
        resolve_vm(pre, [])
        return pre + stamp_out() + finish()
    if debug == "q":
        resolve_vm(pre, []); check(pre, "pre")
        return pre + dump_regs(V_Q, 128) + finish()
    if OPT.dma_mode == "cluster":
        OPT.dma_gaps = ([21, 23, 25, 27], [101, 103, 105, 107]); OPT.nv_prev = 0
    elif OPT.dma_mode == "cluster2":
        OPT.dma_gaps = ([41, 43, 47, 49], [101, 103, 105, 107]); OPT.nv_prev = 0
    NCUR = len(OPT.dma_gaps[1])
    pre += [salu(f"s_cmp_lg_u32 s{S_SAFE}, 0"), raw("s_cbranch_scc1 L_safe_attn", "branch")]
    p, carried = pre_iter(); pre += p
    def batch(t):
        return dma_tile("V", vslot(t + 3), f"s{S_VOFF}", f"V{t+3}") + dma_tile("K", kslot(t + 5), f"s{S_KOFF}", f"K{t+5}")
    pre += wo_setup()
    if OPT.fused: pre += grp_setup()
    def ex0(g, kb):
        put_wo(g, 0, 3, kb, step=8)
    vf0 = OPT.vfirst
    if OPT.early_trips: OPT.vfirst = OPT.vfirst_early
    s0, carried = attn_iter(0, carried, wait_tag("V1", "K2"), [], batch(0)[:NCUR], first=True, adv=False, extra=ex0)
    OPT.vfirst = vf0
    pre += s0
    pre.append(salu(f"s_mov_b32 s{S_LOOP}, 7"))
    if OPT.bar_stamps: pre += [salu("s_mov_b32 s92, 0"), salu("s_mov_b32 s93, 0")]
    pre += stamp("loop_start") + (stamp("rt_ls") if (OPT.bar_stamps or OPT.trip_stamps) else [])
    def loop_body(name):
        nonlocal carried
        lp = [label(name)]
        for u in range(4):
            t = 1 + u
            s, carried = attn_iter(t, carried, wait_vm(12), batch(t - 1)[NCUR:], batch(t)[:NCUR], loopctl=(u == 3), loop_body=True)
            if OPT.dma_stamps and u == 1:
                s2 = []; n = 0
                for x in s:
                    if x.kind == "dma" and n < 5:
                        s2 += [raw(f"s_memtime s[{80+4*n}:{81+4*n}]", "salu"), x, raw(f"s_memtime s[{82+4*n}:{83+4*n}]", "salu")]; n += 1
                    else: s2.append(x)
                s = s2
            lp += s
        return lp
    first_loop = []
    if OPT.early_trips:
        vf = OPT.vfirst; OPT.vfirst = OPT.vfirst_early
        pd = OPT.pad_iter; OPT.pad_iter = OPT.pad_early
        vl = OPT.v_lead; OPT.v_lead = OPT.v_lead_early
        OPT.loop_exit = 7 - OPT.early_trips
        first_loop = loop_body("L_attn_early") + (trip_seq(OPT.loop_exit) if OPT.trip_stamps else []) + [raw("s_cbranch_scc1 L_attn_early", "branch")]
        OPT.vfirst = vf; OPT.loop_exit = 0; OPT.pad_iter = pd; OPT.v_lead = vl
    loop = loop_body("L_attn")
    if OPT.trip_stamps: loop += trip_seq(0)
    if OPT.loop_nodma: loop = [x for x in loop if x.kind != "dma"]
    if OPT.loop_nods: loop = [x for x in loop if x.kind != "ds" and not (x.kind == "wait" and "lgkm" in x.meta and x.meta["lgkm"] > 0)]
    if OPT.loop_nomfma: loop = [(nop(1) if x.kind == "mfma" else x) for x in loop]
    if OPT.loop_novalu: loop = [x for x in loop if x.kind not in ("valu", "trans")]
    if OPT.loop_dma_every > 1:
        cnt = [0]
        def keep(x):
            if x.kind != "dma": return True
            cnt[0] += 1
            return cnt[0] % OPT.loop_dma_every == 0
        loop = [x for x in loop if keep(x)]
    loop.append(raw("s_cbranch_scc1 L_attn", "branch"))
    post = stamp("loop_end") + (stamp("rt_le") if OPT.bar_stamps else [])
    if OPT.trip_stamps:
        post += [valu(f"v_lshlrev_b32 v2, 2, v{V_LANE}", [], ["v2"]), salu(f"s_mul_i32 s{S_T1}, s2, 64"),
                 salu(f"s_add_u32 s{S_T1}, s{S_T1}, {STAMP_OFF + 256*64}"), salu(f"s_mov_b32 s{S_WS+2}, {STAMP_OFF + 2*256*64}"),
                 valu("v_cmp_gt_u32 vcc, 16, v0", ["v0"], ["vcc"]), salu(f"s_cmp_eq_u32 s{S_W}, 0"), raw("s_cselect_b64 s[50:51], vcc, 0", "salu"),
                 raw("s_mov_b64 s[54:55], exec", "salu"), raw("s_mov_b64 exec, s[50:51]", "salu"), raw("s_cbranch_execz L_notrip", "branch"),
                 raw(f"buffer_store_dword v1, v2, s[{S_WS}:{S_WS+3}], s{S_T1} offen", "salu"), wait_vm(0), label("L_notrip"), raw("s_mov_b64 exec, s[54:55]", "salu"), wait_vm(0)]
    def ex29(g, kb):
        if OPT.fused: place_vmem(g, 40, [], mode_load(), kb)
        gp = 50
        for j in OPT.wo_touch: gp = place_vmem(g, gp, [], wo_touch(j), kb) + 12
        if OPT.l2warm and OPT.fused:
            gp = 8
            for d in l2warm_loads(): gp = place_vmem(g, gp, [], d, kb) + 10
    post += wo_touch_setup()
    if OPT.l2warm and OPT.fused: post += l2warm_setup()
    s, carried = attn_iter(29, carried, wait_tag("V30", "K32"), batch(28)[NCUR:4], [], adv=False,
                           extra=ex29)
    post += s
    def ex30(g, kb):
        put_wo(g, 1, 3, kb, step=8)
        if OPT.fused:
            k = 2
            for x in ring_scalars(): k = put_scalar(g, k, x) + 1
    s, carried = attn_iter(30, carried, wait_tag("V31"), [], [], adv=False, extra=ex30)
    post += s
    post += last_iter(carried)
    post += stamp("attn_end")
    if debug == "o":
        tailq = dump_regs(V_Q, 128)
    elif debug == "l":
        tailq = dump_regs(V_L, 4)
    else:
        common, loc, far = phase3()
        tailq = common
    post += tailq
    q = resolve_vm(pre, [])
    qexit = ["V30"] * 4 + ["K32"] * 4 + ["V31"] * NCUR
    qb_ = resolve_vm(post, qexit)
    if debug is None:
        resolve_vm(loc, qb_); resolve_vm(far, qb_)
        if far and not OPT.p3_drop: check(loop[1:] + post + far[1:], "loop+post+far", init_lgkm=[x.wr for x in pre if x.kind == "ds"][-8:], init_vm=[[]] * (8 + NCUR))
        post = post + loc
        OOL.extend(far)
    if not (OPT.p1_nowait or OPT.p1_noread or OPT.p1_drop or OPT.loop_nodma or OPT.loop_dma_every > 1 or OPT.loop_nods or OPT.loop_nomfma or OPT.loop_novalu): check(pre + loop[1:] + loop[1:], "pre+loop")
    if not (OPT.p3_drop or OPT.loop_nodma or OPT.loop_dma_every > 1 or OPT.loop_nods or OPT.loop_nomfma or OPT.loop_novalu): check(loop[1:] + post, "loop+post", init_lgkm=[x.wr for x in pre if x.kind == "ds"][-8:], init_vm=[[]] * (8 + NCUR))
    OOL.extend(safe_attn())
    if first_loop: check(pre + first_loop[1:] + first_loop[1:] + loop[1:], "pre+early+loop")
    return pre + first_loop + loop + post + stamp_out() + finish() + OOL

def reduce_kernel():
    o = []; a = o.append
    a(salu("s_cmp_ge_u32 s2, 256")); a(raw("s_cbranch_scc1 R_end", "branch"))
    a(salu("s_load_dwordx2 s[4:5], s[0:1], 80")); a(salu("s_load_dwordx2 s[6:7], s[0:1], 96"))
    a(valu("v_lshrrev_b32 v1, 6, v0", ["v0"], ["v1"])); a(valu("v_and_b32 v0, 63, v0", ["v0"], ["v0"]))
    a(valu("v_readfirstlane_b32 s32, v1", ["v1"], ["s32"]))
    a(salu("s_lshr_b32 s33, s2, 4")); a(salu("s_and_b32 s34, s2, 15"))
    a(salu("s_lshr_b32 s35, s33, 3")); a(salu("s_and_b32 s36, s33, 7"))
    a(salu("s_lshr_b32 s37, s32, 1")); a(salu("s_and_b32 s38, s32, 1"))
    a(valu("v_lshrrev_b32 v2, 5, v0", ["v0"], ["v2"])); a(valu("v_lshlrev_b32 v2, 11, v2", ["v2"], ["v2"]))
    a(valu("v_and_b32 v3, 31, v0", ["v0"], ["v3"])); a(valu("v_lshl_add_u32 v2, v3, 4, v2", ["v3", "v2"], ["v2"]))
    a(salu("s_lshl_b32 s39, s37, 10")); a(salu("s_lshl_b32 s40, s38, 9")); a(salu("s_add_u32 s39, s39, s40"))
    a(valu("v_add_u32 v2, s39, v2", ["v2"], ["v2"]))
    a(valu("v_and_b32 v8, 15, v0", ["v0"], ["v8"])); a(valu("v_lshrrev_b32 v9, 4, v0", ["v0"], ["v9"]))
    a(valu("v_lshrrev_b32 v10, 3, v8", ["v8"], ["v10"])); a(valu("v_and_b32 v11, 1, v9", ["v9"], ["v11"]))
    a(valu("v_and_b32 v12, 1, v8", ["v8"], ["v12"])); a(valu("v_lshlrev_b32 v12, 4, v12", ["v12"], ["v12"]))
    a(valu("v_mov_b32 v13, 0x3f80", [], ["v13"])); a(valu("v_lshlrev_b32 v13, v12, v13", ["v12", "v13"], ["v13"]))
    a(valu("v_cmp_eq_u32 vcc, v10, v11", ["v10", "v11"], ["vcc"])); a(nop(1))
    a(valu("v_cndmask_b32 v13, 0, v13, vcc", ["v13", "vcc"], ["v13"]))
    a(valu("v_bfe_u32 v14, v8, 1, 2", ["v8"], ["v14"]))
    for r in range(4):
        a(valu(f"v_cmp_eq_u32 vcc, {r}, v14", ["v14"], ["vcc"])); a(nop(1))
        a(valu(f"v_cndmask_b32 v{4+r}, 0, v13, vcc", ["v13", "vcc"], [f"v{4+r}"]))
    a(salu("s_lshl_b32 s41, s36, 8")); a(salu("s_lshl_b32 s42, s34, 4")); a(salu("s_add_u32 s41, s41, s42"))
    a(valu("v_add_u32 v3, s41, v8", ["v8"], ["v3"])); a(valu("v_mul_u32_u24 v3, 896, v3", ["v3"], ["v3"]))
    a(salu("s_mul_i32 s42, s35, 448")); a(salu("s_lshl_b32 s43, s37, 5")); a(salu("s_add_u32 s42, s42, s43"))
    a(salu("s_lshl_b32 s43, s38, 3")); a(salu("s_add_u32 s42, s42, s43"))
    a(valu("v_add_u32 v3, s42, v3", ["v3"], ["v3"]))
    a(valu("v_lshl_add_u32 v3, v11, 4, v3", ["v11", "v3"], ["v3"]))
    a(valu("v_lshrrev_b32 v10, 1, v9", ["v9"], ["v10"])); a(valu("v_lshl_add_u32 v3, v10, 2, v3", ["v10", "v3"], ["v3"]))
    a(valu("v_lshlrev_b32 v3, 1, v3", ["v3"], ["v3"]))
    a(raw("s_waitcnt lgkmcnt(0)", "wait", lgkm=0))
    for base, lo, size in ((8, 6, 16 * 7 * 16 * 16 * 2048), (12, 4, 8 * 256 * 896 * 2)):
        a(salu(f"s_mov_b32 s{base}, s{lo}")); a(salu(f"s_mov_b32 s{base+1}, s{lo+1}"))
        a(salu(f"s_mov_b32 s{base+2}, {size}")); a(salu(f"s_mov_b32 s{base+3}, 0x20000"))
    a(salu(f"s_mul_i32 s44, s33, {7*16*32768}")); a(salu("s_lshl_b32 s45, s34, 15")); a(salu("s_add_u32 s44, s44, s45"))
    for j in range(7):
        for i in range(8):
            a(salu(f"s_add_u32 s46, s44, {j*16*32768 + i*4096}"))
            a(tag(bload(16 + (j * 8 + i) * 4, 4, 2, 8, "s46", 0), f"p{j}"))
    for j in range(7):
        a(wait_tag(f"p{j}"))
        d = 240 + 4 * (j & 1)
        for i in range(8):
            a(mfma("v", d, "v", 4, "v", 16 + (j * 8 + i) * 4, None if i == 0 else "v", None if i == 0 else d))
        a(nop(7))
        a(valu(f"v_cvt_pk_bf16_f32 v{d}, v{d}, v{d+1}", [f"v{d}", f"v{d+1}"], [f"v{d}"]))
        a(valu(f"v_cvt_pk_bf16_f32 v{d+1}, v{d+2}, v{d+3}", [f"v{d+2}", f"v{d+3}"], [f"v{d+1}"]))
        a(tag(bstore(d, 2, 3, 12, "0", j * 128), "o"))
    resolve_vm(o, []); check(o, "reduce")
    if OPT.stamps and OPT.stamp_fwd >= 0:
        o += [wait_vm(0), salu("s_cmp_lg_u32 s2, 0"), raw("s_cbranch_scc1 R_end", "branch"),
              salu("s_load_dwordx2 s[20:21], s[0:1], 88"), raw("s_waitcnt lgkmcnt(0)", "wait", lgkm=0),
              salu("s_mov_b32 s16, s20"), salu("s_mov_b32 s17, s21"), salu("s_mov_b32 s18, 64"), salu("s_mov_b32 s19, 0x20000"),
              salu(f"s_mov_b32 s10, {16*7*16*16*2048 + 256*64}"), salu(f"s_mov_b32 s46, {16*7*16*16*2048} + 64*{OPT.stamp_fwd}"),
              valu("v_lshlrev_b32 v2, 2, v0", ["v0"], ["v2"]), bload(3, 1, 2, 8, "s46", 0), wait_vm(0), bstore(3, 1, 2, 16, "0", 0)]
    o += [wait_vm(0), label("R_end"), raw("s_endpgm", "branch")]
    return o

KD = """.section .rodata,"a"
.p2align 6
.amdhsa_kernel {name}
  .amdhsa_next_free_vgpr {vgpr}
  .amdhsa_next_free_sgpr 102
  .amdhsa_accum_offset 256
  .amdhsa_group_segment_fixed_size 0
  .amdhsa_kernarg_size 104
  .amdhsa_user_sgpr_count 2
  .amdhsa_user_sgpr_kernarg_segment_ptr 1
  .amdhsa_system_sgpr_workgroup_id_x 1
.end_amdhsa_kernel
"""
def header_comments():
    ref = open("cdna_kernels/" + NAME + ".s.ref").read().splitlines()
    out = []
    for l in ref:
        if l.startswith("; Override launch") or not l.startswith(";"): break
        out.append(l)
    return out

def stream_kernel():
    t = """
  s_cmp_ge_u32 s2, 256
  s_cbranch_scc1 S_end
  s_load_dwordx2 s[4:5], s[0:1], 8
  s_load_dwordx2 s[6:7], s[0:1], 96
  s_load_dwordx2 s[8:9], s[0:1], 48
  v_lshrrev_b32 v2, 6, v0
  s_nop 0
  v_readfirstlane_b32 s24, v2
  v_and_b32 v1, 63, v0
  v_lshlrev_b32 v14, 4, v1
  s_nop 2
  s_lshl_b32 s25, s24, 12
  v_add_u32 v14, s25, v14
  s_waitcnt lgkmcnt(0)
  s_cmp_lt_u32 s2, 128
  s_cselect_b32 s36, s4, s8
  s_cselect_b32 s37, s5, s9
  s_mov_b32 s38, 0x4000000
  s_mov_b32 s39, 0x20000
  s_and_b32 s32, s2, 127
  s_lshl_b32 s32, s32, 19
  s_barrier
  s_memrealtime s[12:13]
  s_mov_b32 s20, 0
S_loop:
  s_mov_b32 m0, s25
  s_nop 0
  buffer_load_dwordx4 v14, s[36:39], s32 offen nt lds
  buffer_load_dwordx4 v14, s[36:39], s32 offen offset:1024 nt lds
  buffer_load_dwordx4 v14, s[36:39], s32 offen offset:2048 nt lds
  buffer_load_dwordx4 v14, s[36:39], s32 offen offset:3072 nt lds
  s_add_u32 s32, s32, 16384
  s_waitcnt vmcnt(8)
  s_barrier
  s_add_u32 s20, s20, 1
  s_cmp_lt_u32 s20, 32
  s_cbranch_scc1 S_loop
  s_waitcnt vmcnt(0)
  s_barrier
  s_memrealtime s[16:17]
  s_waitcnt lgkmcnt(0)
  s_sub_u32 s16, s16, s12
  s_mov_b32 s40, s6
  s_mov_b32 s41, s7
  s_mov_b32 s42, %d
  s_mov_b32 s43, 0x20000
  s_mul_i32 s33, s2, 64
  s_add_u32 s33, s33, %d
  v_mov_b32 v2, s16
  v_mov_b32 v1, 0
  buffer_store_dword v2, v1, s[40:43], s33 offen
  s_waitcnt vmcnt(0)
S_end:
  s_endpgm""" % (16*7*16*16*2048 + 256*64, 16*7*16*16*2048 + 60)
    return t

def assemble_file(debug=None):
    main = build(debug)
    red = reduce_kernel()
    k1 = NAME + "_kernel"; k2 = "reduce_heads_kernel"
    L = header_comments()
    if OPT.stream0: L.append(f"; @launch kernel=stream_test_kernel grid=(256,1,1) block=(256,1,1) lds={LDS_BYTES}")
    if OPT.fused and not OPT.stream0:
        L.append(f"; @launch grid=(256,1,1) block=(256,1,1) lds={LDS_BYTES}")
    else:
        L.append(f"; @launch kernel={k1} grid=(256,1,1) block=(256,1,1) lds={LDS_BYTES}")
        if debug is None and not OPT.fused: L.append(f"; @launch kernel={k2} grid=(256,1,1) block=(256,1,1) lds=0")
    L.append('.amdgcn_target "amdgcn-amd-amdhsa--gfx950"')
    L.append(".text")
    for nm, body in ((k1, main), (k2, red)) if not OPT.fused else ((k1, main),):
        L += [f".globl {nm}", ".p2align 8", f".type {nm},@function", f"{nm}:", text(body)]
    if OPT.stream0: L += [".globl stream_test_kernel", ".p2align 8", ".type stream_test_kernel,@function", "stream_test_kernel:", stream_kernel()]
    L.append(KD.format(name=k1, vgpr=512))
    if not OPT.fused: L.append(KD.format(name=k2, vgpr=256))
    if OPT.stream0: L.append(KD.format(name="stream_test_kernel", vgpr=512))
    return "\n".join(L) + "\n"

if __name__ == "__main__":
    dbg = sys.argv[2] if len(sys.argv) > 2 and sys.argv[2] != "none" else None
    for kv in sys.argv[3:]:
        k, v = kv.split("=")
        v = v.replace("+", " ")
        setattr(OPT, k, {"True": True, "False": False, "()": ()}.get(v, int(v) if v.lstrip("-").isdigit() else (eval(v) if v.startswith("(") else v)))
    open(sys.argv[1], "w").write(assemble_file(dbg))
    print("stamps:", STAMPS)
```

```python
import math, struct, sys
from core import *

NAME = "concat_heads__mha_block_cached__mha_block_cached__near_ridge"
def f32bits(x): return struct.unpack("<I", struct.pack("<f", x))[0]
CSC = math.log2(math.e) / 16.0

S_X, S_WQ, S_K, S_V, S_WO, S_WS, S_OUT = 4, 8, 12, 16, 20, 24, 28
S_W, S_W1K = 32, 33
S_QB = ["0", "s34", "s35", "s62"]
S_C = 63
S_KOFF, S_VOFF = 64, 65
S_LOOP = 66
S_T0, S_T1, S_T2, S_T3 = 67, 68, 69, 70
S_G, S_H, S_B, S_BR = 71, 72, 73, 74
S_WOFF = 76
S_PART = 77
S_WCUR, S_WSTEP, S_XSTEP = 78, 79, 75
S_FL, S_DBG = 36, 40
S_LOCM = 44
S_RBASE, S_SIG, S_POLL, S_XCC = 46, 47, 48, 49
S_RG = 56
S_SPIN = 62
S_WARM = 34
S_SAFE = 3
S_ROT = 52
S_PFO = 53
S_RST, S_RLD, S_FPW, S_FPR, S_FCW, S_FCR = 60, 61, 75, 78, 79, 76
S_STAMP = 80
V_LANE = 0
V_KA = [4, 5]
V_VA = [6, 7, 8, 9]
V_DK, V_DV = 10, 11
V_L = 12
V_MC = 16
V_SP = 20
V_POOL = 32
V_S = 64
V_P = 96
V_Q = 128
V_XA = 20; V_DW = 21; V_WA = [[22, 23], [24, 25], [26, 27]]
V_CT = 28
V_ARR = 24
L_K = 0; L_V = 65536; L_X = 131072
def kslot(t): return L_K + 16384 * (t % 4)
def vslot(t): return L_V + 16384 * (t % 4)
LDS_BYTES = 163840
L_VOTE = L_V + 2 * 16384
L_LIMIT = 2.0 ** 30

PART_BYTES = 16 * 7 * 16 * 16 * 2048
FLAG_BYTES = 16 * 7 * 4 * 64
STAMP_OFF = PART_BYTES + 32768
RING_OFF = PART_BYTES + (1 << 20)
RING_BYTES = 32 << 20
CONS_OFF = 16384
SPIN_MAX = 1 << 19
class Opt:
    kv_flags = "nt"
    w_flags = ""
    x_flags = ""
    wo_flags = "nt"
    st_flags = ""
    stamps = False
    codewarm_first = True
    codewarm = 16
    pad_early = 0
    v_lead = 20
    v_lead_early = 20
    l2warm = False
    kvspread = False
    tlbwarm = 3
    remap = 0
    tail2 = True
    tmpl = 1
    wo_stage = True
    p3_tiles = False
    early_trips = 0
    vfirst_early = 37
    loop_exit = 0
    xwarm = True
    kvmin = False
    vfirst = 37
    dma_stamps = False
    rot = 0
    pad_iter = 0
    last_st = 'nt'
    out_flags = ''
    coopw = False
    coopw_init = 2
    pf_flags = ''
    early_wb = 0
    wt_flags = ''
    prod_delay = 0
    ring = 4
    vm_space = 0
    p3_drop = ''
    wo_step = 13
    cons_chk = 22
    wo_touch = (4, 5, 6)
    red_m = 200
    cons_poll = 50
    ld_min = 16
    stamp_skip = 'p1_first_data,pre_iter_end'
    p3detail = -1
    st_lag = 21
    force_fallback = False
    red_at = 60
    sig_lag = 28
    poll_lag = 22
    chk_lag = 22
    fused = True
    stream0 = False
    loop_nods = False
    loop_nomfma = False
    loop_novalu = False
    loop_nodma = False
    loop_dma_every = 1
    bar_stamps = False
    trip_stamps = False
    dma_mode = 'spread'
    dma_gaps = ([5, 21, 37, 53, 69, 85], [101, 117])
    nv_prev = 2
    stamp_fwd = -1
    stamp_dbg = -1
    x_rd_gap0 = 65
    x_rd_gap = 33
    p1_steps = False
    p1_drop = ''
    rev = False
    init_w = 2
    early_step = 2
    x_gap = 60
    p1_nowait = False
    p1_noread = False
    wring = 3
    kvpf = 'late'
    coopx = False
    init_more = 0
OPT = Opt()

def wait_tag(*tags): return I("s_waitcnt vmcnt(?)", "wait", vmtags=list(tags))
def tag(ins, t):
    ins.meta["tag"] = t; return ins
def resolve_vm(stream, queue):
    q = list(queue)
    for ins in stream:
        if ins.kind in ("dma", "vld", "vst"):
            q.append(ins.meta.get("tag", "?"))
        elif ins.kind == "wait":
            if "vmtags" in ins.meta:
                idx = [n for n, t in enumerate(q) if t in ins.meta["vmtags"]]
                n = len(q) - 1 - max(idx) if idx else len(q)
                n = min(n, 63)
                ins.text = f"s_waitcnt vmcnt({n})"; ins.meta["vm"] = n
            if "vm" in ins.meta:
                n = ins.meta["vm"]
                if len(q) > n: q = q[len(q) - n:] if n else []
    return q

_stamp_n = [0]
def stamp(name):
    if not OPT.stamps: return []
    if OPT.dma_stamps:
        if name == "loop_start": return [raw("s_memtime s[100:101]", "salu"), raw("s_waitcnt lgkmcnt(0)", "wait", lgkm=0)]
        if name == "loop_end": return [raw("s_memtime s[76:77]", "salu"), raw("s_waitcnt lgkmcnt(0)", "wait", lgkm=0), salu("s_sub_u32 s100, s76, s100")]
        return []
    if OPT.stamp_skip and name in OPT.stamp_skip.split(","): return []
    if OPT.p3detail >= 0 and not name.startswith("d_") and name not in ("rt_end",): return []
    if OPT.bar_stamps and name not in ("rt_ls", "rt_le", "loop_start", "loop_end", "rt_end"): return []
    n = _stamp_n[0]; _stamp_n[0] += 1
    STAMPS.append(name)
    op = "s_memrealtime" if name.startswith("rt") else "s_memtime"
    return [raw(f"{op} s[{S_STAMP+2*n}:{S_STAMP+2*n+1}]", "salu")]
STAMPS = []

def m0_set(base): return salu(f"s_add_u32 m0, s{S_W1K}, {base}", [f"s{S_W1K}"], ["m0"])

def dma_tile(kind, slot_base, soff, tg):
    voff, srd, fl = {"K": (V_DK, S_K, OPT.kv_flags), "V": (V_DV, S_V, OPT.kv_flags), "W": (V_DW, S_WQ, OPT.w_flags)}[kind]
    return [(m0_set(slot_base + dc * 3968), tag(dma(voff, srd, soff, dc * 128, fl), tg)) for dc in range(4)]

def code_warm():
    o = []; a = o.append
    NL = OPT.codewarm
    a(raw("s_getpc_b64 s[50:51]", "salu")); a(salu("s_and_b32 s50, s50, 0xffffff80"))
    a(salu("s_lshr_b32 s52, s2, 3")); a(salu(f"s_mul_i32 s52, s52, {NL}"))
    a(valu(f"v_min_u32 v140, {NL-1}, v{V_LANE}", [f"v{V_LANE}"], ["v140"])); a(valu("v_add_u32 v140, s52, v140", ["v140"], ["v140"]))
    a(valu("v_lshlrev_b32 v140, 7, v140", ["v140"], ["v140"]))
    a(tag(I("global_load_dword v141, v140, s[50:51]", "vld", ["v140"], ["v141"]), "tlb"))
    return o

def setup():
    o = []; a = o.append
    a(salu("s_cmp_ge_u32 s2, 256")); a(raw("s_cbranch_scc1 L_end", "branch"))
    o += stamp("rt_start") + stamp("start")
    if OPT.remap:
        a(salu("s_lshr_b32 s4, s2, 3")); a(salu("s_add_u32 s4, s4, s2")); a(salu("s_and_b32 s4, s4, 7"))
        a(salu("s_andn2_b32 s5, s2, 7")); a(salu("s_or_b32 s4, s4, s5"))
        if OPT.remap == 2: a(salu("s_cmp_ge_u32 s2, 128")); a(salu("s_cselect_b32 s2, s4, s2"))
        else: a(salu("s_mov_b32 s2, s4"))
    a(valu("v_lshrrev_b32 v1, 6, v0", ["v0"], ["v1"]))
    a(valu(f"v_and_b32 v{V_LANE}, 63, v0", ["v0"], ["v0"]))
    a(salu(f"s_mov_b32 s{S_SAFE}, 0"))
    a(valu(f"v_readfirstlane_b32 s{S_W}, v1", ["v1"], [f"s{S_W}"]))
    if OPT.codewarm and OPT.codewarm_first: o += code_warm()
    a(label("L_again"))
    a(salu("s_load_dwordx16 s[36:51], s[0:1], 0")); a(salu("s_load_dwordx8 s[52:59], s[0:1], 64"))
    a(salu("s_load_dwordx2 s[60:61], s[0:1], 96"))
    a(nop(3))
    a(salu(f"s_and_b32 s{S_T0}, s2, 7")); a(salu(f"s_lshr_b32 s{S_T1}, s2, 3"))
    a(salu(f"s_and_b32 s{S_H}, s{S_T1}, 15")); a(salu(f"s_lshr_b32 s{S_T1}, s{S_T1}, 4"))
    a(salu(f"s_lshl_b32 s{S_G}, s{S_T0}, 1")); a(salu(f"s_add_u32 s{S_G}, s{S_G}, s{S_T1}"))
    a(salu(f"s_lshr_b32 s{S_BR}, s{S_G}, 3")); a(salu(f"s_and_b32 s{S_B}, s{S_G}, 7"))
    a(salu(f"s_lshl_b32 s{S_W1K}, s{S_W}, 10"))
    if OPT.rot:
        a(salu(f"s_and_b32 s{S_T0}, s2, 7")); a(salu(f"s_mul_i32 s{S_T0}, s{S_T0}, {OPT.rot}")); a(salu(f"s_lshr_b32 s{S_T1}, s2, 3"))
        a(salu(f"s_add_u32 s{S_T0}, s{S_T0}, s{S_T1}")); a(salu(f"s_and_b32 s{S_T0}, s{S_T0}, 31")); a(salu(f"s_lshl_b32 s33, s{S_T0}, 14") if False else salu(f"s_lshl_b32 s{S_T3}, s{S_T0}, 14"))
    a(salu(f"s_mov_b32 s{S_C}, 0x{f32bits(CSC):08x}"))
    L = f"v{V_LANE}"
    def vv(t, rd, wr): a(valu(t, rd, wr))
    vv(f"v_and_b32 v1, 15, {L}", [L], ["v1"]); vv(f"v_lshrrev_b32 v2, 4, {L}", [L], ["v2"])
    vv("v_lshrrev_b32 v3, 1, v1", ["v1"], ["v3"])
    for sp in range(2):
        r = V_KA[sp]
        vv(f"v_add_u32 v{r}, {4*sp}, v2", ["v2"], [f"v{r}"])
        vv(f"v_xor_b32 v{r}, v{r}, v3", [f"v{r}", "v3"], [f"v{r}"])
        vv(f"v_lshlrev_b32 v{r}, 4, v{r}", [f"v{r}"], [f"v{r}"])
        vv(f"v_lshl_add_u32 v{r}, v1, 7, v{r}", ["v1", f"v{r}"], [f"v{r}"])
    vv(f"v_lshrrev_b32 v1, 3, {L}", [L], ["v1"]); vv(f"v_and_b32 v2, 7, {L}", [L], ["v2"])
    vv(f"v_lshl_add_u32 v3, s{S_W}, 3, v1", ["v1", f"s{S_W}"], ["v3"])
    vv("v_bfe_u32 v28, v3, 1, 1", ["v3"], ["v28"]); vv("v_lshlrev_b32 v28, 2, v28", ["v28"], ["v28"])
    vv("v_xor_b32 v28, v28, v2", ["v28", "v2"], ["v28"]); vv("v_lshlrev_b32 v28, 4, v28", ["v28"], ["v28"])
    vv(f"v_lshl_add_u32 v{V_DW}, v3, 13, v28", ["v3", "v28"], [f"v{V_DW}"])
    a(raw("s_waitcnt lgkmcnt(0)", "wait", lgkm=0))
    a(salu(f"s_cmp_eq_u32 s{S_BR}, 0"))
    for i in range(10): a(salu(f"s_cselect_b32 s{36+i}, s{36+i}, s{46+i}"))
    if OPT.rot: a(salu(f"s_mov_b32 s{S_ROT}, s{S_T3}"))
    def srd(base, lo, hi, offs, size):
        if offs is None:
            a(salu(f"s_mov_b32 s{base}, s{lo}")); a(salu(f"s_mov_b32 s{base+1}, s{hi}"))
        else:
            a(salu(f"s_add_u32 s{base}, s{lo}, {offs}")); a(salu(f"s_addc_u32 s{base+1}, s{hi}, 0"))
        a(salu(f"s_mov_b32 s{base+2}, {size}")); a(salu(f"s_mov_b32 s{base+3}, 0x20000"))
    a(salu(f"s_mul_i32 s{S_T0}, s{S_B}, 229376")); srd(S_X, 36, 37, f"s{S_T0}", 229376)
    a(salu(f"s_lshl_b32 s{S_T0}, s{S_H}, 9")); srd(S_WQ, 42, 43, f"s{S_T0}", 0)
    a(salu(f"s_sub_u32 s{S_WQ+2}, {448*8192}, s{S_T0}"))
    return o

def setup_b():
    o = []; a = o.append
    L = f"v{V_LANE}"
    def vv(t, rd, wr): a(valu(t, rd, wr))
    vv(f"v_lshrrev_b32 v2, 4, {L}", [L], ["v2"])
    vv(f"v_bfe_u32 v28, {L}, 2, 2", [L], ["v28"]); vv(f"v_and_b32 v29, 3, {L}", [L], ["v29"])
    vv("v_lshl_add_u32 v30, v2, 2, v28", ["v2", "v28"], ["v30"])
    vv("v_bfe_u32 v31, v30, 1, 2", ["v30"], ["v31"])
    for p in range(4):
        r = V_VA[p]
        vv(f"v_xor_b32 v{r}, {p}, v31", ["v31"], [f"v{r}"])
        vv(f"v_lshlrev_b32 v{r}, 5, v{r}", [f"v{r}"], [f"v{r}"])
        vv(f"v_lshl_add_u32 v{r}, v30, 7, v{r}", ["v30", f"v{r}"], [f"v{r}"])
        vv(f"v_lshl_add_u32 v{r}, v29, 3, v{r}", ["v29", f"v{r}"], [f"v{r}"])
        vv(f"v_add_u32 v{r}, {L_V}, v{r}", [f"v{r}"], [f"v{r}"])
    vv("v_lshl_add_u32 v30, v2, 3, v28", ["v2", "v28"], ["v30"])
    vv("v_lshrrev_b32 v31, 1, v28", ["v28"], ["v31"])
    for sp in range(2):
        r = V_WA[0][sp]
        vv(f"v_xor_b32 v{r}, {sp}, v31", ["v31"], [f"v{r}"])
        vv(f"v_lshl_add_u32 v{r}, v{r}, 2, v29", [f"v{r}", "v29"], [f"v{r}"])
        vv(f"v_lshlrev_b32 v{r}, 4, v{r}", [f"v{r}"], [f"v{r}"])
        vv(f"v_lshl_add_u32 v{r}, v30, 7, v{r}", ["v30", f"v{r}"], [f"v{r}"])
        for win in (1, 2):
            vv(f"v_add_u32 v{V_WA[win][sp]}, {65536*win}, v{r}", [f"v{r}"], [f"v{V_WA[win][sp]}"])
    vv(f"v_lshrrev_b32 v1, 3, {L}", [L], ["v1"]); vv(f"v_and_b32 v2, 7, {L}", [L], ["v2"])
    vv(f"v_lshl_add_u32 v3, s{S_W}, 3, v1", ["v1", f"s{S_W}"], ["v3"])
    vv("v_bfe_u32 v28, v3, 1, 3", ["v3"], ["v28"]); vv("v_xor_b32 v28, v28, v2", ["v28", "v2"], ["v28"])
    vv("v_lshlrev_b32 v28, 4, v28", ["v28"], ["v28"]); vv(f"v_lshl_add_u32 v{V_DK}, v3, 9, v28", ["v3", "v28"], [f"v{V_DK}"])
    vv("v_bfe_u32 v28, v3, 1, 2", ["v3"], ["v28"]); vv("v_lshlrev_b32 v28, 1, v28", ["v28"], ["v28"])
    vv("v_xor_b32 v28, v28, v2", ["v28", "v2"], ["v28"]); vv("v_lshlrev_b32 v28, 4, v28", ["v28"], ["v28"])
    vv(f"v_lshl_add_u32 v{V_DV}, v3, 9, v28", ["v3", "v28"], [f"v{V_DV}"])
    def srd(base, lo, hi, offs, size):
        if offs is None:
            a(salu(f"s_mov_b32 s{base}, s{lo}")); a(salu(f"s_mov_b32 s{base+1}, s{hi}"))
        else:
            a(salu(f"s_add_u32 s{base}, s{lo}, {offs}")); a(salu(f"s_addc_u32 s{base+1}, s{hi}, 0"))
        a(salu(f"s_mov_b32 s{base+2}, {size}")); a(salu(f"s_mov_b32 s{base+3}, 0x20000"))
    a(salu(f"s_lshl_b32 s{S_T0}, s{S_B}, 4")); a(salu(f"s_add_u32 s{S_T0}, s{S_T0}, s{S_H}"))
    a(salu(f"s_lshl_b32 s{S_T0}, s{S_T0}, 19"))
    srd(S_K, 38, 39, f"s{S_T0}", 524288); srd(S_V, 40, 41, f"s{S_T0}", 524288)
    a(salu(f"s_mul_i32 s{S_T0}, s{S_H}, 229376")); srd(S_WO, 44, 45, f"s{S_T0}", 229376)
    srd(S_WS, 60, 61, None, 16 * 7 * 16 * 16 * 2048)
    srd(S_OUT, 56, 57, None, 8 * 256 * 896 * 2)
    if OPT.fused:
        srd(S_DBG, 58, 59, None, 256)
        a(salu(f"s_mov_b32 s{S_T0}, {PART_BYTES}")); srd(S_FL, 60, 61, f"s{S_T0}", 32768)
        a(salu(f"s_mov_b32 s{S_T0}, {RING_OFF}")); a(salu(f"s_add_u32 s54, s60, s{S_T0}")); a(salu("s_addc_u32 s55, s61, 0"))
        a(salu(f"s_mov_b32 s{S_RG}, s54")); a(salu(f"s_mov_b32 s{S_RG+1}, s55")); a(salu(f"s_mov_b32 s{S_RG+2}, {RING_BYTES}")); a(salu(f"s_mov_b32 s{S_RG+3}, 0x20000"))
        a(salu(f"s_getreg_b32 s{S_XCC}, hwreg(HW_REG_XCC_ID, 0, 3)"))
        a(salu(f"s_lshl_b32 s{S_SIG}, s{S_G}, 4")); a(salu(f"s_add_u32 s{S_SIG}, s{S_SIG}, s{S_H}"))
        a(salu(f"s_mul_i32 s{S_T0}, s{S_G}, {14*64}"))
        a(salu(f"s_lshl_b32 s{S_T1}, s{S_W}, 4")); a(salu(f"s_add_u32 s{S_T1}, s{S_T1}, s{S_H}")); a(salu(f"s_add_u32 s50, s{S_T0}, s{S_T1}"))
        a(salu(f"s_lshl_b32 s{S_T1}, s{S_H}, 2")); a(salu(f"s_add_u32 s{S_T1}, s{S_T1}, s{S_W}")); a(salu(f"s_add_u32 s51, s{S_T0}, s{S_T1}"))
        a(salu(f"s_add_u32 s51, s51, {CONS_OFF}"))
        a(valu(f"v_min_u32 v1, 13, v{V_LANE}", [f"v{V_LANE}"], ["v1"])); a(valu("v_lshlrev_b32 v1, 6, v1", ["v1"], ["v1"]))
        a(valu("v_mov_b32 v2, 0", [], ["v2"]))
        for sr in ("s50", "s51"):
            a(tag(I(f"buffer_store_byte v2, v1, s[{S_FL}:{S_FL+3}], {sr} offen", "vst", ["v1", "v2"], data=["v2"]), "reset"))
    if OPT.codewarm and not OPT.codewarm_first: o += code_warm()
    if OPT.tlbwarm:
        a(valu("v_mov_b32 v134, 0", [], ["v134"]))
        items = [(S_K, "0"), (S_V, "0"), (S_WO, "0")]
        a(salu(f"s_mul_i32 s50, s{S_G}, {OPT.ring * 262144}")); items.append((S_RG, "s50"))
        a(salu(f"s_mul_i32 s51, s{S_B}, {256*896*2}")); items.append((S_OUT, "s51"))
        for n, (srd_, so) in enumerate(items[:OPT.tlbwarm]):
            a(tag(bload(135 + n, 1, 134, srd_, so, 0), "tlb"))
    return o

def add_lgkm_waits(g, cons, carried):
    seq = [(-1, regs) for regs in carried]
    for k in range(g.n):
        if g.mem[k] is not None and g.mem[k].kind == "ds": seq.append((k, g.mem[k].wr))
    lead = None
    for k, regs in cons:
        late = [n for n, (gap, w) in enumerate(seq) if gap == k - 1 and gap >= 0 and set(w) & set(regs)]
        assert not late, f"DS for MFMA {k} issued in gap {k-1}"
        idx = [n for n, (gap, w) in enumerate(seq) if gap < max(k - 1, 0) and set(w) & set(regs)]
        if not idx: continue
        last = max(idx)
        after = sum(1 for n, (gap, w) in enumerate(seq) if n > last and gap < max(k - 1, 0))
        assert after <= 15, (k, after)
        if k == 0: lead = wait_lgkm(after)
        else: g.pre[k - 1].insert(0, wait_lgkm(after))
    out = len(carried)
    if lead is not None: out = min(out, lead.meta["lgkm"])
    for k in range(g.n):
        for x in g.pre[k]:
            if "lgkm" in x.meta: out = min(out, x.meta["lgkm"])
        if g.mem[k] is not None and g.mem[k].kind == "ds":
            if out >= 14:
                g.pre[k].insert(0, wait_lgkm(8)); out = 8
            out += 1
    return lead

def place_vmem(g, gap, scalars, d, hi=None, stack=False, space=False):
    k = max(gap, 1 if stack else len(scalars))
    hi = g.n if hi is None else hi
    isdma = lambda x: x is not None and x.kind == "dma"
    while True:
        assert k < hi, f"no gap for {d.text}"
        near = OPT.vm_space and any(0 <= k + dd < g.n and dd != 0 and g.mem[k + dd] is not None and g.mem[k + dd].kind in ("vst", "vld", "dma")
                                    for dd in range(-OPT.vm_space, OPT.vm_space + 1))
        if g.mem[k] is None and not g.vec[k] and len(g.pre[k]) <= 1 and not (near and space):
            if stack:
                if not isdma(g.mem[k - 1]) and len(g.pre[k - 1]) + len(scalars) <= 3 and not any(x.kind == "barrier" for x in g.pre[k - 1]): break
            elif all(not g.pre[k - 1 - n] and not isdma(g.mem[k - 1 - n]) for n in range(len(scalars))): break
        k += 1
    if stack:
        for sc in scalars: g.put_pre(k - 1, sc)
    else:
        for n, sc in enumerate(scalars): g.put_pre(k - len(scalars) + n, sc)
    g.put_mem(k, d)
    return k

def put_scalar(g, gap, *ins):
    k = gap
    while g.pre[k]: k += 1
    g.pre[k] = list(ins)
    return k

def place_chain(g, ops, lo, hi):
    left = []
    for ins in ops:
        k = g.place_vec(ins, lo, hi) if (not left and lo < hi) else None
        if k is None: left.append(ins)
        else: lo = k + 1 if ins.kind == "trans" else k
    return lo, left

class Op:
    def __init__(self, ins, rel, dl, preds=()):
        self.ins = ins; self.rel = rel; self.dl = dl; self.preds = list(preds); self.gap = None

def list_schedule(g, ops, lo=0, hi=None):
    hi = g.n if hi is None else hi
    todo = list(ops)
    for k in range(lo, hi):
        while True:
            free = g.free_vec(k)
            if free <= 0: break
            ready = [x for x in todo if x.rel <= k and all(p.gap is not None and p.gap + d <= k for p, d in x.preds)]
            tr = [x for x in ready if x.ins.kind == "trans"]
            pl = [x for x in ready if x.ins.kind != "trans"]
            pick = None
            can_tr = free == 2 and g.mem[k] is None and not g.vec[k]
            if can_tr and tr: pick = min(tr, key=lambda x: x.dl)
            if pl:
                best = min(pl, key=lambda x: x.dl)
                if pick is None or (best.dl + 6 < pick.dl): pick = best
            if pick is None: break
            g.vec[k].append(pick.ins); pick.gap = k; todo.remove(pick)
    late = [x for x in ops if x.gap is not None and x.gap > x.dl]
    assert not late, [(x.ins.text, x.gap, x.dl) for x in late]
    return todo

def sm_ops(tile, kb, qb, rel, dl):
    i = sm_group(tile, kb, qb)
    f = [Op(i[0], rel, dl - 6), Op(i[1], rel, dl - 6), Op(i[4], rel, dl - 5), Op(i[5], rel, dl - 5)]
    x = [Op(i[2], rel, dl - 4, [(f[0], 1)]), Op(i[3], rel, dl - 4, [(f[1], 1)]), Op(i[6], rel, dl - 3, [(f[2], 1)]), Op(i[7], rel, dl - 3, [(f[3], 1)])]
    ad = [Op(i[8], rel, dl, [(x[0], 1)]), Op(i[9], rel, dl, [(x[1], 1)]), Op(i[11], rel, dl, [(x[2], 1)]), Op(i[12], rel, dl, [(x[3], 1)])]
    cv = [Op(i[10], rel, dl, [(x[0], 1), (x[1], 1)]), Op(i[13], rel, dl, [(x[2], 1), (x[3], 1)])]
    return f + x + ad + cv

def exposed(ops):
    o = []
    for n, ins in enumerate(ops):
        o.append(ins)
        if ins.kind == "trans" and n + 1 < len(ops) and ops[n + 1].kind != "trans": o.append(nop(0))
    return o

def conv_ops(acc, d, t):
    return [valu(f"v_accvgpr_read_b32 v{d}, a{acc}", [f"a{acc}"], [f"v{d}"]),
            valu(f"v_accvgpr_read_b32 v{t}, a{acc+1}", [f"a{acc+1}"], [f"v{t}"]),
            valu(f"v_accvgpr_read_b32 v{d+1}, a{acc+2}", [f"a{acc+2}"], [f"v{d+1}"]),
            valu(f"v_accvgpr_read_b32 v{t+1}, a{acc+3}", [f"a{acc+3}"], [f"v{t+1}"]),
            valu(f"v_cvt_pk_bf16_f32 v{d}, v{d}, v{t}", [f"v{d}", f"v{t}"], [f"v{d}"]),
            valu(f"v_cvt_pk_bf16_f32 v{d+1}, v{d+1}, v{t+1}", [f"v{d+1}", f"v{t+1}"], [f"v{d+1}"])]

def xlane_reduce(regs, op, tmp):
    o = []
    for swap in ("v_permlane32_swap_b32", "v_permlane16_swap_b32"):
        for n, r in enumerate(regs): o.append(valu(f"v_mov_b32 v{tmp+n}, v{r}", [f"v{r}"], [f"v{tmp+n}"]))
        o.append(nop(1))
        for n, r in enumerate(regs):
            o.append(valu(f"{swap} v{r}, v{tmp+n}", [f"v{r}", f"v{tmp+n}"], [f"v{r}", f"v{tmp+n}"]))
        o.append(nop(1))
        for n, r in enumerate(regs):
            o.append(valu(f"{op} v{r}, v{r}, v{tmp+n}", [f"v{r}", f"v{tmp+n}"], [f"v{r}"]))
    return o

def wpairs(): return [(L_X, L_X + 16384), (vslot(1), kslot(3)), (vslot(2), vslot(3))]
def wslot(tile):
    p = wpairs(); return p[(tile // 2) % len(p)][tile % 2]
XBUF = [V_S, V_P]
def xfrag(qb, cs): return XBUF[(cs // 2) & 1] + ((cs % 2) * 4 + qb) * 4
V_XD = [128, 129]
V_XR = [130, 131]
S_XB = 34
S_XCUR = 35
def x_setup():
    o = []; a = o.append
    L = f"v{V_LANE}"
    a(salu(f"s_and_b32 s{S_T1}, s{S_W}, 1")); a(salu(f"s_lshl_b32 s{S_T1}, s{S_T1}, 13"))
    a(salu(f"s_cmp_lt_u32 s{S_W}, 2")); a(salu(f"s_cselect_b32 s{S_XB}, 2, 4")); a(salu(f"s_lshl_b32 s{S_XB}, s{S_XB}, 14"))
    a(salu(f"s_add_u32 s{S_XB}, s{S_XB}, s{S_T1}"))
    assert kslot(2) == 2 << 14 and vslot(0) == 4 << 14
    a(valu(f"v_lshrrev_b32 v1, 3, {L}", [L], ["v1"])); a(valu(f"v_and_b32 v2, 7, {L}", [L], ["v2"]))
    a(valu(f"v_lshl_add_u32 v3, s{S_W}, 6, v1", ["v1", f"s{S_W}"], ["v3"]))
    a(valu("v_mul_u32_u24 v3, 896, v3", ["v3"], ["v3"]))
    a(valu("v_lshrrev_b32 v1, 1, v1", ["v1"], ["v1"]))
    for par in range(2):
        r = V_XD[par]
        a(valu(f"v_or_b32 v{r}, {4*par}, v1", ["v1"], [f"v{r}"]))
        a(valu(f"v_xor_b32 v{r}, v{r}, v2", [f"v{r}", "v2"], [f"v{r}"]))
        a(valu(f"v_lshl_add_u32 v{r}, v{r}, 4, v3", [f"v{r}", "v3"], [f"v{r}"]))
        a(valu(f"v_add_u32 v{V_XR[par]}, s{S_XB}, v{V_KA[par]}", [f"v{V_KA[par]}"], [f"v{V_XR[par]}"]))
    return o
def x_items(j):
    out = []
    for i in range(8):
        sreg = S_T2 + (i & 1)
        sc = []
        if i == 0 and j > 0: sc.append(salu(f"s_add_u32 s{S_XCUR}, s{S_XCUR}, s{S_XSTEP}", [f"s{S_XCUR}"], [f"s{S_XCUR}"]))
        sc.append(salu(f"s_add_u32 s{sreg}, s{S_XCUR}, {i*7168}", [f"s{S_XCUR}"], [f"s{sreg}"]))
        sc.append(salu(f"s_add_u32 m0, s{S_XB}, {i*1024}", [f"s{S_XB}"], ["m0"]))
        out.append((sc, tag(dma(V_XD[i & 1], S_X, f"s{sreg}", 0, OPT.x_flags), f"x{j}")))
    return out
def x_read(qb, cs): return ds_read128("v", xfrag(qb, cs), V_XR[cs & 1], qb * 2048)
def w_read(dbp, cs, jj):
    s, e = dbp >> 1, dbp & 1
    base = wslot(cs); win = base // 65536
    off = base - win * 65536 + (s >> 1) * 4096 + jj * 512 + e * 8
    return ds_read_tr("v", V_POOL + 4 * ((2 * dbp + (cs & 1)) % 8) + 2 * jj, V_WA[win][s & 1], off)

V_PF = 28
def coop_setup():
    o = []; a = o.append
    a(salu(f"s_mul_i32 s{S_T1}, s{S_H}, {112*128}"))
    a(salu(f"s_lshl_b32 s{S_T2}, s{S_W}, 12")); a(salu(f"s_add_u32 s{S_T1}, s{S_T1}, s{S_T2}"))
    a(valu(f"v_and_b32 v{V_PF}, 31, v{V_LANE}", [f"v{V_LANE}"], [f"v{V_PF}"]))
    a(valu(f"v_lshlrev_b32 v{V_PF}, 7, v{V_PF}", [f"v{V_PF}"], [f"v{V_PF}"]))
    a(valu(f"v_add_u32 v{V_PF}, s{S_T1}, v{V_PF}", [f"v{V_PF}"], [f"v{V_PF}"]))
    return o
def coop_x():
    return [tag(bload(V_PF + 1, 1, V_PF, S_X, "0", 0, OPT.pf_flags), "pf")]

V_PFW = 132
def coop_w_setup():
    o = []; a = o.append
    L = f"v{V_LANE}"
    a(salu(f"s_lshr_b32 s{S_T1}, s2, 7")); a(salu(f"s_and_b32 s{S_T1}, s{S_T1}, 1")); a(salu(f"s_lshl_b32 s{S_T1}, s{S_T1}, 5"))
    a(salu(f"s_lshl_b32 s{S_T2}, s{S_W}, 3")); a(salu(f"s_add_u32 s{S_T1}, s{S_T1}, s{S_T2}"))
    a(valu(f"v_bfe_u32 v{V_PFW}, {L}, 2, 3", [L], [f"v{V_PFW}"])); a(valu(f"v_add_u32 v{V_PFW}, s{S_T1}, v{V_PFW}", [f"v{V_PFW}"], [f"v{V_PFW}"]))
    a(valu(f"v_lshlrev_b32 v{V_PFW}, 13, v{V_PFW}", [f"v{V_PFW}"], [f"v{V_PFW}"]))
    a(valu(f"v_and_b32 v{V_PFW+1}, 3, {L}", [L], [f"v{V_PFW+1}"]))
    a(valu(f"v_lshl_add_u32 v{V_PFW}, v{V_PFW+1}, 7, v{V_PFW}", [f"v{V_PFW}", f"v{V_PFW+1}"], [f"v{V_PFW}"]))
    return o
def coop_w(j):
    return [salu(f"s_mov_b32 s{S_PFO}, {j*524288}", [], [f"s{S_PFO}"])], tag(bload(V_PFW + 1, 1, V_PFW, S_WQ, f"s{S_PFO}", 0, OPT.pf_flags), "pf")
OOL = []
def kv_off(reg, t):
    if not OPT.rot: return [salu(f"s_mov_b32 s{reg}, {t*16384}", [], [f"s{reg}"])]
    return [salu(f"s_add_u32 s{reg}, s{S_ROT}, {t*16384}", [f"s{S_ROT}"], [f"s{reg}"]), salu(f"s_and_b32 s{reg}, s{reg}, 0x7ffff", [f"s{reg}"], [f"s{reg}"])]
def phase1():
    o = []; a = o.append
    NP = 3
    a(salu(f"s_lshr_b32 s{S_T1}, s2, 7")); a(salu(f"s_and_b32 s{S_T1}, s{S_T1}, {1 if OPT.rev else 0}"))
    a(salu(f"s_cmp_eq_u32 s{S_T1}, 0"))
    a(salu(f"s_cselect_b32 s{S_WCUR}, 0, {6*524288}")); a(salu(f"s_cselect_b32 s{S_T2}, 1, -1"))
    a(salu(f"s_cselect_b32 s{S_XCUR}, 0, 768"))
    a(salu(f"s_mul_i32 s{S_WSTEP}, s{S_T2}, 524288")); a(salu(f"s_mul_i32 s{S_XSTEP}, s{S_T2}, 128"))
    o += x_setup()
    if OPT.coopx: o += coop_setup() + coop_x()
    if OPT.coopw:
        o += coop_w_setup()
        for j in range(OPT.coopw_init):
            sc, d = coop_w(j); o += sc + [d]
    def w_items(j):
        out = []
        for par in range(2):
            sreg = S_WCUR if par == 0 else S_WOFF
            for m, (m0, d) in enumerate(dma_tile("W", wslot(2 * j + par), f"s{sreg}", f"W{j}")):
                sc = [m0]
                if m == 0 and par == 0 and j > 0: sc = [salu(f"s_add_u32 s{S_WCUR}, s{S_WCUR}, s{S_WSTEP}", [f"s{S_WCUR}"], [f"s{S_WCUR}"]), m0]
                if m == 0 and par == 1: sc = [salu(f"s_add_u32 s{S_WOFF}, s{S_WCUR}, 262144", [f"s{S_WCUR}"], [f"s{S_WOFF}"]), m0]
                out.append((sc, d))
        return out
    def kv_items(kind, t):
        out = []
        for m, (m0, d) in enumerate(dma_tile(kind, kslot(t) if kind == "K" else vslot(t), f"s{S_T0}", f"{kind}{t}")):
            out.append((kv_off(S_T0, t) + [m0] if m == 0 else [m0], d))
        return out
    def now(items):
        for sc, d in items:
            o.extend(sc); a(nop(0)); a(d)
    w0 = w_items(0)
    for sc, d in w0[4:]: d.meta["tag"] = "W0b"
    if OPT.xwarm:
        a(valu(f"v_lshlrev_b32 v{V_PFW}, 4, v{V_LANE}", [f"v{V_LANE}"], [f"v{V_PFW}"]))
        a(salu(f"s_mul_i32 s{S_T0}, s{S_H}, 14336")); a(salu(f"s_lshl_b32 s{S_T1}, s{S_W}, 12")); a(salu(f"s_add_u32 s{S_T0}, s{S_T0}, s{S_T1}"))
        a(salu(f"s_add_u32 m0, s{S_T1}, {kslot(0)}", [], ["m0"])); a(nop(0))
        now(w0[:4])
        a(salu(f"s_lshl_b32 s{S_T1}, s{S_W}, 12")); a(salu(f"s_add_u32 m0, s{S_T1}, {kslot(0)}", [], ["m0"])); a(nop(0))
        for i in range(4): a(tag(dma(V_PFW, S_X, f"s{S_T0}", i * 1024, OPT.x_flags), "xw"))
        now(w0[4:]); now(x_items(0))
    else:
        now(x_items(0)); now(w0[:4]); now(w0[4:])
    if OPT.coopw:
        for j in range(OPT.coopw_init, 3):
            sc, d = coop_w(j); o += sc + [d]
    o += setup_b()
    a(wait_tag("x0"))
    xr = [x_read(qb, cs) for cs in (0, 1) for qb in range(4)]
    o += xr
    a(wait_tag("W0", "reset")); a(barrier())
    if OPT.fused:
        a(salu(f"s_or_b32 s{S_T0}, s{S_XCC}, 0x80")); a(valu(f"v_mov_b32 v1, s{S_T0}", [], ["v1"])); a(valu("v_mov_b32 v2, 0", [], ["v2"]))
        a(tag(I(f"buffer_store_byte v1, v2, s[{S_DBG}:{S_DBG+3}], s{S_SIG} offen", "vst", ["v1", "v2"], data=["v1"]), "arr"))
    o += stamp("p1_first_data") + (stamp("rt_fd") if OPT.trip_stamps else [])
    def quad0(n): return V_POOL + 4 * (n % 8)
    def w_read0(n, jj):
        dbp, cs = n % 16, n // 16
        r = w_read(dbp, cs, jj)
        return ds_read_tr("v", quad0(n) + 2 * jj, int(r.rd[0][1:]), int(r.text.split("offset:")[1]))
    carried = [x.wr for x in xr]
    for n in range(3):
        for jj in range(2):
            r = w_read0(n, jj); a(r); carried.append(r.wr)
    early = {j: [] for j in range(7)}; after = {j: [] for j in range(7)}
    early[0] += w_items(1); early[1] += w_items(2)
    for j in range(NP, 7): after[j - NP + 1] += w_items(j)
    K = lambda t: kv_items("K", t)
    V = lambda t: kv_items("V", t)
    kv = {"early": {1: K(0), 2: K(1)}, "mid": {2: K(0), 3: K(1)}, "late": {3: K(0), 4: K(1)}}[OPT.kvpf]
    for j, l in kv.items(): early[j] += l
    if OPT.kvmin:
        early = {j: (w_items(1) if j == 0 else w_items(2) if j == 1 else []) for j in range(7)} if False else early
        for j in range(7): early[j] = [it for it in early[j] if not it[1].meta["tag"].startswith("K")]
        early[4] += K(0); early[5] += K(1)
        after[5] += V(0)
        after[6] += K(2) + V(1)
    elif OPT.kvspread:
        after[5] += V(0)
        early[6] += K(2) + V(1)
        after[6] += K(3)
    else:
        after[5] += V(0)
        early[6] += K(2) + V(1) + K(3)
        after[6] += V(2)
    for j in range(7):
        ms = []
        if j == 0:
            for n in range(32):
                for qb in range(4):
                    acc = ((n % 16) * 4 + qb) * 4
                    first = n < 16
                    ms.append(mfma("a", acc, "v", quad0(n), "v", xfrag(qb, n // 16), None if first else "a", None if first else acc))
        else:
            for dbp in range(16):
                for qb in range(4):
                    for e2 in range(2):
                        acc = (dbp * 4 + qb) * 4
                        ms.append(mfma("a", acc, "v", V_POOL + 4 * ((2 * dbp + e2) % 8), "v", xfrag(qb, 2 * j + e2), "a", acc))
        g = Gaps(ms)
        if j == 0:
            for n in range(3, 32):
                for jj in range(2): g.put_mem(4 * n - 12 + 2 * jj, w_read0(n, jj))
        else:
            for dbp in range(3, 16):
                for n, (cs, jj) in enumerate([(2*j, 0), (2*j, 1), (2*j+1, 0), (2*j+1, 1)]):
                    g.put_mem(8 * dbp - 24 + 2 * n, w_read(dbp, cs, jj))
        nxt = []
        if j < 6:
            for dbp in range(3):
                for n, (cs, jj) in enumerate([(2*j+2, 0), (2*j+2, 1), (2*j+3, 0), (2*j+3, 1)]):
                    r = w_read(dbp, cs, jj); g.put_mem(104 + (1 if j == 0 else 0) + 8 * dbp + 2 * n, r); nxt.append(r.wr)
        XG = OPT.x_rd_gap if j > 0 else OPT.x_rd_gap0
        xreads = []
        if j < 6:
            for n, (cs, qb) in enumerate([(cs, qb) for cs in (2*j+2, 2*j+3) for qb in range(4)]):
                r = x_read(qb, cs); g.put_mem(XG + 2 * n, r); xreads.append(r)
        if j == 0:
            cons = [(4 * n, R("v", quad0(n), 4) + (R("v", V_S, 32) if n == 0 else [])) for n in range(32)]
        else:
            cons = [(8 * dbp, R("v", V_POOL + 4 * ((2 * dbp) % 8), 8)) for dbp in range(16)]
        if j < 6: cons.append((XG + 24, [w for r in xreads for w in r.wr]))
        cons.sort()
        lead = add_lgkm_waits(g, cons, carried)
        if j < 6:
            k = XG - 2
            while g.pre[k]: k -= 1
            g.pre[k] = [wait_tag(f"x{j+1}")]
        tags = [f"W{j+1}"] if j < 6 else ["K0"]
        k = 100
        while g.pre[k]: k -= 1
        g.pre[k] = [wait_tag(*tags), barrier()] if not OPT.p1_nowait else [barrier()]
        kb = k
        gp = 1
        if OPT.coopw and j + 3 <= 6:
            sc, d = coop_w(j + 3); gp = place_vmem(g, 2, sc, d, kb) + 1
        if j == 0:
            for sc, d in x_items(1): gp = place_vmem(g, gp, sc, d, XG - 3, stack=True) + 2
            k = 48
            while g.pre[k]: k -= 1
            g.pre[k] = [wait_tag("W0b"), barrier()]
            assert k < 52
        for sc, d in early[j]: gp = place_vmem(g, gp + len(sc) - 1 + (16 if (j == 6 and OPT.kvspread and gp == 1) else 0), sc, d, kb) + (OPT.early_step if j != 6 else (9 if OPT.kvspread else 7))
        if j < 5:
            gx = max(XG + 25, gp)
            for sc, d in x_items(j + 2): gx = place_vmem(g, gx, sc, d, stack=True) + 2
            gpa = max(kb + 2, gx)
        else: gpa = kb + 2
        for sc, d in after[j]: gpa = place_vmem(g, gpa, sc, d, stack=True) + 1
        left = []
        if j == 6:
            for dbp in range(16):
                for qb in range(4):
                    ops = conv_ops((dbp * 4 + qb) * 4, V_Q + (qb * 8 + (dbp >> 1)) * 4 + 2 * (dbp & 1), V_CT + 2 * (qb & 1))
                    if left: left += ops
                    else:
                        _, l2 = place_chain(g, ops, 8 * dbp + 2 * qb + 1 + 5, 128); left += l2
        if lead is not None: a(lead)
        em = g.emit()
        if OPT.p1_drop:
            def keep(x):
                if x.kind in ("dma", "vld"):
                    t = x.meta.get("tag", "")
                    for c in OPT.p1_drop:
                        if t.startswith(c): return False
                return True
            em = [x for x in em if keep(x)]
        if OPT.p1_noread: em = [x for x in em if x.kind != "ds" and not (x.kind == "wait" and "lgkm" in x.meta)]
        o += em
        carried = nxt
        if OPT.p1_steps: o += stamp(f"step{j}")
        if left: a(nop(7)); o += left
    if not OPT.p1_steps: o += stamp("p1_end") + (stamp("rt_p1") if OPT.trip_stamps else [])
    return o

def k_read(t, kb, s):
    return ds_read128("v", V_POOL + 4 * s, V_KA[s & 1], (kslot(t) - L_K) + (s >> 1) * 4096 + kb * 2048)
def v_read(t, db, jj):
    return ds_read_tr("v", V_POOL + 4 * (db % 8) + 2 * jj, V_VA[db & 3], (vslot(t) - L_V) + (db >> 2) * 4096 + jj * 2048)
def Sreg(kb, qb): return V_S + (kb * 4 + qb) * 4
def Preg(buf, qb): return V_P + buf * 16 + qb * 4
def qk_mfmas():
    ms = []
    for i in range(64):
        kb, sp, qb, e = i >> 5, (i >> 3) & 3, (i >> 1) & 3, i & 1
        s = 2 * sp + e; d = Sreg(kb, qb)
        ms.append(mfma("v", d, "v", V_POOL + 4 * s, "v", V_Q + (qb * 8 + s) * 4, None if s == 0 else "v", None if s == 0 else d))
    return ms
def pv_mfmas(t, first):
    ms = []
    for i in range(64):
        db, qb = i >> 2, i & 3
        acc = (db * 4 + qb) * 4
        ms.append(mfma("a", acc, "v", V_POOL + 4 * (db % 8), "v", Preg(t & 1, qb), None if first else "a", None if first else acc))
    return ms
def sm_group(tile, kb, qb):
    s = Sreg(kb, qb); p = Preg(tile & 1, qb) + 2 * kb; mc = V_MC + qb; l = V_L + qb
    f = lambda r: valu(f"v_fma_f32 v{s+r}, v{s+r}, s{S_C}, v{mc}", [f"v{s+r}", f"v{mc}", f"s{S_C}"], [f"v{s+r}"])
    x = lambda r: trans(f"v_exp_f32 v{s+r}, v{s+r}", [f"v{s+r}"], [f"v{s+r}"])
    ad = lambda r: valu(f"v_add_f32 v{l}, v{l}, v{s+r}", [f"v{l}", f"v{s+r}"], [f"v{l}"])
    cv = lambda r: valu(f"v_cvt_pk_bf16_f32 v{p+r//2}, v{s+r}, v{s+r+1}", [f"v{s+r}", f"v{s+r+1}"], [f"v{p+r//2}"])
    return [f(0), f(1), x(0), x(1), f(2), f(3), x(2), x(3), ad(0), ad(1), cv(0), ad(2), ad(3), cv(2)]

def pre_iter():
    o = []; a = o.append
    carried = []
    for s in range(8):
        r = k_read(0, 0, s); a(r); carried.append(r.wr)
    g = Gaps(qk_mfmas())
    for s in range(8): g.put_mem(8 * (s >> 1) + 10 + 4 * (s & 1), k_read(0, 1, s))
    cons = [(8 * p, R("v", V_POOL + 8 * (p % 4), 8)) for p in range(8)]
    a(add_lgkm_waits(g, cons, carried))
    if OPT.kvmin or OPT.kvspread:
        gp = 3
        for kind, t in ((("K", 3), ("V", 2)) if OPT.kvmin else (("V", 2),)):
            for m, (m0, d) in enumerate(dma_tile(kind, kslot(t) if kind == "K" else vslot(t), f"s{S_T0}", f"{kind}{t}")):
                gp = place_vmem(g, gp, (kv_off(S_T0, t) if m == 0 else []) + [m0], d, stack=True) + 5
    o += g.emit()
    a(wait_tag("K1", "V0")); a(barrier())
    o += kv_off(S_KOFF, 4)
    for m0, d in dma_tile("K", kslot(4), f"s{S_KOFF}", "K4"): a(m0); a(nop(0)); a(d)
    o += kv_off(S_KOFF, 5) + kv_off(S_VOFF, 3)
    carried = []
    for s in range(8):
        r = k_read(1, 0, s); a(r); carried.append(r.wr)
    for qb in range(4):
        m = V_MC + qb; s0 = Sreg(0, qb); s1 = Sreg(1, qb)
        a(valu(f"v_max3_f32 v{m}, v{s0}, v{s0+1}, v{s0+2}", R("v", s0, 3), [f"v{m}"]))
        a(valu(f"v_max3_f32 v{m}, v{m}, v{s0+3}, v{s1}", [f"v{m}", f"v{s0+3}", f"v{s1}"], [f"v{m}"]))
        a(valu(f"v_max3_f32 v{m}, v{m}, v{s1+1}, v{s1+2}", [f"v{m}", f"v{s1+1}", f"v{s1+2}"], [f"v{m}"]))
        a(valu(f"v_max_f32 v{m}, v{m}, v{s1+3}", [f"v{m}", f"v{s1+3}"], [f"v{m}"]))
    o += xlane_reduce([V_MC + q for q in range(4)], "v_max_f32", V_SP)
    for qb in range(4):
        m = V_MC + qb
        a(valu(f"v_mul_f32 v{m}, s{S_C}, v{m}", [f"v{m}", f"s{S_C}"], [f"v{m}"]))
        a(valu(f"v_sub_f32 v{m}, 0, v{m}", [f"v{m}"], [f"v{m}"]))
        a(valu(f"v_mov_b32 v{V_L+qb}, 0", [], [f"v{V_L+qb}"]))
    for kb, qb in [(0, 0), (0, 1), (0, 2), (0, 3), (1, 0), (1, 1)]: o += exposed(sm_group(0, kb, qb))
    o += stamp("pre_iter_end")
    return o, carried

def attn_iter(t, carried, vmw, prev, cur, first=False, adv=True, loopctl=False, extra=None, loop_body=False):
    g = Gaps(qk_mfmas() + pv_mfmas(t, first))
    for s in range(8): g.put_mem(8 * (s >> 1) + 10 + 4 * (s & 1), k_read(t + 1, 1, s))
    for db in range(16):
        for jj in range(2): g.put_mem(min(64 - OPT.v_lead + 4 * db + 2 * jj, 44 + 4 * db + 2 * jj + 18), v_read(t, db, jj))
    nxt = []
    if t + 2 <= 31:
        for s, gap in zip(range(8), [108, 110, 112, 114, 116, 120, 124, 127] if OPT.v_lead >= 20 else [109, 111, 113, 115, 117, 121, 125, 127]):
            r = k_read(t + 2, 0, s); g.put_mem(gap, r); nxt.append(r.wr)
    else:
        for db in range(5):
            for jj in range(2):
                r = v_read(t + 1, db, jj); g.put_mem(108 + 4 * db + 2 * jj, r); nxt.append(r.wr)
    cons = [(8 * p, R("v", V_POOL + 8 * (p % 4), 8)) for p in range(8)]
    cons += [(64 + 4 * db, R("v", V_POOL + 4 * (db % 8), 4)) for db in range(16)]
    lead = add_lgkm_waits(g, cons, carried)
    kb = 98
    while g.pre[kb]: kb -= 1
    g.pre[kb] = [vmw, barrier()]
    if OPT.bar_stamps and loop_body:
        g.pre[kb] = [raw("s_memtime s[94:95]", "salu"), vmw, raw("s_memtime s[96:97]", "salu"), barrier(), raw("s_memtime s[98:99]", "salu"),
                     raw("s_waitcnt lgkmcnt(0)", "wait", lgkm=0),
                     salu("s_sub_u32 s96, s96, s94"), salu("s_add_u32 s92, s92, s96"),
                     salu("s_sub_u32 s98, s98, s94"), salu("s_add_u32 s93, s93, s98")]
    gp_prev, gp_cur = OPT.dma_gaps
    placed = [place_vmem(g, gap, [m0], d, kb) for gap, (m0, d) in zip(gp_prev, prev)]
    for gap, (m0, d) in zip(gp_cur, cur): place_vmem(g, gap, [m0], d)
    if adv:
        for reg, srd, at in ((S_VOFF, S_V, (placed[OPT.nv_prev - 1] if OPT.nv_prev else 1) + 1), (S_KOFF, S_K, placed[-1] + 1)):
            k = put_scalar(g, at, salu(f"s_add_u32 s{reg}, s{reg}, 16384", [f"s{reg}"], [f"s{reg}"]))
            k = put_scalar(g, k + 1, salu(f"s_and_b32 s{reg}, s{reg}, 0x7ffff", [f"s{reg}"], [f"s{reg}"]))
            assert k < 100
        if loopctl:
            first_k = placed[-4]
            k = put_scalar(g, 2, salu(f"s_cmp_eq_u32 s{S_LOOP}, 1", [f"s{S_LOOP}"], ["scc"]),
                           salu(f"s_cselect_b32 s{S_K+2}, 0, 524288", ["scc"], [f"s{S_K+2}"]))
            assert k < first_k - 1
    if loopctl:
        k = put_scalar(g, 119, salu(f"s_sub_u32 s{S_LOOP}, s{S_LOOP}, 1", [f"s{S_LOOP}"], [f"s{S_LOOP}"]))
        k = put_scalar(g, k + 1, salu(f"s_cmp_lg_u32 s{S_LOOP}, {OPT.loop_exit}", [f"s{S_LOOP}"], ["scc"]))
        assert k <= 127
        for kk in range(k + 1, 128):
            assert all(x.kind == "wait" for x in g.pre[kk]), "SCC clobbered before the loop branch"
    if extra: extra(g, kb)
    ops = []
    for qb in (2, 3): ops += sm_ops(t, 1, qb, 0, 31 + 2 * qb)
    for qb in range(4): ops += sm_ops(t + 1, 0, qb, 25 + 2 * qb + 6, 100 + 6 * qb)
    for qb in (0, 1): ops += sm_ops(t + 1, 1, qb, 57 + 2 * qb + 6, 124 + 3 * qb)
    left = list_schedule(g, ops)
    if OPT.vfirst:
        cand = [k for k in range(128) if g.mem[k] is not None and g.mem[k].kind == "ds" and len(g.vec[k]) == 1 and g.vec[k][0].kind == "valu"
                and not (set(g.vec[k][0].wr) & set(g.mem[k].rd + g.mem[k].wr))]
        n = min(OPT.vfirst, len(cand))
        for i in range(n): g.vec_first.add(cand[(i * len(cand)) // n])
    if OPT.pad_iter:
        for n in range(OPT.pad_iter): g.post[(n * 128) // OPT.pad_iter + 3].append(nop(3))
    assert not left, f"softmax groups do not fit: {len(left)} left"
    return [lead] + g.emit(), nxt

def safe_attn():
    o = []; a = o.append
    VM, VT, VA_, TMP = 20, 24, 28, 112
    a(label("L_safe_attn")); a(wait_vm(0)); a(raw("s_waitcnt lgkmcnt(0)", "wait", lgkm=0)); a(barrier())
    for r in range(256): a(valu(f"v_accvgpr_write_b32 a{r}, 0", [], [f"a{r}"]))
    for qb in range(4):
        a(valu(f"v_mov_b32 v{VM+qb}, 0xff800000", [], [f"v{VM+qb}"])); a(valu(f"v_mov_b32 v{V_L+qb}, 0", [], [f"v{V_L+qb}"]))
    a(salu(f"s_mov_b32 s{S_KOFF}, 0")); a(salu(f"s_mov_b32 s{S_LOOP}, 32"))
    a(label("L_safe_loop"))
    for kind, slot in (("K", kslot(0)), ("V", vslot(0))):
        for m0, d in dma_tile(kind, slot, f"s{S_KOFF}", "safe"): a(m0); a(nop(0)); a(d)
    a(wait_vm(0)); a(barrier())
    qk = qk_mfmas()
    for kb in range(2):
        for s_ in range(8): a(k_read(0, kb, s_))
        a(wait_lgkm(0)); o += qk[32 * kb:32 * kb + 32]
    a(nop(7)); a(nop(7))
    for qb in range(4):
        t = VT + qb; s0 = Sreg(0, qb); s1 = Sreg(1, qb)
        a(valu(f"v_max3_f32 v{t}, v{s0}, v{s0+1}, v{s0+2}", [], [])); a(valu(f"v_max3_f32 v{t}, v{t}, v{s0+3}, v{s1}", [], []))
        a(valu(f"v_max3_f32 v{t}, v{t}, v{s1+1}, v{s1+2}", [], [])); a(valu(f"v_max_f32 v{t}, v{t}, v{s1+3}", [], []))
    o += xlane_reduce([VT + q for q in range(4)], "v_max_f32", TMP)
    for qb in range(4):
        a(valu(f"v_max_f32 v{VT+qb}, v{VT+qb}, v{VM+qb}", [], []))
        a(valu(f"v_sub_f32 v{VA_+qb}, v{VM+qb}, v{VT+qb}", [], [])); a(valu(f"v_mul_f32 v{VA_+qb}, s{S_C}, v{VA_+qb}", [], []))
        a(trans(f"v_exp_f32 v{VA_+qb}, v{VA_+qb}", [], [])); a(valu(f"v_mov_b32 v{VM+qb}, v{VT+qb}", [], []))
        a(valu(f"v_mul_f32 v{V_MC+qb}, s{S_C}, v{VT+qb}", [], [])); a(valu(f"v_sub_f32 v{V_MC+qb}, 0, v{V_MC+qb}", [], []))
        a(valu(f"v_mul_f32 v{V_L+qb}, v{V_L+qb}, v{VA_+qb}", [], []))
    for r in range(256):
        qb = (r >> 2) & 3; t = TMP + (r & 7)
        a(valu(f"v_accvgpr_read_b32 v{t}, a{r}", [], [])); a(valu(f"v_mul_f32 v{t}, v{t}, v{VA_+qb}", [], [])); a(valu(f"v_accvgpr_write_b32 a{r}, v{t}", [], []))
    for kb in range(2):
        for qb in range(4): o += exposed(sm_group(0, kb, qb))
    pv = pv_mfmas(0, False)
    for half in range(2):
        for db in range(8 * half, 8 * half + 8):
            for jj in range(2):
                a(v_read(0, db, jj))
            if db % 4 == 3: a(wait_lgkm(0))
        a(nop(1)); o += pv[32 * half:32 * half + 32]
    a(salu(f"s_add_u32 s{S_KOFF}, s{S_KOFF}, 16384")); a(salu(f"s_sub_u32 s{S_LOOP}, s{S_LOOP}, 1")); a(salu(f"s_cmp_lg_u32 s{S_LOOP}, 0"))
    a(barrier()); a(raw("s_cbranch_scc1 L_safe_loop", "branch"))
    a(nop(7)); a(nop(7))
    o += xlane_reduce([V_L + q for q in range(4)], "v_add_f32", TMP)
    for qb in range(4): a(trans(f"v_rcp_f32 v{V_L+qb}, v{V_L+qb}", [], []))
    a(nop(0))
    for db in range(16):
        for qb in range(4):
            o += conv_ops((db * 4 + qb) * 4, V_Q + (qb * 8 + (db >> 1)) * 4 + 2 * (db & 1), V_SP + 8 + 2 * (qb & 1))
    o += wo_setup()
    if OPT.fused: o += grp_setup() + [nop(1), mode_load()] + ring_scalars()
    for j in range(4):
        for sc, d in wo_dma(j): o += sc + [nop(0), d]
    a(wait_vm(0)); a(raw("s_branch L_p3_entry", "branch"))
    return o

def last_iter(carried):
    o = []; a = o.append
    for qb in (2, 3): o += exposed(sm_group(31, 1, qb))
    o += xlane_reduce([V_L + q for q in range(4)], "v_add_f32", V_SP)
    a(salu(f"s_mov_b32 s{S_T0}, 0x{f32bits(L_LIMIT):08x}"))
    for qb in range(4):
        a(valu(f"v_cmp_nge_f32 s[{50+2*(qb&1)}:{51+2*(qb&1)}], s{S_T0}, v{V_L+qb}", [f"v{V_L+qb}"], [f"s{50+2*(qb&1)}", f"s{51+2*(qb&1)}"]))
        if qb & 1:
            a(nop(0)); a(salu("s_or_b64 s[50:51], s[50:51], s[52:53]"))
            a(salu("s_mov_b64 s[54:55], s[50:51]") if qb == 1 else salu("s_or_b64 s[54:55], s[54:55], s[50:51]"))
    a(salu("s_cselect_b32 s50, 1, 0"))
    a(salu(f"s_lshl_b32 s51, s{S_W}, 2")); a(salu(f"s_add_u32 s51, s51, {L_VOTE}"))
    a(valu(f"v_mov_b32 v{V_SP}, s50", [], [f"v{V_SP}"])); a(valu(f"v_mov_b32 v{V_SP+1}, s51", [], [f"v{V_SP+1}"]))
    a(I(f"ds_write_b32 v{V_SP+1}, v{V_SP}", "ds", [f"v{V_SP}", f"v{V_SP+1}"], []))
    carried = carried + [[]]
    for qb in range(4): a(trans(f"v_rcp_f32 v{V_L+qb}, v{V_L+qb}", [f"v{V_L+qb}"], [f"v{V_L+qb}"]))
    a(nop(0))
    g = Gaps(pv_mfmas(31, False))
    for db in range(5, 8):
        for jj in range(2): g.put_mem(4 * (db - 5) + 2 * jj, v_read(31, db, jj))
    for db in range(8, 16):
        for jj in range(2): g.put_mem(12 + 4 * (db - 8) + 2 * jj, v_read(31, db, jj))
    cons = [(4 * db, R("v", V_POOL + 4 * (db % 8), 4)) for db in range(16)]
    lead = add_lgkm_waits(g, cons, carried)
    gp = put_wo(g, 2, 2, step=0)
    put_wo(g, 3, gp, step=0)
    left = []
    for db in range(16):
        for qb in range(4):
            ops = conv_ops((db * 4 + qb) * 4, V_Q + (qb * 8 + (db >> 1)) * 4 + 2 * (db & 1), V_SP + 8 + 2 * (qb & 1))
            if left: left += ops
            else:
                _, l2 = place_chain(g, ops, 4 * db + qb + 5, 64); left += l2
    a(lead); o += g.emit()
    a(nop(7)); o += left
    return o

WOBUF = [L_X, L_K, L_K + 32768, L_V, L_V + 32768, L_X, L_K]
V_DWO = 3; V_STO = V_DV
V_FR3 = 32; V_ACC3 = V_P; V_STG = 16
def wo_dma(j):
    out = []
    for i in range(8):
        sreg = S_T0 + (i & 1)
        out.append(([salu(f"s_mov_b32 s{sreg}, {j*128 + i*32*896}", [], [f"s{sreg}"]),
                     salu(f"s_add_u32 m0, s{S_W1K}, {WOBUF[j] + i*4096}", [f"s{S_W1K}"], ["m0"])],
                    tag(dma(V_DWO, S_WO, f"s{sreg}", 0, OPT.wo_flags), f"wo{j}")))
    return out
A_WOS = 100
V_WOW = 39
def wo_stage_loads(j):
    out = []
    for i in range(8):
        sreg = S_T0 + (i & 1)
        out.append(([salu(f"s_mov_b32 s{sreg}, {j*128 + i*32*896}", [], [f"s{sreg}"])],
                    tag(bload_f("a", A_WOS + 32 * (j - 5) + 4 * i, 4, V_DWO, S_WO, f"s{sreg}", 0, OPT.wo_flags), f"wos{j}")))
    return out
def wo_stage_write(j, i):
    r = A_WOS + 32 * (j - 5) + 4 * i
    return I(f"ds_write_b128 v{V_WOW + (j - 5) * 0}, {rng('a', r, 4)} offset:{i*4096}", "ds", [f"v{V_WOW}"] + R("a", r, 4), [])
def wo_setup():
    o = []; a = o.append
    L = f"v{V_LANE}"
    a(valu(f"v_lshrrev_b32 v1, 3, {L}", [L], ["v1"])); a(valu(f"v_and_b32 v2, 7, {L}", [L], ["v2"]))
    a(valu(f"v_lshl_add_u32 v3, s{S_W}, 3, v1", ["v1", f"s{S_W}"], ["v3"]))
    a(valu("v_bfe_u32 v1, v1, 1, 2", ["v1"], ["v1"])); a(valu("v_lshlrev_b32 v1, 1, v1", ["v1"], ["v1"]))
    a(valu("v_xor_b32 v1, v1, v2", ["v1", "v2"], ["v1"])); a(valu("v_lshlrev_b32 v1, 4, v1", ["v1"], ["v1"]))
    a(valu("v_mul_u32_u24 v3, 896, v3", ["v3"], ["v3"]))
    a(valu(f"v_add_u32 v{V_DWO}, v3, v1", ["v3", "v1"], [f"v{V_DWO}"]))
    return o
V_WOT = 2
def wo_touch_setup():
    return [valu(f"v_lshl_add_u32 v{V_WOT}, s{S_W}, 6, v{V_LANE}", [f"v{V_LANE}"], [f"v{V_WOT}"]),
            valu(f"v_mul_u32_u24 v{V_WOT}, 896, v{V_WOT}", [f"v{V_WOT}"], [f"v{V_WOT}"])]
def wo_touch(j): return tag(bload(1, 1, V_WOT, S_WO, "0", j * 128, OPT.wt_flags), "wt")
def l2warm_setup():
    o = []; a = o.append
    L = f"v{V_LANE}"
    a(valu(f"v_min_u32 v20, 13, {L}", [L], ["v20"]))
    a(valu("v_cmp_lt_u32 vcc, 6, v20", ["v20"], ["vcc"])); a(valu("v_lshlrev_b32 v20, 7, v20", ["v20"], ["v20"]))
    a(valu(f"v_add_u32 v21, {CONS_OFF - 7*128}, v20", ["v20"], ["v21"]))
    a(valu("v_cndmask_b32 v20, v20, v21, vcc", ["v20", "v21", "vcc"], ["v20"]))
    a(valu(f"v_min_u32 v21, 27, {L}", [L], ["v21"])); a(salu(f"s_mul_i32 s50, s{S_W}, 28")); a(valu("v_add_u32 v21, s50, v21", ["v21"], ["v21"]))
    a(valu("v_mul_u32_u24 v22, 9363, v21", ["v21"], ["v22"])); a(valu("v_lshrrev_b32 v22, 16, v22", ["v22"], ["v22"]))
    a(valu("v_mul_u32_u24 v23, 7, v22", ["v22"], ["v23"])); a(valu("v_sub_u32 v21, v21, v23", ["v21", "v23"], ["v21"]))
    a(valu("v_mul_u32_u24 v22, 1792, v22", ["v22"], ["v22"])); a(valu("v_lshl_add_u32 v21, v21, 7, v22", ["v21", "v22"], ["v21"]))
    a(salu(f"s_lshl_b32 s50, s{S_B}, 8")); a(salu(f"s_lshl_b32 s51, s{S_H}, 4")); a(salu("s_add_u32 s50, s50, s51"))
    a(salu("s_mul_i32 s50, s50, 1792")); a(salu(f"s_mul_i32 s51, s{S_BR}, 896")); a(salu(f"s_add_u32 s{S_WARM}, s50, s51"))
    a(salu(f"s_mul_i32 s{S_WARM+1}, s{S_G}, {14*64}"))
    return o
def l2warm_loads():
    return [tag(bload(22, 1, 20, S_FL, f"s{S_WARM+1}", 0), "wt"), tag(bload(23, 1, 21, S_OUT, f"s{S_WARM}", 0), "wt")]
def put_wo(g, j, start, hi=None, step=3):
    gp = start
    for sc, d in wo_dma(j): gp = place_vmem(g, gp, sc, d, hi) + step
    return gp
def va_shift(delta):
    t = (lambda r: f"v_add_u32 v{r}, {delta}, v{r}") if delta >= 0 else (lambda r: f"v_subrev_u32 v{r}, {-delta}, v{r}")
    return [valu(t(r), [f"v{r}"], [f"v{r}"]) for r in V_VA]

def part_ops(nb, qb):
    acc = V_ACC3 + 4 * ((nb * 4 + qb) % 8)
    st = V_STG + 4 * qb + 2 * (nb & 1)
    li = V_L + qb
    ops = [valu(f"v_mul_f32 v{acc+r}, v{acc+r}, v{li}", [f"v{acc+r}", f"v{li}"], [f"v{acc+r}"]) for r in range(4)]
    ops += [valu(f"v_cvt_pk_bf16_f32 v{st}, v{acc}, v{acc+1}", [f"v{acc}", f"v{acc+1}"], [f"v{st}"]),
            valu(f"v_cvt_pk_bf16_f32 v{st+1}, v{acc+2}, v{acc+3}", [f"v{acc+2}", f"v{acc+3}"], [f"v{st+1}"])]
    return ops

A_FR3 = 0; A_SEL = 224
V_POLLA, V_POLL, V_ONE, V_ZERO, V_RLD, V_OUT = 32, 33, 34, 35, 36, 37
V_RD = 40
V_GRP = V_ARR + 3
def wo_read(nb, s_, jj):
    return ds_read_tr("a", A_FR3 + 4 * (8 * (nb & 1) + s_) + 2 * jj, V_VA[nb], s_ * 4096 + jj * 2048)

V_GA = V_ARR + 2
def grp_setup():
    return [salu(f"s_lshl_b32 s{S_T0}, s{S_G}, 4"), valu(f"v_and_b32 v{V_GA}, 3, v{V_LANE}", [f"v{V_LANE}"], [f"v{V_GA}"]),
            valu(f"v_lshlrev_b32 v{V_GA}, 2, v{V_GA}", [f"v{V_GA}"], [f"v{V_GA}"]), valu(f"v_add_u32 v{V_GA}, s{S_T0}, v{V_GA}", [f"v{V_GA}"], [f"v{V_GA}"])]
V_GA3 = 38
def grp_load(dst, tg, ga=V_GA): return tag(bload(dst, 1, ga, S_DBG, "0", 0, "sc1"), tg)
def splat(x): return x * 0x01010101
def mode_load(): return grp_load(V_ARR, "grp")
def mode_check():
    o = []; a = o.append
    a(salu(f"s_or_b32 s{S_T0}, s{S_XCC}, 0x80")); a(salu(f"s_mul_i32 s50, s{S_T0}, 0x01010101"))
    a(wait_tag("grp"))
    a(valu(f"v_and_b32 v{V_ARR}, 0x87878787, v{V_ARR}", [f"v{V_ARR}"], [f"v{V_ARR}"]))
    a(valu(f"v_cmp_eq_u32 vcc, s50, v{V_ARR}", [f"v{V_ARR}"], ["vcc"])); a(nop(0))
    a(salu("s_cmp_eq_u64 vcc, -1"))
    a(salu(f"s_cselect_b64 s[{S_LOCM}:{S_LOCM+1}], -1, 0"))
    if OPT.force_fallback: a(salu("s_cmp_eq_u32 s50, 0"))
    a(raw("s_cbranch_scc0 L_grp_far", "branch")); a(label("L_grp_ok"))
    f = [label("L_grp_far"), salu(f"s_or_b32 s{S_T0}, s{S_XCC}, 0x80"), valu(f"v_mov_b32 v{V_ARR+1}, s{S_T0}", [], []),
         valu(f"v_mov_b32 v{V_ARR+3}, 0", [], []),
         raw(f"buffer_store_byte v{V_ARR+1}, v{V_ARR+3}, s[{S_DBG}:{S_DBG+3}], s{S_SIG} offen sc1", "salu"), wait_vm(0),
         salu(f"s_mov_b32 s{S_SPIN}, {SPIN_MAX}"), label("L_grp_again"),
         salu(f"s_sub_u32 s{S_SPIN}, s{S_SPIN}, 1"), salu(f"s_cmp_eq_u32 s{S_SPIN}, 0"), raw("s_cbranch_scc1 L_grp_ok", "branch")]
    if not OPT.force_fallback:
        f += [raw(f"buffer_load_dword v{V_ARR}, v{V_GA}, s[{S_DBG}:{S_DBG+3}], 0 offen sc1", "salu"), wait_vm(0),
              valu(f"v_and_b32 v{V_ARR}, 0x87878787, v{V_ARR}", [], []), valu(f"v_cmp_eq_u32 vcc, s50, v{V_ARR}", [], []), nop(0),
              salu("s_cmp_eq_u64 vcc, -1"), salu(f"s_cselect_b64 s[{S_LOCM}:{S_LOCM+1}], -1, 0"), raw("s_cbranch_scc1 L_grp_ok", "branch")]
    f += far_read(V_ARR)
    f += [valu(f"v_and_b32 v{V_ARR+1}, 0x80808080, v{V_ARR}", [], []), valu(f"v_cmp_eq_u32 vcc, 0x80808080, v{V_ARR+1}", [], []), nop(0),
          salu("s_and_b64 s[52:53], vcc, 15"), salu("s_cmp_eq_u64 s[52:53], 15"), raw("s_cbranch_scc0 L_grp_again", "branch"),
          valu(f"v_and_b32 v{V_ARR}, 0x87878787, v{V_ARR}", [], []), valu(f"v_cmp_eq_u32 vcc, s50, v{V_ARR}", [], []), nop(0),
          salu("s_and_b64 s[52:53], vcc, 15"), salu("s_cmp_eq_u64 s[52:53], 15"),
          salu(f"s_cselect_b64 s[{S_LOCM}:{S_LOCM+1}], -1, 0")]
    if OPT.force_fallback: f.append(salu(f"s_mov_b64 s[{S_LOCM}:{S_LOCM+1}], 0"))
    f.append(raw("s_branch L_grp_ok", "branch"))
    OOL.extend(f)
    return o
def far_read(dst, ga=V_GA):
    return [valu(f"v_mov_b32 v{dst}, 0", [], []), valu(f"v_cmp_gt_u32 vcc, 4, v{V_LANE}", [], []),
            raw("s_and_saveexec_b64 s[54:55], vcc", "salu"),
            raw(f"buffer_atomic_add v{dst}, v{ga}, s[{S_DBG}:{S_DBG+3}], 0 offen sc0 sc1", "salu"), wait_vm(0),
            raw("s_mov_b64 exec, s[54:55]", "salu")]

def p3_setup():
    L = f"v{V_LANE}"
    o = [valu(f"v_lshlrev_b32 v{V_STO}, 4, {L}", [L], [f"v{V_STO}"])]
    if OPT.fused:
        o += [valu(f"v_mov_b32 v{V_ZERO}, 0", [], [f"v{V_ZERO}"]), valu(f"v_mov_b32 v{V_GA3}, v{V_GA}", [f"v{V_GA}"], [f"v{V_GA3}"])]
    else: o += far_setup()
    return o

def far_setup():
    o = []; a = o.append
    L = f"v{V_LANE}"
    a(salu(f"s_mul_i32 s{S_PART}, s{S_G}, {7*16*16*2048}"))
    a(salu(f"s_lshl_b32 s{S_T2}, s{S_H}, 15")); a(salu(f"s_add_u32 s{S_RBASE}, s{S_PART}, s{S_T2}"))
    a(salu(f"s_lshl_b32 s{S_T2}, s{S_W}, 17")); a(salu(f"s_add_u32 s{S_PART}, s{S_PART}, s{S_T2}"))
    a(salu(f"s_lshl_b32 s{S_T2}, s{S_H}, 11")); a(salu(f"s_add_u32 s{S_PART}, s{S_PART}, s{S_T2}"))
    if not OPT.fused: return o
    a(salu(f"s_or_b32 s{S_T2}, s{S_XCC}, 0xf0")); a(valu(f"v_mov_b32 v{V_ONE}, s{S_T2}", [], [f"v{V_ONE}"]))
    a(valu(f"v_lshrrev_b32 v1, 5, {L}", [L], ["v1"])); a(valu("v_lshlrev_b32 v1, 11, v1", ["v1"], ["v1"]))
    a(valu(f"v_and_b32 v2, 31, {L}", [L], ["v2"])); a(valu(f"v_lshl_add_u32 v{V_RLD}, v2, 4, v1", ["v1", "v2"], [f"v{V_RLD}"]))
    a(salu(f"s_lshl_b32 s{S_T2}, s{S_W}, 9")); a(valu(f"v_add_u32 v{V_RLD}, s{S_T2}, v{V_RLD}", [f"v{V_RLD}"], [f"v{V_RLD}"]))
    a(valu(f"v_and_b32 v1, 15, {L}", [L], ["v1"])); a(valu(f"v_lshrrev_b32 v2, 4, {L}", [L], ["v2"]))
    a(valu("v_lshrrev_b32 v4, 3, v1", ["v1"], ["v4"])); a(valu("v_and_b32 v5, 1, v2", ["v2"], ["v5"]))
    a(valu("v_and_b32 v48, 1, v1", ["v1"], ["v48"])); a(valu("v_lshlrev_b32 v48, 4, v48", ["v48"], ["v48"]))
    a(valu("v_mov_b32 v49, 0x3f80", [], ["v49"])); a(valu("v_lshlrev_b32 v49, v48, v49", ["v48", "v49"], ["v49"]))
    a(valu("v_cmp_eq_u32 vcc, v4, v5", ["v4", "v5"], ["vcc"])); a(nop(1))
    a(valu("v_cndmask_b32 v49, 0, v49, vcc", ["v49", "vcc"], ["v49"]))
    a(valu("v_bfe_u32 v50, v1, 1, 2", ["v1"], ["v50"]))
    for r in range(4):
        a(valu(f"v_cmp_eq_u32 vcc, {r}, v50", ["v50"], ["vcc"])); a(nop(1))
        a(valu("v_cndmask_b32 v51, 0, v49, vcc", ["v49", "vcc"], ["v51"]))
        a(valu(f"v_accvgpr_write_b32 a{A_SEL+r}, v51", ["v51"], [f"a{A_SEL+r}"]))
    a(salu(f"s_lshl_b32 s{S_T2}, s{S_B}, 8")); a(salu(f"s_lshl_b32 s{S_T3}, s{S_H}, 4")); a(salu(f"s_add_u32 s{S_T2}, s{S_T2}, s{S_T3}"))
    a(valu(f"v_add_u32 v{V_OUT}, s{S_T2}, v1", ["v1"], [f"v{V_OUT}"])); a(valu(f"v_mul_u32_u24 v{V_OUT}, 896, v{V_OUT}", [f"v{V_OUT}"], [f"v{V_OUT}"]))
    a(salu(f"s_mul_i32 s{S_T2}, s{S_BR}, 448")); a(salu(f"s_lshr_b32 s{S_T3}, s{S_W}, 1")); a(salu(f"s_lshl_b32 s{S_T3}, s{S_T3}, 5"))
    a(salu(f"s_add_u32 s{S_T2}, s{S_T2}, s{S_T3}")); a(salu(f"s_and_b32 s{S_T3}, s{S_W}, 1")); a(salu(f"s_lshl_b32 s{S_T3}, s{S_T3}, 3"))
    a(salu(f"s_add_u32 s{S_T2}, s{S_T2}, s{S_T3}"))
    a(valu(f"v_add_u32 v{V_OUT}, s{S_T2}, v{V_OUT}", [f"v{V_OUT}"], [f"v{V_OUT}"]))
    a(valu(f"v_lshl_add_u32 v{V_OUT}, v5, 4, v{V_OUT}", ["v5", f"v{V_OUT}"], [f"v{V_OUT}"]))
    a(valu("v_lshrrev_b32 v4, 1, v2", ["v2"], ["v4"])); a(valu(f"v_lshl_add_u32 v{V_OUT}, v4, 2, v{V_OUT}", ["v4", f"v{V_OUT}"], [f"v{V_OUT}"]))
    a(valu(f"v_lshlrev_b32 v{V_OUT}, 1, v{V_OUT}", [f"v{V_OUT}"], [f"v{V_OUT}"]))
    return o

def handoff_far():
    o = [wait_vm(0), barrier(), raw("buffer_wbl2 sc1", "salu"), wait_vm(0), barrier(),
         raw(f"buffer_store_byte v{V_ONE}, v{V_ZERO}, s[{S_DBG}:{S_DBG+3}], s{S_SIG} offen sc1", "salu"), wait_vm(0),
         salu(f"s_mov_b32 s{S_SPIN}, {SPIN_MAX}"), label("L_far_poll"),
         salu(f"s_sub_u32 s{S_SPIN}, s{S_SPIN}, 1"), salu(f"s_cmp_eq_u32 s{S_SPIN}, 0"), raw("s_cbranch_scc1 L_far_done", "branch")]
    o += far_read(V_POLL, V_GA3)
    o += [valu(f"v_and_b32 v{V_POLL}, 0xf0f0f0f0, v{V_POLL}", [], []), valu(f"v_cmp_eq_u32 vcc, 0xf0f0f0f0, v{V_POLL}", [], []), nop(0),
          salu("s_and_b64 s[52:53], vcc, 15"), salu("s_cmp_eq_u64 s[52:53], 15"), raw("s_cbranch_scc0 L_far_poll", "branch"),
          label("L_far_done"), raw("buffer_inv sc1", "salu"), wait_vm(0)]
    return o

A_PIECE = 0; A_SEL2 = 224
def red_loads(j):
    out = []
    for i in range(8):
        sr = "s52" if i % 2 == 0 else "s53"
        out.append(([salu(f"s_add_u32 {sr}, s{S_RBASE}, {j*16*32768 + i*4096}", [f"s{S_RBASE}"], [sr])],
                    tag(bload_f("a", A_PIECE + 32 * j + 4 * i, 4, V_RLD, S_WS, sr, 0, "sc1"), f"rl{j}")))
    return out
def red_mfmas(j):
    d = V_RD + 4 * (j & 1)
    return [mfma("v", d, "a", A_SEL2, "a", A_PIECE + 32 * j + 4 * i, None if i == 0 else "v", None if i == 0 else d) for i in range(8)]
def red_out(j):
    d = V_RD + 4 * (j & 1)
    return [valu(f"v_cvt_pk_bf16_f32 v{d}, v{d}, v{d+1}", [f"v{d}", f"v{d+1}"], [f"v{d}"]),
            valu(f"v_cvt_pk_bf16_f32 v{d+1}, v{d+2}, v{d+3}", [f"v{d+2}", f"v{d+3}"], [f"v{d+1}"])], tag(bstore(d, 2, V_OUT, S_OUT, "0", j * 128), f"out{j}")

A_RING = 64; A_SEL4 = 96
V_RLD4, V_OUT4, V_FLA, V_FLAG1 = 48, 49, 50, 51
def ring_scalars():
    o = []; a = o.append
    a(salu(f"s_mul_i32 s50, s{S_G}, {OPT.ring * 262144}"))
    a(salu(f"s_lshl_b32 s51, s{S_W}, 16")); a(salu(f"s_add_u32 s{S_RST}, s50, s51"))
    a(salu(f"s_lshl_b32 s51, s{S_H}, 10")); a(salu(f"s_add_u32 s{S_RST}, s{S_RST}, s51"))
    a(salu(f"s_lshl_b32 s51, s{S_H}, 14")); a(salu(f"s_add_u32 s{S_RLD}, s50, s51"))
    a(salu(f"s_mul_i32 s50, s{S_G}, {14*64}"))
    a(salu(f"s_lshl_b32 s51, s{S_W}, 4"))
    a(salu(f"s_add_u32 s{S_FPW}, s50, s51")); a(salu(f"s_add_u32 s{S_FPW}, s{S_FPW}, s{S_H}"))
    a(salu(f"s_add_u32 s{S_FCR}, s50, s51")); a(salu(f"s_add_u32 s{S_FCR}, s{S_FCR}, {CONS_OFF}"))
    a(salu(f"s_lshr_b32 s51, s{S_H}, 2")); a(salu(f"s_lshl_b32 s51, s51, 4"))
    a(salu(f"s_add_u32 s{S_FPR}, s50, s51"))
    a(salu(f"s_lshl_b32 s51, s{S_H}, 2")); a(salu(f"s_add_u32 s{S_FCW}, s50, s51"))
    a(salu(f"s_add_u32 s{S_FCW}, s{S_FCW}, s{S_W}")); a(salu(f"s_add_u32 s{S_FCW}, s{S_FCW}, {CONS_OFF}"))
    return o
def ring_setup():
    o = []; a = o.append
    L = f"v{V_LANE}"
    a(valu(f"v_and_b32 v{V_FLA}, 3, {L}", [L], [f"v{V_FLA}"])); a(valu(f"v_lshlrev_b32 v{V_FLA}, 2, v{V_FLA}", [f"v{V_FLA}"], [f"v{V_FLA}"]))
    a(valu(f"v_mov_b32 v{V_FLAG1}, 1", [], [f"v{V_FLAG1}"]))
    a(valu(f"v_and_b32 v1, 15, {L}", [L], ["v1"])); a(valu(f"v_lshrrev_b32 v2, 4, {L}", [L], ["v2"]))
    a(valu(f"v_lshlrev_b32 v{V_RLD4}, 10, v2", ["v2"], [f"v{V_RLD4}"])); a(valu(f"v_lshl_add_u32 v{V_RLD4}, v1, 4, v{V_RLD4}", ["v1", f"v{V_RLD4}"], [f"v{V_RLD4}"]))
    a(salu(f"s_lshl_b32 s{S_T1}, s{S_W}, 8")); a(valu(f"v_add_u32 v{V_RLD4}, s{S_T1}, v{V_RLD4}", [f"v{V_RLD4}"], [f"v{V_RLD4}"]))
    a(valu("v_and_b32 v4, 1, v1", ["v1"], ["v4"])); a(valu("v_lshlrev_b32 v4, 4, v4", ["v4"], ["v4"]))
    a(valu("v_mov_b32 v5, 0x3f80", [], ["v5"])); a(valu("v_lshlrev_b32 v5, v4, v5", ["v4", "v5"], ["v5"]))
    a(valu("v_lshrrev_b32 v4, 1, v1", ["v1"], ["v4"]))
    for r in range(4):
        a(valu(f"v_cmp_eq_u32 vcc, {r}, v4", ["v4"], ["vcc"])); a(nop(1))
        a(valu("v_cndmask_b32 v52, 0, v5, vcc", ["v5", "vcc"], ["v52"]))
        a(valu(f"v_accvgpr_write_b32 a{A_SEL4+r}, v52", ["v52"], [f"a{A_SEL4+r}"]))
    a(salu(f"s_lshl_b32 s{S_T0}, s{S_B}, 8")); a(salu(f"s_lshl_b32 s{S_T1}, s{S_H}, 4")); a(salu(f"s_add_u32 s{S_T0}, s{S_T0}, s{S_T1}"))
    a(valu(f"v_add_u32 v{V_OUT4}, s{S_T0}, v1", ["v1"], [f"v{V_OUT4}"])); a(valu(f"v_mul_u32_u24 v{V_OUT4}, 896, v{V_OUT4}", [f"v{V_OUT4}"], [f"v{V_OUT4}"]))
    a(salu(f"s_mul_i32 s{S_T0}, s{S_BR}, 448")); a(salu(f"s_lshl_b32 s{S_T1}, s{S_W}, 2")); a(salu(f"s_add_u32 s{S_T0}, s{S_T0}, s{S_T1}"))
    a(valu(f"v_add_u32 v{V_OUT4}, s{S_T0}, v{V_OUT4}", [f"v{V_OUT4}"], [f"v{V_OUT4}"]))
    a(valu(f"v_lshl_add_u32 v{V_OUT4}, v2, 4, v{V_OUT4}", ["v2", f"v{V_OUT4}"], [f"v{V_OUT4}"]))
    a(valu(f"v_lshlrev_b32 v{V_OUT4}, 1, v{V_OUT4}", [f"v{V_OUT4}"], [f"v{V_OUT4}"]))
    a(valu("v_cmp_gt_u32 vcc, 2, v2", ["v2"], ["vcc"])); a(salu(f"s_mov_b32 s{S_T0}, 0x7ff00000")); a(valu(f"v_mov_b32 v4, s{S_T0}", [], ["v4"]))
    a(valu(f"v_cndmask_b32 v{V_OUT4}, v4, v{V_OUT4}, vcc", ["v4", f"v{V_OUT4}", "vcc"], [f"v{V_OUT4}"]))
    return o

def flag_store(base, u, tg):
    return [salu(f"s_add_u32 s55, s{base}, {u*64}", [f"s{base}"], ["s55"])], \
           tag(I(f"buffer_store_byte v{V_FLAG1}, v{V_ZERO}, s[{S_FL}:{S_FL+3}], s55 offen", "vst", [f"v{V_FLAG1}", f"v{V_ZERO}", "s55"], data=[]), tg)
def flag_poll(base, u, dst, tg):
    return [salu(f"s_add_u32 s54, s{base}, {u*64}", [f"s{base}"], ["s54"])], tag(bload(dst, 1, V_FLA, S_FL, "s54", 0, "sc1"), tg)
def flag_check(base, u, dst, tg, name):
    OOL.extend([label(f"L_{name}_spin"), salu(f"s_add_u32 s54, s{base}, {u*64}"), salu(f"s_mov_b32 s{S_SPIN}, {SPIN_MAX}"),
                label(f"L_{name}_again"),
                salu(f"s_sub_u32 s{S_SPIN}, s{S_SPIN}, 1"), salu(f"s_cmp_eq_u32 s{S_SPIN}, 0"), raw(f"s_cbranch_scc1 L_{name}_ok", "branch"),
                raw(f"buffer_load_dword v{dst}, v{V_FLA}, s[{S_FL}:{S_FL+3}], s54 offen sc1", "salu"), wait_vm(0),
                valu(f"v_cmp_ne_u32 vcc, 0x01010101, v{dst}", [], []), nop(0),
                raw(f"s_cbranch_vccnz L_{name}_again", "branch"), raw(f"s_branch L_{name}_ok", "branch")])
    dd = (lambda n: stamp("d_" + n)) if name in (f"prod{OPT.p3detail}", f"cons{OPT.p3detail}") else (lambda n: [])
    return dd(name[:4] + "A") + [wait_tag(tg)] + dd(name[:4] + "B") + [valu(f"v_cmp_ne_u32 vcc, 0x01010101, v{dst}", [f"v{dst}"], ["vcc"]), nop(0),
            raw(f"s_cbranch_vccnz L_{name}_spin", "branch"), label(f"L_{name}_ok")] + dd(name[:4] + "C")
V_PP, V_PC = 53, 54
def ring_loads(u):
    out = []
    for i in range(4):
        sr = "s52" if i % 2 == 0 else "s53"
        out.append(([salu(f"s_add_u32 {sr}, s{S_RLD}, {(u % OPT.ring)*262144 + i*4096}", [f"s{S_RLD}"], [sr])],
                    tag(bload_f("a", A_RING + 16 * (u & 1) + 4 * i, 4, V_RLD4, S_RG, sr, 0, "sc1"), f"rl{u}")))
    return out
def ring_mfmas(u):
    d = V_RD + 4 * (u & 1)
    return [mfma("v", d, "a", A_SEL4, "a", A_RING + 16 * (u & 1) + 4 * i, None if i == 0 else "v", None if i == 0 else d) for i in range(4)]
def ring_out(u):
    d = V_RD + 4 * (u & 1)
    return [valu(f"v_cvt_pk_bf16_f32 v{d}, v{d}, v{d+1}", [f"v{d}", f"v{d+1}"], [f"v{d}"]),
            valu(f"v_cvt_pk_bf16_f32 v{d+1}, v{d+2}, v{d+3}", [f"v{d+2}", f"v{d+3}"], [f"v{d+1}"])], tag(bstore(d, 2, V_OUT4, S_OUT, "0", u * 64, OPT.out_flags), f"out{u}")

def p3_stream(local, carried):
    o = []; a = o.append
    NS, D = OPT.ring, OPT.prod_delay
    Q = lambda u: 8 * u + 7
    if OPT.tmpl == 0:
        T = dict(st=[0, 1, 2, 3], sig=(7, 5), poll=(12, 5), chk=(15, 7), ld=[(16, 7), (17, 7), (18, 7), (19, 7)], csig=(22, 3), out=(30, 5),
                 cpoll=(-4, 3), cchk=(-1, 3), wo=[(-4, 7), (-3, 3), (-3, 7), (-2, 7)], va=((0, 85), (1, 61), (2, 69), (3, 101)))
    else:
        T = dict(st=[0, 2, 4, 5], sig=(8, 5), poll=(13, 7), chk=(16, 7), ld=[(17, 3), (17, 7), (19, 3), (19, 7)], csig=(22, 3), out=(30, 5),
                 cpoll=(-4, 7), cchk=(-1, 3), wo=[(-6, 7), (-2, 7), (-1, 5), (-1, 7)], va=((0, 85), (1, 37), (2, 69), (3, 101)))
    ins = {}
    if local:
        for u in range(14):
            m = 8 * (Q(u) + 22 + D) - 1
            if m < 895: ins[m] = u
    ms = []; pos = {}; redpos = {}
    for m in range(896):
        j, i = m >> 7, m & 127
        nb, qb, s_ = i >> 5, (i >> 3) & 3, i & 7
        acc = V_ACC3 + 4 * ((nb * 4 + qb) % 8)
        pos[m] = len(ms)
        ms.append(mfma("v", acc, "a", A_FR3 + 4 * (8 * (nb & 1) + s_), "v", V_Q + (qb * 8 + s_) * 4,
                       None if s_ == 0 else "v", None if s_ == 0 else acc))
        if m in ins:
            u = ins[m]; redpos[u] = len(ms); ms += ring_mfmas(u)
    g = Gaps(ms); N = g.n
    P = lambda j, i: pos[128 * j + i]
    def G(period, off):
        m = 8 * period + off
        return pos[m] if 0 <= m < 896 else None
    for j in range(7):
        for nb in range(4):
            jn, nbn = (j, nb + 1) if nb < 3 else (j + 1, 0)
            if jn > 6: continue
            for s_ in range(8):
                for jj in range(2): g.put_mem(P(j, 32 * nb + 4 * s_ + 2 * jj), wo_read(nbn, s_, jj))
    cons = []
    for j in range(7):
        for nb in range(4):
            for s_ in (0, 2, 4, 6): cons.append((P(j, 32 * nb + s_), R("a", A_FR3 + 4 * (8 * (nb & 1) + s_), 8)))
    cons.sort()
    def put_vm(k, sc, d):
        assert g.mem[k] is None and not g.post[k], (k, d.text)
        for n, x in enumerate(reversed(sc)):
            kk = k - 1 - n
            assert kk >= 0
            assert not (g.mem[kk] is not None and g.mem[kk].kind == "dma" and "m0" in x.wr)
            g.pre[kk].append(x)
        g.mem[k] = d
    def put_seq(k, seq):
        assert g.mem[k] is None and not g.post[k], k
        g.post[k] = seq
    for j in range(6):
        k = P(j, 91)
        g.pre[k] += ([wait_tag(f"wo{j+1}")] if not (OPT.wo_stage and j + 1 >= 5) else []) + [barrier()]
        sh = va_shift(WOBUF[j + 1] - WOBUF[j])
        for n, at in T['va']:
            kk = P(j, at); g.vec[kk].append(sh[n])
    if OPT.wo_stage:
        items = wo_dma(4) + wo_stage_loads(5) + wo_stage_loads(6)
        slots = [(0, 3), (0, 5), (0, 7), (1, 1), (1, 3), (1, 5), (1, 7)] + [(per, off) for per in range(2, 7) for off in (3, 5, 7)] + [(7, 5), (7, 7)]
        if OPT.tmpl == 1:
            slots = [(0, 3), (0, 5), (0, 7), (1, 1), (1, 3), (1, 5), (1, 7)] + [(per, off) for per in range(2, 7) for off in (3, 5, 7)] + [(7, 5), (7, 7)]
        for (sc, d), (per, off) in zip(items, slots): put_vm(G(per, off), sc, d)
        for j in (5, 6):
            jj_ = j - 3
            g.vec[P(jj_, 1)].insert(0, valu(f"v_add_u32 v{V_WOW}, {(WOBUF[j] - (WOBUF[j-1] if j == 6 else 0)) & 0xffffffff}, v{V_WOW}", [f"v{V_WOW}"], [f"v{V_WOW}"]))
            for i in range(8):
                u0 = 2 * jj_ + (i >> 2)
                per, off = Q(u0) + T['wo'][i & 3][0], T['wo'][i & 3][1]
                k = G(per, off)
                assert g.mem[k] is None
                g.mem[k] = wo_stage_write(j, i)
            u1 = 2 * jj_
            g.pre[G(Q(u1) + T['wo'][0][0], T['wo'][0][1]) - 1].append(wait_tag(f"wos{j}"))
    else:
      for j in (2, 3):
        items = wo_dma(j + 3)
        for n, (sc, d) in enumerate(items):
            u0 = 2 * j + (n >> 2)
            per, off = Q(u0) + T['wo'][n & 3][0], T['wo'][n & 3][1]
            put_vm(G(per, off), sc, d)
    lead = add_lgkm_waits(g, cons, carried)
    stores = {}; sgap = {}
    for u in range(14):
        j, nb = u >> 1, 2 * (u & 1) + 1
        for qb in range(4):
            sreg = S_T2 + (qb & 1)
            if local:
                st = ([salu(f"s_add_u32 s{sreg}, s{S_RST}, {(u % NS)*262144 + qb*16384}", [f"s{S_RST}"], [f"s{sreg}"])],
                      tag(bstore(V_STG + 4 * qb, 4, V_STO, S_RG, f"s{sreg}", 0, OPT.last_st if u >= 14 - NS else ""), f"st{u}"))
            else:
                so = j * 16 * 16 * 2048 + qb * 16 * 2048 + (nb >> 1) * 1024
                st = ([salu(f"s_add_u32 s{sreg}, s{S_PART}, {so}", [f"s{S_PART}"], [f"s{sreg}"])],
                      tag(bstore(V_STG + 4 * qb, 4, V_STO, S_WS, f"s{sreg}", 0), f"st{u}"))
            stores[(u, qb)] = st
            k = G(Q(u) + T['st'][qb], 3)
            sgap[(u, qb)] = k
            if k is not None: put_vm(k, *st)
    done = {}; out_left = []
    if local:
        for u in range(14):
            dd = (lambda n: stamp("d_" + n)) if u == OPT.p3detail else (lambda n: [])
            if u >= NS:
                kp, kc = G(Q(u) + T['cpoll'][0], T['cpoll'][1]), G(Q(u) + T['cchk'][0], T['cchk'][1])
                put_vm(kp, *flag_poll(S_FCR, u - NS, V_PC, f"pc{u}"))
                put_seq(kc, flag_check(S_FCR, u - NS, V_PC, f"pc{u}", f"cons{u}"))
            done[u] = "sig"
            k = G(Q(u) + T['sig'][0], T['sig'][1])
            if k is None or sgap[(u, 3)] is None: continue
            sc, d = flag_store(S_FPW, u, f"sig{u}")
            g.pre[k - 1] += dd("sigA") + [wait_tag(f"st{u}")] + dd("sigB"); put_vm(k, sc, d)
            done[u] = "poll"
            k = G(Q(u) + T['poll'][0] + D, T['poll'][1])
            if k is None: continue
            put_vm(k, *flag_poll(S_FPR, u, V_PP, f"pp{u}"))
            done[u] = "check"
            k = G(Q(u) + T['chk'][0] + D, T['chk'][1])
            if k is None: continue
            put_seq(k, flag_check(S_FPR, u, V_PP, f"pp{u}", f"prod{u}"))
            done[u] = "loads"
            if u not in redpos: continue
            for n, (sc, d) in enumerate(ring_loads(u)): put_vm(G(Q(u) + T['ld'][n][0] + D, T['ld'][n][1]), sc, d)
            g.pre[redpos[u] - 1] += dd("rlA") + [wait_tag(f"rl{u}")] + dd("rlB")
            if u <= 13 - NS: put_vm(G(Q(u) + T['csig'][0] + D, T['csig'][1]), *flag_store(S_FCW, u, f"csig{u}"))
            done[u] = "out"
            cv, st = ring_out(u)
            if u + 1 in redpos:
                g.vec[redpos[u + 1]] += cv
                put_vm(G(Q(u) + T['out'][0] + D, T['out'][1]), [], st)
                done[u] = "all"
    tail_main = []
    for p in range(112):
        j, nb, qb = p >> 4, (p >> 2) & 3, p & 3
        ops = part_ops(nb, qb)
        slots = [G(p + 2, 0), G(p + 2, 1), G(p + 2, 1), G(p + 2, 2), G(p + 2, 4), G(p + 2, 6)]
        if slots[0] is None:
            tail_main += ops
        else:
            for x, k in zip(ops, slots): g.vec[k].append(x)
        if nb & 1:
            u = 2 * j + (nb >> 1)
            if sgap[(u, qb)] is None: tail_main += stores[(u, qb)][0] + [nop(1), stores[(u, qb)][1]]
    if OPT.p3_tiles and local:
        for j in range(1, 7): g.pre[P(j, 0)] = stamp(f"tile{j}") + g.pre[P(j, 0)]
    if lead is not None: a(lead)
    em = g.emit()
    if "allst" in OPT.p3_drop: em = [x for x in em if x.kind != "vst"]
    if "pst" in OPT.p3_drop: em = [x for x in em if not (x.kind == "vst" and x.meta.get("tag", "").startswith("st"))]
    if "nospin" in OPT.p3_drop: em = [x for x in em if not (x.kind == "branch" and "vccnz" in x.text)]
    if "novm" in OPT.p3_drop: em = [x for x in em if not (x.kind == "wait" and "vmtags" in x.meta and not x.meta["vmtags"][0].startswith("wo"))]
    if "nold" in OPT.p3_drop: em = [x for x in em if not (x.kind == "vld" and x.meta.get("tag", "").startswith("rl"))]
    o += stamp("p3_stream_start") if (local or not OPT.fused) else []
    o += em
    if local or not OPT.fused: o += stamp("p3_mfma_end")
    a(nop(7)); o += exposed(tail_main)
    if local:
        todo = [u for u in range(14) if done[u] != "all"]
        LD = lambda u: [x for sc, d in ring_loads(u) for x in sc + [d]]
        POLL = lambda u: (lambda p: p[0] + [p[1]])(flag_poll(S_FPR, u, V_PP, f"pp{u}"))
        CHK = lambda u: flag_check(S_FPR, u, V_PP, f"pp{u}", f"prod{u}")
        SIG = lambda u: (lambda p: [wait_tag(f"st{u}")] + p[0] + [p[1]])(flag_store(S_FPW, u, f"sig{u}"))
        OUT = lambda u: (lambda p: p[0] + [p[1]])(ring_out(u))
        if OPT.tail2 and [done[u] for u in todo] == ["out", "loads", "poll", "sig"] and todo == [10, 11, 12, 13]:
            o += LD(11) + POLL(12) + SIG(13) + stamp("x_last_signal") + OUT(10)
            o += CHK(12) + LD(12) + [wait_tag("rl11")] + ring_mfmas(11)
            o += POLL(13) + CHK(13) + LD(13)
            o += [wait_tag("rl12")] + ring_mfmas(12) + [nop(3)] + OUT(11)
            o += [wait_tag("rl13")] + ring_mfmas(13) + [nop(3)] + OUT(12) + [nop(7)] + OUT(13)
        else:
            for u in todo:
                if done[u] == "sig": o += SIG(u)
            o += stamp("x_last_signal")
            for u in todo:
                if done[u] != "out":
                    if done[u] in ("sig", "poll"): o += POLL(u)
                    if done[u] in ("sig", "poll", "check"): o += CHK(u)
                    o += LD(u) + [wait_tag(f"rl{u}")] + ring_mfmas(u) + [nop(7)]
                o += OUT(u)
    return o

def phase3():
    o = []; a = o.append
    a(label("L_p3_entry"))
    a(wait_tag("wt", "wo0")); a(raw("s_waitcnt lgkmcnt(0)", "wait", lgkm=0)); a(barrier())
    a(valu(f"v_mov_b32 v1, {L_VOTE}", [], ["v1"]))
    a(ds_read128("v", V_SP, 1, 0)); a(wait_lgkm(0))
    a(valu(f"v_or3_b32 v{V_SP}, v{V_SP}, v{V_SP+1}, v{V_SP+2}", R("v", V_SP, 3), [f"v{V_SP}"]))
    a(valu(f"v_or_b32 v{V_SP}, v{V_SP}, v{V_SP+3}", [f"v{V_SP}", f"v{V_SP+3}"], [f"v{V_SP}"])); a(nop(0))
    a(valu(f"v_readfirstlane_b32 s50, v{V_SP}", [f"v{V_SP}"], ["s50"])); a(nop(3))
    a(salu(f"s_cmp_eq_u32 s{S_SAFE}, 0")); a(salu("s_cselect_b32 s50, s50, 0"))
    a(salu("s_cmp_lg_u32 s50, 0")); a(raw("s_cbranch_scc1 L_restart", "branch"))
    OOL.extend([label("L_restart"), wait_vm(0), raw("s_waitcnt lgkmcnt(0)", "wait", lgkm=0), barrier(),
                salu(f"s_mov_b32 s{S_SAFE}, 1"), raw("s_branch L_again", "branch")])
    o += p3_setup()
    if OPT.fused: o += ring_setup()
    o += va_shift(WOBUF[0] - L_V)
    if OPT.fused: o += mode_check()
    carried = []
    for s_ in range(8):
        for jj in range(2):
            r = wo_read(0, s_, jj); a(r); carried.append(r.wr)
            if len(carried) == 14: a(wait_lgkm(6)); carried = carried[-6:]
    a(barrier())
    if OPT.wo_stage:
        a(valu(f"v_lshlrev_b32 v{V_WOW}, 4, v{V_LANE}", [f"v{V_LANE}"], [f"v{V_WOW}"]))
        a(valu(f"v_add_u32 v{V_WOW}, s{S_W1K}, v{V_WOW}", [f"v{V_WOW}"], [f"v{V_WOW}"]))
    else:
        for sc, d in wo_dma(4): o += sc + [nop(0), d]
    if not OPT.fused:
        return o, p3_stream(False, carried) + stamp("p3_end") + ([wait_vm(0)] if OPT.stamps else []) + stamp("rt_end"), []
    o += [salu(f"s_cmp_eq_u32 s{S_LOCM}, 0"), raw("s_cbranch_scc1 L_p3_far", "branch")]
    loc = p3_stream(True, carried)
    loc += stamp("p3_end") + ([wait_vm(0)] if OPT.stamps else []) + stamp("rt_end")
    far = [label("L_p3_far")] + far_setup() + p3_stream(False, carried) + handoff_far()
    for j in range(7):
        for sc, d in red_loads(j): far += sc + [d]
    for j in range(7):
        far.append(wait_tag(f"rl{j}"))
        far += red_mfmas(j)
        if j > 0:
            cv, stt = red_out(j - 1); far += cv + [stt]
    far.append(nop(7))
    cv, stt = red_out(6); far += cv + [stt]
    far += [wait_vm(0), raw("s_endpgm", "branch")]
    return o, loc, far

def dump_regs(base, n, agpr=False):
    o = [wait_vm(0), raw("s_waitcnt lgkmcnt(0)", "wait", lgkm=0), nop(7), nop(7),
         salu(f"s_lshl_b32 s{S_T0}, s2, 2"), salu(f"s_add_u32 s{S_T0}, s{S_T0}, s{S_W}"),
         salu(f"s_mul_i32 s{S_T0}, s{S_T0}, {n*256}"), valu(f"v_lshlrev_b32 v1, 2, v{V_LANE}", [f"v{V_LANE}"], ["v1"])]
    for r in range(n):
        if agpr:
            o.append(valu(f"v_accvgpr_read_b32 v2, a{base+r}", [f"a{base+r}"], ["v2"])); o.append(bstore(2, 1, 1, S_WS, f"s{S_T0}", 0))
        else:
            o.append(bstore(base + r, 1, 1, S_WS, f"s{S_T0}", 0))
        o.append(salu(f"s_add_u32 s{S_T0}, s{S_T0}, 256"))
        if r % 32 == 31 or agpr: o.append(wait_vm(0))
    return o

def stamp_out():
    if not OPT.stamps: return []
    if OPT.dma_stamps: STAMPS[:] = [f"dma{i}" for i in range(10)] + ["loopcyc"]
    if OPT.bar_stamps: STAMPS.extend(["acc_vm", "acc_bar"])
    n = len(STAMPS)
    o = [raw("s_waitcnt lgkmcnt(0)", "wait", lgkm=0), salu(f"s_cmp_lg_u32 s{S_W}, 0"), raw("s_cbranch_scc1 L_nostamp", "branch")]
    if OPT.stamp_dbg >= 0:
        o += [salu(f"s_cmp_lg_u32 s2, {OPT.stamp_dbg}"), raw("s_cbranch_scc1 L_nostamp", "branch")]
        o += [salu("s_load_dwordx2 s[36:37], s[0:1], 88"), raw("s_waitcnt lgkmcnt(0)", "wait", lgkm=0)]
        o += [salu(f"s_mov_b32 s{S_WS}, s36"), salu(f"s_mov_b32 s{S_WS+1}, s37"), salu(f"s_mov_b32 s{S_WS+2}, 256"), salu(f"s_mov_b32 s{S_T0}, 0")]
    else:
        o.append(salu(f"s_mul_i32 s{S_T0}, s2, 64")); o.append(salu(f"s_add_u32 s{S_T0}, s{S_T0}, {STAMP_OFF}"))
        o.append(salu(f"s_mov_b32 s{S_WS+2}, {STAMP_OFF + 256*64}"))
    o.append(valu("v_mov_b32 v1, 0", [], ["v1"]))
    for k in range(n):
        if OPT.stamp_dbg >= 0:
            ref = 0 if STAMPS[k].startswith("rt") else 1
            o.append(salu(f"s_sub_u32 s{S_T1}, s{S_STAMP+2*k}, s{S_STAMP+2*ref}"))
            o.append(valu(f"v_mov_b32 v2, s{S_T1}", [], ["v2"]))
        elif STAMPS[k] == "loopcyc": o.append(valu("v_mov_b32 v2, s100", [], ["v2"]))
        elif STAMPS[k] == "acc_vm": o.append(valu("v_mov_b32 v2, s92", [], ["v2"]))
        elif STAMPS[k] == "acc_bar": o.append(valu("v_mov_b32 v2, s93", [], ["v2"]))
        else:
            o.append(valu(f"v_mov_b32 v2, s{S_STAMP+2*k}", [], ["v2"]))
        o.append(bstore(2, 1, 1, S_WS, f"s{S_T0}", 4 * k)); o.append(wait_vm(0))
    o.append(label("L_nostamp"))
    return o

def finish(): return [wait_vm(0), label("L_end"), raw("s_endpgm", "branch")]

def trip_seq(ex):
    return [raw("s_memtime s[98:99]", "salu"), raw("s_memrealtime s[100:101]", "salu"), raw("s_waitcnt lgkmcnt(0)", "wait", lgkm=0),
            salu(f"s_mov_b32 s99, m0"), salu(f"s_mov_b32 m0, s{S_LOOP}"), nop(0), valu(f"v_writelane_b32 v1, s98, m0", ["s98"], ["v1"]),
            salu(f"s_add_u32 m0, s{S_LOOP}, 8"), nop(0), valu(f"v_writelane_b32 v1, s100, m0", ["s100"], ["v1"]),
            salu("s_mov_b32 m0, s99"), salu(f"s_cmp_lg_u32 s{S_LOOP}, {ex}")]
def build(debug=None):
    _stamp_n[0] = 0; STAMPS.clear(); OOL.clear()
    pre = setup() + phase1()
    if debug == "p1":
        pre += stamp("rt_end")
        resolve_vm(pre, [])
        return pre + stamp_out() + finish()
    if debug == "q":
        resolve_vm(pre, []); check(pre, "pre")
        return pre + dump_regs(V_Q, 128) + finish()
    if OPT.dma_mode == "cluster":
        OPT.dma_gaps = ([21, 23, 25, 27], [101, 103, 105, 107]); OPT.nv_prev = 0
    elif OPT.dma_mode == "cluster2":
        OPT.dma_gaps = ([41, 43, 47, 49], [101, 103, 105, 107]); OPT.nv_prev = 0
    NCUR = len(OPT.dma_gaps[1])
    pre += [salu(f"s_cmp_lg_u32 s{S_SAFE}, 0"), raw("s_cbranch_scc1 L_safe_attn", "branch")]
    p, carried = pre_iter(); pre += p
    def batch(t):
        return dma_tile("V", vslot(t + 3), f"s{S_VOFF}", f"V{t+3}") + dma_tile("K", kslot(t + 5), f"s{S_KOFF}", f"K{t+5}")
    pre += wo_setup()
    if OPT.fused: pre += grp_setup()
    def ex0(g, kb):
        put_wo(g, 0, 3, kb, step=8)
    vf0 = OPT.vfirst
    if OPT.early_trips: OPT.vfirst = OPT.vfirst_early
    s0, carried = attn_iter(0, carried, wait_tag("V1", "K2"), [], batch(0)[:NCUR], first=True, adv=False, extra=ex0)
    OPT.vfirst = vf0
    pre += s0
    pre.append(salu(f"s_mov_b32 s{S_LOOP}, 7"))
    if OPT.bar_stamps: pre += [salu("s_mov_b32 s92, 0"), salu("s_mov_b32 s93, 0")]
    pre += stamp("loop_start") + (stamp("rt_ls") if (OPT.bar_stamps or OPT.trip_stamps) else [])
    def loop_body(name):
        nonlocal carried
        lp = [label(name)]
        for u in range(4):
            t = 1 + u
            s, carried = attn_iter(t, carried, wait_vm(12), batch(t - 1)[NCUR:], batch(t)[:NCUR], loopctl=(u == 3), loop_body=True)
            if OPT.dma_stamps and u == 1:
                s2 = []; n = 0
                for x in s:
                    if x.kind == "dma" and n < 5:
                        s2 += [raw(f"s_memtime s[{80+4*n}:{81+4*n}]", "salu"), x, raw(f"s_memtime s[{82+4*n}:{83+4*n}]", "salu")]; n += 1
                    else: s2.append(x)
                s = s2
            lp += s
        return lp
    first_loop = []
    if OPT.early_trips:
        vf = OPT.vfirst; OPT.vfirst = OPT.vfirst_early
        pd = OPT.pad_iter; OPT.pad_iter = OPT.pad_early
        vl = OPT.v_lead; OPT.v_lead = OPT.v_lead_early
        OPT.loop_exit = 7 - OPT.early_trips
        first_loop = loop_body("L_attn_early") + (trip_seq(OPT.loop_exit) if OPT.trip_stamps else []) + [raw("s_cbranch_scc1 L_attn_early", "branch")]
        OPT.vfirst = vf; OPT.loop_exit = 0; OPT.pad_iter = pd; OPT.v_lead = vl
    loop = loop_body("L_attn")
    if OPT.trip_stamps: loop += trip_seq(0)
    if OPT.loop_nodma: loop = [x for x in loop if x.kind != "dma"]
    if OPT.loop_nods: loop = [x for x in loop if x.kind != "ds" and not (x.kind == "wait" and "lgkm" in x.meta and x.meta["lgkm"] > 0)]
    if OPT.loop_nomfma: loop = [(nop(1) if x.kind == "mfma" else x) for x in loop]
    if OPT.loop_novalu: loop = [x for x in loop if x.kind not in ("valu", "trans")]
    if OPT.loop_dma_every > 1:
        cnt = [0]
        def keep(x):
            if x.kind != "dma": return True
            cnt[0] += 1
            return cnt[0] % OPT.loop_dma_every == 0
        loop = [x for x in loop if keep(x)]
    loop.append(raw("s_cbranch_scc1 L_attn", "branch"))
    post = stamp("loop_end") + (stamp("rt_le") if OPT.bar_stamps else [])
    if OPT.trip_stamps:
        post += [valu(f"v_lshlrev_b32 v2, 2, v{V_LANE}", [], ["v2"]), salu(f"s_mul_i32 s{S_T1}, s2, 64"),
                 salu(f"s_add_u32 s{S_T1}, s{S_T1}, {STAMP_OFF + 256*64}"), salu(f"s_mov_b32 s{S_WS+2}, {STAMP_OFF + 2*256*64}"),
                 valu("v_cmp_gt_u32 vcc, 16, v0", ["v0"], ["vcc"]), salu(f"s_cmp_eq_u32 s{S_W}, 0"), raw("s_cselect_b64 s[50:51], vcc, 0", "salu"),
                 raw("s_mov_b64 s[54:55], exec", "salu"), raw("s_mov_b64 exec, s[50:51]", "salu"), raw("s_cbranch_execz L_notrip", "branch"),
                 raw(f"buffer_store_dword v1, v2, s[{S_WS}:{S_WS+3}], s{S_T1} offen", "salu"), wait_vm(0), label("L_notrip"), raw("s_mov_b64 exec, s[54:55]", "salu"), wait_vm(0)]
    def ex29(g, kb):
        if OPT.fused: place_vmem(g, 40, [], mode_load(), kb)
        gp = 50
        for j in OPT.wo_touch: gp = place_vmem(g, gp, [], wo_touch(j), kb) + 12
        if OPT.l2warm and OPT.fused:
            gp = 8
            for d in l2warm_loads(): gp = place_vmem(g, gp, [], d, kb) + 10
    post += wo_touch_setup()
    if OPT.l2warm and OPT.fused: post += l2warm_setup()
    s, carried = attn_iter(29, carried, wait_tag("V30", "K32"), batch(28)[NCUR:4], [], adv=False,
                           extra=ex29)
    post += s
    def ex30(g, kb):
        put_wo(g, 1, 3, kb, step=8)
        if OPT.fused:
            k = 2
            for x in ring_scalars(): k = put_scalar(g, k, x) + 1
    s, carried = attn_iter(30, carried, wait_tag("V31"), [], [], adv=False, extra=ex30)
    post += s
    post += last_iter(carried)
    post += stamp("attn_end")
    if debug == "o":
        tailq = dump_regs(V_Q, 128)
    elif debug == "l":
        tailq = dump_regs(V_L, 4)
    else:
        common, loc, far = phase3()
        tailq = common
    post += tailq
    q = resolve_vm(pre, [])
    qexit = ["V30"] * 4 + ["K32"] * 4 + ["V31"] * NCUR
    qb_ = resolve_vm(post, qexit)
    if debug is None:
        resolve_vm(loc, qb_); resolve_vm(far, qb_)
        if far and not OPT.p3_drop: check(loop[1:] + post + far[1:], "loop+post+far", init_lgkm=[x.wr for x in pre if x.kind == "ds"][-8:], init_vm=[[]] * (8 + NCUR))
        post = post + loc
        OOL.extend(far)
    if not (OPT.p1_nowait or OPT.p1_noread or OPT.p1_drop or OPT.loop_nodma or OPT.loop_dma_every > 1 or OPT.loop_nods or OPT.loop_nomfma or OPT.loop_novalu): check(pre + loop[1:] + loop[1:], "pre+loop")
    if not (OPT.p3_drop or OPT.loop_nodma or OPT.loop_dma_every > 1 or OPT.loop_nods or OPT.loop_nomfma or OPT.loop_novalu): check(loop[1:] + post, "loop+post", init_lgkm=[x.wr for x in pre if x.kind == "ds"][-8:], init_vm=[[]] * (8 + NCUR))
    OOL.extend(safe_attn())
    if first_loop: check(pre + first_loop[1:] + first_loop[1:] + loop[1:], "pre+early+loop")
    return pre + first_loop + loop + post + stamp_out() + finish() + OOL

def reduce_kernel():
    o = []; a = o.append
    a(salu("s_cmp_ge_u32 s2, 256")); a(raw("s_cbranch_scc1 R_end", "branch"))
    a(salu("s_load_dwordx2 s[4:5], s[0:1], 80")); a(salu("s_load_dwordx2 s[6:7], s[0:1], 96"))
    a(valu("v_lshrrev_b32 v1, 6, v0", ["v0"], ["v1"])); a(valu("v_and_b32 v0, 63, v0", ["v0"], ["v0"]))
    a(valu("v_readfirstlane_b32 s32, v1", ["v1"], ["s32"]))
    a(salu("s_lshr_b32 s33, s2, 4")); a(salu("s_and_b32 s34, s2, 15"))
    a(salu("s_lshr_b32 s35, s33, 3")); a(salu("s_and_b32 s36, s33, 7"))
    a(salu("s_lshr_b32 s37, s32, 1")); a(salu("s_and_b32 s38, s32, 1"))
    a(valu("v_lshrrev_b32 v2, 5, v0", ["v0"], ["v2"])); a(valu("v_lshlrev_b32 v2, 11, v2", ["v2"], ["v2"]))
    a(valu("v_and_b32 v3, 31, v0", ["v0"], ["v3"])); a(valu("v_lshl_add_u32 v2, v3, 4, v2", ["v3", "v2"], ["v2"]))
    a(salu("s_lshl_b32 s39, s37, 10")); a(salu("s_lshl_b32 s40, s38, 9")); a(salu("s_add_u32 s39, s39, s40"))
    a(valu("v_add_u32 v2, s39, v2", ["v2"], ["v2"]))
    a(valu("v_and_b32 v8, 15, v0", ["v0"], ["v8"])); a(valu("v_lshrrev_b32 v9, 4, v0", ["v0"], ["v9"]))
    a(valu("v_lshrrev_b32 v10, 3, v8", ["v8"], ["v10"])); a(valu("v_and_b32 v11, 1, v9", ["v9"], ["v11"]))
    a(valu("v_and_b32 v12, 1, v8", ["v8"], ["v12"])); a(valu("v_lshlrev_b32 v12, 4, v12", ["v12"], ["v12"]))
    a(valu("v_mov_b32 v13, 0x3f80", [], ["v13"])); a(valu("v_lshlrev_b32 v13, v12, v13", ["v12", "v13"], ["v13"]))
    a(valu("v_cmp_eq_u32 vcc, v10, v11", ["v10", "v11"], ["vcc"])); a(nop(1))
    a(valu("v_cndmask_b32 v13, 0, v13, vcc", ["v13", "vcc"], ["v13"]))
    a(valu("v_bfe_u32 v14, v8, 1, 2", ["v8"], ["v14"]))
    for r in range(4):
        a(valu(f"v_cmp_eq_u32 vcc, {r}, v14", ["v14"], ["vcc"])); a(nop(1))
        a(valu(f"v_cndmask_b32 v{4+r}, 0, v13, vcc", ["v13", "vcc"], [f"v{4+r}"]))
    a(salu("s_lshl_b32 s41, s36, 8")); a(salu("s_lshl_b32 s42, s34, 4")); a(salu("s_add_u32 s41, s41, s42"))
    a(valu("v_add_u32 v3, s41, v8", ["v8"], ["v3"])); a(valu("v_mul_u32_u24 v3, 896, v3", ["v3"], ["v3"]))
    a(salu("s_mul_i32 s42, s35, 448")); a(salu("s_lshl_b32 s43, s37, 5")); a(salu("s_add_u32 s42, s42, s43"))
    a(salu("s_lshl_b32 s43, s38, 3")); a(salu("s_add_u32 s42, s42, s43"))
    a(valu("v_add_u32 v3, s42, v3", ["v3"], ["v3"]))
    a(valu("v_lshl_add_u32 v3, v11, 4, v3", ["v11", "v3"], ["v3"]))
    a(valu("v_lshrrev_b32 v10, 1, v9", ["v9"], ["v10"])); a(valu("v_lshl_add_u32 v3, v10, 2, v3", ["v10", "v3"], ["v3"]))
    a(valu("v_lshlrev_b32 v3, 1, v3", ["v3"], ["v3"]))
    a(raw("s_waitcnt lgkmcnt(0)", "wait", lgkm=0))
    for base, lo, size in ((8, 6, 16 * 7 * 16 * 16 * 2048), (12, 4, 8 * 256 * 896 * 2)):
        a(salu(f"s_mov_b32 s{base}, s{lo}")); a(salu(f"s_mov_b32 s{base+1}, s{lo+1}"))
        a(salu(f"s_mov_b32 s{base+2}, {size}")); a(salu(f"s_mov_b32 s{base+3}, 0x20000"))
    a(salu(f"s_mul_i32 s44, s33, {7*16*32768}")); a(salu("s_lshl_b32 s45, s34, 15")); a(salu("s_add_u32 s44, s44, s45"))
    for j in range(7):
        for i in range(8):
            a(salu(f"s_add_u32 s46, s44, {j*16*32768 + i*4096}"))
            a(tag(bload(16 + (j * 8 + i) * 4, 4, 2, 8, "s46", 0), f"p{j}"))
    for j in range(7):
        a(wait_tag(f"p{j}"))
        d = 240 + 4 * (j & 1)
        for i in range(8):
            a(mfma("v", d, "v", 4, "v", 16 + (j * 8 + i) * 4, None if i == 0 else "v", None if i == 0 else d))
        a(nop(7))
        a(valu(f"v_cvt_pk_bf16_f32 v{d}, v{d}, v{d+1}", [f"v{d}", f"v{d+1}"], [f"v{d}"]))
        a(valu(f"v_cvt_pk_bf16_f32 v{d+1}, v{d+2}, v{d+3}", [f"v{d+2}", f"v{d+3}"], [f"v{d+1}"]))
        a(tag(bstore(d, 2, 3, 12, "0", j * 128), "o"))
    resolve_vm(o, []); check(o, "reduce")
    if OPT.stamps and OPT.stamp_fwd >= 0:
        o += [wait_vm(0), salu("s_cmp_lg_u32 s2, 0"), raw("s_cbranch_scc1 R_end", "branch"),
              salu("s_load_dwordx2 s[20:21], s[0:1], 88"), raw("s_waitcnt lgkmcnt(0)", "wait", lgkm=0),
              salu("s_mov_b32 s16, s20"), salu("s_mov_b32 s17, s21"), salu("s_mov_b32 s18, 64"), salu("s_mov_b32 s19, 0x20000"),
              salu(f"s_mov_b32 s10, {16*7*16*16*2048 + 256*64}"), salu(f"s_mov_b32 s46, {16*7*16*16*2048} + 64*{OPT.stamp_fwd}"),
              valu("v_lshlrev_b32 v2, 2, v0", ["v0"], ["v2"]), bload(3, 1, 2, 8, "s46", 0), wait_vm(0), bstore(3, 1, 2, 16, "0", 0)]
    o += [wait_vm(0), label("R_end"), raw("s_endpgm", "branch")]
    return o

KD = """.section .rodata,"a"
.p2align 6
.amdhsa_kernel {name}
  .amdhsa_next_free_vgpr {vgpr}
  .amdhsa_next_free_sgpr 102
  .amdhsa_accum_offset 256
  .amdhsa_group_segment_fixed_size 0
  .amdhsa_kernarg_size 104
  .amdhsa_user_sgpr_count 2
  .amdhsa_user_sgpr_kernarg_segment_ptr 1
  .amdhsa_system_sgpr_workgroup_id_x 1
.end_amdhsa_kernel
"""
DESCRIPTION = """
; ---------------------------------------------------------------------------------------------------------------
; Two cached-attention blocks (A, B), concatenated on the last axis; one fused launch, 256 workgroups of 4 waves.
; Workgroup = (branch, batch, head); wave = 64 query rows.  All matrix work is v_mfma_f32_16x16x32_bf16 in the
; transposed form (lane = query row), so every result feeds the next product without a shuffle.
;   phase 1  Q^T = Wq^T x^T          Wq and x staged in LDS by LDS-DMA, 64 columns per step, fp32 in AGPRs -> bf16
;   phase 2  S^T = K Q^T, P = exp2(c S - c m), O^T += V^T P^T        32 keys per tile, 4+4 slot LDS ring, software
;            pipelined (QK of tile t+1 | PV of tile t), one barrier per tile.  m is the row maximum of the first tile;
;            the row sums are checked afterwards and a workgroup whose sums exceed 2^30 (or are NaN) repeats its work
;            with the exact running maximum and a rescale on every tile (L_restart / L_safe_attn).
;   phase 3  partial out^T = Wo_h^T O^T / l, bf16, exchanged between the 16 heads of a (branch, batch) and summed in
;            fp32 by an MFMA with a 0/1 selection matrix.  When the 16 workgroups report the same XCD the pieces go
;            through a small ring that stays in that XCD's L2 (byte flags, reset at the start of the launch);
;            otherwise (L_p3_far) they are released and acquired at device scope.
; d_debug: one byte per workgroup (arrived, XCD id, done).  d_ws: partial sums, flags, ring.
; ---------------------------------------------------------------------------------------------------------------
""".strip("\n").splitlines()

def header_comments():
    ref = open("cdna_kernels/" + NAME + ".s.ref").read().splitlines()
    out = []
    for l in ref:
        if l.startswith("; Override launch") or not l.startswith(";"): break
        out.append(l)
    return out

def stream_kernel():
    t = """
  s_cmp_ge_u32 s2, 256
  s_cbranch_scc1 S_end
  s_load_dwordx2 s[4:5], s[0:1], 8
  s_load_dwordx2 s[6:7], s[0:1], 96
  s_load_dwordx2 s[8:9], s[0:1], 48
  v_lshrrev_b32 v2, 6, v0
  s_nop 0
  v_readfirstlane_b32 s24, v2
  v_and_b32 v1, 63, v0
  v_lshlrev_b32 v14, 4, v1
  s_nop 2
  s_lshl_b32 s25, s24, 12
  v_add_u32 v14, s25, v14
  s_waitcnt lgkmcnt(0)
  s_cmp_lt_u32 s2, 128
  s_cselect_b32 s36, s4, s8
  s_cselect_b32 s37, s5, s9
  s_mov_b32 s38, 0x4000000
  s_mov_b32 s39, 0x20000
  s_and_b32 s32, s2, 127
  s_lshl_b32 s32, s32, 19
  s_barrier
  s_memrealtime s[12:13]
  s_mov_b32 s20, 0
S_loop:
  s_mov_b32 m0, s25
  s_nop 0
  buffer_load_dwordx4 v14, s[36:39], s32 offen nt lds
  buffer_load_dwordx4 v14, s[36:39], s32 offen offset:1024 nt lds
  buffer_load_dwordx4 v14, s[36:39], s32 offen offset:2048 nt lds
  buffer_load_dwordx4 v14, s[36:39], s32 offen offset:3072 nt lds
  s_add_u32 s32, s32, 16384
  s_waitcnt vmcnt(8)
  s_barrier
  s_add_u32 s20, s20, 1
  s_cmp_lt_u32 s20, 32
  s_cbranch_scc1 S_loop
  s_waitcnt vmcnt(0)
  s_barrier
  s_memrealtime s[16:17]
  s_waitcnt lgkmcnt(0)
  s_sub_u32 s16, s16, s12
  s_mov_b32 s40, s6
  s_mov_b32 s41, s7
  s_mov_b32 s42, %d
  s_mov_b32 s43, 0x20000
  s_mul_i32 s33, s2, 64
  s_add_u32 s33, s33, %d
  v_mov_b32 v2, s16
  v_mov_b32 v1, 0
  buffer_store_dword v2, v1, s[40:43], s33 offen
  s_waitcnt vmcnt(0)
S_end:
  s_endpgm""" % (16*7*16*16*2048 + 256*64, 16*7*16*16*2048 + 60)
    return t

def assemble_file(debug=None):
    main = build(debug)
    red = reduce_kernel()
    k1 = NAME + "_kernel"; k2 = "reduce_heads_kernel"
    L = header_comments()
    if OPT.stream0: L.append(f"; @launch kernel=stream_test_kernel grid=(256,1,1) block=(256,1,1) lds={LDS_BYTES}")
    if OPT.fused and not OPT.stream0:
        L.append(f"; @launch grid=(256,1,1) block=(256,1,1) lds={LDS_BYTES}")
    else:
        L.append(f"; @launch kernel={k1} grid=(256,1,1) block=(256,1,1) lds={LDS_BYTES}")
        if debug is None and not OPT.fused: L.append(f"; @launch kernel={k2} grid=(256,1,1) block=(256,1,1) lds=0")
    L += DESCRIPTION
    L.append('.amdgcn_target "amdgcn-amd-amdhsa--gfx950"')
    L.append(".text")
    for nm, body in ((k1, main), (k2, red)) if not OPT.fused else ((k1, main),):
        L += [f".globl {nm}", ".p2align 8", f".type {nm},@function", f"{nm}:", text(body)]
    if OPT.stream0: L += [".globl stream_test_kernel", ".p2align 8", ".type stream_test_kernel,@function", "stream_test_kernel:", stream_kernel()]
    L.append(KD.format(name=k1, vgpr=512))
    if not OPT.fused: L.append(KD.format(name=k2, vgpr=256))
    if OPT.stream0: L.append(KD.format(name="stream_test_kernel", vgpr=512))
    return "\n".join(L) + "\n"

if __name__ == "__main__":
    dbg = sys.argv[2] if len(sys.argv) > 2 and sys.argv[2] != "none" else None
    for kv in sys.argv[3:]:
        k, v = kv.split("=")
        v = v.replace("+", " ")
        setattr(OPT, k, {"True": True, "False": False, "()": ()}.get(v, int(v) if v.lstrip("-").isdigit() else (eval(v) if v.startswith("(") else v)))
    open(sys.argv[1], "w").write(assemble_file(dbg))
    print("stamps:", STAMPS)
```

```python
import math, struct, sys
from core import *

NAME = "concat_heads__mha_block_cached__mha_block_cached__near_ridge"
def f32bits(x): return struct.unpack("<I", struct.pack("<f", x))[0]
CSC = math.log2(math.e) / 16.0

S_X, S_WQ, S_K, S_V, S_WO, S_WS, S_OUT = 4, 8, 12, 16, 20, 24, 28
S_W, S_W1K = 32, 33
S_QB = ["0", "s34", "s35", "s62"]
S_C = 63
S_KOFF, S_VOFF = 64, 65
S_LOOP = 66
S_T0, S_T1, S_T2, S_T3 = 67, 68, 69, 70
S_G, S_H, S_B, S_BR = 71, 72, 73, 74
S_WOFF = 76
S_PART = 77
S_WCUR, S_WSTEP, S_XSTEP = 78, 79, 75
S_FL, S_DBG = 36, 40
S_LOCM = 44
S_RBASE, S_SIG, S_POLL, S_XCC = 46, 47, 48, 49
S_RG = 56
S_SPIN = 62
S_WARM = 34
S_SAFE = 3
S_ROT = 52
S_PFO = 53
S_RST, S_RLD, S_FPW, S_FPR, S_FCW, S_FCR = 60, 61, 75, 78, 79, 76
S_STAMP = 80
V_LANE = 0
V_KA = [4, 5]
V_VA = [6, 7, 8, 9]
V_DK, V_DV = 10, 11
V_L = 12
V_MC = 16
V_SP = 20
V_POOL = 32
V_S = 64
V_P = 96
V_Q = 128
V_XA = 20; V_DW = 21; V_WA = [[22, 23], [24, 25], [26, 27]]
V_CT = 28
V_ARR = 24
L_K = 0; L_V = 65536; L_X = 131072
def kslot(t): return L_K + 16384 * (t % 4)
def vslot(t): return L_V + 16384 * (t % 4)
LDS_BYTES = 163840
L_VOTE = L_V + 2 * 16384
L_LIMIT = 2.0 ** 30

PART_BYTES = 16 * 7 * 16 * 16 * 2048
FLAG_BYTES = 16 * 7 * 4 * 64
STAMP_OFF = PART_BYTES + 32768
RING_OFF = PART_BYTES + (1 << 20)
RING_BYTES = 32 << 20
CONS_OFF = 16384
SPIN_MAX = 1 << 19
class Opt:
    kv_flags = "nt"
    w_flags = ""
    x_flags = ""
    wo_flags = "nt"
    st_flags = ""
    stamps = False
    xwarm_order = 0
    stagger = 0
    codewarm_first = True
    codewarm = 16
    pad_early = 0
    v_lead = 20
    v_lead_early = 20
    l2warm = False
    kvspread = False
    tlbwarm = 3
    remap = 0
    tail2 = True
    tmpl = 1
    wo_stage = True
    p3_tiles = False
    early_trips = 0
    vfirst_early = 37
    loop_exit = 0
    xwarm = True
    kvmin = False
    vfirst = 37
    dma_stamps = False
    rot = 0
    pad_iter = 0
    last_st = 'nt'
    out_flags = ''
    coopw = False
    coopw_init = 2
    pf_flags = ''
    early_wb = 0
    wt_flags = ''
    prod_delay = 0
    ring = 4
    vm_space = 0
    p3_drop = ''
    wo_step = 13
    cons_chk = 22
    wo_touch = (4, 5, 6)
    red_m = 200
    cons_poll = 50
    ld_min = 16
    stamp_skip = 'p1_first_data,pre_iter_end'
    p3detail = -1
    st_lag = 21
    force_fallback = False
    red_at = 60
    sig_lag = 28
    poll_lag = 22
    chk_lag = 22
    fused = True
    stream0 = False
    loop_nods = False
    loop_nomfma = False
    loop_novalu = False
    loop_nodma = False
    loop_dma_every = 1
    bar_stamps = False
    trip_stamps = False
    dma_mode = 'spread'
    dma_gaps = ([5, 21, 37, 53, 69, 85], [101, 117])
    nv_prev = 2
    stamp_fwd = -1
    stamp_dbg = -1
    x_rd_gap0 = 65
    x_rd_gap = 33
    p1_steps = False
    p1_drop = ''
    rev = False
    init_w = 2
    early_step = 2
    x_gap = 60
    p1_nowait = False
    p1_noread = False
    wring = 3
    kvpf = 'late'
    coopx = False
    init_more = 0
OPT = Opt()

def wait_tag(*tags): return I("s_waitcnt vmcnt(?)", "wait", vmtags=list(tags))
def tag(ins, t):
    ins.meta["tag"] = t; return ins
def resolve_vm(stream, queue):
    q = list(queue)
    for ins in stream:
        if ins.kind in ("dma", "vld", "vst"):
            q.append(ins.meta.get("tag", "?"))
        elif ins.kind == "wait":
            if "vmtags" in ins.meta:
                idx = [n for n, t in enumerate(q) if t in ins.meta["vmtags"]]
                n = len(q) - 1 - max(idx) if idx else len(q)
                n = min(n, 63)
                ins.text = f"s_waitcnt vmcnt({n})"; ins.meta["vm"] = n
            if "vm" in ins.meta and not ins.meta.get("notrim"):
                n = ins.meta["vm"]
                if len(q) > n: q = q[len(q) - n:] if n else []
    return q

_stamp_n = [0]
def stamp(name):
    if not OPT.stamps: return []
    if OPT.dma_stamps:
        if name == "loop_start": return [raw("s_memtime s[100:101]", "salu"), raw("s_waitcnt lgkmcnt(0)", "wait", lgkm=0)]
        if name == "loop_end": return [raw("s_memtime s[76:77]", "salu"), raw("s_waitcnt lgkmcnt(0)", "wait", lgkm=0), salu("s_sub_u32 s100, s76, s100")]
        return []
    if OPT.stamp_skip and name in OPT.stamp_skip.split(","): return []
    if OPT.p3detail >= 0 and not name.startswith("d_") and name not in ("rt_end",): return []
    if OPT.bar_stamps and name not in ("rt_ls", "rt_le", "loop_start", "loop_end", "rt_end"): return []
    n = _stamp_n[0]; _stamp_n[0] += 1
    STAMPS.append(name)
    op = "s_memrealtime" if name.startswith("rt") else "s_memtime"
    return [raw(f"{op} s[{S_STAMP+2*n}:{S_STAMP+2*n+1}]", "salu")]
STAMPS = []

def m0_set(base): return salu(f"s_add_u32 m0, s{S_W1K}, {base}", [f"s{S_W1K}"], ["m0"])

def dma_tile(kind, slot_base, soff, tg):
    voff, srd, fl = {"K": (V_DK, S_K, OPT.kv_flags), "V": (V_DV, S_V, OPT.kv_flags), "W": (V_DW, S_WQ, OPT.w_flags)}[kind]
    return [(m0_set(slot_base + dc * 3968), tag(dma(voff, srd, soff, dc * 128, fl), tg)) for dc in range(4)]

def code_warm():
    o = []; a = o.append
    NL = OPT.codewarm
    a(raw("s_getpc_b64 s[50:51]", "salu")); a(salu("s_and_b32 s50, s50, 0xffffff80"))
    a(salu("s_lshr_b32 s52, s2, 3")); a(salu(f"s_mul_i32 s52, s52, {NL}"))
    a(valu(f"v_min_u32 v140, {NL-1}, v{V_LANE}", [f"v{V_LANE}"], ["v140"])); a(valu("v_add_u32 v140, s52, v140", ["v140"], ["v140"]))
    a(valu("v_lshlrev_b32 v140, 7, v140", ["v140"], ["v140"]))
    a(tag(I("global_load_dword v141, v140, s[50:51]", "vld", ["v140"], ["v141"]), "tlb"))
    return o

def setup():
    o = []; a = o.append
    a(salu("s_cmp_ge_u32 s2, 256")); a(raw("s_cbranch_scc1 L_end", "branch"))
    o += stamp("rt_start") + stamp("start")
    if OPT.remap:
        a(salu("s_lshr_b32 s4, s2, 3")); a(salu("s_add_u32 s4, s4, s2")); a(salu("s_and_b32 s4, s4, 7"))
        a(salu("s_andn2_b32 s5, s2, 7")); a(salu("s_or_b32 s4, s4, s5"))
        if OPT.remap == 2: a(salu("s_cmp_ge_u32 s2, 128")); a(salu("s_cselect_b32 s2, s4, s2"))
        else: a(salu("s_mov_b32 s2, s4"))
    a(valu("v_lshrrev_b32 v1, 6, v0", ["v0"], ["v1"]))
    a(valu(f"v_and_b32 v{V_LANE}, 63, v0", ["v0"], ["v0"]))
    a(salu(f"s_mov_b32 s{S_SAFE}, 0"))
    a(valu(f"v_readfirstlane_b32 s{S_W}, v1", ["v1"], [f"s{S_W}"]))
    if OPT.codewarm and OPT.codewarm_first: o += code_warm()
    a(label("L_again"))
    a(salu("s_load_dwordx16 s[36:51], s[0:1], 0")); a(salu("s_load_dwordx8 s[52:59], s[0:1], 64"))
    a(salu("s_load_dwordx2 s[60:61], s[0:1], 96"))
    a(nop(3))
    a(salu(f"s_and_b32 s{S_T0}, s2, 7")); a(salu(f"s_lshr_b32 s{S_T1}, s2, 3"))
    a(salu(f"s_and_b32 s{S_H}, s{S_T1}, 15")); a(salu(f"s_lshr_b32 s{S_T1}, s{S_T1}, 4"))
    a(salu(f"s_lshl_b32 s{S_G}, s{S_T0}, 1")); a(salu(f"s_add_u32 s{S_G}, s{S_G}, s{S_T1}"))
    a(salu(f"s_lshr_b32 s{S_BR}, s{S_G}, 3")); a(salu(f"s_and_b32 s{S_B}, s{S_G}, 7"))
    a(salu(f"s_lshl_b32 s{S_W1K}, s{S_W}, 10"))
    if OPT.rot:
        a(salu(f"s_and_b32 s{S_T0}, s2, 7")); a(salu(f"s_mul_i32 s{S_T0}, s{S_T0}, {OPT.rot}")); a(salu(f"s_lshr_b32 s{S_T1}, s2, 3"))
        a(salu(f"s_add_u32 s{S_T0}, s{S_T0}, s{S_T1}")); a(salu(f"s_and_b32 s{S_T0}, s{S_T0}, 31")); a(salu(f"s_lshl_b32 s33, s{S_T0}, 14") if False else salu(f"s_lshl_b32 s{S_T3}, s{S_T0}, 14"))
    a(salu(f"s_mov_b32 s{S_C}, 0x{f32bits(CSC):08x}"))
    L = f"v{V_LANE}"
    def vv(t, rd, wr): a(valu(t, rd, wr))
    vv(f"v_and_b32 v1, 15, {L}", [L], ["v1"]); vv(f"v_lshrrev_b32 v2, 4, {L}", [L], ["v2"])
    vv("v_lshrrev_b32 v3, 1, v1", ["v1"], ["v3"])
    for sp in range(2):
        r = V_KA[sp]
        vv(f"v_add_u32 v{r}, {4*sp}, v2", ["v2"], [f"v{r}"])
        vv(f"v_xor_b32 v{r}, v{r}, v3", [f"v{r}", "v3"], [f"v{r}"])
        vv(f"v_lshlrev_b32 v{r}, 4, v{r}", [f"v{r}"], [f"v{r}"])
        vv(f"v_lshl_add_u32 v{r}, v1, 7, v{r}", ["v1", f"v{r}"], [f"v{r}"])
    vv(f"v_lshrrev_b32 v1, 3, {L}", [L], ["v1"]); vv(f"v_and_b32 v2, 7, {L}", [L], ["v2"])
    vv(f"v_lshl_add_u32 v3, s{S_W}, 3, v1", ["v1", f"s{S_W}"], ["v3"])
    vv("v_bfe_u32 v28, v3, 1, 1", ["v3"], ["v28"]); vv("v_lshlrev_b32 v28, 2, v28", ["v28"], ["v28"])
    vv("v_xor_b32 v28, v28, v2", ["v28", "v2"], ["v28"]); vv("v_lshlrev_b32 v28, 4, v28", ["v28"], ["v28"])
    vv(f"v_lshl_add_u32 v{V_DW}, v3, 13, v28", ["v3", "v28"], [f"v{V_DW}"])
    a(raw("s_waitcnt lgkmcnt(0)", "wait", lgkm=0))
    a(salu(f"s_cmp_eq_u32 s{S_BR}, 0"))
    for i in range(10): a(salu(f"s_cselect_b32 s{36+i}, s{36+i}, s{46+i}"))
    if OPT.rot: a(salu(f"s_mov_b32 s{S_ROT}, s{S_T3}"))
    def srd(base, lo, hi, offs, size):
        if offs is None:
            a(salu(f"s_mov_b32 s{base}, s{lo}")); a(salu(f"s_mov_b32 s{base+1}, s{hi}"))
        else:
            a(salu(f"s_add_u32 s{base}, s{lo}, {offs}")); a(salu(f"s_addc_u32 s{base+1}, s{hi}, 0"))
        a(salu(f"s_mov_b32 s{base+2}, {size}")); a(salu(f"s_mov_b32 s{base+3}, 0x20000"))
    a(salu(f"s_mul_i32 s{S_T0}, s{S_B}, 229376")); srd(S_X, 36, 37, f"s{S_T0}", 229376)
    a(salu(f"s_lshl_b32 s{S_T0}, s{S_H}, 9")); srd(S_WQ, 42, 43, f"s{S_T0}", 0)
    a(salu(f"s_sub_u32 s{S_WQ+2}, {448*8192}, s{S_T0}"))
    return o

def setup_b():
    o = []; a = o.append
    L = f"v{V_LANE}"
    def vv(t, rd, wr): a(valu(t, rd, wr))
    vv(f"v_lshrrev_b32 v2, 4, {L}", [L], ["v2"])
    vv(f"v_bfe_u32 v28, {L}, 2, 2", [L], ["v28"]); vv(f"v_and_b32 v29, 3, {L}", [L], ["v29"])
    vv("v_lshl_add_u32 v30, v2, 2, v28", ["v2", "v28"], ["v30"])
    vv("v_bfe_u32 v31, v30, 1, 2", ["v30"], ["v31"])
    for p in range(4):
        r = V_VA[p]
        vv(f"v_xor_b32 v{r}, {p}, v31", ["v31"], [f"v{r}"])
        vv(f"v_lshlrev_b32 v{r}, 5, v{r}", [f"v{r}"], [f"v{r}"])
        vv(f"v_lshl_add_u32 v{r}, v30, 7, v{r}", ["v30", f"v{r}"], [f"v{r}"])
        vv(f"v_lshl_add_u32 v{r}, v29, 3, v{r}", ["v29", f"v{r}"], [f"v{r}"])
        vv(f"v_add_u32 v{r}, {L_V}, v{r}", [f"v{r}"], [f"v{r}"])
    vv("v_lshl_add_u32 v30, v2, 3, v28", ["v2", "v28"], ["v30"])
    vv("v_lshrrev_b32 v31, 1, v28", ["v28"], ["v31"])
    for sp in range(2):
        r = V_WA[0][sp]
        vv(f"v_xor_b32 v{r}, {sp}, v31", ["v31"], [f"v{r}"])
        vv(f"v_lshl_add_u32 v{r}, v{r}, 2, v29", [f"v{r}", "v29"], [f"v{r}"])
        vv(f"v_lshlrev_b32 v{r}, 4, v{r}", [f"v{r}"], [f"v{r}"])
        vv(f"v_lshl_add_u32 v{r}, v30, 7, v{r}", ["v30", f"v{r}"], [f"v{r}"])
        for win in (1, 2):
            vv(f"v_add_u32 v{V_WA[win][sp]}, {65536*win}, v{r}", [f"v{r}"], [f"v{V_WA[win][sp]}"])
    vv(f"v_lshrrev_b32 v1, 3, {L}", [L], ["v1"]); vv(f"v_and_b32 v2, 7, {L}", [L], ["v2"])
    vv(f"v_lshl_add_u32 v3, s{S_W}, 3, v1", ["v1", f"s{S_W}"], ["v3"])
    vv("v_bfe_u32 v28, v3, 1, 3", ["v3"], ["v28"]); vv("v_xor_b32 v28, v28, v2", ["v28", "v2"], ["v28"])
    vv("v_lshlrev_b32 v28, 4, v28", ["v28"], ["v28"]); vv(f"v_lshl_add_u32 v{V_DK}, v3, 9, v28", ["v3", "v28"], [f"v{V_DK}"])
    vv("v_bfe_u32 v28, v3, 1, 2", ["v3"], ["v28"]); vv("v_lshlrev_b32 v28, 1, v28", ["v28"], ["v28"])
    vv("v_xor_b32 v28, v28, v2", ["v28", "v2"], ["v28"]); vv("v_lshlrev_b32 v28, 4, v28", ["v28"], ["v28"])
    vv(f"v_lshl_add_u32 v{V_DV}, v3, 9, v28", ["v3", "v28"], [f"v{V_DV}"])
    def srd(base, lo, hi, offs, size):
        if offs is None:
            a(salu(f"s_mov_b32 s{base}, s{lo}")); a(salu(f"s_mov_b32 s{base+1}, s{hi}"))
        else:
            a(salu(f"s_add_u32 s{base}, s{lo}, {offs}")); a(salu(f"s_addc_u32 s{base+1}, s{hi}, 0"))
        a(salu(f"s_mov_b32 s{base+2}, {size}")); a(salu(f"s_mov_b32 s{base+3}, 0x20000"))
    a(salu(f"s_lshl_b32 s{S_T0}, s{S_B}, 4")); a(salu(f"s_add_u32 s{S_T0}, s{S_T0}, s{S_H}"))
    a(salu(f"s_lshl_b32 s{S_T0}, s{S_T0}, 19"))
    srd(S_K, 38, 39, f"s{S_T0}", 524288); srd(S_V, 40, 41, f"s{S_T0}", 524288)
    a(salu(f"s_mul_i32 s{S_T0}, s{S_H}, 229376")); srd(S_WO, 44, 45, f"s{S_T0}", 229376)
    srd(S_WS, 60, 61, None, 16 * 7 * 16 * 16 * 2048)
    srd(S_OUT, 56, 57, None, 8 * 256 * 896 * 2)
    if OPT.fused:
        srd(S_DBG, 58, 59, None, 256)
        a(salu(f"s_mov_b32 s{S_T0}, {PART_BYTES}")); srd(S_FL, 60, 61, f"s{S_T0}", 32768)
        a(salu(f"s_mov_b32 s{S_T0}, {RING_OFF}")); a(salu(f"s_add_u32 s54, s60, s{S_T0}")); a(salu("s_addc_u32 s55, s61, 0"))
        a(salu(f"s_mov_b32 s{S_RG}, s54")); a(salu(f"s_mov_b32 s{S_RG+1}, s55")); a(salu(f"s_mov_b32 s{S_RG+2}, {RING_BYTES}")); a(salu(f"s_mov_b32 s{S_RG+3}, 0x20000"))
        a(salu(f"s_getreg_b32 s{S_XCC}, hwreg(HW_REG_XCC_ID, 0, 3)"))
        a(salu(f"s_lshl_b32 s{S_SIG}, s{S_G}, 4")); a(salu(f"s_add_u32 s{S_SIG}, s{S_SIG}, s{S_H}"))
        a(salu(f"s_mul_i32 s{S_T0}, s{S_G}, {14*64}"))
        a(salu(f"s_lshl_b32 s{S_T1}, s{S_W}, 4")); a(salu(f"s_add_u32 s{S_T1}, s{S_T1}, s{S_H}")); a(salu(f"s_add_u32 s50, s{S_T0}, s{S_T1}"))
        a(salu(f"s_lshl_b32 s{S_T1}, s{S_H}, 2")); a(salu(f"s_add_u32 s{S_T1}, s{S_T1}, s{S_W}")); a(salu(f"s_add_u32 s51, s{S_T0}, s{S_T1}"))
        a(salu(f"s_add_u32 s51, s51, {CONS_OFF}"))
        a(valu(f"v_min_u32 v1, 13, v{V_LANE}", [f"v{V_LANE}"], ["v1"])); a(valu("v_lshlrev_b32 v1, 6, v1", ["v1"], ["v1"]))
        a(valu("v_mov_b32 v2, 0", [], ["v2"]))
        for sr in ("s50", "s51"):
            a(tag(I(f"buffer_store_byte v2, v1, s[{S_FL}:{S_FL+3}], {sr} offen", "vst", ["v1", "v2"], data=["v2"]), "reset"))
    if OPT.codewarm and not OPT.codewarm_first: o += code_warm()
    if OPT.tlbwarm:
        a(valu("v_mov_b32 v134, 0", [], ["v134"]))
        items = [(S_K, "0"), (S_V, "0"), (S_WO, "0")]
        a(salu(f"s_mul_i32 s50, s{S_G}, {OPT.ring * 262144}")); items.append((S_RG, "s50"))
        a(salu(f"s_mul_i32 s51, s{S_B}, {256*896*2}")); items.append((S_OUT, "s51"))
        for n, (srd_, so) in enumerate(items[:OPT.tlbwarm]):
            a(tag(bload(135 + n, 1, 134, srd_, so, 0), "tlb"))
    return o

def add_lgkm_waits(g, cons, carried):
    seq = [(-1, regs) for regs in carried]
    for k in range(g.n):
        if g.mem[k] is not None and g.mem[k].kind == "ds": seq.append((k, g.mem[k].wr))
    lead = None
    for k, regs in cons:
        late = [n for n, (gap, w) in enumerate(seq) if gap == k - 1 and gap >= 0 and set(w) & set(regs)]
        assert not late, f"DS for MFMA {k} issued in gap {k-1}"
        idx = [n for n, (gap, w) in enumerate(seq) if gap < max(k - 1, 0) and set(w) & set(regs)]
        if not idx: continue
        last = max(idx)
        after = sum(1 for n, (gap, w) in enumerate(seq) if n > last and gap < max(k - 1, 0))
        assert after <= 15, (k, after)
        if k == 0: lead = wait_lgkm(after)
        else: g.pre[k - 1].insert(0, wait_lgkm(after))
    out = len(carried)
    if lead is not None: out = min(out, lead.meta["lgkm"])
    for k in range(g.n):
        for x in g.pre[k]:
            if "lgkm" in x.meta: out = min(out, x.meta["lgkm"])
        if g.mem[k] is not None and g.mem[k].kind == "ds":
            if out >= 14:
                g.pre[k].insert(0, wait_lgkm(8)); out = 8
            out += 1
    return lead

def place_vmem(g, gap, scalars, d, hi=None, stack=False, space=False):
    k = max(gap, 1 if stack else len(scalars))
    hi = g.n if hi is None else hi
    isdma = lambda x: x is not None and x.kind == "dma"
    while True:
        assert k < hi, f"no gap for {d.text}"
        near = OPT.vm_space and any(0 <= k + dd < g.n and dd != 0 and g.mem[k + dd] is not None and g.mem[k + dd].kind in ("vst", "vld", "dma")
                                    for dd in range(-OPT.vm_space, OPT.vm_space + 1))
        if g.mem[k] is None and not g.vec[k] and len(g.pre[k]) <= 1 and not (near and space):
            if stack:
                if not isdma(g.mem[k - 1]) and len(g.pre[k - 1]) + len(scalars) <= 3 and not any(x.kind == "barrier" for x in g.pre[k - 1]): break
            elif all(not g.pre[k - 1 - n] and not isdma(g.mem[k - 1 - n]) for n in range(len(scalars))): break
        k += 1
    if stack:
        for sc in scalars: g.put_pre(k - 1, sc)
    else:
        for n, sc in enumerate(scalars): g.put_pre(k - len(scalars) + n, sc)
    g.put_mem(k, d)
    return k

def put_scalar(g, gap, *ins):
    k = gap
    while g.pre[k]: k += 1
    g.pre[k] = list(ins)
    return k

def place_chain(g, ops, lo, hi):
    left = []
    for ins in ops:
        k = g.place_vec(ins, lo, hi) if (not left and lo < hi) else None
        if k is None: left.append(ins)
        else: lo = k + 1 if ins.kind == "trans" else k
    return lo, left

class Op:
    def __init__(self, ins, rel, dl, preds=()):
        self.ins = ins; self.rel = rel; self.dl = dl; self.preds = list(preds); self.gap = None

def list_schedule(g, ops, lo=0, hi=None):
    hi = g.n if hi is None else hi
    todo = list(ops)
    for k in range(lo, hi):
        while True:
            free = g.free_vec(k)
            if free <= 0: break
            ready = [x for x in todo if x.rel <= k and all(p.gap is not None and p.gap + d <= k for p, d in x.preds)]
            tr = [x for x in ready if x.ins.kind == "trans"]
            pl = [x for x in ready if x.ins.kind != "trans"]
            pick = None
            can_tr = free == 2 and g.mem[k] is None and not g.vec[k]
            if can_tr and tr: pick = min(tr, key=lambda x: x.dl)
            if pl:
                best = min(pl, key=lambda x: x.dl)
                if pick is None or (best.dl + 6 < pick.dl): pick = best
            if pick is None: break
            g.vec[k].append(pick.ins); pick.gap = k; todo.remove(pick)
    late = [x for x in ops if x.gap is not None and x.gap > x.dl]
    assert not late, [(x.ins.text, x.gap, x.dl) for x in late]
    return todo

def sm_ops(tile, kb, qb, rel, dl):
    i = sm_group(tile, kb, qb)
    f = [Op(i[0], rel, dl - 6), Op(i[1], rel, dl - 6), Op(i[4], rel, dl - 5), Op(i[5], rel, dl - 5)]
    x = [Op(i[2], rel, dl - 4, [(f[0], 1)]), Op(i[3], rel, dl - 4, [(f[1], 1)]), Op(i[6], rel, dl - 3, [(f[2], 1)]), Op(i[7], rel, dl - 3, [(f[3], 1)])]
    ad = [Op(i[8], rel, dl, [(x[0], 1)]), Op(i[9], rel, dl, [(x[1], 1)]), Op(i[11], rel, dl, [(x[2], 1)]), Op(i[12], rel, dl, [(x[3], 1)])]
    cv = [Op(i[10], rel, dl, [(x[0], 1), (x[1], 1)]), Op(i[13], rel, dl, [(x[2], 1), (x[3], 1)])]
    return f + x + ad + cv

def exposed(ops):
    o = []
    for n, ins in enumerate(ops):
        o.append(ins)
        if ins.kind == "trans" and n + 1 < len(ops) and ops[n + 1].kind != "trans": o.append(nop(0))
    return o

def conv_ops(acc, d, t):
    return [valu(f"v_accvgpr_read_b32 v{d}, a{acc}", [f"a{acc}"], [f"v{d}"]),
            valu(f"v_accvgpr_read_b32 v{t}, a{acc+1}", [f"a{acc+1}"], [f"v{t}"]),
            valu(f"v_accvgpr_read_b32 v{d+1}, a{acc+2}", [f"a{acc+2}"], [f"v{d+1}"]),
            valu(f"v_accvgpr_read_b32 v{t+1}, a{acc+3}", [f"a{acc+3}"], [f"v{t+1}"]),
            valu(f"v_cvt_pk_bf16_f32 v{d}, v{d}, v{t}", [f"v{d}", f"v{t}"], [f"v{d}"]),
            valu(f"v_cvt_pk_bf16_f32 v{d+1}, v{d+1}, v{t+1}", [f"v{d+1}", f"v{t+1}"], [f"v{d+1}"])]

def xlane_reduce(regs, op, tmp):
    o = []
    for swap in ("v_permlane32_swap_b32", "v_permlane16_swap_b32"):
        for n, r in enumerate(regs): o.append(valu(f"v_mov_b32 v{tmp+n}, v{r}", [f"v{r}"], [f"v{tmp+n}"]))
        o.append(nop(1))
        for n, r in enumerate(regs):
            o.append(valu(f"{swap} v{r}, v{tmp+n}", [f"v{r}", f"v{tmp+n}"], [f"v{r}", f"v{tmp+n}"]))
        o.append(nop(1))
        for n, r in enumerate(regs):
            o.append(valu(f"{op} v{r}, v{r}, v{tmp+n}", [f"v{r}", f"v{tmp+n}"], [f"v{r}"]))
    return o

def wpairs(): return [(L_X, L_X + 16384), (vslot(1), kslot(3)), (vslot(2), vslot(3))]
def wslot(tile):
    p = wpairs(); return p[(tile // 2) % len(p)][tile % 2]
XBUF = [V_S, V_P]
def xfrag(qb, cs): return XBUF[(cs // 2) & 1] + ((cs % 2) * 4 + qb) * 4
V_XD = [128, 129]
V_XR = [130, 131]
S_XB = 34
S_XCUR = 35
def x_setup():
    o = []; a = o.append
    L = f"v{V_LANE}"
    a(salu(f"s_and_b32 s{S_T1}, s{S_W}, 1")); a(salu(f"s_lshl_b32 s{S_T1}, s{S_T1}, 13"))
    a(salu(f"s_cmp_lt_u32 s{S_W}, 2")); a(salu(f"s_cselect_b32 s{S_XB}, 2, 4")); a(salu(f"s_lshl_b32 s{S_XB}, s{S_XB}, 14"))
    a(salu(f"s_add_u32 s{S_XB}, s{S_XB}, s{S_T1}"))
    assert kslot(2) == 2 << 14 and vslot(0) == 4 << 14
    a(valu(f"v_lshrrev_b32 v1, 3, {L}", [L], ["v1"])); a(valu(f"v_and_b32 v2, 7, {L}", [L], ["v2"]))
    a(valu(f"v_lshl_add_u32 v3, s{S_W}, 6, v1", ["v1", f"s{S_W}"], ["v3"]))
    a(valu("v_mul_u32_u24 v3, 896, v3", ["v3"], ["v3"]))
    a(valu("v_lshrrev_b32 v1, 1, v1", ["v1"], ["v1"]))
    for par in range(2):
        r = V_XD[par]
        a(valu(f"v_or_b32 v{r}, {4*par}, v1", ["v1"], [f"v{r}"]))
        a(valu(f"v_xor_b32 v{r}, v{r}, v2", [f"v{r}", "v2"], [f"v{r}"]))
        a(valu(f"v_lshl_add_u32 v{r}, v{r}, 4, v3", [f"v{r}", "v3"], [f"v{r}"]))
        a(valu(f"v_add_u32 v{V_XR[par]}, s{S_XB}, v{V_KA[par]}", [f"v{V_KA[par]}"], [f"v{V_XR[par]}"]))
    return o
def x_items(j):
    out = []
    for i in range(8):
        sreg = S_T2 + (i & 1)
        sc = []
        if i == 0 and j > 0: sc.append(salu(f"s_add_u32 s{S_XCUR}, s{S_XCUR}, s{S_XSTEP}", [f"s{S_XCUR}"], [f"s{S_XCUR}"]))
        sc.append(salu(f"s_add_u32 s{sreg}, s{S_XCUR}, {i*7168}", [f"s{S_XCUR}"], [f"s{sreg}"]))
        sc.append(salu(f"s_add_u32 m0, s{S_XB}, {i*1024}", [f"s{S_XB}"], ["m0"]))
        out.append((sc, tag(dma(V_XD[i & 1], S_X, f"s{sreg}", 0, OPT.x_flags), f"x{j}")))
    return out
def x_read(qb, cs): return ds_read128("v", xfrag(qb, cs), V_XR[cs & 1], qb * 2048)
def w_read(dbp, cs, jj):
    s, e = dbp >> 1, dbp & 1
    base = wslot(cs); win = base // 65536
    off = base - win * 65536 + (s >> 1) * 4096 + jj * 512 + e * 8
    return ds_read_tr("v", V_POOL + 4 * ((2 * dbp + (cs & 1)) % 8) + 2 * jj, V_WA[win][s & 1], off)

V_PF = 28
def coop_setup():
    o = []; a = o.append
    a(salu(f"s_mul_i32 s{S_T1}, s{S_H}, {112*128}"))
    a(salu(f"s_lshl_b32 s{S_T2}, s{S_W}, 12")); a(salu(f"s_add_u32 s{S_T1}, s{S_T1}, s{S_T2}"))
    a(valu(f"v_and_b32 v{V_PF}, 31, v{V_LANE}", [f"v{V_LANE}"], [f"v{V_PF}"]))
    a(valu(f"v_lshlrev_b32 v{V_PF}, 7, v{V_PF}", [f"v{V_PF}"], [f"v{V_PF}"]))
    a(valu(f"v_add_u32 v{V_PF}, s{S_T1}, v{V_PF}", [f"v{V_PF}"], [f"v{V_PF}"]))
    return o
def coop_x():
    return [tag(bload(V_PF + 1, 1, V_PF, S_X, "0", 0, OPT.pf_flags), "pf")]

V_PFW = 132
def coop_w_setup():
    o = []; a = o.append
    L = f"v{V_LANE}"
    a(salu(f"s_lshr_b32 s{S_T1}, s2, 7")); a(salu(f"s_and_b32 s{S_T1}, s{S_T1}, 1")); a(salu(f"s_lshl_b32 s{S_T1}, s{S_T1}, 5"))
    a(salu(f"s_lshl_b32 s{S_T2}, s{S_W}, 3")); a(salu(f"s_add_u32 s{S_T1}, s{S_T1}, s{S_T2}"))
    a(valu(f"v_bfe_u32 v{V_PFW}, {L}, 2, 3", [L], [f"v{V_PFW}"])); a(valu(f"v_add_u32 v{V_PFW}, s{S_T1}, v{V_PFW}", [f"v{V_PFW}"], [f"v{V_PFW}"]))
    a(valu(f"v_lshlrev_b32 v{V_PFW}, 13, v{V_PFW}", [f"v{V_PFW}"], [f"v{V_PFW}"]))
    a(valu(f"v_and_b32 v{V_PFW+1}, 3, {L}", [L], [f"v{V_PFW+1}"]))
    a(valu(f"v_lshl_add_u32 v{V_PFW}, v{V_PFW+1}, 7, v{V_PFW}", [f"v{V_PFW}", f"v{V_PFW+1}"], [f"v{V_PFW}"]))
    return o
def coop_w(j):
    return [salu(f"s_mov_b32 s{S_PFO}, {j*524288}", [], [f"s{S_PFO}"])], tag(bload(V_PFW + 1, 1, V_PFW, S_WQ, f"s{S_PFO}", 0, OPT.pf_flags), "pf")
OOL = []
OOL_LATE = []
S_WM = 63
def kv_off(reg, t):
    if not OPT.rot: return [salu(f"s_mov_b32 s{reg}, {t*16384}", [], [f"s{reg}"])]
    return [salu(f"s_add_u32 s{reg}, s{S_ROT}, {t*16384}", [f"s{S_ROT}"], [f"s{reg}"]), salu(f"s_and_b32 s{reg}, s{reg}, 0x7ffff", [f"s{reg}"], [f"s{reg}"])]
def phase1():
    o = []; a = o.append
    NP = 3
    a(salu(f"s_lshr_b32 s{S_T1}, s2, 7")); a(salu(f"s_and_b32 s{S_T1}, s{S_T1}, {1 if OPT.rev else 0}"))
    a(salu(f"s_cmp_eq_u32 s{S_T1}, 0"))
    a(salu(f"s_cselect_b32 s{S_WCUR}, 0, {6*524288}")); a(salu(f"s_cselect_b32 s{S_T2}, 1, -1"))
    a(salu(f"s_cselect_b32 s{S_XCUR}, 0, 768"))
    a(salu(f"s_mul_i32 s{S_WSTEP}, s{S_T2}, 524288")); a(salu(f"s_mul_i32 s{S_XSTEP}, s{S_T2}, 128"))
    o += x_setup()
    if OPT.coopx: o += coop_setup() + coop_x()
    if OPT.coopw:
        o += coop_w_setup()
        for j in range(OPT.coopw_init):
            sc, d = coop_w(j); o += sc + [d]
    def w_items(j):
        out = []
        for par in range(2):
            sreg = S_WCUR if par == 0 else S_WOFF
            for m, (m0, d) in enumerate(dma_tile("W", wslot(2 * j + par), f"s{sreg}", f"W{j}")):
                sc = [m0]
                if m == 0 and par == 0 and j > 0: sc = [salu(f"s_add_u32 s{S_WCUR}, s{S_WCUR}, s{S_WSTEP}", [f"s{S_WCUR}"], [f"s{S_WCUR}"]), m0]
                if m == 0 and par == 1: sc = [salu(f"s_add_u32 s{S_WOFF}, s{S_WCUR}, 262144", [f"s{S_WCUR}"], [f"s{S_WOFF}"]), m0]
                out.append((sc, d))
        return out
    def kv_items(kind, t):
        out = []
        for m, (m0, d) in enumerate(dma_tile(kind, kslot(t) if kind == "K" else vslot(t), f"s{S_T0}", f"{kind}{t}")):
            out.append((kv_off(S_T0, t) + [m0] if m == 0 else [m0], d))
        return out
    def now(items):
        for sc, d in items:
            o.extend(sc); a(nop(0)); a(d)
    w0 = w_items(0)
    for sc, d in w0[4:]: d.meta["tag"] = "W0b"
    if OPT.xwarm:
        a(valu(f"v_lshlrev_b32 v{V_PFW}, 4, v{V_LANE}", [f"v{V_LANE}"], [f"v{V_PFW}"]))
        a(salu(f"s_mul_i32 s{S_T0}, s{S_H}, 14336")); a(salu(f"s_lshl_b32 s{S_T1}, s{S_W}, 12")); a(salu(f"s_add_u32 s{S_T0}, s{S_T0}, s{S_T1}"))
        if OPT.xwarm_order == 1: now(x_items(0))
        now(w0[:4])
        a(salu(f"s_lshl_b32 s{S_T1}, s{S_W}, 12")); a(salu(f"s_add_u32 m0, s{S_T1}, {kslot(0)}", [], ["m0"])); a(nop(0))
        for i in range(4): a(tag(dma(V_PFW, S_X, f"s{S_T0}", i * 1024, OPT.x_flags), "xw"))
        now(w0[4:])
        if OPT.xwarm_order == 0: now(x_items(0))
    else:
        now(x_items(0)); now(w0[:4]); now(w0[4:])
    if OPT.coopw:
        for j in range(OPT.coopw_init, 3):
            sc, d = coop_w(j); o += sc + [d]
    o += setup_b()
    a(wait_tag("x0"))
    xr = [x_read(qb, cs) for cs in (0, 1) for qb in range(4)]
    o += xr
    a(wait_tag("W0", "reset")); a(barrier())
    if OPT.fused:
        a(salu(f"s_or_b32 s{S_T0}, s{S_XCC}, 0x80")); a(valu(f"v_mov_b32 v1, s{S_T0}", [], ["v1"])); a(valu("v_mov_b32 v2, 0", [], ["v2"]))
        a(tag(I(f"buffer_store_byte v1, v2, s[{S_DBG}:{S_DBG+3}], s{S_SIG} offen", "vst", ["v1", "v2"], data=["v1"]), "arr"))
    o += stamp("p1_first_data") + (stamp("rt_fd") if OPT.trip_stamps else [])
    def quad0(n): return V_POOL + 4 * (n % 8)
    def w_read0(n, jj):
        dbp, cs = n % 16, n // 16
        r = w_read(dbp, cs, jj)
        return ds_read_tr("v", quad0(n) + 2 * jj, int(r.rd[0][1:]), int(r.text.split("offset:")[1]))
    carried = [x.wr for x in xr]
    for n in range(3):
        for jj in range(2):
            r = w_read0(n, jj); a(r); carried.append(r.wr)
    early = {j: [] for j in range(7)}; after = {j: [] for j in range(7)}
    early[0] += w_items(1); early[1] += w_items(2)
    for j in range(NP, 7): after[j - NP + 1] += w_items(j)
    K = lambda t: kv_items("K", t)
    V = lambda t: kv_items("V", t)
    kv = {"early": {1: K(0), 2: K(1)}, "mid": {2: K(0), 3: K(1)}, "late": {3: K(0), 4: K(1)}}[OPT.kvpf]
    for j, l in kv.items(): early[j] += l
    if OPT.kvmin:
        early = {j: (w_items(1) if j == 0 else w_items(2) if j == 1 else []) for j in range(7)} if False else early
        for j in range(7): early[j] = [it for it in early[j] if not it[1].meta["tag"].startswith("K")]
        early[4] += K(0); early[5] += K(1)
        after[5] += V(0)
        after[6] += K(2) + V(1)
    elif OPT.kvspread:
        after[5] += V(0)
        early[6] += K(2) + V(1)
        after[6] += K(3)
    else:
        after[5] += V(0)
        early[6] += K(2) + V(1) + K(3)
        after[6] += V(2)
    for j in range(7):
        ms = []
        if j == 0:
            for n in range(32):
                for qb in range(4):
                    acc = ((n % 16) * 4 + qb) * 4
                    first = n < 16
                    ms.append(mfma("a", acc, "v", quad0(n), "v", xfrag(qb, n // 16), None if first else "a", None if first else acc))
        else:
            for dbp in range(16):
                for qb in range(4):
                    for e2 in range(2):
                        acc = (dbp * 4 + qb) * 4
                        ms.append(mfma("a", acc, "v", V_POOL + 4 * ((2 * dbp + e2) % 8), "v", xfrag(qb, 2 * j + e2), "a", acc))
        g = Gaps(ms)
        if j == 0:
            for n in range(3, 32):
                for jj in range(2): g.put_mem(4 * n - 12 + 2 * jj, w_read0(n, jj))
        else:
            for dbp in range(3, 16):
                for n, (cs, jj) in enumerate([(2*j, 0), (2*j, 1), (2*j+1, 0), (2*j+1, 1)]):
                    g.put_mem(8 * dbp - 24 + 2 * n, w_read(dbp, cs, jj))
        nxt = []
        if j < 6:
            for dbp in range(3):
                for n, (cs, jj) in enumerate([(2*j+2, 0), (2*j+2, 1), (2*j+3, 0), (2*j+3, 1)]):
                    r = w_read(dbp, cs, jj); g.put_mem(104 + (1 if j == 0 else 0) + 8 * dbp + 2 * n, r); nxt.append(r.wr)
        XG = OPT.x_rd_gap if j > 0 else OPT.x_rd_gap0
        xreads = []
        if j < 6:
            for n, (cs, qb) in enumerate([(cs, qb) for cs in (2*j+2, 2*j+3) for qb in range(4)]):
                r = x_read(qb, cs); g.put_mem(XG + 2 * n, r); xreads.append(r)
        if j == 0:
            cons = [(4 * n, R("v", quad0(n), 4) + (R("v", V_S, 32) if n == 0 else [])) for n in range(32)]
        else:
            cons = [(8 * dbp, R("v", V_POOL + 4 * ((2 * dbp) % 8), 8)) for dbp in range(16)]
        if j < 6: cons.append((XG + 24, [w for r in xreads for w in r.wr]))
        cons.sort()
        lead = add_lgkm_waits(g, cons, carried)
        if j < 6:
            k = XG - 2
            while g.pre[k]: k -= 1
            g.pre[k] = [wait_tag(f"x{j+1}")]
        tags = [f"W{j+1}"] if j < 6 else ["K0"]
        k = 100
        while g.pre[k]: k -= 1
        g.pre[k] = [wait_tag(*tags), barrier()] if not OPT.p1_nowait else [barrier()]
        kb = k
        gp = 1
        if OPT.coopw and j + 3 <= 6:
            sc, d = coop_w(j + 3); gp = place_vmem(g, 2, sc, d, kb) + 1
        if j == 0:
            for sc, d in x_items(1): gp = place_vmem(g, gp, sc, d, XG - 3, stack=True) + 2
            k = 48
            while g.pre[k]: k -= 1
            g.pre[k] = [wait_tag("W0b"), barrier()]
            assert k < 52
        for sc, d in early[j]: gp = place_vmem(g, gp + len(sc) - 1 + (16 if (j == 6 and OPT.kvspread and gp == 1) else 0), sc, d, kb) + (OPT.early_step if j != 6 else (9 if OPT.kvspread else 7))
        if j < 5:
            gx = max(XG + 25, gp)
            for sc, d in x_items(j + 2): gx = place_vmem(g, gx, sc, d, stack=True) + 2
            gpa = max(kb + 2, gx)
        else: gpa = kb + 2
        for sc, d in after[j]: gpa = place_vmem(g, gpa, sc, d, stack=True) + 1
        left = []
        if j == 6:
            for dbp in range(16):
                for qb in range(4):
                    ops = conv_ops((dbp * 4 + qb) * 4, V_Q + (qb * 8 + (dbp >> 1)) * 4 + 2 * (dbp & 1), V_CT + 2 * (qb & 1))
                    if left: left += ops
                    else:
                        _, l2 = place_chain(g, ops, 8 * dbp + 2 * qb + 1 + 5, 128); left += l2
        if lead is not None: a(lead)
        em = g.emit()
        if OPT.p1_drop:
            def keep(x):
                if x.kind in ("dma", "vld"):
                    t = x.meta.get("tag", "")
                    for c in OPT.p1_drop:
                        if t.startswith(c): return False
                return True
            em = [x for x in em if keep(x)]
        if OPT.p1_noread: em = [x for x in em if x.kind != "ds" and not (x.kind == "wait" and "lgkm" in x.meta)]
        o += em
        carried = nxt
        if OPT.p1_steps: o += stamp(f"step{j}")
        if left: a(nop(7)); o += left
    if not OPT.p1_steps: o += stamp("p1_end") + (stamp("rt_p1") if OPT.trip_stamps else [])
    return o

def k_read(t, kb, s):
    return ds_read128("v", V_POOL + 4 * s, V_KA[s & 1], (kslot(t) - L_K) + (s >> 1) * 4096 + kb * 2048)
def v_read(t, db, jj):
    return ds_read_tr("v", V_POOL + 4 * (db % 8) + 2 * jj, V_VA[db & 3], (vslot(t) - L_V) + (db >> 2) * 4096 + jj * 2048)
def Sreg(kb, qb): return V_S + (kb * 4 + qb) * 4
def Preg(buf, qb): return V_P + buf * 16 + qb * 4
def qk_mfmas():
    ms = []
    for i in range(64):
        kb, sp, qb, e = i >> 5, (i >> 3) & 3, (i >> 1) & 3, i & 1
        s = 2 * sp + e; d = Sreg(kb, qb)
        ms.append(mfma("v", d, "v", V_POOL + 4 * s, "v", V_Q + (qb * 8 + s) * 4, None if s == 0 else "v", None if s == 0 else d))
    return ms
def pv_mfmas(t, first):
    ms = []
    for i in range(64):
        db, qb = i >> 2, i & 3
        acc = (db * 4 + qb) * 4
        ms.append(mfma("a", acc, "v", V_POOL + 4 * (db % 8), "v", Preg(t & 1, qb), None if first else "a", None if first else acc))
    return ms
def sm_group(tile, kb, qb):
    s = Sreg(kb, qb); p = Preg(tile & 1, qb) + 2 * kb; mc = V_MC + qb; l = V_L + qb
    f = lambda r: valu(f"v_fma_f32 v{s+r}, v{s+r}, s{S_C}, v{mc}", [f"v{s+r}", f"v{mc}", f"s{S_C}"], [f"v{s+r}"])
    x = lambda r: trans(f"v_exp_f32 v{s+r}, v{s+r}", [f"v{s+r}"], [f"v{s+r}"])
    ad = lambda r: valu(f"v_add_f32 v{l}, v{l}, v{s+r}", [f"v{l}", f"v{s+r}"], [f"v{l}"])
    cv = lambda r: valu(f"v_cvt_pk_bf16_f32 v{p+r//2}, v{s+r}, v{s+r+1}", [f"v{s+r}", f"v{s+r+1}"], [f"v{p+r//2}"])
    return [f(0), f(1), x(0), x(1), f(2), f(3), x(2), x(3), ad(0), ad(1), cv(0), ad(2), ad(3), cv(2)]

def pre_iter():
    o = []; a = o.append
    carried = []
    for s in range(8):
        r = k_read(0, 0, s); a(r); carried.append(r.wr)
    g = Gaps(qk_mfmas())
    for s in range(8): g.put_mem(8 * (s >> 1) + 10 + 4 * (s & 1), k_read(0, 1, s))
    cons = [(8 * p, R("v", V_POOL + 8 * (p % 4), 8)) for p in range(8)]
    a(add_lgkm_waits(g, cons, carried))
    if OPT.kvmin or OPT.kvspread:
        gp = 3
        for kind, t in ((("K", 3), ("V", 2)) if OPT.kvmin else (("V", 2),)):
            for m, (m0, d) in enumerate(dma_tile(kind, kslot(t) if kind == "K" else vslot(t), f"s{S_T0}", f"{kind}{t}")):
                gp = place_vmem(g, gp, (kv_off(S_T0, t) if m == 0 else []) + [m0], d, stack=True) + 5
    o += g.emit()
    a(wait_tag("K1", "V0")); a(barrier())
    o += kv_off(S_KOFF, 4)
    for m0, d in dma_tile("K", kslot(4), f"s{S_KOFF}", "K4"): a(m0); a(nop(0)); a(d)
    o += kv_off(S_KOFF, 5) + kv_off(S_VOFF, 3)
    carried = []
    for s in range(8):
        r = k_read(1, 0, s); a(r); carried.append(r.wr)
    for qb in range(4):
        m = V_MC + qb; s0 = Sreg(0, qb); s1 = Sreg(1, qb)
        a(valu(f"v_max3_f32 v{m}, v{s0}, v{s0+1}, v{s0+2}", R("v", s0, 3), [f"v{m}"]))
        a(valu(f"v_max3_f32 v{m}, v{m}, v{s0+3}, v{s1}", [f"v{m}", f"v{s0+3}", f"v{s1}"], [f"v{m}"]))
        a(valu(f"v_max3_f32 v{m}, v{m}, v{s1+1}, v{s1+2}", [f"v{m}", f"v{s1+1}", f"v{s1+2}"], [f"v{m}"]))
        a(valu(f"v_max_f32 v{m}, v{m}, v{s1+3}", [f"v{m}", f"v{s1+3}"], [f"v{m}"]))
    o += xlane_reduce([V_MC + q for q in range(4)], "v_max_f32", V_SP)
    for qb in range(4):
        m = V_MC + qb
        a(valu(f"v_mul_f32 v{m}, s{S_C}, v{m}", [f"v{m}", f"s{S_C}"], [f"v{m}"]))
        a(valu(f"v_sub_f32 v{m}, 0, v{m}", [f"v{m}"], [f"v{m}"]))
        a(valu(f"v_mov_b32 v{V_L+qb}, 0", [], [f"v{V_L+qb}"]))
    for kb, qb in [(0, 0), (0, 1), (0, 2), (0, 3), (1, 0), (1, 1)]: o += exposed(sm_group(0, kb, qb))
    o += stamp("pre_iter_end")
    return o, carried

def attn_iter(t, carried, vmw, prev, cur, first=False, adv=True, loopctl=False, extra=None, loop_body=False):
    g = Gaps(qk_mfmas() + pv_mfmas(t, first))
    for s in range(8): g.put_mem(8 * (s >> 1) + 10 + 4 * (s & 1), k_read(t + 1, 1, s))
    for db in range(16):
        for jj in range(2): g.put_mem(min(64 - OPT.v_lead + 4 * db + 2 * jj, 44 + 4 * db + 2 * jj + 18), v_read(t, db, jj))
    nxt = []
    if t + 2 <= 31:
        for s, gap in zip(range(8), [108, 110, 112, 114, 116, 120, 124, 127] if OPT.v_lead >= 20 else [109, 111, 113, 115, 117, 121, 125, 127]):
            r = k_read(t + 2, 0, s); g.put_mem(gap, r); nxt.append(r.wr)
    else:
        for db in range(5):
            for jj in range(2):
                r = v_read(t + 1, db, jj); g.put_mem(108 + 4 * db + 2 * jj, r); nxt.append(r.wr)
    cons = [(8 * p, R("v", V_POOL + 8 * (p % 4), 8)) for p in range(8)]
    cons += [(64 + 4 * db, R("v", V_POOL + 4 * (db % 8), 4)) for db in range(16)]
    lead = add_lgkm_waits(g, cons, carried)
    kb = 98
    while g.pre[kb]: kb -= 1
    g.pre[kb] = [vmw, barrier()]
    if OPT.bar_stamps and loop_body:
        g.pre[kb] = [raw("s_memtime s[94:95]", "salu"), vmw, raw("s_memtime s[96:97]", "salu"), barrier(), raw("s_memtime s[98:99]", "salu"),
                     raw("s_waitcnt lgkmcnt(0)", "wait", lgkm=0),
                     salu("s_sub_u32 s96, s96, s94"), salu("s_add_u32 s92, s92, s96"),
                     salu("s_sub_u32 s98, s98, s94"), salu("s_add_u32 s93, s93, s98")]
    gp_prev, gp_cur = OPT.dma_gaps
    placed = [place_vmem(g, gap, [m0], d, kb) for gap, (m0, d) in zip(gp_prev, prev)]
    for gap, (m0, d) in zip(gp_cur, cur): place_vmem(g, gap, [m0], d)
    if adv:
        for reg, srd, at in ((S_VOFF, S_V, (placed[OPT.nv_prev - 1] if OPT.nv_prev else 1) + 1), (S_KOFF, S_K, placed[-1] + 1)):
            k = put_scalar(g, at, salu(f"s_add_u32 s{reg}, s{reg}, 16384", [f"s{reg}"], [f"s{reg}"]))
            k = put_scalar(g, k + 1, salu(f"s_and_b32 s{reg}, s{reg}, 0x7ffff", [f"s{reg}"], [f"s{reg}"]))
            assert k < 100
        if loopctl:
            first_k = placed[-4]
            k = put_scalar(g, 2, salu(f"s_cmp_eq_u32 s{S_LOOP}, 1", [f"s{S_LOOP}"], ["scc"]),
                           salu(f"s_cselect_b32 s{S_K+2}, 0, 524288", ["scc"], [f"s{S_K+2}"]))
            assert k < first_k - 1
    if loopctl:
        k = put_scalar(g, 119, salu(f"s_sub_u32 s{S_LOOP}, s{S_LOOP}, 1", [f"s{S_LOOP}"], [f"s{S_LOOP}"]))
        k = put_scalar(g, k + 1, salu(f"s_cmp_lg_u32 s{S_LOOP}, {OPT.loop_exit}", [f"s{S_LOOP}"], ["scc"]))
        assert k <= 127
        for kk in range(k + 1, 128):
            assert all(x.kind == "wait" for x in g.pre[kk]), "SCC clobbered before the loop branch"
    if extra: extra(g, kb)
    ops = []
    for qb in (2, 3): ops += sm_ops(t, 1, qb, 0, 31 + 2 * qb)
    for qb in range(4): ops += sm_ops(t + 1, 0, qb, 25 + 2 * qb + 6, 100 + 6 * qb)
    for qb in (0, 1): ops += sm_ops(t + 1, 1, qb, 57 + 2 * qb + 6, 124 + 3 * qb)
    left = list_schedule(g, ops)
    if OPT.vfirst:
        cand = [k for k in range(128) if g.mem[k] is not None and g.mem[k].kind == "ds" and len(g.vec[k]) == 1 and g.vec[k][0].kind == "valu"
                and not (set(g.vec[k][0].wr) & set(g.mem[k].rd + g.mem[k].wr))]
        n = min(OPT.vfirst, len(cand))
        for i in range(n): g.vec_first.add(cand[(i * len(cand)) // n])
    if OPT.pad_iter:
        for n in range(OPT.pad_iter): g.post[(n * 128) // OPT.pad_iter + 3].append(nop(3))
    assert not left, f"softmax groups do not fit: {len(left)} left"
    return [lead] + g.emit(), nxt

def safe_attn():
    o = []; a = o.append
    VM, VT, VA_, TMP = 20, 24, 28, 112
    a(label("L_safe_attn")); a(wait_vm(0)); a(raw("s_waitcnt lgkmcnt(0)", "wait", lgkm=0)); a(barrier())
    for r in range(256): a(valu(f"v_accvgpr_write_b32 a{r}, 0", [], [f"a{r}"]))
    for qb in range(4):
        a(valu(f"v_mov_b32 v{VM+qb}, 0xff800000", [], [f"v{VM+qb}"])); a(valu(f"v_mov_b32 v{V_L+qb}, 0", [], [f"v{V_L+qb}"]))
    a(salu(f"s_mov_b32 s{S_KOFF}, 0")); a(salu(f"s_mov_b32 s{S_LOOP}, 32"))
    a(label("L_safe_loop"))
    for kind, slot in (("K", kslot(0)), ("V", vslot(0))):
        for m0, d in dma_tile(kind, slot, f"s{S_KOFF}", "safe"): a(m0); a(nop(0)); a(d)
    a(wait_vm(0)); a(barrier())
    qk = qk_mfmas()
    for kb in range(2):
        for s_ in range(8): a(k_read(0, kb, s_))
        a(wait_lgkm(0)); o += qk[32 * kb:32 * kb + 32]
    a(nop(7)); a(nop(7))
    for qb in range(4):
        t = VT + qb; s0 = Sreg(0, qb); s1 = Sreg(1, qb)
        a(valu(f"v_max3_f32 v{t}, v{s0}, v{s0+1}, v{s0+2}", [], [])); a(valu(f"v_max3_f32 v{t}, v{t}, v{s0+3}, v{s1}", [], []))
        a(valu(f"v_max3_f32 v{t}, v{t}, v{s1+1}, v{s1+2}", [], [])); a(valu(f"v_max_f32 v{t}, v{t}, v{s1+3}", [], []))
    o += xlane_reduce([VT + q for q in range(4)], "v_max_f32", TMP)
    for qb in range(4):
        a(valu(f"v_max_f32 v{VT+qb}, v{VT+qb}, v{VM+qb}", [], []))
        a(valu(f"v_sub_f32 v{VA_+qb}, v{VM+qb}, v{VT+qb}", [], [])); a(valu(f"v_mul_f32 v{VA_+qb}, s{S_C}, v{VA_+qb}", [], []))
        a(trans(f"v_exp_f32 v{VA_+qb}, v{VA_+qb}", [], [])); a(valu(f"v_mov_b32 v{VM+qb}, v{VT+qb}", [], []))
        a(valu(f"v_mul_f32 v{V_MC+qb}, s{S_C}, v{VT+qb}", [], [])); a(valu(f"v_sub_f32 v{V_MC+qb}, 0, v{V_MC+qb}", [], []))
        a(valu(f"v_mul_f32 v{V_L+qb}, v{V_L+qb}, v{VA_+qb}", [], []))
    for r in range(256):
        qb = (r >> 2) & 3; t = TMP + (r & 7)
        a(valu(f"v_accvgpr_read_b32 v{t}, a{r}", [], [])); a(valu(f"v_mul_f32 v{t}, v{t}, v{VA_+qb}", [], [])); a(valu(f"v_accvgpr_write_b32 a{r}, v{t}", [], []))
    for kb in range(2):
        for qb in range(4): o += exposed(sm_group(0, kb, qb))
    pv = pv_mfmas(0, False)
    for half in range(2):
        for db in range(8 * half, 8 * half + 8):
            for jj in range(2):
                a(v_read(0, db, jj))
            if db % 4 == 3: a(wait_lgkm(0))
        a(nop(1)); o += pv[32 * half:32 * half + 32]
    a(salu(f"s_add_u32 s{S_KOFF}, s{S_KOFF}, 16384")); a(salu(f"s_sub_u32 s{S_LOOP}, s{S_LOOP}, 1")); a(salu(f"s_cmp_lg_u32 s{S_LOOP}, 0"))
    a(barrier()); a(raw("s_cbranch_scc1 L_safe_loop", "branch"))
    a(nop(7)); a(nop(7))
    o += xlane_reduce([V_L + q for q in range(4)], "v_add_f32", TMP)
    for qb in range(4): a(trans(f"v_rcp_f32 v{V_L+qb}, v{V_L+qb}", [], []))
    a(nop(0))
    for db in range(16):
        for qb in range(4):
            o += conv_ops((db * 4 + qb) * 4, V_Q + (qb * 8 + (db >> 1)) * 4 + 2 * (db & 1), V_SP + 8 + 2 * (qb & 1))
    o += wo_setup()
    if OPT.fused: o += grp_setup() + [nop(1), mode_load()] + ring_scalars()
    for j in range(4):
        for sc, d in wo_dma(j): o += sc + [nop(0), d]
    a(wait_vm(0)); a(raw("s_branch L_p3_entry", "branch"))
    return o

def last_iter(carried):
    o = []; a = o.append
    for qb in (2, 3): o += exposed(sm_group(31, 1, qb))
    o += xlane_reduce([V_L + q for q in range(4)], "v_add_f32", V_SP)
    a(salu(f"s_mov_b32 s{S_T0}, 0x{f32bits(L_LIMIT):08x}"))
    for qb in range(4):
        a(valu(f"v_cmp_nge_f32 s[{50+2*(qb&1)}:{51+2*(qb&1)}], s{S_T0}, v{V_L+qb}", [f"v{V_L+qb}"], [f"s{50+2*(qb&1)}", f"s{51+2*(qb&1)}"]))
        if qb & 1:
            a(nop(0)); a(salu("s_or_b64 s[50:51], s[50:51], s[52:53]"))
            a(salu("s_mov_b64 s[54:55], s[50:51]") if qb == 1 else salu("s_or_b64 s[54:55], s[54:55], s[50:51]"))
    a(salu("s_cselect_b32 s50, 1, 0"))
    a(salu(f"s_lshl_b32 s51, s{S_W}, 2")); a(salu(f"s_add_u32 s51, s51, {L_VOTE}"))
    a(valu(f"v_mov_b32 v{V_SP}, s50", [], [f"v{V_SP}"])); a(valu(f"v_mov_b32 v{V_SP+1}, s51", [], [f"v{V_SP+1}"]))
    a(I(f"ds_write_b32 v{V_SP+1}, v{V_SP}", "ds", [f"v{V_SP}", f"v{V_SP+1}"], []))
    carried = carried + [[]]
    for qb in range(4): a(trans(f"v_rcp_f32 v{V_L+qb}, v{V_L+qb}", [f"v{V_L+qb}"], [f"v{V_L+qb}"]))
    a(nop(0))
    g = Gaps(pv_mfmas(31, False))
    for db in range(5, 8):
        for jj in range(2): g.put_mem(4 * (db - 5) + 2 * jj, v_read(31, db, jj))
    for db in range(8, 16):
        for jj in range(2): g.put_mem(12 + 4 * (db - 8) + 2 * jj, v_read(31, db, jj))
    cons = [(4 * db, R("v", V_POOL + 4 * (db % 8), 4)) for db in range(16)]
    lead = add_lgkm_waits(g, cons, carried)
    gp = put_wo(g, 2, 2, step=0)
    put_wo(g, 3, gp, step=0)
    left = []
    for db in range(16):
        for qb in range(4):
            ops = conv_ops((db * 4 + qb) * 4, V_Q + (qb * 8 + (db >> 1)) * 4 + 2 * (db & 1), V_SP + 8 + 2 * (qb & 1))
            if left: left += ops
            else:
                _, l2 = place_chain(g, ops, 4 * db + qb + 5, 64); left += l2
    a(lead); o += g.emit()
    a(nop(7)); o += left
    return o

WOBUF = [L_X, L_K, L_K + 32768, L_V, L_V + 32768, L_X, L_K]
V_DWO = 3; V_STO = V_DV
V_FR3 = 32; V_ACC3 = V_P; V_STG = 16
def wo_dma(j):
    out = []
    for i in range(8):
        sreg = S_T0 + (i & 1)
        out.append(([salu(f"s_mov_b32 s{sreg}, {j*128 + i*32*896}", [], [f"s{sreg}"]),
                     salu(f"s_add_u32 m0, s{S_W1K}, {WOBUF[j] + i*4096}", [f"s{S_W1K}"], ["m0"])],
                    tag(dma(V_DWO, S_WO, f"s{sreg}", 0, OPT.wo_flags), f"wo{j}")))
    return out
A_WOS = 100
V_WOW = 39
def wo_stage_loads(j):
    out = []
    for i in range(8):
        sreg = S_T0 + (i & 1)
        out.append(([salu(f"s_mov_b32 s{sreg}, {j*128 + i*32*896}", [], [f"s{sreg}"])],
                    tag(bload_f("a", A_WOS + 32 * (j - 5) + 4 * i, 4, V_DWO, S_WO, f"s{sreg}", 0, OPT.wo_flags), f"wos{j}")))
    return out
def wo_stage_write(j, i):
    r = A_WOS + 32 * (j - 5) + 4 * i
    return I(f"ds_write_b128 v{V_WOW + (j - 5) * 0}, {rng('a', r, 4)} offset:{i*4096}", "ds", [f"v{V_WOW}"] + R("a", r, 4), [])
def wo_setup():
    o = []; a = o.append
    L = f"v{V_LANE}"
    a(valu(f"v_lshrrev_b32 v1, 3, {L}", [L], ["v1"])); a(valu(f"v_and_b32 v2, 7, {L}", [L], ["v2"]))
    a(valu(f"v_lshl_add_u32 v3, s{S_W}, 3, v1", ["v1", f"s{S_W}"], ["v3"]))
    a(valu("v_bfe_u32 v1, v1, 1, 2", ["v1"], ["v1"])); a(valu("v_lshlrev_b32 v1, 1, v1", ["v1"], ["v1"]))
    a(valu("v_xor_b32 v1, v1, v2", ["v1", "v2"], ["v1"])); a(valu("v_lshlrev_b32 v1, 4, v1", ["v1"], ["v1"]))
    a(valu("v_mul_u32_u24 v3, 896, v3", ["v3"], ["v3"]))
    a(valu(f"v_add_u32 v{V_DWO}, v3, v1", ["v3", "v1"], [f"v{V_DWO}"]))
    return o
V_WOT = 2
def wo_touch_setup():
    return [valu(f"v_lshl_add_u32 v{V_WOT}, s{S_W}, 6, v{V_LANE}", [f"v{V_LANE}"], [f"v{V_WOT}"]),
            valu(f"v_mul_u32_u24 v{V_WOT}, 896, v{V_WOT}", [f"v{V_WOT}"], [f"v{V_WOT}"])]
def wo_touch(j): return tag(bload(1, 1, V_WOT, S_WO, "0", j * 128, OPT.wt_flags), "wt")
def l2warm_setup():
    o = []; a = o.append
    L = f"v{V_LANE}"
    a(valu(f"v_min_u32 v20, 13, {L}", [L], ["v20"]))
    a(valu("v_cmp_lt_u32 vcc, 6, v20", ["v20"], ["vcc"])); a(valu("v_lshlrev_b32 v20, 7, v20", ["v20"], ["v20"]))
    a(valu(f"v_add_u32 v21, {CONS_OFF - 7*128}, v20", ["v20"], ["v21"]))
    a(valu("v_cndmask_b32 v20, v20, v21, vcc", ["v20", "v21", "vcc"], ["v20"]))
    a(valu(f"v_min_u32 v21, 27, {L}", [L], ["v21"])); a(salu(f"s_mul_i32 s50, s{S_W}, 28")); a(valu("v_add_u32 v21, s50, v21", ["v21"], ["v21"]))
    a(valu("v_mul_u32_u24 v22, 9363, v21", ["v21"], ["v22"])); a(valu("v_lshrrev_b32 v22, 16, v22", ["v22"], ["v22"]))
    a(valu("v_mul_u32_u24 v23, 7, v22", ["v22"], ["v23"])); a(valu("v_sub_u32 v21, v21, v23", ["v21", "v23"], ["v21"]))
    a(valu("v_mul_u32_u24 v22, 1792, v22", ["v22"], ["v22"])); a(valu("v_lshl_add_u32 v21, v21, 7, v22", ["v21", "v22"], ["v21"]))
    a(salu(f"s_lshl_b32 s50, s{S_B}, 8")); a(salu(f"s_lshl_b32 s51, s{S_H}, 4")); a(salu("s_add_u32 s50, s50, s51"))
    a(salu("s_mul_i32 s50, s50, 1792")); a(salu(f"s_mul_i32 s51, s{S_BR}, 896")); a(salu(f"s_add_u32 s{S_WARM}, s50, s51"))
    a(salu(f"s_mul_i32 s{S_WARM+1}, s{S_G}, {14*64}"))
    return o
def l2warm_loads():
    return [tag(bload(22, 1, 20, S_FL, f"s{S_WARM+1}", 0), "wt"), tag(bload(23, 1, 21, S_OUT, f"s{S_WARM}", 0), "wt")]
def put_wo(g, j, start, hi=None, step=3):
    gp = start
    for sc, d in wo_dma(j): gp = place_vmem(g, gp, sc, d, hi) + step
    return gp
def va_shift(delta):
    t = (lambda r: f"v_add_u32 v{r}, {delta}, v{r}") if delta >= 0 else (lambda r: f"v_subrev_u32 v{r}, {-delta}, v{r}")
    return [valu(t(r), [f"v{r}"], [f"v{r}"]) for r in V_VA]

def part_ops(nb, qb):
    acc = V_ACC3 + 4 * ((nb * 4 + qb) % 8)
    st = V_STG + 4 * qb + 2 * (nb & 1)
    li = V_L + qb
    ops = [valu(f"v_mul_f32 v{acc+r}, v{acc+r}, v{li}", [f"v{acc+r}", f"v{li}"], [f"v{acc+r}"]) for r in range(4)]
    ops += [valu(f"v_cvt_pk_bf16_f32 v{st}, v{acc}, v{acc+1}", [f"v{acc}", f"v{acc+1}"], [f"v{st}"]),
            valu(f"v_cvt_pk_bf16_f32 v{st+1}, v{acc+2}, v{acc+3}", [f"v{acc+2}", f"v{acc+3}"], [f"v{st+1}"])]
    return ops

A_FR3 = 0; A_SEL = 224
V_POLLA, V_POLL, V_ONE, V_ZERO, V_RLD, V_OUT = 32, 33, 34, 35, 36, 37
V_RD = 40
V_GRP = V_ARR + 3
def wo_read(nb, s_, jj):
    return ds_read_tr("a", A_FR3 + 4 * (8 * (nb & 1) + s_) + 2 * jj, V_VA[nb], s_ * 4096 + jj * 2048)

V_GA = V_ARR + 2
def grp_setup():
    return [salu(f"s_lshl_b32 s{S_T0}, s{S_G}, 4"), valu(f"v_and_b32 v{V_GA}, 3, v{V_LANE}", [f"v{V_LANE}"], [f"v{V_GA}"]),
            valu(f"v_lshlrev_b32 v{V_GA}, 2, v{V_GA}", [f"v{V_GA}"], [f"v{V_GA}"]), valu(f"v_add_u32 v{V_GA}, s{S_T0}, v{V_GA}", [f"v{V_GA}"], [f"v{V_GA}"])]
V_GA3 = 38
def grp_load(dst, tg, ga=V_GA): return tag(bload(dst, 1, ga, S_DBG, "0", 0, "sc1"), tg)
def splat(x): return x * 0x01010101
def mode_load(): return grp_load(V_ARR, "grp")
def mode_check():
    o = []; a = o.append
    a(salu(f"s_or_b32 s{S_T0}, s{S_XCC}, 0x80")); a(salu(f"s_mul_i32 s50, s{S_T0}, 0x01010101"))
    a(wait_tag("grp"))
    a(valu(f"v_and_b32 v{V_ARR}, 0x87878787, v{V_ARR}", [f"v{V_ARR}"], [f"v{V_ARR}"]))
    a(valu(f"v_cmp_eq_u32 vcc, s50, v{V_ARR}", [f"v{V_ARR}"], ["vcc"])); a(nop(0))
    a(salu("s_cmp_eq_u64 vcc, -1"))
    a(salu(f"s_cselect_b64 s[{S_LOCM}:{S_LOCM+1}], -1, 0"))
    if OPT.force_fallback: a(salu("s_cmp_eq_u32 s50, 0"))
    a(raw("s_cbranch_scc0 L_grp_far", "branch")); a(label("L_grp_ok"))
    f = [label("L_grp_far"), salu(f"s_or_b32 s{S_T0}, s{S_XCC}, 0x80"), valu(f"v_mov_b32 v{V_ARR+1}, s{S_T0}", [], []),
         valu(f"v_mov_b32 v{V_ARR+3}, 0", [], []),
         raw(f"buffer_store_byte v{V_ARR+1}, v{V_ARR+3}, s[{S_DBG}:{S_DBG+3}], s{S_SIG} offen sc1", "salu"), wait_vm(0),
         salu(f"s_mov_b32 s{S_SPIN}, {SPIN_MAX}"), label("L_grp_again"),
         salu(f"s_sub_u32 s{S_SPIN}, s{S_SPIN}, 1"), salu(f"s_cmp_eq_u32 s{S_SPIN}, 0"), raw("s_cbranch_scc1 L_grp_ok", "branch")]
    if not OPT.force_fallback:
        f += [raw(f"buffer_load_dword v{V_ARR}, v{V_GA}, s[{S_DBG}:{S_DBG+3}], 0 offen sc1", "salu"), wait_vm(0),
              valu(f"v_and_b32 v{V_ARR}, 0x87878787, v{V_ARR}", [], []), valu(f"v_cmp_eq_u32 vcc, s50, v{V_ARR}", [], []), nop(0),
              salu("s_cmp_eq_u64 vcc, -1"), salu(f"s_cselect_b64 s[{S_LOCM}:{S_LOCM+1}], -1, 0"), raw("s_cbranch_scc1 L_grp_ok", "branch")]
    f += far_read(V_ARR)
    f += [valu(f"v_and_b32 v{V_ARR+1}, 0x80808080, v{V_ARR}", [], []), valu(f"v_cmp_eq_u32 vcc, 0x80808080, v{V_ARR+1}", [], []), nop(0),
          salu("s_and_b64 s[52:53], vcc, 15"), salu("s_cmp_eq_u64 s[52:53], 15"), raw("s_cbranch_scc0 L_grp_again", "branch"),
          valu(f"v_and_b32 v{V_ARR}, 0x87878787, v{V_ARR}", [], []), valu(f"v_cmp_eq_u32 vcc, s50, v{V_ARR}", [], []), nop(0),
          salu("s_and_b64 s[52:53], vcc, 15"), salu("s_cmp_eq_u64 s[52:53], 15"),
          salu(f"s_cselect_b64 s[{S_LOCM}:{S_LOCM+1}], -1, 0")]
    if OPT.force_fallback: f.append(salu(f"s_mov_b64 s[{S_LOCM}:{S_LOCM+1}], 0"))
    f.append(raw("s_branch L_grp_ok", "branch"))
    OOL.extend(f)
    return o
def far_read(dst, ga=V_GA):
    return [valu(f"v_mov_b32 v{dst}, 0", [], []), valu(f"v_cmp_gt_u32 vcc, 4, v{V_LANE}", [], []),
            raw("s_and_saveexec_b64 s[54:55], vcc", "salu"),
            raw(f"buffer_atomic_add v{dst}, v{ga}, s[{S_DBG}:{S_DBG+3}], 0 offen sc0 sc1", "salu"), wait_vm(0),
            raw("s_mov_b64 exec, s[54:55]", "salu")]

def p3_setup():
    L = f"v{V_LANE}"
    o = [valu(f"v_lshlrev_b32 v{V_STO}, 4, {L}", [L], [f"v{V_STO}"])]
    if OPT.fused:
        o += [valu(f"v_mov_b32 v{V_ZERO}, 0", [], [f"v{V_ZERO}"]), valu(f"v_mov_b32 v{V_GA3}, v{V_GA}", [f"v{V_GA}"], [f"v{V_GA3}"])]
    else: o += far_setup()
    return o

def far_setup():
    o = []; a = o.append
    L = f"v{V_LANE}"
    a(salu(f"s_mul_i32 s{S_PART}, s{S_G}, {7*16*16*2048}"))
    a(salu(f"s_lshl_b32 s{S_T2}, s{S_H}, 15")); a(salu(f"s_add_u32 s{S_RBASE}, s{S_PART}, s{S_T2}"))
    a(salu(f"s_lshl_b32 s{S_T2}, s{S_W}, 17")); a(salu(f"s_add_u32 s{S_PART}, s{S_PART}, s{S_T2}"))
    a(salu(f"s_lshl_b32 s{S_T2}, s{S_H}, 11")); a(salu(f"s_add_u32 s{S_PART}, s{S_PART}, s{S_T2}"))
    if not OPT.fused: return o
    a(salu(f"s_or_b32 s{S_T2}, s{S_XCC}, 0xf0")); a(valu(f"v_mov_b32 v{V_ONE}, s{S_T2}", [], [f"v{V_ONE}"]))
    a(valu(f"v_lshrrev_b32 v1, 5, {L}", [L], ["v1"])); a(valu("v_lshlrev_b32 v1, 11, v1", ["v1"], ["v1"]))
    a(valu(f"v_and_b32 v2, 31, {L}", [L], ["v2"])); a(valu(f"v_lshl_add_u32 v{V_RLD}, v2, 4, v1", ["v1", "v2"], [f"v{V_RLD}"]))
    a(salu(f"s_lshl_b32 s{S_T2}, s{S_W}, 9")); a(valu(f"v_add_u32 v{V_RLD}, s{S_T2}, v{V_RLD}", [f"v{V_RLD}"], [f"v{V_RLD}"]))
    a(valu(f"v_and_b32 v1, 15, {L}", [L], ["v1"])); a(valu(f"v_lshrrev_b32 v2, 4, {L}", [L], ["v2"]))
    a(valu("v_lshrrev_b32 v4, 3, v1", ["v1"], ["v4"])); a(valu("v_and_b32 v5, 1, v2", ["v2"], ["v5"]))
    a(valu("v_and_b32 v48, 1, v1", ["v1"], ["v48"])); a(valu("v_lshlrev_b32 v48, 4, v48", ["v48"], ["v48"]))
    a(valu("v_mov_b32 v49, 0x3f80", [], ["v49"])); a(valu("v_lshlrev_b32 v49, v48, v49", ["v48", "v49"], ["v49"]))
    a(valu("v_cmp_eq_u32 vcc, v4, v5", ["v4", "v5"], ["vcc"])); a(nop(1))
    a(valu("v_cndmask_b32 v49, 0, v49, vcc", ["v49", "vcc"], ["v49"]))
    a(valu("v_bfe_u32 v50, v1, 1, 2", ["v1"], ["v50"]))
    for r in range(4):
        a(valu(f"v_cmp_eq_u32 vcc, {r}, v50", ["v50"], ["vcc"])); a(nop(1))
        a(valu("v_cndmask_b32 v51, 0, v49, vcc", ["v49", "vcc"], ["v51"]))
        a(valu(f"v_accvgpr_write_b32 a{A_SEL+r}, v51", ["v51"], [f"a{A_SEL+r}"]))
    a(salu(f"s_lshl_b32 s{S_T2}, s{S_B}, 8")); a(salu(f"s_lshl_b32 s{S_T3}, s{S_H}, 4")); a(salu(f"s_add_u32 s{S_T2}, s{S_T2}, s{S_T3}"))
    a(valu(f"v_add_u32 v{V_OUT}, s{S_T2}, v1", ["v1"], [f"v{V_OUT}"])); a(valu(f"v_mul_u32_u24 v{V_OUT}, 896, v{V_OUT}", [f"v{V_OUT}"], [f"v{V_OUT}"]))
    a(salu(f"s_mul_i32 s{S_T2}, s{S_BR}, 448")); a(salu(f"s_lshr_b32 s{S_T3}, s{S_W}, 1")); a(salu(f"s_lshl_b32 s{S_T3}, s{S_T3}, 5"))
    a(salu(f"s_add_u32 s{S_T2}, s{S_T2}, s{S_T3}")); a(salu(f"s_and_b32 s{S_T3}, s{S_W}, 1")); a(salu(f"s_lshl_b32 s{S_T3}, s{S_T3}, 3"))
    a(salu(f"s_add_u32 s{S_T2}, s{S_T2}, s{S_T3}"))
    a(valu(f"v_add_u32 v{V_OUT}, s{S_T2}, v{V_OUT}", [f"v{V_OUT}"], [f"v{V_OUT}"]))
    a(valu(f"v_lshl_add_u32 v{V_OUT}, v5, 4, v{V_OUT}", ["v5", f"v{V_OUT}"], [f"v{V_OUT}"]))
    a(valu("v_lshrrev_b32 v4, 1, v2", ["v2"], ["v4"])); a(valu(f"v_lshl_add_u32 v{V_OUT}, v4, 2, v{V_OUT}", ["v4", f"v{V_OUT}"], [f"v{V_OUT}"]))
    a(valu(f"v_lshlrev_b32 v{V_OUT}, 1, v{V_OUT}", [f"v{V_OUT}"], [f"v{V_OUT}"]))
    return o

def handoff_far():
    o = [wait_vm(0), barrier(), raw("buffer_wbl2 sc1", "salu"), wait_vm(0), barrier(),
         raw(f"buffer_store_byte v{V_ONE}, v{V_ZERO}, s[{S_DBG}:{S_DBG+3}], s{S_SIG} offen sc1", "salu"), wait_vm(0),
         salu(f"s_mov_b32 s{S_SPIN}, {SPIN_MAX}"), label("L_far_poll"),
         salu(f"s_sub_u32 s{S_SPIN}, s{S_SPIN}, 1"), salu(f"s_cmp_eq_u32 s{S_SPIN}, 0"), raw("s_cbranch_scc1 L_far_done", "branch")]
    o += far_read(V_POLL, V_GA3)
    o += [valu(f"v_and_b32 v{V_POLL}, 0xf0f0f0f0, v{V_POLL}", [], []), valu(f"v_cmp_eq_u32 vcc, 0xf0f0f0f0, v{V_POLL}", [], []), nop(0),
          salu("s_and_b64 s[52:53], vcc, 15"), salu("s_cmp_eq_u64 s[52:53], 15"), raw("s_cbranch_scc0 L_far_poll", "branch"),
          label("L_far_done"), raw("buffer_inv sc1", "salu"), wait_vm(0)]
    return o

A_PIECE = 0; A_SEL2 = 224
def red_loads(j):
    out = []
    for i in range(8):
        sr = "s52" if i % 2 == 0 else "s53"
        out.append(([salu(f"s_add_u32 {sr}, s{S_RBASE}, {j*16*32768 + i*4096}", [f"s{S_RBASE}"], [sr])],
                    tag(bload_f("a", A_PIECE + 32 * j + 4 * i, 4, V_RLD, S_WS, sr, 0, "sc1"), f"rl{j}")))
    return out
def red_mfmas(j):
    d = V_RD + 4 * (j & 1)
    return [mfma("v", d, "a", A_SEL2, "a", A_PIECE + 32 * j + 4 * i, None if i == 0 else "v", None if i == 0 else d) for i in range(8)]
def red_out(j):
    d = V_RD + 4 * (j & 1)
    return [valu(f"v_cvt_pk_bf16_f32 v{d}, v{d}, v{d+1}", [f"v{d}", f"v{d+1}"], [f"v{d}"]),
            valu(f"v_cvt_pk_bf16_f32 v{d+1}, v{d+2}, v{d+3}", [f"v{d+2}", f"v{d+3}"], [f"v{d+1}"])], tag(bstore(d, 2, V_OUT, S_OUT, "0", j * 128), f"out{j}")

A_RING = 64; A_SEL4 = 96
V_RLD4, V_OUT4, V_FLA, V_FLAG1 = 48, 49, 50, 51
def ring_scalars():
    o = []; a = o.append
    a(salu(f"s_mul_i32 s50, s{S_G}, {OPT.ring * 262144}"))
    a(salu(f"s_lshl_b32 s51, s{S_W}, 16")); a(salu(f"s_add_u32 s{S_RST}, s50, s51"))
    a(salu(f"s_lshl_b32 s51, s{S_H}, 10")); a(salu(f"s_add_u32 s{S_RST}, s{S_RST}, s51"))
    a(salu(f"s_lshl_b32 s51, s{S_H}, 14")); a(salu(f"s_add_u32 s{S_RLD}, s50, s51"))
    a(salu(f"s_mul_i32 s50, s{S_G}, {14*64}"))
    a(salu(f"s_lshl_b32 s51, s{S_W}, 4"))
    a(salu(f"s_add_u32 s{S_FPW}, s50, s51")); a(salu(f"s_add_u32 s{S_FPW}, s{S_FPW}, s{S_H}"))
    a(salu(f"s_add_u32 s{S_FCR}, s50, s51")); a(salu(f"s_add_u32 s{S_FCR}, s{S_FCR}, {CONS_OFF}"))
    a(salu(f"s_lshr_b32 s51, s{S_H}, 2")); a(salu(f"s_lshl_b32 s51, s51, 4"))
    a(salu(f"s_add_u32 s{S_FPR}, s50, s51"))
    a(salu(f"s_lshl_b32 s51, s{S_H}, 2")); a(salu(f"s_add_u32 s{S_FCW}, s50, s51"))
    a(salu(f"s_add_u32 s{S_FCW}, s{S_FCW}, s{S_W}")); a(salu(f"s_add_u32 s{S_FCW}, s{S_FCW}, {CONS_OFF}"))
    return o
def ring_setup():
    o = []; a = o.append
    L = f"v{V_LANE}"
    a(valu(f"v_and_b32 v{V_FLA}, 3, {L}", [L], [f"v{V_FLA}"])); a(valu(f"v_lshlrev_b32 v{V_FLA}, 2, v{V_FLA}", [f"v{V_FLA}"], [f"v{V_FLA}"]))
    a(valu(f"v_mov_b32 v{V_FLAG1}, 1", [], [f"v{V_FLAG1}"]))
    a(valu(f"v_and_b32 v1, 15, {L}", [L], ["v1"])); a(valu(f"v_lshrrev_b32 v2, 4, {L}", [L], ["v2"]))
    a(valu(f"v_lshlrev_b32 v{V_RLD4}, 10, v2", ["v2"], [f"v{V_RLD4}"])); a(valu(f"v_lshl_add_u32 v{V_RLD4}, v1, 4, v{V_RLD4}", ["v1", f"v{V_RLD4}"], [f"v{V_RLD4}"]))
    a(salu(f"s_lshl_b32 s{S_T1}, s{S_W}, 8")); a(valu(f"v_add_u32 v{V_RLD4}, s{S_T1}, v{V_RLD4}", [f"v{V_RLD4}"], [f"v{V_RLD4}"]))
    a(valu("v_and_b32 v4, 1, v1", ["v1"], ["v4"])); a(valu("v_lshlrev_b32 v4, 4, v4", ["v4"], ["v4"]))
    a(valu("v_mov_b32 v5, 0x3f80", [], ["v5"])); a(valu("v_lshlrev_b32 v5, v4, v5", ["v4", "v5"], ["v5"]))
    a(valu("v_lshrrev_b32 v4, 1, v1", ["v1"], ["v4"]))
    for r in range(4):
        a(valu(f"v_cmp_eq_u32 vcc, {r}, v4", ["v4"], ["vcc"])); a(nop(1))
        a(valu("v_cndmask_b32 v52, 0, v5, vcc", ["v5", "vcc"], ["v52"]))
        a(valu(f"v_accvgpr_write_b32 a{A_SEL4+r}, v52", ["v52"], [f"a{A_SEL4+r}"]))
    a(salu(f"s_lshl_b32 s{S_T0}, s{S_B}, 8")); a(salu(f"s_lshl_b32 s{S_T1}, s{S_H}, 4")); a(salu(f"s_add_u32 s{S_T0}, s{S_T0}, s{S_T1}"))
    a(valu(f"v_add_u32 v{V_OUT4}, s{S_T0}, v1", ["v1"], [f"v{V_OUT4}"])); a(valu(f"v_mul_u32_u24 v{V_OUT4}, 896, v{V_OUT4}", [f"v{V_OUT4}"], [f"v{V_OUT4}"]))
    a(salu(f"s_mul_i32 s{S_T0}, s{S_BR}, 448")); a(salu(f"s_lshl_b32 s{S_T1}, s{S_W}, 2")); a(salu(f"s_add_u32 s{S_T0}, s{S_T0}, s{S_T1}"))
    a(valu(f"v_add_u32 v{V_OUT4}, s{S_T0}, v{V_OUT4}", [f"v{V_OUT4}"], [f"v{V_OUT4}"]))
    a(valu(f"v_lshl_add_u32 v{V_OUT4}, v2, 4, v{V_OUT4}", ["v2", f"v{V_OUT4}"], [f"v{V_OUT4}"]))
    a(valu(f"v_lshlrev_b32 v{V_OUT4}, 1, v{V_OUT4}", [f"v{V_OUT4}"], [f"v{V_OUT4}"]))
    a(valu("v_cmp_gt_u32 vcc, 2, v2", ["v2"], ["vcc"])); a(salu(f"s_mov_b32 s{S_T0}, 0x7ff00000")); a(valu(f"v_mov_b32 v4, s{S_T0}", [], ["v4"]))
    a(valu(f"v_cndmask_b32 v{V_OUT4}, v4, v{V_OUT4}, vcc", ["v4", f"v{V_OUT4}", "vcc"], [f"v{V_OUT4}"]))
    return o

def flag_store(base, u, tg):
    return [salu(f"s_add_u32 s55, s{base}, {u*64}", [f"s{base}"], ["s55"])], \
           tag(I(f"buffer_store_byte v{V_FLAG1}, v{V_ZERO}, s[{S_FL}:{S_FL+3}], s55 offen", "vst", [f"v{V_FLAG1}", f"v{V_ZERO}", "s55"], data=[]), tg)
def flag_poll(base, u, dst, tg):
    return [salu(f"s_add_u32 s54, s{base}, {u*64}", [f"s{base}"], ["s54"])], tag(bload(dst, 1, V_FLA, S_FL, "s54", 0, "sc1"), tg)
def flag_check(base, u, dst, tg, name):
    OOL.extend([label(f"L_{name}_spin"), salu(f"s_add_u32 s54, s{base}, {u*64}"), salu(f"s_mov_b32 s{S_SPIN}, {SPIN_MAX}"),
                label(f"L_{name}_again"),
                salu(f"s_sub_u32 s{S_SPIN}, s{S_SPIN}, 1"), salu(f"s_cmp_eq_u32 s{S_SPIN}, 0"), raw(f"s_cbranch_scc1 L_{name}_ok", "branch"),
                raw(f"buffer_load_dword v{dst}, v{V_FLA}, s[{S_FL}:{S_FL+3}], s54 offen sc1", "salu"), wait_vm(0),
                valu(f"v_cmp_ne_u32 vcc, 0x01010101, v{dst}", [], []), nop(0),
                raw(f"s_cbranch_vccnz L_{name}_again", "branch"), raw(f"s_branch L_{name}_ok", "branch")])
    dd = (lambda n: stamp("d_" + n)) if name in (f"prod{OPT.p3detail}", f"cons{OPT.p3detail}") else (lambda n: [])
    return dd(name[:4] + "A") + [wait_tag(tg)] + dd(name[:4] + "B") + [valu(f"v_cmp_ne_u32 vcc, 0x01010101, v{dst}", [f"v{dst}"], ["vcc"]), nop(0),
            raw(f"s_cbranch_vccnz L_{name}_spin", "branch"), label(f"L_{name}_ok")] + dd(name[:4] + "C")
V_PP, V_PC = 53, 54
def ring_loads(u):
    out = []
    for i in range(4):
        sr = "s52" if i % 2 == 0 else "s53"
        out.append(([salu(f"s_add_u32 {sr}, s{S_RLD}, {(u % OPT.ring)*262144 + i*4096}", [f"s{S_RLD}"], [sr])],
                    tag(bload_f("a", A_RING + 16 * (u & 1) + 4 * i, 4, V_RLD4, S_RG, sr, 0, "sc1"), f"rl{u}")))
    return out
def ring_mfmas(u):
    d = V_RD + 4 * (u & 1)
    return [mfma("v", d, "a", A_SEL4, "a", A_RING + 16 * (u & 1) + 4 * i, None if i == 0 else "v", None if i == 0 else d) for i in range(4)]
def ring_out(u):
    d = V_RD + 4 * (u & 1)
    return [valu(f"v_cvt_pk_bf16_f32 v{d}, v{d}, v{d+1}", [f"v{d}", f"v{d+1}"], [f"v{d}"]),
            valu(f"v_cvt_pk_bf16_f32 v{d+1}, v{d+2}, v{d+3}", [f"v{d+2}", f"v{d+3}"], [f"v{d+1}"])], tag(bstore(d, 2, V_OUT4, S_OUT, "0", u * 64, OPT.out_flags), f"out{u}")

def p3_stream(local, carried):
    o = []; a = o.append
    NS, D = OPT.ring, OPT.prod_delay
    Q = lambda u: 8 * u + 7
    if OPT.tmpl == 0:
        T = dict(st=[0, 1, 2, 3], sig=(7, 5), poll=(12, 5), chk=(15, 7), ld=[(16, 7), (17, 7), (18, 7), (19, 7)], csig=(22, 3), out=(30, 5),
                 cpoll=(-4, 3), cchk=(-1, 3), wo=[(-4, 7), (-3, 3), (-3, 7), (-2, 7)], va=((0, 85), (1, 61), (2, 69), (3, 101)))
    else:
        T = dict(st=[0, 2, 4, 5], sig=(8, 5), poll=(13, 7), chk=(16, 7), ld=[(17, 3), (17, 7), (19, 3), (19, 7)], csig=(22, 3), out=(30, 5),
                 cpoll=(-4, 7), cchk=(-1, 3), wo=[(-6, 7), (-2, 7), (-1, 5), (-1, 7)], va=((0, 85), (1, 37), (2, 69), (3, 101)))
    ins = {}
    if local:
        for u in range(14):
            m = 8 * (Q(u) + 22 + D) - 1
            if m < 895: ins[m] = u
    ms = []; pos = {}; redpos = {}
    for m in range(896):
        j, i = m >> 7, m & 127
        nb, qb, s_ = i >> 5, (i >> 3) & 3, i & 7
        acc = V_ACC3 + 4 * ((nb * 4 + qb) % 8)
        pos[m] = len(ms)
        ms.append(mfma("v", acc, "a", A_FR3 + 4 * (8 * (nb & 1) + s_), "v", V_Q + (qb * 8 + s_) * 4,
                       None if s_ == 0 else "v", None if s_ == 0 else acc))
        if m in ins:
            u = ins[m]; redpos[u] = len(ms); ms += ring_mfmas(u)
    g = Gaps(ms); N = g.n
    P = lambda j, i: pos[128 * j + i]
    def G(period, off):
        m = 8 * period + off
        return pos[m] if 0 <= m < 896 else None
    for j in range(7):
        for nb in range(4):
            jn, nbn = (j, nb + 1) if nb < 3 else (j + 1, 0)
            if jn > 6: continue
            for s_ in range(8):
                for jj in range(2): g.put_mem(P(j, 32 * nb + 4 * s_ + 2 * jj), wo_read(nbn, s_, jj))
    cons = []
    for j in range(7):
        for nb in range(4):
            for s_ in (0, 2, 4, 6): cons.append((P(j, 32 * nb + s_), R("a", A_FR3 + 4 * (8 * (nb & 1) + s_), 8)))
    cons.sort()
    def put_vm(k, sc, d):
        assert g.mem[k] is None and not g.post[k], (k, d.text)
        for n, x in enumerate(reversed(sc)):
            kk = k - 1 - n
            assert kk >= 0
            assert not (g.mem[kk] is not None and g.mem[kk].kind == "dma" and "m0" in x.wr)
            g.pre[kk].append(x)
        g.mem[k] = d
    def put_seq(k, seq):
        assert g.mem[k] is None and not g.post[k], k
        g.post[k] = seq
    for j in range(6):
        need = not (OPT.wo_stage and j + 1 >= 5)
        if OPT.stagger:
            sfx = "l" if local else "f"
            for w in range(4):
                k = P(j, 94 - OPT.stagger * (3 - w))
                wt = []
                if need:
                    x = wait_tag(f"wo{j+1}"); x.meta["pseudo"] = True
                    if w < 3: x.meta["notrim"] = True
                    wt = [x]
                g.pre[k] += [salu(f"s_bitcmp1_b32 s{S_WM}, {w}", [], ["scc"]), raw(f"s_cbranch_scc1 L_bar{sfx}{j}_{w}", "branch")] + wt + [label(f"L_barret{sfx}{j}_{w}")]
                OOL_LATE.append((f"L_bar{sfx}{j}_{w}", wt, f"L_barret{sfx}{j}_{w}"))
        else:
            k = P(j, 91)
            g.pre[k] += ([wait_tag(f"wo{j+1}")] if need else []) + [barrier()]
        sh = va_shift(WOBUF[j + 1] - WOBUF[j])
        for n, at in T['va']:
            kk = P(j, at); g.vec[kk].append(sh[n])
    if OPT.wo_stage:
        items = wo_dma(4) + wo_stage_loads(5) + wo_stage_loads(6)
        slots = [(0, 3), (0, 5), (0, 7), (1, 1), (1, 3), (1, 5), (1, 7)] + [(per, off) for per in range(2, 7) for off in (3, 5, 7)] + [(7, 5), (7, 7)]
        if OPT.tmpl == 1:
            slots = [(0, 3), (0, 5), (0, 7), (1, 1), (1, 3), (1, 5), (1, 7)] + [(per, off) for per in range(2, 7) for off in (3, 5, 7)] + [(7, 5), (7, 7)]
        for (sc, d), (per, off) in zip(items, slots): put_vm(G(per, off), sc, d)
        for j in (5, 6):
            jj_ = j - 3
            g.vec[P(jj_, 1)].insert(0, valu(f"v_add_u32 v{V_WOW}, {(WOBUF[j] - (WOBUF[j-1] if j == 6 else 0)) & 0xffffffff}, v{V_WOW}", [f"v{V_WOW}"], [f"v{V_WOW}"]))
            for i in range(8):
                u0 = 2 * jj_ + (i >> 2)
                per, off = Q(u0) + T['wo'][i & 3][0], T['wo'][i & 3][1]
                k = G(per, off)
                assert g.mem[k] is None
                g.mem[k] = wo_stage_write(j, i)
            u1 = 2 * jj_
            g.pre[G(Q(u1) + T['wo'][0][0], T['wo'][0][1]) - 1].append(wait_tag(f"wos{j}"))
    else:
      for j in (2, 3):
        items = wo_dma(j + 3)
        for n, (sc, d) in enumerate(items):
            u0 = 2 * j + (n >> 2)
            per, off = Q(u0) + T['wo'][n & 3][0], T['wo'][n & 3][1]
            put_vm(G(per, off), sc, d)
    lead = add_lgkm_waits(g, cons, carried)
    stores = {}; sgap = {}
    for u in range(14):
        j, nb = u >> 1, 2 * (u & 1) + 1
        for qb in range(4):
            sreg = S_T2 + (qb & 1)
            if local:
                st = ([salu(f"s_add_u32 s{sreg}, s{S_RST}, {(u % NS)*262144 + qb*16384}", [f"s{S_RST}"], [f"s{sreg}"])],
                      tag(bstore(V_STG + 4 * qb, 4, V_STO, S_RG, f"s{sreg}", 0, OPT.last_st if u >= 14 - NS else ""), f"st{u}"))
            else:
                so = j * 16 * 16 * 2048 + qb * 16 * 2048 + (nb >> 1) * 1024
                st = ([salu(f"s_add_u32 s{sreg}, s{S_PART}, {so}", [f"s{S_PART}"], [f"s{sreg}"])],
                      tag(bstore(V_STG + 4 * qb, 4, V_STO, S_WS, f"s{sreg}", 0), f"st{u}"))
            stores[(u, qb)] = st
            k = G(Q(u) + T['st'][qb], 3)
            sgap[(u, qb)] = k
            if k is not None: put_vm(k, *st)
    done = {}; out_left = []
    if local:
        for u in range(14):
            dd = (lambda n: stamp("d_" + n)) if u == OPT.p3detail else (lambda n: [])
            if u >= NS:
                kp, kc = G(Q(u) + T['cpoll'][0], T['cpoll'][1]), G(Q(u) + T['cchk'][0], T['cchk'][1])
                put_vm(kp, *flag_poll(S_FCR, u - NS, V_PC, f"pc{u}"))
                put_seq(kc, flag_check(S_FCR, u - NS, V_PC, f"pc{u}", f"cons{u}"))
            done[u] = "sig"
            k = G(Q(u) + T['sig'][0], T['sig'][1])
            if k is None or sgap[(u, 3)] is None: continue
            sc, d = flag_store(S_FPW, u, f"sig{u}")
            g.pre[k - 1] += dd("sigA") + [wait_tag(f"st{u}")] + dd("sigB"); put_vm(k, sc, d)
            done[u] = "poll"
            k = G(Q(u) + T['poll'][0] + D, T['poll'][1])
            if k is None: continue
            put_vm(k, *flag_poll(S_FPR, u, V_PP, f"pp{u}"))
            done[u] = "check"
            k = G(Q(u) + T['chk'][0] + D, T['chk'][1])
            if k is None: continue
            put_seq(k, flag_check(S_FPR, u, V_PP, f"pp{u}", f"prod{u}"))
            done[u] = "loads"
            if u not in redpos: continue
            for n, (sc, d) in enumerate(ring_loads(u)): put_vm(G(Q(u) + T['ld'][n][0] + D, T['ld'][n][1]), sc, d)
            g.pre[redpos[u] - 1] += dd("rlA") + [wait_tag(f"rl{u}")] + dd("rlB")
            if u <= 13 - NS: put_vm(G(Q(u) + T['csig'][0] + D, T['csig'][1]), *flag_store(S_FCW, u, f"csig{u}"))
            done[u] = "out"
            cv, st = ring_out(u)
            if u + 1 in redpos:
                g.vec[redpos[u + 1]] += cv
                put_vm(G(Q(u) + T['out'][0] + D, T['out'][1]), [], st)
                done[u] = "all"
    tail_main = []
    for p in range(112):
        j, nb, qb = p >> 4, (p >> 2) & 3, p & 3
        ops = part_ops(nb, qb)
        slots = [G(p + 2, 0), G(p + 2, 1), G(p + 2, 1), G(p + 2, 2), G(p + 2, 4), G(p + 2, 6)]
        if slots[0] is None:
            tail_main += ops
        else:
            for x, k in zip(ops, slots): g.vec[k].append(x)
        if nb & 1:
            u = 2 * j + (nb >> 1)
            if sgap[(u, qb)] is None: tail_main += stores[(u, qb)][0] + [nop(1), stores[(u, qb)][1]]
    if OPT.p3_tiles and local:
        for j in range(1, 7): g.pre[P(j, 0)] = stamp(f"tile{j}") + g.pre[P(j, 0)]
    if lead is not None: a(lead)
    em = g.emit()
    if "allst" in OPT.p3_drop: em = [x for x in em if x.kind != "vst"]
    if "pst" in OPT.p3_drop: em = [x for x in em if not (x.kind == "vst" and x.meta.get("tag", "").startswith("st"))]
    if "nospin" in OPT.p3_drop: em = [x for x in em if not (x.kind == "branch" and "vccnz" in x.text)]
    if "novm" in OPT.p3_drop: em = [x for x in em if not (x.kind == "wait" and "vmtags" in x.meta and not x.meta["vmtags"][0].startswith("wo"))]
    if "nold" in OPT.p3_drop: em = [x for x in em if not (x.kind == "vld" and x.meta.get("tag", "").startswith("rl"))]
    o += stamp("p3_stream_start") if (local or not OPT.fused) else []
    o += em
    if local or not OPT.fused: o += stamp("p3_mfma_end")
    a(nop(7)); o += exposed(tail_main)
    if local:
        todo = [u for u in range(14) if done[u] != "all"]
        LD = lambda u: [x for sc, d in ring_loads(u) for x in sc + [d]]
        POLL = lambda u: (lambda p: p[0] + [p[1]])(flag_poll(S_FPR, u, V_PP, f"pp{u}"))
        CHK = lambda u: flag_check(S_FPR, u, V_PP, f"pp{u}", f"prod{u}")
        SIG = lambda u: (lambda p: [wait_tag(f"st{u}")] + p[0] + [p[1]])(flag_store(S_FPW, u, f"sig{u}"))
        OUT = lambda u: (lambda p: p[0] + [p[1]])(ring_out(u))
        if OPT.tail2 and [done[u] for u in todo] == ["out", "loads", "poll", "sig"] and todo == [10, 11, 12, 13]:
            o += LD(11) + POLL(12) + SIG(13) + stamp("x_last_signal") + OUT(10)
            o += CHK(12) + LD(12) + [wait_tag("rl11")] + ring_mfmas(11)
            o += POLL(13) + CHK(13) + LD(13)
            o += [wait_tag("rl12")] + ring_mfmas(12) + [nop(3)] + OUT(11)
            o += [wait_tag("rl13")] + ring_mfmas(13) + [nop(3)] + OUT(12) + [nop(7)] + OUT(13)
        else:
            for u in todo:
                if done[u] == "sig": o += SIG(u)
            o += stamp("x_last_signal")
            for u in todo:
                if done[u] != "out":
                    if done[u] in ("sig", "poll"): o += POLL(u)
                    if done[u] in ("sig", "poll", "check"): o += CHK(u)
                    o += LD(u) + [wait_tag(f"rl{u}")] + ring_mfmas(u) + [nop(7)]
                o += OUT(u)
    return o

def phase3():
    o = []; a = o.append
    a(label("L_p3_entry"))
    a(wait_tag("wt", "wo0")); a(raw("s_waitcnt lgkmcnt(0)", "wait", lgkm=0)); a(barrier())
    a(valu(f"v_mov_b32 v1, {L_VOTE}", [], ["v1"]))
    a(ds_read128("v", V_SP, 1, 0)); a(wait_lgkm(0))
    a(valu(f"v_or3_b32 v{V_SP}, v{V_SP}, v{V_SP+1}, v{V_SP+2}", R("v", V_SP, 3), [f"v{V_SP}"]))
    a(valu(f"v_or_b32 v{V_SP}, v{V_SP}, v{V_SP+3}", [f"v{V_SP}", f"v{V_SP+3}"], [f"v{V_SP}"])); a(nop(0))
    a(valu(f"v_readfirstlane_b32 s50, v{V_SP}", [f"v{V_SP}"], ["s50"])); a(nop(3))
    a(salu(f"s_cmp_eq_u32 s{S_SAFE}, 0")); a(salu("s_cselect_b32 s50, s50, 0"))
    a(salu("s_cmp_lg_u32 s50, 0")); a(raw("s_cbranch_scc1 L_restart", "branch"))
    OOL.extend([label("L_restart"), wait_vm(0), raw("s_waitcnt lgkmcnt(0)", "wait", lgkm=0), barrier(),
                salu(f"s_mov_b32 s{S_SAFE}, 1"), raw("s_branch L_again", "branch")])
    o += p3_setup()
    if OPT.stagger: o += [salu(f"s_lshl_b32 s{S_WM}, 1, s{S_W}")]
    if OPT.fused: o += ring_setup()
    o += va_shift(WOBUF[0] - L_V)
    if OPT.fused: o += mode_check()
    carried = []
    for s_ in range(8):
        for jj in range(2):
            r = wo_read(0, s_, jj); a(r); carried.append(r.wr)
            if len(carried) == 14: a(wait_lgkm(6)); carried = carried[-6:]
    a(barrier())
    if OPT.wo_stage:
        a(valu(f"v_lshlrev_b32 v{V_WOW}, 4, v{V_LANE}", [f"v{V_LANE}"], [f"v{V_WOW}"]))
        a(valu(f"v_add_u32 v{V_WOW}, s{S_W1K}, v{V_WOW}", [f"v{V_WOW}"], [f"v{V_WOW}"]))
    else:
        for sc, d in wo_dma(4): o += sc + [nop(0), d]
    if not OPT.fused:
        return o, p3_stream(False, carried) + stamp("p3_end") + ([wait_vm(0)] if OPT.stamps else []) + stamp("rt_end"), []
    o += [salu(f"s_cmp_eq_u32 s{S_LOCM}, 0"), raw("s_cbranch_scc1 L_p3_far", "branch")]
    loc = p3_stream(True, carried)
    loc += stamp("p3_end") + ([wait_vm(0)] if OPT.stamps else []) + stamp("rt_end")
    far = [label("L_p3_far")] + far_setup() + p3_stream(False, carried) + handoff_far()
    for j in range(7):
        for sc, d in red_loads(j): far += sc + [d]
    for j in range(7):
        far.append(wait_tag(f"rl{j}"))
        far += red_mfmas(j)
        if j > 0:
            cv, stt = red_out(j - 1); far += cv + [stt]
    far.append(nop(7))
    cv, stt = red_out(6); far += cv + [stt]
    far += [wait_vm(0), raw("s_endpgm", "branch")]
    return o, loc, far

def dump_regs(base, n, agpr=False):
    o = [wait_vm(0), raw("s_waitcnt lgkmcnt(0)", "wait", lgkm=0), nop(7), nop(7),
         salu(f"s_lshl_b32 s{S_T0}, s2, 2"), salu(f"s_add_u32 s{S_T0}, s{S_T0}, s{S_W}"),
         salu(f"s_mul_i32 s{S_T0}, s{S_T0}, {n*256}"), valu(f"v_lshlrev_b32 v1, 2, v{V_LANE}", [f"v{V_LANE}"], ["v1"])]
    for r in range(n):
        if agpr:
            o.append(valu(f"v_accvgpr_read_b32 v2, a{base+r}", [f"a{base+r}"], ["v2"])); o.append(bstore(2, 1, 1, S_WS, f"s{S_T0}", 0))
        else:
            o.append(bstore(base + r, 1, 1, S_WS, f"s{S_T0}", 0))
        o.append(salu(f"s_add_u32 s{S_T0}, s{S_T0}, 256"))
        if r % 32 == 31 or agpr: o.append(wait_vm(0))
    return o

def stamp_out():
    if not OPT.stamps: return []
    if OPT.dma_stamps: STAMPS[:] = [f"dma{i}" for i in range(10)] + ["loopcyc"]
    if OPT.bar_stamps: STAMPS.extend(["acc_vm", "acc_bar"])
    n = len(STAMPS)
    o = [raw("s_waitcnt lgkmcnt(0)", "wait", lgkm=0), salu(f"s_cmp_lg_u32 s{S_W}, 0"), raw("s_cbranch_scc1 L_nostamp", "branch")]
    if OPT.stamp_dbg >= 0:
        o += [salu(f"s_cmp_lg_u32 s2, {OPT.stamp_dbg}"), raw("s_cbranch_scc1 L_nostamp", "branch")]
        o += [salu("s_load_dwordx2 s[36:37], s[0:1], 88"), raw("s_waitcnt lgkmcnt(0)", "wait", lgkm=0)]
        o += [salu(f"s_mov_b32 s{S_WS}, s36"), salu(f"s_mov_b32 s{S_WS+1}, s37"), salu(f"s_mov_b32 s{S_WS+2}, 256"), salu(f"s_mov_b32 s{S_T0}, 0")]
    else:
        o.append(salu(f"s_mul_i32 s{S_T0}, s2, 64")); o.append(salu(f"s_add_u32 s{S_T0}, s{S_T0}, {STAMP_OFF}"))
        o.append(salu(f"s_mov_b32 s{S_WS+2}, {STAMP_OFF + 256*64}"))
    o.append(valu("v_mov_b32 v1, 0", [], ["v1"]))
    for k in range(n):
        if OPT.stamp_dbg >= 0:
            ref = 0 if STAMPS[k].startswith("rt") else 1
            o.append(salu(f"s_sub_u32 s{S_T1}, s{S_STAMP+2*k}, s{S_STAMP+2*ref}"))
            o.append(valu(f"v_mov_b32 v2, s{S_T1}", [], ["v2"]))
        elif STAMPS[k] == "loopcyc": o.append(valu("v_mov_b32 v2, s100", [], ["v2"]))
        elif STAMPS[k] == "acc_vm": o.append(valu("v_mov_b32 v2, s92", [], ["v2"]))
        elif STAMPS[k] == "acc_bar": o.append(valu("v_mov_b32 v2, s93", [], ["v2"]))
        else:
            o.append(valu(f"v_mov_b32 v2, s{S_STAMP+2*k}", [], ["v2"]))
        o.append(bstore(2, 1, 1, S_WS, f"s{S_T0}", 4 * k)); o.append(wait_vm(0))
    o.append(label("L_nostamp"))
    return o

def finish(): return [wait_vm(0), label("L_end"), raw("s_endpgm", "branch")]

def trip_seq(ex):
    return [raw("s_memtime s[98:99]", "salu"), raw("s_memrealtime s[100:101]", "salu"), raw("s_waitcnt lgkmcnt(0)", "wait", lgkm=0),
            salu(f"s_mov_b32 s99, m0"), salu(f"s_mov_b32 m0, s{S_LOOP}"), nop(0), valu(f"v_writelane_b32 v1, s98, m0", ["s98"], ["v1"]),
            salu(f"s_add_u32 m0, s{S_LOOP}, 8"), nop(0), valu(f"v_writelane_b32 v1, s100, m0", ["s100"], ["v1"]),
            salu("s_mov_b32 m0, s99"), salu(f"s_cmp_lg_u32 s{S_LOOP}, {ex}")]
def build(debug=None):
    _stamp_n[0] = 0; STAMPS.clear(); OOL.clear(); OOL_LATE.clear()
    pre = setup() + phase1()
    if debug == "p1":
        pre += stamp("rt_end")
        resolve_vm(pre, [])
        return pre + stamp_out() + finish()
    if debug == "q":
        resolve_vm(pre, []); check(pre, "pre")
        return pre + dump_regs(V_Q, 128) + finish()
    if OPT.dma_mode == "cluster":
        OPT.dma_gaps = ([21, 23, 25, 27], [101, 103, 105, 107]); OPT.nv_prev = 0
    elif OPT.dma_mode == "cluster2":
        OPT.dma_gaps = ([41, 43, 47, 49], [101, 103, 105, 107]); OPT.nv_prev = 0
    NCUR = len(OPT.dma_gaps[1])
    pre += [salu(f"s_cmp_lg_u32 s{S_SAFE}, 0"), raw("s_cbranch_scc1 L_safe_attn", "branch")]
    p, carried = pre_iter(); pre += p
    def batch(t):
        return dma_tile("V", vslot(t + 3), f"s{S_VOFF}", f"V{t+3}") + dma_tile("K", kslot(t + 5), f"s{S_KOFF}", f"K{t+5}")
    pre += wo_setup()
    if OPT.fused: pre += grp_setup()
    def ex0(g, kb):
        put_wo(g, 0, 3, kb, step=8)
    vf0 = OPT.vfirst
    if OPT.early_trips: OPT.vfirst = OPT.vfirst_early
    s0, carried = attn_iter(0, carried, wait_tag("V1", "K2"), [], batch(0)[:NCUR], first=True, adv=False, extra=ex0)
    OPT.vfirst = vf0
    pre += s0
    pre.append(salu(f"s_mov_b32 s{S_LOOP}, 7"))
    if OPT.bar_stamps: pre += [salu("s_mov_b32 s92, 0"), salu("s_mov_b32 s93, 0")]
    pre += stamp("loop_start") + (stamp("rt_ls") if (OPT.bar_stamps or OPT.trip_stamps) else [])
    def loop_body(name):
        nonlocal carried
        lp = [label(name)]
        for u in range(4):
            t = 1 + u
            s, carried = attn_iter(t, carried, wait_vm(12), batch(t - 1)[NCUR:], batch(t)[:NCUR], loopctl=(u == 3), loop_body=True)
            if OPT.dma_stamps and u == 1:
                s2 = []; n = 0
                for x in s:
                    if x.kind == "dma" and n < 5:
                        s2 += [raw(f"s_memtime s[{80+4*n}:{81+4*n}]", "salu"), x, raw(f"s_memtime s[{82+4*n}:{83+4*n}]", "salu")]; n += 1
                    else: s2.append(x)
                s = s2
            lp += s
        return lp
    first_loop = []
    if OPT.early_trips:
        vf = OPT.vfirst; OPT.vfirst = OPT.vfirst_early
        pd = OPT.pad_iter; OPT.pad_iter = OPT.pad_early
        vl = OPT.v_lead; OPT.v_lead = OPT.v_lead_early
        OPT.loop_exit = 7 - OPT.early_trips
        first_loop = loop_body("L_attn_early") + (trip_seq(OPT.loop_exit) if OPT.trip_stamps else []) + [raw("s_cbranch_scc1 L_attn_early", "branch")]
        OPT.vfirst = vf; OPT.loop_exit = 0; OPT.pad_iter = pd; OPT.v_lead = vl
    loop = loop_body("L_attn")
    if OPT.trip_stamps: loop += trip_seq(0)
    if OPT.loop_nodma: loop = [x for x in loop if x.kind != "dma"]
    if OPT.loop_nods: loop = [x for x in loop if x.kind != "ds" and not (x.kind == "wait" and "lgkm" in x.meta and x.meta["lgkm"] > 0)]
    if OPT.loop_nomfma: loop = [(nop(1) if x.kind == "mfma" else x) for x in loop]
    if OPT.loop_novalu: loop = [x for x in loop if x.kind not in ("valu", "trans")]
    if OPT.loop_dma_every > 1:
        cnt = [0]
        def keep(x):
            if x.kind != "dma": return True
            cnt[0] += 1
            return cnt[0] % OPT.loop_dma_every == 0
        loop = [x for x in loop if keep(x)]
    loop.append(raw("s_cbranch_scc1 L_attn", "branch"))
    post = stamp("loop_end") + (stamp("rt_le") if OPT.bar_stamps else [])
    if OPT.trip_stamps:
        post += [valu(f"v_lshlrev_b32 v2, 2, v{V_LANE}", [], ["v2"]), salu(f"s_mul_i32 s{S_T1}, s2, 64"),
                 salu(f"s_add_u32 s{S_T1}, s{S_T1}, {STAMP_OFF + 256*64}"), salu(f"s_mov_b32 s{S_WS+2}, {STAMP_OFF + 2*256*64}"),
                 valu("v_cmp_gt_u32 vcc, 16, v0", ["v0"], ["vcc"]), salu(f"s_cmp_eq_u32 s{S_W}, 0"), raw("s_cselect_b64 s[50:51], vcc, 0", "salu"),
                 raw("s_mov_b64 s[54:55], exec", "salu"), raw("s_mov_b64 exec, s[50:51]", "salu"), raw("s_cbranch_execz L_notrip", "branch"),
                 raw(f"buffer_store_dword v1, v2, s[{S_WS}:{S_WS+3}], s{S_T1} offen", "salu"), wait_vm(0), label("L_notrip"), raw("s_mov_b64 exec, s[54:55]", "salu"), wait_vm(0)]
    def ex29(g, kb):
        if OPT.fused: place_vmem(g, 40, [], mode_load(), kb)
        gp = 50
        for j in OPT.wo_touch: gp = place_vmem(g, gp, [], wo_touch(j), kb) + 12
        if OPT.l2warm and OPT.fused:
            gp = 8
            for d in l2warm_loads(): gp = place_vmem(g, gp, [], d, kb) + 10
    post += wo_touch_setup()
    if OPT.l2warm and OPT.fused: post += l2warm_setup()
    s, carried = attn_iter(29, carried, wait_tag("V30", "K32"), batch(28)[NCUR:4], [], adv=False,
                           extra=ex29)
    post += s
    def ex30(g, kb):
        put_wo(g, 1, 3, kb, step=8)
        if OPT.fused:
            k = 2
            for x in ring_scalars(): k = put_scalar(g, k, x) + 1
    s, carried = attn_iter(30, carried, wait_tag("V31"), [], [], adv=False, extra=ex30)
    post += s
    post += last_iter(carried)
    post += stamp("attn_end")
    if debug == "o":
        tailq = dump_regs(V_Q, 128)
    elif debug == "l":
        tailq = dump_regs(V_L, 4)
    else:
        common, loc, far = phase3()
        tailq = common
    post += tailq
    q = resolve_vm(pre, [])
    qexit = ["V30"] * 4 + ["K32"] * 4 + ["V31"] * NCUR
    qb_ = resolve_vm(post, qexit)
    if debug is None:
        resolve_vm(loc, qb_); resolve_vm(far, qb_)
        if far and not OPT.p3_drop: check(loop[1:] + post + far[1:], "loop+post+far", init_lgkm=[x.wr for x in pre if x.kind == "ds"][-8:], init_vm=[[]] * (8 + NCUR))
        post = post + loc
        OOL.extend(far)
    if not (OPT.p1_nowait or OPT.p1_noread or OPT.p1_drop or OPT.loop_nodma or OPT.loop_dma_every > 1 or OPT.loop_nods or OPT.loop_nomfma or OPT.loop_novalu): check(pre + loop[1:] + loop[1:], "pre+loop")
    if not (OPT.p3_drop or OPT.loop_nodma or OPT.loop_dma_every > 1 or OPT.loop_nods or OPT.loop_nomfma or OPT.loop_novalu): check(loop[1:] + post, "loop+post", init_lgkm=[x.wr for x in pre if x.kind == "ds"][-8:], init_vm=[[]] * (8 + NCUR))
    for lab, wt, ret in OOL_LATE:
        OOL.append(label(lab))
        for x in wt: OOL.append(I(x.text, "wait", vm=x.meta["vm"]))
        OOL.extend([barrier(), raw(f"s_branch {ret}", "branch")])
    OOL.extend(safe_attn())
    if first_loop: check(pre + first_loop[1:] + first_loop[1:] + loop[1:], "pre+early+loop")
    return pre + first_loop + loop + post + stamp_out() + finish() + OOL

def reduce_kernel():
    o = []; a = o.append
    a(salu("s_cmp_ge_u32 s2, 256")); a(raw("s_cbranch_scc1 R_end", "branch"))
    a(salu("s_load_dwordx2 s[4:5], s[0:1], 80")); a(salu("s_load_dwordx2 s[6:7], s[0:1], 96"))
    a(valu("v_lshrrev_b32 v1, 6, v0", ["v0"], ["v1"])); a(valu("v_and_b32 v0, 63, v0", ["v0"], ["v0"]))
    a(valu("v_readfirstlane_b32 s32, v1", ["v1"], ["s32"]))
    a(salu("s_lshr_b32 s33, s2, 4")); a(salu("s_and_b32 s34, s2, 15"))
    a(salu("s_lshr_b32 s35, s33, 3")); a(salu("s_and_b32 s36, s33, 7"))
    a(salu("s_lshr_b32 s37, s32, 1")); a(salu("s_and_b32 s38, s32, 1"))
    a(valu("v_lshrrev_b32 v2, 5, v0", ["v0"], ["v2"])); a(valu("v_lshlrev_b32 v2, 11, v2", ["v2"], ["v2"]))
    a(valu("v_and_b32 v3, 31, v0", ["v0"], ["v3"])); a(valu("v_lshl_add_u32 v2, v3, 4, v2", ["v3", "v2"], ["v2"]))
    a(salu("s_lshl_b32 s39, s37, 10")); a(salu("s_lshl_b32 s40, s38, 9")); a(salu("s_add_u32 s39, s39, s40"))
    a(valu("v_add_u32 v2, s39, v2", ["v2"], ["v2"]))
    a(valu("v_and_b32 v8, 15, v0", ["v0"], ["v8"])); a(valu("v_lshrrev_b32 v9, 4, v0", ["v0"], ["v9"]))
    a(valu("v_lshrrev_b32 v10, 3, v8", ["v8"], ["v10"])); a(valu("v_and_b32 v11, 1, v9", ["v9"], ["v11"]))
    a(valu("v_and_b32 v12, 1, v8", ["v8"], ["v12"])); a(valu("v_lshlrev_b32 v12, 4, v12", ["v12"], ["v12"]))
    a(valu("v_mov_b32 v13, 0x3f80", [], ["v13"])); a(valu("v_lshlrev_b32 v13, v12, v13", ["v12", "v13"], ["v13"]))
    a(valu("v_cmp_eq_u32 vcc, v10, v11", ["v10", "v11"], ["vcc"])); a(nop(1))
    a(valu("v_cndmask_b32 v13, 0, v13, vcc", ["v13", "vcc"], ["v13"]))
    a(valu("v_bfe_u32 v14, v8, 1, 2", ["v8"], ["v14"]))
    for r in range(4):
        a(valu(f"v_cmp_eq_u32 vcc, {r}, v14", ["v14"], ["vcc"])); a(nop(1))
        a(valu(f"v_cndmask_b32 v{4+r}, 0, v13, vcc", ["v13", "vcc"], [f"v{4+r}"]))
    a(salu("s_lshl_b32 s41, s36, 8")); a(salu("s_lshl_b32 s42, s34, 4")); a(salu("s_add_u32 s41, s41, s42"))
    a(valu("v_add_u32 v3, s41, v8", ["v8"], ["v3"])); a(valu("v_mul_u32_u24 v3, 896, v3", ["v3"], ["v3"]))
    a(salu("s_mul_i32 s42, s35, 448")); a(salu("s_lshl_b32 s43, s37, 5")); a(salu("s_add_u32 s42, s42, s43"))
    a(salu("s_lshl_b32 s43, s38, 3")); a(salu("s_add_u32 s42, s42, s43"))
    a(valu("v_add_u32 v3, s42, v3", ["v3"], ["v3"]))
    a(valu("v_lshl_add_u32 v3, v11, 4, v3", ["v11", "v3"], ["v3"]))
    a(valu("v_lshrrev_b32 v10, 1, v9", ["v9"], ["v10"])); a(valu("v_lshl_add_u32 v3, v10, 2, v3", ["v10", "v3"], ["v3"]))
    a(valu("v_lshlrev_b32 v3, 1, v3", ["v3"], ["v3"]))
    a(raw("s_waitcnt lgkmcnt(0)", "wait", lgkm=0))
    for base, lo, size in ((8, 6, 16 * 7 * 16 * 16 * 2048), (12, 4, 8 * 256 * 896 * 2)):
        a(salu(f"s_mov_b32 s{base}, s{lo}")); a(salu(f"s_mov_b32 s{base+1}, s{lo+1}"))
        a(salu(f"s_mov_b32 s{base+2}, {size}")); a(salu(f"s_mov_b32 s{base+3}, 0x20000"))
    a(salu(f"s_mul_i32 s44, s33, {7*16*32768}")); a(salu("s_lshl_b32 s45, s34, 15")); a(salu("s_add_u32 s44, s44, s45"))
    for j in range(7):
        for i in range(8):
            a(salu(f"s_add_u32 s46, s44, {j*16*32768 + i*4096}"))
            a(tag(bload(16 + (j * 8 + i) * 4, 4, 2, 8, "s46", 0), f"p{j}"))
    for j in range(7):
        a(wait_tag(f"p{j}"))
        d = 240 + 4 * (j & 1)
        for i in range(8):
            a(mfma("v", d, "v", 4, "v", 16 + (j * 8 + i) * 4, None if i == 0 else "v", None if i == 0 else d))
        a(nop(7))
        a(valu(f"v_cvt_pk_bf16_f32 v{d}, v{d}, v{d+1}", [f"v{d}", f"v{d+1}"], [f"v{d}"]))
        a(valu(f"v_cvt_pk_bf16_f32 v{d+1}, v{d+2}, v{d+3}", [f"v{d+2}", f"v{d+3}"], [f"v{d+1}"]))
        a(tag(bstore(d, 2, 3, 12, "0", j * 128), "o"))
    resolve_vm(o, []); check(o, "reduce")
    if OPT.stamps and OPT.stamp_fwd >= 0:
        o += [wait_vm(0), salu("s_cmp_lg_u32 s2, 0"), raw("s_cbranch_scc1 R_end", "branch"),
              salu("s_load_dwordx2 s[20:21], s[0:1], 88"), raw("s_waitcnt lgkmcnt(0)", "wait", lgkm=0),
              salu("s_mov_b32 s16, s20"), salu("s_mov_b32 s17, s21"), salu("s_mov_b32 s18, 64"), salu("s_mov_b32 s19, 0x20000"),
              salu(f"s_mov_b32 s10, {16*7*16*16*2048 + 256*64}"), salu(f"s_mov_b32 s46, {16*7*16*16*2048} + 64*{OPT.stamp_fwd}"),
              valu("v_lshlrev_b32 v2, 2, v0", ["v0"], ["v2"]), bload(3, 1, 2, 8, "s46", 0), wait_vm(0), bstore(3, 1, 2, 16, "0", 0)]
    o += [wait_vm(0), label("R_end"), raw("s_endpgm", "branch")]
    return o

KD = """.section .rodata,"a"
.p2align 6
.amdhsa_kernel {name}
  .amdhsa_next_free_vgpr {vgpr}
  .amdhsa_next_free_sgpr 102
  .amdhsa_accum_offset 256
  .amdhsa_group_segment_fixed_size 0
  .amdhsa_kernarg_size 104
  .amdhsa_user_sgpr_count 2
  .amdhsa_user_sgpr_kernarg_segment_ptr 1
  .amdhsa_system_sgpr_workgroup_id_x 1
.end_amdhsa_kernel
"""
DESCRIPTION = """
; ---------------------------------------------------------------------------------------------------------------
; Two cached-attention blocks (A, B), concatenated on the last axis; one fused launch, 256 workgroups of 4 waves.
; Workgroup = (branch, batch, head); wave = 64 query rows.  All matrix work is v_mfma_f32_16x16x32_bf16 in the
; transposed form (lane = query row), so every result feeds the next product without a shuffle.
;   phase 1  Q^T = Wq^T x^T          Wq and x staged in LDS by LDS-DMA, 64 columns per step, fp32 in AGPRs -> bf16
;   phase 2  S^T = K Q^T, P = exp2(c S - c m), O^T += V^T P^T        32 keys per tile, 4+4 slot LDS ring, software
;            pipelined (QK of tile t+1 | PV of tile t), one barrier per tile.  m is the row maximum of the first tile;
;            the row sums are checked afterwards and a workgroup whose sums exceed 2^30 (or are NaN) repeats its work
;            with the exact running maximum and a rescale on every tile (L_restart / L_safe_attn).
;   phase 3  partial out^T = Wo_h^T O^T / l, bf16, exchanged between the 16 heads of a (branch, batch) and summed in
;            fp32 by an MFMA with a 0/1 selection matrix.  When the 16 workgroups report the same XCD the pieces go
;            through a small ring that stays in that XCD's L2 (byte flags, reset at the start of the launch);
;            otherwise (L_p3_far) they are released and acquired at device scope.
; d_debug: one byte per workgroup (arrived, XCD id, done).  d_ws: partial sums, flags, ring.
; ---------------------------------------------------------------------------------------------------------------
""".strip("\n").splitlines()

def header_comments():
    ref = open("cdna_kernels/" + NAME + ".s.ref").read().splitlines()
    out = []
    for l in ref:
        if l.startswith("; Override launch") or not l.startswith(";"): break
        out.append(l)
    return out

def stream_kernel():
    t = """
  s_cmp_ge_u32 s2, 256
  s_cbranch_scc1 S_end
  s_load_dwordx2 s[4:5], s[0:1], 8
  s_load_dwordx2 s[6:7], s[0:1], 96
  s_load_dwordx2 s[8:9], s[0:1], 48
  v_lshrrev_b32 v2, 6, v0
  s_nop 0
  v_readfirstlane_b32 s24, v2
  v_and_b32 v1, 63, v0
  v_lshlrev_b32 v14, 4, v1
  s_nop 2
  s_lshl_b32 s25, s24, 12
  v_add_u32 v14, s25, v14
  s_waitcnt lgkmcnt(0)
  s_cmp_lt_u32 s2, 128
  s_cselect_b32 s36, s4, s8
  s_cselect_b32 s37, s5, s9
  s_mov_b32 s38, 0x4000000
  s_mov_b32 s39, 0x20000
  s_and_b32 s32, s2, 127
  s_lshl_b32 s32, s32, 19
  s_barrier
  s_memrealtime s[12:13]
  s_mov_b32 s20, 0
S_loop:
  s_mov_b32 m0, s25
  s_nop 0
  buffer_load_dwordx4 v14, s[36:39], s32 offen nt lds
  buffer_load_dwordx4 v14, s[36:39], s32 offen offset:1024 nt lds
  buffer_load_dwordx4 v14, s[36:39], s32 offen offset:2048 nt lds
  buffer_load_dwordx4 v14, s[36:39], s32 offen offset:3072 nt lds
  s_add_u32 s32, s32, 16384
  s_waitcnt vmcnt(8)
  s_barrier
  s_add_u32 s20, s20, 1
  s_cmp_lt_u32 s20, 32
  s_cbranch_scc1 S_loop
  s_waitcnt vmcnt(0)
  s_barrier
  s_memrealtime s[16:17]
  s_waitcnt lgkmcnt(0)
  s_sub_u32 s16, s16, s12
  s_mov_b32 s40, s6
  s_mov_b32 s41, s7
  s_mov_b32 s42, %d
  s_mov_b32 s43, 0x20000
  s_mul_i32 s33, s2, 64
  s_add_u32 s33, s33, %d
  v_mov_b32 v2, s16
  v_mov_b32 v1, 0
  buffer_store_dword v2, v1, s[40:43], s33 offen
  s_waitcnt vmcnt(0)
S_end:
  s_endpgm""" % (16*7*16*16*2048 + 256*64, 16*7*16*16*2048 + 60)
    return t

def assemble_file(debug=None):
    main = build(debug)
    red = reduce_kernel()
    k1 = NAME + "_kernel"; k2 = "reduce_heads_kernel"
    L = header_comments()
    if OPT.stream0: L.append(f"; @launch kernel=stream_test_kernel grid=(256,1,1) block=(256,1,1) lds={LDS_BYTES}")
    if OPT.fused and not OPT.stream0:
        L.append(f"; @launch grid=(256,1,1) block=(256,1,1) lds={LDS_BYTES}")
    else:
        L.append(f"; @launch kernel={k1} grid=(256,1,1) block=(256,1,1) lds={LDS_BYTES}")
        if debug is None and not OPT.fused: L.append(f"; @launch kernel={k2} grid=(256,1,1) block=(256,1,1) lds=0")
    L += DESCRIPTION
    L.append('.amdgcn_target "amdgcn-amd-amdhsa--gfx950"')
    L.append(".text")
    for nm, body in ((k1, main), (k2, red)) if not OPT.fused else ((k1, main),):
        L += [f".globl {nm}", ".p2align 8", f".type {nm},@function", f"{nm}:", text(body)]
    if OPT.stream0: L += [".globl stream_test_kernel", ".p2align 8", ".type stream_test_kernel,@function", "stream_test_kernel:", stream_kernel()]
    L.append(KD.format(name=k1, vgpr=512))
    if not OPT.fused: L.append(KD.format(name=k2, vgpr=256))
    if OPT.stream0: L.append(KD.format(name="stream_test_kernel", vgpr=512))
    return "\n".join(L) + "\n"

if __name__ == "__main__":
    dbg = sys.argv[2] if len(sys.argv) > 2 and sys.argv[2] != "none" else None
    for kv in sys.argv[3:]:
        k, v = kv.split("=")
        v = v.replace("+", " ")
        setattr(OPT, k, {"True": True, "False": False, "()": ()}.get(v, int(v) if v.lstrip("-").isdigit() else (eval(v) if v.startswith("(") else v)))
    open(sys.argv[1], "w").write(assemble_file(dbg))
    print("stamps:", STAMPS)
```

```python
import math, struct, sys
from core import *

NAME = "concat_heads__mha_block_cached__mha_block_cached__near_ridge"
def f32bits(x): return struct.unpack("<I", struct.pack("<f", x))[0]
CSC = math.log2(math.e) / 16.0

S_X, S_WQ, S_K, S_V, S_WO, S_WS, S_OUT = 4, 8, 12, 16, 20, 24, 28
S_W, S_W1K = 32, 33
S_QB = ["0", "s34", "s35", "s62"]
S_C = 63
S_KOFF, S_VOFF = 64, 65
S_LOOP = 66
S_T0, S_T1, S_T2, S_T3 = 67, 68, 69, 70
S_G, S_H, S_B, S_BR = 71, 72, 73, 74
S_WOFF = 76
S_PART = 77
S_WCUR, S_WSTEP, S_XSTEP = 78, 79, 75
S_FL, S_DBG = 36, 40
S_LOCM = 44
S_RBASE, S_SIG, S_POLL, S_XCC = 46, 47, 48, 49
S_RG = 56
S_SPIN = 62
S_WARM = 34
S_SAFE = 3
S_ROT = 52
S_PFO = 53
S_RST, S_RLD, S_FPW, S_FPR, S_FCW, S_FCR = 60, 61, 75, 78, 79, 76
S_STAMP = 80
V_LANE = 0
V_KA = [4, 5]
V_VA = [6, 7, 8, 9]
V_DK, V_DV = 10, 11
V_L = 12
V_MC = 16
V_SP = 20
V_POOL = 32
V_S = 64
V_P = 96
V_Q = 128
V_XA = 20; V_DW = 21; V_WA = [[22, 23], [24, 25], [26, 27]]
V_CT = 28
V_ARR = 24
L_K = 0; L_V = 65536; L_X = 131072
def kslot(t): return L_K + 16384 * (t % 4)
def vslot(t): return L_V + 16384 * (t % 4)
LDS_BYTES = 163840
L_VOTE = L_V + 2 * 16384
L_LIMIT = 2.0 ** 30

PART_BYTES = 16 * 7 * 16 * 16 * 2048
FLAG_BYTES = 16 * 7 * 4 * 64
STAMP_OFF = PART_BYTES + 32768
RING_OFF = PART_BYTES + (1 << 20)
RING_BYTES = 32 << 20
CONS_OFF = 16384
SPIN_MAX = 1 << 19
class Opt:
    kv_flags = "nt"
    w_flags = ""
    x_flags = ""
    wo_flags = "nt"
    st_flags = ""
    stamps = False
    wo_half = False
    wo_touch30 = ()
    xwarm_order = 0
    stagger = 0
    codewarm_first = True
    codewarm = 16
    pad_early = 0
    v_lead = 20
    v_lead_early = 20
    l2warm = False
    kvspread = False
    tlbwarm = 3
    remap = 0
    tail2 = True
    tmpl = 1
    wo_stage = True
    p3_tiles = False
    early_trips = 0
    vfirst_early = 37
    loop_exit = 0
    xwarm = True
    kvmin = False
    vfirst = 37
    dma_stamps = False
    rot = 0
    pad_iter = 0
    last_st = 'nt'
    out_flags = ''
    coopw = False
    coopw_init = 2
    pf_flags = ''
    early_wb = 0
    wt_flags = ''
    prod_delay = 0
    ring = 4
    vm_space = 0
    p3_drop = ''
    wo_step = 13
    cons_chk = 22
    wo_touch = (4, 5, 6)
    red_m = 200
    cons_poll = 50
    ld_min = 16
    stamp_skip = 'p1_first_data,pre_iter_end'
    p3detail = -1
    st_lag = 21
    force_fallback = False
    red_at = 60
    sig_lag = 28
    poll_lag = 22
    chk_lag = 22
    fused = True
    stream0 = False
    loop_nods = False
    loop_nomfma = False
    loop_novalu = False
    loop_nodma = False
    loop_dma_every = 1
    bar_stamps = False
    trip_stamps = False
    dma_mode = 'spread'
    dma_gaps = ([5, 21, 37, 53, 69, 85], [101, 117])
    nv_prev = 2
    stamp_fwd = -1
    stamp_dbg = -1
    x_rd_gap0 = 65
    x_rd_gap = 33
    p1_steps = False
    p1_drop = ''
    rev = False
    init_w = 2
    early_step = 2
    x_gap = 60
    p1_nowait = False
    p1_noread = False
    wring = 3
    kvpf = 'late'
    coopx = False
    init_more = 0
OPT = Opt()

def wait_tag(*tags): return I("s_waitcnt vmcnt(?)", "wait", vmtags=list(tags))
def tag(ins, t):
    ins.meta["tag"] = t; return ins
def resolve_vm(stream, queue):
    q = list(queue)
    for ins in stream:
        if ins.kind in ("dma", "vld", "vst"):
            q.append(ins.meta.get("tag", "?"))
        elif ins.kind == "wait":
            if "vmtags" in ins.meta:
                idx = [n for n, t in enumerate(q) if t in ins.meta["vmtags"]]
                n = len(q) - 1 - max(idx) if idx else len(q)
                n = min(n, 63)
                ins.text = f"s_waitcnt vmcnt({n})"; ins.meta["vm"] = n
            if "vm" in ins.meta and not ins.meta.get("notrim"):
                n = ins.meta["vm"]
                if len(q) > n: q = q[len(q) - n:] if n else []
    return q

_stamp_n = [0]
def stamp(name):
    if not OPT.stamps: return []
    if OPT.dma_stamps:
        if name == "loop_start": return [raw("s_memtime s[100:101]", "salu"), raw("s_waitcnt lgkmcnt(0)", "wait", lgkm=0)]
        if name == "loop_end": return [raw("s_memtime s[76:77]", "salu"), raw("s_waitcnt lgkmcnt(0)", "wait", lgkm=0), salu("s_sub_u32 s100, s76, s100")]
        return []
    if OPT.stamp_skip and name in OPT.stamp_skip.split(","): return []
    if OPT.p3detail >= 0 and not name.startswith("d_") and name not in ("rt_end",): return []
    if OPT.bar_stamps and name not in ("rt_ls", "rt_le", "loop_start", "loop_end", "rt_end"): return []
    n = _stamp_n[0]; _stamp_n[0] += 1
    STAMPS.append(name)
    op = "s_memrealtime" if name.startswith("rt") else "s_memtime"
    return [raw(f"{op} s[{S_STAMP+2*n}:{S_STAMP+2*n+1}]", "salu")]
STAMPS = []

def m0_set(base): return salu(f"s_add_u32 m0, s{S_W1K}, {base}", [f"s{S_W1K}"], ["m0"])

def dma_tile(kind, slot_base, soff, tg):
    voff, srd, fl = {"K": (V_DK, S_K, OPT.kv_flags), "V": (V_DV, S_V, OPT.kv_flags), "W": (V_DW, S_WQ, OPT.w_flags)}[kind]
    return [(m0_set(slot_base + dc * 3968), tag(dma(voff, srd, soff, dc * 128, fl), tg)) for dc in range(4)]

def code_warm():
    o = []; a = o.append
    NL = OPT.codewarm
    a(raw("s_getpc_b64 s[50:51]", "salu")); a(salu("s_and_b32 s50, s50, 0xffffff80"))
    a(salu("s_lshr_b32 s52, s2, 3")); a(salu(f"s_mul_i32 s52, s52, {NL}"))
    a(valu(f"v_min_u32 v140, {NL-1}, v{V_LANE}", [f"v{V_LANE}"], ["v140"])); a(valu("v_add_u32 v140, s52, v140", ["v140"], ["v140"]))
    a(valu("v_lshlrev_b32 v140, 7, v140", ["v140"], ["v140"]))
    a(tag(I("global_load_dword v141, v140, s[50:51]", "vld", ["v140"], ["v141"]), "tlb"))
    return o

def setup():
    o = []; a = o.append
    a(salu("s_cmp_ge_u32 s2, 256")); a(raw("s_cbranch_scc1 L_end", "branch"))
    o += stamp("rt_start") + stamp("start")
    if OPT.remap:
        a(salu("s_lshr_b32 s4, s2, 3")); a(salu("s_add_u32 s4, s4, s2")); a(salu("s_and_b32 s4, s4, 7"))
        a(salu("s_andn2_b32 s5, s2, 7")); a(salu("s_or_b32 s4, s4, s5"))
        if OPT.remap == 2: a(salu("s_cmp_ge_u32 s2, 128")); a(salu("s_cselect_b32 s2, s4, s2"))
        else: a(salu("s_mov_b32 s2, s4"))
    a(valu("v_lshrrev_b32 v1, 6, v0", ["v0"], ["v1"]))
    a(valu(f"v_and_b32 v{V_LANE}, 63, v0", ["v0"], ["v0"]))
    a(salu(f"s_mov_b32 s{S_SAFE}, 0"))
    a(valu(f"v_readfirstlane_b32 s{S_W}, v1", ["v1"], [f"s{S_W}"]))
    if OPT.codewarm and OPT.codewarm_first: o += code_warm()
    a(label("L_again"))
    a(salu("s_load_dwordx16 s[36:51], s[0:1], 0")); a(salu("s_load_dwordx8 s[52:59], s[0:1], 64"))
    a(salu("s_load_dwordx2 s[60:61], s[0:1], 96"))
    a(nop(3))
    a(salu(f"s_and_b32 s{S_T0}, s2, 7")); a(salu(f"s_lshr_b32 s{S_T1}, s2, 3"))
    a(salu(f"s_and_b32 s{S_H}, s{S_T1}, 15")); a(salu(f"s_lshr_b32 s{S_T1}, s{S_T1}, 4"))
    a(salu(f"s_lshl_b32 s{S_G}, s{S_T0}, 1")); a(salu(f"s_add_u32 s{S_G}, s{S_G}, s{S_T1}"))
    a(salu(f"s_lshr_b32 s{S_BR}, s{S_G}, 3")); a(salu(f"s_and_b32 s{S_B}, s{S_G}, 7"))
    a(salu(f"s_lshl_b32 s{S_W1K}, s{S_W}, 10"))
    if OPT.rot:
        a(salu(f"s_and_b32 s{S_T0}, s2, 7")); a(salu(f"s_mul_i32 s{S_T0}, s{S_T0}, {OPT.rot}")); a(salu(f"s_lshr_b32 s{S_T1}, s2, 3"))
        a(salu(f"s_add_u32 s{S_T0}, s{S_T0}, s{S_T1}")); a(salu(f"s_and_b32 s{S_T0}, s{S_T0}, 31")); a(salu(f"s_lshl_b32 s33, s{S_T0}, 14") if False else salu(f"s_lshl_b32 s{S_T3}, s{S_T0}, 14"))
    a(salu(f"s_mov_b32 s{S_C}, 0x{f32bits(CSC):08x}"))
    L = f"v{V_LANE}"
    def vv(t, rd, wr): a(valu(t, rd, wr))
    vv(f"v_and_b32 v1, 15, {L}", [L], ["v1"]); vv(f"v_lshrrev_b32 v2, 4, {L}", [L], ["v2"])
    vv("v_lshrrev_b32 v3, 1, v1", ["v1"], ["v3"])
    for sp in range(2):
        r = V_KA[sp]
        vv(f"v_add_u32 v{r}, {4*sp}, v2", ["v2"], [f"v{r}"])
        vv(f"v_xor_b32 v{r}, v{r}, v3", [f"v{r}", "v3"], [f"v{r}"])
        vv(f"v_lshlrev_b32 v{r}, 4, v{r}", [f"v{r}"], [f"v{r}"])
        vv(f"v_lshl_add_u32 v{r}, v1, 7, v{r}", ["v1", f"v{r}"], [f"v{r}"])
    vv(f"v_lshrrev_b32 v1, 3, {L}", [L], ["v1"]); vv(f"v_and_b32 v2, 7, {L}", [L], ["v2"])
    vv(f"v_lshl_add_u32 v3, s{S_W}, 3, v1", ["v1", f"s{S_W}"], ["v3"])
    vv("v_bfe_u32 v28, v3, 1, 1", ["v3"], ["v28"]); vv("v_lshlrev_b32 v28, 2, v28", ["v28"], ["v28"])
    vv("v_xor_b32 v28, v28, v2", ["v28", "v2"], ["v28"]); vv("v_lshlrev_b32 v28, 4, v28", ["v28"], ["v28"])
    vv(f"v_lshl_add_u32 v{V_DW}, v3, 13, v28", ["v3", "v28"], [f"v{V_DW}"])
    a(raw("s_waitcnt lgkmcnt(0)", "wait", lgkm=0))
    a(salu(f"s_cmp_eq_u32 s{S_BR}, 0"))
    for i in range(10): a(salu(f"s_cselect_b32 s{36+i}, s{36+i}, s{46+i}"))
    if OPT.rot: a(salu(f"s_mov_b32 s{S_ROT}, s{S_T3}"))
    def srd(base, lo, hi, offs, size):
        if offs is None:
            a(salu(f"s_mov_b32 s{base}, s{lo}")); a(salu(f"s_mov_b32 s{base+1}, s{hi}"))
        else:
            a(salu(f"s_add_u32 s{base}, s{lo}, {offs}")); a(salu(f"s_addc_u32 s{base+1}, s{hi}, 0"))
        a(salu(f"s_mov_b32 s{base+2}, {size}")); a(salu(f"s_mov_b32 s{base+3}, 0x20000"))
    a(salu(f"s_mul_i32 s{S_T0}, s{S_B}, 229376")); srd(S_X, 36, 37, f"s{S_T0}", 229376)
    a(salu(f"s_lshl_b32 s{S_T0}, s{S_H}, 9")); srd(S_WQ, 42, 43, f"s{S_T0}", 0)
    a(salu(f"s_sub_u32 s{S_WQ+2}, {448*8192}, s{S_T0}"))
    return o

def setup_b():
    o = []; a = o.append
    L = f"v{V_LANE}"
    def vv(t, rd, wr): a(valu(t, rd, wr))
    vv(f"v_lshrrev_b32 v2, 4, {L}", [L], ["v2"])
    vv(f"v_bfe_u32 v28, {L}, 2, 2", [L], ["v28"]); vv(f"v_and_b32 v29, 3, {L}", [L], ["v29"])
    vv("v_lshl_add_u32 v30, v2, 2, v28", ["v2", "v28"], ["v30"])
    vv("v_bfe_u32 v31, v30, 1, 2", ["v30"], ["v31"])
    for p in range(4):
        r = V_VA[p]
        vv(f"v_xor_b32 v{r}, {p}, v31", ["v31"], [f"v{r}"])
        vv(f"v_lshlrev_b32 v{r}, 5, v{r}", [f"v{r}"], [f"v{r}"])
        vv(f"v_lshl_add_u32 v{r}, v30, 7, v{r}", ["v30", f"v{r}"], [f"v{r}"])
        vv(f"v_lshl_add_u32 v{r}, v29, 3, v{r}", ["v29", f"v{r}"], [f"v{r}"])
        vv(f"v_add_u32 v{r}, {L_V}, v{r}", [f"v{r}"], [f"v{r}"])
    vv("v_lshl_add_u32 v30, v2, 3, v28", ["v2", "v28"], ["v30"])
    vv("v_lshrrev_b32 v31, 1, v28", ["v28"], ["v31"])
    for sp in range(2):
        r = V_WA[0][sp]
        vv(f"v_xor_b32 v{r}, {sp}, v31", ["v31"], [f"v{r}"])
        vv(f"v_lshl_add_u32 v{r}, v{r}, 2, v29", [f"v{r}", "v29"], [f"v{r}"])
        vv(f"v_lshlrev_b32 v{r}, 4, v{r}", [f"v{r}"], [f"v{r}"])
        vv(f"v_lshl_add_u32 v{r}, v30, 7, v{r}", ["v30", f"v{r}"], [f"v{r}"])
        for win in (1, 2):
            vv(f"v_add_u32 v{V_WA[win][sp]}, {65536*win}, v{r}", [f"v{r}"], [f"v{V_WA[win][sp]}"])
    vv(f"v_lshrrev_b32 v1, 3, {L}", [L], ["v1"]); vv(f"v_and_b32 v2, 7, {L}", [L], ["v2"])
    vv(f"v_lshl_add_u32 v3, s{S_W}, 3, v1", ["v1", f"s{S_W}"], ["v3"])
    vv("v_bfe_u32 v28, v3, 1, 3", ["v3"], ["v28"]); vv("v_xor_b32 v28, v28, v2", ["v28", "v2"], ["v28"])
    vv("v_lshlrev_b32 v28, 4, v28", ["v28"], ["v28"]); vv(f"v_lshl_add_u32 v{V_DK}, v3, 9, v28", ["v3", "v28"], [f"v{V_DK}"])
    vv("v_bfe_u32 v28, v3, 1, 2", ["v3"], ["v28"]); vv("v_lshlrev_b32 v28, 1, v28", ["v28"], ["v28"])
    vv("v_xor_b32 v28, v28, v2", ["v28", "v2"], ["v28"]); vv("v_lshlrev_b32 v28, 4, v28", ["v28"], ["v28"])
    vv(f"v_lshl_add_u32 v{V_DV}, v3, 9, v28", ["v3", "v28"], [f"v{V_DV}"])
    def srd(base, lo, hi, offs, size):
        if offs is None:
            a(salu(f"s_mov_b32 s{base}, s{lo}")); a(salu(f"s_mov_b32 s{base+1}, s{hi}"))
        else:
            a(salu(f"s_add_u32 s{base}, s{lo}, {offs}")); a(salu(f"s_addc_u32 s{base+1}, s{hi}, 0"))
        a(salu(f"s_mov_b32 s{base+2}, {size}")); a(salu(f"s_mov_b32 s{base+3}, 0x20000"))
    a(salu(f"s_lshl_b32 s{S_T0}, s{S_B}, 4")); a(salu(f"s_add_u32 s{S_T0}, s{S_T0}, s{S_H}"))
    a(salu(f"s_lshl_b32 s{S_T0}, s{S_T0}, 19"))
    srd(S_K, 38, 39, f"s{S_T0}", 524288); srd(S_V, 40, 41, f"s{S_T0}", 524288)
    a(salu(f"s_mul_i32 s{S_T0}, s{S_H}, 229376")); srd(S_WO, 44, 45, f"s{S_T0}", 229376)
    srd(S_WS, 60, 61, None, 16 * 7 * 16 * 16 * 2048)
    srd(S_OUT, 56, 57, None, 8 * 256 * 896 * 2)
    if OPT.fused:
        srd(S_DBG, 58, 59, None, 256)
        a(salu(f"s_mov_b32 s{S_T0}, {PART_BYTES}")); srd(S_FL, 60, 61, f"s{S_T0}", 32768)
        a(salu(f"s_mov_b32 s{S_T0}, {RING_OFF}")); a(salu(f"s_add_u32 s54, s60, s{S_T0}")); a(salu("s_addc_u32 s55, s61, 0"))
        a(salu(f"s_mov_b32 s{S_RG}, s54")); a(salu(f"s_mov_b32 s{S_RG+1}, s55")); a(salu(f"s_mov_b32 s{S_RG+2}, {RING_BYTES}")); a(salu(f"s_mov_b32 s{S_RG+3}, 0x20000"))
        a(salu(f"s_getreg_b32 s{S_XCC}, hwreg(HW_REG_XCC_ID, 0, 3)"))
        a(salu(f"s_lshl_b32 s{S_SIG}, s{S_G}, 4")); a(salu(f"s_add_u32 s{S_SIG}, s{S_SIG}, s{S_H}"))
        a(salu(f"s_mul_i32 s{S_T0}, s{S_G}, {14*64}"))
        a(salu(f"s_lshl_b32 s{S_T1}, s{S_W}, 4")); a(salu(f"s_add_u32 s{S_T1}, s{S_T1}, s{S_H}")); a(salu(f"s_add_u32 s50, s{S_T0}, s{S_T1}"))
        a(salu(f"s_lshl_b32 s{S_T1}, s{S_H}, 2")); a(salu(f"s_add_u32 s{S_T1}, s{S_T1}, s{S_W}")); a(salu(f"s_add_u32 s51, s{S_T0}, s{S_T1}"))
        a(salu(f"s_add_u32 s51, s51, {CONS_OFF}"))
        a(valu(f"v_min_u32 v1, 13, v{V_LANE}", [f"v{V_LANE}"], ["v1"])); a(valu("v_lshlrev_b32 v1, 6, v1", ["v1"], ["v1"]))
        a(valu("v_mov_b32 v2, 0", [], ["v2"]))
        for sr in ("s50", "s51"):
            a(tag(I(f"buffer_store_byte v2, v1, s[{S_FL}:{S_FL+3}], {sr} offen", "vst", ["v1", "v2"], data=["v2"]), "reset"))
    if OPT.codewarm and not OPT.codewarm_first: o += code_warm()
    if OPT.tlbwarm:
        a(valu("v_mov_b32 v134, 0", [], ["v134"]))
        items = [(S_K, "0"), (S_V, "0"), (S_WO, "0")]
        a(salu(f"s_mul_i32 s50, s{S_G}, {OPT.ring * 262144}")); items.append((S_RG, "s50"))
        a(salu(f"s_mul_i32 s51, s{S_B}, {256*896*2}")); items.append((S_OUT, "s51"))
        for n, (srd_, so) in enumerate(items[:OPT.tlbwarm]):
            a(tag(bload(135 + n, 1, 134, srd_, so, 0), "tlb"))
    return o

def add_lgkm_waits(g, cons, carried):
    seq = [(-1, regs) for regs in carried]
    for k in range(g.n):
        if g.mem[k] is not None and g.mem[k].kind == "ds": seq.append((k, g.mem[k].wr))
    lead = None
    for k, regs in cons:
        late = [n for n, (gap, w) in enumerate(seq) if gap == k - 1 and gap >= 0 and set(w) & set(regs)]
        assert not late, f"DS for MFMA {k} issued in gap {k-1}"
        idx = [n for n, (gap, w) in enumerate(seq) if gap < max(k - 1, 0) and set(w) & set(regs)]
        if not idx: continue
        last = max(idx)
        after = sum(1 for n, (gap, w) in enumerate(seq) if n > last and gap < max(k - 1, 0))
        assert after <= 15, (k, after)
        if k == 0: lead = wait_lgkm(after)
        else: g.pre[k - 1].insert(0, wait_lgkm(after))
    out = len(carried)
    if lead is not None: out = min(out, lead.meta["lgkm"])
    for k in range(g.n):
        for x in g.pre[k]:
            if "lgkm" in x.meta: out = min(out, x.meta["lgkm"])
        if g.mem[k] is not None and g.mem[k].kind == "ds":
            if out >= 14:
                g.pre[k].insert(0, wait_lgkm(8)); out = 8
            out += 1
    return lead

def place_vmem(g, gap, scalars, d, hi=None, stack=False, space=False):
    k = max(gap, 1 if stack else len(scalars))
    hi = g.n if hi is None else hi
    isdma = lambda x: x is not None and x.kind == "dma"
    while True:
        assert k < hi, f"no gap for {d.text}"
        near = OPT.vm_space and any(0 <= k + dd < g.n and dd != 0 and g.mem[k + dd] is not None and g.mem[k + dd].kind in ("vst", "vld", "dma")
                                    for dd in range(-OPT.vm_space, OPT.vm_space + 1))
        if g.mem[k] is None and not g.vec[k] and len(g.pre[k]) <= 1 and not (near and space):
            if stack:
                if not isdma(g.mem[k - 1]) and len(g.pre[k - 1]) + len(scalars) <= 3 and not any(x.kind == "barrier" for x in g.pre[k - 1]): break
            elif all(not g.pre[k - 1 - n] and not isdma(g.mem[k - 1 - n]) for n in range(len(scalars))): break
        k += 1
    if stack:
        for sc in scalars: g.put_pre(k - 1, sc)
    else:
        for n, sc in enumerate(scalars): g.put_pre(k - len(scalars) + n, sc)
    g.put_mem(k, d)
    return k

def put_scalar(g, gap, *ins):
    k = gap
    while g.pre[k]: k += 1
    g.pre[k] = list(ins)
    return k

def place_chain(g, ops, lo, hi):
    left = []
    for ins in ops:
        k = g.place_vec(ins, lo, hi) if (not left and lo < hi) else None
        if k is None: left.append(ins)
        else: lo = k + 1 if ins.kind == "trans" else k
    return lo, left

class Op:
    def __init__(self, ins, rel, dl, preds=()):
        self.ins = ins; self.rel = rel; self.dl = dl; self.preds = list(preds); self.gap = None

def list_schedule(g, ops, lo=0, hi=None):
    hi = g.n if hi is None else hi
    todo = list(ops)
    for k in range(lo, hi):
        while True:
            free = g.free_vec(k)
            if free <= 0: break
            ready = [x for x in todo if x.rel <= k and all(p.gap is not None and p.gap + d <= k for p, d in x.preds)]
            tr = [x for x in ready if x.ins.kind == "trans"]
            pl = [x for x in ready if x.ins.kind != "trans"]
            pick = None
            can_tr = free == 2 and g.mem[k] is None and not g.vec[k]
            if can_tr and tr: pick = min(tr, key=lambda x: x.dl)
            if pl:
                best = min(pl, key=lambda x: x.dl)
                if pick is None or (best.dl + 6 < pick.dl): pick = best
            if pick is None: break
            g.vec[k].append(pick.ins); pick.gap = k; todo.remove(pick)
    late = [x for x in ops if x.gap is not None and x.gap > x.dl]
    assert not late, [(x.ins.text, x.gap, x.dl) for x in late]
    return todo

def sm_ops(tile, kb, qb, rel, dl):
    i = sm_group(tile, kb, qb)
    f = [Op(i[0], rel, dl - 6), Op(i[1], rel, dl - 6), Op(i[4], rel, dl - 5), Op(i[5], rel, dl - 5)]
    x = [Op(i[2], rel, dl - 4, [(f[0], 1)]), Op(i[3], rel, dl - 4, [(f[1], 1)]), Op(i[6], rel, dl - 3, [(f[2], 1)]), Op(i[7], rel, dl - 3, [(f[3], 1)])]
    ad = [Op(i[8], rel, dl, [(x[0], 1)]), Op(i[9], rel, dl, [(x[1], 1)]), Op(i[11], rel, dl, [(x[2], 1)]), Op(i[12], rel, dl, [(x[3], 1)])]
    cv = [Op(i[10], rel, dl, [(x[0], 1), (x[1], 1)]), Op(i[13], rel, dl, [(x[2], 1), (x[3], 1)])]
    return f + x + ad + cv

def exposed(ops):
    o = []
    for n, ins in enumerate(ops):
        o.append(ins)
        if ins.kind == "trans" and n + 1 < len(ops) and ops[n + 1].kind != "trans": o.append(nop(0))
    return o

def conv_ops(acc, d, t):
    return [valu(f"v_accvgpr_read_b32 v{d}, a{acc}", [f"a{acc}"], [f"v{d}"]),
            valu(f"v_accvgpr_read_b32 v{t}, a{acc+1}", [f"a{acc+1}"], [f"v{t}"]),
            valu(f"v_accvgpr_read_b32 v{d+1}, a{acc+2}", [f"a{acc+2}"], [f"v{d+1}"]),
            valu(f"v_accvgpr_read_b32 v{t+1}, a{acc+3}", [f"a{acc+3}"], [f"v{t+1}"]),
            valu(f"v_cvt_pk_bf16_f32 v{d}, v{d}, v{t}", [f"v{d}", f"v{t}"], [f"v{d}"]),
            valu(f"v_cvt_pk_bf16_f32 v{d+1}, v{d+1}, v{t+1}", [f"v{d+1}", f"v{t+1}"], [f"v{d+1}"])]

def xlane_reduce(regs, op, tmp):
    o = []
    for swap in ("v_permlane32_swap_b32", "v_permlane16_swap_b32"):
        for n, r in enumerate(regs): o.append(valu(f"v_mov_b32 v{tmp+n}, v{r}", [f"v{r}"], [f"v{tmp+n}"]))
        o.append(nop(1))
        for n, r in enumerate(regs):
            o.append(valu(f"{swap} v{r}, v{tmp+n}", [f"v{r}", f"v{tmp+n}"], [f"v{r}", f"v{tmp+n}"]))
        o.append(nop(1))
        for n, r in enumerate(regs):
            o.append(valu(f"{op} v{r}, v{r}, v{tmp+n}", [f"v{r}", f"v{tmp+n}"], [f"v{r}"]))
    return o

def wpairs(): return [(L_X, L_X + 16384), (vslot(1), kslot(3)), (vslot(2), vslot(3))]
def wslot(tile):
    p = wpairs(); return p[(tile // 2) % len(p)][tile % 2]
XBUF = [V_S, V_P]
def xfrag(qb, cs): return XBUF[(cs // 2) & 1] + ((cs % 2) * 4 + qb) * 4
V_XD = [128, 129]
V_XR = [130, 131]
S_XB = 34
S_XCUR = 35
def x_setup():
    o = []; a = o.append
    L = f"v{V_LANE}"
    a(salu(f"s_and_b32 s{S_T1}, s{S_W}, 1")); a(salu(f"s_lshl_b32 s{S_T1}, s{S_T1}, 13"))
    a(salu(f"s_cmp_lt_u32 s{S_W}, 2")); a(salu(f"s_cselect_b32 s{S_XB}, 2, 4")); a(salu(f"s_lshl_b32 s{S_XB}, s{S_XB}, 14"))
    a(salu(f"s_add_u32 s{S_XB}, s{S_XB}, s{S_T1}"))
    assert kslot(2) == 2 << 14 and vslot(0) == 4 << 14
    a(valu(f"v_lshrrev_b32 v1, 3, {L}", [L], ["v1"])); a(valu(f"v_and_b32 v2, 7, {L}", [L], ["v2"]))
    a(valu(f"v_lshl_add_u32 v3, s{S_W}, 6, v1", ["v1", f"s{S_W}"], ["v3"]))
    a(valu("v_mul_u32_u24 v3, 896, v3", ["v3"], ["v3"]))
    a(valu("v_lshrrev_b32 v1, 1, v1", ["v1"], ["v1"]))
    for par in range(2):
        r = V_XD[par]
        a(valu(f"v_or_b32 v{r}, {4*par}, v1", ["v1"], [f"v{r}"]))
        a(valu(f"v_xor_b32 v{r}, v{r}, v2", [f"v{r}", "v2"], [f"v{r}"]))
        a(valu(f"v_lshl_add_u32 v{r}, v{r}, 4, v3", [f"v{r}", "v3"], [f"v{r}"]))
        a(valu(f"v_add_u32 v{V_XR[par]}, s{S_XB}, v{V_KA[par]}", [f"v{V_KA[par]}"], [f"v{V_XR[par]}"]))
    return o
def x_items(j):
    out = []
    for i in range(8):
        sreg = S_T2 + (i & 1)
        sc = []
        if i == 0 and j > 0: sc.append(salu(f"s_add_u32 s{S_XCUR}, s{S_XCUR}, s{S_XSTEP}", [f"s{S_XCUR}"], [f"s{S_XCUR}"]))
        sc.append(salu(f"s_add_u32 s{sreg}, s{S_XCUR}, {i*7168}", [f"s{S_XCUR}"], [f"s{sreg}"]))
        sc.append(salu(f"s_add_u32 m0, s{S_XB}, {i*1024}", [f"s{S_XB}"], ["m0"]))
        out.append((sc, tag(dma(V_XD[i & 1], S_X, f"s{sreg}", 0, OPT.x_flags), f"x{j}")))
    return out
def x_read(qb, cs): return ds_read128("v", xfrag(qb, cs), V_XR[cs & 1], qb * 2048)
def w_read(dbp, cs, jj):
    s, e = dbp >> 1, dbp & 1
    base = wslot(cs); win = base // 65536
    off = base - win * 65536 + (s >> 1) * 4096 + jj * 512 + e * 8
    return ds_read_tr("v", V_POOL + 4 * ((2 * dbp + (cs & 1)) % 8) + 2 * jj, V_WA[win][s & 1], off)

V_PF = 28
def coop_setup():
    o = []; a = o.append
    a(salu(f"s_mul_i32 s{S_T1}, s{S_H}, {112*128}"))
    a(salu(f"s_lshl_b32 s{S_T2}, s{S_W}, 12")); a(salu(f"s_add_u32 s{S_T1}, s{S_T1}, s{S_T2}"))
    a(valu(f"v_and_b32 v{V_PF}, 31, v{V_LANE}", [f"v{V_LANE}"], [f"v{V_PF}"]))
    a(valu(f"v_lshlrev_b32 v{V_PF}, 7, v{V_PF}", [f"v{V_PF}"], [f"v{V_PF}"]))
    a(valu(f"v_add_u32 v{V_PF}, s{S_T1}, v{V_PF}", [f"v{V_PF}"], [f"v{V_PF}"]))
    return o
def coop_x():
    return [tag(bload(V_PF + 1, 1, V_PF, S_X, "0", 0, OPT.pf_flags), "pf")]

V_PFW = 132
def coop_w_setup():
    o = []; a = o.append
    L = f"v{V_LANE}"
    a(salu(f"s_lshr_b32 s{S_T1}, s2, 7")); a(salu(f"s_and_b32 s{S_T1}, s{S_T1}, 1")); a(salu(f"s_lshl_b32 s{S_T1}, s{S_T1}, 5"))
    a(salu(f"s_lshl_b32 s{S_T2}, s{S_W}, 3")); a(salu(f"s_add_u32 s{S_T1}, s{S_T1}, s{S_T2}"))
    a(valu(f"v_bfe_u32 v{V_PFW}, {L}, 2, 3", [L], [f"v{V_PFW}"])); a(valu(f"v_add_u32 v{V_PFW}, s{S_T1}, v{V_PFW}", [f"v{V_PFW}"], [f"v{V_PFW}"]))
    a(valu(f"v_lshlrev_b32 v{V_PFW}, 13, v{V_PFW}", [f"v{V_PFW}"], [f"v{V_PFW}"]))
    a(valu(f"v_and_b32 v{V_PFW+1}, 3, {L}", [L], [f"v{V_PFW+1}"]))
    a(valu(f"v_lshl_add_u32 v{V_PFW}, v{V_PFW+1}, 7, v{V_PFW}", [f"v{V_PFW}", f"v{V_PFW+1}"], [f"v{V_PFW}"]))
    return o
def coop_w(j):
    return [salu(f"s_mov_b32 s{S_PFO}, {j*524288}", [], [f"s{S_PFO}"])], tag(bload(V_PFW + 1, 1, V_PFW, S_WQ, f"s{S_PFO}", 0, OPT.pf_flags), "pf")
OOL = []
OOL_LATE = []
S_WM = 63
def kv_off(reg, t):
    if not OPT.rot: return [salu(f"s_mov_b32 s{reg}, {t*16384}", [], [f"s{reg}"])]
    return [salu(f"s_add_u32 s{reg}, s{S_ROT}, {t*16384}", [f"s{S_ROT}"], [f"s{reg}"]), salu(f"s_and_b32 s{reg}, s{reg}, 0x7ffff", [f"s{reg}"], [f"s{reg}"])]
def phase1():
    o = []; a = o.append
    NP = 3
    a(salu(f"s_lshr_b32 s{S_T1}, s2, 7")); a(salu(f"s_and_b32 s{S_T1}, s{S_T1}, {1 if OPT.rev else 0}"))
    a(salu(f"s_cmp_eq_u32 s{S_T1}, 0"))
    a(salu(f"s_cselect_b32 s{S_WCUR}, 0, {6*524288}")); a(salu(f"s_cselect_b32 s{S_T2}, 1, -1"))
    a(salu(f"s_cselect_b32 s{S_XCUR}, 0, 768"))
    a(salu(f"s_mul_i32 s{S_WSTEP}, s{S_T2}, 524288")); a(salu(f"s_mul_i32 s{S_XSTEP}, s{S_T2}, 128"))
    o += x_setup()
    if OPT.coopx: o += coop_setup() + coop_x()
    if OPT.coopw:
        o += coop_w_setup()
        for j in range(OPT.coopw_init):
            sc, d = coop_w(j); o += sc + [d]
    def w_items(j):
        out = []
        for par in range(2):
            sreg = S_WCUR if par == 0 else S_WOFF
            for m, (m0, d) in enumerate(dma_tile("W", wslot(2 * j + par), f"s{sreg}", f"W{j}")):
                sc = [m0]
                if m == 0 and par == 0 and j > 0: sc = [salu(f"s_add_u32 s{S_WCUR}, s{S_WCUR}, s{S_WSTEP}", [f"s{S_WCUR}"], [f"s{S_WCUR}"]), m0]
                if m == 0 and par == 1: sc = [salu(f"s_add_u32 s{S_WOFF}, s{S_WCUR}, 262144", [f"s{S_WCUR}"], [f"s{S_WOFF}"]), m0]
                out.append((sc, d))
        return out
    def kv_items(kind, t):
        out = []
        for m, (m0, d) in enumerate(dma_tile(kind, kslot(t) if kind == "K" else vslot(t), f"s{S_T0}", f"{kind}{t}")):
            out.append((kv_off(S_T0, t) + [m0] if m == 0 else [m0], d))
        return out
    def now(items):
        for sc, d in items:
            o.extend(sc); a(nop(0)); a(d)
    w0 = w_items(0)
    for sc, d in w0[4:]: d.meta["tag"] = "W0b"
    if OPT.xwarm:
        a(valu(f"v_lshlrev_b32 v{V_PFW}, 4, v{V_LANE}", [f"v{V_LANE}"], [f"v{V_PFW}"]))
        a(salu(f"s_mul_i32 s{S_T0}, s{S_H}, 14336")); a(salu(f"s_lshl_b32 s{S_T1}, s{S_W}, 12")); a(salu(f"s_add_u32 s{S_T0}, s{S_T0}, s{S_T1}"))
        if OPT.xwarm_order == 1: now(x_items(0))
        now(w0[:4])
        a(salu(f"s_lshl_b32 s{S_T1}, s{S_W}, 12")); a(salu(f"s_add_u32 m0, s{S_T1}, {kslot(0)}", [], ["m0"])); a(nop(0))
        for i in range(4): a(tag(dma(V_PFW, S_X, f"s{S_T0}", i * 1024, OPT.x_flags), "xw"))
        now(w0[4:])
        if OPT.xwarm_order == 0: now(x_items(0))
    else:
        now(x_items(0)); now(w0[:4]); now(w0[4:])
    if OPT.coopw:
        for j in range(OPT.coopw_init, 3):
            sc, d = coop_w(j); o += sc + [d]
    o += setup_b()
    a(wait_tag("x0"))
    xr = [x_read(qb, cs) for cs in (0, 1) for qb in range(4)]
    o += xr
    a(wait_tag("W0", "reset")); a(barrier())
    if OPT.fused:
        a(salu(f"s_or_b32 s{S_T0}, s{S_XCC}, 0x80")); a(valu(f"v_mov_b32 v1, s{S_T0}", [], ["v1"])); a(valu("v_mov_b32 v2, 0", [], ["v2"]))
        a(tag(I(f"buffer_store_byte v1, v2, s[{S_DBG}:{S_DBG+3}], s{S_SIG} offen", "vst", ["v1", "v2"], data=["v1"]), "arr"))
    o += stamp("p1_first_data") + (stamp("rt_fd") if OPT.trip_stamps else [])
    def quad0(n): return V_POOL + 4 * (n % 8)
    def w_read0(n, jj):
        dbp, cs = n % 16, n // 16
        r = w_read(dbp, cs, jj)
        return ds_read_tr("v", quad0(n) + 2 * jj, int(r.rd[0][1:]), int(r.text.split("offset:")[1]))
    carried = [x.wr for x in xr]
    for n in range(3):
        for jj in range(2):
            r = w_read0(n, jj); a(r); carried.append(r.wr)
    early = {j: [] for j in range(7)}; after = {j: [] for j in range(7)}
    early[0] += w_items(1); early[1] += w_items(2)
    for j in range(NP, 7): after[j - NP + 1] += w_items(j)
    K = lambda t: kv_items("K", t)
    V = lambda t: kv_items("V", t)
    kv = {"early": {1: K(0), 2: K(1)}, "mid": {2: K(0), 3: K(1)}, "late": {3: K(0), 4: K(1)}}[OPT.kvpf]
    for j, l in kv.items(): early[j] += l
    if OPT.kvmin:
        early = {j: (w_items(1) if j == 0 else w_items(2) if j == 1 else []) for j in range(7)} if False else early
        for j in range(7): early[j] = [it for it in early[j] if not it[1].meta["tag"].startswith("K")]
        early[4] += K(0); early[5] += K(1)
        after[5] += V(0)
        after[6] += K(2) + V(1)
    elif OPT.kvspread:
        after[5] += V(0)
        early[6] += K(2) + V(1)
        after[6] += K(3)
    else:
        after[5] += V(0)
        early[6] += K(2) + V(1) + K(3)
        after[6] += V(2)
    for j in range(7):
        ms = []
        if j == 0:
            for n in range(32):
                for qb in range(4):
                    acc = ((n % 16) * 4 + qb) * 4
                    first = n < 16
                    ms.append(mfma("a", acc, "v", quad0(n), "v", xfrag(qb, n // 16), None if first else "a", None if first else acc))
        else:
            for dbp in range(16):
                for qb in range(4):
                    for e2 in range(2):
                        acc = (dbp * 4 + qb) * 4
                        ms.append(mfma("a", acc, "v", V_POOL + 4 * ((2 * dbp + e2) % 8), "v", xfrag(qb, 2 * j + e2), "a", acc))
        g = Gaps(ms)
        if j == 0:
            for n in range(3, 32):
                for jj in range(2): g.put_mem(4 * n - 12 + 2 * jj, w_read0(n, jj))
        else:
            for dbp in range(3, 16):
                for n, (cs, jj) in enumerate([(2*j, 0), (2*j, 1), (2*j+1, 0), (2*j+1, 1)]):
                    g.put_mem(8 * dbp - 24 + 2 * n, w_read(dbp, cs, jj))
        nxt = []
        if j < 6:
            for dbp in range(3):
                for n, (cs, jj) in enumerate([(2*j+2, 0), (2*j+2, 1), (2*j+3, 0), (2*j+3, 1)]):
                    r = w_read(dbp, cs, jj); g.put_mem(104 + (1 if j == 0 else 0) + 8 * dbp + 2 * n, r); nxt.append(r.wr)
        XG = OPT.x_rd_gap if j > 0 else OPT.x_rd_gap0
        xreads = []
        if j < 6:
            for n, (cs, qb) in enumerate([(cs, qb) for cs in (2*j+2, 2*j+3) for qb in range(4)]):
                r = x_read(qb, cs); g.put_mem(XG + 2 * n, r); xreads.append(r)
        if j == 0:
            cons = [(4 * n, R("v", quad0(n), 4) + (R("v", V_S, 32) if n == 0 else [])) for n in range(32)]
        else:
            cons = [(8 * dbp, R("v", V_POOL + 4 * ((2 * dbp) % 8), 8)) for dbp in range(16)]
        if j < 6: cons.append((XG + 24, [w for r in xreads for w in r.wr]))
        cons.sort()
        lead = add_lgkm_waits(g, cons, carried)
        if j < 6:
            k = XG - 2
            while g.pre[k]: k -= 1
            g.pre[k] = [wait_tag(f"x{j+1}")]
        tags = [f"W{j+1}"] if j < 6 else ["K0"]
        k = 100
        while g.pre[k]: k -= 1
        g.pre[k] = [wait_tag(*tags), barrier()] if not OPT.p1_nowait else [barrier()]
        kb = k
        gp = 1
        if OPT.coopw and j + 3 <= 6:
            sc, d = coop_w(j + 3); gp = place_vmem(g, 2, sc, d, kb) + 1
        if j == 0:
            for sc, d in x_items(1): gp = place_vmem(g, gp, sc, d, XG - 3, stack=True) + 2
            k = 48
            while g.pre[k]: k -= 1
            g.pre[k] = [wait_tag("W0b"), barrier()]
            assert k < 52
        for sc, d in early[j]: gp = place_vmem(g, gp + len(sc) - 1 + (16 if (j == 6 and OPT.kvspread and gp == 1) else 0), sc, d, kb) + (OPT.early_step if j != 6 else (9 if OPT.kvspread else 7))
        if j < 5:
            gx = max(XG + 25, gp)
            for sc, d in x_items(j + 2): gx = place_vmem(g, gx, sc, d, stack=True) + 2
            gpa = max(kb + 2, gx)
        else: gpa = kb + 2
        for sc, d in after[j]: gpa = place_vmem(g, gpa, sc, d, stack=True) + 1
        left = []
        if j == 6:
            for dbp in range(16):
                for qb in range(4):
                    ops = conv_ops((dbp * 4 + qb) * 4, V_Q + (qb * 8 + (dbp >> 1)) * 4 + 2 * (dbp & 1), V_CT + 2 * (qb & 1))
                    if left: left += ops
                    else:
                        _, l2 = place_chain(g, ops, 8 * dbp + 2 * qb + 1 + 5, 128); left += l2
        if lead is not None: a(lead)
        em = g.emit()
        if OPT.p1_drop:
            def keep(x):
                if x.kind in ("dma", "vld"):
                    t = x.meta.get("tag", "")
                    for c in OPT.p1_drop:
                        if t.startswith(c): return False
                return True
            em = [x for x in em if keep(x)]
        if OPT.p1_noread: em = [x for x in em if x.kind != "ds" and not (x.kind == "wait" and "lgkm" in x.meta)]
        o += em
        carried = nxt
        if OPT.p1_steps: o += stamp(f"step{j}")
        if left: a(nop(7)); o += left
    if not OPT.p1_steps: o += stamp("p1_end") + (stamp("rt_p1") if OPT.trip_stamps else [])
    return o

def k_read(t, kb, s):
    return ds_read128("v", V_POOL + 4 * s, V_KA[s & 1], (kslot(t) - L_K) + (s >> 1) * 4096 + kb * 2048)
def v_read(t, db, jj):
    return ds_read_tr("v", V_POOL + 4 * (db % 8) + 2 * jj, V_VA[db & 3], (vslot(t) - L_V) + (db >> 2) * 4096 + jj * 2048)
def Sreg(kb, qb): return V_S + (kb * 4 + qb) * 4
def Preg(buf, qb): return V_P + buf * 16 + qb * 4
def qk_mfmas():
    ms = []
    for i in range(64):
        kb, sp, qb, e = i >> 5, (i >> 3) & 3, (i >> 1) & 3, i & 1
        s = 2 * sp + e; d = Sreg(kb, qb)
        ms.append(mfma("v", d, "v", V_POOL + 4 * s, "v", V_Q + (qb * 8 + s) * 4, None if s == 0 else "v", None if s == 0 else d))
    return ms
def pv_mfmas(t, first):
    ms = []
    for i in range(64):
        db, qb = i >> 2, i & 3
        acc = (db * 4 + qb) * 4
        ms.append(mfma("a", acc, "v", V_POOL + 4 * (db % 8), "v", Preg(t & 1, qb), None if first else "a", None if first else acc))
    return ms
def sm_group(tile, kb, qb):
    s = Sreg(kb, qb); p = Preg(tile & 1, qb) + 2 * kb; mc = V_MC + qb; l = V_L + qb
    f = lambda r: valu(f"v_fma_f32 v{s+r}, v{s+r}, s{S_C}, v{mc}", [f"v{s+r}", f"v{mc}", f"s{S_C}"], [f"v{s+r}"])
    x = lambda r: trans(f"v_exp_f32 v{s+r}, v{s+r}", [f"v{s+r}"], [f"v{s+r}"])
    ad = lambda r: valu(f"v_add_f32 v{l}, v{l}, v{s+r}", [f"v{l}", f"v{s+r}"], [f"v{l}"])
    cv = lambda r: valu(f"v_cvt_pk_bf16_f32 v{p+r//2}, v{s+r}, v{s+r+1}", [f"v{s+r}", f"v{s+r+1}"], [f"v{p+r//2}"])
    return [f(0), f(1), x(0), x(1), f(2), f(3), x(2), x(3), ad(0), ad(1), cv(0), ad(2), ad(3), cv(2)]

def pre_iter():
    o = []; a = o.append
    carried = []
    for s in range(8):
        r = k_read(0, 0, s); a(r); carried.append(r.wr)
    g = Gaps(qk_mfmas())
    for s in range(8): g.put_mem(8 * (s >> 1) + 10 + 4 * (s & 1), k_read(0, 1, s))
    cons = [(8 * p, R("v", V_POOL + 8 * (p % 4), 8)) for p in range(8)]
    a(add_lgkm_waits(g, cons, carried))
    if OPT.kvmin or OPT.kvspread:
        gp = 3
        for kind, t in ((("K", 3), ("V", 2)) if OPT.kvmin else (("V", 2),)):
            for m, (m0, d) in enumerate(dma_tile(kind, kslot(t) if kind == "K" else vslot(t), f"s{S_T0}", f"{kind}{t}")):
                gp = place_vmem(g, gp, (kv_off(S_T0, t) if m == 0 else []) + [m0], d, stack=True) + 5
    o += g.emit()
    a(wait_tag("K1", "V0")); a(barrier())
    o += kv_off(S_KOFF, 4)
    for m0, d in dma_tile("K", kslot(4), f"s{S_KOFF}", "K4"): a(m0); a(nop(0)); a(d)
    o += kv_off(S_KOFF, 5) + kv_off(S_VOFF, 3)
    carried = []
    for s in range(8):
        r = k_read(1, 0, s); a(r); carried.append(r.wr)
    for qb in range(4):
        m = V_MC + qb; s0 = Sreg(0, qb); s1 = Sreg(1, qb)
        a(valu(f"v_max3_f32 v{m}, v{s0}, v{s0+1}, v{s0+2}", R("v", s0, 3), [f"v{m}"]))
        a(valu(f"v_max3_f32 v{m}, v{m}, v{s0+3}, v{s1}", [f"v{m}", f"v{s0+3}", f"v{s1}"], [f"v{m}"]))
        a(valu(f"v_max3_f32 v{m}, v{m}, v{s1+1}, v{s1+2}", [f"v{m}", f"v{s1+1}", f"v{s1+2}"], [f"v{m}"]))
        a(valu(f"v_max_f32 v{m}, v{m}, v{s1+3}", [f"v{m}", f"v{s1+3}"], [f"v{m}"]))
    o += xlane_reduce([V_MC + q for q in range(4)], "v_max_f32", V_SP)
    for qb in range(4):
        m = V_MC + qb
        a(valu(f"v_mul_f32 v{m}, s{S_C}, v{m}", [f"v{m}", f"s{S_C}"], [f"v{m}"]))
        a(valu(f"v_sub_f32 v{m}, 0, v{m}", [f"v{m}"], [f"v{m}"]))
        a(valu(f"v_mov_b32 v{V_L+qb}, 0", [], [f"v{V_L+qb}"]))
    for kb, qb in [(0, 0), (0, 1), (0, 2), (0, 3), (1, 0), (1, 1)]: o += exposed(sm_group(0, kb, qb))
    o += stamp("pre_iter_end")
    return o, carried

def attn_iter(t, carried, vmw, prev, cur, first=False, adv=True, loopctl=False, extra=None, loop_body=False):
    g = Gaps(qk_mfmas() + pv_mfmas(t, first))
    for s in range(8): g.put_mem(8 * (s >> 1) + 10 + 4 * (s & 1), k_read(t + 1, 1, s))
    for db in range(16):
        for jj in range(2): g.put_mem(min(64 - OPT.v_lead + 4 * db + 2 * jj, 44 + 4 * db + 2 * jj + 18), v_read(t, db, jj))
    nxt = []
    if t + 2 <= 31:
        for s, gap in zip(range(8), [108, 110, 112, 114, 116, 120, 124, 127] if OPT.v_lead >= 20 else [109, 111, 113, 115, 117, 121, 125, 127]):
            r = k_read(t + 2, 0, s); g.put_mem(gap, r); nxt.append(r.wr)
    else:
        for db in range(5):
            for jj in range(2):
                r = v_read(t + 1, db, jj); g.put_mem(108 + 4 * db + 2 * jj, r); nxt.append(r.wr)
    cons = [(8 * p, R("v", V_POOL + 8 * (p % 4), 8)) for p in range(8)]
    cons += [(64 + 4 * db, R("v", V_POOL + 4 * (db % 8), 4)) for db in range(16)]
    lead = add_lgkm_waits(g, cons, carried)
    kb = 98
    while g.pre[kb]: kb -= 1
    g.pre[kb] = [vmw, barrier()]
    if OPT.bar_stamps and loop_body:
        g.pre[kb] = [raw("s_memtime s[94:95]", "salu"), vmw, raw("s_memtime s[96:97]", "salu"), barrier(), raw("s_memtime s[98:99]", "salu"),
                     raw("s_waitcnt lgkmcnt(0)", "wait", lgkm=0),
                     salu("s_sub_u32 s96, s96, s94"), salu("s_add_u32 s92, s92, s96"),
                     salu("s_sub_u32 s98, s98, s94"), salu("s_add_u32 s93, s93, s98")]
    gp_prev, gp_cur = OPT.dma_gaps
    placed = [place_vmem(g, gap, [m0], d, kb) for gap, (m0, d) in zip(gp_prev, prev)]
    for gap, (m0, d) in zip(gp_cur, cur): place_vmem(g, gap, [m0], d)
    if adv:
        for reg, srd, at in ((S_VOFF, S_V, (placed[OPT.nv_prev - 1] if OPT.nv_prev else 1) + 1), (S_KOFF, S_K, placed[-1] + 1)):
            k = put_scalar(g, at, salu(f"s_add_u32 s{reg}, s{reg}, 16384", [f"s{reg}"], [f"s{reg}"]))
            k = put_scalar(g, k + 1, salu(f"s_and_b32 s{reg}, s{reg}, 0x7ffff", [f"s{reg}"], [f"s{reg}"]))
            assert k < 100
        if loopctl:
            first_k = placed[-4]
            k = put_scalar(g, 2, salu(f"s_cmp_eq_u32 s{S_LOOP}, 1", [f"s{S_LOOP}"], ["scc"]),
                           salu(f"s_cselect_b32 s{S_K+2}, 0, 524288", ["scc"], [f"s{S_K+2}"]))
            assert k < first_k - 1
    if loopctl:
        k = put_scalar(g, 119, salu(f"s_sub_u32 s{S_LOOP}, s{S_LOOP}, 1", [f"s{S_LOOP}"], [f"s{S_LOOP}"]))
        k = put_scalar(g, k + 1, salu(f"s_cmp_lg_u32 s{S_LOOP}, {OPT.loop_exit}", [f"s{S_LOOP}"], ["scc"]))
        assert k <= 127
        for kk in range(k + 1, 128):
            assert all(x.kind == "wait" for x in g.pre[kk]), "SCC clobbered before the loop branch"
    if extra: extra(g, kb)
    ops = []
    for qb in (2, 3): ops += sm_ops(t, 1, qb, 0, 31 + 2 * qb)
    for qb in range(4): ops += sm_ops(t + 1, 0, qb, 25 + 2 * qb + 6, 100 + 6 * qb)
    for qb in (0, 1): ops += sm_ops(t + 1, 1, qb, 57 + 2 * qb + 6, 124 + 3 * qb)
    left = list_schedule(g, ops)
    if OPT.vfirst:
        cand = [k for k in range(128) if g.mem[k] is not None and g.mem[k].kind == "ds" and len(g.vec[k]) == 1 and g.vec[k][0].kind == "valu"
                and not (set(g.vec[k][0].wr) & set(g.mem[k].rd + g.mem[k].wr))]
        n = min(OPT.vfirst, len(cand))
        for i in range(n): g.vec_first.add(cand[(i * len(cand)) // n])
    if OPT.pad_iter:
        for n in range(OPT.pad_iter): g.post[(n * 128) // OPT.pad_iter + 3].append(nop(3))
    assert not left, f"softmax groups do not fit: {len(left)} left"
    return [lead] + g.emit(), nxt

def safe_attn():
    o = []; a = o.append
    VM, VT, VA_, TMP = 20, 24, 28, 112
    a(label("L_safe_attn")); a(wait_vm(0)); a(raw("s_waitcnt lgkmcnt(0)", "wait", lgkm=0)); a(barrier())
    for r in range(256): a(valu(f"v_accvgpr_write_b32 a{r}, 0", [], [f"a{r}"]))
    for qb in range(4):
        a(valu(f"v_mov_b32 v{VM+qb}, 0xff800000", [], [f"v{VM+qb}"])); a(valu(f"v_mov_b32 v{V_L+qb}, 0", [], [f"v{V_L+qb}"]))
    a(salu(f"s_mov_b32 s{S_KOFF}, 0")); a(salu(f"s_mov_b32 s{S_LOOP}, 32"))
    a(label("L_safe_loop"))
    for kind, slot in (("K", kslot(0)), ("V", vslot(0))):
        for m0, d in dma_tile(kind, slot, f"s{S_KOFF}", "safe"): a(m0); a(nop(0)); a(d)
    a(wait_vm(0)); a(barrier())
    qk = qk_mfmas()
    for kb in range(2):
        for s_ in range(8): a(k_read(0, kb, s_))
        a(wait_lgkm(0)); o += qk[32 * kb:32 * kb + 32]
    a(nop(7)); a(nop(7))
    for qb in range(4):
        t = VT + qb; s0 = Sreg(0, qb); s1 = Sreg(1, qb)
        a(valu(f"v_max3_f32 v{t}, v{s0}, v{s0+1}, v{s0+2}", [], [])); a(valu(f"v_max3_f32 v{t}, v{t}, v{s0+3}, v{s1}", [], []))
        a(valu(f"v_max3_f32 v{t}, v{t}, v{s1+1}, v{s1+2}", [], [])); a(valu(f"v_max_f32 v{t}, v{t}, v{s1+3}", [], []))
    o += xlane_reduce([VT + q for q in range(4)], "v_max_f32", TMP)
    for qb in range(4):
        a(valu(f"v_max_f32 v{VT+qb}, v{VT+qb}, v{VM+qb}", [], []))
        a(valu(f"v_sub_f32 v{VA_+qb}, v{VM+qb}, v{VT+qb}", [], [])); a(valu(f"v_mul_f32 v{VA_+qb}, s{S_C}, v{VA_+qb}", [], []))
        a(trans(f"v_exp_f32 v{VA_+qb}, v{VA_+qb}", [], [])); a(valu(f"v_mov_b32 v{VM+qb}, v{VT+qb}", [], []))
        a(valu(f"v_mul_f32 v{V_MC+qb}, s{S_C}, v{VT+qb}", [], [])); a(valu(f"v_sub_f32 v{V_MC+qb}, 0, v{V_MC+qb}", [], []))
        a(valu(f"v_mul_f32 v{V_L+qb}, v{V_L+qb}, v{VA_+qb}", [], []))
    for r in range(256):
        qb = (r >> 2) & 3; t = TMP + (r & 7)
        a(valu(f"v_accvgpr_read_b32 v{t}, a{r}", [], [])); a(valu(f"v_mul_f32 v{t}, v{t}, v{VA_+qb}", [], [])); a(valu(f"v_accvgpr_write_b32 a{r}, v{t}", [], []))
    for kb in range(2):
        for qb in range(4): o += exposed(sm_group(0, kb, qb))
    pv = pv_mfmas(0, False)
    for half in range(2):
        for db in range(8 * half, 8 * half + 8):
            for jj in range(2):
                a(v_read(0, db, jj))
            if db % 4 == 3: a(wait_lgkm(0))
        a(nop(1)); o += pv[32 * half:32 * half + 32]
    a(salu(f"s_add_u32 s{S_KOFF}, s{S_KOFF}, 16384")); a(salu(f"s_sub_u32 s{S_LOOP}, s{S_LOOP}, 1")); a(salu(f"s_cmp_lg_u32 s{S_LOOP}, 0"))
    a(barrier()); a(raw("s_cbranch_scc1 L_safe_loop", "branch"))
    a(nop(7)); a(nop(7))
    o += xlane_reduce([V_L + q for q in range(4)], "v_add_f32", TMP)
    for qb in range(4): a(trans(f"v_rcp_f32 v{V_L+qb}, v{V_L+qb}", [], []))
    a(nop(0))
    for db in range(16):
        for qb in range(4):
            o += conv_ops((db * 4 + qb) * 4, V_Q + (qb * 8 + (db >> 1)) * 4 + 2 * (db & 1), V_SP + 8 + 2 * (qb & 1))
    o += wo_setup()
    if OPT.fused: o += grp_setup() + [nop(1), mode_load()] + ring_scalars()
    for j in range(4):
        for sc, d in wo_dma(j): o += sc + [nop(0), d]
    a(wait_vm(0)); a(raw("s_branch L_p3_entry", "branch"))
    return o

def last_iter(carried):
    o = []; a = o.append
    for qb in (2, 3): o += exposed(sm_group(31, 1, qb))
    o += xlane_reduce([V_L + q for q in range(4)], "v_add_f32", V_SP)
    a(salu(f"s_mov_b32 s{S_T0}, 0x{f32bits(L_LIMIT):08x}"))
    for qb in range(4):
        a(valu(f"v_cmp_nge_f32 s[{50+2*(qb&1)}:{51+2*(qb&1)}], s{S_T0}, v{V_L+qb}", [f"v{V_L+qb}"], [f"s{50+2*(qb&1)}", f"s{51+2*(qb&1)}"]))
        if qb & 1:
            a(nop(0)); a(salu("s_or_b64 s[50:51], s[50:51], s[52:53]"))
            a(salu("s_mov_b64 s[54:55], s[50:51]") if qb == 1 else salu("s_or_b64 s[54:55], s[54:55], s[50:51]"))
    a(salu("s_cselect_b32 s50, 1, 0"))
    a(salu(f"s_lshl_b32 s51, s{S_W}, 2")); a(salu(f"s_add_u32 s51, s51, {L_VOTE}"))
    a(valu(f"v_mov_b32 v{V_SP}, s50", [], [f"v{V_SP}"])); a(valu(f"v_mov_b32 v{V_SP+1}, s51", [], [f"v{V_SP+1}"]))
    a(I(f"ds_write_b32 v{V_SP+1}, v{V_SP}", "ds", [f"v{V_SP}", f"v{V_SP+1}"], []))
    carried = carried + [[]]
    for qb in range(4): a(trans(f"v_rcp_f32 v{V_L+qb}, v{V_L+qb}", [f"v{V_L+qb}"], [f"v{V_L+qb}"]))
    a(nop(0))
    g = Gaps(pv_mfmas(31, False))
    for db in range(5, 8):
        for jj in range(2): g.put_mem(4 * (db - 5) + 2 * jj, v_read(31, db, jj))
    for db in range(8, 16):
        for jj in range(2): g.put_mem(12 + 4 * (db - 8) + 2 * jj, v_read(31, db, jj))
    cons = [(4 * db, R("v", V_POOL + 4 * (db % 8), 4)) for db in range(16)]
    lead = add_lgkm_waits(g, cons, carried)
    gp = put_wo(g, 2, 2, step=0)
    put_wo(g, 3, gp, step=0)
    left = []
    for db in range(16):
        for qb in range(4):
            ops = conv_ops((db * 4 + qb) * 4, V_Q + (qb * 8 + (db >> 1)) * 4 + 2 * (db & 1), V_SP + 8 + 2 * (qb & 1))
            if left: left += ops
            else:
                _, l2 = place_chain(g, ops, 4 * db + qb + 5, 64); left += l2
    a(lead); o += g.emit()
    a(nop(7)); o += left
    return o

WOBUF = [L_X, L_K, L_K + 32768, L_V, L_V + 32768, L_X, L_K]
V_DWO = 3; V_STO = V_DV
V_FR3 = 32; V_ACC3 = V_P; V_STG = 16
def wo_dma(j):
    out = []
    for i in range(8):
        sreg = S_T0 + (i & 1)
        out.append(([salu(f"s_mov_b32 s{sreg}, {j*128 + i*32*896}", [], [f"s{sreg}"]),
                     salu(f"s_add_u32 m0, s{S_W1K}, {WOBUF[j] + i*4096}", [f"s{S_W1K}"], ["m0"])],
                    tag(dma(V_DWO, S_WO, f"s{sreg}", 0, OPT.wo_flags), f"wo{j}")))
    return out
A_WOS = 100
V_WOW = 39
def wo_stage_loads(j):
    out = []
    for i in range(8):
        sreg = S_T0 + (i & 1)
        out.append(([salu(f"s_mov_b32 s{sreg}, {j*128 + i*32*896}", [], [f"s{sreg}"])],
                    tag(bload_f("a", A_WOS + 32 * (j - 5) + 4 * i, 4, V_DWO, S_WO, f"s{sreg}", 0, OPT.wo_flags), f"wos{j}")))
    return out
def wo_stage_write(j, i):
    r = A_WOS + 32 * (j - 5) + 4 * i
    return I(f"ds_write_b128 v{V_WOW + (j - 5) * 0}, {rng('a', r, 4)} offset:{i*4096}", "ds", [f"v{V_WOW}"] + R("a", r, 4), [])
def wo_setup():
    o = []; a = o.append
    L = f"v{V_LANE}"
    a(valu(f"v_lshrrev_b32 v1, 3, {L}", [L], ["v1"])); a(valu(f"v_and_b32 v2, 7, {L}", [L], ["v2"]))
    a(valu(f"v_lshl_add_u32 v3, s{S_W}, 3, v1", ["v1", f"s{S_W}"], ["v3"]))
    a(valu("v_bfe_u32 v1, v1, 1, 2", ["v1"], ["v1"])); a(valu("v_lshlrev_b32 v1, 1, v1", ["v1"], ["v1"]))
    a(valu("v_xor_b32 v1, v1, v2", ["v1", "v2"], ["v1"])); a(valu("v_lshlrev_b32 v1, 4, v1", ["v1"], ["v1"]))
    a(valu("v_mul_u32_u24 v3, 896, v3", ["v3"], ["v3"]))
    a(valu(f"v_add_u32 v{V_DWO}, v3, v1", ["v3", "v1"], [f"v{V_DWO}"]))
    return o
V_WOT = 2
def wo_touch_setup():
    if not OPT.wo_half:
        return [valu(f"v_lshl_add_u32 v{V_WOT}, s{S_W}, 6, v{V_LANE}", [f"v{V_LANE}"], [f"v{V_WOT}"]),
                valu(f"v_mul_u32_u24 v{V_WOT}, 896, v{V_WOT}", [f"v{V_WOT}"], [f"v{V_WOT}"])]
    return [salu("s_lshr_b32 s50, s2, 7"), salu("s_and_b32 s50, s50, 1"), salu("s_lshl_b32 s50, s50, 2"), salu(f"s_add_u32 s50, s50, s{S_W}"),
            salu("s_lshl_b32 s50, s50, 5"), valu(f"v_and_b32 v{V_WOT}, 31, v{V_LANE}", [f"v{V_LANE}"], [f"v{V_WOT}"]),
            valu(f"v_add_u32 v{V_WOT}, s50, v{V_WOT}", [f"v{V_WOT}"], [f"v{V_WOT}"]),
            valu(f"v_mul_u32_u24 v{V_WOT}, 896, v{V_WOT}", [f"v{V_WOT}"], [f"v{V_WOT}"])]
def wo_touch(j): return tag(bload(1, 1, V_WOT, S_WO, "0", j * 128, OPT.wt_flags), "wt")
def l2warm_setup():
    o = []; a = o.append
    L = f"v{V_LANE}"
    a(valu(f"v_min_u32 v20, 13, {L}", [L], ["v20"]))
    a(valu("v_cmp_lt_u32 vcc, 6, v20", ["v20"], ["vcc"])); a(valu("v_lshlrev_b32 v20, 7, v20", ["v20"], ["v20"]))
    a(valu(f"v_add_u32 v21, {CONS_OFF - 7*128}, v20", ["v20"], ["v21"]))
    a(valu("v_cndmask_b32 v20, v20, v21, vcc", ["v20", "v21", "vcc"], ["v20"]))
    a(valu(f"v_min_u32 v21, 27, {L}", [L], ["v21"])); a(salu(f"s_mul_i32 s50, s{S_W}, 28")); a(valu("v_add_u32 v21, s50, v21", ["v21"], ["v21"]))
    a(valu("v_mul_u32_u24 v22, 9363, v21", ["v21"], ["v22"])); a(valu("v_lshrrev_b32 v22, 16, v22", ["v22"], ["v22"]))
    a(valu("v_mul_u32_u24 v23, 7, v22", ["v22"], ["v23"])); a(valu("v_sub_u32 v21, v21, v23", ["v21", "v23"], ["v21"]))
    a(valu("v_mul_u32_u24 v22, 1792, v22", ["v22"], ["v22"])); a(valu("v_lshl_add_u32 v21, v21, 7, v22", ["v21", "v22"], ["v21"]))
    a(salu(f"s_lshl_b32 s50, s{S_B}, 8")); a(salu(f"s_lshl_b32 s51, s{S_H}, 4")); a(salu("s_add_u32 s50, s50, s51"))
    a(salu("s_mul_i32 s50, s50, 1792")); a(salu(f"s_mul_i32 s51, s{S_BR}, 896")); a(salu(f"s_add_u32 s{S_WARM}, s50, s51"))
    a(salu(f"s_mul_i32 s{S_WARM+1}, s{S_G}, {14*64}"))
    return o
def l2warm_loads():
    return [tag(bload(22, 1, 20, S_FL, f"s{S_WARM+1}", 0), "wt"), tag(bload(23, 1, 21, S_OUT, f"s{S_WARM}", 0), "wt")]
def put_wo(g, j, start, hi=None, step=3):
    gp = start
    for sc, d in wo_dma(j): gp = place_vmem(g, gp, sc, d, hi) + step
    return gp
def va_shift(delta):
    t = (lambda r: f"v_add_u32 v{r}, {delta}, v{r}") if delta >= 0 else (lambda r: f"v_subrev_u32 v{r}, {-delta}, v{r}")
    return [valu(t(r), [f"v{r}"], [f"v{r}"]) for r in V_VA]

def part_ops(nb, qb):
    acc = V_ACC3 + 4 * ((nb * 4 + qb) % 8)
    st = V_STG + 4 * qb + 2 * (nb & 1)
    li = V_L + qb
    ops = [valu(f"v_mul_f32 v{acc+r}, v{acc+r}, v{li}", [f"v{acc+r}", f"v{li}"], [f"v{acc+r}"]) for r in range(4)]
    ops += [valu(f"v_cvt_pk_bf16_f32 v{st}, v{acc}, v{acc+1}", [f"v{acc}", f"v{acc+1}"], [f"v{st}"]),
            valu(f"v_cvt_pk_bf16_f32 v{st+1}, v{acc+2}, v{acc+3}", [f"v{acc+2}", f"v{acc+3}"], [f"v{st+1}"])]
    return ops

A_FR3 = 0; A_SEL = 224
V_POLLA, V_POLL, V_ONE, V_ZERO, V_RLD, V_OUT = 32, 33, 34, 35, 36, 37
V_RD = 40
V_GRP = V_ARR + 3
def wo_read(nb, s_, jj):
    return ds_read_tr("a", A_FR3 + 4 * (8 * (nb & 1) + s_) + 2 * jj, V_VA[nb], s_ * 4096 + jj * 2048)

V_GA = V_ARR + 2
def grp_setup():
    return [salu(f"s_lshl_b32 s{S_T0}, s{S_G}, 4"), valu(f"v_and_b32 v{V_GA}, 3, v{V_LANE}", [f"v{V_LANE}"], [f"v{V_GA}"]),
            valu(f"v_lshlrev_b32 v{V_GA}, 2, v{V_GA}", [f"v{V_GA}"], [f"v{V_GA}"]), valu(f"v_add_u32 v{V_GA}, s{S_T0}, v{V_GA}", [f"v{V_GA}"], [f"v{V_GA}"])]
V_GA3 = 38
def grp_load(dst, tg, ga=V_GA): return tag(bload(dst, 1, ga, S_DBG, "0", 0, "sc1"), tg)
def splat(x): return x * 0x01010101
def mode_load(): return grp_load(V_ARR, "grp")
def mode_check():
    o = []; a = o.append
    a(salu(f"s_or_b32 s{S_T0}, s{S_XCC}, 0x80")); a(salu(f"s_mul_i32 s50, s{S_T0}, 0x01010101"))
    a(wait_tag("grp"))
    a(valu(f"v_and_b32 v{V_ARR}, 0x87878787, v{V_ARR}", [f"v{V_ARR}"], [f"v{V_ARR}"]))
    a(valu(f"v_cmp_eq_u32 vcc, s50, v{V_ARR}", [f"v{V_ARR}"], ["vcc"])); a(nop(0))
    a(salu("s_cmp_eq_u64 vcc, -1"))
    a(salu(f"s_cselect_b64 s[{S_LOCM}:{S_LOCM+1}], -1, 0"))
    if OPT.force_fallback: a(salu("s_cmp_eq_u32 s50, 0"))
    a(raw("s_cbranch_scc0 L_grp_far", "branch")); a(label("L_grp_ok"))
    f = [label("L_grp_far"), salu(f"s_or_b32 s{S_T0}, s{S_XCC}, 0x80"), valu(f"v_mov_b32 v{V_ARR+1}, s{S_T0}", [], []),
         valu(f"v_mov_b32 v{V_ARR+3}, 0", [], []),
         raw(f"buffer_store_byte v{V_ARR+1}, v{V_ARR+3}, s[{S_DBG}:{S_DBG+3}], s{S_SIG} offen sc1", "salu"), wait_vm(0),
         salu(f"s_mov_b32 s{S_SPIN}, {SPIN_MAX}"), label("L_grp_again"),
         salu(f"s_sub_u32 s{S_SPIN}, s{S_SPIN}, 1"), salu(f"s_cmp_eq_u32 s{S_SPIN}, 0"), raw("s_cbranch_scc1 L_grp_ok", "branch")]
    if not OPT.force_fallback:
        f += [raw(f"buffer_load_dword v{V_ARR}, v{V_GA}, s[{S_DBG}:{S_DBG+3}], 0 offen sc1", "salu"), wait_vm(0),
              valu(f"v_and_b32 v{V_ARR}, 0x87878787, v{V_ARR}", [], []), valu(f"v_cmp_eq_u32 vcc, s50, v{V_ARR}", [], []), nop(0),
              salu("s_cmp_eq_u64 vcc, -1"), salu(f"s_cselect_b64 s[{S_LOCM}:{S_LOCM+1}], -1, 0"), raw("s_cbranch_scc1 L_grp_ok", "branch")]
    f += far_read(V_ARR)
    f += [valu(f"v_and_b32 v{V_ARR+1}, 0x80808080, v{V_ARR}", [], []), valu(f"v_cmp_eq_u32 vcc, 0x80808080, v{V_ARR+1}", [], []), nop(0),
          salu("s_and_b64 s[52:53], vcc, 15"), salu("s_cmp_eq_u64 s[52:53], 15"), raw("s_cbranch_scc0 L_grp_again", "branch"),
          valu(f"v_and_b32 v{V_ARR}, 0x87878787, v{V_ARR}", [], []), valu(f"v_cmp_eq_u32 vcc, s50, v{V_ARR}", [], []), nop(0),
          salu("s_and_b64 s[52:53], vcc, 15"), salu("s_cmp_eq_u64 s[52:53], 15"),
          salu(f"s_cselect_b64 s[{S_LOCM}:{S_LOCM+1}], -1, 0")]
    if OPT.force_fallback: f.append(salu(f"s_mov_b64 s[{S_LOCM}:{S_LOCM+1}], 0"))
    f.append(raw("s_branch L_grp_ok", "branch"))
    OOL.extend(f)
    return o
def far_read(dst, ga=V_GA):
    return [valu(f"v_mov_b32 v{dst}, 0", [], []), valu(f"v_cmp_gt_u32 vcc, 4, v{V_LANE}", [], []),
            raw("s_and_saveexec_b64 s[54:55], vcc", "salu"),
            raw(f"buffer_atomic_add v{dst}, v{ga}, s[{S_DBG}:{S_DBG+3}], 0 offen sc0 sc1", "salu"), wait_vm(0),
            raw("s_mov_b64 exec, s[54:55]", "salu")]

def p3_setup():
    L = f"v{V_LANE}"
    o = [valu(f"v_lshlrev_b32 v{V_STO}, 4, {L}", [L], [f"v{V_STO}"])]
    if OPT.fused:
        o += [valu(f"v_mov_b32 v{V_ZERO}, 0", [], [f"v{V_ZERO}"]), valu(f"v_mov_b32 v{V_GA3}, v{V_GA}", [f"v{V_GA}"], [f"v{V_GA3}"])]
    else: o += far_setup()
    return o

def far_setup():
    o = []; a = o.append
    L = f"v{V_LANE}"
    a(salu(f"s_mul_i32 s{S_PART}, s{S_G}, {7*16*16*2048}"))
    a(salu(f"s_lshl_b32 s{S_T2}, s{S_H}, 15")); a(salu(f"s_add_u32 s{S_RBASE}, s{S_PART}, s{S_T2}"))
    a(salu(f"s_lshl_b32 s{S_T2}, s{S_W}, 17")); a(salu(f"s_add_u32 s{S_PART}, s{S_PART}, s{S_T2}"))
    a(salu(f"s_lshl_b32 s{S_T2}, s{S_H}, 11")); a(salu(f"s_add_u32 s{S_PART}, s{S_PART}, s{S_T2}"))
    if not OPT.fused: return o
    a(salu(f"s_or_b32 s{S_T2}, s{S_XCC}, 0xf0")); a(valu(f"v_mov_b32 v{V_ONE}, s{S_T2}", [], [f"v{V_ONE}"]))
    a(valu(f"v_lshrrev_b32 v1, 5, {L}", [L], ["v1"])); a(valu("v_lshlrev_b32 v1, 11, v1", ["v1"], ["v1"]))
    a(valu(f"v_and_b32 v2, 31, {L}", [L], ["v2"])); a(valu(f"v_lshl_add_u32 v{V_RLD}, v2, 4, v1", ["v1", "v2"], [f"v{V_RLD}"]))
    a(salu(f"s_lshl_b32 s{S_T2}, s{S_W}, 9")); a(valu(f"v_add_u32 v{V_RLD}, s{S_T2}, v{V_RLD}", [f"v{V_RLD}"], [f"v{V_RLD}"]))
    a(valu(f"v_and_b32 v1, 15, {L}", [L], ["v1"])); a(valu(f"v_lshrrev_b32 v2, 4, {L}", [L], ["v2"]))
    a(valu("v_lshrrev_b32 v4, 3, v1", ["v1"], ["v4"])); a(valu("v_and_b32 v5, 1, v2", ["v2"], ["v5"]))
    a(valu("v_and_b32 v48, 1, v1", ["v1"], ["v48"])); a(valu("v_lshlrev_b32 v48, 4, v48", ["v48"], ["v48"]))
    a(valu("v_mov_b32 v49, 0x3f80", [], ["v49"])); a(valu("v_lshlrev_b32 v49, v48, v49", ["v48", "v49"], ["v49"]))
    a(valu("v_cmp_eq_u32 vcc, v4, v5", ["v4", "v5"], ["vcc"])); a(nop(1))
    a(valu("v_cndmask_b32 v49, 0, v49, vcc", ["v49", "vcc"], ["v49"]))
    a(valu("v_bfe_u32 v50, v1, 1, 2", ["v1"], ["v50"]))
    for r in range(4):
        a(valu(f"v_cmp_eq_u32 vcc, {r}, v50", ["v50"], ["vcc"])); a(nop(1))
        a(valu("v_cndmask_b32 v51, 0, v49, vcc", ["v49", "vcc"], ["v51"]))
        a(valu(f"v_accvgpr_write_b32 a{A_SEL+r}, v51", ["v51"], [f"a{A_SEL+r}"]))
    a(salu(f"s_lshl_b32 s{S_T2}, s{S_B}, 8")); a(salu(f"s_lshl_b32 s{S_T3}, s{S_H}, 4")); a(salu(f"s_add_u32 s{S_T2}, s{S_T2}, s{S_T3}"))
    a(valu(f"v_add_u32 v{V_OUT}, s{S_T2}, v1", ["v1"], [f"v{V_OUT}"])); a(valu(f"v_mul_u32_u24 v{V_OUT}, 896, v{V_OUT}", [f"v{V_OUT}"], [f"v{V_OUT}"]))
    a(salu(f"s_mul_i32 s{S_T2}, s{S_BR}, 448")); a(salu(f"s_lshr_b32 s{S_T3}, s{S_W}, 1")); a(salu(f"s_lshl_b32 s{S_T3}, s{S_T3}, 5"))
    a(salu(f"s_add_u32 s{S_T2}, s{S_T2}, s{S_T3}")); a(salu(f"s_and_b32 s{S_T3}, s{S_W}, 1")); a(salu(f"s_lshl_b32 s{S_T3}, s{S_T3}, 3"))
    a(salu(f"s_add_u32 s{S_T2}, s{S_T2}, s{S_T3}"))
    a(valu(f"v_add_u32 v{V_OUT}, s{S_T2}, v{V_OUT}", [f"v{V_OUT}"], [f"v{V_OUT}"]))
    a(valu(f"v_lshl_add_u32 v{V_OUT}, v5, 4, v{V_OUT}", ["v5", f"v{V_OUT}"], [f"v{V_OUT}"]))
    a(valu("v_lshrrev_b32 v4, 1, v2", ["v2"], ["v4"])); a(valu(f"v_lshl_add_u32 v{V_OUT}, v4, 2, v{V_OUT}", ["v4", f"v{V_OUT}"], [f"v{V_OUT}"]))
    a(valu(f"v_lshlrev_b32 v{V_OUT}, 1, v{V_OUT}", [f"v{V_OUT}"], [f"v{V_OUT}"]))
    return o

def handoff_far():
    o = [wait_vm(0), barrier(), raw("buffer_wbl2 sc1", "salu"), wait_vm(0), barrier(),
         raw(f"buffer_store_byte v{V_ONE}, v{V_ZERO}, s[{S_DBG}:{S_DBG+3}], s{S_SIG} offen sc1", "salu"), wait_vm(0),
         salu(f"s_mov_b32 s{S_SPIN}, {SPIN_MAX}"), label("L_far_poll"),
         salu(f"s_sub_u32 s{S_SPIN}, s{S_SPIN}, 1"), salu(f"s_cmp_eq_u32 s{S_SPIN}, 0"), raw("s_cbranch_scc1 L_far_done", "branch")]
    o += far_read(V_POLL, V_GA3)
    o += [valu(f"v_and_b32 v{V_POLL}, 0xf0f0f0f0, v{V_POLL}", [], []), valu(f"v_cmp_eq_u32 vcc, 0xf0f0f0f0, v{V_POLL}", [], []), nop(0),
          salu("s_and_b64 s[52:53], vcc, 15"), salu("s_cmp_eq_u64 s[52:53], 15"), raw("s_cbranch_scc0 L_far_poll", "branch"),
          label("L_far_done"), raw("buffer_inv sc1", "salu"), wait_vm(0)]
    return o

A_PIECE = 0; A_SEL2 = 224
def red_loads(j):
    out = []
    for i in range(8):
        sr = "s52" if i % 2 == 0 else "s53"
        out.append(([salu(f"s_add_u32 {sr}, s{S_RBASE}, {j*16*32768 + i*4096}", [f"s{S_RBASE}"], [sr])],
                    tag(bload_f("a", A_PIECE + 32 * j + 4 * i, 4, V_RLD, S_WS, sr, 0, "sc1"), f"rl{j}")))
    return out
def red_mfmas(j):
    d = V_RD + 4 * (j & 1)
    return [mfma("v", d, "a", A_SEL2, "a", A_PIECE + 32 * j + 4 * i, None if i == 0 else "v", None if i == 0 else d) for i in range(8)]
def red_out(j):
    d = V_RD + 4 * (j & 1)
    return [valu(f"v_cvt_pk_bf16_f32 v{d}, v{d}, v{d+1}", [f"v{d}", f"v{d+1}"], [f"v{d}"]),
            valu(f"v_cvt_pk_bf16_f32 v{d+1}, v{d+2}, v{d+3}", [f"v{d+2}", f"v{d+3}"], [f"v{d+1}"])], tag(bstore(d, 2, V_OUT, S_OUT, "0", j * 128), f"out{j}")

A_RING = 64; A_SEL4 = 96
V_RLD4, V_OUT4, V_FLA, V_FLAG1 = 48, 49, 50, 51
def ring_scalars():
    o = []; a = o.append
    a(salu(f"s_mul_i32 s50, s{S_G}, {OPT.ring * 262144}"))
    a(salu(f"s_lshl_b32 s51, s{S_W}, 16")); a(salu(f"s_add_u32 s{S_RST}, s50, s51"))
    a(salu(f"s_lshl_b32 s51, s{S_H}, 10")); a(salu(f"s_add_u32 s{S_RST}, s{S_RST}, s51"))
    a(salu(f"s_lshl_b32 s51, s{S_H}, 14")); a(salu(f"s_add_u32 s{S_RLD}, s50, s51"))
    a(salu(f"s_mul_i32 s50, s{S_G}, {14*64}"))
    a(salu(f"s_lshl_b32 s51, s{S_W}, 4"))
    a(salu(f"s_add_u32 s{S_FPW}, s50, s51")); a(salu(f"s_add_u32 s{S_FPW}, s{S_FPW}, s{S_H}"))
    a(salu(f"s_add_u32 s{S_FCR}, s50, s51")); a(salu(f"s_add_u32 s{S_FCR}, s{S_FCR}, {CONS_OFF}"))
    a(salu(f"s_lshr_b32 s51, s{S_H}, 2")); a(salu(f"s_lshl_b32 s51, s51, 4"))
    a(salu(f"s_add_u32 s{S_FPR}, s50, s51"))
    a(salu(f"s_lshl_b32 s51, s{S_H}, 2")); a(salu(f"s_add_u32 s{S_FCW}, s50, s51"))
    a(salu(f"s_add_u32 s{S_FCW}, s{S_FCW}, s{S_W}")); a(salu(f"s_add_u32 s{S_FCW}, s{S_FCW}, {CONS_OFF}"))
    return o
def ring_setup():
    o = []; a = o.append
    L = f"v{V_LANE}"
    a(valu(f"v_and_b32 v{V_FLA}, 3, {L}", [L], [f"v{V_FLA}"])); a(valu(f"v_lshlrev_b32 v{V_FLA}, 2, v{V_FLA}", [f"v{V_FLA}"], [f"v{V_FLA}"]))
    a(valu(f"v_mov_b32 v{V_FLAG1}, 1", [], [f"v{V_FLAG1}"]))
    a(valu(f"v_and_b32 v1, 15, {L}", [L], ["v1"])); a(valu(f"v_lshrrev_b32 v2, 4, {L}", [L], ["v2"]))
    a(valu(f"v_lshlrev_b32 v{V_RLD4}, 10, v2", ["v2"], [f"v{V_RLD4}"])); a(valu(f"v_lshl_add_u32 v{V_RLD4}, v1, 4, v{V_RLD4}", ["v1", f"v{V_RLD4}"], [f"v{V_RLD4}"]))
    a(salu(f"s_lshl_b32 s{S_T1}, s{S_W}, 8")); a(valu(f"v_add_u32 v{V_RLD4}, s{S_T1}, v{V_RLD4}", [f"v{V_RLD4}"], [f"v{V_RLD4}"]))
    a(valu("v_and_b32 v4, 1, v1", ["v1"], ["v4"])); a(valu("v_lshlrev_b32 v4, 4, v4", ["v4"], ["v4"]))
    a(valu("v_mov_b32 v5, 0x3f80", [], ["v5"])); a(valu("v_lshlrev_b32 v5, v4, v5", ["v4", "v5"], ["v5"]))
    a(valu("v_lshrrev_b32 v4, 1, v1", ["v1"], ["v4"]))
    for r in range(4):
        a(valu(f"v_cmp_eq_u32 vcc, {r}, v4", ["v4"], ["vcc"])); a(nop(1))
        a(valu("v_cndmask_b32 v52, 0, v5, vcc", ["v5", "vcc"], ["v52"]))
        a(valu(f"v_accvgpr_write_b32 a{A_SEL4+r}, v52", ["v52"], [f"a{A_SEL4+r}"]))
    a(salu(f"s_lshl_b32 s{S_T0}, s{S_B}, 8")); a(salu(f"s_lshl_b32 s{S_T1}, s{S_H}, 4")); a(salu(f"s_add_u32 s{S_T0}, s{S_T0}, s{S_T1}"))
    a(valu(f"v_add_u32 v{V_OUT4}, s{S_T0}, v1", ["v1"], [f"v{V_OUT4}"])); a(valu(f"v_mul_u32_u24 v{V_OUT4}, 896, v{V_OUT4}", [f"v{V_OUT4}"], [f"v{V_OUT4}"]))
    a(salu(f"s_mul_i32 s{S_T0}, s{S_BR}, 448")); a(salu(f"s_lshl_b32 s{S_T1}, s{S_W}, 2")); a(salu(f"s_add_u32 s{S_T0}, s{S_T0}, s{S_T1}"))
    a(valu(f"v_add_u32 v{V_OUT4}, s{S_T0}, v{V_OUT4}", [f"v{V_OUT4}"], [f"v{V_OUT4}"]))
    a(valu(f"v_lshl_add_u32 v{V_OUT4}, v2, 4, v{V_OUT4}", ["v2", f"v{V_OUT4}"], [f"v{V_OUT4}"]))
    a(valu(f"v_lshlrev_b32 v{V_OUT4}, 1, v{V_OUT4}", [f"v{V_OUT4}"], [f"v{V_OUT4}"]))
    a(valu("v_cmp_gt_u32 vcc, 2, v2", ["v2"], ["vcc"])); a(salu(f"s_mov_b32 s{S_T0}, 0x7ff00000")); a(valu(f"v_mov_b32 v4, s{S_T0}", [], ["v4"]))
    a(valu(f"v_cndmask_b32 v{V_OUT4}, v4, v{V_OUT4}, vcc", ["v4", f"v{V_OUT4}", "vcc"], [f"v{V_OUT4}"]))
    return o

def flag_store(base, u, tg):
    return [salu(f"s_add_u32 s55, s{base}, {u*64}", [f"s{base}"], ["s55"])], \
           tag(I(f"buffer_store_byte v{V_FLAG1}, v{V_ZERO}, s[{S_FL}:{S_FL+3}], s55 offen", "vst", [f"v{V_FLAG1}", f"v{V_ZERO}", "s55"], data=[]), tg)
def flag_poll(base, u, dst, tg):
    return [salu(f"s_add_u32 s54, s{base}, {u*64}", [f"s{base}"], ["s54"])], tag(bload(dst, 1, V_FLA, S_FL, "s54", 0, "sc1"), tg)
def flag_check(base, u, dst, tg, name):
    OOL.extend([label(f"L_{name}_spin"), salu(f"s_add_u32 s54, s{base}, {u*64}"), salu(f"s_mov_b32 s{S_SPIN}, {SPIN_MAX}"),
                label(f"L_{name}_again"),
                salu(f"s_sub_u32 s{S_SPIN}, s{S_SPIN}, 1"), salu(f"s_cmp_eq_u32 s{S_SPIN}, 0"), raw(f"s_cbranch_scc1 L_{name}_ok", "branch"),
                raw(f"buffer_load_dword v{dst}, v{V_FLA}, s[{S_FL}:{S_FL+3}], s54 offen sc1", "salu"), wait_vm(0),
                valu(f"v_cmp_ne_u32 vcc, 0x01010101, v{dst}", [], []), nop(0),
                raw(f"s_cbranch_vccnz L_{name}_again", "branch"), raw(f"s_branch L_{name}_ok", "branch")])
    dd = (lambda n: stamp("d_" + n)) if name in (f"prod{OPT.p3detail}", f"cons{OPT.p3detail}") else (lambda n: [])
    return dd(name[:4] + "A") + [wait_tag(tg)] + dd(name[:4] + "B") + [valu(f"v_cmp_ne_u32 vcc, 0x01010101, v{dst}", [f"v{dst}"], ["vcc"]), nop(0),
            raw(f"s_cbranch_vccnz L_{name}_spin", "branch"), label(f"L_{name}_ok")] + dd(name[:4] + "C")
V_PP, V_PC = 53, 54
def ring_loads(u):
    out = []
    for i in range(4):
        sr = "s52" if i % 2 == 0 else "s53"
        out.append(([salu(f"s_add_u32 {sr}, s{S_RLD}, {(u % OPT.ring)*262144 + i*4096}", [f"s{S_RLD}"], [sr])],
                    tag(bload_f("a", A_RING + 16 * (u & 1) + 4 * i, 4, V_RLD4, S_RG, sr, 0, "sc1"), f"rl{u}")))
    return out
def ring_mfmas(u):
    d = V_RD + 4 * (u & 1)
    return [mfma("v", d, "a", A_SEL4, "a", A_RING + 16 * (u & 1) + 4 * i, None if i == 0 else "v", None if i == 0 else d) for i in range(4)]
def ring_out(u):
    d = V_RD + 4 * (u & 1)
    return [valu(f"v_cvt_pk_bf16_f32 v{d}, v{d}, v{d+1}", [f"v{d}", f"v{d+1}"], [f"v{d}"]),
            valu(f"v_cvt_pk_bf16_f32 v{d+1}, v{d+2}, v{d+3}", [f"v{d+2}", f"v{d+3}"], [f"v{d+1}"])], tag(bstore(d, 2, V_OUT4, S_OUT, "0", u * 64, OPT.out_flags), f"out{u}")

def p3_stream(local, carried):
    o = []; a = o.append
    NS, D = OPT.ring, OPT.prod_delay
    Q = lambda u: 8 * u + 7
    if OPT.tmpl == 0:
        T = dict(st=[0, 1, 2, 3], sig=(7, 5), poll=(12, 5), chk=(15, 7), ld=[(16, 7), (17, 7), (18, 7), (19, 7)], csig=(22, 3), out=(30, 5),
                 cpoll=(-4, 3), cchk=(-1, 3), wo=[(-4, 7), (-3, 3), (-3, 7), (-2, 7)], va=((0, 85), (1, 61), (2, 69), (3, 101)))
    else:
        T = dict(st=[0, 2, 4, 5], sig=(8, 5), poll=(13, 7), chk=(16, 7), ld=[(17, 3), (17, 7), (19, 3), (19, 7)], csig=(22, 3), out=(30, 5),
                 cpoll=(-4, 7), cchk=(-1, 3), wo=[(-6, 7), (-2, 7), (-1, 5), (-1, 7)], va=((0, 85), (1, 37), (2, 69), (3, 101)))
    ins = {}
    if local:
        for u in range(14):
            m = 8 * (Q(u) + 22 + D) - 1
            if m < 895: ins[m] = u
    ms = []; pos = {}; redpos = {}
    for m in range(896):
        j, i = m >> 7, m & 127
        nb, qb, s_ = i >> 5, (i >> 3) & 3, i & 7
        acc = V_ACC3 + 4 * ((nb * 4 + qb) % 8)
        pos[m] = len(ms)
        ms.append(mfma("v", acc, "a", A_FR3 + 4 * (8 * (nb & 1) + s_), "v", V_Q + (qb * 8 + s_) * 4,
                       None if s_ == 0 else "v", None if s_ == 0 else acc))
        if m in ins:
            u = ins[m]; redpos[u] = len(ms); ms += ring_mfmas(u)
    g = Gaps(ms); N = g.n
    P = lambda j, i: pos[128 * j + i]
    def G(period, off):
        m = 8 * period + off
        return pos[m] if 0 <= m < 896 else None
    for j in range(7):
        for nb in range(4):
            jn, nbn = (j, nb + 1) if nb < 3 else (j + 1, 0)
            if jn > 6: continue
            for s_ in range(8):
                for jj in range(2): g.put_mem(P(j, 32 * nb + 4 * s_ + 2 * jj), wo_read(nbn, s_, jj))
    cons = []
    for j in range(7):
        for nb in range(4):
            for s_ in (0, 2, 4, 6): cons.append((P(j, 32 * nb + s_), R("a", A_FR3 + 4 * (8 * (nb & 1) + s_), 8)))
    cons.sort()
    def put_vm(k, sc, d):
        assert g.mem[k] is None and not g.post[k], (k, d.text)
        for n, x in enumerate(reversed(sc)):
            kk = k - 1 - n
            assert kk >= 0
            assert not (g.mem[kk] is not None and g.mem[kk].kind == "dma" and "m0" in x.wr)
            g.pre[kk].append(x)
        g.mem[k] = d
    def put_seq(k, seq):
        assert g.mem[k] is None and not g.post[k], k
        g.post[k] = seq
    for j in range(6):
        need = not (OPT.wo_stage and j + 1 >= 5)
        if OPT.stagger:
            sfx = "l" if local else "f"
            for w in range(4):
                k = P(j, 94 - OPT.stagger * (3 - w))
                wt = []
                if need:
                    x = wait_tag(f"wo{j+1}"); x.meta["pseudo"] = True
                    if w < 3: x.meta["notrim"] = True
                    wt = [x]
                g.pre[k] += [salu(f"s_bitcmp1_b32 s{S_WM}, {w}", [], ["scc"]), raw(f"s_cbranch_scc1 L_bar{sfx}{j}_{w}", "branch")] + wt + [label(f"L_barret{sfx}{j}_{w}")]
                OOL_LATE.append((f"L_bar{sfx}{j}_{w}", wt, f"L_barret{sfx}{j}_{w}"))
        else:
            k = P(j, 91)
            g.pre[k] += ([wait_tag(f"wo{j+1}")] if need else []) + [barrier()]
        sh = va_shift(WOBUF[j + 1] - WOBUF[j])
        for n, at in T['va']:
            kk = P(j, at); g.vec[kk].append(sh[n])
    if OPT.wo_stage:
        items = wo_dma(4) + wo_stage_loads(5) + wo_stage_loads(6)
        slots = [(0, 3), (0, 5), (0, 7), (1, 1), (1, 3), (1, 5), (1, 7)] + [(per, off) for per in range(2, 7) for off in (3, 5, 7)] + [(7, 5), (7, 7)]
        if OPT.tmpl == 1:
            slots = [(0, 3), (0, 5), (0, 7), (1, 1), (1, 3), (1, 5), (1, 7)] + [(per, off) for per in range(2, 7) for off in (3, 5, 7)] + [(7, 5), (7, 7)]
        for (sc, d), (per, off) in zip(items, slots): put_vm(G(per, off), sc, d)
        for j in (5, 6):
            jj_ = j - 3
            g.vec[P(jj_, 1)].insert(0, valu(f"v_add_u32 v{V_WOW}, {(WOBUF[j] - (WOBUF[j-1] if j == 6 else 0)) & 0xffffffff}, v{V_WOW}", [f"v{V_WOW}"], [f"v{V_WOW}"]))
            for i in range(8):
                u0 = 2 * jj_ + (i >> 2)
                per, off = Q(u0) + T['wo'][i & 3][0], T['wo'][i & 3][1]
                k = G(per, off)
                assert g.mem[k] is None
                g.mem[k] = wo_stage_write(j, i)
            u1 = 2 * jj_
            g.pre[G(Q(u1) + T['wo'][0][0], T['wo'][0][1]) - 1].append(wait_tag(f"wos{j}"))
    else:
      for j in (2, 3):
        items = wo_dma(j + 3)
        for n, (sc, d) in enumerate(items):
            u0 = 2 * j + (n >> 2)
            per, off = Q(u0) + T['wo'][n & 3][0], T['wo'][n & 3][1]
            put_vm(G(per, off), sc, d)
    lead = add_lgkm_waits(g, cons, carried)
    stores = {}; sgap = {}
    for u in range(14):
        j, nb = u >> 1, 2 * (u & 1) + 1
        for qb in range(4):
            sreg = S_T2 + (qb & 1)
            if local:
                st = ([salu(f"s_add_u32 s{sreg}, s{S_RST}, {(u % NS)*262144 + qb*16384}", [f"s{S_RST}"], [f"s{sreg}"])],
                      tag(bstore(V_STG + 4 * qb, 4, V_STO, S_RG, f"s{sreg}", 0, OPT.last_st if u >= 14 - NS else ""), f"st{u}"))
            else:
                so = j * 16 * 16 * 2048 + qb * 16 * 2048 + (nb >> 1) * 1024
                st = ([salu(f"s_add_u32 s{sreg}, s{S_PART}, {so}", [f"s{S_PART}"], [f"s{sreg}"])],
                      tag(bstore(V_STG + 4 * qb, 4, V_STO, S_WS, f"s{sreg}", 0), f"st{u}"))
            stores[(u, qb)] = st
            k = G(Q(u) + T['st'][qb], 3)
            sgap[(u, qb)] = k
            if k is not None: put_vm(k, *st)
    done = {}; out_left = []
    if local:
        for u in range(14):
            dd = (lambda n: stamp("d_" + n)) if u == OPT.p3detail else (lambda n: [])
            if u >= NS:
                kp, kc = G(Q(u) + T['cpoll'][0], T['cpoll'][1]), G(Q(u) + T['cchk'][0], T['cchk'][1])
                put_vm(kp, *flag_poll(S_FCR, u - NS, V_PC, f"pc{u}"))
                put_seq(kc, flag_check(S_FCR, u - NS, V_PC, f"pc{u}", f"cons{u}"))
            done[u] = "sig"
            k = G(Q(u) + T['sig'][0], T['sig'][1])
            if k is None or sgap[(u, 3)] is None: continue
            sc, d = flag_store(S_FPW, u, f"sig{u}")
            g.pre[k - 1] += dd("sigA") + [wait_tag(f"st{u}")] + dd("sigB"); put_vm(k, sc, d)
            done[u] = "poll"
            k = G(Q(u) + T['poll'][0] + D, T['poll'][1])
            if k is None: continue
            put_vm(k, *flag_poll(S_FPR, u, V_PP, f"pp{u}"))
            done[u] = "check"
            k = G(Q(u) + T['chk'][0] + D, T['chk'][1])
            if k is None: continue
            put_seq(k, flag_check(S_FPR, u, V_PP, f"pp{u}", f"prod{u}"))
            done[u] = "loads"
            if u not in redpos: continue
            for n, (sc, d) in enumerate(ring_loads(u)): put_vm(G(Q(u) + T['ld'][n][0] + D, T['ld'][n][1]), sc, d)
            g.pre[redpos[u] - 1] += dd("rlA") + [wait_tag(f"rl{u}")] + dd("rlB")
            if u <= 13 - NS: put_vm(G(Q(u) + T['csig'][0] + D, T['csig'][1]), *flag_store(S_FCW, u, f"csig{u}"))
            done[u] = "out"
            cv, st = ring_out(u)
            if u + 1 in redpos:
                g.vec[redpos[u + 1]] += cv
                put_vm(G(Q(u) + T['out'][0] + D, T['out'][1]), [], st)
                done[u] = "all"
    tail_main = []
    for p in range(112):
        j, nb, qb = p >> 4, (p >> 2) & 3, p & 3
        ops = part_ops(nb, qb)
        slots = [G(p + 2, 0), G(p + 2, 1), G(p + 2, 1), G(p + 2, 2), G(p + 2, 4), G(p + 2, 6)]
        if slots[0] is None:
            tail_main += ops
        else:
            for x, k in zip(ops, slots): g.vec[k].append(x)
        if nb & 1:
            u = 2 * j + (nb >> 1)
            if sgap[(u, qb)] is None: tail_main += stores[(u, qb)][0] + [nop(1), stores[(u, qb)][1]]
    if OPT.p3_tiles and local:
        for j in range(1, 7): g.pre[P(j, 0)] = stamp(f"tile{j}") + g.pre[P(j, 0)]
    if lead is not None: a(lead)
    em = g.emit()
    if "allst" in OPT.p3_drop: em = [x for x in em if x.kind != "vst"]
    if "pst" in OPT.p3_drop: em = [x for x in em if not (x.kind == "vst" and x.meta.get("tag", "").startswith("st"))]
    if "nospin" in OPT.p3_drop: em = [x for x in em if not (x.kind == "branch" and "vccnz" in x.text)]
    if "novm" in OPT.p3_drop: em = [x for x in em if not (x.kind == "wait" and "vmtags" in x.meta and not x.meta["vmtags"][0].startswith("wo"))]
    if "nold" in OPT.p3_drop: em = [x for x in em if not (x.kind == "vld" and x.meta.get("tag", "").startswith("rl"))]
    o += stamp("p3_stream_start") if (local or not OPT.fused) else []
    o += em
    if local or not OPT.fused: o += stamp("p3_mfma_end")
    a(nop(7)); o += exposed(tail_main)
    if local:
        todo = [u for u in range(14) if done[u] != "all"]
        LD = lambda u: [x for sc, d in ring_loads(u) for x in sc + [d]]
        POLL = lambda u: (lambda p: p[0] + [p[1]])(flag_poll(S_FPR, u, V_PP, f"pp{u}"))
        CHK = lambda u: flag_check(S_FPR, u, V_PP, f"pp{u}", f"prod{u}")
        SIG = lambda u: (lambda p: [wait_tag(f"st{u}")] + p[0] + [p[1]])(flag_store(S_FPW, u, f"sig{u}"))
        OUT = lambda u: (lambda p: p[0] + [p[1]])(ring_out(u))
        if OPT.tail2 and [done[u] for u in todo] == ["out", "loads", "poll", "sig"] and todo == [10, 11, 12, 13]:
            o += LD(11) + POLL(12) + SIG(13) + stamp("x_last_signal") + OUT(10)
            o += CHK(12) + LD(12) + [wait_tag("rl11")] + ring_mfmas(11)
            o += POLL(13) + CHK(13) + LD(13)
            o += [wait_tag("rl12")] + ring_mfmas(12) + [nop(3)] + OUT(11)
            o += [wait_tag("rl13")] + ring_mfmas(13) + [nop(3)] + OUT(12) + [nop(7)] + OUT(13)
        else:
            for u in todo:
                if done[u] == "sig": o += SIG(u)
            o += stamp("x_last_signal")
            for u in todo:
                if done[u] != "out":
                    if done[u] in ("sig", "poll"): o += POLL(u)
                    if done[u] in ("sig", "poll", "check"): o += CHK(u)
                    o += LD(u) + [wait_tag(f"rl{u}")] + ring_mfmas(u) + [nop(7)]
                o += OUT(u)
    return o

def phase3():
    o = []; a = o.append
    a(label("L_p3_entry"))
    a(wait_tag("wt", "wo0")); a(raw("s_waitcnt lgkmcnt(0)", "wait", lgkm=0)); a(barrier())
    a(valu(f"v_mov_b32 v1, {L_VOTE}", [], ["v1"]))
    a(ds_read128("v", V_SP, 1, 0)); a(wait_lgkm(0))
    a(valu(f"v_or3_b32 v{V_SP}, v{V_SP}, v{V_SP+1}, v{V_SP+2}", R("v", V_SP, 3), [f"v{V_SP}"]))
    a(valu(f"v_or_b32 v{V_SP}, v{V_SP}, v{V_SP+3}", [f"v{V_SP}", f"v{V_SP+3}"], [f"v{V_SP}"])); a(nop(0))
    a(valu(f"v_readfirstlane_b32 s50, v{V_SP}", [f"v{V_SP}"], ["s50"])); a(nop(3))
    a(salu(f"s_cmp_eq_u32 s{S_SAFE}, 0")); a(salu("s_cselect_b32 s50, s50, 0"))
    a(salu("s_cmp_lg_u32 s50, 0")); a(raw("s_cbranch_scc1 L_restart", "branch"))
    OOL.extend([label("L_restart"), wait_vm(0), raw("s_waitcnt lgkmcnt(0)", "wait", lgkm=0), barrier(),
                salu(f"s_mov_b32 s{S_SAFE}, 1"), raw("s_branch L_again", "branch")])
    o += p3_setup()
    if OPT.stagger: o += [salu(f"s_lshl_b32 s{S_WM}, 1, s{S_W}")]
    if OPT.fused: o += ring_setup()
    o += va_shift(WOBUF[0] - L_V)
    if OPT.fused: o += mode_check()
    carried = []
    for s_ in range(8):
        for jj in range(2):
            r = wo_read(0, s_, jj); a(r); carried.append(r.wr)
            if len(carried) == 14: a(wait_lgkm(6)); carried = carried[-6:]
    a(barrier())
    if OPT.wo_stage:
        a(valu(f"v_lshlrev_b32 v{V_WOW}, 4, v{V_LANE}", [f"v{V_LANE}"], [f"v{V_WOW}"]))
        a(valu(f"v_add_u32 v{V_WOW}, s{S_W1K}, v{V_WOW}", [f"v{V_WOW}"], [f"v{V_WOW}"]))
    else:
        for sc, d in wo_dma(4): o += sc + [nop(0), d]
    if not OPT.fused:
        return o, p3_stream(False, carried) + stamp("p3_end") + ([wait_vm(0)] if OPT.stamps else []) + stamp("rt_end"), []
    o += [salu(f"s_cmp_eq_u32 s{S_LOCM}, 0"), raw("s_cbranch_scc1 L_p3_far", "branch")]
    loc = p3_stream(True, carried)
    loc += stamp("p3_end") + ([wait_vm(0)] if OPT.stamps else []) + stamp("rt_end")
    far = [label("L_p3_far")] + far_setup() + p3_stream(False, carried) + handoff_far()
    for j in range(7):
        for sc, d in red_loads(j): far += sc + [d]
    for j in range(7):
        far.append(wait_tag(f"rl{j}"))
        far += red_mfmas(j)
        if j > 0:
            cv, stt = red_out(j - 1); far += cv + [stt]
    far.append(nop(7))
    cv, stt = red_out(6); far += cv + [stt]
    far += [wait_vm(0), raw("s_endpgm", "branch")]
    return o, loc, far

def dump_regs(base, n, agpr=False):
    o = [wait_vm(0), raw("s_waitcnt lgkmcnt(0)", "wait", lgkm=0), nop(7), nop(7),
         salu(f"s_lshl_b32 s{S_T0}, s2, 2"), salu(f"s_add_u32 s{S_T0}, s{S_T0}, s{S_W}"),
         salu(f"s_mul_i32 s{S_T0}, s{S_T0}, {n*256}"), valu(f"v_lshlrev_b32 v1, 2, v{V_LANE}", [f"v{V_LANE}"], ["v1"])]
    for r in range(n):
        if agpr:
            o.append(valu(f"v_accvgpr_read_b32 v2, a{base+r}", [f"a{base+r}"], ["v2"])); o.append(bstore(2, 1, 1, S_WS, f"s{S_T0}", 0))
        else:
            o.append(bstore(base + r, 1, 1, S_WS, f"s{S_T0}", 0))
        o.append(salu(f"s_add_u32 s{S_T0}, s{S_T0}, 256"))
        if r % 32 == 31 or agpr: o.append(wait_vm(0))
    return o

def stamp_out():
    if not OPT.stamps: return []
    if OPT.dma_stamps: STAMPS[:] = [f"dma{i}" for i in range(10)] + ["loopcyc"]
    if OPT.bar_stamps: STAMPS.extend(["acc_vm", "acc_bar"])
    n = len(STAMPS)
    o = [raw("s_waitcnt lgkmcnt(0)", "wait", lgkm=0), salu(f"s_cmp_lg_u32 s{S_W}, 0"), raw("s_cbranch_scc1 L_nostamp", "branch")]
    if OPT.stamp_dbg >= 0:
        o += [salu(f"s_cmp_lg_u32 s2, {OPT.stamp_dbg}"), raw("s_cbranch_scc1 L_nostamp", "branch")]
        o += [salu("s_load_dwordx2 s[36:37], s[0:1], 88"), raw("s_waitcnt lgkmcnt(0)", "wait", lgkm=0)]
        o += [salu(f"s_mov_b32 s{S_WS}, s36"), salu(f"s_mov_b32 s{S_WS+1}, s37"), salu(f"s_mov_b32 s{S_WS+2}, 256"), salu(f"s_mov_b32 s{S_T0}, 0")]
    else:
        o.append(salu(f"s_mul_i32 s{S_T0}, s2, 64")); o.append(salu(f"s_add_u32 s{S_T0}, s{S_T0}, {STAMP_OFF}"))
        o.append(salu(f"s_mov_b32 s{S_WS+2}, {STAMP_OFF + 256*64}"))
    o.append(valu("v_mov_b32 v1, 0", [], ["v1"]))
    for k in range(n):
        if OPT.stamp_dbg >= 0:
            ref = 0 if STAMPS[k].startswith("rt") else 1
            o.append(salu(f"s_sub_u32 s{S_T1}, s{S_STAMP+2*k}, s{S_STAMP+2*ref}"))
            o.append(valu(f"v_mov_b32 v2, s{S_T1}", [], ["v2"]))
        elif STAMPS[k] == "loopcyc": o.append(valu("v_mov_b32 v2, s100", [], ["v2"]))
        elif STAMPS[k] == "acc_vm": o.append(valu("v_mov_b32 v2, s92", [], ["v2"]))
        elif STAMPS[k] == "acc_bar": o.append(valu("v_mov_b32 v2, s93", [], ["v2"]))
        else:
            o.append(valu(f"v_mov_b32 v2, s{S_STAMP+2*k}", [], ["v2"]))
        o.append(bstore(2, 1, 1, S_WS, f"s{S_T0}", 4 * k)); o.append(wait_vm(0))
    o.append(label("L_nostamp"))
    return o

def finish(): return [wait_vm(0), label("L_end"), raw("s_endpgm", "branch")]

def trip_seq(ex):
    return [raw("s_memtime s[98:99]", "salu"), raw("s_memrealtime s[100:101]", "salu"), raw("s_waitcnt lgkmcnt(0)", "wait", lgkm=0),
            salu(f"s_mov_b32 s99, m0"), salu(f"s_mov_b32 m0, s{S_LOOP}"), nop(0), valu(f"v_writelane_b32 v1, s98, m0", ["s98"], ["v1"]),
            salu(f"s_add_u32 m0, s{S_LOOP}, 8"), nop(0), valu(f"v_writelane_b32 v1, s100, m0", ["s100"], ["v1"]),
            salu("s_mov_b32 m0, s99"), salu(f"s_cmp_lg_u32 s{S_LOOP}, {ex}")]
def build(debug=None):
    _stamp_n[0] = 0; STAMPS.clear(); OOL.clear(); OOL_LATE.clear()
    pre = setup() + phase1()
    if debug == "p1":
        pre += stamp("rt_end")
        resolve_vm(pre, [])
        return pre + stamp_out() + finish()
    if debug == "q":
        resolve_vm(pre, []); check(pre, "pre")
        return pre + dump_regs(V_Q, 128) + finish()
    if OPT.dma_mode == "cluster":
        OPT.dma_gaps = ([21, 23, 25, 27], [101, 103, 105, 107]); OPT.nv_prev = 0
    elif OPT.dma_mode == "cluster2":
        OPT.dma_gaps = ([41, 43, 47, 49], [101, 103, 105, 107]); OPT.nv_prev = 0
    NCUR = len(OPT.dma_gaps[1])
    pre += [salu(f"s_cmp_lg_u32 s{S_SAFE}, 0"), raw("s_cbranch_scc1 L_safe_attn", "branch")]
    p, carried = pre_iter(); pre += p
    def batch(t):
        return dma_tile("V", vslot(t + 3), f"s{S_VOFF}", f"V{t+3}") + dma_tile("K", kslot(t + 5), f"s{S_KOFF}", f"K{t+5}")
    pre += wo_setup()
    if OPT.fused: pre += grp_setup()
    def ex0(g, kb):
        put_wo(g, 0, 3, kb, step=8)
    vf0 = OPT.vfirst
    if OPT.early_trips: OPT.vfirst = OPT.vfirst_early
    s0, carried = attn_iter(0, carried, wait_tag("V1", "K2"), [], batch(0)[:NCUR], first=True, adv=False, extra=ex0)
    OPT.vfirst = vf0
    pre += s0
    pre.append(salu(f"s_mov_b32 s{S_LOOP}, 7"))
    if OPT.bar_stamps: pre += [salu("s_mov_b32 s92, 0"), salu("s_mov_b32 s93, 0")]
    pre += stamp("loop_start") + (stamp("rt_ls") if (OPT.bar_stamps or OPT.trip_stamps) else [])
    def loop_body(name):
        nonlocal carried
        lp = [label(name)]
        for u in range(4):
            t = 1 + u
            s, carried = attn_iter(t, carried, wait_vm(12), batch(t - 1)[NCUR:], batch(t)[:NCUR], loopctl=(u == 3), loop_body=True)
            if OPT.dma_stamps and u == 1:
                s2 = []; n = 0
                for x in s:
                    if x.kind == "dma" and n < 5:
                        s2 += [raw(f"s_memtime s[{80+4*n}:{81+4*n}]", "salu"), x, raw(f"s_memtime s[{82+4*n}:{83+4*n}]", "salu")]; n += 1
                    else: s2.append(x)
                s = s2
            lp += s
        return lp
    first_loop = []
    if OPT.early_trips:
        vf = OPT.vfirst; OPT.vfirst = OPT.vfirst_early
        pd = OPT.pad_iter; OPT.pad_iter = OPT.pad_early
        vl = OPT.v_lead; OPT.v_lead = OPT.v_lead_early
        OPT.loop_exit = 7 - OPT.early_trips
        first_loop = loop_body("L_attn_early") + (trip_seq(OPT.loop_exit) if OPT.trip_stamps else []) + [raw("s_cbranch_scc1 L_attn_early", "branch")]
        OPT.vfirst = vf; OPT.loop_exit = 0; OPT.pad_iter = pd; OPT.v_lead = vl
    loop = loop_body("L_attn")
    if OPT.trip_stamps: loop += trip_seq(0)
    if OPT.loop_nodma: loop = [x for x in loop if x.kind != "dma"]
    if OPT.loop_nods: loop = [x for x in loop if x.kind != "ds" and not (x.kind == "wait" and "lgkm" in x.meta and x.meta["lgkm"] > 0)]
    if OPT.loop_nomfma: loop = [(nop(1) if x.kind == "mfma" else x) for x in loop]
    if OPT.loop_novalu: loop = [x for x in loop if x.kind not in ("valu", "trans")]
    if OPT.loop_dma_every > 1:
        cnt = [0]
        def keep(x):
            if x.kind != "dma": return True
            cnt[0] += 1
            return cnt[0] % OPT.loop_dma_every == 0
        loop = [x for x in loop if keep(x)]
    loop.append(raw("s_cbranch_scc1 L_attn", "branch"))
    post = stamp("loop_end") + (stamp("rt_le") if OPT.bar_stamps else [])
    if OPT.trip_stamps:
        post += [valu(f"v_lshlrev_b32 v2, 2, v{V_LANE}", [], ["v2"]), salu(f"s_mul_i32 s{S_T1}, s2, 64"),
                 salu(f"s_add_u32 s{S_T1}, s{S_T1}, {STAMP_OFF + 256*64}"), salu(f"s_mov_b32 s{S_WS+2}, {STAMP_OFF + 2*256*64}"),
                 valu("v_cmp_gt_u32 vcc, 16, v0", ["v0"], ["vcc"]), salu(f"s_cmp_eq_u32 s{S_W}, 0"), raw("s_cselect_b64 s[50:51], vcc, 0", "salu"),
                 raw("s_mov_b64 s[54:55], exec", "salu"), raw("s_mov_b64 exec, s[50:51]", "salu"), raw("s_cbranch_execz L_notrip", "branch"),
                 raw(f"buffer_store_dword v1, v2, s[{S_WS}:{S_WS+3}], s{S_T1} offen", "salu"), wait_vm(0), label("L_notrip"), raw("s_mov_b64 exec, s[54:55]", "salu"), wait_vm(0)]
    def ex29(g, kb):
        if OPT.fused: place_vmem(g, 40, [], mode_load(), kb)
        gp = 50
        for j in OPT.wo_touch: gp = place_vmem(g, gp, [], wo_touch(j), kb) + 12
        if OPT.l2warm and OPT.fused:
            gp = 8
            for d in l2warm_loads(): gp = place_vmem(g, gp, [], d, kb) + 10
    post += wo_touch_setup()
    if OPT.l2warm and OPT.fused: post += l2warm_setup()
    s, carried = attn_iter(29, carried, wait_tag("V30", "K32"), batch(28)[NCUR:4], [], adv=False,
                           extra=ex29)
    post += s
    def ex30(g, kb):
        put_wo(g, 1, 3, kb, step=8)
        gp = 12
        for j in OPT.wo_touch30: gp = place_vmem(g, gp, [], wo_touch(j), kb) + 30
        if OPT.fused:
            k = 2
            for x in ring_scalars(): k = put_scalar(g, k, x) + 1
    s, carried = attn_iter(30, carried, wait_tag("V31"), [], [], adv=False, extra=ex30)
    post += s
    post += last_iter(carried)
    post += stamp("attn_end")
    if debug == "o":
        tailq = dump_regs(V_Q, 128)
    elif debug == "l":
        tailq = dump_regs(V_L, 4)
    else:
        common, loc, far = phase3()
        tailq = common
    post += tailq
    q = resolve_vm(pre, [])
    qexit = ["V30"] * 4 + ["K32"] * 4 + ["V31"] * NCUR
    qb_ = resolve_vm(post, qexit)
    if debug is None:
        resolve_vm(loc, qb_); resolve_vm(far, qb_)
        if far and not OPT.p3_drop: check(loop[1:] + post + far[1:], "loop+post+far", init_lgkm=[x.wr for x in pre if x.kind == "ds"][-8:], init_vm=[[]] * (8 + NCUR))
        post = post + loc
        OOL.extend(far)
    if not (OPT.p1_nowait or OPT.p1_noread or OPT.p1_drop or OPT.loop_nodma or OPT.loop_dma_every > 1 or OPT.loop_nods or OPT.loop_nomfma or OPT.loop_novalu): check(pre + loop[1:] + loop[1:], "pre+loop")
    if not (OPT.p3_drop or OPT.loop_nodma or OPT.loop_dma_every > 1 or OPT.loop_nods or OPT.loop_nomfma or OPT.loop_novalu): check(loop[1:] + post, "loop+post", init_lgkm=[x.wr for x in pre if x.kind == "ds"][-8:], init_vm=[[]] * (8 + NCUR))
    for lab, wt, ret in OOL_LATE:
        OOL.append(label(lab))
        for x in wt: OOL.append(I(x.text, "wait", vm=x.meta["vm"]))
        OOL.extend([barrier(), raw(f"s_branch {ret}", "branch")])
    OOL.extend(safe_attn())
    if first_loop: check(pre + first_loop[1:] + first_loop[1:] + loop[1:], "pre+early+loop")
    return pre + first_loop + loop + post + stamp_out() + finish() + OOL

def reduce_kernel():
    o = []; a = o.append
    a(salu("s_cmp_ge_u32 s2, 256")); a(raw("s_cbranch_scc1 R_end", "branch"))
    a(salu("s_load_dwordx2 s[4:5], s[0:1], 80")); a(salu("s_load_dwordx2 s[6:7], s[0:1], 96"))
    a(valu("v_lshrrev_b32 v1, 6, v0", ["v0"], ["v1"])); a(valu("v_and_b32 v0, 63, v0", ["v0"], ["v0"]))
    a(valu("v_readfirstlane_b32 s32, v1", ["v1"], ["s32"]))
    a(salu("s_lshr_b32 s33, s2, 4")); a(salu("s_and_b32 s34, s2, 15"))
    a(salu("s_lshr_b32 s35, s33, 3")); a(salu("s_and_b32 s36, s33, 7"))
    a(salu("s_lshr_b32 s37, s32, 1")); a(salu("s_and_b32 s38, s32, 1"))
    a(valu("v_lshrrev_b32 v2, 5, v0", ["v0"], ["v2"])); a(valu("v_lshlrev_b32 v2, 11, v2", ["v2"], ["v2"]))
    a(valu("v_and_b32 v3, 31, v0", ["v0"], ["v3"])); a(valu("v_lshl_add_u32 v2, v3, 4, v2", ["v3", "v2"], ["v2"]))
    a(salu("s_lshl_b32 s39, s37, 10")); a(salu("s_lshl_b32 s40, s38, 9")); a(salu("s_add_u32 s39, s39, s40"))
    a(valu("v_add_u32 v2, s39, v2", ["v2"], ["v2"]))
    a(valu("v_and_b32 v8, 15, v0", ["v0"], ["v8"])); a(valu("v_lshrrev_b32 v9, 4, v0", ["v0"], ["v9"]))
    a(valu("v_lshrrev_b32 v10, 3, v8", ["v8"], ["v10"])); a(valu("v_and_b32 v11, 1, v9", ["v9"], ["v11"]))
    a(valu("v_and_b32 v12, 1, v8", ["v8"], ["v12"])); a(valu("v_lshlrev_b32 v12, 4, v12", ["v12"], ["v12"]))
    a(valu("v_mov_b32 v13, 0x3f80", [], ["v13"])); a(valu("v_lshlrev_b32 v13, v12, v13", ["v12", "v13"], ["v13"]))
    a(valu("v_cmp_eq_u32 vcc, v10, v11", ["v10", "v11"], ["vcc"])); a(nop(1))
    a(valu("v_cndmask_b32 v13, 0, v13, vcc", ["v13", "vcc"], ["v13"]))
    a(valu("v_bfe_u32 v14, v8, 1, 2", ["v8"], ["v14"]))
    for r in range(4):
        a(valu(f"v_cmp_eq_u32 vcc, {r}, v14", ["v14"], ["vcc"])); a(nop(1))
        a(valu(f"v_cndmask_b32 v{4+r}, 0, v13, vcc", ["v13", "vcc"], [f"v{4+r}"]))
    a(salu("s_lshl_b32 s41, s36, 8")); a(salu("s_lshl_b32 s42, s34, 4")); a(salu("s_add_u32 s41, s41, s42"))
    a(valu("v_add_u32 v3, s41, v8", ["v8"], ["v3"])); a(valu("v_mul_u32_u24 v3, 896, v3", ["v3"], ["v3"]))
    a(salu("s_mul_i32 s42, s35, 448")); a(salu("s_lshl_b32 s43, s37, 5")); a(salu("s_add_u32 s42, s42, s43"))
    a(salu("s_lshl_b32 s43, s38, 3")); a(salu("s_add_u32 s42, s42, s43"))
    a(valu("v_add_u32 v3, s42, v3", ["v3"], ["v3"]))
    a(valu("v_lshl_add_u32 v3, v11, 4, v3", ["v11", "v3"], ["v3"]))
    a(valu("v_lshrrev_b32 v10, 1, v9", ["v9"], ["v10"])); a(valu("v_lshl_add_u32 v3, v10, 2, v3", ["v10", "v3"], ["v3"]))
    a(valu("v_lshlrev_b32 v3, 1, v3", ["v3"], ["v3"]))
    a(raw("s_waitcnt lgkmcnt(0)", "wait", lgkm=0))
    for base, lo, size in ((8, 6, 16 * 7 * 16 * 16 * 2048), (12, 4, 8 * 256 * 896 * 2)):
        a(salu(f"s_mov_b32 s{base}, s{lo}")); a(salu(f"s_mov_b32 s{base+1}, s{lo+1}"))
        a(salu(f"s_mov_b32 s{base+2}, {size}")); a(salu(f"s_mov_b32 s{base+3}, 0x20000"))
    a(salu(f"s_mul_i32 s44, s33, {7*16*32768}")); a(salu("s_lshl_b32 s45, s34, 15")); a(salu("s_add_u32 s44, s44, s45"))
    for j in range(7):
        for i in range(8):
            a(salu(f"s_add_u32 s46, s44, {j*16*32768 + i*4096}"))
            a(tag(bload(16 + (j * 8 + i) * 4, 4, 2, 8, "s46", 0), f"p{j}"))
    for j in range(7):
        a(wait_tag(f"p{j}"))
        d = 240 + 4 * (j & 1)
        for i in range(8):
            a(mfma("v", d, "v", 4, "v", 16 + (j * 8 + i) * 4, None if i == 0 else "v", None if i == 0 else d))
        a(nop(7))
        a(valu(f"v_cvt_pk_bf16_f32 v{d}, v{d}, v{d+1}", [f"v{d}", f"v{d+1}"], [f"v{d}"]))
        a(valu(f"v_cvt_pk_bf16_f32 v{d+1}, v{d+2}, v{d+3}", [f"v{d+2}", f"v{d+3}"], [f"v{d+1}"]))
        a(tag(bstore(d, 2, 3, 12, "0", j * 128), "o"))
    resolve_vm(o, []); check(o, "reduce")
    if OPT.stamps and OPT.stamp_fwd >= 0:
        o += [wait_vm(0), salu("s_cmp_lg_u32 s2, 0"), raw("s_cbranch_scc1 R_end", "branch"),
              salu("s_load_dwordx2 s[20:21], s[0:1], 88"), raw("s_waitcnt lgkmcnt(0)", "wait", lgkm=0),
              salu("s_mov_b32 s16, s20"), salu("s_mov_b32 s17, s21"), salu("s_mov_b32 s18, 64"), salu("s_mov_b32 s19, 0x20000"),
              salu(f"s_mov_b32 s10, {16*7*16*16*2048 + 256*64}"), salu(f"s_mov_b32 s46, {16*7*16*16*2048} + 64*{OPT.stamp_fwd}"),
              valu("v_lshlrev_b32 v2, 2, v0", ["v0"], ["v2"]), bload(3, 1, 2, 8, "s46", 0), wait_vm(0), bstore(3, 1, 2, 16, "0", 0)]
    o += [wait_vm(0), label("R_end"), raw("s_endpgm", "branch")]
    return o

KD = """.section .rodata,"a"
.p2align 6
.amdhsa_kernel {name}
  .amdhsa_next_free_vgpr {vgpr}
  .amdhsa_next_free_sgpr 102
  .amdhsa_accum_offset 256
  .amdhsa_group_segment_fixed_size 0
  .amdhsa_kernarg_size 104
  .amdhsa_user_sgpr_count 2
  .amdhsa_user_sgpr_kernarg_segment_ptr 1
  .amdhsa_system_sgpr_workgroup_id_x 1
.end_amdhsa_kernel
"""
DESCRIPTION = """
; ---------------------------------------------------------------------------------------------------------------
; Two cached-attention blocks (A, B), concatenated on the last axis; one fused launch, 256 workgroups of 4 waves.
; Workgroup = (branch, batch, head); wave = 64 query rows.  All matrix work is v_mfma_f32_16x16x32_bf16 in the
; transposed form (lane = query row), so every result feeds the next product without a shuffle.
;   phase 1  Q^T = Wq^T x^T          Wq and x staged in LDS by LDS-DMA, 64 columns per step, fp32 in AGPRs -> bf16
;   phase 2  S^T = K Q^T, P = exp2(c S - c m), O^T += V^T P^T        32 keys per tile, 4+4 slot LDS ring, software
;            pipelined (QK of tile t+1 | PV of tile t), one barrier per tile.  m is the row maximum of the first tile;
;            the row sums are checked afterwards and a workgroup whose sums exceed 2^30 (or are NaN) repeats its work
;            with the exact running maximum and a rescale on every tile (L_restart / L_safe_attn).
;   phase 3  partial out^T = Wo_h^T O^T / l, bf16, exchanged between the 16 heads of a (branch, batch) and summed in
;            fp32 by an MFMA with a 0/1 selection matrix.  When the 16 workgroups report the same XCD the pieces go
;            through a small ring that stays in that XCD's L2 (byte flags, reset at the start of the launch);
;            otherwise (L_p3_far) they are released and acquired at device scope.
; d_debug: one byte per workgroup (arrived, XCD id, done).  d_ws: partial sums, flags, ring.
; ---------------------------------------------------------------------------------------------------------------
""".strip("\n").splitlines()

def header_comments():
    ref = open("cdna_kernels/" + NAME + ".s.ref").read().splitlines()
    out = []
    for l in ref:
        if l.startswith("; Override launch") or not l.startswith(";"): break
        out.append(l)
    return out

def stream_kernel():
    t = """
  s_cmp_ge_u32 s2, 256
  s_cbranch_scc1 S_end
  s_load_dwordx2 s[4:5], s[0:1], 8
  s_load_dwordx2 s[6:7], s[0:1], 96
  s_load_dwordx2 s[8:9], s[0:1], 48
  v_lshrrev_b32 v2, 6, v0
  s_nop 0
  v_readfirstlane_b32 s24, v2
  v_and_b32 v1, 63, v0
  v_lshlrev_b32 v14, 4, v1
  s_nop 2
  s_lshl_b32 s25, s24, 12
  v_add_u32 v14, s25, v14
  s_waitcnt lgkmcnt(0)
  s_cmp_lt_u32 s2, 128
  s_cselect_b32 s36, s4, s8
  s_cselect_b32 s37, s5, s9
  s_mov_b32 s38, 0x4000000
  s_mov_b32 s39, 0x20000
  s_and_b32 s32, s2, 127
  s_lshl_b32 s32, s32, 19
  s_barrier
  s_memrealtime s[12:13]
  s_mov_b32 s20, 0
S_loop:
  s_mov_b32 m0, s25
  s_nop 0
  buffer_load_dwordx4 v14, s[36:39], s32 offen nt lds
  buffer_load_dwordx4 v14, s[36:39], s32 offen offset:1024 nt lds
  buffer_load_dwordx4 v14, s[36:39], s32 offen offset:2048 nt lds
  buffer_load_dwordx4 v14, s[36:39], s32 offen offset:3072 nt lds
  s_add_u32 s32, s32, 16384
  s_waitcnt vmcnt(8)
  s_barrier
  s_add_u32 s20, s20, 1
  s_cmp_lt_u32 s20, 32
  s_cbranch_scc1 S_loop
  s_waitcnt vmcnt(0)
  s_barrier
  s_memrealtime s[16:17]
  s_waitcnt lgkmcnt(0)
  s_sub_u32 s16, s16, s12
  s_mov_b32 s40, s6
  s_mov_b32 s41, s7
  s_mov_b32 s42, %d
  s_mov_b32 s43, 0x20000
  s_mul_i32 s33, s2, 64
  s_add_u32 s33, s33, %d
  v_mov_b32 v2, s16
  v_mov_b32 v1, 0
  buffer_store_dword v2, v1, s[40:43], s33 offen
  s_waitcnt vmcnt(0)
S_end:
  s_endpgm""" % (16*7*16*16*2048 + 256*64, 16*7*16*16*2048 + 60)
    return t

def assemble_file(debug=None):
    main = build(debug)
    red = reduce_kernel()
    k1 = NAME + "_kernel"; k2 = "reduce_heads_kernel"
    L = header_comments()
    if OPT.stream0: L.append(f"; @launch kernel=stream_test_kernel grid=(256,1,1) block=(256,1,1) lds={LDS_BYTES}")
    if OPT.fused and not OPT.stream0:
        L.append(f"; @launch grid=(256,1,1) block=(256,1,1) lds={LDS_BYTES}")
    else:
        L.append(f"; @launch kernel={k1} grid=(256,1,1) block=(256,1,1) lds={LDS_BYTES}")
        if debug is None and not OPT.fused: L.append(f"; @launch kernel={k2} grid=(256,1,1) block=(256,1,1) lds=0")
    L += DESCRIPTION
    L.append('.amdgcn_target "amdgcn-amd-amdhsa--gfx950"')
    L.append(".text")
    for nm, body in ((k1, main), (k2, red)) if not OPT.fused else ((k1, main),):
        L += [f".globl {nm}", ".p2align 8", f".type {nm},@function", f"{nm}:", text(body)]
    if OPT.stream0: L += [".globl stream_test_kernel", ".p2align 8", ".type stream_test_kernel,@function", "stream_test_kernel:", stream_kernel()]
    L.append(KD.format(name=k1, vgpr=512))
    if not OPT.fused: L.append(KD.format(name=k2, vgpr=256))
    if OPT.stream0: L.append(KD.format(name="stream_test_kernel", vgpr=512))
    return "\n".join(L) + "\n"

if __name__ == "__main__":
    dbg = sys.argv[2] if len(sys.argv) > 2 and sys.argv[2] != "none" else None
    for kv in sys.argv[3:]:
        k, v = kv.split("=")
        v = v.replace("+", " ")
        setattr(OPT, k, {"True": True, "False": False, "()": ()}.get(v, int(v) if v.lstrip("-").isdigit() else (eval(v) if v.startswith("(") else v)))
    open(sys.argv[1], "w").write(assemble_file(dbg))
    print("stamps:", STAMPS)
```

```python
import math, struct, sys
from core import *

NAME = "concat_heads__mha_block_cached__mha_block_cached__near_ridge"
def f32bits(x): return struct.unpack("<I", struct.pack("<f", x))[0]
CSC = math.log2(math.e) / 16.0

S_X, S_WQ, S_K, S_V, S_WO, S_WS, S_OUT = 4, 8, 12, 16, 20, 24, 28
S_W, S_W1K = 32, 33
S_QB = ["0", "s34", "s35", "s62"]
S_C = 63
S_KOFF, S_VOFF = 64, 65
S_LOOP = 66
S_T0, S_T1, S_T2, S_T3 = 67, 68, 69, 70
S_G, S_H, S_B, S_BR = 71, 72, 73, 74
S_WOFF = 76
S_PART = 77
S_WCUR, S_WSTEP, S_XSTEP = 78, 79, 75
S_FL, S_DBG = 36, 40
S_LOCM = 44
S_RBASE, S_SIG, S_POLL, S_XCC = 46, 47, 48, 49
S_RG = 56
S_SPIN = 62
S_WARM = 34
S_SAFE = 3
S_ROT = 52
S_PFO = 53
S_RST, S_RLD, S_FPW, S_FPR, S_FCW, S_FCR = 60, 61, 75, 78, 79, 76
S_STAMP = 80
V_LANE = 0
V_KA = [4, 5]
V_VA = [6, 7, 8, 9]
V_DK, V_DV = 10, 11
V_L = 12
V_MC = 16
V_SP = 20
V_POOL = 32
V_S = 64
V_P = 96
V_Q = 128
V_XA = 20; V_DW = 21; V_WA = [[22, 23], [24, 25], [26, 27]]
V_CT = 28
V_ARR = 24
L_K = 0; L_V = 65536; L_X = 131072
def kslot(t): return L_K + 16384 * (t % 4)
def vslot(t): return L_V + 16384 * (t % 4)
LDS_BYTES = 163840
L_VOTE = L_V + 2 * 16384
L_LIMIT = 2.0 ** 30

PART_BYTES = 16 * 7 * 16 * 16 * 2048
FLAG_BYTES = 16 * 7 * 4 * 64
STAMP_OFF = PART_BYTES + 32768
RING_OFF = PART_BYTES + (1 << 20)
RING_BYTES = 32 << 20
CONS_OFF = 16384
SPIN_MAX = 1 << 19
class Opt:
    kv_flags = "nt"
    w_flags = ""
    x_flags = ""
    wo_flags = "nt"
    st_flags = ""
    stamps = False
    init_stamps = False
    wo_half = False
    wo_touch30 = ()
    xwarm_order = 0
    stagger = 0
    codewarm_first = True
    codewarm = 16
    pad_early = 0
    v_lead = 20
    v_lead_early = 20
    l2warm = False
    kvspread = False
    tlbwarm = 3
    remap = 0
    tail2 = True
    tmpl = 1
    wo_stage = True
    p3_tiles = False
    early_trips = 0
    vfirst_early = 37
    loop_exit = 0
    xwarm = True
    kvmin = False
    vfirst = 37
    dma_stamps = False
    rot = 0
    pad_iter = 0
    last_st = 'nt'
    out_flags = ''
    coopw = False
    coopw_init = 2
    pf_flags = ''
    early_wb = 0
    wt_flags = ''
    prod_delay = 0
    ring = 4
    vm_space = 0
    p3_drop = ''
    wo_step = 13
    cons_chk = 22
    wo_touch = (4, 5, 6)
    red_m = 200
    cons_poll = 50
    ld_min = 16
    stamp_skip = 'p1_first_data,pre_iter_end'
    p3detail = -1
    st_lag = 21
    force_fallback = False
    red_at = 60
    sig_lag = 28
    poll_lag = 22
    chk_lag = 22
    fused = True
    stream0 = False
    loop_nods = False
    loop_nomfma = False
    loop_novalu = False
    loop_nodma = False
    loop_dma_every = 1
    bar_stamps = False
    trip_stamps = False
    dma_mode = 'spread'
    dma_gaps = ([5, 21, 37, 53, 69, 85], [101, 117])
    nv_prev = 2
    stamp_fwd = -1
    stamp_dbg = -1
    x_rd_gap0 = 65
    x_rd_gap = 33
    p1_steps = False
    p1_drop = ''
    rev = False
    init_w = 2
    early_step = 2
    x_gap = 60
    p1_nowait = False
    p1_noread = False
    wring = 3
    kvpf = 'late'
    coopx = False
    init_more = 0
OPT = Opt()

def wait_tag(*tags): return I("s_waitcnt vmcnt(?)", "wait", vmtags=list(tags))
def tag(ins, t):
    ins.meta["tag"] = t; return ins
def resolve_vm(stream, queue):
    q = list(queue)
    for ins in stream:
        if ins.kind in ("dma", "vld", "vst"):
            q.append(ins.meta.get("tag", "?"))
        elif ins.kind == "wait":
            if "vmtags" in ins.meta:
                idx = [n for n, t in enumerate(q) if t in ins.meta["vmtags"]]
                n = len(q) - 1 - max(idx) if idx else len(q)
                n = min(n, 63)
                ins.text = f"s_waitcnt vmcnt({n})"; ins.meta["vm"] = n
            if "vm" in ins.meta and not ins.meta.get("notrim"):
                n = ins.meta["vm"]
                if len(q) > n: q = q[len(q) - n:] if n else []
    return q

_stamp_n = [0]
def stamp(name):
    if not OPT.stamps: return []
    if name.startswith("i_") and not OPT.init_stamps: return []
    if OPT.dma_stamps:
        if name == "loop_start": return [raw("s_memtime s[100:101]", "salu"), raw("s_waitcnt lgkmcnt(0)", "wait", lgkm=0)]
        if name == "loop_end": return [raw("s_memtime s[76:77]", "salu"), raw("s_waitcnt lgkmcnt(0)", "wait", lgkm=0), salu("s_sub_u32 s100, s76, s100")]
        return []
    if OPT.stamp_skip and name in OPT.stamp_skip.split(","): return []
    if OPT.p3detail >= 0 and not name.startswith("d_") and name not in ("rt_end",): return []
    if OPT.bar_stamps and name not in ("rt_ls", "rt_le", "loop_start", "loop_end", "rt_end"): return []
    n = _stamp_n[0]; _stamp_n[0] += 1
    STAMPS.append(name)
    op = "s_memrealtime" if name.startswith("rt") else "s_memtime"
    return [raw(f"{op} s[{S_STAMP+2*n}:{S_STAMP+2*n+1}]", "salu")]
STAMPS = []

def m0_set(base): return salu(f"s_add_u32 m0, s{S_W1K}, {base}", [f"s{S_W1K}"], ["m0"])

def dma_tile(kind, slot_base, soff, tg):
    voff, srd, fl = {"K": (V_DK, S_K, OPT.kv_flags), "V": (V_DV, S_V, OPT.kv_flags), "W": (V_DW, S_WQ, OPT.w_flags)}[kind]
    return [(m0_set(slot_base + dc * 3968), tag(dma(voff, srd, soff, dc * 128, fl), tg)) for dc in range(4)]

def code_warm():
    o = []; a = o.append
    NL = OPT.codewarm
    a(raw("s_getpc_b64 s[50:51]", "salu")); a(salu("s_and_b32 s50, s50, 0xffffff80"))
    a(salu("s_lshr_b32 s52, s2, 3")); a(salu(f"s_mul_i32 s52, s52, {NL}"))
    a(valu(f"v_min_u32 v140, {NL-1}, v{V_LANE}", [f"v{V_LANE}"], ["v140"])); a(valu("v_add_u32 v140, s52, v140", ["v140"], ["v140"]))
    a(valu("v_lshlrev_b32 v140, 7, v140", ["v140"], ["v140"]))
    a(tag(I("global_load_dword v141, v140, s[50:51]", "vld", ["v140"], ["v141"]), "tlb"))
    return o

def setup():
    o = []; a = o.append
    a(salu("s_cmp_ge_u32 s2, 256")); a(raw("s_cbranch_scc1 L_end", "branch"))
    o += stamp("rt_start") + stamp("start")
    if OPT.remap:
        a(salu("s_lshr_b32 s4, s2, 3")); a(salu("s_add_u32 s4, s4, s2")); a(salu("s_and_b32 s4, s4, 7"))
        a(salu("s_andn2_b32 s5, s2, 7")); a(salu("s_or_b32 s4, s4, s5"))
        if OPT.remap == 2: a(salu("s_cmp_ge_u32 s2, 128")); a(salu("s_cselect_b32 s2, s4, s2"))
        else: a(salu("s_mov_b32 s2, s4"))
    a(valu("v_lshrrev_b32 v1, 6, v0", ["v0"], ["v1"]))
    a(valu(f"v_and_b32 v{V_LANE}, 63, v0", ["v0"], ["v0"]))
    a(salu(f"s_mov_b32 s{S_SAFE}, 0"))
    a(valu(f"v_readfirstlane_b32 s{S_W}, v1", ["v1"], [f"s{S_W}"]))
    if OPT.codewarm and OPT.codewarm_first: o += code_warm()
    a(label("L_again"))
    a(salu("s_load_dwordx16 s[36:51], s[0:1], 0")); a(salu("s_load_dwordx8 s[52:59], s[0:1], 64"))
    a(salu("s_load_dwordx2 s[60:61], s[0:1], 96"))
    a(nop(3))
    a(salu(f"s_and_b32 s{S_T0}, s2, 7")); a(salu(f"s_lshr_b32 s{S_T1}, s2, 3"))
    a(salu(f"s_and_b32 s{S_H}, s{S_T1}, 15")); a(salu(f"s_lshr_b32 s{S_T1}, s{S_T1}, 4"))
    a(salu(f"s_lshl_b32 s{S_G}, s{S_T0}, 1")); a(salu(f"s_add_u32 s{S_G}, s{S_G}, s{S_T1}"))
    a(salu(f"s_lshr_b32 s{S_BR}, s{S_G}, 3")); a(salu(f"s_and_b32 s{S_B}, s{S_G}, 7"))
    a(salu(f"s_lshl_b32 s{S_W1K}, s{S_W}, 10"))
    if OPT.rot:
        a(salu(f"s_and_b32 s{S_T0}, s2, 7")); a(salu(f"s_mul_i32 s{S_T0}, s{S_T0}, {OPT.rot}")); a(salu(f"s_lshr_b32 s{S_T1}, s2, 3"))
        a(salu(f"s_add_u32 s{S_T0}, s{S_T0}, s{S_T1}")); a(salu(f"s_and_b32 s{S_T0}, s{S_T0}, 31")); a(salu(f"s_lshl_b32 s33, s{S_T0}, 14") if False else salu(f"s_lshl_b32 s{S_T3}, s{S_T0}, 14"))
    a(salu(f"s_mov_b32 s{S_C}, 0x{f32bits(CSC):08x}"))
    L = f"v{V_LANE}"
    def vv(t, rd, wr): a(valu(t, rd, wr))
    vv(f"v_and_b32 v1, 15, {L}", [L], ["v1"]); vv(f"v_lshrrev_b32 v2, 4, {L}", [L], ["v2"])
    vv("v_lshrrev_b32 v3, 1, v1", ["v1"], ["v3"])
    for sp in range(2):
        r = V_KA[sp]
        vv(f"v_add_u32 v{r}, {4*sp}, v2", ["v2"], [f"v{r}"])
        vv(f"v_xor_b32 v{r}, v{r}, v3", [f"v{r}", "v3"], [f"v{r}"])
        vv(f"v_lshlrev_b32 v{r}, 4, v{r}", [f"v{r}"], [f"v{r}"])
        vv(f"v_lshl_add_u32 v{r}, v1, 7, v{r}", ["v1", f"v{r}"], [f"v{r}"])
    vv(f"v_lshrrev_b32 v1, 3, {L}", [L], ["v1"]); vv(f"v_and_b32 v2, 7, {L}", [L], ["v2"])
    vv(f"v_lshl_add_u32 v3, s{S_W}, 3, v1", ["v1", f"s{S_W}"], ["v3"])
    vv("v_bfe_u32 v28, v3, 1, 1", ["v3"], ["v28"]); vv("v_lshlrev_b32 v28, 2, v28", ["v28"], ["v28"])
    vv("v_xor_b32 v28, v28, v2", ["v28", "v2"], ["v28"]); vv("v_lshlrev_b32 v28, 4, v28", ["v28"], ["v28"])
    vv(f"v_lshl_add_u32 v{V_DW}, v3, 13, v28", ["v3", "v28"], [f"v{V_DW}"])
    o += stamp("i_prekarg")
    a(raw("s_waitcnt lgkmcnt(0)", "wait", lgkm=0))
    o += stamp("i_karg")
    a(salu(f"s_cmp_eq_u32 s{S_BR}, 0"))
    for i in range(10): a(salu(f"s_cselect_b32 s{36+i}, s{36+i}, s{46+i}"))
    if OPT.rot: a(salu(f"s_mov_b32 s{S_ROT}, s{S_T3}"))
    def srd(base, lo, hi, offs, size):
        if offs is None:
            a(salu(f"s_mov_b32 s{base}, s{lo}")); a(salu(f"s_mov_b32 s{base+1}, s{hi}"))
        else:
            a(salu(f"s_add_u32 s{base}, s{lo}, {offs}")); a(salu(f"s_addc_u32 s{base+1}, s{hi}, 0"))
        a(salu(f"s_mov_b32 s{base+2}, {size}")); a(salu(f"s_mov_b32 s{base+3}, 0x20000"))
    a(salu(f"s_mul_i32 s{S_T0}, s{S_B}, 229376")); srd(S_X, 36, 37, f"s{S_T0}", 229376)
    a(salu(f"s_lshl_b32 s{S_T0}, s{S_H}, 9")); srd(S_WQ, 42, 43, f"s{S_T0}", 0)
    a(salu(f"s_sub_u32 s{S_WQ+2}, {448*8192}, s{S_T0}"))
    return o

def setup_b():
    o = []; a = o.append
    L = f"v{V_LANE}"
    def vv(t, rd, wr): a(valu(t, rd, wr))
    vv(f"v_lshrrev_b32 v2, 4, {L}", [L], ["v2"])
    vv(f"v_bfe_u32 v28, {L}, 2, 2", [L], ["v28"]); vv(f"v_and_b32 v29, 3, {L}", [L], ["v29"])
    vv("v_lshl_add_u32 v30, v2, 2, v28", ["v2", "v28"], ["v30"])
    vv("v_bfe_u32 v31, v30, 1, 2", ["v30"], ["v31"])
    for p in range(4):
        r = V_VA[p]
        vv(f"v_xor_b32 v{r}, {p}, v31", ["v31"], [f"v{r}"])
        vv(f"v_lshlrev_b32 v{r}, 5, v{r}", [f"v{r}"], [f"v{r}"])
        vv(f"v_lshl_add_u32 v{r}, v30, 7, v{r}", ["v30", f"v{r}"], [f"v{r}"])
        vv(f"v_lshl_add_u32 v{r}, v29, 3, v{r}", ["v29", f"v{r}"], [f"v{r}"])
        vv(f"v_add_u32 v{r}, {L_V}, v{r}", [f"v{r}"], [f"v{r}"])
    vv("v_lshl_add_u32 v30, v2, 3, v28", ["v2", "v28"], ["v30"])
    vv("v_lshrrev_b32 v31, 1, v28", ["v28"], ["v31"])
    for sp in range(2):
        r = V_WA[0][sp]
        vv(f"v_xor_b32 v{r}, {sp}, v31", ["v31"], [f"v{r}"])
        vv(f"v_lshl_add_u32 v{r}, v{r}, 2, v29", [f"v{r}", "v29"], [f"v{r}"])
        vv(f"v_lshlrev_b32 v{r}, 4, v{r}", [f"v{r}"], [f"v{r}"])
        vv(f"v_lshl_add_u32 v{r}, v30, 7, v{r}", ["v30", f"v{r}"], [f"v{r}"])
        for win in (1, 2):
            vv(f"v_add_u32 v{V_WA[win][sp]}, {65536*win}, v{r}", [f"v{r}"], [f"v{V_WA[win][sp]}"])
    vv(f"v_lshrrev_b32 v1, 3, {L}", [L], ["v1"]); vv(f"v_and_b32 v2, 7, {L}", [L], ["v2"])
    vv(f"v_lshl_add_u32 v3, s{S_W}, 3, v1", ["v1", f"s{S_W}"], ["v3"])
    vv("v_bfe_u32 v28, v3, 1, 3", ["v3"], ["v28"]); vv("v_xor_b32 v28, v28, v2", ["v28", "v2"], ["v28"])
    vv("v_lshlrev_b32 v28, 4, v28", ["v28"], ["v28"]); vv(f"v_lshl_add_u32 v{V_DK}, v3, 9, v28", ["v3", "v28"], [f"v{V_DK}"])
    vv("v_bfe_u32 v28, v3, 1, 2", ["v3"], ["v28"]); vv("v_lshlrev_b32 v28, 1, v28", ["v28"], ["v28"])
    vv("v_xor_b32 v28, v28, v2", ["v28", "v2"], ["v28"]); vv("v_lshlrev_b32 v28, 4, v28", ["v28"], ["v28"])
    vv(f"v_lshl_add_u32 v{V_DV}, v3, 9, v28", ["v3", "v28"], [f"v{V_DV}"])
    def srd(base, lo, hi, offs, size):
        if offs is None:
            a(salu(f"s_mov_b32 s{base}, s{lo}")); a(salu(f"s_mov_b32 s{base+1}, s{hi}"))
        else:
            a(salu(f"s_add_u32 s{base}, s{lo}, {offs}")); a(salu(f"s_addc_u32 s{base+1}, s{hi}, 0"))
        a(salu(f"s_mov_b32 s{base+2}, {size}")); a(salu(f"s_mov_b32 s{base+3}, 0x20000"))
    a(salu(f"s_lshl_b32 s{S_T0}, s{S_B}, 4")); a(salu(f"s_add_u32 s{S_T0}, s{S_T0}, s{S_H}"))
    a(salu(f"s_lshl_b32 s{S_T0}, s{S_T0}, 19"))
    srd(S_K, 38, 39, f"s{S_T0}", 524288); srd(S_V, 40, 41, f"s{S_T0}", 524288)
    a(salu(f"s_mul_i32 s{S_T0}, s{S_H}, 229376")); srd(S_WO, 44, 45, f"s{S_T0}", 229376)
    srd(S_WS, 60, 61, None, 16 * 7 * 16 * 16 * 2048)
    srd(S_OUT, 56, 57, None, 8 * 256 * 896 * 2)
    if OPT.fused:
        srd(S_DBG, 58, 59, None, 256)
        a(salu(f"s_mov_b32 s{S_T0}, {PART_BYTES}")); srd(S_FL, 60, 61, f"s{S_T0}", 32768)
        a(salu(f"s_mov_b32 s{S_T0}, {RING_OFF}")); a(salu(f"s_add_u32 s54, s60, s{S_T0}")); a(salu("s_addc_u32 s55, s61, 0"))
        a(salu(f"s_mov_b32 s{S_RG}, s54")); a(salu(f"s_mov_b32 s{S_RG+1}, s55")); a(salu(f"s_mov_b32 s{S_RG+2}, {RING_BYTES}")); a(salu(f"s_mov_b32 s{S_RG+3}, 0x20000"))
        a(salu(f"s_getreg_b32 s{S_XCC}, hwreg(HW_REG_XCC_ID, 0, 3)"))
        a(salu(f"s_lshl_b32 s{S_SIG}, s{S_G}, 4")); a(salu(f"s_add_u32 s{S_SIG}, s{S_SIG}, s{S_H}"))
        a(salu(f"s_mul_i32 s{S_T0}, s{S_G}, {14*64}"))
        a(salu(f"s_lshl_b32 s{S_T1}, s{S_W}, 4")); a(salu(f"s_add_u32 s{S_T1}, s{S_T1}, s{S_H}")); a(salu(f"s_add_u32 s50, s{S_T0}, s{S_T1}"))
        a(salu(f"s_lshl_b32 s{S_T1}, s{S_H}, 2")); a(salu(f"s_add_u32 s{S_T1}, s{S_T1}, s{S_W}")); a(salu(f"s_add_u32 s51, s{S_T0}, s{S_T1}"))
        a(salu(f"s_add_u32 s51, s51, {CONS_OFF}"))
        a(valu(f"v_min_u32 v1, 13, v{V_LANE}", [f"v{V_LANE}"], ["v1"])); a(valu("v_lshlrev_b32 v1, 6, v1", ["v1"], ["v1"]))
        a(valu("v_mov_b32 v2, 0", [], ["v2"]))
        for sr in ("s50", "s51"):
            a(tag(I(f"buffer_store_byte v2, v1, s[{S_FL}:{S_FL+3}], {sr} offen", "vst", ["v1", "v2"], data=["v2"]), "reset"))
    if OPT.codewarm and not OPT.codewarm_first: o += code_warm()
    if OPT.tlbwarm:
        a(valu("v_mov_b32 v134, 0", [], ["v134"]))
        items = [(S_K, "0"), (S_V, "0"), (S_WO, "0")]
        a(salu(f"s_mul_i32 s50, s{S_G}, {OPT.ring * 262144}")); items.append((S_RG, "s50"))
        a(salu(f"s_mul_i32 s51, s{S_B}, {256*896*2}")); items.append((S_OUT, "s51"))
        for n, (srd_, so) in enumerate(items[:OPT.tlbwarm]):
            a(tag(bload(135 + n, 1, 134, srd_, so, 0), "tlb"))
    return o

def add_lgkm_waits(g, cons, carried):
    seq = [(-1, regs) for regs in carried]
    for k in range(g.n):
        if g.mem[k] is not None and g.mem[k].kind == "ds": seq.append((k, g.mem[k].wr))
    lead = None
    for k, regs in cons:
        late = [n for n, (gap, w) in enumerate(seq) if gap == k - 1 and gap >= 0 and set(w) & set(regs)]
        assert not late, f"DS for MFMA {k} issued in gap {k-1}"
        idx = [n for n, (gap, w) in enumerate(seq) if gap < max(k - 1, 0) and set(w) & set(regs)]
        if not idx: continue
        last = max(idx)
        after = sum(1 for n, (gap, w) in enumerate(seq) if n > last and gap < max(k - 1, 0))
        assert after <= 15, (k, after)
        if k == 0: lead = wait_lgkm(after)
        else: g.pre[k - 1].insert(0, wait_lgkm(after))
    out = len(carried)
    if lead is not None: out = min(out, lead.meta["lgkm"])
    for k in range(g.n):
        for x in g.pre[k]:
            if "lgkm" in x.meta: out = min(out, x.meta["lgkm"])
        if g.mem[k] is not None and g.mem[k].kind == "ds":
            if out >= 14:
                g.pre[k].insert(0, wait_lgkm(8)); out = 8
            out += 1
    return lead

def place_vmem(g, gap, scalars, d, hi=None, stack=False, space=False):
    k = max(gap, 1 if stack else len(scalars))
    hi = g.n if hi is None else hi
    isdma = lambda x: x is not None and x.kind == "dma"
    while True:
        assert k < hi, f"no gap for {d.text}"
        near = OPT.vm_space and any(0 <= k + dd < g.n and dd != 0 and g.mem[k + dd] is not None and g.mem[k + dd].kind in ("vst", "vld", "dma")
                                    for dd in range(-OPT.vm_space, OPT.vm_space + 1))
        if g.mem[k] is None and not g.vec[k] and len(g.pre[k]) <= 1 and not (near and space):
            if stack:
                if not isdma(g.mem[k - 1]) and len(g.pre[k - 1]) + len(scalars) <= 3 and not any(x.kind == "barrier" for x in g.pre[k - 1]): break
            elif all(not g.pre[k - 1 - n] and not isdma(g.mem[k - 1 - n]) for n in range(len(scalars))): break
        k += 1
    if stack:
        for sc in scalars: g.put_pre(k - 1, sc)
    else:
        for n, sc in enumerate(scalars): g.put_pre(k - len(scalars) + n, sc)
    g.put_mem(k, d)
    return k

def put_scalar(g, gap, *ins):
    k = gap
    while g.pre[k]: k += 1
    g.pre[k] = list(ins)
    return k

def place_chain(g, ops, lo, hi):
    left = []
    for ins in ops:
        k = g.place_vec(ins, lo, hi) if (not left and lo < hi) else None
        if k is None: left.append(ins)
        else: lo = k + 1 if ins.kind == "trans" else k
    return lo, left

class Op:
    def __init__(self, ins, rel, dl, preds=()):
        self.ins = ins; self.rel = rel; self.dl = dl; self.preds = list(preds); self.gap = None

def list_schedule(g, ops, lo=0, hi=None):
    hi = g.n if hi is None else hi
    todo = list(ops)
    for k in range(lo, hi):
        while True:
            free = g.free_vec(k)
            if free <= 0: break
            ready = [x for x in todo if x.rel <= k and all(p.gap is not None and p.gap + d <= k for p, d in x.preds)]
            tr = [x for x in ready if x.ins.kind == "trans"]
            pl = [x for x in ready if x.ins.kind != "trans"]
            pick = None
            can_tr = free == 2 and g.mem[k] is None and not g.vec[k]
            if can_tr and tr: pick = min(tr, key=lambda x: x.dl)
            if pl:
                best = min(pl, key=lambda x: x.dl)
                if pick is None or (best.dl + 6 < pick.dl): pick = best
            if pick is None: break
            g.vec[k].append(pick.ins); pick.gap = k; todo.remove(pick)
    late = [x for x in ops if x.gap is not None and x.gap > x.dl]
    assert not late, [(x.ins.text, x.gap, x.dl) for x in late]
    return todo

def sm_ops(tile, kb, qb, rel, dl):
    i = sm_group(tile, kb, qb)
    f = [Op(i[0], rel, dl - 6), Op(i[1], rel, dl - 6), Op(i[4], rel, dl - 5), Op(i[5], rel, dl - 5)]
    x = [Op(i[2], rel, dl - 4, [(f[0], 1)]), Op(i[3], rel, dl - 4, [(f[1], 1)]), Op(i[6], rel, dl - 3, [(f[2], 1)]), Op(i[7], rel, dl - 3, [(f[3], 1)])]
    ad = [Op(i[8], rel, dl, [(x[0], 1)]), Op(i[9], rel, dl, [(x[1], 1)]), Op(i[11], rel, dl, [(x[2], 1)]), Op(i[12], rel, dl, [(x[3], 1)])]
    cv = [Op(i[10], rel, dl, [(x[0], 1), (x[1], 1)]), Op(i[13], rel, dl, [(x[2], 1), (x[3], 1)])]
    return f + x + ad + cv

def exposed(ops):
    o = []
    for n, ins in enumerate(ops):
        o.append(ins)
        if ins.kind == "trans" and n + 1 < len(ops) and ops[n + 1].kind != "trans": o.append(nop(0))
    return o

def conv_ops(acc, d, t):
    return [valu(f"v_accvgpr_read_b32 v{d}, a{acc}", [f"a{acc}"], [f"v{d}"]),
            valu(f"v_accvgpr_read_b32 v{t}, a{acc+1}", [f"a{acc+1}"], [f"v{t}"]),
            valu(f"v_accvgpr_read_b32 v{d+1}, a{acc+2}", [f"a{acc+2}"], [f"v{d+1}"]),
            valu(f"v_accvgpr_read_b32 v{t+1}, a{acc+3}", [f"a{acc+3}"], [f"v{t+1}"]),
            valu(f"v_cvt_pk_bf16_f32 v{d}, v{d}, v{t}", [f"v{d}", f"v{t}"], [f"v{d}"]),
            valu(f"v_cvt_pk_bf16_f32 v{d+1}, v{d+1}, v{t+1}", [f"v{d+1}", f"v{t+1}"], [f"v{d+1}"])]

def xlane_reduce(regs, op, tmp):
    o = []
    for swap in ("v_permlane32_swap_b32", "v_permlane16_swap_b32"):
        for n, r in enumerate(regs): o.append(valu(f"v_mov_b32 v{tmp+n}, v{r}", [f"v{r}"], [f"v{tmp+n}"]))
        o.append(nop(1))
        for n, r in enumerate(regs):
            o.append(valu(f"{swap} v{r}, v{tmp+n}", [f"v{r}", f"v{tmp+n}"], [f"v{r}", f"v{tmp+n}"]))
        o.append(nop(1))
        for n, r in enumerate(regs):
            o.append(valu(f"{op} v{r}, v{r}, v{tmp+n}", [f"v{r}", f"v{tmp+n}"], [f"v{r}"]))
    return o

def wpairs(): return [(L_X, L_X + 16384), (vslot(1), kslot(3)), (vslot(2), vslot(3))]
def wslot(tile):
    p = wpairs(); return p[(tile // 2) % len(p)][tile % 2]
XBUF = [V_S, V_P]
def xfrag(qb, cs): return XBUF[(cs // 2) & 1] + ((cs % 2) * 4 + qb) * 4
V_XD = [128, 129]
V_XR = [130, 131]
S_XB = 34
S_XCUR = 35
def x_setup():
    o = []; a = o.append
    L = f"v{V_LANE}"
    a(salu(f"s_and_b32 s{S_T1}, s{S_W}, 1")); a(salu(f"s_lshl_b32 s{S_T1}, s{S_T1}, 13"))
    a(salu(f"s_cmp_lt_u32 s{S_W}, 2")); a(salu(f"s_cselect_b32 s{S_XB}, 2, 4")); a(salu(f"s_lshl_b32 s{S_XB}, s{S_XB}, 14"))
    a(salu(f"s_add_u32 s{S_XB}, s{S_XB}, s{S_T1}"))
    assert kslot(2) == 2 << 14 and vslot(0) == 4 << 14
    a(valu(f"v_lshrrev_b32 v1, 3, {L}", [L], ["v1"])); a(valu(f"v_and_b32 v2, 7, {L}", [L], ["v2"]))
    a(valu(f"v_lshl_add_u32 v3, s{S_W}, 6, v1", ["v1", f"s{S_W}"], ["v3"]))
    a(valu("v_mul_u32_u24 v3, 896, v3", ["v3"], ["v3"]))
    a(valu("v_lshrrev_b32 v1, 1, v1", ["v1"], ["v1"]))
    for par in range(2):
        r = V_XD[par]
        a(valu(f"v_or_b32 v{r}, {4*par}, v1", ["v1"], [f"v{r}"]))
        a(valu(f"v_xor_b32 v{r}, v{r}, v2", [f"v{r}", "v2"], [f"v{r}"]))
        a(valu(f"v_lshl_add_u32 v{r}, v{r}, 4, v3", [f"v{r}", "v3"], [f"v{r}"]))
        a(valu(f"v_add_u32 v{V_XR[par]}, s{S_XB}, v{V_KA[par]}", [f"v{V_KA[par]}"], [f"v{V_XR[par]}"]))
    return o
def x_items(j):
    out = []
    for i in range(8):
        sreg = S_T2 + (i & 1)
        sc = []
        if i == 0 and j > 0: sc.append(salu(f"s_add_u32 s{S_XCUR}, s{S_XCUR}, s{S_XSTEP}", [f"s{S_XCUR}"], [f"s{S_XCUR}"]))
        sc.append(salu(f"s_add_u32 s{sreg}, s{S_XCUR}, {i*7168}", [f"s{S_XCUR}"], [f"s{sreg}"]))
        sc.append(salu(f"s_add_u32 m0, s{S_XB}, {i*1024}", [f"s{S_XB}"], ["m0"]))
        out.append((sc, tag(dma(V_XD[i & 1], S_X, f"s{sreg}", 0, OPT.x_flags), f"x{j}")))
    return out
def x_read(qb, cs): return ds_read128("v", xfrag(qb, cs), V_XR[cs & 1], qb * 2048)
def w_read(dbp, cs, jj):
    s, e = dbp >> 1, dbp & 1
    base = wslot(cs); win = base // 65536
    off = base - win * 65536 + (s >> 1) * 4096 + jj * 512 + e * 8
    return ds_read_tr("v", V_POOL + 4 * ((2 * dbp + (cs & 1)) % 8) + 2 * jj, V_WA[win][s & 1], off)

V_PF = 28
def coop_setup():
    o = []; a = o.append
    a(salu(f"s_mul_i32 s{S_T1}, s{S_H}, {112*128}"))
    a(salu(f"s_lshl_b32 s{S_T2}, s{S_W}, 12")); a(salu(f"s_add_u32 s{S_T1}, s{S_T1}, s{S_T2}"))
    a(valu(f"v_and_b32 v{V_PF}, 31, v{V_LANE}", [f"v{V_LANE}"], [f"v{V_PF}"]))
    a(valu(f"v_lshlrev_b32 v{V_PF}, 7, v{V_PF}", [f"v{V_PF}"], [f"v{V_PF}"]))
    a(valu(f"v_add_u32 v{V_PF}, s{S_T1}, v{V_PF}", [f"v{V_PF}"], [f"v{V_PF}"]))
    return o
def coop_x():
    return [tag(bload(V_PF + 1, 1, V_PF, S_X, "0", 0, OPT.pf_flags), "pf")]

V_PFW = 132
def coop_w_setup():
    o = []; a = o.append
    L = f"v{V_LANE}"
    a(salu(f"s_lshr_b32 s{S_T1}, s2, 7")); a(salu(f"s_and_b32 s{S_T1}, s{S_T1}, 1")); a(salu(f"s_lshl_b32 s{S_T1}, s{S_T1}, 5"))
    a(salu(f"s_lshl_b32 s{S_T2}, s{S_W}, 3")); a(salu(f"s_add_u32 s{S_T1}, s{S_T1}, s{S_T2}"))
    a(valu(f"v_bfe_u32 v{V_PFW}, {L}, 2, 3", [L], [f"v{V_PFW}"])); a(valu(f"v_add_u32 v{V_PFW}, s{S_T1}, v{V_PFW}", [f"v{V_PFW}"], [f"v{V_PFW}"]))
    a(valu(f"v_lshlrev_b32 v{V_PFW}, 13, v{V_PFW}", [f"v{V_PFW}"], [f"v{V_PFW}"]))
    a(valu(f"v_and_b32 v{V_PFW+1}, 3, {L}", [L], [f"v{V_PFW+1}"]))
    a(valu(f"v_lshl_add_u32 v{V_PFW}, v{V_PFW+1}, 7, v{V_PFW}", [f"v{V_PFW}", f"v{V_PFW+1}"], [f"v{V_PFW}"]))
    return o
def coop_w(j):
    return [salu(f"s_mov_b32 s{S_PFO}, {j*524288}", [], [f"s{S_PFO}"])], tag(bload(V_PFW + 1, 1, V_PFW, S_WQ, f"s{S_PFO}", 0, OPT.pf_flags), "pf")
OOL = []
OOL_LATE = []
S_WM = 63
def kv_off(reg, t):
    if not OPT.rot: return [salu(f"s_mov_b32 s{reg}, {t*16384}", [], [f"s{reg}"])]
    return [salu(f"s_add_u32 s{reg}, s{S_ROT}, {t*16384}", [f"s{S_ROT}"], [f"s{reg}"]), salu(f"s_and_b32 s{reg}, s{reg}, 0x7ffff", [f"s{reg}"], [f"s{reg}"])]
def phase1():
    o = []; a = o.append
    NP = 3
    a(salu(f"s_lshr_b32 s{S_T1}, s2, 7")); a(salu(f"s_and_b32 s{S_T1}, s{S_T1}, {1 if OPT.rev else 0}"))
    a(salu(f"s_cmp_eq_u32 s{S_T1}, 0"))
    a(salu(f"s_cselect_b32 s{S_WCUR}, 0, {6*524288}")); a(salu(f"s_cselect_b32 s{S_T2}, 1, -1"))
    a(salu(f"s_cselect_b32 s{S_XCUR}, 0, 768"))
    a(salu(f"s_mul_i32 s{S_WSTEP}, s{S_T2}, 524288")); a(salu(f"s_mul_i32 s{S_XSTEP}, s{S_T2}, 128"))
    o += x_setup()
    if OPT.coopx: o += coop_setup() + coop_x()
    if OPT.coopw:
        o += coop_w_setup()
        for j in range(OPT.coopw_init):
            sc, d = coop_w(j); o += sc + [d]
    def w_items(j):
        out = []
        for par in range(2):
            sreg = S_WCUR if par == 0 else S_WOFF
            for m, (m0, d) in enumerate(dma_tile("W", wslot(2 * j + par), f"s{sreg}", f"W{j}")):
                sc = [m0]
                if m == 0 and par == 0 and j > 0: sc = [salu(f"s_add_u32 s{S_WCUR}, s{S_WCUR}, s{S_WSTEP}", [f"s{S_WCUR}"], [f"s{S_WCUR}"]), m0]
                if m == 0 and par == 1: sc = [salu(f"s_add_u32 s{S_WOFF}, s{S_WCUR}, 262144", [f"s{S_WCUR}"], [f"s{S_WOFF}"]), m0]
                out.append((sc, d))
        return out
    def kv_items(kind, t):
        out = []
        for m, (m0, d) in enumerate(dma_tile(kind, kslot(t) if kind == "K" else vslot(t), f"s{S_T0}", f"{kind}{t}")):
            out.append((kv_off(S_T0, t) + [m0] if m == 0 else [m0], d))
        return out
    def now(items):
        for sc, d in items:
            o.extend(sc); a(nop(0)); a(d)
    w0 = w_items(0)
    o += stamp("i_firstdma")
    for sc, d in w0[4:]: d.meta["tag"] = "W0b"
    if OPT.xwarm:
        a(valu(f"v_lshlrev_b32 v{V_PFW}, 4, v{V_LANE}", [f"v{V_LANE}"], [f"v{V_PFW}"]))
        a(salu(f"s_mul_i32 s{S_T0}, s{S_H}, 14336")); a(salu(f"s_lshl_b32 s{S_T1}, s{S_W}, 12")); a(salu(f"s_add_u32 s{S_T0}, s{S_T0}, s{S_T1}"))
        if OPT.xwarm_order == 1: now(x_items(0))
        now(w0[:4])
        a(salu(f"s_lshl_b32 s{S_T1}, s{S_W}, 12")); a(salu(f"s_add_u32 m0, s{S_T1}, {kslot(0)}", [], ["m0"])); a(nop(0))
        for i in range(4): a(tag(dma(V_PFW, S_X, f"s{S_T0}", i * 1024, OPT.x_flags), "xw"))
        now(w0[4:])
        if OPT.xwarm_order == 0: now(x_items(0))
    else:
        now(x_items(0)); now(w0[:4]); now(w0[4:])
    if OPT.coopw:
        for j in range(OPT.coopw_init, 3):
            sc, d = coop_w(j); o += sc + [d]
    o += stamp("i_issued")
    o += setup_b()
    o += stamp("i_setupb")
    a(wait_tag("x0"))
    o += stamp("i_x0")
    xr = [x_read(qb, cs) for cs in (0, 1) for qb in range(4)]
    o += xr
    a(wait_tag("W0", "reset")); a(barrier())
    if OPT.fused:
        a(salu(f"s_or_b32 s{S_T0}, s{S_XCC}, 0x80")); a(valu(f"v_mov_b32 v1, s{S_T0}", [], ["v1"])); a(valu("v_mov_b32 v2, 0", [], ["v2"]))
        a(tag(I(f"buffer_store_byte v1, v2, s[{S_DBG}:{S_DBG+3}], s{S_SIG} offen", "vst", ["v1", "v2"], data=["v1"]), "arr"))
    o += stamp("p1_first_data") + (stamp("rt_fd") if OPT.trip_stamps else [])
    def quad0(n): return V_POOL + 4 * (n % 8)
    def w_read0(n, jj):
        dbp, cs = n % 16, n // 16
        r = w_read(dbp, cs, jj)
        return ds_read_tr("v", quad0(n) + 2 * jj, int(r.rd[0][1:]), int(r.text.split("offset:")[1]))
    carried = [x.wr for x in xr]
    for n in range(3):
        for jj in range(2):
            r = w_read0(n, jj); a(r); carried.append(r.wr)
    early = {j: [] for j in range(7)}; after = {j: [] for j in range(7)}
    early[0] += w_items(1); early[1] += w_items(2)
    for j in range(NP, 7): after[j - NP + 1] += w_items(j)
    K = lambda t: kv_items("K", t)
    V = lambda t: kv_items("V", t)
    kv = {"early": {1: K(0), 2: K(1)}, "mid": {2: K(0), 3: K(1)}, "late": {3: K(0), 4: K(1)}}[OPT.kvpf]
    for j, l in kv.items(): early[j] += l
    if OPT.kvmin:
        early = {j: (w_items(1) if j == 0 else w_items(2) if j == 1 else []) for j in range(7)} if False else early
        for j in range(7): early[j] = [it for it in early[j] if not it[1].meta["tag"].startswith("K")]
        early[4] += K(0); early[5] += K(1)
        after[5] += V(0)
        after[6] += K(2) + V(1)
    elif OPT.kvspread:
        after[5] += V(0)
        early[6] += K(2) + V(1)
        after[6] += K(3)
    else:
        after[5] += V(0)
        early[6] += K(2) + V(1) + K(3)
        after[6] += V(2)
    for j in range(7):
        ms = []
        if j == 0:
            for n in range(32):
                for qb in range(4):
                    acc = ((n % 16) * 4 + qb) * 4
                    first = n < 16
                    ms.append(mfma("a", acc, "v", quad0(n), "v", xfrag(qb, n // 16), None if first else "a", None if first else acc))
        else:
            for dbp in range(16):
                for qb in range(4):
                    for e2 in range(2):
                        acc = (dbp * 4 + qb) * 4
                        ms.append(mfma("a", acc, "v", V_POOL + 4 * ((2 * dbp + e2) % 8), "v", xfrag(qb, 2 * j + e2), "a", acc))
        g = Gaps(ms)
        if j == 0:
            for n in range(3, 32):
                for jj in range(2): g.put_mem(4 * n - 12 + 2 * jj, w_read0(n, jj))
        else:
            for dbp in range(3, 16):
                for n, (cs, jj) in enumerate([(2*j, 0), (2*j, 1), (2*j+1, 0), (2*j+1, 1)]):
                    g.put_mem(8 * dbp - 24 + 2 * n, w_read(dbp, cs, jj))
        nxt = []
        if j < 6:
            for dbp in range(3):
                for n, (cs, jj) in enumerate([(2*j+2, 0), (2*j+2, 1), (2*j+3, 0), (2*j+3, 1)]):
                    r = w_read(dbp, cs, jj); g.put_mem(104 + (1 if j == 0 else 0) + 8 * dbp + 2 * n, r); nxt.append(r.wr)
        XG = OPT.x_rd_gap if j > 0 else OPT.x_rd_gap0
        xreads = []
        if j < 6:
            for n, (cs, qb) in enumerate([(cs, qb) for cs in (2*j+2, 2*j+3) for qb in range(4)]):
                r = x_read(qb, cs); g.put_mem(XG + 2 * n, r); xreads.append(r)
        if j == 0:
            cons = [(4 * n, R("v", quad0(n), 4) + (R("v", V_S, 32) if n == 0 else [])) for n in range(32)]
        else:
            cons = [(8 * dbp, R("v", V_POOL + 4 * ((2 * dbp) % 8), 8)) for dbp in range(16)]
        if j < 6: cons.append((XG + 24, [w for r in xreads for w in r.wr]))
        cons.sort()
        lead = add_lgkm_waits(g, cons, carried)
        if j < 6:
            k = XG - 2
            while g.pre[k]: k -= 1
            g.pre[k] = [wait_tag(f"x{j+1}")]
        tags = [f"W{j+1}"] if j < 6 else ["K0"]
        k = 100
        while g.pre[k]: k -= 1
        g.pre[k] = [wait_tag(*tags), barrier()] if not OPT.p1_nowait else [barrier()]
        kb = k
        gp = 1
        if OPT.coopw and j + 3 <= 6:
            sc, d = coop_w(j + 3); gp = place_vmem(g, 2, sc, d, kb) + 1
        if j == 0:
            for sc, d in x_items(1): gp = place_vmem(g, gp, sc, d, XG - 3, stack=True) + 2
            k = 48
            while g.pre[k]: k -= 1
            g.pre[k] = [wait_tag("W0b"), barrier()]
            assert k < 52
        for sc, d in early[j]: gp = place_vmem(g, gp + len(sc) - 1 + (16 if (j == 6 and OPT.kvspread and gp == 1) else 0), sc, d, kb) + (OPT.early_step if j != 6 else (9 if OPT.kvspread else 7))
        if j < 5:
            gx = max(XG + 25, gp)
            for sc, d in x_items(j + 2): gx = place_vmem(g, gx, sc, d, stack=True) + 2
            gpa = max(kb + 2, gx)
        else: gpa = kb + 2
        for sc, d in after[j]: gpa = place_vmem(g, gpa, sc, d, stack=True) + 1
        left = []
        if j == 6:
            for dbp in range(16):
                for qb in range(4):
                    ops = conv_ops((dbp * 4 + qb) * 4, V_Q + (qb * 8 + (dbp >> 1)) * 4 + 2 * (dbp & 1), V_CT + 2 * (qb & 1))
                    if left: left += ops
                    else:
                        _, l2 = place_chain(g, ops, 8 * dbp + 2 * qb + 1 + 5, 128); left += l2
        if lead is not None: a(lead)
        em = g.emit()
        if OPT.p1_drop:
            def keep(x):
                if x.kind in ("dma", "vld"):
                    t = x.meta.get("tag", "")
                    for c in OPT.p1_drop:
                        if t.startswith(c): return False
                return True
            em = [x for x in em if keep(x)]
        if OPT.p1_noread: em = [x for x in em if x.kind != "ds" and not (x.kind == "wait" and "lgkm" in x.meta)]
        o += em
        carried = nxt
        if OPT.p1_steps: o += stamp(f"step{j}")
        if left: a(nop(7)); o += left
    if not OPT.p1_steps: o += stamp("p1_end") + (stamp("rt_p1") if OPT.trip_stamps else [])
    return o

def k_read(t, kb, s):
    return ds_read128("v", V_POOL + 4 * s, V_KA[s & 1], (kslot(t) - L_K) + (s >> 1) * 4096 + kb * 2048)
def v_read(t, db, jj):
    return ds_read_tr("v", V_POOL + 4 * (db % 8) + 2 * jj, V_VA[db & 3], (vslot(t) - L_V) + (db >> 2) * 4096 + jj * 2048)
def Sreg(kb, qb): return V_S + (kb * 4 + qb) * 4
def Preg(buf, qb): return V_P + buf * 16 + qb * 4
def qk_mfmas():
    ms = []
    for i in range(64):
        kb, sp, qb, e = i >> 5, (i >> 3) & 3, (i >> 1) & 3, i & 1
        s = 2 * sp + e; d = Sreg(kb, qb)
        ms.append(mfma("v", d, "v", V_POOL + 4 * s, "v", V_Q + (qb * 8 + s) * 4, None if s == 0 else "v", None if s == 0 else d))
    return ms
def pv_mfmas(t, first):
    ms = []
    for i in range(64):
        db, qb = i >> 2, i & 3
        acc = (db * 4 + qb) * 4
        ms.append(mfma("a", acc, "v", V_POOL + 4 * (db % 8), "v", Preg(t & 1, qb), None if first else "a", None if first else acc))
    return ms
def sm_group(tile, kb, qb):
    s = Sreg(kb, qb); p = Preg(tile & 1, qb) + 2 * kb; mc = V_MC + qb; l = V_L + qb
    f = lambda r: valu(f"v_fma_f32 v{s+r}, v{s+r}, s{S_C}, v{mc}", [f"v{s+r}", f"v{mc}", f"s{S_C}"], [f"v{s+r}"])
    x = lambda r: trans(f"v_exp_f32 v{s+r}, v{s+r}", [f"v{s+r}"], [f"v{s+r}"])
    ad = lambda r: valu(f"v_add_f32 v{l}, v{l}, v{s+r}", [f"v{l}", f"v{s+r}"], [f"v{l}"])
    cv = lambda r: valu(f"v_cvt_pk_bf16_f32 v{p+r//2}, v{s+r}, v{s+r+1}", [f"v{s+r}", f"v{s+r+1}"], [f"v{p+r//2}"])
    return [f(0), f(1), x(0), x(1), f(2), f(3), x(2), x(3), ad(0), ad(1), cv(0), ad(2), ad(3), cv(2)]

def pre_iter():
    o = []; a = o.append
    carried = []
    for s in range(8):
        r = k_read(0, 0, s); a(r); carried.append(r.wr)
    g = Gaps(qk_mfmas())
    for s in range(8): g.put_mem(8 * (s >> 1) + 10 + 4 * (s & 1), k_read(0, 1, s))
    cons = [(8 * p, R("v", V_POOL + 8 * (p % 4), 8)) for p in range(8)]
    a(add_lgkm_waits(g, cons, carried))
    if OPT.kvmin or OPT.kvspread:
        gp = 3
        for kind, t in ((("K", 3), ("V", 2)) if OPT.kvmin else (("V", 2),)):
            for m, (m0, d) in enumerate(dma_tile(kind, kslot(t) if kind == "K" else vslot(t), f"s{S_T0}", f"{kind}{t}")):
                gp = place_vmem(g, gp, (kv_off(S_T0, t) if m == 0 else []) + [m0], d, stack=True) + 5
    o += g.emit()
    a(wait_tag("K1", "V0")); a(barrier())
    o += kv_off(S_KOFF, 4)
    for m0, d in dma_tile("K", kslot(4), f"s{S_KOFF}", "K4"): a(m0); a(nop(0)); a(d)
    o += kv_off(S_KOFF, 5) + kv_off(S_VOFF, 3)
    carried = []
    for s in range(8):
        r = k_read(1, 0, s); a(r); carried.append(r.wr)
    for qb in range(4):
        m = V_MC + qb; s0 = Sreg(0, qb); s1 = Sreg(1, qb)
        a(valu(f"v_max3_f32 v{m}, v{s0}, v{s0+1}, v{s0+2}", R("v", s0, 3), [f"v{m}"]))
        a(valu(f"v_max3_f32 v{m}, v{m}, v{s0+3}, v{s1}", [f"v{m}", f"v{s0+3}", f"v{s1}"], [f"v{m}"]))
        a(valu(f"v_max3_f32 v{m}, v{m}, v{s1+1}, v{s1+2}", [f"v{m}", f"v{s1+1}", f"v{s1+2}"], [f"v{m}"]))
        a(valu(f"v_max_f32 v{m}, v{m}, v{s1+3}", [f"v{m}", f"v{s1+3}"], [f"v{m}"]))
    o += xlane_reduce([V_MC + q for q in range(4)], "v_max_f32", V_SP)
    for qb in range(4):
        m = V_MC + qb
        a(valu(f"v_mul_f32 v{m}, s{S_C}, v{m}", [f"v{m}", f"s{S_C}"], [f"v{m}"]))
        a(valu(f"v_sub_f32 v{m}, 0, v{m}", [f"v{m}"], [f"v{m}"]))
        a(valu(f"v_mov_b32 v{V_L+qb}, 0", [], [f"v{V_L+qb}"]))
    for kb, qb in [(0, 0), (0, 1), (0, 2), (0, 3), (1, 0), (1, 1)]: o += exposed(sm_group(0, kb, qb))
    o += stamp("pre_iter_end")
    return o, carried

def attn_iter(t, carried, vmw, prev, cur, first=False, adv=True, loopctl=False, extra=None, loop_body=False):
    g = Gaps(qk_mfmas() + pv_mfmas(t, first))
    for s in range(8): g.put_mem(8 * (s >> 1) + 10 + 4 * (s & 1), k_read(t + 1, 1, s))
    for db in range(16):
        for jj in range(2): g.put_mem(min(64 - OPT.v_lead + 4 * db + 2 * jj, 44 + 4 * db + 2 * jj + 18), v_read(t, db, jj))
    nxt = []
    if t + 2 <= 31:
        for s, gap in zip(range(8), [108, 110, 112, 114, 116, 120, 124, 127] if OPT.v_lead >= 20 else [109, 111, 113, 115, 117, 121, 125, 127]):
            r = k_read(t + 2, 0, s); g.put_mem(gap, r); nxt.append(r.wr)
    else:
        for db in range(5):
            for jj in range(2):
                r = v_read(t + 1, db, jj); g.put_mem(108 + 4 * db + 2 * jj, r); nxt.append(r.wr)
    cons = [(8 * p, R("v", V_POOL + 8 * (p % 4), 8)) for p in range(8)]
    cons += [(64 + 4 * db, R("v", V_POOL + 4 * (db % 8), 4)) for db in range(16)]
    lead = add_lgkm_waits(g, cons, carried)
    kb = 98
    while g.pre[kb]: kb -= 1
    g.pre[kb] = [vmw, barrier()]
    if OPT.bar_stamps and loop_body:
        g.pre[kb] = [raw("s_memtime s[94:95]", "salu"), vmw, raw("s_memtime s[96:97]", "salu"), barrier(), raw("s_memtime s[98:99]", "salu"),
                     raw("s_waitcnt lgkmcnt(0)", "wait", lgkm=0),
                     salu("s_sub_u32 s96, s96, s94"), salu("s_add_u32 s92, s92, s96"),
                     salu("s_sub_u32 s98, s98, s94"), salu("s_add_u32 s93, s93, s98")]
    gp_prev, gp_cur = OPT.dma_gaps
    placed = [place_vmem(g, gap, [m0], d, kb) for gap, (m0, d) in zip(gp_prev, prev)]
    for gap, (m0, d) in zip(gp_cur, cur): place_vmem(g, gap, [m0], d)
    if adv:
        for reg, srd, at in ((S_VOFF, S_V, (placed[OPT.nv_prev - 1] if OPT.nv_prev else 1) + 1), (S_KOFF, S_K, placed[-1] + 1)):
            k = put_scalar(g, at, salu(f"s_add_u32 s{reg}, s{reg}, 16384", [f"s{reg}"], [f"s{reg}"]))
            k = put_scalar(g, k + 1, salu(f"s_and_b32 s{reg}, s{reg}, 0x7ffff", [f"s{reg}"], [f"s{reg}"]))
            assert k < 100
        if loopctl:
            first_k = placed[-4]
            k = put_scalar(g, 2, salu(f"s_cmp_eq_u32 s{S_LOOP}, 1", [f"s{S_LOOP}"], ["scc"]),
                           salu(f"s_cselect_b32 s{S_K+2}, 0, 524288", ["scc"], [f"s{S_K+2}"]))
            assert k < first_k - 1
    if loopctl:
        k = put_scalar(g, 119, salu(f"s_sub_u32 s{S_LOOP}, s{S_LOOP}, 1", [f"s{S_LOOP}"], [f"s{S_LOOP}"]))
        k = put_scalar(g, k + 1, salu(f"s_cmp_lg_u32 s{S_LOOP}, {OPT.loop_exit}", [f"s{S_LOOP}"], ["scc"]))
        assert k <= 127
        for kk in range(k + 1, 128):
            assert all(x.kind == "wait" for x in g.pre[kk]), "SCC clobbered before the loop branch"
    if extra: extra(g, kb)
    ops = []
    for qb in (2, 3): ops += sm_ops(t, 1, qb, 0, 31 + 2 * qb)
    for qb in range(4): ops += sm_ops(t + 1, 0, qb, 25 + 2 * qb + 6, 100 + 6 * qb)
    for qb in (0, 1): ops += sm_ops(t + 1, 1, qb, 57 + 2 * qb + 6, 124 + 3 * qb)
    left = list_schedule(g, ops)
    if OPT.vfirst:
        cand = [k for k in range(128) if g.mem[k] is not None and g.mem[k].kind == "ds" and len(g.vec[k]) == 1 and g.vec[k][0].kind == "valu"
                and not (set(g.vec[k][0].wr) & set(g.mem[k].rd + g.mem[k].wr))]
        n = min(OPT.vfirst, len(cand))
        for i in range(n): g.vec_first.add(cand[(i * len(cand)) // n])
    if OPT.pad_iter:
        for n in range(OPT.pad_iter): g.post[(n * 128) // OPT.pad_iter + 3].append(nop(3))
    assert not left, f"softmax groups do not fit: {len(left)} left"
    return [lead] + g.emit(), nxt

def safe_attn():
    o = []; a = o.append
    VM, VT, VA_, TMP = 20, 24, 28, 112
    a(label("L_safe_attn")); a(wait_vm(0)); a(raw("s_waitcnt lgkmcnt(0)", "wait", lgkm=0)); a(barrier())
    for r in range(256): a(valu(f"v_accvgpr_write_b32 a{r}, 0", [], [f"a{r}"]))
    for qb in range(4):
        a(valu(f"v_mov_b32 v{VM+qb}, 0xff800000", [], [f"v{VM+qb}"])); a(valu(f"v_mov_b32 v{V_L+qb}, 0", [], [f"v{V_L+qb}"]))
    a(salu(f"s_mov_b32 s{S_KOFF}, 0")); a(salu(f"s_mov_b32 s{S_LOOP}, 32"))
    a(label("L_safe_loop"))
    for kind, slot in (("K", kslot(0)), ("V", vslot(0))):
        for m0, d in dma_tile(kind, slot, f"s{S_KOFF}", "safe"): a(m0); a(nop(0)); a(d)
    a(wait_vm(0)); a(barrier())
    qk = qk_mfmas()
    for kb in range(2):
        for s_ in range(8): a(k_read(0, kb, s_))
        a(wait_lgkm(0)); o += qk[32 * kb:32 * kb + 32]
    a(nop(7)); a(nop(7))
    for qb in range(4):
        t = VT + qb; s0 = Sreg(0, qb); s1 = Sreg(1, qb)
        a(valu(f"v_max3_f32 v{t}, v{s0}, v{s0+1}, v{s0+2}", [], [])); a(valu(f"v_max3_f32 v{t}, v{t}, v{s0+3}, v{s1}", [], []))
        a(valu(f"v_max3_f32 v{t}, v{t}, v{s1+1}, v{s1+2}", [], [])); a(valu(f"v_max_f32 v{t}, v{t}, v{s1+3}", [], []))
    o += xlane_reduce([VT + q for q in range(4)], "v_max_f32", TMP)
    for qb in range(4):
        a(valu(f"v_max_f32 v{VT+qb}, v{VT+qb}, v{VM+qb}", [], []))
        a(valu(f"v_sub_f32 v{VA_+qb}, v{VM+qb}, v{VT+qb}", [], [])); a(valu(f"v_mul_f32 v{VA_+qb}, s{S_C}, v{VA_+qb}", [], []))
        a(trans(f"v_exp_f32 v{VA_+qb}, v{VA_+qb}", [], [])); a(valu(f"v_mov_b32 v{VM+qb}, v{VT+qb}", [], []))
        a(valu(f"v_mul_f32 v{V_MC+qb}, s{S_C}, v{VT+qb}", [], [])); a(valu(f"v_sub_f32 v{V_MC+qb}, 0, v{V_MC+qb}", [], []))
        a(valu(f"v_mul_f32 v{V_L+qb}, v{V_L+qb}, v{VA_+qb}", [], []))
    for r in range(256):
        qb = (r >> 2) & 3; t = TMP + (r & 7)
        a(valu(f"v_accvgpr_read_b32 v{t}, a{r}", [], [])); a(valu(f"v_mul_f32 v{t}, v{t}, v{VA_+qb}", [], [])); a(valu(f"v_accvgpr_write_b32 a{r}, v{t}", [], []))
    for kb in range(2):
        for qb in range(4): o += exposed(sm_group(0, kb, qb))
    pv = pv_mfmas(0, False)
    for half in range(2):
        for db in range(8 * half, 8 * half + 8):
            for jj in range(2):
                a(v_read(0, db, jj))
            if db % 4 == 3: a(wait_lgkm(0))
        a(nop(1)); o += pv[32 * half:32 * half + 32]
    a(salu(f"s_add_u32 s{S_KOFF}, s{S_KOFF}, 16384")); a(salu(f"s_sub_u32 s{S_LOOP}, s{S_LOOP}, 1")); a(salu(f"s_cmp_lg_u32 s{S_LOOP}, 0"))
    a(barrier()); a(raw("s_cbranch_scc1 L_safe_loop", "branch"))
    a(nop(7)); a(nop(7))
    o += xlane_reduce([V_L + q for q in range(4)], "v_add_f32", TMP)
    for qb in range(4): a(trans(f"v_rcp_f32 v{V_L+qb}, v{V_L+qb}", [], []))
    a(nop(0))
    for db in range(16):
        for qb in range(4):
            o += conv_ops((db * 4 + qb) * 4, V_Q + (qb * 8 + (db >> 1)) * 4 + 2 * (db & 1), V_SP + 8 + 2 * (qb & 1))
    o += wo_setup()
    if OPT.fused: o += grp_setup() + [nop(1), mode_load()] + ring_scalars()
    for j in range(4):
        for sc, d in wo_dma(j): o += sc + [nop(0), d]
    a(wait_vm(0)); a(raw("s_branch L_p3_entry", "branch"))
    return o

def last_iter(carried):
    o = []; a = o.append
    for qb in (2, 3): o += exposed(sm_group(31, 1, qb))
    o += xlane_reduce([V_L + q for q in range(4)], "v_add_f32", V_SP)
    a(salu(f"s_mov_b32 s{S_T0}, 0x{f32bits(L_LIMIT):08x}"))
    for qb in range(4):
        a(valu(f"v_cmp_nge_f32 s[{50+2*(qb&1)}:{51+2*(qb&1)}], s{S_T0}, v{V_L+qb}", [f"v{V_L+qb}"], [f"s{50+2*(qb&1)}", f"s{51+2*(qb&1)}"]))
        if qb & 1:
            a(nop(0)); a(salu("s_or_b64 s[50:51], s[50:51], s[52:53]"))
            a(salu("s_mov_b64 s[54:55], s[50:51]") if qb == 1 else salu("s_or_b64 s[54:55], s[54:55], s[50:51]"))
    a(salu("s_cselect_b32 s50, 1, 0"))
    a(salu(f"s_lshl_b32 s51, s{S_W}, 2")); a(salu(f"s_add_u32 s51, s51, {L_VOTE}"))
    a(valu(f"v_mov_b32 v{V_SP}, s50", [], [f"v{V_SP}"])); a(valu(f"v_mov_b32 v{V_SP+1}, s51", [], [f"v{V_SP+1}"]))
    a(I(f"ds_write_b32 v{V_SP+1}, v{V_SP}", "ds", [f"v{V_SP}", f"v{V_SP+1}"], []))
    carried = carried + [[]]
    for qb in range(4): a(trans(f"v_rcp_f32 v{V_L+qb}, v{V_L+qb}", [f"v{V_L+qb}"], [f"v{V_L+qb}"]))
    a(nop(0))
    g = Gaps(pv_mfmas(31, False))
    for db in range(5, 8):
        for jj in range(2): g.put_mem(4 * (db - 5) + 2 * jj, v_read(31, db, jj))
    for db in range(8, 16):
        for jj in range(2): g.put_mem(12 + 4 * (db - 8) + 2 * jj, v_read(31, db, jj))
    cons = [(4 * db, R("v", V_POOL + 4 * (db % 8), 4)) for db in range(16)]
    lead = add_lgkm_waits(g, cons, carried)
    gp = put_wo(g, 2, 2, step=0)
    put_wo(g, 3, gp, step=0)
    left = []
    for db in range(16):
        for qb in range(4):
            ops = conv_ops((db * 4 + qb) * 4, V_Q + (qb * 8 + (db >> 1)) * 4 + 2 * (db & 1), V_SP + 8 + 2 * (qb & 1))
            if left: left += ops
            else:
                _, l2 = place_chain(g, ops, 4 * db + qb + 5, 64); left += l2
    a(lead); o += g.emit()
    a(nop(7)); o += left
    return o

WOBUF = [L_X, L_K, L_K + 32768, L_V, L_V + 32768, L_X, L_K]
V_DWO = 3; V_STO = V_DV
V_FR3 = 32; V_ACC3 = V_P; V_STG = 16
def wo_dma(j):
    out = []
    for i in range(8):
        sreg = S_T0 + (i & 1)
        out.append(([salu(f"s_mov_b32 s{sreg}, {j*128 + i*32*896}", [], [f"s{sreg}"]),
                     salu(f"s_add_u32 m0, s{S_W1K}, {WOBUF[j] + i*4096}", [f"s{S_W1K}"], ["m0"])],
                    tag(dma(V_DWO, S_WO, f"s{sreg}", 0, OPT.wo_flags), f"wo{j}")))
    return out
A_WOS = 100
V_WOW = 39
def wo_stage_loads(j):
    out = []
    for i in range(8):
        sreg = S_T0 + (i & 1)
        out.append(([salu(f"s_mov_b32 s{sreg}, {j*128 + i*32*896}", [], [f"s{sreg}"])],
                    tag(bload_f("a", A_WOS + 32 * (j - 5) + 4 * i, 4, V_DWO, S_WO, f"s{sreg}", 0, OPT.wo_flags), f"wos{j}")))
    return out
def wo_stage_write(j, i):
    r = A_WOS + 32 * (j - 5) + 4 * i
    return I(f"ds_write_b128 v{V_WOW + (j - 5) * 0}, {rng('a', r, 4)} offset:{i*4096}", "ds", [f"v{V_WOW}"] + R("a", r, 4), [])
def wo_setup():
    o = []; a = o.append
    L = f"v{V_LANE}"
    a(valu(f"v_lshrrev_b32 v1, 3, {L}", [L], ["v1"])); a(valu(f"v_and_b32 v2, 7, {L}", [L], ["v2"]))
    a(valu(f"v_lshl_add_u32 v3, s{S_W}, 3, v1", ["v1", f"s{S_W}"], ["v3"]))
    a(valu("v_bfe_u32 v1, v1, 1, 2", ["v1"], ["v1"])); a(valu("v_lshlrev_b32 v1, 1, v1", ["v1"], ["v1"]))
    a(valu("v_xor_b32 v1, v1, v2", ["v1", "v2"], ["v1"])); a(valu("v_lshlrev_b32 v1, 4, v1", ["v1"], ["v1"]))
    a(valu("v_mul_u32_u24 v3, 896, v3", ["v3"], ["v3"]))
    a(valu(f"v_add_u32 v{V_DWO}, v3, v1", ["v3", "v1"], [f"v{V_DWO}"]))
    return o
V_WOT = 2
def wo_touch_setup():
    if not OPT.wo_half:
        return [valu(f"v_lshl_add_u32 v{V_WOT}, s{S_W}, 6, v{V_LANE}", [f"v{V_LANE}"], [f"v{V_WOT}"]),
                valu(f"v_mul_u32_u24 v{V_WOT}, 896, v{V_WOT}", [f"v{V_WOT}"], [f"v{V_WOT}"])]
    return [salu("s_lshr_b32 s50, s2, 7"), salu("s_and_b32 s50, s50, 1"), salu("s_lshl_b32 s50, s50, 2"), salu(f"s_add_u32 s50, s50, s{S_W}"),
            salu("s_lshl_b32 s50, s50, 5"), valu(f"v_and_b32 v{V_WOT}, 31, v{V_LANE}", [f"v{V_LANE}"], [f"v{V_WOT}"]),
            valu(f"v_add_u32 v{V_WOT}, s50, v{V_WOT}", [f"v{V_WOT}"], [f"v{V_WOT}"]),
            valu(f"v_mul_u32_u24 v{V_WOT}, 896, v{V_WOT}", [f"v{V_WOT}"], [f"v{V_WOT}"])]
def wo_touch(j): return tag(bload(1, 1, V_WOT, S_WO, "0", j * 128, OPT.wt_flags), "wt")
def l2warm_setup():
    o = []; a = o.append
    L = f"v{V_LANE}"
    a(valu(f"v_min_u32 v20, 13, {L}", [L], ["v20"]))
    a(valu("v_cmp_lt_u32 vcc, 6, v20", ["v20"], ["vcc"])); a(valu("v_lshlrev_b32 v20, 7, v20", ["v20"], ["v20"]))
    a(valu(f"v_add_u32 v21, {CONS_OFF - 7*128}, v20", ["v20"], ["v21"]))
    a(valu("v_cndmask_b32 v20, v20, v21, vcc", ["v20", "v21", "vcc"], ["v20"]))
    a(valu(f"v_min_u32 v21, 27, {L}", [L], ["v21"])); a(salu(f"s_mul_i32 s50, s{S_W}, 28")); a(valu("v_add_u32 v21, s50, v21", ["v21"], ["v21"]))
    a(valu("v_mul_u32_u24 v22, 9363, v21", ["v21"], ["v22"])); a(valu("v_lshrrev_b32 v22, 16, v22", ["v22"], ["v22"]))
    a(valu("v_mul_u32_u24 v23, 7, v22", ["v22"], ["v23"])); a(valu("v_sub_u32 v21, v21, v23", ["v21", "v23"], ["v21"]))
    a(valu("v_mul_u32_u24 v22, 1792, v22", ["v22"], ["v22"])); a(valu("v_lshl_add_u32 v21, v21, 7, v22", ["v21", "v22"], ["v21"]))
    a(salu(f"s_lshl_b32 s50, s{S_B}, 8")); a(salu(f"s_lshl_b32 s51, s{S_H}, 4")); a(salu("s_add_u32 s50, s50, s51"))
    a(salu("s_mul_i32 s50, s50, 1792")); a(salu(f"s_mul_i32 s51, s{S_BR}, 896")); a(salu(f"s_add_u32 s{S_WARM}, s50, s51"))
    a(salu(f"s_mul_i32 s{S_WARM+1}, s{S_G}, {14*64}"))
    return o
def l2warm_loads():
    return [tag(bload(22, 1, 20, S_FL, f"s{S_WARM+1}", 0), "wt"), tag(bload(23, 1, 21, S_OUT, f"s{S_WARM}", 0), "wt")]
def put_wo(g, j, start, hi=None, step=3):
    gp = start
    for sc, d in wo_dma(j): gp = place_vmem(g, gp, sc, d, hi) + step
    return gp
def va_shift(delta):
    t = (lambda r: f"v_add_u32 v{r}, {delta}, v{r}") if delta >= 0 else (lambda r: f"v_subrev_u32 v{r}, {-delta}, v{r}")
    return [valu(t(r), [f"v{r}"], [f"v{r}"]) for r in V_VA]

def part_ops(nb, qb):
    acc = V_ACC3 + 4 * ((nb * 4 + qb) % 8)
    st = V_STG + 4 * qb + 2 * (nb & 1)
    li = V_L + qb
    ops = [valu(f"v_mul_f32 v{acc+r}, v{acc+r}, v{li}", [f"v{acc+r}", f"v{li}"], [f"v{acc+r}"]) for r in range(4)]
    ops += [valu(f"v_cvt_pk_bf16_f32 v{st}, v{acc}, v{acc+1}", [f"v{acc}", f"v{acc+1}"], [f"v{st}"]),
            valu(f"v_cvt_pk_bf16_f32 v{st+1}, v{acc+2}, v{acc+3}", [f"v{acc+2}", f"v{acc+3}"], [f"v{st+1}"])]
    return ops

A_FR3 = 0; A_SEL = 224
V_POLLA, V_POLL, V_ONE, V_ZERO, V_RLD, V_OUT = 32, 33, 34, 35, 36, 37
V_RD = 40
V_GRP = V_ARR + 3
def wo_read(nb, s_, jj):
    return ds_read_tr("a", A_FR3 + 4 * (8 * (nb & 1) + s_) + 2 * jj, V_VA[nb], s_ * 4096 + jj * 2048)

V_GA = V_ARR + 2
def grp_setup():
    return [salu(f"s_lshl_b32 s{S_T0}, s{S_G}, 4"), valu(f"v_and_b32 v{V_GA}, 3, v{V_LANE}", [f"v{V_LANE}"], [f"v{V_GA}"]),
            valu(f"v_lshlrev_b32 v{V_GA}, 2, v{V_GA}", [f"v{V_GA}"], [f"v{V_GA}"]), valu(f"v_add_u32 v{V_GA}, s{S_T0}, v{V_GA}", [f"v{V_GA}"], [f"v{V_GA}"])]
V_GA3 = 38
def grp_load(dst, tg, ga=V_GA): return tag(bload(dst, 1, ga, S_DBG, "0", 0, "sc1"), tg)
def splat(x): return x * 0x01010101
def mode_load(): return grp_load(V_ARR, "grp")
def mode_check():
    o = []; a = o.append
    a(salu(f"s_or_b32 s{S_T0}, s{S_XCC}, 0x80")); a(salu(f"s_mul_i32 s50, s{S_T0}, 0x01010101"))
    a(wait_tag("grp"))
    a(valu(f"v_and_b32 v{V_ARR}, 0x87878787, v{V_ARR}", [f"v{V_ARR}"], [f"v{V_ARR}"]))
    a(valu(f"v_cmp_eq_u32 vcc, s50, v{V_ARR}", [f"v{V_ARR}"], ["vcc"])); a(nop(0))
    a(salu("s_cmp_eq_u64 vcc, -1"))
    a(salu(f"s_cselect_b64 s[{S_LOCM}:{S_LOCM+1}], -1, 0"))
    if OPT.force_fallback: a(salu("s_cmp_eq_u32 s50, 0"))
    a(raw("s_cbranch_scc0 L_grp_far", "branch")); a(label("L_grp_ok"))
    f = [label("L_grp_far"), salu(f"s_or_b32 s{S_T0}, s{S_XCC}, 0x80"), valu(f"v_mov_b32 v{V_ARR+1}, s{S_T0}", [], []),
         valu(f"v_mov_b32 v{V_ARR+3}, 0", [], []),
         raw(f"buffer_store_byte v{V_ARR+1}, v{V_ARR+3}, s[{S_DBG}:{S_DBG+3}], s{S_SIG} offen sc1", "salu"), wait_vm(0),
         salu(f"s_mov_b32 s{S_SPIN}, {SPIN_MAX}"), label("L_grp_again"),
         salu(f"s_sub_u32 s{S_SPIN}, s{S_SPIN}, 1"), salu(f"s_cmp_eq_u32 s{S_SPIN}, 0"), raw("s_cbranch_scc1 L_grp_ok", "branch")]
    if not OPT.force_fallback:
        f += [raw(f"buffer_load_dword v{V_ARR}, v{V_GA}, s[{S_DBG}:{S_DBG+3}], 0 offen sc1", "salu"), wait_vm(0),
              valu(f"v_and_b32 v{V_ARR}, 0x87878787, v{V_ARR}", [], []), valu(f"v_cmp_eq_u32 vcc, s50, v{V_ARR}", [], []), nop(0),
              salu("s_cmp_eq_u64 vcc, -1"), salu(f"s_cselect_b64 s[{S_LOCM}:{S_LOCM+1}], -1, 0"), raw("s_cbranch_scc1 L_grp_ok", "branch")]
    f += far_read(V_ARR)
    f += [valu(f"v_and_b32 v{V_ARR+1}, 0x80808080, v{V_ARR}", [], []), valu(f"v_cmp_eq_u32 vcc, 0x80808080, v{V_ARR+1}", [], []), nop(0),
          salu("s_and_b64 s[52:53], vcc, 15"), salu("s_cmp_eq_u64 s[52:53], 15"), raw("s_cbranch_scc0 L_grp_again", "branch"),
          valu(f"v_and_b32 v{V_ARR}, 0x87878787, v{V_ARR}", [], []), valu(f"v_cmp_eq_u32 vcc, s50, v{V_ARR}", [], []), nop(0),
          salu("s_and_b64 s[52:53], vcc, 15"), salu("s_cmp_eq_u64 s[52:53], 15"),
          salu(f"s_cselect_b64 s[{S_LOCM}:{S_LOCM+1}], -1, 0")]
    if OPT.force_fallback: f.append(salu(f"s_mov_b64 s[{S_LOCM}:{S_LOCM+1}], 0"))
    f.append(raw("s_branch L_grp_ok", "branch"))
    OOL.extend(f)
    return o
def far_read(dst, ga=V_GA):
    return [valu(f"v_mov_b32 v{dst}, 0", [], []), valu(f"v_cmp_gt_u32 vcc, 4, v{V_LANE}", [], []),
            raw("s_and_saveexec_b64 s[54:55], vcc", "salu"),
            raw(f"buffer_atomic_add v{dst}, v{ga}, s[{S_DBG}:{S_DBG+3}], 0 offen sc0 sc1", "salu"), wait_vm(0),
            raw("s_mov_b64 exec, s[54:55]", "salu")]

def p3_setup():
    L = f"v{V_LANE}"
    o = [valu(f"v_lshlrev_b32 v{V_STO}, 4, {L}", [L], [f"v{V_STO}"])]
    if OPT.fused:
        o += [valu(f"v_mov_b32 v{V_ZERO}, 0", [], [f"v{V_ZERO}"]), valu(f"v_mov_b32 v{V_GA3}, v{V_GA}", [f"v{V_GA}"], [f"v{V_GA3}"])]
    else: o += far_setup()
    return o

def far_setup():
    o = []; a = o.append
    L = f"v{V_LANE}"
    a(salu(f"s_mul_i32 s{S_PART}, s{S_G}, {7*16*16*2048}"))
    a(salu(f"s_lshl_b32 s{S_T2}, s{S_H}, 15")); a(salu(f"s_add_u32 s{S_RBASE}, s{S_PART}, s{S_T2}"))
    a(salu(f"s_lshl_b32 s{S_T2}, s{S_W}, 17")); a(salu(f"s_add_u32 s{S_PART}, s{S_PART}, s{S_T2}"))
    a(salu(f"s_lshl_b32 s{S_T2}, s{S_H}, 11")); a(salu(f"s_add_u32 s{S_PART}, s{S_PART}, s{S_T2}"))
    if not OPT.fused: return o
    a(salu(f"s_or_b32 s{S_T2}, s{S_XCC}, 0xf0")); a(valu(f"v_mov_b32 v{V_ONE}, s{S_T2}", [], [f"v{V_ONE}"]))
    a(valu(f"v_lshrrev_b32 v1, 5, {L}", [L], ["v1"])); a(valu("v_lshlrev_b32 v1, 11, v1", ["v1"], ["v1"]))
    a(valu(f"v_and_b32 v2, 31, {L}", [L], ["v2"])); a(valu(f"v_lshl_add_u32 v{V_RLD}, v2, 4, v1", ["v1", "v2"], [f"v{V_RLD}"]))
    a(salu(f"s_lshl_b32 s{S_T2}, s{S_W}, 9")); a(valu(f"v_add_u32 v{V_RLD}, s{S_T2}, v{V_RLD}", [f"v{V_RLD}"], [f"v{V_RLD}"]))
    a(valu(f"v_and_b32 v1, 15, {L}", [L], ["v1"])); a(valu(f"v_lshrrev_b32 v2, 4, {L}", [L], ["v2"]))
    a(valu("v_lshrrev_b32 v4, 3, v1", ["v1"], ["v4"])); a(valu("v_and_b32 v5, 1, v2", ["v2"], ["v5"]))
    a(valu("v_and_b32 v48, 1, v1", ["v1"], ["v48"])); a(valu("v_lshlrev_b32 v48, 4, v48", ["v48"], ["v48"]))
    a(valu("v_mov_b32 v49, 0x3f80", [], ["v49"])); a(valu("v_lshlrev_b32 v49, v48, v49", ["v48", "v49"], ["v49"]))
    a(valu("v_cmp_eq_u32 vcc, v4, v5", ["v4", "v5"], ["vcc"])); a(nop(1))
    a(valu("v_cndmask_b32 v49, 0, v49, vcc", ["v49", "vcc"], ["v49"]))
    a(valu("v_bfe_u32 v50, v1, 1, 2", ["v1"], ["v50"]))
    for r in range(4):
        a(valu(f"v_cmp_eq_u32 vcc, {r}, v50", ["v50"], ["vcc"])); a(nop(1))
        a(valu("v_cndmask_b32 v51, 0, v49, vcc", ["v49", "vcc"], ["v51"]))
        a(valu(f"v_accvgpr_write_b32 a{A_SEL+r}, v51", ["v51"], [f"a{A_SEL+r}"]))
    a(salu(f"s_lshl_b32 s{S_T2}, s{S_B}, 8")); a(salu(f"s_lshl_b32 s{S_T3}, s{S_H}, 4")); a(salu(f"s_add_u32 s{S_T2}, s{S_T2}, s{S_T3}"))
    a(valu(f"v_add_u32 v{V_OUT}, s{S_T2}, v1", ["v1"], [f"v{V_OUT}"])); a(valu(f"v_mul_u32_u24 v{V_OUT}, 896, v{V_OUT}", [f"v{V_OUT}"], [f"v{V_OUT}"]))
    a(salu(f"s_mul_i32 s{S_T2}, s{S_BR}, 448")); a(salu(f"s_lshr_b32 s{S_T3}, s{S_W}, 1")); a(salu(f"s_lshl_b32 s{S_T3}, s{S_T3}, 5"))
    a(salu(f"s_add_u32 s{S_T2}, s{S_T2}, s{S_T3}")); a(salu(f"s_and_b32 s{S_T3}, s{S_W}, 1")); a(salu(f"s_lshl_b32 s{S_T3}, s{S_T3}, 3"))
    a(salu(f"s_add_u32 s{S_T2}, s{S_T2}, s{S_T3}"))
    a(valu(f"v_add_u32 v{V_OUT}, s{S_T2}, v{V_OUT}", [f"v{V_OUT}"], [f"v{V_OUT}"]))
    a(valu(f"v_lshl_add_u32 v{V_OUT}, v5, 4, v{V_OUT}", ["v5", f"v{V_OUT}"], [f"v{V_OUT}"]))
    a(valu("v_lshrrev_b32 v4, 1, v2", ["v2"], ["v4"])); a(valu(f"v_lshl_add_u32 v{V_OUT}, v4, 2, v{V_OUT}", ["v4", f"v{V_OUT}"], [f"v{V_OUT}"]))
    a(valu(f"v_lshlrev_b32 v{V_OUT}, 1, v{V_OUT}", [f"v{V_OUT}"], [f"v{V_OUT}"]))
    return o

def handoff_far():
    o = [wait_vm(0), barrier(), raw("buffer_wbl2 sc1", "salu"), wait_vm(0), barrier(),
         raw(f"buffer_store_byte v{V_ONE}, v{V_ZERO}, s[{S_DBG}:{S_DBG+3}], s{S_SIG} offen sc1", "salu"), wait_vm(0),
         salu(f"s_mov_b32 s{S_SPIN}, {SPIN_MAX}"), label("L_far_poll"),
         salu(f"s_sub_u32 s{S_SPIN}, s{S_SPIN}, 1"), salu(f"s_cmp_eq_u32 s{S_SPIN}, 0"), raw("s_cbranch_scc1 L_far_done", "branch")]
    o += far_read(V_POLL, V_GA3)
    o += [valu(f"v_and_b32 v{V_POLL}, 0xf0f0f0f0, v{V_POLL}", [], []), valu(f"v_cmp_eq_u32 vcc, 0xf0f0f0f0, v{V_POLL}", [], []), nop(0),
          salu("s_and_b64 s[52:53], vcc, 15"), salu("s_cmp_eq_u64 s[52:53], 15"), raw("s_cbranch_scc0 L_far_poll", "branch"),
          label("L_far_done"), raw("buffer_inv sc1", "salu"), wait_vm(0)]
    return o

A_PIECE = 0; A_SEL2 = 224
def red_loads(j):
    out = []
    for i in range(8):
        sr = "s52" if i % 2 == 0 else "s53"
        out.append(([salu(f"s_add_u32 {sr}, s{S_RBASE}, {j*16*32768 + i*4096}", [f"s{S_RBASE}"], [sr])],
                    tag(bload_f("a", A_PIECE + 32 * j + 4 * i, 4, V_RLD, S_WS, sr, 0, "sc1"), f"rl{j}")))
    return out
def red_mfmas(j):
    d = V_RD + 4 * (j & 1)
    return [mfma("v", d, "a", A_SEL2, "a", A_PIECE + 32 * j + 4 * i, None if i == 0 else "v", None if i == 0 else d) for i in range(8)]
def red_out(j):
    d = V_RD + 4 * (j & 1)
    return [valu(f"v_cvt_pk_bf16_f32 v{d}, v{d}, v{d+1}", [f"v{d}", f"v{d+1}"], [f"v{d}"]),
            valu(f"v_cvt_pk_bf16_f32 v{d+1}, v{d+2}, v{d+3}", [f"v{d+2}", f"v{d+3}"], [f"v{d+1}"])], tag(bstore(d, 2, V_OUT, S_OUT, "0", j * 128), f"out{j}")

A_RING = 64; A_SEL4 = 96
V_RLD4, V_OUT4, V_FLA, V_FLAG1 = 48, 49, 50, 51
def ring_scalars():
    o = []; a = o.append
    a(salu(f"s_mul_i32 s50, s{S_G}, {OPT.ring * 262144}"))
    a(salu(f"s_lshl_b32 s51, s{S_W}, 16")); a(salu(f"s_add_u32 s{S_RST}, s50, s51"))
    a(salu(f"s_lshl_b32 s51, s{S_H}, 10")); a(salu(f"s_add_u32 s{S_RST}, s{S_RST}, s51"))
    a(salu(f"s_lshl_b32 s51, s{S_H}, 14")); a(salu(f"s_add_u32 s{S_RLD}, s50, s51"))
    a(salu(f"s_mul_i32 s50, s{S_G}, {14*64}"))
    a(salu(f"s_lshl_b32 s51, s{S_W}, 4"))
    a(salu(f"s_add_u32 s{S_FPW}, s50, s51")); a(salu(f"s_add_u32 s{S_FPW}, s{S_FPW}, s{S_H}"))
    a(salu(f"s_add_u32 s{S_FCR}, s50, s51")); a(salu(f"s_add_u32 s{S_FCR}, s{S_FCR}, {CONS_OFF}"))
    a(salu(f"s_lshr_b32 s51, s{S_H}, 2")); a(salu(f"s_lshl_b32 s51, s51, 4"))
    a(salu(f"s_add_u32 s{S_FPR}, s50, s51"))
    a(salu(f"s_lshl_b32 s51, s{S_H}, 2")); a(salu(f"s_add_u32 s{S_FCW}, s50, s51"))
    a(salu(f"s_add_u32 s{S_FCW}, s{S_FCW}, s{S_W}")); a(salu(f"s_add_u32 s{S_FCW}, s{S_FCW}, {CONS_OFF}"))
    return o
def ring_setup():
    o = []; a = o.append
    L = f"v{V_LANE}"
    a(valu(f"v_and_b32 v{V_FLA}, 3, {L}", [L], [f"v{V_FLA}"])); a(valu(f"v_lshlrev_b32 v{V_FLA}, 2, v{V_FLA}", [f"v{V_FLA}"], [f"v{V_FLA}"]))
    a(valu(f"v_mov_b32 v{V_FLAG1}, 1", [], [f"v{V_FLAG1}"]))
    a(valu(f"v_and_b32 v1, 15, {L}", [L], ["v1"])); a(valu(f"v_lshrrev_b32 v2, 4, {L}", [L], ["v2"]))
    a(valu(f"v_lshlrev_b32 v{V_RLD4}, 10, v2", ["v2"], [f"v{V_RLD4}"])); a(valu(f"v_lshl_add_u32 v{V_RLD4}, v1, 4, v{V_RLD4}", ["v1", f"v{V_RLD4}"], [f"v{V_RLD4}"]))
    a(salu(f"s_lshl_b32 s{S_T1}, s{S_W}, 8")); a(valu(f"v_add_u32 v{V_RLD4}, s{S_T1}, v{V_RLD4}", [f"v{V_RLD4}"], [f"v{V_RLD4}"]))
    a(valu("v_and_b32 v4, 1, v1", ["v1"], ["v4"])); a(valu("v_lshlrev_b32 v4, 4, v4", ["v4"], ["v4"]))
    a(valu("v_mov_b32 v5, 0x3f80", [], ["v5"])); a(valu("v_lshlrev_b32 v5, v4, v5", ["v4", "v5"], ["v5"]))
    a(valu("v_lshrrev_b32 v4, 1, v1", ["v1"], ["v4"]))
    for r in range(4):
        a(valu(f"v_cmp_eq_u32 vcc, {r}, v4", ["v4"], ["vcc"])); a(nop(1))
        a(valu("v_cndmask_b32 v52, 0, v5, vcc", ["v5", "vcc"], ["v52"]))
        a(valu(f"v_accvgpr_write_b32 a{A_SEL4+r}, v52", ["v52"], [f"a{A_SEL4+r}"]))
    a(salu(f"s_lshl_b32 s{S_T0}, s{S_B}, 8")); a(salu(f"s_lshl_b32 s{S_T1}, s{S_H}, 4")); a(salu(f"s_add_u32 s{S_T0}, s{S_T0}, s{S_T1}"))
    a(valu(f"v_add_u32 v{V_OUT4}, s{S_T0}, v1", ["v1"], [f"v{V_OUT4}"])); a(valu(f"v_mul_u32_u24 v{V_OUT4}, 896, v{V_OUT4}", [f"v{V_OUT4}"], [f"v{V_OUT4}"]))
    a(salu(f"s_mul_i32 s{S_T0}, s{S_BR}, 448")); a(salu(f"s_lshl_b32 s{S_T1}, s{S_W}, 2")); a(salu(f"s_add_u32 s{S_T0}, s{S_T0}, s{S_T1}"))
    a(valu(f"v_add_u32 v{V_OUT4}, s{S_T0}, v{V_OUT4}", [f"v{V_OUT4}"], [f"v{V_OUT4}"]))
    a(valu(f"v_lshl_add_u32 v{V_OUT4}, v2, 4, v{V_OUT4}", ["v2", f"v{V_OUT4}"], [f"v{V_OUT4}"]))
    a(valu(f"v_lshlrev_b32 v{V_OUT4}, 1, v{V_OUT4}", [f"v{V_OUT4}"], [f"v{V_OUT4}"]))
    a(valu("v_cmp_gt_u32 vcc, 2, v2", ["v2"], ["vcc"])); a(salu(f"s_mov_b32 s{S_T0}, 0x7ff00000")); a(valu(f"v_mov_b32 v4, s{S_T0}", [], ["v4"]))
    a(valu(f"v_cndmask_b32 v{V_OUT4}, v4, v{V_OUT4}, vcc", ["v4", f"v{V_OUT4}", "vcc"], [f"v{V_OUT4}"]))
    return o

def flag_store(base, u, tg):
    return [salu(f"s_add_u32 s55, s{base}, {u*64}", [f"s{base}"], ["s55"])], \
           tag(I(f"buffer_store_byte v{V_FLAG1}, v{V_ZERO}, s[{S_FL}:{S_FL+3}], s55 offen", "vst", [f"v{V_FLAG1}", f"v{V_ZERO}", "s55"], data=[]), tg)
def flag_poll(base, u, dst, tg):
    return [salu(f"s_add_u32 s54, s{base}, {u*64}", [f"s{base}"], ["s54"])], tag(bload(dst, 1, V_FLA, S_FL, "s54", 0, "sc1"), tg)
def flag_check(base, u, dst, tg, name):
    OOL.extend([label(f"L_{name}_spin"), salu(f"s_add_u32 s54, s{base}, {u*64}"), salu(f"s_mov_b32 s{S_SPIN}, {SPIN_MAX}"),
                label(f"L_{name}_again"),
                salu(f"s_sub_u32 s{S_SPIN}, s{S_SPIN}, 1"), salu(f"s_cmp_eq_u32 s{S_SPIN}, 0"), raw(f"s_cbranch_scc1 L_{name}_ok", "branch"),
                raw(f"buffer_load_dword v{dst}, v{V_FLA}, s[{S_FL}:{S_FL+3}], s54 offen sc1", "salu"), wait_vm(0),
                valu(f"v_cmp_ne_u32 vcc, 0x01010101, v{dst}", [], []), nop(0),
                raw(f"s_cbranch_vccnz L_{name}_again", "branch"), raw(f"s_branch L_{name}_ok", "branch")])
    dd = (lambda n: stamp("d_" + n)) if name in (f"prod{OPT.p3detail}", f"cons{OPT.p3detail}") else (lambda n: [])
    return dd(name[:4] + "A") + [wait_tag(tg)] + dd(name[:4] + "B") + [valu(f"v_cmp_ne_u32 vcc, 0x01010101, v{dst}", [f"v{dst}"], ["vcc"]), nop(0),
            raw(f"s_cbranch_vccnz L_{name}_spin", "branch"), label(f"L_{name}_ok")] + dd(name[:4] + "C")
V_PP, V_PC = 53, 54
def ring_loads(u):
    out = []
    for i in range(4):
        sr = "s52" if i % 2 == 0 else "s53"
        out.append(([salu(f"s_add_u32 {sr}, s{S_RLD}, {(u % OPT.ring)*262144 + i*4096}", [f"s{S_RLD}"], [sr])],
                    tag(bload_f("a", A_RING + 16 * (u & 1) + 4 * i, 4, V_RLD4, S_RG, sr, 0, "sc1"), f"rl{u}")))
    return out
def ring_mfmas(u):
    d = V_RD + 4 * (u & 1)
    return [mfma("v", d, "a", A_SEL4, "a", A_RING + 16 * (u & 1) + 4 * i, None if i == 0 else "v", None if i == 0 else d) for i in range(4)]
def ring_out(u):
    d = V_RD + 4 * (u & 1)
    return [valu(f"v_cvt_pk_bf16_f32 v{d}, v{d}, v{d+1}", [f"v{d}", f"v{d+1}"], [f"v{d}"]),
            valu(f"v_cvt_pk_bf16_f32 v{d+1}, v{d+2}, v{d+3}", [f"v{d+2}", f"v{d+3}"], [f"v{d+1}"])], tag(bstore(d, 2, V_OUT4, S_OUT, "0", u * 64, OPT.out_flags), f"out{u}")

def p3_stream(local, carried):
    o = []; a = o.append
    NS, D = OPT.ring, OPT.prod_delay
    Q = lambda u: 8 * u + 7
    if OPT.tmpl == 0:
        T = dict(st=[0, 1, 2, 3], sig=(7, 5), poll=(12, 5), chk=(15, 7), ld=[(16, 7), (17, 7), (18, 7), (19, 7)], csig=(22, 3), out=(30, 5),
                 cpoll=(-4, 3), cchk=(-1, 3), wo=[(-4, 7), (-3, 3), (-3, 7), (-2, 7)], va=((0, 85), (1, 61), (2, 69), (3, 101)))
    else:
        T = dict(st=[0, 2, 4, 5], sig=(8, 5), poll=(13, 7), chk=(16, 7), ld=[(17, 3), (17, 7), (19, 3), (19, 7)], csig=(22, 3), out=(30, 5),
                 cpoll=(-4, 7), cchk=(-1, 3), wo=[(-6, 7), (-2, 7), (-1, 5), (-1, 7)], va=((0, 85), (1, 37), (2, 69), (3, 101)))
    ins = {}
    if local:
        for u in range(14):
            m = 8 * (Q(u) + 22 + D) - 1
            if m < 895: ins[m] = u
    ms = []; pos = {}; redpos = {}
    for m in range(896):
        j, i = m >> 7, m & 127
        nb, qb, s_ = i >> 5, (i >> 3) & 3, i & 7
        acc = V_ACC3 + 4 * ((nb * 4 + qb) % 8)
        pos[m] = len(ms)
        ms.append(mfma("v", acc, "a", A_FR3 + 4 * (8 * (nb & 1) + s_), "v", V_Q + (qb * 8 + s_) * 4,
                       None if s_ == 0 else "v", None if s_ == 0 else acc))
        if m in ins:
            u = ins[m]; redpos[u] = len(ms); ms += ring_mfmas(u)
    g = Gaps(ms); N = g.n
    P = lambda j, i: pos[128 * j + i]
    def G(period, off):
        m = 8 * period + off
        return pos[m] if 0 <= m < 896 else None
    for j in range(7):
        for nb in range(4):
            jn, nbn = (j, nb + 1) if nb < 3 else (j + 1, 0)
            if jn > 6: continue
            for s_ in range(8):
                for jj in range(2): g.put_mem(P(j, 32 * nb + 4 * s_ + 2 * jj), wo_read(nbn, s_, jj))
    cons = []
    for j in range(7):
        for nb in range(4):
            for s_ in (0, 2, 4, 6): cons.append((P(j, 32 * nb + s_), R("a", A_FR3 + 4 * (8 * (nb & 1) + s_), 8)))
    cons.sort()
    def put_vm(k, sc, d):
        assert g.mem[k] is None and not g.post[k], (k, d.text)
        for n, x in enumerate(reversed(sc)):
            kk = k - 1 - n
            assert kk >= 0
            assert not (g.mem[kk] is not None and g.mem[kk].kind == "dma" and "m0" in x.wr)
            g.pre[kk].append(x)
        g.mem[k] = d
    def put_seq(k, seq):
        assert g.mem[k] is None and not g.post[k], k
        g.post[k] = seq
    for j in range(6):
        need = not (OPT.wo_stage and j + 1 >= 5)
        if OPT.stagger:
            sfx = "l" if local else "f"
            for w in range(4):
                k = P(j, 94 - OPT.stagger * (3 - w))
                wt = []
                if need:
                    x = wait_tag(f"wo{j+1}"); x.meta["pseudo"] = True
                    if w < 3: x.meta["notrim"] = True
                    wt = [x]
                g.pre[k] += [salu(f"s_bitcmp1_b32 s{S_WM}, {w}", [], ["scc"]), raw(f"s_cbranch_scc1 L_bar{sfx}{j}_{w}", "branch")] + wt + [label(f"L_barret{sfx}{j}_{w}")]
                OOL_LATE.append((f"L_bar{sfx}{j}_{w}", wt, f"L_barret{sfx}{j}_{w}"))
        else:
            k = P(j, 91)
            g.pre[k] += ([wait_tag(f"wo{j+1}")] if need else []) + [barrier()]
        sh = va_shift(WOBUF[j + 1] - WOBUF[j])
        for n, at in T['va']:
            kk = P(j, at); g.vec[kk].append(sh[n])
    if OPT.wo_stage:
        items = wo_dma(4) + wo_stage_loads(5) + wo_stage_loads(6)
        slots = [(0, 3), (0, 5), (0, 7), (1, 1), (1, 3), (1, 5), (1, 7)] + [(per, off) for per in range(2, 7) for off in (3, 5, 7)] + [(7, 5), (7, 7)]
        if OPT.tmpl == 1:
            slots = [(0, 3), (0, 5), (0, 7), (1, 1), (1, 3), (1, 5), (1, 7)] + [(per, off) for per in range(2, 7) for off in (3, 5, 7)] + [(7, 5), (7, 7)]
        for (sc, d), (per, off) in zip(items, slots): put_vm(G(per, off), sc, d)
        for j in (5, 6):
            jj_ = j - 3
            g.vec[P(jj_, 1)].insert(0, valu(f"v_add_u32 v{V_WOW}, {(WOBUF[j] - (WOBUF[j-1] if j == 6 else 0)) & 0xffffffff}, v{V_WOW}", [f"v{V_WOW}"], [f"v{V_WOW}"]))
            for i in range(8):
                u0 = 2 * jj_ + (i >> 2)
                per, off = Q(u0) + T['wo'][i & 3][0], T['wo'][i & 3][1]
                k = G(per, off)
                assert g.mem[k] is None
                g.mem[k] = wo_stage_write(j, i)
            u1 = 2 * jj_
            g.pre[G(Q(u1) + T['wo'][0][0], T['wo'][0][1]) - 1].append(wait_tag(f"wos{j}"))
    else:
      for j in (2, 3):
        items = wo_dma(j + 3)
        for n, (sc, d) in enumerate(items):
            u0 = 2 * j + (n >> 2)
            per, off = Q(u0) + T['wo'][n & 3][0], T['wo'][n & 3][1]
            put_vm(G(per, off), sc, d)
    lead = add_lgkm_waits(g, cons, carried)
    stores = {}; sgap = {}
    for u in range(14):
        j, nb = u >> 1, 2 * (u & 1) + 1
        for qb in range(4):
            sreg = S_T2 + (qb & 1)
            if local:
                st = ([salu(f"s_add_u32 s{sreg}, s{S_RST}, {(u % NS)*262144 + qb*16384}", [f"s{S_RST}"], [f"s{sreg}"])],
                      tag(bstore(V_STG + 4 * qb, 4, V_STO, S_RG, f"s{sreg}", 0, OPT.last_st if u >= 14 - NS else ""), f"st{u}"))
            else:
                so = j * 16 * 16 * 2048 + qb * 16 * 2048 + (nb >> 1) * 1024
                st = ([salu(f"s_add_u32 s{sreg}, s{S_PART}, {so}", [f"s{S_PART}"], [f"s{sreg}"])],
                      tag(bstore(V_STG + 4 * qb, 4, V_STO, S_WS, f"s{sreg}", 0), f"st{u}"))
            stores[(u, qb)] = st
            k = G(Q(u) + T['st'][qb], 3)
            sgap[(u, qb)] = k
            if k is not None: put_vm(k, *st)
    done = {}; out_left = []
    if local:
        for u in range(14):
            dd = (lambda n: stamp("d_" + n)) if u == OPT.p3detail else (lambda n: [])
            if u >= NS:
                kp, kc = G(Q(u) + T['cpoll'][0], T['cpoll'][1]), G(Q(u) + T['cchk'][0], T['cchk'][1])
                put_vm(kp, *flag_poll(S_FCR, u - NS, V_PC, f"pc{u}"))
                put_seq(kc, flag_check(S_FCR, u - NS, V_PC, f"pc{u}", f"cons{u}"))
            done[u] = "sig"
            k = G(Q(u) + T['sig'][0], T['sig'][1])
            if k is None or sgap[(u, 3)] is None: continue
            sc, d = flag_store(S_FPW, u, f"sig{u}")
            g.pre[k - 1] += dd("sigA") + [wait_tag(f"st{u}")] + dd("sigB"); put_vm(k, sc, d)
            done[u] = "poll"
            k = G(Q(u) + T['poll'][0] + D, T['poll'][1])
            if k is None: continue
            put_vm(k, *flag_poll(S_FPR, u, V_PP, f"pp{u}"))
            done[u] = "check"
            k = G(Q(u) + T['chk'][0] + D, T['chk'][1])
            if k is None: continue
            put_seq(k, flag_check(S_FPR, u, V_PP, f"pp{u}", f"prod{u}"))
            done[u] = "loads"
            if u not in redpos: continue
            for n, (sc, d) in enumerate(ring_loads(u)): put_vm(G(Q(u) + T['ld'][n][0] + D, T['ld'][n][1]), sc, d)
            g.pre[redpos[u] - 1] += dd("rlA") + [wait_tag(f"rl{u}")] + dd("rlB")
            if u <= 13 - NS: put_vm(G(Q(u) + T['csig'][0] + D, T['csig'][1]), *flag_store(S_FCW, u, f"csig{u}"))
            done[u] = "out"
            cv, st = ring_out(u)
            if u + 1 in redpos:
                g.vec[redpos[u + 1]] += cv
                put_vm(G(Q(u) + T['out'][0] + D, T['out'][1]), [], st)
                done[u] = "all"
    tail_main = []
    for p in range(112):
        j, nb, qb = p >> 4, (p >> 2) & 3, p & 3
        ops = part_ops(nb, qb)
        slots = [G(p + 2, 0), G(p + 2, 1), G(p + 2, 1), G(p + 2, 2), G(p + 2, 4), G(p + 2, 6)]
        if slots[0] is None:
            tail_main += ops
        else:
            for x, k in zip(ops, slots): g.vec[k].append(x)
        if nb & 1:
            u = 2 * j + (nb >> 1)
            if sgap[(u, qb)] is None: tail_main += stores[(u, qb)][0] + [nop(1), stores[(u, qb)][1]]
    if OPT.p3_tiles and local:
        for j in range(1, 7): g.pre[P(j, 0)] = stamp(f"tile{j}") + g.pre[P(j, 0)]
    if lead is not None: a(lead)
    em = g.emit()
    if "allst" in OPT.p3_drop: em = [x for x in em if x.kind != "vst"]
    if "pst" in OPT.p3_drop: em = [x for x in em if not (x.kind == "vst" and x.meta.get("tag", "").startswith("st"))]
    if "nospin" in OPT.p3_drop: em = [x for x in em if not (x.kind == "branch" and "vccnz" in x.text)]
    if "novm" in OPT.p3_drop: em = [x for x in em if not (x.kind == "wait" and "vmtags" in x.meta and not x.meta["vmtags"][0].startswith("wo"))]
    if "nold" in OPT.p3_drop: em = [x for x in em if not (x.kind == "vld" and x.meta.get("tag", "").startswith("rl"))]
    o += stamp("p3_stream_start") if (local or not OPT.fused) else []
    o += em
    if local or not OPT.fused: o += stamp("p3_mfma_end")
    a(nop(7)); o += exposed(tail_main)
    if local:
        todo = [u for u in range(14) if done[u] != "all"]
        LD = lambda u: [x for sc, d in ring_loads(u) for x in sc + [d]]
        POLL = lambda u: (lambda p: p[0] + [p[1]])(flag_poll(S_FPR, u, V_PP, f"pp{u}"))
        CHK = lambda u: flag_check(S_FPR, u, V_PP, f"pp{u}", f"prod{u}")
        SIG = lambda u: (lambda p: [wait_tag(f"st{u}")] + p[0] + [p[1]])(flag_store(S_FPW, u, f"sig{u}"))
        OUT = lambda u: (lambda p: p[0] + [p[1]])(ring_out(u))
        if OPT.tail2 and [done[u] for u in todo] == ["out", "loads", "poll", "sig"] and todo == [10, 11, 12, 13]:
            o += LD(11) + POLL(12) + SIG(13) + stamp("x_last_signal") + OUT(10)
            o += CHK(12) + LD(12) + [wait_tag("rl11")] + ring_mfmas(11)
            o += POLL(13) + CHK(13) + LD(13)
            o += [wait_tag("rl12")] + ring_mfmas(12) + [nop(3)] + OUT(11)
            o += [wait_tag("rl13")] + ring_mfmas(13) + [nop(3)] + OUT(12) + [nop(7)] + OUT(13)
        else:
            for u in todo:
                if done[u] == "sig": o += SIG(u)
            o += stamp("x_last_signal")
            for u in todo:
                if done[u] != "out":
                    if done[u] in ("sig", "poll"): o += POLL(u)
                    if done[u] in ("sig", "poll", "check"): o += CHK(u)
                    o += LD(u) + [wait_tag(f"rl{u}")] + ring_mfmas(u) + [nop(7)]
                o += OUT(u)
    return o

def phase3():
    o = []; a = o.append
    a(label("L_p3_entry"))
    a(wait_tag("wt", "wo0")); a(raw("s_waitcnt lgkmcnt(0)", "wait", lgkm=0)); a(barrier())
    a(valu(f"v_mov_b32 v1, {L_VOTE}", [], ["v1"]))
    a(ds_read128("v", V_SP, 1, 0)); a(wait_lgkm(0))
    a(valu(f"v_or3_b32 v{V_SP}, v{V_SP}, v{V_SP+1}, v{V_SP+2}", R("v", V_SP, 3), [f"v{V_SP}"]))
    a(valu(f"v_or_b32 v{V_SP}, v{V_SP}, v{V_SP+3}", [f"v{V_SP}", f"v{V_SP+3}"], [f"v{V_SP}"])); a(nop(0))
    a(valu(f"v_readfirstlane_b32 s50, v{V_SP}", [f"v{V_SP}"], ["s50"])); a(nop(3))
    a(salu(f"s_cmp_eq_u32 s{S_SAFE}, 0")); a(salu("s_cselect_b32 s50, s50, 0"))
    a(salu("s_cmp_lg_u32 s50, 0")); a(raw("s_cbranch_scc1 L_restart", "branch"))
    OOL.extend([label("L_restart"), wait_vm(0), raw("s_waitcnt lgkmcnt(0)", "wait", lgkm=0), barrier(),
                salu(f"s_mov_b32 s{S_SAFE}, 1"), raw("s_branch L_again", "branch")])
    o += p3_setup()
    if OPT.stagger: o += [salu(f"s_lshl_b32 s{S_WM}, 1, s{S_W}")]
    if OPT.fused: o += ring_setup()
    o += va_shift(WOBUF[0] - L_V)
    if OPT.fused: o += mode_check()
    carried = []
    for s_ in range(8):
        for jj in range(2):
            r = wo_read(0, s_, jj); a(r); carried.append(r.wr)
            if len(carried) == 14: a(wait_lgkm(6)); carried = carried[-6:]
    a(barrier())
    if OPT.wo_stage:
        a(valu(f"v_lshlrev_b32 v{V_WOW}, 4, v{V_LANE}", [f"v{V_LANE}"], [f"v{V_WOW}"]))
        a(valu(f"v_add_u32 v{V_WOW}, s{S_W1K}, v{V_WOW}", [f"v{V_WOW}"], [f"v{V_WOW}"]))
    else:
        for sc, d in wo_dma(4): o += sc + [nop(0), d]
    if not OPT.fused:
        return o, p3_stream(False, carried) + stamp("p3_end") + ([wait_vm(0)] if OPT.stamps else []) + stamp("rt_end"), []
    o += [salu(f"s_cmp_eq_u32 s{S_LOCM}, 0"), raw("s_cbranch_scc1 L_p3_far", "branch")]
    loc = p3_stream(True, carried)
    loc += stamp("p3_end") + ([wait_vm(0)] if OPT.stamps else []) + stamp("rt_end")
    far = [label("L_p3_far")] + far_setup() + p3_stream(False, carried) + handoff_far()
    for j in range(7):
        for sc, d in red_loads(j): far += sc + [d]
    for j in range(7):
        far.append(wait_tag(f"rl{j}"))
        far += red_mfmas(j)
        if j > 0:
            cv, stt = red_out(j - 1); far += cv + [stt]
    far.append(nop(7))
    cv, stt = red_out(6); far += cv + [stt]
    far += [wait_vm(0), raw("s_endpgm", "branch")]
    return o, loc, far

def dump_regs(base, n, agpr=False):
    o = [wait_vm(0), raw("s_waitcnt lgkmcnt(0)", "wait", lgkm=0), nop(7), nop(7),
         salu(f"s_lshl_b32 s{S_T0}, s2, 2"), salu(f"s_add_u32 s{S_T0}, s{S_T0}, s{S_W}"),
         salu(f"s_mul_i32 s{S_T0}, s{S_T0}, {n*256}"), valu(f"v_lshlrev_b32 v1, 2, v{V_LANE}", [f"v{V_LANE}"], ["v1"])]
    for r in range(n):
        if agpr:
            o.append(valu(f"v_accvgpr_read_b32 v2, a{base+r}", [f"a{base+r}"], ["v2"])); o.append(bstore(2, 1, 1, S_WS, f"s{S_T0}", 0))
        else:
            o.append(bstore(base + r, 1, 1, S_WS, f"s{S_T0}", 0))
        o.append(salu(f"s_add_u32 s{S_T0}, s{S_T0}, 256"))
        if r % 32 == 31 or agpr: o.append(wait_vm(0))
    return o

def stamp_out():
    if not OPT.stamps: return []
    if OPT.dma_stamps: STAMPS[:] = [f"dma{i}" for i in range(10)] + ["loopcyc"]
    if OPT.bar_stamps: STAMPS.extend(["acc_vm", "acc_bar"])
    n = len(STAMPS)
    o = [raw("s_waitcnt lgkmcnt(0)", "wait", lgkm=0), salu(f"s_cmp_lg_u32 s{S_W}, 0"), raw("s_cbranch_scc1 L_nostamp", "branch")]
    if OPT.stamp_dbg >= 0:
        o += [salu(f"s_cmp_lg_u32 s2, {OPT.stamp_dbg}"), raw("s_cbranch_scc1 L_nostamp", "branch")]
        o += [salu("s_load_dwordx2 s[36:37], s[0:1], 88"), raw("s_waitcnt lgkmcnt(0)", "wait", lgkm=0)]
        o += [salu(f"s_mov_b32 s{S_WS}, s36"), salu(f"s_mov_b32 s{S_WS+1}, s37"), salu(f"s_mov_b32 s{S_WS+2}, 256"), salu(f"s_mov_b32 s{S_T0}, 0")]
    else:
        o.append(salu(f"s_mul_i32 s{S_T0}, s2, 64")); o.append(salu(f"s_add_u32 s{S_T0}, s{S_T0}, {STAMP_OFF}"))
        o.append(salu(f"s_mov_b32 s{S_WS+2}, {STAMP_OFF + 256*64}"))
    o.append(valu("v_mov_b32 v1, 0", [], ["v1"]))
    for k in range(n):
        if OPT.stamp_dbg >= 0:
            ref = 0 if STAMPS[k].startswith("rt") else 1
            o.append(salu(f"s_sub_u32 s{S_T1}, s{S_STAMP+2*k}, s{S_STAMP+2*ref}"))
            o.append(valu(f"v_mov_b32 v2, s{S_T1}", [], ["v2"]))
        elif STAMPS[k] == "loopcyc": o.append(valu("v_mov_b32 v2, s100", [], ["v2"]))
        elif STAMPS[k] == "acc_vm": o.append(valu("v_mov_b32 v2, s92", [], ["v2"]))
        elif STAMPS[k] == "acc_bar": o.append(valu("v_mov_b32 v2, s93", [], ["v2"]))
        else:
            o.append(valu(f"v_mov_b32 v2, s{S_STAMP+2*k}", [], ["v2"]))
        o.append(bstore(2, 1, 1, S_WS, f"s{S_T0}", 4 * k)); o.append(wait_vm(0))
    o.append(label("L_nostamp"))
    return o

def finish(): return [wait_vm(0), label("L_end"), raw("s_endpgm", "branch")]

def trip_seq(ex):
    return [raw("s_memtime s[98:99]", "salu"), raw("s_memrealtime s[100:101]", "salu"), raw("s_waitcnt lgkmcnt(0)", "wait", lgkm=0),
            salu(f"s_mov_b32 s99, m0"), salu(f"s_mov_b32 m0, s{S_LOOP}"), nop(0), valu(f"v_writelane_b32 v1, s98, m0", ["s98"], ["v1"]),
            salu(f"s_add_u32 m0, s{S_LOOP}, 8"), nop(0), valu(f"v_writelane_b32 v1, s100, m0", ["s100"], ["v1"]),
            salu("s_mov_b32 m0, s99"), salu(f"s_cmp_lg_u32 s{S_LOOP}, {ex}")]
def build(debug=None):
    _stamp_n[0] = 0; STAMPS.clear(); OOL.clear(); OOL_LATE.clear()
    pre = setup() + phase1()
    if debug == "p1":
        pre += stamp("rt_end")
        resolve_vm(pre, [])
        return pre + stamp_out() + finish()
    if debug == "q":
        resolve_vm(pre, []); check(pre, "pre")
        return pre + dump_regs(V_Q, 128) + finish()
    if OPT.dma_mode == "cluster":
        OPT.dma_gaps = ([21, 23, 25, 27], [101, 103, 105, 107]); OPT.nv_prev = 0
    elif OPT.dma_mode == "cluster2":
        OPT.dma_gaps = ([41, 43, 47, 49], [101, 103, 105, 107]); OPT.nv_prev = 0
    NCUR = len(OPT.dma_gaps[1])
    pre += [salu(f"s_cmp_lg_u32 s{S_SAFE}, 0"), raw("s_cbranch_scc1 L_safe_attn", "branch")]
    p, carried = pre_iter(); pre += p
    def batch(t):
        return dma_tile("V", vslot(t + 3), f"s{S_VOFF}", f"V{t+3}") + dma_tile("K", kslot(t + 5), f"s{S_KOFF}", f"K{t+5}")
    pre += wo_setup()
    if OPT.fused: pre += grp_setup()
    def ex0(g, kb):
        put_wo(g, 0, 3, kb, step=8)
    vf0 = OPT.vfirst
    if OPT.early_trips: OPT.vfirst = OPT.vfirst_early
    s0, carried = attn_iter(0, carried, wait_tag("V1", "K2"), [], batch(0)[:NCUR], first=True, adv=False, extra=ex0)
    OPT.vfirst = vf0
    pre += s0
    pre.append(salu(f"s_mov_b32 s{S_LOOP}, 7"))
    if OPT.bar_stamps: pre += [salu("s_mov_b32 s92, 0"), salu("s_mov_b32 s93, 0")]
    pre += stamp("loop_start") + (stamp("rt_ls") if (OPT.bar_stamps or OPT.trip_stamps) else [])
    def loop_body(name):
        nonlocal carried
        lp = [label(name)]
        for u in range(4):
            t = 1 + u
            s, carried = attn_iter(t, carried, wait_vm(12), batch(t - 1)[NCUR:], batch(t)[:NCUR], loopctl=(u == 3), loop_body=True)
            if OPT.dma_stamps and u == 1:
                s2 = []; n = 0
                for x in s:
                    if x.kind == "dma" and n < 5:
                        s2 += [raw(f"s_memtime s[{80+4*n}:{81+4*n}]", "salu"), x, raw(f"s_memtime s[{82+4*n}:{83+4*n}]", "salu")]; n += 1
                    else: s2.append(x)
                s = s2
            lp += s
        return lp
    first_loop = []
    if OPT.early_trips:
        vf = OPT.vfirst; OPT.vfirst = OPT.vfirst_early
        pd = OPT.pad_iter; OPT.pad_iter = OPT.pad_early
        vl = OPT.v_lead; OPT.v_lead = OPT.v_lead_early
        OPT.loop_exit = 7 - OPT.early_trips
        first_loop = loop_body("L_attn_early") + (trip_seq(OPT.loop_exit) if OPT.trip_stamps else []) + [raw("s_cbranch_scc1 L_attn_early", "branch")]
        OPT.vfirst = vf; OPT.loop_exit = 0; OPT.pad_iter = pd; OPT.v_lead = vl
    loop = loop_body("L_attn")
    if OPT.trip_stamps: loop += trip_seq(0)
    if OPT.loop_nodma: loop = [x for x in loop if x.kind != "dma"]
    if OPT.loop_nods: loop = [x for x in loop if x.kind != "ds" and not (x.kind == "wait" and "lgkm" in x.meta and x.meta["lgkm"] > 0)]
    if OPT.loop_nomfma: loop = [(nop(1) if x.kind == "mfma" else x) for x in loop]
    if OPT.loop_novalu: loop = [x for x in loop if x.kind not in ("valu", "trans")]
    if OPT.loop_dma_every > 1:
        cnt = [0]
        def keep(x):
            if x.kind != "dma": return True
            cnt[0] += 1
            return cnt[0] % OPT.loop_dma_every == 0
        loop = [x for x in loop if keep(x)]
    loop.append(raw("s_cbranch_scc1 L_attn", "branch"))
    post = stamp("loop_end") + (stamp("rt_le") if OPT.bar_stamps else [])
    if OPT.trip_stamps:
        post += [valu(f"v_lshlrev_b32 v2, 2, v{V_LANE}", [], ["v2"]), salu(f"s_mul_i32 s{S_T1}, s2, 64"),
                 salu(f"s_add_u32 s{S_T1}, s{S_T1}, {STAMP_OFF + 256*64}"), salu(f"s_mov_b32 s{S_WS+2}, {STAMP_OFF + 2*256*64}"),
                 valu("v_cmp_gt_u32 vcc, 16, v0", ["v0"], ["vcc"]), salu(f"s_cmp_eq_u32 s{S_W}, 0"), raw("s_cselect_b64 s[50:51], vcc, 0", "salu"),
                 raw("s_mov_b64 s[54:55], exec", "salu"), raw("s_mov_b64 exec, s[50:51]", "salu"), raw("s_cbranch_execz L_notrip", "branch"),
                 raw(f"buffer_store_dword v1, v2, s[{S_WS}:{S_WS+3}], s{S_T1} offen", "salu"), wait_vm(0), label("L_notrip"), raw("s_mov_b64 exec, s[54:55]", "salu"), wait_vm(0)]
    def ex29(g, kb):
        if OPT.fused: place_vmem(g, 40, [], mode_load(), kb)
        gp = 50
        for j in OPT.wo_touch: gp = place_vmem(g, gp, [], wo_touch(j), kb) + 12
        if OPT.l2warm and OPT.fused:
            gp = 8
            for d in l2warm_loads(): gp = place_vmem(g, gp, [], d, kb) + 10
    post += wo_touch_setup()
    if OPT.l2warm and OPT.fused: post += l2warm_setup()
    s, carried = attn_iter(29, carried, wait_tag("V30", "K32"), batch(28)[NCUR:4], [], adv=False,
                           extra=ex29)
    post += s
    def ex30(g, kb):
        put_wo(g, 1, 3, kb, step=8)
        gp = 12
        for j in OPT.wo_touch30: gp = place_vmem(g, gp, [], wo_touch(j), kb) + 30
        if OPT.fused:
            k = 2
            for x in ring_scalars(): k = put_scalar(g, k, x) + 1
    s, carried = attn_iter(30, carried, wait_tag("V31"), [], [], adv=False, extra=ex30)
    post += s
    post += last_iter(carried)
    post += stamp("attn_end")
    if debug == "o":
        tailq = dump_regs(V_Q, 128)
    elif debug == "l":
        tailq = dump_regs(V_L, 4)
    else:
        common, loc, far = phase3()
        tailq = common
    post += tailq
    q = resolve_vm(pre, [])
    qexit = ["V30"] * 4 + ["K32"] * 4 + ["V31"] * NCUR
    qb_ = resolve_vm(post, qexit)
    if debug is None:
        resolve_vm(loc, qb_); resolve_vm(far, qb_)
        if far and not OPT.p3_drop: check(loop[1:] + post + far[1:], "loop+post+far", init_lgkm=[x.wr for x in pre if x.kind == "ds"][-8:], init_vm=[[]] * (8 + NCUR))
        post = post + loc
        OOL.extend(far)
    if not (OPT.p1_nowait or OPT.p1_noread or OPT.p1_drop or OPT.loop_nodma or OPT.loop_dma_every > 1 or OPT.loop_nods or OPT.loop_nomfma or OPT.loop_novalu): check(pre + loop[1:] + loop[1:], "pre+loop")
    if not (OPT.p3_drop or OPT.loop_nodma or OPT.loop_dma_every > 1 or OPT.loop_nods or OPT.loop_nomfma or OPT.loop_novalu): check(loop[1:] + post, "loop+post", init_lgkm=[x.wr for x in pre if x.kind == "ds"][-8:], init_vm=[[]] * (8 + NCUR))
    for lab, wt, ret in OOL_LATE:
        OOL.append(label(lab))
        for x in wt: OOL.append(I(x.text, "wait", vm=x.meta["vm"]))
        OOL.extend([barrier(), raw(f"s_branch {ret}", "branch")])
    OOL.extend(safe_attn())
    if first_loop: check(pre + first_loop[1:] + first_loop[1:] + loop[1:], "pre+early+loop")
    return pre + first_loop + loop + post + stamp_out() + finish() + OOL

def reduce_kernel():
    o = []; a = o.append
    a(salu("s_cmp_ge_u32 s2, 256")); a(raw("s_cbranch_scc1 R_end", "branch"))
    a(salu("s_load_dwordx2 s[4:5], s[0:1], 80")); a(salu("s_load_dwordx2 s[6:7], s[0:1], 96"))
    a(valu("v_lshrrev_b32 v1, 6, v0", ["v0"], ["v1"])); a(valu("v_and_b32 v0, 63, v0", ["v0"], ["v0"]))
    a(valu("v_readfirstlane_b32 s32, v1", ["v1"], ["s32"]))
    a(salu("s_lshr_b32 s33, s2, 4")); a(salu("s_and_b32 s34, s2, 15"))
    a(salu("s_lshr_b32 s35, s33, 3")); a(salu("s_and_b32 s36, s33, 7"))
    a(salu("s_lshr_b32 s37, s32, 1")); a(salu("s_and_b32 s38, s32, 1"))
    a(valu("v_lshrrev_b32 v2, 5, v0", ["v0"], ["v2"])); a(valu("v_lshlrev_b32 v2, 11, v2", ["v2"], ["v2"]))
    a(valu("v_and_b32 v3, 31, v0", ["v0"], ["v3"])); a(valu("v_lshl_add_u32 v2, v3, 4, v2", ["v3", "v2"], ["v2"]))
    a(salu("s_lshl_b32 s39, s37, 10")); a(salu("s_lshl_b32 s40, s38, 9")); a(salu("s_add_u32 s39, s39, s40"))
    a(valu("v_add_u32 v2, s39, v2", ["v2"], ["v2"]))
    a(valu("v_and_b32 v8, 15, v0", ["v0"], ["v8"])); a(valu("v_lshrrev_b32 v9, 4, v0", ["v0"], ["v9"]))
    a(valu("v_lshrrev_b32 v10, 3, v8", ["v8"], ["v10"])); a(valu("v_and_b32 v11, 1, v9", ["v9"], ["v11"]))
    a(valu("v_and_b32 v12, 1, v8", ["v8"], ["v12"])); a(valu("v_lshlrev_b32 v12, 4, v12", ["v12"], ["v12"]))
    a(valu("v_mov_b32 v13, 0x3f80", [], ["v13"])); a(valu("v_lshlrev_b32 v13, v12, v13", ["v12", "v13"], ["v13"]))
    a(valu("v_cmp_eq_u32 vcc, v10, v11", ["v10", "v11"], ["vcc"])); a(nop(1))
    a(valu("v_cndmask_b32 v13, 0, v13, vcc", ["v13", "vcc"], ["v13"]))
    a(valu("v_bfe_u32 v14, v8, 1, 2", ["v8"], ["v14"]))
    for r in range(4):
        a(valu(f"v_cmp_eq_u32 vcc, {r}, v14", ["v14"], ["vcc"])); a(nop(1))
        a(valu(f"v_cndmask_b32 v{4+r}, 0, v13, vcc", ["v13", "vcc"], [f"v{4+r}"]))
    a(salu("s_lshl_b32 s41, s36, 8")); a(salu("s_lshl_b32 s42, s34, 4")); a(salu("s_add_u32 s41, s41, s42"))
    a(valu("v_add_u32 v3, s41, v8", ["v8"], ["v3"])); a(valu("v_mul_u32_u24 v3, 896, v3", ["v3"], ["v3"]))
    a(salu("s_mul_i32 s42, s35, 448")); a(salu("s_lshl_b32 s43, s37, 5")); a(salu("s_add_u32 s42, s42, s43"))
    a(salu("s_lshl_b32 s43, s38, 3")); a(salu("s_add_u32 s42, s42, s43"))
    a(valu("v_add_u32 v3, s42, v3", ["v3"], ["v3"]))
    a(valu("v_lshl_add_u32 v3, v11, 4, v3", ["v11", "v3"], ["v3"]))
    a(valu("v_lshrrev_b32 v10, 1, v9", ["v9"], ["v10"])); a(valu("v_lshl_add_u32 v3, v10, 2, v3", ["v10", "v3"], ["v3"]))
    a(valu("v_lshlrev_b32 v3, 1, v3", ["v3"], ["v3"]))
    a(raw("s_waitcnt lgkmcnt(0)", "wait", lgkm=0))
    for base, lo, size in ((8, 6, 16 * 7 * 16 * 16 * 2048), (12, 4, 8 * 256 * 896 * 2)):
        a(salu(f"s_mov_b32 s{base}, s{lo}")); a(salu(f"s_mov_b32 s{base+1}, s{lo+1}"))
        a(salu(f"s_mov_b32 s{base+2}, {size}")); a(salu(f"s_mov_b32 s{base+3}, 0x20000"))
    a(salu(f"s_mul_i32 s44, s33, {7*16*32768}")); a(salu("s_lshl_b32 s45, s34, 15")); a(salu("s_add_u32 s44, s44, s45"))
    for j in range(7):
        for i in range(8):
            a(salu(f"s_add_u32 s46, s44, {j*16*32768 + i*4096}"))
            a(tag(bload(16 + (j * 8 + i) * 4, 4, 2, 8, "s46", 0), f"p{j}"))
    for j in range(7):
        a(wait_tag(f"p{j}"))
        d = 240 + 4 * (j & 1)
        for i in range(8):
            a(mfma("v", d, "v", 4, "v", 16 + (j * 8 + i) * 4, None if i == 0 else "v", None if i == 0 else d))
        a(nop(7))
        a(valu(f"v_cvt_pk_bf16_f32 v{d}, v{d}, v{d+1}", [f"v{d}", f"v{d+1}"], [f"v{d}"]))
        a(valu(f"v_cvt_pk_bf16_f32 v{d+1}, v{d+2}, v{d+3}", [f"v{d+2}", f"v{d+3}"], [f"v{d+1}"]))
        a(tag(bstore(d, 2, 3, 12, "0", j * 128), "o"))
    resolve_vm(o, []); check(o, "reduce")
    if OPT.stamps and OPT.stamp_fwd >= 0:
        o += [wait_vm(0), salu("s_cmp_lg_u32 s2, 0"), raw("s_cbranch_scc1 R_end", "branch"),
              salu("s_load_dwordx2 s[20:21], s[0:1], 88"), raw("s_waitcnt lgkmcnt(0)", "wait", lgkm=0),
              salu("s_mov_b32 s16, s20"), salu("s_mov_b32 s17, s21"), salu("s_mov_b32 s18, 64"), salu("s_mov_b32 s19, 0x20000"),
              salu(f"s_mov_b32 s10, {16*7*16*16*2048 + 256*64}"), salu(f"s_mov_b32 s46, {16*7*16*16*2048} + 64*{OPT.stamp_fwd}"),
              valu("v_lshlrev_b32 v2, 2, v0", ["v0"], ["v2"]), bload(3, 1, 2, 8, "s46", 0), wait_vm(0), bstore(3, 1, 2, 16, "0", 0)]
    o += [wait_vm(0), label("R_end"), raw("s_endpgm", "branch")]
    return o

KD = """.section .rodata,"a"
.p2align 6
.amdhsa_kernel {name}
  .amdhsa_next_free_vgpr {vgpr}
  .amdhsa_next_free_sgpr 102
  .amdhsa_accum_offset 256
  .amdhsa_group_segment_fixed_size 0
  .amdhsa_kernarg_size 104
  .amdhsa_user_sgpr_count 2
  .amdhsa_user_sgpr_kernarg_segment_ptr 1
  .amdhsa_system_sgpr_workgroup_id_x 1
.end_amdhsa_kernel
"""
DESCRIPTION = """
; ---------------------------------------------------------------------------------------------------------------
; Two cached-attention blocks (A, B), concatenated on the last axis; one fused launch, 256 workgroups of 4 waves.
; Workgroup = (branch, batch, head); wave = 64 query rows.  All matrix work is v_mfma_f32_16x16x32_bf16 in the
; transposed form (lane = query row), so every result feeds the next product without a shuffle.
;   phase 1  Q^T = Wq^T x^T          Wq and x staged in LDS by LDS-DMA, 64 columns per step, fp32 in AGPRs -> bf16
;   phase 2  S^T = K Q^T, P = exp2(c S - c m), O^T += V^T P^T        32 keys per tile, 4+4 slot LDS ring, software
;            pipelined (QK of tile t+1 | PV of tile t), one barrier per tile.  m is the row maximum of the first tile;
;            the row sums are checked afterwards and a workgroup whose sums exceed 2^30 (or are NaN) repeats its work
;            with the exact running maximum and a rescale on every tile (L_restart / L_safe_attn).
;   phase 3  partial out^T = Wo_h^T O^T / l, bf16, exchanged between the 16 heads of a (branch, batch) and summed in
;            fp32 by an MFMA with a 0/1 selection matrix.  When the 16 workgroups report the same XCD the pieces go
;            through a small ring that stays in that XCD's L2 (byte flags, reset at the start of the launch);
;            otherwise (L_p3_far) they are released and acquired at device scope.
; d_debug: one byte per workgroup (arrived, XCD id, done).  d_ws: partial sums, flags, ring.
; ---------------------------------------------------------------------------------------------------------------
""".strip("\n").splitlines()

def header_comments():
    ref = open("cdna_kernels/" + NAME + ".s.ref").read().splitlines()
    out = []
    for l in ref:
        if l.startswith("; Override launch") or not l.startswith(";"): break
        out.append(l)
    return out

def stream_kernel():
    t = """
  s_cmp_ge_u32 s2, 256
  s_cbranch_scc1 S_end
  s_load_dwordx2 s[4:5], s[0:1], 8
  s_load_dwordx2 s[6:7], s[0:1], 96
  s_load_dwordx2 s[8:9], s[0:1], 48
  v_lshrrev_b32 v2, 6, v0
  s_nop 0
  v_readfirstlane_b32 s24, v2
  v_and_b32 v1, 63, v0
  v_lshlrev_b32 v14, 4, v1
  s_nop 2
  s_lshl_b32 s25, s24, 12
  v_add_u32 v14, s25, v14
  s_waitcnt lgkmcnt(0)
  s_cmp_lt_u32 s2, 128
  s_cselect_b32 s36, s4, s8
  s_cselect_b32 s37, s5, s9
  s_mov_b32 s38, 0x4000000
  s_mov_b32 s39, 0x20000
  s_and_b32 s32, s2, 127
  s_lshl_b32 s32, s32, 19
  s_barrier
  s_memrealtime s[12:13]
  s_mov_b32 s20, 0
S_loop:
  s_mov_b32 m0, s25
  s_nop 0
  buffer_load_dwordx4 v14, s[36:39], s32 offen nt lds
  buffer_load_dwordx4 v14, s[36:39], s32 offen offset:1024 nt lds
  buffer_load_dwordx4 v14, s[36:39], s32 offen offset:2048 nt lds
  buffer_load_dwordx4 v14, s[36:39], s32 offen offset:3072 nt lds
  s_add_u32 s32, s32, 16384
  s_waitcnt vmcnt(8)
  s_barrier
  s_add_u32 s20, s20, 1
  s_cmp_lt_u32 s20, 32
  s_cbranch_scc1 S_loop
  s_waitcnt vmcnt(0)
  s_barrier
  s_memrealtime s[16:17]
  s_waitcnt lgkmcnt(0)
  s_sub_u32 s16, s16, s12
  s_mov_b32 s40, s6
  s_mov_b32 s41, s7
  s_mov_b32 s42, %d
  s_mov_b32 s43, 0x20000
  s_mul_i32 s33, s2, 64
  s_add_u32 s33, s33, %d
  v_mov_b32 v2, s16
  v_mov_b32 v1, 0
  buffer_store_dword v2, v1, s[40:43], s33 offen
  s_waitcnt vmcnt(0)
S_end:
  s_endpgm""" % (16*7*16*16*2048 + 256*64, 16*7*16*16*2048 + 60)
    return t

def assemble_file(debug=None):
    main = build(debug)
    red = reduce_kernel()
    k1 = NAME + "_kernel"; k2 = "reduce_heads_kernel"
    L = header_comments()
    if OPT.stream0: L.append(f"; @launch kernel=stream_test_kernel grid=(256,1,1) block=(256,1,1) lds={LDS_BYTES}")
    if OPT.fused and not OPT.stream0:
        L.append(f"; @launch grid=(256,1,1) block=(256,1,1) lds={LDS_BYTES}")
    else:
        L.append(f"; @launch kernel={k1} grid=(256,1,1) block=(256,1,1) lds={LDS_BYTES}")
        if debug is None and not OPT.fused: L.append(f"; @launch kernel={k2} grid=(256,1,1) block=(256,1,1) lds=0")
    L += DESCRIPTION
    L.append('.amdgcn_target "amdgcn-amd-amdhsa--gfx950"')
    L.append(".text")
    for nm, body in ((k1, main), (k2, red)) if not OPT.fused else ((k1, main),):
        L += [f".globl {nm}", ".p2align 8", f".type {nm},@function", f"{nm}:", text(body)]
    if OPT.stream0: L += [".globl stream_test_kernel", ".p2align 8", ".type stream_test_kernel,@function", "stream_test_kernel:", stream_kernel()]
    L.append(KD.format(name=k1, vgpr=512))
    if not OPT.fused: L.append(KD.format(name=k2, vgpr=256))
    if OPT.stream0: L.append(KD.format(name="stream_test_kernel", vgpr=512))
    return "\n".join(L) + "\n"

if __name__ == "__main__":
    dbg = sys.argv[2] if len(sys.argv) > 2 and sys.argv[2] != "none" else None
    for kv in sys.argv[3:]:
        k, v = kv.split("=")
        v = v.replace("+", " ")
        setattr(OPT, k, {"True": True, "False": False, "()": ()}.get(v, int(v) if v.lstrip("-").isdigit() else (eval(v) if v.startswith("(") else v)))
    open(sys.argv[1], "w").write(assemble_file(dbg))
    print("stamps:", STAMPS)
```
